```python
import torch

def _softmax(x, axis=-1):
    return torch.softmax(x, dim=axis)
def _gelu(x):
    return torch.nn.functional.gelu(x, approximate="tanh")
def _silu(x):
    return torch.nn.functional.silu(x)
def _sigmoid(x):
    return torch.sigmoid(x)
def _layernorm(x, axis=-1, eps=1e-5):
    m = x.mean(dim=axis, keepdim=True)
    v = x.var(dim=axis, keepdim=True, unbiased=False)
    return (x - m) / torch.sqrt(v + eps)
def _scatter_add(tgt, idx, src, axis=0):
    return tgt.clone().index_add_(axis, idx, src)
def _segment_sum(src, seg, n):
    out = torch.zeros((n,) + src.shape[1:], dtype=src.dtype)
    return out.index_add_(0, seg, src)
def _pad(x, pw):
    flat = tuple(v for pair in reversed(pw) for v in pair)
    return torch.nn.functional.pad(x, flat)

kernel_name = 'sequential_preLN__mha_block__glu_gated_glu__prompt'

def setup_inputs():

    _w = (lambda a: (lambda t: t.to(torch.bfloat16) if t.is_floating_point() else t)(torch.as_tensor(a)))
    def _A_setup():
        B, S, D, H = 1, 2048, 512, 32
        return {
            "x": _w((lambda *s: torch.randn(*s, dtype=torch.bfloat16) * 0.05)(B, S, D)),
            "wqkv": _w((lambda *s: torch.randn(*s, dtype=torch.bfloat16) * 0.05)(D, 3 * D)),
            "wo": _w((lambda *s: torch.randn(*s, dtype=torch.bfloat16) * 0.05)(D, D)),
        }
    _A_in = _A_setup()

    def _B_setup():
        B, S, D, F = 1, 2048, 512, 1376
        return {
            "x": _w((lambda *s: torch.randn(*s, dtype=torch.bfloat16) * 0.05)(B, S, D)),
            "w_gate": _w((lambda *s: torch.randn(*s, dtype=torch.bfloat16) * 0.05)(D, F)),
            "w_up": _w((lambda *s: torch.randn(*s, dtype=torch.bfloat16) * 0.05)(D, F)),
            "w_down": _w((lambda *s: torch.randn(*s, dtype=torch.bfloat16) * 0.05)(F, D)),
        }
    _B_in = _B_setup()

    return {
        "A_x": _A_in["x"],
        "A_wqkv": _A_in["wqkv"],
        "A_wo": _A_in["wo"],
        "B_x": _B_in["x"],
        "B_w_gate": _B_in["w_gate"],
        "B_w_up": _B_in["w_up"],
        "B_w_down": _B_in["w_down"],
    }

def reference(A_x, A_wqkv, A_wo, B_x, B_w_gate, B_w_up, B_w_down):
    def _A_ref(x, wqkv, wo):
        B, S, D = x.shape
        H = 32
        Dh = D // H
        qkv = (lambda x, *d: x.permute(*d))((x @ wqkv).reshape(B, S, 3, H, Dh), 2, 0, 3, 1, 4)
        q, k, v = qkv[0], qkv[1], qkv[2]
        scores = torch.einsum("bhqd,bhkd->bhqk", q, k) * (Dh ** -0.5)
        p = _softmax(scores, axis=-1)
        o = torch.einsum("bhqk,bhkd->bhqd", p, v)
        return (lambda x, *d: x.permute(*d))(o, 0, 2, 1, 3).reshape(B, S, D) @ wo

    def _B_ref(x, w_gate, w_up, w_down):
        g = torch.einsum("bsd,df->bsf", x, w_gate)
        u = torch.einsum("bsd,df->bsf", x, w_up)
        h = _sigmoid(g) * u
        return torch.einsum("bsf,fd->bsd", h, w_down)

    x = A_x
    h = x + _A_ref(_layernorm(x, axis=-1), A_wqkv, A_wo)
    h2 = h + _B_ref(_layernorm(h, axis=-1), B_w_gate, B_w_up, B_w_down)
    return h2
```

```python
import re

REG_RE = re.compile(r"\b([vas])(\d+)\b|\b([vas])\[(\d+):(\d+)\]")


def regs_of(tok):
    out = set()
    for m in REG_RE.finditer(tok):
        if m.group(1):
            out.add((m.group(1), int(m.group(2))))
        else:
            for i in range(int(m.group(4)), int(m.group(5)) + 1):
                out.add((m.group(3), i))
    if re.search(r"\bvcc\b", tok):
        out.add(("s", "vcc"))
    if re.search(r"\bexec\b", tok):
        out.add(("s", "exec"))
    if re.search(r"\bm0\b", tok):
        out.add(("s", "m0"))
    return out


def split_ops(s):
    ops, depth, cur = [], 0, ""
    for ch in s:
        if ch == "[":
            depth += 1
        if ch == "]":
            depth -= 1
        if ch == "," and depth == 0:
            ops.append(cur.strip())
            cur = ""
        else:
            cur += ch
    if cur.strip():
        ops.append(cur.strip())
    return ops


TRANS = ("v_exp_f32", "v_log_f32", "v_rcp_f32", "v_rsq_f32", "v_sqrt_f32", "v_sin_f32", "v_cos_f32")


class Ins:
    def __init__(self, text):
        self.text = text
        t = text.split(";")[0].strip()
        parts = t.split(None, 1)
        self.mn = parts[0]
        rest = parts[1] if len(parts) > 1 else ""
        self.ops = split_ops(rest)
        mn = self.mn
        self.is_mfma = mn.startswith("v_mfma") or mn.startswith("v_smfmac")
        self.is_dot = mn.startswith("v_dot")
        self.is_valu = mn.startswith("v_") and not self.is_mfma
        self.is_salu = mn.startswith("s_")
        self.is_ds = mn.startswith("ds_")
        self.is_vmem = mn.startswith("buffer_") or mn.startswith("global_")
        self.is_trans = mn.replace("_e32", "").replace("_e64", "") in TRANS
        self.w = set()
        self.r = set()
        self.srcc = set()
        self.srcab = set()
        o = self.ops
        if self.is_mfma:
            self.w = regs_of(o[0])
            self.srcab = regs_of(o[1]) | regs_of(o[2])
            if mn.startswith("v_smfmac"):
                self.srcc = regs_of(o[0])
                self.srcab |= regs_of(o[3])
            else:
                self.srcc = regs_of(o[3])
            self.r = self.srcab | self.srcc
            self.passes = 8 if "32x32" in mn else 4
        elif self.is_valu:
            if mn.startswith("v_cmp"):
                self.w = regs_of(o[0])
                for x in o[1:]:
                    self.r |= regs_of(x)
            elif mn.startswith("v_permlane32_swap") or mn.startswith("v_permlane16_swap") or mn.startswith("v_swap"):
                self.w = regs_of(o[0]) | regs_of(o[1])
                self.r = set(self.w)
            elif mn.startswith("v_nop"):
                pass
            else:
                self.w = regs_of(o[0])
                k = 1
                if mn.startswith(("v_add_co", "v_sub_co", "v_addc_co", "v_subb_co")):
                    self.w |= regs_of(o[1])
                    k = 2
                for x in o[k:]:
                    self.r |= regs_of(x)
                if mn.startswith(("v_fmac", "v_dot2c", "v_mac")):
                    self.r |= regs_of(o[0])
                if mn.startswith("v_cndmask") and len(o) == 3:
                    self.r.add(("s", "vcc"))
        elif self.is_ds:
            if mn.startswith("ds_read") or mn.startswith("ds_bpermute") or mn.startswith("ds_swizzle"):
                self.w = regs_of(o[0])
                for x in o[1:]:
                    self.r |= regs_of(x)
            else:
                for x in o:
                    self.r |= regs_of(x)
        elif self.is_vmem:
            lds = bool(re.search(r"\blds\b", rest)) or "load_lds" in mn
            self.lds_dma = lds
            if "load" in mn and not lds:
                self.w = regs_of(o[0])
                for x in o[1:]:
                    self.r |= regs_of(x)
            else:
                for x in o:
                    self.r |= regs_of(x)
                if lds:
                    self.r.add(("s", "m0"))
            self.wide_store = "store" in mn and ("x3" in mn or "x4" in mn)
            if "store" in mn:
                self.store_data = regs_of(o[0]) if mn.startswith("buffer_") else regs_of(o[1])
        elif self.is_salu:
            if mn.startswith(("s_cmp", "s_cbranch", "s_branch", "s_waitcnt", "s_barrier", "s_nop", "s_endpgm",
                              "s_setprio", "s_sleep")):
                for x in o:
                    self.r |= regs_of(x)
            else:
                if o:
                    self.w = regs_of(o[0])
                for x in o[1:]:
                    self.r |= regs_of(x)
                if "saveexec" in mn:
                    self.w.add(("s", "exec"))

    def states(self):
        if self.mn == "s_nop":
            return int(self.ops[0], 0) + 1
        return 1


def vset(x):
    return {r for r in x if r[0] in "va"}


def sset(x):
    return {r for r in x if r[0] == "s"}


def required(p, c):
    need = 0
    XDL_RD = {4: 8, 8: 12}
    XDL_C_OVL = {4: 6, 8: 10}
    XDL_WAR = {4: 3, 8: 7}
    if p.is_mfma:
        d = p.w
        if c.is_mfma:
            if c.srcab & d:
                need = max(need, XDL_RD[p.passes])
            if c.srcc & d:
                if not (c.srcc == d and c.passes == p.passes):
                    need = max(need, XDL_C_OVL[p.passes])
            elif c.w & d:
                need = max(need, XDL_C_OVL[p.passes])
        elif c.is_valu or c.is_ds or c.is_vmem:
            if (c.r | c.w) & d:
                need = max(need, XDL_RD[p.passes])
        if c.is_valu and (c.w & p.srcc):
            need = max(need, XDL_WAR[p.passes])
    if p.is_valu:
        pv = vset(p.w)
        ps = sset(p.w)
        if c.is_mfma and (c.r & pv):
            need = max(need, 3 if p.is_dot else 2)
        if p.is_dot and (c.is_valu or c.is_mfma) and ((c.r | c.w) & pv):
            same = c.mn == p.mn and not ((regs_of(c.ops[1]) | regs_of(c.ops[2])) & pv)
            if not same:
                need = max(need, 3)
        if p.is_dot and (c.is_ds or c.is_vmem) and (c.r & pv):
            need = max(need, 3)
        if p.is_trans and (c.is_valu or c.is_mfma) and not c.is_trans and (c.r & pv):
            need = max(need, 1)
        if c.mn.startswith(("v_readfirstlane", "v_readlane")) and (c.r & pv):
            need = max(need, 1)
        if c.mn.startswith("v_permlane") and (c.r & pv):
            need = max(need, 2)
        if "dpp" in c.text and c.is_valu and (c.r & pv):
            need = max(need, 2)
        if ps:
            if c.is_vmem and (c.r & ps):
                need = max(need, 5)
            if c.is_valu and (c.r & ps):
                need = max(need, 2)
            if c.mn.startswith(("v_readlane", "v_writelane")) and (c.r & ps):
                need = max(need, 4)
            if ("s", "exec") in ps and c.is_mfma:
                need = max(need, 4)
    if p.is_salu and ("s", "m0") in p.w and c.is_vmem and getattr(c, "lds_dma", False):
        need = max(need, 1)
    if p.is_vmem and getattr(p, "wide_store", False):
        if (c.w & p.store_data):
            need = max(need, 2 if c.is_valu else 1)
    return need


class Asm:
    def __init__(self):
        self.lines = []
        self.vm_issued = 0
        self.lg_issued = 0
        self.vm_done = 0
        self.lg_done = 0

    def raw(self, s):
        self.lines.append(s)

    def __call__(self, s):
        for l in s.split("\n"):
            l = l.strip()
            if l:
                self.lines.append("    " + l)

    def label(self, name):
        self.lines.append(name + ":")

    def comment(self, s):
        self.lines.append("    ; " + s)

    def vm(self, s):
        self(s)
        self.vm_issued += 1
        return self.vm_issued - 1

    def lg(self, s):
        self(s)
        self.lg_issued += 1
        return self.lg_issued - 1

    def wait(self, vm=None, lg=None):
        parts = []
        if vm is not None and vm >= self.vm_done:
            n = self.vm_issued - 1 - vm
            assert n <= 63, n
            parts.append(f"vmcnt({n})")
            self.vm_done = vm + 1
        if lg is not None and lg >= self.lg_done:
            n = self.lg_issued - 1 - lg
            n = min(n, 15)
            parts.append(f"lgkmcnt({n})")
            self.lg_done = self.lg_issued - n
        if parts:
            self("s_waitcnt " + " ".join(parts))

    def wait_all(self, vm=True, lg=True):
        parts = []
        if vm:
            parts.append("vmcnt(0)")
            self.vm_done = self.vm_issued
        if lg:
            parts.append("lgkmcnt(0)")
            self.lg_done = self.lg_issued
        self("s_waitcnt " + " ".join(parts))

    def text(self):
        return "\n".join(self.lines) + "\n"


def check_hazards(text, name=""):
    ins = []
    for l in text.split("\n"):
        t = l.split(";")[0].strip()
        if not t or t.endswith(":") or t.startswith("."):
            continue
        ins.append(Ins(t))
    bad = 0
    for i, c in enumerate(ins):
        dist = 0
        for j in range(i - 1, max(-1, i - 24), -1):
            p = ins[j]
            need = required(p, c)
            if need > dist:
                print(f"HAZARD[{name}] need {need} have {dist}: '{p.text}' -> '{c.text}'")
                bad += 1
            dist += p.states()
            if dist >= 20:
                break
            if p.mn in ("s_endpgm", "s_branch"):
                break
    return bad
```

```python
import math
import struct
import sys

from asmlib import Asm, check_hazards

NAME = "sequential_preLN__mha_block__glu_gated_glu__prompt"

MB = 1 << 20
QF = 0
KVF = 2 * MB
OF = 6 * MB
HF = 8 * MB
ST = 10 * MB
GF = 12 * MB
WS_SIZE = 18 * MB

LOG2E = 1.4426950408889634


def f2u(x):
    return struct.unpack("<I", struct.pack("<f", x))[0]


def hx(x):
    return "0x%08x" % (x & 0xFFFFFFFF)


def vr(b, n):
    return f"v[{b}:{b + n - 1}]"


def ar(b, n):
    return f"a[{b}:{b + n - 1}]"


def sr(b, n):
    return f"s[{b}:{b + n - 1}]"


def srd(a, d, base, size):
    a(f"s_mov_b32 s{d}, s{base}")
    a(f"s_mov_b32 s{d + 1}, s{base + 1}")
    a(f"s_mov_b32 s{d + 2}, {hx(size)}")
    a(f"s_mov_b32 s{d + 3}, 0x00020000")


def interleave(main, fill, lead=0):
    out = []
    fill = list(fill)
    out += fill[:lead]
    fill = fill[lead:]
    n = len(main)
    per = len(fill) / n if n else 0
    used = 0
    for i, m in enumerate(main):
        out.append(m)
        upto = int(round(per * (i + 1)))
        out += fill[used:upto]
        used = upto
    out += fill[used:]
    return out


def kernel_begin(a, name, nwg):
    a.raw(f".globl {name}")
    a.raw(".p2align 8")
    a.raw(f".type {name},@function")
    a.label(name)
    a(f"s_cmp_ge_u32 s2, {nwg}")
    a(f"s_cbranch_scc1 L_{name}_done")


def kernel_end(a, name):
    a.label(f"L_{name}_done")
    a("s_endpgm")


def descriptor(name, vgpr, agpr, sgpr=96):
    acc = (vgpr + 3) // 4 * 4
    return f""".amdhsa_kernel {name}
  .amdhsa_next_free_vgpr {acc + agpr}
  .amdhsa_next_free_sgpr {sgpr}
  .amdhsa_accum_offset {acc}
  .amdhsa_group_segment_fixed_size 0
  .amdhsa_kernarg_size 80
  .amdhsa_user_sgpr_count 2
  .amdhsa_user_sgpr_kernarg_segment_ptr 1
  .amdhsa_system_sgpr_workgroup_id_x 1
.end_amdhsa_kernel
"""


def normalize_ops(x, t, vR, vNB, sMask):
    ops = []
    for i in range(4):
        ops.append(f"v_lshlrev_b32 v{t + 2 * i}, 16, v{x + i}")
        ops.append(f"v_and_b32 v{t + 2 * i + 1}, s{sMask}, v{x + i}")
    for i in range(8):
        ops.append(f"v_fma_f32 v{t + i}, v{t + i}, v{vR}, v{vNB}")
    for i in range(4):
        ops.append(f"v_cvt_pk_bf16_f32 v{x + i}, v{t + 2 * i}, v{t + 2 * i + 1}")
    return ops


def half_sum(a, r, t):
    a(f"v_mov_b32 v{t}, v{r}")
    a("s_nop 1")
    a(f"v_permlane32_swap_b32 v{r}, v{t}")
    a("s_nop 1")
    a(f"v_add_f32 v{r}, v{r}, v{t}")


def finish_stats(a, vS, vQ, vR, vNB, t, scale=1.0):
    a(f"v_mul_f32 v{vS}, {hx(f2u(1.0 / 512))}, v{vS}")
    a(f"v_mul_f32 v{vQ}, {hx(f2u(1.0 / 512))}, v{vQ}")
    a(f"v_fma_f32 v{t}, -v{vS}, v{vS}, v{vQ}")
    a(f"v_max_f32 v{t}, 0, v{t}")
    a(f"v_add_f32 v{t}, {hx(f2u(1e-5))}, v{t}")
    a(f"v_rsq_f32 v{vR}, v{t}")
    a("s_nop 0")
    if scale != 1.0:
        a(f"v_mul_f32 v{vR}, {hx(f2u(scale))}, v{vR}")
    a(f"v_mul_f32 v{vNB}, -v{vS}, v{vR}")


class LdsAddr:
    def __init__(self, a, regs):
        self.regs = regs

    def setup(self, a):
        for j in range(1, len(self.regs)):
            a(f"v_add_u32 v{self.regs[j]}, {hx(j * 65536)}, v{self.regs[0]}")

    def at(self, off):
        return f"v{self.regs[off >> 16]}", off & 0xFFFF


def gen_k1():
    name = "k1_qkv_kernel"
    a = Asm()
    kernel_begin(a, name, 256)
    sX, sW, sWS = 12, 16, 20
    sWave, sWr, sWc, sCg, sRb = 24, 25, 26, 27, 28
    sT0, sT1, sWL, sXL = 30, 31, 32, 33
    sMask, sOnes = 40, 41
    vLane, vL16, vWoff, vXrd, vT = 1, 2, 3, 4, 8
    vS, vQ, vR, vNB = 16, 17, 18, 19
    vKoff, vVoff = 20, 21
    vWrd = [24, 25, 26]
    X0 = 64
    accQ, accK, accV = 192, 208, 224
    a("s_load_dwordx4 s[4:7], s[0:1], 0")
    a("s_load_dwordx2 s[8:9], s[0:1], 72")
    a(f"v_and_b32 v{vLane}, 63, v0")
    a(f"v_lshrrev_b32 v5, 6, v0")
    a(f"v_lshlrev_b32 v{vL16}, 4, v{vLane}")
    a(f"v_readfirstlane_b32 s{sWave}, v5")
    a(f"s_and_b32 s{sCg}, s2, 7")
    a(f"s_lshr_b32 s{sRb}, s2, 3")
    a(f"s_mov_b32 s{sMask}, 0xffff0000")
    a(f"s_mov_b32 s{sOnes}, 0x3f803f80")
    a(f"s_lshr_b32 s{sWr}, s{sWave}, 1")
    a(f"s_and_b32 s{sWc}, s{sWave}, 1")
    a(f"v_lshrrev_b32 v5, 3, v{vLane}")
    a(f"v_lshrrev_b32 v6, 2, v{vLane}")
    a(f"v_and_b32 v6, 4, v6")
    a(f"v_and_b32 v7, 7, v{vLane}")
    a(f"v_xor_b32 v6, v6, v7")
    a(f"v_lshlrev_b32 v6, 4, v6")
    a(f"v_mul_u32_u24 v5, 3072, v5")
    a(f"v_add_u32 v{vWoff}, v5, v6")
    a(f"s_mul_i32 s{sT0}, s{sWave}, {16 * 3072}")
    a(f"s_lshl_b32 s{sT1}, s{sCg}, 7")
    a(f"s_add_u32 s{sT0}, s{sT0}, s{sT1}")
    a(f"v_add_u32 v{vWoff}, s{sT0}, v{vWoff}")
    a(f"s_mul_i32 s{sWL}, s{sWave}, {2 * 3072}")
    a(f"s_mul_i32 s{sXL}, s{sWave}, {16 * 1040}")
    a(f"s_lshl_b32 s{sT1}, s{sRb}, 16")
    a(f"s_lshl_b32 s34, s{sWave}, 14")
    a(f"s_add_u32 s34, s34, s{sT1}")
    a("s_waitcnt lgkmcnt(0)")
    srd(a, sX, 4, 2048 * 1024)
    srd(a, sW, 6, 512 * 3072)
    srd(a, sWS, 8, WS_SIZE)
    xtok = None
    for i in range(16):
        a(f"s_add_u32 m0, s{sXL}, {i * 1040}")
        a(f"s_add_u32 s{sT0}, s34, {i * 1024}")
        xtok = a.vm(f"buffer_load_dwordx4 v{vL16}, {sr(sX, 4)}, s{sT0} offen lds")
    SLOT = 24576
    slots = [163840 - 3 * SLOT, 163840 - 2 * SLOT, 163840 - SLOT, 0, SLOT, 2 * SLOT]
    stage_slot = [slots[0], slots[1], slots[2], slots[3], slots[4], slots[5], slots[0], slots[1]]
    wtok = {}

    def w_dma(st):
        for i in range(2):
            a(f"s_add_u32 m0, s{sWL}, {stage_slot[st] + i * 3072}")
            a(f"s_mov_b32 s{sT0}, {(64 * st + 8 * i) * 3072}")
            for seg in range(3):
                wtok[st] = a.vm(f"buffer_load_dwordx4 v{vWoff}, {sr(sW, 4)}, s{sT0} offen offset:{seg * 1024} lds")

    for st in range(3):
        w_dma(st)
    a(f"v_and_b32 v5, 31, v{vLane}")
    a(f"v_lshrrev_b32 v6, 5, v{vLane}")
    a(f"s_lshl_b32 s{sT0}, s{sWr}, 5")
    a(f"v_add_u32 v7, s{sT0}, v5")
    a(f"v_mul_u32_u24 v7, 1040, v7")
    a(f"v_lshl_add_u32 v{vXrd}, v6, 4, v7")
    a(f"v_mul_u32_u24 v7, 3072, v6")
    a(f"v_bfe_u32 v8, v{vLane}, 2, 2")
    a(f"v_lshl_add_u32 v7, v8, 7, v7")
    a(f"v_lshrrev_b32 v8, 1, v8")
    a(f"v_xor_b32 v8, s{sWc}, v8")
    a(f"v_lshl_add_u32 v7, v8, 6, v7")
    a(f"v_bfe_u32 v8, v{vLane}, 4, 1")
    a(f"v_lshl_add_u32 v7, v8, 5, v7")
    a(f"v_and_b32 v8, 3, v{vLane}")
    a(f"v_lshl_add_u32 v{vWrd[0]}, v8, 3, v7")
    wl = LdsAddr(a, vWrd)
    wl.setup(a)
    a(f"v_and_b32 v7, 0x33, v{vLane}")
    a(f"v_bfe_u32 v8, v{vLane}, 2, 1")
    a(f"v_lshl_or_b32 v7, v8, 3, v7")
    a(f"v_bfe_u32 v8, v{vLane}, 3, 1")
    a(f"v_lshl_or_b32 v7, v8, 2, v7")
    a(f"v_lshlrev_b32 v{vKoff}, 4, v7")
    a(f"v_bfe_u32 v7, v{vLane}, 4, 1")
    a(f"v_lshlrev_b32 v7, 17, v7")
    a(f"v_lshl_add_u32 v7, v6, 8, v7")
    a(f"v_and_b32 v8, 15, v{vLane}")
    a(f"v_lshl_add_u32 v{vVoff}, v8, 4, v7")
    for r in range(48):
        a(f"v_mov_b32 v{accQ + r}, 0")
    a(f"v_mov_b32 v{vS}, 0")
    a(f"v_mov_b32 v{vQ}, 0")
    a.wait(vm=xtok)
    a("s_barrier")
    for s in range(32):
        a.lg(f"ds_read_b128 {vr(X0 + 4 * s, 4)}, v{vXrd} offset:{s * 32}")
    a.wait_all(vm=False)
    a.wait(vm=wtok[0])
    a("s_barrier")
    for st in range(3, 6):
        w_dma(st)

    def w_reads(s):
        st, ss = divmod(s, 4)
        ops = []
        for seg in range(3):
            for half in range(2):
                reg, off = wl.at(stage_slot[st] + ss * 6144 + seg * 1024 + half * 512)
                ops.append(f"ds_read_b64_tr_b16 {ar(12 * (s & 1) + 4 * seg + 2 * half, 2)}, {reg} offset:{off}")
        return ops

    rtok = {}
    for op in w_reads(0):
        rtok[0] = a.lg(op)
    for r in range(128):
        a(f"v_dot2_f32_bf16 v{vS}, v{X0 + r}, s{sOnes}, v{vS}")
        a(f"v_dot2_f32_bf16 v{vQ}, v{X0 + r}, v{X0 + r}, v{vQ}")
    a("s_nop 2")
    half_sum(a, vS, 8)
    half_sum(a, vQ, 8)
    finish_stats(a, vS, vQ, vR, vNB, 8)
    for op in normalize_ops(X0, vT, vR, vNB, sMask):
        a(op)
    for s in range(32):
        st, ss = divmod(s, 4)
        a.wait(lg=rtok[s])
        if s + 1 < 32:
            if ss == 3:
                a.wait(vm=wtok[st + 1])
                a("s_barrier")
                if st + 6 < 8:
                    w_dma(st + 6)
            for op in w_reads(s + 1):
                rtok[s + 1] = a.lg(op)
        else:
            a("s_nop 0")
        wb = 12 * (s & 1)
        xf = vr(X0 + 4 * s, 4)
        mf = [
            f"v_mfma_f32_32x32x16_bf16 {vr(accQ, 16)}, {ar(wb, 4)}, {xf}, {vr(accQ, 16)}",
            f"v_mfma_f32_32x32x16_bf16 {vr(accK, 16)}, {ar(wb + 4, 4)}, {xf}, {vr(accK, 16)}",
            f"v_mfma_f32_32x32x16_bf16 {vr(accV, 16)}, {xf}, {ar(wb + 8, 4)}, {vr(accV, 16)}",
        ]
        fill = normalize_ops(X0 + 4 * (s + 1), vT, vR, vNB, sMask) if s + 1 < 32 else []
        for op in interleave(mf, fill):
            a(op)
    a(f"s_lshl_b32 s{sT0}, s{sCg}, 2")
    a(f"s_lshl_b32 s{sT1}, s{sWc}, 1")
    a(f"s_add_u32 s{sT0}, s{sT0}, s{sT1}")
    a(f"s_lshl_b32 s{sT1}, s{sRb}, 1")
    a(f"s_add_u32 s{sT1}, s{sT1}, s{sWr}")
    a(f"s_lshl_b32 s34, s{sT0}, 16")
    a(f"s_lshl_b32 s35, s{sT1}, 10")
    a(f"s_add_u32 s34, s34, s35")
    if QF:
        a(f"s_add_u32 s34, s34, {QF}")
    a(f"s_add_u32 s35, s34, 65536")
    a(f"s_lshl_b32 s36, s{sT0}, 17")
    a(f"s_lshl_b32 s37, s{sT1}, 11")
    a(f"s_add_u32 s36, s36, s37")
    a(f"s_add_u32 s36, s36, {KVF}")
    a(f"s_add_u32 s37, s36, 131072")
    a(f"s_mov_b32 s38, {hx(f2u(0.25 * LOG2E))}")
    P = X0
    for r in range(16):
        a(f"v_mul_f32 v{accQ + r}, s38, v{accQ + r}")
    for i in range(8):
        a(f"v_cvt_pk_bf16_f32 v{P + i}, v{accQ + 2 * i}, v{accQ + 2 * i + 1}")
    a.vm(f"buffer_store_dwordx4 {vr(P, 4)}, v{vL16}, {sr(sWS, 4)}, s34 offen")
    a.vm(f"buffer_store_dwordx4 {vr(P + 4, 4)}, v{vL16}, {sr(sWS, 4)}, s35 offen")
    for i in range(8):
        a(f"v_cvt_pk_bf16_f32 v{P + 8 + i}, v{accK + 2 * i}, v{accK + 2 * i + 1}")
    a.vm(f"buffer_store_dwordx4 {vr(P + 8, 4)}, v{vKoff}, {sr(sWS, 4)}, s36 offen")
    a.vm(f"buffer_store_dwordx4 {vr(P + 12, 4)}, v{vKoff}, {sr(sWS, 4)}, s37 offen")
    for i in range(8):
        a(f"v_cvt_pk_bf16_f32 v{P + 16 + i}, v{accV + 2 * i}, v{accV + 2 * i + 1}")
    a.vm(f"buffer_store_dwordx4 {vr(P + 16, 4)}, v{vVoff}, {sr(sWS, 4)}, s36 offen offset:1024")
    a.vm(f"buffer_store_dwordx4 {vr(P + 20, 4)}, v{vVoff}, {sr(sWS, 4)}, s36 offen offset:1536")
    kernel_end(a, name)
    return name, a.text(), descriptor(name, 240, 24), (256, 256, 163840)


def gen_k2():
    name = "k2_attn_kernel"
    a = Asm()
    kernel_begin(a, name, 256)
    sWS = 12
    sWave, sHead, sQb, sKh, sQs = 24, 25, 26, 27, 28
    sT0, sT1 = 30, 31
    sVm = 34
    vLane, vL16, vKrd, vVrd, vIdx, vXw, vXr = 1, 2, 3, 4, 5, 6, 7
    Qf = [8, 12]
    Kf = [16, 20]
    Vf = [24, 32]
    S = [48, 64]
    O = [80, 96]
    NEG = 112
    T = 128
    XCH = 131072
    a("s_load_dwordx2 s[8:9], s[0:1], 72")
    a(f"v_and_b32 v{vLane}, 63, v0")
    a(f"v_lshrrev_b32 v8, 6, v0")
    a(f"v_lshlrev_b32 v{vL16}, 4, v{vLane}")
    a(f"v_readfirstlane_b32 s{sWave}, v8")
    a(f"s_and_b32 s{sT0}, s2, 7")
    a(f"s_lshl_b32 s{sT0}, s{sT0}, 2")
    a(f"s_lshr_b32 s{sT1}, s2, 6")
    a(f"s_add_u32 s{sHead}, s{sT0}, s{sT1}")
    a(f"s_bfe_u32 s{sQb}, s2, 0x30003")
    a(f"s_lshr_b32 s{sKh}, s{sWave}, 2")
    a(f"s_and_b32 s{sQs}, s{sWave}, 3")
    a(f"s_mov_b32 s{sVm}, 0x0000ffff")
    a(f"s_mov_b32 s{sVm + 1}, 0x0000ffff")
    a(f"s_lshl_b32 s32, s{sKh}, 16")
    a(f"s_lshl_b32 s{sT0}, s{sQs}, 11")
    a(f"s_add_u32 s32, s32, s{sT0}")
    a(f"s_lshl_b32 s33, s{sHead}, 17")
    a(f"s_add_u32 s33, s33, s32")
    a(f"s_add_u32 s33, s33, {KVF}")
    a(f"s_lshl_b32 s36, s{sHead}, 16")
    a(f"s_lshl_b32 s{sT0}, s{sQb}, 13")
    a(f"s_add_u32 s36, s36, s{sT0}")
    a(f"s_lshl_b32 s{sT0}, s{sQs}, 11")
    a(f"s_add_u32 s36, s36, s{sT0}")
    if QF:
        a(f"s_add_u32 s36, s36, {QF}")
    a("s_waitcnt lgkmcnt(0)")
    srd(a, sWS, 8, WS_SIZE)
    a.vm(f"buffer_load_dwordx4 {vr(Qf[0], 4)}, v{vL16}, {sr(sWS, 4)}, s36 offen")
    a.vm(f"buffer_load_dwordx4 {vr(Qf[1], 4)}, v{vL16}, {sr(sWS, 4)}, s36 offen offset:1024")
    ctok = {}
    for c in range(8):
        a(f"s_add_u32 m0, s32, {c * 8192}")
        a(f"s_add_u32 s{sT0}, s33, {c * 8192}")
        a.vm(f"buffer_load_dwordx4 v{vL16}, {sr(sWS, 4)}, s{sT0} offen lds")
        ctok[c] = a.vm(f"buffer_load_dwordx4 v{vL16}, {sr(sWS, 4)}, s{sT0} offen offset:1024 lds")
    a(f"s_lshl_b32 s{sT0}, s{sKh}, 16")
    a(f"v_add_u32 v{vKrd}, s{sT0}, v{vL16}")
    a(f"v_lshrrev_b32 v{T}, 5, v{vLane}")
    a(f"v_and_b32 v{T + 1}, 15, v{vLane}")
    a(f"v_lshlrev_b32 v{T + 1}, 4, v{T + 1}")
    a(f"v_lshl_add_u32 v{T}, v{T}, 8, v{T + 1}")
    a(f"v_add_u32 v{vVrd}, s{sT0}, v{T}")
    a(f"v_mov_b32 v{vIdx}, 0xdddd")
    a(f"s_mul_i32 s{sT0}, s{sWave}, 2304")
    a(f"s_add_u32 s{sT0}, s{sT0}, {XCH}")
    a(f"v_lshl_add_u32 v{vXw}, v{vLane}, 2, s{sT0}")
    a(f"s_xor_b32 s{sT1}, s{sWave}, 4")
    a(f"s_mul_i32 s{sT0}, s{sT1}, 2304")
    a(f"s_add_u32 s{sT0}, s{sT0}, {XCH}")
    a(f"v_lshl_add_u32 v{vXr}, v{vLane}, 2, s{sT0}")
    for r in range(16):
        a(f"v_mov_b32 v{Vf[0] + r}, 0x3f803f80")
    for r in range(32):
        a(f"v_mov_b32 v{O[0] + r}, 0")

    def kv_reads(t):
        b = t & 1
        k = f"ds_read_b128 {vr(Kf[b], 4)}, v{vKrd} offset:{t * 2048}"
        v = [f"ds_read_b128 {vr(Vf[b], 4)}, v{vVrd} offset:{t * 2048 + 1024}",
             f"ds_read_b128 {vr(Vf[b] + 4, 4)}, v{vVrd} offset:{t * 2048 + 1536}"]
        return k, v

    def emit_k(t):
        return a.lg(kv_reads(t)[0])

    def emit_v(t):
        a(f"s_mov_b64 exec, {sr(sVm, 2)}")
        v = kv_reads(t)[1]
        a.lg(v[0])
        tok = a.lg(v[1])
        a("s_mov_b64 exec, -1")
        return tok

    def qk(u):
        t, c = divmod(u, 2)
        return f"v_mfma_f32_32x32x16_bf16 {vr(S[u & 1], 16)}, {vr(Kf[t & 1], 4)}, {vr(Qf[c], 4)}, 0"

    def pv(u, i):
        t, c = divmod(u, 2)
        return (f"v_smfmac_f32_32x32x32_bf16 {vr(O[c], 16)}, {vr(Vf[t & 1] + 4 * i, 4)}, "
                f"{vr(S[u & 1] + 8 * i, 8)}, v{vIdx}")

    a.wait(vm=ctok[0])
    a("s_barrier")
    ktok, vtok = {}, {}
    ktok[0] = emit_k(0)
    vtok[0] = emit_v(0)
    ktok[1] = emit_k(1)
    a.wait(lg=ktok[0])
    a(qk(0))
    a("s_nop 11")
    NU = 64
    for u in range(NU):
        t, c = divmod(u, 2)
        X = S[u & 1]
        ex = [f"v_exp_f32 v{X + i}, v{X + i}" for i in range(16)]
        a(ex[0]); a(ex[1])
        if u > 0:
            a(pv(u - 1, 1))
        a(ex[2]); a(ex[3]); a(ex[4])
        if u + 1 < NU:
            if c == 1:
                a.wait(lg=ktok[t + 1])
            a(qk(u + 1))
        if c == 0:
            if t + 1 < 32:
                if t + 1 == 4:
                    pass
                vtok[t + 1] = emit_v(t + 1)
        else:
            if t + 2 < 32:
                if t + 2 == 4:
                    a.wait(vm=ctok[7])
                    a("s_barrier")
                ktok[t + 2] = emit_k(t + 2)
        for i in range(5, 10):
            a(ex[i])
        if c == 0:
            a.wait(lg=vtok[t])
        a(pv(u, 0))
        for i in range(10, 16):
            a(ex[i])
    a("s_nop 1")
    a(pv(NU - 1, 1))
    a("s_nop 15")
    a(f"s_cmp_eq_u32 s{sKh}, 0")
    a(f"s_cbranch_scc1 L_k2_keep0")
    for r in range(9):
        a(f"v_swap_b32 v{O[0] + r}, v{O[1] + r}")
    for r in range(4):
        a(f"v_mov_b32 v{Qf[0] + r}, v{Qf[1] + r}")
    a.label("L_k2_keep0")
    for r in range(9):
        a.lg(f"ds_write_b32 v{vXw}, v{O[1] + r} offset:{r * 256}")
    a.wait_all(vm=False)
    a("s_barrier")
    for r in range(9):
        a.lg(f"ds_read_b32 v{T + r}, v{vXr} offset:{r * 256}")
    a.wait_all(vm=False)
    for r in range(9):
        a(f"v_add_f32 v{O[0] + r}, v{O[0] + r}, v{T + r}")
    a(f"v_max3_f32 v{T}, |v{O[0]}|, |v{O[0] + 1}|, |v{O[0] + 2}|")
    a(f"v_max3_f32 v{T + 1}, |v{O[0] + 3}|, |v{O[0] + 4}|, |v{O[0] + 5}|")
    a(f"v_add_f32 v{T + 2}, |v{O[0] + 6}|, |v{O[0] + 7}|")
    a(f"v_add_f32 v{T}, v{T}, v{T + 1}")
    a(f"v_add_f32 v{T}, v{T}, v{T + 2}")
    for r in range(6):
        a(f"v_fma_f32 v{T}, v{O[0] + r}, 0, v{T}")
    a(f"s_mov_b32 s{sT0}, {hx(f2u(2.0 ** 120))}")
    a(f"s_mov_b32 s{sT1}, {hx(f2u(2.0 ** 80))}")
    a(f"v_cmp_gt_f32 s[40:41], s{sT0}, v{T}")
    a(f"v_cmp_gt_f32 s[42:43], s{sT1}, v{O[0] + 8}")
    a(f"s_mov_b32 s{sT1}, {hx(f2u(2.0 ** -80))}")
    a(f"v_cmp_lt_f32 vcc, s{sT1}, v{O[0] + 8}")
    a("s_nop 1")
    a("s_and_b64 s[40:41], s[40:41], s[42:43]")
    a("s_and_b64 s[40:41], s[40:41], vcc")
    a("s_cmp_eq_u64 s[40:41], -1")
    a("s_cbranch_scc0 L_k2_fallback")
    a.label("L_k2_finish")
    a(f"v_rcp_f32 v{T}, v{O[0] + 8}")
    a(f"s_lshl_b32 s{sT0}, s{sQb}, 3")
    a(f"s_lshl_b32 s{sT1}, s{sQs}, 1")
    a(f"s_add_u32 s{sT0}, s{sT0}, s{sT1}")
    a(f"s_add_u32 s{sT0}, s{sT0}, s{sKh}")
    a(f"s_lshl_b32 s{sT0}, s{sT0}, 15")
    a(f"s_lshl_b32 s{sT1}, s{sHead}, 10")
    a(f"s_add_u32 s{sT0}, s{sT0}, s{sT1}")
    a(f"s_add_u32 s{sT0}, s{sT0}, {OF}")
    for r in range(8):
        a(f"v_mul_f32 v{O[0] + r}, v{O[0] + r}, v{T}")
    for i in range(4):
        a(f"v_cvt_pk_bf16_f32 v{T + 4 + i}, v{O[0] + 2 * i}, v{O[0] + 2 * i + 1}")
    a.vm(f"buffer_store_dwordx4 {vr(T + 4, 4)}, v{vL16}, {sr(sWS, 4)}, s{sT0} offen")
    a("s_endpgm")
    a.label("L_k2_fallback")
    vK2, vV2, vM = T + 10, T + 11, T + 12
    a(f"s_lshl_b32 s{sT0}, s{sKh}, 16")
    a(f"v_subrev_u32 v{vK2}, s{sT0}, v{vKrd}")
    a(f"v_mov_b32 v{vM}, 0xff800000")
    a("s_mov_b32 s44, 0")
    a.label("L_k2_fb_max")
    a(f"ds_read_b128 {vr(Kf[0], 4)}, v{vK2}")
    a("s_waitcnt lgkmcnt(0)")
    a(f"v_mfma_f32_32x32x16_bf16 {vr(S[0], 16)}, {vr(Kf[0], 4)}, {vr(Qf[0], 4)}, 0")
    a("s_nop 15")
    for i in range(8):
        a(f"v_max3_f32 v{vM}, v{vM}, v{S[0] + 2 * i}, v{S[0] + 2 * i + 1}")
    a(f"v_add_u32 v{vK2}, 2048, v{vK2}")
    a("s_add_u32 s44, s44, 1")
    a("s_cmp_lt_u32 s44, 64")
    a("s_cbranch_scc1 L_k2_fb_max")
    a(f"v_mov_b32 v{T}, v{vM}")
    a("s_nop 1")
    a(f"v_permlane32_swap_b32 v{vM}, v{T}")
    a("s_nop 1")
    a(f"v_max_f32 v{vM}, v{vM}, v{T}")
    for r in range(16):
        a(f"v_sub_f32 v{NEG + r}, 0, v{vM}")
        a(f"v_mov_b32 v{O[0] + r}, 0")
    a(f"v_subrev_u32 v{vK2}, s{sT0}, v{vKrd}")
    a(f"v_subrev_u32 v{vV2}, s{sT0}, v{vVrd}")
    a("s_mov_b32 s44, 0")
    a.label("L_k2_fb_pv")
    a(f"ds_read_b128 {vr(Kf[0], 4)}, v{vK2}")
    a(f"s_mov_b64 exec, {sr(sVm, 2)}")
    a(f"ds_read_b128 {vr(Vf[0], 4)}, v{vV2} offset:1024")
    a(f"ds_read_b128 {vr(Vf[0] + 4, 4)}, v{vV2} offset:1536")
    a("s_mov_b64 exec, -1")
    a("s_waitcnt lgkmcnt(0)")
    a(f"v_mfma_f32_32x32x16_bf16 {vr(S[0], 16)}, {vr(Kf[0], 4)}, {vr(Qf[0], 4)}, {vr(NEG, 16)}")
    a("s_nop 15")
    for i in range(16):
        a(f"v_exp_f32 v{S[0] + i}, v{S[0] + i}")
    a("s_nop 1")
    a(f"v_smfmac_f32_32x32x32_bf16 {vr(O[0], 16)}, {vr(Vf[0], 4)}, {vr(S[0], 8)}, v{vIdx}")
    a(f"v_smfmac_f32_32x32x32_bf16 {vr(O[0], 16)}, {vr(Vf[0] + 4, 4)}, {vr(S[0] + 8, 8)}, v{vIdx}")
    a("s_nop 15")
    a(f"v_add_u32 v{vK2}, 2048, v{vK2}")
    a(f"v_add_u32 v{vV2}, 2048, v{vV2}")
    a("s_add_u32 s44, s44, 1")
    a("s_cmp_lt_u32 s44, 64")
    a("s_cbranch_scc1 L_k2_fb_pv")
    a("s_branch L_k2_finish")
    kernel_end(a, name)
    return name, a.text(), descriptor(name, 144, 0), (256, 512, XCH + 8 * 2304)


def gen_res(kind):
    k3 = kind == "k3"
    name = "k3_wo_kernel" if k3 else "k5_down_kernel"
    NCH = 16 if k3 else 43
    KS = 32 if k3 else 86
    ACT = OF if k3 else GF
    CPS = 4
    NST = (NCH + CPS - 1) // CPS
    DEPTH = 4 if k3 else 6
    NSLOT = 4 if k3 else 8
    RED = NSLOT * 16384
    a = Asm()
    kernel_begin(a, name, 256)
    sW, sWS, sIO = 12, 16, 20
    sWave, sWr, sKh, sRt, sCb = 24, 25, 26, 27, 28
    sT0, sT1, sWL, sAct = 30, 31, 32, 33
    sMask, sOnes = 40, 41
    vLane, vL16, vWoff, vRw, vRr, vRes = 1, 2, 3, 4, 5, 6
    vWrd = [[8, 9], [10, 11]]
    T = 12
    RES = 32
    acc = [40, 56]
    A0 = 72
    if k3:
        a("s_load_dwordx2 s[4:5], s[0:1], 16")
        a("s_load_dwordx2 s[6:7], s[0:1], 0")
    else:
        a("s_load_dwordx4 s[4:7], s[0:1], 48")
    a("s_load_dwordx2 s[8:9], s[0:1], 72")
    a(f"v_and_b32 v{vLane}, 63, v0")
    a(f"v_lshrrev_b32 v{T}, 6, v0")
    a(f"v_lshlrev_b32 v{vL16}, 4, v{vLane}")
    a(f"v_readfirstlane_b32 s{sWave}, v{T}")
    a(f"s_and_b32 s{sT0}, s2, 7")
    a(f"s_lshr_b32 s{sT1}, s2, 3")
    a(f"s_lshr_b32 s{sRt}, s{sT0}, 1")
    a(f"s_lshl_b32 s{sRt}, s{sRt}, 3")
    a(f"s_lshr_b32 s34, s{sT1}, 2")
    a(f"s_add_u32 s{sRt}, s{sRt}, s34")
    a(f"s_and_b32 s{sCb}, s{sT0}, 1")
    a(f"s_lshl_b32 s{sCb}, s{sCb}, 2")
    a(f"s_and_b32 s34, s{sT1}, 3")
    a(f"s_add_u32 s{sCb}, s{sCb}, s34")
    a(f"s_and_b32 s{sWr}, s{sWave}, 1")
    a(f"s_lshr_b32 s{sKh}, s{sWave}, 1")
    a(f"s_lshl_b32 s{sRt}, s{sRt}, 1")
    a(f"s_add_u32 s{sRt}, s{sRt}, s{sWr}")
    a(f"s_mov_b32 s{sMask}, 0xffff0000")
    a(f"s_mov_b32 s{sOnes}, 0x3f803f80")
    a(f"v_lshrrev_b32 v{T}, 3, v{vLane}")
    a(f"v_lshrrev_b32 v{T + 1}, 2, v{vLane}")
    a(f"v_and_b32 v{T + 1}, 4, v{T + 1}")
    a(f"v_and_b32 v{T + 2}, 7, v{vLane}")
    a(f"v_xor_b32 v{T + 1}, v{T + 1}, v{T + 2}")
    a(f"v_lshlrev_b32 v{T + 1}, 4, v{T + 1}")
    a(f"v_lshl_add_u32 v{vWoff}, v{T}, 10, v{T + 1}")
    a(f"s_lshl_b32 s{sT0}, s{sWave}, 13")
    a(f"s_lshl_b32 s{sT1}, s{sCb}, 7")
    a(f"s_add_u32 s{sT0}, s{sT0}, s{sT1}")
    a(f"v_add_u32 v{vWoff}, s{sT0}, v{vWoff}")
    a(f"s_lshl_b32 s{sWL}, s{sWave}, 10")
    a(f"s_mul_i32 s{sAct}, s{sRt}, {KS * 1024}")
    a(f"s_lshl_b32 s{sT0}, s{sKh}, 10")
    a(f"s_add_u32 s{sAct}, s{sAct}, s{sT0}")
    a(f"s_add_u32 s{sAct}, s{sAct}, {ACT}")
    a("s_waitcnt lgkmcnt(0)")
    srd(a, sW, 4, KS * 16 * 1024)
    srd(a, sWS, 8, WS_SIZE)
    srd(a, sIO, 6, 2048 * 1024)
    tok = {}

    def issue(st):
        for c in range(st * CPS, min(NCH, (st + 1) * CPS)):
            a(f"s_add_u32 m0, s{sWL}, {(st % NSLOT) * 16384 + (c % CPS) * 4096}")
            a(f"s_mov_b32 s{sT0}, {c * 32768}")
            a.vm(f"buffer_load_dwordx4 v{vWoff}, {sr(sW, 4)}, s{sT0} offen lds")
            if c % 2 == 0:
                a(f"s_add_u32 s{sT1}, s{sAct}, {c * 2048}")
            tok[st] = a.vm(f"buffer_load_dwordx4 {vr(A0 + 4 * c, 4)}, v{vL16}, {sr(sWS, 4)}, s{sT1} offen offset:{(c % 2) * 2048}")

    for st in range(min(DEPTH, NST)):
        issue(st)
    a(f"s_lshl_b32 s34, s{sCb}, 1")
    a(f"s_add_u32 s34, s34, s{sKh}")
    a(f"v_and_b32 v{T}, 31, v{vLane}")
    a(f"v_lshrrev_b32 v{T + 1}, 5, v{vLane}")
    a(f"v_lshlrev_b32 v{T + 2}, 10, v{T}")
    a(f"v_lshl_add_u32 v{vRes}, v{T + 1}, 3, v{T + 2}")
    a(f"s_lshl_b32 s35, s{sRt}, 15")
    a(f"s_lshl_b32 s36, s34, 6")
    a(f"s_add_u32 s35, s35, s36")
    a(f"s_lshl_b32 s36, s{sRt}, 15")
    a(f"s_lshl_b32 s37, s34, 11")
    a(f"s_add_u32 s36, s36, s37")
    a(f"s_add_u32 s36, s36, {HF}")
    if k3:
        for g in range(4):
            rtok = a.vm(f"buffer_load_dwordx2 {vr(RES + 2 * g, 2)}, v{vRes}, {sr(sIO, 4)}, s35 offen offset:{g * 16}")
    else:
        a.vm(f"buffer_load_dwordx4 {vr(RES, 4)}, v{vL16}, {sr(sWS, 4)}, s36 offen")
        rtok = a.vm(f"buffer_load_dwordx4 {vr(RES + 4, 4)}, v{vL16}, {sr(sWS, 4)}, s36 offen offset:1024")
    a(f"v_bfe_u32 v{T + 2}, v{vLane}, 2, 2")
    a(f"v_lshl_add_u32 v{T + 3}, v{T + 1}, 2, v{T + 2}")
    a(f"s_lshl_b32 s{sT0}, s{sKh}, 4")
    a(f"v_add_u32 v{T + 3}, s{sT0}, v{T + 3}")
    a(f"v_lshlrev_b32 v{T + 3}, 7, v{T + 3}")
    a(f"v_bfe_u32 v{T + 4}, v{vLane}, 4, 1")
    a(f"v_lshl_add_u32 v{T + 3}, v{T + 4}, 5, v{T + 3}")
    a(f"v_and_b32 v{T + 4}, 3, v{vLane}")
    a(f"v_lshl_add_u32 v{T + 3}, v{T + 4}, 3, v{T + 3}")
    a(f"v_lshrrev_b32 v{T + 2}, 1, v{T + 2}")
    a(f"v_lshl_add_u32 v{vWrd[0][0]}, v{T + 2}, 6, v{T + 3}")
    a(f"v_xor_b32 v{vWrd[1][0]}, 64, v{vWrd[0][0]}")
    wl = [LdsAddr(a, vWrd[0]), LdsAddr(a, vWrd[1])]
    wl[0].setup(a)
    wl[1].setup(a)
    a(f"s_lshl_b32 s{sT0}, s{sWave}, 12")
    a(f"s_add_u32 s{sT0}, s{sT0}, {RED}")
    a(f"v_add_u32 v{vRw}, s{sT0}, v{vL16}")
    a(f"v_xor_b32 v{vRr}, 0x2000, v{vRw}")
    for r in range(32):
        a(f"v_mov_b32 v{acc[0] + r}, 0")

    def w_reads(c):
        st = c // CPS
        ops = []
        for b in range(2):
            for half in range(2):
                reg, off = wl[b].at((st % NSLOT) * 16384 + (c % CPS) * 4096 + half * 1024)
                ops.append(f"ds_read_b64_tr_b16 {ar(8 * (c & 1) + 4 * b + 2 * half, 2)}, {reg} offset:{off}")
        return ops

    a.wait(vm=tok[0])
    a("s_barrier")
    rt = {}
    for op in w_reads(0):
        rt[0] = a.lg(op)
    for c in range(NCH):
        st = c // CPS
        a.wait(lg=rt[c])
        if c + 1 < NCH:
            if (c + 1) % CPS == 0:
                a.wait(vm=tok[st + 1])
                a("s_barrier")
                if st + DEPTH < NST:
                    issue(st + DEPTH)
            for op in w_reads(c + 1):
                rt[c + 1] = a.lg(op)
        wb = 8 * (c & 1)
        for b in range(2):
            a(f"v_mfma_f32_32x32x16_bf16 {vr(acc[b], 16)}, {ar(wb + 4 * b, 4)}, {vr(A0 + 4 * c, 4)}, {vr(acc[b], 16)}")
    a("s_nop 15")
    a(f"s_cmp_eq_u32 s{sKh}, 0")
    a(f"s_cbranch_scc1 L_{name}_keep0")
    for r in range(16):
        a(f"v_swap_b32 v{acc[0] + r}, v{acc[1] + r}")
    a.label(f"L_{name}_keep0")
    for g in range(4):
        a.lg(f"ds_write_b128 v{vRw}, {vr(acc[1] + 4 * g, 4)} offset:{g * 1024}")
    a.wait_all(vm=False)
    a("s_barrier")
    for g in range(4):
        a.lg(f"ds_read_b128 {vr(acc[1] + 4 * g, 4)}, v{vRr} offset:{g * 1024}")
    a.wait(vm=rtok)
    for i in range(8):
        a(f"v_lshlrev_b32 v{T}, 16, v{RES + i}")
        a(f"v_and_b32 v{T + 1}, s{sMask}, v{RES + i}")
        a(f"v_add_f32 v{acc[0] + 2 * i}, v{acc[0] + 2 * i}, v{T}")
        a(f"v_add_f32 v{acc[0] + 2 * i + 1}, v{acc[0] + 2 * i + 1}, v{T + 1}")
    a.wait_all(vm=False)
    for r in range(16):
        a(f"v_add_f32 v{acc[0] + r}, v{acc[0] + r}, v{acc[1] + r}")
    for i in range(8):
        a(f"v_cvt_pk_bf16_f32 v{RES + i}, v{acc[0] + 2 * i}, v{acc[0] + 2 * i + 1}")
    if k3:
        a.vm(f"buffer_store_dwordx4 {vr(RES, 4)}, v{vL16}, {sr(sWS, 4)}, s36 offen")
        a.vm(f"buffer_store_dwordx4 {vr(RES + 4, 4)}, v{vL16}, {sr(sWS, 4)}, s36 offen offset:1024")
        a(f"v_mov_b32 v{T}, 0")
        a(f"v_mov_b32 v{T + 1}, 0")
        for i in range(8):
            a(f"v_dot2_f32_bf16 v{T}, v{RES + i}, s{sOnes}, v{T}")
            a(f"v_dot2_f32_bf16 v{T + 1}, v{RES + i}, v{RES + i}, v{T + 1}")
        a("s_nop 2")
        half_sum(a, T, T + 2)
        half_sum(a, T + 1, T + 2)
        a(f"s_lshl_b32 s{sT0}, s34, 14")
        a(f"s_lshl_b32 s{sT1}, s{sRt}, 8")
        a(f"s_add_u32 s{sT0}, s{sT0}, s{sT1}")
        a(f"s_add_u32 s{sT0}, s{sT0}, {ST}")
        a(f"v_lshlrev_b32 v{T + 2}, 3, v{vLane}")
        a("s_mov_b32 exec_hi, 0")
        a.vm(f"buffer_store_dwordx2 {vr(T, 2)}, v{T + 2}, {sr(sWS, 4)}, s{sT0} offen")
    else:
        for g in range(4):
            a.vm(f"buffer_store_dwordx2 {vr(RES + 2 * g, 2)}, v{vRes}, {sr(sIO, 4)}, s35 offen offset:{g * 16}")
    kernel_end(a, name)
    return name, a.text(), descriptor(name, A0 + 4 * NCH, 16), (256, 256, RED + 16384)


def gen_k4():
    name = "k4_glu_kernel"
    a = Asm()
    kernel_begin(a, name, 240)
    sG, sU, sWS = 12, 16, 20
    sWave, sRb, sCg, sRt = 24, 25, 26, 27
    sT0, sT1, sWL, sAct = 30, 31, 32, 33
    sMask, sL2e = 40, 41
    vLane, vL16 = 1, 2
    vWoff = [3, 4, 5]
    vWrd = [6, 7, 8]
    vS, vQ, vR, vNB = 9, 10, 11, 12
    vT = 16
    X0 = 32
    ACC = 160
    a("s_load_dwordx4 s[4:7], s[0:1], 32")
    a("s_load_dwordx2 s[8:9], s[0:1], 72")
    a(f"v_and_b32 v{vLane}, 63, v0")
    a(f"v_lshrrev_b32 v{vT}, 6, v0")
    a(f"v_lshlrev_b32 v{vL16}, 4, v{vLane}")
    a(f"v_readfirstlane_b32 s{sWave}, v{vT}")
    a(f"s_and_b32 s{sT0}, s2, 7")
    a(f"s_lshl_b32 s{sT0}, s{sT0}, 1")
    a(f"s_bfe_u32 s{sT1}, s2, 0x10003")
    a(f"s_add_u32 s{sRb}, s{sT0}, s{sT1}")
    a(f"s_lshr_b32 s{sCg}, s2, 4")
    a(f"s_lshl_b32 s{sRt}, s{sRb}, 2")
    a(f"s_add_u32 s{sRt}, s{sRt}, s{sWave}")
    a(f"s_mov_b32 s{sMask}, 0xffff0000")
    a(f"s_mov_b32 s{sL2e}, {hx(f2u(LOG2E))}")
    a(f"s_mul_i32 s{sT0}, s{sWave}, {16 * 2752}")
    a(f"s_mul_i32 s{sT1}, s{sCg}, 192")
    a(f"s_add_u32 s{sT0}, s{sT0}, s{sT1}")
    for i in range(3):
        a(f"v_add_u32 v{vT}, {64 * i}, v{vLane}")
        a(f"v_mul_u32_u24 v{vT + 1}, 171, v{vT}")
        a(f"v_lshrrev_b32 v{vT + 1}, 11, v{vT + 1}")
        a(f"v_mul_u32_u24 v{vT + 2}, {2752 - 192}, v{vT + 1}")
        a(f"v_lshl_add_u32 v{vT + 2}, v{vLane}, 4, v{vT + 2}")
        a(f"v_add_u32 v{vWoff[i]}, s{sT0}, v{vT + 2}")
    a(f"s_mul_i32 s{sWL}, s{sWave}, 6144")
    a(f"s_lshl_b32 s{sAct}, s{sRt}, 15")
    a(f"s_add_u32 s{sAct}, s{sAct}, {HF}")
    a(f"v_lshrrev_b32 v{vT + 3}, 5, v{vLane}")
    a(f"v_and_b32 v{vT + 4}, 31, v{vLane}")
    a(f"v_lshlrev_b32 v{vT + 4}, 3, v{vT + 4}")
    a(f"v_lshl_add_u32 v{vT + 4}, v{vT + 3}, 17, v{vT + 4}")
    a(f"s_lshl_b32 s34, s{sRt}, 8")
    a(f"s_add_u32 s34, s34, {ST}")
    a("s_waitcnt lgkmcnt(0)")
    srd(a, sG, 4, 512 * 2752)
    srd(a, sU, 6, 512 * 2752)
    srd(a, sWS, 8, WS_SIZE)
    for i in range(8):
        a(f"s_add_u32 s{sT0}, s34, {i * 16384}")
        stok = a.vm(f"buffer_load_dwordx2 {vr(ACC + 2 * i, 2)}, v{vT + 4}, {sr(sWS, 4)}, s{sT0} offen")
    SLOT = 24576
    NSLOT = 6
    tok = {}

    def issue_w(st):
        for mat in range(2):
            a(f"s_add_u32 m0, s{sWL}, {(st % NSLOT) * SLOT + mat * 3072}")
            a(f"s_mov_b32 s{sT0}, {st * 64 * 2752}")
            for i in range(3):
                tok[st] = a.vm(f"buffer_load_dwordx4 v{vWoff[i]}, {sr(sG if mat == 0 else sU, 4)}, s{sT0} offen offset:{i * 1024} lds")

    def issue_x(st):
        a(f"s_add_u32 s{sT1}, s{sAct}, {st * 4096}")
        for i in range(4):
            tok[st] = a.vm(f"buffer_load_dwordx4 {vr(X0 + 16 * st + 4 * i, 4)}, v{vL16}, {sr(sWS, 4)}, s{sT1} offen offset:{i * 1024}")

    DEPTH = 5
    for st in range(DEPTH):
        issue_w(st)
        issue_x(st)
    a(f"v_bfe_u32 v{vT}, v{vLane}, 2, 2")
    a(f"v_lshl_add_u32 v{vT}, v{vT + 3}, 2, v{vT}")
    a(f"v_mul_u32_u24 v{vT}, 192, v{vT}")
    a(f"v_bfe_u32 v{vT + 1}, v{vLane}, 4, 1")
    a(f"v_lshl_add_u32 v{vT}, v{vT + 1}, 5, v{vT}")
    a(f"v_and_b32 v{vT + 1}, 3, v{vLane}")
    a(f"v_lshl_add_u32 v{vWrd[0]}, v{vT + 1}, 3, v{vT}")
    wl = LdsAddr(a, vWrd)
    wl.setup(a)
    a.wait(vm=stok)
    a(f"v_add_f32 v{vS}, v{ACC}, v{ACC + 2}")
    a(f"v_add_f32 v{vQ}, v{ACC + 1}, v{ACC + 3}")
    for i in range(2, 8):
        a(f"v_add_f32 v{vS}, v{vS}, v{ACC + 2 * i}")
        a(f"v_add_f32 v{vQ}, v{vQ}, v{ACC + 2 * i + 1}")
    half_sum(a, vS, vT)
    half_sum(a, vQ, vT)
    finish_stats(a, vS, vQ, vR, vNB, vT, scale=LOG2E)
    for r in range(96):
        a(f"v_mov_b32 v{ACC + r}, 0")

    def w_reads(s):
        st, ss = divmod(s, 4)
        ops = []
        for u in range(3):
            for mat in range(2):
                for half in range(2):
                    reg, off = wl.at((st % NSLOT) * SLOT + ss * 6144 + mat * 3072 + half * 8 * 192 + u * 64)
                    ops.append(f"ds_read_b64_tr_b16 {ar(24 * (s & 1) + 8 * u + 4 * mat + 2 * half, 2)}, {reg} offset:{off}")
        return ops

    a.wait(vm=tok[0])
    a("s_barrier")
    rt = {}
    for op in w_reads(0):
        rt[0] = a.lg(op)
    for op in normalize_ops(X0, vT, vR, vNB, sMask):
        a(op)
    a("s_nop 0")
    for s in range(32):
        st, ss = divmod(s, 4)
        a.wait(lg=rt[s])
        rd = []
        if s + 1 < 32:
            if ss == 3:
                a.wait(vm=tok[st + 1])
                a("s_barrier")
                if st + DEPTH < 8:
                    issue_w(st + DEPTH)
                    issue_x(st + DEPTH)
            rd = w_reads(s + 1)
        else:
            a("s_nop 0")
        wb = 24 * (s & 1)
        xf = vr(X0 + 4 * s, 4)
        mf = [f"v_mfma_f32_32x32x16_bf16 {vr(ACC + 16 * j, 16)}, {ar(wb + 4 * j, 4)}, {xf}, {vr(ACC + 16 * j, 16)}"
              for j in range(6)]
        fill = normalize_ops(X0 + 4 * (s + 1), vT, vR, vNB, sMask) if s + 1 < 32 else []
        seq = interleave(mf[:5], fill) + [mf[5]]
        k = 0
        for op in seq:
            a(op)
            if op.startswith("v_mfma") and k < len(rd):
                for _ in range(2):
                    rt[s + 1] = a.lg(rd[k])
                    k += 1
    a(f"s_mul_i32 s34, s{sRt}, {86 * 1024}")
    a(f"s_mul_i32 s35, s{sCg}, {6 * 1024}")
    a("s_add_u32 s34, s34, s35")
    a(f"s_add_u32 s34, s34, {GF}")
    a("s_nop 7")
    for u in range(3):
        G, U = ACC + 32 * u, ACC + 32 * u + 16
        if u == 1:
            a(f"s_cmp_eq_u32 s{sCg}, 14")
            a(f"s_cbranch_scc1 L_{name}_done")
        for r in range(16):
            a(f"v_exp_f32 v{G + r}, -v{G + r}")
        for r in range(16):
            a(f"v_fma_f32 v{G + r}, v{G + r}, s{sL2e}, s{sL2e}")
        for r in range(16):
            a(f"v_rcp_f32 v{G + r}, v{G + r}")
        for r in range(16):
            a(f"v_mul_f32 v{U + r}, v{U + r}, v{G + r}")
        for i in range(8):
            a(f"v_cvt_pk_bf16_f32 v{X0 + 8 * u + i}, v{U + 2 * i}, v{U + 2 * i + 1}")
        a(f"s_add_u32 s35, s34, {u * 2048}")
        a.vm(f"buffer_store_dwordx4 {vr(X0 + 8 * u, 4)}, v{vL16}, {sr(sWS, 4)}, s35 offen")
        a.vm(f"buffer_store_dwordx4 {vr(X0 + 8 * u + 4, 4)}, v{vL16}, {sr(sWS, 4)}, s35 offen offset:1024")
    kernel_end(a, name)
    return name, a.text(), descriptor(name, 256, 48), (240, 256, NSLOT * SLOT)


def build():
    ks = [gen_k1(), gen_k2(), gen_res("k3"), gen_k4(), gen_res("k5")]
    ref = open(f"cdna_kernels/{NAME}.s.ref").read().split("\n")
    head = [l for l in ref if l.startswith(";") and "@launch" not in l and "Override launch" not in l
            and "grid=ceil" not in l]
    out = "\n".join(head) + "\n"
    for name, _, _, (g, b, lds) in ks:
        out += f"; @launch kernel={name} grid=({g},1,1) block=({b},1,1) lds={lds}\n"
    out += '.amdgcn_target "amdgcn-amd-amdhsa--gfx950"\n.text\n'
    bad = 0
    for name, text, _, _ in ks:
        bad += check_hazards(text, name)
        out += text
    out += '.section .rodata,"a"\n'
    for name, _, desc, _ in ks:
        out += ".p2align 6\n" + desc
    if bad:
        print("hazards:", bad)
    return out


if __name__ == "__main__":
    path = sys.argv[1] if len(sys.argv) > 1 else f"cdna_kernels/{NAME}.s"
    open(path, "w").write(build())
    print("wrote", path)
```

```python
import math
import struct
import sys

from asmlib import Asm, check_hazards

NAME = "sequential_preLN__mha_block__glu_gated_glu__prompt"

MB = 1 << 20
QF = 0
KVF = 2 * MB
OF = 6 * MB
HF = 8 * MB
ST = 10 * MB
GF = 12 * MB
WS_SIZE = 32 * MB

LOG2E = 1.4426950408889634
OPT = dict(pf_code=True, pf_w=True, k1_pre=2, k3_d=2, k5_d=3, k4_d=2)


def f2u(x):
    return struct.unpack("<I", struct.pack("<f", x))[0]


def hx(x):
    return "0x%08x" % (x & 0xFFFFFFFF)


def vr(b, n):
    return f"v[{b}:{b + n - 1}]"


def ar(b, n):
    return f"a[{b}:{b + n - 1}]"


def sr(b, n):
    return f"s[{b}:{b + n - 1}]"


def srd(a, d, base, size):
    a(f"s_mov_b32 s{d}, s{base}")
    a(f"s_mov_b32 s{d + 1}, s{base + 1}")
    a(f"s_mov_b32 s{d + 2}, {hx(size)}")
    a(f"s_mov_b32 s{d + 3}, 0x00020000")


def interleave(main, fill, lead=0):
    out = []
    fill = list(fill)
    out += fill[:lead]
    fill = fill[lead:]
    n = len(main)
    per = len(fill) / n if n else 0
    used = 0
    for i, m in enumerate(main):
        out.append(m)
        upto = int(round(per * (i + 1)))
        out += fill[used:upto]
        used = upto
    out += fill[used:]
    return out


def kernel_begin(a, name, nwg):
    a.raw(f".globl {name}")
    a.raw(".p2align 8")
    a.raw(f".type {name},@function")
    a.label(name)
    a(f"s_cmp_ge_u32 s2, {nwg}")
    a(f"s_cbranch_scc1 L_{name}_done")
    stamp(a, real=True)
    stamp(a)


STAMPS = False
SBASE = 60
DBGO = 20 * MB


def stamp(a, real=False):
    if not STAMPS:
        return
    i = getattr(a, "nstamp", 0)
    a.nstamp = i + 1
    assert i < 16
    a(f"{'s_memrealtime' if real else 's_memtime'} s[{SBASE + 2 * i}:{SBASE + 2 * i + 1}]")
    a.wait_all(vm=False)


def stamp_flush(a, kidx, sWS, sWave):
    if not STAMPS:
        return
    a.wait_all()
    stamp(a)
    stamp(a, real=True)
    a("s_mov_b64 exec, -1")
    a("s_lshl_b32 s58, s2, 3")
    a(f"s_add_u32 s58, s58, s{sWave}")
    a("s_lshl_b32 s58, s58, 6")
    a(f"s_add_u32 s58, s58, {DBGO + kidx * MB}")
    a("v_mov_b32 v1, 0")
    for i in range(a.nstamp):
        a(f"v_mov_b32 v2, s{SBASE + 2 * i}")
        a(f"buffer_store_dword v2, v1, s[{sWS}:{sWS + 3}], s58 offen offset:{4 * i}")
    a.wait_all()


def kernel_end(a, name):
    a.label(f"L_{name}_done")
    a("s_endpgm")


def descriptor(name, vgpr, agpr, sgpr=96):
    acc = (vgpr + 3) // 4 * 4
    return f""".amdhsa_kernel {name}
  .amdhsa_next_free_vgpr {acc + agpr}
  .amdhsa_next_free_sgpr {sgpr}
  .amdhsa_accum_offset {acc}
  .amdhsa_group_segment_fixed_size 0
  .amdhsa_kernarg_size 80
  .amdhsa_user_sgpr_count 2
  .amdhsa_user_sgpr_kernarg_segment_ptr 1
  .amdhsa_system_sgpr_workgroup_id_x 1
.end_amdhsa_kernel
"""


def normalize_ops(x, t, vR, vNB, sMask):
    ops = []
    for i in range(4):
        ops.append(f"v_lshlrev_b32 v{t + 2 * i}, 16, v{x + i}")
        ops.append(f"v_and_b32 v{t + 2 * i + 1}, s{sMask}, v{x + i}")
    for i in range(8):
        ops.append(f"v_fma_f32 v{t + i}, v{t + i}, v{vR}, v{vNB}")
    for i in range(4):
        ops.append(f"v_cvt_pk_bf16_f32 v{x + i}, v{t + 2 * i}, v{t + 2 * i + 1}")
    return ops


def half_sum(a, r, t):
    a(f"v_mov_b32 v{t}, v{r}")
    a("s_nop 1")
    a(f"v_permlane32_swap_b32 v{r}, v{t}")
    a("s_nop 1")
    a(f"v_add_f32 v{r}, v{r}, v{t}")


def finish_stats(a, vS, vQ, vR, vNB, t, scale=1.0):
    a(f"v_mul_f32 v{vS}, {hx(f2u(1.0 / 512))}, v{vS}")
    a(f"v_mul_f32 v{vQ}, {hx(f2u(1.0 / 512))}, v{vQ}")
    a(f"v_fma_f32 v{t}, -v{vS}, v{vS}, v{vQ}")
    a(f"v_max_f32 v{t}, 0, v{t}")
    a(f"v_add_f32 v{t}, {hx(f2u(1e-5))}, v{t}")
    a(f"v_rsq_f32 v{vR}, v{t}")
    a("s_nop 0")
    if scale != 1.0:
        a(f"v_mul_f32 v{vR}, {hx(f2u(scale))}, v{vR}")
    a(f"v_mul_f32 v{vNB}, -v{vS}, v{vR}")


class Drip:
    def __init__(self, a):
        self.a = a
        self.q = []
        self.tok = {}

    def add(self, key, pre, ins):
        self.q.append((key, pre, ins))

    def emit(self, n=1):
        for _ in range(n):
            if not self.q:
                return
            key, pre, ins = self.q.pop(0)
            for p in pre:
                self.a(p)
            self.tok[key] = self.a.vm(ins)

    def through(self, key):
        while any(k == key for k, _, _ in self.q):
            self.emit()

    def wait(self, key):
        self.through(key)
        self.a.wait(vm=self.tok[key])


def code_prefetch(a, label, sPC, vOff, vDst, uid):
    a(f"s_getpc_b64 s[{sPC}:{sPC + 1}]")
    a.label(f"L_pc_{uid}")
    a(f"s_add_u32 s{sPC}, s{sPC}, {label}-L_pc_{uid}")
    a(f"s_addc_u32 s{sPC + 1}, s{sPC + 1}, ({label}-L_pc_{uid})>>32")
    a(f"v_min_u32 v{vOff}, L_code_end-{label}-4, v{vOff}")
    return a.vm(f"global_load_dword v{vDst}, v{vOff}, s[{sPC}:{sPC + 1}]")


class LdsAddr:
    def __init__(self, a, regs):
        self.regs = regs

    def setup(self, a):
        for j in range(1, len(self.regs)):
            a(f"v_add_u32 v{self.regs[j]}, {hx(j * 65536)}, v{self.regs[0]}")

    def at(self, off):
        return f"v{self.regs[off >> 16]}", off & 0xFFFF


def gen_k1():
    name = "k1_qkv_kernel"
    a = Asm()
    kernel_begin(a, name, 256)
    sX, sW, sWS = 12, 16, 20
    sWave, sWr, sWc, sCg, sRb = 24, 25, 26, 27, 28
    sT0, sT1, sWL, sXL = 30, 31, 32, 33
    sMask, sOnes = 40, 41
    vLane, vL16, vWoff, vXrd, vT = 1, 2, 3, 4, 8
    vS, vQ, vR, vNB = 16, 17, 18, 19
    vKoff, vVoff = 20, 21
    vWrd = [24, 25, 26]
    X0 = 64
    accQ, accK, accV = 192, 208, 224
    a("s_load_dwordx4 s[4:7], s[0:1], 0")
    a("s_load_dwordx2 s[8:9], s[0:1], 72")
    a(f"v_and_b32 v{vLane}, 63, v0")
    a(f"v_lshrrev_b32 v5, 6, v0")
    a(f"v_lshlrev_b32 v{vL16}, 4, v{vLane}")
    a(f"v_readfirstlane_b32 s{sWave}, v5")
    if OPT["pf_code"]:
        a(f"v_lshlrev_b32 v30, 7, v0")
        code_prefetch(a, name, 44, 30, 31, "k1")
    a(f"s_and_b32 s{sT0}, s2, 7")
    a(f"s_lshl_b32 s{sT0}, s{sT0}, 2")
    a(f"s_bfe_u32 s{sT1}, s2, 0x20003")
    a(f"s_add_u32 s{sRb}, s{sT0}, s{sT1}")
    a(f"s_lshr_b32 s{sCg}, s2, 5")
    a(f"s_mov_b32 s{sMask}, 0xffff0000")
    a(f"s_mov_b32 s{sOnes}, 0x3f803f80")
    a(f"s_lshr_b32 s{sWr}, s{sWave}, 1")
    a(f"s_and_b32 s{sWc}, s{sWave}, 1")
    a(f"v_lshrrev_b32 v5, 3, v{vLane}")
    a(f"v_lshrrev_b32 v6, 2, v{vLane}")
    a(f"v_and_b32 v6, 4, v6")
    a(f"v_and_b32 v7, 7, v{vLane}")
    a(f"v_xor_b32 v6, v6, v7")
    a(f"v_lshlrev_b32 v6, 4, v6")
    a(f"v_mul_u32_u24 v5, 3072, v5")
    a(f"v_add_u32 v{vWoff}, v5, v6")
    a(f"s_mul_i32 s{sT0}, s{sWave}, {16 * 3072}")
    a(f"s_lshl_b32 s{sT1}, s{sCg}, 7")
    a(f"s_add_u32 s{sT0}, s{sT0}, s{sT1}")
    a(f"v_add_u32 v{vWoff}, s{sT0}, v{vWoff}")
    a(f"s_mul_i32 s{sWL}, s{sWave}, {2 * 3072}")
    a(f"s_mul_i32 s{sXL}, s{sWave}, {16 * 1040}")
    a(f"s_lshl_b32 s{sT1}, s{sRb}, 16")
    a(f"s_lshl_b32 s34, s{sWave}, 14")
    a(f"s_add_u32 s34, s34, s{sT1}")
    a("s_waitcnt lgkmcnt(0)")
    srd(a, sX, 4, 2048 * 1024)
    srd(a, sW, 6, 512 * 3072)
    srd(a, sWS, 8, WS_SIZE)
    xtok = None
    for i in range(16):
        a(f"s_add_u32 m0, s{sXL}, {i * 1040}")
        a(f"s_add_u32 s{sT0}, s34, {i * 1024}")
        xtok = a.vm(f"buffer_load_dwordx4 v{vL16}, {sr(sX, 4)}, s{sT0} offen lds")
    SLOT = 24576
    slots = [163840 - 3 * SLOT, 163840 - 2 * SLOT, 163840 - SLOT, 0, SLOT, 2 * SLOT]
    stage_slot = [slots[0], slots[1], slots[2], slots[3], slots[4], slots[5], slots[0], slots[1]]
    dr = Drip(a)
    sD = 35

    def w_dma(st):
        for i in range(2):
            for seg in range(3):
                pre = [f"s_add_u32 m0, s{sWL}, {stage_slot[st] + i * 3072}",
                       f"s_mov_b32 s{sD}, {(64 * st + 8 * i) * 3072}"] if seg == 0 else []
                dr.add(st, pre, f"buffer_load_dwordx4 v{vWoff}, {sr(sW, 4)}, s{sD} offen offset:{seg * 1024} lds")

    for st in range(3):
        w_dma(st)
    dr.emit(6 * OPT["k1_pre"])
    a(f"v_and_b32 v5, 31, v{vLane}")
    a(f"v_lshrrev_b32 v6, 5, v{vLane}")
    a(f"s_lshl_b32 s{sT0}, s{sWr}, 5")
    a(f"v_add_u32 v7, s{sT0}, v5")
    a(f"v_mul_u32_u24 v7, 1040, v7")
    a(f"v_lshl_add_u32 v{vXrd}, v6, 4, v7")
    a(f"v_mul_u32_u24 v7, 3072, v6")
    a(f"v_bfe_u32 v8, v{vLane}, 2, 2")
    a(f"v_lshl_add_u32 v7, v8, 7, v7")
    a(f"v_lshrrev_b32 v8, 1, v8")
    a(f"v_xor_b32 v8, s{sWc}, v8")
    a(f"v_lshl_add_u32 v7, v8, 6, v7")
    a(f"v_bfe_u32 v8, v{vLane}, 4, 1")
    a(f"v_lshl_add_u32 v7, v8, 5, v7")
    a(f"v_and_b32 v8, 3, v{vLane}")
    a(f"v_lshl_add_u32 v{vWrd[0]}, v8, 3, v7")
    wl = LdsAddr(a, vWrd)
    wl.setup(a)
    a(f"v_and_b32 v7, 0x33, v{vLane}")
    a(f"v_bfe_u32 v8, v{vLane}, 2, 1")
    a(f"v_lshl_or_b32 v7, v8, 3, v7")
    a(f"v_bfe_u32 v8, v{vLane}, 3, 1")
    a(f"v_lshl_or_b32 v7, v8, 2, v7")
    a(f"v_lshlrev_b32 v{vKoff}, 4, v7")
    a(f"v_bfe_u32 v7, v{vLane}, 4, 1")
    a(f"v_lshlrev_b32 v7, 17, v7")
    a(f"v_lshl_add_u32 v7, v6, 8, v7")
    a(f"v_and_b32 v8, 15, v{vLane}")
    a(f"v_lshl_add_u32 v{vVoff}, v8, 4, v7")
    for r in range(48):
        a(f"v_mov_b32 v{accQ + r}, 0")
    a(f"v_mov_b32 v{vS}, 0")
    a(f"v_mov_b32 v{vQ}, 0")
    stamp(a)
    a.wait(vm=xtok)
    a("s_barrier")
    stamp(a)
    for s in range(32):
        a.lg(f"ds_read_b128 {vr(X0 + 4 * s, 4)}, v{vXrd} offset:{s * 32}")
    a.wait_all(vm=False)
    dr.wait(0)
    a("s_barrier")
    for st in range(3, 6):
        w_dma(st)

    def w_reads(s):
        st, ss = divmod(s, 4)
        ops = []
        for seg in range(3):
            for half in range(2):
                reg, off = wl.at(stage_slot[st] + ss * 6144 + seg * 1024 + half * 512)
                ops.append(f"ds_read_b64_tr_b16 {ar(12 * (s & 1) + 4 * seg + 2 * half, 2)}, {reg} offset:{off}")
        return ops

    rtok = {}
    for op in w_reads(0):
        rtok[0] = a.lg(op)
    for r in range(128):
        a(f"v_dot2_f32_bf16 v{vS}, v{X0 + r}, s{sOnes}, v{vS}")
        a(f"v_dot2_f32_bf16 v{vQ}, v{X0 + r}, v{X0 + r}, v{vQ}")
        if r % 10 == 0:
            dr.emit()
    a("s_nop 2")
    half_sum(a, vS, 8)
    half_sum(a, vQ, 8)
    finish_stats(a, vS, vQ, vR, vNB, 8)
    for op in normalize_ops(X0, vT, vR, vNB, sMask):
        a(op)
    stamp(a)
    for s in range(32):
        st, ss = divmod(s, 4)
        if s == 16:
            stamp(a)
        a.wait(lg=rtok[s])
        if s + 1 < 32:
            if ss == 3:
                dr.wait(st + 1)
                a("s_barrier")
                if st + 6 < 8:
                    w_dma(st + 6)
            for op in w_reads(s + 1):
                rtok[s + 1] = a.lg(op)
        else:
            a("s_nop 0")
        wb = 12 * (s & 1)
        xf = vr(X0 + 4 * s, 4)
        mf = [
            f"v_mfma_f32_32x32x16_bf16 {vr(accQ, 16)}, {ar(wb, 4)}, {xf}, {vr(accQ, 16)}",
            f"v_mfma_f32_32x32x16_bf16 {vr(accK, 16)}, {ar(wb + 4, 4)}, {xf}, {vr(accK, 16)}",
            f"v_mfma_f32_32x32x16_bf16 {vr(accV, 16)}, {xf}, {ar(wb + 8, 4)}, {vr(accV, 16)}",
        ]
        fill = normalize_ops(X0 + 4 * (s + 1), vT, vR, vNB, sMask) if s + 1 < 32 else []
        for op in interleave(mf, fill):
            a(op)
            if op is mf[0] or op is mf[1]:
                dr.emit()
    stamp(a)
    a(f"s_lshl_b32 s{sT0}, s{sCg}, 2")
    a(f"s_lshl_b32 s{sT1}, s{sWc}, 1")
    a(f"s_add_u32 s{sT0}, s{sT0}, s{sT1}")
    a(f"s_lshl_b32 s{sT1}, s{sRb}, 1")
    a(f"s_add_u32 s{sT1}, s{sT1}, s{sWr}")
    a(f"s_lshl_b32 s34, s{sT0}, 16")
    a(f"s_lshl_b32 s35, s{sT1}, 10")
    a(f"s_add_u32 s34, s34, s35")
    if QF:
        a(f"s_add_u32 s34, s34, {QF}")
    a(f"s_add_u32 s35, s34, 65536")
    a(f"s_lshl_b32 s36, s{sT0}, 17")
    a(f"s_lshl_b32 s37, s{sT1}, 11")
    a(f"s_add_u32 s36, s36, s37")
    a(f"s_add_u32 s36, s36, {KVF}")
    a(f"s_add_u32 s37, s36, 131072")
    a(f"s_mov_b32 s38, {hx(f2u(0.25 * LOG2E))}")
    P = X0
    for r in range(16):
        a(f"v_mul_f32 v{accQ + r}, s38, v{accQ + r}")
    for i in range(8):
        a(f"v_cvt_pk_bf16_f32 v{P + i}, v{accQ + 2 * i}, v{accQ + 2 * i + 1}")
    a.vm(f"buffer_store_dwordx4 {vr(P, 4)}, v{vL16}, {sr(sWS, 4)}, s34 offen")
    a.vm(f"buffer_store_dwordx4 {vr(P + 4, 4)}, v{vL16}, {sr(sWS, 4)}, s35 offen")
    for i in range(8):
        a(f"v_cvt_pk_bf16_f32 v{P + 8 + i}, v{accK + 2 * i}, v{accK + 2 * i + 1}")
    a.vm(f"buffer_store_dwordx4 {vr(P + 8, 4)}, v{vKoff}, {sr(sWS, 4)}, s36 offen")
    a.vm(f"buffer_store_dwordx4 {vr(P + 12, 4)}, v{vKoff}, {sr(sWS, 4)}, s37 offen")
    for i in range(8):
        a(f"v_cvt_pk_bf16_f32 v{P + 16 + i}, v{accV + 2 * i}, v{accV + 2 * i + 1}")
    a.vm(f"buffer_store_dwordx4 {vr(P + 16, 4)}, v{vVoff}, {sr(sWS, 4)}, s36 offen offset:1024")
    a.vm(f"buffer_store_dwordx4 {vr(P + 20, 4)}, v{vVoff}, {sr(sWS, 4)}, s36 offen offset:1536")
    stamp(a)
    stamp_flush(a, 0, sWS, sWave)
    kernel_end(a, name)
    return name, a.text(), descriptor(name, 240, 24), (256, 256, 163840)


def gen_k2():
    name = "k2_attn_kernel"
    a = Asm()
    kernel_begin(a, name, 256)
    sWS = 12
    sWave, sHead, sQb, sKh, sQs = 24, 25, 26, 27, 28
    sT0, sT1 = 30, 31
    sVm = 34
    vLane, vL16, vKrd, vVrd, vIdx, vXw, vXr = 1, 2, 3, 4, 5, 6, 7
    Qf = [8, 12]
    Kf = [16, 20]
    Vf = [24, 32]
    S = [48, 64]
    O = [80, 96]
    NEG = 112
    T = 128
    XCH = 131072
    a("s_load_dwordx2 s[8:9], s[0:1], 72")
    a("s_load_dwordx2 s[4:5], s[0:1], 0")
    a("s_load_dwordx2 s[6:7], s[0:1], 16")
    a("s_load_dwordx4 s[48:51], s[0:1], 32")
    a(f"v_and_b32 v{vLane}, 63, v0")
    a(f"v_lshrrev_b32 v8, 6, v0")
    a(f"v_lshlrev_b32 v{vL16}, 4, v{vLane}")
    a(f"v_readfirstlane_b32 s{sWave}, v8")
    a(f"s_and_b32 s{sT0}, s2, 7")
    a(f"s_lshl_b32 s{sT0}, s{sT0}, 2")
    a(f"s_lshr_b32 s{sT1}, s2, 6")
    a(f"s_add_u32 s{sHead}, s{sT0}, s{sT1}")
    a(f"s_bfe_u32 s{sQb}, s2, 0x30003")
    a(f"s_lshr_b32 s{sKh}, s{sWave}, 2")
    a(f"s_and_b32 s{sQs}, s{sWave}, 3")
    a(f"s_mov_b32 s{sVm}, 0x0000ffff")
    a(f"s_mov_b32 s{sVm + 1}, 0x0000ffff")
    a(f"s_lshl_b32 s32, s{sKh}, 16")
    a(f"s_lshl_b32 s{sT0}, s{sQs}, 11")
    a(f"s_add_u32 s32, s32, s{sT0}")
    a(f"s_lshl_b32 s33, s{sHead}, 17")
    a(f"s_add_u32 s33, s33, s32")
    a(f"s_add_u32 s33, s33, {KVF}")
    a(f"s_lshl_b32 s36, s{sHead}, 16")
    a(f"s_lshl_b32 s{sT0}, s{sQb}, 13")
    a(f"s_add_u32 s36, s36, s{sT0}")
    a(f"s_lshl_b32 s{sT0}, s{sQs}, 11")
    a(f"s_add_u32 s36, s36, s{sT0}")
    if QF:
        a(f"s_add_u32 s36, s36, {QF}")
    a("s_waitcnt lgkmcnt(0)")
    srd(a, sWS, 8, WS_SIZE)
    a.vm(f"buffer_load_dwordx4 {vr(Qf[0], 4)}, v{vL16}, {sr(sWS, 4)}, s36 offen")
    a.vm(f"buffer_load_dwordx4 {vr(Qf[1], 4)}, v{vL16}, {sr(sWS, 4)}, s36 offen offset:1024")
    dr = Drip(a)
    for c in range(8):
        dr.add(c, [f"s_add_u32 m0, s32, {c * 8192}", f"s_add_u32 s37, s33, {c * 8192}"],
               f"buffer_load_dwordx4 v{vL16}, {sr(sWS, 4)}, s37 offen lds")
        dr.add(c, [], f"buffer_load_dwordx4 v{vL16}, {sr(sWS, 4)}, s37 offen offset:1024 lds")
    dr.emit(4)
    a(f"s_lshl_b32 s{sT0}, s{sKh}, 16")
    a(f"v_add_u32 v{vKrd}, s{sT0}, v{vL16}")
    a(f"v_lshrrev_b32 v{T}, 5, v{vLane}")
    a(f"v_and_b32 v{T + 1}, 15, v{vLane}")
    a(f"v_lshlrev_b32 v{T + 1}, 4, v{T + 1}")
    a(f"v_lshl_add_u32 v{T}, v{T}, 8, v{T + 1}")
    a(f"v_add_u32 v{vVrd}, s{sT0}, v{T}")
    a(f"v_mov_b32 v{vIdx}, 0xdddd")
    a(f"s_mul_i32 s{sT0}, s{sWave}, 2304")
    a(f"s_add_u32 s{sT0}, s{sT0}, {XCH}")
    a(f"v_lshl_add_u32 v{vXw}, v{vLane}, 2, s{sT0}")
    a(f"s_xor_b32 s{sT1}, s{sWave}, 4")
    a(f"s_mul_i32 s{sT0}, s{sT1}, 2304")
    a(f"s_add_u32 s{sT0}, s{sT0}, {XCH}")
    a(f"v_lshl_add_u32 v{vXr}, v{vLane}, 2, s{sT0}")
    for r in range(16):
        a(f"v_mov_b32 v{Vf[0] + r}, 0")
    a("s_mov_b32 exec_lo, 0x00110000")
    a("s_mov_b32 exec_hi, 0x00110000")
    for r in range(16):
        a(f"v_mov_b32 v{Vf[0] + r}, 0x3f803f80")
    a("s_mov_b64 exec, -1")
    vPf, vPd = T + 14, T + 15
    a(f"s_lshr_b32 s{sT0}, s2, 3")
    a(f"s_lshl_b32 s{sT0}, s{sT0}, 16")
    a(f"v_lshlrev_b32 v{vPf}, 7, v0")
    a(f"v_add_u32 v{vPf}, s{sT0}, v{vPf}")
    srd(a, 16, 6, 512 * 1024)
    srd(a, 20, 48, 512 * 2752)
    srd(a, 52, 50, 512 * 2752)
    a(f"s_and_b32 s{sT0}, s2, 7")
    a(f"s_lshl_b32 s{sT0}, s{sT0}, 18")
    a(f"s_add_u32 s4, s4, s{sT0}")
    a("s_addc_u32 s5, s5, 0")
    srd(a, 44, 4, 256 * 1024)
    for r in range(32):
        a(f"v_mov_b32 v{O[0] + r}, 0")

    def kv_reads(t):
        b = t & 1
        k = f"ds_read_b128 {vr(Kf[b], 4)}, v{vKrd} offset:{t * 2048}"
        v = [f"ds_read_b128 {vr(Vf[b], 4)}, v{vVrd} offset:{t * 2048 + 1024}",
             f"ds_read_b128 {vr(Vf[b] + 4, 4)}, v{vVrd} offset:{t * 2048 + 1536}"]
        return k, v

    def emit_k(t):
        return a.lg(kv_reads(t)[0])

    def emit_v(t):
        a(f"s_mov_b64 exec, {sr(sVm, 2)}")
        v = kv_reads(t)[1]
        a.lg(v[0])
        tok = a.lg(v[1])
        a("s_mov_b64 exec, -1")
        return tok

    def qk(u):
        t, c = divmod(u, 2)
        return f"v_mfma_f32_32x32x16_bf16 {vr(S[u & 1], 16)}, {vr(Kf[t & 1], 4)}, {vr(Qf[c], 4)}, 0"

    def pv(u, i):
        t, c = divmod(u, 2)
        return (f"v_smfmac_f32_32x32x32_bf16 {vr(O[c], 16)}, {vr(Vf[t & 1] + 4 * i, 4)}, "
                f"{vr(S[u & 1] + 8 * i, 8)}, v{vIdx}")

    stamp(a)
    dr.wait(0)
    a("s_barrier")
    stamp(a)
    ktok, vtok = {}, {}
    ktok[0] = emit_k(0)
    vtok[0] = emit_v(0)
    ktok[1] = emit_k(1)
    a.wait(lg=ktok[0])
    a(qk(0))
    a("s_nop 11")
    NU = 64
    for u in range(NU):
        t, c = divmod(u, 2)
        X = S[u & 1]
        if u in (8, 32):
            stamp(a)
        ex = [f"v_exp_f32 v{X + i}, v{X + i}" for i in range(16)]
        a(ex[0]); a(ex[1])
        if u > 0:
            a(pv(u - 1, 1))
        a(ex[2]); a(ex[3]); a(ex[4])
        if u + 1 < NU:
            if c == 1:
                a.wait(lg=ktok[t + 1])
            a(qk(u + 1))
        if c == 0:
            if t + 1 < 32:
                vtok[t + 1] = emit_v(t + 1)
        else:
            if t + 2 < 32:
                if t + 2 == 4:
                    dr.wait(1)
                    a("s_barrier")
                if t + 2 == 8:
                    dr.wait(7)
                    a("s_barrier")
                    if OPT["pf_w"]:
                        for sq in (16, 44, 20, 52):
                            dr.add("pf", [], f"buffer_load_dword v{vPd}, v{vPf}, {sr(sq, 4)}, 0 offen")
                ktok[t + 2] = emit_k(t + 2)
        for i in range(5, 10):
            a(ex[i])
        dr.emit(2 if u < 8 else 1)
        if u == 24 and OPT["pf_code"]:
            code_prefetch(a, "k3_wo_kernel", 38, vPf, vPd, "k2")
        if c == 0:
            a.wait(lg=vtok[t])
        a(pv(u, 0))
        for i in range(10, 16):
            a(ex[i])
    a("s_nop 1")
    a(pv(NU - 1, 1))
    a("s_nop 15")
    stamp(a)
    a(f"s_cmp_eq_u32 s{sKh}, 0")
    a(f"s_cbranch_scc1 L_k2_keep0")
    for r in range(9):
        a(f"v_swap_b32 v{O[0] + r}, v{O[1] + r}")
    for r in range(4):
        a(f"v_mov_b32 v{Qf[0] + r}, v{Qf[1] + r}")
    a.label("L_k2_keep0")
    for r in range(9):
        a.lg(f"ds_write_b32 v{vXw}, v{O[1] + r} offset:{r * 256}")
    a.wait_all(vm=False)
    a("s_barrier")
    for r in range(9):
        a.lg(f"ds_read_b32 v{T + r}, v{vXr} offset:{r * 256}")
    a.wait_all(vm=False)
    for r in range(9):
        a(f"v_add_f32 v{O[0] + r}, v{O[0] + r}, v{T + r}")
    a(f"v_max3_f32 v{T}, |v{O[0]}|, |v{O[0] + 1}|, |v{O[0] + 2}|")
    a(f"v_max3_f32 v{T + 1}, |v{O[0] + 3}|, |v{O[0] + 4}|, |v{O[0] + 5}|")
    a(f"v_add_f32 v{T + 2}, |v{O[0] + 6}|, |v{O[0] + 7}|")
    a(f"v_add_f32 v{T}, v{T}, v{T + 1}")
    a(f"v_add_f32 v{T}, v{T}, v{T + 2}")
    for r in range(6):
        a(f"v_fma_f32 v{T}, v{O[0] + r}, 0, v{T}")
    a(f"s_mov_b32 s{sT0}, {hx(f2u(2.0 ** 120))}")
    a(f"s_mov_b32 s{sT1}, {hx(f2u(2.0 ** 80))}")
    a(f"v_cmp_gt_f32 s[40:41], s{sT0}, v{T}")
    a(f"v_cmp_gt_f32 s[42:43], s{sT1}, v{O[0] + 8}")
    a(f"s_mov_b32 s{sT1}, {hx(f2u(2.0 ** -80))}")
    a(f"v_cmp_lt_f32 vcc, s{sT1}, v{O[0] + 8}")
    a("s_nop 1")
    a("s_and_b64 s[40:41], s[40:41], s[42:43]")
    a("s_and_b64 s[40:41], s[40:41], vcc")
    a("s_cmp_eq_u64 s[40:41], -1")
    a("s_cbranch_scc0 L_k2_fallback")
    a.label("L_k2_finish")
    a(f"v_rcp_f32 v{T}, v{O[0] + 8}")
    a(f"s_lshl_b32 s{sT0}, s{sQb}, 3")
    a(f"s_lshl_b32 s{sT1}, s{sQs}, 1")
    a(f"s_add_u32 s{sT0}, s{sT0}, s{sT1}")
    a(f"s_add_u32 s{sT0}, s{sT0}, s{sKh}")
    a(f"s_lshl_b32 s{sT0}, s{sT0}, 15")
    a(f"s_lshl_b32 s{sT1}, s{sHead}, 10")
    a(f"s_add_u32 s{sT0}, s{sT0}, s{sT1}")
    a(f"s_add_u32 s{sT0}, s{sT0}, {OF}")
    for r in range(8):
        a(f"v_mul_f32 v{O[0] + r}, v{O[0] + r}, v{T}")
    for i in range(4):
        a(f"v_cvt_pk_bf16_f32 v{T + 4 + i}, v{O[0] + 2 * i}, v{O[0] + 2 * i + 1}")
    a.vm(f"buffer_store_dwordx4 {vr(T + 4, 4)}, v{vL16}, {sr(sWS, 4)}, s{sT0} offen")
    stamp(a)
    stamp_flush(a, 1, sWS, sWave)
    a("s_endpgm")
    a.label("L_k2_fallback")
    vK2, vV2, vM = T + 10, T + 11, T + 12
    a(f"s_lshl_b32 s{sT0}, s{sKh}, 16")
    a(f"v_subrev_u32 v{vK2}, s{sT0}, v{vKrd}")
    a(f"v_mov_b32 v{vM}, 0xff800000")
    a("s_mov_b32 s56, 0")
    a.label("L_k2_fb_max")
    a(f"ds_read_b128 {vr(Kf[0], 4)}, v{vK2}")
    a("s_waitcnt lgkmcnt(0)")
    a(f"v_mfma_f32_32x32x16_bf16 {vr(S[0], 16)}, {vr(Kf[0], 4)}, {vr(Qf[0], 4)}, 0")
    a("s_nop 15")
    for i in range(8):
        a(f"v_max3_f32 v{vM}, v{vM}, v{S[0] + 2 * i}, v{S[0] + 2 * i + 1}")
    a(f"v_add_u32 v{vK2}, 2048, v{vK2}")
    a("s_add_u32 s56, s56, 1")
    a("s_cmp_lt_u32 s56, 64")
    a("s_cbranch_scc1 L_k2_fb_max")
    a(f"v_mov_b32 v{T}, v{vM}")
    a("s_nop 1")
    a(f"v_permlane32_swap_b32 v{vM}, v{T}")
    a("s_nop 1")
    a(f"v_max_f32 v{vM}, v{vM}, v{T}")
    for r in range(16):
        a(f"v_sub_f32 v{NEG + r}, 0, v{vM}")
        a(f"v_mov_b32 v{O[0] + r}, 0")
    a(f"v_subrev_u32 v{vK2}, s{sT0}, v{vKrd}")
    a(f"v_subrev_u32 v{vV2}, s{sT0}, v{vVrd}")
    a("s_mov_b32 s56, 0")
    a.label("L_k2_fb_pv")
    a(f"ds_read_b128 {vr(Kf[0], 4)}, v{vK2}")
    a(f"s_mov_b64 exec, {sr(sVm, 2)}")
    a(f"ds_read_b128 {vr(Vf[0], 4)}, v{vV2} offset:1024")
    a(f"ds_read_b128 {vr(Vf[0] + 4, 4)}, v{vV2} offset:1536")
    a("s_mov_b64 exec, -1")
    a("s_waitcnt lgkmcnt(0)")
    a(f"v_mfma_f32_32x32x16_bf16 {vr(S[0], 16)}, {vr(Kf[0], 4)}, {vr(Qf[0], 4)}, {vr(NEG, 16)}")
    a("s_nop 15")
    for i in range(16):
        a(f"v_exp_f32 v{S[0] + i}, v{S[0] + i}")
    a("s_nop 1")
    a(f"v_smfmac_f32_32x32x32_bf16 {vr(O[0], 16)}, {vr(Vf[0], 4)}, {vr(S[0], 8)}, v{vIdx}")
    a(f"v_smfmac_f32_32x32x32_bf16 {vr(O[0], 16)}, {vr(Vf[0] + 4, 4)}, {vr(S[0] + 8, 8)}, v{vIdx}")
    a("s_nop 15")
    a(f"v_add_u32 v{vK2}, 2048, v{vK2}")
    a(f"v_add_u32 v{vV2}, 2048, v{vV2}")
    a("s_add_u32 s56, s56, 1")
    a("s_cmp_lt_u32 s56, 64")
    a("s_cbranch_scc1 L_k2_fb_pv")
    a("s_branch L_k2_finish")
    kernel_end(a, name)
    return name, a.text(), descriptor(name, 144, 0), (256, 512, XCH + 8 * 2304)


def gen_res(kind):
    k3 = kind == "k3"
    name = "k3_wo_kernel" if k3 else "k5_down_kernel"
    NCH = 16 if k3 else 43
    KS = 32 if k3 else 86
    ACT = OF if k3 else GF
    CPS = 4
    NST = (NCH + CPS - 1) // CPS
    DEPTH = OPT["k3_d"] if k3 else OPT["k5_d"]
    NSLOT = 4 if k3 else 8
    RED = NSLOT * 16384
    a = Asm()
    kernel_begin(a, name, 256)
    sW, sWS, sIO = 12, 16, 20
    sWave, sWr, sKh, sRt, sCb = 24, 25, 26, 27, 28
    sT0, sT1, sWL, sAct = 30, 31, 32, 33
    sMask, sOnes = 40, 41
    vLane, vL16, vWoff, vRw, vRr, vRes = 1, 2, 3, 4, 5, 6
    vWrd = [[8, 9], [10, 11]]
    T = 12
    RES = 32
    acc = [40, 56]
    A0 = 72
    if k3:
        a("s_load_dwordx2 s[4:5], s[0:1], 16")
        a("s_load_dwordx2 s[6:7], s[0:1], 0")
    else:
        a("s_load_dwordx4 s[4:7], s[0:1], 48")
    a("s_load_dwordx2 s[8:9], s[0:1], 72")
    a(f"v_and_b32 v{vLane}, 63, v0")
    a(f"v_lshrrev_b32 v{T}, 6, v0")
    a(f"v_lshlrev_b32 v{vL16}, 4, v{vLane}")
    a(f"v_readfirstlane_b32 s{sWave}, v{T}")
    a(f"s_and_b32 s{sT0}, s2, 7")
    a(f"s_lshl_b32 s{sRt}, s{sT0}, 2")
    a(f"s_lshr_b32 s34, s2, 6")
    a(f"s_add_u32 s{sRt}, s{sRt}, s34")
    a(f"s_bfe_u32 s{sCb}, s2, 0x30003")
    a(f"s_and_b32 s{sWr}, s{sWave}, 1")
    a(f"s_lshr_b32 s{sKh}, s{sWave}, 1")
    a(f"s_lshl_b32 s{sRt}, s{sRt}, 1")
    a(f"s_add_u32 s{sRt}, s{sRt}, s{sWr}")
    a(f"s_mov_b32 s{sMask}, 0xffff0000")
    a(f"s_mov_b32 s{sOnes}, 0x3f803f80")
    a(f"v_lshrrev_b32 v{T}, 3, v{vLane}")
    a(f"v_lshrrev_b32 v{T + 1}, 2, v{vLane}")
    a(f"v_and_b32 v{T + 1}, 4, v{T + 1}")
    a(f"v_and_b32 v{T + 2}, 7, v{vLane}")
    a(f"v_xor_b32 v{T + 1}, v{T + 1}, v{T + 2}")
    a(f"v_lshlrev_b32 v{T + 1}, 4, v{T + 1}")
    a(f"v_lshl_add_u32 v{vWoff}, v{T}, 10, v{T + 1}")
    a(f"s_lshl_b32 s{sT0}, s{sWave}, 13")
    a(f"s_lshl_b32 s{sT1}, s{sCb}, 7")
    a(f"s_add_u32 s{sT0}, s{sT0}, s{sT1}")
    a(f"v_add_u32 v{vWoff}, s{sT0}, v{vWoff}")
    a(f"s_lshl_b32 s{sWL}, s{sWave}, 10")
    a(f"s_mul_i32 s{sAct}, s{sRt}, {KS * 1024}")
    a(f"s_lshl_b32 s{sT0}, s{sKh}, 10")
    a(f"s_add_u32 s{sAct}, s{sAct}, s{sT0}")
    a(f"s_add_u32 s{sAct}, s{sAct}, {ACT}")
    a("s_waitcnt lgkmcnt(0)")
    srd(a, sW, 4, KS * 16 * 1024)
    srd(a, sWS, 8, WS_SIZE)
    srd(a, sIO, 6, 2048 * 1024)
    dr = Drip(a)

    def issue(st):
        for c in range(st * CPS, min(NCH, (st + 1) * CPS)):
            dr.add(st, [f"s_add_u32 m0, s{sWL}, {(st % NSLOT) * 16384 + (c % CPS) * 4096}", f"s_mov_b32 s42, {c * 32768}"],
                   f"buffer_load_dwordx4 v{vWoff}, {sr(sW, 4)}, s42 offen lds")
            dr.add(st, [f"s_add_u32 s43, s{sAct}, {c * 2048}"] if c % 2 == 0 else [],
                   f"buffer_load_dwordx4 {vr(A0 + 4 * c, 4)}, v{vL16}, {sr(sWS, 4)}, s43 offen offset:{(c % 2) * 2048}")

    for st in range(min(NSLOT, NST)):
        issue(st)
    dr.emit(8 * DEPTH)
    a(f"s_lshl_b32 s34, s{sCb}, 1")
    a(f"s_add_u32 s34, s34, s{sKh}")
    a(f"v_and_b32 v{T}, 31, v{vLane}")
    a(f"v_lshrrev_b32 v{T + 1}, 5, v{vLane}")
    a(f"v_lshlrev_b32 v{T + 2}, 10, v{T}")
    a(f"v_lshl_add_u32 v{vRes}, v{T + 1}, 3, v{T + 2}")
    a(f"s_lshl_b32 s35, s{sRt}, 15")
    a(f"s_lshl_b32 s36, s34, 6")
    a(f"s_add_u32 s35, s35, s36")
    a(f"s_lshl_b32 s36, s{sRt}, 15")
    a(f"s_lshl_b32 s37, s34, 11")
    a(f"s_add_u32 s36, s36, s37")
    a(f"s_add_u32 s36, s36, {HF}")
    res_items = []
    if k3:
        for g in range(4):
            res_items.append(f"buffer_load_dwordx2 {vr(RES + 2 * g, 2)}, v{vRes}, {sr(sIO, 4)}, s35 offen offset:{g * 16}")
    else:
        res_items.append(f"buffer_load_dwordx4 {vr(RES, 4)}, v{vL16}, {sr(sWS, 4)}, s36 offen")
        res_items.append(f"buffer_load_dwordx4 {vr(RES + 4, 4)}, v{vL16}, {sr(sWS, 4)}, s36 offen offset:1024")
    if NST <= NSLOT:
        for it in res_items:
            dr.add("res", [], it)
    a(f"v_bfe_u32 v{T + 2}, v{vLane}, 2, 2")
    a(f"v_lshl_add_u32 v{T + 3}, v{T + 1}, 2, v{T + 2}")
    a(f"s_lshl_b32 s{sT0}, s{sKh}, 4")
    a(f"v_add_u32 v{T + 3}, s{sT0}, v{T + 3}")
    a(f"v_lshlrev_b32 v{T + 3}, 7, v{T + 3}")
    a(f"v_bfe_u32 v{T + 4}, v{vLane}, 4, 1")
    a(f"v_lshl_add_u32 v{T + 3}, v{T + 4}, 5, v{T + 3}")
    a(f"v_and_b32 v{T + 4}, 3, v{vLane}")
    a(f"v_lshl_add_u32 v{T + 3}, v{T + 4}, 3, v{T + 3}")
    a(f"v_lshrrev_b32 v{T + 2}, 1, v{T + 2}")
    a(f"v_lshl_add_u32 v{vWrd[0][0]}, v{T + 2}, 6, v{T + 3}")
    a(f"v_xor_b32 v{vWrd[1][0]}, 64, v{vWrd[0][0]}")
    wl = [LdsAddr(a, vWrd[0]), LdsAddr(a, vWrd[1])]
    wl[0].setup(a)
    wl[1].setup(a)
    a(f"s_lshl_b32 s{sT0}, s{sWave}, 12")
    a(f"s_add_u32 s{sT0}, s{sT0}, {RED}")
    a(f"v_add_u32 v{vRw}, s{sT0}, v{vL16}")
    a(f"v_xor_b32 v{vRr}, 0x2000, v{vRw}")
    for r in range(32):
        a(f"v_mov_b32 v{acc[0] + r}, 0")

    def w_reads(c):
        st = c // CPS
        ops = []
        for b in range(2):
            for half in range(2):
                reg, off = wl[b].at((st % NSLOT) * 16384 + (c % CPS) * 4096 + half * 1024)
                ops.append(f"ds_read_b64_tr_b16 {ar(8 * (c & 1) + 4 * b + 2 * half, 2)}, {reg} offset:{off}")
        return ops

    stamp(a)
    dr.wait(0)
    a("s_barrier")
    stamp(a)
    rt = {}
    for op in w_reads(0):
        rt[0] = a.lg(op)
    for c in range(NCH):
        st = c // CPS
        if c == NCH // 2:
            stamp(a)
        a.wait(lg=rt[c])
        if c + 1 < NCH:
            if (c + 1) % CPS == 0:
                dr.wait(st + 1)
                a("s_barrier")
                if st + NSLOT < NST:
                    issue(st + NSLOT)
                    if st + NSLOT == NST - 1:
                        for it in res_items:
                            dr.add("res", [], it)
            for op in w_reads(c + 1):
                rt[c + 1] = a.lg(op)
        wb = 8 * (c & 1)
        for b in range(2):
            a(f"v_mfma_f32_32x32x16_bf16 {vr(acc[b], 16)}, {ar(wb + 4 * b, 4)}, {vr(A0 + 4 * c, 4)}, {vr(acc[b], 16)}")
            dr.emit()
    a("s_nop 15")
    stamp(a)
    a(f"s_cmp_eq_u32 s{sKh}, 0")
    a(f"s_cbranch_scc1 L_{name}_keep0")
    for r in range(16):
        a(f"v_swap_b32 v{acc[0] + r}, v{acc[1] + r}")
    a.label(f"L_{name}_keep0")
    for g in range(4):
        a.lg(f"ds_write_b128 v{vRw}, {vr(acc[1] + 4 * g, 4)} offset:{g * 1024}")
    a.wait_all(vm=False)
    a("s_barrier")
    for g in range(4):
        a.lg(f"ds_read_b128 {vr(acc[1] + 4 * g, 4)}, v{vRr} offset:{g * 1024}")
    dr.wait("res")
    for i in range(8):
        a(f"v_lshlrev_b32 v{T}, 16, v{RES + i}")
        a(f"v_and_b32 v{T + 1}, s{sMask}, v{RES + i}")
        a(f"v_add_f32 v{acc[0] + 2 * i}, v{acc[0] + 2 * i}, v{T}")
        a(f"v_add_f32 v{acc[0] + 2 * i + 1}, v{acc[0] + 2 * i + 1}, v{T + 1}")
    a.wait_all(vm=False)
    for r in range(16):
        a(f"v_add_f32 v{acc[0] + r}, v{acc[0] + r}, v{acc[1] + r}")
    for i in range(8):
        a(f"v_cvt_pk_bf16_f32 v{RES + i}, v{acc[0] + 2 * i}, v{acc[0] + 2 * i + 1}")
    if k3:
        a.vm(f"buffer_store_dwordx4 {vr(RES, 4)}, v{vL16}, {sr(sWS, 4)}, s36 offen")
        a.vm(f"buffer_store_dwordx4 {vr(RES + 4, 4)}, v{vL16}, {sr(sWS, 4)}, s36 offen offset:1024")
        a(f"v_mov_b32 v{T}, 0")
        a(f"v_mov_b32 v{T + 1}, 0")
        for i in range(8):
            a(f"v_dot2_f32_bf16 v{T}, v{RES + i}, s{sOnes}, v{T}")
            a(f"v_dot2_f32_bf16 v{T + 1}, v{RES + i}, v{RES + i}, v{T + 1}")
        a("s_nop 2")
        half_sum(a, T, T + 2)
        half_sum(a, T + 1, T + 2)
        a(f"s_lshl_b32 s{sT0}, s34, 14")
        a(f"s_lshl_b32 s{sT1}, s{sRt}, 8")
        a(f"s_add_u32 s{sT0}, s{sT0}, s{sT1}")
        a(f"s_add_u32 s{sT0}, s{sT0}, {ST}")
        a(f"v_lshlrev_b32 v{T + 2}, 3, v{vLane}")
        a("s_mov_b32 exec_hi, 0")
        a.vm(f"buffer_store_dwordx2 {vr(T, 2)}, v{T + 2}, {sr(sWS, 4)}, s{sT0} offen")
    else:
        for g in range(4):
            a.vm(f"buffer_store_dwordx2 {vr(RES + 2 * g, 2)}, v{vRes}, {sr(sIO, 4)}, s35 offen offset:{g * 16}")
    stamp(a)
    stamp_flush(a, 2 if k3 else 4, sWS, sWave)
    kernel_end(a, name)
    return name, a.text(), descriptor(name, A0 + 4 * NCH, 16), (256, 256, RED + 16384)


def gen_k4():
    name = "k4_glu_kernel"
    a = Asm()
    kernel_begin(a, name, 240)
    sG, sU, sWS = 12, 16, 20
    sWave, sRb, sCg, sRt = 24, 25, 26, 27
    sT0, sT1, sWL, sAct = 30, 31, 32, 33
    sMask, sL2e = 40, 41
    vLane, vL16 = 1, 2
    vWoff = [3, 4, 5]
    vWrd = [6, 7, 8]
    vS, vQ, vR, vNB = 9, 10, 11, 12
    vT = 16
    X0 = 32
    ACC = 160
    a("s_load_dwordx4 s[4:7], s[0:1], 32")
    a("s_load_dwordx2 s[8:9], s[0:1], 72")
    a("s_load_dwordx2 s[10:11], s[0:1], 48")
    a(f"v_and_b32 v{vLane}, 63, v0")
    a(f"v_lshrrev_b32 v{vT}, 6, v0")
    a(f"v_lshlrev_b32 v{vL16}, 4, v{vLane}")
    a(f"v_readfirstlane_b32 s{sWave}, v{vT}")
    a(f"s_and_b32 s{sT0}, s2, 7")
    a(f"s_lshl_b32 s{sT0}, s{sT0}, 1")
    a(f"s_bfe_u32 s{sT1}, s2, 0x10003")
    a(f"s_add_u32 s{sRb}, s{sT0}, s{sT1}")
    a(f"s_lshr_b32 s{sCg}, s2, 4")
    a(f"s_lshl_b32 s{sRt}, s{sRb}, 2")
    a(f"s_add_u32 s{sRt}, s{sRt}, s{sWave}")
    a(f"s_mov_b32 s{sMask}, 0xffff0000")
    a(f"s_mov_b32 s{sL2e}, {hx(f2u(LOG2E))}")
    a(f"s_mul_i32 s{sT0}, s{sWave}, {16 * 2752}")
    a(f"s_mul_i32 s{sT1}, s{sCg}, 192")
    a(f"s_add_u32 s{sT0}, s{sT0}, s{sT1}")
    for i in range(3):
        a(f"v_add_u32 v{vT}, {64 * i}, v{vLane}")
        a(f"v_mul_u32_u24 v{vT + 1}, 171, v{vT}")
        a(f"v_lshrrev_b32 v{vT + 1}, 11, v{vT + 1}")
        a(f"v_mul_u32_u24 v{vT + 2}, {2752 - 192}, v{vT + 1}")
        a(f"v_lshl_add_u32 v{vT + 2}, v{vLane}, 4, v{vT + 2}")
        a(f"v_add_u32 v{vWoff[i]}, s{sT0}, v{vT + 2}")
    a(f"s_mul_i32 s{sWL}, s{sWave}, 6144")
    a(f"s_lshl_b32 s{sAct}, s{sRt}, 15")
    a(f"s_add_u32 s{sAct}, s{sAct}, {HF}")
    a(f"v_lshrrev_b32 v{vT + 3}, 5, v{vLane}")
    a(f"v_and_b32 v{vT + 4}, 31, v{vLane}")
    a(f"v_lshlrev_b32 v{vT + 4}, 3, v{vT + 4}")
    a(f"v_lshl_add_u32 v{vT + 4}, v{vT + 3}, 17, v{vT + 4}")
    a(f"s_lshl_b32 s34, s{sRt}, 8")
    a(f"s_add_u32 s34, s34, {ST}")
    a("s_waitcnt lgkmcnt(0)")
    srd(a, sG, 4, 512 * 2752)
    srd(a, sU, 6, 512 * 2752)
    srd(a, sWS, 8, WS_SIZE)
    for i in range(8):
        a(f"s_add_u32 s{sT0}, s34, {i * 16384}")
        stok = a.vm(f"buffer_load_dwordx2 {vr(ACC + 2 * i, 2)}, v{vT + 4}, {sr(sWS, 4)}, s{sT0} offen")
    SLOT = 24576
    NSLOT = 6
    dr = Drip(a)

    def issue(st):
        for i in range(4):
            dr.add(st, [f"s_add_u32 s43, s{sAct}, {st * 4096}"] if i == 0 else [],
                   f"buffer_load_dwordx4 {vr(X0 + 16 * st + 4 * i, 4)}, v{vL16}, {sr(sWS, 4)}, s43 offen offset:{i * 1024}")
        for mat in range(2):
            for i in range(3):
                pre = [f"s_add_u32 m0, s{sWL}, {(st % NSLOT) * SLOT + mat * 3072}",
                       f"s_mov_b32 s42, {st * 64 * 2752}"] if i == 0 else []
                dr.add(st, pre, f"buffer_load_dwordx4 v{vWoff[i]}, {sr(sG if mat == 0 else sU, 4)}, s42 offen offset:{i * 1024} lds")

    for st in range(NSLOT):
        issue(st)
    dr.emit(10 * OPT["k4_d"])
    vPf, vPd = 13, 14
    srd(a, 44, 10, 1376 * 1024)
    a(f"s_lshr_b32 s{sT0}, s2, 3")
    a(f"s_lshl_b32 s{sT0}, s{sT0}, 15")
    a(f"v_lshlrev_b32 v{vPf}, 7, v0")
    a(f"v_add_u32 v{vPf}, s{sT0}, v{vPf}")
    a(f"v_add_u32 v15, {120 * 8192}, v{vPf}")
    a(f"v_bfe_u32 v{vT}, v{vLane}, 2, 2")
    a(f"v_lshl_add_u32 v{vT}, v{vT + 3}, 2, v{vT}")
    a(f"v_mul_u32_u24 v{vT}, 192, v{vT}")
    a(f"v_bfe_u32 v{vT + 1}, v{vLane}, 4, 1")
    a(f"v_lshl_add_u32 v{vT}, v{vT + 1}, 5, v{vT}")
    a(f"v_and_b32 v{vT + 1}, 3, v{vLane}")
    a(f"v_lshl_add_u32 v{vWrd[0]}, v{vT + 1}, 3, v{vT}")
    wl = LdsAddr(a, vWrd)
    wl.setup(a)
    stamp(a)
    a.wait(vm=stok)
    stamp(a)
    a(f"v_add_f32 v{vS}, v{ACC}, v{ACC + 2}")
    a(f"v_add_f32 v{vQ}, v{ACC + 1}, v{ACC + 3}")
    for i in range(2, 8):
        a(f"v_add_f32 v{vS}, v{vS}, v{ACC + 2 * i}")
        a(f"v_add_f32 v{vQ}, v{vQ}, v{ACC + 2 * i + 1}")
    half_sum(a, vS, vT)
    half_sum(a, vQ, vT)
    finish_stats(a, vS, vQ, vR, vNB, vT, scale=LOG2E)
    for r in range(96):
        a(f"v_mov_b32 v{ACC + r}, 0")

    def w_reads(s):
        st, ss = divmod(s, 4)
        ops = []
        for u in range(3):
            for mat in range(2):
                for half in range(2):
                    reg, off = wl.at((st % NSLOT) * SLOT + ss * 6144 + mat * 3072 + half * 8 * 192 + u * 64)
                    ops.append(f"ds_read_b64_tr_b16 {ar(24 * (s & 1) + 8 * u + 4 * mat + 2 * half, 2)}, {reg} offset:{off}")
        return ops

    dr.wait(0)
    a("s_barrier")
    stamp(a)
    rt = {}
    for k, op in enumerate(w_reads(0)):
        rt[(0, k // 2)] = a.lg(op)
    for op in normalize_ops(X0, vT, vR, vNB, sMask):
        a(op)
    a("s_nop 0")
    for s in range(32):
        st, ss = divmod(s, 4)
        if s == 16:
            stamp(a)
        rd = []
        if s + 1 < 32:
            if ss == 3:
                a.wait(lg=rt[(s, 5)])
                dr.wait(st + 1)
                a("s_barrier")
                if st + NSLOT < 8:
                    issue(st + NSLOT)
                    if st + NSLOT == 7 and OPT["pf_w"]:
                        dr.add("pf", [], f"buffer_load_dword v{vPd}, v{vPf}, s[44:47], 0 offen")
                        dr.add("pf", [], f"buffer_load_dword v{vPd}, v15, s[44:47], 0 offen")
            rd = w_reads(s + 1)
        wb = 24 * (s & 1)
        xf = vr(X0 + 4 * s, 4)
        mf = [f"v_mfma_f32_32x32x16_bf16 {vr(ACC + 16 * j, 16)}, {ar(wb + 4 * j, 4)}, {xf}, {vr(ACC + 16 * j, 16)}"
              for j in range(6)]
        fill = normalize_ops(X0 + 4 * (s + 1), vT, vR, vNB, sMask) if s + 1 < 32 else []
        seq = interleave(mf[:5], fill) + [mf[5]]
        k = 0
        j = 0
        for op in seq:
            if op.startswith("v_mfma"):
                a.wait(lg=rt[(s, j)])
            a(op)
            if op.startswith("v_mfma"):
                for _ in range(3):
                    if k < len(rd):
                        rt[(s + 1, k // 2)] = a.lg(rd[k])
                        k += 1
                if j in (3, 4, 5):
                    dr.emit()
                j += 1
    a(f"s_mul_i32 s34, s{sRt}, {86 * 1024}")
    a(f"s_mul_i32 s35, s{sCg}, {6 * 1024}")
    a("s_add_u32 s34, s34, s35")
    a(f"s_add_u32 s34, s34, {GF}")
    a("s_nop 7")
    stamp(a)
    for u in range(3):
        G, U = ACC + 32 * u, ACC + 32 * u + 16
        if u == 1:
            a(f"s_cmp_eq_u32 s{sCg}, 14")
            a(f"s_cbranch_scc1 L_{name}_done")
        for r in range(16):
            a(f"v_exp_f32 v{G + r}, -v{G + r}")
        for r in range(16):
            a(f"v_fma_f32 v{G + r}, v{G + r}, s{sL2e}, s{sL2e}")
        for r in range(16):
            a(f"v_rcp_f32 v{G + r}, v{G + r}")
        for r in range(16):
            a(f"v_mul_f32 v{U + r}, v{U + r}, v{G + r}")
        for i in range(8):
            a(f"v_cvt_pk_bf16_f32 v{X0 + 8 * u + i}, v{U + 2 * i}, v{U + 2 * i + 1}")
        a(f"s_add_u32 s35, s34, {u * 2048}")
        a.vm(f"buffer_store_dwordx4 {vr(X0 + 8 * u, 4)}, v{vL16}, {sr(sWS, 4)}, s35 offen")
        a.vm(f"buffer_store_dwordx4 {vr(X0 + 8 * u + 4, 4)}, v{vL16}, {sr(sWS, 4)}, s35 offen offset:1024")
    stamp(a)
    stamp_flush(a, 3, sWS, sWave)
    kernel_end(a, name)
    return name, a.text(), descriptor(name, 256, 48), (240, 256, NSLOT * SLOT)


def build():
    ks = [gen_k1(), gen_k2(), gen_res("k3"), gen_k4(), gen_res("k5")]
    ref = open(f"cdna_kernels/{NAME}.s.ref").read().split("\n")
    head = [l for l in ref if l.startswith(";") and "@launch" not in l and "Override launch" not in l
            and "grid=ceil" not in l]
    out = "\n".join(head) + "\n"
    for name, _, _, (g, b, lds) in ks:
        out += f"; @launch kernel={name} grid=({g},1,1) block=({b},1,1) lds={lds}\n"
    out += '.amdgcn_target "amdgcn-amd-amdhsa--gfx950"\n.text\n'
    bad = 0
    for name, text, _, _ in ks:
        bad += check_hazards(text, name)
        out += text
    out += "L_code_end:\n"
    out += '.section .rodata,"a"\n'
    for name, _, desc, _ in ks:
        out += ".p2align 6\n" + desc
    if bad:
        print("hazards:", bad)
    return out


if __name__ == "__main__":
    path = sys.argv[1] if len(sys.argv) > 1 else f"cdna_kernels/{NAME}.s"
    for arg in sys.argv[2:]:
        if arg == "stamps":
            STAMPS = True
        else:
            k_, v_ = arg.split("=")
            OPT[k_] = int(v_)
    open(path, "w").write(build())
    print("wrote", path)
```

```python
import math
import struct
import sys

from asmlib import Asm, check_hazards

NAME = "sequential_preLN__mha_block__glu_gated_glu__prompt"

MB = 1 << 20
QF = 0
KVF = 2 * MB
OF = 6 * MB
HF = 8 * MB
ST = 10 * MB
GF = 12 * MB
WS_SIZE = 32 * MB

LOG2E = 1.4426950408889634
OPT = dict(pf_code=True, pf_w=True, k1_pre=2, k3_d=2, k5_d=3, k4_d=2)


def f2u(x):
    return struct.unpack("<I", struct.pack("<f", x))[0]


def hx(x):
    return "0x%08x" % (x & 0xFFFFFFFF)


def vr(b, n):
    return f"v[{b}:{b + n - 1}]"


def ar(b, n):
    return f"a[{b}:{b + n - 1}]"


def sr(b, n):
    return f"s[{b}:{b + n - 1}]"


def srd(a, d, base, size):
    a(f"s_mov_b32 s{d}, s{base}")
    a(f"s_mov_b32 s{d + 1}, s{base + 1}")
    a(f"s_mov_b32 s{d + 2}, {hx(size)}")
    a(f"s_mov_b32 s{d + 3}, 0x00020000")


def interleave(main, fill, lead=0):
    out = []
    fill = list(fill)
    out += fill[:lead]
    fill = fill[lead:]
    n = len(main)
    per = len(fill) / n if n else 0
    used = 0
    for i, m in enumerate(main):
        out.append(m)
        upto = int(round(per * (i + 1)))
        out += fill[used:upto]
        used = upto
    out += fill[used:]
    return out


def kernel_begin(a, name, nwg):
    a.raw(f".globl {name}")
    a.raw(".p2align 8")
    a.raw(f".type {name},@function")
    a.label(name)
    a(f"s_cmp_ge_u32 s2, {nwg}")
    a(f"s_cbranch_scc1 L_{name}_done")
    dbgt_begin(a)
    stamp(a, real=True)
    stamp(a)


STAMPS = False
SBASE = 60
DBGO = 20 * MB


def stamp(a, real=False):
    if not STAMPS:
        return
    i = getattr(a, "nstamp", 0)
    a.nstamp = i + 1
    assert i < 16
    a(f"{'s_memrealtime' if real else 's_memtime'} s[{SBASE + 2 * i}:{SBASE + 2 * i + 1}]")
    a.wait_all(vm=False)


def stamp_flush(a, kidx, sWS, sWave):
    dbgt_end(a, kidx)
    if not STAMPS:
        return
    a.wait_all()
    stamp(a)
    stamp(a, real=True)
    a("s_mov_b64 exec, -1")
    a("s_lshl_b32 s58, s2, 3")
    a(f"s_add_u32 s58, s58, s{sWave}")
    a("s_lshl_b32 s58, s58, 6")
    a(f"s_add_u32 s58, s58, {DBGO + kidx * MB}")
    a("v_mov_b32 v1, 0")
    for i in range(a.nstamp):
        a(f"v_mov_b32 v2, s{SBASE + 2 * i}")
        a(f"buffer_store_dword v2, v1, s[{sWS}:{sWS + 3}], s58 offen offset:{4 * i}")
    a.wait_all()


DBGT = False


def dbgt_begin(a):
    if not DBGT:
        return
    a("s_memrealtime s[90:91]")
    a("s_load_dwordx2 s[92:93], s[0:1], 64")


def dbgt_end(a, kidx):
    if not DBGT:
        return
    a.wait_all()
    a("s_memrealtime s[88:89]")
    a.wait_all()
    a(f"s_sub_u32 s92, s92, {512 * kidx}")
    a("s_subb_u32 s93, s93, 0")
    a("s_mov_b32 s94, 256")
    a("s_mov_b32 s95, 0x00020000")
    a("s_mov_b64 exec, 1")
    a("s_not_b32 s90, s90")
    a("v_mov_b32 v1, 0")
    a("v_mov_b32 v2, s90")
    a("v_mov_b32 v3, s88")
    a(f"buffer_atomic_umax v2, v1, s[92:95], 0 offen offset:{8 * kidx}")
    a(f"buffer_atomic_umax v3, v1, s[92:95], 0 offen offset:{8 * kidx + 4}")
    a.wait_all()


def kernel_end(a, name):
    a.label(f"L_{name}_done")
    a("s_endpgm")


def descriptor(name, vgpr, agpr, sgpr=96):
    acc = (vgpr + 3) // 4 * 4
    return f""".amdhsa_kernel {name}
  .amdhsa_next_free_vgpr {acc + agpr}
  .amdhsa_next_free_sgpr {sgpr}
  .amdhsa_accum_offset {acc}
  .amdhsa_group_segment_fixed_size 0
  .amdhsa_kernarg_size 80
  .amdhsa_user_sgpr_count 2
  .amdhsa_user_sgpr_kernarg_segment_ptr 1
  .amdhsa_system_sgpr_workgroup_id_x 1
.end_amdhsa_kernel
"""


def normalize_ops(x, t, vR, vNB, sMask):
    ops = []
    for i in range(4):
        ops.append(f"v_lshlrev_b32 v{t + 2 * i}, 16, v{x + i}")
        ops.append(f"v_and_b32 v{t + 2 * i + 1}, s{sMask}, v{x + i}")
    for i in range(8):
        ops.append(f"v_fma_f32 v{t + i}, v{t + i}, v{vR}, v{vNB}")
    for i in range(4):
        ops.append(f"v_cvt_pk_bf16_f32 v{x + i}, v{t + 2 * i}, v{t + 2 * i + 1}")
    return ops


def half_sum(a, r, t):
    a(f"v_mov_b32 v{t}, v{r}")
    a("s_nop 1")
    a(f"v_permlane32_swap_b32 v{r}, v{t}")
    a("s_nop 1")
    a(f"v_add_f32 v{r}, v{r}, v{t}")


def finish_stats(a, vS, vQ, vR, vNB, t, scale=1.0):
    a(f"v_mul_f32 v{vS}, {hx(f2u(1.0 / 512))}, v{vS}")
    a(f"v_mul_f32 v{vQ}, {hx(f2u(1.0 / 512))}, v{vQ}")
    a(f"v_fma_f32 v{t}, -v{vS}, v{vS}, v{vQ}")
    a(f"v_max_f32 v{t}, 0, v{t}")
    a(f"v_add_f32 v{t}, {hx(f2u(1e-5))}, v{t}")
    a(f"v_rsq_f32 v{vR}, v{t}")
    a("s_nop 0")
    if scale != 1.0:
        a(f"v_mul_f32 v{vR}, {hx(f2u(scale))}, v{vR}")
    a(f"v_mul_f32 v{vNB}, -v{vS}, v{vR}")


class Drip:
    def __init__(self, a):
        self.a = a
        self.q = []
        self.tok = {}

    def add(self, key, pre, ins):
        self.q.append((key, pre, ins))

    def emit(self, n=1):
        for _ in range(n):
            if not self.q:
                return
            key, pre, ins = self.q.pop(0)
            for p in pre:
                self.a(p)
            self.tok[key] = self.a.vm(ins)

    def through(self, key):
        while any(k == key for k, _, _ in self.q):
            self.emit()

    def wait(self, key):
        self.through(key)
        self.a.wait(vm=self.tok[key])


def code_prefetch(a, label, sPC, vOff, vDst, uid):
    a(f"s_getpc_b64 s[{sPC}:{sPC + 1}]")
    a.label(f"L_pc_{uid}")
    a(f"s_add_u32 s{sPC}, s{sPC}, {label}-L_pc_{uid}")
    a(f"s_addc_u32 s{sPC + 1}, s{sPC + 1}, ({label}-L_pc_{uid})>>32")
    a(f"v_min_u32 v{vOff}, L_code_end-{label}-4, v{vOff}")
    return a.vm(f"global_load_dword v{vDst}, v{vOff}, s[{sPC}:{sPC + 1}]")


class LdsAddr:
    def __init__(self, a, regs):
        self.regs = regs

    def setup(self, a):
        for j in range(1, len(self.regs)):
            a(f"v_add_u32 v{self.regs[j]}, {hx(j * 65536)}, v{self.regs[0]}")

    def at(self, off):
        return f"v{self.regs[off >> 16]}", off & 0xFFFF


def gen_k1():
    name = "k1_qkv_kernel"
    a = Asm()
    kernel_begin(a, name, 256)
    sX, sW, sWS = 12, 16, 20
    sWave, sWr, sWc, sCg, sRb = 24, 25, 26, 27, 28
    sT0, sT1, sWL, sXL = 30, 31, 32, 33
    sMask, sOnes = 40, 41
    vLane, vL16, vWoff, vXrd, vT = 1, 2, 3, 4, 8
    vS, vQ, vR, vNB = 16, 17, 18, 19
    vKoff, vVoff = 20, 21
    vWrd = [24, 25, 26]
    X0 = 64
    accQ, accK, accV = 192, 208, 224
    a("s_load_dwordx4 s[4:7], s[0:1], 0")
    a("s_load_dwordx2 s[8:9], s[0:1], 72")
    a(f"v_and_b32 v{vLane}, 63, v0")
    a(f"v_lshrrev_b32 v5, 6, v0")
    a(f"v_lshlrev_b32 v{vL16}, 4, v{vLane}")
    a(f"v_readfirstlane_b32 s{sWave}, v5")
    if OPT["pf_code"]:
        a(f"v_lshlrev_b32 v30, 7, v0")
        code_prefetch(a, name, 44, 30, 31, "k1")
    a(f"s_and_b32 s{sT0}, s2, 7")
    a(f"s_lshl_b32 s{sT0}, s{sT0}, 2")
    a(f"s_bfe_u32 s{sT1}, s2, 0x20003")
    a(f"s_add_u32 s{sRb}, s{sT0}, s{sT1}")
    a(f"s_lshr_b32 s{sCg}, s2, 5")
    a(f"s_mov_b32 s{sMask}, 0xffff0000")
    a(f"s_mov_b32 s{sOnes}, 0x3f803f80")
    a(f"s_lshr_b32 s{sWr}, s{sWave}, 1")
    a(f"s_and_b32 s{sWc}, s{sWave}, 1")
    a(f"v_lshrrev_b32 v5, 3, v{vLane}")
    a(f"v_lshrrev_b32 v6, 2, v{vLane}")
    a(f"v_and_b32 v6, 4, v6")
    a(f"v_and_b32 v7, 7, v{vLane}")
    a(f"v_xor_b32 v6, v6, v7")
    a(f"v_lshlrev_b32 v6, 4, v6")
    a(f"v_mul_u32_u24 v5, 3072, v5")
    a(f"v_add_u32 v{vWoff}, v5, v6")
    a(f"s_mul_i32 s{sT0}, s{sWave}, {16 * 3072}")
    a(f"s_lshl_b32 s{sT1}, s{sCg}, 7")
    a(f"s_add_u32 s{sT0}, s{sT0}, s{sT1}")
    a(f"v_add_u32 v{vWoff}, s{sT0}, v{vWoff}")
    a(f"s_mul_i32 s{sWL}, s{sWave}, {2 * 3072}")
    a(f"s_mul_i32 s{sXL}, s{sWave}, {16 * 1040}")
    a(f"s_lshl_b32 s{sT1}, s{sRb}, 16")
    a(f"s_lshl_b32 s34, s{sWave}, 14")
    a(f"s_add_u32 s34, s34, s{sT1}")
    a("s_waitcnt lgkmcnt(0)")
    srd(a, sX, 4, 2048 * 1024)
    srd(a, sW, 6, 512 * 3072)
    srd(a, sWS, 8, WS_SIZE)
    xtok = None
    for i in range(16):
        a(f"s_add_u32 m0, s{sXL}, {i * 1040}")
        a(f"s_add_u32 s{sT0}, s34, {i * 1024}")
        xtok = a.vm(f"buffer_load_dwordx4 v{vL16}, {sr(sX, 4)}, s{sT0} offen lds")
    SLOT = 24576
    slots = [163840 - 3 * SLOT, 163840 - 2 * SLOT, 163840 - SLOT, 0, SLOT, 2 * SLOT]
    stage_slot = [slots[0], slots[1], slots[2], slots[3], slots[4], slots[5], slots[0], slots[1]]
    dr = Drip(a)
    sD = 35

    def w_dma(st):
        for i in range(2):
            for seg in range(3):
                pre = [f"s_add_u32 m0, s{sWL}, {stage_slot[st] + i * 3072}",
                       f"s_mov_b32 s{sD}, {(64 * st + 8 * i) * 3072}"] if seg == 0 else []
                dr.add(st, pre, f"buffer_load_dwordx4 v{vWoff}, {sr(sW, 4)}, s{sD} offen offset:{seg * 1024} lds")

    for st in range(3):
        w_dma(st)
    dr.emit(6 * OPT["k1_pre"])
    a(f"v_and_b32 v5, 31, v{vLane}")
    a(f"v_lshrrev_b32 v6, 5, v{vLane}")
    a(f"s_lshl_b32 s{sT0}, s{sWr}, 5")
    a(f"v_add_u32 v7, s{sT0}, v5")
    a(f"v_mul_u32_u24 v7, 1040, v7")
    a(f"v_lshl_add_u32 v{vXrd}, v6, 4, v7")
    a(f"v_mul_u32_u24 v7, 3072, v6")
    a(f"v_bfe_u32 v8, v{vLane}, 2, 2")
    a(f"v_lshl_add_u32 v7, v8, 7, v7")
    a(f"v_lshrrev_b32 v8, 1, v8")
    a(f"v_xor_b32 v8, s{sWc}, v8")
    a(f"v_lshl_add_u32 v7, v8, 6, v7")
    a(f"v_bfe_u32 v8, v{vLane}, 4, 1")
    a(f"v_lshl_add_u32 v7, v8, 5, v7")
    a(f"v_and_b32 v8, 3, v{vLane}")
    a(f"v_lshl_add_u32 v{vWrd[0]}, v8, 3, v7")
    wl = LdsAddr(a, vWrd)
    wl.setup(a)
    a(f"v_and_b32 v7, 0x33, v{vLane}")
    a(f"v_bfe_u32 v8, v{vLane}, 2, 1")
    a(f"v_lshl_or_b32 v7, v8, 3, v7")
    a(f"v_bfe_u32 v8, v{vLane}, 3, 1")
    a(f"v_lshl_or_b32 v7, v8, 2, v7")
    a(f"v_lshlrev_b32 v{vKoff}, 4, v7")
    a(f"v_bfe_u32 v7, v{vLane}, 4, 1")
    a(f"v_lshlrev_b32 v7, 17, v7")
    a(f"v_lshl_add_u32 v7, v6, 8, v7")
    a(f"v_and_b32 v8, 15, v{vLane}")
    a(f"v_lshl_add_u32 v{vVoff}, v8, 4, v7")
    for r in range(48):
        a(f"v_mov_b32 v{accQ + r}, 0")
    a(f"v_mov_b32 v{vS}, 0")
    a(f"v_mov_b32 v{vQ}, 0")
    stamp(a)
    a.wait(vm=xtok)
    a("s_barrier")
    stamp(a)
    for s in range(32):
        a.lg(f"ds_read_b128 {vr(X0 + 4 * s, 4)}, v{vXrd} offset:{s * 32}")
    a.wait_all(vm=False)
    dr.wait(0)
    a("s_barrier")
    for st in range(3, 6):
        w_dma(st)

    def w_reads(s):
        st, ss = divmod(s, 4)
        ops = []
        for seg in range(3):
            for half in range(2):
                reg, off = wl.at(stage_slot[st] + ss * 6144 + seg * 1024 + half * 512)
                ops.append(f"ds_read_b64_tr_b16 {ar(12 * (s & 1) + 4 * seg + 2 * half, 2)}, {reg} offset:{off}")
        return ops

    rtok = {}
    for op in w_reads(0):
        rtok[0] = a.lg(op)
    for r in range(128):
        a(f"v_dot2_f32_bf16 v{vS}, v{X0 + r}, s{sOnes}, v{vS}")
        a(f"v_dot2_f32_bf16 v{vQ}, v{X0 + r}, v{X0 + r}, v{vQ}")
        if r % 10 == 0:
            dr.emit()
    a("s_nop 2")
    half_sum(a, vS, 8)
    half_sum(a, vQ, 8)
    finish_stats(a, vS, vQ, vR, vNB, 8)
    for op in normalize_ops(X0, vT, vR, vNB, sMask):
        a(op)
    stamp(a)
    for s in range(32):
        st, ss = divmod(s, 4)
        if s == 16:
            stamp(a)
        a.wait(lg=rtok[s])
        if s + 1 < 32:
            if ss == 3:
                dr.wait(st + 1)
                a("s_barrier")
                if st + 6 < 8:
                    w_dma(st + 6)
            for op in w_reads(s + 1):
                rtok[s + 1] = a.lg(op)
        else:
            a("s_nop 0")
        wb = 12 * (s & 1)
        xf = vr(X0 + 4 * s, 4)
        mf = [
            f"v_mfma_f32_32x32x16_bf16 {vr(accQ, 16)}, {ar(wb, 4)}, {xf}, {vr(accQ, 16)}",
            f"v_mfma_f32_32x32x16_bf16 {vr(accK, 16)}, {ar(wb + 4, 4)}, {xf}, {vr(accK, 16)}",
            f"v_mfma_f32_32x32x16_bf16 {vr(accV, 16)}, {xf}, {ar(wb + 8, 4)}, {vr(accV, 16)}",
        ]
        fill = normalize_ops(X0 + 4 * (s + 1), vT, vR, vNB, sMask) if s + 1 < 32 else []
        for op in interleave(mf, fill):
            a(op)
            if op is mf[0] or op is mf[1]:
                dr.emit()
    stamp(a)
    a(f"s_lshl_b32 s{sT0}, s{sCg}, 2")
    a(f"s_lshl_b32 s{sT1}, s{sWc}, 1")
    a(f"s_add_u32 s{sT0}, s{sT0}, s{sT1}")
    a(f"s_lshl_b32 s{sT1}, s{sRb}, 1")
    a(f"s_add_u32 s{sT1}, s{sT1}, s{sWr}")
    a(f"s_lshl_b32 s34, s{sT0}, 16")
    a(f"s_lshl_b32 s35, s{sT1}, 10")
    a(f"s_add_u32 s34, s34, s35")
    if QF:
        a(f"s_add_u32 s34, s34, {QF}")
    a(f"s_add_u32 s35, s34, 65536")
    a(f"s_lshl_b32 s36, s{sT0}, 17")
    a(f"s_lshl_b32 s37, s{sT1}, 11")
    a(f"s_add_u32 s36, s36, s37")
    a(f"s_add_u32 s36, s36, {KVF}")
    a(f"s_add_u32 s37, s36, 131072")
    a(f"s_mov_b32 s38, {hx(f2u(0.25 * LOG2E))}")
    P = X0
    for r in range(16):
        a(f"v_mul_f32 v{accQ + r}, s38, v{accQ + r}")
    for i in range(8):
        a(f"v_cvt_pk_bf16_f32 v{P + i}, v{accQ + 2 * i}, v{accQ + 2 * i + 1}")
    a.vm(f"buffer_store_dwordx4 {vr(P, 4)}, v{vL16}, {sr(sWS, 4)}, s34 offen")
    a.vm(f"buffer_store_dwordx4 {vr(P + 4, 4)}, v{vL16}, {sr(sWS, 4)}, s35 offen")
    for i in range(8):
        a(f"v_cvt_pk_bf16_f32 v{P + 8 + i}, v{accK + 2 * i}, v{accK + 2 * i + 1}")
    a.vm(f"buffer_store_dwordx4 {vr(P + 8, 4)}, v{vKoff}, {sr(sWS, 4)}, s36 offen")
    a.vm(f"buffer_store_dwordx4 {vr(P + 12, 4)}, v{vKoff}, {sr(sWS, 4)}, s37 offen")
    for i in range(8):
        a(f"v_cvt_pk_bf16_f32 v{P + 16 + i}, v{accV + 2 * i}, v{accV + 2 * i + 1}")
    a.vm(f"buffer_store_dwordx4 {vr(P + 16, 4)}, v{vVoff}, {sr(sWS, 4)}, s36 offen offset:1024")
    a.vm(f"buffer_store_dwordx4 {vr(P + 20, 4)}, v{vVoff}, {sr(sWS, 4)}, s36 offen offset:1536")
    stamp(a)
    stamp_flush(a, 0, sWS, sWave)
    kernel_end(a, name)
    return name, a.text(), descriptor(name, 240, 24), (256, 256, 163840)


def gen_k2():
    name = "k2_attn_kernel"
    a = Asm()
    kernel_begin(a, name, 256)
    sWS = 12
    sWave, sHead, sQb, sKh, sQs = 24, 25, 26, 27, 28
    sT0, sT1 = 30, 31
    sVm = 34
    vLane, vL16, vKrd, vVrd, vIdx, vXw, vXr = 1, 2, 3, 4, 5, 6, 7
    Qf = [8, 12]
    Kf = [16, 20]
    Vf = [24, 32]
    S = [48, 64]
    O = [80, 96]
    NEG = 112
    T = 128
    XCH = 131072
    a("s_load_dwordx2 s[8:9], s[0:1], 72")
    a("s_load_dwordx2 s[4:5], s[0:1], 0")
    a("s_load_dwordx2 s[6:7], s[0:1], 16")
    a("s_load_dwordx4 s[48:51], s[0:1], 32")
    a(f"v_and_b32 v{vLane}, 63, v0")
    a(f"v_lshrrev_b32 v8, 6, v0")
    a(f"v_lshlrev_b32 v{vL16}, 4, v{vLane}")
    a(f"v_readfirstlane_b32 s{sWave}, v8")
    a(f"s_and_b32 s{sT0}, s2, 7")
    a(f"s_lshl_b32 s{sT0}, s{sT0}, 2")
    a(f"s_lshr_b32 s{sT1}, s2, 6")
    a(f"s_add_u32 s{sHead}, s{sT0}, s{sT1}")
    a(f"s_bfe_u32 s{sQb}, s2, 0x30003")
    a(f"s_lshr_b32 s{sKh}, s{sWave}, 2")
    a(f"s_and_b32 s{sQs}, s{sWave}, 3")
    a(f"s_mov_b32 s{sVm}, 0x0000ffff")
    a(f"s_mov_b32 s{sVm + 1}, 0x0000ffff")
    a(f"s_lshl_b32 s32, s{sKh}, 16")
    a(f"s_lshl_b32 s{sT0}, s{sQs}, 11")
    a(f"s_add_u32 s32, s32, s{sT0}")
    a(f"s_lshl_b32 s33, s{sHead}, 17")
    a(f"s_add_u32 s33, s33, s32")
    a(f"s_add_u32 s33, s33, {KVF}")
    a(f"s_lshl_b32 s36, s{sHead}, 16")
    a(f"s_lshl_b32 s{sT0}, s{sQb}, 13")
    a(f"s_add_u32 s36, s36, s{sT0}")
    a(f"s_lshl_b32 s{sT0}, s{sQs}, 11")
    a(f"s_add_u32 s36, s36, s{sT0}")
    if QF:
        a(f"s_add_u32 s36, s36, {QF}")
    a("s_waitcnt lgkmcnt(0)")
    srd(a, sWS, 8, WS_SIZE)
    a.vm(f"buffer_load_dwordx4 {vr(Qf[0], 4)}, v{vL16}, {sr(sWS, 4)}, s36 offen")
    a.vm(f"buffer_load_dwordx4 {vr(Qf[1], 4)}, v{vL16}, {sr(sWS, 4)}, s36 offen offset:1024")
    dr = Drip(a)
    for c in range(8):
        dr.add(c, [f"s_add_u32 m0, s32, {c * 8192}", f"s_add_u32 s37, s33, {c * 8192}"],
               f"buffer_load_dwordx4 v{vL16}, {sr(sWS, 4)}, s37 offen lds")
        dr.add(c, [], f"buffer_load_dwordx4 v{vL16}, {sr(sWS, 4)}, s37 offen offset:1024 lds")
    dr.emit(4)
    a(f"s_lshl_b32 s{sT0}, s{sKh}, 16")
    a(f"v_add_u32 v{vKrd}, s{sT0}, v{vL16}")
    a(f"v_lshrrev_b32 v{T}, 5, v{vLane}")
    a(f"v_and_b32 v{T + 1}, 15, v{vLane}")
    a(f"v_lshlrev_b32 v{T + 1}, 4, v{T + 1}")
    a(f"v_lshl_add_u32 v{T}, v{T}, 8, v{T + 1}")
    a(f"v_add_u32 v{vVrd}, s{sT0}, v{T}")
    a(f"v_mov_b32 v{vIdx}, 0xdddd")
    a(f"s_mul_i32 s{sT0}, s{sWave}, 2304")
    a(f"s_add_u32 s{sT0}, s{sT0}, {XCH}")
    a(f"v_lshl_add_u32 v{vXw}, v{vLane}, 2, s{sT0}")
    a(f"s_xor_b32 s{sT1}, s{sWave}, 4")
    a(f"s_mul_i32 s{sT0}, s{sT1}, 2304")
    a(f"s_add_u32 s{sT0}, s{sT0}, {XCH}")
    a(f"v_lshl_add_u32 v{vXr}, v{vLane}, 2, s{sT0}")
    for r in range(16):
        a(f"v_mov_b32 v{Vf[0] + r}, 0")
    a("s_mov_b32 exec_lo, 0x00110000")
    a("s_mov_b32 exec_hi, 0x00110000")
    for r in range(16):
        a(f"v_mov_b32 v{Vf[0] + r}, 0x3f803f80")
    a("s_mov_b64 exec, -1")
    vPf, vPd = T + 14, T + 15
    a(f"s_lshr_b32 s{sT0}, s2, 3")
    a(f"s_lshl_b32 s{sT0}, s{sT0}, 16")
    a(f"v_lshlrev_b32 v{vPf}, 7, v0")
    a(f"v_add_u32 v{vPf}, s{sT0}, v{vPf}")
    srd(a, 16, 6, 512 * 1024)
    srd(a, 20, 48, 512 * 2752)
    srd(a, 52, 50, 512 * 2752)
    a(f"s_and_b32 s{sT0}, s2, 7")
    a(f"s_lshl_b32 s{sT0}, s{sT0}, 18")
    a(f"s_add_u32 s4, s4, s{sT0}")
    a("s_addc_u32 s5, s5, 0")
    srd(a, 44, 4, 256 * 1024)
    for r in range(32):
        a(f"v_mov_b32 v{O[0] + r}, 0")

    def kv_reads(t):
        b = t & 1
        k = f"ds_read_b128 {vr(Kf[b], 4)}, v{vKrd} offset:{t * 2048}"
        v = [f"ds_read_b128 {vr(Vf[b], 4)}, v{vVrd} offset:{t * 2048 + 1024}",
             f"ds_read_b128 {vr(Vf[b] + 4, 4)}, v{vVrd} offset:{t * 2048 + 1536}"]
        return k, v

    def emit_k(t):
        return a.lg(kv_reads(t)[0])

    def emit_v(t):
        a(f"s_mov_b64 exec, {sr(sVm, 2)}")
        v = kv_reads(t)[1]
        a.lg(v[0])
        tok = a.lg(v[1])
        a("s_mov_b64 exec, -1")
        return tok

    def qk(u):
        t, c = divmod(u, 2)
        return f"v_mfma_f32_32x32x16_bf16 {vr(S[u & 1], 16)}, {vr(Kf[t & 1], 4)}, {vr(Qf[c], 4)}, 0"

    def pv(u, i):
        t, c = divmod(u, 2)
        return (f"v_smfmac_f32_32x32x32_bf16 {vr(O[c], 16)}, {vr(Vf[t & 1] + 4 * i, 4)}, "
                f"{vr(S[u & 1] + 8 * i, 8)}, v{vIdx}")

    stamp(a)
    dr.wait(0)
    a("s_barrier")
    stamp(a)
    ktok, vtok = {}, {}
    ktok[0] = emit_k(0)
    vtok[0] = emit_v(0)
    ktok[1] = emit_k(1)
    a.wait(lg=ktok[0])
    a(qk(0))
    a("s_nop 11")
    NU = 64
    for u in range(NU):
        t, c = divmod(u, 2)
        X = S[u & 1]
        if u in (8, 32):
            stamp(a)
        ex = [f"v_exp_f32 v{X + i}, v{X + i}" for i in range(16)]
        a(ex[0]); a(ex[1])
        if u > 0:
            a(pv(u - 1, 1))
        a(ex[2]); a(ex[3]); a(ex[4])
        if u + 1 < NU:
            if c == 1:
                a.wait(lg=ktok[t + 1])
            a(qk(u + 1))
        if c == 0:
            if t + 1 < 32:
                vtok[t + 1] = emit_v(t + 1)
        else:
            if t + 2 < 32:
                if t + 2 == 4:
                    dr.wait(1)
                    a("s_barrier")
                if t + 2 == 8:
                    dr.wait(7)
                    a("s_barrier")
                    if OPT["pf_w"]:
                        for sq in (16, 44, 20, 52):
                            dr.add("pf", [], f"buffer_load_dword v{vPd}, v{vPf}, {sr(sq, 4)}, 0 offen")
                ktok[t + 2] = emit_k(t + 2)
        for i in range(5, 10):
            a(ex[i])
        dr.emit(2 if u < 8 else 1)
        if u == 24 and OPT["pf_code"]:
            code_prefetch(a, "k3_wo_kernel", 38, vPf, vPd, "k2")
        if c == 0:
            a.wait(lg=vtok[t])
        a(pv(u, 0))
        for i in range(10, 16):
            a(ex[i])
    a("s_nop 1")
    a(pv(NU - 1, 1))
    a("s_nop 15")
    stamp(a)
    a(f"s_cmp_eq_u32 s{sKh}, 0")
    a(f"s_cbranch_scc1 L_k2_keep0")
    for r in range(9):
        a(f"v_swap_b32 v{O[0] + r}, v{O[1] + r}")
    for r in range(4):
        a(f"v_mov_b32 v{Qf[0] + r}, v{Qf[1] + r}")
    a.label("L_k2_keep0")
    for r in range(9):
        a.lg(f"ds_write_b32 v{vXw}, v{O[1] + r} offset:{r * 256}")
    a.wait_all(vm=False)
    a("s_barrier")
    for r in range(9):
        a.lg(f"ds_read_b32 v{T + r}, v{vXr} offset:{r * 256}")
    a.wait_all(vm=False)
    for r in range(9):
        a(f"v_add_f32 v{O[0] + r}, v{O[0] + r}, v{T + r}")
    a(f"v_max3_f32 v{T}, |v{O[0]}|, |v{O[0] + 1}|, |v{O[0] + 2}|")
    a(f"v_max3_f32 v{T + 1}, |v{O[0] + 3}|, |v{O[0] + 4}|, |v{O[0] + 5}|")
    a(f"v_add_f32 v{T + 2}, |v{O[0] + 6}|, |v{O[0] + 7}|")
    a(f"v_add_f32 v{T}, v{T}, v{T + 1}")
    a(f"v_add_f32 v{T}, v{T}, v{T + 2}")
    for r in range(6):
        a(f"v_fma_f32 v{T}, v{O[0] + r}, 0, v{T}")
    a(f"s_mov_b32 s{sT0}, {hx(f2u(2.0 ** 120))}")
    a(f"s_mov_b32 s{sT1}, {hx(f2u(2.0 ** 80))}")
    a(f"v_cmp_gt_f32 s[40:41], s{sT0}, v{T}")
    a(f"v_cmp_gt_f32 s[42:43], s{sT1}, v{O[0] + 8}")
    a(f"s_mov_b32 s{sT1}, {hx(f2u(2.0 ** -80))}")
    a(f"v_cmp_lt_f32 vcc, s{sT1}, v{O[0] + 8}")
    a("s_nop 1")
    a("s_and_b64 s[40:41], s[40:41], s[42:43]")
    a("s_and_b64 s[40:41], s[40:41], vcc")
    a("s_cmp_eq_u64 s[40:41], -1")
    a("s_cbranch_scc0 L_k2_fallback")
    a.label("L_k2_finish")
    a(f"v_rcp_f32 v{T}, v{O[0] + 8}")
    a(f"s_lshl_b32 s{sT0}, s{sQb}, 3")
    a(f"s_lshl_b32 s{sT1}, s{sQs}, 1")
    a(f"s_add_u32 s{sT0}, s{sT0}, s{sT1}")
    a(f"s_add_u32 s{sT0}, s{sT0}, s{sKh}")
    a(f"s_lshl_b32 s{sT0}, s{sT0}, 15")
    a(f"s_lshl_b32 s{sT1}, s{sHead}, 10")
    a(f"s_add_u32 s{sT0}, s{sT0}, s{sT1}")
    a(f"s_add_u32 s{sT0}, s{sT0}, {OF}")
    for r in range(8):
        a(f"v_mul_f32 v{O[0] + r}, v{O[0] + r}, v{T}")
    for i in range(4):
        a(f"v_cvt_pk_bf16_f32 v{T + 4 + i}, v{O[0] + 2 * i}, v{O[0] + 2 * i + 1}")
    a.vm(f"buffer_store_dwordx4 {vr(T + 4, 4)}, v{vL16}, {sr(sWS, 4)}, s{sT0} offen")
    stamp(a)
    stamp_flush(a, 1, sWS, sWave)
    a("s_endpgm")
    a.label("L_k2_fallback")
    vK2, vV2, vM = T + 10, T + 11, T + 12
    a(f"s_lshl_b32 s{sT0}, s{sKh}, 16")
    a(f"v_subrev_u32 v{vK2}, s{sT0}, v{vKrd}")
    a(f"v_mov_b32 v{vM}, 0xff800000")
    a("s_mov_b32 s56, 0")
    a.label("L_k2_fb_max")
    a(f"ds_read_b128 {vr(Kf[0], 4)}, v{vK2}")
    a("s_waitcnt lgkmcnt(0)")
    a(f"v_mfma_f32_32x32x16_bf16 {vr(S[0], 16)}, {vr(Kf[0], 4)}, {vr(Qf[0], 4)}, 0")
    a("s_nop 15")
    for i in range(8):
        a(f"v_max3_f32 v{vM}, v{vM}, v{S[0] + 2 * i}, v{S[0] + 2 * i + 1}")
    a(f"v_add_u32 v{vK2}, 2048, v{vK2}")
    a("s_add_u32 s56, s56, 1")
    a("s_cmp_lt_u32 s56, 64")
    a("s_cbranch_scc1 L_k2_fb_max")
    a(f"v_mov_b32 v{T}, v{vM}")
    a("s_nop 1")
    a(f"v_permlane32_swap_b32 v{vM}, v{T}")
    a("s_nop 1")
    a(f"v_max_f32 v{vM}, v{vM}, v{T}")
    for r in range(16):
        a(f"v_sub_f32 v{NEG + r}, 0, v{vM}")
        a(f"v_mov_b32 v{O[0] + r}, 0")
    a(f"v_subrev_u32 v{vK2}, s{sT0}, v{vKrd}")
    a(f"v_subrev_u32 v{vV2}, s{sT0}, v{vVrd}")
    a("s_mov_b32 s56, 0")
    a.label("L_k2_fb_pv")
    a(f"ds_read_b128 {vr(Kf[0], 4)}, v{vK2}")
    a(f"s_mov_b64 exec, {sr(sVm, 2)}")
    a(f"ds_read_b128 {vr(Vf[0], 4)}, v{vV2} offset:1024")
    a(f"ds_read_b128 {vr(Vf[0] + 4, 4)}, v{vV2} offset:1536")
    a("s_mov_b64 exec, -1")
    a("s_waitcnt lgkmcnt(0)")
    a(f"v_mfma_f32_32x32x16_bf16 {vr(S[0], 16)}, {vr(Kf[0], 4)}, {vr(Qf[0], 4)}, {vr(NEG, 16)}")
    a("s_nop 15")
    for i in range(16):
        a(f"v_exp_f32 v{S[0] + i}, v{S[0] + i}")
    a("s_nop 1")
    a(f"v_smfmac_f32_32x32x32_bf16 {vr(O[0], 16)}, {vr(Vf[0], 4)}, {vr(S[0], 8)}, v{vIdx}")
    a(f"v_smfmac_f32_32x32x32_bf16 {vr(O[0], 16)}, {vr(Vf[0] + 4, 4)}, {vr(S[0] + 8, 8)}, v{vIdx}")
    a("s_nop 15")
    a(f"v_add_u32 v{vK2}, 2048, v{vK2}")
    a(f"v_add_u32 v{vV2}, 2048, v{vV2}")
    a("s_add_u32 s56, s56, 1")
    a("s_cmp_lt_u32 s56, 64")
    a("s_cbranch_scc1 L_k2_fb_pv")
    a("s_branch L_k2_finish")
    kernel_end(a, name)
    return name, a.text(), descriptor(name, 144, 0), (256, 512, XCH + 8 * 2304)


def gen_res(kind):
    k3 = kind == "k3"
    name = "k3_wo_kernel" if k3 else "k5_down_kernel"
    NCH = 16 if k3 else 43
    KS = 32 if k3 else 86
    ACT = OF if k3 else GF
    CPS = 4
    NST = (NCH + CPS - 1) // CPS
    DEPTH = OPT["k3_d"] if k3 else OPT["k5_d"]
    NSLOT = 4 if k3 else 8
    RED = NSLOT * 16384
    a = Asm()
    kernel_begin(a, name, 256)
    sW, sWS, sIO = 12, 16, 20
    sWave, sWr, sKh, sRt, sCb = 24, 25, 26, 27, 28
    sT0, sT1, sWL, sAct = 30, 31, 32, 33
    sMask, sOnes = 40, 41
    vLane, vL16, vWoff, vRw, vRr, vRes = 1, 2, 3, 4, 5, 6
    vWrd = [[8, 9], [10, 11]]
    T = 12
    RES = 32
    acc = [40, 56]
    A0 = 72
    if k3:
        a("s_load_dwordx2 s[4:5], s[0:1], 16")
        a("s_load_dwordx2 s[6:7], s[0:1], 0")
    else:
        a("s_load_dwordx4 s[4:7], s[0:1], 48")
    a("s_load_dwordx2 s[8:9], s[0:1], 72")
    a(f"v_and_b32 v{vLane}, 63, v0")
    a(f"v_lshrrev_b32 v{T}, 6, v0")
    a(f"v_lshlrev_b32 v{vL16}, 4, v{vLane}")
    a(f"v_readfirstlane_b32 s{sWave}, v{T}")
    a(f"s_and_b32 s{sT0}, s2, 7")
    a(f"s_lshl_b32 s{sRt}, s{sT0}, 2")
    a(f"s_lshr_b32 s34, s2, 6")
    a(f"s_add_u32 s{sRt}, s{sRt}, s34")
    a(f"s_bfe_u32 s{sCb}, s2, 0x30003")
    a(f"s_and_b32 s{sWr}, s{sWave}, 1")
    a(f"s_lshr_b32 s{sKh}, s{sWave}, 1")
    a(f"s_lshl_b32 s{sRt}, s{sRt}, 1")
    a(f"s_add_u32 s{sRt}, s{sRt}, s{sWr}")
    a(f"s_mov_b32 s{sMask}, 0xffff0000")
    a(f"s_mov_b32 s{sOnes}, 0x3f803f80")
    a(f"v_lshrrev_b32 v{T}, 3, v{vLane}")
    a(f"v_lshrrev_b32 v{T + 1}, 2, v{vLane}")
    a(f"v_and_b32 v{T + 1}, 4, v{T + 1}")
    a(f"v_and_b32 v{T + 2}, 7, v{vLane}")
    a(f"v_xor_b32 v{T + 1}, v{T + 1}, v{T + 2}")
    a(f"v_lshlrev_b32 v{T + 1}, 4, v{T + 1}")
    a(f"v_lshl_add_u32 v{vWoff}, v{T}, 10, v{T + 1}")
    a(f"s_lshl_b32 s{sT0}, s{sWave}, 13")
    a(f"s_lshl_b32 s{sT1}, s{sCb}, 7")
    a(f"s_add_u32 s{sT0}, s{sT0}, s{sT1}")
    a(f"v_add_u32 v{vWoff}, s{sT0}, v{vWoff}")
    a(f"s_lshl_b32 s{sWL}, s{sWave}, 10")
    a(f"s_mul_i32 s{sAct}, s{sRt}, {KS * 1024}")
    a(f"s_lshl_b32 s{sT0}, s{sKh}, 10")
    a(f"s_add_u32 s{sAct}, s{sAct}, s{sT0}")
    a(f"s_add_u32 s{sAct}, s{sAct}, {ACT}")
    a("s_waitcnt lgkmcnt(0)")
    srd(a, sW, 4, KS * 16 * 1024)
    srd(a, sWS, 8, WS_SIZE)
    srd(a, sIO, 6, 2048 * 1024)
    dr = Drip(a)

    def issue(st):
        for c in range(st * CPS, min(NCH, (st + 1) * CPS)):
            dr.add(st, [f"s_add_u32 m0, s{sWL}, {(st % NSLOT) * 16384 + (c % CPS) * 4096}", f"s_mov_b32 s42, {c * 32768}"],
                   f"buffer_load_dwordx4 v{vWoff}, {sr(sW, 4)}, s42 offen lds")
            dr.add(st, [f"s_add_u32 s43, s{sAct}, {c * 2048}"] if c % 2 == 0 else [],
                   f"buffer_load_dwordx4 {vr(A0 + 4 * c, 4)}, v{vL16}, {sr(sWS, 4)}, s43 offen offset:{(c % 2) * 2048}")

    for st in range(min(NSLOT, NST)):
        issue(st)
    dr.emit(8 * DEPTH)
    a(f"s_lshl_b32 s34, s{sCb}, 1")
    a(f"s_add_u32 s34, s34, s{sKh}")
    a(f"v_and_b32 v{T}, 31, v{vLane}")
    a(f"v_lshrrev_b32 v{T + 1}, 5, v{vLane}")
    a(f"v_lshlrev_b32 v{T + 2}, 10, v{T}")
    a(f"v_lshl_add_u32 v{vRes}, v{T + 1}, 3, v{T + 2}")
    a(f"s_lshl_b32 s35, s{sRt}, 15")
    a(f"s_lshl_b32 s36, s34, 6")
    a(f"s_add_u32 s35, s35, s36")
    a(f"s_lshl_b32 s36, s{sRt}, 15")
    a(f"s_lshl_b32 s37, s34, 11")
    a(f"s_add_u32 s36, s36, s37")
    a(f"s_add_u32 s36, s36, {HF}")
    res_items = []
    if k3:
        for g in range(4):
            res_items.append(f"buffer_load_dwordx2 {vr(RES + 2 * g, 2)}, v{vRes}, {sr(sIO, 4)}, s35 offen offset:{g * 16}")
    else:
        res_items.append(f"buffer_load_dwordx4 {vr(RES, 4)}, v{vL16}, {sr(sWS, 4)}, s36 offen")
        res_items.append(f"buffer_load_dwordx4 {vr(RES + 4, 4)}, v{vL16}, {sr(sWS, 4)}, s36 offen offset:1024")
    if NST <= NSLOT:
        for it in res_items:
            dr.add("res", [], it)
    a(f"v_bfe_u32 v{T + 2}, v{vLane}, 2, 2")
    a(f"v_lshl_add_u32 v{T + 3}, v{T + 1}, 2, v{T + 2}")
    a(f"s_lshl_b32 s{sT0}, s{sKh}, 4")
    a(f"v_add_u32 v{T + 3}, s{sT0}, v{T + 3}")
    a(f"v_lshlrev_b32 v{T + 3}, 7, v{T + 3}")
    a(f"v_bfe_u32 v{T + 4}, v{vLane}, 4, 1")
    a(f"v_lshl_add_u32 v{T + 3}, v{T + 4}, 5, v{T + 3}")
    a(f"v_and_b32 v{T + 4}, 3, v{vLane}")
    a(f"v_lshl_add_u32 v{T + 3}, v{T + 4}, 3, v{T + 3}")
    a(f"v_lshrrev_b32 v{T + 2}, 1, v{T + 2}")
    a(f"v_lshl_add_u32 v{vWrd[0][0]}, v{T + 2}, 6, v{T + 3}")
    a(f"v_xor_b32 v{vWrd[1][0]}, 64, v{vWrd[0][0]}")
    wl = [LdsAddr(a, vWrd[0]), LdsAddr(a, vWrd[1])]
    wl[0].setup(a)
    wl[1].setup(a)
    a(f"s_lshl_b32 s{sT0}, s{sWave}, 12")
    a(f"s_add_u32 s{sT0}, s{sT0}, {RED}")
    a(f"v_add_u32 v{vRw}, s{sT0}, v{vL16}")
    a(f"v_xor_b32 v{vRr}, 0x2000, v{vRw}")
    for r in range(32):
        a(f"v_mov_b32 v{acc[0] + r}, 0")

    def w_reads(c):
        st = c // CPS
        ops = []
        for b in range(2):
            for half in range(2):
                reg, off = wl[b].at((st % NSLOT) * 16384 + (c % CPS) * 4096 + half * 1024)
                ops.append(f"ds_read_b64_tr_b16 {ar(8 * (c & 1) + 4 * b + 2 * half, 2)}, {reg} offset:{off}")
        return ops

    stamp(a)
    dr.wait(0)
    a("s_barrier")
    stamp(a)
    rt = {}
    for op in w_reads(0):
        rt[0] = a.lg(op)
    for c in range(NCH):
        st = c // CPS
        if c == NCH // 2:
            stamp(a)
        a.wait(lg=rt[c])
        if c + 1 < NCH:
            if (c + 1) % CPS == 0:
                dr.wait(st + 1)
                a("s_barrier")
                if st + NSLOT < NST:
                    issue(st + NSLOT)
                    if st + NSLOT == NST - 1:
                        for it in res_items:
                            dr.add("res", [], it)
            for op in w_reads(c + 1):
                rt[c + 1] = a.lg(op)
        wb = 8 * (c & 1)
        for b in range(2):
            a(f"v_mfma_f32_32x32x16_bf16 {vr(acc[b], 16)}, {ar(wb + 4 * b, 4)}, {vr(A0 + 4 * c, 4)}, {vr(acc[b], 16)}")
            dr.emit()
    a("s_nop 15")
    stamp(a)
    a(f"s_cmp_eq_u32 s{sKh}, 0")
    a(f"s_cbranch_scc1 L_{name}_keep0")
    for r in range(16):
        a(f"v_swap_b32 v{acc[0] + r}, v{acc[1] + r}")
    a.label(f"L_{name}_keep0")
    for g in range(4):
        a.lg(f"ds_write_b128 v{vRw}, {vr(acc[1] + 4 * g, 4)} offset:{g * 1024}")
    a.wait_all(vm=False)
    a("s_barrier")
    for g in range(4):
        a.lg(f"ds_read_b128 {vr(acc[1] + 4 * g, 4)}, v{vRr} offset:{g * 1024}")
    dr.wait("res")
    for i in range(8):
        a(f"v_lshlrev_b32 v{T}, 16, v{RES + i}")
        a(f"v_and_b32 v{T + 1}, s{sMask}, v{RES + i}")
        a(f"v_add_f32 v{acc[0] + 2 * i}, v{acc[0] + 2 * i}, v{T}")
        a(f"v_add_f32 v{acc[0] + 2 * i + 1}, v{acc[0] + 2 * i + 1}, v{T + 1}")
    a.wait_all(vm=False)
    for r in range(16):
        a(f"v_add_f32 v{acc[0] + r}, v{acc[0] + r}, v{acc[1] + r}")
    for i in range(8):
        a(f"v_cvt_pk_bf16_f32 v{RES + i}, v{acc[0] + 2 * i}, v{acc[0] + 2 * i + 1}")
    if k3:
        a.vm(f"buffer_store_dwordx4 {vr(RES, 4)}, v{vL16}, {sr(sWS, 4)}, s36 offen")
        a.vm(f"buffer_store_dwordx4 {vr(RES + 4, 4)}, v{vL16}, {sr(sWS, 4)}, s36 offen offset:1024")
        a(f"v_mov_b32 v{T}, 0")
        a(f"v_mov_b32 v{T + 1}, 0")
        for i in range(8):
            a(f"v_dot2_f32_bf16 v{T}, v{RES + i}, s{sOnes}, v{T}")
            a(f"v_dot2_f32_bf16 v{T + 1}, v{RES + i}, v{RES + i}, v{T + 1}")
        a("s_nop 2")
        half_sum(a, T, T + 2)
        half_sum(a, T + 1, T + 2)
        a(f"s_lshl_b32 s{sT0}, s34, 14")
        a(f"s_lshl_b32 s{sT1}, s{sRt}, 8")
        a(f"s_add_u32 s{sT0}, s{sT0}, s{sT1}")
        a(f"s_add_u32 s{sT0}, s{sT0}, {ST}")
        a(f"v_lshlrev_b32 v{T + 2}, 3, v{vLane}")
        a("s_mov_b32 exec_hi, 0")
        a.vm(f"buffer_store_dwordx2 {vr(T, 2)}, v{T + 2}, {sr(sWS, 4)}, s{sT0} offen")
    else:
        for g in range(4):
            a.vm(f"buffer_store_dwordx2 {vr(RES + 2 * g, 2)}, v{vRes}, {sr(sIO, 4)}, s35 offen offset:{g * 16}")
    stamp(a)
    stamp_flush(a, 2 if k3 else 4, sWS, sWave)
    kernel_end(a, name)
    return name, a.text(), descriptor(name, A0 + 4 * NCH, 16), (256, 256, RED + 16384)


def gen_k4():
    name = "k4_glu_kernel"
    a = Asm()
    kernel_begin(a, name, 240)
    sG, sU, sWS = 12, 16, 20
    sWave, sRb, sCg, sRt = 24, 25, 26, 27
    sT0, sT1, sWL, sAct = 30, 31, 32, 33
    sMask, sL2e = 40, 41
    vLane, vL16 = 1, 2
    vWoff = [3, 4, 5]
    vWrd = [6, 7, 8]
    vS, vQ, vR, vNB = 9, 10, 11, 12
    vT = 16
    X0 = 32
    ACC = 160
    a("s_load_dwordx4 s[4:7], s[0:1], 32")
    a("s_load_dwordx2 s[8:9], s[0:1], 72")
    a("s_load_dwordx2 s[10:11], s[0:1], 48")
    a(f"v_and_b32 v{vLane}, 63, v0")
    a(f"v_lshrrev_b32 v{vT}, 6, v0")
    a(f"v_lshlrev_b32 v{vL16}, 4, v{vLane}")
    a(f"v_readfirstlane_b32 s{sWave}, v{vT}")
    a(f"s_and_b32 s{sT0}, s2, 7")
    a(f"s_lshl_b32 s{sT0}, s{sT0}, 1")
    a(f"s_bfe_u32 s{sT1}, s2, 0x10003")
    a(f"s_add_u32 s{sRb}, s{sT0}, s{sT1}")
    a(f"s_lshr_b32 s{sCg}, s2, 4")
    a(f"s_lshl_b32 s{sRt}, s{sRb}, 2")
    a(f"s_add_u32 s{sRt}, s{sRt}, s{sWave}")
    a(f"s_mov_b32 s{sMask}, 0xffff0000")
    a(f"s_mov_b32 s{sL2e}, {hx(f2u(LOG2E))}")
    a(f"s_mul_i32 s{sT0}, s{sWave}, {16 * 2752}")
    a(f"s_mul_i32 s{sT1}, s{sCg}, 192")
    a(f"s_add_u32 s{sT0}, s{sT0}, s{sT1}")
    for i in range(3):
        a(f"v_add_u32 v{vT}, {64 * i}, v{vLane}")
        a(f"v_mul_u32_u24 v{vT + 1}, 171, v{vT}")
        a(f"v_lshrrev_b32 v{vT + 1}, 11, v{vT + 1}")
        a(f"v_mul_u32_u24 v{vT + 2}, {2752 - 192}, v{vT + 1}")
        a(f"v_lshl_add_u32 v{vT + 2}, v{vLane}, 4, v{vT + 2}")
        a(f"v_add_u32 v{vWoff[i]}, s{sT0}, v{vT + 2}")
    a(f"s_mul_i32 s{sWL}, s{sWave}, 6144")
    a(f"s_lshl_b32 s{sAct}, s{sRt}, 15")
    a(f"s_add_u32 s{sAct}, s{sAct}, {HF}")
    a(f"v_lshrrev_b32 v{vT + 3}, 5, v{vLane}")
    a(f"v_and_b32 v{vT + 4}, 31, v{vLane}")
    a(f"v_lshlrev_b32 v{vT + 4}, 3, v{vT + 4}")
    a(f"v_lshl_add_u32 v{vT + 4}, v{vT + 3}, 17, v{vT + 4}")
    a(f"s_lshl_b32 s34, s{sRt}, 8")
    a(f"s_add_u32 s34, s34, {ST}")
    a("s_waitcnt lgkmcnt(0)")
    srd(a, sG, 4, 512 * 2752)
    srd(a, sU, 6, 512 * 2752)
    srd(a, sWS, 8, WS_SIZE)
    for i in range(8):
        a(f"s_add_u32 s{sT0}, s34, {i * 16384}")
        stok = a.vm(f"buffer_load_dwordx2 {vr(ACC + 2 * i, 2)}, v{vT + 4}, {sr(sWS, 4)}, s{sT0} offen")
    SLOT = 24576
    NSLOT = 6
    dr = Drip(a)

    def issue(st):
        for i in range(4):
            dr.add(st, [f"s_add_u32 s43, s{sAct}, {st * 4096}"] if i == 0 else [],
                   f"buffer_load_dwordx4 {vr(X0 + 16 * st + 4 * i, 4)}, v{vL16}, {sr(sWS, 4)}, s43 offen offset:{i * 1024}")
        for mat in range(2):
            for i in range(3):
                pre = [f"s_add_u32 m0, s{sWL}, {(st % NSLOT) * SLOT + mat * 3072}",
                       f"s_mov_b32 s42, {st * 64 * 2752}"] if i == 0 else []
                dr.add(st, pre, f"buffer_load_dwordx4 v{vWoff[i]}, {sr(sG if mat == 0 else sU, 4)}, s42 offen offset:{i * 1024} lds")

    for st in range(NSLOT):
        issue(st)
    dr.emit(10 * OPT["k4_d"])
    vPf, vPd = 13, 14
    srd(a, 44, 10, 1376 * 1024)
    a(f"s_lshr_b32 s{sT0}, s2, 3")
    a(f"s_lshl_b32 s{sT0}, s{sT0}, 15")
    a(f"v_lshlrev_b32 v{vPf}, 7, v0")
    a(f"v_add_u32 v{vPf}, s{sT0}, v{vPf}")
    a(f"v_add_u32 v15, {120 * 8192}, v{vPf}")
    a(f"v_bfe_u32 v{vT}, v{vLane}, 2, 2")
    a(f"v_lshl_add_u32 v{vT}, v{vT + 3}, 2, v{vT}")
    a(f"v_mul_u32_u24 v{vT}, 192, v{vT}")
    a(f"v_bfe_u32 v{vT + 1}, v{vLane}, 4, 1")
    a(f"v_lshl_add_u32 v{vT}, v{vT + 1}, 5, v{vT}")
    a(f"v_and_b32 v{vT + 1}, 3, v{vLane}")
    a(f"v_lshl_add_u32 v{vWrd[0]}, v{vT + 1}, 3, v{vT}")
    wl = LdsAddr(a, vWrd)
    wl.setup(a)
    stamp(a)
    a.wait(vm=stok)
    stamp(a)
    a(f"v_add_f32 v{vS}, v{ACC}, v{ACC + 2}")
    a(f"v_add_f32 v{vQ}, v{ACC + 1}, v{ACC + 3}")
    for i in range(2, 8):
        a(f"v_add_f32 v{vS}, v{vS}, v{ACC + 2 * i}")
        a(f"v_add_f32 v{vQ}, v{vQ}, v{ACC + 2 * i + 1}")
    half_sum(a, vS, vT)
    half_sum(a, vQ, vT)
    finish_stats(a, vS, vQ, vR, vNB, vT, scale=LOG2E)
    for r in range(96):
        a(f"v_mov_b32 v{ACC + r}, 0")

    def w_reads(s):
        st, ss = divmod(s, 4)
        ops = []
        for u in range(3):
            for mat in range(2):
                for half in range(2):
                    reg, off = wl.at((st % NSLOT) * SLOT + ss * 6144 + mat * 3072 + half * 8 * 192 + u * 64)
                    ops.append(f"ds_read_b64_tr_b16 {ar(24 * (s & 1) + 8 * u + 4 * mat + 2 * half, 2)}, {reg} offset:{off}")
        return ops

    dr.wait(0)
    a("s_barrier")
    stamp(a)
    rt = {}
    for k, op in enumerate(w_reads(0)):
        rt[(0, k // 2)] = a.lg(op)
    for op in normalize_ops(X0, vT, vR, vNB, sMask):
        a(op)
    a("s_nop 0")
    for s in range(32):
        st, ss = divmod(s, 4)
        if s == 16:
            stamp(a)
        rd = []
        if s + 1 < 32:
            if ss == 3:
                a.wait(lg=rt[(s, 5)])
                dr.wait(st + 1)
                a("s_barrier")
                if st + NSLOT < 8:
                    issue(st + NSLOT)
                    if st + NSLOT == 7 and OPT["pf_w"]:
                        dr.add("pf", [], f"buffer_load_dword v{vPd}, v{vPf}, s[44:47], 0 offen")
                        dr.add("pf", [], f"buffer_load_dword v{vPd}, v15, s[44:47], 0 offen")
            rd = w_reads(s + 1)
        wb = 24 * (s & 1)
        xf = vr(X0 + 4 * s, 4)
        mf = [f"v_mfma_f32_32x32x16_bf16 {vr(ACC + 16 * j, 16)}, {ar(wb + 4 * j, 4)}, {xf}, {vr(ACC + 16 * j, 16)}"
              for j in range(6)]
        fill = normalize_ops(X0 + 4 * (s + 1), vT, vR, vNB, sMask) if s + 1 < 32 else []
        seq = interleave(mf[:5], fill) + [mf[5]]
        k = 0
        j = 0
        for op in seq:
            if op.startswith("v_mfma"):
                a.wait(lg=rt[(s, j)])
            a(op)
            if op.startswith("v_mfma"):
                for _ in range(3):
                    if k < len(rd):
                        rt[(s + 1, k // 2)] = a.lg(rd[k])
                        k += 1
                if j in (3, 4, 5):
                    dr.emit()
                j += 1
    a(f"s_mul_i32 s34, s{sRt}, {86 * 1024}")
    a(f"s_mul_i32 s35, s{sCg}, {6 * 1024}")
    a("s_add_u32 s34, s34, s35")
    a(f"s_add_u32 s34, s34, {GF}")
    a("s_nop 7")
    stamp(a)
    for u in range(3):
        G, U = ACC + 32 * u, ACC + 32 * u + 16
        if u == 1:
            a(f"s_cmp_eq_u32 s{sCg}, 14")
            a(f"s_cbranch_scc1 L_{name}_done")
        for r in range(16):
            a(f"v_exp_f32 v{G + r}, -v{G + r}")
        for r in range(16):
            a(f"v_fma_f32 v{G + r}, v{G + r}, s{sL2e}, s{sL2e}")
        for r in range(16):
            a(f"v_rcp_f32 v{G + r}, v{G + r}")
        for r in range(16):
            a(f"v_mul_f32 v{U + r}, v{U + r}, v{G + r}")
        for i in range(8):
            a(f"v_cvt_pk_bf16_f32 v{X0 + 8 * u + i}, v{U + 2 * i}, v{U + 2 * i + 1}")
        a(f"s_add_u32 s35, s34, {u * 2048}")
        a.vm(f"buffer_store_dwordx4 {vr(X0 + 8 * u, 4)}, v{vL16}, {sr(sWS, 4)}, s35 offen")
        a.vm(f"buffer_store_dwordx4 {vr(X0 + 8 * u + 4, 4)}, v{vL16}, {sr(sWS, 4)}, s35 offen offset:1024")
    stamp(a)
    stamp_flush(a, 3, sWS, sWave)
    kernel_end(a, name)
    return name, a.text(), descriptor(name, 256, 48), (240, 256, NSLOT * SLOT)


def build():
    ks = [gen_k1(), gen_k2(), gen_res("k3"), gen_k4(), gen_res("k5")]
    ref = open(f"cdna_kernels/{NAME}.s.ref").read().split("\n")
    head = [l for l in ref if l.startswith(";") and "@launch" not in l and "Override launch" not in l
            and "grid=ceil" not in l]
    out = "\n".join(head) + "\n"
    for name, _, _, (g, b, lds) in ks:
        out += f"; @launch kernel={name} grid=({g},1,1) block=({b},1,1) lds={lds}\n"
    out += '.amdgcn_target "amdgcn-amd-amdhsa--gfx950"\n.text\n'
    bad = 0
    for name, text, _, _ in ks:
        bad += check_hazards(text, name)
        out += text
    out += "L_code_end:\n"
    out += '.section .rodata,"a"\n'
    for name, _, desc, _ in ks:
        out += ".p2align 6\n" + desc
    if bad:
        print("hazards:", bad)
    return out


if __name__ == "__main__":
    path = sys.argv[1] if len(sys.argv) > 1 else f"cdna_kernels/{NAME}.s"
    for arg in sys.argv[2:]:
        if arg == "stamps":
            STAMPS = True
        elif arg == "dbgt":
            DBGT = True
        else:
            k_, v_ = arg.split("=")
            OPT[k_] = int(v_)
    open(path, "w").write(build())
    print("wrote", path)
```

```python
import math
import struct
import sys

from asmlib import Asm, check_hazards

NAME = "sequential_preLN__mha_block__glu_gated_glu__prompt"

MB = 1 << 20
QF = 0
KVF = 2 * MB
OF = 6 * MB
HF = 8 * MB
ST = 10 * MB
GF = 12 * MB
WS_SIZE = 32 * MB

LOG2E = 1.4426950408889634
OPT = dict(pf_code=True, pf_w=True, k1_pre=2, k3_d=2, k5_d=3, k4_d=2)


def f2u(x):
    return struct.unpack("<I", struct.pack("<f", x))[0]


def hx(x):
    return "0x%08x" % (x & 0xFFFFFFFF)


def vr(b, n):
    return f"v[{b}:{b + n - 1}]"


def ar(b, n):
    return f"a[{b}:{b + n - 1}]"


def sr(b, n):
    return f"s[{b}:{b + n - 1}]"


def srd(a, d, base, size):
    a(f"s_mov_b32 s{d}, s{base}")
    a(f"s_mov_b32 s{d + 1}, s{base + 1}")
    a(f"s_mov_b32 s{d + 2}, {hx(size)}")
    a(f"s_mov_b32 s{d + 3}, 0x00020000")


def interleave(main, fill, lead=0):
    out = []
    fill = list(fill)
    out += fill[:lead]
    fill = fill[lead:]
    n = len(main)
    per = len(fill) / n if n else 0
    used = 0
    for i, m in enumerate(main):
        out.append(m)
        upto = int(round(per * (i + 1)))
        out += fill[used:upto]
        used = upto
    out += fill[used:]
    return out


def kernel_begin(a, name, nwg):
    a.raw(f".globl {name}")
    a.raw(".p2align 8")
    a.raw(f".type {name},@function")
    a.label(name)
    a(f"s_cmp_ge_u32 s2, {nwg}")
    a(f"s_cbranch_scc1 L_{name}_done")
    dbgt_begin(a)
    stamp(a, real=True)
    stamp(a)


STAMPS = False
SBASE = 60
DBGO = 20 * MB


def stamp(a, real=False):
    if not STAMPS:
        return
    i = getattr(a, "nstamp", 0)
    a.nstamp = i + 1
    assert i < 16
    a(f"{'s_memrealtime' if real else 's_memtime'} s[{SBASE + 2 * i}:{SBASE + 2 * i + 1}]")
    a.wait_all(vm=False)


def stamp_flush(a, kidx, sWS, sWave):
    dbgt_end(a, kidx, sWS)
    if not STAMPS:
        return
    a.wait_all()
    stamp(a)
    stamp(a, real=True)
    a("s_mov_b64 exec, -1")
    a("s_lshl_b32 s58, s2, 3")
    a(f"s_add_u32 s58, s58, s{sWave}")
    a("s_lshl_b32 s58, s58, 6")
    a(f"s_add_u32 s58, s58, {DBGO + kidx * MB}")
    a("v_mov_b32 v1, 0")
    for i in range(a.nstamp):
        a(f"v_mov_b32 v2, s{SBASE + 2 * i}")
        a(f"buffer_store_dword v2, v1, s[{sWS}:{sWS + 3}], s58 offen offset:{4 * i}")
    a.wait_all()


DBGT = False


def dbgt_begin(a):
    if not DBGT:
        return
    a("s_memrealtime s[90:91]")
    a("s_load_dwordx2 s[92:93], s[0:1], 64")


def dbgt_end(a, kidx, sWS):
    if not DBGT:
        return
    a.wait_all()
    a("s_cmp_lg_u32 s2, 0")
    a(f"s_cbranch_scc1 L_dbgt_{kidx}")
    a("s_memrealtime s[88:89]")
    a.wait_all()
    a("s_mov_b64 exec, -1")
    a("v_cmp_eq_u32 vcc, 0, v0")
    a("s_nop 4")
    a("s_and_b64 exec, exec, vcc")
    a(f"s_cbranch_execz L_dbgt_{kidx}")
    a(f"v_mov_b32 v1, {DBGO}")
    a("v_mov_b32 v2, s90")
    a("v_mov_b32 v3, s88")
    a(f"buffer_store_dwordx2 v[2:3], v1, s[{sWS}:{sWS + 3}], 0 offen offset:{8 * kidx}")
    if kidx == 4:
        a(f"buffer_load_dwordx4 v[4:7], v1, s[{sWS}:{sWS + 3}], 0 offen")
        a(f"buffer_load_dwordx4 v[8:11], v1, s[{sWS}:{sWS + 3}], 0 offen offset:16")
        a("s_mov_b32 s94, 256")
        a("s_mov_b32 s95, 0x00020000")
        a("v_mov_b32 v1, 0")
        a.wait_all()
        for r in (5, 6, 7, 8, 9, 10, 11, 2, 3):
            a(f"v_sub_u32 v{r}, v{r}, v4")
        a("buffer_store_dwordx4 v[4:7], v1, s[92:95], 0 offen")
        a("buffer_store_dwordx4 v[8:11], v1, s[92:95], 0 offen offset:16")
        a("buffer_store_dwordx2 v[2:3], v1, s[92:95], 0 offen offset:32")
    a.wait_all()
    a.label(f"L_dbgt_{kidx}")


def kernel_end(a, name):
    a.label(f"L_{name}_done")
    a("s_endpgm")


def descriptor(name, vgpr, agpr, sgpr=96):
    acc = (vgpr + 3) // 4 * 4
    return f""".amdhsa_kernel {name}
  .amdhsa_next_free_vgpr {acc + agpr}
  .amdhsa_next_free_sgpr {sgpr}
  .amdhsa_accum_offset {acc}
  .amdhsa_group_segment_fixed_size 0
  .amdhsa_kernarg_size 80
  .amdhsa_user_sgpr_count 2
  .amdhsa_user_sgpr_kernarg_segment_ptr 1
  .amdhsa_system_sgpr_workgroup_id_x 1
.end_amdhsa_kernel
"""


def normalize_ops(x, t, vR, vNB, sMask):
    ops = []
    for i in range(4):
        ops.append(f"v_lshlrev_b32 v{t + 2 * i}, 16, v{x + i}")
        ops.append(f"v_and_b32 v{t + 2 * i + 1}, s{sMask}, v{x + i}")
    for i in range(8):
        ops.append(f"v_fma_f32 v{t + i}, v{t + i}, v{vR}, v{vNB}")
    for i in range(4):
        ops.append(f"v_cvt_pk_bf16_f32 v{x + i}, v{t + 2 * i}, v{t + 2 * i + 1}")
    return ops


def half_sum(a, r, t):
    a(f"v_mov_b32 v{t}, v{r}")
    a("s_nop 1")
    a(f"v_permlane32_swap_b32 v{r}, v{t}")
    a("s_nop 1")
    a(f"v_add_f32 v{r}, v{r}, v{t}")


def finish_stats(a, vS, vQ, vR, vNB, t, scale=1.0):
    a(f"v_mul_f32 v{vS}, {hx(f2u(1.0 / 512))}, v{vS}")
    a(f"v_mul_f32 v{vQ}, {hx(f2u(1.0 / 512))}, v{vQ}")
    a(f"v_fma_f32 v{t}, -v{vS}, v{vS}, v{vQ}")
    a(f"v_max_f32 v{t}, 0, v{t}")
    a(f"v_add_f32 v{t}, {hx(f2u(1e-5))}, v{t}")
    a(f"v_rsq_f32 v{vR}, v{t}")
    a("s_nop 0")
    if scale != 1.0:
        a(f"v_mul_f32 v{vR}, {hx(f2u(scale))}, v{vR}")
    a(f"v_mul_f32 v{vNB}, -v{vS}, v{vR}")


class Drip:
    def __init__(self, a):
        self.a = a
        self.q = []
        self.tok = {}

    def add(self, key, pre, ins):
        self.q.append((key, pre, ins))

    def emit(self, n=1):
        for _ in range(n):
            if not self.q:
                return
            key, pre, ins = self.q.pop(0)
            for p in pre:
                self.a(p)
            self.tok[key] = self.a.vm(ins)

    def through(self, key):
        while any(k == key for k, _, _ in self.q):
            self.emit()

    def wait(self, key):
        self.through(key)
        self.a.wait(vm=self.tok[key])


def code_prefetch(a, label, sPC, vOff, vDst, uid):
    a(f"s_getpc_b64 s[{sPC}:{sPC + 1}]")
    a.label(f"L_pc_{uid}")
    a(f"s_add_u32 s{sPC}, s{sPC}, {label}-L_pc_{uid}")
    a(f"s_addc_u32 s{sPC + 1}, s{sPC + 1}, ({label}-L_pc_{uid})>>32")
    a(f"v_min_u32 v{vOff}, L_code_end-{label}-4, v{vOff}")
    return a.vm(f"global_load_dword v{vDst}, v{vOff}, s[{sPC}:{sPC + 1}]")


class LdsAddr:
    def __init__(self, a, regs):
        self.regs = regs

    def setup(self, a):
        for j in range(1, len(self.regs)):
            a(f"v_add_u32 v{self.regs[j]}, {hx(j * 65536)}, v{self.regs[0]}")

    def at(self, off):
        return f"v{self.regs[off >> 16]}", off & 0xFFFF


def gen_k1():
    name = "k1_qkv_kernel"
    a = Asm()
    kernel_begin(a, name, 256)
    sX, sW, sWS = 12, 16, 20
    sWave, sWr, sWc, sCg, sRb = 24, 25, 26, 27, 28
    sT0, sT1, sWL, sXL = 30, 31, 32, 33
    sMask, sOnes = 40, 41
    vLane, vL16, vWoff, vXrd, vT = 1, 2, 3, 4, 8
    vS, vQ, vR, vNB = 16, 17, 18, 19
    vKoff, vVoff = 20, 21
    vWrd = [24, 25, 26]
    X0 = 64
    accQ, accK, accV = 192, 208, 224
    a("s_load_dwordx4 s[4:7], s[0:1], 0")
    a("s_load_dwordx2 s[8:9], s[0:1], 72")
    a(f"v_and_b32 v{vLane}, 63, v0")
    a(f"v_lshrrev_b32 v5, 6, v0")
    a(f"v_lshlrev_b32 v{vL16}, 4, v{vLane}")
    a(f"v_readfirstlane_b32 s{sWave}, v5")
    if OPT["pf_code"]:
        a(f"v_lshlrev_b32 v30, 7, v0")
        code_prefetch(a, name, 44, 30, 31, "k1")
    a(f"s_and_b32 s{sT0}, s2, 7")
    a(f"s_lshl_b32 s{sT0}, s{sT0}, 2")
    a(f"s_bfe_u32 s{sT1}, s2, 0x20003")
    a(f"s_add_u32 s{sRb}, s{sT0}, s{sT1}")
    a(f"s_lshr_b32 s{sCg}, s2, 5")
    a(f"s_mov_b32 s{sMask}, 0xffff0000")
    a(f"s_mov_b32 s{sOnes}, 0x3f803f80")
    a(f"s_lshr_b32 s{sWr}, s{sWave}, 1")
    a(f"s_and_b32 s{sWc}, s{sWave}, 1")
    a(f"v_lshrrev_b32 v5, 3, v{vLane}")
    a(f"v_lshrrev_b32 v6, 2, v{vLane}")
    a(f"v_and_b32 v6, 4, v6")
    a(f"v_and_b32 v7, 7, v{vLane}")
    a(f"v_xor_b32 v6, v6, v7")
    a(f"v_lshlrev_b32 v6, 4, v6")
    a(f"v_mul_u32_u24 v5, 3072, v5")
    a(f"v_add_u32 v{vWoff}, v5, v6")
    a(f"s_mul_i32 s{sT0}, s{sWave}, {16 * 3072}")
    a(f"s_lshl_b32 s{sT1}, s{sCg}, 7")
    a(f"s_add_u32 s{sT0}, s{sT0}, s{sT1}")
    a(f"v_add_u32 v{vWoff}, s{sT0}, v{vWoff}")
    a(f"s_mul_i32 s{sWL}, s{sWave}, {2 * 3072}")
    a(f"s_mul_i32 s{sXL}, s{sWave}, {16 * 1040}")
    a(f"s_lshl_b32 s{sT1}, s{sRb}, 16")
    a(f"s_lshl_b32 s34, s{sWave}, 14")
    a(f"s_add_u32 s34, s34, s{sT1}")
    a("s_waitcnt lgkmcnt(0)")
    srd(a, sX, 4, 2048 * 1024)
    srd(a, sW, 6, 512 * 3072)
    srd(a, sWS, 8, WS_SIZE)
    xtok = None
    for i in range(16):
        a(f"s_add_u32 m0, s{sXL}, {i * 1040}")
        a(f"s_add_u32 s{sT0}, s34, {i * 1024}")
        xtok = a.vm(f"buffer_load_dwordx4 v{vL16}, {sr(sX, 4)}, s{sT0} offen lds")
    SLOT = 24576
    slots = [163840 - 3 * SLOT, 163840 - 2 * SLOT, 163840 - SLOT, 0, SLOT, 2 * SLOT]
    stage_slot = [slots[0], slots[1], slots[2], slots[3], slots[4], slots[5], slots[0], slots[1]]
    dr = Drip(a)
    sD = 35

    def w_dma(st):
        for i in range(2):
            for seg in range(3):
                pre = [f"s_add_u32 m0, s{sWL}, {stage_slot[st] + i * 3072}",
                       f"s_mov_b32 s{sD}, {(64 * st + 8 * i) * 3072}"] if seg == 0 else []
                dr.add(st, pre, f"buffer_load_dwordx4 v{vWoff}, {sr(sW, 4)}, s{sD} offen offset:{seg * 1024} lds")

    for st in range(3):
        w_dma(st)
    dr.emit(6 * OPT["k1_pre"])
    a(f"v_and_b32 v5, 31, v{vLane}")
    a(f"v_lshrrev_b32 v6, 5, v{vLane}")
    a(f"s_lshl_b32 s{sT0}, s{sWr}, 5")
    a(f"v_add_u32 v7, s{sT0}, v5")
    a(f"v_mul_u32_u24 v7, 1040, v7")
    a(f"v_lshl_add_u32 v{vXrd}, v6, 4, v7")
    a(f"v_mul_u32_u24 v7, 3072, v6")
    a(f"v_bfe_u32 v8, v{vLane}, 2, 2")
    a(f"v_lshl_add_u32 v7, v8, 7, v7")
    a(f"v_lshrrev_b32 v8, 1, v8")
    a(f"v_xor_b32 v8, s{sWc}, v8")
    a(f"v_lshl_add_u32 v7, v8, 6, v7")
    a(f"v_bfe_u32 v8, v{vLane}, 4, 1")
    a(f"v_lshl_add_u32 v7, v8, 5, v7")
    a(f"v_and_b32 v8, 3, v{vLane}")
    a(f"v_lshl_add_u32 v{vWrd[0]}, v8, 3, v7")
    wl = LdsAddr(a, vWrd)
    wl.setup(a)
    a(f"v_and_b32 v7, 0x33, v{vLane}")
    a(f"v_bfe_u32 v8, v{vLane}, 2, 1")
    a(f"v_lshl_or_b32 v7, v8, 3, v7")
    a(f"v_bfe_u32 v8, v{vLane}, 3, 1")
    a(f"v_lshl_or_b32 v7, v8, 2, v7")
    a(f"v_lshlrev_b32 v{vKoff}, 4, v7")
    a(f"v_bfe_u32 v7, v{vLane}, 4, 1")
    a(f"v_lshlrev_b32 v7, 17, v7")
    a(f"v_lshl_add_u32 v7, v6, 8, v7")
    a(f"v_and_b32 v8, 15, v{vLane}")
    a(f"v_lshl_add_u32 v{vVoff}, v8, 4, v7")
    for r in range(48):
        a(f"v_mov_b32 v{accQ + r}, 0")
    a(f"v_mov_b32 v{vS}, 0")
    a(f"v_mov_b32 v{vQ}, 0")
    stamp(a)
    a.wait(vm=xtok)
    a("s_barrier")
    stamp(a)
    for s in range(32):
        a.lg(f"ds_read_b128 {vr(X0 + 4 * s, 4)}, v{vXrd} offset:{s * 32}")
    a.wait_all(vm=False)
    dr.wait(0)
    a("s_barrier")
    for st in range(3, 6):
        w_dma(st)

    def w_reads(s):
        st, ss = divmod(s, 4)
        ops = []
        for seg in range(3):
            for half in range(2):
                reg, off = wl.at(stage_slot[st] + ss * 6144 + seg * 1024 + half * 512)
                ops.append(f"ds_read_b64_tr_b16 {ar(12 * (s & 1) + 4 * seg + 2 * half, 2)}, {reg} offset:{off}")
        return ops

    rtok = {}
    for op in w_reads(0):
        rtok[0] = a.lg(op)
    for r in range(128):
        a(f"v_dot2_f32_bf16 v{vS}, v{X0 + r}, s{sOnes}, v{vS}")
        a(f"v_dot2_f32_bf16 v{vQ}, v{X0 + r}, v{X0 + r}, v{vQ}")
        if r % 10 == 0:
            dr.emit()
    a("s_nop 2")
    half_sum(a, vS, 8)
    half_sum(a, vQ, 8)
    finish_stats(a, vS, vQ, vR, vNB, 8)
    for op in normalize_ops(X0, vT, vR, vNB, sMask):
        a(op)
    stamp(a)
    for s in range(32):
        st, ss = divmod(s, 4)
        if s == 16:
            stamp(a)
        a.wait(lg=rtok[s])
        if s + 1 < 32:
            if ss == 3:
                dr.wait(st + 1)
                a("s_barrier")
                if st + 6 < 8:
                    w_dma(st + 6)
            for op in w_reads(s + 1):
                rtok[s + 1] = a.lg(op)
        else:
            a("s_nop 0")
        wb = 12 * (s & 1)
        xf = vr(X0 + 4 * s, 4)
        mf = [
            f"v_mfma_f32_32x32x16_bf16 {vr(accQ, 16)}, {ar(wb, 4)}, {xf}, {vr(accQ, 16)}",
            f"v_mfma_f32_32x32x16_bf16 {vr(accK, 16)}, {ar(wb + 4, 4)}, {xf}, {vr(accK, 16)}",
            f"v_mfma_f32_32x32x16_bf16 {vr(accV, 16)}, {xf}, {ar(wb + 8, 4)}, {vr(accV, 16)}",
        ]
        fill = normalize_ops(X0 + 4 * (s + 1), vT, vR, vNB, sMask) if s + 1 < 32 else []
        for op in interleave(mf, fill):
            a(op)
            if op is mf[0] or op is mf[1]:
                dr.emit()
    stamp(a)
    a(f"s_lshl_b32 s{sT0}, s{sCg}, 2")
    a(f"s_lshl_b32 s{sT1}, s{sWc}, 1")
    a(f"s_add_u32 s{sT0}, s{sT0}, s{sT1}")
    a(f"s_lshl_b32 s{sT1}, s{sRb}, 1")
    a(f"s_add_u32 s{sT1}, s{sT1}, s{sWr}")
    a(f"s_lshl_b32 s34, s{sT0}, 16")
    a(f"s_lshl_b32 s35, s{sT1}, 10")
    a(f"s_add_u32 s34, s34, s35")
    if QF:
        a(f"s_add_u32 s34, s34, {QF}")
    a(f"s_add_u32 s35, s34, 65536")
    a(f"s_lshl_b32 s36, s{sT0}, 17")
    a(f"s_lshl_b32 s37, s{sT1}, 11")
    a(f"s_add_u32 s36, s36, s37")
    a(f"s_add_u32 s36, s36, {KVF}")
    a(f"s_add_u32 s37, s36, 131072")
    a(f"s_mov_b32 s38, {hx(f2u(0.25 * LOG2E))}")
    P = X0
    for r in range(16):
        a(f"v_mul_f32 v{accQ + r}, s38, v{accQ + r}")
    for i in range(8):
        a(f"v_cvt_pk_bf16_f32 v{P + i}, v{accQ + 2 * i}, v{accQ + 2 * i + 1}")
    a.vm(f"buffer_store_dwordx4 {vr(P, 4)}, v{vL16}, {sr(sWS, 4)}, s34 offen")
    a.vm(f"buffer_store_dwordx4 {vr(P + 4, 4)}, v{vL16}, {sr(sWS, 4)}, s35 offen")
    for i in range(8):
        a(f"v_cvt_pk_bf16_f32 v{P + 8 + i}, v{accK + 2 * i}, v{accK + 2 * i + 1}")
    a.vm(f"buffer_store_dwordx4 {vr(P + 8, 4)}, v{vKoff}, {sr(sWS, 4)}, s36 offen")
    a.vm(f"buffer_store_dwordx4 {vr(P + 12, 4)}, v{vKoff}, {sr(sWS, 4)}, s37 offen")
    for i in range(8):
        a(f"v_cvt_pk_bf16_f32 v{P + 16 + i}, v{accV + 2 * i}, v{accV + 2 * i + 1}")
    a.vm(f"buffer_store_dwordx4 {vr(P + 16, 4)}, v{vVoff}, {sr(sWS, 4)}, s36 offen offset:1024")
    a.vm(f"buffer_store_dwordx4 {vr(P + 20, 4)}, v{vVoff}, {sr(sWS, 4)}, s36 offen offset:1536")
    stamp(a)
    stamp_flush(a, 0, sWS, sWave)
    kernel_end(a, name)
    return name, a.text(), descriptor(name, 240, 24), (256, 256, 163840)


def gen_k2():
    name = "k2_attn_kernel"
    a = Asm()
    kernel_begin(a, name, 256)
    sWS = 12
    sWave, sHead, sQb, sKh, sQs = 24, 25, 26, 27, 28
    sT0, sT1 = 30, 31
    sVm = 34
    vLane, vL16, vKrd, vVrd, vIdx, vXw, vXr = 1, 2, 3, 4, 5, 6, 7
    Qf = [8, 12]
    Kf = [16, 20]
    Vf = [24, 32]
    S = [48, 64]
    O = [80, 96]
    NEG = 112
    T = 128
    XCH = 131072
    a("s_load_dwordx2 s[8:9], s[0:1], 72")
    a("s_load_dwordx2 s[4:5], s[0:1], 0")
    a("s_load_dwordx2 s[6:7], s[0:1], 16")
    a("s_load_dwordx4 s[48:51], s[0:1], 32")
    a(f"v_and_b32 v{vLane}, 63, v0")
    a(f"v_lshrrev_b32 v8, 6, v0")
    a(f"v_lshlrev_b32 v{vL16}, 4, v{vLane}")
    a(f"v_readfirstlane_b32 s{sWave}, v8")
    a(f"s_and_b32 s{sT0}, s2, 7")
    a(f"s_lshl_b32 s{sT0}, s{sT0}, 2")
    a(f"s_lshr_b32 s{sT1}, s2, 6")
    a(f"s_add_u32 s{sHead}, s{sT0}, s{sT1}")
    a(f"s_bfe_u32 s{sQb}, s2, 0x30003")
    a(f"s_lshr_b32 s{sKh}, s{sWave}, 2")
    a(f"s_and_b32 s{sQs}, s{sWave}, 3")
    a(f"s_mov_b32 s{sVm}, 0x0000ffff")
    a(f"s_mov_b32 s{sVm + 1}, 0x0000ffff")
    a(f"s_lshl_b32 s32, s{sKh}, 16")
    a(f"s_lshl_b32 s{sT0}, s{sQs}, 11")
    a(f"s_add_u32 s32, s32, s{sT0}")
    a(f"s_lshl_b32 s33, s{sHead}, 17")
    a(f"s_add_u32 s33, s33, s32")
    a(f"s_add_u32 s33, s33, {KVF}")
    a(f"s_lshl_b32 s36, s{sHead}, 16")
    a(f"s_lshl_b32 s{sT0}, s{sQb}, 13")
    a(f"s_add_u32 s36, s36, s{sT0}")
    a(f"s_lshl_b32 s{sT0}, s{sQs}, 11")
    a(f"s_add_u32 s36, s36, s{sT0}")
    if QF:
        a(f"s_add_u32 s36, s36, {QF}")
    a("s_waitcnt lgkmcnt(0)")
    srd(a, sWS, 8, WS_SIZE)
    a.vm(f"buffer_load_dwordx4 {vr(Qf[0], 4)}, v{vL16}, {sr(sWS, 4)}, s36 offen")
    a.vm(f"buffer_load_dwordx4 {vr(Qf[1], 4)}, v{vL16}, {sr(sWS, 4)}, s36 offen offset:1024")
    dr = Drip(a)
    for c in range(8):
        dr.add(c, [f"s_add_u32 m0, s32, {c * 8192}", f"s_add_u32 s37, s33, {c * 8192}"],
               f"buffer_load_dwordx4 v{vL16}, {sr(sWS, 4)}, s37 offen lds")
        dr.add(c, [], f"buffer_load_dwordx4 v{vL16}, {sr(sWS, 4)}, s37 offen offset:1024 lds")
    dr.emit(4)
    a(f"s_lshl_b32 s{sT0}, s{sKh}, 16")
    a(f"v_add_u32 v{vKrd}, s{sT0}, v{vL16}")
    a(f"v_lshrrev_b32 v{T}, 5, v{vLane}")
    a(f"v_and_b32 v{T + 1}, 15, v{vLane}")
    a(f"v_lshlrev_b32 v{T + 1}, 4, v{T + 1}")
    a(f"v_lshl_add_u32 v{T}, v{T}, 8, v{T + 1}")
    a(f"v_add_u32 v{vVrd}, s{sT0}, v{T}")
    a(f"v_mov_b32 v{vIdx}, 0xdddd")
    a(f"s_mul_i32 s{sT0}, s{sWave}, 2304")
    a(f"s_add_u32 s{sT0}, s{sT0}, {XCH}")
    a(f"v_lshl_add_u32 v{vXw}, v{vLane}, 2, s{sT0}")
    a(f"s_xor_b32 s{sT1}, s{sWave}, 4")
    a(f"s_mul_i32 s{sT0}, s{sT1}, 2304")
    a(f"s_add_u32 s{sT0}, s{sT0}, {XCH}")
    a(f"v_lshl_add_u32 v{vXr}, v{vLane}, 2, s{sT0}")
    for r in range(16):
        a(f"v_mov_b32 v{Vf[0] + r}, 0")
    a("s_mov_b32 exec_lo, 0x00110000")
    a("s_mov_b32 exec_hi, 0x00110000")
    for r in range(16):
        a(f"v_mov_b32 v{Vf[0] + r}, 0x3f803f80")
    a("s_mov_b64 exec, -1")
    vPf, vPd = T + 14, T + 15
    a(f"s_lshr_b32 s{sT0}, s2, 3")
    a(f"s_lshl_b32 s{sT0}, s{sT0}, 16")
    a(f"v_lshlrev_b32 v{vPf}, 7, v0")
    a(f"v_add_u32 v{vPf}, s{sT0}, v{vPf}")
    srd(a, 16, 6, 512 * 1024)
    srd(a, 20, 48, 512 * 2752)
    srd(a, 52, 50, 512 * 2752)
    a(f"s_and_b32 s{sT0}, s2, 7")
    a(f"s_lshl_b32 s{sT0}, s{sT0}, 18")
    a(f"s_add_u32 s4, s4, s{sT0}")
    a("s_addc_u32 s5, s5, 0")
    srd(a, 44, 4, 256 * 1024)
    for r in range(32):
        a(f"v_mov_b32 v{O[0] + r}, 0")

    def kv_reads(t):
        b = t & 1
        k = f"ds_read_b128 {vr(Kf[b], 4)}, v{vKrd} offset:{t * 2048}"
        v = [f"ds_read_b128 {vr(Vf[b], 4)}, v{vVrd} offset:{t * 2048 + 1024}",
             f"ds_read_b128 {vr(Vf[b] + 4, 4)}, v{vVrd} offset:{t * 2048 + 1536}"]
        return k, v

    def emit_k(t):
        return a.lg(kv_reads(t)[0])

    def emit_v(t):
        a(f"s_mov_b64 exec, {sr(sVm, 2)}")
        v = kv_reads(t)[1]
        a.lg(v[0])
        tok = a.lg(v[1])
        a("s_mov_b64 exec, -1")
        return tok

    def qk(u):
        t, c = divmod(u, 2)
        return f"v_mfma_f32_32x32x16_bf16 {vr(S[u & 1], 16)}, {vr(Kf[t & 1], 4)}, {vr(Qf[c], 4)}, 0"

    def pv(u, i):
        t, c = divmod(u, 2)
        return (f"v_smfmac_f32_32x32x32_bf16 {vr(O[c], 16)}, {vr(Vf[t & 1] + 4 * i, 4)}, "
                f"{vr(S[u & 1] + 8 * i, 8)}, v{vIdx}")

    stamp(a)
    dr.wait(0)
    a("s_barrier")
    stamp(a)
    ktok, vtok = {}, {}
    ktok[0] = emit_k(0)
    vtok[0] = emit_v(0)
    ktok[1] = emit_k(1)
    a.wait(lg=ktok[0])
    a(qk(0))
    a("s_nop 11")
    NU = 64
    for u in range(NU):
        t, c = divmod(u, 2)
        X = S[u & 1]
        if u in (8, 32):
            stamp(a)
        ex = [f"v_exp_f32 v{X + i}, v{X + i}" for i in range(16)]
        a(ex[0]); a(ex[1])
        if u > 0:
            a(pv(u - 1, 1))
        a(ex[2]); a(ex[3]); a(ex[4])
        if u + 1 < NU:
            if c == 1:
                a.wait(lg=ktok[t + 1])
            a(qk(u + 1))
        if c == 0:
            if t + 1 < 32:
                vtok[t + 1] = emit_v(t + 1)
        else:
            if t + 2 < 32:
                if t + 2 == 4:
                    dr.wait(1)
                    a("s_barrier")
                if t + 2 == 8:
                    dr.wait(7)
                    a("s_barrier")
                    if OPT["pf_w"]:
                        for sq in (16, 44, 20, 52):
                            dr.add("pf", [], f"buffer_load_dword v{vPd}, v{vPf}, {sr(sq, 4)}, 0 offen")
                ktok[t + 2] = emit_k(t + 2)
        for i in range(5, 10):
            a(ex[i])
        dr.emit(2 if u < 8 else 1)
        if u == 24 and OPT["pf_code"]:
            code_prefetch(a, "k3_wo_kernel", 38, vPf, vPd, "k2")
        if c == 0:
            a.wait(lg=vtok[t])
        a(pv(u, 0))
        for i in range(10, 16):
            a(ex[i])
    a("s_nop 1")
    a(pv(NU - 1, 1))
    a("s_nop 15")
    stamp(a)
    a(f"s_cmp_eq_u32 s{sKh}, 0")
    a(f"s_cbranch_scc1 L_k2_keep0")
    for r in range(9):
        a(f"v_swap_b32 v{O[0] + r}, v{O[1] + r}")
    for r in range(4):
        a(f"v_mov_b32 v{Qf[0] + r}, v{Qf[1] + r}")
    a.label("L_k2_keep0")
    for r in range(9):
        a.lg(f"ds_write_b32 v{vXw}, v{O[1] + r} offset:{r * 256}")
    a.wait_all(vm=False)
    a("s_barrier")
    for r in range(9):
        a.lg(f"ds_read_b32 v{T + r}, v{vXr} offset:{r * 256}")
    a.wait_all(vm=False)
    for r in range(9):
        a(f"v_add_f32 v{O[0] + r}, v{O[0] + r}, v{T + r}")
    a(f"v_max3_f32 v{T}, |v{O[0]}|, |v{O[0] + 1}|, |v{O[0] + 2}|")
    a(f"v_max3_f32 v{T + 1}, |v{O[0] + 3}|, |v{O[0] + 4}|, |v{O[0] + 5}|")
    a(f"v_add_f32 v{T + 2}, |v{O[0] + 6}|, |v{O[0] + 7}|")
    a(f"v_add_f32 v{T}, v{T}, v{T + 1}")
    a(f"v_add_f32 v{T}, v{T}, v{T + 2}")
    for r in range(6):
        a(f"v_fma_f32 v{T}, v{O[0] + r}, 0, v{T}")
    a(f"s_mov_b32 s{sT0}, {hx(f2u(2.0 ** 120))}")
    a(f"s_mov_b32 s{sT1}, {hx(f2u(2.0 ** 80))}")
    a(f"v_cmp_gt_f32 s[40:41], s{sT0}, v{T}")
    a(f"v_cmp_gt_f32 s[42:43], s{sT1}, v{O[0] + 8}")
    a(f"s_mov_b32 s{sT1}, {hx(f2u(2.0 ** -80))}")
    a(f"v_cmp_lt_f32 vcc, s{sT1}, v{O[0] + 8}")
    a("s_nop 1")
    a("s_and_b64 s[40:41], s[40:41], s[42:43]")
    a("s_and_b64 s[40:41], s[40:41], vcc")
    a("s_cmp_eq_u64 s[40:41], -1")
    a("s_cbranch_scc0 L_k2_fallback")
    a.label("L_k2_finish")
    a(f"v_rcp_f32 v{T}, v{O[0] + 8}")
    a(f"s_lshl_b32 s{sT0}, s{sQb}, 3")
    a(f"s_lshl_b32 s{sT1}, s{sQs}, 1")
    a(f"s_add_u32 s{sT0}, s{sT0}, s{sT1}")
    a(f"s_add_u32 s{sT0}, s{sT0}, s{sKh}")
    a(f"s_lshl_b32 s{sT0}, s{sT0}, 15")
    a(f"s_lshl_b32 s{sT1}, s{sHead}, 10")
    a(f"s_add_u32 s{sT0}, s{sT0}, s{sT1}")
    a(f"s_add_u32 s{sT0}, s{sT0}, {OF}")
    for r in range(8):
        a(f"v_mul_f32 v{O[0] + r}, v{O[0] + r}, v{T}")
    for i in range(4):
        a(f"v_cvt_pk_bf16_f32 v{T + 4 + i}, v{O[0] + 2 * i}, v{O[0] + 2 * i + 1}")
    a.vm(f"buffer_store_dwordx4 {vr(T + 4, 4)}, v{vL16}, {sr(sWS, 4)}, s{sT0} offen")
    stamp(a)
    stamp_flush(a, 1, sWS, sWave)
    a("s_endpgm")
    a.label("L_k2_fallback")
    vK2, vV2, vM = T + 10, T + 11, T + 12
    a(f"s_lshl_b32 s{sT0}, s{sKh}, 16")
    a(f"v_subrev_u32 v{vK2}, s{sT0}, v{vKrd}")
    a(f"v_mov_b32 v{vM}, 0xff800000")
    a("s_mov_b32 s56, 0")
    a.label("L_k2_fb_max")
    a(f"ds_read_b128 {vr(Kf[0], 4)}, v{vK2}")
    a("s_waitcnt lgkmcnt(0)")
    a(f"v_mfma_f32_32x32x16_bf16 {vr(S[0], 16)}, {vr(Kf[0], 4)}, {vr(Qf[0], 4)}, 0")
    a("s_nop 15")
    for i in range(8):
        a(f"v_max3_f32 v{vM}, v{vM}, v{S[0] + 2 * i}, v{S[0] + 2 * i + 1}")
    a(f"v_add_u32 v{vK2}, 2048, v{vK2}")
    a("s_add_u32 s56, s56, 1")
    a("s_cmp_lt_u32 s56, 64")
    a("s_cbranch_scc1 L_k2_fb_max")
    a(f"v_mov_b32 v{T}, v{vM}")
    a("s_nop 1")
    a(f"v_permlane32_swap_b32 v{vM}, v{T}")
    a("s_nop 1")
    a(f"v_max_f32 v{vM}, v{vM}, v{T}")
    for r in range(16):
        a(f"v_sub_f32 v{NEG + r}, 0, v{vM}")
        a(f"v_mov_b32 v{O[0] + r}, 0")
    a(f"v_subrev_u32 v{vK2}, s{sT0}, v{vKrd}")
    a(f"v_subrev_u32 v{vV2}, s{sT0}, v{vVrd}")
    a("s_mov_b32 s56, 0")
    a.label("L_k2_fb_pv")
    a(f"ds_read_b128 {vr(Kf[0], 4)}, v{vK2}")
    a(f"s_mov_b64 exec, {sr(sVm, 2)}")
    a(f"ds_read_b128 {vr(Vf[0], 4)}, v{vV2} offset:1024")
    a(f"ds_read_b128 {vr(Vf[0] + 4, 4)}, v{vV2} offset:1536")
    a("s_mov_b64 exec, -1")
    a("s_waitcnt lgkmcnt(0)")
    a(f"v_mfma_f32_32x32x16_bf16 {vr(S[0], 16)}, {vr(Kf[0], 4)}, {vr(Qf[0], 4)}, {vr(NEG, 16)}")
    a("s_nop 15")
    for i in range(16):
        a(f"v_exp_f32 v{S[0] + i}, v{S[0] + i}")
    a("s_nop 1")
    a(f"v_smfmac_f32_32x32x32_bf16 {vr(O[0], 16)}, {vr(Vf[0], 4)}, {vr(S[0], 8)}, v{vIdx}")
    a(f"v_smfmac_f32_32x32x32_bf16 {vr(O[0], 16)}, {vr(Vf[0] + 4, 4)}, {vr(S[0] + 8, 8)}, v{vIdx}")
    a("s_nop 15")
    a(f"v_add_u32 v{vK2}, 2048, v{vK2}")
    a(f"v_add_u32 v{vV2}, 2048, v{vV2}")
    a("s_add_u32 s56, s56, 1")
    a("s_cmp_lt_u32 s56, 64")
    a("s_cbranch_scc1 L_k2_fb_pv")
    a("s_branch L_k2_finish")
    kernel_end(a, name)
    return name, a.text(), descriptor(name, 144, 0), (256, 512, XCH + 8 * 2304)


def gen_res(kind):
    k3 = kind == "k3"
    name = "k3_wo_kernel" if k3 else "k5_down_kernel"
    NCH = 16 if k3 else 43
    KS = 32 if k3 else 86
    ACT = OF if k3 else GF
    CPS = 4
    NST = (NCH + CPS - 1) // CPS
    DEPTH = OPT["k3_d"] if k3 else OPT["k5_d"]
    NSLOT = 4 if k3 else 8
    RED = NSLOT * 16384
    a = Asm()
    kernel_begin(a, name, 256)
    sW, sWS, sIO = 12, 16, 20
    sWave, sWr, sKh, sRt, sCb = 24, 25, 26, 27, 28
    sT0, sT1, sWL, sAct = 30, 31, 32, 33
    sMask, sOnes = 40, 41
    vLane, vL16, vWoff, vRw, vRr, vRes = 1, 2, 3, 4, 5, 6
    vWrd = [[8, 9], [10, 11]]
    T = 12
    RES = 32
    acc = [40, 56]
    A0 = 72
    if k3:
        a("s_load_dwordx2 s[4:5], s[0:1], 16")
        a("s_load_dwordx2 s[6:7], s[0:1], 0")
    else:
        a("s_load_dwordx4 s[4:7], s[0:1], 48")
    a("s_load_dwordx2 s[8:9], s[0:1], 72")
    a(f"v_and_b32 v{vLane}, 63, v0")
    a(f"v_lshrrev_b32 v{T}, 6, v0")
    a(f"v_lshlrev_b32 v{vL16}, 4, v{vLane}")
    a(f"v_readfirstlane_b32 s{sWave}, v{T}")
    a(f"s_and_b32 s{sT0}, s2, 7")
    a(f"s_lshl_b32 s{sRt}, s{sT0}, 2")
    a(f"s_lshr_b32 s34, s2, 6")
    a(f"s_add_u32 s{sRt}, s{sRt}, s34")
    a(f"s_bfe_u32 s{sCb}, s2, 0x30003")
    a(f"s_and_b32 s{sWr}, s{sWave}, 1")
    a(f"s_lshr_b32 s{sKh}, s{sWave}, 1")
    a(f"s_lshl_b32 s{sRt}, s{sRt}, 1")
    a(f"s_add_u32 s{sRt}, s{sRt}, s{sWr}")
    a(f"s_mov_b32 s{sMask}, 0xffff0000")
    a(f"s_mov_b32 s{sOnes}, 0x3f803f80")
    a(f"v_lshrrev_b32 v{T}, 3, v{vLane}")
    a(f"v_lshrrev_b32 v{T + 1}, 2, v{vLane}")
    a(f"v_and_b32 v{T + 1}, 4, v{T + 1}")
    a(f"v_and_b32 v{T + 2}, 7, v{vLane}")
    a(f"v_xor_b32 v{T + 1}, v{T + 1}, v{T + 2}")
    a(f"v_lshlrev_b32 v{T + 1}, 4, v{T + 1}")
    a(f"v_lshl_add_u32 v{vWoff}, v{T}, 10, v{T + 1}")
    a(f"s_lshl_b32 s{sT0}, s{sWave}, 13")
    a(f"s_lshl_b32 s{sT1}, s{sCb}, 7")
    a(f"s_add_u32 s{sT0}, s{sT0}, s{sT1}")
    a(f"v_add_u32 v{vWoff}, s{sT0}, v{vWoff}")
    a(f"s_lshl_b32 s{sWL}, s{sWave}, 10")
    a(f"s_mul_i32 s{sAct}, s{sRt}, {KS * 1024}")
    a(f"s_lshl_b32 s{sT0}, s{sKh}, 10")
    a(f"s_add_u32 s{sAct}, s{sAct}, s{sT0}")
    a(f"s_add_u32 s{sAct}, s{sAct}, {ACT}")
    a("s_waitcnt lgkmcnt(0)")
    srd(a, sW, 4, KS * 16 * 1024)
    srd(a, sWS, 8, WS_SIZE)
    srd(a, sIO, 6, 2048 * 1024)
    dr = Drip(a)

    def issue(st):
        for c in range(st * CPS, min(NCH, (st + 1) * CPS)):
            dr.add(st, [f"s_add_u32 m0, s{sWL}, {(st % NSLOT) * 16384 + (c % CPS) * 4096}", f"s_mov_b32 s42, {c * 32768}"],
                   f"buffer_load_dwordx4 v{vWoff}, {sr(sW, 4)}, s42 offen lds")
            dr.add(st, [f"s_add_u32 s43, s{sAct}, {c * 2048}"] if c % 2 == 0 else [],
                   f"buffer_load_dwordx4 {vr(A0 + 4 * c, 4)}, v{vL16}, {sr(sWS, 4)}, s43 offen offset:{(c % 2) * 2048}")

    for st in range(min(NSLOT, NST)):
        issue(st)
    dr.emit(8 * DEPTH)
    a(f"s_lshl_b32 s34, s{sCb}, 1")
    a(f"s_add_u32 s34, s34, s{sKh}")
    a(f"v_and_b32 v{T}, 31, v{vLane}")
    a(f"v_lshrrev_b32 v{T + 1}, 5, v{vLane}")
    a(f"v_lshlrev_b32 v{T + 2}, 10, v{T}")
    a(f"v_lshl_add_u32 v{vRes}, v{T + 1}, 3, v{T + 2}")
    a(f"s_lshl_b32 s35, s{sRt}, 15")
    a(f"s_lshl_b32 s36, s34, 6")
    a(f"s_add_u32 s35, s35, s36")
    a(f"s_lshl_b32 s36, s{sRt}, 15")
    a(f"s_lshl_b32 s37, s34, 11")
    a(f"s_add_u32 s36, s36, s37")
    a(f"s_add_u32 s36, s36, {HF}")
    res_items = []
    if k3:
        for g in range(4):
            res_items.append(f"buffer_load_dwordx2 {vr(RES + 2 * g, 2)}, v{vRes}, {sr(sIO, 4)}, s35 offen offset:{g * 16}")
    else:
        res_items.append(f"buffer_load_dwordx4 {vr(RES, 4)}, v{vL16}, {sr(sWS, 4)}, s36 offen")
        res_items.append(f"buffer_load_dwordx4 {vr(RES + 4, 4)}, v{vL16}, {sr(sWS, 4)}, s36 offen offset:1024")
    if NST <= NSLOT:
        for it in res_items:
            dr.add("res", [], it)
    a(f"v_bfe_u32 v{T + 2}, v{vLane}, 2, 2")
    a(f"v_lshl_add_u32 v{T + 3}, v{T + 1}, 2, v{T + 2}")
    a(f"s_lshl_b32 s{sT0}, s{sKh}, 4")
    a(f"v_add_u32 v{T + 3}, s{sT0}, v{T + 3}")
    a(f"v_lshlrev_b32 v{T + 3}, 7, v{T + 3}")
    a(f"v_bfe_u32 v{T + 4}, v{vLane}, 4, 1")
    a(f"v_lshl_add_u32 v{T + 3}, v{T + 4}, 5, v{T + 3}")
    a(f"v_and_b32 v{T + 4}, 3, v{vLane}")
    a(f"v_lshl_add_u32 v{T + 3}, v{T + 4}, 3, v{T + 3}")
    a(f"v_lshrrev_b32 v{T + 2}, 1, v{T + 2}")
    a(f"v_lshl_add_u32 v{vWrd[0][0]}, v{T + 2}, 6, v{T + 3}")
    a(f"v_xor_b32 v{vWrd[1][0]}, 64, v{vWrd[0][0]}")
    wl = [LdsAddr(a, vWrd[0]), LdsAddr(a, vWrd[1])]
    wl[0].setup(a)
    wl[1].setup(a)
    a(f"s_lshl_b32 s{sT0}, s{sWave}, 12")
    a(f"s_add_u32 s{sT0}, s{sT0}, {RED}")
    a(f"v_add_u32 v{vRw}, s{sT0}, v{vL16}")
    a(f"v_xor_b32 v{vRr}, 0x2000, v{vRw}")
    for r in range(32):
        a(f"v_mov_b32 v{acc[0] + r}, 0")

    def w_reads(c):
        st = c // CPS
        ops = []
        for b in range(2):
            for half in range(2):
                reg, off = wl[b].at((st % NSLOT) * 16384 + (c % CPS) * 4096 + half * 1024)
                ops.append(f"ds_read_b64_tr_b16 {ar(8 * (c & 1) + 4 * b + 2 * half, 2)}, {reg} offset:{off}")
        return ops

    stamp(a)
    dr.wait(0)
    a("s_barrier")
    stamp(a)
    rt = {}
    for op in w_reads(0):
        rt[0] = a.lg(op)
    for c in range(NCH):
        st = c // CPS
        if c == NCH // 2:
            stamp(a)
        a.wait(lg=rt[c])
        if c + 1 < NCH:
            if (c + 1) % CPS == 0:
                dr.wait(st + 1)
                a("s_barrier")
                if st + NSLOT < NST:
                    issue(st + NSLOT)
                    if st + NSLOT == NST - 1:
                        for it in res_items:
                            dr.add("res", [], it)
            for op in w_reads(c + 1):
                rt[c + 1] = a.lg(op)
        wb = 8 * (c & 1)
        for b in range(2):
            a(f"v_mfma_f32_32x32x16_bf16 {vr(acc[b], 16)}, {ar(wb + 4 * b, 4)}, {vr(A0 + 4 * c, 4)}, {vr(acc[b], 16)}")
            dr.emit()
    a("s_nop 15")
    stamp(a)
    a(f"s_cmp_eq_u32 s{sKh}, 0")
    a(f"s_cbranch_scc1 L_{name}_keep0")
    for r in range(16):
        a(f"v_swap_b32 v{acc[0] + r}, v{acc[1] + r}")
    a.label(f"L_{name}_keep0")
    for g in range(4):
        a.lg(f"ds_write_b128 v{vRw}, {vr(acc[1] + 4 * g, 4)} offset:{g * 1024}")
    a.wait_all(vm=False)
    a("s_barrier")
    for g in range(4):
        a.lg(f"ds_read_b128 {vr(acc[1] + 4 * g, 4)}, v{vRr} offset:{g * 1024}")
    dr.wait("res")
    for i in range(8):
        a(f"v_lshlrev_b32 v{T}, 16, v{RES + i}")
        a(f"v_and_b32 v{T + 1}, s{sMask}, v{RES + i}")
        a(f"v_add_f32 v{acc[0] + 2 * i}, v{acc[0] + 2 * i}, v{T}")
        a(f"v_add_f32 v{acc[0] + 2 * i + 1}, v{acc[0] + 2 * i + 1}, v{T + 1}")
    a.wait_all(vm=False)
    for r in range(16):
        a(f"v_add_f32 v{acc[0] + r}, v{acc[0] + r}, v{acc[1] + r}")
    for i in range(8):
        a(f"v_cvt_pk_bf16_f32 v{RES + i}, v{acc[0] + 2 * i}, v{acc[0] + 2 * i + 1}")
    if k3:
        a.vm(f"buffer_store_dwordx4 {vr(RES, 4)}, v{vL16}, {sr(sWS, 4)}, s36 offen")
        a.vm(f"buffer_store_dwordx4 {vr(RES + 4, 4)}, v{vL16}, {sr(sWS, 4)}, s36 offen offset:1024")
        a(f"v_mov_b32 v{T}, 0")
        a(f"v_mov_b32 v{T + 1}, 0")
        for i in range(8):
            a(f"v_dot2_f32_bf16 v{T}, v{RES + i}, s{sOnes}, v{T}")
            a(f"v_dot2_f32_bf16 v{T + 1}, v{RES + i}, v{RES + i}, v{T + 1}")
        a("s_nop 2")
        half_sum(a, T, T + 2)
        half_sum(a, T + 1, T + 2)
        a(f"s_lshl_b32 s{sT0}, s34, 14")
        a(f"s_lshl_b32 s{sT1}, s{sRt}, 8")
        a(f"s_add_u32 s{sT0}, s{sT0}, s{sT1}")
        a(f"s_add_u32 s{sT0}, s{sT0}, {ST}")
        a(f"v_lshlrev_b32 v{T + 2}, 3, v{vLane}")
        a("s_mov_b32 exec_hi, 0")
        a.vm(f"buffer_store_dwordx2 {vr(T, 2)}, v{T + 2}, {sr(sWS, 4)}, s{sT0} offen")
    else:
        for g in range(4):
            a.vm(f"buffer_store_dwordx2 {vr(RES + 2 * g, 2)}, v{vRes}, {sr(sIO, 4)}, s35 offen offset:{g * 16}")
    stamp(a)
    stamp_flush(a, 2 if k3 else 4, sWS, sWave)
    kernel_end(a, name)
    return name, a.text(), descriptor(name, A0 + 4 * NCH, 16), (256, 256, RED + 16384)


def gen_k4():
    name = "k4_glu_kernel"
    a = Asm()
    kernel_begin(a, name, 240)
    sG, sU, sWS = 12, 16, 20
    sWave, sRb, sCg, sRt = 24, 25, 26, 27
    sT0, sT1, sWL, sAct = 30, 31, 32, 33
    sMask, sL2e = 40, 41
    vLane, vL16 = 1, 2
    vWoff = [3, 4, 5]
    vWrd = [6, 7, 8]
    vS, vQ, vR, vNB = 9, 10, 11, 12
    vT = 16
    X0 = 32
    ACC = 160
    a("s_load_dwordx4 s[4:7], s[0:1], 32")
    a("s_load_dwordx2 s[8:9], s[0:1], 72")
    a("s_load_dwordx2 s[10:11], s[0:1], 48")
    a(f"v_and_b32 v{vLane}, 63, v0")
    a(f"v_lshrrev_b32 v{vT}, 6, v0")
    a(f"v_lshlrev_b32 v{vL16}, 4, v{vLane}")
    a(f"v_readfirstlane_b32 s{sWave}, v{vT}")
    a(f"s_and_b32 s{sT0}, s2, 7")
    a(f"s_lshl_b32 s{sT0}, s{sT0}, 1")
    a(f"s_bfe_u32 s{sT1}, s2, 0x10003")
    a(f"s_add_u32 s{sRb}, s{sT0}, s{sT1}")
    a(f"s_lshr_b32 s{sCg}, s2, 4")
    a(f"s_lshl_b32 s{sRt}, s{sRb}, 2")
    a(f"s_add_u32 s{sRt}, s{sRt}, s{sWave}")
    a(f"s_mov_b32 s{sMask}, 0xffff0000")
    a(f"s_mov_b32 s{sL2e}, {hx(f2u(LOG2E))}")
    a(f"s_mul_i32 s{sT0}, s{sWave}, {16 * 2752}")
    a(f"s_mul_i32 s{sT1}, s{sCg}, 192")
    a(f"s_add_u32 s{sT0}, s{sT0}, s{sT1}")
    for i in range(3):
        a(f"v_add_u32 v{vT}, {64 * i}, v{vLane}")
        a(f"v_mul_u32_u24 v{vT + 1}, 171, v{vT}")
        a(f"v_lshrrev_b32 v{vT + 1}, 11, v{vT + 1}")
        a(f"v_mul_u32_u24 v{vT + 2}, {2752 - 192}, v{vT + 1}")
        a(f"v_lshl_add_u32 v{vT + 2}, v{vLane}, 4, v{vT + 2}")
        a(f"v_add_u32 v{vWoff[i]}, s{sT0}, v{vT + 2}")
    a(f"s_mul_i32 s{sWL}, s{sWave}, 6144")
    a(f"s_lshl_b32 s{sAct}, s{sRt}, 15")
    a(f"s_add_u32 s{sAct}, s{sAct}, {HF}")
    a(f"v_lshrrev_b32 v{vT + 3}, 5, v{vLane}")
    a(f"v_and_b32 v{vT + 4}, 31, v{vLane}")
    a(f"v_lshlrev_b32 v{vT + 4}, 3, v{vT + 4}")
    a(f"v_lshl_add_u32 v{vT + 4}, v{vT + 3}, 17, v{vT + 4}")
    a(f"s_lshl_b32 s34, s{sRt}, 8")
    a(f"s_add_u32 s34, s34, {ST}")
    a("s_waitcnt lgkmcnt(0)")
    srd(a, sG, 4, 512 * 2752)
    srd(a, sU, 6, 512 * 2752)
    srd(a, sWS, 8, WS_SIZE)
    for i in range(8):
        a(f"s_add_u32 s{sT0}, s34, {i * 16384}")
        stok = a.vm(f"buffer_load_dwordx2 {vr(ACC + 2 * i, 2)}, v{vT + 4}, {sr(sWS, 4)}, s{sT0} offen")
    SLOT = 24576
    NSLOT = 6
    dr = Drip(a)

    def issue(st):
        for i in range(4):
            dr.add(st, [f"s_add_u32 s43, s{sAct}, {st * 4096}"] if i == 0 else [],
                   f"buffer_load_dwordx4 {vr(X0 + 16 * st + 4 * i, 4)}, v{vL16}, {sr(sWS, 4)}, s43 offen offset:{i * 1024}")
        for mat in range(2):
            for i in range(3):
                pre = [f"s_add_u32 m0, s{sWL}, {(st % NSLOT) * SLOT + mat * 3072}",
                       f"s_mov_b32 s42, {st * 64 * 2752}"] if i == 0 else []
                dr.add(st, pre, f"buffer_load_dwordx4 v{vWoff[i]}, {sr(sG if mat == 0 else sU, 4)}, s42 offen offset:{i * 1024} lds")

    for st in range(NSLOT):
        issue(st)
    dr.emit(10 * OPT["k4_d"])
    vPf, vPd = 13, 14
    srd(a, 44, 10, 1376 * 1024)
    a(f"s_lshr_b32 s{sT0}, s2, 3")
    a(f"s_lshl_b32 s{sT0}, s{sT0}, 15")
    a(f"v_lshlrev_b32 v{vPf}, 7, v0")
    a(f"v_add_u32 v{vPf}, s{sT0}, v{vPf}")
    a(f"v_add_u32 v15, {120 * 8192}, v{vPf}")
    a(f"v_bfe_u32 v{vT}, v{vLane}, 2, 2")
    a(f"v_lshl_add_u32 v{vT}, v{vT + 3}, 2, v{vT}")
    a(f"v_mul_u32_u24 v{vT}, 192, v{vT}")
    a(f"v_bfe_u32 v{vT + 1}, v{vLane}, 4, 1")
    a(f"v_lshl_add_u32 v{vT}, v{vT + 1}, 5, v{vT}")
    a(f"v_and_b32 v{vT + 1}, 3, v{vLane}")
    a(f"v_lshl_add_u32 v{vWrd[0]}, v{vT + 1}, 3, v{vT}")
    wl = LdsAddr(a, vWrd)
    wl.setup(a)
    stamp(a)
    a.wait(vm=stok)
    stamp(a)
    a(f"v_add_f32 v{vS}, v{ACC}, v{ACC + 2}")
    a(f"v_add_f32 v{vQ}, v{ACC + 1}, v{ACC + 3}")
    for i in range(2, 8):
        a(f"v_add_f32 v{vS}, v{vS}, v{ACC + 2 * i}")
        a(f"v_add_f32 v{vQ}, v{vQ}, v{ACC + 2 * i + 1}")
    half_sum(a, vS, vT)
    half_sum(a, vQ, vT)
    finish_stats(a, vS, vQ, vR, vNB, vT, scale=LOG2E)
    for r in range(96):
        a(f"v_mov_b32 v{ACC + r}, 0")

    def w_reads(s):
        st, ss = divmod(s, 4)
        ops = []
        for u in range(3):
            for mat in range(2):
                for half in range(2):
                    reg, off = wl.at((st % NSLOT) * SLOT + ss * 6144 + mat * 3072 + half * 8 * 192 + u * 64)
                    ops.append(f"ds_read_b64_tr_b16 {ar(24 * (s & 1) + 8 * u + 4 * mat + 2 * half, 2)}, {reg} offset:{off}")
        return ops

    dr.wait(0)
    a("s_barrier")
    stamp(a)
    rt = {}
    for k, op in enumerate(w_reads(0)):
        rt[(0, k // 2)] = a.lg(op)
    for op in normalize_ops(X0, vT, vR, vNB, sMask):
        a(op)
    a("s_nop 0")
    for s in range(32):
        st, ss = divmod(s, 4)
        if s == 16:
            stamp(a)
        rd = []
        if s + 1 < 32:
            if ss == 3:
                a.wait(lg=rt[(s, 5)])
                dr.wait(st + 1)
                a("s_barrier")
                if st + NSLOT < 8:
                    issue(st + NSLOT)
                    if st + NSLOT == 7 and OPT["pf_w"]:
                        dr.add("pf", [], f"buffer_load_dword v{vPd}, v{vPf}, s[44:47], 0 offen")
                        dr.add("pf", [], f"buffer_load_dword v{vPd}, v15, s[44:47], 0 offen")
            rd = w_reads(s + 1)
        wb = 24 * (s & 1)
        xf = vr(X0 + 4 * s, 4)
        mf = [f"v_mfma_f32_32x32x16_bf16 {vr(ACC + 16 * j, 16)}, {ar(wb + 4 * j, 4)}, {xf}, {vr(ACC + 16 * j, 16)}"
              for j in range(6)]
        fill = normalize_ops(X0 + 4 * (s + 1), vT, vR, vNB, sMask) if s + 1 < 32 else []
        seq = interleave(mf[:5], fill) + [mf[5]]
        k = 0
        j = 0
        for op in seq:
            if op.startswith("v_mfma"):
                a.wait(lg=rt[(s, j)])
            a(op)
            if op.startswith("v_mfma"):
                for _ in range(3):
                    if k < len(rd):
                        rt[(s + 1, k // 2)] = a.lg(rd[k])
                        k += 1
                if j in (3, 4, 5):
                    dr.emit()
                j += 1
    a(f"s_mul_i32 s34, s{sRt}, {86 * 1024}")
    a(f"s_mul_i32 s35, s{sCg}, {6 * 1024}")
    a("s_add_u32 s34, s34, s35")
    a(f"s_add_u32 s34, s34, {GF}")
    a("s_nop 7")
    stamp(a)
    for u in range(3):
        G, U = ACC + 32 * u, ACC + 32 * u + 16
        if u == 1:
            a(f"s_cmp_eq_u32 s{sCg}, 14")
            a(f"s_cbranch_scc1 L_{name}_done")
        for r in range(16):
            a(f"v_exp_f32 v{G + r}, -v{G + r}")
        for r in range(16):
            a(f"v_fma_f32 v{G + r}, v{G + r}, s{sL2e}, s{sL2e}")
        for r in range(16):
            a(f"v_rcp_f32 v{G + r}, v{G + r}")
        for r in range(16):
            a(f"v_mul_f32 v{U + r}, v{U + r}, v{G + r}")
        for i in range(8):
            a(f"v_cvt_pk_bf16_f32 v{X0 + 8 * u + i}, v{U + 2 * i}, v{U + 2 * i + 1}")
        a(f"s_add_u32 s35, s34, {u * 2048}")
        a.vm(f"buffer_store_dwordx4 {vr(X0 + 8 * u, 4)}, v{vL16}, {sr(sWS, 4)}, s35 offen")
        a.vm(f"buffer_store_dwordx4 {vr(X0 + 8 * u + 4, 4)}, v{vL16}, {sr(sWS, 4)}, s35 offen offset:1024")
    stamp(a)
    stamp_flush(a, 3, sWS, sWave)
    kernel_end(a, name)
    return name, a.text(), descriptor(name, 256, 48), (240, 256, NSLOT * SLOT)


def build():
    ks = [gen_k1(), gen_k2(), gen_res("k3"), gen_k4(), gen_res("k5")]
    ref = open(f"cdna_kernels/{NAME}.s.ref").read().split("\n")
    head = [l for l in ref if l.startswith(";") and "@launch" not in l and "Override launch" not in l
            and "grid=ceil" not in l]
    out = "\n".join(head) + "\n"
    for name, _, _, (g, b, lds) in ks:
        out += f"; @launch kernel={name} grid=({g},1,1) block=({b},1,1) lds={lds}\n"
    out += '.amdgcn_target "amdgcn-amd-amdhsa--gfx950"\n.text\n'
    bad = 0
    for name, text, _, _ in ks:
        bad += check_hazards(text, name)
        out += text
    out += "L_code_end:\n"
    out += '.section .rodata,"a"\n'
    for name, _, desc, _ in ks:
        out += ".p2align 6\n" + desc
    if bad:
        print("hazards:", bad)
    return out


if __name__ == "__main__":
    path = sys.argv[1] if len(sys.argv) > 1 else f"cdna_kernels/{NAME}.s"
    for arg in sys.argv[2:]:
        if arg == "stamps":
            STAMPS = True
        elif arg == "dbgt":
            DBGT = True
        else:
            k_, v_ = arg.split("=")
            OPT[k_] = int(v_)
    open(path, "w").write(build())
    print("wrote", path)
```

```python
import math
import struct
import sys

from asmlib import Asm, check_hazards

NAME = "sequential_preLN__mha_block__glu_gated_glu__prompt"

MB = 1 << 20
QF = 0
KVF = 2 * MB
OF = 6 * MB
HF = 8 * MB
ST = 10 * MB
GF = 12 * MB
WS_SIZE = 32 * MB

LOG2E = 1.4426950408889634
OPT = dict(pf_code=True, pf_w=True, k1_pre=2, k1_drip=0, k4_first=1, k4_prio=1, k3_d=2, k5_d=3, k4_d=3, k4_g=1, k1_d=3, k1_g=1, k1_touch=1, k1_t=1, k4_pf=1)


def f2u(x):
    return struct.unpack("<I", struct.pack("<f", x))[0]


def hx(x):
    return "0x%08x" % (x & 0xFFFFFFFF)


def vr(b, n):
    return f"v[{b}:{b + n - 1}]"


def ar(b, n):
    return f"a[{b}:{b + n - 1}]"


def sr(b, n):
    return f"s[{b}:{b + n - 1}]"


def srd(a, d, base, size):
    a(f"s_mov_b32 s{d}, s{base}")
    a(f"s_mov_b32 s{d + 1}, s{base + 1}")
    a(f"s_mov_b32 s{d + 2}, {hx(size)}")
    a(f"s_mov_b32 s{d + 3}, 0x00020000")


def interleave(main, fill, lead=0):
    out = []
    fill = list(fill)
    out += fill[:lead]
    fill = fill[lead:]
    n = len(main)
    per = len(fill) / n if n else 0
    used = 0
    for i, m in enumerate(main):
        out.append(m)
        upto = int(round(per * (i + 1)))
        out += fill[used:upto]
        used = upto
    out += fill[used:]
    return out


def kernel_begin(a, name, nwg):
    a.raw(f".globl {name}")
    a.raw(".p2align 8")
    a.raw(f".type {name},@function")
    a.label(name)
    a(f"s_cmp_ge_u32 s2, {nwg}")
    a(f"s_cbranch_scc1 L_{name}_done")
    dbgt_begin(a)
    stamp(a, real=True)
    stamp(a)


STAMPS = False
SBASE = 60
DBGO = 20 * MB


def stamp(a, real=False):
    if not STAMPS:
        return
    i = getattr(a, "nstamp", 0)
    a.nstamp = i + 1
    assert i < 16
    a(f"{'s_memrealtime' if real else 's_memtime'} s[{SBASE + 2 * i}:{SBASE + 2 * i + 1}]")
    a.wait_all(vm=False)


def stamp_flush(a, kidx, sWS, sWave):
    dbgt_end(a, kidx, sWS)
    if not STAMPS:
        return
    a.wait_all()
    stamp(a)
    stamp(a, real=True)
    a("s_mov_b64 exec, -1")
    a("s_lshl_b32 s58, s2, 3")
    a(f"s_add_u32 s58, s58, s{sWave}")
    a("s_lshl_b32 s58, s58, 6")
    a(f"s_add_u32 s58, s58, {DBGO + kidx * MB}")
    a("v_mov_b32 v1, 0")
    for i in range(a.nstamp):
        a(f"v_mov_b32 v2, s{SBASE + 2 * i}")
        a(f"buffer_store_dword v2, v1, s[{sWS}:{sWS + 3}], s58 offen offset:{4 * i}")
    a.wait_all()


DBGT = False


def dbgt_begin(a):
    if not DBGT:
        return
    a("s_memrealtime s[90:91]")
    a("s_load_dwordx2 s[92:93], s[0:1], 64")


def dbgt_end(a, kidx, sWS):
    if not DBGT:
        return
    a.wait_all()
    a("s_cmp_lg_u32 s2, 0")
    a(f"s_cbranch_scc1 L_dbgt_{kidx}")
    a("s_memrealtime s[88:89]")
    a.wait_all()
    a("s_mov_b64 exec, -1")
    a("v_cmp_eq_u32 vcc, 0, v0")
    a("s_nop 4")
    a("s_and_b64 exec, exec, vcc")
    a(f"s_cbranch_execz L_dbgt_{kidx}")
    a(f"v_mov_b32 v1, {DBGO}")
    a("v_mov_b32 v2, s90")
    a("v_mov_b32 v3, s88")
    a(f"buffer_store_dwordx2 v[2:3], v1, s[{sWS}:{sWS + 3}], 0 offen offset:{8 * kidx}")
    if kidx == 4:
        a(f"buffer_load_dwordx4 v[4:7], v1, s[{sWS}:{sWS + 3}], 0 offen")
        a(f"buffer_load_dwordx4 v[8:11], v1, s[{sWS}:{sWS + 3}], 0 offen offset:16")
        a("s_mov_b32 s94, 256")
        a("s_mov_b32 s95, 0x00020000")
        a("v_mov_b32 v1, 0")
        a.wait_all()
        for r in (5, 6, 7, 8, 9, 10, 11, 2, 3):
            a(f"v_sub_u32 v{r}, v{r}, v4")
        a("buffer_store_dwordx4 v[4:7], v1, s[92:95], 0 offen")
        a("buffer_store_dwordx4 v[8:11], v1, s[92:95], 0 offen offset:16")
        a("buffer_store_dwordx2 v[2:3], v1, s[92:95], 0 offen offset:32")
    a.wait_all()
    a.label(f"L_dbgt_{kidx}")


def kernel_end(a, name):
    a.label(f"L_{name}_done")
    a("s_endpgm")


def descriptor(name, vgpr, agpr, sgpr=96):
    acc = (vgpr + 3) // 4 * 4
    return f""".amdhsa_kernel {name}
  .amdhsa_next_free_vgpr {acc + agpr}
  .amdhsa_next_free_sgpr {sgpr}
  .amdhsa_accum_offset {acc}
  .amdhsa_group_segment_fixed_size 0
  .amdhsa_kernarg_size 80
  .amdhsa_user_sgpr_count 2
  .amdhsa_user_sgpr_kernarg_segment_ptr 1
  .amdhsa_system_sgpr_workgroup_id_x 1
.end_amdhsa_kernel
"""


def normalize_ops(x, t, vR, vNB, sMask):
    ops = []
    for i in range(4):
        ops.append(f"v_lshlrev_b32 v{t + 2 * i}, 16, v{x + i}")
        ops.append(f"v_and_b32 v{t + 2 * i + 1}, s{sMask}, v{x + i}")
    for i in range(8):
        ops.append(f"v_fma_f32 v{t + i}, v{t + i}, v{vR}, v{vNB}")
    for i in range(4):
        ops.append(f"v_cvt_pk_bf16_f32 v{x + i}, v{t + 2 * i}, v{t + 2 * i + 1}")
    return ops


def half_sum(a, r, t):
    a(f"v_mov_b32 v{t}, v{r}")
    a("s_nop 1")
    a(f"v_permlane32_swap_b32 v{r}, v{t}")
    a("s_nop 1")
    a(f"v_add_f32 v{r}, v{r}, v{t}")


def finish_stats(a, vS, vQ, vR, vNB, t, scale=1.0):
    a(f"v_mul_f32 v{vS}, {hx(f2u(1.0 / 512))}, v{vS}")
    a(f"v_mul_f32 v{vQ}, {hx(f2u(1.0 / 512))}, v{vQ}")
    a(f"v_fma_f32 v{t}, -v{vS}, v{vS}, v{vQ}")
    a(f"v_max_f32 v{t}, 0, v{t}")
    a(f"v_add_f32 v{t}, {hx(f2u(1e-5))}, v{t}")
    a(f"v_rsq_f32 v{vR}, v{t}")
    a("s_nop 0")
    if scale != 1.0:
        a(f"v_mul_f32 v{vR}, {hx(f2u(scale))}, v{vR}")
    a(f"v_mul_f32 v{vNB}, -v{vS}, v{vR}")


class Drip:
    def __init__(self, a):
        self.a = a
        self.q = []
        self.tok = {}

    def add(self, key, pre, ins):
        self.q.append((key, pre, ins))

    def emit(self, n=1):
        for _ in range(n):
            if not self.q:
                return
            key, pre, ins = self.q.pop(0)
            for p in pre:
                self.a(p)
            self.tok[key] = self.a.vm(ins)

    def through(self, key):
        while any(k == key for k, _, _ in self.q):
            self.emit()

    def wait(self, key):
        self.through(key)
        self.a.wait(vm=self.tok[key])


def code_prefetch(a, label, sPC, vOff, vDst, uid):
    a(f"s_getpc_b64 s[{sPC}:{sPC + 1}]")
    a.label(f"L_pc_{uid}")
    a(f"s_add_u32 s{sPC}, s{sPC}, {label}-L_pc_{uid}")
    a(f"s_addc_u32 s{sPC + 1}, s{sPC + 1}, ({label}-L_pc_{uid})>>32")
    a(f"v_min_u32 v{vOff}, L_code_end-{label}-4, v{vOff}")
    return a.vm(f"global_load_dword v{vDst}, v{vOff}, s[{sPC}:{sPC + 1}]")


class LdsAddr:
    def __init__(self, a, regs):
        self.regs = regs

    def setup(self, a):
        for j in range(1, len(self.regs)):
            a(f"v_add_u32 v{self.regs[j]}, {hx(j * 65536)}, v{self.regs[0]}")

    def at(self, off):
        return f"v{self.regs[off >> 16]}", off & 0xFFFF


def fork(a):
    b = Asm()
    b.vm_issued, b.vm_done, b.lg_issued, b.lg_done = a.vm_issued, a.vm_done, a.lg_issued, a.lg_done
    b.nstamp = getattr(a, "nstamp", 0)
    return b


def split_hi_lo(a, x, hi, lo, t):
    a(f"v_cvt_pk_bf16_f32 v{hi}, v{x}, v{x}")
    a(f"v_lshlrev_b32 v{t}, 16, v{hi}")
    a(f"v_sub_f32 v{lo}, v{x}, v{t}")


def gen_k1():
    name = "k1_qkv_kernel"
    a = Asm()
    kernel_begin(a, name, 256)
    sX, sW, sWS = 12, 16, 20
    sWave, sWr, sWc, sCg, sRb, sHw = 24, 25, 26, 27, 28, 29
    sT0, sT1, sWL = 30, 31, 32
    sOnes = 41
    vLane, vL16 = 1, 2
    vT = 8
    NSLOT, SLOT, WBASE, NST = 7, 12288, 65536, 16
    CSO = WBASE + NSLOT * SLOT
    XEO = CSO + 2048
    RSO = XEO + 2048
    a("s_load_dwordx4 s[4:7], s[0:1], 0")
    a("s_load_dwordx2 s[8:9], s[0:1], 72")
    a(f"v_and_b32 v{vLane}, 63, v0")
    a(f"v_lshrrev_b32 v7, 6, v0")
    a(f"v_lshlrev_b32 v{vL16}, 4, v{vLane}")
    a(f"v_readfirstlane_b32 s{sWave}, v7")
    a(f"s_and_b32 s{sT0}, s2, 7")
    a(f"s_lshl_b32 s{sT0}, s{sT0}, 2")
    a(f"s_bfe_u32 s{sT1}, s2, 0x20003")
    a(f"s_add_u32 s{sRb}, s{sT0}, s{sT1}")
    a(f"s_lshr_b32 s{sCg}, s2, 5")
    a(f"s_and_b32 s{sHw}, s{sWave}, 3")
    a(f"s_cmp_ge_u32 s{sWave}, 4")
    a(f"s_cbranch_scc1 L_k1_helper")

    h = fork(a)
    h.label("L_k1_helper")
    vWoff, vXg, vSr, vXe, vRs = 3, 4, 6, 20, 21
    vS, vQ, vM, vR = 22, 23, 24, 25
    XB = 32
    h(f"v_lshrrev_b32 v{vT}, 3, v{vLane}")
    h(f"v_and_b32 v{vT + 1}, 7, v{vLane}")
    h(f"v_lshrrev_b32 v{vT + 2}, 1, v{vT}")
    h(f"v_xor_b32 v{vT + 2}, v{vT + 2}, v{vT + 1}")
    h(f"v_lshlrev_b32 v{vT + 2}, 4, v{vT + 2}")
    h(f"v_lshl_add_u32 v{vXg}, v{vT}, 10, v{vT + 2}")
    h(f"v_xor_b32 v{vXg + 1}, 64, v{vXg}")
    h(f"v_add_u32 v{vXg + 1}, {8 * 1024 - 1024}, v{vXg + 1}")
    h(f"s_lshl_b32 s34, s{sRb}, 16")
    h(f"s_lshl_b32 s{sT0}, s{sHw}, 14")
    h(f"s_add_u32 s34, s34, s{sT0}")
    h(f"s_lshl_b32 s36, s{sHw}, 11")
    h(f"v_lshrrev_b32 v{vT + 2}, 2, v{vLane}")
    h(f"v_and_b32 v{vT + 2}, 4, v{vT + 2}")
    h(f"v_xor_b32 v{vT + 2}, v{vT + 2}, v{vT + 1}")
    h(f"v_lshlrev_b32 v{vT + 2}, 4, v{vT + 2}")
    h(f"v_mul_u32_u24 v{vT + 3}, 3072, v{vT}")
    h(f"s_mul_i32 s{sT0}, s{sHw}, {8 * 3072}")
    h(f"s_lshl_b32 s{sT1}, s{sCg}, 7")
    h(f"s_add_u32 s{sT0}, s{sT0}, s{sT1}")
    h(f"v_add3_u32 v{vWoff}, v{vT + 3}, v{vT + 2}, s{sT0}")
    h(f"s_mul_i32 s{sWL}, s{sHw}, 3072")
    h("s_waitcnt lgkmcnt(0)")
    srd(h, sX, 4, 2048 * 1024)
    srd(h, sW, 6, 512 * 3072)
    dr = Drip(h)

    def x_dma(c, key):
        dr.add(key, [f"s_add_u32 m0, s36, {c * 8192}", f"s_add_u32 s43, s34, {c * 128}"],
               f"buffer_load_dwordx4 v{vXg}, {sr(sX, 4)}, s43 offen lds")
        dr.add(key, [], f"buffer_load_dwordx4 v{vXg + 1}, {sr(sX, 4)}, s43 offen offset:1024 lds")

    def issue(st):
        if st < 8:
            x_dma(st, st)
        for seg in range(3):
            pre = [f"s_add_u32 m0, s{sWL}, {WBASE + (st % NSLOT) * SLOT}", f"s_mov_b32 s42, {32 * st * 3072}"] if seg == 0 else []
            dr.add(st, pre, f"buffer_load_dwordx4 v{vWoff}, {sr(sW, 4)}, s42 offen offset:{seg * 1024} lds")

    for st in range(NSLOT):
        issue(st)
    AHEAD = OPT["k1_d"]
    dr.emit(5 * OPT["k1_t"])
    if OPT["k1_touch"]:
        h(f"s_lshl_b32 s{sT0}, s2, 2")
        h(f"s_add_u32 s{sT0}, s{sT0}, s{sHw}")
        h(f"s_mul_i32 s{sT1}, s{sT0}, 1536")
        h(f"s_lshl_b32 s{sT0}, s{sT0}, 11")
        h(f"v_lshlrev_b32 v30, 7, v{vLane}")
        h("s_mov_b64 exec, 0xfff")
        h.vm(f"buffer_load_dword v31, v30, {sr(sW, 4)}, s{sT1} offen")
        h("s_mov_b64 exec, 0xffff")
        h.vm(f"buffer_load_dword v31, v30, {sr(sX, 4)}, s{sT0} offen")
        h("s_mov_b64 exec, -1")
    dr.emit(5 * (AHEAD - OPT["k1_t"]))
    srd(h, sWS, 8, WS_SIZE)
    h(f"s_mov_b32 s{sOnes}, 0x3f803f80")
    h(f"v_lshrrev_b32 v{vT}, 2, v{vLane}")
    h(f"v_and_b32 v{vT + 1}, 3, v{vLane}")
    h(f"v_lshlrev_b32 v{vT + 2}, 7, v{vT}")
    h(f"v_lshl_add_u32 v{vT + 2}, v{vT + 1}, 4, v{vT + 2}")
    h(f"v_bfe_u32 v{vT + 3}, v{vLane}, 3, 1")
    h(f"v_lshl_add_u32 v{vT + 2}, v{vT + 3}, 6, v{vT + 2}")
    h(f"v_add_u32 v{vSr}, s36, v{vT + 2}")
    h(f"v_xor_b32 v{vSr + 1}, 64, v{vSr}")
    h(f"s_lshl_b32 s{sT0}, s{sHw}, 4")
    h(f"v_add_u32 v{vT}, s{sT0}, v{vT}")
    h(f"v_lshlrev_b32 v{vRs}, 2, v{vT}")
    h(f"v_add_u32 v{vRs}, {RSO}, v{vRs}")
    h(f"v_and_b32 v{vT + 2}, 31, v{vT}")
    h(f"v_lshl_add_u32 v{vT + 2}, v{vT + 1}, 5, v{vT + 2}")
    h(f"v_lshrrev_b32 v{vT + 3}, 5, v{vT}")
    h(f"v_lshl_add_u32 v{vT + 2}, v{vT + 3}, 6, v{vT + 2}")
    h(f"v_lshlrev_b32 v{vXe}, 4, v{vT + 2}")
    h(f"v_add_u32 v{vXe}, {XEO}, v{vXe}")
    h(f"v_mov_b32 v{vS}, 0")
    h(f"v_mov_b32 v{vQ}, 0")
    stamp(h)
    st_tok = {}
    for st in range(NST):
        dr.wait(st)
        if st == 12:
            h.wait_all(vm=False)
        h("s_barrier")
        if st in (0, 2, 4, 6, 8, 10, 12, 14, 15):
            stamp(h)
        if st < 8:
            b = XB + 8 * (st & 1)
            h.lg(f"ds_read_b128 {vr(b, 4)}, v{vSr} offset:{st * 8192}")
            st_tok[st] = h.lg(f"ds_read_b128 {vr(b + 4, 4)}, v{vSr + 1} offset:{st * 8192}")
        if st >= 1 and st + NSLOT - 1 < NST:
            issue(st + NSLOT - 1)
        tgt = min(NST - 1, st + AHEAD + min(st + 1, OPT["k1_g"]))
        while dr.q and dr.q[0][0] <= tgt:
            dr.emit()
        if st < 8:
            h.wait(lg=st_tok[st])
            b = XB + 8 * (st & 1)
            for r in range(8):
                h(f"v_dot2_f32_bf16 v{vS}, v{b + r}, s{sOnes}, v{vS}")
                h(f"v_dot2_f32_bf16 v{vQ}, v{b + r}, v{b + r}, v{vQ}")
        if st == 8:
            for pat in ("quad_perm:[1,0,3,2]", "quad_perm:[2,3,0,1]"):
                h(f"v_add_f32_dpp v{vS}, v{vS}, v{vS} {pat} row_mask:0xf bank_mask:0xf")
                h(f"v_add_f32_dpp v{vQ}, v{vQ}, v{vQ} {pat} row_mask:0xf bank_mask:0xf")
                h("s_nop 0")
            h(f"v_mul_f32 v{vM}, {hx(f2u(-1.0 / 512))}, v{vS}")
            h(f"v_mul_f32 v{vQ}, {hx(f2u(1.0 / 512))}, v{vQ}")
            h(f"v_fma_f32 v{vQ}, -v{vM}, v{vM}, v{vQ}")
            h(f"v_max_f32 v{vQ}, 0, v{vQ}")
            h(f"v_add_f32 v{vQ}, {hx(f2u(1e-5))}, v{vQ}")
        if st == 9:
            h(f"v_rsq_f32 v{vR}, v{vQ}")
            split_hi_lo(h, vM, XB, vT, vT + 1)
            h(f"v_cvt_pk_bf16_f32 v{XB + 1}, v{vT}, 0")
            h(f"v_mov_b32 v{XB + 2}, 0")
            h(f"v_mov_b32 v{XB + 3}, 0")
        if st == 10:
            h("s_mov_b32 exec_lo, 0x33333333")
            h("s_mov_b32 exec_hi, 0x33333333")
            h.lg(f"ds_write_b128 v{vXe}, {vr(XB, 4)}")
            h.lg(f"ds_write_b32 v{vRs}, v{vR}")
            h("s_mov_b64 exec, -1")
    h("s_barrier")
    stamp_flush(h, 0, sWS, sWave) if STAMPS else None
    h("s_endpgm")

    vXrd = [3, 4, 5, 6]
    vKoff, vVoff = 20, 21
    vWrd = [22, 23, 24]
    vCw, vCr, vEr, vRl, vRr = 25, 26, 27, 28, 29
    XF = [32, 36]
    WF = [40, 52]
    CS, ONES, XE = 64, 76, 80
    RV = 84
    accQ, accK, accV = 104, 120, 136
    a(f"v_lshlrev_b32 v30, 7, v{vLane}")
    a(f"s_cmp_lg_u32 s{sWave}, 2")
    a("s_cbranch_scc1 L_k1_nocode")
    if OPT["pf_code"]:
        a(f"s_lshr_b32 s{sT0}, s2, 3")
        a(f"s_lshl_b32 s{sT0}, s{sT0}, 11")
        a(f"v_add_u32 v30, s{sT0}, v30")
        a("s_mov_b64 exec, 0xffff")
        code_prefetch(a, name, 44, 30, 31, "k1")
        a("s_mov_b64 exec, -1")
    a.label("L_k1_nocode")
    a(f"s_lshr_b32 s{sWr}, s{sHw}, 1")
    a(f"s_and_b32 s{sWc}, s{sHw}, 1")
    a(f"v_and_b32 v{vT}, 31, v{vLane}")
    a(f"v_lshrrev_b32 v{vT + 1}, 5, v{vLane}")
    a(f"v_bfe_u32 v{vT + 2}, v{vLane}, 1, 3")
    a(f"v_xor_b32 v{vT + 2}, v{vT + 2}, v{vT + 1}")
    a(f"v_lshlrev_b32 v{vT + 2}, 4, v{vT + 2}")
    a(f"v_lshl_add_u32 v{vT + 2}, v{vT}, 7, v{vT + 2}")
    a(f"s_lshl_b32 s{sT0}, s{sWr}, 12")
    a(f"v_add_u32 v{vXrd[0]}, s{sT0}, v{vT + 2}")
    for ss in range(1, 4):
        a(f"v_xor_b32 v{vXrd[ss]}, {ss * 32}, v{vXrd[0]}")
    a(f"v_mul_u32_u24 v{vT + 2}, 3072, v{vT + 1}")
    a(f"v_bfe_u32 v{vT + 3}, v{vLane}, 2, 2")
    a(f"v_lshl_add_u32 v{vT + 2}, v{vT + 3}, 7, v{vT + 2}")
    a(f"v_lshrrev_b32 v{vT + 3}, 1, v{vT + 3}")
    a(f"v_xor_b32 v{vT + 3}, s{sWc}, v{vT + 3}")
    a(f"v_lshl_add_u32 v{vT + 2}, v{vT + 3}, 6, v{vT + 2}")
    a(f"v_bfe_u32 v{vT + 4}, v{vLane}, 4, 1")
    a(f"v_lshl_add_u32 v{vT + 2}, v{vT + 4}, 5, v{vT + 2}")
    a(f"v_and_b32 v{vT + 3}, 3, v{vLane}")
    a(f"v_lshl_add_u32 v{vWrd[0]}, v{vT + 3}, 3, v{vT + 2}")
    wl = LdsAddr(a, vWrd)
    wl.setup(a)
    a(f"v_xor_b32 v{vT + 2}, v{vT + 4}, v{vLane}")
    a(f"v_and_b32 v{vT + 2}, 1, v{vT + 2}")
    a(f"v_cmp_eq_u32 vcc, 0, v{vT + 2}")
    a(f"v_mov_b32 v{vT + 2}, 0x3f803f80")
    a("s_nop 0")
    for r in range(4):
        a(f"v_cndmask_b32 v{ONES + r}, 0, v{vT + 2}, vcc")
    a(f"s_lshl_b32 s{sT0}, s{sWc}, 1")
    a(f"s_add_u32 s{sT1}, s{sT0}, s{sWr}")
    a(f"s_mul_i32 s{sT1}, s{sT1}, 384")
    a(f"s_add_u32 s{sT1}, s{sT1}, {CSO}")
    a(f"v_and_b32 v{vT + 2}, 1, v{vLane}")
    a(f"v_lshlrev_b32 v{vT + 2}, 6, v{vT + 2}")
    a(f"v_and_b32 v{vT + 3}, 48, v{vLane}")
    a(f"v_add3_u32 v{vCw}, v{vT + 2}, v{vT + 3}, s{sT1}")
    a(f"s_mul_i32 s{sT0}, s{sT0}, 384")
    a(f"s_add_u32 s{sT0}, s{sT0}, {CSO}")
    a(f"v_mul_u32_u24 v{vT + 2}, 384, v{vT + 1}")
    a(f"v_lshl_add_u32 v{vT + 2}, v{vT}, 2, v{vT + 2}")
    a(f"v_add_u32 v{vCr}, s{sT0}, v{vT + 2}")
    a(f"s_lshl_b32 s{sT0}, s{sWr}, 10")
    a(f"s_add_u32 s{sT0}, s{sT0}, {XEO}")
    a(f"v_add_u32 v{vEr}, s{sT0}, v{vL16}")
    a(f"s_lshl_b32 s{sT0}, s{sWr}, 7")
    a(f"s_add_u32 s{sT0}, s{sT0}, {RSO}")
    a(f"v_lshl_add_u32 v{vRl}, v{vT}, 2, s{sT0}")
    a(f"v_lshl_add_u32 v{vRr}, v{vT + 1}, 4, s{sT0}")
    a(f"v_and_b32 v{vT + 2}, 0x33, v{vLane}")
    a(f"v_bfe_u32 v{vT + 3}, v{vLane}, 2, 1")
    a(f"v_lshl_or_b32 v{vT + 2}, v{vT + 3}, 3, v{vT + 2}")
    a(f"v_bfe_u32 v{vT + 3}, v{vLane}, 3, 1")
    a(f"v_lshl_or_b32 v{vT + 2}, v{vT + 3}, 2, v{vT + 2}")
    a(f"v_lshlrev_b32 v{vKoff}, 4, v{vT + 2}")
    a(f"v_lshlrev_b32 v{vT + 2}, 17, v{vT + 4}")
    a(f"v_lshl_add_u32 v{vT + 2}, v{vT + 1}, 8, v{vT + 2}")
    a(f"v_and_b32 v{vT + 3}, 15, v{vLane}")
    a(f"v_lshl_add_u32 v{vVoff}, v{vT + 3}, 4, v{vT + 2}")
    a(f"s_lshl_b32 s{sT0}, s{sCg}, 2")
    a(f"s_lshl_b32 s{sT1}, s{sWc}, 1")
    a(f"s_add_u32 s{sT0}, s{sT0}, s{sT1}")
    a(f"s_lshl_b32 s{sT1}, s{sRb}, 1")
    a(f"s_add_u32 s{sT1}, s{sT1}, s{sWr}")
    a(f"s_lshl_b32 s46, s{sT0}, 16")
    a(f"s_lshl_b32 s47, s{sT1}, 10")
    a(f"s_add_u32 s46, s46, s47")
    if QF:
        a(f"s_add_u32 s46, s46, {QF}")
    a(f"s_add_u32 s47, s46, 65536")
    a(f"s_lshl_b32 s36, s{sT0}, 17")
    a(f"s_lshl_b32 s37, s{sT1}, 11")
    a(f"s_add_u32 s36, s36, s37")
    a(f"s_add_u32 s36, s36, {KVF}")
    a(f"s_add_u32 s37, s36, 131072")
    for r in range(12):
        a(f"v_mov_b32 v{CS + r}, 0")
    a("s_waitcnt lgkmcnt(0)")
    srd(a, sWS, 8, WS_SIZE)

    def reads(s):
        st, ss = divmod(s, 2)
        ops = [f"ds_read_b128 {vr(XF[s & 1], 4)}, v{vXrd[s & 3]} offset:{(s >> 2) * 8192}"]
        for seg in range(3):
            for half in range(2):
                reg, off = wl.at(WBASE + (st % NSLOT) * SLOT + ss * 6144 + seg * 1024 + half * 512)
                ops.append(f"ds_read_b64_tr_b16 {vr(WF[s & 1] + 4 * seg + 2 * half, 2)}, {reg} offset:{off}")
        return ops

    rt = {}

    def emit_reads(b, s, lo, hi):
        ops = reads(s)
        for k in range(lo, min(hi, 7)):
            rt[(s, k)] = b.lg(ops[k])

    stamp(a)
    a("s_barrier")
    stamp(a)
    emit_reads(a, 0, 0, 7)
    a(f"s_cmp_eq_u32 s{sWr}, 1")
    a("s_cbranch_scc1 L_k1_odd")
    rt0 = dict(rt)
    odd = fork(a)
    odd.label("L_k1_odd")
    acc = [accQ, accK, accV]

    def mm(b, j, w, x, first=False):
        c = "0" if first else vr(acc[j], 16)
        ops = (vr(w, 4), vr(x, 4)) if j < 2 else (vr(x, 4), vr(w, 4))
        b(f"v_mfma_f32_32x32x16_bf16 {vr(acc[j], 16)}, {ops[0]}, {ops[1]}, {c}")

    def csum(b, s, j):
        b(f"v_mfma_f32_16x16x32_bf16 {vr(CS + 4 * j, 4)}, {vr(WF[s & 1] + 4 * j, 4)}, {vr(ONES, 4)}, {vr(CS + 4 * j, 4)}")

    for par, b in ((0, a), (1, odd)):
        rt.clear()
        rt.update(rt0)
        for s in range(31):
            if s == 16:
                stamp(b)
            if s % 2 == 1:
                b.wait(lg=rt[(s, 6)])
                b("s_barrier")
            for j in range(3):
                b.wait(lg=rt[(s, 2 + 2 * j)])
                if s % 2 == par:
                    csum(b, s, j)
                mm(b, j, WF[s & 1] + 4 * j, XF[s & 1], s == 0)
                emit_reads(b, s + 1, [0, 3, 5][j], [3, 5, 7][j])
            if s == 27:
                b.lg(f"ds_read_b128 {vr(XE, 4)}, v{vEr}")
                b.lg(f"ds_read_b32 v100, v{vRl}")
            if s == 28:
                for g in range(4):
                    b.lg(f"ds_read_b128 {vr(RV + 4 * g, 4)}, v{vRr} offset:{g * 32}")
        b.wait_all(vm=False)
        if par == 1:
            for j in range(3):
                csum(b, 31, j)
    odd("s_branch L_k1_join")
    a.label("L_k1_join")
    mm(a, 0, WF[1], XF[1])
    for j in range(3):
        a(f"v_mov_b32 v{WF[0] + 4 * j + 2}, 0")
        a(f"v_mov_b32 v{WF[0] + 4 * j + 3}, 0")
    a(f"v_mul_f32 v101, {hx(f2u(0.25 * LOG2E))}, v100")
    a("s_mov_b32 exec_lo, 0x00030003")
    a("s_mov_b32 exec_hi, 0x00030003")
    for j in range(3):
        a.lg(f"ds_write_b128 v{vCw}, {vr(CS + 4 * j, 4)} offset:{j * 128}")
    a("s_mov_b64 exec, -1")
    mm(a, 1, WF[1] + 4, XF[1])
    a.wait_all(vm=False)
    a("s_barrier")
    for j in range(3):
        rt[("c", j)] = a.lg(f"ds_read_b32 v{vT + 4 + j}, v{vCr} offset:{j * 128}")
    mm(a, 2, WF[1] + 8, XF[1])
    stamp(a)
    for j in range(3):
        w = WF[0] + 4 * j
        a.wait(lg=rt[("c", j)])
        a(f"v_cvt_pk_bf16_f32 v{w + 1}, v{vT + 4 + j}, 0")
        a(f"v_lshlrev_b32 v{vT}, 16, v{w + 1}")
        a(f"v_sub_f32 v{vT}, v{vT + 4 + j}, v{vT}")
        a(f"v_cvt_pk_bf16_f32 v{w}, v{vT + 4 + j}, v{vT}")
    for j in range(3):
        mm(a, j, WF[0] + 4 * j, XE)
    a("s_nop 9")
    P = 32
    for r in range(0, 16, 2):
        a(f"v_pk_mul_f32 {vr(accQ + r, 2)}, {vr(accQ + r, 2)}, v[100:101] op_sel:[0,1] op_sel_hi:[1,1]")
    for i in range(8):
        a(f"v_cvt_pk_bf16_f32 v{P + i}, v{accQ + 2 * i}, v{accQ + 2 * i + 1}")
    a.vm(f"buffer_store_dwordx4 {vr(P, 4)}, v{vL16}, {sr(sWS, 4)}, s46 offen")
    a.vm(f"buffer_store_dwordx4 {vr(P + 4, 4)}, v{vL16}, {sr(sWS, 4)}, s47 offen")
    for r in range(0, 16, 2):
        a(f"v_pk_mul_f32 {vr(accK + r, 2)}, {vr(accK + r, 2)}, v[100:101] op_sel_hi:[1,0]")
    for i in range(8):
        a(f"v_cvt_pk_bf16_f32 v{P + 8 + i}, v{accK + 2 * i}, v{accK + 2 * i + 1}")
    a.vm(f"buffer_store_dwordx4 {vr(P + 8, 4)}, v{vKoff}, {sr(sWS, 4)}, s36 offen")
    a.vm(f"buffer_store_dwordx4 {vr(P + 12, 4)}, v{vKoff}, {sr(sWS, 4)}, s37 offen")
    for r in range(0, 16, 2):
        a(f"v_pk_mul_f32 {vr(accV + r, 2)}, {vr(accV + r, 2)}, {vr(RV + r, 2)}")
    for i in range(8):
        a(f"v_cvt_pk_bf16_f32 v{P + 16 + i}, v{accV + 2 * i}, v{accV + 2 * i + 1}")
    a.vm(f"buffer_store_dwordx4 {vr(P + 16, 4)}, v{vVoff}, {sr(sWS, 4)}, s36 offen offset:1024")
    a.vm(f"buffer_store_dwordx4 {vr(P + 20, 4)}, v{vVoff}, {sr(sWS, 4)}, s36 offen offset:1536")
    stamp(a)
    stamp_flush(a, 0, sWS, sWave)
    kernel_end(a, name)
    return name, a.text() + odd.text() + h.text(), descriptor(name, 152, 0), (256, 512, RSO + 256)


def gen_k2():
    name = "k2_attn_kernel"
    a = Asm()
    kernel_begin(a, name, 256)
    sWS = 12
    sWave, sHead, sQb, sKh, sQs = 24, 25, 26, 27, 28
    sT0, sT1 = 30, 31
    sVm = 34
    vLane, vL16, vKrd, vVrd, vIdx, vXw, vXr = 1, 2, 3, 4, 5, 6, 7
    Qf = [8, 12]
    Kf = [16, 20]
    Vf = [24, 32]
    S = [48, 64]
    O = [80, 96]
    NEG = 112
    T = 128
    XCH = 131072
    a("s_load_dwordx2 s[8:9], s[0:1], 72")
    a("s_load_dwordx2 s[4:5], s[0:1], 0")
    a("s_load_dwordx2 s[6:7], s[0:1], 16")
    a("s_load_dwordx4 s[48:51], s[0:1], 32")
    a("s_load_dwordx2 s[10:11], s[0:1], 48")
    a(f"v_and_b32 v{vLane}, 63, v0")
    a(f"v_lshrrev_b32 v8, 6, v0")
    a(f"v_lshlrev_b32 v{vL16}, 4, v{vLane}")
    a(f"v_readfirstlane_b32 s{sWave}, v8")
    a(f"s_and_b32 s{sT0}, s2, 7")
    a(f"s_lshl_b32 s{sT0}, s{sT0}, 2")
    a(f"s_lshr_b32 s{sT1}, s2, 6")
    a(f"s_add_u32 s{sHead}, s{sT0}, s{sT1}")
    a(f"s_bfe_u32 s{sQb}, s2, 0x30003")
    a(f"s_lshr_b32 s{sKh}, s{sWave}, 2")
    a(f"s_and_b32 s{sQs}, s{sWave}, 3")
    a(f"s_mov_b32 s{sVm}, 0x0000ffff")
    a(f"s_mov_b32 s{sVm + 1}, 0x0000ffff")
    a(f"s_lshl_b32 s32, s{sKh}, 16")
    a(f"s_lshl_b32 s{sT0}, s{sQs}, 11")
    a(f"s_add_u32 s32, s32, s{sT0}")
    a(f"s_lshl_b32 s33, s{sHead}, 17")
    a(f"s_add_u32 s33, s33, s32")
    a(f"s_add_u32 s33, s33, {KVF}")
    a(f"s_lshl_b32 s36, s{sHead}, 16")
    a(f"s_lshl_b32 s{sT0}, s{sQb}, 13")
    a(f"s_add_u32 s36, s36, s{sT0}")
    a(f"s_lshl_b32 s{sT0}, s{sQs}, 11")
    a(f"s_add_u32 s36, s36, s{sT0}")
    if QF:
        a(f"s_add_u32 s36, s36, {QF}")
    a("s_waitcnt lgkmcnt(0)")
    srd(a, sWS, 8, WS_SIZE)
    a.vm(f"buffer_load_dwordx4 {vr(Qf[0], 4)}, v{vL16}, {sr(sWS, 4)}, s36 offen")
    a.vm(f"buffer_load_dwordx4 {vr(Qf[1], 4)}, v{vL16}, {sr(sWS, 4)}, s36 offen offset:1024")
    dr = Drip(a)
    for c in range(8):
        dr.add(c, [f"s_add_u32 m0, s32, {c * 8192}", f"s_add_u32 s37, s33, {c * 8192}"],
               f"buffer_load_dwordx4 v{vL16}, {sr(sWS, 4)}, s37 offen lds")
        dr.add(c, [], f"buffer_load_dwordx4 v{vL16}, {sr(sWS, 4)}, s37 offen offset:1024 lds")
    dr.emit(4)
    a(f"s_lshl_b32 s{sT0}, s{sKh}, 16")
    a(f"v_add_u32 v{vKrd}, s{sT0}, v{vL16}")
    a(f"v_lshrrev_b32 v{T}, 5, v{vLane}")
    a(f"v_and_b32 v{T + 1}, 15, v{vLane}")
    a(f"v_lshlrev_b32 v{T + 1}, 4, v{T + 1}")
    a(f"v_lshl_add_u32 v{T}, v{T}, 8, v{T + 1}")
    a(f"v_add_u32 v{vVrd}, s{sT0}, v{T}")
    a(f"v_mov_b32 v{vIdx}, 0xdddd")
    a(f"s_mul_i32 s{sT0}, s{sWave}, 2304")
    a(f"s_add_u32 s{sT0}, s{sT0}, {XCH}")
    a(f"v_lshl_add_u32 v{vXw}, v{vLane}, 2, s{sT0}")
    a(f"s_xor_b32 s{sT1}, s{sWave}, 4")
    a(f"s_mul_i32 s{sT0}, s{sT1}, 2304")
    a(f"s_add_u32 s{sT0}, s{sT0}, {XCH}")
    a(f"v_lshl_add_u32 v{vXr}, v{vLane}, 2, s{sT0}")
    for r in range(16):
        a(f"v_mov_b32 v{Vf[0] + r}, 0")
    a("s_mov_b32 exec_lo, 0x00110000")
    a("s_mov_b32 exec_hi, 0x00110000")
    for r in range(16):
        a(f"v_mov_b32 v{Vf[0] + r}, 0x3f803f80")
    a("s_mov_b64 exec, -1")
    vPf, vPd = T + 14, T + 15
    a(f"s_lshr_b32 s{sT0}, s2, 3")
    a(f"s_lshl_b32 s{sT0}, s{sT0}, 16")
    a(f"v_lshlrev_b32 v{vPf}, 7, v0")
    a(f"v_add_u32 v{vPf}, s{sT0}, v{vPf}")
    srd(a, 16, 6, 512 * 1024)
    srd(a, 20, 48, 512 * 2752)
    srd(a, 52, 50, 512 * 2752)
    a(f"s_and_b32 s{sT0}, s2, 7")
    a(f"s_lshl_b32 s{sT0}, s{sT0}, 18")
    a(f"s_add_u32 s4, s4, s{sT0}")
    a("s_addc_u32 s5, s5, 0")
    srd(a, 44, 4, 256 * 1024)
    a(f"s_and_b32 s{sT0}, s2, 7")
    a(f"s_mul_i32 s{sT0}, s{sT0}, {172 * 1024}")
    a(f"s_add_u32 s10, s10, s{sT0}")
    a("s_addc_u32 s11, s11, 0")
    srd(a, 40, 10, 172 * 1024)
    for r in range(32):
        a(f"v_mov_b32 v{O[0] + r}, 0")

    def kv_reads(t):
        b = t & 1
        k = f"ds_read_b128 {vr(Kf[b], 4)}, v{vKrd} offset:{t * 2048}"
        v = [f"ds_read_b128 {vr(Vf[b], 4)}, v{vVrd} offset:{t * 2048 + 1024}",
             f"ds_read_b128 {vr(Vf[b] + 4, 4)}, v{vVrd} offset:{t * 2048 + 1536}"]
        return k, v

    def emit_k(t):
        return a.lg(kv_reads(t)[0])

    def emit_v(t):
        a(f"s_mov_b64 exec, {sr(sVm, 2)}")
        v = kv_reads(t)[1]
        a.lg(v[0])
        tok = a.lg(v[1])
        a("s_mov_b64 exec, -1")
        return tok

    def qk(u):
        t, c = divmod(u, 2)
        return f"v_mfma_f32_32x32x16_bf16 {vr(S[u & 1], 16)}, {vr(Kf[t & 1], 4)}, {vr(Qf[c], 4)}, 0"

    def pv(u, i):
        t, c = divmod(u, 2)
        return (f"v_smfmac_f32_32x32x32_bf16 {vr(O[c], 16)}, {vr(Vf[t & 1] + 4 * i, 4)}, "
                f"{vr(S[u & 1] + 8 * i, 8)}, v{vIdx}")

    stamp(a)
    dr.wait(0)
    a("s_barrier")
    stamp(a)
    ktok, vtok = {}, {}
    ktok[0] = emit_k(0)
    vtok[0] = emit_v(0)
    ktok[1] = emit_k(1)
    a.wait(lg=ktok[0])
    a(qk(0))
    a("s_nop 11")
    NU = 64
    for u in range(NU):
        t, c = divmod(u, 2)
        X = S[u & 1]
        if u in (8, 32):
            stamp(a)
        ex = [f"v_exp_f32 v{X + i}, v{X + i}" for i in range(16)]
        a(ex[0]); a(ex[1])
        if u > 0:
            a(pv(u - 1, 1))
        a(ex[2]); a(ex[3]); a(ex[4])
        if u + 1 < NU:
            if c == 1:
                a.wait(lg=ktok[t + 1])
            a(qk(u + 1))
        if c == 0:
            if t + 1 < 32:
                vtok[t + 1] = emit_v(t + 1)
        else:
            if t + 2 < 32:
                if t + 2 == 4:
                    dr.wait(1)
                    a("s_barrier")
                if t + 2 == 8:
                    dr.wait(7)
                    a("s_barrier")
                    if OPT["pf_w"]:
                        for sq in (16, 44, 20, 52, 40):
                            dr.add("pf", [], f"buffer_load_dword v{vPd}, v{vPf}, {sr(sq, 4)}, 0 offen")
                ktok[t + 2] = emit_k(t + 2)
        for i in range(5, 10):
            a(ex[i])
        dr.emit(2 if u < 8 else 1)
        if u == 24 and OPT["pf_code"]:
            code_prefetch(a, "k3_wo_kernel", 38, vPf, vPd, "k2")
        if c == 0:
            a.wait(lg=vtok[t])
        a(pv(u, 0))
        for i in range(10, 16):
            a(ex[i])
    a("s_nop 1")
    a(pv(NU - 1, 1))
    a("s_nop 15")
    stamp(a)
    a(f"s_cmp_eq_u32 s{sKh}, 0")
    a(f"s_cbranch_scc1 L_k2_keep0")
    for r in range(9):
        a(f"v_swap_b32 v{O[0] + r}, v{O[1] + r}")
    for r in range(4):
        a(f"v_mov_b32 v{Qf[0] + r}, v{Qf[1] + r}")
    a.label("L_k2_keep0")
    for r in range(9):
        a.lg(f"ds_write_b32 v{vXw}, v{O[1] + r} offset:{r * 256}")
    a.wait_all(vm=False)
    a("s_barrier")
    for r in range(9):
        a.lg(f"ds_read_b32 v{T + r}, v{vXr} offset:{r * 256}")
    a.wait_all(vm=False)
    for r in range(9):
        a(f"v_add_f32 v{O[0] + r}, v{O[0] + r}, v{T + r}")
    a(f"v_max3_f32 v{T}, |v{O[0]}|, |v{O[0] + 1}|, |v{O[0] + 2}|")
    a(f"v_max3_f32 v{T + 1}, |v{O[0] + 3}|, |v{O[0] + 4}|, |v{O[0] + 5}|")
    a(f"v_add_f32 v{T + 2}, |v{O[0] + 6}|, |v{O[0] + 7}|")
    a(f"v_add_f32 v{T}, v{T}, v{T + 1}")
    a(f"v_add_f32 v{T}, v{T}, v{T + 2}")
    for r in range(6):
        a(f"v_fma_f32 v{T}, v{O[0] + r}, 0, v{T}")
    a(f"s_mov_b32 s{sT0}, {hx(f2u(2.0 ** 120))}")
    a(f"s_mov_b32 s{sT1}, {hx(f2u(2.0 ** 80))}")
    a(f"v_cmp_gt_f32 s[40:41], s{sT0}, v{T}")
    a(f"v_cmp_gt_f32 s[42:43], s{sT1}, v{O[0] + 8}")
    a(f"s_mov_b32 s{sT1}, {hx(f2u(2.0 ** -80))}")
    a(f"v_cmp_lt_f32 vcc, s{sT1}, v{O[0] + 8}")
    a("s_nop 1")
    a("s_and_b64 s[40:41], s[40:41], s[42:43]")
    a("s_and_b64 s[40:41], s[40:41], vcc")
    a("s_cmp_eq_u64 s[40:41], -1")
    a("s_cbranch_scc0 L_k2_fallback")
    a.label("L_k2_finish")
    a(f"v_rcp_f32 v{T}, v{O[0] + 8}")
    a(f"s_lshl_b32 s{sT0}, s{sQb}, 3")
    a(f"s_lshl_b32 s{sT1}, s{sQs}, 1")
    a(f"s_add_u32 s{sT0}, s{sT0}, s{sT1}")
    a(f"s_add_u32 s{sT0}, s{sT0}, s{sKh}")
    a(f"s_lshl_b32 s{sT0}, s{sT0}, 15")
    a(f"s_lshl_b32 s{sT1}, s{sHead}, 10")
    a(f"s_add_u32 s{sT0}, s{sT0}, s{sT1}")
    a(f"s_add_u32 s{sT0}, s{sT0}, {OF}")
    for r in range(8):
        a(f"v_mul_f32 v{O[0] + r}, v{O[0] + r}, v{T}")
    for i in range(4):
        a(f"v_cvt_pk_bf16_f32 v{T + 4 + i}, v{O[0] + 2 * i}, v{O[0] + 2 * i + 1}")
    a.vm(f"buffer_store_dwordx4 {vr(T + 4, 4)}, v{vL16}, {sr(sWS, 4)}, s{sT0} offen")
    stamp(a)
    stamp_flush(a, 1, sWS, sWave)
    a("s_endpgm")
    a.label("L_k2_fallback")
    vK2, vV2, vM = T + 10, T + 11, T + 12
    a(f"s_lshl_b32 s{sT0}, s{sKh}, 16")
    a(f"v_subrev_u32 v{vK2}, s{sT0}, v{vKrd}")
    a(f"v_mov_b32 v{vM}, 0xff800000")
    a("s_mov_b32 s56, 0")
    a.label("L_k2_fb_max")
    a(f"ds_read_b128 {vr(Kf[0], 4)}, v{vK2}")
    a("s_waitcnt lgkmcnt(0)")
    a(f"v_mfma_f32_32x32x16_bf16 {vr(S[0], 16)}, {vr(Kf[0], 4)}, {vr(Qf[0], 4)}, 0")
    a("s_nop 15")
    for i in range(8):
        a(f"v_max3_f32 v{vM}, v{vM}, v{S[0] + 2 * i}, v{S[0] + 2 * i + 1}")
    a(f"v_add_u32 v{vK2}, 2048, v{vK2}")
    a("s_add_u32 s56, s56, 1")
    a("s_cmp_lt_u32 s56, 64")
    a("s_cbranch_scc1 L_k2_fb_max")
    a(f"v_mov_b32 v{T}, v{vM}")
    a("s_nop 1")
    a(f"v_permlane32_swap_b32 v{vM}, v{T}")
    a("s_nop 1")
    a(f"v_max_f32 v{vM}, v{vM}, v{T}")
    for r in range(16):
        a(f"v_sub_f32 v{NEG + r}, 0, v{vM}")
        a(f"v_mov_b32 v{O[0] + r}, 0")
    a(f"v_subrev_u32 v{vK2}, s{sT0}, v{vKrd}")
    a(f"v_subrev_u32 v{vV2}, s{sT0}, v{vVrd}")
    a("s_mov_b32 s56, 0")
    a.label("L_k2_fb_pv")
    a(f"ds_read_b128 {vr(Kf[0], 4)}, v{vK2}")
    a(f"s_mov_b64 exec, {sr(sVm, 2)}")
    a(f"ds_read_b128 {vr(Vf[0], 4)}, v{vV2} offset:1024")
    a(f"ds_read_b128 {vr(Vf[0] + 4, 4)}, v{vV2} offset:1536")
    a("s_mov_b64 exec, -1")
    a("s_waitcnt lgkmcnt(0)")
    a(f"v_mfma_f32_32x32x16_bf16 {vr(S[0], 16)}, {vr(Kf[0], 4)}, {vr(Qf[0], 4)}, {vr(NEG, 16)}")
    a("s_nop 15")
    for i in range(16):
        a(f"v_exp_f32 v{S[0] + i}, v{S[0] + i}")
    a("s_nop 1")
    a(f"v_smfmac_f32_32x32x32_bf16 {vr(O[0], 16)}, {vr(Vf[0], 4)}, {vr(S[0], 8)}, v{vIdx}")
    a(f"v_smfmac_f32_32x32x32_bf16 {vr(O[0], 16)}, {vr(Vf[0] + 4, 4)}, {vr(S[0] + 8, 8)}, v{vIdx}")
    a("s_nop 15")
    a(f"v_add_u32 v{vK2}, 2048, v{vK2}")
    a(f"v_add_u32 v{vV2}, 2048, v{vV2}")
    a("s_add_u32 s56, s56, 1")
    a("s_cmp_lt_u32 s56, 64")
    a("s_cbranch_scc1 L_k2_fb_pv")
    a("s_branch L_k2_finish")
    kernel_end(a, name)
    return name, a.text(), descriptor(name, 144, 0), (256, 512, XCH + 8 * 2304)


def gen_res(kind):
    k3 = kind == "k3"
    name = "k3_wo_kernel" if k3 else "k5_down_kernel"
    NCH = 16 if k3 else 43
    KS = 32 if k3 else 86
    ACT = OF if k3 else GF
    CPS = 4
    NST = (NCH + CPS - 1) // CPS
    DEPTH = OPT["k3_d"] if k3 else OPT["k5_d"]
    NSLOT = 4 if k3 else 8
    RED = NSLOT * 16384
    a = Asm()
    kernel_begin(a, name, 256)
    sW, sWS, sIO = 12, 16, 20
    sWave, sWr, sKh, sRt, sCb = 24, 25, 26, 27, 28
    sT0, sT1, sWL, sAct = 30, 31, 32, 33
    sMask, sOnes = 40, 41
    vLane, vL16, vWoff, vRw, vRr, vRes = 1, 2, 3, 4, 5, 6
    vWrd = [[8, 9], [10, 11]]
    T = 12
    RES = 32
    acc = [40, 56]
    A0 = 72
    if k3:
        a("s_load_dwordx2 s[4:5], s[0:1], 16")
        a("s_load_dwordx2 s[6:7], s[0:1], 0")
    else:
        a("s_load_dwordx4 s[4:7], s[0:1], 48")
    a("s_load_dwordx2 s[8:9], s[0:1], 72")
    a(f"v_and_b32 v{vLane}, 63, v0")
    a(f"v_lshrrev_b32 v{T}, 6, v0")
    a(f"v_lshlrev_b32 v{vL16}, 4, v{vLane}")
    a(f"v_readfirstlane_b32 s{sWave}, v{T}")
    a(f"s_and_b32 s{sT0}, s2, 7")
    a(f"s_lshl_b32 s{sRt}, s{sT0}, 2")
    a(f"s_lshr_b32 s34, s2, 6")
    a(f"s_add_u32 s{sRt}, s{sRt}, s34")
    a(f"s_bfe_u32 s{sCb}, s2, 0x30003")
    a(f"s_and_b32 s{sWr}, s{sWave}, 1")
    a(f"s_lshr_b32 s{sKh}, s{sWave}, 1")
    a(f"s_lshl_b32 s{sRt}, s{sRt}, 1")
    a(f"s_add_u32 s{sRt}, s{sRt}, s{sWr}")
    a(f"s_mov_b32 s{sMask}, 0xffff0000")
    a(f"s_mov_b32 s{sOnes}, 0x3f803f80")
    a(f"v_lshrrev_b32 v{T}, 3, v{vLane}")
    a(f"v_lshrrev_b32 v{T + 1}, 2, v{vLane}")
    a(f"v_and_b32 v{T + 1}, 4, v{T + 1}")
    a(f"v_and_b32 v{T + 2}, 7, v{vLane}")
    a(f"v_xor_b32 v{T + 1}, v{T + 1}, v{T + 2}")
    a(f"v_lshlrev_b32 v{T + 1}, 4, v{T + 1}")
    a(f"v_lshl_add_u32 v{vWoff}, v{T}, 10, v{T + 1}")
    a(f"s_lshl_b32 s{sT0}, s{sWave}, 13")
    a(f"s_lshl_b32 s{sT1}, s{sCb}, 7")
    a(f"s_add_u32 s{sT0}, s{sT0}, s{sT1}")
    a(f"v_add_u32 v{vWoff}, s{sT0}, v{vWoff}")
    a(f"s_lshl_b32 s{sWL}, s{sWave}, 10")
    a(f"s_mul_i32 s{sAct}, s{sRt}, {KS * 1024}")
    a(f"s_lshl_b32 s{sT0}, s{sKh}, 10")
    a(f"s_add_u32 s{sAct}, s{sAct}, s{sT0}")
    a(f"s_add_u32 s{sAct}, s{sAct}, {ACT}")
    a("s_waitcnt lgkmcnt(0)")
    srd(a, sW, 4, KS * 16 * 1024)
    srd(a, sWS, 8, WS_SIZE)
    srd(a, sIO, 6, 2048 * 1024)
    dr = Drip(a)

    def issue(st):
        for c in range(st * CPS, min(NCH, (st + 1) * CPS)):
            dr.add(st, [f"s_add_u32 m0, s{sWL}, {(st % NSLOT) * 16384 + (c % CPS) * 4096}", f"s_mov_b32 s42, {c * 32768}"],
                   f"buffer_load_dwordx4 v{vWoff}, {sr(sW, 4)}, s42 offen lds")
            dr.add(st, [f"s_add_u32 s43, s{sAct}, {c * 2048}"] if c % 2 == 0 else [],
                   f"buffer_load_dwordx4 {vr(A0 + 4 * c, 4)}, v{vL16}, {sr(sWS, 4)}, s43 offen offset:{(c % 2) * 2048}")

    for st in range(min(NSLOT, NST)):
        issue(st)
    dr.emit(8 * DEPTH)
    a(f"s_lshl_b32 s34, s{sCb}, 1")
    a(f"s_add_u32 s34, s34, s{sKh}")
    a(f"v_and_b32 v{T}, 31, v{vLane}")
    a(f"v_lshrrev_b32 v{T + 1}, 5, v{vLane}")
    a(f"v_lshlrev_b32 v{T + 2}, 10, v{T}")
    a(f"v_lshl_add_u32 v{vRes}, v{T + 1}, 3, v{T + 2}")
    a(f"s_lshl_b32 s35, s{sRt}, 15")
    a(f"s_lshl_b32 s36, s34, 6")
    a(f"s_add_u32 s35, s35, s36")
    a(f"s_lshl_b32 s36, s{sRt}, 15")
    a(f"s_lshl_b32 s37, s34, 11")
    a(f"s_add_u32 s36, s36, s37")
    a(f"s_add_u32 s36, s36, {HF}")
    res_items = []
    if k3:
        for g in range(4):
            res_items.append(f"buffer_load_dwordx2 {vr(RES + 2 * g, 2)}, v{vRes}, {sr(sIO, 4)}, s35 offen offset:{g * 16}")
    else:
        res_items.append(f"buffer_load_dwordx4 {vr(RES, 4)}, v{vL16}, {sr(sWS, 4)}, s36 offen")
        res_items.append(f"buffer_load_dwordx4 {vr(RES + 4, 4)}, v{vL16}, {sr(sWS, 4)}, s36 offen offset:1024")
    if NST <= NSLOT:
        for it in res_items:
            dr.add("res", [], it)
    a(f"v_bfe_u32 v{T + 2}, v{vLane}, 2, 2")
    a(f"v_lshl_add_u32 v{T + 3}, v{T + 1}, 2, v{T + 2}")
    a(f"s_lshl_b32 s{sT0}, s{sKh}, 4")
    a(f"v_add_u32 v{T + 3}, s{sT0}, v{T + 3}")
    a(f"v_lshlrev_b32 v{T + 3}, 7, v{T + 3}")
    a(f"v_bfe_u32 v{T + 4}, v{vLane}, 4, 1")
    a(f"v_lshl_add_u32 v{T + 3}, v{T + 4}, 5, v{T + 3}")
    a(f"v_and_b32 v{T + 4}, 3, v{vLane}")
    a(f"v_lshl_add_u32 v{T + 3}, v{T + 4}, 3, v{T + 3}")
    a(f"v_lshrrev_b32 v{T + 2}, 1, v{T + 2}")
    a(f"v_lshl_add_u32 v{vWrd[0][0]}, v{T + 2}, 6, v{T + 3}")
    a(f"v_xor_b32 v{vWrd[1][0]}, 64, v{vWrd[0][0]}")
    wl = [LdsAddr(a, vWrd[0]), LdsAddr(a, vWrd[1])]
    wl[0].setup(a)
    wl[1].setup(a)
    a(f"s_lshl_b32 s{sT0}, s{sWave}, 12")
    a(f"s_add_u32 s{sT0}, s{sT0}, {RED}")
    a(f"v_add_u32 v{vRw}, s{sT0}, v{vL16}")
    a(f"v_xor_b32 v{vRr}, 0x2000, v{vRw}")
    for r in range(32):
        a(f"v_mov_b32 v{acc[0] + r}, 0")

    def w_reads(c):
        st = c // CPS
        ops = []
        for b in range(2):
            for half in range(2):
                reg, off = wl[b].at((st % NSLOT) * 16384 + (c % CPS) * 4096 + half * 1024)
                ops.append(f"ds_read_b64_tr_b16 {ar(8 * (c & 1) + 4 * b + 2 * half, 2)}, {reg} offset:{off}")
        return ops

    stamp(a)
    dr.wait(0)
    a("s_barrier")
    stamp(a)
    rt = {}
    for op in w_reads(0):
        rt[0] = a.lg(op)
    for c in range(NCH):
        st = c // CPS
        if c == NCH // 2:
            stamp(a)
        a.wait(lg=rt[c])
        if c + 1 < NCH:
            if (c + 1) % CPS == 0:
                dr.wait(st + 1)
                a("s_barrier")
                if st + NSLOT < NST:
                    issue(st + NSLOT)
                    if st + NSLOT == NST - 1:
                        for it in res_items:
                            dr.add("res", [], it)
            for op in w_reads(c + 1):
                rt[c + 1] = a.lg(op)
        wb = 8 * (c & 1)
        for b in range(2):
            a(f"v_mfma_f32_32x32x16_bf16 {vr(acc[b], 16)}, {ar(wb + 4 * b, 4)}, {vr(A0 + 4 * c, 4)}, {vr(acc[b], 16)}")
            dr.emit()
    a("s_nop 15")
    stamp(a)
    a(f"s_cmp_eq_u32 s{sKh}, 0")
    a(f"s_cbranch_scc1 L_{name}_keep0")
    for r in range(16):
        a(f"v_swap_b32 v{acc[0] + r}, v{acc[1] + r}")
    a.label(f"L_{name}_keep0")
    for g in range(4):
        a.lg(f"ds_write_b128 v{vRw}, {vr(acc[1] + 4 * g, 4)} offset:{g * 1024}")
    a.wait_all(vm=False)
    a("s_barrier")
    for g in range(4):
        a.lg(f"ds_read_b128 {vr(acc[1] + 4 * g, 4)}, v{vRr} offset:{g * 1024}")
    dr.wait("res")
    for i in range(8):
        a(f"v_lshlrev_b32 v{T}, 16, v{RES + i}")
        a(f"v_and_b32 v{T + 1}, s{sMask}, v{RES + i}")
        a(f"v_add_f32 v{acc[0] + 2 * i}, v{acc[0] + 2 * i}, v{T}")
        a(f"v_add_f32 v{acc[0] + 2 * i + 1}, v{acc[0] + 2 * i + 1}, v{T + 1}")
    a.wait_all(vm=False)
    for r in range(16):
        a(f"v_add_f32 v{acc[0] + r}, v{acc[0] + r}, v{acc[1] + r}")
    for i in range(8):
        a(f"v_cvt_pk_bf16_f32 v{RES + i}, v{acc[0] + 2 * i}, v{acc[0] + 2 * i + 1}")
    if k3:
        a.vm(f"buffer_store_dwordx4 {vr(RES, 4)}, v{vL16}, {sr(sWS, 4)}, s36 offen")
        a.vm(f"buffer_store_dwordx4 {vr(RES + 4, 4)}, v{vL16}, {sr(sWS, 4)}, s36 offen offset:1024")
        a(f"v_mov_b32 v{T}, 0")
        a(f"v_mov_b32 v{T + 1}, 0")
        for i in range(8):
            a(f"v_dot2_f32_bf16 v{T}, v{RES + i}, s{sOnes}, v{T}")
            a(f"v_dot2_f32_bf16 v{T + 1}, v{RES + i}, v{RES + i}, v{T + 1}")
        a("s_nop 2")
        half_sum(a, T, T + 2)
        half_sum(a, T + 1, T + 2)
        a(f"s_lshl_b32 s{sT0}, s34, 14")
        a(f"s_lshl_b32 s{sT1}, s{sRt}, 8")
        a(f"s_add_u32 s{sT0}, s{sT0}, s{sT1}")
        a(f"s_add_u32 s{sT0}, s{sT0}, {ST}")
        a(f"v_lshlrev_b32 v{T + 2}, 3, v{vLane}")
        a("s_mov_b32 exec_hi, 0")
        a.vm(f"buffer_store_dwordx2 {vr(T, 2)}, v{T + 2}, {sr(sWS, 4)}, s{sT0} offen")
    else:
        for g in range(4):
            a.vm(f"buffer_store_dwordx2 {vr(RES + 2 * g, 2)}, v{vRes}, {sr(sIO, 4)}, s35 offen offset:{g * 16}")
    stamp(a)
    stamp_flush(a, 2 if k3 else 4, sWS, sWave)
    kernel_end(a, name)
    return name, a.text(), descriptor(name, A0 + 4 * NCH, 16), (256, 256, RED + 16384)


def gen_k4():
    name = "k4_glu_kernel"
    a = Asm()
    kernel_begin(a, name, 240)
    sG, sU, sWS = 12, 16, 20
    sWave, sRb, sCg, sHw = 24, 25, 26, 28
    sT0, sT1, sWL, sAct = 30, 31, 32, 33
    vLane, vL16 = 1, 2
    vWoff = [3, 4, 5]
    vWrd = [6, 7, 8]
    vWrdO = [9, 10, 11]
    vXa = [3, 4, 5]
    vT = 16
    ACC = 32
    XF = [128, 136]
    WF = [144, 156]
    CS = 168
    ONES = 180
    AS = 184
    XE = 188
    vCw, vCr, vEr = 196, 197, 198
    SLOT, NSLOT, XO, NST = 20480, 7, 12288, 16
    CSO = NSLOT * SLOT
    XEO = CSO + 2048
    a("s_load_dwordx4 s[4:7], s[0:1], 32")
    a("s_load_dwordx2 s[8:9], s[0:1], 72")
    a("s_load_dwordx2 s[10:11], s[0:1], 48")
    a(f"v_and_b32 v{vLane}, 63, v0")
    a(f"v_lshrrev_b32 v{vT}, 6, v0")
    a(f"v_lshlrev_b32 v{vL16}, 4, v{vLane}")
    a(f"v_readfirstlane_b32 s{sWave}, v{vT}")
    a(f"s_and_b32 s{sT0}, s2, 7")
    a(f"s_lshl_b32 s{sT0}, s{sT0}, 1")
    a(f"s_bfe_u32 s{sT1}, s2, 0x10003")
    a(f"s_add_u32 s{sRb}, s{sT0}, s{sT1}")
    a(f"s_lshr_b32 s{sCg}, s2, 4")
    a(f"s_and_b32 s{sHw}, s{sWave}, 3")
    a(f"s_cmp_ge_u32 s{sWave}, 4")
    a(f"s_cbranch_scc1 L_k4_helper")

    h = fork(a)
    h.label("L_k4_helper")
    h(f"s_lshl_b32 s{sAct}, s{sRb}, 2")
    h(f"s_add_u32 s{sAct}, s{sAct}, s{sHw}")
    h(f"s_lshl_b32 s{sAct}, s{sAct}, 15")
    h(f"s_add_u32 s{sAct}, s{sAct}, {HF}")
    h(f"s_lshr_b32 s34, s{sHw}, 1")
    h(f"s_and_b32 s35, s{sHw}, 1")
    h(f"s_mul_i32 s{sT0}, s34, {16 * 2752}")
    h(f"s_mul_i32 s{sT1}, s{sCg}, 192")
    h(f"s_add_u32 s{sT0}, s{sT0}, s{sT1}")
    h(f"v_and_b32 v{vT + 3}, 2, v{vLane}")
    h(f"v_lshlrev_b32 v{vT + 3}, 5, v{vT + 3}")
    h(f"v_sub_u32 v{vT + 3}, 32, v{vT + 3}")
    h(f"v_mul_lo_u32 v{vT + 3}, v{vT + 3}, s35")
    h(f"v_add_u32 v{vT + 3}, s{sT0}, v{vT + 3}")
    for i in range(3):
        h(f"v_add_u32 v{vT}, {64 * i}, v{vLane}")
        h(f"v_mul_u32_u24 v{vT + 1}, 171, v{vT}")
        h(f"v_lshrrev_b32 v{vT + 1}, 11, v{vT + 1}")
        h(f"v_mul_u32_u24 v{vT + 2}, {2752 - 192}, v{vT + 1}")
        h(f"v_add3_u32 v{vWoff[i]}, v{vL16}, v{vT + 2}, v{vT + 3}")
    h(f"s_mul_i32 s{sWL}, s{sHw}, 3072")
    h(f"s_lshl_b32 s36, s{sHw}, 11")
    h(f"s_add_u32 s36, s36, {XO}")
    h("s_waitcnt lgkmcnt(0)")
    srd(h, sWS, 8, WS_SIZE)
    h("s_cmp_eq_u32 s35, 0")
    h(f"s_cselect_b32 s{sG}, s4, s6")
    h(f"s_cselect_b32 s{sG + 1}, s5, s7")
    h(f"s_mov_b32 s{sG + 2}, {hx(512 * 2752)}")
    h(f"s_mov_b32 s{sG + 3}, 0x00020000")
    dr = Drip(h)

    def issue(st):
        for i in range(2):
            pre = [f"s_add_u32 m0, s36, {(st % NSLOT) * SLOT}", f"s_add_u32 s43, s{sAct}, {st * 2048}"] if i == 0 else []
            dr.add(st, pre, f"buffer_load_dwordx4 v{vL16}, {sr(sWS, 4)}, s43 offen offset:{i * 1024} lds")
        for i in range(3):
            pre = [f"s_add_u32 m0, s{sWL}, {(st % NSLOT) * SLOT}", f"s_mov_b32 s42, {st * 32 * 2752}"] if i == 0 else []
            dr.add(st, pre, f"buffer_load_dwordx4 v{vWoff[i]}, {sr(sG, 4)}, s42 offen offset:{i * 1024} lds")

    for st in range(NSLOT):
        issue(st)
    AHEAD = OPT["k4_d"]
    dr.emit(5 * AHEAD)
    vPf, vPd = 13, 14
    srd(h, 44, 10, 1376 * 1024)
    h(f"s_lshr_b32 s{sT0}, s2, 3")
    h(f"s_lshl_b32 s{sT0}, s{sT0}, 2")
    h(f"s_add_u32 s{sT0}, s{sT0}, s{sHw}")
    h(f"s_lshl_b32 s{sT0}, s{sT0}, 13")
    h(f"v_lshlrev_b32 v{vPf}, 7, v{vLane}")
    h(f"v_add_u32 v{vPf}, s{sT0}, v{vPf}")
    h(f"v_add_u32 v15, {120 * 8192}, v{vPf}")
    h(f"v_lshrrev_b32 v{vT + 3}, 5, v{vLane}")
    h(f"v_and_b32 v{vT + 4}, 31, v{vLane}")
    h(f"v_lshlrev_b32 v{vT + 4}, 3, v{vT + 4}")
    h(f"v_lshl_add_u32 v{vT + 4}, v{vT + 3}, 17, v{vT + 4}")
    h(f"s_lshl_b32 s34, s{sRb}, 2")
    h(f"s_add_u32 s34, s34, s{sHw}")
    h(f"s_lshl_b32 s34, s34, 8")
    h(f"s_add_u32 s34, s34, {ST}")
    h(f"s_lshl_b32 s{sT0}, s{sHw}, 11")
    h(f"s_add_u32 s{sT0}, s{sT0}, {XEO}")
    h(f"v_add_u32 v{vT + 5}, s{sT0}, v{vL16}")
    h(f"v_lshl_add_u32 v{vT + 6}, v{vLane}, 3, s{sT0}")
    SP = 32
    stamp(h)
    for st in range(NST):
        dr.wait(st)
        vS, vQ, vM, vA = 60, 61, 62, 64
        if st == 11:
            dr.wait("st")
            h(f"v_add_f32 v{vS}, v{SP}, v{SP + 2}")
            h(f"v_add_f32 v{vQ}, v{SP + 1}, v{SP + 3}")
            for i in range(2, 8):
                h(f"v_add_f32 v{vS}, v{vS}, v{SP + 2 * i}")
                h(f"v_add_f32 v{vQ}, v{vQ}, v{SP + 2 * i + 1}")
        if st == 12:
            half_sum(h, vS, vT)
            half_sum(h, vQ, vT)
            h(f"v_mul_f32 v{vM}, {hx(f2u(-1.0 / 512))}, v{vS}")
            h(f"v_mul_f32 v{vQ}, {hx(f2u(1.0 / 512))}, v{vQ}")
            h(f"v_fma_f32 v{vQ}, -v{vM}, v{vM}, v{vQ}")
            h(f"v_max_f32 v{vQ}, 0, v{vQ}")
            h(f"v_add_f32 v{vQ}, {hx(f2u(1e-5))}, v{vQ}")
        if st == 13:
            h(f"v_rsq_f32 v{vA}, v{vQ}")
            split_hi_lo(h, vM, 68, vT, vT + 1)
            h(f"v_mul_f32 v{vA + 1}, v{vQ}, v{vA}")
            h(f"v_mul_f32 v{vA}, {hx(f2u(-LOG2E))}, v{vA}")
            h(f"v_cvt_pk_bf16_f32 v69, v{vT}, 0")
            h("v_mov_b32 v70, 0")
            h("v_mov_b32 v71, 0")
            h.lg(f"ds_write_b128 v{vT + 5}, v[68:71]")
            h.lg(f"ds_write_b64 v{vT + 6}, {vr(vA, 2)} offset:1024")
        if st == 14:
            h.wait_all(vm=False)
            dr.wait(15)
            if OPT["k4_pf"]:
                h.vm(f"buffer_load_dword v{vPd}, v{vPf}, s[44:47], 0 offen")
        if st == 15 and OPT["k4_pf"]:
            h.vm(f"buffer_load_dword v{vPd}, v15, s[44:47], 0 offen")
        h("s_barrier")
        if st in (0, 2, 4, 6, 8, 10, 12, 13, 14, 15):
            stamp(h)
        if st >= 1 and st + NSLOT - 1 < NST:
            issue(st + NSLOT - 1)
        tgt = min(NST - 1, st + AHEAD + min(st + 1, OPT["k4_g"]))
        while dr.q and dr.q[0][0] <= tgt:
            dr.emit()
        if 5 <= st <= 8:
            for i in (2 * (st - 5), 2 * (st - 5) + 1):
                h(f"s_add_u32 s{sT0}, s34, {i * 16384}")
                dr.tok["st"] = h.vm(f"buffer_load_dwordx2 {vr(SP + 2 * i, 2)}, v{vT + 4}, {sr(sWS, 4)}, s{sT0} offen")
    h("s_barrier")
    stamp_flush(h, 3, sWS, sWave) if STAMPS else None
    h("s_endpgm")

    sWr2, sWc = 36, 37
    a(f"s_lshr_b32 s{sWr2}, s{sHw}, 1")
    a(f"s_and_b32 s{sWc}, s{sHw}, 1")
    a(f"s_lshl_b32 s34, s{sRb}, 1")
    a(f"s_add_u32 s34, s34, s{sWr2}")
    a(f"v_lshrrev_b32 v{vT + 3}, 5, v{vLane}")
    a(f"v_bfe_u32 v{vT}, v{vLane}, 2, 2")
    a(f"v_lshl_add_u32 v{vT}, v{vT + 3}, 2, v{vT}")
    a(f"v_mul_u32_u24 v{vT}, 192, v{vT}")
    a(f"v_and_b32 v{vT + 1}, 3, v{vLane}")
    a(f"v_lshl_add_u32 v{vT}, v{vT + 1}, 3, v{vT}")
    a(f"s_mul_i32 s{sT0}, s{sWc}, 96")
    a(f"v_add_u32 v{vT}, s{sT0}, v{vT}")
    a(f"v_bfe_u32 v{vT + 1}, v{vLane}, 4, 1")
    a(f"s_lshl_b32 s{sT0}, s{sWc}, 6")
    a(f"s_sub_u32 s{sT1}, {3072 + 32}, s{sT0}")
    a(f"s_add_u32 s{sT0}, {3072 - 32}, s{sT0}")
    a(f"v_mad_u32_u24 v{vWrd[0]}, v{vT + 1}, s{sT1}, v{vT}")
    a(f"v_mad_u32_u24 v{vWrdO[0]}, v{vT + 1}, s{sT0}, v{vT}")
    wl = [LdsAddr(a, vWrd), LdsAddr(a, vWrdO)]
    wl[0].setup(a)
    wl[1].setup(a)
    a(f"s_lshl_b32 s{sT0}, s{sWr2}, 12")
    a(f"s_add_u32 s{sT0}, s{sT0}, {XO}")
    a(f"v_add_u32 v{vXa[0]}, s{sT0}, v{vL16}")
    xl = LdsAddr(a, vXa)
    xl.setup(a)
    a(f"v_xor_b32 v{vT}, v{vT + 1}, v{vLane}")
    a(f"v_and_b32 v{vT}, 1, v{vT}")
    a(f"v_cmp_eq_u32 vcc, 0, v{vT}")
    a(f"v_mov_b32 v{vT}, 0x3f803f80")
    a("s_nop 0")
    for r in range(4):
        a(f"v_cndmask_b32 v{ONES + r}, 0, v{vT}, vcc")
    a(f"s_lshl_b32 s{sT0}, s{sWc}, 1")
    a(f"s_add_u32 s{sT1}, s{sT0}, s{sWr2}")
    a(f"s_mul_i32 s{sT1}, s{sT1}, 384")
    a(f"s_add_u32 s{sT1}, s{sT1}, {CSO}")
    a(f"v_and_b32 v{vT}, 1, v{vLane}")
    a(f"v_lshlrev_b32 v{vT}, 6, v{vT}")
    a(f"v_and_b32 v{vT + 1}, 48, v{vLane}")
    a(f"v_add3_u32 v{vCw}, v{vT}, v{vT + 1}, s{sT1}")
    a(f"s_mul_i32 s{sT0}, s{sT0}, 384")
    a(f"s_add_u32 s{sT0}, s{sT0}, {CSO}")
    a(f"v_mul_u32_u24 v{vT}, 384, v{vT + 3}")
    a(f"v_and_b32 v{vT + 1}, 31, v{vLane}")
    a(f"v_lshl_add_u32 v{vT}, v{vT + 1}, 2, v{vT}")
    a(f"v_add_u32 v{vCr}, s{sT0}, v{vT}")
    a(f"s_mul_i32 s34, s34, {2 * 86 * 1024}")
    a(f"s_lshl_b32 s35, s{sCg}, 1")
    a(f"s_add_u32 s35, s35, s{sWc}")
    a(f"s_mul_i32 s38, s35, 3")
    a(f"s_lshl_b32 s35, s38, 10")
    a("s_add_u32 s34, s34, s35")
    a(f"s_add_u32 s34, s34, {GF}")
    a(f"s_add_u32 s35, s34, {86 * 1024}")
    for r in range(12):
        a(f"v_mov_b32 v{CS + r}, 0")
    a(f"s_lshl_b32 s{sT0}, s{sWr2}, 12")
    a(f"s_add_u32 s{sT0}, s{sT0}, {XEO}")
    a(f"v_add_u32 v{vEr}, s{sT0}, v{vL16}")
    a(f"v_lshl_add_u32 v{vEr + 1}, v{vLane}, 3, s{sT0}")
    a("s_waitcnt lgkmcnt(0)")
    srd(a, sWS, 8, WS_SIZE)

    def reads(s):
        st, ss = divmod(s, 2)
        W = []
        for j in range(3):
            for half in range(2):
                reg, off = wl[j & 1].at((st % NSLOT) * SLOT + ss * 6144 + half * 8 * 192 + j * 32)
                W.append(f"ds_read_b64_tr_b16 {vr(WF[s & 1] + 4 * j + 2 * half, 2)}, {reg} offset:{off}")
        X = []
        for i in range(2):
            reg, off = xl.at((st % NSLOT) * SLOT + i * 2048 + ss * 1024)
            X.append(f"ds_read_b128 {vr(XF[s & 1] + 4 * i, 4)}, {reg} offset:{off}")
        return [X[0], W[0], W[1], X[1], W[2], W[3], W[4], W[5]]

    rt = {}

    def emit_reads(b, s, lo, hi):
        ops = reads(s)
        for k in range(lo, min(hi, 8)):
            rt[(s, k)] = b.lg(ops[k])

    stamp(a)
    a("s_barrier")
    stamp(a)
    emit_reads(a, 0, 0, 8)
    a(f"s_cmp_eq_u32 s{sWr2}, 1")
    a("s_cbranch_scc1 L_k4_odd")
    cuts = [0, 2, 4, 6, 8, 8, 8]
    need = [3, 3, 5, 5, 7, 7]
    rt0 = dict(rt)
    odd = fork(a)
    odd.label("L_k4_odd")
    for par, b in ((0, a), (1, odd)):
        rt.clear()
        rt.update(rt0)
        def main(s, m):
            j, i = divmod(m, 2)
            d = ACC + 16 * m
            c = "0" if s == 0 else vr(d, 16)
            b(f"v_mfma_f32_32x32x16_bf16 {vr(d, 16)}, {vr(WF[s & 1] + 4 * j, 4)}, {vr(XF[s & 1] + 4 * i, 4)}, {c}")

        def csum(s, j):
            b(f"v_mfma_f32_16x16x32_bf16 {vr(CS + 4 * j, 4)}, {vr(WF[s & 1] + 4 * j, 4)}, {vr(ONES, 4)}, {vr(CS + 4 * j, 4)}")

        for s in range(31):
            if s == 16:
                stamp(b)
            if s % 2 == 1:
                b.wait(lg=rt[(s, 7)])
                b("s_barrier")
            for m in range(6):
                b.wait(lg=rt[(s, need[m])])
                if m % 2 == 0 and s % 2 == par:
                    csum(s, m // 2)
                main(s, m)
                emit_reads(b, s + 1, cuts[m], cuts[m + 1])
                if s == 29 and m >= 4:
                    b.lg(f"ds_read_b128 {vr(XE + 4 * (m - 4), 4)}, v{vEr} offset:{(m - 4) * 2048}")
                    b.lg(f"ds_read_b64 {vr(AS + 2 * (m - 4), 2)}, v{vEr + 1} offset:{(m - 4) * 2048 + 1024}")
        b.wait_all(vm=False)
        if par == 1:
            for j in range(3):
                csum(31, j)
    odd("s_branch L_k4_join")
    a.label("L_k4_join")
    b = a
    main(31, 0)
    for j in range(3):
        a(f"v_mov_b32 v{WF[0] + 4 * j + 2}, 0")
        a(f"v_mov_b32 v{WF[0] + 4 * j + 3}, 0")
    main(31, 1)
    a("s_mov_b32 exec_lo, 0x00030003")
    a("s_mov_b32 exec_hi, 0x00030003")
    for j in range(3):
        a.lg(f"ds_write_b128 v{vCw}, {vr(CS + 4 * j, 4)} offset:{j * 128}")
    a("s_mov_b64 exec, -1")
    main(31, 2)
    main(31, 3)
    a.wait_all(vm=False)
    a("s_barrier")
    for j in range(3):
        rt[("c", j)] = a.lg(f"ds_read_b32 v{vT + 4 + j}, v{vCr} offset:{j * 128}")
    main(31, 4)
    main(31, 5)
    stamp(a)
    for j in range(3):
        w = WF[0] + 4 * j
        a.wait(lg=rt[("c", j)])
        a(f"v_cvt_pk_bf16_f32 v{w + 1}, v{vT + 4 + j}, 0")
        a(f"v_lshlrev_b32 v{vT}, 16, v{w + 1}")
        a(f"v_sub_f32 v{vT}, v{vT + 4 + j}, v{vT}")
        a(f"v_cvt_pk_bf16_f32 v{w}, v{vT + 4 + j}, v{vT}")
    for j in range(3):
        for i in range(2):
            d = ACC + 32 * j + 16 * i
            a(f"v_mfma_f32_32x32x16_bf16 {vr(d, 16)}, {vr(WF[0] + 4 * j, 4)}, {vr(XE + 4 * i, 4)}, {vr(d, 16)}")
    stamp(a)
    a("s_nop 4")
    for j in range(3):
        a(f"s_cmp_ge_u32 s38, {86 - j}")
        a(f"s_cbranch_scc1 L_{name}_done")
        G = [(ACC + 32 * j + 16 * i + r, i) for i in range(2) for r in range(8)]
        for g, i in G[::2]:
            a(f"v_pk_mul_f32 {vr(g, 2)}, {vr(g, 2)}, {vr(AS + 2 * i, 2)} op_sel_hi:[1,0]")
        for g, i in G:
            a(f"v_exp_f32 v{g}, v{g}")
        for g, i in G[::2]:
            a(f"v_pk_fma_f32 {vr(g, 2)}, {vr(g, 2)}, {vr(AS + 2 * i, 2)}, {vr(AS + 2 * i, 2)} op_sel:[0,1,1] op_sel_hi:[1,1,1]")
        for g, i in G:
            a(f"v_rcp_f32 v{g}, v{g}")
        for g, i in G[::2]:
            a(f"v_pk_mul_f32 {vr(g, 2)}, {vr(g, 2)}, {vr(g + 8, 2)}")
        o = ACC + 32 * j + 8
        for i in range(8):
            a(f"v_cvt_pk_bf16_f32 v{o + i}, v{G[2 * i][0]}, v{G[2 * i + 1][0]}")
        a.vm(f"buffer_store_dwordx4 {vr(o, 4)}, v{vL16}, {sr(sWS, 4)}, s34 offen offset:{j * 1024}")
        a.vm(f"buffer_store_dwordx4 {vr(o + 4, 4)}, v{vL16}, {sr(sWS, 4)}, s35 offen offset:{j * 1024}")
    stamp(a)
    stamp_flush(a, 3, sWS, sWave)
    kernel_end(a, name)
    return name, a.text() + odd.text() + h.text(), descriptor(name, 200, 0), (240, 512, XEO + 8192)


def build():
    ks = [gen_k1(), gen_k2(), gen_res("k3"), gen_k4(), gen_res("k5")]
    ref = open(f"cdna_kernels/{NAME}.s.ref").read().split("\n")
    head = [l for l in ref if l.startswith(";") and "@launch" not in l and "Override launch" not in l
            and "grid=ceil" not in l]
    out = "\n".join(head) + "\n"
    for name, _, _, (g, b, lds) in ks:
        out += f"; @launch kernel={name} grid=({g},1,1) block=({b},1,1) lds={lds}\n"
    out += '.amdgcn_target "amdgcn-amd-amdhsa--gfx950"\n.text\n'
    bad = 0
    for name, text, _, _ in ks:
        bad += check_hazards(text, name)
        out += text
    out += "L_code_end:\n"
    out += '.section .rodata,"a"\n'
    for name, _, desc, _ in ks:
        out += ".p2align 6\n" + desc
    if bad:
        print("hazards:", bad)
    return out


if __name__ == "__main__":
    path = sys.argv[1] if len(sys.argv) > 1 else f"cdna_kernels/{NAME}.s"
    for arg in sys.argv[2:]:
        if arg == "stamps":
            STAMPS = True
        elif arg == "dbgt":
            DBGT = True
        else:
            k_, v_ = arg.split("=")
            OPT[k_] = int(v_)
    open(path, "w").write(build())
    print("wrote", path)
```

```python
import math
import struct
import sys

from asmlib import Asm, check_hazards

NAME = "sequential_preLN__mha_block__glu_gated_glu__prompt"

MB = 1 << 20
QF = 0
KVF = 2 * MB
OF = 6 * MB
HF = 8 * MB
ST = 10 * MB
GF = 12 * MB
WS_SIZE = 32 * MB

LOG2E = 1.4426950408889634
OPT = dict(pf_code=True, pf_w=True, k1_pre=2, k1_drip=0, k4_first=1, k4_prio=1, k3_d=2, k5_d=3, k4_d=3, k4_g=1, k1_d=3, k1_g=1, k1_touch=1, k1_t=1, k2_map=0, k2_oz=1, k2_pre=2, k2_prio=1, k2_b3=0, k4_pf=1)


def f2u(x):
    return struct.unpack("<I", struct.pack("<f", x))[0]


def hx(x):
    return "0x%08x" % (x & 0xFFFFFFFF)


def vr(b, n):
    return f"v[{b}:{b + n - 1}]"


def ar(b, n):
    return f"a[{b}:{b + n - 1}]"


def sr(b, n):
    return f"s[{b}:{b + n - 1}]"


def srd(a, d, base, size):
    a(f"s_mov_b32 s{d}, s{base}")
    a(f"s_mov_b32 s{d + 1}, s{base + 1}")
    a(f"s_mov_b32 s{d + 2}, {hx(size)}")
    a(f"s_mov_b32 s{d + 3}, 0x00020000")


def interleave(main, fill, lead=0):
    out = []
    fill = list(fill)
    out += fill[:lead]
    fill = fill[lead:]
    n = len(main)
    per = len(fill) / n if n else 0
    used = 0
    for i, m in enumerate(main):
        out.append(m)
        upto = int(round(per * (i + 1)))
        out += fill[used:upto]
        used = upto
    out += fill[used:]
    return out


def kernel_begin(a, name, nwg):
    a.raw(f".globl {name}")
    a.raw(".p2align 8")
    a.raw(f".type {name},@function")
    a.label(name)
    a(f"s_cmp_ge_u32 s2, {nwg}")
    a(f"s_cbranch_scc1 L_{name}_done")
    dbgt_begin(a)
    stamp(a, real=True)
    stamp(a)


STAMPS = False
SBASE = 60
DBGO = 20 * MB


def stamp(a, real=False):
    if not STAMPS:
        return
    i = getattr(a, "nstamp", 0)
    a.nstamp = i + 1
    assert i < 16
    a(f"{'s_memrealtime' if real else 's_memtime'} s[{SBASE + 2 * i}:{SBASE + 2 * i + 1}]")
    a.wait_all(vm=False)


def stamp_flush(a, kidx, sWS, sWave):
    dbgt_end(a, kidx, sWS)
    if not STAMPS:
        return
    a.wait_all()
    stamp(a)
    stamp(a, real=True)
    a("s_mov_b64 exec, -1")
    a("s_lshl_b32 s58, s2, 3")
    a(f"s_add_u32 s58, s58, s{sWave}")
    a("s_lshl_b32 s58, s58, 6")
    a(f"s_add_u32 s58, s58, {DBGO + kidx * MB}")
    a("v_mov_b32 v1, 0")
    for i in range(a.nstamp):
        a(f"v_mov_b32 v2, s{SBASE + 2 * i}")
        a(f"buffer_store_dword v2, v1, s[{sWS}:{sWS + 3}], s58 offen offset:{4 * i}")
    a.wait_all()


DBGT = False


def dbgt_begin(a):
    if not DBGT:
        return
    a("s_memrealtime s[90:91]")
    a("s_load_dwordx2 s[92:93], s[0:1], 64")


def dbgt_end(a, kidx, sWS):
    if not DBGT:
        return
    a.wait_all()
    a("s_cmp_lg_u32 s2, 0")
    a(f"s_cbranch_scc1 L_dbgt_{kidx}")
    a("s_memrealtime s[88:89]")
    a.wait_all()
    a("s_mov_b64 exec, -1")
    a("v_cmp_eq_u32 vcc, 0, v0")
    a("s_nop 4")
    a("s_and_b64 exec, exec, vcc")
    a(f"s_cbranch_execz L_dbgt_{kidx}")
    a(f"v_mov_b32 v1, {DBGO}")
    a("v_mov_b32 v2, s90")
    a("v_mov_b32 v3, s88")
    a(f"buffer_store_dwordx2 v[2:3], v1, s[{sWS}:{sWS + 3}], 0 offen offset:{8 * kidx}")
    if kidx == 4:
        a(f"buffer_load_dwordx4 v[4:7], v1, s[{sWS}:{sWS + 3}], 0 offen")
        a(f"buffer_load_dwordx4 v[8:11], v1, s[{sWS}:{sWS + 3}], 0 offen offset:16")
        a("s_mov_b32 s94, 256")
        a("s_mov_b32 s95, 0x00020000")
        a("v_mov_b32 v1, 0")
        a.wait_all()
        for r in (5, 6, 7, 8, 9, 10, 11, 2, 3):
            a(f"v_sub_u32 v{r}, v{r}, v4")
        a("buffer_store_dwordx4 v[4:7], v1, s[92:95], 0 offen")
        a("buffer_store_dwordx4 v[8:11], v1, s[92:95], 0 offen offset:16")
        a("buffer_store_dwordx2 v[2:3], v1, s[92:95], 0 offen offset:32")
    a.wait_all()
    a.label(f"L_dbgt_{kidx}")


def kernel_end(a, name):
    a.label(f"L_{name}_done")
    a("s_endpgm")


def descriptor(name, vgpr, agpr, sgpr=96):
    acc = (vgpr + 3) // 4 * 4
    return f""".amdhsa_kernel {name}
  .amdhsa_next_free_vgpr {acc + agpr}
  .amdhsa_next_free_sgpr {sgpr}
  .amdhsa_accum_offset {acc}
  .amdhsa_group_segment_fixed_size 0
  .amdhsa_kernarg_size 80
  .amdhsa_user_sgpr_count 2
  .amdhsa_user_sgpr_kernarg_segment_ptr 1
  .amdhsa_system_sgpr_workgroup_id_x 1
.end_amdhsa_kernel
"""


def normalize_ops(x, t, vR, vNB, sMask):
    ops = []
    for i in range(4):
        ops.append(f"v_lshlrev_b32 v{t + 2 * i}, 16, v{x + i}")
        ops.append(f"v_and_b32 v{t + 2 * i + 1}, s{sMask}, v{x + i}")
    for i in range(8):
        ops.append(f"v_fma_f32 v{t + i}, v{t + i}, v{vR}, v{vNB}")
    for i in range(4):
        ops.append(f"v_cvt_pk_bf16_f32 v{x + i}, v{t + 2 * i}, v{t + 2 * i + 1}")
    return ops


def half_sum(a, r, t):
    a(f"v_mov_b32 v{t}, v{r}")
    a("s_nop 1")
    a(f"v_permlane32_swap_b32 v{r}, v{t}")
    a("s_nop 1")
    a(f"v_add_f32 v{r}, v{r}, v{t}")


def finish_stats(a, vS, vQ, vR, vNB, t, scale=1.0):
    a(f"v_mul_f32 v{vS}, {hx(f2u(1.0 / 512))}, v{vS}")
    a(f"v_mul_f32 v{vQ}, {hx(f2u(1.0 / 512))}, v{vQ}")
    a(f"v_fma_f32 v{t}, -v{vS}, v{vS}, v{vQ}")
    a(f"v_max_f32 v{t}, 0, v{t}")
    a(f"v_add_f32 v{t}, {hx(f2u(1e-5))}, v{t}")
    a(f"v_rsq_f32 v{vR}, v{t}")
    a("s_nop 0")
    if scale != 1.0:
        a(f"v_mul_f32 v{vR}, {hx(f2u(scale))}, v{vR}")
    a(f"v_mul_f32 v{vNB}, -v{vS}, v{vR}")


class Drip:
    def __init__(self, a):
        self.a = a
        self.q = []
        self.tok = {}

    def add(self, key, pre, ins):
        self.q.append((key, pre, ins))

    def emit(self, n=1):
        for _ in range(n):
            if not self.q:
                return
            key, pre, ins = self.q.pop(0)
            for p in pre:
                self.a(p)
            self.tok[key] = self.a.vm(ins)

    def through(self, key):
        while any(k == key for k, _, _ in self.q):
            self.emit()

    def wait(self, key):
        self.through(key)
        self.a.wait(vm=self.tok[key])


def code_prefetch(a, label, sPC, vOff, vDst, uid):
    a(f"s_getpc_b64 s[{sPC}:{sPC + 1}]")
    a.label(f"L_pc_{uid}")
    a(f"s_add_u32 s{sPC}, s{sPC}, {label}-L_pc_{uid}")
    a(f"s_addc_u32 s{sPC + 1}, s{sPC + 1}, ({label}-L_pc_{uid})>>32")
    a(f"v_min_u32 v{vOff}, L_code_end-{label}-4, v{vOff}")
    return a.vm(f"global_load_dword v{vDst}, v{vOff}, s[{sPC}:{sPC + 1}]")


class LdsAddr:
    def __init__(self, a, regs):
        self.regs = regs

    def setup(self, a):
        for j in range(1, len(self.regs)):
            a(f"v_add_u32 v{self.regs[j]}, {hx(j * 65536)}, v{self.regs[0]}")

    def at(self, off):
        return f"v{self.regs[off >> 16]}", off & 0xFFFF


def fork(a):
    b = Asm()
    b.vm_issued, b.vm_done, b.lg_issued, b.lg_done = a.vm_issued, a.vm_done, a.lg_issued, a.lg_done
    b.nstamp = getattr(a, "nstamp", 0)
    return b


def split_hi_lo(a, x, hi, lo, t):
    a(f"v_cvt_pk_bf16_f32 v{hi}, v{x}, v{x}")
    a(f"v_lshlrev_b32 v{t}, 16, v{hi}")
    a(f"v_sub_f32 v{lo}, v{x}, v{t}")


def gen_k1():
    name = "k1_qkv_kernel"
    a = Asm()
    kernel_begin(a, name, 256)
    sX, sW, sWS = 12, 16, 20
    sWave, sWr, sWc, sCg, sRb, sHw = 24, 25, 26, 27, 28, 29
    sT0, sT1, sWL = 30, 31, 32
    sOnes = 41
    vLane, vL16 = 1, 2
    vT = 8
    NSLOT, SLOT, WBASE, NST = 7, 12288, 65536, 16
    CSO = WBASE + NSLOT * SLOT
    XEO = CSO + 2048
    RSO = XEO + 2048
    a("s_load_dwordx4 s[4:7], s[0:1], 0")
    a("s_load_dwordx2 s[8:9], s[0:1], 72")
    a(f"v_and_b32 v{vLane}, 63, v0")
    a(f"v_lshrrev_b32 v7, 6, v0")
    a(f"v_lshlrev_b32 v{vL16}, 4, v{vLane}")
    a(f"v_readfirstlane_b32 s{sWave}, v7")
    a(f"s_and_b32 s{sT0}, s2, 7")
    a(f"s_lshl_b32 s{sT0}, s{sT0}, 2")
    a(f"s_bfe_u32 s{sT1}, s2, 0x20003")
    a(f"s_add_u32 s{sRb}, s{sT0}, s{sT1}")
    a(f"s_lshr_b32 s{sCg}, s2, 5")
    a(f"s_and_b32 s{sHw}, s{sWave}, 3")
    a(f"s_cmp_ge_u32 s{sWave}, 4")
    a(f"s_cbranch_scc0 L_k1_helper_skip")

    h = fork(a)
    h.label("L_k1_helper")
    vWoff, vXg, vSr, vXe, vRs = 3, 4, 6, 20, 21
    vS, vQ, vM, vR = 22, 23, 24, 25
    XB = 32
    h(f"v_lshrrev_b32 v{vT}, 3, v{vLane}")
    h(f"v_and_b32 v{vT + 1}, 7, v{vLane}")
    h(f"v_lshrrev_b32 v{vT + 2}, 1, v{vT}")
    h(f"v_xor_b32 v{vT + 2}, v{vT + 2}, v{vT + 1}")
    h(f"v_lshlrev_b32 v{vT + 2}, 4, v{vT + 2}")
    h(f"v_lshl_add_u32 v{vXg}, v{vT}, 10, v{vT + 2}")
    h(f"v_xor_b32 v{vXg + 1}, 64, v{vXg}")
    h(f"v_add_u32 v{vXg + 1}, {8 * 1024 - 1024}, v{vXg + 1}")
    h(f"s_lshl_b32 s34, s{sRb}, 16")
    h(f"s_lshl_b32 s{sT0}, s{sHw}, 14")
    h(f"s_add_u32 s34, s34, s{sT0}")
    h(f"s_lshl_b32 s36, s{sHw}, 11")
    h(f"v_lshrrev_b32 v{vT + 2}, 2, v{vLane}")
    h(f"v_and_b32 v{vT + 2}, 4, v{vT + 2}")
    h(f"v_xor_b32 v{vT + 2}, v{vT + 2}, v{vT + 1}")
    h(f"v_lshlrev_b32 v{vT + 2}, 4, v{vT + 2}")
    h(f"v_mul_u32_u24 v{vT + 3}, 3072, v{vT}")
    h(f"s_mul_i32 s{sT0}, s{sHw}, {8 * 3072}")
    h(f"s_lshl_b32 s{sT1}, s{sCg}, 7")
    h(f"s_add_u32 s{sT0}, s{sT0}, s{sT1}")
    h(f"v_add3_u32 v{vWoff}, v{vT + 3}, v{vT + 2}, s{sT0}")
    h(f"s_mul_i32 s{sWL}, s{sHw}, 3072")
    h("s_waitcnt lgkmcnt(0)")
    srd(h, sX, 4, 2048 * 1024)
    srd(h, sW, 6, 512 * 3072)
    dr = Drip(h)

    def x_dma(c, key):
        dr.add(key, [f"s_add_u32 m0, s36, {c * 8192}", f"s_add_u32 s43, s34, {c * 128}"],
               f"buffer_load_dwordx4 v{vXg}, {sr(sX, 4)}, s43 offen lds")
        dr.add(key, [], f"buffer_load_dwordx4 v{vXg + 1}, {sr(sX, 4)}, s43 offen offset:1024 lds")

    def issue(st):
        if st < 8:
            x_dma(st, st)
        for seg in range(3):
            pre = [f"s_add_u32 m0, s{sWL}, {WBASE + (st % NSLOT) * SLOT}", f"s_mov_b32 s42, {32 * st * 3072}"] if seg == 0 else []
            dr.add(st, pre, f"buffer_load_dwordx4 v{vWoff}, {sr(sW, 4)}, s42 offen offset:{seg * 1024} lds")

    for st in range(NSLOT):
        issue(st)
    AHEAD = OPT["k1_d"]
    dr.emit(5 * OPT["k1_t"])
    if OPT["k1_touch"]:
        h(f"s_lshl_b32 s{sT0}, s2, 2")
        h(f"s_add_u32 s{sT0}, s{sT0}, s{sHw}")
        h(f"s_mul_i32 s{sT1}, s{sT0}, 1536")
        h(f"s_lshl_b32 s{sT0}, s{sT0}, 11")
        h(f"v_lshlrev_b32 v30, 7, v{vLane}")
        h("s_mov_b64 exec, 0xfff")
        h.vm(f"buffer_load_dword v31, v30, {sr(sW, 4)}, s{sT1} offen")
        h("s_mov_b64 exec, 0xffff")
        h.vm(f"buffer_load_dword v31, v30, {sr(sX, 4)}, s{sT0} offen")
        h("s_mov_b64 exec, -1")
    dr.emit(5 * (AHEAD - OPT["k1_t"]))
    srd(h, sWS, 8, WS_SIZE)
    h(f"s_mov_b32 s{sOnes}, 0x3f803f80")
    h(f"v_lshrrev_b32 v{vT}, 2, v{vLane}")
    h(f"v_and_b32 v{vT + 1}, 3, v{vLane}")
    h(f"v_lshlrev_b32 v{vT + 2}, 7, v{vT}")
    h(f"v_lshl_add_u32 v{vT + 2}, v{vT + 1}, 4, v{vT + 2}")
    h(f"v_bfe_u32 v{vT + 3}, v{vLane}, 3, 1")
    h(f"v_lshl_add_u32 v{vT + 2}, v{vT + 3}, 6, v{vT + 2}")
    h(f"v_add_u32 v{vSr}, s36, v{vT + 2}")
    h(f"v_xor_b32 v{vSr + 1}, 64, v{vSr}")
    h(f"s_lshl_b32 s{sT0}, s{sHw}, 4")
    h(f"v_add_u32 v{vT}, s{sT0}, v{vT}")
    h(f"v_lshlrev_b32 v{vRs}, 2, v{vT}")
    h(f"v_add_u32 v{vRs}, {RSO}, v{vRs}")
    h(f"v_and_b32 v{vT + 2}, 31, v{vT}")
    h(f"v_lshl_add_u32 v{vT + 2}, v{vT + 1}, 5, v{vT + 2}")
    h(f"v_lshrrev_b32 v{vT + 3}, 5, v{vT}")
    h(f"v_lshl_add_u32 v{vT + 2}, v{vT + 3}, 6, v{vT + 2}")
    h(f"v_lshlrev_b32 v{vXe}, 4, v{vT + 2}")
    h(f"v_add_u32 v{vXe}, {XEO}, v{vXe}")
    h(f"v_mov_b32 v{vS}, 0")
    h(f"v_mov_b32 v{vQ}, 0")
    stamp(h)
    st_tok = {}
    for st in range(NST):
        dr.wait(st)
        if st == 12:
            h.wait_all(vm=False)
        h("s_barrier")
        if st in (0, 2, 4, 6, 8, 10, 12, 14, 15):
            stamp(h)
        if st < 8:
            b = XB + 8 * (st & 1)
            h.lg(f"ds_read_b128 {vr(b, 4)}, v{vSr} offset:{st * 8192}")
            st_tok[st] = h.lg(f"ds_read_b128 {vr(b + 4, 4)}, v{vSr + 1} offset:{st * 8192}")
        if st >= 1 and st + NSLOT - 1 < NST:
            issue(st + NSLOT - 1)
        tgt = min(NST - 1, st + AHEAD + min(st + 1, OPT["k1_g"]))
        while dr.q and dr.q[0][0] <= tgt:
            dr.emit()
        if st < 8:
            h.wait(lg=st_tok[st])
            b = XB + 8 * (st & 1)
            for r in range(8):
                h(f"v_dot2_f32_bf16 v{vS}, v{b + r}, s{sOnes}, v{vS}")
                h(f"v_dot2_f32_bf16 v{vQ}, v{b + r}, v{b + r}, v{vQ}")
        if st == 8:
            for pat in ("quad_perm:[1,0,3,2]", "quad_perm:[2,3,0,1]"):
                h(f"v_add_f32_dpp v{vS}, v{vS}, v{vS} {pat} row_mask:0xf bank_mask:0xf")
                h(f"v_add_f32_dpp v{vQ}, v{vQ}, v{vQ} {pat} row_mask:0xf bank_mask:0xf")
                h("s_nop 0")
            h(f"v_mul_f32 v{vM}, {hx(f2u(-1.0 / 512))}, v{vS}")
            h(f"v_mul_f32 v{vQ}, {hx(f2u(1.0 / 512))}, v{vQ}")
            h(f"v_fma_f32 v{vQ}, -v{vM}, v{vM}, v{vQ}")
            h(f"v_max_f32 v{vQ}, 0, v{vQ}")
            h(f"v_add_f32 v{vQ}, {hx(f2u(1e-5))}, v{vQ}")
        if st == 9:
            h(f"v_rsq_f32 v{vR}, v{vQ}")
            split_hi_lo(h, vM, XB, vT, vT + 1)
            h(f"v_cvt_pk_bf16_f32 v{XB + 1}, v{vT}, 0")
            h(f"v_mov_b32 v{XB + 2}, 0")
            h(f"v_mov_b32 v{XB + 3}, 0")
        if st == 10:
            h("s_mov_b32 exec_lo, 0x33333333")
            h("s_mov_b32 exec_hi, 0x33333333")
            h.lg(f"ds_write_b128 v{vXe}, {vr(XB, 4)}")
            h.lg(f"ds_write_b32 v{vRs}, v{vR}")
            h("s_mov_b64 exec, -1")
    h("s_barrier")
    stamp_flush(h, 0, sWS, sWave) if STAMPS else None
    h("s_endpgm")
    a.lines += h.lines
    a.label("L_k1_helper_skip")

    vXrd = [3, 4, 5, 6]
    vKoff, vVoff = 20, 21
    vWrd = [22, 23, 24]
    vCw, vCr, vEr, vRl, vRr = 25, 26, 27, 28, 29
    XF = [32, 36]
    WF = [40, 52]
    CS, ONES, XE = 64, 76, 80
    RV = 84
    accQ, accK, accV = 104, 120, 136
    a(f"v_lshlrev_b32 v30, 7, v{vLane}")
    a(f"s_cmp_lg_u32 s{sWave}, 2")
    a("s_cbranch_scc1 L_k1_nocode")
    if OPT["pf_code"]:
        a(f"s_lshr_b32 s{sT0}, s2, 3")
        a(f"s_lshl_b32 s{sT0}, s{sT0}, 11")
        a(f"v_add_u32 v30, s{sT0}, v30")
        a("s_mov_b64 exec, 0xffff")
        code_prefetch(a, name, 44, 30, 31, "k1")
        a("s_mov_b64 exec, -1")
    a.label("L_k1_nocode")
    a(f"s_lshr_b32 s{sWr}, s{sHw}, 1")
    a(f"s_and_b32 s{sWc}, s{sHw}, 1")
    a(f"v_and_b32 v{vT}, 31, v{vLane}")
    a(f"v_lshrrev_b32 v{vT + 1}, 5, v{vLane}")
    a(f"v_bfe_u32 v{vT + 2}, v{vLane}, 1, 3")
    a(f"v_xor_b32 v{vT + 2}, v{vT + 2}, v{vT + 1}")
    a(f"v_lshlrev_b32 v{vT + 2}, 4, v{vT + 2}")
    a(f"v_lshl_add_u32 v{vT + 2}, v{vT}, 7, v{vT + 2}")
    a(f"s_lshl_b32 s{sT0}, s{sWr}, 12")
    a(f"v_add_u32 v{vXrd[0]}, s{sT0}, v{vT + 2}")
    for ss in range(1, 4):
        a(f"v_xor_b32 v{vXrd[ss]}, {ss * 32}, v{vXrd[0]}")
    a(f"v_mul_u32_u24 v{vT + 2}, 3072, v{vT + 1}")
    a(f"v_bfe_u32 v{vT + 3}, v{vLane}, 2, 2")
    a(f"v_lshl_add_u32 v{vT + 2}, v{vT + 3}, 7, v{vT + 2}")
    a(f"v_lshrrev_b32 v{vT + 3}, 1, v{vT + 3}")
    a(f"v_xor_b32 v{vT + 3}, s{sWc}, v{vT + 3}")
    a(f"v_lshl_add_u32 v{vT + 2}, v{vT + 3}, 6, v{vT + 2}")
    a(f"v_bfe_u32 v{vT + 4}, v{vLane}, 4, 1")
    a(f"v_lshl_add_u32 v{vT + 2}, v{vT + 4}, 5, v{vT + 2}")
    a(f"v_and_b32 v{vT + 3}, 3, v{vLane}")
    a(f"v_lshl_add_u32 v{vWrd[0]}, v{vT + 3}, 3, v{vT + 2}")
    wl = LdsAddr(a, vWrd)
    wl.setup(a)
    a(f"v_xor_b32 v{vT + 2}, v{vT + 4}, v{vLane}")
    a(f"v_and_b32 v{vT + 2}, 1, v{vT + 2}")
    a(f"v_cmp_eq_u32 vcc, 0, v{vT + 2}")
    a(f"v_mov_b32 v{vT + 2}, 0x3f803f80")
    a("s_nop 0")
    for r in range(4):
        a(f"v_cndmask_b32 v{ONES + r}, 0, v{vT + 2}, vcc")
    a(f"s_lshl_b32 s{sT0}, s{sWc}, 1")
    a(f"s_add_u32 s{sT1}, s{sT0}, s{sWr}")
    a(f"s_mul_i32 s{sT1}, s{sT1}, 384")
    a(f"s_add_u32 s{sT1}, s{sT1}, {CSO}")
    a(f"v_and_b32 v{vT + 2}, 1, v{vLane}")
    a(f"v_lshlrev_b32 v{vT + 2}, 6, v{vT + 2}")
    a(f"v_and_b32 v{vT + 3}, 48, v{vLane}")
    a(f"v_add3_u32 v{vCw}, v{vT + 2}, v{vT + 3}, s{sT1}")
    a(f"s_mul_i32 s{sT0}, s{sT0}, 384")
    a(f"s_add_u32 s{sT0}, s{sT0}, {CSO}")
    a(f"v_mul_u32_u24 v{vT + 2}, 384, v{vT + 1}")
    a(f"v_lshl_add_u32 v{vT + 2}, v{vT}, 2, v{vT + 2}")
    a(f"v_add_u32 v{vCr}, s{sT0}, v{vT + 2}")
    a(f"s_lshl_b32 s{sT0}, s{sWr}, 10")
    a(f"s_add_u32 s{sT0}, s{sT0}, {XEO}")
    a(f"v_add_u32 v{vEr}, s{sT0}, v{vL16}")
    a(f"s_lshl_b32 s{sT0}, s{sWr}, 7")
    a(f"s_add_u32 s{sT0}, s{sT0}, {RSO}")
    a(f"v_lshl_add_u32 v{vRl}, v{vT}, 2, s{sT0}")
    a(f"v_lshl_add_u32 v{vRr}, v{vT + 1}, 4, s{sT0}")
    a(f"v_and_b32 v{vT + 2}, 0x33, v{vLane}")
    a(f"v_bfe_u32 v{vT + 3}, v{vLane}, 2, 1")
    a(f"v_lshl_or_b32 v{vT + 2}, v{vT + 3}, 3, v{vT + 2}")
    a(f"v_bfe_u32 v{vT + 3}, v{vLane}, 3, 1")
    a(f"v_lshl_or_b32 v{vT + 2}, v{vT + 3}, 2, v{vT + 2}")
    a(f"v_lshlrev_b32 v{vKoff}, 4, v{vT + 2}")
    a(f"v_lshlrev_b32 v{vT + 2}, 17, v{vT + 4}")
    a(f"v_lshl_add_u32 v{vT + 2}, v{vT + 1}, 8, v{vT + 2}")
    a(f"v_and_b32 v{vT + 3}, 15, v{vLane}")
    a(f"v_lshl_add_u32 v{vVoff}, v{vT + 3}, 4, v{vT + 2}")
    a(f"s_lshl_b32 s{sT0}, s{sCg}, 2")
    a(f"s_lshl_b32 s{sT1}, s{sWc}, 1")
    a(f"s_add_u32 s{sT0}, s{sT0}, s{sT1}")
    a(f"s_lshl_b32 s{sT1}, s{sRb}, 1")
    a(f"s_add_u32 s{sT1}, s{sT1}, s{sWr}")
    a(f"s_lshl_b32 s46, s{sT0}, 16")
    a(f"s_lshl_b32 s47, s{sT1}, 10")
    a(f"s_add_u32 s46, s46, s47")
    if QF:
        a(f"s_add_u32 s46, s46, {QF}")
    a(f"s_add_u32 s47, s46, 65536")
    a(f"s_lshl_b32 s36, s{sT0}, 17")
    a(f"s_lshl_b32 s37, s{sT1}, 11")
    a(f"s_add_u32 s36, s36, s37")
    a(f"s_add_u32 s36, s36, {KVF}")
    a(f"s_add_u32 s37, s36, 131072")
    for r in range(12):
        a(f"v_mov_b32 v{CS + r}, 0")
    a("s_waitcnt lgkmcnt(0)")
    srd(a, sWS, 8, WS_SIZE)

    def reads(s):
        st, ss = divmod(s, 2)
        ops = [f"ds_read_b128 {vr(XF[s & 1], 4)}, v{vXrd[s & 3]} offset:{(s >> 2) * 8192}"]
        for seg in range(3):
            for half in range(2):
                reg, off = wl.at(WBASE + (st % NSLOT) * SLOT + ss * 6144 + seg * 1024 + half * 512)
                ops.append(f"ds_read_b64_tr_b16 {vr(WF[s & 1] + 4 * seg + 2 * half, 2)}, {reg} offset:{off}")
        return ops

    rt = {}

    def emit_reads(b, s, lo, hi):
        ops = reads(s)
        for k in range(lo, min(hi, 7)):
            rt[(s, k)] = b.lg(ops[k])

    stamp(a)
    a("s_barrier")
    stamp(a)
    emit_reads(a, 0, 0, 7)
    a(f"s_cmp_eq_u32 s{sWr}, 1")
    a("s_cbranch_scc1 L_k1_odd")
    rt0 = dict(rt)
    odd = fork(a)
    odd.label("L_k1_odd")
    acc = [accQ, accK, accV]

    def mm(b, j, w, x, first=False):
        c = "0" if first else vr(acc[j], 16)
        ops = (vr(w, 4), vr(x, 4)) if j < 2 else (vr(x, 4), vr(w, 4))
        b(f"v_mfma_f32_32x32x16_bf16 {vr(acc[j], 16)}, {ops[0]}, {ops[1]}, {c}")

    def csum(b, s, j):
        b(f"v_mfma_f32_16x16x32_bf16 {vr(CS + 4 * j, 4)}, {vr(WF[s & 1] + 4 * j, 4)}, {vr(ONES, 4)}, {vr(CS + 4 * j, 4)}")

    for par, b in ((0, a), (1, odd)):
        rt.clear()
        rt.update(rt0)
        for s in range(31):
            if s == 16:
                stamp(b)
            if s % 2 == 1:
                b.wait(lg=rt[(s, 6)])
                b("s_barrier")
            for j in range(3):
                b.wait(lg=rt[(s, 2 + 2 * j)])
                if s % 2 == par:
                    csum(b, s, j)
                mm(b, j, WF[s & 1] + 4 * j, XF[s & 1], s == 0)
                emit_reads(b, s + 1, [0, 3, 5][j], [3, 5, 7][j])
            if s == 27:
                b.lg(f"ds_read_b128 {vr(XE, 4)}, v{vEr}")
                b.lg(f"ds_read_b32 v100, v{vRl}")
            if s == 28:
                for g in range(4):
                    b.lg(f"ds_read_b128 {vr(RV + 4 * g, 4)}, v{vRr} offset:{g * 32}")
        b.wait_all(vm=False)
        if par == 1:
            for j in range(3):
                csum(b, 31, j)
    odd("s_branch L_k1_join")
    a.label("L_k1_join")
    mm(a, 0, WF[1], XF[1])
    for j in range(3):
        a(f"v_mov_b32 v{WF[0] + 4 * j + 2}, 0")
        a(f"v_mov_b32 v{WF[0] + 4 * j + 3}, 0")
    a(f"v_mul_f32 v101, {hx(f2u(0.25 * LOG2E))}, v100")
    a("s_mov_b32 exec_lo, 0x00030003")
    a("s_mov_b32 exec_hi, 0x00030003")
    for j in range(3):
        a.lg(f"ds_write_b128 v{vCw}, {vr(CS + 4 * j, 4)} offset:{j * 128}")
    a("s_mov_b64 exec, -1")
    mm(a, 1, WF[1] + 4, XF[1])
    a.wait_all(vm=False)
    a("s_barrier")
    for j in range(3):
        rt[("c", j)] = a.lg(f"ds_read_b32 v{vT + 4 + j}, v{vCr} offset:{j * 128}")
    mm(a, 2, WF[1] + 8, XF[1])
    stamp(a)
    for j in range(3):
        w = WF[0] + 4 * j
        a.wait(lg=rt[("c", j)])
        a(f"v_cvt_pk_bf16_f32 v{w + 1}, v{vT + 4 + j}, 0")
        a(f"v_lshlrev_b32 v{vT}, 16, v{w + 1}")
        a(f"v_sub_f32 v{vT}, v{vT + 4 + j}, v{vT}")
        a(f"v_cvt_pk_bf16_f32 v{w}, v{vT + 4 + j}, v{vT}")
    for j in range(3):
        mm(a, j, WF[0] + 4 * j, XE)
    a("s_nop 9")
    P = 32
    for r in range(0, 16, 2):
        a(f"v_pk_mul_f32 {vr(accQ + r, 2)}, {vr(accQ + r, 2)}, v[100:101] op_sel:[0,1] op_sel_hi:[1,1]")
    for i in range(8):
        a(f"v_cvt_pk_bf16_f32 v{P + i}, v{accQ + 2 * i}, v{accQ + 2 * i + 1}")
    a.vm(f"buffer_store_dwordx4 {vr(P, 4)}, v{vL16}, {sr(sWS, 4)}, s46 offen")
    a.vm(f"buffer_store_dwordx4 {vr(P + 4, 4)}, v{vL16}, {sr(sWS, 4)}, s47 offen")
    for r in range(0, 16, 2):
        a(f"v_pk_mul_f32 {vr(accK + r, 2)}, {vr(accK + r, 2)}, v[100:101] op_sel_hi:[1,0]")
    for i in range(8):
        a(f"v_cvt_pk_bf16_f32 v{P + 8 + i}, v{accK + 2 * i}, v{accK + 2 * i + 1}")
    a.vm(f"buffer_store_dwordx4 {vr(P + 8, 4)}, v{vKoff}, {sr(sWS, 4)}, s36 offen")
    a.vm(f"buffer_store_dwordx4 {vr(P + 12, 4)}, v{vKoff}, {sr(sWS, 4)}, s37 offen")
    for r in range(0, 16, 2):
        a(f"v_pk_mul_f32 {vr(accV + r, 2)}, {vr(accV + r, 2)}, {vr(RV + r, 2)}")
    for i in range(8):
        a(f"v_cvt_pk_bf16_f32 v{P + 16 + i}, v{accV + 2 * i}, v{accV + 2 * i + 1}")
    a.vm(f"buffer_store_dwordx4 {vr(P + 16, 4)}, v{vVoff}, {sr(sWS, 4)}, s36 offen offset:1024")
    a.vm(f"buffer_store_dwordx4 {vr(P + 20, 4)}, v{vVoff}, {sr(sWS, 4)}, s36 offen offset:1536")
    stamp(a)
    stamp_flush(a, 0, sWS, sWave)
    kernel_end(a, name)
    return name, a.text() + odd.text(), descriptor(name, 152, 0), (256, 512, RSO + 256)


def gen_k2():
    name = "k2_attn_kernel"
    a = Asm()
    kernel_begin(a, name, 256)
    sWS = 12
    sWave, sHead, sQb, sKh, sQs = 24, 25, 26, 27, 28
    sT0, sT1 = 30, 31
    sVm = 34
    vLane, vL16, vKrd, vVrd, vIdx, vXw, vXr = 1, 2, 3, 4, 5, 6, 7
    Qf = [8, 12]
    Kf = 16
    Vf = 32
    S = [64, 80]
    O = [96, 112]
    NEG = 128
    T = 144
    XCH = 131072
    NPRE = OPT["k2_pre"]
    a("s_load_dwordx2 s[8:9], s[0:1], 72")
    a(f"v_lshrrev_b32 v8, 6, v0")
    a(f"v_and_b32 v{vLane}, 63, v0")
    a(f"v_readfirstlane_b32 s{sWave}, v8")
    a(f"v_lshlrev_b32 v{vL16}, 4, v{vLane}")
    a(f"s_and_b32 s{sT0}, s2, 7")
    a(f"s_lshl_b32 s{sT0}, s{sT0}, 2")
    a(f"s_lshr_b32 s{sT1}, s2, 6")
    a(f"s_add_u32 s{sHead}, s{sT0}, s{sT1}")
    a(f"s_lshl_b32 s33, s{sHead}, 17")
    a(f"s_add_u32 s33, s33, {KVF}")
    a(f"s_cmp_eq_u32 s{sWave}, 8")
    a("s_cbranch_scc0 L_k2_compute")
    a("s_load_dwordx2 s[4:5], s[0:1], 0")
    a("s_load_dwordx2 s[6:7], s[0:1], 16")
    a("s_load_dwordx4 s[48:51], s[0:1], 32")
    a("s_load_dwordx2 s[10:11], s[0:1], 48")
    a("s_barrier")
    a("s_branch L_k2_loader")
    a.label("L_k2_compute")

    h = fork(a)
    h.label("L_k2_loader")
    h("s_setprio 3")
    h("s_waitcnt lgkmcnt(0)")
    srd(h, sWS, 8, WS_SIZE)
    for c in range(NPRE, 8):
        for half in range(2):
            for q in range(2):
                h(f"s_mov_b32 m0, {half * 65536 + c * 8192 + q * 4096}")
                h(f"s_add_u32 s37, s33, {c * 16384 + half * 8192 + q * 4096}")
                for i in range(4):
                    h.vm(f"buffer_load_dwordx4 v{vL16}, {sr(sWS, 4)}, s37 offen offset:{i * 1024} lds")
        h("s_waitcnt vmcnt(40)")
        if c == NPRE + 1 and OPT["k2_b3"]:
            h("s_barrier")
    srd(h, 16, 6, 512 * 1024)
    srd(h, 20, 48, 512 * 2752)
    srd(h, 52, 50, 512 * 2752)
    h(f"s_and_b32 s{sT0}, s2, 7")
    h(f"s_lshl_b32 s{sT1}, s{sT0}, 18")
    h(f"s_add_u32 s4, s4, s{sT1}")
    h("s_addc_u32 s5, s5, 0")
    srd(h, 44, 4, 256 * 1024)
    h(f"s_mul_i32 s{sT0}, s{sT0}, {172 * 1024}")
    h(f"s_add_u32 s10, s10, s{sT0}")
    h("s_addc_u32 s11, s11, 0")
    srd(h, 40, 10, 172 * 1024)
    h(f"s_lshr_b32 s{sT0}, s2, 3")
    h("v_lshlrev_b32 v3, 7, v1")
    h.wait_all()
    h("s_barrier")
    if OPT["pf_w"]:
        for sq, per, n in ((16, 16384, 2), (44, 8192, 1), (20, 49152, 6), (52, 49152, 6), (40, 8192, 1)):
            h(f"s_mul_i32 s{sT1}, s{sT0}, {per}")
            h(f"v_add_u32 v4, s{sT1}, v3")
            for i in range(n):
                h.vm(f"buffer_load_dword v5, v4, {sr(sq, 4)}, 0 offen")
                if i + 1 < n:
                    h("v_add_u32 v4, 0x2000, v4")
    if OPT["pf_code"]:
        h(f"s_lshl_b32 s{sT1}, s{sT0}, 11")
        h(f"v_add_u32 v4, s{sT1}, v3")
        h("s_mov_b64 exec, 0xffff")
        code_prefetch(h, "k3_wo_kernel", 38, 4, 5, "k2")
    h("s_endpgm")

    a(f"s_bfe_u32 s{sQb}, s2, 0x30003")
    a(f"s_lshr_b32 s{sKh}, s{sWave}, 2")
    a(f"s_and_b32 s{sQs}, s{sWave}, 3")
    a(f"s_lshl_b32 s32, s{sKh}, 16")
    a(f"s_lshl_b32 s{sT0}, s{sQs}, 11")
    a(f"s_add_u32 s32, s32, s{sT0}")
    a(f"s_lshl_b32 s38, s{sWave}, 11")
    a("s_add_u32 s33, s33, s38")
    a(f"s_lshl_b32 s36, s{sHead}, 16")
    a(f"s_lshl_b32 s{sT1}, s{sQb}, 13")
    a(f"s_add_u32 s36, s36, s{sT1}")
    a(f"s_add_u32 s36, s36, s{sT0}")
    if QF:
        a(f"s_add_u32 s36, s36, {QF}")
    a(f"s_lshl_b32 s{sT0}, s{sKh}, 10")
    a(f"s_add_u32 s36, s36, s{sT0}")
    a(f"s_xor_b32 s39, s36, 1024")
    a(f"s_mov_b32 m0, s32")
    a(f"v_and_b32 v{T}, 27, v{vLane}")
    a(f"v_cmp_eq_u32 vcc, 16, v{T}")
    a(f"v_mov_b32 v{T}, 0x3f803f80")
    a(f"v_mov_b32 v{vIdx}, 0xdddd")
    for r in range(32):
        a(f"v_cndmask_b32 v{Vf + r}, 0, v{T}, vcc")
    a("s_waitcnt lgkmcnt(0)")
    srd(a, sWS, 8, WS_SIZE)
    a.vm(f"buffer_load_dwordx4 v{vL16}, {sr(sWS, 4)}, s33 offen lds")
    a.vm(f"buffer_load_dwordx4 {vr(Qf[0], 4)}, v{vL16}, {sr(sWS, 4)}, s36 offen")
    a.vm(f"buffer_load_dwordx4 {vr(Qf[1], 4)}, v{vL16}, {sr(sWS, 4)}, s39 offen")
    a.vm(f"buffer_load_dwordx4 v{vL16}, {sr(sWS, 4)}, s33 offen offset:1024 lds")
    for c in range(1, NPRE):
        a(f"s_add_u32 m0, s32, {c * 8192}")
        a(f"s_add_u32 s37, s33, {c * 16384}")
        a.vm(f"buffer_load_dwordx4 v{vL16}, {sr(sWS, 4)}, s37 offen lds")
        a.vm(f"buffer_load_dwordx4 v{vL16}, {sr(sWS, 4)}, s37 offen offset:1024 lds")
    a(f"s_mov_b32 s{sVm}, 0x0000ffff")
    a(f"s_mov_b32 s{sVm + 1}, 0x0000ffff")
    a(f"s_lshl_b32 s{sT0}, s{sKh}, 16")
    a(f"v_add_u32 v{vKrd}, s{sT0}, v{vL16}")
    a(f"v_lshrrev_b32 v{T}, 5, v{vLane}")
    a(f"v_and_b32 v{T + 1}, 15, v{vLane}")
    a(f"v_lshlrev_b32 v{T + 1}, 4, v{T + 1}")
    a(f"v_lshl_add_u32 v{T}, v{T}, 8, v{T + 1}")
    a(f"v_add_u32 v{vVrd}, s{sT0}, v{T}")
    a(f"s_mul_i32 s{sT0}, s{sWave}, 3072")
    a(f"s_add_u32 s{sT0}, s{sT0}, {XCH}")
    a(f"v_add_u32 v{vXw}, s{sT0}, v{vL16}")
    a(f"s_xor_b32 s{sT1}, s{sWave}, 4")
    a(f"s_mul_i32 s{sT0}, s{sT1}, 3072")
    a(f"s_add_u32 s{sT0}, s{sT0}, {XCH}")
    a(f"v_add_u32 v{vXr}, s{sT0}, v{vL16}")
    for c in range(2):
        for r in range(16):
            a(f"v_mov_b32 v{O[c] + r}, 0")
    a(f"s_lshl_b32 s57, s{sQb}, 3")
    a(f"s_lshl_b32 s{sT1}, s{sQs}, 1")
    a(f"s_add_u32 s57, s57, s{sT1}")
    a(f"s_add_u32 s57, s57, s{sKh}")
    a(f"s_lshl_b32 s57, s57, 15")
    a(f"s_lshl_b32 s{sT1}, s{sHead}, 10")
    a(f"s_add_u32 s57, s57, s{sT1}")
    a(f"s_add_u32 s57, s57, {OF}")

    def emit_pair(p):
        for t in (2 * p, 2 * p + 1):
            a.lg(f"ds_read_b128 {vr(Kf + 4 * (t & 3), 4)}, v{vKrd} offset:{t * 2048}")
        a(f"s_mov_b64 exec, {sr(sVm, 2)}")
        for t in (2 * p, 2 * p + 1):
            a.lg(f"ds_read_b128 {vr(Vf + 8 * (t & 3), 4)}, v{vVrd} offset:{t * 2048 + 1024}")
            tok = a.lg(f"ds_read_b128 {vr(Vf + 8 * (t & 3) + 4, 4)}, v{vVrd} offset:{t * 2048 + 1536}")
        a("s_mov_b64 exec, -1")
        return tok

    def qk(u):
        t, c = divmod(u, 2)
        return f"v_mfma_f32_32x32x16_bf16 {vr(S[u & 1], 16)}, {vr(Kf + 4 * (t & 3), 4)}, {vr(Qf[c], 4)}, 0"

    def pv(u, i):
        t, c = divmod(u, 2)
        return (f"v_smfmac_f32_32x32x32_bf16 {vr(O[c], 16)}, {vr(Vf + 8 * (t & 3) + 4 * i, 4)}, "
                f"{vr(S[u & 1] + 8 * i, 8)}, v{vIdx}")

    NU = 64
    UB = 4 * (2 * NPRE - 1)
    PRIO = {}
    if OPT["k2_prio"]:
        PRIO = {0: 1, UB - 2: 0, UB + 1: 2, NU - 6: 1, NU - 2: 0}
        if OPT['k2_b3']:
            PRIO.update({3: 0, 5: 1})
    stamp(a)
    if OPT["k2_b3"]:
        a.wait(vm=3)
    else:
        a.wait_all(lg=False)
    a("s_barrier")
    stamp(a)
    ptok = {0: emit_pair(0)}
    a.wait(lg=ptok[0] - 5)
    a(qk(0))
    a.wait(lg=ptok[0])
    a("s_nop 9")
    for u in range(NU):
        X = S[u & 1]
        p, pu = divmod(u, 4)
        if u in (8, 16, 32, 48):
            stamp(a)
        if u in PRIO:
            a(f"s_setprio {PRIO[u]}")
        elif u == 0:
            a("s_nop 0")
        ex = [f"v_exp_f32 v{X + i}, v{X + i}" for i in range(16)]
        a(ex[0]); a(ex[1])
        if u > 0:
            a(pv(u - 1, 1))
        a(ex[2]); a(ex[3]); a(ex[4])
        if u + 1 < NU:
            if pu == 3:
                a.wait(lg=ptok[p + 1])
            a(qk(u + 1))
        if pu == 0 and p + 1 < 16:
            if u == 4 and OPT["k2_b3"]:
                a.wait_all(lg=False)
                a("s_barrier")
            if u == UB:
                a("s_barrier")
            ptok[p + 1] = emit_pair(p + 1)
        for i in range(5, 10):
            a(ex[i])
        a(pv(u, 0))
        for i in range(10, 16):
            a(ex[i])
    a("s_nop 1")
    a(pv(NU - 1, 1))
    a("s_nop 11")
    stamp(a)
    a.lg(f"ds_write_b128 v{vXw}, {vr(O[1], 4)}")
    a.lg(f"ds_write_b128 v{vXw}, {vr(O[1] + 4, 4)} offset:1024")
    a.lg(f"ds_write_b32 v{vXw}, v{O[1] + 8} offset:2048")
    a(f"s_mov_b32 s{sT0}, {hx(f2u(2.0 ** 80))}")
    a(f"s_mov_b32 s{sT1}, {hx(f2u(2.0 ** -80))}")
    a.wait_all(vm=False)
    a("s_barrier")
    t2 = a.lg(f"ds_read_b32 v{T + 8}, v{vXr} offset:2048")
    t0 = a.lg(f"ds_read_b128 {vr(T, 4)}, v{vXr}")
    t1 = a.lg(f"ds_read_b128 {vr(T + 4, 4)}, v{vXr} offset:1024")
    a.wait(lg=t2)
    a(f"v_add_f32 v{O[0] + 8}, v{O[0] + 8}, v{T + 8}")
    a.wait(lg=t1)
    for r in range(0, 8, 2):
        a(f"v_pk_add_f32 {vr(O[0] + r, 2)}, {vr(O[0] + r, 2)}, {vr(T + r, 2)}")
    a("s_mov_b32 s56, 0")
    a.label("L_k2_finish")
    a(f"v_rcp_f32 v{T + 8}, v{O[0] + 8}")
    a(f"v_cmp_gt_f32 s[40:41], s{sT0}, v{O[0] + 8}")
    a(f"v_cmp_lt_f32 s[42:43], s{sT1}, v{O[0] + 8}")
    for r in range(0, 8, 2):
        a(f"v_pk_mul_f32 {vr(O[0] + r, 2)}, {vr(O[0] + r, 2)}, {vr(T + 8, 2)} op_sel_hi:[1,0]")
    for i in range(4):
        a(f"v_cvt_pk_bf16_f32 v{T + 4 + i}, v{O[0] + 2 * i}, v{O[0] + 2 * i + 1}")
    a(f"v_dot2_f32_bf16 v{T}, v{T + 4}, v{T + 4}, 0")
    for i in range(1, 4):
        a(f"v_dot2_f32_bf16 v{T}, v{T + 4 + i}, v{T + 4 + i}, v{T}")
    a("s_and_b64 s[40:41], s[40:41], s[42:43]")
    a("s_cmp_lg_u32 s56, 0")
    a("s_cbranch_scc1 L_k2_store")
    a(f"v_cmp_gt_f32 vcc, s{sT0}, v{T}")
    a("s_nop 0")
    a("s_and_b64 s[40:41], s[40:41], vcc")
    a("s_cmp_eq_u64 s[40:41], -1")
    a("s_cbranch_scc0 L_k2_fallback")
    a.label("L_k2_store")
    a.vm(f"buffer_store_dwordx4 {vr(T + 4, 4)}, v{vL16}, {sr(sWS, 4)}, s57 offen")
    stamp(a)
    stamp_flush(a, 1, sWS, sWave)
    a("s_endpgm")
    a.label("L_k2_fallback")
    vK2, vV2, vM = T + 10, T + 11, T + 12
    a(f"s_lshl_b32 s37, s{sKh}, 16")
    a(f"v_subrev_u32 v{vK2}, s37, v{vKrd}")
    a(f"v_mov_b32 v{vM}, 0xff800000")
    a("s_mov_b32 s56, 0")
    a.label("L_k2_fb_max")
    a(f"ds_read_b128 {vr(Kf, 4)}, v{vK2}")
    a("s_waitcnt lgkmcnt(0)")
    a(f"v_mfma_f32_32x32x16_bf16 {vr(S[0], 16)}, {vr(Kf, 4)}, {vr(Qf[0], 4)}, 0")
    a("s_nop 15")
    for i in range(8):
        a(f"v_max3_f32 v{vM}, v{vM}, v{S[0] + 2 * i}, v{S[0] + 2 * i + 1}")
    a(f"v_add_u32 v{vK2}, 2048, v{vK2}")
    a("s_add_u32 s56, s56, 1")
    a("s_cmp_lt_u32 s56, 64")
    a("s_cbranch_scc1 L_k2_fb_max")
    a(f"v_mov_b32 v{T}, v{vM}")
    a("s_nop 1")
    a(f"v_permlane32_swap_b32 v{vM}, v{T}")
    a("s_nop 1")
    a(f"v_max_f32 v{vM}, v{vM}, v{T}")
    for r in range(16):
        a(f"v_sub_f32 v{NEG + r}, 0, v{vM}")
        a(f"v_mov_b32 v{O[0] + r}, 0")
    a(f"v_subrev_u32 v{vK2}, s37, v{vKrd}")
    a(f"v_subrev_u32 v{vV2}, s37, v{vVrd}")
    a("s_mov_b32 s56, 0")
    a.label("L_k2_fb_pv")
    a(f"ds_read_b128 {vr(Kf, 4)}, v{vK2}")
    a(f"s_mov_b64 exec, {sr(sVm, 2)}")
    a(f"ds_read_b128 {vr(Vf, 4)}, v{vV2} offset:1024")
    a(f"ds_read_b128 {vr(Vf + 4, 4)}, v{vV2} offset:1536")
    a("s_mov_b64 exec, -1")
    a("s_waitcnt lgkmcnt(0)")
    a(f"v_mfma_f32_32x32x16_bf16 {vr(S[0], 16)}, {vr(Kf, 4)}, {vr(Qf[0], 4)}, {vr(NEG, 16)}")
    a("s_nop 15")
    for i in range(16):
        a(f"v_exp_f32 v{S[0] + i}, v{S[0] + i}")
    a("s_nop 1")
    a(f"v_smfmac_f32_32x32x32_bf16 {vr(O[0], 16)}, {vr(Vf, 4)}, {vr(S[0], 8)}, v{vIdx}")
    a(f"v_smfmac_f32_32x32x32_bf16 {vr(O[0], 16)}, {vr(Vf + 4, 4)}, {vr(S[0] + 8, 8)}, v{vIdx}")
    a("s_nop 15")
    a(f"v_add_u32 v{vK2}, 2048, v{vK2}")
    a(f"v_add_u32 v{vV2}, 2048, v{vV2}")
    a("s_add_u32 s56, s56, 1")
    a("s_cmp_lt_u32 s56, 64")
    a("s_cbranch_scc1 L_k2_fb_pv")
    a("s_branch L_k2_finish")
    kernel_end(a, name)
    return name, a.text() + h.text(), descriptor(name, 160, 0), (256, 576, XCH + 8 * 3072)


def gen_res(kind):
    k3 = kind == "k3"
    name = "k3_wo_kernel" if k3 else "k5_down_kernel"
    kidx = 2 if k3 else 4
    KS = 32 if k3 else 86
    ACT = OF if k3 else GF
    NST = (KS + 3) // 4
    NSLOT, SLOT = 8, 16384
    RESO = NSLOT * SLOT
    TRO = RESO + 8192
    RST = 2
    a = Asm()
    kernel_begin(a, name, 256)
    sW, sWS, sIO = 12, 16, 20
    sWave, sWr, sWc, sRb, sCb, sHw = 24, 25, 26, 27, 28, 29
    sT0, sT1 = 30, 31
    vLane, vL16 = 1, 2
    T = 12
    if k3:
        a("s_load_dwordx2 s[4:5], s[0:1], 16")
        a("s_load_dwordx2 s[6:7], s[0:1], 0")
    else:
        a("s_load_dwordx4 s[4:7], s[0:1], 48")
    a("s_load_dwordx2 s[8:9], s[0:1], 72")
    a(f"v_and_b32 v{vLane}, 63, v0")
    a(f"v_lshrrev_b32 v{T}, 6, v0")
    a(f"v_lshlrev_b32 v{vL16}, 4, v{vLane}")
    a(f"v_readfirstlane_b32 s{sWave}, v{T}")
    a(f"s_and_b32 s{sT0}, s2, 7")
    a(f"s_lshl_b32 s{sRb}, s{sT0}, 2")
    a(f"s_lshr_b32 s34, s2, 6")
    a(f"s_add_u32 s{sRb}, s{sRb}, s34")
    a(f"s_bfe_u32 s{sCb}, s2, 0x30003")
    a(f"s_and_b32 s{sHw}, s{sWave}, 3")
    a(f"s_and_b32 s{sWr}, s{sWave}, 1")
    a(f"s_bfe_u32 s{sWc}, s{sWave}, 0x10001")
    a(f"s_cmp_ge_u32 s{sWave}, 4")
    a(f"s_cbranch_scc0 L_{kind}_helper_skip")

    h = fork(a)
    h.label(f"L_{kind}_helper")
    vWoff, vXg = 3, 5
    h(f"v_lshrrev_b32 v{T}, 3, v{vLane}")
    h(f"v_and_b32 v{T + 1}, 7, v{vLane}")
    h(f"v_lshrrev_b32 v{T + 2}, 2, v{vLane}")
    h(f"v_and_b32 v{T + 2}, 4, v{T + 2}")
    h(f"v_xor_b32 v{T + 2}, v{T + 2}, v{T + 1}")
    h(f"v_lshlrev_b32 v{T + 2}, 4, v{T + 2}")
    h(f"v_lshl_add_u32 v{T + 2}, v{T}, 10, v{T + 2}")
    h(f"s_lshl_b32 s{sT0}, s{sHw}, 14")
    h(f"s_lshl_b32 s{sT1}, s{sCb}, 7")
    h(f"s_add_u32 s{sT0}, s{sT0}, s{sT1}")
    h(f"v_add_u32 v{vWoff}, s{sT0}, v{T + 2}")
    h(f"v_add_u32 v{vWoff + 1}, {8192 - 1024}, v{vWoff}")
    h(f"s_lshl_b32 s32, s{sHw}, 11")
    h(f"s_lshl_b32 s33, s{sRb}, 1")
    h(f"s_add_u32 s33, s33, s{sWr}")
    h(f"s_mul_i32 s34, s33, {KS * 1024}")
    h(f"s_lshl_b32 s{sT1}, s{sWc}, 11")
    h(f"s_add_u32 s34, s34, s{sT1}")
    h(f"s_add_u32 s34, s34, {ACT}")
    h(f"s_lshl_b32 s35, s{sWr}, 12")
    h(f"s_add_u32 s35, s35, s{sT1}")
    if k3:
        h(f"v_lshrrev_b32 v{T + 2}, 1, v{T}")
        h(f"v_xor_b32 v{T + 2}, v{T + 2}, v{T + 1}")
        h(f"v_lshlrev_b32 v{T + 2}, 4, v{T + 2}")
        h(f"v_lshl_add_u32 v{vXg}, v{T}, 10, v{T + 2}")
        h(f"v_xor_b32 v{vXg + 1}, 64, v{vXg}")
        h(f"v_add_u32 v{vXg + 1}, {8192 - 1024}, v{vXg + 1}")
        h(f"s_lshl_b32 s36, s{sRb}, 16")
        h(f"s_add_u32 s36, s36, s{sT0}")
    else:
        h(f"s_lshl_b32 s36, s33, 15")
        h(f"s_lshl_b32 s{sT0}, s{sCb}, 12")
        h(f"s_add_u32 s36, s36, s{sT0}")
        h(f"s_add_u32 s36, s36, s{sT1}")
        h(f"s_add_u32 s36, s36, {HF}")
    h("s_waitcnt lgkmcnt(0)")
    srd(h, sWS, 8, WS_SIZE)
    srd(h, sW, 4, KS * 16 * 1024)
    if k3:
        srd(h, sIO, 6, 2048 * 1024)
    dr = Drip(h)

    def issue(st):
        sl = (st % NSLOT) * SLOT
        dr.add(st, [f"s_add_u32 m0, s35, {sl + 8192}", f"s_add_u32 s43, s34, {st * 4096}"],
               f"buffer_load_dwordx4 v{vL16}, {sr(sWS, 4)}, s43 offen lds")
        dr.add(st, [], f"buffer_load_dwordx4 v{vL16}, {sr(sWS, 4)}, s43 offen offset:1024 lds")
        dr.add(st, [f"s_add_u32 m0, s32, {sl}", f"s_mov_b32 s42, {st * 65536}"],
               f"buffer_load_dwordx4 v{vWoff}, {sr(sW, 4)}, s42 offen lds")
        dr.add(st, [], f"buffer_load_dwordx4 v{vWoff + 1}, {sr(sW, 4)}, s42 offen offset:1024 lds")
        if st == RST:
            if k3:
                dr.add(st, [f"s_add_u32 m0, s32, {RESO}", "s_nop 0"], f"buffer_load_dwordx4 v{vXg}, {sr(sIO, 4)}, s36 offen lds")
                dr.add(st, [], f"buffer_load_dwordx4 v{vXg + 1}, {sr(sIO, 4)}, s36 offen offset:1024 lds")
            else:
                dr.add(st, [f"s_add_u32 m0, s35, {RESO}", "s_nop 0"], f"buffer_load_dwordx4 v{vL16}, {sr(sWS, 4)}, s36 offen lds")
                dr.add(st, [], f"buffer_load_dwordx4 v{vL16}, {sr(sWS, 4)}, s36 offen offset:1024 lds")

    for st in range(min(NSLOT, NST)):
        issue(st)
    AHEAD = OPT["k3_d"] if k3 else OPT["k5_d"]
    stamp(h)
    for st in range(NST):
        while dr.q and dr.q[0][0] <= st + AHEAD:
            dr.emit()
        dr.wait(st)
        h("s_barrier")
        if st in (0, NST // 2, NST - 1):
            stamp(h)
        if st >= 1 and st + NSLOT - 1 < NST:
            issue(st + NSLOT - 1)
    stamp_flush(h, kidx, sWS, sWave) if STAMPS else None
    h("s_endpgm")
    a.lines += h.lines
    a.label(f"L_{kind}_helper_skip")

    vWrd, vAr, vRr, vTw, vTr, vOut = [3, 4], [5, 6], [7, 8], 9, 10, 11
    ID = 24
    FR = [32, 80]
    acc = 128
    a(f"v_and_b32 v{T}, 31, v{vLane}")
    a(f"v_lshrrev_b32 v{T + 1}, 5, v{vLane}")
    a(f"v_bfe_u32 v{T + 2}, v{vLane}, 2, 2")
    a(f"v_lshl_add_u32 v{T + 3}, v{T + 1}, 2, v{T + 2}")
    a(f"v_lshlrev_b32 v{T + 3}, 7, v{T + 3}")
    a(f"v_bfe_u32 v{T + 4}, v{vLane}, 4, 1")
    a(f"v_lshl_add_u32 v{T + 3}, v{T + 4}, 5, v{T + 3}")
    a(f"v_and_b32 v{T + 4}, 3, v{vLane}")
    a(f"v_lshl_add_u32 v{T + 3}, v{T + 4}, 3, v{T + 3}")
    a(f"v_lshrrev_b32 v{T + 2}, 1, v{T + 2}")
    a(f"v_xor_b32 v{T + 2}, s{sWc}, v{T + 2}")
    a(f"v_lshl_add_u32 v{vWrd[0]}, v{T + 2}, 6, v{T + 3}")
    wl = LdsAddr(a, vWrd)
    wl.setup(a)
    a(f"s_lshl_b32 s{sT0}, s{sWr}, 12")
    a(f"s_add_u32 s{sT1}, s{sT0}, 8192")
    a(f"v_add_u32 v{vAr[0]}, s{sT1}, v{vL16}")
    al = LdsAddr(a, vAr)
    al.setup(a)
    if k3:
        a(f"v_bfe_u32 v{T + 2}, v{vLane}, 1, 3")
        a(f"v_xor_b32 v{T + 2}, v{T + 2}, v{T + 1}")
        a(f"s_lshl_b32 s{sT1}, s{sWc}, 2")
        a(f"v_xor_b32 v{T + 2}, s{sT1}, v{T + 2}")
        a(f"v_lshlrev_b32 v{T + 2}, 4, v{T + 2}")
        a(f"v_lshl_add_u32 v{T + 2}, v{T}, 7, v{T + 2}")
        a(f"s_add_u32 s{sT0}, s{sT0}, {RESO}")
        a(f"v_add_u32 v{vRr[0]}, s{sT0}, v{T + 2}")
        a(f"v_xor_b32 v{vRr[1]}, 32, v{vRr[0]}")
    else:
        a(f"s_lshl_b32 s{sT1}, s{sWc}, 11")
        a(f"s_add_u32 s{sT0}, s{sT0}, s{sT1}")
        a(f"s_add_u32 s{sT0}, s{sT0}, {RESO}")
        a(f"v_add_u32 v{vRr[0]}, s{sT0}, v{vL16}")
        a(f"v_add_u32 v{vRr[1]}, 1024, v{vRr[0]}")
    a(f"v_mov_b32 v{T + 5}, 0x3f80")
    for e in range(2):
        if k3:
            a(f"v_lshlrev_b32 v{T + 2}, 3, v{T + 1}")
            a(f"v_sub_u32 v{T + 2}, v{T}, v{T + 2}")
            a(f"v_subrev_u32 v{T + 2}, {16 * e}, v{T + 2}")
        else:
            a(f"v_bfe_u32 v{T + 2}, v{vLane}, 3, 1")
            a(f"v_and_b32 v{T + 3}, 3, v{vLane}")
            a(f"v_lshl_add_u32 v{T + 2}, v{T + 2}, 2, v{T + 3}")
            a(f"v_bfe_u32 v{T + 3}, v{vLane}, 2, 1")
            a(f"v_xor_b32 v{T + 3}, v{T + 3}, v{T + 1}")
            a(f"v_bfe_u32 v{T + 4}, v{vLane}, 4, 1")
            a(f"v_xor_b32 v{T + 4}, {e}, v{T + 4}")
            a(f"v_or_b32 v{T + 3}, v{T + 3}, v{T + 4}")
            a(f"v_lshl_add_u32 v{T + 2}, v{T + 3}, 4, v{T + 2}")
        a(f"v_and_b32 v{T + 3}, 1, v{T + 2}")
        a(f"v_lshlrev_b32 v{T + 3}, 4, v{T + 3}")
        a(f"v_lshlrev_b32 v{T + 3}, v{T + 3}, v{T + 5}")
        a(f"v_lshrrev_b32 v{T + 2}, 1, v{T + 2}")
        for r in range(4):
            a(f"v_cmp_eq_u32 vcc, {r}, v{T + 2}")
            a("s_nop 1")
            a(f"v_cndmask_b32 v{ID + 4 * e + r}, 0, v{T + 3}, vcc")
    a(f"s_lshl_b32 s33, s{sRb}, 1")
    a(f"s_add_u32 s33, s33, s{sWr}")
    a(f"s_lshl_b32 s34, s{sCb}, 1")
    a(f"s_add_u32 s34, s34, s{sWc}")
    if k3:
        a(f"s_lshl_b32 s36, s33, 15")
        a(f"s_lshl_b32 s37, s34, 11")
        a(f"s_add_u32 s36, s36, s37")
        a(f"s_add_u32 s36, s36, {HF}")
        a(f"s_lshl_b32 s37, s34, 14")
        a(f"s_lshl_b32 s{sT1}, s33, 8")
        a(f"s_add_u32 s37, s37, s{sT1}")
        a(f"s_add_u32 s37, s37, {ST}")
        a("s_mov_b32 s41, 0x3f803f80")
        a(f"v_lshlrev_b32 v{vOut}, 3, v{vLane}")
    else:
        a(f"s_mul_i32 s{sT0}, s{sHw}, 2560")
        a(f"s_add_u32 s{sT0}, s{sT0}, {TRO}")
        a(f"v_mul_u32_u24 v{T + 2}, 80, v{T}")
        a(f"v_lshl_add_u32 v{T + 2}, v{T + 1}, 3, v{T + 2}")
        a(f"v_add_u32 v{vTw}, s{sT0}, v{T + 2}")
        a(f"v_lshrrev_b32 v{T + 2}, 2, v{vLane}")
        a(f"v_and_b32 v{T + 3}, 3, v{vLane}")
        a(f"v_lshlrev_b32 v{T + 3}, 4, v{T + 3}")
        a(f"v_mad_u32_u24 v{T + 4}, v{T + 2}, 64, v{T + 3}")
        a(f"v_lshl_add_u32 v{T + 4}, v{T + 2}, 4, v{T + 4}")
        a(f"v_add_u32 v{vTr}, s{sT0}, v{T + 4}")
        a(f"v_lshl_add_u32 v{vOut}, v{T + 2}, 10, v{T + 3}")
        a(f"s_lshl_b32 s36, s33, 15")
        a(f"s_lshl_b32 s37, s34, 6")
        a(f"s_add_u32 s36, s36, s37")
        a(f"s_add_u32 s37, s36, 16384")
    a("s_waitcnt lgkmcnt(0)")
    if k3 or STAMPS or DBGT:
        srd(a, sWS, 8, WS_SIZE)
    if not k3:
        srd(a, sIO, 6, 2048 * 1024)
    stamp(a)
    first = True
    for st in range(NST):
        a("s_barrier")
        if st in (0, NST // 2):
            stamp(a)
        sl = (st % NSLOT) * SLOT
        F = FR[st & 1]
        n = min(4, KS - 4 * st)
        tk = []
        for k in range(n):
            reg, off = al.at(sl + k * 1024)
            a.lg(f"ds_read_b128 {vr(F + 8 * k, 4)}, {reg} offset:{off}")
            for half in range(2):
                reg, off = wl.at(sl + k * 2048 + half * 1024)
                t = a.lg(f"ds_read_b64_tr_b16 {vr(F + 8 * k + 4 + 2 * half, 2)}, {reg} offset:{off}")
            tk.append(t)
        if st == RST:
            for e in range(2):
                tk.append(a.lg(f"ds_read_b128 {vr(F + 32 + 4 * e, 4)}, v{vRr[e]}"))
        for k in range(n):
            a.wait(lg=tk[k])
            a(f"v_mfma_f32_32x32x16_bf16 {vr(acc, 16)}, {vr(F + 8 * k + 4, 4)}, {vr(F + 8 * k, 4)}, {'0' if first else vr(acc, 16)}")
            first = False
        if st == RST:
            for e in range(2):
                a.wait(lg=tk[n + e])
                a(f"v_mfma_f32_32x32x16_bf16 {vr(acc, 16)}, {vr(ID + 4 * e, 4)}, {vr(F + 32 + 4 * e, 4)}, {vr(acc, 16)}")
    stamp(a)
    a("s_nop 11")
    P = 32
    for i in range(8):
        a(f"v_cvt_pk_bf16_f32 v{P + i}, v{acc + 2 * i}, v{acc + 2 * i + 1}")
    if k3:
        a.vm(f"buffer_store_dwordx4 {vr(P, 4)}, v{vL16}, {sr(sWS, 4)}, s36 offen")
        a.vm(f"buffer_store_dwordx4 {vr(P + 4, 4)}, v{vL16}, {sr(sWS, 4)}, s36 offen offset:1024")
        a(f"v_dot2_f32_bf16 v{T}, v{P}, s41, 0")
        a(f"v_dot2_f32_bf16 v{T + 1}, v{P}, v{P}, 0")
        for i in range(1, 8):
            a(f"v_dot2_f32_bf16 v{T}, v{P + i}, s41, v{T}")
            a(f"v_dot2_f32_bf16 v{T + 1}, v{P + i}, v{P + i}, v{T + 1}")
        a("s_nop 2")
        a(f"v_mov_b32 v{T + 2}, v{T}")
        a(f"v_mov_b32 v{T + 3}, v{T + 1}")
        a("s_nop 0")
        a(f"v_permlane32_swap_b32 v{T}, v{T + 2}")
        a(f"v_permlane32_swap_b32 v{T + 1}, v{T + 3}")
        a("s_nop 0")
        a(f"v_add_f32 v{T}, v{T}, v{T + 2}")
        a(f"v_add_f32 v{T + 1}, v{T + 1}, v{T + 3}")
        a("s_mov_b32 exec_hi, 0")
        a.vm(f"buffer_store_dwordx2 {vr(T, 2)}, v{vOut}, {sr(sWS, 4)}, s37 offen")
    else:
        for g in range(4):
            a.lg(f"ds_write_b64 v{vTw}, {vr(P + 2 * g, 2)} offset:{g * 16}")
        a.wait_all(vm=False)
        t0 = a.lg(f"ds_read_b128 {vr(P + 8, 4)}, v{vTr}")
        t1 = a.lg(f"ds_read_b128 {vr(P + 12, 4)}, v{vTr} offset:{16 * 80}")
        a.wait(lg=t0)
        a.vm(f"buffer_store_dwordx4 {vr(P + 8, 4)}, v{vOut}, {sr(sIO, 4)}, s36 offen")
        a.wait(lg=t1)
        a.vm(f"buffer_store_dwordx4 {vr(P + 12, 4)}, v{vOut}, {sr(sIO, 4)}, s37 offen")
    stamp(a)
    stamp_flush(a, kidx, sWS, sWave)
    kernel_end(a, name)
    return name, a.text(), descriptor(name, 144, 0), (256, 512, TRO + 4 * 2560)


def gen_k4():
    name = "k4_glu_kernel"
    a = Asm()
    kernel_begin(a, name, 240)
    sG, sU, sWS = 12, 16, 20
    sWave, sRb, sCg, sHw = 24, 25, 26, 28
    sT0, sT1, sWL, sAct = 30, 31, 32, 33
    vLane, vL16 = 1, 2
    vWoff = [3, 4, 5]
    vWrd = [6, 7, 8]
    vWrdO = [9, 10, 11]
    vXa = [3, 4, 5]
    vT = 16
    ACC = 32
    XF = [128, 136]
    WF = [144, 156]
    CS = 168
    ONES = 180
    AS = 184
    XE = 188
    vCw, vCr, vEr = 196, 197, 198
    SLOT, NSLOT, XO, NST = 20480, 7, 12288, 16
    CSO = NSLOT * SLOT
    XEO = CSO + 2048
    a("s_load_dwordx4 s[4:7], s[0:1], 32")
    a("s_load_dwordx2 s[8:9], s[0:1], 72")
    a("s_load_dwordx2 s[10:11], s[0:1], 48")
    a(f"v_and_b32 v{vLane}, 63, v0")
    a(f"v_lshrrev_b32 v{vT}, 6, v0")
    a(f"v_lshlrev_b32 v{vL16}, 4, v{vLane}")
    a(f"v_readfirstlane_b32 s{sWave}, v{vT}")
    a(f"s_and_b32 s{sT0}, s2, 7")
    a(f"s_lshl_b32 s{sT0}, s{sT0}, 1")
    a(f"s_bfe_u32 s{sT1}, s2, 0x10003")
    a(f"s_add_u32 s{sRb}, s{sT0}, s{sT1}")
    a(f"s_lshr_b32 s{sCg}, s2, 4")
    a(f"s_and_b32 s{sHw}, s{sWave}, 3")
    a(f"s_cmp_ge_u32 s{sWave}, 4")
    a(f"s_cbranch_scc0 L_k4_helper_skip")

    h = fork(a)
    h.label("L_k4_helper")
    h(f"s_lshl_b32 s{sAct}, s{sRb}, 2")
    h(f"s_add_u32 s{sAct}, s{sAct}, s{sHw}")
    h(f"s_lshl_b32 s{sAct}, s{sAct}, 15")
    h(f"s_add_u32 s{sAct}, s{sAct}, {HF}")
    h(f"s_lshr_b32 s34, s{sHw}, 1")
    h(f"s_and_b32 s35, s{sHw}, 1")
    h(f"s_mul_i32 s{sT0}, s34, {16 * 2752}")
    h(f"s_mul_i32 s{sT1}, s{sCg}, 192")
    h(f"s_add_u32 s{sT0}, s{sT0}, s{sT1}")
    h(f"v_and_b32 v{vT + 3}, 2, v{vLane}")
    h(f"v_lshlrev_b32 v{vT + 3}, 5, v{vT + 3}")
    h(f"v_sub_u32 v{vT + 3}, 32, v{vT + 3}")
    h(f"v_mul_lo_u32 v{vT + 3}, v{vT + 3}, s35")
    h(f"v_add_u32 v{vT + 3}, s{sT0}, v{vT + 3}")
    for i in range(3):
        h(f"v_add_u32 v{vT}, {64 * i}, v{vLane}")
        h(f"v_mul_u32_u24 v{vT + 1}, 171, v{vT}")
        h(f"v_lshrrev_b32 v{vT + 1}, 11, v{vT + 1}")
        h(f"v_mul_u32_u24 v{vT + 2}, {2752 - 192}, v{vT + 1}")
        h(f"v_add3_u32 v{vWoff[i]}, v{vL16}, v{vT + 2}, v{vT + 3}")
    h(f"s_mul_i32 s{sWL}, s{sHw}, 3072")
    h(f"s_lshl_b32 s36, s{sHw}, 11")
    h(f"s_add_u32 s36, s36, {XO}")
    h("s_waitcnt lgkmcnt(0)")
    srd(h, sWS, 8, WS_SIZE)
    h("s_cmp_eq_u32 s35, 0")
    h(f"s_cselect_b32 s{sG}, s4, s6")
    h(f"s_cselect_b32 s{sG + 1}, s5, s7")
    h(f"s_mov_b32 s{sG + 2}, {hx(512 * 2752)}")
    h(f"s_mov_b32 s{sG + 3}, 0x00020000")
    dr = Drip(h)

    def issue(st):
        for i in range(2):
            pre = [f"s_add_u32 m0, s36, {(st % NSLOT) * SLOT}", f"s_add_u32 s43, s{sAct}, {st * 2048}"] if i == 0 else []
            dr.add(st, pre, f"buffer_load_dwordx4 v{vL16}, {sr(sWS, 4)}, s43 offen offset:{i * 1024} lds")
        for i in range(3):
            pre = [f"s_add_u32 m0, s{sWL}, {(st % NSLOT) * SLOT}", f"s_mov_b32 s42, {st * 32 * 2752}"] if i == 0 else []
            dr.add(st, pre, f"buffer_load_dwordx4 v{vWoff[i]}, {sr(sG, 4)}, s42 offen offset:{i * 1024} lds")

    for st in range(NSLOT):
        issue(st)
    AHEAD = OPT["k4_d"]
    dr.emit(5 * AHEAD)
    vPf, vPd = 13, 14
    srd(h, 44, 10, 1376 * 1024)
    h(f"s_lshr_b32 s{sT0}, s2, 3")
    h(f"s_lshl_b32 s{sT0}, s{sT0}, 2")
    h(f"s_add_u32 s{sT0}, s{sT0}, s{sHw}")
    h(f"s_lshl_b32 s{sT0}, s{sT0}, 13")
    h(f"v_lshlrev_b32 v{vPf}, 7, v{vLane}")
    h(f"v_add_u32 v{vPf}, s{sT0}, v{vPf}")
    h(f"v_add_u32 v15, {120 * 8192}, v{vPf}")
    h(f"v_lshrrev_b32 v{vT + 3}, 5, v{vLane}")
    h(f"v_and_b32 v{vT + 4}, 31, v{vLane}")
    h(f"v_lshlrev_b32 v{vT + 4}, 3, v{vT + 4}")
    h(f"v_lshl_add_u32 v{vT + 4}, v{vT + 3}, 17, v{vT + 4}")
    h(f"s_lshl_b32 s34, s{sRb}, 2")
    h(f"s_add_u32 s34, s34, s{sHw}")
    h(f"s_lshl_b32 s34, s34, 8")
    h(f"s_add_u32 s34, s34, {ST}")
    h(f"s_lshl_b32 s{sT0}, s{sHw}, 11")
    h(f"s_add_u32 s{sT0}, s{sT0}, {XEO}")
    h(f"v_add_u32 v{vT + 5}, s{sT0}, v{vL16}")
    h(f"v_lshl_add_u32 v{vT + 6}, v{vLane}, 3, s{sT0}")
    SP = 32
    stamp(h)
    for st in range(NST):
        dr.wait(st)
        vS, vQ, vM, vA = 60, 61, 62, 64
        if st == 11:
            dr.wait("st")
            h(f"v_add_f32 v{vS}, v{SP}, v{SP + 2}")
            h(f"v_add_f32 v{vQ}, v{SP + 1}, v{SP + 3}")
            for i in range(2, 8):
                h(f"v_add_f32 v{vS}, v{vS}, v{SP + 2 * i}")
                h(f"v_add_f32 v{vQ}, v{vQ}, v{SP + 2 * i + 1}")
        if st == 12:
            half_sum(h, vS, vT)
            half_sum(h, vQ, vT)
            h(f"v_mul_f32 v{vM}, {hx(f2u(-1.0 / 512))}, v{vS}")
            h(f"v_mul_f32 v{vQ}, {hx(f2u(1.0 / 512))}, v{vQ}")
            h(f"v_fma_f32 v{vQ}, -v{vM}, v{vM}, v{vQ}")
            h(f"v_max_f32 v{vQ}, 0, v{vQ}")
            h(f"v_add_f32 v{vQ}, {hx(f2u(1e-5))}, v{vQ}")
        if st == 13:
            h(f"v_rsq_f32 v{vA}, v{vQ}")
            split_hi_lo(h, vM, 68, vT, vT + 1)
            h(f"v_mul_f32 v{vA + 1}, v{vQ}, v{vA}")
            h(f"v_mul_f32 v{vA}, {hx(f2u(-LOG2E))}, v{vA}")
            h(f"v_cvt_pk_bf16_f32 v69, v{vT}, 0")
            h("v_mov_b32 v70, 0")
            h("v_mov_b32 v71, 0")
            h.lg(f"ds_write_b128 v{vT + 5}, v[68:71]")
            h.lg(f"ds_write_b64 v{vT + 6}, {vr(vA, 2)} offset:1024")
        if st == 14:
            h.wait_all(vm=False)
            dr.wait(15)
            if OPT["k4_pf"]:
                h.vm(f"buffer_load_dword v{vPd}, v{vPf}, s[44:47], 0 offen")
        if st == 15 and OPT["k4_pf"]:
            h.vm(f"buffer_load_dword v{vPd}, v15, s[44:47], 0 offen")
        h("s_barrier")
        if st in (0, 2, 4, 6, 8, 10, 12, 13, 14, 15):
            stamp(h)
        if st >= 1 and st + NSLOT - 1 < NST:
            issue(st + NSLOT - 1)
        tgt = min(NST - 1, st + AHEAD + min(st + 1, OPT["k4_g"]))
        while dr.q and dr.q[0][0] <= tgt:
            dr.emit()
        if 5 <= st <= 8:
            for i in (2 * (st - 5), 2 * (st - 5) + 1):
                h(f"s_add_u32 s{sT0}, s34, {i * 16384}")
                dr.tok["st"] = h.vm(f"buffer_load_dwordx2 {vr(SP + 2 * i, 2)}, v{vT + 4}, {sr(sWS, 4)}, s{sT0} offen")
    h("s_barrier")
    stamp_flush(h, 3, sWS, sWave) if STAMPS else None
    h("s_endpgm")
    a.lines += h.lines
    a.label("L_k4_helper_skip")

    sWr2, sWc = 36, 37
    a(f"s_lshr_b32 s{sWr2}, s{sHw}, 1")
    a(f"s_and_b32 s{sWc}, s{sHw}, 1")
    a(f"s_lshl_b32 s34, s{sRb}, 1")
    a(f"s_add_u32 s34, s34, s{sWr2}")
    a(f"v_lshrrev_b32 v{vT + 3}, 5, v{vLane}")
    a(f"v_bfe_u32 v{vT}, v{vLane}, 2, 2")
    a(f"v_lshl_add_u32 v{vT}, v{vT + 3}, 2, v{vT}")
    a(f"v_mul_u32_u24 v{vT}, 192, v{vT}")
    a(f"v_and_b32 v{vT + 1}, 3, v{vLane}")
    a(f"v_lshl_add_u32 v{vT}, v{vT + 1}, 3, v{vT}")
    a(f"s_mul_i32 s{sT0}, s{sWc}, 96")
    a(f"v_add_u32 v{vT}, s{sT0}, v{vT}")
    a(f"v_bfe_u32 v{vT + 1}, v{vLane}, 4, 1")
    a(f"s_lshl_b32 s{sT0}, s{sWc}, 6")
    a(f"s_sub_u32 s{sT1}, {3072 + 32}, s{sT0}")
    a(f"s_add_u32 s{sT0}, {3072 - 32}, s{sT0}")
    a(f"v_mad_u32_u24 v{vWrd[0]}, v{vT + 1}, s{sT1}, v{vT}")
    a(f"v_mad_u32_u24 v{vWrdO[0]}, v{vT + 1}, s{sT0}, v{vT}")
    wl = [LdsAddr(a, vWrd), LdsAddr(a, vWrdO)]
    wl[0].setup(a)
    wl[1].setup(a)
    a(f"s_lshl_b32 s{sT0}, s{sWr2}, 12")
    a(f"s_add_u32 s{sT0}, s{sT0}, {XO}")
    a(f"v_add_u32 v{vXa[0]}, s{sT0}, v{vL16}")
    xl = LdsAddr(a, vXa)
    xl.setup(a)
    a(f"v_xor_b32 v{vT}, v{vT + 1}, v{vLane}")
    a(f"v_and_b32 v{vT}, 1, v{vT}")
    a(f"v_cmp_eq_u32 vcc, 0, v{vT}")
    a(f"v_mov_b32 v{vT}, 0x3f803f80")
    a("s_nop 0")
    for r in range(4):
        a(f"v_cndmask_b32 v{ONES + r}, 0, v{vT}, vcc")
    a(f"s_lshl_b32 s{sT0}, s{sWc}, 1")
    a(f"s_add_u32 s{sT1}, s{sT0}, s{sWr2}")
    a(f"s_mul_i32 s{sT1}, s{sT1}, 384")
    a(f"s_add_u32 s{sT1}, s{sT1}, {CSO}")
    a(f"v_and_b32 v{vT}, 1, v{vLane}")
    a(f"v_lshlrev_b32 v{vT}, 6, v{vT}")
    a(f"v_and_b32 v{vT + 1}, 48, v{vLane}")
    a(f"v_add3_u32 v{vCw}, v{vT}, v{vT + 1}, s{sT1}")
    a(f"s_mul_i32 s{sT0}, s{sT0}, 384")
    a(f"s_add_u32 s{sT0}, s{sT0}, {CSO}")
    a(f"v_mul_u32_u24 v{vT}, 384, v{vT + 3}")
    a(f"v_and_b32 v{vT + 1}, 31, v{vLane}")
    a(f"v_lshl_add_u32 v{vT}, v{vT + 1}, 2, v{vT}")
    a(f"v_add_u32 v{vCr}, s{sT0}, v{vT}")
    a(f"s_mul_i32 s34, s34, {2 * 86 * 1024}")
    a(f"s_lshl_b32 s35, s{sCg}, 1")
    a(f"s_add_u32 s35, s35, s{sWc}")
    a(f"s_mul_i32 s38, s35, 3")
    a(f"s_lshl_b32 s35, s38, 10")
    a("s_add_u32 s34, s34, s35")
    a(f"s_add_u32 s34, s34, {GF}")
    a(f"s_add_u32 s35, s34, {86 * 1024}")
    for r in range(12):
        a(f"v_mov_b32 v{CS + r}, 0")
    a(f"s_lshl_b32 s{sT0}, s{sWr2}, 12")
    a(f"s_add_u32 s{sT0}, s{sT0}, {XEO}")
    a(f"v_add_u32 v{vEr}, s{sT0}, v{vL16}")
    a(f"v_lshl_add_u32 v{vEr + 1}, v{vLane}, 3, s{sT0}")
    a("s_waitcnt lgkmcnt(0)")
    srd(a, sWS, 8, WS_SIZE)

    def reads(s):
        st, ss = divmod(s, 2)
        W = []
        for j in range(3):
            for half in range(2):
                reg, off = wl[j & 1].at((st % NSLOT) * SLOT + ss * 6144 + half * 8 * 192 + j * 32)
                W.append(f"ds_read_b64_tr_b16 {vr(WF[s & 1] + 4 * j + 2 * half, 2)}, {reg} offset:{off}")
        X = []
        for i in range(2):
            reg, off = xl.at((st % NSLOT) * SLOT + i * 2048 + ss * 1024)
            X.append(f"ds_read_b128 {vr(XF[s & 1] + 4 * i, 4)}, {reg} offset:{off}")
        return [X[0], W[0], W[1], X[1], W[2], W[3], W[4], W[5]]

    rt = {}

    def emit_reads(b, s, lo, hi):
        ops = reads(s)
        for k in range(lo, min(hi, 8)):
            rt[(s, k)] = b.lg(ops[k])

    stamp(a)
    a("s_barrier")
    stamp(a)
    emit_reads(a, 0, 0, 8)
    a(f"s_cmp_eq_u32 s{sWr2}, 1")
    a("s_cbranch_scc1 L_k4_odd")
    cuts = [0, 2, 4, 6, 8, 8, 8]
    need = [3, 3, 5, 5, 7, 7]
    rt0 = dict(rt)
    odd = fork(a)
    odd.label("L_k4_odd")
    for par, b in ((0, a), (1, odd)):
        rt.clear()
        rt.update(rt0)
        def main(s, m):
            j, i = divmod(m, 2)
            d = ACC + 16 * m
            c = "0" if s == 0 else vr(d, 16)
            b(f"v_mfma_f32_32x32x16_bf16 {vr(d, 16)}, {vr(WF[s & 1] + 4 * j, 4)}, {vr(XF[s & 1] + 4 * i, 4)}, {c}")

        def csum(s, j):
            b(f"v_mfma_f32_16x16x32_bf16 {vr(CS + 4 * j, 4)}, {vr(WF[s & 1] + 4 * j, 4)}, {vr(ONES, 4)}, {vr(CS + 4 * j, 4)}")

        for s in range(31):
            if s == 16:
                stamp(b)
            if s % 2 == 1:
                b.wait(lg=rt[(s, 7)])
                b("s_barrier")
            for m in range(6):
                b.wait(lg=rt[(s, need[m])])
                if m % 2 == 0 and s % 2 == par:
                    csum(s, m // 2)
                main(s, m)
                emit_reads(b, s + 1, cuts[m], cuts[m + 1])
                if s == 29 and m >= 4:
                    b.lg(f"ds_read_b128 {vr(XE + 4 * (m - 4), 4)}, v{vEr} offset:{(m - 4) * 2048}")
                    b.lg(f"ds_read_b64 {vr(AS + 2 * (m - 4), 2)}, v{vEr + 1} offset:{(m - 4) * 2048 + 1024}")
        b.wait_all(vm=False)
        if par == 1:
            for j in range(3):
                csum(31, j)
    odd("s_branch L_k4_join")
    a.label("L_k4_join")
    b = a
    main(31, 0)
    for j in range(3):
        a(f"v_mov_b32 v{WF[0] + 4 * j + 2}, 0")
        a(f"v_mov_b32 v{WF[0] + 4 * j + 3}, 0")
    main(31, 1)
    a("s_mov_b32 exec_lo, 0x00030003")
    a("s_mov_b32 exec_hi, 0x00030003")
    for j in range(3):
        a.lg(f"ds_write_b128 v{vCw}, {vr(CS + 4 * j, 4)} offset:{j * 128}")
    a("s_mov_b64 exec, -1")
    main(31, 2)
    main(31, 3)
    a.wait_all(vm=False)
    a("s_barrier")
    for j in range(3):
        rt[("c", j)] = a.lg(f"ds_read_b32 v{vT + 4 + j}, v{vCr} offset:{j * 128}")
    main(31, 4)
    main(31, 5)
    stamp(a)
    for j in range(3):
        w = WF[0] + 4 * j
        a.wait(lg=rt[("c", j)])
        a(f"v_cvt_pk_bf16_f32 v{w + 1}, v{vT + 4 + j}, 0")
        a(f"v_lshlrev_b32 v{vT}, 16, v{w + 1}")
        a(f"v_sub_f32 v{vT}, v{vT + 4 + j}, v{vT}")
        a(f"v_cvt_pk_bf16_f32 v{w}, v{vT + 4 + j}, v{vT}")
    for j in range(3):
        for i in range(2):
            d = ACC + 32 * j + 16 * i
            a(f"v_mfma_f32_32x32x16_bf16 {vr(d, 16)}, {vr(WF[0] + 4 * j, 4)}, {vr(XE + 4 * i, 4)}, {vr(d, 16)}")
    stamp(a)
    a("s_nop 4")
    for j in range(3):
        a(f"s_cmp_ge_u32 s38, {86 - j}")
        a(f"s_cbranch_scc1 L_{name}_done")
        G = [(ACC + 32 * j + 16 * i + r, i) for i in range(2) for r in range(8)]
        for g, i in G[::2]:
            a(f"v_pk_mul_f32 {vr(g, 2)}, {vr(g, 2)}, {vr(AS + 2 * i, 2)} op_sel_hi:[1,0]")
        for g, i in G:
            a(f"v_exp_f32 v{g}, v{g}")
        for g, i in G[::2]:
            a(f"v_pk_fma_f32 {vr(g, 2)}, {vr(g, 2)}, {vr(AS + 2 * i, 2)}, {vr(AS + 2 * i, 2)} op_sel:[0,1,1] op_sel_hi:[1,1,1]")
        for g, i in G:
            a(f"v_rcp_f32 v{g}, v{g}")
        for g, i in G[::2]:
            a(f"v_pk_mul_f32 {vr(g, 2)}, {vr(g, 2)}, {vr(g + 8, 2)}")
        o = ACC + 32 * j + 8
        for i in range(8):
            a(f"v_cvt_pk_bf16_f32 v{o + i}, v{G[2 * i][0]}, v{G[2 * i + 1][0]}")
        a.vm(f"buffer_store_dwordx4 {vr(o, 4)}, v{vL16}, {sr(sWS, 4)}, s34 offen offset:{j * 1024}")
        a.vm(f"buffer_store_dwordx4 {vr(o + 4, 4)}, v{vL16}, {sr(sWS, 4)}, s35 offen offset:{j * 1024}")
    stamp(a)
    stamp_flush(a, 3, sWS, sWave)
    kernel_end(a, name)
    return name, a.text() + odd.text(), descriptor(name, 200, 0), (240, 512, XEO + 8192)


def build():
    ks = [gen_k1(), gen_k2(), gen_res("k3"), gen_k4(), gen_res("k5")]
    ref = open(f"cdna_kernels/{NAME}.s.ref").read().split("\n")
    head = [l for l in ref if l.startswith(";") and "@launch" not in l and "Override launch" not in l
            and "grid=ceil" not in l]
    out = "\n".join(head) + "\n"
    for name, _, _, (g, b, lds) in ks:
        out += f"; @launch kernel={name} grid=({g},1,1) block=({b},1,1) lds={lds}\n"
    out += '.amdgcn_target "amdgcn-amd-amdhsa--gfx950"\n.text\n'
    bad = 0
    for name, text, _, _ in ks:
        bad += check_hazards(text, name)
        out += text
    out += "L_code_end:\n"
    out += '.section .rodata,"a"\n'
    for name, _, desc, _ in ks:
        out += ".p2align 6\n" + desc
    if bad:
        print("hazards:", bad)
    return out


if __name__ == "__main__":
    path = sys.argv[1] if len(sys.argv) > 1 else f"cdna_kernels/{NAME}.s"
    for arg in sys.argv[2:]:
        if arg == "stamps":
            STAMPS = True
        elif arg == "dbgt":
            DBGT = True
        else:
            k_, v_ = arg.split("=")
            OPT[k_] = int(v_)
    open(path, "w").write(build())
    print("wrote", path)
```

```python
import math
import struct
import sys

from asmlib import Asm, check_hazards

NAME = "sequential_preLN__mha_block__glu_gated_glu__prompt"

MB = 1 << 20
QF = 0
KVF = 2 * MB
OF = 6 * MB
HF = 8 * MB
ST = 10 * MB
GF = 12 * MB
WS_SIZE = 32 * MB

LOG2E = 1.4426950408889634
OPT = dict(pf_code=True, pf_w=True, k1_pre=2, k1_drip=0, k4_first=1, k4_prio=1, k3_d=2, k5_d=3, k4_d=3, k4_g=1, k1_d=3, k1_g=1, k1_touch=1, k1_t=1, k2_map=0, k2_oz=1, k2_pre=2, k2_prio=1, k2_b3=0, k4_pf=1)


def f2u(x):
    return struct.unpack("<I", struct.pack("<f", x))[0]


def hx(x):
    return "0x%08x" % (x & 0xFFFFFFFF)


def vr(b, n):
    return f"v[{b}:{b + n - 1}]"


def ar(b, n):
    return f"a[{b}:{b + n - 1}]"


def sr(b, n):
    return f"s[{b}:{b + n - 1}]"


def srd(a, d, base, size):
    a(f"s_mov_b32 s{d}, s{base}")
    a(f"s_mov_b32 s{d + 1}, s{base + 1}")
    a(f"s_mov_b32 s{d + 2}, {hx(size)}")
    a(f"s_mov_b32 s{d + 3}, 0x00020000")


def interleave(main, fill, lead=0):
    out = []
    fill = list(fill)
    out += fill[:lead]
    fill = fill[lead:]
    n = len(main)
    per = len(fill) / n if n else 0
    used = 0
    for i, m in enumerate(main):
        out.append(m)
        upto = int(round(per * (i + 1)))
        out += fill[used:upto]
        used = upto
    out += fill[used:]
    return out


def kernel_begin(a, name, nwg):
    a.raw(f".globl {name}")
    a.raw(".p2align 8")
    a.raw(f".type {name},@function")
    a.label(name)
    a(f"s_cmp_ge_u32 s2, {nwg}")
    a(f"s_cbranch_scc1 L_{name}_done")
    dbgt_begin(a)
    stamp(a, real=True)
    stamp(a)


STAMPS = False
SBASE = 60
DBGO = 20 * MB


def stamp(a, real=False):
    if not STAMPS:
        return
    i = getattr(a, "nstamp", 0)
    a.nstamp = i + 1
    assert i < 16
    a(f"{'s_memrealtime' if real else 's_memtime'} s[{SBASE + 2 * i}:{SBASE + 2 * i + 1}]")
    a.wait_all(vm=False)


def stamp_flush(a, kidx, sWS, sWave):
    dbgt_end(a, kidx, sWS)
    if not STAMPS:
        return
    a.wait_all()
    stamp(a)
    stamp(a, real=True)
    a("s_mov_b64 exec, -1")
    a("s_lshl_b32 s58, s2, 3")
    a(f"s_add_u32 s58, s58, s{sWave}")
    a("s_lshl_b32 s58, s58, 6")
    a(f"s_add_u32 s58, s58, {DBGO + kidx * MB}")
    a("v_mov_b32 v1, 0")
    for i in range(a.nstamp):
        a(f"v_mov_b32 v2, s{SBASE + 2 * i}")
        a(f"buffer_store_dword v2, v1, s[{sWS}:{sWS + 3}], s58 offen offset:{4 * i}")
    a.wait_all()


DBGT = False


def dbgt_begin(a):
    if not DBGT:
        return
    a("s_memrealtime s[90:91]")
    a("s_load_dwordx2 s[92:93], s[0:1], 64")


def dbgt_end(a, kidx, sWS):
    if not DBGT:
        return
    a.wait_all()
    a("s_cmp_lg_u32 s2, 0")
    a(f"s_cbranch_scc1 L_dbgt_{kidx}")
    a("s_memrealtime s[88:89]")
    a.wait_all()
    a("s_mov_b64 exec, -1")
    a("v_cmp_eq_u32 vcc, 0, v0")
    a("s_nop 4")
    a("s_and_b64 exec, exec, vcc")
    a(f"s_cbranch_execz L_dbgt_{kidx}")
    a(f"v_mov_b32 v1, {DBGO}")
    a("v_mov_b32 v2, s90")
    a("v_mov_b32 v3, s88")
    a(f"buffer_store_dwordx2 v[2:3], v1, s[{sWS}:{sWS + 3}], 0 offen offset:{8 * kidx}")
    if kidx == 4:
        a(f"buffer_load_dwordx4 v[4:7], v1, s[{sWS}:{sWS + 3}], 0 offen")
        a(f"buffer_load_dwordx4 v[8:11], v1, s[{sWS}:{sWS + 3}], 0 offen offset:16")
        a("s_mov_b32 s94, 256")
        a("s_mov_b32 s95, 0x00020000")
        a("v_mov_b32 v1, 0")
        a.wait_all()
        if OPT.get("spin"):
            a("v_readfirstlane_b32 s87, v4")
            a.label("L_dbg_spin")
            a("s_memrealtime s[88:89]")
            a("s_waitcnt lgkmcnt(0)")
            a("s_sub_u32 s88, s88, s87")
            a(f"s_cmp_lt_u32 s88, {OPT['spin']}")
            a("s_cbranch_scc1 L_dbg_spin")
        for r in (5, 6, 7, 8, 9, 10, 11, 2, 3):
            a(f"v_sub_u32 v{r}, v{r}, v4")
        a("buffer_store_dwordx4 v[4:7], v1, s[92:95], 0 offen")
        a("buffer_store_dwordx4 v[8:11], v1, s[92:95], 0 offen offset:16")
        a("buffer_store_dwordx2 v[2:3], v1, s[92:95], 0 offen offset:32")
    a.wait_all()
    a.label(f"L_dbgt_{kidx}")


def kernel_end(a, name):
    a.label(f"L_{name}_done")
    a("s_endpgm")


def descriptor(name, vgpr, agpr, sgpr=96):
    acc = (vgpr + 3) // 4 * 4
    return f""".amdhsa_kernel {name}
  .amdhsa_next_free_vgpr {acc + agpr}
  .amdhsa_next_free_sgpr {sgpr}
  .amdhsa_accum_offset {acc}
  .amdhsa_group_segment_fixed_size 0
  .amdhsa_kernarg_size 80
  .amdhsa_user_sgpr_count 2
  .amdhsa_user_sgpr_kernarg_segment_ptr 1
  .amdhsa_system_sgpr_workgroup_id_x 1
.end_amdhsa_kernel
"""


def normalize_ops(x, t, vR, vNB, sMask):
    ops = []
    for i in range(4):
        ops.append(f"v_lshlrev_b32 v{t + 2 * i}, 16, v{x + i}")
        ops.append(f"v_and_b32 v{t + 2 * i + 1}, s{sMask}, v{x + i}")
    for i in range(8):
        ops.append(f"v_fma_f32 v{t + i}, v{t + i}, v{vR}, v{vNB}")
    for i in range(4):
        ops.append(f"v_cvt_pk_bf16_f32 v{x + i}, v{t + 2 * i}, v{t + 2 * i + 1}")
    return ops


def half_sum(a, r, t):
    a(f"v_mov_b32 v{t}, v{r}")
    a("s_nop 1")
    a(f"v_permlane32_swap_b32 v{r}, v{t}")
    a("s_nop 1")
    a(f"v_add_f32 v{r}, v{r}, v{t}")


def finish_stats(a, vS, vQ, vR, vNB, t, scale=1.0):
    a(f"v_mul_f32 v{vS}, {hx(f2u(1.0 / 512))}, v{vS}")
    a(f"v_mul_f32 v{vQ}, {hx(f2u(1.0 / 512))}, v{vQ}")
    a(f"v_fma_f32 v{t}, -v{vS}, v{vS}, v{vQ}")
    a(f"v_max_f32 v{t}, 0, v{t}")
    a(f"v_add_f32 v{t}, {hx(f2u(1e-5))}, v{t}")
    a(f"v_rsq_f32 v{vR}, v{t}")
    a("s_nop 0")
    if scale != 1.0:
        a(f"v_mul_f32 v{vR}, {hx(f2u(scale))}, v{vR}")
    a(f"v_mul_f32 v{vNB}, -v{vS}, v{vR}")


class Drip:
    def __init__(self, a):
        self.a = a
        self.q = []
        self.tok = {}

    def add(self, key, pre, ins):
        self.q.append((key, pre, ins))

    def emit(self, n=1):
        for _ in range(n):
            if not self.q:
                return
            key, pre, ins = self.q.pop(0)
            for p in pre:
                self.a(p)
            self.tok[key] = self.a.vm(ins)

    def through(self, key):
        while any(k == key for k, _, _ in self.q):
            self.emit()

    def wait(self, key):
        self.through(key)
        self.a.wait(vm=self.tok[key])


def code_prefetch(a, label, sPC, vOff, vDst, uid):
    a(f"s_getpc_b64 s[{sPC}:{sPC + 1}]")
    a.label(f"L_pc_{uid}")
    a(f"s_add_u32 s{sPC}, s{sPC}, {label}-L_pc_{uid}")
    a(f"s_addc_u32 s{sPC + 1}, s{sPC + 1}, ({label}-L_pc_{uid})>>32")
    a(f"v_min_u32 v{vOff}, L_code_end-{label}-4, v{vOff}")
    return a.vm(f"global_load_dword v{vDst}, v{vOff}, s[{sPC}:{sPC + 1}]")


class LdsAddr:
    def __init__(self, a, regs):
        self.regs = regs

    def setup(self, a):
        for j in range(1, len(self.regs)):
            a(f"v_add_u32 v{self.regs[j]}, {hx(j * 65536)}, v{self.regs[0]}")

    def at(self, off):
        return f"v{self.regs[off >> 16]}", off & 0xFFFF


def fork(a):
    b = Asm()
    b.vm_issued, b.vm_done, b.lg_issued, b.lg_done = a.vm_issued, a.vm_done, a.lg_issued, a.lg_done
    b.nstamp = getattr(a, "nstamp", 0)
    return b


def split_hi_lo(a, x, hi, lo, t):
    a(f"v_cvt_pk_bf16_f32 v{hi}, v{x}, v{x}")
    a(f"v_lshlrev_b32 v{t}, 16, v{hi}")
    a(f"v_sub_f32 v{lo}, v{x}, v{t}")


def gen_k1():
    name = "k1_qkv_kernel"
    a = Asm()
    kernel_begin(a, name, 256)
    sX, sW, sWS = 12, 16, 20
    sWave, sWr, sWc, sCg, sRb, sHw = 24, 25, 26, 27, 28, 29
    sT0, sT1, sWL = 30, 31, 32
    sOnes = 41
    vLane, vL16 = 1, 2
    vT = 8
    NSLOT, SLOT, WBASE, NST = 7, 12288, 65536, 16
    CSO = WBASE + NSLOT * SLOT
    XEO = CSO + 2048
    RSO = XEO + 2048
    a("s_load_dwordx4 s[4:7], s[0:1], 0")
    a("s_load_dwordx2 s[8:9], s[0:1], 72")
    a(f"v_and_b32 v{vLane}, 63, v0")
    a(f"v_lshrrev_b32 v7, 6, v0")
    a(f"v_lshlrev_b32 v{vL16}, 4, v{vLane}")
    a(f"v_readfirstlane_b32 s{sWave}, v7")
    a(f"s_and_b32 s{sT0}, s2, 7")
    a(f"s_lshl_b32 s{sT0}, s{sT0}, 2")
    a(f"s_bfe_u32 s{sT1}, s2, 0x20003")
    a(f"s_add_u32 s{sRb}, s{sT0}, s{sT1}")
    a(f"s_lshr_b32 s{sCg}, s2, 5")
    a(f"s_and_b32 s{sHw}, s{sWave}, 3")
    a(f"s_cmp_ge_u32 s{sWave}, 4")
    a(f"s_cbranch_scc0 L_k1_helper_skip")

    h = fork(a)
    h.label("L_k1_helper")
    vWoff, vXg, vSr, vXe, vRs = 3, 4, 6, 20, 21
    vS, vQ, vM, vR = 22, 23, 24, 25
    XB = 32
    h(f"v_lshrrev_b32 v{vT}, 3, v{vLane}")
    h(f"v_and_b32 v{vT + 1}, 7, v{vLane}")
    h(f"v_lshrrev_b32 v{vT + 2}, 1, v{vT}")
    h(f"v_xor_b32 v{vT + 2}, v{vT + 2}, v{vT + 1}")
    h(f"v_lshlrev_b32 v{vT + 2}, 4, v{vT + 2}")
    h(f"v_lshl_add_u32 v{vXg}, v{vT}, 10, v{vT + 2}")
    h(f"v_xor_b32 v{vXg + 1}, 64, v{vXg}")
    h(f"v_add_u32 v{vXg + 1}, {8 * 1024 - 1024}, v{vXg + 1}")
    h(f"s_lshl_b32 s34, s{sRb}, 16")
    h(f"s_lshl_b32 s{sT0}, s{sHw}, 14")
    h(f"s_add_u32 s34, s34, s{sT0}")
    h(f"s_lshl_b32 s36, s{sHw}, 11")
    h(f"v_lshrrev_b32 v{vT + 2}, 2, v{vLane}")
    h(f"v_and_b32 v{vT + 2}, 4, v{vT + 2}")
    h(f"v_xor_b32 v{vT + 2}, v{vT + 2}, v{vT + 1}")
    h(f"v_lshlrev_b32 v{vT + 2}, 4, v{vT + 2}")
    h(f"v_mul_u32_u24 v{vT + 3}, 3072, v{vT}")
    h(f"s_mul_i32 s{sT0}, s{sHw}, {8 * 3072}")
    h(f"s_lshl_b32 s{sT1}, s{sCg}, 7")
    h(f"s_add_u32 s{sT0}, s{sT0}, s{sT1}")
    h(f"v_add3_u32 v{vWoff}, v{vT + 3}, v{vT + 2}, s{sT0}")
    h(f"s_mul_i32 s{sWL}, s{sHw}, 3072")
    h("s_waitcnt lgkmcnt(0)")
    srd(h, sX, 4, 2048 * 1024)
    srd(h, sW, 6, 512 * 3072)
    dr = Drip(h)

    def x_dma(c, key):
        dr.add(key, [f"s_add_u32 m0, s36, {c * 8192}", f"s_add_u32 s43, s34, {c * 128}"],
               f"buffer_load_dwordx4 v{vXg}, {sr(sX, 4)}, s43 offen lds")
        dr.add(key, [], f"buffer_load_dwordx4 v{vXg + 1}, {sr(sX, 4)}, s43 offen offset:1024 lds")

    def issue(st):
        if st < 8:
            x_dma(st, st)
        for seg in range(3):
            pre = [f"s_add_u32 m0, s{sWL}, {WBASE + (st % NSLOT) * SLOT}", f"s_mov_b32 s42, {32 * st * 3072}"] if seg == 0 else []
            dr.add(st, pre, f"buffer_load_dwordx4 v{vWoff}, {sr(sW, 4)}, s42 offen offset:{seg * 1024} lds")

    for st in range(NSLOT):
        issue(st)
    AHEAD = OPT["k1_d"]
    dr.emit(5 * OPT["k1_t"])
    if OPT["k1_touch"]:
        h(f"s_lshl_b32 s{sT0}, s2, 2")
        h(f"s_add_u32 s{sT0}, s{sT0}, s{sHw}")
        h(f"s_mul_i32 s{sT1}, s{sT0}, 1536")
        h(f"s_lshl_b32 s{sT0}, s{sT0}, 11")
        h(f"v_lshlrev_b32 v30, 7, v{vLane}")
        h("s_mov_b64 exec, 0xfff")
        h.vm(f"buffer_load_dword v31, v30, {sr(sW, 4)}, s{sT1} offen")
        h("s_mov_b64 exec, 0xffff")
        h.vm(f"buffer_load_dword v31, v30, {sr(sX, 4)}, s{sT0} offen")
        h("s_mov_b64 exec, -1")
    dr.emit(5 * (AHEAD - OPT["k1_t"]))
    srd(h, sWS, 8, WS_SIZE)
    h(f"s_mov_b32 s{sOnes}, 0x3f803f80")
    h(f"v_lshrrev_b32 v{vT}, 2, v{vLane}")
    h(f"v_and_b32 v{vT + 1}, 3, v{vLane}")
    h(f"v_lshlrev_b32 v{vT + 2}, 7, v{vT}")
    h(f"v_lshl_add_u32 v{vT + 2}, v{vT + 1}, 4, v{vT + 2}")
    h(f"v_bfe_u32 v{vT + 3}, v{vLane}, 3, 1")
    h(f"v_lshl_add_u32 v{vT + 2}, v{vT + 3}, 6, v{vT + 2}")
    h(f"v_add_u32 v{vSr}, s36, v{vT + 2}")
    h(f"v_xor_b32 v{vSr + 1}, 64, v{vSr}")
    h(f"s_lshl_b32 s{sT0}, s{sHw}, 4")
    h(f"v_add_u32 v{vT}, s{sT0}, v{vT}")
    h(f"v_lshlrev_b32 v{vRs}, 2, v{vT}")
    h(f"v_add_u32 v{vRs}, {RSO}, v{vRs}")
    h(f"v_and_b32 v{vT + 2}, 31, v{vT}")
    h(f"v_lshl_add_u32 v{vT + 2}, v{vT + 1}, 5, v{vT + 2}")
    h(f"v_lshrrev_b32 v{vT + 3}, 5, v{vT}")
    h(f"v_lshl_add_u32 v{vT + 2}, v{vT + 3}, 6, v{vT + 2}")
    h(f"v_lshlrev_b32 v{vXe}, 4, v{vT + 2}")
    h(f"v_add_u32 v{vXe}, {XEO}, v{vXe}")
    h(f"v_mov_b32 v{vS}, 0")
    h(f"v_mov_b32 v{vQ}, 0")
    stamp(h)
    st_tok = {}
    for st in range(NST):
        dr.wait(st)
        if st == 12:
            h.wait_all(vm=False)
        h("s_barrier")
        if st in (0, 2, 4, 6, 8, 10, 12, 14, 15):
            stamp(h)
        if st < 8:
            b = XB + 8 * (st & 1)
            h.lg(f"ds_read_b128 {vr(b, 4)}, v{vSr} offset:{st * 8192}")
            st_tok[st] = h.lg(f"ds_read_b128 {vr(b + 4, 4)}, v{vSr + 1} offset:{st * 8192}")
        if st >= 1 and st + NSLOT - 1 < NST:
            issue(st + NSLOT - 1)
        tgt = min(NST - 1, st + AHEAD + min(st + 1, OPT["k1_g"]))
        while dr.q and dr.q[0][0] <= tgt:
            dr.emit()
        if st < 8:
            h.wait(lg=st_tok[st])
            b = XB + 8 * (st & 1)
            for r in range(8):
                h(f"v_dot2_f32_bf16 v{vS}, v{b + r}, s{sOnes}, v{vS}")
                h(f"v_dot2_f32_bf16 v{vQ}, v{b + r}, v{b + r}, v{vQ}")
        if st == 8:
            for pat in ("quad_perm:[1,0,3,2]", "quad_perm:[2,3,0,1]"):
                h(f"v_add_f32_dpp v{vS}, v{vS}, v{vS} {pat} row_mask:0xf bank_mask:0xf")
                h(f"v_add_f32_dpp v{vQ}, v{vQ}, v{vQ} {pat} row_mask:0xf bank_mask:0xf")
                h("s_nop 0")
            h(f"v_mul_f32 v{vM}, {hx(f2u(-1.0 / 512))}, v{vS}")
            h(f"v_mul_f32 v{vQ}, {hx(f2u(1.0 / 512))}, v{vQ}")
            h(f"v_fma_f32 v{vQ}, -v{vM}, v{vM}, v{vQ}")
            h(f"v_max_f32 v{vQ}, 0, v{vQ}")
            h(f"v_add_f32 v{vQ}, {hx(f2u(1e-5))}, v{vQ}")
        if st == 9:
            h(f"v_rsq_f32 v{vR}, v{vQ}")
            split_hi_lo(h, vM, XB, vT, vT + 1)
            h(f"v_cvt_pk_bf16_f32 v{XB + 1}, v{vT}, 0")
            h(f"v_mov_b32 v{XB + 2}, 0")
            h(f"v_mov_b32 v{XB + 3}, 0")
        if st == 10:
            h("s_mov_b32 exec_lo, 0x33333333")
            h("s_mov_b32 exec_hi, 0x33333333")
            h.lg(f"ds_write_b128 v{vXe}, {vr(XB, 4)}")
            h.lg(f"ds_write_b32 v{vRs}, v{vR}")
            h("s_mov_b64 exec, -1")
    h("s_barrier")
    stamp_flush(h, 0, sWS, sWave) if STAMPS else None
    h("s_endpgm")
    a.lines += h.lines
    a.label("L_k1_helper_skip")

    vXrd = [3, 4, 5, 6]
    vKoff, vVoff = 20, 21
    vWrd = [22, 23, 24]
    vCw, vCr, vEr, vRl, vRr = 25, 26, 27, 28, 29
    XF = [32, 36]
    WF = [40, 52]
    CS, ONES, XE = 64, 76, 80
    RV = 84
    accQ, accK, accV = 104, 120, 136
    a(f"v_lshlrev_b32 v30, 7, v{vLane}")
    a(f"s_cmp_lg_u32 s{sWave}, 2")
    a("s_cbranch_scc1 L_k1_nocode")
    if OPT["pf_code"]:
        a(f"s_lshr_b32 s{sT0}, s2, 3")
        a(f"s_lshl_b32 s{sT0}, s{sT0}, 11")
        a(f"v_add_u32 v30, s{sT0}, v30")
        a("s_mov_b64 exec, 0xffff")
        code_prefetch(a, name, 44, 30, 31, "k1")
        a("s_mov_b64 exec, -1")
    a.label("L_k1_nocode")
    a(f"s_lshr_b32 s{sWr}, s{sHw}, 1")
    a(f"s_and_b32 s{sWc}, s{sHw}, 1")
    a(f"v_and_b32 v{vT}, 31, v{vLane}")
    a(f"v_lshrrev_b32 v{vT + 1}, 5, v{vLane}")
    a(f"v_bfe_u32 v{vT + 2}, v{vLane}, 1, 3")
    a(f"v_xor_b32 v{vT + 2}, v{vT + 2}, v{vT + 1}")
    a(f"v_lshlrev_b32 v{vT + 2}, 4, v{vT + 2}")
    a(f"v_lshl_add_u32 v{vT + 2}, v{vT}, 7, v{vT + 2}")
    a(f"s_lshl_b32 s{sT0}, s{sWr}, 12")
    a(f"v_add_u32 v{vXrd[0]}, s{sT0}, v{vT + 2}")
    for ss in range(1, 4):
        a(f"v_xor_b32 v{vXrd[ss]}, {ss * 32}, v{vXrd[0]}")
    a(f"v_mul_u32_u24 v{vT + 2}, 3072, v{vT + 1}")
    a(f"v_bfe_u32 v{vT + 3}, v{vLane}, 2, 2")
    a(f"v_lshl_add_u32 v{vT + 2}, v{vT + 3}, 7, v{vT + 2}")
    a(f"v_lshrrev_b32 v{vT + 3}, 1, v{vT + 3}")
    a(f"v_xor_b32 v{vT + 3}, s{sWc}, v{vT + 3}")
    a(f"v_lshl_add_u32 v{vT + 2}, v{vT + 3}, 6, v{vT + 2}")
    a(f"v_bfe_u32 v{vT + 4}, v{vLane}, 4, 1")
    a(f"v_lshl_add_u32 v{vT + 2}, v{vT + 4}, 5, v{vT + 2}")
    a(f"v_and_b32 v{vT + 3}, 3, v{vLane}")
    a(f"v_lshl_add_u32 v{vWrd[0]}, v{vT + 3}, 3, v{vT + 2}")
    wl = LdsAddr(a, vWrd)
    wl.setup(a)
    a(f"v_xor_b32 v{vT + 2}, v{vT + 4}, v{vLane}")
    a(f"v_and_b32 v{vT + 2}, 1, v{vT + 2}")
    a(f"v_cmp_eq_u32 vcc, 0, v{vT + 2}")
    a(f"v_mov_b32 v{vT + 2}, 0x3f803f80")
    a("s_nop 0")
    for r in range(4):
        a(f"v_cndmask_b32 v{ONES + r}, 0, v{vT + 2}, vcc")
    a(f"s_lshl_b32 s{sT0}, s{sWc}, 1")
    a(f"s_add_u32 s{sT1}, s{sT0}, s{sWr}")
    a(f"s_mul_i32 s{sT1}, s{sT1}, 384")
    a(f"s_add_u32 s{sT1}, s{sT1}, {CSO}")
    a(f"v_and_b32 v{vT + 2}, 1, v{vLane}")
    a(f"v_lshlrev_b32 v{vT + 2}, 6, v{vT + 2}")
    a(f"v_and_b32 v{vT + 3}, 48, v{vLane}")
    a(f"v_add3_u32 v{vCw}, v{vT + 2}, v{vT + 3}, s{sT1}")
    a(f"s_mul_i32 s{sT0}, s{sT0}, 384")
    a(f"s_add_u32 s{sT0}, s{sT0}, {CSO}")
    a(f"v_mul_u32_u24 v{vT + 2}, 384, v{vT + 1}")
    a(f"v_lshl_add_u32 v{vT + 2}, v{vT}, 2, v{vT + 2}")
    a(f"v_add_u32 v{vCr}, s{sT0}, v{vT + 2}")
    a(f"s_lshl_b32 s{sT0}, s{sWr}, 10")
    a(f"s_add_u32 s{sT0}, s{sT0}, {XEO}")
    a(f"v_add_u32 v{vEr}, s{sT0}, v{vL16}")
    a(f"s_lshl_b32 s{sT0}, s{sWr}, 7")
    a(f"s_add_u32 s{sT0}, s{sT0}, {RSO}")
    a(f"v_lshl_add_u32 v{vRl}, v{vT}, 2, s{sT0}")
    a(f"v_lshl_add_u32 v{vRr}, v{vT + 1}, 4, s{sT0}")
    a(f"v_and_b32 v{vT + 2}, 0x33, v{vLane}")
    a(f"v_bfe_u32 v{vT + 3}, v{vLane}, 2, 1")
    a(f"v_lshl_or_b32 v{vT + 2}, v{vT + 3}, 3, v{vT + 2}")
    a(f"v_bfe_u32 v{vT + 3}, v{vLane}, 3, 1")
    a(f"v_lshl_or_b32 v{vT + 2}, v{vT + 3}, 2, v{vT + 2}")
    a(f"v_lshlrev_b32 v{vKoff}, 4, v{vT + 2}")
    a(f"v_lshlrev_b32 v{vT + 2}, 17, v{vT + 4}")
    a(f"v_lshl_add_u32 v{vT + 2}, v{vT + 1}, 8, v{vT + 2}")
    a(f"v_and_b32 v{vT + 3}, 15, v{vLane}")
    a(f"v_lshl_add_u32 v{vVoff}, v{vT + 3}, 4, v{vT + 2}")
    a(f"s_lshl_b32 s{sT0}, s{sCg}, 2")
    a(f"s_lshl_b32 s{sT1}, s{sWc}, 1")
    a(f"s_add_u32 s{sT0}, s{sT0}, s{sT1}")
    a(f"s_lshl_b32 s{sT1}, s{sRb}, 1")
    a(f"s_add_u32 s{sT1}, s{sT1}, s{sWr}")
    a(f"s_lshl_b32 s46, s{sT0}, 16")
    a(f"s_lshl_b32 s47, s{sT1}, 10")
    a(f"s_add_u32 s46, s46, s47")
    if QF:
        a(f"s_add_u32 s46, s46, {QF}")
    a(f"s_add_u32 s47, s46, 65536")
    a(f"s_lshl_b32 s36, s{sT0}, 17")
    a(f"s_lshl_b32 s37, s{sT1}, 11")
    a(f"s_add_u32 s36, s36, s37")
    a(f"s_add_u32 s36, s36, {KVF}")
    a(f"s_add_u32 s37, s36, 131072")
    for r in range(12):
        a(f"v_mov_b32 v{CS + r}, 0")
    a("s_waitcnt lgkmcnt(0)")
    srd(a, sWS, 8, WS_SIZE)

    def reads(s):
        st, ss = divmod(s, 2)
        ops = [f"ds_read_b128 {vr(XF[s & 1], 4)}, v{vXrd[s & 3]} offset:{(s >> 2) * 8192}"]
        for seg in range(3):
            for half in range(2):
                reg, off = wl.at(WBASE + (st % NSLOT) * SLOT + ss * 6144 + seg * 1024 + half * 512)
                ops.append(f"ds_read_b64_tr_b16 {vr(WF[s & 1] + 4 * seg + 2 * half, 2)}, {reg} offset:{off}")
        return ops

    rt = {}

    def emit_reads(b, s, lo, hi):
        ops = reads(s)
        for k in range(lo, min(hi, 7)):
            rt[(s, k)] = b.lg(ops[k])

    stamp(a)
    a("s_barrier")
    stamp(a)
    emit_reads(a, 0, 0, 7)
    a(f"s_cmp_eq_u32 s{sWr}, 1")
    a("s_cbranch_scc1 L_k1_odd")
    rt0 = dict(rt)
    odd = fork(a)
    odd.label("L_k1_odd")
    acc = [accQ, accK, accV]

    def mm(b, j, w, x, first=False):
        c = "0" if first else vr(acc[j], 16)
        ops = (vr(w, 4), vr(x, 4)) if j < 2 else (vr(x, 4), vr(w, 4))
        b(f"v_mfma_f32_32x32x16_bf16 {vr(acc[j], 16)}, {ops[0]}, {ops[1]}, {c}")

    def csum(b, s, j):
        b(f"v_mfma_f32_16x16x32_bf16 {vr(CS + 4 * j, 4)}, {vr(WF[s & 1] + 4 * j, 4)}, {vr(ONES, 4)}, {vr(CS + 4 * j, 4)}")

    for par, b in ((0, a), (1, odd)):
        rt.clear()
        rt.update(rt0)
        for s in range(31):
            if s == 16:
                stamp(b)
            if s % 2 == 1:
                b.wait(lg=rt[(s, 6)])
                b("s_barrier")
            for j in range(3):
                b.wait(lg=rt[(s, 2 + 2 * j)])
                if s % 2 == par:
                    csum(b, s, j)
                mm(b, j, WF[s & 1] + 4 * j, XF[s & 1], s == 0)
                emit_reads(b, s + 1, [0, 3, 5][j], [3, 5, 7][j])
            if s == 27:
                b.lg(f"ds_read_b128 {vr(XE, 4)}, v{vEr}")
                b.lg(f"ds_read_b32 v100, v{vRl}")
            if s == 28:
                for g in range(4):
                    b.lg(f"ds_read_b128 {vr(RV + 4 * g, 4)}, v{vRr} offset:{g * 32}")
        b.wait_all(vm=False)
        if par == 1:
            for j in range(3):
                csum(b, 31, j)
    odd("s_branch L_k1_join")
    a.label("L_k1_join")
    mm(a, 0, WF[1], XF[1])
    for j in range(3):
        a(f"v_mov_b32 v{WF[0] + 4 * j + 2}, 0")
        a(f"v_mov_b32 v{WF[0] + 4 * j + 3}, 0")
    a(f"v_mul_f32 v101, {hx(f2u(0.25 * LOG2E))}, v100")
    a("s_mov_b32 exec_lo, 0x00030003")
    a("s_mov_b32 exec_hi, 0x00030003")
    for j in range(3):
        a.lg(f"ds_write_b128 v{vCw}, {vr(CS + 4 * j, 4)} offset:{j * 128}")
    a("s_mov_b64 exec, -1")
    mm(a, 1, WF[1] + 4, XF[1])
    a.wait_all(vm=False)
    a("s_barrier")
    for j in range(3):
        rt[("c", j)] = a.lg(f"ds_read_b32 v{vT + 4 + j}, v{vCr} offset:{j * 128}")
    mm(a, 2, WF[1] + 8, XF[1])
    stamp(a)
    for j in range(3):
        w = WF[0] + 4 * j
        a.wait(lg=rt[("c", j)])
        a(f"v_cvt_pk_bf16_f32 v{w + 1}, v{vT + 4 + j}, 0")
        a(f"v_lshlrev_b32 v{vT}, 16, v{w + 1}")
        a(f"v_sub_f32 v{vT}, v{vT + 4 + j}, v{vT}")
        a(f"v_cvt_pk_bf16_f32 v{w}, v{vT + 4 + j}, v{vT}")
    for j in range(3):
        mm(a, j, WF[0] + 4 * j, XE)
    a("s_nop 9")
    P = 32
    for r in range(0, 16, 2):
        a(f"v_pk_mul_f32 {vr(accQ + r, 2)}, {vr(accQ + r, 2)}, v[100:101] op_sel:[0,1] op_sel_hi:[1,1]")
    for i in range(8):
        a(f"v_cvt_pk_bf16_f32 v{P + i}, v{accQ + 2 * i}, v{accQ + 2 * i + 1}")
    a.vm(f"buffer_store_dwordx4 {vr(P, 4)}, v{vL16}, {sr(sWS, 4)}, s46 offen")
    a.vm(f"buffer_store_dwordx4 {vr(P + 4, 4)}, v{vL16}, {sr(sWS, 4)}, s47 offen")
    for r in range(0, 16, 2):
        a(f"v_pk_mul_f32 {vr(accK + r, 2)}, {vr(accK + r, 2)}, v[100:101] op_sel_hi:[1,0]")
    for i in range(8):
        a(f"v_cvt_pk_bf16_f32 v{P + 8 + i}, v{accK + 2 * i}, v{accK + 2 * i + 1}")
    a.vm(f"buffer_store_dwordx4 {vr(P + 8, 4)}, v{vKoff}, {sr(sWS, 4)}, s36 offen")
    a.vm(f"buffer_store_dwordx4 {vr(P + 12, 4)}, v{vKoff}, {sr(sWS, 4)}, s37 offen")
    for r in range(0, 16, 2):
        a(f"v_pk_mul_f32 {vr(accV + r, 2)}, {vr(accV + r, 2)}, {vr(RV + r, 2)}")
    for i in range(8):
        a(f"v_cvt_pk_bf16_f32 v{P + 16 + i}, v{accV + 2 * i}, v{accV + 2 * i + 1}")
    a.vm(f"buffer_store_dwordx4 {vr(P + 16, 4)}, v{vVoff}, {sr(sWS, 4)}, s36 offen offset:1024")
    a.vm(f"buffer_store_dwordx4 {vr(P + 20, 4)}, v{vVoff}, {sr(sWS, 4)}, s36 offen offset:1536")
    stamp(a)
    stamp_flush(a, 0, sWS, sWave)
    kernel_end(a, name)
    return name, a.text() + odd.text(), descriptor(name, 152, 0), (256, 512, RSO + 256)


def gen_k2():
    name = "k2_attn_kernel"
    a = Asm()
    kernel_begin(a, name, 256)
    sWS = 12
    sWave, sHead, sQb, sKh, sQs = 24, 25, 26, 27, 28
    sT0, sT1 = 30, 31
    sVm = 34
    vLane, vL16, vKrd, vVrd, vIdx, vXw, vXr = 1, 2, 3, 4, 5, 6, 7
    Qf = [8, 12]
    Kf = 16
    Vf = 32
    S = [64, 80]
    O = [96, 112]
    NEG = 128
    T = 144
    XCH = 131072
    NPRE = OPT["k2_pre"]
    a("s_load_dwordx2 s[8:9], s[0:1], 72")
    a(f"v_lshrrev_b32 v8, 6, v0")
    a(f"v_and_b32 v{vLane}, 63, v0")
    a(f"v_readfirstlane_b32 s{sWave}, v8")
    a(f"v_lshlrev_b32 v{vL16}, 4, v{vLane}")
    a(f"s_and_b32 s{sT0}, s2, 7")
    a(f"s_lshl_b32 s{sT0}, s{sT0}, 2")
    a(f"s_lshr_b32 s{sT1}, s2, 6")
    a(f"s_add_u32 s{sHead}, s{sT0}, s{sT1}")
    a(f"s_lshl_b32 s33, s{sHead}, 17")
    a(f"s_add_u32 s33, s33, {KVF}")
    a(f"s_cmp_eq_u32 s{sWave}, 8")
    a("s_cbranch_scc0 L_k2_compute")
    a("s_load_dwordx2 s[4:5], s[0:1], 0")
    a("s_load_dwordx2 s[6:7], s[0:1], 16")
    a("s_load_dwordx4 s[48:51], s[0:1], 32")
    a("s_load_dwordx2 s[10:11], s[0:1], 48")
    a("s_barrier")
    a("s_branch L_k2_loader")
    a.label("L_k2_compute")

    h = fork(a)
    h.label("L_k2_loader")
    h("s_setprio 3")
    h("s_waitcnt lgkmcnt(0)")
    srd(h, sWS, 8, WS_SIZE)
    for c in range(NPRE, 8):
        for half in range(2):
            for q in range(2):
                h(f"s_mov_b32 m0, {half * 65536 + c * 8192 + q * 4096}")
                h(f"s_add_u32 s37, s33, {c * 16384 + half * 8192 + q * 4096}")
                for i in range(4):
                    h.vm(f"buffer_load_dwordx4 v{vL16}, {sr(sWS, 4)}, s37 offen offset:{i * 1024} lds")
        h("s_waitcnt vmcnt(40)")
        if c == NPRE + 1 and OPT["k2_b3"]:
            h("s_barrier")
    srd(h, 16, 6, 512 * 1024)
    srd(h, 20, 48, 512 * 2752)
    srd(h, 52, 50, 512 * 2752)
    h(f"s_and_b32 s{sT0}, s2, 7")
    h(f"s_lshl_b32 s{sT1}, s{sT0}, 18")
    h(f"s_add_u32 s4, s4, s{sT1}")
    h("s_addc_u32 s5, s5, 0")
    srd(h, 44, 4, 256 * 1024)
    h(f"s_mul_i32 s{sT0}, s{sT0}, {172 * 1024}")
    h(f"s_add_u32 s10, s10, s{sT0}")
    h("s_addc_u32 s11, s11, 0")
    srd(h, 40, 10, 172 * 1024)
    h(f"s_lshr_b32 s{sT0}, s2, 3")
    h("v_lshlrev_b32 v3, 7, v1")
    h.wait_all()
    h("s_barrier")
    if OPT["pf_w"]:
        for sq, per, n in ((16, 16384, 2), (44, 8192, 1), (20, 49152, 6), (52, 49152, 6), (40, 8192, 1)):
            h(f"s_mul_i32 s{sT1}, s{sT0}, {per}")
            h(f"v_add_u32 v4, s{sT1}, v3")
            for i in range(n):
                h.vm(f"buffer_load_dword v5, v4, {sr(sq, 4)}, 0 offen")
                if i + 1 < n:
                    h("v_add_u32 v4, 0x2000, v4")
    if OPT["pf_code"]:
        h(f"s_lshl_b32 s{sT1}, s{sT0}, 11")
        h(f"v_add_u32 v4, s{sT1}, v3")
        h("s_mov_b64 exec, 0xffff")
        code_prefetch(h, "k3_wo_kernel", 38, 4, 5, "k2")
    h("s_endpgm")

    a(f"s_bfe_u32 s{sQb}, s2, 0x30003")
    a(f"s_lshr_b32 s{sKh}, s{sWave}, 2")
    a(f"s_and_b32 s{sQs}, s{sWave}, 3")
    a(f"s_lshl_b32 s32, s{sKh}, 16")
    a(f"s_lshl_b32 s{sT0}, s{sQs}, 11")
    a(f"s_add_u32 s32, s32, s{sT0}")
    a(f"s_lshl_b32 s38, s{sWave}, 11")
    a("s_add_u32 s33, s33, s38")
    a(f"s_lshl_b32 s36, s{sHead}, 16")
    a(f"s_lshl_b32 s{sT1}, s{sQb}, 13")
    a(f"s_add_u32 s36, s36, s{sT1}")
    a(f"s_add_u32 s36, s36, s{sT0}")
    if QF:
        a(f"s_add_u32 s36, s36, {QF}")
    a(f"s_lshl_b32 s{sT0}, s{sKh}, 10")
    a(f"s_add_u32 s36, s36, s{sT0}")
    a(f"s_xor_b32 s39, s36, 1024")
    a(f"s_mov_b32 m0, s32")
    a(f"v_and_b32 v{T}, 27, v{vLane}")
    a(f"v_cmp_eq_u32 vcc, 16, v{T}")
    a(f"v_mov_b32 v{T}, 0x3f803f80")
    a(f"v_mov_b32 v{vIdx}, 0xdddd")
    for r in range(32):
        a(f"v_cndmask_b32 v{Vf + r}, 0, v{T}, vcc")
    a("s_waitcnt lgkmcnt(0)")
    srd(a, sWS, 8, WS_SIZE)
    a.vm(f"buffer_load_dwordx4 v{vL16}, {sr(sWS, 4)}, s33 offen lds")
    a.vm(f"buffer_load_dwordx4 {vr(Qf[0], 4)}, v{vL16}, {sr(sWS, 4)}, s36 offen")
    a.vm(f"buffer_load_dwordx4 {vr(Qf[1], 4)}, v{vL16}, {sr(sWS, 4)}, s39 offen")
    a.vm(f"buffer_load_dwordx4 v{vL16}, {sr(sWS, 4)}, s33 offen offset:1024 lds")
    for c in range(1, NPRE):
        a(f"s_add_u32 m0, s32, {c * 8192}")
        a(f"s_add_u32 s37, s33, {c * 16384}")
        a.vm(f"buffer_load_dwordx4 v{vL16}, {sr(sWS, 4)}, s37 offen lds")
        a.vm(f"buffer_load_dwordx4 v{vL16}, {sr(sWS, 4)}, s37 offen offset:1024 lds")
    a(f"s_mov_b32 s{sVm}, 0x0000ffff")
    a(f"s_mov_b32 s{sVm + 1}, 0x0000ffff")
    a(f"s_lshl_b32 s{sT0}, s{sKh}, 16")
    a(f"v_add_u32 v{vKrd}, s{sT0}, v{vL16}")
    a(f"v_lshrrev_b32 v{T}, 5, v{vLane}")
    a(f"v_and_b32 v{T + 1}, 15, v{vLane}")
    a(f"v_lshlrev_b32 v{T + 1}, 4, v{T + 1}")
    a(f"v_lshl_add_u32 v{T}, v{T}, 8, v{T + 1}")
    a(f"v_add_u32 v{vVrd}, s{sT0}, v{T}")
    a(f"s_mul_i32 s{sT0}, s{sWave}, 3072")
    a(f"s_add_u32 s{sT0}, s{sT0}, {XCH}")
    a(f"v_add_u32 v{vXw}, s{sT0}, v{vL16}")
    a(f"s_xor_b32 s{sT1}, s{sWave}, 4")
    a(f"s_mul_i32 s{sT0}, s{sT1}, 3072")
    a(f"s_add_u32 s{sT0}, s{sT0}, {XCH}")
    a(f"v_add_u32 v{vXr}, s{sT0}, v{vL16}")
    for c in range(2):
        for r in range(16):
            a(f"v_mov_b32 v{O[c] + r}, 0")
    a(f"s_lshl_b32 s57, s{sQb}, 3")
    a(f"s_lshl_b32 s{sT1}, s{sQs}, 1")
    a(f"s_add_u32 s57, s57, s{sT1}")
    a(f"s_add_u32 s57, s57, s{sKh}")
    a(f"s_lshl_b32 s57, s57, 15")
    a(f"s_lshl_b32 s{sT1}, s{sHead}, 10")
    a(f"s_add_u32 s57, s57, s{sT1}")
    a(f"s_add_u32 s57, s57, {OF}")

    def emit_pair(p):
        for t in (2 * p, 2 * p + 1):
            a.lg(f"ds_read_b128 {vr(Kf + 4 * (t & 3), 4)}, v{vKrd} offset:{t * 2048}")
        a(f"s_mov_b64 exec, {sr(sVm, 2)}")
        for t in (2 * p, 2 * p + 1):
            a.lg(f"ds_read_b128 {vr(Vf + 8 * (t & 3), 4)}, v{vVrd} offset:{t * 2048 + 1024}")
            tok = a.lg(f"ds_read_b128 {vr(Vf + 8 * (t & 3) + 4, 4)}, v{vVrd} offset:{t * 2048 + 1536}")
        a("s_mov_b64 exec, -1")
        return tok

    def qk(u):
        t, c = divmod(u, 2)
        return f"v_mfma_f32_32x32x16_bf16 {vr(S[u & 1], 16)}, {vr(Kf + 4 * (t & 3), 4)}, {vr(Qf[c], 4)}, 0"

    def pv(u, i):
        t, c = divmod(u, 2)
        return (f"v_smfmac_f32_32x32x32_bf16 {vr(O[c], 16)}, {vr(Vf + 8 * (t & 3) + 4 * i, 4)}, "
                f"{vr(S[u & 1] + 8 * i, 8)}, v{vIdx}")

    NU = 64
    UB = 4 * (2 * NPRE - 1)
    PRIO = {}
    if OPT["k2_prio"]:
        PRIO = {0: 1, UB - 2: 0, UB + 1: 2, NU - 6: 1, NU - 2: 0}
        if OPT['k2_b3']:
            PRIO.update({3: 0, 5: 1})
    stamp(a)
    if OPT["k2_b3"]:
        a.wait(vm=3)
    else:
        a.wait_all(lg=False)
    a("s_barrier")
    stamp(a)
    ptok = {0: emit_pair(0)}
    a.wait(lg=ptok[0] - 5)
    a(qk(0))
    a.wait(lg=ptok[0])
    a("s_nop 9")
    for u in range(NU):
        X = S[u & 1]
        p, pu = divmod(u, 4)
        if u in (8, 16, 32, 48):
            stamp(a)
        if u in PRIO:
            a(f"s_setprio {PRIO[u]}")
        elif u == 0:
            a("s_nop 0")
        ex = [f"v_exp_f32 v{X + i}, v{X + i}" for i in range(16)]
        a(ex[0]); a(ex[1])
        if u > 0:
            a(pv(u - 1, 1))
        a(ex[2]); a(ex[3]); a(ex[4])
        if u + 1 < NU:
            if pu == 3:
                a.wait(lg=ptok[p + 1])
            a(qk(u + 1))
        if pu == 0 and p + 1 < 16:
            if u == 4 and OPT["k2_b3"]:
                a.wait_all(lg=False)
                a("s_barrier")
            if u == UB:
                a("s_barrier")
            ptok[p + 1] = emit_pair(p + 1)
        for i in range(5, 10):
            a(ex[i])
        a(pv(u, 0))
        for i in range(10, 16):
            a(ex[i])
    a("s_nop 1")
    a(pv(NU - 1, 1))
    a("s_nop 11")
    stamp(a)
    a.lg(f"ds_write_b128 v{vXw}, {vr(O[1], 4)}")
    a.lg(f"ds_write_b128 v{vXw}, {vr(O[1] + 4, 4)} offset:1024")
    a.lg(f"ds_write_b32 v{vXw}, v{O[1] + 8} offset:2048")
    a(f"s_mov_b32 s{sT0}, {hx(f2u(2.0 ** 80))}")
    a(f"s_mov_b32 s{sT1}, {hx(f2u(2.0 ** -80))}")
    a.wait_all(vm=False)
    a("s_barrier")
    t2 = a.lg(f"ds_read_b32 v{T + 8}, v{vXr} offset:2048")
    t0 = a.lg(f"ds_read_b128 {vr(T, 4)}, v{vXr}")
    t1 = a.lg(f"ds_read_b128 {vr(T + 4, 4)}, v{vXr} offset:1024")
    a.wait(lg=t2)
    a(f"v_add_f32 v{O[0] + 8}, v{O[0] + 8}, v{T + 8}")
    a.wait(lg=t1)
    for r in range(0, 8, 2):
        a(f"v_pk_add_f32 {vr(O[0] + r, 2)}, {vr(O[0] + r, 2)}, {vr(T + r, 2)}")
    a("s_mov_b32 s56, 0")
    a.label("L_k2_finish")
    a(f"v_rcp_f32 v{T + 8}, v{O[0] + 8}")
    a(f"v_cmp_gt_f32 s[40:41], s{sT0}, v{O[0] + 8}")
    a(f"v_cmp_lt_f32 s[42:43], s{sT1}, v{O[0] + 8}")
    for r in range(0, 8, 2):
        a(f"v_pk_mul_f32 {vr(O[0] + r, 2)}, {vr(O[0] + r, 2)}, {vr(T + 8, 2)} op_sel_hi:[1,0]")
    for i in range(4):
        a(f"v_cvt_pk_bf16_f32 v{T + 4 + i}, v{O[0] + 2 * i}, v{O[0] + 2 * i + 1}")
    a(f"v_dot2_f32_bf16 v{T}, v{T + 4}, v{T + 4}, 0")
    for i in range(1, 4):
        a(f"v_dot2_f32_bf16 v{T}, v{T + 4 + i}, v{T + 4 + i}, v{T}")
    a("s_and_b64 s[40:41], s[40:41], s[42:43]")
    a("s_cmp_lg_u32 s56, 0")
    a("s_cbranch_scc1 L_k2_store")
    a(f"v_cmp_gt_f32 vcc, s{sT0}, v{T}")
    a("s_nop 0")
    a("s_and_b64 s[40:41], s[40:41], vcc")
    a("s_cmp_eq_u64 s[40:41], -1")
    a("s_cbranch_scc0 L_k2_fallback")
    a.label("L_k2_store")
    a.vm(f"buffer_store_dwordx4 {vr(T + 4, 4)}, v{vL16}, {sr(sWS, 4)}, s57 offen")
    stamp(a)
    stamp_flush(a, 1, sWS, sWave)
    a("s_endpgm")
    a.label("L_k2_fallback")
    vK2, vV2, vM = T + 10, T + 11, T + 12
    a(f"s_lshl_b32 s37, s{sKh}, 16")
    a(f"v_subrev_u32 v{vK2}, s37, v{vKrd}")
    a(f"v_mov_b32 v{vM}, 0xff800000")
    a("s_mov_b32 s56, 0")
    a.label("L_k2_fb_max")
    a(f"ds_read_b128 {vr(Kf, 4)}, v{vK2}")
    a("s_waitcnt lgkmcnt(0)")
    a(f"v_mfma_f32_32x32x16_bf16 {vr(S[0], 16)}, {vr(Kf, 4)}, {vr(Qf[0], 4)}, 0")
    a("s_nop 15")
    for i in range(8):
        a(f"v_max3_f32 v{vM}, v{vM}, v{S[0] + 2 * i}, v{S[0] + 2 * i + 1}")
    a(f"v_add_u32 v{vK2}, 2048, v{vK2}")
    a("s_add_u32 s56, s56, 1")
    a("s_cmp_lt_u32 s56, 64")
    a("s_cbranch_scc1 L_k2_fb_max")
    a(f"v_mov_b32 v{T}, v{vM}")
    a("s_nop 1")
    a(f"v_permlane32_swap_b32 v{vM}, v{T}")
    a("s_nop 1")
    a(f"v_max_f32 v{vM}, v{vM}, v{T}")
    for r in range(16):
        a(f"v_sub_f32 v{NEG + r}, 0, v{vM}")
        a(f"v_mov_b32 v{O[0] + r}, 0")
    a(f"v_subrev_u32 v{vK2}, s37, v{vKrd}")
    a(f"v_subrev_u32 v{vV2}, s37, v{vVrd}")
    a("s_mov_b32 s56, 0")
    a.label("L_k2_fb_pv")
    a(f"ds_read_b128 {vr(Kf, 4)}, v{vK2}")
    a(f"s_mov_b64 exec, {sr(sVm, 2)}")
    a(f"ds_read_b128 {vr(Vf, 4)}, v{vV2} offset:1024")
    a(f"ds_read_b128 {vr(Vf + 4, 4)}, v{vV2} offset:1536")
    a("s_mov_b64 exec, -1")
    a("s_waitcnt lgkmcnt(0)")
    a(f"v_mfma_f32_32x32x16_bf16 {vr(S[0], 16)}, {vr(Kf, 4)}, {vr(Qf[0], 4)}, {vr(NEG, 16)}")
    a("s_nop 15")
    for i in range(16):
        a(f"v_exp_f32 v{S[0] + i}, v{S[0] + i}")
    a("s_nop 1")
    a(f"v_smfmac_f32_32x32x32_bf16 {vr(O[0], 16)}, {vr(Vf, 4)}, {vr(S[0], 8)}, v{vIdx}")
    a(f"v_smfmac_f32_32x32x32_bf16 {vr(O[0], 16)}, {vr(Vf + 4, 4)}, {vr(S[0] + 8, 8)}, v{vIdx}")
    a("s_nop 15")
    a(f"v_add_u32 v{vK2}, 2048, v{vK2}")
    a(f"v_add_u32 v{vV2}, 2048, v{vV2}")
    a("s_add_u32 s56, s56, 1")
    a("s_cmp_lt_u32 s56, 64")
    a("s_cbranch_scc1 L_k2_fb_pv")
    a("s_branch L_k2_finish")
    kernel_end(a, name)
    return name, a.text() + h.text(), descriptor(name, 160, 0), (256, 576, XCH + 8 * 3072)


def gen_res(kind):
    k3 = kind == "k3"
    name = "k3_wo_kernel" if k3 else "k5_down_kernel"
    kidx = 2 if k3 else 4
    KS = 32 if k3 else 86
    ACT = OF if k3 else GF
    NST = (KS + 3) // 4
    NSLOT, SLOT = 8, 16384
    RESO = NSLOT * SLOT
    TRO = RESO + 8192
    RST = 2
    a = Asm()
    kernel_begin(a, name, 256)
    sW, sWS, sIO = 12, 16, 20
    sWave, sWr, sWc, sRb, sCb, sHw = 24, 25, 26, 27, 28, 29
    sT0, sT1 = 30, 31
    vLane, vL16 = 1, 2
    T = 12
    if k3:
        a("s_load_dwordx2 s[4:5], s[0:1], 16")
        a("s_load_dwordx2 s[6:7], s[0:1], 0")
    else:
        a("s_load_dwordx4 s[4:7], s[0:1], 48")
    a("s_load_dwordx2 s[8:9], s[0:1], 72")
    a(f"v_and_b32 v{vLane}, 63, v0")
    a(f"v_lshrrev_b32 v{T}, 6, v0")
    a(f"v_lshlrev_b32 v{vL16}, 4, v{vLane}")
    a(f"v_readfirstlane_b32 s{sWave}, v{T}")
    a(f"s_and_b32 s{sT0}, s2, 7")
    a(f"s_lshl_b32 s{sRb}, s{sT0}, 2")
    a(f"s_lshr_b32 s34, s2, 6")
    a(f"s_add_u32 s{sRb}, s{sRb}, s34")
    a(f"s_bfe_u32 s{sCb}, s2, 0x30003")
    a(f"s_and_b32 s{sHw}, s{sWave}, 3")
    a(f"s_and_b32 s{sWr}, s{sWave}, 1")
    a(f"s_bfe_u32 s{sWc}, s{sWave}, 0x10001")
    a(f"s_cmp_ge_u32 s{sWave}, 4")
    a(f"s_cbranch_scc0 L_{kind}_helper_skip")

    h = fork(a)
    h.label(f"L_{kind}_helper")
    vWoff, vXg = 3, 5
    h(f"v_lshrrev_b32 v{T}, 3, v{vLane}")
    h(f"v_and_b32 v{T + 1}, 7, v{vLane}")
    h(f"v_lshrrev_b32 v{T + 2}, 2, v{vLane}")
    h(f"v_and_b32 v{T + 2}, 4, v{T + 2}")
    h(f"v_xor_b32 v{T + 2}, v{T + 2}, v{T + 1}")
    h(f"v_lshlrev_b32 v{T + 2}, 4, v{T + 2}")
    h(f"v_lshl_add_u32 v{T + 2}, v{T}, 10, v{T + 2}")
    h(f"s_lshl_b32 s{sT0}, s{sHw}, 14")
    h(f"s_lshl_b32 s{sT1}, s{sCb}, 7")
    h(f"s_add_u32 s{sT0}, s{sT0}, s{sT1}")
    h(f"v_add_u32 v{vWoff}, s{sT0}, v{T + 2}")
    h(f"v_add_u32 v{vWoff + 1}, {8192 - 1024}, v{vWoff}")
    h(f"s_lshl_b32 s32, s{sHw}, 11")
    h(f"s_lshl_b32 s33, s{sRb}, 1")
    h(f"s_add_u32 s33, s33, s{sWr}")
    h(f"s_mul_i32 s34, s33, {KS * 1024}")
    h(f"s_lshl_b32 s{sT1}, s{sWc}, 11")
    h(f"s_add_u32 s34, s34, s{sT1}")
    h(f"s_add_u32 s34, s34, {ACT}")
    h(f"s_lshl_b32 s35, s{sWr}, 12")
    h(f"s_add_u32 s35, s35, s{sT1}")
    if k3:
        h(f"v_lshrrev_b32 v{T + 2}, 1, v{T}")
        h(f"v_xor_b32 v{T + 2}, v{T + 2}, v{T + 1}")
        h(f"v_lshlrev_b32 v{T + 2}, 4, v{T + 2}")
        h(f"v_lshl_add_u32 v{vXg}, v{T}, 10, v{T + 2}")
        h(f"v_xor_b32 v{vXg + 1}, 64, v{vXg}")
        h(f"v_add_u32 v{vXg + 1}, {8192 - 1024}, v{vXg + 1}")
        h(f"s_lshl_b32 s36, s{sRb}, 16")
        h(f"s_add_u32 s36, s36, s{sT0}")
    else:
        h(f"s_lshl_b32 s36, s33, 15")
        h(f"s_lshl_b32 s{sT0}, s{sCb}, 12")
        h(f"s_add_u32 s36, s36, s{sT0}")
        h(f"s_add_u32 s36, s36, s{sT1}")
        h(f"s_add_u32 s36, s36, {HF}")
    h("s_waitcnt lgkmcnt(0)")
    srd(h, sWS, 8, WS_SIZE)
    srd(h, sW, 4, KS * 16 * 1024)
    if k3:
        srd(h, sIO, 6, 2048 * 1024)
    dr = Drip(h)

    def issue(st):
        sl = (st % NSLOT) * SLOT
        dr.add(st, [f"s_add_u32 m0, s35, {sl + 8192}", f"s_add_u32 s43, s34, {st * 4096}"],
               f"buffer_load_dwordx4 v{vL16}, {sr(sWS, 4)}, s43 offen lds")
        dr.add(st, [], f"buffer_load_dwordx4 v{vL16}, {sr(sWS, 4)}, s43 offen offset:1024 lds")
        dr.add(st, [f"s_add_u32 m0, s32, {sl}", f"s_mov_b32 s42, {st * 65536}"],
               f"buffer_load_dwordx4 v{vWoff}, {sr(sW, 4)}, s42 offen lds")
        dr.add(st, [], f"buffer_load_dwordx4 v{vWoff + 1}, {sr(sW, 4)}, s42 offen offset:1024 lds")
        if st == RST:
            if k3:
                dr.add(st, [f"s_add_u32 m0, s32, {RESO}", "s_nop 0"], f"buffer_load_dwordx4 v{vXg}, {sr(sIO, 4)}, s36 offen lds")
                dr.add(st, [], f"buffer_load_dwordx4 v{vXg + 1}, {sr(sIO, 4)}, s36 offen offset:1024 lds")
            else:
                dr.add(st, [f"s_add_u32 m0, s35, {RESO}", "s_nop 0"], f"buffer_load_dwordx4 v{vL16}, {sr(sWS, 4)}, s36 offen lds")
                dr.add(st, [], f"buffer_load_dwordx4 v{vL16}, {sr(sWS, 4)}, s36 offen offset:1024 lds")

    for st in range(min(NSLOT, NST)):
        issue(st)
    AHEAD = OPT["k3_d"] if k3 else OPT["k5_d"]
    stamp(h)
    for st in range(NST):
        while dr.q and dr.q[0][0] <= st + AHEAD:
            dr.emit()
        dr.wait(st)
        h("s_barrier")
        if st in (0, NST // 2, NST - 1):
            stamp(h)
        if st >= 1 and st + NSLOT - 1 < NST:
            issue(st + NSLOT - 1)
    stamp_flush(h, kidx, sWS, sWave) if STAMPS else None
    h("s_endpgm")
    a.lines += h.lines
    a.label(f"L_{kind}_helper_skip")

    vWrd, vAr, vRr, vTw, vTr, vOut = [3, 4], [5, 6], [7, 8], 9, 10, 11
    ID = 24
    FR = [32, 80]
    acc = 128
    a(f"v_and_b32 v{T}, 31, v{vLane}")
    a(f"v_lshrrev_b32 v{T + 1}, 5, v{vLane}")
    a(f"v_bfe_u32 v{T + 2}, v{vLane}, 2, 2")
    a(f"v_lshl_add_u32 v{T + 3}, v{T + 1}, 2, v{T + 2}")
    a(f"v_lshlrev_b32 v{T + 3}, 7, v{T + 3}")
    a(f"v_bfe_u32 v{T + 4}, v{vLane}, 4, 1")
    a(f"v_lshl_add_u32 v{T + 3}, v{T + 4}, 5, v{T + 3}")
    a(f"v_and_b32 v{T + 4}, 3, v{vLane}")
    a(f"v_lshl_add_u32 v{T + 3}, v{T + 4}, 3, v{T + 3}")
    a(f"v_lshrrev_b32 v{T + 2}, 1, v{T + 2}")
    a(f"v_xor_b32 v{T + 2}, s{sWc}, v{T + 2}")
    a(f"v_lshl_add_u32 v{vWrd[0]}, v{T + 2}, 6, v{T + 3}")
    wl = LdsAddr(a, vWrd)
    wl.setup(a)
    a(f"s_lshl_b32 s{sT0}, s{sWr}, 12")
    a(f"s_add_u32 s{sT1}, s{sT0}, 8192")
    a(f"v_add_u32 v{vAr[0]}, s{sT1}, v{vL16}")
    al = LdsAddr(a, vAr)
    al.setup(a)
    if k3:
        a(f"v_bfe_u32 v{T + 2}, v{vLane}, 1, 3")
        a(f"v_xor_b32 v{T + 2}, v{T + 2}, v{T + 1}")
        a(f"s_lshl_b32 s{sT1}, s{sWc}, 2")
        a(f"v_xor_b32 v{T + 2}, s{sT1}, v{T + 2}")
        a(f"v_lshlrev_b32 v{T + 2}, 4, v{T + 2}")
        a(f"v_lshl_add_u32 v{T + 2}, v{T}, 7, v{T + 2}")
        a(f"s_add_u32 s{sT0}, s{sT0}, {RESO}")
        a(f"v_add_u32 v{vRr[0]}, s{sT0}, v{T + 2}")
        a(f"v_xor_b32 v{vRr[1]}, 32, v{vRr[0]}")
    else:
        a(f"s_lshl_b32 s{sT1}, s{sWc}, 11")
        a(f"s_add_u32 s{sT0}, s{sT0}, s{sT1}")
        a(f"s_add_u32 s{sT0}, s{sT0}, {RESO}")
        a(f"v_add_u32 v{vRr[0]}, s{sT0}, v{vL16}")
        a(f"v_add_u32 v{vRr[1]}, 1024, v{vRr[0]}")
    a(f"v_mov_b32 v{T + 5}, 0x3f80")
    for e in range(2):
        if k3:
            a(f"v_lshlrev_b32 v{T + 2}, 3, v{T + 1}")
            a(f"v_sub_u32 v{T + 2}, v{T}, v{T + 2}")
            a(f"v_subrev_u32 v{T + 2}, {16 * e}, v{T + 2}")
        else:
            a(f"v_bfe_u32 v{T + 2}, v{vLane}, 3, 1")
            a(f"v_and_b32 v{T + 3}, 3, v{vLane}")
            a(f"v_lshl_add_u32 v{T + 2}, v{T + 2}, 2, v{T + 3}")
            a(f"v_bfe_u32 v{T + 3}, v{vLane}, 2, 1")
            a(f"v_xor_b32 v{T + 3}, v{T + 3}, v{T + 1}")
            a(f"v_bfe_u32 v{T + 4}, v{vLane}, 4, 1")
            a(f"v_xor_b32 v{T + 4}, {e}, v{T + 4}")
            a(f"v_or_b32 v{T + 3}, v{T + 3}, v{T + 4}")
            a(f"v_lshl_add_u32 v{T + 2}, v{T + 3}, 4, v{T + 2}")
        a(f"v_and_b32 v{T + 3}, 1, v{T + 2}")
        a(f"v_lshlrev_b32 v{T + 3}, 4, v{T + 3}")
        a(f"v_lshlrev_b32 v{T + 3}, v{T + 3}, v{T + 5}")
        a(f"v_lshrrev_b32 v{T + 2}, 1, v{T + 2}")
        for r in range(4):
            a(f"v_cmp_eq_u32 vcc, {r}, v{T + 2}")
            a("s_nop 1")
            a(f"v_cndmask_b32 v{ID + 4 * e + r}, 0, v{T + 3}, vcc")
    a(f"s_lshl_b32 s33, s{sRb}, 1")
    a(f"s_add_u32 s33, s33, s{sWr}")
    a(f"s_lshl_b32 s34, s{sCb}, 1")
    a(f"s_add_u32 s34, s34, s{sWc}")
    if k3:
        a(f"s_lshl_b32 s36, s33, 15")
        a(f"s_lshl_b32 s37, s34, 11")
        a(f"s_add_u32 s36, s36, s37")
        a(f"s_add_u32 s36, s36, {HF}")
        a(f"s_lshl_b32 s37, s34, 14")
        a(f"s_lshl_b32 s{sT1}, s33, 8")
        a(f"s_add_u32 s37, s37, s{sT1}")
        a(f"s_add_u32 s37, s37, {ST}")
        a("s_mov_b32 s41, 0x3f803f80")
        a(f"v_lshlrev_b32 v{vOut}, 3, v{vLane}")
    else:
        a(f"s_mul_i32 s{sT0}, s{sHw}, 2560")
        a(f"s_add_u32 s{sT0}, s{sT0}, {TRO}")
        a(f"v_mul_u32_u24 v{T + 2}, 80, v{T}")
        a(f"v_lshl_add_u32 v{T + 2}, v{T + 1}, 3, v{T + 2}")
        a(f"v_add_u32 v{vTw}, s{sT0}, v{T + 2}")
        a(f"v_lshrrev_b32 v{T + 2}, 2, v{vLane}")
        a(f"v_and_b32 v{T + 3}, 3, v{vLane}")
        a(f"v_lshlrev_b32 v{T + 3}, 4, v{T + 3}")
        a(f"v_mad_u32_u24 v{T + 4}, v{T + 2}, 64, v{T + 3}")
        a(f"v_lshl_add_u32 v{T + 4}, v{T + 2}, 4, v{T + 4}")
        a(f"v_add_u32 v{vTr}, s{sT0}, v{T + 4}")
        a(f"v_lshl_add_u32 v{vOut}, v{T + 2}, 10, v{T + 3}")
        a(f"s_lshl_b32 s36, s33, 15")
        a(f"s_lshl_b32 s37, s34, 6")
        a(f"s_add_u32 s36, s36, s37")
        a(f"s_add_u32 s37, s36, 16384")
    a("s_waitcnt lgkmcnt(0)")
    if k3 or STAMPS or DBGT:
        srd(a, sWS, 8, WS_SIZE)
    if not k3:
        srd(a, sIO, 6, 2048 * 1024)
    stamp(a)
    first = True
    for st in range(NST):
        a("s_barrier")
        if st in (0, NST // 2):
            stamp(a)
        sl = (st % NSLOT) * SLOT
        F = FR[st & 1]
        n = min(4, KS - 4 * st)
        tk = []
        for k in range(n):
            reg, off = al.at(sl + k * 1024)
            a.lg(f"ds_read_b128 {vr(F + 8 * k, 4)}, {reg} offset:{off}")
            for half in range(2):
                reg, off = wl.at(sl + k * 2048 + half * 1024)
                t = a.lg(f"ds_read_b64_tr_b16 {vr(F + 8 * k + 4 + 2 * half, 2)}, {reg} offset:{off}")
            tk.append(t)
        if st == RST:
            for e in range(2):
                tk.append(a.lg(f"ds_read_b128 {vr(F + 32 + 4 * e, 4)}, v{vRr[e]}"))
        for k in range(n):
            a.wait(lg=tk[k])
            a(f"v_mfma_f32_32x32x16_bf16 {vr(acc, 16)}, {vr(F + 8 * k + 4, 4)}, {vr(F + 8 * k, 4)}, {'0' if first else vr(acc, 16)}")
            first = False
        if st == RST:
            for e in range(2):
                a.wait(lg=tk[n + e])
                a(f"v_mfma_f32_32x32x16_bf16 {vr(acc, 16)}, {vr(ID + 4 * e, 4)}, {vr(F + 32 + 4 * e, 4)}, {vr(acc, 16)}")
    stamp(a)
    a("s_nop 11")
    P = 32
    for i in range(8):
        a(f"v_cvt_pk_bf16_f32 v{P + i}, v{acc + 2 * i}, v{acc + 2 * i + 1}")
    if k3:
        a.vm(f"buffer_store_dwordx4 {vr(P, 4)}, v{vL16}, {sr(sWS, 4)}, s36 offen")
        a.vm(f"buffer_store_dwordx4 {vr(P + 4, 4)}, v{vL16}, {sr(sWS, 4)}, s36 offen offset:1024")
        a(f"v_dot2_f32_bf16 v{T}, v{P}, s41, 0")
        a(f"v_dot2_f32_bf16 v{T + 1}, v{P}, v{P}, 0")
        for i in range(1, 8):
            a(f"v_dot2_f32_bf16 v{T}, v{P + i}, s41, v{T}")
            a(f"v_dot2_f32_bf16 v{T + 1}, v{P + i}, v{P + i}, v{T + 1}")
        a("s_nop 2")
        a(f"v_mov_b32 v{T + 2}, v{T}")
        a(f"v_mov_b32 v{T + 3}, v{T + 1}")
        a("s_nop 0")
        a(f"v_permlane32_swap_b32 v{T}, v{T + 2}")
        a(f"v_permlane32_swap_b32 v{T + 1}, v{T + 3}")
        a("s_nop 0")
        a(f"v_add_f32 v{T}, v{T}, v{T + 2}")
        a(f"v_add_f32 v{T + 1}, v{T + 1}, v{T + 3}")
        a("s_mov_b32 exec_hi, 0")
        a.vm(f"buffer_store_dwordx2 {vr(T, 2)}, v{vOut}, {sr(sWS, 4)}, s37 offen")
    else:
        for g in range(4):
            a.lg(f"ds_write_b64 v{vTw}, {vr(P + 2 * g, 2)} offset:{g * 16}")
        a.wait_all(vm=False)
        t0 = a.lg(f"ds_read_b128 {vr(P + 8, 4)}, v{vTr}")
        t1 = a.lg(f"ds_read_b128 {vr(P + 12, 4)}, v{vTr} offset:{16 * 80}")
        a.wait(lg=t0)
        a.vm(f"buffer_store_dwordx4 {vr(P + 8, 4)}, v{vOut}, {sr(sIO, 4)}, s36 offen")
        a.wait(lg=t1)
        a.vm(f"buffer_store_dwordx4 {vr(P + 12, 4)}, v{vOut}, {sr(sIO, 4)}, s37 offen")
    stamp(a)
    stamp_flush(a, kidx, sWS, sWave)
    kernel_end(a, name)
    return name, a.text(), descriptor(name, 144, 0), (256, 512, TRO + 4 * 2560)


def gen_k4():
    name = "k4_glu_kernel"
    a = Asm()
    kernel_begin(a, name, 240)
    sG, sU, sWS = 12, 16, 20
    sWave, sRb, sCg, sHw = 24, 25, 26, 28
    sT0, sT1, sWL, sAct = 30, 31, 32, 33
    vLane, vL16 = 1, 2
    vWoff = [3, 4, 5]
    vWrd = [6, 7, 8]
    vWrdO = [9, 10, 11]
    vXa = [3, 4, 5]
    vT = 16
    ACC = 32
    XF = [128, 136]
    WF = [144, 156]
    CS = 168
    ONES = 180
    AS = 184
    XE = 188
    vCw, vCr, vEr = 196, 197, 198
    SLOT, NSLOT, XO, NST = 20480, 7, 12288, 16
    CSO = NSLOT * SLOT
    XEO = CSO + 2048
    a("s_load_dwordx4 s[4:7], s[0:1], 32")
    a("s_load_dwordx2 s[8:9], s[0:1], 72")
    a("s_load_dwordx2 s[10:11], s[0:1], 48")
    a(f"v_and_b32 v{vLane}, 63, v0")
    a(f"v_lshrrev_b32 v{vT}, 6, v0")
    a(f"v_lshlrev_b32 v{vL16}, 4, v{vLane}")
    a(f"v_readfirstlane_b32 s{sWave}, v{vT}")
    a(f"s_and_b32 s{sT0}, s2, 7")
    a(f"s_lshl_b32 s{sT0}, s{sT0}, 1")
    a(f"s_bfe_u32 s{sT1}, s2, 0x10003")
    a(f"s_add_u32 s{sRb}, s{sT0}, s{sT1}")
    a(f"s_lshr_b32 s{sCg}, s2, 4")
    a(f"s_and_b32 s{sHw}, s{sWave}, 3")
    a(f"s_cmp_ge_u32 s{sWave}, 4")
    a(f"s_cbranch_scc0 L_k4_helper_skip")

    h = fork(a)
    h.label("L_k4_helper")
    h(f"s_lshl_b32 s{sAct}, s{sRb}, 2")
    h(f"s_add_u32 s{sAct}, s{sAct}, s{sHw}")
    h(f"s_lshl_b32 s{sAct}, s{sAct}, 15")
    h(f"s_add_u32 s{sAct}, s{sAct}, {HF}")
    h(f"s_lshr_b32 s34, s{sHw}, 1")
    h(f"s_and_b32 s35, s{sHw}, 1")
    h(f"s_mul_i32 s{sT0}, s34, {16 * 2752}")
    h(f"s_mul_i32 s{sT1}, s{sCg}, 192")
    h(f"s_add_u32 s{sT0}, s{sT0}, s{sT1}")
    h(f"v_and_b32 v{vT + 3}, 2, v{vLane}")
    h(f"v_lshlrev_b32 v{vT + 3}, 5, v{vT + 3}")
    h(f"v_sub_u32 v{vT + 3}, 32, v{vT + 3}")
    h(f"v_mul_lo_u32 v{vT + 3}, v{vT + 3}, s35")
    h(f"v_add_u32 v{vT + 3}, s{sT0}, v{vT + 3}")
    for i in range(3):
        h(f"v_add_u32 v{vT}, {64 * i}, v{vLane}")
        h(f"v_mul_u32_u24 v{vT + 1}, 171, v{vT}")
        h(f"v_lshrrev_b32 v{vT + 1}, 11, v{vT + 1}")
        h(f"v_mul_u32_u24 v{vT + 2}, {2752 - 192}, v{vT + 1}")
        h(f"v_add3_u32 v{vWoff[i]}, v{vL16}, v{vT + 2}, v{vT + 3}")
    h(f"s_mul_i32 s{sWL}, s{sHw}, 3072")
    h(f"s_lshl_b32 s36, s{sHw}, 11")
    h(f"s_add_u32 s36, s36, {XO}")
    h("s_waitcnt lgkmcnt(0)")
    srd(h, sWS, 8, WS_SIZE)
    h("s_cmp_eq_u32 s35, 0")
    h(f"s_cselect_b32 s{sG}, s4, s6")
    h(f"s_cselect_b32 s{sG + 1}, s5, s7")
    h(f"s_mov_b32 s{sG + 2}, {hx(512 * 2752)}")
    h(f"s_mov_b32 s{sG + 3}, 0x00020000")
    dr = Drip(h)

    def issue(st):
        for i in range(2):
            pre = [f"s_add_u32 m0, s36, {(st % NSLOT) * SLOT}", f"s_add_u32 s43, s{sAct}, {st * 2048}"] if i == 0 else []
            dr.add(st, pre, f"buffer_load_dwordx4 v{vL16}, {sr(sWS, 4)}, s43 offen offset:{i * 1024} lds")
        for i in range(3):
            pre = [f"s_add_u32 m0, s{sWL}, {(st % NSLOT) * SLOT}", f"s_mov_b32 s42, {st * 32 * 2752}"] if i == 0 else []
            dr.add(st, pre, f"buffer_load_dwordx4 v{vWoff[i]}, {sr(sG, 4)}, s42 offen offset:{i * 1024} lds")

    for st in range(NSLOT):
        issue(st)
    AHEAD = OPT["k4_d"]
    dr.emit(5 * AHEAD)
    vPf, vPd = 13, 14
    srd(h, 44, 10, 1376 * 1024)
    h(f"s_lshr_b32 s{sT0}, s2, 3")
    h(f"s_lshl_b32 s{sT0}, s{sT0}, 2")
    h(f"s_add_u32 s{sT0}, s{sT0}, s{sHw}")
    h(f"s_lshl_b32 s{sT0}, s{sT0}, 13")
    h(f"v_lshlrev_b32 v{vPf}, 7, v{vLane}")
    h(f"v_add_u32 v{vPf}, s{sT0}, v{vPf}")
    h(f"v_add_u32 v15, {120 * 8192}, v{vPf}")
    h(f"v_lshrrev_b32 v{vT + 3}, 5, v{vLane}")
    h(f"v_and_b32 v{vT + 4}, 31, v{vLane}")
    h(f"v_lshlrev_b32 v{vT + 4}, 3, v{vT + 4}")
    h(f"v_lshl_add_u32 v{vT + 4}, v{vT + 3}, 17, v{vT + 4}")
    h(f"s_lshl_b32 s34, s{sRb}, 2")
    h(f"s_add_u32 s34, s34, s{sHw}")
    h(f"s_lshl_b32 s34, s34, 8")
    h(f"s_add_u32 s34, s34, {ST}")
    h(f"s_lshl_b32 s{sT0}, s{sHw}, 11")
    h(f"s_add_u32 s{sT0}, s{sT0}, {XEO}")
    h(f"v_add_u32 v{vT + 5}, s{sT0}, v{vL16}")
    h(f"v_lshl_add_u32 v{vT + 6}, v{vLane}, 3, s{sT0}")
    SP = 32
    stamp(h)
    for st in range(NST):
        dr.wait(st)
        vS, vQ, vM, vA = 60, 61, 62, 64
        if st == 11:
            dr.wait("st")
            h(f"v_add_f32 v{vS}, v{SP}, v{SP + 2}")
            h(f"v_add_f32 v{vQ}, v{SP + 1}, v{SP + 3}")
            for i in range(2, 8):
                h(f"v_add_f32 v{vS}, v{vS}, v{SP + 2 * i}")
                h(f"v_add_f32 v{vQ}, v{vQ}, v{SP + 2 * i + 1}")
        if st == 12:
            half_sum(h, vS, vT)
            half_sum(h, vQ, vT)
            h(f"v_mul_f32 v{vM}, {hx(f2u(-1.0 / 512))}, v{vS}")
            h(f"v_mul_f32 v{vQ}, {hx(f2u(1.0 / 512))}, v{vQ}")
            h(f"v_fma_f32 v{vQ}, -v{vM}, v{vM}, v{vQ}")
            h(f"v_max_f32 v{vQ}, 0, v{vQ}")
            h(f"v_add_f32 v{vQ}, {hx(f2u(1e-5))}, v{vQ}")
        if st == 13:
            h(f"v_rsq_f32 v{vA}, v{vQ}")
            split_hi_lo(h, vM, 68, vT, vT + 1)
            h(f"v_mul_f32 v{vA + 1}, v{vQ}, v{vA}")
            h(f"v_mul_f32 v{vA}, {hx(f2u(-LOG2E))}, v{vA}")
            h(f"v_cvt_pk_bf16_f32 v69, v{vT}, 0")
            h("v_mov_b32 v70, 0")
            h("v_mov_b32 v71, 0")
            h.lg(f"ds_write_b128 v{vT + 5}, v[68:71]")
            h.lg(f"ds_write_b64 v{vT + 6}, {vr(vA, 2)} offset:1024")
        if st == 14:
            h.wait_all(vm=False)
            dr.wait(15)
            if OPT["k4_pf"]:
                h.vm(f"buffer_load_dword v{vPd}, v{vPf}, s[44:47], 0 offen")
        if st == 15 and OPT["k4_pf"]:
            h.vm(f"buffer_load_dword v{vPd}, v15, s[44:47], 0 offen")
        h("s_barrier")
        if st in (0, 2, 4, 6, 8, 10, 12, 13, 14, 15):
            stamp(h)
        if st >= 1 and st + NSLOT - 1 < NST:
            issue(st + NSLOT - 1)
        tgt = min(NST - 1, st + AHEAD + min(st + 1, OPT["k4_g"]))
        while dr.q and dr.q[0][0] <= tgt:
            dr.emit()
        if 5 <= st <= 8:
            for i in (2 * (st - 5), 2 * (st - 5) + 1):
                h(f"s_add_u32 s{sT0}, s34, {i * 16384}")
                dr.tok["st"] = h.vm(f"buffer_load_dwordx2 {vr(SP + 2 * i, 2)}, v{vT + 4}, {sr(sWS, 4)}, s{sT0} offen")
    h("s_barrier")
    stamp_flush(h, 3, sWS, sWave) if STAMPS else None
    h("s_endpgm")
    a.lines += h.lines
    a.label("L_k4_helper_skip")

    sWr2, sWc = 36, 37
    a(f"s_lshr_b32 s{sWr2}, s{sHw}, 1")
    a(f"s_and_b32 s{sWc}, s{sHw}, 1")
    a(f"s_lshl_b32 s34, s{sRb}, 1")
    a(f"s_add_u32 s34, s34, s{sWr2}")
    a(f"v_lshrrev_b32 v{vT + 3}, 5, v{vLane}")
    a(f"v_bfe_u32 v{vT}, v{vLane}, 2, 2")
    a(f"v_lshl_add_u32 v{vT}, v{vT + 3}, 2, v{vT}")
    a(f"v_mul_u32_u24 v{vT}, 192, v{vT}")
    a(f"v_and_b32 v{vT + 1}, 3, v{vLane}")
    a(f"v_lshl_add_u32 v{vT}, v{vT + 1}, 3, v{vT}")
    a(f"s_mul_i32 s{sT0}, s{sWc}, 96")
    a(f"v_add_u32 v{vT}, s{sT0}, v{vT}")
    a(f"v_bfe_u32 v{vT + 1}, v{vLane}, 4, 1")
    a(f"s_lshl_b32 s{sT0}, s{sWc}, 6")
    a(f"s_sub_u32 s{sT1}, {3072 + 32}, s{sT0}")
    a(f"s_add_u32 s{sT0}, {3072 - 32}, s{sT0}")
    a(f"v_mad_u32_u24 v{vWrd[0]}, v{vT + 1}, s{sT1}, v{vT}")
    a(f"v_mad_u32_u24 v{vWrdO[0]}, v{vT + 1}, s{sT0}, v{vT}")
    wl = [LdsAddr(a, vWrd), LdsAddr(a, vWrdO)]
    wl[0].setup(a)
    wl[1].setup(a)
    a(f"s_lshl_b32 s{sT0}, s{sWr2}, 12")
    a(f"s_add_u32 s{sT0}, s{sT0}, {XO}")
    a(f"v_add_u32 v{vXa[0]}, s{sT0}, v{vL16}")
    xl = LdsAddr(a, vXa)
    xl.setup(a)
    a(f"v_xor_b32 v{vT}, v{vT + 1}, v{vLane}")
    a(f"v_and_b32 v{vT}, 1, v{vT}")
    a(f"v_cmp_eq_u32 vcc, 0, v{vT}")
    a(f"v_mov_b32 v{vT}, 0x3f803f80")
    a("s_nop 0")
    for r in range(4):
        a(f"v_cndmask_b32 v{ONES + r}, 0, v{vT}, vcc")
    a(f"s_lshl_b32 s{sT0}, s{sWc}, 1")
    a(f"s_add_u32 s{sT1}, s{sT0}, s{sWr2}")
    a(f"s_mul_i32 s{sT1}, s{sT1}, 384")
    a(f"s_add_u32 s{sT1}, s{sT1}, {CSO}")
    a(f"v_and_b32 v{vT}, 1, v{vLane}")
    a(f"v_lshlrev_b32 v{vT}, 6, v{vT}")
    a(f"v_and_b32 v{vT + 1}, 48, v{vLane}")
    a(f"v_add3_u32 v{vCw}, v{vT}, v{vT + 1}, s{sT1}")
    a(f"s_mul_i32 s{sT0}, s{sT0}, 384")
    a(f"s_add_u32 s{sT0}, s{sT0}, {CSO}")
    a(f"v_mul_u32_u24 v{vT}, 384, v{vT + 3}")
    a(f"v_and_b32 v{vT + 1}, 31, v{vLane}")
    a(f"v_lshl_add_u32 v{vT}, v{vT + 1}, 2, v{vT}")
    a(f"v_add_u32 v{vCr}, s{sT0}, v{vT}")
    a(f"s_mul_i32 s34, s34, {2 * 86 * 1024}")
    a(f"s_lshl_b32 s35, s{sCg}, 1")
    a(f"s_add_u32 s35, s35, s{sWc}")
    a(f"s_mul_i32 s38, s35, 3")
    a(f"s_lshl_b32 s35, s38, 10")
    a("s_add_u32 s34, s34, s35")
    a(f"s_add_u32 s34, s34, {GF}")
    a(f"s_add_u32 s35, s34, {86 * 1024}")
    for r in range(12):
        a(f"v_mov_b32 v{CS + r}, 0")
    a(f"s_lshl_b32 s{sT0}, s{sWr2}, 12")
    a(f"s_add_u32 s{sT0}, s{sT0}, {XEO}")
    a(f"v_add_u32 v{vEr}, s{sT0}, v{vL16}")
    a(f"v_lshl_add_u32 v{vEr + 1}, v{vLane}, 3, s{sT0}")
    a("s_waitcnt lgkmcnt(0)")
    srd(a, sWS, 8, WS_SIZE)

    def reads(s):
        st, ss = divmod(s, 2)
        W = []
        for j in range(3):
            for half in range(2):
                reg, off = wl[j & 1].at((st % NSLOT) * SLOT + ss * 6144 + half * 8 * 192 + j * 32)
                W.append(f"ds_read_b64_tr_b16 {vr(WF[s & 1] + 4 * j + 2 * half, 2)}, {reg} offset:{off}")
        X = []
        for i in range(2):
            reg, off = xl.at((st % NSLOT) * SLOT + i * 2048 + ss * 1024)
            X.append(f"ds_read_b128 {vr(XF[s & 1] + 4 * i, 4)}, {reg} offset:{off}")
        return [X[0], W[0], W[1], X[1], W[2], W[3], W[4], W[5]]

    rt = {}

    def emit_reads(b, s, lo, hi):
        ops = reads(s)
        for k in range(lo, min(hi, 8)):
            rt[(s, k)] = b.lg(ops[k])

    stamp(a)
    a("s_barrier")
    stamp(a)
    emit_reads(a, 0, 0, 8)
    a(f"s_cmp_eq_u32 s{sWr2}, 1")
    a("s_cbranch_scc1 L_k4_odd")
    cuts = [0, 2, 4, 6, 8, 8, 8]
    need = [3, 3, 5, 5, 7, 7]
    rt0 = dict(rt)
    odd = fork(a)
    odd.label("L_k4_odd")
    for par, b in ((0, a), (1, odd)):
        rt.clear()
        rt.update(rt0)
        def main(s, m):
            j, i = divmod(m, 2)
            d = ACC + 16 * m
            c = "0" if s == 0 else vr(d, 16)
            b(f"v_mfma_f32_32x32x16_bf16 {vr(d, 16)}, {vr(WF[s & 1] + 4 * j, 4)}, {vr(XF[s & 1] + 4 * i, 4)}, {c}")

        def csum(s, j):
            b(f"v_mfma_f32_16x16x32_bf16 {vr(CS + 4 * j, 4)}, {vr(WF[s & 1] + 4 * j, 4)}, {vr(ONES, 4)}, {vr(CS + 4 * j, 4)}")

        for s in range(31):
            if s == 16:
                stamp(b)
            if s % 2 == 1:
                b.wait(lg=rt[(s, 7)])
                b("s_barrier")
            for m in range(6):
                b.wait(lg=rt[(s, need[m])])
                if m % 2 == 0 and s % 2 == par:
                    csum(s, m // 2)
                main(s, m)
                emit_reads(b, s + 1, cuts[m], cuts[m + 1])
                if s == 29 and m >= 4:
                    b.lg(f"ds_read_b128 {vr(XE + 4 * (m - 4), 4)}, v{vEr} offset:{(m - 4) * 2048}")
                    b.lg(f"ds_read_b64 {vr(AS + 2 * (m - 4), 2)}, v{vEr + 1} offset:{(m - 4) * 2048 + 1024}")
        b.wait_all(vm=False)
        if par == 1:
            for j in range(3):
                csum(31, j)
    odd("s_branch L_k4_join")
    a.label("L_k4_join")
    b = a
    main(31, 0)
    for j in range(3):
        a(f"v_mov_b32 v{WF[0] + 4 * j + 2}, 0")
        a(f"v_mov_b32 v{WF[0] + 4 * j + 3}, 0")
    main(31, 1)
    a("s_mov_b32 exec_lo, 0x00030003")
    a("s_mov_b32 exec_hi, 0x00030003")
    for j in range(3):
        a.lg(f"ds_write_b128 v{vCw}, {vr(CS + 4 * j, 4)} offset:{j * 128}")
    a("s_mov_b64 exec, -1")
    main(31, 2)
    main(31, 3)
    a.wait_all(vm=False)
    a("s_barrier")
    for j in range(3):
        rt[("c", j)] = a.lg(f"ds_read_b32 v{vT + 4 + j}, v{vCr} offset:{j * 128}")
    main(31, 4)
    main(31, 5)
    stamp(a)
    for j in range(3):
        w = WF[0] + 4 * j
        a.wait(lg=rt[("c", j)])
        a(f"v_cvt_pk_bf16_f32 v{w + 1}, v{vT + 4 + j}, 0")
        a(f"v_lshlrev_b32 v{vT}, 16, v{w + 1}")
        a(f"v_sub_f32 v{vT}, v{vT + 4 + j}, v{vT}")
        a(f"v_cvt_pk_bf16_f32 v{w}, v{vT + 4 + j}, v{vT}")
    for j in range(3):
        for i in range(2):
            d = ACC + 32 * j + 16 * i
            a(f"v_mfma_f32_32x32x16_bf16 {vr(d, 16)}, {vr(WF[0] + 4 * j, 4)}, {vr(XE + 4 * i, 4)}, {vr(d, 16)}")
    stamp(a)
    a("s_nop 4")
    for j in range(3):
        a(f"s_cmp_ge_u32 s38, {86 - j}")
        a(f"s_cbranch_scc1 L_{name}_done")
        G = [(ACC + 32 * j + 16 * i + r, i) for i in range(2) for r in range(8)]
        for g, i in G[::2]:
            a(f"v_pk_mul_f32 {vr(g, 2)}, {vr(g, 2)}, {vr(AS + 2 * i, 2)} op_sel_hi:[1,0]")
        for g, i in G:
            a(f"v_exp_f32 v{g}, v{g}")
        for g, i in G[::2]:
            a(f"v_pk_fma_f32 {vr(g, 2)}, {vr(g, 2)}, {vr(AS + 2 * i, 2)}, {vr(AS + 2 * i, 2)} op_sel:[0,1,1] op_sel_hi:[1,1,1]")
        for g, i in G:
            a(f"v_rcp_f32 v{g}, v{g}")
        for g, i in G[::2]:
            a(f"v_pk_mul_f32 {vr(g, 2)}, {vr(g, 2)}, {vr(g + 8, 2)}")
        o = ACC + 32 * j + 8
        for i in range(8):
            a(f"v_cvt_pk_bf16_f32 v{o + i}, v{G[2 * i][0]}, v{G[2 * i + 1][0]}")
        a.vm(f"buffer_store_dwordx4 {vr(o, 4)}, v{vL16}, {sr(sWS, 4)}, s34 offen offset:{j * 1024}")
        a.vm(f"buffer_store_dwordx4 {vr(o + 4, 4)}, v{vL16}, {sr(sWS, 4)}, s35 offen offset:{j * 1024}")
    stamp(a)
    stamp_flush(a, 3, sWS, sWave)
    kernel_end(a, name)
    return name, a.text() + odd.text(), descriptor(name, 200, 0), (240, 512, XEO + 8192)


def build():
    ks = [gen_k1(), gen_k2(), gen_res("k3"), gen_k4(), gen_res("k5")]
    ref = open(f"cdna_kernels/{NAME}.s.ref").read().split("\n")
    head = [l for l in ref if l.startswith(";") and "@launch" not in l and "Override launch" not in l
            and "grid=ceil" not in l]
    out = "\n".join(head) + "\n"
    for name, _, _, (g, b, lds) in ks:
        out += f"; @launch kernel={name} grid=({g},1,1) block=({b},1,1) lds={lds}\n"
    out += '.amdgcn_target "amdgcn-amd-amdhsa--gfx950"\n.text\n'
    bad = 0
    for name, text, _, _ in ks:
        bad += check_hazards(text, name)
        out += text
    out += "L_code_end:\n"
    out += '.section .rodata,"a"\n'
    for name, _, desc, _ in ks:
        out += ".p2align 6\n" + desc
    if bad:
        print("hazards:", bad)
    return out


if __name__ == "__main__":
    path = sys.argv[1] if len(sys.argv) > 1 else f"cdna_kernels/{NAME}.s"
    for arg in sys.argv[2:]:
        if arg == "stamps":
            STAMPS = True
        elif arg == "dbgt":
            DBGT = True
        else:
            k_, v_ = arg.split("=")
            OPT[k_] = int(v_)
    open(path, "w").write(build())
    print("wrote", path)
```

```python
import math
import struct
import sys

from asmlib import Asm, check_hazards

NAME = "sequential_preLN__mha_block__glu_gated_glu__prompt"

MB = 1 << 20
QF = 0
KVF = 2 * MB
OF = 6 * MB
HF = 8 * MB
ST = 10 * MB
GF = 12 * MB
WS_SIZE = 32 * MB

LOG2E = 1.4426950408889634
OPT = dict(pf_code=True, pf_w=True, k1_pre=2, k1_drip=0, k4_first=1, k4_prio=1, k3_d=2, k5_d=3, k4_d=3, k4_g=1, k1_d=3, k1_g=1, k1_touch=1, k1_t=1, k2_map=0, k2_oz=1, k2_pre=2, k2_prio=1, k2_b3=0, k4_pf=1)


def f2u(x):
    return struct.unpack("<I", struct.pack("<f", x))[0]


def hx(x):
    return "0x%08x" % (x & 0xFFFFFFFF)


def vr(b, n):
    return f"v[{b}:{b + n - 1}]"


def ar(b, n):
    return f"a[{b}:{b + n - 1}]"


def sr(b, n):
    return f"s[{b}:{b + n - 1}]"


def srd(a, d, base, size):
    a(f"s_mov_b32 s{d}, s{base}")
    a(f"s_mov_b32 s{d + 1}, s{base + 1}")
    a(f"s_mov_b32 s{d + 2}, {hx(size)}")
    a(f"s_mov_b32 s{d + 3}, 0x00020000")


def interleave(main, fill, lead=0):
    out = []
    fill = list(fill)
    out += fill[:lead]
    fill = fill[lead:]
    n = len(main)
    per = len(fill) / n if n else 0
    used = 0
    for i, m in enumerate(main):
        out.append(m)
        upto = int(round(per * (i + 1)))
        out += fill[used:upto]
        used = upto
    out += fill[used:]
    return out


def kernel_begin(a, name, nwg):
    a.raw(f".globl {name}")
    a.raw(".p2align 8")
    a.raw(f".type {name},@function")
    a.label(name)
    a(f"s_cmp_ge_u32 s2, {nwg}")
    a(f"s_cbranch_scc1 L_{name}_done")
    dbgt_begin(a)
    stamp(a, real=True)
    stamp(a)


STAMPS = False
SBASE = 60
DBGO = 20 * MB


def stamp(a, real=False):
    if not STAMPS:
        return
    i = getattr(a, "nstamp", 0)
    a.nstamp = i + 1
    assert i < 16
    a(f"{'s_memrealtime' if real else 's_memtime'} s[{SBASE + 2 * i}:{SBASE + 2 * i + 1}]")
    a.wait_all(vm=False)


def stamp_flush(a, kidx, sWS, sWave):
    dbgt_end(a, kidx, sWS)
    if not STAMPS:
        return
    a.wait_all()
    stamp(a)
    stamp(a, real=True)
    a("s_mov_b64 exec, -1")
    a("s_lshl_b32 s58, s2, 3")
    a(f"s_add_u32 s58, s58, s{sWave}")
    a("s_lshl_b32 s58, s58, 6")
    a(f"s_add_u32 s58, s58, {DBGO + kidx * MB}")
    a("v_mov_b32 v1, 0")
    for i in range(a.nstamp):
        a(f"v_mov_b32 v2, s{SBASE + 2 * i}")
        a(f"buffer_store_dword v2, v1, s[{sWS}:{sWS + 3}], s58 offen offset:{4 * i}")
    a.wait_all()


DBGT = False


def dbgt_begin(a):
    if not DBGT:
        return
    a("s_memrealtime s[90:91]")
    a("s_load_dwordx2 s[92:93], s[0:1], 64")


def dbgt_end(a, kidx, sWS):
    if not DBGT:
        return
    a.wait_all()
    a("s_cmp_lg_u32 s2, 0")
    a(f"s_cbranch_scc1 L_dbgt_{kidx}")
    a("s_memrealtime s[88:89]")
    a.wait_all()
    a("s_mov_b64 exec, -1")
    a("v_cmp_eq_u32 vcc, 0, v0")
    a("s_nop 4")
    a("s_and_b64 exec, exec, vcc")
    a(f"s_cbranch_execz L_dbgt_{kidx}")
    a(f"v_mov_b32 v1, {DBGO}")
    a("v_mov_b32 v2, s90")
    a("v_mov_b32 v3, s88")
    a(f"buffer_store_dwordx2 v[2:3], v1, s[{sWS}:{sWS + 3}], 0 offen offset:{8 * kidx}")
    if kidx == 4:
        a(f"buffer_load_dwordx4 v[4:7], v1, s[{sWS}:{sWS + 3}], 0 offen")
        a(f"buffer_load_dwordx4 v[8:11], v1, s[{sWS}:{sWS + 3}], 0 offen offset:16")
        a("s_mov_b32 s94, 256")
        a("s_mov_b32 s95, 0x00020000")
        a("v_mov_b32 v1, 0")
        a.wait_all()
        if OPT.get("spin"):
            a("v_readfirstlane_b32 s87, v4")
            a.label("L_dbg_spin")
            a("s_memrealtime s[88:89]")
            a("s_waitcnt lgkmcnt(0)")
            a("s_sub_u32 s88, s88, s87")
            a(f"s_cmp_lt_u32 s88, {OPT['spin']}")
            a("s_cbranch_scc1 L_dbg_spin")
        for r in (5, 6, 7, 8, 9, 10, 11, 2, 3):
            a(f"v_sub_u32 v{r}, v{r}, v4")
        a("buffer_store_dwordx4 v[4:7], v1, s[92:95], 0 offen")
        a("buffer_store_dwordx4 v[8:11], v1, s[92:95], 0 offen offset:16")
        a("buffer_store_dwordx2 v[2:3], v1, s[92:95], 0 offen offset:32")
    a.wait_all()
    a.label(f"L_dbgt_{kidx}")


def kernel_end(a, name):
    a.label(f"L_{name}_done")
    a("s_endpgm")


def descriptor(name, vgpr, agpr, sgpr=96):
    acc = (vgpr + 3) // 4 * 4
    return f""".amdhsa_kernel {name}
  .amdhsa_next_free_vgpr {acc + agpr}
  .amdhsa_next_free_sgpr {sgpr}
  .amdhsa_accum_offset {acc}
  .amdhsa_group_segment_fixed_size 0
  .amdhsa_kernarg_size 80
  .amdhsa_user_sgpr_count 2
  .amdhsa_user_sgpr_kernarg_segment_ptr 1
  .amdhsa_system_sgpr_workgroup_id_x 1
.end_amdhsa_kernel
"""


def normalize_ops(x, t, vR, vNB, sMask):
    ops = []
    for i in range(4):
        ops.append(f"v_lshlrev_b32 v{t + 2 * i}, 16, v{x + i}")
        ops.append(f"v_and_b32 v{t + 2 * i + 1}, s{sMask}, v{x + i}")
    for i in range(8):
        ops.append(f"v_fma_f32 v{t + i}, v{t + i}, v{vR}, v{vNB}")
    for i in range(4):
        ops.append(f"v_cvt_pk_bf16_f32 v{x + i}, v{t + 2 * i}, v{t + 2 * i + 1}")
    return ops


def half_sum(a, r, t):
    a(f"v_mov_b32 v{t}, v{r}")
    a("s_nop 1")
    a(f"v_permlane32_swap_b32 v{r}, v{t}")
    a("s_nop 1")
    a(f"v_add_f32 v{r}, v{r}, v{t}")


def finish_stats(a, vS, vQ, vR, vNB, t, scale=1.0):
    a(f"v_mul_f32 v{vS}, {hx(f2u(1.0 / 512))}, v{vS}")
    a(f"v_mul_f32 v{vQ}, {hx(f2u(1.0 / 512))}, v{vQ}")
    a(f"v_fma_f32 v{t}, -v{vS}, v{vS}, v{vQ}")
    a(f"v_max_f32 v{t}, 0, v{t}")
    a(f"v_add_f32 v{t}, {hx(f2u(1e-5))}, v{t}")
    a(f"v_rsq_f32 v{vR}, v{t}")
    a("s_nop 0")
    if scale != 1.0:
        a(f"v_mul_f32 v{vR}, {hx(f2u(scale))}, v{vR}")
    a(f"v_mul_f32 v{vNB}, -v{vS}, v{vR}")


class Drip:
    def __init__(self, a):
        self.a = a
        self.q = []
        self.tok = {}

    def add(self, key, pre, ins):
        self.q.append((key, pre, ins))

    def emit(self, n=1):
        for _ in range(n):
            if not self.q:
                return
            key, pre, ins = self.q.pop(0)
            for p in pre:
                self.a(p)
            self.tok[key] = self.a.vm(ins)

    def through(self, key):
        while any(k == key for k, _, _ in self.q):
            self.emit()

    def wait(self, key):
        self.through(key)
        self.a.wait(vm=self.tok[key])


def code_prefetch(a, label, sPC, vOff, vDst, uid):
    a(f"s_getpc_b64 s[{sPC}:{sPC + 1}]")
    a.label(f"L_pc_{uid}")
    a(f"s_add_u32 s{sPC}, s{sPC}, {label}-L_pc_{uid}")
    a(f"s_addc_u32 s{sPC + 1}, s{sPC + 1}, ({label}-L_pc_{uid})>>32")
    a(f"v_min_u32 v{vOff}, L_code_end-{label}-4, v{vOff}")
    return a.vm(f"global_load_dword v{vDst}, v{vOff}, s[{sPC}:{sPC + 1}]")


class LdsAddr:
    def __init__(self, a, regs):
        self.regs = regs

    def setup(self, a):
        for j in range(1, len(self.regs)):
            a(f"v_add_u32 v{self.regs[j]}, {hx(j * 65536)}, v{self.regs[0]}")

    def at(self, off):
        return f"v{self.regs[off >> 16]}", off & 0xFFFF


def fork(a):
    b = Asm()
    b.vm_issued, b.vm_done, b.lg_issued, b.lg_done = a.vm_issued, a.vm_done, a.lg_issued, a.lg_done
    b.nstamp = getattr(a, "nstamp", 0)
    return b


def split_hi_lo(a, x, hi, lo, t):
    a(f"v_cvt_pk_bf16_f32 v{hi}, v{x}, v{x}")
    a(f"v_lshlrev_b32 v{t}, 16, v{hi}")
    a(f"v_sub_f32 v{lo}, v{x}, v{t}")


def gen_k1():
    name = "k1_qkv_kernel"
    a = Asm()
    kernel_begin(a, name, 256)
    sX, sW, sWS = 12, 16, 20
    sWave, sWr, sWc, sCg, sRb, sHw = 24, 25, 26, 27, 28, 29
    sT0, sT1, sWL = 30, 31, 32
    sOnes = 41
    vLane, vL16 = 1, 2
    vT = 8
    NSLOT, SLOT, WBASE, NST = 7, 12288, 65536, 16
    CSO = WBASE + NSLOT * SLOT
    XEO = CSO + 2048
    RSO = XEO + 2048
    a("s_load_dwordx4 s[4:7], s[0:1], 0")
    a("s_load_dwordx2 s[8:9], s[0:1], 72")
    a(f"v_and_b32 v{vLane}, 63, v0")
    a(f"v_lshrrev_b32 v7, 6, v0")
    a(f"v_lshlrev_b32 v{vL16}, 4, v{vLane}")
    a(f"v_readfirstlane_b32 s{sWave}, v7")
    a(f"s_and_b32 s{sT0}, s2, 7")
    a(f"s_lshl_b32 s{sT0}, s{sT0}, 2")
    a(f"s_bfe_u32 s{sT1}, s2, 0x20003")
    a(f"s_add_u32 s{sRb}, s{sT0}, s{sT1}")
    a(f"s_lshr_b32 s{sCg}, s2, 5")
    a(f"s_and_b32 s{sHw}, s{sWave}, 3")
    a(f"s_cmp_ge_u32 s{sWave}, 4")
    a(f"s_cbranch_scc0 L_k1_helper_skip")

    h = fork(a)
    h.label("L_k1_helper")
    vWoff, vXg, vSr, vXe, vRs = 3, 4, 6, 20, 21
    vS, vQ, vM, vR = 22, 23, 24, 25
    XB = 32
    h(f"v_lshrrev_b32 v{vT}, 3, v{vLane}")
    h(f"v_and_b32 v{vT + 1}, 7, v{vLane}")
    h(f"v_lshrrev_b32 v{vT + 2}, 1, v{vT}")
    h(f"v_xor_b32 v{vT + 2}, v{vT + 2}, v{vT + 1}")
    h(f"v_lshlrev_b32 v{vT + 2}, 4, v{vT + 2}")
    h(f"v_lshl_add_u32 v{vXg}, v{vT}, 10, v{vT + 2}")
    h(f"v_xor_b32 v{vXg + 1}, 64, v{vXg}")
    h(f"v_add_u32 v{vXg + 1}, {8 * 1024 - 1024}, v{vXg + 1}")
    h(f"s_lshl_b32 s34, s{sRb}, 16")
    h(f"s_lshl_b32 s{sT0}, s{sHw}, 14")
    h(f"s_add_u32 s34, s34, s{sT0}")
    h(f"s_lshl_b32 s36, s{sHw}, 11")
    h(f"v_lshrrev_b32 v{vT + 2}, 2, v{vLane}")
    h(f"v_and_b32 v{vT + 2}, 4, v{vT + 2}")
    h(f"v_xor_b32 v{vT + 2}, v{vT + 2}, v{vT + 1}")
    h(f"v_lshlrev_b32 v{vT + 2}, 4, v{vT + 2}")
    h(f"v_mul_u32_u24 v{vT + 3}, 3072, v{vT}")
    h(f"s_mul_i32 s{sT0}, s{sHw}, {8 * 3072}")
    h(f"s_lshl_b32 s{sT1}, s{sCg}, 7")
    h(f"s_add_u32 s{sT0}, s{sT0}, s{sT1}")
    h(f"v_add3_u32 v{vWoff}, v{vT + 3}, v{vT + 2}, s{sT0}")
    h(f"s_mul_i32 s{sWL}, s{sHw}, 3072")
    h("s_waitcnt lgkmcnt(0)")
    srd(h, sX, 4, 2048 * 1024)
    srd(h, sW, 6, 512 * 3072)
    dr = Drip(h)

    def x_dma(c, key):
        dr.add(key, [f"s_add_u32 m0, s36, {c * 8192}", f"s_add_u32 s43, s34, {c * 128}"],
               f"buffer_load_dwordx4 v{vXg}, {sr(sX, 4)}, s43 offen lds")
        dr.add(key, [], f"buffer_load_dwordx4 v{vXg + 1}, {sr(sX, 4)}, s43 offen offset:1024 lds")

    def issue(st):
        if st < 8:
            x_dma(st, st)
        for seg in range(3):
            pre = [f"s_add_u32 m0, s{sWL}, {WBASE + (st % NSLOT) * SLOT}", f"s_mov_b32 s42, {32 * st * 3072}"] if seg == 0 else []
            dr.add(st, pre, f"buffer_load_dwordx4 v{vWoff}, {sr(sW, 4)}, s42 offen offset:{seg * 1024} lds")

    for st in range(NSLOT):
        issue(st)
    AHEAD = OPT["k1_d"]
    dr.emit(5 * OPT["k1_t"])
    if OPT["k1_touch"]:
        h(f"s_lshl_b32 s{sT0}, s2, 2")
        h(f"s_add_u32 s{sT0}, s{sT0}, s{sHw}")
        h(f"s_mul_i32 s{sT1}, s{sT0}, 1536")
        h(f"s_lshl_b32 s{sT0}, s{sT0}, 11")
        h(f"v_lshlrev_b32 v30, 7, v{vLane}")
        h("s_mov_b64 exec, 0xfff")
        h.vm(f"buffer_load_dword v31, v30, {sr(sW, 4)}, s{sT1} offen")
        h("s_mov_b64 exec, 0xffff")
        h.vm(f"buffer_load_dword v31, v30, {sr(sX, 4)}, s{sT0} offen")
        h("s_mov_b64 exec, -1")
    dr.emit(5 * (AHEAD - OPT["k1_t"]))
    srd(h, sWS, 8, WS_SIZE)
    h(f"s_mov_b32 s{sOnes}, 0x3f803f80")
    h(f"v_lshrrev_b32 v{vT}, 2, v{vLane}")
    h(f"v_and_b32 v{vT + 1}, 3, v{vLane}")
    h(f"v_lshlrev_b32 v{vT + 2}, 7, v{vT}")
    h(f"v_lshl_add_u32 v{vT + 2}, v{vT + 1}, 4, v{vT + 2}")
    h(f"v_bfe_u32 v{vT + 3}, v{vLane}, 3, 1")
    h(f"v_lshl_add_u32 v{vT + 2}, v{vT + 3}, 6, v{vT + 2}")
    h(f"v_add_u32 v{vSr}, s36, v{vT + 2}")
    h(f"v_xor_b32 v{vSr + 1}, 64, v{vSr}")
    h(f"s_lshl_b32 s{sT0}, s{sHw}, 4")
    h(f"v_add_u32 v{vT}, s{sT0}, v{vT}")
    h(f"v_lshlrev_b32 v{vRs}, 2, v{vT}")
    h(f"v_add_u32 v{vRs}, {RSO}, v{vRs}")
    h(f"v_and_b32 v{vT + 2}, 31, v{vT}")
    h(f"v_lshl_add_u32 v{vT + 2}, v{vT + 1}, 5, v{vT + 2}")
    h(f"v_lshrrev_b32 v{vT + 3}, 5, v{vT}")
    h(f"v_lshl_add_u32 v{vT + 2}, v{vT + 3}, 6, v{vT + 2}")
    h(f"v_lshlrev_b32 v{vXe}, 4, v{vT + 2}")
    h(f"v_add_u32 v{vXe}, {XEO}, v{vXe}")
    h(f"v_mov_b32 v{vS}, 0")
    h(f"v_mov_b32 v{vQ}, 0")
    stamp(h)
    st_tok = {}
    for st in range(NST):
        dr.wait(st)
        if st == 12:
            h.wait_all(vm=False)
        h("s_barrier")
        if st in (0, 2, 4, 6, 8, 10, 12, 14, 15):
            stamp(h)
        if st < 8:
            b = XB + 8 * (st & 1)
            h.lg(f"ds_read_b128 {vr(b, 4)}, v{vSr} offset:{st * 8192}")
            st_tok[st] = h.lg(f"ds_read_b128 {vr(b + 4, 4)}, v{vSr + 1} offset:{st * 8192}")
        if st >= 1 and st + NSLOT - 1 < NST:
            issue(st + NSLOT - 1)
        tgt = min(NST - 1, st + AHEAD + min(st + 1, OPT["k1_g"]))
        while dr.q and dr.q[0][0] <= tgt:
            dr.emit()
        if st < 8:
            h.wait(lg=st_tok[st])
            b = XB + 8 * (st & 1)
            for r in range(8):
                h(f"v_dot2_f32_bf16 v{vS}, v{b + r}, s{sOnes}, v{vS}")
                h(f"v_dot2_f32_bf16 v{vQ}, v{b + r}, v{b + r}, v{vQ}")
        if st == 8:
            for pat in ("quad_perm:[1,0,3,2]", "quad_perm:[2,3,0,1]"):
                h(f"v_add_f32_dpp v{vS}, v{vS}, v{vS} {pat} row_mask:0xf bank_mask:0xf")
                h(f"v_add_f32_dpp v{vQ}, v{vQ}, v{vQ} {pat} row_mask:0xf bank_mask:0xf")
                h("s_nop 0")
            h(f"v_mul_f32 v{vM}, {hx(f2u(-1.0 / 512))}, v{vS}")
            h(f"v_mul_f32 v{vQ}, {hx(f2u(1.0 / 512))}, v{vQ}")
            h(f"v_fma_f32 v{vQ}, -v{vM}, v{vM}, v{vQ}")
            h(f"v_max_f32 v{vQ}, 0, v{vQ}")
            h(f"v_add_f32 v{vQ}, {hx(f2u(1e-5))}, v{vQ}")
        if st == 9:
            h(f"v_rsq_f32 v{vR}, v{vQ}")
            split_hi_lo(h, vM, XB, vT, vT + 1)
            h(f"v_cvt_pk_bf16_f32 v{XB + 1}, v{vT}, 0")
            h(f"v_mov_b32 v{XB + 2}, 0")
            h(f"v_mov_b32 v{XB + 3}, 0")
        if st == 10:
            h("s_mov_b32 exec_lo, 0x33333333")
            h("s_mov_b32 exec_hi, 0x33333333")
            h.lg(f"ds_write_b128 v{vXe}, {vr(XB, 4)}")
            h.lg(f"ds_write_b32 v{vRs}, v{vR}")
            h("s_mov_b64 exec, -1")
    h("s_barrier")
    stamp_flush(h, 0, sWS, sWave) if STAMPS else None
    h("s_endpgm")
    a.lines += h.lines
    a.label("L_k1_helper_skip")

    vXrd = [3, 4, 5, 6]
    vKoff, vVoff = 20, 21
    vWrd = [22, 23, 24]
    vCw, vCr, vEr, vRl, vRr = 25, 26, 27, 28, 29
    XF = [32, 36]
    WF = [40, 52]
    CS, ONES, XE = 64, 76, 80
    RV = 84
    accQ, accK, accV = 104, 120, 136
    a(f"v_lshlrev_b32 v30, 7, v{vLane}")
    a(f"s_cmp_lg_u32 s{sWave}, 2")
    a("s_cbranch_scc1 L_k1_nocode")
    if OPT["pf_code"]:
        a(f"s_lshr_b32 s{sT0}, s2, 3")
        a(f"s_lshl_b32 s{sT0}, s{sT0}, 11")
        a(f"v_add_u32 v30, s{sT0}, v30")
        a("s_mov_b64 exec, 0xffff")
        code_prefetch(a, name, 44, 30, 31, "k1")
        a("s_mov_b64 exec, -1")
    a.label("L_k1_nocode")
    a(f"s_lshr_b32 s{sWr}, s{sHw}, 1")
    a(f"s_and_b32 s{sWc}, s{sHw}, 1")
    a(f"v_and_b32 v{vT}, 31, v{vLane}")
    a(f"v_lshrrev_b32 v{vT + 1}, 5, v{vLane}")
    a(f"v_bfe_u32 v{vT + 2}, v{vLane}, 1, 3")
    a(f"v_xor_b32 v{vT + 2}, v{vT + 2}, v{vT + 1}")
    a(f"v_lshlrev_b32 v{vT + 2}, 4, v{vT + 2}")
    a(f"v_lshl_add_u32 v{vT + 2}, v{vT}, 7, v{vT + 2}")
    a(f"s_lshl_b32 s{sT0}, s{sWr}, 12")
    a(f"v_add_u32 v{vXrd[0]}, s{sT0}, v{vT + 2}")
    for ss in range(1, 4):
        a(f"v_xor_b32 v{vXrd[ss]}, {ss * 32}, v{vXrd[0]}")
    a(f"v_mul_u32_u24 v{vT + 2}, 3072, v{vT + 1}")
    a(f"v_bfe_u32 v{vT + 3}, v{vLane}, 2, 2")
    a(f"v_lshl_add_u32 v{vT + 2}, v{vT + 3}, 7, v{vT + 2}")
    a(f"v_lshrrev_b32 v{vT + 3}, 1, v{vT + 3}")
    a(f"v_xor_b32 v{vT + 3}, s{sWc}, v{vT + 3}")
    a(f"v_lshl_add_u32 v{vT + 2}, v{vT + 3}, 6, v{vT + 2}")
    a(f"v_bfe_u32 v{vT + 4}, v{vLane}, 4, 1")
    a(f"v_lshl_add_u32 v{vT + 2}, v{vT + 4}, 5, v{vT + 2}")
    a(f"v_and_b32 v{vT + 3}, 3, v{vLane}")
    a(f"v_lshl_add_u32 v{vWrd[0]}, v{vT + 3}, 3, v{vT + 2}")
    wl = LdsAddr(a, vWrd)
    wl.setup(a)
    a(f"v_xor_b32 v{vT + 2}, v{vT + 4}, v{vLane}")
    a(f"v_and_b32 v{vT + 2}, 1, v{vT + 2}")
    a(f"v_cmp_eq_u32 vcc, 0, v{vT + 2}")
    a(f"v_mov_b32 v{vT + 2}, 0x3f803f80")
    a("s_nop 0")
    for r in range(4):
        a(f"v_cndmask_b32 v{ONES + r}, 0, v{vT + 2}, vcc")
    a(f"s_lshl_b32 s{sT0}, s{sWc}, 1")
    a(f"s_add_u32 s{sT1}, s{sT0}, s{sWr}")
    a(f"s_mul_i32 s{sT1}, s{sT1}, 384")
    a(f"s_add_u32 s{sT1}, s{sT1}, {CSO}")
    a(f"v_and_b32 v{vT + 2}, 1, v{vLane}")
    a(f"v_lshlrev_b32 v{vT + 2}, 6, v{vT + 2}")
    a(f"v_and_b32 v{vT + 3}, 48, v{vLane}")
    a(f"v_add3_u32 v{vCw}, v{vT + 2}, v{vT + 3}, s{sT1}")
    a(f"s_mul_i32 s{sT0}, s{sT0}, 384")
    a(f"s_add_u32 s{sT0}, s{sT0}, {CSO}")
    a(f"v_mul_u32_u24 v{vT + 2}, 384, v{vT + 1}")
    a(f"v_lshl_add_u32 v{vT + 2}, v{vT}, 2, v{vT + 2}")
    a(f"v_add_u32 v{vCr}, s{sT0}, v{vT + 2}")
    a(f"s_lshl_b32 s{sT0}, s{sWr}, 10")
    a(f"s_add_u32 s{sT0}, s{sT0}, {XEO}")
    a(f"v_add_u32 v{vEr}, s{sT0}, v{vL16}")
    a(f"s_lshl_b32 s{sT0}, s{sWr}, 7")
    a(f"s_add_u32 s{sT0}, s{sT0}, {RSO}")
    a(f"v_lshl_add_u32 v{vRl}, v{vT}, 2, s{sT0}")
    a(f"v_lshl_add_u32 v{vRr}, v{vT + 1}, 4, s{sT0}")
    a(f"v_and_b32 v{vT + 2}, 0x33, v{vLane}")
    a(f"v_bfe_u32 v{vT + 3}, v{vLane}, 2, 1")
    a(f"v_lshl_or_b32 v{vT + 2}, v{vT + 3}, 3, v{vT + 2}")
    a(f"v_bfe_u32 v{vT + 3}, v{vLane}, 3, 1")
    a(f"v_lshl_or_b32 v{vT + 2}, v{vT + 3}, 2, v{vT + 2}")
    a(f"v_lshlrev_b32 v{vKoff}, 4, v{vT + 2}")
    a(f"v_lshlrev_b32 v{vT + 2}, 17, v{vT + 4}")
    a(f"v_lshl_add_u32 v{vT + 2}, v{vT + 1}, 8, v{vT + 2}")
    a(f"v_and_b32 v{vT + 3}, 15, v{vLane}")
    a(f"v_lshl_add_u32 v{vVoff}, v{vT + 3}, 4, v{vT + 2}")
    a(f"s_lshl_b32 s{sT0}, s{sCg}, 2")
    a(f"s_lshl_b32 s{sT1}, s{sWc}, 1")
    a(f"s_add_u32 s{sT0}, s{sT0}, s{sT1}")
    a(f"s_lshl_b32 s{sT1}, s{sRb}, 1")
    a(f"s_add_u32 s{sT1}, s{sT1}, s{sWr}")
    a(f"s_lshl_b32 s46, s{sT0}, 16")
    a(f"s_lshl_b32 s47, s{sT1}, 10")
    a(f"s_add_u32 s46, s46, s47")
    if QF:
        a(f"s_add_u32 s46, s46, {QF}")
    a(f"s_add_u32 s47, s46, 65536")
    a(f"s_lshl_b32 s36, s{sT0}, 17")
    a(f"s_lshl_b32 s37, s{sT1}, 11")
    a(f"s_add_u32 s36, s36, s37")
    a(f"s_add_u32 s36, s36, {KVF}")
    a(f"s_add_u32 s37, s36, 131072")
    for r in range(12):
        a(f"v_mov_b32 v{CS + r}, 0")
    a("s_waitcnt lgkmcnt(0)")
    srd(a, sWS, 8, WS_SIZE)
    if OPT.get("zero_flags"):
        a(f"s_cmp_lg_u32 s{sWave}, 3")
        a("s_cbranch_scc1 L_k1_noflags")
        a("s_cmp_ge_u32 s2, 22")
        a("s_cbranch_scc1 L_k1_noflags")
        a(f"s_lshl_b32 s{sT0}, s2, 10")
        a(f"s_add_u32 s{sT0}, s{sT0}, {OPT['zero_flags']}")
        a(f"buffer_store_dwordx4 {vr(CS, 4)}, v{vL16}, {sr(sWS, 4)}, s{sT0} offen")
        a("s_waitcnt vmcnt(0)")
        a.label("L_k1_noflags")

    def reads(s):
        st, ss = divmod(s, 2)
        ops = [f"ds_read_b128 {vr(XF[s & 1], 4)}, v{vXrd[s & 3]} offset:{(s >> 2) * 8192}"]
        for seg in range(3):
            for half in range(2):
                reg, off = wl.at(WBASE + (st % NSLOT) * SLOT + ss * 6144 + seg * 1024 + half * 512)
                ops.append(f"ds_read_b64_tr_b16 {vr(WF[s & 1] + 4 * seg + 2 * half, 2)}, {reg} offset:{off}")
        return ops

    rt = {}

    def emit_reads(b, s, lo, hi):
        ops = reads(s)
        for k in range(lo, min(hi, 7)):
            rt[(s, k)] = b.lg(ops[k])

    stamp(a)
    a("s_barrier")
    stamp(a)
    emit_reads(a, 0, 0, 7)
    a(f"s_cmp_eq_u32 s{sWr}, 1")
    a("s_cbranch_scc1 L_k1_odd")
    rt0 = dict(rt)
    odd = fork(a)
    odd.label("L_k1_odd")
    acc = [accQ, accK, accV]

    def mm(b, j, w, x, first=False):
        c = "0" if first else vr(acc[j], 16)
        ops = (vr(w, 4), vr(x, 4)) if j < 2 else (vr(x, 4), vr(w, 4))
        b(f"v_mfma_f32_32x32x16_bf16 {vr(acc[j], 16)}, {ops[0]}, {ops[1]}, {c}")

    def csum(b, s, j):
        b(f"v_mfma_f32_16x16x32_bf16 {vr(CS + 4 * j, 4)}, {vr(WF[s & 1] + 4 * j, 4)}, {vr(ONES, 4)}, {vr(CS + 4 * j, 4)}")

    for par, b in ((0, a), (1, odd)):
        rt.clear()
        rt.update(rt0)
        for s in range(31):
            if s == 16:
                stamp(b)
            if s % 2 == 1:
                b.wait(lg=rt[(s, 6)])
                b("s_barrier")
            for j in range(3):
                b.wait(lg=rt[(s, 2 + 2 * j)])
                if s % 2 == par:
                    csum(b, s, j)
                mm(b, j, WF[s & 1] + 4 * j, XF[s & 1], s == 0)
                emit_reads(b, s + 1, [0, 3, 5][j], [3, 5, 7][j])
            if s == 27:
                b.lg(f"ds_read_b128 {vr(XE, 4)}, v{vEr}")
                b.lg(f"ds_read_b32 v100, v{vRl}")
            if s == 28:
                for g in range(4):
                    b.lg(f"ds_read_b128 {vr(RV + 4 * g, 4)}, v{vRr} offset:{g * 32}")
        b.wait_all(vm=False)
        if par == 1:
            for j in range(3):
                csum(b, 31, j)
    odd("s_branch L_k1_join")
    a.label("L_k1_join")
    mm(a, 0, WF[1], XF[1])
    for j in range(3):
        a(f"v_mov_b32 v{WF[0] + 4 * j + 2}, 0")
        a(f"v_mov_b32 v{WF[0] + 4 * j + 3}, 0")
    a(f"v_mul_f32 v101, {hx(f2u(0.25 * LOG2E))}, v100")
    a("s_mov_b32 exec_lo, 0x00030003")
    a("s_mov_b32 exec_hi, 0x00030003")
    for j in range(3):
        a.lg(f"ds_write_b128 v{vCw}, {vr(CS + 4 * j, 4)} offset:{j * 128}")
    a("s_mov_b64 exec, -1")
    mm(a, 1, WF[1] + 4, XF[1])
    a.wait_all(vm=False)
    a("s_barrier")
    for j in range(3):
        rt[("c", j)] = a.lg(f"ds_read_b32 v{vT + 4 + j}, v{vCr} offset:{j * 128}")
    mm(a, 2, WF[1] + 8, XF[1])
    stamp(a)
    for j in range(3):
        w = WF[0] + 4 * j
        a.wait(lg=rt[("c", j)])
        a(f"v_cvt_pk_bf16_f32 v{w + 1}, v{vT + 4 + j}, 0")
        a(f"v_lshlrev_b32 v{vT}, 16, v{w + 1}")
        a(f"v_sub_f32 v{vT}, v{vT + 4 + j}, v{vT}")
        a(f"v_cvt_pk_bf16_f32 v{w}, v{vT + 4 + j}, v{vT}")
    for j in range(3):
        mm(a, j, WF[0] + 4 * j, XE)
    a("s_nop 9")
    P = 32
    for r in range(0, 16, 2):
        a(f"v_pk_mul_f32 {vr(accQ + r, 2)}, {vr(accQ + r, 2)}, v[100:101] op_sel:[0,1] op_sel_hi:[1,1]")
    for i in range(8):
        a(f"v_cvt_pk_bf16_f32 v{P + i}, v{accQ + 2 * i}, v{accQ + 2 * i + 1}")
    a.vm(f"buffer_store_dwordx4 {vr(P, 4)}, v{vL16}, {sr(sWS, 4)}, s46 offen")
    a.vm(f"buffer_store_dwordx4 {vr(P + 4, 4)}, v{vL16}, {sr(sWS, 4)}, s47 offen")
    for r in range(0, 16, 2):
        a(f"v_pk_mul_f32 {vr(accK + r, 2)}, {vr(accK + r, 2)}, v[100:101] op_sel_hi:[1,0]")
    for i in range(8):
        a(f"v_cvt_pk_bf16_f32 v{P + 8 + i}, v{accK + 2 * i}, v{accK + 2 * i + 1}")
    a.vm(f"buffer_store_dwordx4 {vr(P + 8, 4)}, v{vKoff}, {sr(sWS, 4)}, s36 offen")
    a.vm(f"buffer_store_dwordx4 {vr(P + 12, 4)}, v{vKoff}, {sr(sWS, 4)}, s37 offen")
    for r in range(0, 16, 2):
        a(f"v_pk_mul_f32 {vr(accV + r, 2)}, {vr(accV + r, 2)}, {vr(RV + r, 2)}")
    for i in range(8):
        a(f"v_cvt_pk_bf16_f32 v{P + 16 + i}, v{accV + 2 * i}, v{accV + 2 * i + 1}")
    a.vm(f"buffer_store_dwordx4 {vr(P + 16, 4)}, v{vVoff}, {sr(sWS, 4)}, s36 offen offset:1024")
    a.vm(f"buffer_store_dwordx4 {vr(P + 20, 4)}, v{vVoff}, {sr(sWS, 4)}, s36 offen offset:1536")
    stamp(a)
    stamp_flush(a, 0, sWS, sWave)
    kernel_end(a, name)
    return name, a.text() + odd.text(), descriptor(name, 152, 0), (256, 512, RSO + 256)


def gen_k2():
    name = "k2_attn_kernel"
    a = Asm()
    kernel_begin(a, name, 256)
    sWS = 12
    sWave, sHead, sQb, sKh, sQs = 24, 25, 26, 27, 28
    sT0, sT1 = 30, 31
    sVm = 34
    vLane, vL16, vKrd, vVrd, vIdx, vXw, vXr = 1, 2, 3, 4, 5, 6, 7
    Qf = [8, 12]
    Kf = 16
    Vf = 32
    S = [64, 80]
    O = [96, 112]
    NEG = 128
    T = 144
    XCH = 131072
    NPRE = OPT["k2_pre"]
    a("s_load_dwordx2 s[8:9], s[0:1], 72")
    a(f"v_lshrrev_b32 v8, 6, v0")
    a(f"v_and_b32 v{vLane}, 63, v0")
    a(f"v_readfirstlane_b32 s{sWave}, v8")
    a(f"v_lshlrev_b32 v{vL16}, 4, v{vLane}")
    a(f"s_and_b32 s{sT0}, s2, 7")
    a(f"s_lshl_b32 s{sT0}, s{sT0}, 2")
    a(f"s_lshr_b32 s{sT1}, s2, 6")
    a(f"s_add_u32 s{sHead}, s{sT0}, s{sT1}")
    a(f"s_lshl_b32 s33, s{sHead}, 17")
    a(f"s_add_u32 s33, s33, {KVF}")
    a(f"s_cmp_eq_u32 s{sWave}, 8")
    a("s_cbranch_scc0 L_k2_compute")
    a("s_load_dwordx2 s[4:5], s[0:1], 0")
    a("s_load_dwordx2 s[6:7], s[0:1], 16")
    a("s_load_dwordx4 s[48:51], s[0:1], 32")
    a("s_load_dwordx2 s[10:11], s[0:1], 48")
    a("s_barrier")
    a("s_branch L_k2_loader")
    a.label("L_k2_compute")

    h = fork(a)
    h.label("L_k2_loader")
    h("s_setprio 3")
    h("s_waitcnt lgkmcnt(0)")
    srd(h, sWS, 8, WS_SIZE)
    for c in range(NPRE, 8):
        for half in range(2):
            for q in range(2):
                h(f"s_mov_b32 m0, {half * 65536 + c * 8192 + q * 4096}")
                h(f"s_add_u32 s37, s33, {c * 16384 + half * 8192 + q * 4096}")
                for i in range(4):
                    h.vm(f"buffer_load_dwordx4 v{vL16}, {sr(sWS, 4)}, s37 offen offset:{i * 1024} lds")
        h("s_waitcnt vmcnt(40)")
        if c == NPRE + 1 and OPT["k2_b3"]:
            h("s_barrier")
    srd(h, 16, 6, 512 * 1024)
    srd(h, 20, 48, 512 * 2752)
    srd(h, 52, 50, 512 * 2752)
    h(f"s_and_b32 s{sT0}, s2, 7")
    h(f"s_lshl_b32 s{sT1}, s{sT0}, 18")
    h(f"s_add_u32 s4, s4, s{sT1}")
    h("s_addc_u32 s5, s5, 0")
    srd(h, 44, 4, 256 * 1024)
    h(f"s_mul_i32 s{sT0}, s{sT0}, {172 * 1024}")
    h(f"s_add_u32 s10, s10, s{sT0}")
    h("s_addc_u32 s11, s11, 0")
    srd(h, 40, 10, 172 * 1024)
    h(f"s_lshr_b32 s{sT0}, s2, 3")
    h("v_lshlrev_b32 v3, 7, v1")
    h.wait_all()
    h("s_barrier")
    if OPT["pf_w"]:
        for sq, per, n in ((16, 16384, 2), (44, 8192, 1), (20, 49152, 6), (52, 49152, 6), (40, 8192, 1)):
            h(f"s_mul_i32 s{sT1}, s{sT0}, {per}")
            h(f"v_add_u32 v4, s{sT1}, v3")
            for i in range(n):
                h.vm(f"buffer_load_dword v5, v4, {sr(sq, 4)}, 0 offen")
                if i + 1 < n:
                    h("v_add_u32 v4, 0x2000, v4")
    if OPT["pf_code"]:
        h(f"s_lshl_b32 s{sT1}, s{sT0}, 11")
        h(f"v_add_u32 v4, s{sT1}, v3")
        h("s_mov_b64 exec, 0xffff")
        code_prefetch(h, "k3_wo_kernel", 38, 4, 5, "k2")
    h("s_endpgm")

    a(f"s_bfe_u32 s{sQb}, s2, 0x30003")
    a(f"s_lshr_b32 s{sKh}, s{sWave}, 2")
    a(f"s_and_b32 s{sQs}, s{sWave}, 3")
    a(f"s_lshl_b32 s32, s{sKh}, 16")
    a(f"s_lshl_b32 s{sT0}, s{sQs}, 11")
    a(f"s_add_u32 s32, s32, s{sT0}")
    a(f"s_lshl_b32 s38, s{sWave}, 11")
    a("s_add_u32 s33, s33, s38")
    a(f"s_lshl_b32 s36, s{sHead}, 16")
    a(f"s_lshl_b32 s{sT1}, s{sQb}, 13")
    a(f"s_add_u32 s36, s36, s{sT1}")
    a(f"s_add_u32 s36, s36, s{sT0}")
    if QF:
        a(f"s_add_u32 s36, s36, {QF}")
    a(f"s_lshl_b32 s{sT0}, s{sKh}, 10")
    a(f"s_add_u32 s36, s36, s{sT0}")
    a(f"s_xor_b32 s39, s36, 1024")
    a(f"s_mov_b32 m0, s32")
    a(f"v_and_b32 v{T}, 27, v{vLane}")
    a(f"v_cmp_eq_u32 vcc, 16, v{T}")
    a(f"v_mov_b32 v{T}, 0x3f803f80")
    a(f"v_mov_b32 v{vIdx}, 0xdddd")
    for r in range(32):
        a(f"v_cndmask_b32 v{Vf + r}, 0, v{T}, vcc")
    a("s_waitcnt lgkmcnt(0)")
    srd(a, sWS, 8, WS_SIZE)
    a.vm(f"buffer_load_dwordx4 v{vL16}, {sr(sWS, 4)}, s33 offen lds")
    a.vm(f"buffer_load_dwordx4 {vr(Qf[0], 4)}, v{vL16}, {sr(sWS, 4)}, s36 offen")
    a.vm(f"buffer_load_dwordx4 {vr(Qf[1], 4)}, v{vL16}, {sr(sWS, 4)}, s39 offen")
    a.vm(f"buffer_load_dwordx4 v{vL16}, {sr(sWS, 4)}, s33 offen offset:1024 lds")
    for c in range(1, NPRE):
        a(f"s_add_u32 m0, s32, {c * 8192}")
        a(f"s_add_u32 s37, s33, {c * 16384}")
        a.vm(f"buffer_load_dwordx4 v{vL16}, {sr(sWS, 4)}, s37 offen lds")
        a.vm(f"buffer_load_dwordx4 v{vL16}, {sr(sWS, 4)}, s37 offen offset:1024 lds")
    a(f"s_mov_b32 s{sVm}, 0x0000ffff")
    a(f"s_mov_b32 s{sVm + 1}, 0x0000ffff")
    a(f"s_lshl_b32 s{sT0}, s{sKh}, 16")
    a(f"v_add_u32 v{vKrd}, s{sT0}, v{vL16}")
    a(f"v_lshrrev_b32 v{T}, 5, v{vLane}")
    a(f"v_and_b32 v{T + 1}, 15, v{vLane}")
    a(f"v_lshlrev_b32 v{T + 1}, 4, v{T + 1}")
    a(f"v_lshl_add_u32 v{T}, v{T}, 8, v{T + 1}")
    a(f"v_add_u32 v{vVrd}, s{sT0}, v{T}")
    a(f"s_mul_i32 s{sT0}, s{sWave}, 3072")
    a(f"s_add_u32 s{sT0}, s{sT0}, {XCH}")
    a(f"v_add_u32 v{vXw}, s{sT0}, v{vL16}")
    a(f"s_xor_b32 s{sT1}, s{sWave}, 4")
    a(f"s_mul_i32 s{sT0}, s{sT1}, 3072")
    a(f"s_add_u32 s{sT0}, s{sT0}, {XCH}")
    a(f"v_add_u32 v{vXr}, s{sT0}, v{vL16}")
    for c in range(2):
        for r in range(16):
            a(f"v_mov_b32 v{O[c] + r}, 0")
    a(f"s_lshl_b32 s57, s{sQb}, 3")
    a(f"s_lshl_b32 s{sT1}, s{sQs}, 1")
    a(f"s_add_u32 s57, s57, s{sT1}")
    a(f"s_add_u32 s57, s57, s{sKh}")
    a(f"s_lshl_b32 s57, s57, 15")
    a(f"s_lshl_b32 s{sT1}, s{sHead}, 10")
    a(f"s_add_u32 s57, s57, s{sT1}")
    a(f"s_add_u32 s57, s57, {OF}")

    def emit_pair(p):
        for t in (2 * p, 2 * p + 1):
            a.lg(f"ds_read_b128 {vr(Kf + 4 * (t & 3), 4)}, v{vKrd} offset:{t * 2048}")
        a(f"s_mov_b64 exec, {sr(sVm, 2)}")
        for t in (2 * p, 2 * p + 1):
            a.lg(f"ds_read_b128 {vr(Vf + 8 * (t & 3), 4)}, v{vVrd} offset:{t * 2048 + 1024}")
            tok = a.lg(f"ds_read_b128 {vr(Vf + 8 * (t & 3) + 4, 4)}, v{vVrd} offset:{t * 2048 + 1536}")
        a("s_mov_b64 exec, -1")
        return tok

    def qk(u):
        t, c = divmod(u, 2)
        return f"v_mfma_f32_32x32x16_bf16 {vr(S[u & 1], 16)}, {vr(Kf + 4 * (t & 3), 4)}, {vr(Qf[c], 4)}, 0"

    def pv(u, i):
        t, c = divmod(u, 2)
        return (f"v_smfmac_f32_32x32x32_bf16 {vr(O[c], 16)}, {vr(Vf + 8 * (t & 3) + 4 * i, 4)}, "
                f"{vr(S[u & 1] + 8 * i, 8)}, v{vIdx}")

    NU = 64
    UB = 4 * (2 * NPRE - 1)
    PRIO = {}
    if OPT["k2_prio"]:
        PRIO = {0: 1, UB - 2: 0, UB + 1: 2, NU - 6: 1, NU - 2: 0}
        if OPT['k2_b3']:
            PRIO.update({3: 0, 5: 1})
    stamp(a)
    if OPT["k2_b3"]:
        a.wait(vm=3)
    else:
        a.wait_all(lg=False)
    a("s_barrier")
    stamp(a)
    ptok = {0: emit_pair(0)}
    a.wait(lg=ptok[0] - 5)
    a(qk(0))
    a.wait(lg=ptok[0])
    a("s_nop 9")
    for u in range(NU):
        X = S[u & 1]
        p, pu = divmod(u, 4)
        if u in (8, 16, 32, 48):
            stamp(a)
        if u in PRIO:
            a(f"s_setprio {PRIO[u]}")
        elif u == 0:
            a("s_nop 0")
        ex = [f"v_exp_f32 v{X + i}, v{X + i}" for i in range(16)]
        a(ex[0]); a(ex[1])
        if u > 0:
            a(pv(u - 1, 1))
        a(ex[2]); a(ex[3]); a(ex[4])
        if u + 1 < NU:
            if pu == 3:
                a.wait(lg=ptok[p + 1])
            a(qk(u + 1))
        if pu == 0 and p + 1 < 16:
            if u == 4 and OPT["k2_b3"]:
                a.wait_all(lg=False)
                a("s_barrier")
            if u == UB:
                a("s_barrier")
            ptok[p + 1] = emit_pair(p + 1)
        for i in range(5, 10):
            a(ex[i])
        a(pv(u, 0))
        for i in range(10, 16):
            a(ex[i])
    a("s_nop 1")
    a(pv(NU - 1, 1))
    a("s_nop 11")
    stamp(a)
    a.lg(f"ds_write_b128 v{vXw}, {vr(O[1], 4)}")
    a.lg(f"ds_write_b128 v{vXw}, {vr(O[1] + 4, 4)} offset:1024")
    a.lg(f"ds_write_b32 v{vXw}, v{O[1] + 8} offset:2048")
    a(f"s_mov_b32 s{sT0}, {hx(f2u(2.0 ** 80))}")
    a(f"s_mov_b32 s{sT1}, {hx(f2u(2.0 ** -80))}")
    a.wait_all(vm=False)
    a("s_barrier")
    t2 = a.lg(f"ds_read_b32 v{T + 8}, v{vXr} offset:2048")
    t0 = a.lg(f"ds_read_b128 {vr(T, 4)}, v{vXr}")
    t1 = a.lg(f"ds_read_b128 {vr(T + 4, 4)}, v{vXr} offset:1024")
    a.wait(lg=t2)
    a(f"v_add_f32 v{O[0] + 8}, v{O[0] + 8}, v{T + 8}")
    a.wait(lg=t1)
    for r in range(0, 8, 2):
        a(f"v_pk_add_f32 {vr(O[0] + r, 2)}, {vr(O[0] + r, 2)}, {vr(T + r, 2)}")
    a("s_mov_b32 s56, 0")
    a.label("L_k2_finish")
    a(f"v_rcp_f32 v{T + 8}, v{O[0] + 8}")
    a(f"v_cmp_gt_f32 s[40:41], s{sT0}, v{O[0] + 8}")
    a(f"v_cmp_lt_f32 s[42:43], s{sT1}, v{O[0] + 8}")
    for r in range(0, 8, 2):
        a(f"v_pk_mul_f32 {vr(O[0] + r, 2)}, {vr(O[0] + r, 2)}, {vr(T + 8, 2)} op_sel_hi:[1,0]")
    for i in range(4):
        a(f"v_cvt_pk_bf16_f32 v{T + 4 + i}, v{O[0] + 2 * i}, v{O[0] + 2 * i + 1}")
    a(f"v_dot2_f32_bf16 v{T}, v{T + 4}, v{T + 4}, 0")
    for i in range(1, 4):
        a(f"v_dot2_f32_bf16 v{T}, v{T + 4 + i}, v{T + 4 + i}, v{T}")
    a("s_and_b64 s[40:41], s[40:41], s[42:43]")
    a("s_cmp_lg_u32 s56, 0")
    a("s_cbranch_scc1 L_k2_store")
    a(f"v_cmp_gt_f32 vcc, s{sT0}, v{T}")
    a("s_nop 0")
    a("s_and_b64 s[40:41], s[40:41], vcc")
    a("s_cmp_eq_u64 s[40:41], -1")
    a("s_cbranch_scc0 L_k2_fallback")
    a.label("L_k2_store")
    a.vm(f"buffer_store_dwordx4 {vr(T + 4, 4)}, v{vL16}, {sr(sWS, 4)}, s57 offen")
    stamp(a)
    stamp_flush(a, 1, sWS, sWave)
    a("s_endpgm")
    a.label("L_k2_fallback")
    vK2, vV2, vM = T + 10, T + 11, T + 12
    a(f"s_lshl_b32 s37, s{sKh}, 16")
    a(f"v_subrev_u32 v{vK2}, s37, v{vKrd}")
    a(f"v_mov_b32 v{vM}, 0xff800000")
    a("s_mov_b32 s56, 0")
    a.label("L_k2_fb_max")
    a(f"ds_read_b128 {vr(Kf, 4)}, v{vK2}")
    a("s_waitcnt lgkmcnt(0)")
    a(f"v_mfma_f32_32x32x16_bf16 {vr(S[0], 16)}, {vr(Kf, 4)}, {vr(Qf[0], 4)}, 0")
    a("s_nop 15")
    for i in range(8):
        a(f"v_max3_f32 v{vM}, v{vM}, v{S[0] + 2 * i}, v{S[0] + 2 * i + 1}")
    a(f"v_add_u32 v{vK2}, 2048, v{vK2}")
    a("s_add_u32 s56, s56, 1")
    a("s_cmp_lt_u32 s56, 64")
    a("s_cbranch_scc1 L_k2_fb_max")
    a(f"v_mov_b32 v{T}, v{vM}")
    a("s_nop 1")
    a(f"v_permlane32_swap_b32 v{vM}, v{T}")
    a("s_nop 1")
    a(f"v_max_f32 v{vM}, v{vM}, v{T}")
    for r in range(16):
        a(f"v_sub_f32 v{NEG + r}, 0, v{vM}")
        a(f"v_mov_b32 v{O[0] + r}, 0")
    a(f"v_subrev_u32 v{vK2}, s37, v{vKrd}")
    a(f"v_subrev_u32 v{vV2}, s37, v{vVrd}")
    a("s_mov_b32 s56, 0")
    a.label("L_k2_fb_pv")
    a(f"ds_read_b128 {vr(Kf, 4)}, v{vK2}")
    a(f"s_mov_b64 exec, {sr(sVm, 2)}")
    a(f"ds_read_b128 {vr(Vf, 4)}, v{vV2} offset:1024")
    a(f"ds_read_b128 {vr(Vf + 4, 4)}, v{vV2} offset:1536")
    a("s_mov_b64 exec, -1")
    a("s_waitcnt lgkmcnt(0)")
    a(f"v_mfma_f32_32x32x16_bf16 {vr(S[0], 16)}, {vr(Kf, 4)}, {vr(Qf[0], 4)}, {vr(NEG, 16)}")
    a("s_nop 15")
    for i in range(16):
        a(f"v_exp_f32 v{S[0] + i}, v{S[0] + i}")
    a("s_nop 1")
    a(f"v_smfmac_f32_32x32x32_bf16 {vr(O[0], 16)}, {vr(Vf, 4)}, {vr(S[0], 8)}, v{vIdx}")
    a(f"v_smfmac_f32_32x32x32_bf16 {vr(O[0], 16)}, {vr(Vf + 4, 4)}, {vr(S[0] + 8, 8)}, v{vIdx}")
    a("s_nop 15")
    a(f"v_add_u32 v{vK2}, 2048, v{vK2}")
    a(f"v_add_u32 v{vV2}, 2048, v{vV2}")
    a("s_add_u32 s56, s56, 1")
    a("s_cmp_lt_u32 s56, 64")
    a("s_cbranch_scc1 L_k2_fb_pv")
    a("s_branch L_k2_finish")
    kernel_end(a, name)
    return name, a.text() + h.text(), descriptor(name, 160, 0), (256, 576, XCH + 8 * 3072)


def gen_res(kind):
    k3 = kind == "k3"
    name = "k3_wo_kernel" if k3 else "k5_down_kernel"
    kidx = 2 if k3 else 4
    KS = 32 if k3 else 86
    ACT = OF if k3 else GF
    NST = (KS + 3) // 4
    NSLOT, SLOT = 8, 16384
    RESO = NSLOT * SLOT
    TRO = RESO + 8192
    RST = 2
    a = Asm()
    kernel_begin(a, name, 256)
    sW, sWS, sIO = 12, 16, 20
    sWave, sWr, sWc, sRb, sCb, sHw = 24, 25, 26, 27, 28, 29
    sT0, sT1 = 30, 31
    vLane, vL16 = 1, 2
    T = 12
    if k3:
        a("s_load_dwordx2 s[4:5], s[0:1], 16")
        a("s_load_dwordx2 s[6:7], s[0:1], 0")
    else:
        a("s_load_dwordx4 s[4:7], s[0:1], 48")
    a("s_load_dwordx2 s[8:9], s[0:1], 72")
    a(f"v_and_b32 v{vLane}, 63, v0")
    a(f"v_lshrrev_b32 v{T}, 6, v0")
    a(f"v_lshlrev_b32 v{vL16}, 4, v{vLane}")
    a(f"v_readfirstlane_b32 s{sWave}, v{T}")
    a(f"s_and_b32 s{sT0}, s2, 7")
    a(f"s_lshl_b32 s{sRb}, s{sT0}, 2")
    a(f"s_lshr_b32 s34, s2, 6")
    a(f"s_add_u32 s{sRb}, s{sRb}, s34")
    a(f"s_bfe_u32 s{sCb}, s2, 0x30003")
    a(f"s_and_b32 s{sHw}, s{sWave}, 3")
    a(f"s_and_b32 s{sWr}, s{sWave}, 1")
    a(f"s_bfe_u32 s{sWc}, s{sWave}, 0x10001")
    a(f"s_cmp_ge_u32 s{sWave}, 4")
    a(f"s_cbranch_scc0 L_{kind}_helper_skip")

    h = fork(a)
    h.label(f"L_{kind}_helper")
    vWoff, vXg = 3, 5
    h(f"v_lshrrev_b32 v{T}, 3, v{vLane}")
    h(f"v_and_b32 v{T + 1}, 7, v{vLane}")
    h(f"v_lshrrev_b32 v{T + 2}, 2, v{vLane}")
    h(f"v_and_b32 v{T + 2}, 4, v{T + 2}")
    h(f"v_xor_b32 v{T + 2}, v{T + 2}, v{T + 1}")
    h(f"v_lshlrev_b32 v{T + 2}, 4, v{T + 2}")
    h(f"v_lshl_add_u32 v{T + 2}, v{T}, 10, v{T + 2}")
    h(f"s_lshl_b32 s{sT0}, s{sHw}, 14")
    h(f"s_lshl_b32 s{sT1}, s{sCb}, 7")
    h(f"s_add_u32 s{sT0}, s{sT0}, s{sT1}")
    h(f"v_add_u32 v{vWoff}, s{sT0}, v{T + 2}")
    h(f"v_add_u32 v{vWoff + 1}, {8192 - 1024}, v{vWoff}")
    h(f"s_lshl_b32 s32, s{sHw}, 11")
    h(f"s_lshl_b32 s33, s{sRb}, 1")
    h(f"s_add_u32 s33, s33, s{sWr}")
    h(f"s_mul_i32 s34, s33, {KS * 1024}")
    h(f"s_lshl_b32 s{sT1}, s{sWc}, 11")
    h(f"s_add_u32 s34, s34, s{sT1}")
    h(f"s_add_u32 s34, s34, {ACT}")
    h(f"s_lshl_b32 s35, s{sWr}, 12")
    h(f"s_add_u32 s35, s35, s{sT1}")
    if k3:
        h(f"v_lshrrev_b32 v{T + 2}, 1, v{T}")
        h(f"v_xor_b32 v{T + 2}, v{T + 2}, v{T + 1}")
        h(f"v_lshlrev_b32 v{T + 2}, 4, v{T + 2}")
        h(f"v_lshl_add_u32 v{vXg}, v{T}, 10, v{T + 2}")
        h(f"v_xor_b32 v{vXg + 1}, 64, v{vXg}")
        h(f"v_add_u32 v{vXg + 1}, {8192 - 1024}, v{vXg + 1}")
        h(f"s_lshl_b32 s36, s{sRb}, 16")
        h(f"s_add_u32 s36, s36, s{sT0}")
    else:
        h(f"s_lshl_b32 s36, s33, 15")
        h(f"s_lshl_b32 s{sT0}, s{sCb}, 12")
        h(f"s_add_u32 s36, s36, s{sT0}")
        h(f"s_add_u32 s36, s36, s{sT1}")
        h(f"s_add_u32 s36, s36, {HF}")
    h("s_waitcnt lgkmcnt(0)")
    srd(h, sWS, 8, WS_SIZE)
    srd(h, sW, 4, KS * 16 * 1024)
    if k3:
        srd(h, sIO, 6, 2048 * 1024)
    dr = Drip(h)

    def issue(st):
        sl = (st % NSLOT) * SLOT
        dr.add(st, [f"s_add_u32 m0, s35, {sl + 8192}", f"s_add_u32 s43, s34, {st * 4096}"],
               f"buffer_load_dwordx4 v{vL16}, {sr(sWS, 4)}, s43 offen lds")
        dr.add(st, [], f"buffer_load_dwordx4 v{vL16}, {sr(sWS, 4)}, s43 offen offset:1024 lds")
        dr.add(st, [f"s_add_u32 m0, s32, {sl}", f"s_mov_b32 s42, {st * 65536}"],
               f"buffer_load_dwordx4 v{vWoff}, {sr(sW, 4)}, s42 offen lds")
        dr.add(st, [], f"buffer_load_dwordx4 v{vWoff + 1}, {sr(sW, 4)}, s42 offen offset:1024 lds")
        if st == RST:
            if k3:
                dr.add(st, [f"s_add_u32 m0, s32, {RESO}", "s_nop 0"], f"buffer_load_dwordx4 v{vXg}, {sr(sIO, 4)}, s36 offen lds")
                dr.add(st, [], f"buffer_load_dwordx4 v{vXg + 1}, {sr(sIO, 4)}, s36 offen offset:1024 lds")
            else:
                dr.add(st, [f"s_add_u32 m0, s35, {RESO}", "s_nop 0"], f"buffer_load_dwordx4 v{vL16}, {sr(sWS, 4)}, s36 offen lds")
                dr.add(st, [], f"buffer_load_dwordx4 v{vL16}, {sr(sWS, 4)}, s36 offen offset:1024 lds")

    for st in range(min(NSLOT, NST)):
        issue(st)
    AHEAD = OPT["k3_d"] if k3 else OPT["k5_d"]
    stamp(h)
    for st in range(NST):
        while dr.q and dr.q[0][0] <= st + AHEAD:
            dr.emit()
        dr.wait(st)
        h("s_barrier")
        if st in (0, NST // 2, NST - 1):
            stamp(h)
        if st >= 1 and st + NSLOT - 1 < NST:
            issue(st + NSLOT - 1)
    stamp_flush(h, kidx, sWS, sWave) if STAMPS else None
    h("s_endpgm")
    a.lines += h.lines
    a.label(f"L_{kind}_helper_skip")

    vWrd, vAr, vRr, vTw, vTr, vOut = [3, 4], [5, 6], [7, 8], 9, 10, 11
    ID = 24
    FR = [32, 80]
    acc = 128
    a(f"v_and_b32 v{T}, 31, v{vLane}")
    a(f"v_lshrrev_b32 v{T + 1}, 5, v{vLane}")
    a(f"v_bfe_u32 v{T + 2}, v{vLane}, 2, 2")
    a(f"v_lshl_add_u32 v{T + 3}, v{T + 1}, 2, v{T + 2}")
    a(f"v_lshlrev_b32 v{T + 3}, 7, v{T + 3}")
    a(f"v_bfe_u32 v{T + 4}, v{vLane}, 4, 1")
    a(f"v_lshl_add_u32 v{T + 3}, v{T + 4}, 5, v{T + 3}")
    a(f"v_and_b32 v{T + 4}, 3, v{vLane}")
    a(f"v_lshl_add_u32 v{T + 3}, v{T + 4}, 3, v{T + 3}")
    a(f"v_lshrrev_b32 v{T + 2}, 1, v{T + 2}")
    a(f"v_xor_b32 v{T + 2}, s{sWc}, v{T + 2}")
    a(f"v_lshl_add_u32 v{vWrd[0]}, v{T + 2}, 6, v{T + 3}")
    wl = LdsAddr(a, vWrd)
    wl.setup(a)
    a(f"s_lshl_b32 s{sT0}, s{sWr}, 12")
    a(f"s_add_u32 s{sT1}, s{sT0}, 8192")
    a(f"v_add_u32 v{vAr[0]}, s{sT1}, v{vL16}")
    al = LdsAddr(a, vAr)
    al.setup(a)
    if k3:
        a(f"v_bfe_u32 v{T + 2}, v{vLane}, 1, 3")
        a(f"v_xor_b32 v{T + 2}, v{T + 2}, v{T + 1}")
        a(f"s_lshl_b32 s{sT1}, s{sWc}, 2")
        a(f"v_xor_b32 v{T + 2}, s{sT1}, v{T + 2}")
        a(f"v_lshlrev_b32 v{T + 2}, 4, v{T + 2}")
        a(f"v_lshl_add_u32 v{T + 2}, v{T}, 7, v{T + 2}")
        a(f"s_add_u32 s{sT0}, s{sT0}, {RESO}")
        a(f"v_add_u32 v{vRr[0]}, s{sT0}, v{T + 2}")
        a(f"v_xor_b32 v{vRr[1]}, 32, v{vRr[0]}")
    else:
        a(f"s_lshl_b32 s{sT1}, s{sWc}, 11")
        a(f"s_add_u32 s{sT0}, s{sT0}, s{sT1}")
        a(f"s_add_u32 s{sT0}, s{sT0}, {RESO}")
        a(f"v_add_u32 v{vRr[0]}, s{sT0}, v{vL16}")
        a(f"v_add_u32 v{vRr[1]}, 1024, v{vRr[0]}")
    a(f"v_mov_b32 v{T + 5}, 0x3f80")
    for e in range(2):
        if k3:
            a(f"v_lshlrev_b32 v{T + 2}, 3, v{T + 1}")
            a(f"v_sub_u32 v{T + 2}, v{T}, v{T + 2}")
            a(f"v_subrev_u32 v{T + 2}, {16 * e}, v{T + 2}")
        else:
            a(f"v_bfe_u32 v{T + 2}, v{vLane}, 3, 1")
            a(f"v_and_b32 v{T + 3}, 3, v{vLane}")
            a(f"v_lshl_add_u32 v{T + 2}, v{T + 2}, 2, v{T + 3}")
            a(f"v_bfe_u32 v{T + 3}, v{vLane}, 2, 1")
            a(f"v_xor_b32 v{T + 3}, v{T + 3}, v{T + 1}")
            a(f"v_bfe_u32 v{T + 4}, v{vLane}, 4, 1")
            a(f"v_xor_b32 v{T + 4}, {e}, v{T + 4}")
            a(f"v_or_b32 v{T + 3}, v{T + 3}, v{T + 4}")
            a(f"v_lshl_add_u32 v{T + 2}, v{T + 3}, 4, v{T + 2}")
        a(f"v_and_b32 v{T + 3}, 1, v{T + 2}")
        a(f"v_lshlrev_b32 v{T + 3}, 4, v{T + 3}")
        a(f"v_lshlrev_b32 v{T + 3}, v{T + 3}, v{T + 5}")
        a(f"v_lshrrev_b32 v{T + 2}, 1, v{T + 2}")
        for r in range(4):
            a(f"v_cmp_eq_u32 vcc, {r}, v{T + 2}")
            a("s_nop 1")
            a(f"v_cndmask_b32 v{ID + 4 * e + r}, 0, v{T + 3}, vcc")
    a(f"s_lshl_b32 s33, s{sRb}, 1")
    a(f"s_add_u32 s33, s33, s{sWr}")
    a(f"s_lshl_b32 s34, s{sCb}, 1")
    a(f"s_add_u32 s34, s34, s{sWc}")
    if k3:
        a(f"s_lshl_b32 s36, s33, 15")
        a(f"s_lshl_b32 s37, s34, 11")
        a(f"s_add_u32 s36, s36, s37")
        a(f"s_add_u32 s36, s36, {HF}")
        a(f"s_lshl_b32 s37, s34, 14")
        a(f"s_lshl_b32 s{sT1}, s33, 8")
        a(f"s_add_u32 s37, s37, s{sT1}")
        a(f"s_add_u32 s37, s37, {ST}")
        a("s_mov_b32 s41, 0x3f803f80")
        a(f"v_lshlrev_b32 v{vOut}, 3, v{vLane}")
    else:
        a(f"s_mul_i32 s{sT0}, s{sHw}, 2560")
        a(f"s_add_u32 s{sT0}, s{sT0}, {TRO}")
        a(f"v_mul_u32_u24 v{T + 2}, 80, v{T}")
        a(f"v_lshl_add_u32 v{T + 2}, v{T + 1}, 3, v{T + 2}")
        a(f"v_add_u32 v{vTw}, s{sT0}, v{T + 2}")
        a(f"v_lshrrev_b32 v{T + 2}, 2, v{vLane}")
        a(f"v_and_b32 v{T + 3}, 3, v{vLane}")
        a(f"v_lshlrev_b32 v{T + 3}, 4, v{T + 3}")
        a(f"v_mad_u32_u24 v{T + 4}, v{T + 2}, 64, v{T + 3}")
        a(f"v_lshl_add_u32 v{T + 4}, v{T + 2}, 4, v{T + 4}")
        a(f"v_add_u32 v{vTr}, s{sT0}, v{T + 4}")
        a(f"v_lshl_add_u32 v{vOut}, v{T + 2}, 10, v{T + 3}")
        a(f"s_lshl_b32 s36, s33, 15")
        a(f"s_lshl_b32 s37, s34, 6")
        a(f"s_add_u32 s36, s36, s37")
        a(f"s_add_u32 s37, s36, 16384")
    a("s_waitcnt lgkmcnt(0)")
    if k3 or STAMPS or DBGT:
        srd(a, sWS, 8, WS_SIZE)
    if not k3:
        srd(a, sIO, 6, 2048 * 1024)
    stamp(a)
    first = True
    for st in range(NST):
        a("s_barrier")
        if st in (0, NST // 2):
            stamp(a)
        sl = (st % NSLOT) * SLOT
        F = FR[st & 1]
        n = min(4, KS - 4 * st)
        tk = []
        for k in range(n):
            reg, off = al.at(sl + k * 1024)
            a.lg(f"ds_read_b128 {vr(F + 8 * k, 4)}, {reg} offset:{off}")
            for half in range(2):
                reg, off = wl.at(sl + k * 2048 + half * 1024)
                t = a.lg(f"ds_read_b64_tr_b16 {vr(F + 8 * k + 4 + 2 * half, 2)}, {reg} offset:{off}")
            tk.append(t)
        if st == RST:
            for e in range(2):
                tk.append(a.lg(f"ds_read_b128 {vr(F + 32 + 4 * e, 4)}, v{vRr[e]}"))
        for k in range(n):
            a.wait(lg=tk[k])
            a(f"v_mfma_f32_32x32x16_bf16 {vr(acc, 16)}, {vr(F + 8 * k + 4, 4)}, {vr(F + 8 * k, 4)}, {'0' if first else vr(acc, 16)}")
            first = False
        if st == RST:
            for e in range(2):
                a.wait(lg=tk[n + e])
                a(f"v_mfma_f32_32x32x16_bf16 {vr(acc, 16)}, {vr(ID + 4 * e, 4)}, {vr(F + 32 + 4 * e, 4)}, {vr(acc, 16)}")
    stamp(a)
    a("s_nop 11")
    P = 32
    for i in range(8):
        a(f"v_cvt_pk_bf16_f32 v{P + i}, v{acc + 2 * i}, v{acc + 2 * i + 1}")
    if k3:
        a.vm(f"buffer_store_dwordx4 {vr(P, 4)}, v{vL16}, {sr(sWS, 4)}, s36 offen")
        a.vm(f"buffer_store_dwordx4 {vr(P + 4, 4)}, v{vL16}, {sr(sWS, 4)}, s36 offen offset:1024")
        a(f"v_dot2_f32_bf16 v{T}, v{P}, s41, 0")
        a(f"v_dot2_f32_bf16 v{T + 1}, v{P}, v{P}, 0")
        for i in range(1, 8):
            a(f"v_dot2_f32_bf16 v{T}, v{P + i}, s41, v{T}")
            a(f"v_dot2_f32_bf16 v{T + 1}, v{P + i}, v{P + i}, v{T + 1}")
        a("s_nop 2")
        a(f"v_mov_b32 v{T + 2}, v{T}")
        a(f"v_mov_b32 v{T + 3}, v{T + 1}")
        a("s_nop 0")
        a(f"v_permlane32_swap_b32 v{T}, v{T + 2}")
        a(f"v_permlane32_swap_b32 v{T + 1}, v{T + 3}")
        a("s_nop 0")
        a(f"v_add_f32 v{T}, v{T}, v{T + 2}")
        a(f"v_add_f32 v{T + 1}, v{T + 1}, v{T + 3}")
        a("s_mov_b32 exec_hi, 0")
        a.vm(f"buffer_store_dwordx2 {vr(T, 2)}, v{vOut}, {sr(sWS, 4)}, s37 offen")
    else:
        for g in range(4):
            a.lg(f"ds_write_b64 v{vTw}, {vr(P + 2 * g, 2)} offset:{g * 16}")
        a.wait_all(vm=False)
        t0 = a.lg(f"ds_read_b128 {vr(P + 8, 4)}, v{vTr}")
        t1 = a.lg(f"ds_read_b128 {vr(P + 12, 4)}, v{vTr} offset:{16 * 80}")
        a.wait(lg=t0)
        a.vm(f"buffer_store_dwordx4 {vr(P + 8, 4)}, v{vOut}, {sr(sIO, 4)}, s36 offen")
        a.wait(lg=t1)
        a.vm(f"buffer_store_dwordx4 {vr(P + 12, 4)}, v{vOut}, {sr(sIO, 4)}, s37 offen")
    stamp(a)
    stamp_flush(a, kidx, sWS, sWave)
    kernel_end(a, name)
    return name, a.text(), descriptor(name, 144, 0), (256, 512, TRO + 4 * 2560)


def gen_k4():
    name = "k4_glu_kernel"
    a = Asm()
    kernel_begin(a, name, 240)
    sG, sU, sWS = 12, 16, 20
    sWave, sRb, sCg, sHw = 24, 25, 26, 28
    sT0, sT1, sWL, sAct = 30, 31, 32, 33
    vLane, vL16 = 1, 2
    vWoff = [3, 4, 5]
    vWrd = [6, 7, 8]
    vWrdO = [9, 10, 11]
    vXa = [3, 4, 5]
    vT = 16
    ACC = 32
    XF = [128, 136]
    WF = [144, 156]
    CS = 168
    ONES = 180
    AS = 184
    XE = 188
    vCw, vCr, vEr = 196, 197, 198
    SLOT, NSLOT, XO, NST = 20480, 7, 12288, 16
    CSO = NSLOT * SLOT
    XEO = CSO + 2048
    a("s_load_dwordx4 s[4:7], s[0:1], 32")
    a("s_load_dwordx2 s[8:9], s[0:1], 72")
    a("s_load_dwordx2 s[10:11], s[0:1], 48")
    a(f"v_and_b32 v{vLane}, 63, v0")
    a(f"v_lshrrev_b32 v{vT}, 6, v0")
    a(f"v_lshlrev_b32 v{vL16}, 4, v{vLane}")
    a(f"v_readfirstlane_b32 s{sWave}, v{vT}")
    a(f"s_and_b32 s{sT0}, s2, 7")
    a(f"s_lshl_b32 s{sT0}, s{sT0}, 1")
    a(f"s_bfe_u32 s{sT1}, s2, 0x10003")
    a(f"s_add_u32 s{sRb}, s{sT0}, s{sT1}")
    a(f"s_lshr_b32 s{sCg}, s2, 4")
    a(f"s_and_b32 s{sHw}, s{sWave}, 3")
    a(f"s_cmp_ge_u32 s{sWave}, 4")
    a(f"s_cbranch_scc0 L_k4_helper_skip")

    h = fork(a)
    h.label("L_k4_helper")
    h(f"s_lshl_b32 s{sAct}, s{sRb}, 2")
    h(f"s_add_u32 s{sAct}, s{sAct}, s{sHw}")
    h(f"s_lshl_b32 s{sAct}, s{sAct}, 15")
    h(f"s_add_u32 s{sAct}, s{sAct}, {HF}")
    h(f"s_lshr_b32 s34, s{sHw}, 1")
    h(f"s_and_b32 s35, s{sHw}, 1")
    h(f"s_mul_i32 s{sT0}, s34, {16 * 2752}")
    h(f"s_mul_i32 s{sT1}, s{sCg}, 192")
    h(f"s_add_u32 s{sT0}, s{sT0}, s{sT1}")
    h(f"v_and_b32 v{vT + 3}, 2, v{vLane}")
    h(f"v_lshlrev_b32 v{vT + 3}, 5, v{vT + 3}")
    h(f"v_sub_u32 v{vT + 3}, 32, v{vT + 3}")
    h(f"v_mul_lo_u32 v{vT + 3}, v{vT + 3}, s35")
    h(f"v_add_u32 v{vT + 3}, s{sT0}, v{vT + 3}")
    for i in range(3):
        h(f"v_add_u32 v{vT}, {64 * i}, v{vLane}")
        h(f"v_mul_u32_u24 v{vT + 1}, 171, v{vT}")
        h(f"v_lshrrev_b32 v{vT + 1}, 11, v{vT + 1}")
        h(f"v_mul_u32_u24 v{vT + 2}, {2752 - 192}, v{vT + 1}")
        h(f"v_add3_u32 v{vWoff[i]}, v{vL16}, v{vT + 2}, v{vT + 3}")
    h(f"s_mul_i32 s{sWL}, s{sHw}, 3072")
    h(f"s_lshl_b32 s36, s{sHw}, 11")
    h(f"s_add_u32 s36, s36, {XO}")
    h("s_waitcnt lgkmcnt(0)")
    srd(h, sWS, 8, WS_SIZE)
    h("s_cmp_eq_u32 s35, 0")
    h(f"s_cselect_b32 s{sG}, s4, s6")
    h(f"s_cselect_b32 s{sG + 1}, s5, s7")
    h(f"s_mov_b32 s{sG + 2}, {hx(512 * 2752)}")
    h(f"s_mov_b32 s{sG + 3}, 0x00020000")
    dr = Drip(h)

    def issue(st):
        for i in range(2):
            pre = [f"s_add_u32 m0, s36, {(st % NSLOT) * SLOT}", f"s_add_u32 s43, s{sAct}, {st * 2048}"] if i == 0 else []
            dr.add(st, pre, f"buffer_load_dwordx4 v{vL16}, {sr(sWS, 4)}, s43 offen offset:{i * 1024} lds")
        for i in range(3):
            pre = [f"s_add_u32 m0, s{sWL}, {(st % NSLOT) * SLOT}", f"s_mov_b32 s42, {st * 32 * 2752}"] if i == 0 else []
            dr.add(st, pre, f"buffer_load_dwordx4 v{vWoff[i]}, {sr(sG, 4)}, s42 offen offset:{i * 1024} lds")

    for st in range(NSLOT):
        issue(st)
    AHEAD = OPT["k4_d"]
    dr.emit(5 * AHEAD)
    vPf, vPd = 13, 14
    srd(h, 44, 10, 1376 * 1024)
    h(f"s_lshr_b32 s{sT0}, s2, 3")
    h(f"s_lshl_b32 s{sT0}, s{sT0}, 2")
    h(f"s_add_u32 s{sT0}, s{sT0}, s{sHw}")
    h(f"s_lshl_b32 s{sT0}, s{sT0}, 13")
    h(f"v_lshlrev_b32 v{vPf}, 7, v{vLane}")
    h(f"v_add_u32 v{vPf}, s{sT0}, v{vPf}")
    h(f"v_add_u32 v15, {120 * 8192}, v{vPf}")
    h(f"v_lshrrev_b32 v{vT + 3}, 5, v{vLane}")
    h(f"v_and_b32 v{vT + 4}, 31, v{vLane}")
    h(f"v_lshlrev_b32 v{vT + 4}, 3, v{vT + 4}")
    h(f"v_lshl_add_u32 v{vT + 4}, v{vT + 3}, 17, v{vT + 4}")
    h(f"s_lshl_b32 s34, s{sRb}, 2")
    h(f"s_add_u32 s34, s34, s{sHw}")
    h(f"s_lshl_b32 s34, s34, 8")
    h(f"s_add_u32 s34, s34, {ST}")
    h(f"s_lshl_b32 s{sT0}, s{sHw}, 11")
    h(f"s_add_u32 s{sT0}, s{sT0}, {XEO}")
    h(f"v_add_u32 v{vT + 5}, s{sT0}, v{vL16}")
    h(f"v_lshl_add_u32 v{vT + 6}, v{vLane}, 3, s{sT0}")
    SP = 32
    stamp(h)
    for st in range(NST):
        dr.wait(st)
        vS, vQ, vM, vA = 60, 61, 62, 64
        if st == 11:
            dr.wait("st")
            h(f"v_add_f32 v{vS}, v{SP}, v{SP + 2}")
            h(f"v_add_f32 v{vQ}, v{SP + 1}, v{SP + 3}")
            for i in range(2, 8):
                h(f"v_add_f32 v{vS}, v{vS}, v{SP + 2 * i}")
                h(f"v_add_f32 v{vQ}, v{vQ}, v{SP + 2 * i + 1}")
        if st == 12:
            half_sum(h, vS, vT)
            half_sum(h, vQ, vT)
            h(f"v_mul_f32 v{vM}, {hx(f2u(-1.0 / 512))}, v{vS}")
            h(f"v_mul_f32 v{vQ}, {hx(f2u(1.0 / 512))}, v{vQ}")
            h(f"v_fma_f32 v{vQ}, -v{vM}, v{vM}, v{vQ}")
            h(f"v_max_f32 v{vQ}, 0, v{vQ}")
            h(f"v_add_f32 v{vQ}, {hx(f2u(1e-5))}, v{vQ}")
        if st == 13:
            h(f"v_rsq_f32 v{vA}, v{vQ}")
            split_hi_lo(h, vM, 68, vT, vT + 1)
            h(f"v_mul_f32 v{vA + 1}, v{vQ}, v{vA}")
            h(f"v_mul_f32 v{vA}, {hx(f2u(-LOG2E))}, v{vA}")
            h(f"v_cvt_pk_bf16_f32 v69, v{vT}, 0")
            h("v_mov_b32 v70, 0")
            h("v_mov_b32 v71, 0")
            h.lg(f"ds_write_b128 v{vT + 5}, v[68:71]")
            h.lg(f"ds_write_b64 v{vT + 6}, {vr(vA, 2)} offset:1024")
        if st == 14:
            h.wait_all(vm=False)
            dr.wait(15)
            if OPT["k4_pf"]:
                h.vm(f"buffer_load_dword v{vPd}, v{vPf}, s[44:47], 0 offen")
        if st == 15 and OPT["k4_pf"]:
            h.vm(f"buffer_load_dword v{vPd}, v15, s[44:47], 0 offen")
        h("s_barrier")
        if st in (0, 2, 4, 6, 8, 10, 12, 13, 14, 15):
            stamp(h)
        if st >= 1 and st + NSLOT - 1 < NST:
            issue(st + NSLOT - 1)
        tgt = min(NST - 1, st + AHEAD + min(st + 1, OPT["k4_g"]))
        while dr.q and dr.q[0][0] <= tgt:
            dr.emit()
        if 5 <= st <= 8:
            for i in (2 * (st - 5), 2 * (st - 5) + 1):
                h(f"s_add_u32 s{sT0}, s34, {i * 16384}")
                dr.tok["st"] = h.vm(f"buffer_load_dwordx2 {vr(SP + 2 * i, 2)}, v{vT + 4}, {sr(sWS, 4)}, s{sT0} offen")
    h("s_barrier")
    stamp_flush(h, 3, sWS, sWave) if STAMPS else None
    h("s_endpgm")
    a.lines += h.lines
    a.label("L_k4_helper_skip")

    sWr2, sWc = 36, 37
    a(f"s_lshr_b32 s{sWr2}, s{sHw}, 1")
    a(f"s_and_b32 s{sWc}, s{sHw}, 1")
    a(f"s_lshl_b32 s34, s{sRb}, 1")
    a(f"s_add_u32 s34, s34, s{sWr2}")
    a(f"v_lshrrev_b32 v{vT + 3}, 5, v{vLane}")
    a(f"v_bfe_u32 v{vT}, v{vLane}, 2, 2")
    a(f"v_lshl_add_u32 v{vT}, v{vT + 3}, 2, v{vT}")
    a(f"v_mul_u32_u24 v{vT}, 192, v{vT}")
    a(f"v_and_b32 v{vT + 1}, 3, v{vLane}")
    a(f"v_lshl_add_u32 v{vT}, v{vT + 1}, 3, v{vT}")
    a(f"s_mul_i32 s{sT0}, s{sWc}, 96")
    a(f"v_add_u32 v{vT}, s{sT0}, v{vT}")
    a(f"v_bfe_u32 v{vT + 1}, v{vLane}, 4, 1")
    a(f"s_lshl_b32 s{sT0}, s{sWc}, 6")
    a(f"s_sub_u32 s{sT1}, {3072 + 32}, s{sT0}")
    a(f"s_add_u32 s{sT0}, {3072 - 32}, s{sT0}")
    a(f"v_mad_u32_u24 v{vWrd[0]}, v{vT + 1}, s{sT1}, v{vT}")
    a(f"v_mad_u32_u24 v{vWrdO[0]}, v{vT + 1}, s{sT0}, v{vT}")
    wl = [LdsAddr(a, vWrd), LdsAddr(a, vWrdO)]
    wl[0].setup(a)
    wl[1].setup(a)
    a(f"s_lshl_b32 s{sT0}, s{sWr2}, 12")
    a(f"s_add_u32 s{sT0}, s{sT0}, {XO}")
    a(f"v_add_u32 v{vXa[0]}, s{sT0}, v{vL16}")
    xl = LdsAddr(a, vXa)
    xl.setup(a)
    a(f"v_xor_b32 v{vT}, v{vT + 1}, v{vLane}")
    a(f"v_and_b32 v{vT}, 1, v{vT}")
    a(f"v_cmp_eq_u32 vcc, 0, v{vT}")
    a(f"v_mov_b32 v{vT}, 0x3f803f80")
    a("s_nop 0")
    for r in range(4):
        a(f"v_cndmask_b32 v{ONES + r}, 0, v{vT}, vcc")
    a(f"s_lshl_b32 s{sT0}, s{sWc}, 1")
    a(f"s_add_u32 s{sT1}, s{sT0}, s{sWr2}")
    a(f"s_mul_i32 s{sT1}, s{sT1}, 384")
    a(f"s_add_u32 s{sT1}, s{sT1}, {CSO}")
    a(f"v_and_b32 v{vT}, 1, v{vLane}")
    a(f"v_lshlrev_b32 v{vT}, 6, v{vT}")
    a(f"v_and_b32 v{vT + 1}, 48, v{vLane}")
    a(f"v_add3_u32 v{vCw}, v{vT}, v{vT + 1}, s{sT1}")
    a(f"s_mul_i32 s{sT0}, s{sT0}, 384")
    a(f"s_add_u32 s{sT0}, s{sT0}, {CSO}")
    a(f"v_mul_u32_u24 v{vT}, 384, v{vT + 3}")
    a(f"v_and_b32 v{vT + 1}, 31, v{vLane}")
    a(f"v_lshl_add_u32 v{vT}, v{vT + 1}, 2, v{vT}")
    a(f"v_add_u32 v{vCr}, s{sT0}, v{vT}")
    a(f"s_mul_i32 s34, s34, {2 * 86 * 1024}")
    a(f"s_lshl_b32 s35, s{sCg}, 1")
    a(f"s_add_u32 s35, s35, s{sWc}")
    a(f"s_mul_i32 s38, s35, 3")
    a(f"s_lshl_b32 s35, s38, 10")
    a("s_add_u32 s34, s34, s35")
    a(f"s_add_u32 s34, s34, {GF}")
    a(f"s_add_u32 s35, s34, {86 * 1024}")
    for r in range(12):
        a(f"v_mov_b32 v{CS + r}, 0")
    a(f"s_lshl_b32 s{sT0}, s{sWr2}, 12")
    a(f"s_add_u32 s{sT0}, s{sT0}, {XEO}")
    a(f"v_add_u32 v{vEr}, s{sT0}, v{vL16}")
    a(f"v_lshl_add_u32 v{vEr + 1}, v{vLane}, 3, s{sT0}")
    a("s_waitcnt lgkmcnt(0)")
    srd(a, sWS, 8, WS_SIZE)

    def reads(s):
        st, ss = divmod(s, 2)
        W = []
        for j in range(3):
            for half in range(2):
                reg, off = wl[j & 1].at((st % NSLOT) * SLOT + ss * 6144 + half * 8 * 192 + j * 32)
                W.append(f"ds_read_b64_tr_b16 {vr(WF[s & 1] + 4 * j + 2 * half, 2)}, {reg} offset:{off}")
        X = []
        for i in range(2):
            reg, off = xl.at((st % NSLOT) * SLOT + i * 2048 + ss * 1024)
            X.append(f"ds_read_b128 {vr(XF[s & 1] + 4 * i, 4)}, {reg} offset:{off}")
        return [X[0], W[0], W[1], X[1], W[2], W[3], W[4], W[5]]

    rt = {}

    def emit_reads(b, s, lo, hi):
        ops = reads(s)
        for k in range(lo, min(hi, 8)):
            rt[(s, k)] = b.lg(ops[k])

    stamp(a)
    a("s_barrier")
    stamp(a)
    emit_reads(a, 0, 0, 8)
    a(f"s_cmp_eq_u32 s{sWr2}, 1")
    a("s_cbranch_scc1 L_k4_odd")
    cuts = [0, 2, 4, 6, 8, 8, 8]
    need = [3, 3, 5, 5, 7, 7]
    rt0 = dict(rt)
    odd = fork(a)
    odd.label("L_k4_odd")
    for par, b in ((0, a), (1, odd)):
        rt.clear()
        rt.update(rt0)
        def main(s, m):
            j, i = divmod(m, 2)
            d = ACC + 16 * m
            c = "0" if s == 0 else vr(d, 16)
            b(f"v_mfma_f32_32x32x16_bf16 {vr(d, 16)}, {vr(WF[s & 1] + 4 * j, 4)}, {vr(XF[s & 1] + 4 * i, 4)}, {c}")

        def csum(s, j):
            b(f"v_mfma_f32_16x16x32_bf16 {vr(CS + 4 * j, 4)}, {vr(WF[s & 1] + 4 * j, 4)}, {vr(ONES, 4)}, {vr(CS + 4 * j, 4)}")

        for s in range(31):
            if s == 16:
                stamp(b)
            if s % 2 == 1:
                b.wait(lg=rt[(s, 7)])
                b("s_barrier")
            for m in range(6):
                b.wait(lg=rt[(s, need[m])])
                if m % 2 == 0 and s % 2 == par:
                    csum(s, m // 2)
                main(s, m)
                emit_reads(b, s + 1, cuts[m], cuts[m + 1])
                if s == 29 and m >= 4:
                    b.lg(f"ds_read_b128 {vr(XE + 4 * (m - 4), 4)}, v{vEr} offset:{(m - 4) * 2048}")
                    b.lg(f"ds_read_b64 {vr(AS + 2 * (m - 4), 2)}, v{vEr + 1} offset:{(m - 4) * 2048 + 1024}")
        b.wait_all(vm=False)
        if par == 1:
            for j in range(3):
                csum(31, j)
    odd("s_branch L_k4_join")
    a.label("L_k4_join")
    b = a
    main(31, 0)
    for j in range(3):
        a(f"v_mov_b32 v{WF[0] + 4 * j + 2}, 0")
        a(f"v_mov_b32 v{WF[0] + 4 * j + 3}, 0")
    main(31, 1)
    a("s_mov_b32 exec_lo, 0x00030003")
    a("s_mov_b32 exec_hi, 0x00030003")
    for j in range(3):
        a.lg(f"ds_write_b128 v{vCw}, {vr(CS + 4 * j, 4)} offset:{j * 128}")
    a("s_mov_b64 exec, -1")
    main(31, 2)
    main(31, 3)
    a.wait_all(vm=False)
    a("s_barrier")
    for j in range(3):
        rt[("c", j)] = a.lg(f"ds_read_b32 v{vT + 4 + j}, v{vCr} offset:{j * 128}")
    main(31, 4)
    main(31, 5)
    stamp(a)
    for j in range(3):
        w = WF[0] + 4 * j
        a.wait(lg=rt[("c", j)])
        a(f"v_cvt_pk_bf16_f32 v{w + 1}, v{vT + 4 + j}, 0")
        a(f"v_lshlrev_b32 v{vT}, 16, v{w + 1}")
        a(f"v_sub_f32 v{vT}, v{vT + 4 + j}, v{vT}")
        a(f"v_cvt_pk_bf16_f32 v{w}, v{vT + 4 + j}, v{vT}")
    for j in range(3):
        for i in range(2):
            d = ACC + 32 * j + 16 * i
            a(f"v_mfma_f32_32x32x16_bf16 {vr(d, 16)}, {vr(WF[0] + 4 * j, 4)}, {vr(XE + 4 * i, 4)}, {vr(d, 16)}")
    stamp(a)
    a("s_nop 4")
    for j in range(3):
        a(f"s_cmp_ge_u32 s38, {86 - j}")
        a(f"s_cbranch_scc1 L_{name}_done")
        G = [(ACC + 32 * j + 16 * i + r, i) for i in range(2) for r in range(8)]
        for g, i in G[::2]:
            a(f"v_pk_mul_f32 {vr(g, 2)}, {vr(g, 2)}, {vr(AS + 2 * i, 2)} op_sel_hi:[1,0]")
        for g, i in G:
            a(f"v_exp_f32 v{g}, v{g}")
        for g, i in G[::2]:
            a(f"v_pk_fma_f32 {vr(g, 2)}, {vr(g, 2)}, {vr(AS + 2 * i, 2)}, {vr(AS + 2 * i, 2)} op_sel:[0,1,1] op_sel_hi:[1,1,1]")
        for g, i in G:
            a(f"v_rcp_f32 v{g}, v{g}")
        for g, i in G[::2]:
            a(f"v_pk_mul_f32 {vr(g, 2)}, {vr(g, 2)}, {vr(g + 8, 2)}")
        o = ACC + 32 * j + 8
        for i in range(8):
            a(f"v_cvt_pk_bf16_f32 v{o + i}, v{G[2 * i][0]}, v{G[2 * i + 1][0]}")
        a.vm(f"buffer_store_dwordx4 {vr(o, 4)}, v{vL16}, {sr(sWS, 4)}, s34 offen offset:{j * 1024}")
        a.vm(f"buffer_store_dwordx4 {vr(o + 4, 4)}, v{vL16}, {sr(sWS, 4)}, s35 offen offset:{j * 1024}")
    stamp(a)
    stamp_flush(a, 3, sWS, sWave)
    kernel_end(a, name)
    return name, a.text() + odd.text(), descriptor(name, 200, 0), (240, 512, XEO + 8192)


def build():
    ks = [gen_k1(), gen_k2(), gen_res("k3"), gen_k4(), gen_res("k5")]
    ref = open(f"cdna_kernels/{NAME}.s.ref").read().split("\n")
    head = [l for l in ref if l.startswith(";") and "@launch" not in l and "Override launch" not in l
            and "grid=ceil" not in l]
    out = "\n".join(head) + "\n"
    for name, _, _, (g, b, lds) in ks:
        out += f"; @launch kernel={name} grid=({g},1,1) block=({b},1,1) lds={lds}\n"
    out += '.amdgcn_target "amdgcn-amd-amdhsa--gfx950"\n.text\n'
    bad = 0
    for name, text, _, _ in ks:
        bad += check_hazards(text, name)
        out += text
    out += "L_code_end:\n"
    out += '.section .rodata,"a"\n'
    for name, _, desc, _ in ks:
        out += ".p2align 6\n" + desc
    if bad:
        print("hazards:", bad)
    return out


if __name__ == "__main__":
    path = sys.argv[1] if len(sys.argv) > 1 else f"cdna_kernels/{NAME}.s"
    for arg in sys.argv[2:]:
        if arg == "stamps":
            STAMPS = True
        elif arg == "dbgt":
            DBGT = True
        else:
            k_, v_ = arg.split("=")
            OPT[k_] = int(v_)
    open(path, "w").write(build())
    print("wrote", path)
```

```python
import sys

import gen as G
from gen import (Asm, Drip, LdsAddr, OPT, MB, QF, KVF, OF, HF, ST, GF, WS_SIZE, LOG2E, NAME, f2u, hx, vr, sr, srd,
                 fork, half_sum, split_hi_lo, code_prefetch, descriptor, check_hazards)

FLG = 11 * MB
F2, F3, F4, XT = FLG, FLG + 8192, FLG + 12288, FLG + 20480
OPT.update(dict(p3_a=3, p4_a=3, p5_a=4, p5_nw=11, p4_pf=10, p4_pre=4, p2_map=0, force_slow=0, p4_wr=1, sc="sc1"))

sWS, sWave, sHw = 12, 24, 29
sT0, sT1 = 30, 31
KX, KWO, KG, KU, KD, KO = 64, 68, 72, 74, 76, 78
vLane, vL16 = 1, 2


def stamp(a):
    if not G.STAMPS:
        return
    i = getattr(a, "nstamp", 0)
    a.nstamp = i + 1
    assert i < 18
    a("s_memtime s[100:101]")
    a.wait_all(vm=False)
    a(f"s_mov_b32 s{80 + i}, s100")


def stamp_real(a):
    if not G.STAMPS:
        return
    i = getattr(a, "nstamp", 0)
    a.nstamp = i + 1
    a("s_memrealtime s[100:101]")
    a.wait_all(vm=False)
    a(f"s_mov_b32 s{80 + i}, s100")


def stamp_flush(a):
    if not G.STAMPS:
        return
    a.wait_all()
    stamp(a)
    stamp_real(a)
    a("s_mov_b64 exec, -1")
    a("s_lshl_b32 s58, s2, 3")
    a(f"s_add_u32 s58, s58, s{sWave}")
    a("s_lshl_b32 s58, s58, 7")
    a(f"s_add_u32 s58, s58, {G.DBGO + MB}")
    a("v_mov_b32 v1, 0")
    for i in range(a.nstamp):
        a(f"v_mov_b32 v2, s{80 + i}")
        a(f"buffer_store_dword v2, v1, {sr(sWS, 4)}, s58 offen offset:{4 * i}")
    a.wait_all()


LMODE = 163840 - 16
sMode = 54
_uid = [0]


def stores(a, ins, always_slow=False):
    if always_slow:
        for x in ins:
            a.vm(x + " sc1")
        return
    _uid[0] += 1
    u = _uid[0]
    a(f"s_cmp_eq_u32 s{sMode}, 0")
    a(f"s_cbranch_scc1 L_st_{u}_s")
    for x in ins:
        a.vm(x)
    a(f"s_branch L_st_{u}_j")
    a.label(f"L_st_{u}_s")
    for x in ins:
        a(x + " sc1")
    a.label(f"L_st_{u}_j")


def publish(a, sOff, vt, always_slow=False):
    a(f"v_mov_b32 v{vt}, 0")
    a(f"v_mov_b32 v{vt + 1}, 1")
    a("s_mov_b64 exec, 1")
    a.wait_all(lg=False)
    stores(a, [f"buffer_store_dword v{vt + 1}, v{vt}, {sr(sWS, 4)}, s{sOff} offen"], always_slow)
    a("s_mov_b64 exec, -1")


def poll(a, sOff, vt, uid, nflags=64):
    a(f"s_cmp_lg_u32 s{sWave}, 0")
    a(f"s_cbranch_scc1 L_poll_{uid}_go")
    a(f"v_lshlrev_b32 v{vt}, 2, v{vLane}")
    a("s_mov_b32 s59, 0x40000")
    if nflags < 64:
        a(f"s_mov_b64 exec, {hx((1 << nflags) - 1)}")
    a.label(f"L_poll_{uid}")
    a(f"buffer_load_dword v{vt + 1}, v{vt}, {sr(sWS, 4)}, s{sOff} offen sc1")
    a("s_sub_u32 s59, s59, 1")
    a("s_waitcnt vmcnt(0)")
    a(f"v_cmp_ne_u32 vcc, 1, v{vt + 1}")
    a("s_cmp_eq_u32 s59, 0")
    a(f"s_cbranch_scc1 L_poll_{uid}_x")
    a(f"s_cbranch_vccnz L_poll_{uid}")
    a.label(f"L_poll_{uid}_x")
    a("s_mov_b64 exec, -1")
    a.label(f"L_poll_{uid}_go")
    a("s_barrier")


def phase2(a, name):
    sHead, sQb, sKh, sQs = 25, 26, 27, 28
    sVm = 34
    vKrd, vVrd, vIdx, vXw, vXr = 3, 4, 5, 6, 7
    Qf = [8, 12]
    Kf, Vf = 16, 32
    S = [64, 80]
    O = [96, 112]
    NEG = 128
    T = 144
    XCH = 131072
    NPRE = 2
    a("s_load_dwordx2 s[8:9], s[0:1], 72")
    a("s_load_dwordx16 s[64:79], s[0:1], 0")
    a(f"v_lshrrev_b32 v8, 6, v0")
    a(f"v_and_b32 v{vLane}, 63, v0")
    a(f"v_readfirstlane_b32 s{sWave}, v8")
    a(f"v_lshlrev_b32 v{vL16}, 4, v{vLane}")
    if OPT["p2_map"]:
        a(f"s_lshr_b32 s{sHead}, s2, 3")
    else:
        a(f"s_and_b32 s{sT0}, s2, 7")
        a(f"s_lshl_b32 s{sT0}, s{sT0}, 2")
        a(f"s_lshr_b32 s{sT1}, s2, 6")
        a(f"s_add_u32 s{sHead}, s{sT0}, s{sT1}")
    a(f"s_lshl_b32 s33, s{sHead}, 17")
    a(f"s_add_u32 s33, s33, {KVF}")
    a(f"s_cmp_eq_u32 s{sWave}, 8")
    a("s_cbranch_scc0 L_p2_compute")
    a("s_barrier")
    a("s_branch L_p2_loader")
    a.label("L_p2_compute")

    h = fork(a)
    h.label("L_p2_loader")
    h("s_setprio 3")
    h("s_getreg_b32 s56, hwreg(HW_REG_XCC_ID, 0, 4)")
    h("s_add_u32 s56, s56, 1")
    h("s_and_b32 s57, s2, 7")
    h("s_lshl_b32 s57, s57, 8")
    h(f"s_add_u32 s57, s57, {XT}")
    h("s_lshr_b32 s58, s2, 3")
    h("s_lshl_b32 s58, s58, 2")
    h("v_mov_b32 v6, s58")
    h("v_mov_b32 v7, s56")
    h("s_waitcnt lgkmcnt(0)")
    srd(h, sWS, 8, WS_SIZE)
    h("s_mov_b64 exec, 1")
    h.vm(f"buffer_store_dword v7, v6, {sr(sWS, 4)}, s57 offen sc1")
    h("s_mov_b64 exec, -1")
    for c in range(NPRE, 8):
        for half in range(2):
            for q in range(2):
                h(f"s_mov_b32 m0, {half * 65536 + c * 8192 + q * 4096}")
                h(f"s_add_u32 s37, s33, {c * 16384 + half * 8192 + q * 4096}")
                for i in range(4):
                    h.vm(f"buffer_load_dwordx4 v{vL16}, {sr(sWS, 4)}, s37 offen offset:{i * 1024} lds")
        h("s_waitcnt vmcnt(40)")
    srd(h, 16, KWO, 512 * 1024)
    srd(h, 20, KG, 512 * 2752)
    srd(h, 52, KU, 512 * 2752)
    h(f"s_and_b32 s{sT0}, s2, 7")
    h(f"s_lshl_b32 s{sT1}, s{sT0}, 18")
    h(f"s_add_u32 s4, s{KX}, s{sT1}")
    h(f"s_addc_u32 s5, s{KX + 1}, 0")
    srd(h, 44, 4, 256 * 1024)
    h(f"s_mul_i32 s{sT0}, s{sT0}, {172 * 1024}")
    h(f"s_add_u32 s10, s{KD}, s{sT0}")
    h(f"s_addc_u32 s11, s{KD + 1}, 0")
    srd(h, 40, 10, 172 * 1024)
    h(f"s_lshr_b32 s{sT0}, s2, 3")
    h("v_lshlrev_b32 v3, 7, v1")
    h.wait_all()
    h("s_barrier")
    for sq, per, n in ((16, 16384, 2), (44, 8192, 1), (20, 49152, 6), (52, 49152, 6), (40, 8192, 1)):
        h(f"s_mul_i32 s{sT1}, s{sT0}, {per}")
        h(f"v_add_u32 v4, s{sT1}, v3")
        for i in range(n):
            h.vm(f"buffer_load_dword v5, v4, {sr(sq, 4)}, 0 offen")
            if i + 1 < n:
                h("v_add_u32 v4, 0x2000, v4")
    h(f"s_lshl_b32 s{sT1}, s{sT0}, 11")
    h(f"v_add_u32 v4, s{sT1}, v3")
    h("s_mov_b64 exec, 0xffff")
    code_prefetch(h, "L_p2_tail", 38, 4, 5, "p2")
    h("s_mov_b32 exec_lo, -1")
    h("s_mov_b32 exec_hi, 0")
    h("v_lshlrev_b32 v6, 2, v1")
    h("s_mov_b32 s59, 0x40000")
    h.label("L_xt_poll")
    h(f"buffer_load_dword v7, v6, {sr(sWS, 4)}, s57 offen sc1")
    h("s_sub_u32 s59, s59, 1")
    h("s_waitcnt vmcnt(0)")
    h("v_cmp_eq_u32 vcc, 0, v7")
    h("s_cmp_eq_u32 s59, 0")
    h("s_cbranch_scc1 L_xt_done")
    h("s_cbranch_vccnz L_xt_poll")
    h.label("L_xt_done")
    h("v_cmp_ne_u32 vcc, s56, v7")
    h("s_nop 1")
    h("s_cmp_eq_u64 vcc, 0")
    h(f"s_cselect_b32 s56, {0 if OPT['force_slow'] else 1}, 0")
    h(f"v_mov_b32 v6, {LMODE}")
    h("v_mov_b32 v7, s56")
    h("ds_write_b32 v6, v7")
    h("s_waitcnt lgkmcnt(0)")
    h("s_endpgm")

    if OPT["p2_map"]:
        a(f"s_and_b32 s{sQb}, s2, 7")
    else:
        a(f"s_bfe_u32 s{sQb}, s2, 0x30003")
    a(f"s_lshr_b32 s{sKh}, s{sWave}, 2")
    a(f"s_and_b32 s{sQs}, s{sWave}, 3")
    a(f"s_lshl_b32 s32, s{sKh}, 16")
    a(f"s_lshl_b32 s{sT0}, s{sQs}, 11")
    a(f"s_add_u32 s32, s32, s{sT0}")
    a(f"s_lshl_b32 s38, s{sWave}, 11")
    a("s_add_u32 s33, s33, s38")
    a(f"s_lshl_b32 s36, s{sHead}, 16")
    a(f"s_lshl_b32 s{sT1}, s{sQb}, 13")
    a(f"s_add_u32 s36, s36, s{sT1}")
    a(f"s_add_u32 s36, s36, s{sT0}")
    if QF:
        a(f"s_add_u32 s36, s36, {QF}")
    a(f"s_lshl_b32 s{sT0}, s{sKh}, 10")
    a(f"s_add_u32 s36, s36, s{sT0}")
    a(f"s_xor_b32 s39, s36, 1024")
    a(f"s_mov_b32 m0, s32")
    a(f"v_and_b32 v{T}, 27, v{vLane}")
    a(f"v_cmp_eq_u32 vcc, 16, v{T}")
    a(f"v_mov_b32 v{T}, 0x3f803f80")
    a(f"v_mov_b32 v{vIdx}, 0xdddd")
    for r in range(32):
        a(f"v_cndmask_b32 v{Vf + r}, 0, v{T}, vcc")
    a("s_waitcnt lgkmcnt(0)")
    srd(a, sWS, 8, WS_SIZE)
    a.vm(f"buffer_load_dwordx4 v{vL16}, {sr(sWS, 4)}, s33 offen lds")
    a.vm(f"buffer_load_dwordx4 {vr(Qf[0], 4)}, v{vL16}, {sr(sWS, 4)}, s36 offen")
    a.vm(f"buffer_load_dwordx4 {vr(Qf[1], 4)}, v{vL16}, {sr(sWS, 4)}, s39 offen")
    a.vm(f"buffer_load_dwordx4 v{vL16}, {sr(sWS, 4)}, s33 offen offset:1024 lds")
    for c in range(1, NPRE):
        a(f"s_add_u32 m0, s32, {c * 8192}")
        a(f"s_add_u32 s37, s33, {c * 16384}")
        a.vm(f"buffer_load_dwordx4 v{vL16}, {sr(sWS, 4)}, s37 offen lds")
        a.vm(f"buffer_load_dwordx4 v{vL16}, {sr(sWS, 4)}, s37 offen offset:1024 lds")
    a(f"s_mov_b32 s{sVm}, 0x0000ffff")
    a(f"s_mov_b32 s{sVm + 1}, 0x0000ffff")
    a(f"s_and_b32 s{sHw}, s{sWave}, 3")
    a(f"s_lshl_b32 s{sT0}, s{sKh}, 16")
    a(f"v_add_u32 v{vKrd}, s{sT0}, v{vL16}")
    a(f"v_lshrrev_b32 v{T}, 5, v{vLane}")
    a(f"v_and_b32 v{T + 1}, 15, v{vLane}")
    a(f"v_lshlrev_b32 v{T + 1}, 4, v{T + 1}")
    a(f"v_lshl_add_u32 v{T}, v{T}, 8, v{T + 1}")
    a(f"v_add_u32 v{vVrd}, s{sT0}, v{T}")
    a(f"s_mul_i32 s{sT0}, s{sWave}, 3072")
    a(f"s_add_u32 s{sT0}, s{sT0}, {XCH}")
    a(f"v_add_u32 v{vXw}, s{sT0}, v{vL16}")
    a(f"s_xor_b32 s{sT1}, s{sWave}, 4")
    a(f"s_mul_i32 s{sT0}, s{sT1}, 3072")
    a(f"s_add_u32 s{sT0}, s{sT0}, {XCH}")
    a(f"v_add_u32 v{vXr}, s{sT0}, v{vL16}")
    for c in range(2):
        for r in range(16):
            a(f"v_mov_b32 v{O[c] + r}, 0")
    a(f"s_lshl_b32 s57, s{sQb}, 2")
    a(f"s_add_u32 s57, s57, s{sQs}")
    a(f"s_lshl_b32 s55, s57, 8")
    a(f"s_lshl_b32 s{sT1}, s{sHead}, 1")
    a(f"s_add_u32 s{sT1}, s{sT1}, s{sKh}")
    a(f"s_lshl_b32 s{sT1}, s{sT1}, 2")
    a(f"s_add_u32 s55, s55, s{sT1}")
    a(f"s_add_u32 s55, s55, {F2}")
    a(f"s_lshl_b32 s57, s57, 1")
    a(f"s_add_u32 s57, s57, s{sKh}")
    a(f"s_lshl_b32 s57, s57, 15")
    a(f"s_lshl_b32 s{sT1}, s{sHead}, 10")
    a(f"s_add_u32 s57, s57, s{sT1}")
    a(f"s_add_u32 s57, s57, {OF}")

    def emit_pair(p):
        for t in (2 * p, 2 * p + 1):
            a.lg(f"ds_read_b128 {vr(Kf + 4 * (t & 3), 4)}, v{vKrd} offset:{t * 2048}")
        a(f"s_mov_b64 exec, {sr(sVm, 2)}")
        for t in (2 * p, 2 * p + 1):
            a.lg(f"ds_read_b128 {vr(Vf + 8 * (t & 3), 4)}, v{vVrd} offset:{t * 2048 + 1024}")
            tok = a.lg(f"ds_read_b128 {vr(Vf + 8 * (t & 3) + 4, 4)}, v{vVrd} offset:{t * 2048 + 1536}")
        a("s_mov_b64 exec, -1")
        return tok

    def qk(u):
        t, c = divmod(u, 2)
        return f"v_mfma_f32_32x32x16_bf16 {vr(S[u & 1], 16)}, {vr(Kf + 4 * (t & 3), 4)}, {vr(Qf[c], 4)}, 0"

    def pv(u, i):
        t, c = divmod(u, 2)
        return (f"v_smfmac_f32_32x32x32_bf16 {vr(O[c], 16)}, {vr(Vf + 8 * (t & 3) + 4 * i, 4)}, "
                f"{vr(S[u & 1] + 8 * i, 8)}, v{vIdx}")

    NU = 64
    UB = 4 * (2 * NPRE - 1)
    PRIO = {0: 1, UB - 2: 0, UB + 1: 2, NU - 6: 1, NU - 2: 0}
    a.wait_all(lg=False)
    a("s_barrier")
    stamp(a)
    ptok = {0: emit_pair(0)}
    a.wait(lg=ptok[0] - 5)
    a(qk(0))
    a.wait(lg=ptok[0])
    a("s_nop 9")
    for u in range(NU):
        X = S[u & 1]
        p, pu = divmod(u, 4)
        if u in PRIO:
            a(f"s_setprio {PRIO[u]}")
        ex = [f"v_exp_f32 v{X + i}, v{X + i}" for i in range(16)]
        a(ex[0]); a(ex[1])
        if u > 0:
            a(pv(u - 1, 1))
        a(ex[2]); a(ex[3]); a(ex[4])
        if u + 1 < NU:
            if pu == 3:
                a.wait(lg=ptok[p + 1])
            a(qk(u + 1))
        if pu == 0 and p + 1 < 16:
            if u == UB:
                a("s_barrier")
            ptok[p + 1] = emit_pair(p + 1)
        for i in range(5, 10):
            a(ex[i])
        a(pv(u, 0))
        for i in range(10, 16):
            a(ex[i])
    a.label("L_p2_tail")
    a("s_nop 1")
    a(pv(NU - 1, 1))
    a(f"s_mov_b32 s{sT0}, {hx(f2u(2.0 ** 80))}")
    a(f"s_mov_b32 s{sT1}, {hx(f2u(2.0 ** -80))}")
    a("s_mov_b32 s56, 0")
    a(f"v_mov_b32 v{T + 13}, {LMODE}")
    a("s_nop 7")
    a.lg(f"ds_write_b128 v{vXw}, {vr(O[1], 4)}")
    a.lg(f"ds_write_b128 v{vXw}, {vr(O[1] + 4, 4)} offset:1024")
    a.lg(f"ds_write_b32 v{vXw}, v{O[1] + 8} offset:2048")
    a.wait_all(vm=False)
    a("s_barrier")
    a.lg(f"ds_read_b32 v{T + 9}, v{T + 13}")
    t2 = a.lg(f"ds_read_b32 v{T + 8}, v{vXr} offset:2048")
    a.lg(f"ds_read_b128 {vr(T, 4)}, v{vXr}")
    t1 = a.lg(f"ds_read_b128 {vr(T + 4, 4)}, v{vXr} offset:1024")
    a.wait(lg=t2)
    a(f"v_add_f32 v{O[0] + 8}, v{O[0] + 8}, v{T + 8}")
    a(f"v_readfirstlane_b32 s{sMode}, v{T + 9}")
    a.wait(lg=t1)
    for r in range(0, 8, 2):
        a(f"v_pk_add_f32 {vr(O[0] + r, 2)}, {vr(O[0] + r, 2)}, {vr(T + r, 2)}")
    a.label("L_p2_finish")
    a(f"v_rcp_f32 v{T + 8}, v{O[0] + 8}")
    a(f"v_cmp_gt_f32 s[40:41], s{sT0}, v{O[0] + 8}")
    a(f"v_cmp_lt_f32 s[42:43], s{sT1}, v{O[0] + 8}")
    for r in range(0, 8, 2):
        a(f"v_pk_mul_f32 {vr(O[0] + r, 2)}, {vr(O[0] + r, 2)}, {vr(T + 8, 2)} op_sel_hi:[1,0]")
    for i in range(4):
        a(f"v_cvt_pk_bf16_f32 v{T + 4 + i}, v{O[0] + 2 * i}, v{O[0] + 2 * i + 1}")
    a(f"v_dot2_f32_bf16 v{T}, v{T + 4}, v{T + 4}, 0")
    for i in range(1, 4):
        a(f"v_dot2_f32_bf16 v{T}, v{T + 4 + i}, v{T + 4 + i}, v{T}")
    a("s_and_b64 s[40:41], s[40:41], s[42:43]")
    a("s_cmp_lg_u32 s56, 0")
    a("s_cbranch_scc1 L_p2_store")
    a(f"v_cmp_gt_f32 vcc, s{sT0}, v{T}")
    a("s_nop 0")
    a("s_and_b64 s[40:41], s[40:41], vcc")
    a("s_cmp_eq_u64 s[40:41], -1")
    a("s_cbranch_scc0 L_p2_fallback")
    a.label("L_p2_store")
    stores(a, [f"buffer_store_dwordx4 {vr(T + 4, 4)}, v{vL16}, {sr(sWS, 4)}, s57 offen"], not OPT["p2_map"])
    a("s_barrier")
    stamp(a)

    f = Asm()
    f.label("L_p2_fallback")
    vK2, vV2, vM = T + 10, T + 11, T + 12
    f(f"s_lshl_b32 s37, s{sKh}, 16")
    f(f"v_subrev_u32 v{vK2}, s37, v{vKrd}")
    f(f"v_mov_b32 v{vM}, 0xff800000")
    f("s_mov_b32 s56, 0")
    f.label("L_p2_fb_max")
    f(f"ds_read_b128 {vr(Kf, 4)}, v{vK2}")
    f("s_waitcnt lgkmcnt(0)")
    f(f"v_mfma_f32_32x32x16_bf16 {vr(S[0], 16)}, {vr(Kf, 4)}, {vr(Qf[0], 4)}, 0")
    f("s_nop 15")
    for i in range(8):
        f(f"v_max3_f32 v{vM}, v{vM}, v{S[0] + 2 * i}, v{S[0] + 2 * i + 1}")
    f(f"v_add_u32 v{vK2}, 2048, v{vK2}")
    f("s_add_u32 s56, s56, 1")
    f("s_cmp_lt_u32 s56, 64")
    f("s_cbranch_scc1 L_p2_fb_max")
    f(f"v_mov_b32 v{T}, v{vM}")
    f("s_nop 1")
    f(f"v_permlane32_swap_b32 v{vM}, v{T}")
    f("s_nop 1")
    f(f"v_max_f32 v{vM}, v{vM}, v{T}")
    for r in range(16):
        f(f"v_sub_f32 v{NEG + r}, 0, v{vM}")
        f(f"v_mov_b32 v{O[0] + r}, 0")
    f(f"v_subrev_u32 v{vK2}, s37, v{vKrd}")
    f(f"v_subrev_u32 v{vV2}, s37, v{vVrd}")
    f("s_mov_b32 s56, 0")
    f.label("L_p2_fb_pv")
    f(f"ds_read_b128 {vr(Kf, 4)}, v{vK2}")
    f(f"s_mov_b64 exec, {sr(sVm, 2)}")
    f(f"ds_read_b128 {vr(Vf, 4)}, v{vV2} offset:1024")
    f(f"ds_read_b128 {vr(Vf + 4, 4)}, v{vV2} offset:1536")
    f("s_mov_b64 exec, -1")
    f("s_waitcnt lgkmcnt(0)")
    f(f"v_mfma_f32_32x32x16_bf16 {vr(S[0], 16)}, {vr(Kf, 4)}, {vr(Qf[0], 4)}, {vr(NEG, 16)}")
    f("s_nop 15")
    for i in range(16):
        f(f"v_exp_f32 v{S[0] + i}, v{S[0] + i}")
    f("s_nop 1")
    f(f"v_smfmac_f32_32x32x32_bf16 {vr(O[0], 16)}, {vr(Vf, 4)}, {vr(S[0], 8)}, v{vIdx}")
    f(f"v_smfmac_f32_32x32x32_bf16 {vr(O[0], 16)}, {vr(Vf + 4, 4)}, {vr(S[0] + 8, 8)}, v{vIdx}")
    f("s_nop 15")
    f(f"v_add_u32 v{vK2}, 2048, v{vK2}")
    f(f"v_add_u32 v{vV2}, 2048, v{vV2}")
    f("s_add_u32 s56, s56, 1")
    f("s_cmp_lt_u32 s56, 64")
    f("s_cbranch_scc1 L_p2_fb_pv")
    f("s_branch L_p2_finish")
    return h, f


def phase_res(a, h, k3, pre_publish=None):
    uid = "p3" if k3 else "p5"
    KS = 32 if k3 else 86
    ACT = OF if k3 else GF
    NST = (KS + 3) // 4
    NW = 8 if k3 else OPT["p5_nw"]
    NA = 8 if k3 else 17 - NW
    AO = NW * 8192
    RESO = AO + NA * 8192
    TRO = RESO + 8192 + 6144
    sW, sIO = 16, 20
    sWr, sWc, sRb, sCb = 25, 26, 27, 28
    T = 12
    for b in (a, h):
        b(f"s_and_b32 s{sT0}, s2, 7")
        b(f"s_lshl_b32 s{sRb}, s{sT0}, 2")
        b(f"s_lshr_b32 s34, s2, 6")
        b(f"s_add_u32 s{sRb}, s{sRb}, s34")
        b(f"s_bfe_u32 s{sCb}, s2, 0x30003")
        b(f"s_and_b32 s{sWr}, s{sWave}, 1")
        b(f"s_bfe_u32 s{sWc}, s{sWave}, 0x10001")
    vWoff, vXg = 3, 5
    h(f"v_lshrrev_b32 v{T}, 3, v{vLane}")
    h(f"v_and_b32 v{T + 1}, 7, v{vLane}")
    h(f"v_lshrrev_b32 v{T + 2}, 2, v{vLane}")
    h(f"v_and_b32 v{T + 2}, 4, v{T + 2}")
    h(f"v_xor_b32 v{T + 2}, v{T + 2}, v{T + 1}")
    h(f"v_lshlrev_b32 v{T + 2}, 4, v{T + 2}")
    h(f"v_lshl_add_u32 v{T + 2}, v{T}, 10, v{T + 2}")
    h(f"s_lshl_b32 s{sT0}, s{sHw}, 14")
    h(f"s_lshl_b32 s{sT1}, s{sCb}, 7")
    h(f"s_add_u32 s{sT0}, s{sT0}, s{sT1}")
    h(f"v_add_u32 v{vWoff}, s{sT0}, v{T + 2}")
    h(f"v_add_u32 v{vWoff + 1}, {8192 - 1024}, v{vWoff}")
    h(f"s_lshl_b32 s32, s{sHw}, 11")
    h(f"s_lshl_b32 s33, s{sRb}, 1")
    h(f"s_add_u32 s33, s33, s{sWr}")
    h(f"s_mul_i32 s34, s33, {KS * 1024}")
    h(f"s_lshl_b32 s{sT1}, s{sWc}, 11")
    h(f"s_add_u32 s34, s34, s{sT1}")
    h(f"s_add_u32 s34, s34, {ACT}")
    h(f"s_lshl_b32 s35, s{sWr}, 12")
    h(f"s_add_u32 s35, s35, s{sT1}")
    if k3:
        h(f"v_lshrrev_b32 v{T + 2}, 1, v{T}")
        h(f"v_xor_b32 v{T + 2}, v{T + 2}, v{T + 1}")
        h(f"v_lshlrev_b32 v{T + 2}, 4, v{T + 2}")
        h(f"v_lshl_add_u32 v{vXg}, v{T}, 10, v{T + 2}")
        h(f"v_xor_b32 v{vXg + 1}, 64, v{vXg}")
        h(f"v_add_u32 v{vXg + 1}, {8192 - 1024}, v{vXg + 1}")
        h(f"s_lshl_b32 s36, s{sRb}, 16")
        h(f"s_add_u32 s36, s36, s{sT0}")
        srd(h, sIO, KX, 2048 * 1024)
    else:
        h(f"s_lshl_b32 s36, s33, 15")
        h(f"s_lshl_b32 s{sT0}, s{sCb}, 12")
        h(f"s_add_u32 s36, s36, s{sT0}")
        h(f"s_add_u32 s36, s36, s{sT1}")
        h(f"s_add_u32 s36, s36, {HF}")
    srd(h, sW, KWO if k3 else KD, KS * 16 * 1024)
    if pre_publish is not None:
        publish(h, pre_publish, T + 4, not OPT["p2_map"])
    dr = Drip(h)

    def issue_w(st):
        dr.add(st, [f"s_add_u32 m0, s32, {(st % NW) * 8192}", f"s_mov_b32 s42, {st * 65536}"],
               f"buffer_load_dwordx4 v{vWoff}, {sr(sW, 4)}, s42 offen lds")
        dr.add(st, [], f"buffer_load_dwordx4 v{vWoff + 1}, {sr(sW, 4)}, s42 offen offset:1024 lds")

    def issue_a(st):
        dr.add(st, [f"s_add_u32 m0, s35, {AO + (st % NA) * 8192}", f"s_add_u32 s43, s34, {st * 4096}"],
               f"buffer_load_dwordx4 v{vL16}, {sr(sWS, 4)}, s43 offen sc1 lds")
        dr.add(st, [], f"buffer_load_dwordx4 v{vL16}, {sr(sWS, 4)}, s43 offen offset:1024 sc1 lds")

    for st in range(min(NW, NST)):
        issue_w(st)
    if k3:
        dr.add(0, [f"s_add_u32 m0, s32, {RESO}", "s_nop 0"], f"buffer_load_dwordx4 v{vXg}, {sr(sIO, 4)}, s36 offen lds")
        dr.add(0, [], f"buffer_load_dwordx4 v{vXg + 1}, {sr(sIO, 4)}, s36 offen offset:1024 lds")
    dr.emit(100)
    stamp(h)
    h("s_barrier")
    stamp(h)
    AHEAD = OPT["p3_a"] if k3 else OPT["p5_a"]
    assert AHEAD < NA
    nxt_a = 0
    for st in range(NST):
        while nxt_a <= min(st + AHEAD, NST - 1):
            if nxt_a >= NA and nxt_a - NA > st - 2:
                break
            issue_a(nxt_a)
            if not k3 and nxt_a == 1:
                dr.add(1, [f"s_add_u32 m0, s35, {RESO}", "s_nop 0"], f"buffer_load_dwordx4 v{vL16}, {sr(sWS, 4)}, s36 offen sc1 lds")
                dr.add(1, [], f"buffer_load_dwordx4 v{vL16}, {sr(sWS, 4)}, s36 offen offset:1024 sc1 lds")
            nxt_a += 1
        dr.emit(100)
        h.wait(vm=dr.tok[st])
        h("s_barrier")
        if st >= 1 and st - 1 + NW < NST:
            issue_w(st - 1 + NW)
    if k3:
        h("s_barrier")
    RST = 0 if k3 else 1
    vWrd, vAr, vRr, vTw, vTr, vOut = [3, 4], [5], [7, 8], 9, 10, 11
    ID = 24
    FR = [32, 72]
    acc = 112
    a(f"v_and_b32 v{T}, 31, v{vLane}")
    a(f"v_lshrrev_b32 v{T + 1}, 5, v{vLane}")
    a(f"v_bfe_u32 v{T + 2}, v{vLane}, 2, 2")
    a(f"v_lshl_add_u32 v{T + 3}, v{T + 1}, 2, v{T + 2}")
    a(f"v_lshlrev_b32 v{T + 3}, 7, v{T + 3}")
    a(f"v_bfe_u32 v{T + 4}, v{vLane}, 4, 1")
    a(f"v_lshl_add_u32 v{T + 3}, v{T + 4}, 5, v{T + 3}")
    a(f"v_and_b32 v{T + 4}, 3, v{vLane}")
    a(f"v_lshl_add_u32 v{T + 3}, v{T + 4}, 3, v{T + 3}")
    a(f"v_lshrrev_b32 v{T + 2}, 1, v{T + 2}")
    a(f"v_xor_b32 v{T + 2}, s{sWc}, v{T + 2}")
    a(f"v_lshl_add_u32 v{vWrd[0]}, v{T + 2}, 6, v{T + 3}")
    wl = LdsAddr(a, vWrd)
    wl.setup(a)
    a(f"s_lshl_b32 s{sT0}, s{sWr}, 12")
    a(f"s_add_u32 s{sT1}, s{sT0}, {AO}")
    a(f"v_add_u32 v{vAr[0]}, s{sT1}, v{vL16}")
    if k3:
        a(f"v_bfe_u32 v{T + 2}, v{vLane}, 1, 3")
        a(f"v_xor_b32 v{T + 2}, v{T + 2}, v{T + 1}")
        a(f"s_lshl_b32 s{sT1}, s{sWc}, 2")
        a(f"v_xor_b32 v{T + 2}, s{sT1}, v{T + 2}")
        a(f"v_lshlrev_b32 v{T + 2}, 4, v{T + 2}")
        a(f"v_lshl_add_u32 v{T + 2}, v{T}, 7, v{T + 2}")
        a(f"s_add_u32 s{sT0}, s{sT0}, {RESO}")
        a(f"v_add_u32 v{vRr[0]}, s{sT0}, v{T + 2}")
        a(f"v_xor_b32 v{vRr[1]}, 32, v{vRr[0]}")
    else:
        a(f"s_lshl_b32 s{sT1}, s{sWc}, 11")
        a(f"s_add_u32 s{sT0}, s{sT0}, s{sT1}")
        a(f"s_add_u32 s{sT0}, s{sT0}, {RESO}")
        a(f"v_add_u32 v{vRr[0]}, s{sT0}, v{vL16}")
        a(f"v_add_u32 v{vRr[1]}, 1024, v{vRr[0]}")
    if pre_publish is not None:
        publish(a, pre_publish, T + 6, not OPT["p2_map"])
    a(f"v_mov_b32 v{T + 5}, 0x3f80")
    for e in range(2):
        if k3:
            a(f"v_lshlrev_b32 v{T + 2}, 3, v{T + 1}")
            a(f"v_sub_u32 v{T + 2}, v{T}, v{T + 2}")
            a(f"v_subrev_u32 v{T + 2}, {16 * e}, v{T + 2}")
        else:
            a(f"v_bfe_u32 v{T + 2}, v{vLane}, 3, 1")
            a(f"v_and_b32 v{T + 3}, 3, v{vLane}")
            a(f"v_lshl_add_u32 v{T + 2}, v{T + 2}, 2, v{T + 3}")
            a(f"v_bfe_u32 v{T + 3}, v{vLane}, 2, 1")
            a(f"v_xor_b32 v{T + 3}, v{T + 3}, v{T + 1}")
            a(f"v_bfe_u32 v{T + 4}, v{vLane}, 4, 1")
            a(f"v_xor_b32 v{T + 4}, {e}, v{T + 4}")
            a(f"v_or_b32 v{T + 3}, v{T + 3}, v{T + 4}")
            a(f"v_lshl_add_u32 v{T + 2}, v{T + 3}, 4, v{T + 2}")
        a(f"v_and_b32 v{T + 3}, 1, v{T + 2}")
        a(f"v_lshlrev_b32 v{T + 3}, 4, v{T + 3}")
        a(f"v_lshlrev_b32 v{T + 3}, v{T + 3}, v{T + 5}")
        a(f"v_lshrrev_b32 v{T + 2}, 1, v{T + 2}")
        for r in range(4):
            a(f"v_cmp_eq_u32 vcc, {r}, v{T + 2}")
            a("s_nop 1")
            a(f"v_cndmask_b32 v{ID + 4 * e + r}, 0, v{T + 3}, vcc")
    a(f"s_lshl_b32 s33, s{sRb}, 1")
    a(f"s_add_u32 s33, s33, s{sWr}")
    a(f"s_lshl_b32 s34, s{sCb}, 1")
    a(f"s_add_u32 s34, s34, s{sWc}")
    if k3:
        a(f"s_lshl_b32 s36, s33, 15")
        a(f"s_lshl_b32 s37, s34, 11")
        a(f"s_add_u32 s36, s36, s37")
        a(f"s_add_u32 s36, s36, {HF}")
        a(f"s_lshl_b32 s37, s34, 14")
        a(f"s_lshl_b32 s{sT1}, s33, 8")
        a(f"s_add_u32 s37, s37, s{sT1}")
        a(f"s_add_u32 s37, s37, {ST}")
        a("s_mov_b32 s41, 0x3f803f80")
        a(f"v_lshlrev_b32 v{vOut}, 3, v{vLane}")
        a(f"s_lshl_b32 s55, s{sRb}, 7")
        a(f"s_lshl_b32 s{sT1}, s{sCb}, 4")
        a(f"s_add_u32 s55, s55, s{sT1}")
        a(f"s_lshl_b32 s{sT1}, s{sWave}, 2")
        a(f"s_add_u32 s55, s55, s{sT1}")
        a(f"s_add_u32 s55, s55, {F3}")
    else:
        a(f"s_mul_i32 s{sT0}, s{sHw}, 2560")
        a(f"s_add_u32 s{sT0}, s{sT0}, {TRO}")
        a(f"v_mul_u32_u24 v{T + 2}, 80, v{T}")
        a(f"v_lshl_add_u32 v{T + 2}, v{T + 1}, 3, v{T + 2}")
        a(f"v_add_u32 v{vTw}, s{sT0}, v{T + 2}")
        a(f"v_lshrrev_b32 v{T + 2}, 2, v{vLane}")
        a(f"v_and_b32 v{T + 3}, 3, v{vLane}")
        a(f"v_lshlrev_b32 v{T + 3}, 4, v{T + 3}")
        a(f"v_mad_u32_u24 v{T + 4}, v{T + 2}, 64, v{T + 3}")
        a(f"v_lshl_add_u32 v{T + 4}, v{T + 2}, 4, v{T + 4}")
        a(f"v_add_u32 v{vTr}, s{sT0}, v{T + 4}")
        a(f"v_lshl_add_u32 v{vOut}, v{T + 2}, 10, v{T + 3}")
        a(f"s_lshl_b32 s36, s33, 15")
        a(f"s_lshl_b32 s37, s34, 6")
        a(f"s_add_u32 s36, s36, s37")
        a(f"s_add_u32 s37, s36, 16384")
        srd(a, sIO, KO, 2048 * 1024)
    a(f"s_lshl_b32 s40, s{sRb}, 8")
    a(f"s_add_u32 s40, s40, {F2 if k3 else F4}")
    poll(a, 40, T + 6, uid, 64 if k3 else 30)
    first = True
    for st in range(NST):
        a("s_barrier")
        if st == 0:
            stamp(a)
        F = FR[st & 1]
        n = min(4, KS - 4 * st)
        tk = []
        for k in range(n):
            a.lg(f"ds_read_b128 {vr(F + 8 * k, 4)}, v{vAr[0]} offset:{(st % NA) * 8192 + k * 1024}")
            for half in range(2):
                reg, off = wl.at((st % NW) * 8192 + k * 2048 + half * 1024)
                t = a.lg(f"ds_read_b64_tr_b16 {vr(F + 8 * k + 4 + 2 * half, 2)}, {reg} offset:{off}")
            tk.append(t)
        if st == RST:
            for e in range(2):
                tk.append(a.lg(f"ds_read_b128 {vr(F + 32 + 4 * e, 4)}, v{vRr[e]}"))
        for k in range(n):
            a.wait(lg=tk[k])
            a(f"v_mfma_f32_32x32x16_bf16 {vr(acc, 16)}, {vr(F + 8 * k + 4, 4)}, {vr(F + 8 * k, 4)}, {'0' if first else vr(acc, 16)}")
            first = False
        if st == RST:
            for e in range(2):
                a.wait(lg=tk[n + e])
                a(f"v_mfma_f32_32x32x16_bf16 {vr(acc, 16)}, {vr(ID + 4 * e, 4)}, {vr(F + 32 + 4 * e, 4)}, {vr(acc, 16)}")
    stamp(a)
    a("s_nop 11")
    P = 32
    for i in range(8):
        a(f"v_cvt_pk_bf16_f32 v{P + i}, v{acc + 2 * i}, v{acc + 2 * i + 1}")
    if k3:
        stores(a, [f"buffer_store_dwordx4 {vr(P, 4)}, v{vL16}, {sr(sWS, 4)}, s36 offen",
                   f"buffer_store_dwordx4 {vr(P + 4, 4)}, v{vL16}, {sr(sWS, 4)}, s36 offen offset:1024"])
        a(f"v_dot2_f32_bf16 v{T}, v{P}, s41, 0")
        a(f"v_dot2_f32_bf16 v{T + 1}, v{P}, v{P}, 0")
        for i in range(1, 8):
            a(f"v_dot2_f32_bf16 v{T}, v{P + i}, s41, v{T}")
            a(f"v_dot2_f32_bf16 v{T + 1}, v{P + i}, v{P + i}, v{T + 1}")
        a("s_nop 2")
        a(f"v_mov_b32 v{T + 2}, v{T}")
        a(f"v_mov_b32 v{T + 3}, v{T + 1}")
        a("s_nop 0")
        a(f"v_permlane32_swap_b32 v{T}, v{T + 2}")
        a(f"v_permlane32_swap_b32 v{T + 1}, v{T + 3}")
        a("s_nop 0")
        a(f"v_add_f32 v{T}, v{T}, v{T + 2}")
        a(f"v_add_f32 v{T + 1}, v{T + 1}, v{T + 3}")
        a("s_mov_b32 exec_hi, 0")
        stores(a, [f"buffer_store_dwordx2 {vr(T, 2)}, v{vOut}, {sr(sWS, 4)}, s37 offen"])
        a("s_mov_b64 exec, -1")
        a("s_barrier")
        publish(a, 55, T + 4)
    else:
        for g in range(4):
            a.lg(f"ds_write_b64 v{vTw}, {vr(P + 2 * g, 2)} offset:{g * 16}")
        a.wait_all(vm=False)
        t0 = a.lg(f"ds_read_b128 {vr(P + 8, 4)}, v{vTr}")
        t1 = a.lg(f"ds_read_b128 {vr(P + 12, 4)}, v{vTr} offset:{16 * 80}")
        a.wait(lg=t0)
        a.vm(f"buffer_store_dwordx4 {vr(P + 8, 4)}, v{vOut}, {sr(sIO, 4)}, s36 offen")
        a.wait(lg=t1)
        a.vm(f"buffer_store_dwordx4 {vr(P + 12, 4)}, v{vOut}, {sr(sIO, 4)}, s37 offen")
    stamp(a)


def phase4(a, h):
    sG = 16
    sRb, sCg = 25, 26
    sWL, sAct = 32, 33
    NW, NX, NST = 9, 5, 16
    XO = NW * 12288
    CSO = XO + NX * 8192
    XEO = CSO + 2048
    for b in (a, h):
        b(f"s_and_b32 s{sT0}, s2, 7")
        b(f"s_lshl_b32 s{sT0}, s{sT0}, 1")
        b(f"s_bfe_u32 s{sT1}, s2, 0x10003")
        b(f"s_add_u32 s{sRb}, s{sT0}, s{sT1}")
        b(f"s_lshr_b32 s{sCg}, s2, 4")
    a("s_cmp_ge_u32 s2, 240")
    a("s_cbranch_scc1 L_p4_skip_c")
    h("s_cmp_ge_u32 s2, 240")
    h("s_cbranch_scc1 L_p4_skip_l")
    vWoff = [3, 4, 5]
    vT = 16
    h(f"s_lshl_b32 s{sAct}, s{sRb}, 2")
    h(f"s_add_u32 s{sAct}, s{sAct}, s{sHw}")
    h(f"s_lshl_b32 s38, s{sAct}, 8")
    h(f"s_add_u32 s38, s38, {ST}")
    h(f"s_lshl_b32 s{sAct}, s{sAct}, 15")
    h(f"s_add_u32 s{sAct}, s{sAct}, {HF}")
    h(f"s_lshr_b32 s34, s{sHw}, 1")
    h(f"s_and_b32 s35, s{sHw}, 1")
    h(f"s_mul_i32 s{sT0}, s34, {16 * 2752}")
    h(f"s_mul_i32 s{sT1}, s{sCg}, 192")
    h(f"s_add_u32 s{sT0}, s{sT0}, s{sT1}")
    h(f"v_and_b32 v{vT + 3}, 2, v{vLane}")
    h(f"v_lshlrev_b32 v{vT + 3}, 5, v{vT + 3}")
    h(f"v_sub_u32 v{vT + 3}, 32, v{vT + 3}")
    h(f"v_mul_lo_u32 v{vT + 3}, v{vT + 3}, s35")
    h(f"v_add_u32 v{vT + 3}, s{sT0}, v{vT + 3}")
    for i in range(3):
        h(f"v_add_u32 v{vT}, {64 * i}, v{vLane}")
        h(f"v_mul_u32_u24 v{vT + 1}, 171, v{vT}")
        h(f"v_lshrrev_b32 v{vT + 1}, 11, v{vT + 1}")
        h(f"v_mul_u32_u24 v{vT + 2}, {2752 - 192}, v{vT + 1}")
        h(f"v_add3_u32 v{vWoff[i]}, v{vL16}, v{vT + 2}, v{vT + 3}")
    h(f"s_mul_i32 s{sWL}, s{sHw}, 3072")
    h(f"s_lshl_b32 s36, s{sHw}, 11")
    h(f"s_add_u32 s36, s36, {XO}")
    h("s_cmp_eq_u32 s35, 0")
    h(f"s_cselect_b32 s{sG}, s{KG}, s{KU}")
    h(f"s_cselect_b32 s{sG + 1}, s{KG + 1}, s{KU + 1}")
    h(f"s_mov_b32 s{sG + 2}, {hx(512 * 2752)}")
    h(f"s_mov_b32 s{sG + 3}, 0x00020000")
    dr = Drip(h)

    def issue_w(key):
        st = key[1] if isinstance(key, tuple) else key
        for i in range(3):
            pre = [f"s_add_u32 m0, s{sWL}, {(st % NW) * 12288}", f"s_mov_b32 s42, {st * 32 * 2752}"] if i == 0 else []
            dr.add(key, pre, f"buffer_load_dwordx4 v{vWoff[i]}, {sr(sG, 4)}, s42 offen offset:{i * 1024} lds")

    def issue_x(st):
        for i in range(2):
            pre = [f"s_add_u32 m0, s36, {(st % NX) * 8192}", f"s_add_u32 s43, s{sAct}, {st * 2048}"] if i == 0 else []
            dr.add(st, pre, f"buffer_load_dwordx4 v{vL16}, {sr(sWS, 4)}, s43 offen offset:{i * 1024} sc1 lds")

    PRE = OPT["p4_pre"]
    for st in range(PRE):
        issue_w(st)
    dr.emit(100)
    nxt_w = PRE
    vPf, vPd = 13, 100
    srd(h, 44, KD, 1376 * 1024)
    h(f"s_lshr_b32 s{sT0}, s2, 3")
    h(f"s_lshl_b32 s{sT0}, s{sT0}, 2")
    h(f"s_add_u32 s{sT0}, s{sT0}, s{sHw}")
    h(f"s_lshl_b32 s{sT0}, s{sT0}, 13")
    h(f"v_lshlrev_b32 v{vPf}, 7, v{vLane}")
    h(f"v_add_u32 v{vPf}, s{sT0}, v{vPf}")
    h(f"v_add_u32 v15, {120 * 8192}, v{vPf}")
    h(f"v_lshrrev_b32 v{vT + 3}, 5, v{vLane}")
    h(f"v_and_b32 v{vT + 4}, 31, v{vLane}")
    h(f"v_lshlrev_b32 v{vT + 4}, 3, v{vT + 4}")
    h(f"v_lshl_add_u32 v{vT + 4}, v{vT + 3}, 17, v{vT + 4}")
    h(f"s_lshl_b32 s{sT0}, s{sHw}, 11")
    h(f"s_add_u32 s{sT0}, s{sT0}, {XEO}")
    h(f"v_add_u32 v{vT + 5}, s{sT0}, v{vL16}")
    h(f"v_lshl_add_u32 v{vT + 6}, v{vLane}, 3, s{sT0}")
    stamp(h)
    h("s_barrier")
    stamp(h)
    SP = 32
    vS, vQ, vM, vA = 60, 61, 62, 64
    AHEAD = OPT["p4_a"]
    assert AHEAD < NX
    nxt_x = 0
    for st in range(NST):
        while nxt_x <= min(st + AHEAD, NST - 1):
            if nxt_x >= NX and nxt_x - NX > st - 2:
                break
            issue_x(nxt_x)
            nxt_x += 1
        dr.emit(100)
        wtok = dict(dr.tok)
        for _ in range(OPT["p4_wr"]):
            if nxt_w < NST and (nxt_w < NW or nxt_w - NW <= st - 2):
                assert nxt_w >= nxt_x or True
                issue_w(("w", nxt_w))
                nxt_w += 1
        dr.emit(100)
        if 2 <= st <= 5:
            for i in (2 * (st - 2), 2 * (st - 2) + 1):
                h(f"s_add_u32 s{sT0}, s38, {i * 16384}")
                dr.tok["st"] = h.vm(f"buffer_load_dwordx2 {vr(SP + 2 * i, 2)}, v{vT + 4}, {sr(sWS, 4)}, s{sT0} offen sc1")
        h.wait(vm=max(dr.tok[st], dr.tok.get(("w", st), -1)))
        assert st < PRE or ("w", st) in dr.tok
        if st == 9:
            h.wait(vm=dr.tok["st"])
            h(f"v_add_f32 v{vS}, v{SP}, v{SP + 2}")
            h(f"v_add_f32 v{vQ}, v{SP + 1}, v{SP + 3}")
            for i in range(2, 8):
                h(f"v_add_f32 v{vS}, v{vS}, v{SP + 2 * i}")
                h(f"v_add_f32 v{vQ}, v{vQ}, v{SP + 2 * i + 1}")
        if st == 10:
            half_sum(h, vS, vT)
            half_sum(h, vQ, vT)
            h(f"v_mul_f32 v{vM}, {hx(f2u(-1.0 / 512))}, v{vS}")
            h(f"v_mul_f32 v{vQ}, {hx(f2u(1.0 / 512))}, v{vQ}")
            h(f"v_fma_f32 v{vQ}, -v{vM}, v{vM}, v{vQ}")
            h(f"v_max_f32 v{vQ}, 0, v{vQ}")
            h(f"v_add_f32 v{vQ}, {hx(f2u(1e-5))}, v{vQ}")
        if st == 11:
            h(f"v_rsq_f32 v{vA}, v{vQ}")
            split_hi_lo(h, vM, 68, vT, vT + 1)
            h(f"v_mul_f32 v{vA + 1}, v{vQ}, v{vA}")
            h(f"v_mul_f32 v{vA}, {hx(f2u(-LOG2E))}, v{vA}")
            h(f"v_cvt_pk_bf16_f32 v69, v{vT}, 0")
            h("v_mov_b32 v70, 0")
            h("v_mov_b32 v71, 0")
            h.lg(f"ds_write_b128 v{vT + 5}, v[68:71]")
            h.lg(f"ds_write_b64 v{vT + 6}, {vr(vA, 2)} offset:1024")
        if st == 12:
            h.wait_all(vm=False)
        h("s_barrier")
        if st == OPT["p4_pf"]:
            h.vm(f"buffer_load_dword v{vPd}, v{vPf}, s[44:47], 0 offen")
        if st == OPT["p4_pf"] + 2:
            h.vm(f"buffer_load_dword v{vPd}, v15, s[44:47], 0 offen")
    h("s_barrier")
    h.label("L_p4_skip_l")

    sWr2, sWc = 36, 37
    vWrd, vWrdO, vXa, vCw, vCr, vEr = [3, 4], [5, 6], 7, 8, 9, 10
    ONES, vT, CS, ACC = 12, 16, 20, 32
    XF, WF = [128, 136], [144, 156]
    XE, AS = XF[0], ONES
    t = CS
    a(f"s_lshr_b32 s{sWr2}, s{sHw}, 1")
    a(f"s_and_b32 s{sWc}, s{sHw}, 1")
    a(f"s_lshl_b32 s34, s{sRb}, 1")
    a(f"s_add_u32 s34, s34, s{sWr2}")
    a(f"v_lshrrev_b32 v{t + 3}, 5, v{vLane}")
    a(f"v_bfe_u32 v{t}, v{vLane}, 2, 2")
    a(f"v_lshl_add_u32 v{t}, v{t + 3}, 2, v{t}")
    a(f"v_mul_u32_u24 v{t}, 192, v{t}")
    a(f"v_and_b32 v{t + 1}, 3, v{vLane}")
    a(f"v_lshl_add_u32 v{t}, v{t + 1}, 3, v{t}")
    a(f"s_mul_i32 s{sT0}, s{sWc}, 96")
    a(f"v_add_u32 v{t}, s{sT0}, v{t}")
    a(f"v_bfe_u32 v{t + 1}, v{vLane}, 4, 1")
    a(f"s_lshl_b32 s{sT0}, s{sWc}, 6")
    a(f"s_sub_u32 s{sT1}, {3072 + 32}, s{sT0}")
    a(f"s_add_u32 s{sT0}, {3072 - 32}, s{sT0}")
    a(f"v_mad_u32_u24 v{vWrd[0]}, v{t + 1}, s{sT1}, v{t}")
    a(f"v_mad_u32_u24 v{vWrdO[0]}, v{t + 1}, s{sT0}, v{t}")
    wl = [LdsAddr(a, vWrd), LdsAddr(a, vWrdO)]
    wl[0].setup(a)
    wl[1].setup(a)
    a(f"s_lshl_b32 s{sT0}, s{sWr2}, 12")
    a(f"s_add_u32 s{sT0}, s{sT0}, {XO}")
    a(f"v_add_u32 v{vXa}, s{sT0}, v{vL16}")
    a(f"v_xor_b32 v{t}, v{t + 1}, v{vLane}")
    a(f"v_and_b32 v{t}, 1, v{t}")
    a(f"v_cmp_eq_u32 vcc, 0, v{t}")
    a(f"v_mov_b32 v{t}, 0x3f803f80")
    a("s_nop 0")
    for r in range(4):
        a(f"v_cndmask_b32 v{ONES + r}, 0, v{t}, vcc")
    a(f"s_lshl_b32 s{sT0}, s{sWc}, 1")
    a(f"s_add_u32 s{sT1}, s{sT0}, s{sWr2}")
    a(f"s_mul_i32 s{sT1}, s{sT1}, 384")
    a(f"s_add_u32 s{sT1}, s{sT1}, {CSO}")
    a(f"v_and_b32 v{t}, 1, v{vLane}")
    a(f"v_lshlrev_b32 v{t}, 6, v{t}")
    a(f"v_and_b32 v{t + 1}, 48, v{vLane}")
    a(f"v_add3_u32 v{vCw}, v{t}, v{t + 1}, s{sT1}")
    a(f"s_mul_i32 s{sT0}, s{sT0}, 384")
    a(f"s_add_u32 s{sT0}, s{sT0}, {CSO}")
    a(f"v_mul_u32_u24 v{t}, 384, v{t + 3}")
    a(f"v_and_b32 v{t + 1}, 31, v{vLane}")
    a(f"v_lshl_add_u32 v{t}, v{t + 1}, 2, v{t}")
    a(f"v_add_u32 v{vCr}, s{sT0}, v{t}")
    a(f"s_lshl_b32 s55, s34, 8")
    a(f"s_lshl_b32 s35, s{sCg}, 1")
    a(f"s_add_u32 s35, s35, s{sWc}")
    a(f"s_lshl_b32 s{sT0}, s35, 2")
    a(f"s_add_u32 s55, s55, s{sT0}")
    a(f"s_add_u32 s55, s55, {F4}")
    a(f"s_mul_i32 s34, s34, {2 * 86 * 1024}")
    a(f"s_mul_i32 s38, s35, 3")
    a(f"s_lshl_b32 s35, s38, 10")
    a("s_add_u32 s34, s34, s35")
    a(f"s_add_u32 s34, s34, {GF}")
    a(f"s_add_u32 s35, s34, {86 * 1024}")
    a(f"s_lshl_b32 s{sT0}, s{sWr2}, 12")
    a(f"s_add_u32 s{sT0}, s{sT0}, {XEO}")
    a(f"v_add_u32 v{vEr}, s{sT0}, v{vL16}")
    a(f"v_lshl_add_u32 v{vEr + 1}, v{vLane}, 3, s{sT0}")
    for r in range(12):
        a(f"v_mov_b32 v{CS + r}, 0")

    def reads(s):
        st, ss = divmod(s, 2)
        W = []
        for j in range(3):
            for half in range(2):
                reg, off = wl[j & 1].at((st % NW) * 12288 + ss * 6144 + half * 8 * 192 + j * 32)
                W.append(f"ds_read_b64_tr_b16 {vr(WF[s & 1] + 4 * j + 2 * half, 2)}, {reg} offset:{off}")
        X = [f"ds_read_b128 {vr(XF[s & 1] + 4 * i, 4)}, v{vXa} offset:{(st % NX) * 8192 + i * 2048 + ss * 1024}"
             for i in range(2)]
        return [X[0], W[0], W[1], X[1], W[2], W[3], W[4], W[5]]

    rt = {}

    def emit_reads(b, s, lo, hi):
        ops = reads(s)
        for k in range(lo, min(hi, 8)):
            rt[(s, k)] = b.lg(ops[k])

    def main(b, s, m):
        j, i = divmod(m, 2)
        d = ACC + 16 * m
        c = "0" if s == 0 else vr(d, 16)
        b(f"v_mfma_f32_32x32x16_bf16 {vr(d, 16)}, {vr(WF[s & 1] + 4 * j, 4)}, {vr(XF[s & 1] + 4 * i, 4)}, {c}")

    def csum(b, s, j):
        b(f"v_mfma_f32_16x16x32_bf16 {vr(CS + 4 * j, 4)}, {vr(WF[s & 1] + 4 * j, 4)}, {vr(ONES, 4)}, {vr(CS + 4 * j, 4)}")

    a(f"s_lshl_b32 s40, s{sRb}, 8")
    a(f"s_add_u32 s40, s40, {F3}")
    poll(a, 40, vT, "p4")
    a("s_barrier")
    stamp(a)
    emit_reads(a, 0, 0, 8)
    a(f"s_cmp_eq_u32 s{sWr2}, 1")
    a("s_cbranch_scc1 L_p4_odd")
    cuts = [0, 2, 4, 6, 8, 8, 8]
    need = [3, 3, 5, 5, 7, 7]
    rt0 = dict(rt)
    odd = fork(a)
    odd.label("L_p4_odd")
    for par, b in ((0, a), (1, odd)):
        rt.clear()
        rt.update(rt0)
        for s in range(31):
            if s % 2 == 1:
                b.wait(lg=rt[(s, 7)])
                b("s_barrier")
            for m in range(6):
                b.wait(lg=rt[(s, need[m])])
                if m % 2 == 0 and s % 2 == par:
                    csum(b, s, m // 2)
                main(b, s, m)
                emit_reads(b, s + 1, cuts[m], cuts[m + 1])
        b.wait_all(vm=False)
        if par == 1:
            for j in range(3):
                csum(b, 31, j)
    odd("s_branch L_p4_join")
    a.label("L_p4_join")
    main(a, 31, 0)
    for j in range(3):
        a(f"v_mov_b32 v{WF[0] + 4 * j + 2}, 0")
        a(f"v_mov_b32 v{WF[0] + 4 * j + 3}, 0")
    main(a, 31, 1)
    a("s_mov_b32 exec_lo, 0x00030003")
    a("s_mov_b32 exec_hi, 0x00030003")
    for j in range(3):
        a.lg(f"ds_write_b128 v{vCw}, {vr(CS + 4 * j, 4)} offset:{j * 128}")
    a("s_mov_b64 exec, -1")
    for i in range(2):
        a.lg(f"ds_read_b128 {vr(XE + 4 * i, 4)}, v{vEr} offset:{i * 2048}")
        a.lg(f"ds_read_b64 {vr(AS + 2 * i, 2)}, v{vEr + 1} offset:{i * 2048 + 1024}")
    main(a, 31, 2)
    main(a, 31, 3)
    a.wait_all(vm=False)
    a("s_barrier")
    for j in range(3):
        rt[("c", j)] = a.lg(f"ds_read_b32 v{vT + 1 + j}, v{vCr} offset:{j * 128}")
    main(a, 31, 4)
    main(a, 31, 5)
    for j in range(3):
        w = WF[0] + 4 * j
        a.wait(lg=rt[("c", j)])
        a(f"v_cvt_pk_bf16_f32 v{w + 1}, v{vT + 1 + j}, 0")
        a(f"v_lshlrev_b32 v{vT}, 16, v{w + 1}")
        a(f"v_sub_f32 v{vT}, v{vT + 1 + j}, v{vT}")
        a(f"v_cvt_pk_bf16_f32 v{w}, v{vT + 1 + j}, v{vT}")
    for j in range(3):
        for i in range(2):
            d = ACC + 32 * j + 16 * i
            a(f"v_mfma_f32_32x32x16_bf16 {vr(d, 16)}, {vr(WF[0] + 4 * j, 4)}, {vr(XE + 4 * i, 4)}, {vr(d, 16)}")
    stamp(a)
    a("s_nop 4")
    for j in range(3):
        a(f"s_cmp_ge_u32 s38, {86 - j}")
        a("s_cbranch_scc1 L_p4_pub")
        Gs = [(ACC + 32 * j + 16 * i + r, i) for i in range(2) for r in range(8)]
        for g, i in Gs[::2]:
            a(f"v_pk_mul_f32 {vr(g, 2)}, {vr(g, 2)}, {vr(AS + 2 * i, 2)} op_sel_hi:[1,0]")
        for g, i in Gs:
            a(f"v_exp_f32 v{g}, v{g}")
        for g, i in Gs[::2]:
            a(f"v_pk_fma_f32 {vr(g, 2)}, {vr(g, 2)}, {vr(AS + 2 * i, 2)}, {vr(AS + 2 * i, 2)} op_sel:[0,1,1] op_sel_hi:[1,1,1]")
        for g, i in Gs:
            a(f"v_rcp_f32 v{g}, v{g}")
        for g, i in Gs[::2]:
            a(f"v_pk_mul_f32 {vr(g, 2)}, {vr(g, 2)}, {vr(g + 8, 2)}")
        o = ACC + 32 * j + 8
        for i in range(8):
            a(f"v_cvt_pk_bf16_f32 v{o + i}, v{Gs[2 * i][0]}, v{Gs[2 * i + 1][0]}")
        stores(a, [f"buffer_store_dwordx4 {vr(o, 4)}, v{vL16}, {sr(sWS, 4)}, s34 offen offset:{j * 1024}",
                   f"buffer_store_dwordx4 {vr(o + 4, 4)}, v{vL16}, {sr(sWS, 4)}, s35 offen offset:{j * 1024}"])
    a.label("L_p4_pub")
    a("s_nop 7")
    stamp(a)
    publish(a, 55, vT)
    a.label("L_p4_skip_c")
    return odd


def gen_fused():
    name = "kb_fused_kernel"
    a = Asm()
    a.raw(f".globl {name}")
    a.raw(".p2align 8")
    a.raw(f".type {name},@function")
    a.label(name)
    a("s_cmp_ge_u32 s2, 256")
    a(f"s_cbranch_scc1 L_{name}_done")
    stamp_real(a)
    stamp(a)
    ld2, fb = phase2(a, name)
    a(f"s_cmp_ge_u32 s{sWave}, 4")
    a("s_cbranch_scc0 L_compute")
    h = fork(a)
    c = fork(a)
    c.label("L_compute")
    phase_res(c, h, True, pre_publish=55)
    odd = phase4(c, h)
    phase_res(c, h, False)
    stamp_flush(h)
    h("s_endpgm")
    stamp_flush(c)
    c.label(f"L_{name}_done")
    c("s_endpgm")
    text = a.text() + h.text() + c.text() + odd.text() + ld2.text() + fb.text()
    return name, text, descriptor(name, 168, 0, sgpr=102), (256, 576, 163840)


def build():
    OPT["zero_flags"] = FLG
    ks = [G.gen_k1(), gen_fused()]
    ref = open(f"cdna_kernels/{NAME}.s.ref").read().split("\n")
    head = [l for l in ref if l.startswith(";") and "@launch" not in l and "Override launch" not in l
            and "grid=ceil" not in l]
    out = "\n".join(head) + "\n"
    for name, _, _, (g, b, lds) in ks:
        out += f"; @launch kernel={name} grid=({g},1,1) block=({b},1,1) lds={lds}\n"
    out += '.amdgcn_target "amdgcn-amd-amdhsa--gfx950"\n.text\n'
    bad = 0
    for name, text, _, _ in ks:
        bad += check_hazards(text, name)
        out += text
    out += "L_code_end:\n"
    out += '.section .rodata,"a"\n'
    for name, _, desc, _ in ks:
        out += ".p2align 6\n" + desc
    if bad:
        print("hazards:", bad)
    return out


if __name__ == "__main__":
    path = sys.argv[1] if len(sys.argv) > 1 else f"cdna_kernels/{NAME}.s"
    for arg in sys.argv[2:]:
        if arg == "stamps":
            G.STAMPS = True
        else:
            k_, v_ = arg.split("=")
            OPT[k_] = int(v_)
    open(path, "w").write(build())
    print("wrote", path)
```

```python
import math
import struct
import sys

from asmlib import Asm, check_hazards

NAME = "sequential_preLN__mha_block__glu_gated_glu__prompt"

MB = 1 << 20
QF = 0
KVF = 2 * MB
OF = 6 * MB
HF = 8 * MB
ST = 10 * MB
GF = 12 * MB
WS_SIZE = 32 * MB

LOG2E = 1.4426950408889634
OPT = dict(pf_code=True, pf_w=True, k1_pre=2, k1_drip=0, k4_first=1, k4_prio=1, k3_d=2, k5_d=3, k4_d=3, k4_g=1, k1_d=3, k1_g=1, k1_touch=1, k1_t=1, k2_map=0, k2_oz=1, k2_pre=2, k2_prio=1, k2_b3=0, k4_pf=1)


def f2u(x):
    return struct.unpack("<I", struct.pack("<f", x))[0]


def hx(x):
    return "0x%08x" % (x & 0xFFFFFFFF)


def vr(b, n):
    return f"v[{b}:{b + n - 1}]"


def ar(b, n):
    return f"a[{b}:{b + n - 1}]"


def sr(b, n):
    return f"s[{b}:{b + n - 1}]"


def srd(a, d, base, size):
    a(f"s_mov_b32 s{d}, s{base}")
    a(f"s_mov_b32 s{d + 1}, s{base + 1}")
    a(f"s_mov_b32 s{d + 2}, {hx(size)}")
    a(f"s_mov_b32 s{d + 3}, 0x00020000")


def interleave(main, fill, lead=0):
    out = []
    fill = list(fill)
    out += fill[:lead]
    fill = fill[lead:]
    n = len(main)
    per = len(fill) / n if n else 0
    used = 0
    for i, m in enumerate(main):
        out.append(m)
        upto = int(round(per * (i + 1)))
        out += fill[used:upto]
        used = upto
    out += fill[used:]
    return out


def kernel_begin(a, name, nwg):
    a.raw(f".globl {name}")
    a.raw(".p2align 8")
    a.raw(f".type {name},@function")
    a.label(name)
    a(f"s_cmp_ge_u32 s2, {nwg}")
    a(f"s_cbranch_scc1 L_{name}_done")
    dbgt_begin(a)
    stamp(a, real=True)
    stamp(a)


STAMPS = False
SBASE = 60
DBGO = 20 * MB


def stamp(a, real=False):
    if not STAMPS:
        return
    i = getattr(a, "nstamp", 0)
    a.nstamp = i + 1
    assert i < 16
    a(f"{'s_memrealtime' if real else 's_memtime'} s[{SBASE + 2 * i}:{SBASE + 2 * i + 1}]")
    a.wait_all(vm=False)


def stamp_flush(a, kidx, sWS, sWave):
    dbgt_end(a, kidx, sWS)
    if not STAMPS:
        return
    a.wait_all()
    stamp(a)
    stamp(a, real=True)
    a("s_mov_b64 exec, -1")
    a("s_lshl_b32 s58, s2, 3")
    a(f"s_add_u32 s58, s58, s{sWave}")
    a("s_lshl_b32 s58, s58, 6")
    a(f"s_add_u32 s58, s58, {DBGO + kidx * MB}")
    a("v_mov_b32 v1, 0")
    for i in range(a.nstamp):
        a(f"v_mov_b32 v2, s{SBASE + 2 * i}")
        a(f"buffer_store_dword v2, v1, s[{sWS}:{sWS + 3}], s58 offen offset:{4 * i}")
    a.wait_all()


DBGT = False


def dbgt_begin(a):
    if not DBGT:
        return
    a("s_memrealtime s[90:91]")
    a("s_load_dwordx2 s[92:93], s[0:1], 64")


def dbgt_end(a, kidx, sWS):
    if not DBGT:
        return
    a.wait_all()
    a("s_cmp_lg_u32 s2, 0")
    a(f"s_cbranch_scc1 L_dbgt_{kidx}")
    a("s_memrealtime s[88:89]")
    a.wait_all()
    a("s_mov_b64 exec, -1")
    a("v_cmp_eq_u32 vcc, 0, v0")
    a("s_nop 4")
    a("s_and_b64 exec, exec, vcc")
    a(f"s_cbranch_execz L_dbgt_{kidx}")
    a(f"v_mov_b32 v1, {DBGO}")
    a("v_mov_b32 v2, s90")
    a("v_mov_b32 v3, s88")
    a(f"buffer_store_dwordx2 v[2:3], v1, s[{sWS}:{sWS + 3}], 0 offen offset:{8 * kidx}")
    if kidx == 4:
        a(f"buffer_load_dwordx4 v[4:7], v1, s[{sWS}:{sWS + 3}], 0 offen")
        a(f"buffer_load_dwordx4 v[8:11], v1, s[{sWS}:{sWS + 3}], 0 offen offset:16")
        a("s_mov_b32 s94, 256")
        a("s_mov_b32 s95, 0x00020000")
        a("v_mov_b32 v1, 0")
        a.wait_all()
        if OPT.get("spin"):
            a("v_readfirstlane_b32 s87, v4")
            a.label("L_dbg_spin")
            a("s_memrealtime s[88:89]")
            a("s_waitcnt lgkmcnt(0)")
            a("s_sub_u32 s88, s88, s87")
            a(f"s_cmp_lt_u32 s88, {OPT['spin']}")
            a("s_cbranch_scc1 L_dbg_spin")
        for r in (5, 6, 7, 8, 9, 10, 11, 2, 3):
            a(f"v_sub_u32 v{r}, v{r}, v4")
        a("buffer_store_dwordx4 v[4:7], v1, s[92:95], 0 offen")
        a("buffer_store_dwordx4 v[8:11], v1, s[92:95], 0 offen offset:16")
        a("buffer_store_dwordx2 v[2:3], v1, s[92:95], 0 offen offset:32")
    a.wait_all()
    a.label(f"L_dbgt_{kidx}")


def kernel_end(a, name):
    a.label(f"L_{name}_done")
    a("s_endpgm")


def descriptor(name, vgpr, agpr, sgpr=96):
    acc = (vgpr + 3) // 4 * 4
    return f""".amdhsa_kernel {name}
  .amdhsa_next_free_vgpr {acc + agpr}
  .amdhsa_next_free_sgpr {sgpr}
  .amdhsa_accum_offset {acc}
  .amdhsa_group_segment_fixed_size 0
  .amdhsa_kernarg_size 80
  .amdhsa_user_sgpr_count 2
  .amdhsa_user_sgpr_kernarg_segment_ptr 1
  .amdhsa_system_sgpr_workgroup_id_x 1
.end_amdhsa_kernel
"""


def normalize_ops(x, t, vR, vNB, sMask):
    ops = []
    for i in range(4):
        ops.append(f"v_lshlrev_b32 v{t + 2 * i}, 16, v{x + i}")
        ops.append(f"v_and_b32 v{t + 2 * i + 1}, s{sMask}, v{x + i}")
    for i in range(8):
        ops.append(f"v_fma_f32 v{t + i}, v{t + i}, v{vR}, v{vNB}")
    for i in range(4):
        ops.append(f"v_cvt_pk_bf16_f32 v{x + i}, v{t + 2 * i}, v{t + 2 * i + 1}")
    return ops


def half_sum(a, r, t):
    a(f"v_mov_b32 v{t}, v{r}")
    a("s_nop 1")
    a(f"v_permlane32_swap_b32 v{r}, v{t}")
    a("s_nop 1")
    a(f"v_add_f32 v{r}, v{r}, v{t}")


def finish_stats(a, vS, vQ, vR, vNB, t, scale=1.0):
    a(f"v_mul_f32 v{vS}, {hx(f2u(1.0 / 512))}, v{vS}")
    a(f"v_mul_f32 v{vQ}, {hx(f2u(1.0 / 512))}, v{vQ}")
    a(f"v_fma_f32 v{t}, -v{vS}, v{vS}, v{vQ}")
    a(f"v_max_f32 v{t}, 0, v{t}")
    a(f"v_add_f32 v{t}, {hx(f2u(1e-5))}, v{t}")
    a(f"v_rsq_f32 v{vR}, v{t}")
    a("s_nop 0")
    if scale != 1.0:
        a(f"v_mul_f32 v{vR}, {hx(f2u(scale))}, v{vR}")
    a(f"v_mul_f32 v{vNB}, -v{vS}, v{vR}")


class Drip:
    def __init__(self, a):
        self.a = a
        self.q = []
        self.tok = {}

    def add(self, key, pre, ins):
        self.q.append((key, pre, ins))

    def emit(self, n=1):
        for _ in range(n):
            if not self.q:
                return
            key, pre, ins = self.q.pop(0)
            for p in pre:
                self.a(p)
            self.tok[key] = self.a.vm(ins)

    def through(self, key):
        while any(k == key for k, _, _ in self.q):
            self.emit()

    def wait(self, key):
        self.through(key)
        self.a.wait(vm=self.tok[key])


def code_prefetch(a, label, sPC, vOff, vDst, uid):
    a(f"s_getpc_b64 s[{sPC}:{sPC + 1}]")
    a.label(f"L_pc_{uid}")
    a(f"s_add_u32 s{sPC}, s{sPC}, {label}-L_pc_{uid}")
    a(f"s_addc_u32 s{sPC + 1}, s{sPC + 1}, ({label}-L_pc_{uid})>>32")
    a(f"v_min_u32 v{vOff}, L_code_end-{label}-4, v{vOff}")
    return a.vm(f"global_load_dword v{vDst}, v{vOff}, s[{sPC}:{sPC + 1}]")


class LdsAddr:
    def __init__(self, a, regs):
        self.regs = regs

    def setup(self, a):
        for j in range(1, len(self.regs)):
            a(f"v_add_u32 v{self.regs[j]}, {hx(j * 65536)}, v{self.regs[0]}")

    def at(self, off):
        return f"v{self.regs[off >> 16]}", off & 0xFFFF


def fork(a):
    b = Asm()
    b.vm_issued, b.vm_done, b.lg_issued, b.lg_done = a.vm_issued, a.vm_done, a.lg_issued, a.lg_done
    b.nstamp = getattr(a, "nstamp", 0)
    return b


def split_hi_lo(a, x, hi, lo, t):
    a(f"v_cvt_pk_bf16_f32 v{hi}, v{x}, v{x}")
    a(f"v_lshlrev_b32 v{t}, 16, v{hi}")
    a(f"v_sub_f32 v{lo}, v{x}, v{t}")


def gen_k1():
    name = "k1_qkv_kernel"
    a = Asm()
    kernel_begin(a, name, 256)
    sX, sW, sWS = 12, 16, 20
    sWave, sWr, sWc, sCg, sRb, sHw = 24, 25, 26, 27, 28, 29
    sT0, sT1, sWL = 30, 31, 32
    sOnes = 41
    vLane, vL16 = 1, 2
    vT = 8
    NSLOT, SLOT, WBASE, NST = 7, 12288, 65536, 16
    CSO = WBASE + NSLOT * SLOT
    XEO = CSO + 2048
    RSO = XEO + 2048
    a("s_load_dwordx4 s[4:7], s[0:1], 0")
    a("s_load_dwordx2 s[8:9], s[0:1], 72")
    a(f"v_and_b32 v{vLane}, 63, v0")
    a(f"v_lshrrev_b32 v7, 6, v0")
    a(f"v_lshlrev_b32 v{vL16}, 4, v{vLane}")
    a(f"v_readfirstlane_b32 s{sWave}, v7")
    a(f"s_and_b32 s{sT0}, s2, 7")
    a(f"s_lshl_b32 s{sT0}, s{sT0}, 2")
    a(f"s_bfe_u32 s{sT1}, s2, 0x20003")
    a(f"s_add_u32 s{sRb}, s{sT0}, s{sT1}")
    a(f"s_lshr_b32 s{sCg}, s2, 5")
    a(f"s_and_b32 s{sHw}, s{sWave}, 3")
    a(f"s_cmp_ge_u32 s{sWave}, 4")
    a(f"s_cbranch_scc0 L_k1_helper_skip")

    h = fork(a)
    h.label("L_k1_helper")
    vWoff, vXg, vSr, vXe, vRs = 3, 4, 6, 20, 21
    vS, vQ, vM, vR = 22, 23, 24, 25
    XB = 32
    h(f"v_lshrrev_b32 v{vT}, 3, v{vLane}")
    h(f"v_and_b32 v{vT + 1}, 7, v{vLane}")
    h(f"v_lshrrev_b32 v{vT + 2}, 1, v{vT}")
    h(f"v_xor_b32 v{vT + 2}, v{vT + 2}, v{vT + 1}")
    h(f"v_lshlrev_b32 v{vT + 2}, 4, v{vT + 2}")
    h(f"v_lshl_add_u32 v{vXg}, v{vT}, 10, v{vT + 2}")
    h(f"v_xor_b32 v{vXg + 1}, 64, v{vXg}")
    h(f"v_add_u32 v{vXg + 1}, {8 * 1024 - 1024}, v{vXg + 1}")
    h(f"s_lshl_b32 s34, s{sRb}, 16")
    h(f"s_lshl_b32 s{sT0}, s{sHw}, 14")
    h(f"s_add_u32 s34, s34, s{sT0}")
    h(f"s_lshl_b32 s36, s{sHw}, 11")
    h(f"v_lshrrev_b32 v{vT + 2}, 2, v{vLane}")
    h(f"v_and_b32 v{vT + 2}, 4, v{vT + 2}")
    h(f"v_xor_b32 v{vT + 2}, v{vT + 2}, v{vT + 1}")
    h(f"v_lshlrev_b32 v{vT + 2}, 4, v{vT + 2}")
    h(f"v_mul_u32_u24 v{vT + 3}, 3072, v{vT}")
    h(f"s_mul_i32 s{sT0}, s{sHw}, {8 * 3072}")
    h(f"s_lshl_b32 s{sT1}, s{sCg}, 7")
    h(f"s_add_u32 s{sT0}, s{sT0}, s{sT1}")
    h(f"v_add3_u32 v{vWoff}, v{vT + 3}, v{vT + 2}, s{sT0}")
    h(f"s_mul_i32 s{sWL}, s{sHw}, 3072")
    h("s_waitcnt lgkmcnt(0)")
    srd(h, sX, 4, 2048 * 1024)
    srd(h, sW, 6, 512 * 3072)
    dr = Drip(h)

    def x_dma(c, key):
        dr.add(key, [f"s_add_u32 m0, s36, {c * 8192}", f"s_add_u32 s43, s34, {c * 128}"],
               f"buffer_load_dwordx4 v{vXg}, {sr(sX, 4)}, s43 offen lds")
        dr.add(key, [], f"buffer_load_dwordx4 v{vXg + 1}, {sr(sX, 4)}, s43 offen offset:1024 lds")

    def issue(st):
        if st < 8:
            x_dma(st, st)
        for seg in range(3):
            pre = [f"s_add_u32 m0, s{sWL}, {WBASE + (st % NSLOT) * SLOT}", f"s_mov_b32 s42, {32 * st * 3072}"] if seg == 0 else []
            dr.add(st, pre, f"buffer_load_dwordx4 v{vWoff}, {sr(sW, 4)}, s42 offen offset:{seg * 1024} lds")

    for st in range(NSLOT):
        issue(st)
    AHEAD = OPT["k1_d"]
    dr.emit(5 * OPT["k1_t"])
    if OPT["k1_touch"]:
        h(f"s_lshl_b32 s{sT0}, s2, 2")
        h(f"s_add_u32 s{sT0}, s{sT0}, s{sHw}")
        h(f"s_mul_i32 s{sT1}, s{sT0}, 1536")
        h(f"s_lshl_b32 s{sT0}, s{sT0}, 11")
        h(f"v_lshlrev_b32 v30, 7, v{vLane}")
        h("s_mov_b64 exec, 0xfff")
        h.vm(f"buffer_load_dword v31, v30, {sr(sW, 4)}, s{sT1} offen")
        h("s_mov_b64 exec, 0xffff")
        h.vm(f"buffer_load_dword v31, v30, {sr(sX, 4)}, s{sT0} offen")
        h("s_mov_b64 exec, -1")
    dr.emit(5 * (AHEAD - OPT["k1_t"]))
    srd(h, sWS, 8, WS_SIZE)
    h(f"s_mov_b32 s{sOnes}, 0x3f803f80")
    h(f"v_lshrrev_b32 v{vT}, 2, v{vLane}")
    h(f"v_and_b32 v{vT + 1}, 3, v{vLane}")
    h(f"v_lshlrev_b32 v{vT + 2}, 7, v{vT}")
    h(f"v_lshl_add_u32 v{vT + 2}, v{vT + 1}, 4, v{vT + 2}")
    h(f"v_bfe_u32 v{vT + 3}, v{vLane}, 3, 1")
    h(f"v_lshl_add_u32 v{vT + 2}, v{vT + 3}, 6, v{vT + 2}")
    h(f"v_add_u32 v{vSr}, s36, v{vT + 2}")
    h(f"v_xor_b32 v{vSr + 1}, 64, v{vSr}")
    h(f"s_lshl_b32 s{sT0}, s{sHw}, 4")
    h(f"v_add_u32 v{vT}, s{sT0}, v{vT}")
    h(f"v_lshlrev_b32 v{vRs}, 2, v{vT}")
    h(f"v_add_u32 v{vRs}, {RSO}, v{vRs}")
    h(f"v_and_b32 v{vT + 2}, 31, v{vT}")
    h(f"v_lshl_add_u32 v{vT + 2}, v{vT + 1}, 5, v{vT + 2}")
    h(f"v_lshrrev_b32 v{vT + 3}, 5, v{vT}")
    h(f"v_lshl_add_u32 v{vT + 2}, v{vT + 3}, 6, v{vT + 2}")
    h(f"v_lshlrev_b32 v{vXe}, 4, v{vT + 2}")
    h(f"v_add_u32 v{vXe}, {XEO}, v{vXe}")
    h(f"v_mov_b32 v{vS}, 0")
    h(f"v_mov_b32 v{vQ}, 0")
    stamp(h)
    st_tok = {}
    for st in range(NST):
        dr.wait(st)
        if st == 12:
            h.wait_all(vm=False)
        h("s_barrier")
        if st in (0, 2, 4, 6, 8, 10, 12, 14, 15):
            stamp(h)
        if st < 8:
            b = XB + 8 * (st & 1)
            h.lg(f"ds_read_b128 {vr(b, 4)}, v{vSr} offset:{st * 8192}")
            st_tok[st] = h.lg(f"ds_read_b128 {vr(b + 4, 4)}, v{vSr + 1} offset:{st * 8192}")
        if st >= 1 and st + NSLOT - 1 < NST:
            issue(st + NSLOT - 1)
        tgt = min(NST - 1, st + AHEAD + min(st + 1, OPT["k1_g"]))
        while dr.q and dr.q[0][0] <= tgt:
            dr.emit()
        if st < 8:
            h.wait(lg=st_tok[st])
            b = XB + 8 * (st & 1)
            for r in range(8):
                h(f"v_dot2_f32_bf16 v{vS}, v{b + r}, s{sOnes}, v{vS}")
                h(f"v_dot2_f32_bf16 v{vQ}, v{b + r}, v{b + r}, v{vQ}")
        if st == 8:
            for pat in ("quad_perm:[1,0,3,2]", "quad_perm:[2,3,0,1]"):
                h(f"v_add_f32_dpp v{vS}, v{vS}, v{vS} {pat} row_mask:0xf bank_mask:0xf")
                h(f"v_add_f32_dpp v{vQ}, v{vQ}, v{vQ} {pat} row_mask:0xf bank_mask:0xf")
                h("s_nop 0")
            h(f"v_mul_f32 v{vM}, {hx(f2u(-1.0 / 512))}, v{vS}")
            h(f"v_mul_f32 v{vQ}, {hx(f2u(1.0 / 512))}, v{vQ}")
            h(f"v_fma_f32 v{vQ}, -v{vM}, v{vM}, v{vQ}")
            h(f"v_max_f32 v{vQ}, 0, v{vQ}")
            h(f"v_add_f32 v{vQ}, {hx(f2u(1e-5))}, v{vQ}")
        if st == 9:
            h(f"v_rsq_f32 v{vR}, v{vQ}")
            split_hi_lo(h, vM, XB, vT, vT + 1)
            h(f"v_cvt_pk_bf16_f32 v{XB + 1}, v{vT}, 0")
            h(f"v_mov_b32 v{XB + 2}, 0")
            h(f"v_mov_b32 v{XB + 3}, 0")
        if st == OPT.get("k1_tout", -1):
            h(f"s_lshl_b32 s{sT0}, s{sCg}, 2")
            h(f"s_add_u32 s{sT0}, s{sT0}, s{sHw}")
            h(f"s_lshl_b32 s{sT0}, s{sT0}, 5")
            h(f"s_add_u32 s{sT0}, s{sT0}, s{sRb}")
            h(f"s_lshl_b32 s{sT1}, s{sT0}, 12")
            h(f"s_add_u32 s{sT1}, s{sT1}, {KVF}")
            h(f"s_lshl_b32 s{sT0}, s{sT0}, 11")
            if QF:
                h(f"s_add_u32 s{sT0}, s{sT0}, {QF}")
            h(f"v_lshlrev_b32 v30, 7, v{vLane}")
            h("s_mov_b64 exec, 0xffff")
            h.vm(f"buffer_load_dword v31, v30, {sr(sWS, 4)}, s{sT0} offen")
            h("s_mov_b32 exec_lo, -1")
            h.vm(f"buffer_load_dword v31, v30, {sr(sWS, 4)}, s{sT1} offen")
            h("s_mov_b64 exec, -1")
        if st == 10:
            h("s_mov_b32 exec_lo, 0x33333333")
            h("s_mov_b32 exec_hi, 0x33333333")
            h.lg(f"ds_write_b128 v{vXe}, {vr(XB, 4)}")
            h.lg(f"ds_write_b32 v{vRs}, v{vR}")
            h("s_mov_b64 exec, -1")
    h("s_barrier")
    stamp_flush(h, 0, sWS, sWave) if STAMPS else None
    h("s_endpgm")
    a.lines += h.lines
    a.label("L_k1_helper_skip")

    vXrd = [3, 4, 5, 6]
    vKoff, vVoff = 20, 21
    vWrd = [22, 23, 24]
    vCw, vCr, vEr, vRl, vRr = 25, 26, 27, 28, 29
    XF = [32, 36]
    WF = [40, 52]
    CS, ONES, XE = 64, 76, 80
    RV = 84
    accQ, accK, accV = 104, 120, 136
    a(f"v_lshlrev_b32 v30, 7, v{vLane}")
    a(f"s_cmp_lg_u32 s{sWave}, 2")
    a("s_cbranch_scc1 L_k1_nocode")
    if OPT["pf_code"]:
        a(f"s_lshr_b32 s{sT0}, s2, 3")
        a(f"s_lshl_b32 s{sT0}, s{sT0}, 11")
        a(f"v_add_u32 v30, s{sT0}, v30")
        a("s_mov_b64 exec, 0xffff")
        code_prefetch(a, name, 44, 30, 31, "k1")
        a("s_mov_b64 exec, -1")
    a.label("L_k1_nocode")
    a(f"s_lshr_b32 s{sWr}, s{sHw}, 1")
    a(f"s_and_b32 s{sWc}, s{sHw}, 1")
    a(f"v_and_b32 v{vT}, 31, v{vLane}")
    a(f"v_lshrrev_b32 v{vT + 1}, 5, v{vLane}")
    a(f"v_bfe_u32 v{vT + 2}, v{vLane}, 1, 3")
    a(f"v_xor_b32 v{vT + 2}, v{vT + 2}, v{vT + 1}")
    a(f"v_lshlrev_b32 v{vT + 2}, 4, v{vT + 2}")
    a(f"v_lshl_add_u32 v{vT + 2}, v{vT}, 7, v{vT + 2}")
    a(f"s_lshl_b32 s{sT0}, s{sWr}, 12")
    a(f"v_add_u32 v{vXrd[0]}, s{sT0}, v{vT + 2}")
    for ss in range(1, 4):
        a(f"v_xor_b32 v{vXrd[ss]}, {ss * 32}, v{vXrd[0]}")
    a(f"v_mul_u32_u24 v{vT + 2}, 3072, v{vT + 1}")
    a(f"v_bfe_u32 v{vT + 3}, v{vLane}, 2, 2")
    a(f"v_lshl_add_u32 v{vT + 2}, v{vT + 3}, 7, v{vT + 2}")
    a(f"v_lshrrev_b32 v{vT + 3}, 1, v{vT + 3}")
    a(f"v_xor_b32 v{vT + 3}, s{sWc}, v{vT + 3}")
    a(f"v_lshl_add_u32 v{vT + 2}, v{vT + 3}, 6, v{vT + 2}")
    a(f"v_bfe_u32 v{vT + 4}, v{vLane}, 4, 1")
    a(f"v_lshl_add_u32 v{vT + 2}, v{vT + 4}, 5, v{vT + 2}")
    a(f"v_and_b32 v{vT + 3}, 3, v{vLane}")
    a(f"v_lshl_add_u32 v{vWrd[0]}, v{vT + 3}, 3, v{vT + 2}")
    wl = LdsAddr(a, vWrd)
    wl.setup(a)
    a(f"v_xor_b32 v{vT + 2}, v{vT + 4}, v{vLane}")
    a(f"v_and_b32 v{vT + 2}, 1, v{vT + 2}")
    a(f"v_cmp_eq_u32 vcc, 0, v{vT + 2}")
    a(f"v_mov_b32 v{vT + 2}, 0x3f803f80")
    a("s_nop 0")
    for r in range(4):
        a(f"v_cndmask_b32 v{ONES + r}, 0, v{vT + 2}, vcc")
    a(f"s_lshl_b32 s{sT0}, s{sWc}, 1")
    a(f"s_add_u32 s{sT1}, s{sT0}, s{sWr}")
    a(f"s_mul_i32 s{sT1}, s{sT1}, 384")
    a(f"s_add_u32 s{sT1}, s{sT1}, {CSO}")
    a(f"v_and_b32 v{vT + 2}, 1, v{vLane}")
    a(f"v_lshlrev_b32 v{vT + 2}, 6, v{vT + 2}")
    a(f"v_and_b32 v{vT + 3}, 48, v{vLane}")
    a(f"v_add3_u32 v{vCw}, v{vT + 2}, v{vT + 3}, s{sT1}")
    a(f"s_mul_i32 s{sT0}, s{sT0}, 384")
    a(f"s_add_u32 s{sT0}, s{sT0}, {CSO}")
    a(f"v_mul_u32_u24 v{vT + 2}, 384, v{vT + 1}")
    a(f"v_lshl_add_u32 v{vT + 2}, v{vT}, 2, v{vT + 2}")
    a(f"v_add_u32 v{vCr}, s{sT0}, v{vT + 2}")
    a(f"s_lshl_b32 s{sT0}, s{sWr}, 10")
    a(f"s_add_u32 s{sT0}, s{sT0}, {XEO}")
    a(f"v_add_u32 v{vEr}, s{sT0}, v{vL16}")
    a(f"s_lshl_b32 s{sT0}, s{sWr}, 7")
    a(f"s_add_u32 s{sT0}, s{sT0}, {RSO}")
    a(f"v_lshl_add_u32 v{vRl}, v{vT}, 2, s{sT0}")
    a(f"v_lshl_add_u32 v{vRr}, v{vT + 1}, 4, s{sT0}")
    a(f"v_and_b32 v{vT + 2}, 0x33, v{vLane}")
    a(f"v_bfe_u32 v{vT + 3}, v{vLane}, 2, 1")
    a(f"v_lshl_or_b32 v{vT + 2}, v{vT + 3}, 3, v{vT + 2}")
    a(f"v_bfe_u32 v{vT + 3}, v{vLane}, 3, 1")
    a(f"v_lshl_or_b32 v{vT + 2}, v{vT + 3}, 2, v{vT + 2}")
    a(f"v_lshlrev_b32 v{vKoff}, 4, v{vT + 2}")
    a(f"v_lshlrev_b32 v{vT + 2}, 17, v{vT + 4}")
    a(f"v_lshl_add_u32 v{vT + 2}, v{vT + 1}, 8, v{vT + 2}")
    a(f"v_and_b32 v{vT + 3}, 15, v{vLane}")
    a(f"v_lshl_add_u32 v{vVoff}, v{vT + 3}, 4, v{vT + 2}")
    a(f"s_lshl_b32 s{sT0}, s{sCg}, 2")
    a(f"s_lshl_b32 s{sT1}, s{sWc}, 1")
    a(f"s_add_u32 s{sT0}, s{sT0}, s{sT1}")
    a(f"s_lshl_b32 s{sT1}, s{sRb}, 1")
    a(f"s_add_u32 s{sT1}, s{sT1}, s{sWr}")
    a(f"s_lshl_b32 s46, s{sT0}, 16")
    a(f"s_lshl_b32 s47, s{sT1}, 10")
    a(f"s_add_u32 s46, s46, s47")
    if QF:
        a(f"s_add_u32 s46, s46, {QF}")
    a(f"s_add_u32 s47, s46, 65536")
    a(f"s_lshl_b32 s36, s{sT0}, 17")
    a(f"s_lshl_b32 s37, s{sT1}, 11")
    a(f"s_add_u32 s36, s36, s37")
    a(f"s_add_u32 s36, s36, {KVF}")
    a(f"s_add_u32 s37, s36, 131072")
    for r in range(12):
        a(f"v_mov_b32 v{CS + r}, 0")
    a("s_waitcnt lgkmcnt(0)")
    srd(a, sWS, 8, WS_SIZE)
    if OPT.get("zero_flags"):
        a(f"s_cmp_lg_u32 s{sWave}, 3")
        a("s_cbranch_scc1 L_k1_noflags")
        a("s_cmp_ge_u32 s2, 22")
        a("s_cbranch_scc1 L_k1_noflags")
        a(f"s_lshl_b32 s{sT0}, s2, 10")
        a(f"s_add_u32 s{sT0}, s{sT0}, {OPT['zero_flags']}")
        a(f"buffer_store_dwordx4 {vr(CS, 4)}, v{vL16}, {sr(sWS, 4)}, s{sT0} offen")
        a("s_waitcnt vmcnt(0)")
        a.label("L_k1_noflags")

    def reads(s):
        st, ss = divmod(s, 2)
        ops = [f"ds_read_b128 {vr(XF[s & 1], 4)}, v{vXrd[s & 3]} offset:{(s >> 2) * 8192}"]
        for seg in range(3):
            for half in range(2):
                reg, off = wl.at(WBASE + (st % NSLOT) * SLOT + ss * 6144 + seg * 1024 + half * 512)
                ops.append(f"ds_read_b64_tr_b16 {vr(WF[s & 1] + 4 * seg + 2 * half, 2)}, {reg} offset:{off}")
        return ops

    rt = {}

    def emit_reads(b, s, lo, hi):
        ops = reads(s)
        for k in range(lo, min(hi, 7)):
            rt[(s, k)] = b.lg(ops[k])

    stamp(a)
    a("s_barrier")
    stamp(a)
    emit_reads(a, 0, 0, 7)
    a(f"s_cmp_eq_u32 s{sWr}, 1")
    a("s_cbranch_scc1 L_k1_odd")
    rt0 = dict(rt)
    odd = fork(a)
    odd.label("L_k1_odd")
    acc = [accQ, accK, accV]

    def mm(b, j, w, x, first=False):
        c = "0" if first else vr(acc[j], 16)
        ops = (vr(w, 4), vr(x, 4)) if j < 2 else (vr(x, 4), vr(w, 4))
        b(f"v_mfma_f32_32x32x16_bf16 {vr(acc[j], 16)}, {ops[0]}, {ops[1]}, {c}")

    def csum(b, s, j):
        b(f"v_mfma_f32_16x16x32_bf16 {vr(CS + 4 * j, 4)}, {vr(WF[s & 1] + 4 * j, 4)}, {vr(ONES, 4)}, {vr(CS + 4 * j, 4)}")

    for par, b in ((0, a), (1, odd)):
        rt.clear()
        rt.update(rt0)
        for s in range(31):
            if s == 16:
                stamp(b)
            if s % 2 == 1:
                b.wait(lg=rt[(s, 6)])
                b("s_barrier")
            for j in range(3):
                b.wait(lg=rt[(s, 2 + 2 * j)])
                if s % 2 == par:
                    csum(b, s, j)
                mm(b, j, WF[s & 1] + 4 * j, XF[s & 1], s == 0)
                emit_reads(b, s + 1, [0, 3, 5][j], [3, 5, 7][j])
            if s == 27:
                b.lg(f"ds_read_b128 {vr(XE, 4)}, v{vEr}")
                b.lg(f"ds_read_b32 v100, v{vRl}")
            if s == 28:
                for g in range(4):
                    b.lg(f"ds_read_b128 {vr(RV + 4 * g, 4)}, v{vRr} offset:{g * 32}")
        b.wait_all(vm=False)
        if par == 1:
            for j in range(3):
                csum(b, 31, j)
    odd("s_branch L_k1_join")
    a.label("L_k1_join")
    mm(a, 0, WF[1], XF[1])
    for j in range(3):
        a(f"v_mov_b32 v{WF[0] + 4 * j + 2}, 0")
        a(f"v_mov_b32 v{WF[0] + 4 * j + 3}, 0")
    a(f"v_mul_f32 v101, {hx(f2u(0.25 * LOG2E))}, v100")
    a("s_mov_b32 exec_lo, 0x00030003")
    a("s_mov_b32 exec_hi, 0x00030003")
    for j in range(3):
        a.lg(f"ds_write_b128 v{vCw}, {vr(CS + 4 * j, 4)} offset:{j * 128}")
    a("s_mov_b64 exec, -1")
    mm(a, 1, WF[1] + 4, XF[1])
    a.wait_all(vm=False)
    a("s_barrier")
    for j in range(3):
        rt[("c", j)] = a.lg(f"ds_read_b32 v{vT + 4 + j}, v{vCr} offset:{j * 128}")
    mm(a, 2, WF[1] + 8, XF[1])
    stamp(a)
    for j in range(3):
        w = WF[0] + 4 * j
        a.wait(lg=rt[("c", j)])
        a(f"v_cvt_pk_bf16_f32 v{w + 1}, v{vT + 4 + j}, 0")
        a(f"v_lshlrev_b32 v{vT}, 16, v{w + 1}")
        a(f"v_sub_f32 v{vT}, v{vT + 4 + j}, v{vT}")
        a(f"v_cvt_pk_bf16_f32 v{w}, v{vT + 4 + j}, v{vT}")
    for j in range(3):
        mm(a, j, WF[0] + 4 * j, XE)
    a("s_nop 9")
    P = 32
    for r in range(0, 16, 2):
        a(f"v_pk_mul_f32 {vr(accQ + r, 2)}, {vr(accQ + r, 2)}, v[100:101] op_sel:[0,1] op_sel_hi:[1,1]")
    for i in range(8):
        a(f"v_cvt_pk_bf16_f32 v{P + i}, v{accQ + 2 * i}, v{accQ + 2 * i + 1}")
    a.vm(f"buffer_store_dwordx4 {vr(P, 4)}, v{vL16}, {sr(sWS, 4)}, s46 offen")
    a.vm(f"buffer_store_dwordx4 {vr(P + 4, 4)}, v{vL16}, {sr(sWS, 4)}, s47 offen")
    for r in range(0, 16, 2):
        a(f"v_pk_mul_f32 {vr(accK + r, 2)}, {vr(accK + r, 2)}, v[100:101] op_sel_hi:[1,0]")
    for i in range(8):
        a(f"v_cvt_pk_bf16_f32 v{P + 8 + i}, v{accK + 2 * i}, v{accK + 2 * i + 1}")
    a.vm(f"buffer_store_dwordx4 {vr(P + 8, 4)}, v{vKoff}, {sr(sWS, 4)}, s36 offen")
    a.vm(f"buffer_store_dwordx4 {vr(P + 12, 4)}, v{vKoff}, {sr(sWS, 4)}, s37 offen")
    for r in range(0, 16, 2):
        a(f"v_pk_mul_f32 {vr(accV + r, 2)}, {vr(accV + r, 2)}, {vr(RV + r, 2)}")
    for i in range(8):
        a(f"v_cvt_pk_bf16_f32 v{P + 16 + i}, v{accV + 2 * i}, v{accV + 2 * i + 1}")
    a.vm(f"buffer_store_dwordx4 {vr(P + 16, 4)}, v{vVoff}, {sr(sWS, 4)}, s36 offen offset:1024")
    a.vm(f"buffer_store_dwordx4 {vr(P + 20, 4)}, v{vVoff}, {sr(sWS, 4)}, s36 offen offset:1536")
    stamp(a)
    stamp_flush(a, 0, sWS, sWave)
    kernel_end(a, name)
    return name, a.text() + odd.text(), descriptor(name, 152, 0), (256, 512, RSO + 256)


def gen_k2():
    name = "k2_attn_kernel"
    a = Asm()
    kernel_begin(a, name, 256)
    sWS = 12
    sWave, sHead, sQb, sKh, sQs = 24, 25, 26, 27, 28
    sT0, sT1 = 30, 31
    sVm = 34
    vLane, vL16, vKrd, vVrd, vIdx, vXw, vXr = 1, 2, 3, 4, 5, 6, 7
    Qf = [8, 12]
    Kf = 16
    Vf = 32
    S = [64, 80]
    O = [96, 112]
    NEG = 128
    T = 144
    XCH = 131072
    NPRE = OPT["k2_pre"]
    a("s_load_dwordx2 s[8:9], s[0:1], 72")
    a(f"v_lshrrev_b32 v8, 6, v0")
    a(f"v_and_b32 v{vLane}, 63, v0")
    a(f"v_readfirstlane_b32 s{sWave}, v8")
    a(f"v_lshlrev_b32 v{vL16}, 4, v{vLane}")
    a(f"s_and_b32 s{sT0}, s2, 7")
    a(f"s_lshl_b32 s{sT0}, s{sT0}, 2")
    a(f"s_lshr_b32 s{sT1}, s2, 6")
    a(f"s_add_u32 s{sHead}, s{sT0}, s{sT1}")
    a(f"s_lshl_b32 s33, s{sHead}, 17")
    a(f"s_add_u32 s33, s33, {KVF}")
    a(f"s_cmp_eq_u32 s{sWave}, 8")
    a("s_cbranch_scc0 L_k2_compute")
    a("s_load_dwordx2 s[4:5], s[0:1], 0")
    a("s_load_dwordx2 s[6:7], s[0:1], 16")
    a("s_load_dwordx4 s[48:51], s[0:1], 32")
    a("s_load_dwordx2 s[10:11], s[0:1], 48")
    a("s_barrier")
    a("s_branch L_k2_loader")
    a.label("L_k2_compute")

    h = fork(a)
    h.label("L_k2_loader")
    h("s_setprio 3")
    h("s_waitcnt lgkmcnt(0)")
    srd(h, sWS, 8, WS_SIZE)
    for c in range(NPRE, 8):
        for half in range(2):
            for q in range(2):
                h(f"s_mov_b32 m0, {half * 65536 + c * 8192 + q * 4096}")
                h(f"s_add_u32 s37, s33, {c * 16384 + half * 8192 + q * 4096}")
                for i in range(4):
                    h.vm(f"buffer_load_dwordx4 v{vL16}, {sr(sWS, 4)}, s37 offen offset:{i * 1024} lds")
        h("s_waitcnt vmcnt(40)")
        if c == NPRE + 1 and OPT["k2_b3"]:
            h("s_barrier")
    srd(h, 16, 6, 512 * 1024)
    srd(h, 20, 48, 512 * 2752)
    srd(h, 52, 50, 512 * 2752)
    h(f"s_and_b32 s{sT0}, s2, 7")
    h(f"s_lshl_b32 s{sT1}, s{sT0}, 18")
    h(f"s_add_u32 s4, s4, s{sT1}")
    h("s_addc_u32 s5, s5, 0")
    srd(h, 44, 4, 256 * 1024)
    h(f"s_mul_i32 s{sT0}, s{sT0}, {172 * 1024}")
    h(f"s_add_u32 s10, s10, s{sT0}")
    h("s_addc_u32 s11, s11, 0")
    srd(h, 40, 10, 172 * 1024)
    h(f"s_lshr_b32 s{sT0}, s2, 3")
    h("v_lshlrev_b32 v3, 7, v1")
    h.wait_all()
    h("s_barrier")
    if OPT["pf_w"]:
        for sq, per, n in ((16, 16384, 2), (44, 8192, 1), (20, 49152, 6), (52, 49152, 6), (40, 8192, 1)):
            h(f"s_mul_i32 s{sT1}, s{sT0}, {per}")
            h(f"v_add_u32 v4, s{sT1}, v3")
            for i in range(n):
                h.vm(f"buffer_load_dword v5, v4, {sr(sq, 4)}, 0 offen")
                if i + 1 < n:
                    h("v_add_u32 v4, 0x2000, v4")
    if OPT["pf_code"]:
        h(f"s_lshl_b32 s{sT1}, s{sT0}, 11")
        h(f"v_add_u32 v4, s{sT1}, v3")
        h("s_mov_b64 exec, 0xffff")
        code_prefetch(h, "k3_wo_kernel", 38, 4, 5, "k2")
    h("s_endpgm")

    a(f"s_bfe_u32 s{sQb}, s2, 0x30003")
    a(f"s_lshr_b32 s{sKh}, s{sWave}, 2")
    a(f"s_and_b32 s{sQs}, s{sWave}, 3")
    a(f"s_lshl_b32 s32, s{sKh}, 16")
    a(f"s_lshl_b32 s{sT0}, s{sQs}, 11")
    a(f"s_add_u32 s32, s32, s{sT0}")
    a(f"s_lshl_b32 s38, s{sWave}, 11")
    a("s_add_u32 s33, s33, s38")
    a(f"s_lshl_b32 s36, s{sHead}, 16")
    a(f"s_lshl_b32 s{sT1}, s{sQb}, 13")
    a(f"s_add_u32 s36, s36, s{sT1}")
    a(f"s_add_u32 s36, s36, s{sT0}")
    if QF:
        a(f"s_add_u32 s36, s36, {QF}")
    a(f"s_lshl_b32 s{sT0}, s{sKh}, 10")
    a(f"s_add_u32 s36, s36, s{sT0}")
    a(f"s_xor_b32 s39, s36, 1024")
    a(f"s_mov_b32 m0, s32")
    a(f"v_and_b32 v{T}, 27, v{vLane}")
    a(f"v_cmp_eq_u32 vcc, 16, v{T}")
    a(f"v_mov_b32 v{T}, 0x3f803f80")
    a(f"v_mov_b32 v{vIdx}, 0xdddd")
    for r in range(32):
        a(f"v_cndmask_b32 v{Vf + r}, 0, v{T}, vcc")
    a("s_waitcnt lgkmcnt(0)")
    srd(a, sWS, 8, WS_SIZE)
    a.vm(f"buffer_load_dwordx4 v{vL16}, {sr(sWS, 4)}, s33 offen lds")
    a.vm(f"buffer_load_dwordx4 {vr(Qf[0], 4)}, v{vL16}, {sr(sWS, 4)}, s36 offen")
    a.vm(f"buffer_load_dwordx4 {vr(Qf[1], 4)}, v{vL16}, {sr(sWS, 4)}, s39 offen")
    a.vm(f"buffer_load_dwordx4 v{vL16}, {sr(sWS, 4)}, s33 offen offset:1024 lds")
    for c in range(1, NPRE):
        a(f"s_add_u32 m0, s32, {c * 8192}")
        a(f"s_add_u32 s37, s33, {c * 16384}")
        a.vm(f"buffer_load_dwordx4 v{vL16}, {sr(sWS, 4)}, s37 offen lds")
        a.vm(f"buffer_load_dwordx4 v{vL16}, {sr(sWS, 4)}, s37 offen offset:1024 lds")
    a(f"s_mov_b32 s{sVm}, 0x0000ffff")
    a(f"s_mov_b32 s{sVm + 1}, 0x0000ffff")
    a(f"s_lshl_b32 s{sT0}, s{sKh}, 16")
    a(f"v_add_u32 v{vKrd}, s{sT0}, v{vL16}")
    a(f"v_lshrrev_b32 v{T}, 5, v{vLane}")
    a(f"v_and_b32 v{T + 1}, 15, v{vLane}")
    a(f"v_lshlrev_b32 v{T + 1}, 4, v{T + 1}")
    a(f"v_lshl_add_u32 v{T}, v{T}, 8, v{T + 1}")
    a(f"v_add_u32 v{vVrd}, s{sT0}, v{T}")
    a(f"s_mul_i32 s{sT0}, s{sWave}, 3072")
    a(f"s_add_u32 s{sT0}, s{sT0}, {XCH}")
    a(f"v_add_u32 v{vXw}, s{sT0}, v{vL16}")
    a(f"s_xor_b32 s{sT1}, s{sWave}, 4")
    a(f"s_mul_i32 s{sT0}, s{sT1}, 3072")
    a(f"s_add_u32 s{sT0}, s{sT0}, {XCH}")
    a(f"v_add_u32 v{vXr}, s{sT0}, v{vL16}")
    for c in range(2):
        for r in range(16):
            a(f"v_mov_b32 v{O[c] + r}, 0")
    a(f"s_lshl_b32 s57, s{sQb}, 3")
    a(f"s_lshl_b32 s{sT1}, s{sQs}, 1")
    a(f"s_add_u32 s57, s57, s{sT1}")
    a(f"s_add_u32 s57, s57, s{sKh}")
    a(f"s_lshl_b32 s57, s57, 15")
    a(f"s_lshl_b32 s{sT1}, s{sHead}, 10")
    a(f"s_add_u32 s57, s57, s{sT1}")
    a(f"s_add_u32 s57, s57, {OF}")

    def emit_pair(p):
        for t in (2 * p, 2 * p + 1):
            a.lg(f"ds_read_b128 {vr(Kf + 4 * (t & 3), 4)}, v{vKrd} offset:{t * 2048}")
        a(f"s_mov_b64 exec, {sr(sVm, 2)}")
        for t in (2 * p, 2 * p + 1):
            a.lg(f"ds_read_b128 {vr(Vf + 8 * (t & 3), 4)}, v{vVrd} offset:{t * 2048 + 1024}")
            tok = a.lg(f"ds_read_b128 {vr(Vf + 8 * (t & 3) + 4, 4)}, v{vVrd} offset:{t * 2048 + 1536}")
        a("s_mov_b64 exec, -1")
        return tok

    def qk(u):
        t, c = divmod(u, 2)
        return f"v_mfma_f32_32x32x16_bf16 {vr(S[u & 1], 16)}, {vr(Kf + 4 * (t & 3), 4)}, {vr(Qf[c], 4)}, 0"

    def pv(u, i):
        t, c = divmod(u, 2)
        return (f"v_smfmac_f32_32x32x32_bf16 {vr(O[c], 16)}, {vr(Vf + 8 * (t & 3) + 4 * i, 4)}, "
                f"{vr(S[u & 1] + 8 * i, 8)}, v{vIdx}")

    NU = 64
    UB = 4 * (2 * NPRE - 1)
    PRIO = {}
    if OPT["k2_prio"]:
        PRIO = {0: 1, UB - 2: 0, UB + 1: 2, NU - 6: 1, NU - 2: 0}
        if OPT['k2_b3']:
            PRIO.update({3: 0, 5: 1})
    stamp(a)
    if OPT["k2_b3"]:
        a.wait(vm=3)
    else:
        a.wait_all(lg=False)
    a("s_barrier")
    stamp(a)
    ptok = {0: emit_pair(0)}
    a.wait(lg=ptok[0] - 5)
    a(qk(0))
    a.wait(lg=ptok[0])
    a("s_nop 9")
    for u in range(NU):
        X = S[u & 1]
        p, pu = divmod(u, 4)
        if u in (8, 16, 32, 48):
            stamp(a)
        if u in PRIO:
            a(f"s_setprio {PRIO[u]}")
        elif u == 0:
            a("s_nop 0")
        ex = [f"v_exp_f32 v{X + i}, v{X + i}" for i in range(16)]
        a(ex[0]); a(ex[1])
        if u > 0:
            a(pv(u - 1, 1))
        a(ex[2]); a(ex[3]); a(ex[4])
        if u + 1 < NU:
            if pu == 3:
                a.wait(lg=ptok[p + 1])
            a(qk(u + 1))
        if pu == 0 and p + 1 < 16:
            if u == 4 and OPT["k2_b3"]:
                a.wait_all(lg=False)
                a("s_barrier")
            if u == UB:
                a("s_barrier")
            ptok[p + 1] = emit_pair(p + 1)
        for i in range(5, 10):
            a(ex[i])
        a(pv(u, 0))
        for i in range(10, 16):
            a(ex[i])
    a("s_nop 1")
    a(pv(NU - 1, 1))
    a("s_nop 11")
    stamp(a)
    a.lg(f"ds_write_b128 v{vXw}, {vr(O[1], 4)}")
    a.lg(f"ds_write_b128 v{vXw}, {vr(O[1] + 4, 4)} offset:1024")
    a.lg(f"ds_write_b32 v{vXw}, v{O[1] + 8} offset:2048")
    a(f"s_mov_b32 s{sT0}, {hx(f2u(2.0 ** 80))}")
    a(f"s_mov_b32 s{sT1}, {hx(f2u(2.0 ** -80))}")
    a.wait_all(vm=False)
    a("s_barrier")
    t2 = a.lg(f"ds_read_b32 v{T + 8}, v{vXr} offset:2048")
    t0 = a.lg(f"ds_read_b128 {vr(T, 4)}, v{vXr}")
    t1 = a.lg(f"ds_read_b128 {vr(T + 4, 4)}, v{vXr} offset:1024")
    a.wait(lg=t2)
    a(f"v_add_f32 v{O[0] + 8}, v{O[0] + 8}, v{T + 8}")
    a.wait(lg=t1)
    for r in range(0, 8, 2):
        a(f"v_pk_add_f32 {vr(O[0] + r, 2)}, {vr(O[0] + r, 2)}, {vr(T + r, 2)}")
    a("s_mov_b32 s56, 0")
    a.label("L_k2_finish")
    a(f"v_rcp_f32 v{T + 8}, v{O[0] + 8}")
    a(f"v_cmp_gt_f32 s[40:41], s{sT0}, v{O[0] + 8}")
    a(f"v_cmp_lt_f32 s[42:43], s{sT1}, v{O[0] + 8}")
    for r in range(0, 8, 2):
        a(f"v_pk_mul_f32 {vr(O[0] + r, 2)}, {vr(O[0] + r, 2)}, {vr(T + 8, 2)} op_sel_hi:[1,0]")
    for i in range(4):
        a(f"v_cvt_pk_bf16_f32 v{T + 4 + i}, v{O[0] + 2 * i}, v{O[0] + 2 * i + 1}")
    a(f"v_dot2_f32_bf16 v{T}, v{T + 4}, v{T + 4}, 0")
    for i in range(1, 4):
        a(f"v_dot2_f32_bf16 v{T}, v{T + 4 + i}, v{T + 4 + i}, v{T}")
    a("s_and_b64 s[40:41], s[40:41], s[42:43]")
    a("s_cmp_lg_u32 s56, 0")
    a("s_cbranch_scc1 L_k2_store")
    a(f"v_cmp_gt_f32 vcc, s{sT0}, v{T}")
    a("s_nop 0")
    a("s_and_b64 s[40:41], s[40:41], vcc")
    a("s_cmp_eq_u64 s[40:41], -1")
    a("s_cbranch_scc0 L_k2_fallback")
    a.label("L_k2_store")
    a.vm(f"buffer_store_dwordx4 {vr(T + 4, 4)}, v{vL16}, {sr(sWS, 4)}, s57 offen")
    stamp(a)
    stamp_flush(a, 1, sWS, sWave)
    a("s_endpgm")
    a.label("L_k2_fallback")
    vK2, vV2, vM = T + 10, T + 11, T + 12
    a(f"s_lshl_b32 s37, s{sKh}, 16")
    a(f"v_subrev_u32 v{vK2}, s37, v{vKrd}")
    a(f"v_mov_b32 v{vM}, 0xff800000")
    a("s_mov_b32 s56, 0")
    a.label("L_k2_fb_max")
    a(f"ds_read_b128 {vr(Kf, 4)}, v{vK2}")
    a("s_waitcnt lgkmcnt(0)")
    a(f"v_mfma_f32_32x32x16_bf16 {vr(S[0], 16)}, {vr(Kf, 4)}, {vr(Qf[0], 4)}, 0")
    a("s_nop 15")
    for i in range(8):
        a(f"v_max3_f32 v{vM}, v{vM}, v{S[0] + 2 * i}, v{S[0] + 2 * i + 1}")
    a(f"v_add_u32 v{vK2}, 2048, v{vK2}")
    a("s_add_u32 s56, s56, 1")
    a("s_cmp_lt_u32 s56, 64")
    a("s_cbranch_scc1 L_k2_fb_max")
    a(f"v_mov_b32 v{T}, v{vM}")
    a("s_nop 1")
    a(f"v_permlane32_swap_b32 v{vM}, v{T}")
    a("s_nop 1")
    a(f"v_max_f32 v{vM}, v{vM}, v{T}")
    for r in range(16):
        a(f"v_sub_f32 v{NEG + r}, 0, v{vM}")
        a(f"v_mov_b32 v{O[0] + r}, 0")
    a(f"v_subrev_u32 v{vK2}, s37, v{vKrd}")
    a(f"v_subrev_u32 v{vV2}, s37, v{vVrd}")
    a("s_mov_b32 s56, 0")
    a.label("L_k2_fb_pv")
    a(f"ds_read_b128 {vr(Kf, 4)}, v{vK2}")
    a(f"s_mov_b64 exec, {sr(sVm, 2)}")
    a(f"ds_read_b128 {vr(Vf, 4)}, v{vV2} offset:1024")
    a(f"ds_read_b128 {vr(Vf + 4, 4)}, v{vV2} offset:1536")
    a("s_mov_b64 exec, -1")
    a("s_waitcnt lgkmcnt(0)")
    a(f"v_mfma_f32_32x32x16_bf16 {vr(S[0], 16)}, {vr(Kf, 4)}, {vr(Qf[0], 4)}, {vr(NEG, 16)}")
    a("s_nop 15")
    for i in range(16):
        a(f"v_exp_f32 v{S[0] + i}, v{S[0] + i}")
    a("s_nop 1")
    a(f"v_smfmac_f32_32x32x32_bf16 {vr(O[0], 16)}, {vr(Vf, 4)}, {vr(S[0], 8)}, v{vIdx}")
    a(f"v_smfmac_f32_32x32x32_bf16 {vr(O[0], 16)}, {vr(Vf + 4, 4)}, {vr(S[0] + 8, 8)}, v{vIdx}")
    a("s_nop 15")
    a(f"v_add_u32 v{vK2}, 2048, v{vK2}")
    a(f"v_add_u32 v{vV2}, 2048, v{vV2}")
    a("s_add_u32 s56, s56, 1")
    a("s_cmp_lt_u32 s56, 64")
    a("s_cbranch_scc1 L_k2_fb_pv")
    a("s_branch L_k2_finish")
    kernel_end(a, name)
    return name, a.text() + h.text(), descriptor(name, 160, 0), (256, 576, XCH + 8 * 3072)


def gen_res(kind):
    k3 = kind == "k3"
    name = "k3_wo_kernel" if k3 else "k5_down_kernel"
    kidx = 2 if k3 else 4
    KS = 32 if k3 else 86
    ACT = OF if k3 else GF
    NST = (KS + 3) // 4
    NSLOT, SLOT = 8, 16384
    RESO = NSLOT * SLOT
    TRO = RESO + 8192
    RST = 2
    a = Asm()
    kernel_begin(a, name, 256)
    sW, sWS, sIO = 12, 16, 20
    sWave, sWr, sWc, sRb, sCb, sHw = 24, 25, 26, 27, 28, 29
    sT0, sT1 = 30, 31
    vLane, vL16 = 1, 2
    T = 12
    if k3:
        a("s_load_dwordx2 s[4:5], s[0:1], 16")
        a("s_load_dwordx2 s[6:7], s[0:1], 0")
    else:
        a("s_load_dwordx4 s[4:7], s[0:1], 48")
    a("s_load_dwordx2 s[8:9], s[0:1], 72")
    a(f"v_and_b32 v{vLane}, 63, v0")
    a(f"v_lshrrev_b32 v{T}, 6, v0")
    a(f"v_lshlrev_b32 v{vL16}, 4, v{vLane}")
    a(f"v_readfirstlane_b32 s{sWave}, v{T}")
    a(f"s_and_b32 s{sT0}, s2, 7")
    a(f"s_lshl_b32 s{sRb}, s{sT0}, 2")
    a(f"s_lshr_b32 s34, s2, 6")
    a(f"s_add_u32 s{sRb}, s{sRb}, s34")
    a(f"s_bfe_u32 s{sCb}, s2, 0x30003")
    a(f"s_and_b32 s{sHw}, s{sWave}, 3")
    a(f"s_and_b32 s{sWr}, s{sWave}, 1")
    a(f"s_bfe_u32 s{sWc}, s{sWave}, 0x10001")
    a(f"s_cmp_ge_u32 s{sWave}, 4")
    a(f"s_cbranch_scc0 L_{kind}_helper_skip")

    h = fork(a)
    h.label(f"L_{kind}_helper")
    vWoff, vXg = 3, 5
    h(f"v_lshrrev_b32 v{T}, 3, v{vLane}")
    h(f"v_and_b32 v{T + 1}, 7, v{vLane}")
    h(f"v_lshrrev_b32 v{T + 2}, 2, v{vLane}")
    h(f"v_and_b32 v{T + 2}, 4, v{T + 2}")
    h(f"v_xor_b32 v{T + 2}, v{T + 2}, v{T + 1}")
    h(f"v_lshlrev_b32 v{T + 2}, 4, v{T + 2}")
    h(f"v_lshl_add_u32 v{T + 2}, v{T}, 10, v{T + 2}")
    h(f"s_lshl_b32 s{sT0}, s{sHw}, 14")
    h(f"s_lshl_b32 s{sT1}, s{sCb}, 7")
    h(f"s_add_u32 s{sT0}, s{sT0}, s{sT1}")
    h(f"v_add_u32 v{vWoff}, s{sT0}, v{T + 2}")
    h(f"v_add_u32 v{vWoff + 1}, {8192 - 1024}, v{vWoff}")
    h(f"s_lshl_b32 s32, s{sHw}, 11")
    h(f"s_lshl_b32 s33, s{sRb}, 1")
    h(f"s_add_u32 s33, s33, s{sWr}")
    h(f"s_mul_i32 s34, s33, {KS * 1024}")
    h(f"s_lshl_b32 s{sT1}, s{sWc}, 11")
    h(f"s_add_u32 s34, s34, s{sT1}")
    h(f"s_add_u32 s34, s34, {ACT}")
    h(f"s_lshl_b32 s35, s{sWr}, 12")
    h(f"s_add_u32 s35, s35, s{sT1}")
    if k3:
        h(f"v_lshrrev_b32 v{T + 2}, 1, v{T}")
        h(f"v_xor_b32 v{T + 2}, v{T + 2}, v{T + 1}")
        h(f"v_lshlrev_b32 v{T + 2}, 4, v{T + 2}")
        h(f"v_lshl_add_u32 v{vXg}, v{T}, 10, v{T + 2}")
        h(f"v_xor_b32 v{vXg + 1}, 64, v{vXg}")
        h(f"v_add_u32 v{vXg + 1}, {8192 - 1024}, v{vXg + 1}")
        h(f"s_lshl_b32 s36, s{sRb}, 16")
        h(f"s_add_u32 s36, s36, s{sT0}")
    else:
        h(f"s_lshl_b32 s36, s33, 15")
        h(f"s_lshl_b32 s{sT0}, s{sCb}, 12")
        h(f"s_add_u32 s36, s36, s{sT0}")
        h(f"s_add_u32 s36, s36, s{sT1}")
        h(f"s_add_u32 s36, s36, {HF}")
    h("s_waitcnt lgkmcnt(0)")
    srd(h, sWS, 8, WS_SIZE)
    srd(h, sW, 4, KS * 16 * 1024)
    if k3:
        srd(h, sIO, 6, 2048 * 1024)
    dr = Drip(h)

    def issue(st):
        sl = (st % NSLOT) * SLOT
        dr.add(st, [f"s_add_u32 m0, s35, {sl + 8192}", f"s_add_u32 s43, s34, {st * 4096}"],
               f"buffer_load_dwordx4 v{vL16}, {sr(sWS, 4)}, s43 offen lds")
        dr.add(st, [], f"buffer_load_dwordx4 v{vL16}, {sr(sWS, 4)}, s43 offen offset:1024 lds")
        dr.add(st, [f"s_add_u32 m0, s32, {sl}", f"s_mov_b32 s42, {st * 65536}"],
               f"buffer_load_dwordx4 v{vWoff}, {sr(sW, 4)}, s42 offen lds")
        dr.add(st, [], f"buffer_load_dwordx4 v{vWoff + 1}, {sr(sW, 4)}, s42 offen offset:1024 lds")
        if st == RST:
            if k3:
                dr.add(st, [f"s_add_u32 m0, s32, {RESO}", "s_nop 0"], f"buffer_load_dwordx4 v{vXg}, {sr(sIO, 4)}, s36 offen lds")
                dr.add(st, [], f"buffer_load_dwordx4 v{vXg + 1}, {sr(sIO, 4)}, s36 offen offset:1024 lds")
            else:
                dr.add(st, [f"s_add_u32 m0, s35, {RESO}", "s_nop 0"], f"buffer_load_dwordx4 v{vL16}, {sr(sWS, 4)}, s36 offen lds")
                dr.add(st, [], f"buffer_load_dwordx4 v{vL16}, {sr(sWS, 4)}, s36 offen offset:1024 lds")

    for st in range(min(NSLOT, NST)):
        issue(st)
    AHEAD = OPT["k3_d"] if k3 else OPT["k5_d"]
    stamp(h)
    for st in range(NST):
        while dr.q and dr.q[0][0] <= st + AHEAD:
            dr.emit()
        dr.wait(st)
        h("s_barrier")
        if st in (0, NST // 2, NST - 1):
            stamp(h)
        if st >= 1 and st + NSLOT - 1 < NST:
            issue(st + NSLOT - 1)
    stamp_flush(h, kidx, sWS, sWave) if STAMPS else None
    h("s_endpgm")
    a.lines += h.lines
    a.label(f"L_{kind}_helper_skip")

    vWrd, vAr, vRr, vTw, vTr, vOut = [3, 4], [5, 6], [7, 8], 9, 10, 11
    ID = 24
    FR = [32, 80]
    acc = 128
    a(f"v_and_b32 v{T}, 31, v{vLane}")
    a(f"v_lshrrev_b32 v{T + 1}, 5, v{vLane}")
    a(f"v_bfe_u32 v{T + 2}, v{vLane}, 2, 2")
    a(f"v_lshl_add_u32 v{T + 3}, v{T + 1}, 2, v{T + 2}")
    a(f"v_lshlrev_b32 v{T + 3}, 7, v{T + 3}")
    a(f"v_bfe_u32 v{T + 4}, v{vLane}, 4, 1")
    a(f"v_lshl_add_u32 v{T + 3}, v{T + 4}, 5, v{T + 3}")
    a(f"v_and_b32 v{T + 4}, 3, v{vLane}")
    a(f"v_lshl_add_u32 v{T + 3}, v{T + 4}, 3, v{T + 3}")
    a(f"v_lshrrev_b32 v{T + 2}, 1, v{T + 2}")
    a(f"v_xor_b32 v{T + 2}, s{sWc}, v{T + 2}")
    a(f"v_lshl_add_u32 v{vWrd[0]}, v{T + 2}, 6, v{T + 3}")
    wl = LdsAddr(a, vWrd)
    wl.setup(a)
    a(f"s_lshl_b32 s{sT0}, s{sWr}, 12")
    a(f"s_add_u32 s{sT1}, s{sT0}, 8192")
    a(f"v_add_u32 v{vAr[0]}, s{sT1}, v{vL16}")
    al = LdsAddr(a, vAr)
    al.setup(a)
    if k3:
        a(f"v_bfe_u32 v{T + 2}, v{vLane}, 1, 3")
        a(f"v_xor_b32 v{T + 2}, v{T + 2}, v{T + 1}")
        a(f"s_lshl_b32 s{sT1}, s{sWc}, 2")
        a(f"v_xor_b32 v{T + 2}, s{sT1}, v{T + 2}")
        a(f"v_lshlrev_b32 v{T + 2}, 4, v{T + 2}")
        a(f"v_lshl_add_u32 v{T + 2}, v{T}, 7, v{T + 2}")
        a(f"s_add_u32 s{sT0}, s{sT0}, {RESO}")
        a(f"v_add_u32 v{vRr[0]}, s{sT0}, v{T + 2}")
        a(f"v_xor_b32 v{vRr[1]}, 32, v{vRr[0]}")
    else:
        a(f"s_lshl_b32 s{sT1}, s{sWc}, 11")
        a(f"s_add_u32 s{sT0}, s{sT0}, s{sT1}")
        a(f"s_add_u32 s{sT0}, s{sT0}, {RESO}")
        a(f"v_add_u32 v{vRr[0]}, s{sT0}, v{vL16}")
        a(f"v_add_u32 v{vRr[1]}, 1024, v{vRr[0]}")
    a(f"v_mov_b32 v{T + 5}, 0x3f80")
    for e in range(2):
        if k3:
            a(f"v_lshlrev_b32 v{T + 2}, 3, v{T + 1}")
            a(f"v_sub_u32 v{T + 2}, v{T}, v{T + 2}")
            a(f"v_subrev_u32 v{T + 2}, {16 * e}, v{T + 2}")
        else:
            a(f"v_bfe_u32 v{T + 2}, v{vLane}, 3, 1")
            a(f"v_and_b32 v{T + 3}, 3, v{vLane}")
            a(f"v_lshl_add_u32 v{T + 2}, v{T + 2}, 2, v{T + 3}")
            a(f"v_bfe_u32 v{T + 3}, v{vLane}, 2, 1")
            a(f"v_xor_b32 v{T + 3}, v{T + 3}, v{T + 1}")
            a(f"v_bfe_u32 v{T + 4}, v{vLane}, 4, 1")
            a(f"v_xor_b32 v{T + 4}, {e}, v{T + 4}")
            a(f"v_or_b32 v{T + 3}, v{T + 3}, v{T + 4}")
            a(f"v_lshl_add_u32 v{T + 2}, v{T + 3}, 4, v{T + 2}")
        a(f"v_and_b32 v{T + 3}, 1, v{T + 2}")
        a(f"v_lshlrev_b32 v{T + 3}, 4, v{T + 3}")
        a(f"v_lshlrev_b32 v{T + 3}, v{T + 3}, v{T + 5}")
        a(f"v_lshrrev_b32 v{T + 2}, 1, v{T + 2}")
        for r in range(4):
            a(f"v_cmp_eq_u32 vcc, {r}, v{T + 2}")
            a("s_nop 1")
            a(f"v_cndmask_b32 v{ID + 4 * e + r}, 0, v{T + 3}, vcc")
    a(f"s_lshl_b32 s33, s{sRb}, 1")
    a(f"s_add_u32 s33, s33, s{sWr}")
    a(f"s_lshl_b32 s34, s{sCb}, 1")
    a(f"s_add_u32 s34, s34, s{sWc}")
    if k3:
        a(f"s_lshl_b32 s36, s33, 15")
        a(f"s_lshl_b32 s37, s34, 11")
        a(f"s_add_u32 s36, s36, s37")
        a(f"s_add_u32 s36, s36, {HF}")
        a(f"s_lshl_b32 s37, s34, 14")
        a(f"s_lshl_b32 s{sT1}, s33, 8")
        a(f"s_add_u32 s37, s37, s{sT1}")
        a(f"s_add_u32 s37, s37, {ST}")
        a("s_mov_b32 s41, 0x3f803f80")
        a(f"v_lshlrev_b32 v{vOut}, 3, v{vLane}")
    else:
        a(f"s_mul_i32 s{sT0}, s{sHw}, 2560")
        a(f"s_add_u32 s{sT0}, s{sT0}, {TRO}")
        a(f"v_mul_u32_u24 v{T + 2}, 80, v{T}")
        a(f"v_lshl_add_u32 v{T + 2}, v{T + 1}, 3, v{T + 2}")
        a(f"v_add_u32 v{vTw}, s{sT0}, v{T + 2}")
        a(f"v_lshrrev_b32 v{T + 2}, 2, v{vLane}")
        a(f"v_and_b32 v{T + 3}, 3, v{vLane}")
        a(f"v_lshlrev_b32 v{T + 3}, 4, v{T + 3}")
        a(f"v_mad_u32_u24 v{T + 4}, v{T + 2}, 64, v{T + 3}")
        a(f"v_lshl_add_u32 v{T + 4}, v{T + 2}, 4, v{T + 4}")
        a(f"v_add_u32 v{vTr}, s{sT0}, v{T + 4}")
        a(f"v_lshl_add_u32 v{vOut}, v{T + 2}, 10, v{T + 3}")
        a(f"s_lshl_b32 s36, s33, 15")
        a(f"s_lshl_b32 s37, s34, 6")
        a(f"s_add_u32 s36, s36, s37")
        a(f"s_add_u32 s37, s36, 16384")
    a("s_waitcnt lgkmcnt(0)")
    if k3 or STAMPS or DBGT:
        srd(a, sWS, 8, WS_SIZE)
    if not k3:
        srd(a, sIO, 6, 2048 * 1024)
    stamp(a)
    first = True
    for st in range(NST):
        a("s_barrier")
        if st in (0, NST // 2):
            stamp(a)
        sl = (st % NSLOT) * SLOT
        F = FR[st & 1]
        n = min(4, KS - 4 * st)
        tk = []
        for k in range(n):
            reg, off = al.at(sl + k * 1024)
            a.lg(f"ds_read_b128 {vr(F + 8 * k, 4)}, {reg} offset:{off}")
            for half in range(2):
                reg, off = wl.at(sl + k * 2048 + half * 1024)
                t = a.lg(f"ds_read_b64_tr_b16 {vr(F + 8 * k + 4 + 2 * half, 2)}, {reg} offset:{off}")
            tk.append(t)
        if st == RST:
            for e in range(2):
                tk.append(a.lg(f"ds_read_b128 {vr(F + 32 + 4 * e, 4)}, v{vRr[e]}"))
        for k in range(n):
            a.wait(lg=tk[k])
            a(f"v_mfma_f32_32x32x16_bf16 {vr(acc, 16)}, {vr(F + 8 * k + 4, 4)}, {vr(F + 8 * k, 4)}, {'0' if first else vr(acc, 16)}")
            first = False
        if st == RST:
            for e in range(2):
                a.wait(lg=tk[n + e])
                a(f"v_mfma_f32_32x32x16_bf16 {vr(acc, 16)}, {vr(ID + 4 * e, 4)}, {vr(F + 32 + 4 * e, 4)}, {vr(acc, 16)}")
    stamp(a)
    a("s_nop 11")
    P = 32
    for i in range(8):
        a(f"v_cvt_pk_bf16_f32 v{P + i}, v{acc + 2 * i}, v{acc + 2 * i + 1}")
    if k3:
        a.vm(f"buffer_store_dwordx4 {vr(P, 4)}, v{vL16}, {sr(sWS, 4)}, s36 offen")
        a.vm(f"buffer_store_dwordx4 {vr(P + 4, 4)}, v{vL16}, {sr(sWS, 4)}, s36 offen offset:1024")
        a(f"v_dot2_f32_bf16 v{T}, v{P}, s41, 0")
        a(f"v_dot2_f32_bf16 v{T + 1}, v{P}, v{P}, 0")
        for i in range(1, 8):
            a(f"v_dot2_f32_bf16 v{T}, v{P + i}, s41, v{T}")
            a(f"v_dot2_f32_bf16 v{T + 1}, v{P + i}, v{P + i}, v{T + 1}")
        a("s_nop 2")
        a(f"v_mov_b32 v{T + 2}, v{T}")
        a(f"v_mov_b32 v{T + 3}, v{T + 1}")
        a("s_nop 0")
        a(f"v_permlane32_swap_b32 v{T}, v{T + 2}")
        a(f"v_permlane32_swap_b32 v{T + 1}, v{T + 3}")
        a("s_nop 0")
        a(f"v_add_f32 v{T}, v{T}, v{T + 2}")
        a(f"v_add_f32 v{T + 1}, v{T + 1}, v{T + 3}")
        a("s_mov_b32 exec_hi, 0")
        a.vm(f"buffer_store_dwordx2 {vr(T, 2)}, v{vOut}, {sr(sWS, 4)}, s37 offen")
    else:
        for g in range(4):
            a.lg(f"ds_write_b64 v{vTw}, {vr(P + 2 * g, 2)} offset:{g * 16}")
        a.wait_all(vm=False)
        t0 = a.lg(f"ds_read_b128 {vr(P + 8, 4)}, v{vTr}")
        t1 = a.lg(f"ds_read_b128 {vr(P + 12, 4)}, v{vTr} offset:{16 * 80}")
        a.wait(lg=t0)
        a.vm(f"buffer_store_dwordx4 {vr(P + 8, 4)}, v{vOut}, {sr(sIO, 4)}, s36 offen")
        a.wait(lg=t1)
        a.vm(f"buffer_store_dwordx4 {vr(P + 12, 4)}, v{vOut}, {sr(sIO, 4)}, s37 offen")
    stamp(a)
    stamp_flush(a, kidx, sWS, sWave)
    kernel_end(a, name)
    return name, a.text(), descriptor(name, 144, 0), (256, 512, TRO + 4 * 2560)


def gen_k4():
    name = "k4_glu_kernel"
    a = Asm()
    kernel_begin(a, name, 240)
    sG, sU, sWS = 12, 16, 20
    sWave, sRb, sCg, sHw = 24, 25, 26, 28
    sT0, sT1, sWL, sAct = 30, 31, 32, 33
    vLane, vL16 = 1, 2
    vWoff = [3, 4, 5]
    vWrd = [6, 7, 8]
    vWrdO = [9, 10, 11]
    vXa = [3, 4, 5]
    vT = 16
    ACC = 32
    XF = [128, 136]
    WF = [144, 156]
    CS = 168
    ONES = 180
    AS = 184
    XE = 188
    vCw, vCr, vEr = 196, 197, 198
    SLOT, NSLOT, XO, NST = 20480, 7, 12288, 16
    CSO = NSLOT * SLOT
    XEO = CSO + 2048
    a("s_load_dwordx4 s[4:7], s[0:1], 32")
    a("s_load_dwordx2 s[8:9], s[0:1], 72")
    a("s_load_dwordx2 s[10:11], s[0:1], 48")
    a(f"v_and_b32 v{vLane}, 63, v0")
    a(f"v_lshrrev_b32 v{vT}, 6, v0")
    a(f"v_lshlrev_b32 v{vL16}, 4, v{vLane}")
    a(f"v_readfirstlane_b32 s{sWave}, v{vT}")
    a(f"s_and_b32 s{sT0}, s2, 7")
    a(f"s_lshl_b32 s{sT0}, s{sT0}, 1")
    a(f"s_bfe_u32 s{sT1}, s2, 0x10003")
    a(f"s_add_u32 s{sRb}, s{sT0}, s{sT1}")
    a(f"s_lshr_b32 s{sCg}, s2, 4")
    a(f"s_and_b32 s{sHw}, s{sWave}, 3")
    a(f"s_cmp_ge_u32 s{sWave}, 4")
    a(f"s_cbranch_scc0 L_k4_helper_skip")

    h = fork(a)
    h.label("L_k4_helper")
    h(f"s_lshl_b32 s{sAct}, s{sRb}, 2")
    h(f"s_add_u32 s{sAct}, s{sAct}, s{sHw}")
    h(f"s_lshl_b32 s{sAct}, s{sAct}, 15")
    h(f"s_add_u32 s{sAct}, s{sAct}, {HF}")
    h(f"s_lshr_b32 s34, s{sHw}, 1")
    h(f"s_and_b32 s35, s{sHw}, 1")
    h(f"s_mul_i32 s{sT0}, s34, {16 * 2752}")
    h(f"s_mul_i32 s{sT1}, s{sCg}, 192")
    h(f"s_add_u32 s{sT0}, s{sT0}, s{sT1}")
    h(f"v_and_b32 v{vT + 3}, 2, v{vLane}")
    h(f"v_lshlrev_b32 v{vT + 3}, 5, v{vT + 3}")
    h(f"v_sub_u32 v{vT + 3}, 32, v{vT + 3}")
    h(f"v_mul_lo_u32 v{vT + 3}, v{vT + 3}, s35")
    h(f"v_add_u32 v{vT + 3}, s{sT0}, v{vT + 3}")
    for i in range(3):
        h(f"v_add_u32 v{vT}, {64 * i}, v{vLane}")
        h(f"v_mul_u32_u24 v{vT + 1}, 171, v{vT}")
        h(f"v_lshrrev_b32 v{vT + 1}, 11, v{vT + 1}")
        h(f"v_mul_u32_u24 v{vT + 2}, {2752 - 192}, v{vT + 1}")
        h(f"v_add3_u32 v{vWoff[i]}, v{vL16}, v{vT + 2}, v{vT + 3}")
    h(f"s_mul_i32 s{sWL}, s{sHw}, 3072")
    h(f"s_lshl_b32 s36, s{sHw}, 11")
    h(f"s_add_u32 s36, s36, {XO}")
    h("s_waitcnt lgkmcnt(0)")
    srd(h, sWS, 8, WS_SIZE)
    h("s_cmp_eq_u32 s35, 0")
    h(f"s_cselect_b32 s{sG}, s4, s6")
    h(f"s_cselect_b32 s{sG + 1}, s5, s7")
    h(f"s_mov_b32 s{sG + 2}, {hx(512 * 2752)}")
    h(f"s_mov_b32 s{sG + 3}, 0x00020000")
    dr = Drip(h)

    def issue(st):
        for i in range(2):
            pre = [f"s_add_u32 m0, s36, {(st % NSLOT) * SLOT}", f"s_add_u32 s43, s{sAct}, {st * 2048}"] if i == 0 else []
            dr.add(st, pre, f"buffer_load_dwordx4 v{vL16}, {sr(sWS, 4)}, s43 offen offset:{i * 1024} lds")
        for i in range(3):
            pre = [f"s_add_u32 m0, s{sWL}, {(st % NSLOT) * SLOT}", f"s_mov_b32 s42, {st * 32 * 2752}"] if i == 0 else []
            dr.add(st, pre, f"buffer_load_dwordx4 v{vWoff[i]}, {sr(sG, 4)}, s42 offen offset:{i * 1024} lds")

    for st in range(NSLOT):
        issue(st)
    AHEAD = OPT["k4_d"]
    dr.emit(5 * AHEAD)
    vPf, vPd = 13, 14
    srd(h, 44, 10, 1376 * 1024)
    h(f"s_lshr_b32 s{sT0}, s2, 3")
    h(f"s_lshl_b32 s{sT0}, s{sT0}, 2")
    h(f"s_add_u32 s{sT0}, s{sT0}, s{sHw}")
    h(f"s_lshl_b32 s{sT0}, s{sT0}, 13")
    h(f"v_lshlrev_b32 v{vPf}, 7, v{vLane}")
    h(f"v_add_u32 v{vPf}, s{sT0}, v{vPf}")
    h(f"v_add_u32 v15, {120 * 8192}, v{vPf}")
    h(f"v_lshrrev_b32 v{vT + 3}, 5, v{vLane}")
    h(f"v_and_b32 v{vT + 4}, 31, v{vLane}")
    h(f"v_lshlrev_b32 v{vT + 4}, 3, v{vT + 4}")
    h(f"v_lshl_add_u32 v{vT + 4}, v{vT + 3}, 17, v{vT + 4}")
    h(f"s_lshl_b32 s34, s{sRb}, 2")
    h(f"s_add_u32 s34, s34, s{sHw}")
    h(f"s_lshl_b32 s34, s34, 8")
    h(f"s_add_u32 s34, s34, {ST}")
    h(f"s_lshl_b32 s{sT0}, s{sHw}, 11")
    h(f"s_add_u32 s{sT0}, s{sT0}, {XEO}")
    h(f"v_add_u32 v{vT + 5}, s{sT0}, v{vL16}")
    h(f"v_lshl_add_u32 v{vT + 6}, v{vLane}, 3, s{sT0}")
    SP = 32
    stamp(h)
    for st in range(NST):
        dr.wait(st)
        vS, vQ, vM, vA = 60, 61, 62, 64
        if st == 11:
            dr.wait("st")
            h(f"v_add_f32 v{vS}, v{SP}, v{SP + 2}")
            h(f"v_add_f32 v{vQ}, v{SP + 1}, v{SP + 3}")
            for i in range(2, 8):
                h(f"v_add_f32 v{vS}, v{vS}, v{SP + 2 * i}")
                h(f"v_add_f32 v{vQ}, v{vQ}, v{SP + 2 * i + 1}")
        if st == 12:
            half_sum(h, vS, vT)
            half_sum(h, vQ, vT)
            h(f"v_mul_f32 v{vM}, {hx(f2u(-1.0 / 512))}, v{vS}")
            h(f"v_mul_f32 v{vQ}, {hx(f2u(1.0 / 512))}, v{vQ}")
            h(f"v_fma_f32 v{vQ}, -v{vM}, v{vM}, v{vQ}")
            h(f"v_max_f32 v{vQ}, 0, v{vQ}")
            h(f"v_add_f32 v{vQ}, {hx(f2u(1e-5))}, v{vQ}")
        if st == 13:
            h(f"v_rsq_f32 v{vA}, v{vQ}")
            split_hi_lo(h, vM, 68, vT, vT + 1)
            h(f"v_mul_f32 v{vA + 1}, v{vQ}, v{vA}")
            h(f"v_mul_f32 v{vA}, {hx(f2u(-LOG2E))}, v{vA}")
            h(f"v_cvt_pk_bf16_f32 v69, v{vT}, 0")
            h("v_mov_b32 v70, 0")
            h("v_mov_b32 v71, 0")
            h.lg(f"ds_write_b128 v{vT + 5}, v[68:71]")
            h.lg(f"ds_write_b64 v{vT + 6}, {vr(vA, 2)} offset:1024")
        if st == 14:
            h.wait_all(vm=False)
            dr.wait(15)
            if OPT["k4_pf"]:
                h.vm(f"buffer_load_dword v{vPd}, v{vPf}, s[44:47], 0 offen")
        if st == 15 and OPT["k4_pf"]:
            h.vm(f"buffer_load_dword v{vPd}, v15, s[44:47], 0 offen")
        h("s_barrier")
        if st in (0, 2, 4, 6, 8, 10, 12, 13, 14, 15):
            stamp(h)
        if st >= 1 and st + NSLOT - 1 < NST:
            issue(st + NSLOT - 1)
        tgt = min(NST - 1, st + AHEAD + min(st + 1, OPT["k4_g"]))
        while dr.q and dr.q[0][0] <= tgt:
            dr.emit()
        if 5 <= st <= 8:
            for i in (2 * (st - 5), 2 * (st - 5) + 1):
                h(f"s_add_u32 s{sT0}, s34, {i * 16384}")
                dr.tok["st"] = h.vm(f"buffer_load_dwordx2 {vr(SP + 2 * i, 2)}, v{vT + 4}, {sr(sWS, 4)}, s{sT0} offen")
    h("s_barrier")
    stamp_flush(h, 3, sWS, sWave) if STAMPS else None
    h("s_endpgm")
    a.lines += h.lines
    a.label("L_k4_helper_skip")

    sWr2, sWc = 36, 37
    a(f"s_lshr_b32 s{sWr2}, s{sHw}, 1")
    a(f"s_and_b32 s{sWc}, s{sHw}, 1")
    a(f"s_lshl_b32 s34, s{sRb}, 1")
    a(f"s_add_u32 s34, s34, s{sWr2}")
    a(f"v_lshrrev_b32 v{vT + 3}, 5, v{vLane}")
    a(f"v_bfe_u32 v{vT}, v{vLane}, 2, 2")
    a(f"v_lshl_add_u32 v{vT}, v{vT + 3}, 2, v{vT}")
    a(f"v_mul_u32_u24 v{vT}, 192, v{vT}")
    a(f"v_and_b32 v{vT + 1}, 3, v{vLane}")
    a(f"v_lshl_add_u32 v{vT}, v{vT + 1}, 3, v{vT}")
    a(f"s_mul_i32 s{sT0}, s{sWc}, 96")
    a(f"v_add_u32 v{vT}, s{sT0}, v{vT}")
    a(f"v_bfe_u32 v{vT + 1}, v{vLane}, 4, 1")
    a(f"s_lshl_b32 s{sT0}, s{sWc}, 6")
    a(f"s_sub_u32 s{sT1}, {3072 + 32}, s{sT0}")
    a(f"s_add_u32 s{sT0}, {3072 - 32}, s{sT0}")
    a(f"v_mad_u32_u24 v{vWrd[0]}, v{vT + 1}, s{sT1}, v{vT}")
    a(f"v_mad_u32_u24 v{vWrdO[0]}, v{vT + 1}, s{sT0}, v{vT}")
    wl = [LdsAddr(a, vWrd), LdsAddr(a, vWrdO)]
    wl[0].setup(a)
    wl[1].setup(a)
    a(f"s_lshl_b32 s{sT0}, s{sWr2}, 12")
    a(f"s_add_u32 s{sT0}, s{sT0}, {XO}")
    a(f"v_add_u32 v{vXa[0]}, s{sT0}, v{vL16}")
    xl = LdsAddr(a, vXa)
    xl.setup(a)
    a(f"v_xor_b32 v{vT}, v{vT + 1}, v{vLane}")
    a(f"v_and_b32 v{vT}, 1, v{vT}")
    a(f"v_cmp_eq_u32 vcc, 0, v{vT}")
    a(f"v_mov_b32 v{vT}, 0x3f803f80")
    a("s_nop 0")
    for r in range(4):
        a(f"v_cndmask_b32 v{ONES + r}, 0, v{vT}, vcc")
    a(f"s_lshl_b32 s{sT0}, s{sWc}, 1")
    a(f"s_add_u32 s{sT1}, s{sT0}, s{sWr2}")
    a(f"s_mul_i32 s{sT1}, s{sT1}, 384")
    a(f"s_add_u32 s{sT1}, s{sT1}, {CSO}")
    a(f"v_and_b32 v{vT}, 1, v{vLane}")
    a(f"v_lshlrev_b32 v{vT}, 6, v{vT}")
    a(f"v_and_b32 v{vT + 1}, 48, v{vLane}")
    a(f"v_add3_u32 v{vCw}, v{vT}, v{vT + 1}, s{sT1}")
    a(f"s_mul_i32 s{sT0}, s{sT0}, 384")
    a(f"s_add_u32 s{sT0}, s{sT0}, {CSO}")
    a(f"v_mul_u32_u24 v{vT}, 384, v{vT + 3}")
    a(f"v_and_b32 v{vT + 1}, 31, v{vLane}")
    a(f"v_lshl_add_u32 v{vT}, v{vT + 1}, 2, v{vT}")
    a(f"v_add_u32 v{vCr}, s{sT0}, v{vT}")
    a(f"s_mul_i32 s34, s34, {2 * 86 * 1024}")
    a(f"s_lshl_b32 s35, s{sCg}, 1")
    a(f"s_add_u32 s35, s35, s{sWc}")
    a(f"s_mul_i32 s38, s35, 3")
    a(f"s_lshl_b32 s35, s38, 10")
    a("s_add_u32 s34, s34, s35")
    a(f"s_add_u32 s34, s34, {GF}")
    a(f"s_add_u32 s35, s34, {86 * 1024}")
    for r in range(12):
        a(f"v_mov_b32 v{CS + r}, 0")
    a(f"s_lshl_b32 s{sT0}, s{sWr2}, 12")
    a(f"s_add_u32 s{sT0}, s{sT0}, {XEO}")
    a(f"v_add_u32 v{vEr}, s{sT0}, v{vL16}")
    a(f"v_lshl_add_u32 v{vEr + 1}, v{vLane}, 3, s{sT0}")
    a("s_waitcnt lgkmcnt(0)")
    srd(a, sWS, 8, WS_SIZE)

    def reads(s):
        st, ss = divmod(s, 2)
        W = []
        for j in range(3):
            for half in range(2):
                reg, off = wl[j & 1].at((st % NSLOT) * SLOT + ss * 6144 + half * 8 * 192 + j * 32)
                W.append(f"ds_read_b64_tr_b16 {vr(WF[s & 1] + 4 * j + 2 * half, 2)}, {reg} offset:{off}")
        X = []
        for i in range(2):
            reg, off = xl.at((st % NSLOT) * SLOT + i * 2048 + ss * 1024)
            X.append(f"ds_read_b128 {vr(XF[s & 1] + 4 * i, 4)}, {reg} offset:{off}")
        return [X[0], W[0], W[1], X[1], W[2], W[3], W[4], W[5]]

    rt = {}

    def emit_reads(b, s, lo, hi):
        ops = reads(s)
        for k in range(lo, min(hi, 8)):
            rt[(s, k)] = b.lg(ops[k])

    stamp(a)
    a("s_barrier")
    stamp(a)
    emit_reads(a, 0, 0, 8)
    a(f"s_cmp_eq_u32 s{sWr2}, 1")
    a("s_cbranch_scc1 L_k4_odd")
    cuts = [0, 2, 4, 6, 8, 8, 8]
    need = [3, 3, 5, 5, 7, 7]
    rt0 = dict(rt)
    odd = fork(a)
    odd.label("L_k4_odd")
    for par, b in ((0, a), (1, odd)):
        rt.clear()
        rt.update(rt0)
        def main(s, m):
            j, i = divmod(m, 2)
            d = ACC + 16 * m
            c = "0" if s == 0 else vr(d, 16)
            b(f"v_mfma_f32_32x32x16_bf16 {vr(d, 16)}, {vr(WF[s & 1] + 4 * j, 4)}, {vr(XF[s & 1] + 4 * i, 4)}, {c}")

        def csum(s, j):
            b(f"v_mfma_f32_16x16x32_bf16 {vr(CS + 4 * j, 4)}, {vr(WF[s & 1] + 4 * j, 4)}, {vr(ONES, 4)}, {vr(CS + 4 * j, 4)}")

        for s in range(31):
            if s == 16:
                stamp(b)
            if s % 2 == 1:
                b.wait(lg=rt[(s, 7)])
                b("s_barrier")
            for m in range(6):
                b.wait(lg=rt[(s, need[m])])
                if m % 2 == 0 and s % 2 == par:
                    csum(s, m // 2)
                main(s, m)
                emit_reads(b, s + 1, cuts[m], cuts[m + 1])
                if s == 29 and m >= 4:
                    b.lg(f"ds_read_b128 {vr(XE + 4 * (m - 4), 4)}, v{vEr} offset:{(m - 4) * 2048}")
                    b.lg(f"ds_read_b64 {vr(AS + 2 * (m - 4), 2)}, v{vEr + 1} offset:{(m - 4) * 2048 + 1024}")
        b.wait_all(vm=False)
        if par == 1:
            for j in range(3):
                csum(31, j)
    odd("s_branch L_k4_join")
    a.label("L_k4_join")
    b = a
    main(31, 0)
    for j in range(3):
        a(f"v_mov_b32 v{WF[0] + 4 * j + 2}, 0")
        a(f"v_mov_b32 v{WF[0] + 4 * j + 3}, 0")
    main(31, 1)
    a("s_mov_b32 exec_lo, 0x00030003")
    a("s_mov_b32 exec_hi, 0x00030003")
    for j in range(3):
        a.lg(f"ds_write_b128 v{vCw}, {vr(CS + 4 * j, 4)} offset:{j * 128}")
    a("s_mov_b64 exec, -1")
    main(31, 2)
    main(31, 3)
    a.wait_all(vm=False)
    a("s_barrier")
    for j in range(3):
        rt[("c", j)] = a.lg(f"ds_read_b32 v{vT + 4 + j}, v{vCr} offset:{j * 128}")
    main(31, 4)
    main(31, 5)
    stamp(a)
    for j in range(3):
        w = WF[0] + 4 * j
        a.wait(lg=rt[("c", j)])
        a(f"v_cvt_pk_bf16_f32 v{w + 1}, v{vT + 4 + j}, 0")
        a(f"v_lshlrev_b32 v{vT}, 16, v{w + 1}")
        a(f"v_sub_f32 v{vT}, v{vT + 4 + j}, v{vT}")
        a(f"v_cvt_pk_bf16_f32 v{w}, v{vT + 4 + j}, v{vT}")
    for j in range(3):
        for i in range(2):
            d = ACC + 32 * j + 16 * i
            a(f"v_mfma_f32_32x32x16_bf16 {vr(d, 16)}, {vr(WF[0] + 4 * j, 4)}, {vr(XE + 4 * i, 4)}, {vr(d, 16)}")
    stamp(a)
    a("s_nop 4")
    for j in range(3):
        a(f"s_cmp_ge_u32 s38, {86 - j}")
        a(f"s_cbranch_scc1 L_{name}_done")
        G = [(ACC + 32 * j + 16 * i + r, i) for i in range(2) for r in range(8)]
        for g, i in G[::2]:
            a(f"v_pk_mul_f32 {vr(g, 2)}, {vr(g, 2)}, {vr(AS + 2 * i, 2)} op_sel_hi:[1,0]")
        for g, i in G:
            a(f"v_exp_f32 v{g}, v{g}")
        for g, i in G[::2]:
            a(f"v_pk_fma_f32 {vr(g, 2)}, {vr(g, 2)}, {vr(AS + 2 * i, 2)}, {vr(AS + 2 * i, 2)} op_sel:[0,1,1] op_sel_hi:[1,1,1]")
        for g, i in G:
            a(f"v_rcp_f32 v{g}, v{g}")
        for g, i in G[::2]:
            a(f"v_pk_mul_f32 {vr(g, 2)}, {vr(g, 2)}, {vr(g + 8, 2)}")
        o = ACC + 32 * j + 8
        for i in range(8):
            a(f"v_cvt_pk_bf16_f32 v{o + i}, v{G[2 * i][0]}, v{G[2 * i + 1][0]}")
        a.vm(f"buffer_store_dwordx4 {vr(o, 4)}, v{vL16}, {sr(sWS, 4)}, s34 offen offset:{j * 1024}")
        a.vm(f"buffer_store_dwordx4 {vr(o + 4, 4)}, v{vL16}, {sr(sWS, 4)}, s35 offen offset:{j * 1024}")
    stamp(a)
    stamp_flush(a, 3, sWS, sWave)
    kernel_end(a, name)
    return name, a.text() + odd.text(), descriptor(name, 200, 0), (240, 512, XEO + 8192)


def build():
    ks = [gen_k1(), gen_k2(), gen_res("k3"), gen_k4(), gen_res("k5")]
    ref = open(f"cdna_kernels/{NAME}.s.ref").read().split("\n")
    head = [l for l in ref if l.startswith(";") and "@launch" not in l and "Override launch" not in l
            and "grid=ceil" not in l]
    out = "\n".join(head) + "\n"
    for name, _, _, (g, b, lds) in ks:
        out += f"; @launch kernel={name} grid=({g},1,1) block=({b},1,1) lds={lds}\n"
    out += '.amdgcn_target "amdgcn-amd-amdhsa--gfx950"\n.text\n'
    bad = 0
    for name, text, _, _ in ks:
        bad += check_hazards(text, name)
        out += text
    out += "L_code_end:\n"
    out += '.section .rodata,"a"\n'
    for name, _, desc, _ in ks:
        out += ".p2align 6\n" + desc
    if bad:
        print("hazards:", bad)
    return out


if __name__ == "__main__":
    path = sys.argv[1] if len(sys.argv) > 1 else f"cdna_kernels/{NAME}.s"
    for arg in sys.argv[2:]:
        if arg == "stamps":
            STAMPS = True
        elif arg == "dbgt":
            DBGT = True
        else:
            k_, v_ = arg.split("=")
            OPT[k_] = int(v_)
    open(path, "w").write(build())
    print("wrote", path)
```

```python
import sys

import gen as G
from gen import (Asm, Drip, LdsAddr, OPT, MB, QF, KVF, OF, HF, ST, GF, WS_SIZE, LOG2E, NAME, f2u, hx, vr, sr, srd,
                 fork, half_sum, split_hi_lo, code_prefetch, descriptor, check_hazards)

FLG = 11 * MB
F2, F3, F4, XT = FLG, FLG + 8192, FLG + 12288, FLG + 20480
OPT.update(dict(p3_a=3, p4_a=3, p5_a=4, p5_nw=11, p4_pf=10, p4_pre=6, p2_map=1, force_slow=0, ld=0, touch_out=1, touch2=1, k1_tout=11, p2_fine=0, p2_rot=1, p4_wr=1, sc="sc1"))

sWS, sWave, sHw = 12, 24, 29
sT0, sT1 = 30, 31
KX, KWO, KG, KU, KD, KO = 64, 68, 72, 74, 76, 78
vLane, vL16 = 1, 2


def LD():
    return ["sc1", "nt", "", "sc0 sc1", "sc0"][OPT["ld"]]


def stamp(a):
    if not G.STAMPS:
        return
    i = getattr(a, "nstamp", 0)
    a.nstamp = i + 1
    assert i < 18
    a("s_memtime s[100:101]")
    a.wait_all(vm=False)
    a(f"s_mov_b32 s{80 + i}, s100")


def stamp_real(a):
    if not G.STAMPS:
        return
    i = getattr(a, "nstamp", 0)
    a.nstamp = i + 1
    a("s_memrealtime s[100:101]")
    a.wait_all(vm=False)
    a(f"s_mov_b32 s{80 + i}, s100")


def stamp_flush(a):
    if not G.STAMPS:
        return
    a.wait_all()
    stamp(a)
    stamp_real(a)
    a("s_mov_b64 exec, -1")
    a("s_lshl_b32 s58, s2, 3")
    a(f"s_add_u32 s58, s58, s{sWave}")
    a("s_lshl_b32 s58, s58, 7")
    a(f"s_add_u32 s58, s58, {G.DBGO + MB}")
    a("v_mov_b32 v1, 0")
    for i in range(a.nstamp):
        a(f"v_mov_b32 v2, s{80 + i}")
        a(f"buffer_store_dword v2, v1, {sr(sWS, 4)}, s58 offen offset:{4 * i}")
    a.wait_all()


LMODE = 163840 - 16
sMode = 54
_uid = [0]


def stores(a, ins, always_slow=False):
    if always_slow:
        for x in ins:
            a.vm(x + " sc1")
        return
    _uid[0] += 1
    u = _uid[0]
    a(f"s_cmp_eq_u32 s{sMode}, 0")
    a(f"s_cbranch_scc1 L_st_{u}_s")
    for x in ins:
        a.vm(x)
    a(f"s_branch L_st_{u}_j")
    a.label(f"L_st_{u}_s")
    for x in ins:
        a(x + " sc1")
    a.label(f"L_st_{u}_j")


def publish(a, sOff, vt, always_slow=False):
    a(f"v_mov_b32 v{vt}, 0")
    a(f"v_mov_b32 v{vt + 1}, 1")
    a("s_mov_b64 exec, 1")
    a.wait_all(lg=False)
    stores(a, [f"buffer_store_dword v{vt + 1}, v{vt}, {sr(sWS, 4)}, s{sOff} offen"], always_slow)
    a("s_mov_b64 exec, -1")


def poll(a, sOff, vt, uid, nflags=64):
    a(f"s_cmp_lg_u32 s{sWave}, 0")
    a(f"s_cbranch_scc1 L_poll_{uid}_go")
    a(f"v_lshlrev_b32 v{vt}, 2, v{vLane}")
    a("s_mov_b32 s59, 0x40000")
    if nflags < 64:
        a(f"s_mov_b64 exec, {hx((1 << nflags) - 1)}")
    a.label(f"L_poll_{uid}")
    a(f"buffer_load_dword v{vt + 1}, v{vt}, {sr(sWS, 4)}, s{sOff} offen sc1")
    a("s_sub_u32 s59, s59, 1")
    a("s_waitcnt vmcnt(0)")
    a(f"v_cmp_ne_u32 vcc, 1, v{vt + 1}")
    a("s_cmp_eq_u32 s59, 0")
    a(f"s_cbranch_scc1 L_poll_{uid}_x")
    a(f"s_cbranch_vccnz L_poll_{uid}")
    a.label(f"L_poll_{uid}_x")
    a("s_mov_b64 exec, -1")
    a.label(f"L_poll_{uid}_go")
    a("s_barrier")


def phase2(a, name):
    sHead, sQb, sKh, sQs = 25, 26, 27, 28
    sVm = 34
    vKrd, vVrd, vIdx, vXw, vXr = 3, 4, 5, 6, 7
    Qf = [8, 12]
    Kf, Vf = 16, 32
    S = [64, 80]
    O = [96, 112]
    NEG = 128
    T = 144
    XCH = 131072
    NPRE = 2
    FINE = OPT["p2_map"] or OPT["p2_fine"]
    a("s_load_dwordx2 s[8:9], s[0:1], 72")
    a("s_load_dwordx16 s[64:79], s[0:1], 0")
    a(f"v_lshrrev_b32 v8, 6, v0")
    a(f"v_and_b32 v{vLane}, 63, v0")
    a(f"v_readfirstlane_b32 s{sWave}, v8")
    a(f"v_lshlrev_b32 v{vL16}, 4, v{vLane}")
    if OPT["p2_map"]:
        a(f"s_lshr_b32 s{sHead}, s2, 3")
    else:
        a(f"s_and_b32 s{sT0}, s2, 7")
        a(f"s_lshl_b32 s{sT0}, s{sT0}, 2")
        a(f"s_lshr_b32 s{sT1}, s2, 6")
        a(f"s_add_u32 s{sHead}, s{sT0}, s{sT1}")
    a(f"s_lshl_b32 s33, s{sHead}, 17")
    a(f"s_add_u32 s33, s33, {KVF}")
    a(f"s_cmp_eq_u32 s{sWave}, 8")
    a("s_cbranch_scc0 L_p2_compute")
    a("s_barrier")
    a("s_branch L_p2_loader")
    a.label("L_p2_compute")

    h = fork(a)
    h.label("L_p2_loader")
    h("s_setprio 3")
    h("s_getreg_b32 s56, hwreg(HW_REG_XCC_ID, 0, 4)")
    h("s_add_u32 s56, s56, 1")
    h("s_and_b32 s57, s2, 7")
    h("s_lshl_b32 s57, s57, 8")
    h(f"s_add_u32 s57, s57, {XT}")
    h("s_lshr_b32 s58, s2, 3")
    h("s_lshl_b32 s58, s58, 2")
    h("v_mov_b32 v6, s58")
    h("v_mov_b32 v7, s56")
    h("s_waitcnt lgkmcnt(0)")
    srd(h, sWS, 8, WS_SIZE)
    h("s_mov_b64 exec, 1")
    h.vm(f"buffer_store_dword v7, v6, {sr(sWS, 4)}, s57 offen sc1")
    h("s_mov_b64 exec, -1")
    ctok = {}
    for c in range(NPRE, 8):
        for half in range(2):
            for q in range(2):
                h(f"s_mov_b32 m0, {half * 65536 + c * 8192 + q * 4096}")
                if OPT["p2_rot"]:
                    if half == 0 and q == 0:
                        h(f"s_add_u32 s36, s2, {c}")
                        h("s_and_b32 s36, s36, 7")
                        h("s_lshl_b32 s36, s36, 14")
                        h("s_add_u32 s36, s36, s33")
                    h(f"s_add_u32 s37, s36, {half * 8192 + q * 4096}")
                else:
                    h(f"s_add_u32 s37, s33, {c * 16384 + half * 8192 + q * 4096}")
                for i in range(4):
                    ctok[c] = h.vm(f"buffer_load_dwordx4 v{vL16}, {sr(sWS, 4)}, s37 offen offset:{i * 1024} lds")
        if FINE and c == 3:
            h("s_barrier")
        if FINE and c == 5:
            h.wait(vm=ctok[3])
            h("s_barrier")
        h("s_waitcnt vmcnt(40)")
    srd(h, 16, KWO, 512 * 1024)
    srd(h, 20, KG, 512 * 2752)
    srd(h, 52, KU, 512 * 2752)
    h(f"s_and_b32 s{sT0}, s2, 7")
    h(f"s_lshl_b32 s{sT1}, s{sT0}, 18")
    h(f"s_add_u32 s4, s{KX}, s{sT1}")
    h(f"s_addc_u32 s5, s{KX + 1}, 0")
    srd(h, 44, 4, 256 * 1024)
    h(f"s_mul_i32 s{sT0}, s{sT0}, {172 * 1024}")
    h(f"s_add_u32 s10, s{KD}, s{sT0}")
    h(f"s_addc_u32 s11, s{KD + 1}, 0")
    srd(h, 40, 10, 172 * 1024)
    h(f"s_lshr_b32 s{sT0}, s2, 3")
    h("v_lshlrev_b32 v3, 7, v1")
    h.wait_all()
    h("s_barrier")
    for sq, per, n in ((16, 16384, 2), (44, 8192, 1), (20, 49152, 6), (52, 49152, 6), (40, 8192, 1)):
        h(f"s_mul_i32 s{sT1}, s{sT0}, {per}")
        h(f"v_add_u32 v4, s{sT1}, v3")
        for i in range(n):
            h.vm(f"buffer_load_dword v5, v4, {sr(sq, 4)}, 0 offen")
            if i + 1 < n:
                h("v_add_u32 v4, 0x2000, v4")
    if OPT["touch_out"]:
        h("s_and_b32 s58, s2, 7")
        for base, gsz, per, n in ((HF, 262144, 8192, 1), (GF, 8 * 86 * 1024, 22016, 3)):
            h(f"s_mul_i32 s{sT1}, s{sT0}, {per}")
            h(f"s_mul_i32 s36, s58, {gsz}")
            h(f"s_add_u32 s36, s36, s{sT1}")
            h(f"s_add_u32 s36, s36, {base}")
            for i in range(n):
                h.vm(f"buffer_load_dword v5, v3, {sr(sWS, 4)}, s36 offen {['', '', 'nt', 'sc1'][OPT['touch_out']]}")
                if i + 1 < n:
                    h("s_add_u32 s36, s36, 0x2000")
    if OPT["touch2"]:
        h("v_lshrrev_b32 v4, 3, v1")
        h("v_lshlrev_b32 v4, 15, v4")
        h("v_and_b32 v6, 7, v1")
        h("v_lshl_add_u32 v4, v6, 7, v4")
        h("s_bfe_u32 s36, s2, 0x30003" if not OPT["p2_map"] else "s_and_b32 s36, s2, 7")
        h("s_lshl_b32 s36, s36, 18")
        h(f"s_lshl_b32 s{sT1}, s{sHead}, 10")
        h(f"s_add_u32 s36, s36, s{sT1}")
        h(f"s_add_u32 s36, s36, {OF}")
        h.vm(f"buffer_load_dword v5, v4, {sr(sWS, 4)}, s36 offen")
        h("s_lshl_b32 s36, s2, 10")
        h(f"s_add_u32 s36, s36, {ST}")
        h("s_mov_b64 exec, 0xff")
        h.vm(f"buffer_load_dword v5, v3, {sr(sWS, 4)}, s36 offen")
        h("s_mov_b64 exec, -1")
        srd(h, 44, KO, 2048 * 1024)
        h("s_and_b32 s36, s2, 7")
        h("s_lshl_b32 s36, s36, 18")
        h(f"s_lshl_b32 s{sT1}, s{sT0}, 13")
        h(f"s_add_u32 s36, s36, s{sT1}")
        h.vm(f"buffer_load_dword v5, v3, s[44:47], s36 offen")
    h(f"s_lshl_b32 s{sT1}, s{sT0}, 11")
    h(f"v_add_u32 v4, s{sT1}, v3")
    h("s_mov_b64 exec, 0xffff")
    code_prefetch(h, "L_p2_tail", 38, 4, 5, "p2")
    h("s_mov_b32 exec_lo, -1")
    h("s_mov_b32 exec_hi, 0")
    h("v_lshlrev_b32 v6, 2, v1")
    h("s_mov_b32 s59, 0x40000")
    h.label("L_xt_poll")
    h(f"buffer_load_dword v7, v6, {sr(sWS, 4)}, s57 offen sc1")
    h("s_sub_u32 s59, s59, 1")
    h("s_waitcnt vmcnt(0)")
    h("v_cmp_eq_u32 vcc, 0, v7")
    h("s_cmp_eq_u32 s59, 0")
    h("s_cbranch_scc1 L_xt_done")
    h("s_cbranch_vccnz L_xt_poll")
    h.label("L_xt_done")
    h("v_cmp_ne_u32 vcc, s56, v7")
    h("s_nop 1")
    h("s_cmp_eq_u64 vcc, 0")
    h(f"s_cselect_b32 s56, {0 if OPT['force_slow'] else 1}, 0")
    h(f"v_mov_b32 v6, {LMODE}")
    h("v_mov_b32 v7, s56")
    h("ds_write_b32 v6, v7")
    h("s_waitcnt lgkmcnt(0)")
    h("s_endpgm")

    if OPT["p2_map"]:
        a(f"s_and_b32 s{sQb}, s2, 7")
    else:
        a(f"s_bfe_u32 s{sQb}, s2, 0x30003")
    a(f"s_lshr_b32 s{sKh}, s{sWave}, 2")
    a(f"s_and_b32 s{sQs}, s{sWave}, 3")
    a(f"s_lshl_b32 s32, s{sKh}, 16")
    a(f"s_lshl_b32 s{sT0}, s{sQs}, 11")
    a(f"s_add_u32 s32, s32, s{sT0}")
    a(f"s_lshl_b32 s38, s{sWave}, 11")
    a("s_add_u32 s33, s33, s38")
    if OPT["p2_rot"]:
        a("s_add_u32 s37, s2, 1")
        a("s_and_b32 s37, s37, 7")
        a("s_lshl_b32 s37, s37, 14")
        a("s_add_u32 s37, s37, s33")
        a(f"s_lshl_b32 s38, s{sQb}, 14")
        a("s_add_u32 s33, s33, s38")
    a(f"s_lshl_b32 s36, s{sHead}, 16")
    a(f"s_lshl_b32 s{sT1}, s{sQb}, 13")
    a(f"s_add_u32 s36, s36, s{sT1}")
    a(f"s_add_u32 s36, s36, s{sT0}")
    if QF:
        a(f"s_add_u32 s36, s36, {QF}")
    a(f"s_lshl_b32 s{sT0}, s{sKh}, 10")
    a(f"s_add_u32 s36, s36, s{sT0}")
    a(f"s_xor_b32 s39, s36, 1024")
    a(f"s_mov_b32 m0, s32")
    a(f"v_and_b32 v{T}, 27, v{vLane}")
    a(f"v_cmp_eq_u32 vcc, 16, v{T}")
    a(f"v_mov_b32 v{T}, 0x3f803f80")
    a(f"v_mov_b32 v{vIdx}, 0xdddd")
    for r in range(32):
        a(f"v_cndmask_b32 v{Vf + r}, 0, v{T}, vcc")
    a("s_waitcnt lgkmcnt(0)")
    srd(a, sWS, 8, WS_SIZE)
    a.vm(f"buffer_load_dwordx4 v{vL16}, {sr(sWS, 4)}, s33 offen lds")
    a.vm(f"buffer_load_dwordx4 {vr(Qf[0], 4)}, v{vL16}, {sr(sWS, 4)}, s36 offen")
    a.vm(f"buffer_load_dwordx4 {vr(Qf[1], 4)}, v{vL16}, {sr(sWS, 4)}, s39 offen")
    a.vm(f"buffer_load_dwordx4 v{vL16}, {sr(sWS, 4)}, s33 offen offset:1024 lds")
    for c in range(1, NPRE):
        a(f"s_add_u32 m0, s32, {c * 8192}")
        a(f"s_add_u32 s37, s33, {c * 16384}" if not OPT["p2_rot"] else "s_nop 0")
        a.vm(f"buffer_load_dwordx4 v{vL16}, {sr(sWS, 4)}, s37 offen lds")
        a.vm(f"buffer_load_dwordx4 v{vL16}, {sr(sWS, 4)}, s37 offen offset:1024 lds")
    a(f"s_mov_b32 s{sVm}, 0x0000ffff")
    a(f"s_mov_b32 s{sVm + 1}, 0x0000ffff")
    a(f"s_and_b32 s{sHw}, s{sWave}, 3")
    a(f"s_lshl_b32 s{sT0}, s{sKh}, 16")
    a(f"v_add_u32 v{vKrd}, s{sT0}, v{vL16}")
    a(f"v_lshrrev_b32 v{T}, 5, v{vLane}")
    a(f"v_and_b32 v{T + 1}, 15, v{vLane}")
    a(f"v_lshlrev_b32 v{T + 1}, 4, v{T + 1}")
    a(f"v_lshl_add_u32 v{T}, v{T}, 8, v{T + 1}")
    a(f"v_add_u32 v{vVrd}, s{sT0}, v{T}")
    a(f"s_mul_i32 s{sT0}, s{sWave}, 3072")
    a(f"s_add_u32 s{sT0}, s{sT0}, {XCH}")
    a(f"v_add_u32 v{vXw}, s{sT0}, v{vL16}")
    a(f"s_xor_b32 s{sT1}, s{sWave}, 4")
    a(f"s_mul_i32 s{sT0}, s{sT1}, 3072")
    a(f"s_add_u32 s{sT0}, s{sT0}, {XCH}")
    a(f"v_add_u32 v{vXr}, s{sT0}, v{vL16}")
    for c in range(2):
        for r in range(16):
            a(f"v_mov_b32 v{O[c] + r}, 0")
    a(f"s_lshl_b32 s57, s{sQb}, 2")
    a(f"s_add_u32 s57, s57, s{sQs}")
    a(f"s_lshl_b32 s55, s57, 8")
    a(f"s_lshl_b32 s{sT1}, s{sHead}, 1")
    a(f"s_add_u32 s{sT1}, s{sT1}, s{sKh}")
    a(f"s_lshl_b32 s{sT1}, s{sT1}, 2")
    a(f"s_add_u32 s55, s55, s{sT1}")
    a(f"s_add_u32 s55, s55, {F2}")
    a(f"s_lshl_b32 s57, s57, 1")
    a(f"s_add_u32 s57, s57, s{sKh}")
    a(f"s_lshl_b32 s57, s57, 15")
    a(f"s_lshl_b32 s{sT1}, s{sHead}, 10")
    a(f"s_add_u32 s57, s57, s{sT1}")
    a(f"s_add_u32 s57, s57, {OF}")

    def emit_pair(p):
        for t in (2 * p, 2 * p + 1):
            a.lg(f"ds_read_b128 {vr(Kf + 4 * (t & 3), 4)}, v{vKrd} offset:{t * 2048}")
        a(f"s_mov_b64 exec, {sr(sVm, 2)}")
        for t in (2 * p, 2 * p + 1):
            a.lg(f"ds_read_b128 {vr(Vf + 8 * (t & 3), 4)}, v{vVrd} offset:{t * 2048 + 1024}")
            tok = a.lg(f"ds_read_b128 {vr(Vf + 8 * (t & 3) + 4, 4)}, v{vVrd} offset:{t * 2048 + 1536}")
        a("s_mov_b64 exec, -1")
        return tok

    def qk(u):
        t, c = divmod(u, 2)
        return f"v_mfma_f32_32x32x16_bf16 {vr(S[u & 1], 16)}, {vr(Kf + 4 * (t & 3), 4)}, {vr(Qf[c], 4)}, 0"

    def pv(u, i):
        t, c = divmod(u, 2)
        return (f"v_smfmac_f32_32x32x32_bf16 {vr(O[c], 16)}, {vr(Vf + 8 * (t & 3) + 4 * i, 4)}, "
                f"{vr(S[u & 1] + 8 * i, 8)}, v{vIdx}")

    NU = 64
    UB = 4 * (2 * NPRE - 1)
    PRIO = {0: 1, UB - 2: 0, UB + 1: 2, NU - 6: 1, NU - 2: 0}
    BARS = [UB]
    if FINE:
        BARS = [4, 12, 28]
        PRIO = {0: 1, 3: 0, 5: 1, 10: 0, 13: 1, 25: 0, 29: 2, NU - 6: 1, NU - 2: 0}
        a.wait(vm=3)
    else:
        a.wait_all(lg=False)
    a("s_barrier")
    stamp(a)
    ptok = {0: emit_pair(0)}
    a.wait(lg=ptok[0] - 5)
    a(qk(0))
    a.wait(lg=ptok[0])
    a("s_nop 9")
    for u in range(NU):
        X = S[u & 1]
        p, pu = divmod(u, 4)
        if u in PRIO:
            a(f"s_setprio {PRIO[u]}")
        ex = [f"v_exp_f32 v{X + i}, v{X + i}" for i in range(16)]
        a(ex[0]); a(ex[1])
        if u > 0:
            a(pv(u - 1, 1))
        a(ex[2]); a(ex[3]); a(ex[4])
        if u + 1 < NU:
            if pu == 3:
                a.wait(lg=ptok[p + 1])
            a(qk(u + 1))
        if pu == 0 and p + 1 < 16:
            if u in BARS:
                if u == 4:
                    a.wait_all(lg=False)
                a("s_barrier")
            ptok[p + 1] = emit_pair(p + 1)
        for i in range(5, 10):
            a(ex[i])
        a(pv(u, 0))
        for i in range(10, 16):
            a(ex[i])
    a.label("L_p2_tail")
    a("s_nop 1")
    a(pv(NU - 1, 1))
    a(f"s_mov_b32 s{sT0}, {hx(f2u(2.0 ** 80))}")
    a(f"s_mov_b32 s{sT1}, {hx(f2u(2.0 ** -80))}")
    a("s_mov_b32 s56, 0")
    a(f"v_mov_b32 v{T + 13}, {LMODE}")
    a("s_nop 7")
    a.lg(f"ds_write_b128 v{vXw}, {vr(O[1], 4)}")
    a.lg(f"ds_write_b128 v{vXw}, {vr(O[1] + 4, 4)} offset:1024")
    a.lg(f"ds_write_b32 v{vXw}, v{O[1] + 8} offset:2048")
    a.wait_all(vm=False)
    a("s_barrier")
    a.lg(f"ds_read_b32 v{T + 9}, v{T + 13}")
    t2 = a.lg(f"ds_read_b32 v{T + 8}, v{vXr} offset:2048")
    a.lg(f"ds_read_b128 {vr(T, 4)}, v{vXr}")
    t1 = a.lg(f"ds_read_b128 {vr(T + 4, 4)}, v{vXr} offset:1024")
    a.wait(lg=t2)
    a(f"v_add_f32 v{O[0] + 8}, v{O[0] + 8}, v{T + 8}")
    a(f"v_readfirstlane_b32 s{sMode}, v{T + 9}")
    a.wait(lg=t1)
    for r in range(0, 8, 2):
        a(f"v_pk_add_f32 {vr(O[0] + r, 2)}, {vr(O[0] + r, 2)}, {vr(T + r, 2)}")
    a.label("L_p2_finish")
    a(f"v_rcp_f32 v{T + 8}, v{O[0] + 8}")
    a(f"v_cmp_gt_f32 s[40:41], s{sT0}, v{O[0] + 8}")
    a(f"v_cmp_lt_f32 s[42:43], s{sT1}, v{O[0] + 8}")
    for r in range(0, 8, 2):
        a(f"v_pk_mul_f32 {vr(O[0] + r, 2)}, {vr(O[0] + r, 2)}, {vr(T + 8, 2)} op_sel_hi:[1,0]")
    for i in range(4):
        a(f"v_cvt_pk_bf16_f32 v{T + 4 + i}, v{O[0] + 2 * i}, v{O[0] + 2 * i + 1}")
    a(f"v_dot2_f32_bf16 v{T}, v{T + 4}, v{T + 4}, 0")
    for i in range(1, 4):
        a(f"v_dot2_f32_bf16 v{T}, v{T + 4 + i}, v{T + 4 + i}, v{T}")
    a("s_and_b64 s[40:41], s[40:41], s[42:43]")
    a("s_cmp_lg_u32 s56, 0")
    a("s_cbranch_scc1 L_p2_store")
    a(f"v_cmp_gt_f32 vcc, s{sT0}, v{T}")
    a("s_nop 0")
    a("s_and_b64 s[40:41], s[40:41], vcc")
    a("s_cmp_eq_u64 s[40:41], -1")
    a("s_cbranch_scc0 L_p2_fallback")
    a.label("L_p2_store")
    stores(a, [f"buffer_store_dwordx4 {vr(T + 4, 4)}, v{vL16}, {sr(sWS, 4)}, s57 offen"], not OPT["p2_map"])
    a("s_barrier")
    stamp(a)

    f = Asm()
    f.label("L_p2_fallback")
    vK2, vV2, vM = T + 10, T + 11, T + 12
    f(f"s_lshl_b32 s37, s{sKh}, 16")
    f(f"v_subrev_u32 v{vK2}, s37, v{vKrd}")
    f(f"v_mov_b32 v{vM}, 0xff800000")
    f("s_mov_b32 s56, 0")
    f.label("L_p2_fb_max")
    f(f"ds_read_b128 {vr(Kf, 4)}, v{vK2}")
    f("s_waitcnt lgkmcnt(0)")
    f(f"v_mfma_f32_32x32x16_bf16 {vr(S[0], 16)}, {vr(Kf, 4)}, {vr(Qf[0], 4)}, 0")
    f("s_nop 15")
    for i in range(8):
        f(f"v_max3_f32 v{vM}, v{vM}, v{S[0] + 2 * i}, v{S[0] + 2 * i + 1}")
    f(f"v_add_u32 v{vK2}, 2048, v{vK2}")
    f("s_add_u32 s56, s56, 1")
    f("s_cmp_lt_u32 s56, 64")
    f("s_cbranch_scc1 L_p2_fb_max")
    f(f"v_mov_b32 v{T}, v{vM}")
    f("s_nop 1")
    f(f"v_permlane32_swap_b32 v{vM}, v{T}")
    f("s_nop 1")
    f(f"v_max_f32 v{vM}, v{vM}, v{T}")
    for r in range(16):
        f(f"v_sub_f32 v{NEG + r}, 0, v{vM}")
        f(f"v_mov_b32 v{O[0] + r}, 0")
    f(f"v_subrev_u32 v{vK2}, s37, v{vKrd}")
    f(f"v_subrev_u32 v{vV2}, s37, v{vVrd}")
    f("s_mov_b32 s56, 0")
    f.label("L_p2_fb_pv")
    f(f"ds_read_b128 {vr(Kf, 4)}, v{vK2}")
    f(f"s_mov_b64 exec, {sr(sVm, 2)}")
    f(f"ds_read_b128 {vr(Vf, 4)}, v{vV2} offset:1024")
    f(f"ds_read_b128 {vr(Vf + 4, 4)}, v{vV2} offset:1536")
    f("s_mov_b64 exec, -1")
    f("s_waitcnt lgkmcnt(0)")
    f(f"v_mfma_f32_32x32x16_bf16 {vr(S[0], 16)}, {vr(Kf, 4)}, {vr(Qf[0], 4)}, {vr(NEG, 16)}")
    f("s_nop 15")
    for i in range(16):
        f(f"v_exp_f32 v{S[0] + i}, v{S[0] + i}")
    f("s_nop 1")
    f(f"v_smfmac_f32_32x32x32_bf16 {vr(O[0], 16)}, {vr(Vf, 4)}, {vr(S[0], 8)}, v{vIdx}")
    f(f"v_smfmac_f32_32x32x32_bf16 {vr(O[0], 16)}, {vr(Vf + 4, 4)}, {vr(S[0] + 8, 8)}, v{vIdx}")
    f("s_nop 15")
    f(f"v_add_u32 v{vK2}, 2048, v{vK2}")
    f(f"v_add_u32 v{vV2}, 2048, v{vV2}")
    f("s_add_u32 s56, s56, 1")
    f("s_cmp_lt_u32 s56, 64")
    f("s_cbranch_scc1 L_p2_fb_pv")
    f("s_branch L_p2_finish")
    return h, f


def phase_res(a, h, k3, pre_publish=None):
    uid = "p3" if k3 else "p5"
    KS = 32 if k3 else 86
    ACT = OF if k3 else GF
    NST = (KS + 3) // 4
    NW = 8 if k3 else OPT["p5_nw"]
    NA = 8 if k3 else 17 - NW
    AO = NW * 8192
    RESO = AO + NA * 8192
    TRO = RESO + 8192 + 6144
    sW, sIO = 16, 20
    sWr, sWc, sRb, sCb = 25, 26, 27, 28
    T = 12
    for b in (a, h):
        b(f"s_and_b32 s{sT0}, s2, 7")
        b(f"s_lshl_b32 s{sRb}, s{sT0}, 2")
        b(f"s_lshr_b32 s34, s2, 6")
        b(f"s_add_u32 s{sRb}, s{sRb}, s34")
        b(f"s_bfe_u32 s{sCb}, s2, 0x30003")
        b(f"s_and_b32 s{sWr}, s{sWave}, 1")
        b(f"s_bfe_u32 s{sWc}, s{sWave}, 0x10001")
    vWoff, vXg = 3, 5
    h(f"v_lshrrev_b32 v{T}, 3, v{vLane}")
    h(f"v_and_b32 v{T + 1}, 7, v{vLane}")
    h(f"v_lshrrev_b32 v{T + 2}, 2, v{vLane}")
    h(f"v_and_b32 v{T + 2}, 4, v{T + 2}")
    h(f"v_xor_b32 v{T + 2}, v{T + 2}, v{T + 1}")
    h(f"v_lshlrev_b32 v{T + 2}, 4, v{T + 2}")
    h(f"v_lshl_add_u32 v{T + 2}, v{T}, 10, v{T + 2}")
    h(f"s_lshl_b32 s{sT0}, s{sHw}, 14")
    h(f"s_lshl_b32 s{sT1}, s{sCb}, 7")
    h(f"s_add_u32 s{sT0}, s{sT0}, s{sT1}")
    h(f"v_add_u32 v{vWoff}, s{sT0}, v{T + 2}")
    h(f"v_add_u32 v{vWoff + 1}, {8192 - 1024}, v{vWoff}")
    h(f"s_lshl_b32 s32, s{sHw}, 11")
    h(f"s_lshl_b32 s33, s{sRb}, 1")
    h(f"s_add_u32 s33, s33, s{sWr}")
    h(f"s_mul_i32 s34, s33, {KS * 1024}")
    h(f"s_lshl_b32 s{sT1}, s{sWc}, 11")
    h(f"s_add_u32 s34, s34, s{sT1}")
    h(f"s_add_u32 s34, s34, {ACT}")
    h(f"s_lshl_b32 s35, s{sWr}, 12")
    h(f"s_add_u32 s35, s35, s{sT1}")
    if k3:
        h(f"v_lshrrev_b32 v{T + 2}, 1, v{T}")
        h(f"v_xor_b32 v{T + 2}, v{T + 2}, v{T + 1}")
        h(f"v_lshlrev_b32 v{T + 2}, 4, v{T + 2}")
        h(f"v_lshl_add_u32 v{vXg}, v{T}, 10, v{T + 2}")
        h(f"v_xor_b32 v{vXg + 1}, 64, v{vXg}")
        h(f"v_add_u32 v{vXg + 1}, {8192 - 1024}, v{vXg + 1}")
        h(f"s_lshl_b32 s36, s{sRb}, 16")
        h(f"s_add_u32 s36, s36, s{sT0}")
        srd(h, sIO, KX, 2048 * 1024)
    else:
        h(f"s_lshl_b32 s36, s33, 15")
        h(f"s_lshl_b32 s{sT0}, s{sCb}, 12")
        h(f"s_add_u32 s36, s36, s{sT0}")
        h(f"s_add_u32 s36, s36, s{sT1}")
        h(f"s_add_u32 s36, s36, {HF}")
    srd(h, sW, KWO if k3 else KD, KS * 16 * 1024)
    if pre_publish is not None:
        publish(h, pre_publish, T + 4, not OPT["p2_map"])
    dr = Drip(h)

    def issue_w(st):
        dr.add(st, [f"s_add_u32 m0, s32, {(st % NW) * 8192}", f"s_mov_b32 s42, {st * 65536}"],
               f"buffer_load_dwordx4 v{vWoff}, {sr(sW, 4)}, s42 offen lds")
        dr.add(st, [], f"buffer_load_dwordx4 v{vWoff + 1}, {sr(sW, 4)}, s42 offen offset:1024 lds")

    def issue_a(st):
        dr.add(st, [f"s_add_u32 m0, s35, {AO + (st % NA) * 8192}", f"s_add_u32 s43, s34, {st * 4096}"],
               f"buffer_load_dwordx4 v{vL16}, {sr(sWS, 4)}, s43 offen {LD()} lds")
        dr.add(st, [], f"buffer_load_dwordx4 v{vL16}, {sr(sWS, 4)}, s43 offen offset:1024 {LD()} lds")

    for st in range(min(NW, NST)):
        issue_w(st)
    if k3:
        dr.add(0, [f"s_add_u32 m0, s32, {RESO}", "s_nop 0"], f"buffer_load_dwordx4 v{vXg}, {sr(sIO, 4)}, s36 offen lds")
        dr.add(0, [], f"buffer_load_dwordx4 v{vXg + 1}, {sr(sIO, 4)}, s36 offen offset:1024 lds")
    dr.emit(100)
    stamp(h)
    h("s_barrier")
    stamp(h)
    AHEAD = OPT["p3_a"] if k3 else OPT["p5_a"]
    assert AHEAD < NA
    nxt_a = 0
    for st in range(NST):
        while nxt_a <= min(st + AHEAD, NST - 1):
            if nxt_a >= NA and nxt_a - NA > st - 2:
                break
            issue_a(nxt_a)
            if not k3 and nxt_a == 1:
                dr.add(1, [f"s_add_u32 m0, s35, {RESO}", "s_nop 0"], f"buffer_load_dwordx4 v{vL16}, {sr(sWS, 4)}, s36 offen {LD()} lds")
                dr.add(1, [], f"buffer_load_dwordx4 v{vL16}, {sr(sWS, 4)}, s36 offen offset:1024 {LD()} lds")
            nxt_a += 1
        dr.emit(100)
        h.wait(vm=dr.tok[st])
        h("s_barrier")
        if st >= 1 and st - 1 + NW < NST:
            issue_w(st - 1 + NW)
    if k3:
        h("s_barrier")
    RST = 0 if k3 else 1
    vWrd, vAr, vRr, vTw, vTr, vOut = [3, 4], [5], [7, 8], 9, 10, 11
    ID = 24
    FR = [32, 72]
    acc = 112
    a(f"v_and_b32 v{T}, 31, v{vLane}")
    a(f"v_lshrrev_b32 v{T + 1}, 5, v{vLane}")
    a(f"v_bfe_u32 v{T + 2}, v{vLane}, 2, 2")
    a(f"v_lshl_add_u32 v{T + 3}, v{T + 1}, 2, v{T + 2}")
    a(f"v_lshlrev_b32 v{T + 3}, 7, v{T + 3}")
    a(f"v_bfe_u32 v{T + 4}, v{vLane}, 4, 1")
    a(f"v_lshl_add_u32 v{T + 3}, v{T + 4}, 5, v{T + 3}")
    a(f"v_and_b32 v{T + 4}, 3, v{vLane}")
    a(f"v_lshl_add_u32 v{T + 3}, v{T + 4}, 3, v{T + 3}")
    a(f"v_lshrrev_b32 v{T + 2}, 1, v{T + 2}")
    a(f"v_xor_b32 v{T + 2}, s{sWc}, v{T + 2}")
    a(f"v_lshl_add_u32 v{vWrd[0]}, v{T + 2}, 6, v{T + 3}")
    wl = LdsAddr(a, vWrd)
    wl.setup(a)
    a(f"s_lshl_b32 s{sT0}, s{sWr}, 12")
    a(f"s_add_u32 s{sT1}, s{sT0}, {AO}")
    a(f"v_add_u32 v{vAr[0]}, s{sT1}, v{vL16}")
    if k3:
        a(f"v_bfe_u32 v{T + 2}, v{vLane}, 1, 3")
        a(f"v_xor_b32 v{T + 2}, v{T + 2}, v{T + 1}")
        a(f"s_lshl_b32 s{sT1}, s{sWc}, 2")
        a(f"v_xor_b32 v{T + 2}, s{sT1}, v{T + 2}")
        a(f"v_lshlrev_b32 v{T + 2}, 4, v{T + 2}")
        a(f"v_lshl_add_u32 v{T + 2}, v{T}, 7, v{T + 2}")
        a(f"s_add_u32 s{sT0}, s{sT0}, {RESO}")
        a(f"v_add_u32 v{vRr[0]}, s{sT0}, v{T + 2}")
        a(f"v_xor_b32 v{vRr[1]}, 32, v{vRr[0]}")
    else:
        a(f"s_lshl_b32 s{sT1}, s{sWc}, 11")
        a(f"s_add_u32 s{sT0}, s{sT0}, s{sT1}")
        a(f"s_add_u32 s{sT0}, s{sT0}, {RESO}")
        a(f"v_add_u32 v{vRr[0]}, s{sT0}, v{vL16}")
        a(f"v_add_u32 v{vRr[1]}, 1024, v{vRr[0]}")
    if pre_publish is not None:
        publish(a, pre_publish, T + 6, not OPT["p2_map"])
    a(f"v_mov_b32 v{T + 5}, 0x3f80")
    for e in range(2):
        if k3:
            a(f"v_lshlrev_b32 v{T + 2}, 3, v{T + 1}")
            a(f"v_sub_u32 v{T + 2}, v{T}, v{T + 2}")
            a(f"v_subrev_u32 v{T + 2}, {16 * e}, v{T + 2}")
        else:
            a(f"v_bfe_u32 v{T + 2}, v{vLane}, 3, 1")
            a(f"v_and_b32 v{T + 3}, 3, v{vLane}")
            a(f"v_lshl_add_u32 v{T + 2}, v{T + 2}, 2, v{T + 3}")
            a(f"v_bfe_u32 v{T + 3}, v{vLane}, 2, 1")
            a(f"v_xor_b32 v{T + 3}, v{T + 3}, v{T + 1}")
            a(f"v_bfe_u32 v{T + 4}, v{vLane}, 4, 1")
            a(f"v_xor_b32 v{T + 4}, {e}, v{T + 4}")
            a(f"v_or_b32 v{T + 3}, v{T + 3}, v{T + 4}")
            a(f"v_lshl_add_u32 v{T + 2}, v{T + 3}, 4, v{T + 2}")
        a(f"v_and_b32 v{T + 3}, 1, v{T + 2}")
        a(f"v_lshlrev_b32 v{T + 3}, 4, v{T + 3}")
        a(f"v_lshlrev_b32 v{T + 3}, v{T + 3}, v{T + 5}")
        a(f"v_lshrrev_b32 v{T + 2}, 1, v{T + 2}")
        for r in range(4):
            a(f"v_cmp_eq_u32 vcc, {r}, v{T + 2}")
            a("s_nop 1")
            a(f"v_cndmask_b32 v{ID + 4 * e + r}, 0, v{T + 3}, vcc")
    a(f"s_lshl_b32 s33, s{sRb}, 1")
    a(f"s_add_u32 s33, s33, s{sWr}")
    a(f"s_lshl_b32 s34, s{sCb}, 1")
    a(f"s_add_u32 s34, s34, s{sWc}")
    if k3:
        a(f"s_lshl_b32 s36, s33, 15")
        a(f"s_lshl_b32 s37, s34, 11")
        a(f"s_add_u32 s36, s36, s37")
        a(f"s_add_u32 s36, s36, {HF}")
        a(f"s_lshl_b32 s37, s34, 14")
        a(f"s_lshl_b32 s{sT1}, s33, 8")
        a(f"s_add_u32 s37, s37, s{sT1}")
        a(f"s_add_u32 s37, s37, {ST}")
        a("s_mov_b32 s41, 0x3f803f80")
        a(f"v_lshlrev_b32 v{vOut}, 3, v{vLane}")
        a(f"s_lshl_b32 s55, s{sRb}, 7")
        a(f"s_lshl_b32 s{sT1}, s{sCb}, 4")
        a(f"s_add_u32 s55, s55, s{sT1}")
        a(f"s_lshl_b32 s{sT1}, s{sWave}, 2")
        a(f"s_add_u32 s55, s55, s{sT1}")
        a(f"s_add_u32 s55, s55, {F3}")
    else:
        a(f"s_mul_i32 s{sT0}, s{sHw}, 2560")
        a(f"s_add_u32 s{sT0}, s{sT0}, {TRO}")
        a(f"v_mul_u32_u24 v{T + 2}, 80, v{T}")
        a(f"v_lshl_add_u32 v{T + 2}, v{T + 1}, 3, v{T + 2}")
        a(f"v_add_u32 v{vTw}, s{sT0}, v{T + 2}")
        a(f"v_lshrrev_b32 v{T + 2}, 2, v{vLane}")
        a(f"v_and_b32 v{T + 3}, 3, v{vLane}")
        a(f"v_lshlrev_b32 v{T + 3}, 4, v{T + 3}")
        a(f"v_mad_u32_u24 v{T + 4}, v{T + 2}, 64, v{T + 3}")
        a(f"v_lshl_add_u32 v{T + 4}, v{T + 2}, 4, v{T + 4}")
        a(f"v_add_u32 v{vTr}, s{sT0}, v{T + 4}")
        a(f"v_lshl_add_u32 v{vOut}, v{T + 2}, 10, v{T + 3}")
        a(f"s_lshl_b32 s36, s33, 15")
        a(f"s_lshl_b32 s37, s34, 6")
        a(f"s_add_u32 s36, s36, s37")
        a(f"s_add_u32 s37, s36, 16384")
        srd(a, sIO, KO, 2048 * 1024)
    a(f"s_lshl_b32 s40, s{sRb}, 8")
    a(f"s_add_u32 s40, s40, {F2 if k3 else F4}")
    poll(a, 40, T + 6, uid, 64 if k3 else 30)
    first = True
    for st in range(NST):
        a("s_barrier")
        if st == 0:
            stamp(a)
        F = FR[st & 1]
        n = min(4, KS - 4 * st)
        tk = []
        for k in range(n):
            a.lg(f"ds_read_b128 {vr(F + 8 * k, 4)}, v{vAr[0]} offset:{(st % NA) * 8192 + k * 1024}")
            for half in range(2):
                reg, off = wl.at((st % NW) * 8192 + k * 2048 + half * 1024)
                t = a.lg(f"ds_read_b64_tr_b16 {vr(F + 8 * k + 4 + 2 * half, 2)}, {reg} offset:{off}")
            tk.append(t)
        if st == RST:
            for e in range(2):
                tk.append(a.lg(f"ds_read_b128 {vr(F + 32 + 4 * e, 4)}, v{vRr[e]}"))
        for k in range(n):
            a.wait(lg=tk[k])
            a(f"v_mfma_f32_32x32x16_bf16 {vr(acc, 16)}, {vr(F + 8 * k + 4, 4)}, {vr(F + 8 * k, 4)}, {'0' if first else vr(acc, 16)}")
            first = False
        if st == RST:
            for e in range(2):
                a.wait(lg=tk[n + e])
                a(f"v_mfma_f32_32x32x16_bf16 {vr(acc, 16)}, {vr(ID + 4 * e, 4)}, {vr(F + 32 + 4 * e, 4)}, {vr(acc, 16)}")
    stamp(a)
    a("s_nop 11")
    P = 32
    for i in range(8):
        a(f"v_cvt_pk_bf16_f32 v{P + i}, v{acc + 2 * i}, v{acc + 2 * i + 1}")
    if k3:
        stores(a, [f"buffer_store_dwordx4 {vr(P, 4)}, v{vL16}, {sr(sWS, 4)}, s36 offen",
                   f"buffer_store_dwordx4 {vr(P + 4, 4)}, v{vL16}, {sr(sWS, 4)}, s36 offen offset:1024"])
        a(f"v_dot2_f32_bf16 v{T}, v{P}, s41, 0")
        a(f"v_dot2_f32_bf16 v{T + 1}, v{P}, v{P}, 0")
        for i in range(1, 8):
            a(f"v_dot2_f32_bf16 v{T}, v{P + i}, s41, v{T}")
            a(f"v_dot2_f32_bf16 v{T + 1}, v{P + i}, v{P + i}, v{T + 1}")
        a("s_nop 2")
        a(f"v_mov_b32 v{T + 2}, v{T}")
        a(f"v_mov_b32 v{T + 3}, v{T + 1}")
        a("s_nop 0")
        a(f"v_permlane32_swap_b32 v{T}, v{T + 2}")
        a(f"v_permlane32_swap_b32 v{T + 1}, v{T + 3}")
        a("s_nop 0")
        a(f"v_add_f32 v{T}, v{T}, v{T + 2}")
        a(f"v_add_f32 v{T + 1}, v{T + 1}, v{T + 3}")
        a("s_mov_b32 exec_hi, 0")
        stores(a, [f"buffer_store_dwordx2 {vr(T, 2)}, v{vOut}, {sr(sWS, 4)}, s37 offen"])
        a("s_mov_b64 exec, -1")
        a("s_barrier")
        publish(a, 55, T + 4)
    else:
        for g in range(4):
            a.lg(f"ds_write_b64 v{vTw}, {vr(P + 2 * g, 2)} offset:{g * 16}")
        a.wait_all(vm=False)
        t0 = a.lg(f"ds_read_b128 {vr(P + 8, 4)}, v{vTr}")
        t1 = a.lg(f"ds_read_b128 {vr(P + 12, 4)}, v{vTr} offset:{16 * 80}")
        a.wait(lg=t0)
        a.vm(f"buffer_store_dwordx4 {vr(P + 8, 4)}, v{vOut}, {sr(sIO, 4)}, s36 offen")
        a.wait(lg=t1)
        a.vm(f"buffer_store_dwordx4 {vr(P + 12, 4)}, v{vOut}, {sr(sIO, 4)}, s37 offen")
    stamp(a)


def phase4(a, h):
    sG = 16
    sRb, sCg = 25, 26
    sWL, sAct = 32, 33
    NW, NX, NST = 9, 5, 16
    XO = NW * 12288
    CSO = XO + NX * 8192
    XEO = CSO + 2048
    for b in (a, h):
        b(f"s_and_b32 s{sT0}, s2, 7")
        b(f"s_lshl_b32 s{sT0}, s{sT0}, 1")
        b(f"s_bfe_u32 s{sT1}, s2, 0x10003")
        b(f"s_add_u32 s{sRb}, s{sT0}, s{sT1}")
        b(f"s_lshr_b32 s{sCg}, s2, 4")
    a("s_cmp_ge_u32 s2, 240")
    a("s_cbranch_scc1 L_p4_skip_c")
    h("s_cmp_ge_u32 s2, 240")
    h("s_cbranch_scc1 L_p4_skip_l")
    vWoff = [3, 4, 5]
    vT = 16
    h(f"s_lshl_b32 s{sAct}, s{sRb}, 2")
    h(f"s_add_u32 s{sAct}, s{sAct}, s{sHw}")
    h(f"s_lshl_b32 s38, s{sAct}, 8")
    h(f"s_add_u32 s38, s38, {ST}")
    h(f"s_lshl_b32 s{sAct}, s{sAct}, 15")
    h(f"s_add_u32 s{sAct}, s{sAct}, {HF}")
    h(f"s_lshr_b32 s34, s{sHw}, 1")
    h(f"s_and_b32 s35, s{sHw}, 1")
    h(f"s_mul_i32 s{sT0}, s34, {16 * 2752}")
    h(f"s_mul_i32 s{sT1}, s{sCg}, 192")
    h(f"s_add_u32 s{sT0}, s{sT0}, s{sT1}")
    h(f"v_and_b32 v{vT + 3}, 2, v{vLane}")
    h(f"v_lshlrev_b32 v{vT + 3}, 5, v{vT + 3}")
    h(f"v_sub_u32 v{vT + 3}, 32, v{vT + 3}")
    h(f"v_mul_lo_u32 v{vT + 3}, v{vT + 3}, s35")
    h(f"v_add_u32 v{vT + 3}, s{sT0}, v{vT + 3}")
    for i in range(3):
        h(f"v_add_u32 v{vT}, {64 * i}, v{vLane}")
        h(f"v_mul_u32_u24 v{vT + 1}, 171, v{vT}")
        h(f"v_lshrrev_b32 v{vT + 1}, 11, v{vT + 1}")
        h(f"v_mul_u32_u24 v{vT + 2}, {2752 - 192}, v{vT + 1}")
        h(f"v_add3_u32 v{vWoff[i]}, v{vL16}, v{vT + 2}, v{vT + 3}")
    h(f"s_mul_i32 s{sWL}, s{sHw}, 3072")
    h(f"s_lshl_b32 s36, s{sHw}, 11")
    h(f"s_add_u32 s36, s36, {XO}")
    h("s_cmp_eq_u32 s35, 0")
    h(f"s_cselect_b32 s{sG}, s{KG}, s{KU}")
    h(f"s_cselect_b32 s{sG + 1}, s{KG + 1}, s{KU + 1}")
    h(f"s_mov_b32 s{sG + 2}, {hx(512 * 2752)}")
    h(f"s_mov_b32 s{sG + 3}, 0x00020000")
    dr = Drip(h)

    def issue_w(key):
        st = key[1] if isinstance(key, tuple) else key
        for i in range(3):
            pre = [f"s_add_u32 m0, s{sWL}, {(st % NW) * 12288}", f"s_mov_b32 s42, {st * 32 * 2752}"] if i == 0 else []
            dr.add(key, pre, f"buffer_load_dwordx4 v{vWoff[i]}, {sr(sG, 4)}, s42 offen offset:{i * 1024} lds")

    def issue_x(st):
        for i in range(2):
            pre = [f"s_add_u32 m0, s36, {(st % NX) * 8192}", f"s_add_u32 s43, s{sAct}, {st * 2048}"] if i == 0 else []
            dr.add(st, pre, f"buffer_load_dwordx4 v{vL16}, {sr(sWS, 4)}, s43 offen offset:{i * 1024} {LD()} lds")

    PRE = OPT["p4_pre"]
    for st in range(PRE):
        issue_w(st)
    dr.emit(100)
    nxt_w = PRE
    vPf, vPd = 13, 100
    srd(h, 44, KD, 1376 * 1024)
    h(f"s_lshr_b32 s{sT0}, s2, 3")
    h(f"s_lshl_b32 s{sT0}, s{sT0}, 2")
    h(f"s_add_u32 s{sT0}, s{sT0}, s{sHw}")
    h(f"s_lshl_b32 s{sT0}, s{sT0}, 13")
    h(f"v_lshlrev_b32 v{vPf}, 7, v{vLane}")
    h(f"v_add_u32 v{vPf}, s{sT0}, v{vPf}")
    h(f"v_add_u32 v15, {120 * 8192}, v{vPf}")
    h(f"v_lshrrev_b32 v{vT + 3}, 5, v{vLane}")
    h(f"v_and_b32 v{vT + 4}, 31, v{vLane}")
    h(f"v_lshlrev_b32 v{vT + 4}, 3, v{vT + 4}")
    h(f"v_lshl_add_u32 v{vT + 4}, v{vT + 3}, 17, v{vT + 4}")
    h(f"s_lshl_b32 s{sT0}, s{sHw}, 11")
    h(f"s_add_u32 s{sT0}, s{sT0}, {XEO}")
    h(f"v_add_u32 v{vT + 5}, s{sT0}, v{vL16}")
    h(f"v_lshl_add_u32 v{vT + 6}, v{vLane}, 3, s{sT0}")
    stamp(h)
    h("s_barrier")
    stamp(h)
    SP = 32
    vS, vQ, vM, vA = 60, 61, 62, 64
    AHEAD = OPT["p4_a"]
    assert AHEAD < NX
    nxt_x = 0
    for st in range(NST):
        while nxt_x <= min(st + AHEAD, NST - 1):
            if nxt_x >= NX and nxt_x - NX > st - 2:
                break
            issue_x(nxt_x)
            nxt_x += 1
        dr.emit(100)
        wtok = dict(dr.tok)
        for _ in range(OPT["p4_wr"]):
            if nxt_w < NST and (nxt_w < NW or nxt_w - NW <= st - 2):
                assert nxt_w >= nxt_x or True
                issue_w(("w", nxt_w))
                nxt_w += 1
        dr.emit(100)
        if 2 <= st <= 5:
            for i in (2 * (st - 2), 2 * (st - 2) + 1):
                h(f"s_add_u32 s{sT0}, s38, {i * 16384}")
                dr.tok["st"] = h.vm(f"buffer_load_dwordx2 {vr(SP + 2 * i, 2)}, v{vT + 4}, {sr(sWS, 4)}, s{sT0} offen {LD()}")
        h.wait(vm=max(dr.tok[st], dr.tok.get(("w", st), -1)))
        assert st < PRE or ("w", st) in dr.tok
        if st == 9:
            h.wait(vm=dr.tok["st"])
            h(f"v_add_f32 v{vS}, v{SP}, v{SP + 2}")
            h(f"v_add_f32 v{vQ}, v{SP + 1}, v{SP + 3}")
            for i in range(2, 8):
                h(f"v_add_f32 v{vS}, v{vS}, v{SP + 2 * i}")
                h(f"v_add_f32 v{vQ}, v{vQ}, v{SP + 2 * i + 1}")
        if st == 10:
            half_sum(h, vS, vT)
            half_sum(h, vQ, vT)
            h(f"v_mul_f32 v{vM}, {hx(f2u(-1.0 / 512))}, v{vS}")
            h(f"v_mul_f32 v{vQ}, {hx(f2u(1.0 / 512))}, v{vQ}")
            h(f"v_fma_f32 v{vQ}, -v{vM}, v{vM}, v{vQ}")
            h(f"v_max_f32 v{vQ}, 0, v{vQ}")
            h(f"v_add_f32 v{vQ}, {hx(f2u(1e-5))}, v{vQ}")
        if st == 11:
            h(f"v_rsq_f32 v{vA}, v{vQ}")
            split_hi_lo(h, vM, 68, vT, vT + 1)
            h(f"v_mul_f32 v{vA + 1}, v{vQ}, v{vA}")
            h(f"v_mul_f32 v{vA}, {hx(f2u(-LOG2E))}, v{vA}")
            h(f"v_cvt_pk_bf16_f32 v69, v{vT}, 0")
            h("v_mov_b32 v70, 0")
            h("v_mov_b32 v71, 0")
            h.lg(f"ds_write_b128 v{vT + 5}, v[68:71]")
            h.lg(f"ds_write_b64 v{vT + 6}, {vr(vA, 2)} offset:1024")
        if st == 12:
            h.wait_all(vm=False)
        h("s_barrier")
        if st == OPT["p4_pf"]:
            h.vm(f"buffer_load_dword v{vPd}, v{vPf}, s[44:47], 0 offen")
        if st == OPT["p4_pf"] + 2:
            h.vm(f"buffer_load_dword v{vPd}, v15, s[44:47], 0 offen")
    h("s_barrier")
    h.label("L_p4_skip_l")

    sWr2, sWc = 36, 37
    vWrd, vWrdO, vXa, vCw, vCr, vEr = [3, 4], [5, 6], 7, 8, 9, 10
    ONES, vT, CS, ACC = 12, 16, 20, 32
    XF, WF = [128, 136], [144, 156]
    XE, AS = XF[0], ONES
    t = CS
    a(f"s_lshr_b32 s{sWr2}, s{sHw}, 1")
    a(f"s_and_b32 s{sWc}, s{sHw}, 1")
    a(f"s_lshl_b32 s34, s{sRb}, 1")
    a(f"s_add_u32 s34, s34, s{sWr2}")
    a(f"v_lshrrev_b32 v{t + 3}, 5, v{vLane}")
    a(f"v_bfe_u32 v{t}, v{vLane}, 2, 2")
    a(f"v_lshl_add_u32 v{t}, v{t + 3}, 2, v{t}")
    a(f"v_mul_u32_u24 v{t}, 192, v{t}")
    a(f"v_and_b32 v{t + 1}, 3, v{vLane}")
    a(f"v_lshl_add_u32 v{t}, v{t + 1}, 3, v{t}")
    a(f"s_mul_i32 s{sT0}, s{sWc}, 96")
    a(f"v_add_u32 v{t}, s{sT0}, v{t}")
    a(f"v_bfe_u32 v{t + 1}, v{vLane}, 4, 1")
    a(f"s_lshl_b32 s{sT0}, s{sWc}, 6")
    a(f"s_sub_u32 s{sT1}, {3072 + 32}, s{sT0}")
    a(f"s_add_u32 s{sT0}, {3072 - 32}, s{sT0}")
    a(f"v_mad_u32_u24 v{vWrd[0]}, v{t + 1}, s{sT1}, v{t}")
    a(f"v_mad_u32_u24 v{vWrdO[0]}, v{t + 1}, s{sT0}, v{t}")
    wl = [LdsAddr(a, vWrd), LdsAddr(a, vWrdO)]
    wl[0].setup(a)
    wl[1].setup(a)
    a(f"s_lshl_b32 s{sT0}, s{sWr2}, 12")
    a(f"s_add_u32 s{sT0}, s{sT0}, {XO}")
    a(f"v_add_u32 v{vXa}, s{sT0}, v{vL16}")
    a(f"v_xor_b32 v{t}, v{t + 1}, v{vLane}")
    a(f"v_and_b32 v{t}, 1, v{t}")
    a(f"v_cmp_eq_u32 vcc, 0, v{t}")
    a(f"v_mov_b32 v{t}, 0x3f803f80")
    a("s_nop 0")
    for r in range(4):
        a(f"v_cndmask_b32 v{ONES + r}, 0, v{t}, vcc")
    a(f"s_lshl_b32 s{sT0}, s{sWc}, 1")
    a(f"s_add_u32 s{sT1}, s{sT0}, s{sWr2}")
    a(f"s_mul_i32 s{sT1}, s{sT1}, 384")
    a(f"s_add_u32 s{sT1}, s{sT1}, {CSO}")
    a(f"v_and_b32 v{t}, 1, v{vLane}")
    a(f"v_lshlrev_b32 v{t}, 6, v{t}")
    a(f"v_and_b32 v{t + 1}, 48, v{vLane}")
    a(f"v_add3_u32 v{vCw}, v{t}, v{t + 1}, s{sT1}")
    a(f"s_mul_i32 s{sT0}, s{sT0}, 384")
    a(f"s_add_u32 s{sT0}, s{sT0}, {CSO}")
    a(f"v_mul_u32_u24 v{t}, 384, v{t + 3}")
    a(f"v_and_b32 v{t + 1}, 31, v{vLane}")
    a(f"v_lshl_add_u32 v{t}, v{t + 1}, 2, v{t}")
    a(f"v_add_u32 v{vCr}, s{sT0}, v{t}")
    a(f"s_lshl_b32 s55, s34, 8")
    a(f"s_lshl_b32 s35, s{sCg}, 1")
    a(f"s_add_u32 s35, s35, s{sWc}")
    a(f"s_lshl_b32 s{sT0}, s35, 2")
    a(f"s_add_u32 s55, s55, s{sT0}")
    a(f"s_add_u32 s55, s55, {F4}")
    a(f"s_mul_i32 s34, s34, {2 * 86 * 1024}")
    a(f"s_mul_i32 s38, s35, 3")
    a(f"s_lshl_b32 s35, s38, 10")
    a("s_add_u32 s34, s34, s35")
    a(f"s_add_u32 s34, s34, {GF}")
    a(f"s_add_u32 s35, s34, {86 * 1024}")
    a(f"s_lshl_b32 s{sT0}, s{sWr2}, 12")
    a(f"s_add_u32 s{sT0}, s{sT0}, {XEO}")
    a(f"v_add_u32 v{vEr}, s{sT0}, v{vL16}")
    a(f"v_lshl_add_u32 v{vEr + 1}, v{vLane}, 3, s{sT0}")
    for r in range(12):
        a(f"v_mov_b32 v{CS + r}, 0")

    def reads(s):
        st, ss = divmod(s, 2)
        W = []
        for j in range(3):
            for half in range(2):
                reg, off = wl[j & 1].at((st % NW) * 12288 + ss * 6144 + half * 8 * 192 + j * 32)
                W.append(f"ds_read_b64_tr_b16 {vr(WF[s & 1] + 4 * j + 2 * half, 2)}, {reg} offset:{off}")
        X = [f"ds_read_b128 {vr(XF[s & 1] + 4 * i, 4)}, v{vXa} offset:{(st % NX) * 8192 + i * 2048 + ss * 1024}"
             for i in range(2)]
        return [X[0], W[0], W[1], X[1], W[2], W[3], W[4], W[5]]

    rt = {}

    def emit_reads(b, s, lo, hi):
        ops = reads(s)
        for k in range(lo, min(hi, 8)):
            rt[(s, k)] = b.lg(ops[k])

    def main(b, s, m):
        j, i = divmod(m, 2)
        d = ACC + 16 * m
        c = "0" if s == 0 else vr(d, 16)
        b(f"v_mfma_f32_32x32x16_bf16 {vr(d, 16)}, {vr(WF[s & 1] + 4 * j, 4)}, {vr(XF[s & 1] + 4 * i, 4)}, {c}")

    def csum(b, s, j):
        b(f"v_mfma_f32_16x16x32_bf16 {vr(CS + 4 * j, 4)}, {vr(WF[s & 1] + 4 * j, 4)}, {vr(ONES, 4)}, {vr(CS + 4 * j, 4)}")

    a(f"s_lshl_b32 s40, s{sRb}, 8")
    a(f"s_add_u32 s40, s40, {F3}")
    poll(a, 40, vT, "p4")
    a("s_barrier")
    stamp(a)
    emit_reads(a, 0, 0, 8)
    a(f"s_cmp_eq_u32 s{sWr2}, 1")
    a("s_cbranch_scc1 L_p4_odd")
    cuts = [0, 2, 4, 6, 8, 8, 8]
    need = [3, 3, 5, 5, 7, 7]
    rt0 = dict(rt)
    odd = fork(a)
    odd.label("L_p4_odd")
    for par, b in ((0, a), (1, odd)):
        rt.clear()
        rt.update(rt0)
        for s in range(31):
            if s % 2 == 1:
                b.wait(lg=rt[(s, 7)])
                b("s_barrier")
            for m in range(6):
                b.wait(lg=rt[(s, need[m])])
                if m % 2 == 0 and s % 2 == par:
                    csum(b, s, m // 2)
                main(b, s, m)
                emit_reads(b, s + 1, cuts[m], cuts[m + 1])
        b.wait_all(vm=False)
        if par == 1:
            for j in range(3):
                csum(b, 31, j)
    odd("s_branch L_p4_join")
    a.label("L_p4_join")
    main(a, 31, 0)
    for j in range(3):
        a(f"v_mov_b32 v{WF[0] + 4 * j + 2}, 0")
        a(f"v_mov_b32 v{WF[0] + 4 * j + 3}, 0")
    main(a, 31, 1)
    a("s_mov_b32 exec_lo, 0x00030003")
    a("s_mov_b32 exec_hi, 0x00030003")
    for j in range(3):
        a.lg(f"ds_write_b128 v{vCw}, {vr(CS + 4 * j, 4)} offset:{j * 128}")
    a("s_mov_b64 exec, -1")
    for i in range(2):
        a.lg(f"ds_read_b128 {vr(XE + 4 * i, 4)}, v{vEr} offset:{i * 2048}")
        a.lg(f"ds_read_b64 {vr(AS + 2 * i, 2)}, v{vEr + 1} offset:{i * 2048 + 1024}")
    main(a, 31, 2)
    main(a, 31, 3)
    a.wait_all(vm=False)
    a("s_barrier")
    for j in range(3):
        rt[("c", j)] = a.lg(f"ds_read_b32 v{vT + 1 + j}, v{vCr} offset:{j * 128}")
    main(a, 31, 4)
    main(a, 31, 5)
    for j in range(3):
        w = WF[0] + 4 * j
        a.wait(lg=rt[("c", j)])
        a(f"v_cvt_pk_bf16_f32 v{w + 1}, v{vT + 1 + j}, 0")
        a(f"v_lshlrev_b32 v{vT}, 16, v{w + 1}")
        a(f"v_sub_f32 v{vT}, v{vT + 1 + j}, v{vT}")
        a(f"v_cvt_pk_bf16_f32 v{w}, v{vT + 1 + j}, v{vT}")
    for j in range(3):
        for i in range(2):
            d = ACC + 32 * j + 16 * i
            a(f"v_mfma_f32_32x32x16_bf16 {vr(d, 16)}, {vr(WF[0] + 4 * j, 4)}, {vr(XE + 4 * i, 4)}, {vr(d, 16)}")
    stamp(a)
    a("s_nop 4")
    for j in range(3):
        a(f"s_cmp_ge_u32 s38, {86 - j}")
        a("s_cbranch_scc1 L_p4_pub")
        Gs = [(ACC + 32 * j + 16 * i + r, i) for i in range(2) for r in range(8)]
        for g, i in Gs[::2]:
            a(f"v_pk_mul_f32 {vr(g, 2)}, {vr(g, 2)}, {vr(AS + 2 * i, 2)} op_sel_hi:[1,0]")
        for g, i in Gs:
            a(f"v_exp_f32 v{g}, v{g}")
        for g, i in Gs[::2]:
            a(f"v_pk_fma_f32 {vr(g, 2)}, {vr(g, 2)}, {vr(AS + 2 * i, 2)}, {vr(AS + 2 * i, 2)} op_sel:[0,1,1] op_sel_hi:[1,1,1]")
        for g, i in Gs:
            a(f"v_rcp_f32 v{g}, v{g}")
        for g, i in Gs[::2]:
            a(f"v_pk_mul_f32 {vr(g, 2)}, {vr(g, 2)}, {vr(g + 8, 2)}")
        o = ACC + 32 * j + 8
        for i in range(8):
            a(f"v_cvt_pk_bf16_f32 v{o + i}, v{Gs[2 * i][0]}, v{Gs[2 * i + 1][0]}")
        stores(a, [f"buffer_store_dwordx4 {vr(o, 4)}, v{vL16}, {sr(sWS, 4)}, s34 offen offset:{j * 1024}",
                   f"buffer_store_dwordx4 {vr(o + 4, 4)}, v{vL16}, {sr(sWS, 4)}, s35 offen offset:{j * 1024}"])
    a.label("L_p4_pub")
    a("s_nop 7")
    stamp(a)
    publish(a, 55, vT)
    a.label("L_p4_skip_c")
    return odd


def gen_fused():
    name = "kb_fused_kernel"
    a = Asm()
    a.raw(f".globl {name}")
    a.raw(".p2align 8")
    a.raw(f".type {name},@function")
    a.label(name)
    a("s_cmp_ge_u32 s2, 256")
    a(f"s_cbranch_scc1 L_{name}_done")
    stamp_real(a)
    stamp(a)
    ld2, fb = phase2(a, name)
    a(f"s_cmp_ge_u32 s{sWave}, 4")
    a("s_cbranch_scc0 L_compute")
    h = fork(a)
    c = fork(a)
    c.label("L_compute")
    phase_res(c, h, True, pre_publish=55)
    odd = phase4(c, h)
    phase_res(c, h, False)
    stamp_flush(h)
    h("s_endpgm")
    stamp_flush(c)
    c.label(f"L_{name}_done")
    c("s_endpgm")
    text = a.text() + h.text() + c.text() + odd.text() + ld2.text() + fb.text()
    return name, text, descriptor(name, 168, 0, sgpr=102), (256, 576, 163840)


def build():
    OPT["zero_flags"] = FLG
    ks = [G.gen_k1(), gen_fused()]
    ref = open(f"cdna_kernels/{NAME}.s.ref").read().split("\n")
    head = [l for l in ref if l.startswith(";") and "@launch" not in l and "Override launch" not in l
            and "grid=ceil" not in l]
    out = "\n".join(head) + "\n"
    for name, _, _, (g, b, lds) in ks:
        out += f"; @launch kernel={name} grid=({g},1,1) block=({b},1,1) lds={lds}\n"
    out += '.amdgcn_target "amdgcn-amd-amdhsa--gfx950"\n.text\n'
    bad = 0
    for name, text, _, _ in ks:
        bad += check_hazards(text, name)
        out += text
    out += "L_code_end:\n"
    out += '.section .rodata,"a"\n'
    for name, _, desc, _ in ks:
        out += ".p2align 6\n" + desc
    if bad:
        print("hazards:", bad)
    return out


if __name__ == "__main__":
    path = sys.argv[1] if len(sys.argv) > 1 else f"cdna_kernels/{NAME}.s"
    for arg in sys.argv[2:]:
        if arg == "stamps":
            G.STAMPS = True
        else:
            k_, v_ = arg.split("=")
            OPT[k_] = int(v_)
    open(path, "w").write(build())
    print("wrote", path)
```

```python
import sys

import gen as G
from gen import (Asm, Drip, LdsAddr, OPT, MB, QF, KVF, OF, HF, ST, GF, WS_SIZE, LOG2E, NAME, f2u, hx, vr, sr, srd,
                 fork, half_sum, split_hi_lo, code_prefetch, descriptor, check_hazards)

FLG = 11 * MB
F2, F3, F4, XT = FLG, FLG + 8192, FLG + 12288, FLG + 20480
FL1, FG1, GEN = FLG + 24576, FLG + 28672, FLG + 32768
KVL = 24 * MB
KNAME = NAME + "_kernel"
sTag = 53
OPT.update(dict(p3_a=3, p4_a=3, p5_a=4, p5_nw=11, p4_pf=10, p4_pre=6, p2_map=1, force_slow=0, p1_cnt=1, ld=0, touch_out=1, touch2=1, k1_tout=11, p2_fine=0, p2_rot=1, p4_wr=1, sc="sc1"))

sWS, sWave, sHw = 12, 24, 29
sT0, sT1 = 30, 31
KX, KWO, KG, KU, KD, KO = 64, 68, 72, 74, 76, 78
vLane, vL16 = 1, 2


def LD():
    return ["sc1", "nt", "", "sc0 sc1", "sc0"][OPT["ld"]]


def stamp(a):
    if not G.STAMPS:
        return
    i = getattr(a, "nstamp", 0)
    a.nstamp = i + 1
    assert i < 20
    a("s_memtime s[100:101]")
    a.wait_all(vm=False)
    a(f"s_mov_b32 s{80 + i}, s100")


def stamp_real(a):
    if not G.STAMPS:
        return
    i = getattr(a, "nstamp", 0)
    a.nstamp = i + 1
    a("s_memrealtime s[100:101]")
    a.wait_all(vm=False)
    a(f"s_mov_b32 s{80 + i}, s100")


def stamp_flush(a):
    if not G.STAMPS:
        return
    a.wait_all()
    stamp(a)
    stamp_real(a)
    a("s_mov_b64 exec, -1")
    a("s_lshl_b32 s58, s2, 3")
    a(f"s_add_u32 s58, s58, s{sWave}")
    a("s_lshl_b32 s58, s58, 7")
    a(f"s_add_u32 s58, s58, {G.DBGO + MB}")
    a("v_mov_b32 v1, 0")
    for i in range(a.nstamp):
        a(f"v_mov_b32 v2, s{80 + i}")
        a(f"buffer_store_dword v2, v1, {sr(sWS, 4)}, s58 offen offset:{4 * i}")
    a.wait_all()


LMODE = 163840 - 16
sMode = 54
_uid = [0]


def stores(a, ins, always_slow=False):
    if always_slow:
        for x in ins:
            a.vm(x + " sc1")
        return
    _uid[0] += 1
    u = _uid[0]
    a(f"s_cmp_eq_u32 s{sMode}, 0")
    a(f"s_cbranch_scc1 L_st_{u}_s")
    for x in ins:
        a.vm(x)
    a(f"s_branch L_st_{u}_j")
    a.label(f"L_st_{u}_s")
    for x in ins:
        a(x + " sc1")
    a.label(f"L_st_{u}_j")


def publish(a, sOff, vt, always_slow=False):
    a(f"v_mov_b32 v{vt}, 0")
    a(f"v_mov_b32 v{vt + 1}, s{sTag}")
    a("s_mov_b64 exec, 1")
    a.wait_all(lg=False)
    stores(a, [f"buffer_store_dword v{vt + 1}, v{vt}, {sr(sWS, 4)}, s{sOff} offen"], always_slow)
    a("s_mov_b64 exec, -1")


def poll(a, sOff, vt, uid, nflags=64):
    a(f"s_cmp_lg_u32 s{sWave}, 0")
    a(f"s_cbranch_scc1 L_poll_{uid}_go")
    a(f"v_lshlrev_b32 v{vt}, 2, v{vLane}")
    a("s_mov_b32 s59, 0x40000")
    if nflags < 64:
        a(f"s_mov_b64 exec, {hx((1 << nflags) - 1)}")
    a.label(f"L_poll_{uid}")
    a(f"buffer_load_dword v{vt + 1}, v{vt}, {sr(sWS, 4)}, s{sOff} offen sc1")
    a("s_sub_u32 s59, s59, 1")
    a("s_waitcnt vmcnt(0)")
    a(f"v_cmp_ne_u32 vcc, s{sTag}, v{vt + 1}")
    a("s_cmp_eq_u32 s59, 0")
    a(f"s_cbranch_scc1 L_poll_{uid}_x")
    a(f"s_cbranch_vccnz L_poll_{uid}")
    a.label(f"L_poll_{uid}_x")
    a("s_mov_b64 exec, -1")
    a.label(f"L_poll_{uid}_go")
    a("s_barrier")


def phase1(a):
    sX, sW = 20, 16
    sWr, sWc, sCg, sRb = 25, 26, 27, 28
    sWL = 32
    sOnes = 41
    vT = 8
    NSLOT, SLOT, WBASE, NST = 7, 12288, 65536, 16
    CSO = WBASE + NSLOT * SLOT
    XEO = CSO + 2048
    RSO = XEO + 2048
    a("s_load_dwordx16 s[64:79], s[0:1], 0")
    a("s_load_dwordx2 s[8:9], s[0:1], 72")
    a(f"v_and_b32 v{vLane}, 63, v0")
    a(f"v_lshrrev_b32 v7, 6, v0")
    a(f"v_lshlrev_b32 v{vL16}, 4, v{vLane}")
    a(f"v_readfirstlane_b32 s{sWave}, v7")
    a(f"s_and_b32 s{sT0}, s2, 7")
    a(f"s_lshl_b32 s{sT0}, s{sT0}, 2")
    a(f"s_bfe_u32 s{sT1}, s2, 0x20003")
    a(f"s_add_u32 s{sRb}, s{sT0}, s{sT1}")
    a(f"s_lshr_b32 s{sCg}, s2, 5")
    a(f"s_and_b32 s{sHw}, s{sWave}, 3")
    a(f"s_cmp_eq_u32 s{sWave}, 8")
    a("s_cbranch_scc1 L_p1_aux")
    a(f"s_cmp_ge_u32 s{sWave}, 4")
    a(f"s_cbranch_scc0 L_p1_compute")

    x = fork(a)
    x.label("L_p1_aux")
    x("s_setprio 3")
    x(f"v_lshlrev_b32 v30, 7, v{vLane}")
    x(f"s_lshr_b32 s{sT0}, s2, 3")
    x(f"s_lshl_b32 s{sT0}, s{sT0}, 11")
    x(f"v_add_u32 v30, s{sT0}, v30")
    x("s_mov_b64 exec, 0xffff")
    code_prefetch(x, KNAME, 44, 30, 31, "p1")
    x("s_mov_b64 exec, -1")
    x("s_getreg_b32 s56, hwreg(HW_REG_XCC_ID, 0, 4)")
    x("s_and_b32 s57, s2, 7")
    x("s_lshl_b32 s57, s57, 8")
    x(f"s_add_u32 s57, s57, {XT}")
    x("s_lshr_b32 s58, s2, 3")
    x("s_lshl_b32 s58, s58, 2")
    x(f"v_mov_b32 v6, {GEN}")
    x("s_waitcnt lgkmcnt(0)")
    srd(x, sWS, 8, WS_SIZE)
    x.vm(f"buffer_load_dword v7, v6, {sr(sWS, 4)}, 0 offen sc1")
    x("v_mov_b32 v6, s58")
    x.wait_all()
    x(f"v_readfirstlane_b32 s{sTag}, v7")
    x("s_nop 3")
    x(f"s_add_u32 s{sTag}, s{sTag}, 1")
    x(f"s_lshl_b32 s58, s{sTag}, 4")
    x("s_or_b32 s56, s56, s58")
    x("v_mov_b32 v7, s56")
    x("s_mov_b64 exec, 1")
    x.vm(f"buffer_store_dword v7, v6, {sr(sWS, 4)}, s57 offen sc1")
    x("s_mov_b32 exec_lo, -1")
    x("s_mov_b32 exec_hi, 0")
    x(f"v_lshlrev_b32 v6, 2, v{vLane}")
    for st in range(NST + 1):
        if st == 10:
            x("s_mov_b32 s59, 0x40000")
            x("s_waitcnt vmcnt(0)")
            x("s_branch L_xt_chk")
            x.label("L_xt_poll")
            x(f"buffer_load_dword v7, v6, {sr(sWS, 4)}, s57 offen sc1")
            x("s_sub_u32 s59, s59, 1")
            x("s_waitcnt vmcnt(0)")
            x.label("L_xt_chk")
            x("v_xor_b32 v8, s56, v7")
            x("v_cmp_lt_u32 vcc, 15, v8")
            x("s_cmp_eq_u32 s59, 0")
            x("s_cbranch_scc1 L_xt_done")
            x("s_cbranch_vccnz L_xt_poll")
            x.label("L_xt_done")
            x("v_cmp_ne_u32 vcc, 0, v8")
            x("s_nop 1")
            x("s_cmp_eq_u64 vcc, 0")
            x(f"s_cselect_b32 s{sMode}, {0 if OPT['force_slow'] else 1}, 0")
            x(f"v_mov_b32 v6, {LMODE}")
            x(f"v_mov_b32 v8, s{sMode}")
            x(f"v_mov_b32 v9, s{sTag}")
            x("ds_write_b64 v6, v[8:9]")
            x("s_waitcnt lgkmcnt(0)")
            x("s_mov_b64 exec, -1")
        x("s_barrier")
        if st == 5:
            x(f"buffer_load_dword v7, v6, {sr(sWS, 4)}, s57 offen sc1")

    h = fork(a)
    vWoff, vXg, vSr, vXe, vRs = 3, 4, 6, 20, 21
    vS, vQ, vM, vR = 22, 23, 24, 25
    XB = 32
    h(f"v_lshrrev_b32 v{vT}, 3, v{vLane}")
    h(f"v_and_b32 v{vT + 1}, 7, v{vLane}")
    h(f"v_lshrrev_b32 v{vT + 2}, 1, v{vT}")
    h(f"v_xor_b32 v{vT + 2}, v{vT + 2}, v{vT + 1}")
    h(f"v_lshlrev_b32 v{vT + 2}, 4, v{vT + 2}")
    h(f"v_lshl_add_u32 v{vXg}, v{vT}, 10, v{vT + 2}")
    h(f"v_xor_b32 v{vXg + 1}, 64, v{vXg}")
    h(f"v_add_u32 v{vXg + 1}, {8 * 1024 - 1024}, v{vXg + 1}")
    h(f"s_lshl_b32 s34, s{sRb}, 16")
    h(f"s_lshl_b32 s{sT0}, s{sHw}, 14")
    h(f"s_add_u32 s34, s34, s{sT0}")
    h(f"s_lshl_b32 s36, s{sHw}, 11")
    h(f"v_lshrrev_b32 v{vT + 2}, 2, v{vLane}")
    h(f"v_and_b32 v{vT + 2}, 4, v{vT + 2}")
    h(f"v_xor_b32 v{vT + 2}, v{vT + 2}, v{vT + 1}")
    h(f"v_lshlrev_b32 v{vT + 2}, 4, v{vT + 2}")
    h(f"v_mul_u32_u24 v{vT + 3}, 3072, v{vT}")
    h(f"s_mul_i32 s{sT0}, s{sHw}, {8 * 3072}")
    h(f"s_lshl_b32 s{sT1}, s{sCg}, 7")
    h(f"s_add_u32 s{sT0}, s{sT0}, s{sT1}")
    h(f"v_add3_u32 v{vWoff}, v{vT + 3}, v{vT + 2}, s{sT0}")
    h(f"s_mul_i32 s{sWL}, s{sHw}, 3072")
    h("s_waitcnt lgkmcnt(0)")
    srd(h, sX, KX, 2048 * 1024)
    srd(h, sW, KX + 2, 512 * 3072)
    dr = Drip(h)

    def x_dma(c, key):
        dr.add(key, [f"s_add_u32 m0, s36, {c * 8192}", f"s_add_u32 s43, s34, {c * 128}"],
               f"buffer_load_dwordx4 v{vXg}, {sr(sX, 4)}, s43 offen lds")
        dr.add(key, [], f"buffer_load_dwordx4 v{vXg + 1}, {sr(sX, 4)}, s43 offen offset:1024 lds")

    def issue(st):
        if st < 8:
            x_dma(st, st)
        for seg in range(3):
            pre = [f"s_add_u32 m0, s{sWL}, {WBASE + (st % NSLOT) * SLOT}", f"s_mov_b32 s42, {32 * st * 3072}"] if seg == 0 else []
            dr.add(st, pre, f"buffer_load_dwordx4 v{vWoff}, {sr(sW, 4)}, s42 offen offset:{seg * 1024} lds")

    for st in range(NSLOT):
        issue(st)
    AHEAD = OPT["k1_d"]
    dr.emit(5 * OPT["k1_t"])
    if OPT["k1_touch"]:
        h(f"s_lshl_b32 s{sT0}, s2, 2")
        h(f"s_add_u32 s{sT0}, s{sT0}, s{sHw}")
        h(f"s_mul_i32 s{sT1}, s{sT0}, 1536")
        h(f"s_lshl_b32 s{sT0}, s{sT0}, 11")
        h(f"v_lshlrev_b32 v30, 7, v{vLane}")
        h("s_mov_b64 exec, 0xfff")
        h.vm(f"buffer_load_dword v31, v30, {sr(sW, 4)}, s{sT1} offen")
        h("s_mov_b64 exec, 0xffff")
        h.vm(f"buffer_load_dword v31, v30, {sr(sX, 4)}, s{sT0} offen")
        h("s_mov_b64 exec, -1")
    dr.emit(5 * (AHEAD - OPT["k1_t"]))
    srd(h, sWS, 8, WS_SIZE)
    h(f"s_mov_b32 s{sOnes}, 0x3f803f80")
    h(f"v_lshrrev_b32 v{vT}, 2, v{vLane}")
    h(f"v_and_b32 v{vT + 1}, 3, v{vLane}")
    h(f"v_lshlrev_b32 v{vT + 2}, 7, v{vT}")
    h(f"v_lshl_add_u32 v{vT + 2}, v{vT + 1}, 4, v{vT + 2}")
    h(f"v_bfe_u32 v{vT + 3}, v{vLane}, 3, 1")
    h(f"v_lshl_add_u32 v{vT + 2}, v{vT + 3}, 6, v{vT + 2}")
    h(f"v_add_u32 v{vSr}, s36, v{vT + 2}")
    h(f"v_xor_b32 v{vSr + 1}, 64, v{vSr}")
    h(f"s_lshl_b32 s{sT0}, s{sHw}, 4")
    h(f"v_add_u32 v{vT}, s{sT0}, v{vT}")
    h(f"v_lshlrev_b32 v{vRs}, 2, v{vT}")
    h(f"v_add_u32 v{vRs}, {RSO}, v{vRs}")
    h(f"v_and_b32 v{vT + 2}, 31, v{vT}")
    h(f"v_lshl_add_u32 v{vT + 2}, v{vT + 1}, 5, v{vT + 2}")
    h(f"v_lshrrev_b32 v{vT + 3}, 5, v{vT}")
    h(f"v_lshl_add_u32 v{vT + 2}, v{vT + 3}, 6, v{vT + 2}")
    h(f"v_lshlrev_b32 v{vXe}, 4, v{vT + 2}")
    h(f"v_add_u32 v{vXe}, {XEO}, v{vXe}")
    h(f"v_mov_b32 v{vS}, 0")
    h(f"v_mov_b32 v{vQ}, 0")
    st_tok = {}
    for st in range(NST):
        dr.wait(st)
        if st == 12:
            h.wait_all(vm=False)
        h("s_barrier")
        if st < 8:
            b = XB + 8 * (st & 1)
            h.lg(f"ds_read_b128 {vr(b, 4)}, v{vSr} offset:{st * 8192}")
            st_tok[st] = h.lg(f"ds_read_b128 {vr(b + 4, 4)}, v{vSr + 1} offset:{st * 8192}")
        if st >= 1 and st + NSLOT - 1 < NST:
            issue(st + NSLOT - 1)
        tgt = min(NST - 1, st + AHEAD + min(st + 1, OPT["k1_g"]))
        while dr.q and dr.q[0][0] <= tgt:
            dr.emit()
        if st < 8:
            h.wait(lg=st_tok[st])
            b = XB + 8 * (st & 1)
            for r in range(8):
                h(f"v_dot2_f32_bf16 v{vS}, v{b + r}, s{sOnes}, v{vS}")
                h(f"v_dot2_f32_bf16 v{vQ}, v{b + r}, v{b + r}, v{vQ}")
        if st == 8:
            for pat in ("quad_perm:[1,0,3,2]", "quad_perm:[2,3,0,1]"):
                h(f"v_add_f32_dpp v{vS}, v{vS}, v{vS} {pat} row_mask:0xf bank_mask:0xf")
                h(f"v_add_f32_dpp v{vQ}, v{vQ}, v{vQ} {pat} row_mask:0xf bank_mask:0xf")
                h("s_nop 0")
            h(f"v_mul_f32 v{vM}, {hx(f2u(-1.0 / 512))}, v{vS}")
            h(f"v_mul_f32 v{vQ}, {hx(f2u(1.0 / 512))}, v{vQ}")
            h(f"v_fma_f32 v{vQ}, -v{vM}, v{vM}, v{vQ}")
            h(f"v_max_f32 v{vQ}, 0, v{vQ}")
            h(f"v_add_f32 v{vQ}, {hx(f2u(1e-5))}, v{vQ}")
        if st == 9:
            h(f"v_rsq_f32 v{vR}, v{vQ}")
            split_hi_lo(h, vM, XB, vT, vT + 1)
            h(f"v_cvt_pk_bf16_f32 v{XB + 1}, v{vT}, 0")
            h(f"v_mov_b32 v{XB + 2}, 0")
            h(f"v_mov_b32 v{XB + 3}, 0")
        if st == OPT.get("k1_tout", -1):
            h(f"s_lshl_b32 s{sT0}, s{sCg}, 2")
            h(f"s_add_u32 s{sT0}, s{sT0}, s{sHw}")
            h(f"s_lshl_b32 s{sT0}, s{sT0}, 5")
            h(f"s_add_u32 s{sT0}, s{sT0}, s{sRb}")
            h(f"s_lshl_b32 s{sT1}, s{sT0}, 12")
            h(f"s_add_u32 s{sT1}, s{sT1}, {KVL}")
            h(f"s_lshl_b32 s{sT0}, s{sT0}, 11")
            if QF:
                h(f"s_add_u32 s{sT0}, s{sT0}, {QF}")
            h(f"v_lshlrev_b32 v30, 7, v{vLane}")
            h("s_mov_b64 exec, 0xffff")
            h.vm(f"buffer_load_dword v31, v30, {sr(sWS, 4)}, s{sT0} offen")
            h("s_mov_b32 exec_lo, -1")
            h.vm(f"buffer_load_dword v31, v30, {sr(sWS, 4)}, s{sT1} offen")
            h("s_mov_b64 exec, -1")
        if st == 10:
            h("s_mov_b32 exec_lo, 0x33333333")
            h("s_mov_b32 exec_hi, 0x33333333")
            h.lg(f"ds_write_b128 v{vXe}, {vr(XB, 4)}")
            h.lg(f"ds_write_b32 v{vRs}, v{vR}")
            h("s_mov_b64 exec, -1")
    h(f"v_mov_b32 v{vT}, {LMODE}")
    h.lg(f"ds_read_b64 {vr(vT + 2, 2)}, v{vT}")
    h.wait_all(vm=False)
    h(f"v_readfirstlane_b32 s{sMode}, v{vT + 2}")
    h(f"v_readfirstlane_b32 s{sTag}, v{vT + 3}")
    h("s_barrier")
    h.wait_all()
    h.nstamp = getattr(h, "nstamp", 0) + 3
    a = fork(a)
    a.label("L_p1_compute")

    vXrd = [3, 4, 5, 6]
    vKoff, vVoff = 20, 21
    vWrd = [22, 23, 24]
    vCw, vCr, vEr, vRl, vRr = 25, 26, 27, 28, 29
    XF = [32, 36]
    WF = [40, 52]
    CS, ONES, XE = 64, 76, 80
    RV = 84
    accQ, accK, accV = 104, 120, 136
    a(f"s_lshr_b32 s{sWr}, s{sHw}, 1")
    a(f"s_and_b32 s{sWc}, s{sHw}, 1")
    a(f"v_and_b32 v{vT}, 31, v{vLane}")
    a(f"v_lshrrev_b32 v{vT + 1}, 5, v{vLane}")
    a(f"v_bfe_u32 v{vT + 2}, v{vLane}, 1, 3")
    a(f"v_xor_b32 v{vT + 2}, v{vT + 2}, v{vT + 1}")
    a(f"v_lshlrev_b32 v{vT + 2}, 4, v{vT + 2}")
    a(f"v_lshl_add_u32 v{vT + 2}, v{vT}, 7, v{vT + 2}")
    a(f"s_lshl_b32 s{sT0}, s{sWr}, 12")
    a(f"v_add_u32 v{vXrd[0]}, s{sT0}, v{vT + 2}")
    for ss in range(1, 4):
        a(f"v_xor_b32 v{vXrd[ss]}, {ss * 32}, v{vXrd[0]}")
    a(f"v_mul_u32_u24 v{vT + 2}, 3072, v{vT + 1}")
    a(f"v_bfe_u32 v{vT + 3}, v{vLane}, 2, 2")
    a(f"v_lshl_add_u32 v{vT + 2}, v{vT + 3}, 7, v{vT + 2}")
    a(f"v_lshrrev_b32 v{vT + 3}, 1, v{vT + 3}")
    a(f"v_xor_b32 v{vT + 3}, s{sWc}, v{vT + 3}")
    a(f"v_lshl_add_u32 v{vT + 2}, v{vT + 3}, 6, v{vT + 2}")
    a(f"v_bfe_u32 v{vT + 4}, v{vLane}, 4, 1")
    a(f"v_lshl_add_u32 v{vT + 2}, v{vT + 4}, 5, v{vT + 2}")
    a(f"v_and_b32 v{vT + 3}, 3, v{vLane}")
    a(f"v_lshl_add_u32 v{vWrd[0]}, v{vT + 3}, 3, v{vT + 2}")
    wl = LdsAddr(a, vWrd)
    wl.setup(a)
    a(f"v_xor_b32 v{vT + 2}, v{vT + 4}, v{vLane}")
    a(f"v_and_b32 v{vT + 2}, 1, v{vT + 2}")
    a(f"v_cmp_eq_u32 vcc, 0, v{vT + 2}")
    a(f"v_mov_b32 v{vT + 2}, 0x3f803f80")
    a("s_nop 0")
    for r in range(4):
        a(f"v_cndmask_b32 v{ONES + r}, 0, v{vT + 2}, vcc")
    a(f"s_lshl_b32 s{sT0}, s{sWc}, 1")
    a(f"s_add_u32 s{sT1}, s{sT0}, s{sWr}")
    a(f"s_mul_i32 s{sT1}, s{sT1}, 384")
    a(f"s_add_u32 s{sT1}, s{sT1}, {CSO}")
    a(f"v_and_b32 v{vT + 2}, 1, v{vLane}")
    a(f"v_lshlrev_b32 v{vT + 2}, 6, v{vT + 2}")
    a(f"v_and_b32 v{vT + 3}, 48, v{vLane}")
    a(f"v_add3_u32 v{vCw}, v{vT + 2}, v{vT + 3}, s{sT1}")
    a(f"s_mul_i32 s{sT0}, s{sT0}, 384")
    a(f"s_add_u32 s{sT0}, s{sT0}, {CSO}")
    a(f"v_mul_u32_u24 v{vT + 2}, 384, v{vT + 1}")
    a(f"v_lshl_add_u32 v{vT + 2}, v{vT}, 2, v{vT + 2}")
    a(f"v_add_u32 v{vCr}, s{sT0}, v{vT + 2}")
    a(f"s_lshl_b32 s{sT0}, s{sWr}, 10")
    a(f"s_add_u32 s{sT0}, s{sT0}, {XEO}")
    a(f"v_add_u32 v{vEr}, s{sT0}, v{vL16}")
    a(f"s_lshl_b32 s{sT0}, s{sWr}, 7")
    a(f"s_add_u32 s{sT0}, s{sT0}, {RSO}")
    a(f"v_lshl_add_u32 v{vRl}, v{vT}, 2, s{sT0}")
    a(f"v_lshl_add_u32 v{vRr}, v{vT + 1}, 4, s{sT0}")
    a(f"v_and_b32 v{vT + 2}, 0x33, v{vLane}")
    a(f"v_bfe_u32 v{vT + 3}, v{vLane}, 2, 1")
    a(f"v_lshl_or_b32 v{vT + 2}, v{vT + 3}, 3, v{vT + 2}")
    a(f"v_bfe_u32 v{vT + 3}, v{vLane}, 3, 1")
    a(f"v_lshl_or_b32 v{vT + 2}, v{vT + 3}, 2, v{vT + 2}")
    a(f"v_lshlrev_b32 v{vKoff}, 4, v{vT + 2}")
    a(f"v_lshlrev_b32 v{vT + 2}, 17, v{vT + 4}")
    a(f"v_lshl_add_u32 v{vT + 2}, v{vT + 1}, 8, v{vT + 2}")
    a(f"v_and_b32 v{vT + 3}, 15, v{vLane}")
    a(f"v_lshl_add_u32 v{vVoff}, v{vT + 3}, 4, v{vT + 2}")
    a(f"s_lshl_b32 s{sT0}, s{sCg}, 2")
    a(f"s_lshl_b32 s{sT1}, s{sWc}, 1")
    a(f"s_add_u32 s{sT0}, s{sT0}, s{sT1}")
    a(f"s_lshl_b32 s{sT1}, s{sRb}, 1")
    a(f"s_add_u32 s{sT1}, s{sT1}, s{sWr}")
    a(f"s_lshl_b32 s46, s{sT0}, 16")
    a(f"s_lshl_b32 s47, s{sT1}, 10")
    a(f"s_add_u32 s46, s46, s47")
    if QF:
        a(f"s_add_u32 s46, s46, {QF}")
    a(f"s_add_u32 s47, s46, 65536")
    a(f"s_lshl_b32 s36, s{sT0}, 17")
    a(f"s_lshl_b32 s37, s{sT1}, 11")
    a(f"s_add_u32 s36, s36, s37")
    a(f"s_add_u32 s36, s36, {KVF}")
    a(f"s_add_u32 s37, s36, 131072")
    for r in range(12):
        a(f"v_mov_b32 v{CS + r}, 0")
    a("s_waitcnt lgkmcnt(0)")
    srd(a, sWS, 8, WS_SIZE)
    a(f"s_lshl_b32 s{sT0}, s{sCg}, 1")
    a(f"s_add_u32 s{sT0}, s{sT0}, s{sWc}")
    a(f"s_and_b32 s{sT1}, s{sRb}, 3")
    a(f"s_lshl_b32 s{sT1}, s{sT1}, 1")
    a(f"s_add_u32 s{sT1}, s{sT1}, s{sWr}")
    a(f"s_lshl_b32 s{sT1}, s{sT1}, 2")
    a("s_and_b32 s38, s2, 7")
    a("s_lshl_b32 s48, s38, 9")
    a(f"s_lshl_b32 s39, s{sT0}, 5")
    a("s_add_u32 s48, s48, s39")
    a(f"s_add_u32 s48, s48, s{sT1}")
    a(f"s_add_u32 s48, s48, {FL1}")
    a(f"s_lshl_b32 s49, s{sT0}, 8")
    a("s_lshl_b32 s39, s38, 5")
    a("s_add_u32 s49, s49, s39")
    a(f"s_add_u32 s49, s49, s{sT1}")
    a(f"s_add_u32 s49, s49, {FG1}")
    a(f"s_add_u32 s38, s36, {KVL - KVF}")
    a(f"s_add_u32 s39, s37, {KVL - KVF}")
    a(f"v_mov_b32 v30, {LMODE}")

    def reads(s):
        st, ss = divmod(s, 2)
        ops = [f"ds_read_b128 {vr(XF[s & 1], 4)}, v{vXrd[s & 3]} offset:{(s >> 2) * 8192}"]
        for seg in range(3):
            for half in range(2):
                reg, off = wl.at(WBASE + (st % NSLOT) * SLOT + ss * 6144 + seg * 1024 + half * 512)
                ops.append(f"ds_read_b64_tr_b16 {vr(WF[s & 1] + 4 * seg + 2 * half, 2)}, {reg} offset:{off}")
        return ops

    rt = {}

    def emit_reads(b, s, lo, hi):
        ops = reads(s)
        for k in range(lo, min(hi, 7)):
            rt[(s, k)] = b.lg(ops[k])

    a("s_barrier")
    stamp(a)
    emit_reads(a, 0, 0, 7)
    a(f"s_cmp_eq_u32 s{sWr}, 1")
    a("s_cbranch_scc1 L_p1_odd")
    rt0 = dict(rt)
    odd = fork(a)
    odd.label("L_p1_odd")
    acc = [accQ, accK, accV]

    def mm(b, j, w, x, first=False):
        c = "0" if first else vr(acc[j], 16)
        ops = (vr(w, 4), vr(x, 4)) if j < 2 else (vr(x, 4), vr(w, 4))
        b(f"v_mfma_f32_32x32x16_bf16 {vr(acc[j], 16)}, {ops[0]}, {ops[1]}, {c}")

    def csum(b, s, j):
        b(f"v_mfma_f32_16x16x32_bf16 {vr(CS + 4 * j, 4)}, {vr(WF[s & 1] + 4 * j, 4)}, {vr(ONES, 4)}, {vr(CS + 4 * j, 4)}")

    for par, b in ((0, a), (1, odd)):
        rt.clear()
        rt.update(rt0)
        for s in range(31):
            if s % 2 == 1:
                b.wait(lg=rt[(s, 6)])
                b("s_barrier")
            for j in range(3):
                b.wait(lg=rt[(s, 2 + 2 * j)])
                if s % 2 == par:
                    csum(b, s, j)
                mm(b, j, WF[s & 1] + 4 * j, XF[s & 1], s == 0)
                emit_reads(b, s + 1, [0, 3, 5][j], [3, 5, 7][j])
            if s == 27:
                b.lg(f"ds_read_b128 {vr(XE, 4)}, v{vEr}")
                b.lg(f"ds_read_b32 v100, v{vRl}")
                b.lg("ds_read_b64 v[102:103], v30")
            if s == 28:
                for g in range(4):
                    b.lg(f"ds_read_b128 {vr(RV + 4 * g, 4)}, v{vRr} offset:{g * 32}")
        b.wait_all(vm=False)
        if par == 1:
            for j in range(3):
                csum(b, 31, j)
    odd("s_branch L_p1_join")
    a.label("L_p1_join")
    mm(a, 0, WF[1], XF[1])
    for j in range(3):
        a(f"v_mov_b32 v{WF[0] + 4 * j + 2}, 0")
        a(f"v_mov_b32 v{WF[0] + 4 * j + 3}, 0")
    a(f"v_mul_f32 v101, {hx(f2u(0.25 * LOG2E))}, v100")
    a(f"v_readfirstlane_b32 s{sMode}, v102")
    a(f"v_readfirstlane_b32 s{sTag}, v103")
    a("s_mov_b32 exec_lo, 0x00030003")
    a("s_mov_b32 exec_hi, 0x00030003")
    for j in range(3):
        a.lg(f"ds_write_b128 v{vCw}, {vr(CS + 4 * j, 4)} offset:{j * 128}")
    a("s_mov_b64 exec, -1")
    mm(a, 1, WF[1] + 4, XF[1])
    a.wait_all(vm=False)
    a("s_barrier")
    for j in range(3):
        rt[("c", j)] = a.lg(f"ds_read_b32 v{vT + 4 + j}, v{vCr} offset:{j * 128}")
    mm(a, 2, WF[1] + 8, XF[1])
    stamp(a)
    for j in range(3):
        w = WF[0] + 4 * j
        a.wait(lg=rt[("c", j)])
        a(f"v_cvt_pk_bf16_f32 v{w + 1}, v{vT + 4 + j}, 0")
        a(f"v_lshlrev_b32 v{vT}, 16, v{w + 1}")
        a(f"v_sub_f32 v{vT}, v{vT + 4 + j}, v{vT}")
        a(f"v_cvt_pk_bf16_f32 v{w}, v{vT + 4 + j}, v{vT}")
    for j in range(3):
        mm(a, j, WF[0] + 4 * j, XE)
    a("s_nop 9")
    P = 32
    for r in range(0, 16, 2):
        a(f"v_pk_mul_f32 {vr(accQ + r, 2)}, {vr(accQ + r, 2)}, v[100:101] op_sel:[0,1] op_sel_hi:[1,1]")
    for i in range(8):
        a(f"v_cvt_pk_bf16_f32 v{P + i}, v{accQ + 2 * i}, v{accQ + 2 * i + 1}")
    stores(a, [f"buffer_store_dwordx4 {vr(P, 4)}, v{vL16}, {sr(sWS, 4)}, s46 offen",
               f"buffer_store_dwordx4 {vr(P + 4, 4)}, v{vL16}, {sr(sWS, 4)}, s47 offen"])
    for r in range(0, 16, 2):
        a(f"v_pk_mul_f32 {vr(accK + r, 2)}, {vr(accK + r, 2)}, v[100:101] op_sel_hi:[1,0]")
    for i in range(8):
        a(f"v_cvt_pk_bf16_f32 v{P + 8 + i}, v{accK + 2 * i}, v{accK + 2 * i + 1}")
    stores(a, [f"buffer_store_dwordx4 {vr(P + 8, 4)}, v{vKoff}, {sr(sWS, 4)}, s38 offen",
               f"buffer_store_dwordx4 {vr(P + 12, 4)}, v{vKoff}, {sr(sWS, 4)}, s39 offen"])
    for r in range(0, 16, 2):
        a(f"v_pk_mul_f32 {vr(accV + r, 2)}, {vr(accV + r, 2)}, {vr(RV + r, 2)}")
    for i in range(8):
        a(f"v_cvt_pk_bf16_f32 v{P + 16 + i}, v{accV + 2 * i}, v{accV + 2 * i + 1}")
    stores(a, [f"buffer_store_dwordx4 {vr(P + 16, 4)}, v{vVoff}, {sr(sWS, 4)}, s38 offen offset:1024",
               f"buffer_store_dwordx4 {vr(P + 20, 4)}, v{vVoff}, {sr(sWS, 4)}, s38 offen offset:1536"])
    loc = a.vm_issued - 1
    a.vm(f"buffer_store_dwordx4 {vr(P + 8, 4)}, v{vKoff}, {sr(sWS, 4)}, s36 offen sc1")
    a.vm(f"buffer_store_dwordx4 {vr(P + 12, 4)}, v{vKoff}, {sr(sWS, 4)}, s37 offen sc1")
    a.vm(f"buffer_store_dwordx4 {vr(P + 16, 4)}, v{vVoff}, {sr(sWS, 4)}, s36 offen offset:1024 sc1")
    a.vm(f"buffer_store_dwordx4 {vr(P + 20, 4)}, v{vVoff}, {sr(sWS, 4)}, s36 offen offset:1536 sc1")
    stamp(a)
    a(f"v_mov_b32 v{vT}, 0")
    a(f"v_mov_b32 v{vT + 1}, s{sTag}")
    a("s_mov_b64 exec, 1")
    if OPT["p1_cnt"]:
        a.wait(vm=loc)
    else:
        a.wait_all(lg=False)
    stores(a, [f"buffer_store_dword v{vT + 1}, v{vT}, {sr(sWS, 4)}, s48 offen"])
    a("s_mov_b64 exec, -1")
    return a, odd, h, x


def phase2(a, l, h):
    sHead, sQb, sKh, sQs = 25, 26, 27, 28
    sVm = 34
    vKrd, vVrd, vIdx, vXw, vXr = 3, 4, 5, 6, 7
    Qf = [8, 12]
    Kf, Vf = 16, 32
    S = [64, 80]
    O = [96, 112]
    NEG = 128
    T = 144
    XCH = 131072
    h(f"s_lshr_b32 s{sHead}, s2, 3")
    h(f"s_lshl_b32 s33, s{sHead}, 17")
    h(f"s_add_u32 s33, s33, {KVF}")
    h(f"s_lshr_b32 s40, s{sHead}, 1")
    h("s_lshl_b32 s40, s40, 8")
    h(f"s_add_u32 s40, s40, {FG1}")
    h(f"v_lshlrev_b32 v6, 2, v{vLane}")
    h("s_barrier")
    h("s_mov_b32 s59, 0x40000")
    h.label("L_poll_g1")
    h(f"buffer_load_dword v7, v6, {sr(sWS, 4)}, s40 offen sc1")
    h("s_sub_u32 s59, s59, 1")
    h.wait_all(lg=False)
    h(f"v_cmp_ne_u32 vcc, s{sTag}, v7")
    h("s_cmp_eq_u32 s59, 0")
    h("s_cbranch_scc1 L_poll_g1_x")
    h("s_cbranch_vccnz L_poll_g1")
    h.label("L_poll_g1_x")
    ctok = {}
    for c in range(1, 8):
        for half in range(2):
            for q in range(2):
                h(f"s_mov_b32 m0, {half * 65536 + c * 8192 + q * 4096}")
                if half == 0 and q == 0:
                    h(f"s_add_u32 s36, s2, {c}")
                    h("s_and_b32 s36, s36, 7")
                    h("s_lshl_b32 s36, s36, 14")
                    h("s_add_u32 s36, s36, s33")
                h(f"s_add_u32 s37, s36, {half * 8192 + q * 4096}")
                for i in range(4):
                    ctok[c] = h.vm(f"buffer_load_dwordx4 v{vL16}, {sr(sWS, 4)}, s37 offen offset:{i * 1024} sc1 lds")
        if c == 2:
            h.wait(vm=ctok[1])
            h("s_barrier")
        if c == 5:
            h.wait(vm=ctok[3])
            h("s_barrier")
        h("s_waitcnt vmcnt(40)")
    srd(h, 16, KWO, 512 * 1024)
    srd(h, 20, KG, 512 * 2752)
    srd(h, 48, KU, 512 * 2752)
    h(f"s_and_b32 s{sT0}, s2, 7")
    h(f"s_lshl_b32 s{sT1}, s{sT0}, 18")
    h(f"s_add_u32 s4, s{KX}, s{sT1}")
    h(f"s_addc_u32 s5, s{KX + 1}, 0")
    srd(h, 44, 4, 256 * 1024)
    h(f"s_mul_i32 s{sT0}, s{sT0}, {172 * 1024}")
    h(f"s_add_u32 s10, s{KD}, s{sT0}")
    h(f"s_addc_u32 s11, s{KD + 1}, 0")
    srd(h, 40, 10, 172 * 1024)
    h(f"s_lshr_b32 s{sT0}, s2, 3")
    h("v_lshlrev_b32 v3, 7, v1")
    h.wait_all()
    h("s_barrier")
    for sq, per, n in ((16, 16384, 2), (44, 8192, 1), (20, 49152, 6), (48, 49152, 6), (40, 8192, 1)):
        h(f"s_mul_i32 s{sT1}, s{sT0}, {per}")
        h(f"v_add_u32 v4, s{sT1}, v3")
        for i in range(n):
            h.vm(f"buffer_load_dword v5, v4, {sr(sq, 4)}, 0 offen")
            if i + 1 < n:
                h("v_add_u32 v4, 0x2000, v4")
    if OPT["touch_out"]:
        h("s_and_b32 s58, s2, 7")
        for base, gsz, per, n in ((HF, 262144, 8192, 1), (GF, 8 * 86 * 1024, 22016, 3)):
            h(f"s_mul_i32 s{sT1}, s{sT0}, {per}")
            h(f"s_mul_i32 s36, s58, {gsz}")
            h(f"s_add_u32 s36, s36, s{sT1}")
            h(f"s_add_u32 s36, s36, {base}")
            for i in range(n):
                h.vm(f"buffer_load_dword v5, v3, {sr(sWS, 4)}, s36 offen {['', '', 'nt', 'sc1'][OPT['touch_out']]}")
                if i + 1 < n:
                    h("s_add_u32 s36, s36, 0x2000")
    if OPT["touch2"]:
        h("v_lshrrev_b32 v4, 3, v1")
        h("v_lshlrev_b32 v4, 15, v4")
        h("v_and_b32 v6, 7, v1")
        h("v_lshl_add_u32 v4, v6, 7, v4")
        h("s_and_b32 s36, s2, 7")
        h("s_lshl_b32 s36, s36, 18")
        h(f"s_lshl_b32 s{sT1}, s{sHead}, 10")
        h(f"s_add_u32 s36, s36, s{sT1}")
        h(f"s_add_u32 s36, s36, {OF}")
        h.vm(f"buffer_load_dword v5, v4, {sr(sWS, 4)}, s36 offen")
        h("s_lshl_b32 s36, s2, 10")
        h(f"s_add_u32 s36, s36, {ST}")
        h("s_mov_b64 exec, 0xff")
        h.vm(f"buffer_load_dword v5, v3, {sr(sWS, 4)}, s36 offen")
        h("s_mov_b64 exec, -1")
        srd(h, 44, KO, 2048 * 1024)
        h("s_and_b32 s36, s2, 7")
        h("s_lshl_b32 s36, s36, 18")
        h(f"s_lshl_b32 s{sT1}, s{sT0}, 13")
        h(f"s_add_u32 s36, s36, s{sT1}")
        h.vm(f"buffer_load_dword v5, v3, s[44:47], s36 offen")
    h(f"s_lshl_b32 s{sT1}, s{sT0}, 11")
    h(f"v_add_u32 v4, s{sT1}, v3")
    h("s_mov_b64 exec, 0xffff")
    code_prefetch(h, "L_p2_tail", 38, 4, 5, "p2")
    h("s_endpgm")

    def init(b):
        b(f"s_lshr_b32 s{sHead}, s2, 3")
        b(f"s_and_b32 s{sQb}, s2, 7")
        b(f"s_lshr_b32 s{sKh}, s{sWave}, 2")
        b(f"s_and_b32 s{sQs}, s{sWave}, 3")
        b(f"v_and_b32 v{T}, 27, v{vLane}")
        b(f"v_cmp_eq_u32 vcc, 16, v{T}")
        b(f"v_mov_b32 v{T}, 0x3f803f80")
        b(f"v_mov_b32 v{vIdx}, 0xdddd")
        for r in range(32):
            b(f"v_cndmask_b32 v{Vf + r}, 0, v{T}, vcc")
        b(f"s_mov_b32 s{sVm}, 0x0000ffff")
        b(f"s_mov_b32 s{sVm + 1}, 0x0000ffff")
        b(f"s_lshl_b32 s{sT0}, s{sKh}, 16")
        b(f"v_add_u32 v{vKrd}, s{sT0}, v{vL16}")
        b(f"v_lshrrev_b32 v{T}, 5, v{vLane}")
        b(f"v_and_b32 v{T + 1}, 15, v{vLane}")
        b(f"v_lshlrev_b32 v{T + 1}, 4, v{T + 1}")
        b(f"v_lshl_add_u32 v{T}, v{T}, 8, v{T + 1}")
        b(f"v_add_u32 v{vVrd}, s{sT0}, v{T}")
        b(f"s_mul_i32 s{sT0}, s{sWave}, 3072")
        b(f"s_add_u32 s{sT0}, s{sT0}, {XCH}")
        b(f"v_add_u32 v{vXw}, s{sT0}, v{vL16}")
        b(f"s_xor_b32 s{sT1}, s{sWave}, 4")
        b(f"s_mul_i32 s{sT0}, s{sT1}, 3072")
        b(f"s_add_u32 s{sT0}, s{sT0}, {XCH}")
        b(f"v_add_u32 v{vXr}, s{sT0}, v{vL16}")
        b(f"s_lshl_b32 s{sT0}, s{sQs}, 1")
        b(f"s_add_u32 s{sT0}, s{sT0}, s{sKh}")
        b(f"s_lshl_b32 s{sT0}, s{sT0}, 10")
        b(f"s_add_u32 s{sT0}, s{sT0}, {XCH}")
        b(f"v_add_u32 v{T + 2}, s{sT0}, v{vL16}")
        b(f"v_xor_b32 v{T + 3}, 1024, v{T + 2}")
        for c in range(2):
            for r in range(16):
                b(f"v_mov_b32 v{O[c] + r}, 0")
        b(f"s_lshl_b32 s57, s{sQb}, 2")
        b(f"s_add_u32 s57, s57, s{sQs}")
        b(f"s_lshl_b32 s55, s57, 8")
        b(f"s_lshl_b32 s{sT1}, s{sHead}, 1")
        b(f"s_add_u32 s{sT1}, s{sT1}, s{sKh}")
        b(f"s_lshl_b32 s{sT1}, s{sT1}, 2")
        b(f"s_add_u32 s55, s55, s{sT1}")
        b(f"s_add_u32 s55, s55, {F2}")
        b(f"s_lshl_b32 s57, s57, 1")
        b(f"s_add_u32 s57, s57, s{sKh}")
        b(f"s_lshl_b32 s57, s57, 15")
        b(f"s_lshl_b32 s{sT1}, s{sHead}, 10")
        b(f"s_add_u32 s57, s57, s{sT1}")
        b(f"s_add_u32 s57, s57, {OF}")

    init(l)
    l(f"s_lshl_b32 s40, s{sQb}, 9")
    l(f"s_lshr_b32 s{sT0}, s{sHead}, 1")
    l(f"s_lshl_b32 s{sT0}, s{sT0}, 5")
    l(f"s_add_u32 s40, s40, s{sT0}")
    l(f"s_add_u32 s40, s40, {FL1}")
    l(f"s_lshl_b32 s36, s{sHead}, 17")
    l(f"s_lshl_b32 s{sT0}, s{sQb}, 14")
    l(f"s_add_u32 s36, s36, s{sT0}")
    l(f"s_lshl_b32 s{sT0}, s{sQs}, 12")
    l(f"s_add_u32 s36, s36, s{sT0}")
    l(f"s_lshr_b32 s37, s36, 1")
    l(f"s_add_u32 s36, s36, {KVL}")
    if QF:
        l(f"s_add_u32 s37, s37, {QF}")
    l(f"s_lshr_b32 s38, s{sQs}, 1")
    l("s_lshl_b32 s38, s38, 16")
    l(f"s_and_b32 s{sT0}, s{sQs}, 1")
    l(f"s_lshl_b32 s{sT0}, s{sT0}, 12")
    l(f"s_add_u32 s38, s38, s{sT0}")
    l(f"s_lshl_b32 s39, s{sQs}, 11")
    l(f"s_add_u32 s39, s39, {XCH}")
    l(f"v_lshlrev_b32 v{T + 4}, 2, v{vLane}")
    l("s_mov_b32 s59, 0x40000")
    l("s_mov_b64 exec, 0xff")
    l.label("L_poll_l1")
    l(f"buffer_load_dword v{T + 5}, v{T + 4}, {sr(sWS, 4)}, s40 offen sc1")
    l("s_sub_u32 s59, s59, 1")
    l.wait_all(lg=False)
    l(f"v_cmp_ne_u32 vcc, s{sTag}, v{T + 5}")
    l("s_cmp_eq_u32 s59, 0")
    l("s_cbranch_scc1 L_poll_l1_x")
    l("s_cbranch_vccnz L_poll_l1")
    l.label("L_poll_l1_x")
    l("s_mov_b64 exec, -1")
    l("s_mov_b32 m0, s39")
    l("s_nop 0")
    for i in range(2):
        l.vm(f"buffer_load_dwordx4 v{vL16}, {sr(sWS, 4)}, s37 offen offset:{i * 1024} sc1 lds")
    l("s_mov_b32 m0, s38")
    l("s_nop 0")
    for i in range(4):
        l.vm(f"buffer_load_dwordx4 v{vL16}, {sr(sWS, 4)}, s36 offen offset:{i * 1024} sc1 lds")
    l.wait_all()
    l("s_branch L_p2_b0")
    init(a)
    a(f"v_mov_b32 v{T + 4}, 0")
    a(f"v_mov_b32 v{T + 5}, s{sTag}")
    a.wait_all(lg=False)
    a("s_mov_b64 exec, 1")
    a.vm(f"buffer_store_dword v{T + 5}, v{T + 4}, {sr(sWS, 4)}, s49 offen sc1")
    a("s_mov_b64 exec, -1")
    a.label("L_p2_b0")

    def emit_pair(p):
        for t in (2 * p, 2 * p + 1):
            a.lg(f"ds_read_b128 {vr(Kf + 4 * (t & 3), 4)}, v{vKrd} offset:{t * 2048}")
        a(f"s_mov_b64 exec, {sr(sVm, 2)}")
        for t in (2 * p, 2 * p + 1):
            a.lg(f"ds_read_b128 {vr(Vf + 8 * (t & 3), 4)}, v{vVrd} offset:{t * 2048 + 1024}")
            tok = a.lg(f"ds_read_b128 {vr(Vf + 8 * (t & 3) + 4, 4)}, v{vVrd} offset:{t * 2048 + 1536}")
        a("s_mov_b64 exec, -1")
        return tok

    def qk(u):
        t, c = divmod(u, 2)
        return f"v_mfma_f32_32x32x16_bf16 {vr(S[u & 1], 16)}, {vr(Kf + 4 * (t & 3), 4)}, {vr(Qf[c], 4)}, 0"

    def pv(u, i):
        t, c = divmod(u, 2)
        return (f"v_smfmac_f32_32x32x32_bf16 {vr(O[c], 16)}, {vr(Vf + 8 * (t & 3) + 4 * i, 4)}, "
                f"{vr(S[u & 1] + 8 * i, 8)}, v{vIdx}")

    NU = 64
    BARS = [6, 12, 28]
    PRIO = {0: 1, 4: 0, 7: 1, 10: 0, 13: 1, 25: 0, 29: 2, NU - 6: 1, NU - 2: 0}
    a("s_barrier")
    stamp(a)
    a.lg(f"ds_read_b128 {vr(Qf[0], 4)}, v{T + 2}")
    a.lg(f"ds_read_b128 {vr(Qf[1], 4)}, v{T + 3}")
    ptok = {0: emit_pair(0)}
    a.wait(lg=ptok[0] - 5)
    a(qk(0))
    a.wait(lg=ptok[0])
    a("s_nop 9")
    for u in range(NU):
        X = S[u & 1]
        p, pu = divmod(u, 4)
        if u in PRIO:
            a(f"s_setprio {PRIO[u]}")
        ex = [f"v_exp_f32 v{X + i}, v{X + i}" for i in range(16)]
        a(ex[0]); a(ex[1])
        if u > 0:
            a(pv(u - 1, 1))
        a(ex[2]); a(ex[3]); a(ex[4])
        if u + 1 < NU:
            if pu == 3:
                a.wait(lg=ptok[p + 1])
            a(qk(u + 1))
        if (pu == 0 and p + 1 < 16 and u != 4) or u == 6:
            if u in BARS:
                a("s_barrier")
            ptok[p + 1] = emit_pair(p + 1)
        for i in range(5, 10):
            a(ex[i])
        a(pv(u, 0))
        for i in range(10, 16):
            a(ex[i])
    a.label("L_p2_tail")
    a("s_nop 1")
    a(pv(NU - 1, 1))
    a(f"s_mov_b32 s{sT0}, {hx(f2u(2.0 ** 80))}")
    a(f"s_mov_b32 s{sT1}, {hx(f2u(2.0 ** -80))}")
    a("s_mov_b32 s56, 0")
    a("s_nop 8")
    a.lg(f"ds_write_b128 v{vXw}, {vr(O[1], 4)}")
    a.lg(f"ds_write_b128 v{vXw}, {vr(O[1] + 4, 4)} offset:1024")
    a.lg(f"ds_write_b32 v{vXw}, v{O[1] + 8} offset:2048")
    a.wait_all(vm=False)
    a("s_barrier")
    t2 = a.lg(f"ds_read_b32 v{T + 8}, v{vXr} offset:2048")
    a.lg(f"ds_read_b128 {vr(T, 4)}, v{vXr}")
    t1 = a.lg(f"ds_read_b128 {vr(T + 4, 4)}, v{vXr} offset:1024")
    a.wait(lg=t2)
    a(f"v_add_f32 v{O[0] + 8}, v{O[0] + 8}, v{T + 8}")
    a.wait(lg=t1)
    for r in range(0, 8, 2):
        a(f"v_pk_add_f32 {vr(O[0] + r, 2)}, {vr(O[0] + r, 2)}, {vr(T + r, 2)}")
    a.label("L_p2_finish")
    a(f"v_rcp_f32 v{T + 8}, v{O[0] + 8}")
    a(f"v_cmp_gt_f32 s[40:41], s{sT0}, v{O[0] + 8}")
    a(f"v_cmp_lt_f32 s[42:43], s{sT1}, v{O[0] + 8}")
    for r in range(0, 8, 2):
        a(f"v_pk_mul_f32 {vr(O[0] + r, 2)}, {vr(O[0] + r, 2)}, {vr(T + 8, 2)} op_sel_hi:[1,0]")
    for i in range(4):
        a(f"v_cvt_pk_bf16_f32 v{T + 4 + i}, v{O[0] + 2 * i}, v{O[0] + 2 * i + 1}")
    a(f"v_dot2_f32_bf16 v{T}, v{T + 4}, v{T + 4}, 0")
    for i in range(1, 4):
        a(f"v_dot2_f32_bf16 v{T}, v{T + 4 + i}, v{T + 4 + i}, v{T}")
    a("s_and_b64 s[40:41], s[40:41], s[42:43]")
    a("s_cmp_lg_u32 s56, 0")
    a("s_cbranch_scc1 L_p2_store")
    a(f"v_cmp_gt_f32 vcc, s{sT0}, v{T}")
    a("s_nop 0")
    a("s_and_b64 s[40:41], s[40:41], vcc")
    a("s_cmp_eq_u64 s[40:41], -1")
    a("s_cbranch_scc0 L_p2_fallback")
    a.label("L_p2_store")
    stores(a, [f"buffer_store_dwordx4 {vr(T + 4, 4)}, v{vL16}, {sr(sWS, 4)}, s57 offen"])
    a("s_barrier")
    stamp(a)

    f = Asm()
    f.label("L_p2_fallback")
    vK2, vV2, vM = T + 10, T + 11, T + 12
    f(f"s_lshl_b32 s37, s{sKh}, 16")
    f(f"v_subrev_u32 v{vK2}, s37, v{vKrd}")
    f(f"v_mov_b32 v{vM}, 0xff800000")
    f("s_mov_b32 s56, 0")
    f.label("L_p2_fb_max")
    f(f"ds_read_b128 {vr(Kf, 4)}, v{vK2}")
    f("s_waitcnt lgkmcnt(0)")
    f(f"v_mfma_f32_32x32x16_bf16 {vr(S[0], 16)}, {vr(Kf, 4)}, {vr(Qf[0], 4)}, 0")
    f("s_nop 15")
    for i in range(8):
        f(f"v_max3_f32 v{vM}, v{vM}, v{S[0] + 2 * i}, v{S[0] + 2 * i + 1}")
    f(f"v_add_u32 v{vK2}, 2048, v{vK2}")
    f("s_add_u32 s56, s56, 1")
    f("s_cmp_lt_u32 s56, 64")
    f("s_cbranch_scc1 L_p2_fb_max")
    f(f"v_mov_b32 v{T}, v{vM}")
    f("s_nop 1")
    f(f"v_permlane32_swap_b32 v{vM}, v{T}")
    f("s_nop 1")
    f(f"v_max_f32 v{vM}, v{vM}, v{T}")
    for r in range(16):
        f(f"v_sub_f32 v{NEG + r}, 0, v{vM}")
        f(f"v_mov_b32 v{O[0] + r}, 0")
    f(f"v_subrev_u32 v{vK2}, s37, v{vKrd}")
    f(f"v_subrev_u32 v{vV2}, s37, v{vVrd}")
    f("s_mov_b32 s56, 0")
    f.label("L_p2_fb_pv")
    f(f"ds_read_b128 {vr(Kf, 4)}, v{vK2}")
    f(f"s_mov_b64 exec, {sr(sVm, 2)}")
    f(f"ds_read_b128 {vr(Vf, 4)}, v{vV2} offset:1024")
    f(f"ds_read_b128 {vr(Vf + 4, 4)}, v{vV2} offset:1536")
    f("s_mov_b64 exec, -1")
    f("s_waitcnt lgkmcnt(0)")
    f(f"v_mfma_f32_32x32x16_bf16 {vr(S[0], 16)}, {vr(Kf, 4)}, {vr(Qf[0], 4)}, {vr(NEG, 16)}")
    f("s_nop 15")
    for i in range(16):
        f(f"v_exp_f32 v{S[0] + i}, v{S[0] + i}")
    f("s_nop 1")
    f(f"v_smfmac_f32_32x32x32_bf16 {vr(O[0], 16)}, {vr(Vf, 4)}, {vr(S[0], 8)}, v{vIdx}")
    f(f"v_smfmac_f32_32x32x32_bf16 {vr(O[0], 16)}, {vr(Vf + 4, 4)}, {vr(S[0] + 8, 8)}, v{vIdx}")
    f("s_nop 15")
    f(f"v_add_u32 v{vK2}, 2048, v{vK2}")
    f(f"v_add_u32 v{vV2}, 2048, v{vV2}")
    f("s_add_u32 s56, s56, 1")
    f("s_cmp_lt_u32 s56, 64")
    f("s_cbranch_scc1 L_p2_fb_pv")
    f("s_branch L_p2_finish")
    return f


def phase_res(a, h, k3, pre_publish=None):
    uid = "p3" if k3 else "p5"
    KS = 32 if k3 else 86
    ACT = OF if k3 else GF
    NST = (KS + 3) // 4
    NW = 8 if k3 else OPT["p5_nw"]
    NA = 8 if k3 else 17 - NW
    AO = NW * 8192
    RESO = AO + NA * 8192
    TRO = RESO + 8192 + 6144
    sW, sIO = 16, 20
    sWr, sWc, sRb, sCb = 25, 26, 27, 28
    T = 12
    for b in (a, h):
        b(f"s_and_b32 s{sT0}, s2, 7")
        b(f"s_lshl_b32 s{sRb}, s{sT0}, 2")
        b(f"s_lshr_b32 s34, s2, 6")
        b(f"s_add_u32 s{sRb}, s{sRb}, s34")
        b(f"s_bfe_u32 s{sCb}, s2, 0x30003")
        b(f"s_and_b32 s{sWr}, s{sWave}, 1")
        b(f"s_bfe_u32 s{sWc}, s{sWave}, 0x10001")
    vWoff, vXg = 3, 5
    h(f"v_lshrrev_b32 v{T}, 3, v{vLane}")
    h(f"v_and_b32 v{T + 1}, 7, v{vLane}")
    h(f"v_lshrrev_b32 v{T + 2}, 2, v{vLane}")
    h(f"v_and_b32 v{T + 2}, 4, v{T + 2}")
    h(f"v_xor_b32 v{T + 2}, v{T + 2}, v{T + 1}")
    h(f"v_lshlrev_b32 v{T + 2}, 4, v{T + 2}")
    h(f"v_lshl_add_u32 v{T + 2}, v{T}, 10, v{T + 2}")
    h(f"s_lshl_b32 s{sT0}, s{sHw}, 14")
    h(f"s_lshl_b32 s{sT1}, s{sCb}, 7")
    h(f"s_add_u32 s{sT0}, s{sT0}, s{sT1}")
    h(f"v_add_u32 v{vWoff}, s{sT0}, v{T + 2}")
    h(f"v_add_u32 v{vWoff + 1}, {8192 - 1024}, v{vWoff}")
    h(f"s_lshl_b32 s32, s{sHw}, 11")
    h(f"s_lshl_b32 s33, s{sRb}, 1")
    h(f"s_add_u32 s33, s33, s{sWr}")
    h(f"s_mul_i32 s34, s33, {KS * 1024}")
    h(f"s_lshl_b32 s{sT1}, s{sWc}, 11")
    h(f"s_add_u32 s34, s34, s{sT1}")
    h(f"s_add_u32 s34, s34, {ACT}")
    h(f"s_lshl_b32 s35, s{sWr}, 12")
    h(f"s_add_u32 s35, s35, s{sT1}")
    if k3:
        h(f"v_lshrrev_b32 v{T + 2}, 1, v{T}")
        h(f"v_xor_b32 v{T + 2}, v{T + 2}, v{T + 1}")
        h(f"v_lshlrev_b32 v{T + 2}, 4, v{T + 2}")
        h(f"v_lshl_add_u32 v{vXg}, v{T}, 10, v{T + 2}")
        h(f"v_xor_b32 v{vXg + 1}, 64, v{vXg}")
        h(f"v_add_u32 v{vXg + 1}, {8192 - 1024}, v{vXg + 1}")
        h(f"s_lshl_b32 s36, s{sRb}, 16")
        h(f"s_add_u32 s36, s36, s{sT0}")
        srd(h, sIO, KX, 2048 * 1024)
    else:
        h(f"s_lshl_b32 s36, s33, 15")
        h(f"s_lshl_b32 s{sT0}, s{sCb}, 12")
        h(f"s_add_u32 s36, s36, s{sT0}")
        h(f"s_add_u32 s36, s36, s{sT1}")
        h(f"s_add_u32 s36, s36, {HF}")
    srd(h, sW, KWO if k3 else KD, KS * 16 * 1024)
    if pre_publish is not None:
        publish(h, pre_publish, T + 4)
    dr = Drip(h)

    def issue_w(st):
        dr.add(st, [f"s_add_u32 m0, s32, {(st % NW) * 8192}", f"s_mov_b32 s42, {st * 65536}"],
               f"buffer_load_dwordx4 v{vWoff}, {sr(sW, 4)}, s42 offen lds")
        dr.add(st, [], f"buffer_load_dwordx4 v{vWoff + 1}, {sr(sW, 4)}, s42 offen offset:1024 lds")

    def issue_a(st):
        dr.add(st, [f"s_add_u32 m0, s35, {AO + (st % NA) * 8192}", f"s_add_u32 s43, s34, {st * 4096}"],
               f"buffer_load_dwordx4 v{vL16}, {sr(sWS, 4)}, s43 offen {LD()} lds")
        dr.add(st, [], f"buffer_load_dwordx4 v{vL16}, {sr(sWS, 4)}, s43 offen offset:1024 {LD()} lds")

    for st in range(min(NW, NST)):
        issue_w(st)
    if k3:
        dr.add(0, [f"s_add_u32 m0, s32, {RESO}", "s_nop 0"], f"buffer_load_dwordx4 v{vXg}, {sr(sIO, 4)}, s36 offen lds")
        dr.add(0, [], f"buffer_load_dwordx4 v{vXg + 1}, {sr(sIO, 4)}, s36 offen offset:1024 lds")
    dr.emit(100)
    stamp(h)
    h("s_barrier")
    stamp(h)
    AHEAD = OPT["p3_a"] if k3 else OPT["p5_a"]
    assert AHEAD < NA
    nxt_a = 0
    for st in range(NST):
        while nxt_a <= min(st + AHEAD, NST - 1):
            if nxt_a >= NA and nxt_a - NA > st - 2:
                break
            issue_a(nxt_a)
            if not k3 and nxt_a == 1:
                dr.add(1, [f"s_add_u32 m0, s35, {RESO}", "s_nop 0"], f"buffer_load_dwordx4 v{vL16}, {sr(sWS, 4)}, s36 offen {LD()} lds")
                dr.add(1, [], f"buffer_load_dwordx4 v{vL16}, {sr(sWS, 4)}, s36 offen offset:1024 {LD()} lds")
            nxt_a += 1
        dr.emit(100)
        h.wait(vm=dr.tok[st])
        h("s_barrier")
        if st >= 1 and st - 1 + NW < NST:
            issue_w(st - 1 + NW)
    if k3:
        h("s_barrier")
    RST = 0 if k3 else 1
    vWrd, vAr, vRr, vTw, vTr, vOut = [3, 4], [5], [7, 8], 9, 10, 11
    ID = 24
    FR = [32, 72]
    acc = 112
    a(f"v_and_b32 v{T}, 31, v{vLane}")
    a(f"v_lshrrev_b32 v{T + 1}, 5, v{vLane}")
    a(f"v_bfe_u32 v{T + 2}, v{vLane}, 2, 2")
    a(f"v_lshl_add_u32 v{T + 3}, v{T + 1}, 2, v{T + 2}")
    a(f"v_lshlrev_b32 v{T + 3}, 7, v{T + 3}")
    a(f"v_bfe_u32 v{T + 4}, v{vLane}, 4, 1")
    a(f"v_lshl_add_u32 v{T + 3}, v{T + 4}, 5, v{T + 3}")
    a(f"v_and_b32 v{T + 4}, 3, v{vLane}")
    a(f"v_lshl_add_u32 v{T + 3}, v{T + 4}, 3, v{T + 3}")
    a(f"v_lshrrev_b32 v{T + 2}, 1, v{T + 2}")
    a(f"v_xor_b32 v{T + 2}, s{sWc}, v{T + 2}")
    a(f"v_lshl_add_u32 v{vWrd[0]}, v{T + 2}, 6, v{T + 3}")
    wl = LdsAddr(a, vWrd)
    wl.setup(a)
    a(f"s_lshl_b32 s{sT0}, s{sWr}, 12")
    a(f"s_add_u32 s{sT1}, s{sT0}, {AO}")
    a(f"v_add_u32 v{vAr[0]}, s{sT1}, v{vL16}")
    if k3:
        a(f"v_bfe_u32 v{T + 2}, v{vLane}, 1, 3")
        a(f"v_xor_b32 v{T + 2}, v{T + 2}, v{T + 1}")
        a(f"s_lshl_b32 s{sT1}, s{sWc}, 2")
        a(f"v_xor_b32 v{T + 2}, s{sT1}, v{T + 2}")
        a(f"v_lshlrev_b32 v{T + 2}, 4, v{T + 2}")
        a(f"v_lshl_add_u32 v{T + 2}, v{T}, 7, v{T + 2}")
        a(f"s_add_u32 s{sT0}, s{sT0}, {RESO}")
        a(f"v_add_u32 v{vRr[0]}, s{sT0}, v{T + 2}")
        a(f"v_xor_b32 v{vRr[1]}, 32, v{vRr[0]}")
    else:
        a(f"s_lshl_b32 s{sT1}, s{sWc}, 11")
        a(f"s_add_u32 s{sT0}, s{sT0}, s{sT1}")
        a(f"s_add_u32 s{sT0}, s{sT0}, {RESO}")
        a(f"v_add_u32 v{vRr[0]}, s{sT0}, v{vL16}")
        a(f"v_add_u32 v{vRr[1]}, 1024, v{vRr[0]}")
    if pre_publish is not None:
        publish(a, pre_publish, T + 6)
    a(f"v_mov_b32 v{T + 5}, 0x3f80")
    for e in range(2):
        if k3:
            a(f"v_lshlrev_b32 v{T + 2}, 3, v{T + 1}")
            a(f"v_sub_u32 v{T + 2}, v{T}, v{T + 2}")
            a(f"v_subrev_u32 v{T + 2}, {16 * e}, v{T + 2}")
        else:
            a(f"v_bfe_u32 v{T + 2}, v{vLane}, 3, 1")
            a(f"v_and_b32 v{T + 3}, 3, v{vLane}")
            a(f"v_lshl_add_u32 v{T + 2}, v{T + 2}, 2, v{T + 3}")
            a(f"v_bfe_u32 v{T + 3}, v{vLane}, 2, 1")
            a(f"v_xor_b32 v{T + 3}, v{T + 3}, v{T + 1}")
            a(f"v_bfe_u32 v{T + 4}, v{vLane}, 4, 1")
            a(f"v_xor_b32 v{T + 4}, {e}, v{T + 4}")
            a(f"v_or_b32 v{T + 3}, v{T + 3}, v{T + 4}")
            a(f"v_lshl_add_u32 v{T + 2}, v{T + 3}, 4, v{T + 2}")
        a(f"v_and_b32 v{T + 3}, 1, v{T + 2}")
        a(f"v_lshlrev_b32 v{T + 3}, 4, v{T + 3}")
        a(f"v_lshlrev_b32 v{T + 3}, v{T + 3}, v{T + 5}")
        a(f"v_lshrrev_b32 v{T + 2}, 1, v{T + 2}")
        for r in range(4):
            a(f"v_cmp_eq_u32 vcc, {r}, v{T + 2}")
            a("s_nop 1")
            a(f"v_cndmask_b32 v{ID + 4 * e + r}, 0, v{T + 3}, vcc")
    a(f"s_lshl_b32 s33, s{sRb}, 1")
    a(f"s_add_u32 s33, s33, s{sWr}")
    a(f"s_lshl_b32 s34, s{sCb}, 1")
    a(f"s_add_u32 s34, s34, s{sWc}")
    if k3:
        a(f"s_lshl_b32 s36, s33, 15")
        a(f"s_lshl_b32 s37, s34, 11")
        a(f"s_add_u32 s36, s36, s37")
        a(f"s_add_u32 s36, s36, {HF}")
        a(f"s_lshl_b32 s37, s34, 14")
        a(f"s_lshl_b32 s{sT1}, s33, 8")
        a(f"s_add_u32 s37, s37, s{sT1}")
        a(f"s_add_u32 s37, s37, {ST}")
        a("s_mov_b32 s41, 0x3f803f80")
        a(f"v_lshlrev_b32 v{vOut}, 3, v{vLane}")
        a(f"s_lshl_b32 s55, s{sRb}, 7")
        a(f"s_lshl_b32 s{sT1}, s{sCb}, 4")
        a(f"s_add_u32 s55, s55, s{sT1}")
        a(f"s_lshl_b32 s{sT1}, s{sWave}, 2")
        a(f"s_add_u32 s55, s55, s{sT1}")
        a(f"s_add_u32 s55, s55, {F3}")
    else:
        a(f"s_mul_i32 s{sT0}, s{sHw}, 2560")
        a(f"s_add_u32 s{sT0}, s{sT0}, {TRO}")
        a(f"v_mul_u32_u24 v{T + 2}, 80, v{T}")
        a(f"v_lshl_add_u32 v{T + 2}, v{T + 1}, 3, v{T + 2}")
        a(f"v_add_u32 v{vTw}, s{sT0}, v{T + 2}")
        a(f"v_lshrrev_b32 v{T + 2}, 2, v{vLane}")
        a(f"v_and_b32 v{T + 3}, 3, v{vLane}")
        a(f"v_lshlrev_b32 v{T + 3}, 4, v{T + 3}")
        a(f"v_mad_u32_u24 v{T + 4}, v{T + 2}, 64, v{T + 3}")
        a(f"v_lshl_add_u32 v{T + 4}, v{T + 2}, 4, v{T + 4}")
        a(f"v_add_u32 v{vTr}, s{sT0}, v{T + 4}")
        a(f"v_lshl_add_u32 v{vOut}, v{T + 2}, 10, v{T + 3}")
        a(f"s_lshl_b32 s36, s33, 15")
        a(f"s_lshl_b32 s37, s34, 6")
        a(f"s_add_u32 s36, s36, s37")
        a(f"s_add_u32 s37, s36, 16384")
        srd(a, sIO, KO, 2048 * 1024)
    a(f"s_lshl_b32 s40, s{sRb}, 8")
    a(f"s_add_u32 s40, s40, {F2 if k3 else F4}")
    poll(a, 40, T + 6, uid, 64 if k3 else 30)
    first = True
    for st in range(NST):
        a("s_barrier")
        if st == 0:
            stamp(a)
        F = FR[st & 1]
        n = min(4, KS - 4 * st)
        tk = []
        for k in range(n):
            a.lg(f"ds_read_b128 {vr(F + 8 * k, 4)}, v{vAr[0]} offset:{(st % NA) * 8192 + k * 1024}")
            for half in range(2):
                reg, off = wl.at((st % NW) * 8192 + k * 2048 + half * 1024)
                t = a.lg(f"ds_read_b64_tr_b16 {vr(F + 8 * k + 4 + 2 * half, 2)}, {reg} offset:{off}")
            tk.append(t)
        if st == RST:
            for e in range(2):
                tk.append(a.lg(f"ds_read_b128 {vr(F + 32 + 4 * e, 4)}, v{vRr[e]}"))
        for k in range(n):
            a.wait(lg=tk[k])
            a(f"v_mfma_f32_32x32x16_bf16 {vr(acc, 16)}, {vr(F + 8 * k + 4, 4)}, {vr(F + 8 * k, 4)}, {'0' if first else vr(acc, 16)}")
            first = False
        if st == RST:
            for e in range(2):
                a.wait(lg=tk[n + e])
                a(f"v_mfma_f32_32x32x16_bf16 {vr(acc, 16)}, {vr(ID + 4 * e, 4)}, {vr(F + 32 + 4 * e, 4)}, {vr(acc, 16)}")
    stamp(a)
    a("s_nop 11")
    P = 32
    for i in range(8):
        a(f"v_cvt_pk_bf16_f32 v{P + i}, v{acc + 2 * i}, v{acc + 2 * i + 1}")
    if k3:
        stores(a, [f"buffer_store_dwordx4 {vr(P, 4)}, v{vL16}, {sr(sWS, 4)}, s36 offen",
                   f"buffer_store_dwordx4 {vr(P + 4, 4)}, v{vL16}, {sr(sWS, 4)}, s36 offen offset:1024"])
        a(f"v_dot2_f32_bf16 v{T}, v{P}, s41, 0")
        a(f"v_dot2_f32_bf16 v{T + 1}, v{P}, v{P}, 0")
        for i in range(1, 8):
            a(f"v_dot2_f32_bf16 v{T}, v{P + i}, s41, v{T}")
            a(f"v_dot2_f32_bf16 v{T + 1}, v{P + i}, v{P + i}, v{T + 1}")
        a("s_nop 2")
        a(f"v_mov_b32 v{T + 2}, v{T}")
        a(f"v_mov_b32 v{T + 3}, v{T + 1}")
        a("s_nop 0")
        a(f"v_permlane32_swap_b32 v{T}, v{T + 2}")
        a(f"v_permlane32_swap_b32 v{T + 1}, v{T + 3}")
        a("s_nop 0")
        a(f"v_add_f32 v{T}, v{T}, v{T + 2}")
        a(f"v_add_f32 v{T + 1}, v{T + 1}, v{T + 3}")
        a("s_mov_b32 exec_hi, 0")
        stores(a, [f"buffer_store_dwordx2 {vr(T, 2)}, v{vOut}, {sr(sWS, 4)}, s37 offen"])
        a("s_mov_b64 exec, -1")
        a("s_barrier")
        publish(a, 55, T + 4)
    else:
        for g in range(4):
            a.lg(f"ds_write_b64 v{vTw}, {vr(P + 2 * g, 2)} offset:{g * 16}")
        a.wait_all(vm=False)
        t0 = a.lg(f"ds_read_b128 {vr(P + 8, 4)}, v{vTr}")
        t1 = a.lg(f"ds_read_b128 {vr(P + 12, 4)}, v{vTr} offset:{16 * 80}")
        a.wait(lg=t0)
        a.vm(f"buffer_store_dwordx4 {vr(P + 8, 4)}, v{vOut}, {sr(sIO, 4)}, s36 offen")
        a.wait(lg=t1)
        a.vm(f"buffer_store_dwordx4 {vr(P + 12, 4)}, v{vOut}, {sr(sIO, 4)}, s37 offen")
    stamp(a)


def phase4(a, h):
    sG = 16
    sRb, sCg = 25, 26
    sWL, sAct = 32, 33
    NW, NX, NST = 9, 5, 16
    XO = NW * 12288
    CSO = XO + NX * 8192
    XEO = CSO + 2048
    for b in (a, h):
        b(f"s_and_b32 s{sT0}, s2, 7")
        b(f"s_lshl_b32 s{sT0}, s{sT0}, 1")
        b(f"s_bfe_u32 s{sT1}, s2, 0x10003")
        b(f"s_add_u32 s{sRb}, s{sT0}, s{sT1}")
        b(f"s_lshr_b32 s{sCg}, s2, 4")
    a("s_cmp_ge_u32 s2, 240")
    a("s_cbranch_scc1 L_p4_skip_c")
    h("s_cmp_ge_u32 s2, 240")
    h("s_cbranch_scc1 L_p4_skip_l")
    vWoff = [3, 4, 5]
    vT = 16
    h(f"s_lshl_b32 s{sAct}, s{sRb}, 2")
    h(f"s_add_u32 s{sAct}, s{sAct}, s{sHw}")
    h(f"s_lshl_b32 s38, s{sAct}, 8")
    h(f"s_add_u32 s38, s38, {ST}")
    h(f"s_lshl_b32 s{sAct}, s{sAct}, 15")
    h(f"s_add_u32 s{sAct}, s{sAct}, {HF}")
    h(f"s_lshr_b32 s34, s{sHw}, 1")
    h(f"s_and_b32 s35, s{sHw}, 1")
    h(f"s_mul_i32 s{sT0}, s34, {16 * 2752}")
    h(f"s_mul_i32 s{sT1}, s{sCg}, 192")
    h(f"s_add_u32 s{sT0}, s{sT0}, s{sT1}")
    h(f"v_and_b32 v{vT + 3}, 2, v{vLane}")
    h(f"v_lshlrev_b32 v{vT + 3}, 5, v{vT + 3}")
    h(f"v_sub_u32 v{vT + 3}, 32, v{vT + 3}")
    h(f"v_mul_lo_u32 v{vT + 3}, v{vT + 3}, s35")
    h(f"v_add_u32 v{vT + 3}, s{sT0}, v{vT + 3}")
    for i in range(3):
        h(f"v_add_u32 v{vT}, {64 * i}, v{vLane}")
        h(f"v_mul_u32_u24 v{vT + 1}, 171, v{vT}")
        h(f"v_lshrrev_b32 v{vT + 1}, 11, v{vT + 1}")
        h(f"v_mul_u32_u24 v{vT + 2}, {2752 - 192}, v{vT + 1}")
        h(f"v_add3_u32 v{vWoff[i]}, v{vL16}, v{vT + 2}, v{vT + 3}")
    h(f"s_mul_i32 s{sWL}, s{sHw}, 3072")
    h(f"s_lshl_b32 s36, s{sHw}, 11")
    h(f"s_add_u32 s36, s36, {XO}")
    h("s_cmp_eq_u32 s35, 0")
    h(f"s_cselect_b32 s{sG}, s{KG}, s{KU}")
    h(f"s_cselect_b32 s{sG + 1}, s{KG + 1}, s{KU + 1}")
    h(f"s_mov_b32 s{sG + 2}, {hx(512 * 2752)}")
    h(f"s_mov_b32 s{sG + 3}, 0x00020000")
    dr = Drip(h)

    def issue_w(key):
        st = key[1] if isinstance(key, tuple) else key
        for i in range(3):
            pre = [f"s_add_u32 m0, s{sWL}, {(st % NW) * 12288}", f"s_mov_b32 s42, {st * 32 * 2752}"] if i == 0 else []
            dr.add(key, pre, f"buffer_load_dwordx4 v{vWoff[i]}, {sr(sG, 4)}, s42 offen offset:{i * 1024} lds")

    def issue_x(st):
        for i in range(2):
            pre = [f"s_add_u32 m0, s36, {(st % NX) * 8192}", f"s_add_u32 s43, s{sAct}, {st * 2048}"] if i == 0 else []
            dr.add(st, pre, f"buffer_load_dwordx4 v{vL16}, {sr(sWS, 4)}, s43 offen offset:{i * 1024} {LD()} lds")

    PRE = OPT["p4_pre"]
    for st in range(PRE):
        issue_w(st)
    dr.emit(100)
    nxt_w = PRE
    vPf, vPd = 13, 100
    srd(h, 44, KD, 1376 * 1024)
    h(f"s_lshr_b32 s{sT0}, s2, 3")
    h(f"s_lshl_b32 s{sT0}, s{sT0}, 2")
    h(f"s_add_u32 s{sT0}, s{sT0}, s{sHw}")
    h(f"s_lshl_b32 s{sT0}, s{sT0}, 13")
    h(f"v_lshlrev_b32 v{vPf}, 7, v{vLane}")
    h(f"v_add_u32 v{vPf}, s{sT0}, v{vPf}")
    h(f"v_add_u32 v15, {120 * 8192}, v{vPf}")
    h(f"v_lshrrev_b32 v{vT + 3}, 5, v{vLane}")
    h(f"v_and_b32 v{vT + 4}, 31, v{vLane}")
    h(f"v_lshlrev_b32 v{vT + 4}, 3, v{vT + 4}")
    h(f"v_lshl_add_u32 v{vT + 4}, v{vT + 3}, 17, v{vT + 4}")
    h(f"s_lshl_b32 s{sT0}, s{sHw}, 11")
    h(f"s_add_u32 s{sT0}, s{sT0}, {XEO}")
    h(f"v_add_u32 v{vT + 5}, s{sT0}, v{vL16}")
    h(f"v_lshl_add_u32 v{vT + 6}, v{vLane}, 3, s{sT0}")
    stamp(h)
    h("s_barrier")
    stamp(h)
    SP = 32
    vS, vQ, vM, vA = 60, 61, 62, 64
    AHEAD = OPT["p4_a"]
    assert AHEAD < NX
    nxt_x = 0
    for st in range(NST):
        while nxt_x <= min(st + AHEAD, NST - 1):
            if nxt_x >= NX and nxt_x - NX > st - 2:
                break
            issue_x(nxt_x)
            nxt_x += 1
        dr.emit(100)
        wtok = dict(dr.tok)
        for _ in range(OPT["p4_wr"]):
            if nxt_w < NST and (nxt_w < NW or nxt_w - NW <= st - 2):
                assert nxt_w >= nxt_x or True
                issue_w(("w", nxt_w))
                nxt_w += 1
        dr.emit(100)
        if 2 <= st <= 5:
            for i in (2 * (st - 2), 2 * (st - 2) + 1):
                h(f"s_add_u32 s{sT0}, s38, {i * 16384}")
                dr.tok["st"] = h.vm(f"buffer_load_dwordx2 {vr(SP + 2 * i, 2)}, v{vT + 4}, {sr(sWS, 4)}, s{sT0} offen {LD()}")
        h.wait(vm=max(dr.tok[st], dr.tok.get(("w", st), -1)))
        assert st < PRE or ("w", st) in dr.tok
        if st == 9:
            h.wait(vm=dr.tok["st"])
            h(f"v_add_f32 v{vS}, v{SP}, v{SP + 2}")
            h(f"v_add_f32 v{vQ}, v{SP + 1}, v{SP + 3}")
            for i in range(2, 8):
                h(f"v_add_f32 v{vS}, v{vS}, v{SP + 2 * i}")
                h(f"v_add_f32 v{vQ}, v{vQ}, v{SP + 2 * i + 1}")
        if st == 10:
            half_sum(h, vS, vT)
            half_sum(h, vQ, vT)
            h(f"v_mul_f32 v{vM}, {hx(f2u(-1.0 / 512))}, v{vS}")
            h(f"v_mul_f32 v{vQ}, {hx(f2u(1.0 / 512))}, v{vQ}")
            h(f"v_fma_f32 v{vQ}, -v{vM}, v{vM}, v{vQ}")
            h(f"v_max_f32 v{vQ}, 0, v{vQ}")
            h(f"v_add_f32 v{vQ}, {hx(f2u(1e-5))}, v{vQ}")
        if st == 11:
            h(f"v_rsq_f32 v{vA}, v{vQ}")
            split_hi_lo(h, vM, 68, vT, vT + 1)
            h(f"v_mul_f32 v{vA + 1}, v{vQ}, v{vA}")
            h(f"v_mul_f32 v{vA}, {hx(f2u(-LOG2E))}, v{vA}")
            h(f"v_cvt_pk_bf16_f32 v69, v{vT}, 0")
            h("v_mov_b32 v70, 0")
            h("v_mov_b32 v71, 0")
            h.lg(f"ds_write_b128 v{vT + 5}, v[68:71]")
            h.lg(f"ds_write_b64 v{vT + 6}, {vr(vA, 2)} offset:1024")
        if st == 12:
            h.wait_all(vm=False)
        h("s_barrier")
        if st == OPT["p4_pf"]:
            h.vm(f"buffer_load_dword v{vPd}, v{vPf}, s[44:47], 0 offen")
        if st == OPT["p4_pf"] + 2:
            h.vm(f"buffer_load_dword v{vPd}, v15, s[44:47], 0 offen")
    h("s_barrier")
    h.label("L_p4_skip_l")

    sWr2, sWc = 36, 37
    vWrd, vWrdO, vXa, vCw, vCr, vEr = [3, 4], [5, 6], 7, 8, 9, 10
    ONES, vT, CS, ACC = 12, 16, 20, 32
    XF, WF = [128, 136], [144, 156]
    XE, AS = XF[0], ONES
    t = CS
    a(f"s_lshr_b32 s{sWr2}, s{sHw}, 1")
    a(f"s_and_b32 s{sWc}, s{sHw}, 1")
    a(f"s_lshl_b32 s34, s{sRb}, 1")
    a(f"s_add_u32 s34, s34, s{sWr2}")
    a(f"v_lshrrev_b32 v{t + 3}, 5, v{vLane}")
    a(f"v_bfe_u32 v{t}, v{vLane}, 2, 2")
    a(f"v_lshl_add_u32 v{t}, v{t + 3}, 2, v{t}")
    a(f"v_mul_u32_u24 v{t}, 192, v{t}")
    a(f"v_and_b32 v{t + 1}, 3, v{vLane}")
    a(f"v_lshl_add_u32 v{t}, v{t + 1}, 3, v{t}")
    a(f"s_mul_i32 s{sT0}, s{sWc}, 96")
    a(f"v_add_u32 v{t}, s{sT0}, v{t}")
    a(f"v_bfe_u32 v{t + 1}, v{vLane}, 4, 1")
    a(f"s_lshl_b32 s{sT0}, s{sWc}, 6")
    a(f"s_sub_u32 s{sT1}, {3072 + 32}, s{sT0}")
    a(f"s_add_u32 s{sT0}, {3072 - 32}, s{sT0}")
    a(f"v_mad_u32_u24 v{vWrd[0]}, v{t + 1}, s{sT1}, v{t}")
    a(f"v_mad_u32_u24 v{vWrdO[0]}, v{t + 1}, s{sT0}, v{t}")
    wl = [LdsAddr(a, vWrd), LdsAddr(a, vWrdO)]
    wl[0].setup(a)
    wl[1].setup(a)
    a(f"s_lshl_b32 s{sT0}, s{sWr2}, 12")
    a(f"s_add_u32 s{sT0}, s{sT0}, {XO}")
    a(f"v_add_u32 v{vXa}, s{sT0}, v{vL16}")
    a(f"v_xor_b32 v{t}, v{t + 1}, v{vLane}")
    a(f"v_and_b32 v{t}, 1, v{t}")
    a(f"v_cmp_eq_u32 vcc, 0, v{t}")
    a(f"v_mov_b32 v{t}, 0x3f803f80")
    a("s_nop 0")
    for r in range(4):
        a(f"v_cndmask_b32 v{ONES + r}, 0, v{t}, vcc")
    a(f"s_lshl_b32 s{sT0}, s{sWc}, 1")
    a(f"s_add_u32 s{sT1}, s{sT0}, s{sWr2}")
    a(f"s_mul_i32 s{sT1}, s{sT1}, 384")
    a(f"s_add_u32 s{sT1}, s{sT1}, {CSO}")
    a(f"v_and_b32 v{t}, 1, v{vLane}")
    a(f"v_lshlrev_b32 v{t}, 6, v{t}")
    a(f"v_and_b32 v{t + 1}, 48, v{vLane}")
    a(f"v_add3_u32 v{vCw}, v{t}, v{t + 1}, s{sT1}")
    a(f"s_mul_i32 s{sT0}, s{sT0}, 384")
    a(f"s_add_u32 s{sT0}, s{sT0}, {CSO}")
    a(f"v_mul_u32_u24 v{t}, 384, v{t + 3}")
    a(f"v_and_b32 v{t + 1}, 31, v{vLane}")
    a(f"v_lshl_add_u32 v{t}, v{t + 1}, 2, v{t}")
    a(f"v_add_u32 v{vCr}, s{sT0}, v{t}")
    a(f"s_lshl_b32 s55, s34, 8")
    a(f"s_lshl_b32 s35, s{sCg}, 1")
    a(f"s_add_u32 s35, s35, s{sWc}")
    a(f"s_lshl_b32 s{sT0}, s35, 2")
    a(f"s_add_u32 s55, s55, s{sT0}")
    a(f"s_add_u32 s55, s55, {F4}")
    a(f"s_mul_i32 s34, s34, {2 * 86 * 1024}")
    a(f"s_mul_i32 s38, s35, 3")
    a(f"s_lshl_b32 s35, s38, 10")
    a("s_add_u32 s34, s34, s35")
    a(f"s_add_u32 s34, s34, {GF}")
    a(f"s_add_u32 s35, s34, {86 * 1024}")
    a(f"s_lshl_b32 s{sT0}, s{sWr2}, 12")
    a(f"s_add_u32 s{sT0}, s{sT0}, {XEO}")
    a(f"v_add_u32 v{vEr}, s{sT0}, v{vL16}")
    a(f"v_lshl_add_u32 v{vEr + 1}, v{vLane}, 3, s{sT0}")
    for r in range(12):
        a(f"v_mov_b32 v{CS + r}, 0")

    def reads(s):
        st, ss = divmod(s, 2)
        W = []
        for j in range(3):
            for half in range(2):
                reg, off = wl[j & 1].at((st % NW) * 12288 + ss * 6144 + half * 8 * 192 + j * 32)
                W.append(f"ds_read_b64_tr_b16 {vr(WF[s & 1] + 4 * j + 2 * half, 2)}, {reg} offset:{off}")
        X = [f"ds_read_b128 {vr(XF[s & 1] + 4 * i, 4)}, v{vXa} offset:{(st % NX) * 8192 + i * 2048 + ss * 1024}"
             for i in range(2)]
        return [X[0], W[0], W[1], X[1], W[2], W[3], W[4], W[5]]

    rt = {}

    def emit_reads(b, s, lo, hi):
        ops = reads(s)
        for k in range(lo, min(hi, 8)):
            rt[(s, k)] = b.lg(ops[k])

    def main(b, s, m):
        j, i = divmod(m, 2)
        d = ACC + 16 * m
        c = "0" if s == 0 else vr(d, 16)
        b(f"v_mfma_f32_32x32x16_bf16 {vr(d, 16)}, {vr(WF[s & 1] + 4 * j, 4)}, {vr(XF[s & 1] + 4 * i, 4)}, {c}")

    def csum(b, s, j):
        b(f"v_mfma_f32_16x16x32_bf16 {vr(CS + 4 * j, 4)}, {vr(WF[s & 1] + 4 * j, 4)}, {vr(ONES, 4)}, {vr(CS + 4 * j, 4)}")

    a(f"s_lshl_b32 s40, s{sRb}, 8")
    a(f"s_add_u32 s40, s40, {F3}")
    poll(a, 40, vT, "p4")
    a("s_barrier")
    stamp(a)
    emit_reads(a, 0, 0, 8)
    a(f"s_cmp_eq_u32 s{sWr2}, 1")
    a("s_cbranch_scc1 L_p4_odd")
    cuts = [0, 2, 4, 6, 8, 8, 8]
    need = [3, 3, 5, 5, 7, 7]
    rt0 = dict(rt)
    odd = fork(a)
    odd.label("L_p4_odd")
    for par, b in ((0, a), (1, odd)):
        rt.clear()
        rt.update(rt0)
        for s in range(31):
            if s % 2 == 1:
                b.wait(lg=rt[(s, 7)])
                b("s_barrier")
            for m in range(6):
                b.wait(lg=rt[(s, need[m])])
                if m % 2 == 0 and s % 2 == par:
                    csum(b, s, m // 2)
                main(b, s, m)
                emit_reads(b, s + 1, cuts[m], cuts[m + 1])
        b.wait_all(vm=False)
        if par == 1:
            for j in range(3):
                csum(b, 31, j)
    odd("s_branch L_p4_join")
    a.label("L_p4_join")
    main(a, 31, 0)
    for j in range(3):
        a(f"v_mov_b32 v{WF[0] + 4 * j + 2}, 0")
        a(f"v_mov_b32 v{WF[0] + 4 * j + 3}, 0")
    main(a, 31, 1)
    a("s_mov_b32 exec_lo, 0x00030003")
    a("s_mov_b32 exec_hi, 0x00030003")
    for j in range(3):
        a.lg(f"ds_write_b128 v{vCw}, {vr(CS + 4 * j, 4)} offset:{j * 128}")
    a("s_mov_b64 exec, -1")
    for i in range(2):
        a.lg(f"ds_read_b128 {vr(XE + 4 * i, 4)}, v{vEr} offset:{i * 2048}")
        a.lg(f"ds_read_b64 {vr(AS + 2 * i, 2)}, v{vEr + 1} offset:{i * 2048 + 1024}")
    main(a, 31, 2)
    main(a, 31, 3)
    a.wait_all(vm=False)
    a("s_barrier")
    for j in range(3):
        rt[("c", j)] = a.lg(f"ds_read_b32 v{vT + 1 + j}, v{vCr} offset:{j * 128}")
    main(a, 31, 4)
    main(a, 31, 5)
    for j in range(3):
        w = WF[0] + 4 * j
        a.wait(lg=rt[("c", j)])
        a(f"v_cvt_pk_bf16_f32 v{w + 1}, v{vT + 1 + j}, 0")
        a(f"v_lshlrev_b32 v{vT}, 16, v{w + 1}")
        a(f"v_sub_f32 v{vT}, v{vT + 1 + j}, v{vT}")
        a(f"v_cvt_pk_bf16_f32 v{w}, v{vT + 1 + j}, v{vT}")
    for j in range(3):
        for i in range(2):
            d = ACC + 32 * j + 16 * i
            a(f"v_mfma_f32_32x32x16_bf16 {vr(d, 16)}, {vr(WF[0] + 4 * j, 4)}, {vr(XE + 4 * i, 4)}, {vr(d, 16)}")
    stamp(a)
    a("s_nop 4")
    for j in range(3):
        a(f"s_cmp_ge_u32 s38, {86 - j}")
        a("s_cbranch_scc1 L_p4_pub")
        Gs = [(ACC + 32 * j + 16 * i + r, i) for i in range(2) for r in range(8)]
        for g, i in Gs[::2]:
            a(f"v_pk_mul_f32 {vr(g, 2)}, {vr(g, 2)}, {vr(AS + 2 * i, 2)} op_sel_hi:[1,0]")
        for g, i in Gs:
            a(f"v_exp_f32 v{g}, v{g}")
        for g, i in Gs[::2]:
            a(f"v_pk_fma_f32 {vr(g, 2)}, {vr(g, 2)}, {vr(AS + 2 * i, 2)}, {vr(AS + 2 * i, 2)} op_sel:[0,1,1] op_sel_hi:[1,1,1]")
        for g, i in Gs:
            a(f"v_rcp_f32 v{g}, v{g}")
        for g, i in Gs[::2]:
            a(f"v_pk_mul_f32 {vr(g, 2)}, {vr(g, 2)}, {vr(g + 8, 2)}")
        o = ACC + 32 * j + 8
        for i in range(8):
            a(f"v_cvt_pk_bf16_f32 v{o + i}, v{Gs[2 * i][0]}, v{Gs[2 * i + 1][0]}")
        stores(a, [f"buffer_store_dwordx4 {vr(o, 4)}, v{vL16}, {sr(sWS, 4)}, s34 offen offset:{j * 1024}",
                   f"buffer_store_dwordx4 {vr(o + 4, 4)}, v{vL16}, {sr(sWS, 4)}, s35 offen offset:{j * 1024}"])
    a.label("L_p4_pub")
    a("s_nop 7")
    stamp(a)
    publish(a, 55, vT)
    a.label("L_p4_skip_c")
    return odd


def gen_fused():
    name = KNAME
    a = Asm()
    a.raw(f".globl {name}")
    a.raw(".p2align 8")
    a.raw(f".type {name},@function")
    a.label(name)
    a("s_cmp_ge_u32 s2, 256")
    a(f"s_cbranch_scc1 L_done")
    stamp_real(a)
    stamp(a)
    c1, odd1, l1, aux = phase1(a)
    fb = phase2(c1, l1, aux)
    c1(f"s_cmp_ge_u32 s{sWave}, 4")
    c1("s_cbranch_scc0 L_compute")
    h = fork(c1)
    c = fork(c1)
    c.label("L_compute")
    phase_res(c, h, True, pre_publish=55)
    odd = phase4(c, h)
    phase_res(c, h, False)
    stamp_flush(h)
    h("s_endpgm")
    c("s_cmp_lg_u32 s2, 0")
    c("s_cbranch_scc1 L_nogen")
    c(f"s_cmp_lg_u32 s{sWave}, 0")
    c("s_cbranch_scc1 L_nogen")
    c(f"v_mov_b32 v12, {GEN}")
    c(f"v_mov_b32 v13, s{sTag}")
    c("s_mov_b64 exec, 1")
    c(f"buffer_store_dword v13, v12, {sr(sWS, 4)}, 0 offen sc1")
    c.label("L_nogen")
    stamp_flush(c)
    c.label("L_done")
    c("s_endpgm")
    text = (a.text() + l1.text() + aux.text() + odd1.text() + c1.text() + h.text() + c.text() + odd.text() + fb.text())
    return name, text, descriptor(name, 168, 0, sgpr=102), (256, 576, 163840)


def build():
    name, text, desc, (g, b, lds) = gen_fused()
    ref = open(f"cdna_kernels/{NAME}.s.ref").read().split("\n")
    head = [l for l in ref if l.startswith(";") and "@launch" not in l]
    out = "\n".join(head) + "\n"
    out += f"; @launch grid=({g},1,1) block=({b},1,1) lds={lds}\n"
    out += '.amdgcn_target "amdgcn-amd-amdhsa--gfx950"\n.text\n'
    bad = check_hazards(text, name)
    out += text
    out += "L_code_end:\n"
    out += '.section .rodata,"a"\n.p2align 6\n' + desc
    if bad:
        print("hazards:", bad)
    return out


if __name__ == "__main__":
    path = sys.argv[1] if len(sys.argv) > 1 else f"cdna_kernels/{NAME}.s"
    for arg in sys.argv[2:]:
        if arg == "stamps":
            G.STAMPS = True
        else:
            k_, v_ = arg.split("=")
            OPT[k_] = int(v_)
    open(path, "w").write(build())
    print("wrote", path)
```

```python
import sys

import gen as G
from gen import (Asm, Drip, LdsAddr, OPT, MB, QF, KVF, OF, HF, ST, GF, WS_SIZE, LOG2E, NAME, f2u, hx, vr, sr, srd,
                 fork, half_sum, split_hi_lo, code_prefetch, descriptor, check_hazards)

FLG = 11 * MB
F2, F3, F4, XT = FLG, FLG + 8192, FLG + 12288, FLG + 20480
FL1, FG1, GEN = FLG + 24576, FLG + 28672, FLG + 32768
KVL = 24 * MB
KNAME = NAME + "_kernel"
sTag = 53
OPT.update(dict(p3_a=3, p4_a=3, p5_a=4, p5_nw=11, p4_pf=10, p4_pre=6, p2_map=1, force_slow=0, p1_cnt=1, ld=0, touch_out=1, touch2=1, k1_tout=11, p2_fine=0, p2_rot=1, p4_wr=1, sc="sc1"))

sWS, sWave, sHw = 12, 24, 29
sT0, sT1 = 30, 31
KX, KWO, KG, KU, KD, KO = 64, 68, 72, 74, 76, 78
vLane, vL16 = 1, 2


def LD():
    return ["sc1", "nt", "", "sc0 sc1", "sc0"][OPT["ld"]]


def stamp(a):
    if not G.STAMPS:
        return
    i = getattr(a, "nstamp", 0)
    a.nstamp = i + 1
    assert i < 20
    a("s_memtime s[100:101]")
    a.wait_all(vm=False)
    a(f"s_mov_b32 s{80 + i}, s100")


def stamp_real(a):
    if not G.STAMPS:
        return
    i = getattr(a, "nstamp", 0)
    a.nstamp = i + 1
    a("s_memrealtime s[100:101]")
    a.wait_all(vm=False)
    a(f"s_mov_b32 s{80 + i}, s100")


def stamp_flush(a):
    if not G.STAMPS:
        return
    a.wait_all()
    stamp(a)
    stamp_real(a)
    a("s_mov_b64 exec, -1")
    a("s_lshl_b32 s58, s2, 3")
    a(f"s_add_u32 s58, s58, s{sWave}")
    a("s_lshl_b32 s58, s58, 7")
    a(f"s_add_u32 s58, s58, {G.DBGO + MB}")
    a("v_mov_b32 v1, 0")
    for i in range(a.nstamp):
        a(f"v_mov_b32 v2, s{80 + i}")
        a(f"buffer_store_dword v2, v1, {sr(sWS, 4)}, s58 offen offset:{4 * i}")
    a.wait_all()


LMODE = 163840 - 16
sMode = 54
_uid = [0]


def stores(a, ins, always_slow=False):
    if always_slow:
        for x in ins:
            a.vm(x + " sc1")
        return
    _uid[0] += 1
    u = _uid[0]
    a(f"s_cmp_eq_u32 s{sMode}, 0")
    a(f"s_cbranch_scc1 L_st_{u}_s")
    for x in ins:
        a.vm(x)
    a(f"s_branch L_st_{u}_j")
    a.label(f"L_st_{u}_s")
    for x in ins:
        a(x + " sc1")
    a.label(f"L_st_{u}_j")


def publish(a, sOff, vt, always_slow=False):
    a(f"v_mov_b32 v{vt}, 0")
    a(f"v_mov_b32 v{vt + 1}, s{sTag}")
    a("s_mov_b64 exec, 1")
    a.wait_all(lg=False)
    stores(a, [f"buffer_store_dword v{vt + 1}, v{vt}, {sr(sWS, 4)}, s{sOff} offen"], always_slow)
    a("s_mov_b64 exec, -1")


def poll(a, sOff, vt, uid, nflags=64):
    a(f"s_cmp_lg_u32 s{sWave}, 0")
    a(f"s_cbranch_scc1 L_poll_{uid}_go")
    a(f"v_lshlrev_b32 v{vt}, 2, v{vLane}")
    a("s_mov_b32 s59, 0x40000")
    if nflags < 64:
        a(f"s_mov_b64 exec, {hx((1 << nflags) - 1)}")
    a.label(f"L_poll_{uid}")
    a(f"buffer_load_dword v{vt + 1}, v{vt}, {sr(sWS, 4)}, s{sOff} offen sc1")
    a("s_sub_u32 s59, s59, 1")
    a("s_waitcnt vmcnt(0)")
    a(f"v_cmp_ne_u32 vcc, s{sTag}, v{vt + 1}")
    a("s_cmp_eq_u32 s59, 0")
    a(f"s_cbranch_scc1 L_poll_{uid}_x")
    a(f"s_cbranch_vccnz L_poll_{uid}")
    a.label(f"L_poll_{uid}_x")
    a("s_mov_b64 exec, -1")
    a.label(f"L_poll_{uid}_go")
    a("s_barrier")


def phase1(a):
    sX, sW = 20, 16
    sWr, sWc, sCg, sRb = 25, 26, 27, 28
    sWL = 32
    sOnes = 41
    vT = 8
    NSLOT, SLOT, WBASE, NST = 7, 12288, 65536, 16
    CSO = WBASE + NSLOT * SLOT
    XEO = CSO + 2048
    RSO = XEO + 2048
    a("s_load_dwordx16 s[64:79], s[0:1], 0")
    a("s_load_dwordx2 s[8:9], s[0:1], 72")
    a(f"v_and_b32 v{vLane}, 63, v0")
    a(f"v_lshrrev_b32 v7, 6, v0")
    a(f"v_lshlrev_b32 v{vL16}, 4, v{vLane}")
    a(f"v_readfirstlane_b32 s{sWave}, v7")
    a(f"s_and_b32 s{sT0}, s2, 7")
    a(f"s_lshl_b32 s{sT0}, s{sT0}, 2")
    a(f"s_bfe_u32 s{sT1}, s2, 0x20003")
    a(f"s_add_u32 s{sRb}, s{sT0}, s{sT1}")
    a(f"s_lshr_b32 s{sCg}, s2, 5")
    a(f"s_and_b32 s{sHw}, s{sWave}, 3")
    a(f"s_cmp_eq_u32 s{sWave}, 8")
    a("s_cbranch_scc1 L_p1_aux")
    a(f"s_cmp_ge_u32 s{sWave}, 4")
    a(f"s_cbranch_scc0 L_p1_compute")

    x = fork(a)
    x.label("L_p1_aux")
    x("s_setprio 3")
    x(f"v_lshlrev_b32 v30, 7, v{vLane}")
    x(f"s_lshr_b32 s{sT0}, s2, 3")
    x(f"s_lshl_b32 s{sT0}, s{sT0}, 11")
    x(f"v_add_u32 v30, s{sT0}, v30")
    x("s_mov_b64 exec, 0xffff")
    code_prefetch(x, KNAME, 44, 30, 31, "p1")
    x("s_mov_b64 exec, -1")
    x("s_getreg_b32 s56, hwreg(HW_REG_XCC_ID, 0, 4)")
    x("s_and_b32 s57, s2, 7")
    x("s_lshl_b32 s57, s57, 8")
    x(f"s_add_u32 s57, s57, {XT}")
    x("s_lshr_b32 s58, s2, 3")
    x("s_lshl_b32 s58, s58, 2")
    x(f"v_mov_b32 v6, {GEN}")
    x("s_waitcnt lgkmcnt(0)")
    srd(x, sWS, 8, WS_SIZE)
    x.vm(f"buffer_load_dword v7, v6, {sr(sWS, 4)}, 0 offen sc1")
    x("v_mov_b32 v6, s58")
    x.wait_all()
    x(f"v_readfirstlane_b32 s{sTag}, v7")
    x("s_nop 3")
    x(f"s_add_u32 s{sTag}, s{sTag}, 1")
    x(f"s_lshl_b32 s58, s{sTag}, 4")
    x("s_or_b32 s56, s56, s58")
    x("v_mov_b32 v7, s56")
    x("s_mov_b64 exec, 1")
    x.vm(f"buffer_store_dword v7, v6, {sr(sWS, 4)}, s57 offen sc1")
    x("s_mov_b32 exec_lo, -1")
    x("s_mov_b32 exec_hi, 0")
    x(f"v_lshlrev_b32 v6, 2, v{vLane}")
    for st in range(NST + 1):
        if st == 10:
            x("s_mov_b32 s59, 0x40000")
            x("s_waitcnt vmcnt(0)")
            x("s_branch L_xt_chk")
            x.label("L_xt_poll")
            x(f"buffer_load_dword v7, v6, {sr(sWS, 4)}, s57 offen sc1")
            x("s_sub_u32 s59, s59, 1")
            x("s_waitcnt vmcnt(0)")
            x.label("L_xt_chk")
            x("v_xor_b32 v8, s56, v7")
            x("v_cmp_lt_u32 vcc, 15, v8")
            x("s_cmp_eq_u32 s59, 0")
            x("s_cbranch_scc1 L_xt_done")
            x("s_cbranch_vccnz L_xt_poll")
            x.label("L_xt_done")
            x("v_cmp_ne_u32 vcc, 0, v8")
            x("s_nop 1")
            x("s_cmp_eq_u64 vcc, 0")
            x(f"s_cselect_b32 s{sMode}, {0 if OPT['force_slow'] else 1}, 0")
            x(f"v_mov_b32 v6, {LMODE}")
            x(f"v_mov_b32 v8, s{sMode}")
            x(f"v_mov_b32 v9, s{sTag}")
            x("ds_write_b64 v6, v[8:9]")
            x("s_waitcnt lgkmcnt(0)")
            x("s_mov_b64 exec, -1")
        x("s_barrier")
        if st == 5:
            x(f"buffer_load_dword v7, v6, {sr(sWS, 4)}, s57 offen sc1")

    h = fork(a)
    vWoff, vXg, vSr, vXe, vRs = 3, 4, 6, 20, 21
    vS, vQ, vM, vR = 22, 23, 24, 25
    XB = 32
    h(f"v_lshrrev_b32 v{vT}, 3, v{vLane}")
    h(f"v_and_b32 v{vT + 1}, 7, v{vLane}")
    h(f"v_lshrrev_b32 v{vT + 2}, 1, v{vT}")
    h(f"v_xor_b32 v{vT + 2}, v{vT + 2}, v{vT + 1}")
    h(f"v_lshlrev_b32 v{vT + 2}, 4, v{vT + 2}")
    h(f"v_lshl_add_u32 v{vXg}, v{vT}, 10, v{vT + 2}")
    h(f"v_xor_b32 v{vXg + 1}, 64, v{vXg}")
    h(f"v_add_u32 v{vXg + 1}, {8 * 1024 - 1024}, v{vXg + 1}")
    h(f"s_lshl_b32 s34, s{sRb}, 16")
    h(f"s_lshl_b32 s{sT0}, s{sHw}, 14")
    h(f"s_add_u32 s34, s34, s{sT0}")
    h(f"s_lshl_b32 s36, s{sHw}, 11")
    h(f"v_lshrrev_b32 v{vT + 2}, 2, v{vLane}")
    h(f"v_and_b32 v{vT + 2}, 4, v{vT + 2}")
    h(f"v_xor_b32 v{vT + 2}, v{vT + 2}, v{vT + 1}")
    h(f"v_lshlrev_b32 v{vT + 2}, 4, v{vT + 2}")
    h(f"v_mul_u32_u24 v{vT + 3}, 3072, v{vT}")
    h(f"s_mul_i32 s{sT0}, s{sHw}, {8 * 3072}")
    h(f"s_lshl_b32 s{sT1}, s{sCg}, 7")
    h(f"s_add_u32 s{sT0}, s{sT0}, s{sT1}")
    h(f"v_add3_u32 v{vWoff}, v{vT + 3}, v{vT + 2}, s{sT0}")
    h(f"s_mul_i32 s{sWL}, s{sHw}, 3072")
    h("s_waitcnt lgkmcnt(0)")
    srd(h, sX, KX, 2048 * 1024)
    srd(h, sW, KX + 2, 512 * 3072)
    dr = Drip(h)

    def x_dma(c, key):
        dr.add(key, [f"s_add_u32 m0, s36, {c * 8192}", f"s_add_u32 s43, s34, {c * 128}"],
               f"buffer_load_dwordx4 v{vXg}, {sr(sX, 4)}, s43 offen lds")
        dr.add(key, [], f"buffer_load_dwordx4 v{vXg + 1}, {sr(sX, 4)}, s43 offen offset:1024 lds")

    def issue(st):
        if st < 8:
            x_dma(st, st)
        for seg in range(3):
            pre = [f"s_add_u32 m0, s{sWL}, {WBASE + (st % NSLOT) * SLOT}", f"s_mov_b32 s42, {32 * st * 3072}"] if seg == 0 else []
            dr.add(st, pre, f"buffer_load_dwordx4 v{vWoff}, {sr(sW, 4)}, s42 offen offset:{seg * 1024} lds")

    for st in range(NSLOT):
        issue(st)
    AHEAD = OPT["k1_d"]
    dr.emit(5 * OPT["k1_t"])
    if OPT["k1_touch"]:
        h(f"s_lshl_b32 s{sT0}, s2, 2")
        h(f"s_add_u32 s{sT0}, s{sT0}, s{sHw}")
        h(f"s_mul_i32 s{sT1}, s{sT0}, 1536")
        h(f"s_lshl_b32 s{sT0}, s{sT0}, 11")
        h(f"v_lshlrev_b32 v30, 7, v{vLane}")
        h("s_mov_b64 exec, 0xfff")
        h.vm(f"buffer_load_dword v31, v30, {sr(sW, 4)}, s{sT1} offen")
        h("s_mov_b64 exec, 0xffff")
        h.vm(f"buffer_load_dword v31, v30, {sr(sX, 4)}, s{sT0} offen")
        h("s_mov_b64 exec, -1")
    dr.emit(5 * (AHEAD - OPT["k1_t"]))
    srd(h, sWS, 8, WS_SIZE)
    h(f"s_mov_b32 s{sOnes}, 0x3f803f80")
    h(f"v_lshrrev_b32 v{vT}, 2, v{vLane}")
    h(f"v_and_b32 v{vT + 1}, 3, v{vLane}")
    h(f"v_lshlrev_b32 v{vT + 2}, 7, v{vT}")
    h(f"v_lshl_add_u32 v{vT + 2}, v{vT + 1}, 4, v{vT + 2}")
    h(f"v_bfe_u32 v{vT + 3}, v{vLane}, 3, 1")
    h(f"v_lshl_add_u32 v{vT + 2}, v{vT + 3}, 6, v{vT + 2}")
    h(f"v_add_u32 v{vSr}, s36, v{vT + 2}")
    h(f"v_xor_b32 v{vSr + 1}, 64, v{vSr}")
    h(f"s_lshl_b32 s{sT0}, s{sHw}, 4")
    h(f"v_add_u32 v{vT}, s{sT0}, v{vT}")
    h(f"v_lshlrev_b32 v{vRs}, 2, v{vT}")
    h(f"v_add_u32 v{vRs}, {RSO}, v{vRs}")
    h(f"v_and_b32 v{vT + 2}, 31, v{vT}")
    h(f"v_lshl_add_u32 v{vT + 2}, v{vT + 1}, 5, v{vT + 2}")
    h(f"v_lshrrev_b32 v{vT + 3}, 5, v{vT}")
    h(f"v_lshl_add_u32 v{vT + 2}, v{vT + 3}, 6, v{vT + 2}")
    h(f"v_lshlrev_b32 v{vXe}, 4, v{vT + 2}")
    h(f"v_add_u32 v{vXe}, {XEO}, v{vXe}")
    h(f"v_mov_b32 v{vS}, 0")
    h(f"v_mov_b32 v{vQ}, 0")
    st_tok = {}
    for st in range(NST):
        dr.wait(st)
        if st == 12:
            h.wait_all(vm=False)
        h("s_barrier")
        if st < 8:
            b = XB + 8 * (st & 1)
            h.lg(f"ds_read_b128 {vr(b, 4)}, v{vSr} offset:{st * 8192}")
            st_tok[st] = h.lg(f"ds_read_b128 {vr(b + 4, 4)}, v{vSr + 1} offset:{st * 8192}")
        if st >= 1 and st + NSLOT - 1 < NST:
            issue(st + NSLOT - 1)
        tgt = min(NST - 1, st + AHEAD + min(st + 1, OPT["k1_g"]))
        while dr.q and dr.q[0][0] <= tgt:
            dr.emit()
        if st < 8:
            h.wait(lg=st_tok[st])
            b = XB + 8 * (st & 1)
            for r in range(8):
                h(f"v_dot2_f32_bf16 v{vS}, v{b + r}, s{sOnes}, v{vS}")
                h(f"v_dot2_f32_bf16 v{vQ}, v{b + r}, v{b + r}, v{vQ}")
        if st == 8:
            for pat in ("quad_perm:[1,0,3,2]", "quad_perm:[2,3,0,1]"):
                h(f"v_add_f32_dpp v{vS}, v{vS}, v{vS} {pat} row_mask:0xf bank_mask:0xf")
                h(f"v_add_f32_dpp v{vQ}, v{vQ}, v{vQ} {pat} row_mask:0xf bank_mask:0xf")
                h("s_nop 0")
            h(f"v_mul_f32 v{vM}, {hx(f2u(-1.0 / 512))}, v{vS}")
            h(f"v_mul_f32 v{vQ}, {hx(f2u(1.0 / 512))}, v{vQ}")
            h(f"v_fma_f32 v{vQ}, -v{vM}, v{vM}, v{vQ}")
            h(f"v_max_f32 v{vQ}, 0, v{vQ}")
            h(f"v_add_f32 v{vQ}, {hx(f2u(1e-5))}, v{vQ}")
        if st == 9:
            h(f"v_rsq_f32 v{vR}, v{vQ}")
            split_hi_lo(h, vM, XB, vT, vT + 1)
            h(f"v_cvt_pk_bf16_f32 v{XB + 1}, v{vT}, 0")
            h(f"v_mov_b32 v{XB + 2}, 0")
            h(f"v_mov_b32 v{XB + 3}, 0")
        if st == OPT.get("k1_tout", -1):
            h(f"s_lshl_b32 s{sT0}, s{sCg}, 2")
            h(f"s_add_u32 s{sT0}, s{sT0}, s{sHw}")
            h(f"s_lshl_b32 s{sT0}, s{sT0}, 5")
            h(f"s_add_u32 s{sT0}, s{sT0}, s{sRb}")
            h(f"s_lshl_b32 s{sT1}, s{sT0}, 12")
            h(f"s_add_u32 s{sT1}, s{sT1}, {KVL}")
            h(f"s_lshl_b32 s{sT0}, s{sT0}, 11")
            if QF:
                h(f"s_add_u32 s{sT0}, s{sT0}, {QF}")
            h(f"v_lshlrev_b32 v30, 7, v{vLane}")
            h("s_mov_b64 exec, 0xffff")
            h.vm(f"buffer_load_dword v31, v30, {sr(sWS, 4)}, s{sT0} offen")
            h("s_mov_b32 exec_lo, -1")
            h.vm(f"buffer_load_dword v31, v30, {sr(sWS, 4)}, s{sT1} offen")
            h("s_mov_b64 exec, -1")
        if st == 10:
            h("s_mov_b32 exec_lo, 0x33333333")
            h("s_mov_b32 exec_hi, 0x33333333")
            h.lg(f"ds_write_b128 v{vXe}, {vr(XB, 4)}")
            h.lg(f"ds_write_b32 v{vRs}, v{vR}")
            h("s_mov_b64 exec, -1")
    h(f"v_mov_b32 v{vT}, {LMODE}")
    h.lg(f"ds_read_b64 {vr(vT + 2, 2)}, v{vT}")
    h.wait_all(vm=False)
    h(f"v_readfirstlane_b32 s{sMode}, v{vT + 2}")
    h(f"v_readfirstlane_b32 s{sTag}, v{vT + 3}")
    h("s_barrier")
    h.wait_all()
    h.nstamp = getattr(h, "nstamp", 0) + 3
    a = fork(a)
    a.label("L_p1_compute")

    vXrd = [3, 4, 5, 6]
    vKoff, vVoff = 20, 21
    vWrd = [22, 23, 24]
    vCw, vCr, vEr, vRl, vRr = 25, 26, 27, 28, 29
    XF = [32, 36]
    WF = [40, 52]
    CS, ONES, XE = 64, 76, 80
    RV = 84
    accQ, accK, accV = 104, 120, 136
    a(f"s_lshr_b32 s{sWr}, s{sHw}, 1")
    a(f"s_and_b32 s{sWc}, s{sHw}, 1")
    a(f"v_and_b32 v{vT}, 31, v{vLane}")
    a(f"v_lshrrev_b32 v{vT + 1}, 5, v{vLane}")
    a(f"v_bfe_u32 v{vT + 2}, v{vLane}, 1, 3")
    a(f"v_xor_b32 v{vT + 2}, v{vT + 2}, v{vT + 1}")
    a(f"v_lshlrev_b32 v{vT + 2}, 4, v{vT + 2}")
    a(f"v_lshl_add_u32 v{vT + 2}, v{vT}, 7, v{vT + 2}")
    a(f"s_lshl_b32 s{sT0}, s{sWr}, 12")
    a(f"v_add_u32 v{vXrd[0]}, s{sT0}, v{vT + 2}")
    for ss in range(1, 4):
        a(f"v_xor_b32 v{vXrd[ss]}, {ss * 32}, v{vXrd[0]}")
    a(f"v_mul_u32_u24 v{vT + 2}, 3072, v{vT + 1}")
    a(f"v_bfe_u32 v{vT + 3}, v{vLane}, 2, 2")
    a(f"v_lshl_add_u32 v{vT + 2}, v{vT + 3}, 7, v{vT + 2}")
    a(f"v_lshrrev_b32 v{vT + 3}, 1, v{vT + 3}")
    a(f"v_xor_b32 v{vT + 3}, s{sWc}, v{vT + 3}")
    a(f"v_lshl_add_u32 v{vT + 2}, v{vT + 3}, 6, v{vT + 2}")
    a(f"v_bfe_u32 v{vT + 4}, v{vLane}, 4, 1")
    a(f"v_lshl_add_u32 v{vT + 2}, v{vT + 4}, 5, v{vT + 2}")
    a(f"v_and_b32 v{vT + 3}, 3, v{vLane}")
    a(f"v_lshl_add_u32 v{vWrd[0]}, v{vT + 3}, 3, v{vT + 2}")
    wl = LdsAddr(a, vWrd)
    wl.setup(a)
    a(f"v_xor_b32 v{vT + 2}, v{vT + 4}, v{vLane}")
    a(f"v_and_b32 v{vT + 2}, 1, v{vT + 2}")
    a(f"v_cmp_eq_u32 vcc, 0, v{vT + 2}")
    a(f"v_mov_b32 v{vT + 2}, 0x3f803f80")
    a("s_nop 0")
    for r in range(4):
        a(f"v_cndmask_b32 v{ONES + r}, 0, v{vT + 2}, vcc")
    a(f"s_lshl_b32 s{sT0}, s{sWc}, 1")
    a(f"s_add_u32 s{sT1}, s{sT0}, s{sWr}")
    a(f"s_mul_i32 s{sT1}, s{sT1}, 384")
    a(f"s_add_u32 s{sT1}, s{sT1}, {CSO}")
    a(f"v_and_b32 v{vT + 2}, 1, v{vLane}")
    a(f"v_lshlrev_b32 v{vT + 2}, 6, v{vT + 2}")
    a(f"v_and_b32 v{vT + 3}, 48, v{vLane}")
    a(f"v_add3_u32 v{vCw}, v{vT + 2}, v{vT + 3}, s{sT1}")
    a(f"s_mul_i32 s{sT0}, s{sT0}, 384")
    a(f"s_add_u32 s{sT0}, s{sT0}, {CSO}")
    a(f"v_mul_u32_u24 v{vT + 2}, 384, v{vT + 1}")
    a(f"v_lshl_add_u32 v{vT + 2}, v{vT}, 2, v{vT + 2}")
    a(f"v_add_u32 v{vCr}, s{sT0}, v{vT + 2}")
    a(f"s_lshl_b32 s{sT0}, s{sWr}, 10")
    a(f"s_add_u32 s{sT0}, s{sT0}, {XEO}")
    a(f"v_add_u32 v{vEr}, s{sT0}, v{vL16}")
    a(f"s_lshl_b32 s{sT0}, s{sWr}, 7")
    a(f"s_add_u32 s{sT0}, s{sT0}, {RSO}")
    a(f"v_lshl_add_u32 v{vRl}, v{vT}, 2, s{sT0}")
    a(f"v_lshl_add_u32 v{vRr}, v{vT + 1}, 4, s{sT0}")
    a(f"v_and_b32 v{vT + 2}, 0x33, v{vLane}")
    a(f"v_bfe_u32 v{vT + 3}, v{vLane}, 2, 1")
    a(f"v_lshl_or_b32 v{vT + 2}, v{vT + 3}, 3, v{vT + 2}")
    a(f"v_bfe_u32 v{vT + 3}, v{vLane}, 3, 1")
    a(f"v_lshl_or_b32 v{vT + 2}, v{vT + 3}, 2, v{vT + 2}")
    a(f"v_lshlrev_b32 v{vKoff}, 4, v{vT + 2}")
    a(f"v_lshlrev_b32 v{vT + 2}, 17, v{vT + 4}")
    a(f"v_lshl_add_u32 v{vT + 2}, v{vT + 1}, 8, v{vT + 2}")
    a(f"v_and_b32 v{vT + 3}, 15, v{vLane}")
    a(f"v_lshl_add_u32 v{vVoff}, v{vT + 3}, 4, v{vT + 2}")
    a(f"s_lshl_b32 s{sT0}, s{sCg}, 2")
    a(f"s_lshl_b32 s{sT1}, s{sWc}, 1")
    a(f"s_add_u32 s{sT0}, s{sT0}, s{sT1}")
    a(f"s_lshl_b32 s{sT1}, s{sRb}, 1")
    a(f"s_add_u32 s{sT1}, s{sT1}, s{sWr}")
    a(f"s_lshl_b32 s46, s{sT0}, 16")
    a(f"s_lshl_b32 s47, s{sT1}, 10")
    a(f"s_add_u32 s46, s46, s47")
    if QF:
        a(f"s_add_u32 s46, s46, {QF}")
    a(f"s_add_u32 s47, s46, 65536")
    a(f"s_lshl_b32 s36, s{sT0}, 17")
    a(f"s_lshl_b32 s37, s{sT1}, 11")
    a(f"s_add_u32 s36, s36, s37")
    a(f"s_add_u32 s36, s36, {KVF}")
    a(f"s_add_u32 s37, s36, 131072")
    for r in range(12):
        a(f"v_mov_b32 v{CS + r}, 0")
    a("s_waitcnt lgkmcnt(0)")
    srd(a, sWS, 8, WS_SIZE)
    a(f"s_lshl_b32 s{sT0}, s{sCg}, 1")
    a(f"s_add_u32 s{sT0}, s{sT0}, s{sWc}")
    a(f"s_and_b32 s{sT1}, s{sRb}, 3")
    a(f"s_lshl_b32 s{sT1}, s{sT1}, 1")
    a(f"s_add_u32 s{sT1}, s{sT1}, s{sWr}")
    a(f"s_lshl_b32 s{sT1}, s{sT1}, 2")
    a("s_and_b32 s38, s2, 7")
    a("s_lshl_b32 s48, s38, 9")
    a(f"s_lshl_b32 s39, s{sT0}, 5")
    a("s_add_u32 s48, s48, s39")
    a(f"s_add_u32 s48, s48, s{sT1}")
    a(f"s_add_u32 s48, s48, {FL1}")
    a(f"s_lshl_b32 s49, s{sT0}, 8")
    a("s_lshl_b32 s39, s38, 5")
    a("s_add_u32 s49, s49, s39")
    a(f"s_add_u32 s49, s49, s{sT1}")
    a(f"s_add_u32 s49, s49, {FG1}")
    a(f"s_add_u32 s38, s36, {KVL - KVF}")
    a(f"s_add_u32 s39, s37, {KVL - KVF}")
    a(f"v_mov_b32 v30, {LMODE}")

    def reads(s):
        st, ss = divmod(s, 2)
        ops = [f"ds_read_b128 {vr(XF[s & 1], 4)}, v{vXrd[s & 3]} offset:{(s >> 2) * 8192}"]
        for seg in range(3):
            for half in range(2):
                reg, off = wl.at(WBASE + (st % NSLOT) * SLOT + ss * 6144 + seg * 1024 + half * 512)
                ops.append(f"ds_read_b64_tr_b16 {vr(WF[s & 1] + 4 * seg + 2 * half, 2)}, {reg} offset:{off}")
        return ops

    rt = {}

    def emit_reads(b, s, lo, hi):
        ops = reads(s)
        for k in range(lo, min(hi, 7)):
            rt[(s, k)] = b.lg(ops[k])

    a("s_barrier")
    stamp(a)
    emit_reads(a, 0, 0, 7)
    a(f"s_cmp_eq_u32 s{sWr}, 1")
    a("s_cbranch_scc1 L_p1_odd")
    rt0 = dict(rt)
    odd = fork(a)
    odd.label("L_p1_odd")
    acc = [accQ, accK, accV]

    def mm(b, j, w, x, first=False):
        c = "0" if first else vr(acc[j], 16)
        ops = (vr(w, 4), vr(x, 4)) if j < 2 else (vr(x, 4), vr(w, 4))
        b(f"v_mfma_f32_32x32x16_bf16 {vr(acc[j], 16)}, {ops[0]}, {ops[1]}, {c}")

    def csum(b, s, j):
        b(f"v_mfma_f32_16x16x32_bf16 {vr(CS + 4 * j, 4)}, {vr(WF[s & 1] + 4 * j, 4)}, {vr(ONES, 4)}, {vr(CS + 4 * j, 4)}")

    for par, b in ((0, a), (1, odd)):
        rt.clear()
        rt.update(rt0)
        for s in range(31):
            if s % 2 == 1:
                b.wait(lg=rt[(s, 6)])
                b("s_barrier")
            for j in range(3):
                b.wait(lg=rt[(s, 2 + 2 * j)])
                if s % 2 == par:
                    csum(b, s, j)
                mm(b, j, WF[s & 1] + 4 * j, XF[s & 1], s == 0)
                emit_reads(b, s + 1, [0, 3, 5][j], [3, 5, 7][j])
            if s == 27:
                b.lg(f"ds_read_b128 {vr(XE, 4)}, v{vEr}")
                b.lg(f"ds_read_b32 v100, v{vRl}")
                b.lg("ds_read_b64 v[102:103], v30")
            if s == 28:
                for g in range(4):
                    b.lg(f"ds_read_b128 {vr(RV + 4 * g, 4)}, v{vRr} offset:{g * 32}")
        b.wait_all(vm=False)
        if par == 1:
            for j in range(3):
                csum(b, 31, j)
    odd("s_branch L_p1_join")
    a.label("L_p1_join")
    mm(a, 0, WF[1], XF[1])
    for j in range(3):
        a(f"v_mov_b32 v{WF[0] + 4 * j + 2}, 0")
        a(f"v_mov_b32 v{WF[0] + 4 * j + 3}, 0")
    a(f"v_mul_f32 v101, {hx(f2u(0.25 * LOG2E))}, v100")
    a(f"v_readfirstlane_b32 s{sMode}, v102")
    a(f"v_readfirstlane_b32 s{sTag}, v103")
    a("s_mov_b32 exec_lo, 0x00030003")
    a("s_mov_b32 exec_hi, 0x00030003")
    for j in range(3):
        a.lg(f"ds_write_b128 v{vCw}, {vr(CS + 4 * j, 4)} offset:{j * 128}")
    a("s_mov_b64 exec, -1")
    mm(a, 1, WF[1] + 4, XF[1])
    a.wait_all(vm=False)
    a("s_barrier")
    for j in range(3):
        rt[("c", j)] = a.lg(f"ds_read_b32 v{vT + 4 + j}, v{vCr} offset:{j * 128}")
    mm(a, 2, WF[1] + 8, XF[1])
    stamp(a)
    for j in range(3):
        w = WF[0] + 4 * j
        a.wait(lg=rt[("c", j)])
        a(f"v_cvt_pk_bf16_f32 v{w + 1}, v{vT + 4 + j}, 0")
        a(f"v_lshlrev_b32 v{vT}, 16, v{w + 1}")
        a(f"v_sub_f32 v{vT}, v{vT + 4 + j}, v{vT}")
        a(f"v_cvt_pk_bf16_f32 v{w}, v{vT + 4 + j}, v{vT}")
    for j in range(3):
        mm(a, j, WF[0] + 4 * j, XE)
    a("s_nop 9")
    P = 32
    for r in range(0, 16, 2):
        a(f"v_pk_mul_f32 {vr(accQ + r, 2)}, {vr(accQ + r, 2)}, v[100:101] op_sel:[0,1] op_sel_hi:[1,1]")
    for i in range(8):
        a(f"v_cvt_pk_bf16_f32 v{P + i}, v{accQ + 2 * i}, v{accQ + 2 * i + 1}")
    stores(a, [f"buffer_store_dwordx4 {vr(P, 4)}, v{vL16}, {sr(sWS, 4)}, s46 offen",
               f"buffer_store_dwordx4 {vr(P + 4, 4)}, v{vL16}, {sr(sWS, 4)}, s47 offen"])
    for r in range(0, 16, 2):
        a(f"v_pk_mul_f32 {vr(accK + r, 2)}, {vr(accK + r, 2)}, v[100:101] op_sel_hi:[1,0]")
    for i in range(8):
        a(f"v_cvt_pk_bf16_f32 v{P + 8 + i}, v{accK + 2 * i}, v{accK + 2 * i + 1}")
    stores(a, [f"buffer_store_dwordx4 {vr(P + 8, 4)}, v{vKoff}, {sr(sWS, 4)}, s38 offen",
               f"buffer_store_dwordx4 {vr(P + 12, 4)}, v{vKoff}, {sr(sWS, 4)}, s39 offen"])
    for r in range(0, 16, 2):
        a(f"v_pk_mul_f32 {vr(accV + r, 2)}, {vr(accV + r, 2)}, {vr(RV + r, 2)}")
    for i in range(8):
        a(f"v_cvt_pk_bf16_f32 v{P + 16 + i}, v{accV + 2 * i}, v{accV + 2 * i + 1}")
    stores(a, [f"buffer_store_dwordx4 {vr(P + 16, 4)}, v{vVoff}, {sr(sWS, 4)}, s38 offen offset:1024",
               f"buffer_store_dwordx4 {vr(P + 20, 4)}, v{vVoff}, {sr(sWS, 4)}, s38 offen offset:1536"])
    loc = a.vm_issued - 1
    a.vm(f"buffer_store_dwordx4 {vr(P + 8, 4)}, v{vKoff}, {sr(sWS, 4)}, s36 offen sc1")
    a.vm(f"buffer_store_dwordx4 {vr(P + 12, 4)}, v{vKoff}, {sr(sWS, 4)}, s37 offen sc1")
    a.vm(f"buffer_store_dwordx4 {vr(P + 16, 4)}, v{vVoff}, {sr(sWS, 4)}, s36 offen offset:1024 sc1")
    a.vm(f"buffer_store_dwordx4 {vr(P + 20, 4)}, v{vVoff}, {sr(sWS, 4)}, s36 offen offset:1536 sc1")
    stamp(a)
    a(f"v_mov_b32 v{vT}, 0")
    a(f"v_mov_b32 v{vT + 1}, s{sTag}")
    a("s_mov_b64 exec, 1")
    if OPT["p1_cnt"]:
        a.wait(vm=loc)
    else:
        a.wait_all(lg=False)
    stores(a, [f"buffer_store_dword v{vT + 1}, v{vT}, {sr(sWS, 4)}, s48 offen"])
    a("s_mov_b64 exec, -1")
    return a, odd, h, x


def phase2(a, l, h):
    sHead, sQb, sKh, sQs = 25, 26, 27, 28
    sVm = 34
    vKrd, vVrd, vIdx, vXw, vXr = 3, 4, 5, 6, 7
    Qf = [8, 12]
    Kf, Vf = 16, 32
    S = [64, 80]
    O = [96, 112]
    NEG = 128
    T = 144
    XCH = 131072
    h(f"s_lshr_b32 s{sHead}, s2, 3")
    h(f"s_lshl_b32 s33, s{sHead}, 17")
    h(f"s_add_u32 s33, s33, {KVF}")
    h(f"s_lshr_b32 s40, s{sHead}, 1")
    h("s_lshl_b32 s40, s40, 8")
    h(f"s_add_u32 s40, s40, {FG1}")
    h(f"v_lshlrev_b32 v6, 2, v{vLane}")
    h("s_barrier")
    h("s_mov_b32 s59, 0x40000")
    h.label("L_poll_g1")
    h(f"buffer_load_dword v7, v6, {sr(sWS, 4)}, s40 offen sc1")
    h("s_sub_u32 s59, s59, 1")
    h.wait_all(lg=False)
    h(f"v_cmp_ne_u32 vcc, s{sTag}, v7")
    h("s_cmp_eq_u32 s59, 0")
    h("s_cbranch_scc1 L_poll_g1_x")
    h("s_cbranch_vccnz L_poll_g1")
    h.label("L_poll_g1_x")
    ctok = {}
    for c in range(1, 8):
        for half in range(2):
            for q in range(2):
                h(f"s_mov_b32 m0, {half * 65536 + c * 8192 + q * 4096}")
                if half == 0 and q == 0:
                    h(f"s_add_u32 s36, s2, {c}")
                    h("s_and_b32 s36, s36, 7")
                    h("s_lshl_b32 s36, s36, 14")
                    h("s_add_u32 s36, s36, s33")
                h(f"s_add_u32 s37, s36, {half * 8192 + q * 4096}")
                for i in range(4):
                    ctok[c] = h.vm(f"buffer_load_dwordx4 v{vL16}, {sr(sWS, 4)}, s37 offen offset:{i * 1024} sc1 lds")
        if c == 2:
            h.wait(vm=ctok[1])
            h("s_barrier")
        if c == 5:
            h.wait(vm=ctok[3])
            h("s_barrier")
        h("s_waitcnt vmcnt(40)")
    srd(h, 16, KWO, 512 * 1024)
    srd(h, 20, KG, 512 * 2752)
    srd(h, 48, KU, 512 * 2752)
    h(f"s_and_b32 s{sT0}, s2, 7")
    h(f"s_lshl_b32 s{sT1}, s{sT0}, 18")
    h(f"s_add_u32 s4, s{KX}, s{sT1}")
    h(f"s_addc_u32 s5, s{KX + 1}, 0")
    srd(h, 44, 4, 256 * 1024)
    h(f"s_mul_i32 s{sT0}, s{sT0}, {172 * 1024}")
    h(f"s_add_u32 s10, s{KD}, s{sT0}")
    h(f"s_addc_u32 s11, s{KD + 1}, 0")
    srd(h, 40, 10, 172 * 1024)
    h(f"s_lshr_b32 s{sT0}, s2, 3")
    h("v_lshlrev_b32 v3, 7, v1")
    h.wait_all()
    h("s_barrier")
    for sq, per, n in ((16, 16384, 2), (44, 8192, 1), (20, 49152, 6), (48, 49152, 6), (40, 8192, 1)):
        h(f"s_mul_i32 s{sT1}, s{sT0}, {per}")
        h(f"v_add_u32 v4, s{sT1}, v3")
        for i in range(n):
            h.vm(f"buffer_load_dword v5, v4, {sr(sq, 4)}, 0 offen")
            if i + 1 < n:
                h("v_add_u32 v4, 0x2000, v4")
    if OPT["touch_out"]:
        h("s_and_b32 s58, s2, 7")
        for base, gsz, per, n in ((HF, 262144, 8192, 1), (GF, 8 * 86 * 1024, 22016, 3)):
            h(f"s_mul_i32 s{sT1}, s{sT0}, {per}")
            h(f"s_mul_i32 s36, s58, {gsz}")
            h(f"s_add_u32 s36, s36, s{sT1}")
            h(f"s_add_u32 s36, s36, {base}")
            for i in range(n):
                h.vm(f"buffer_load_dword v5, v3, {sr(sWS, 4)}, s36 offen {['', '', 'nt', 'sc1'][OPT['touch_out']]}")
                if i + 1 < n:
                    h("s_add_u32 s36, s36, 0x2000")
    if OPT["touch2"]:
        h("v_lshrrev_b32 v4, 3, v1")
        h("v_lshlrev_b32 v4, 15, v4")
        h("v_and_b32 v6, 7, v1")
        h("v_lshl_add_u32 v4, v6, 7, v4")
        h("s_and_b32 s36, s2, 7")
        h("s_lshl_b32 s36, s36, 18")
        h(f"s_lshl_b32 s{sT1}, s{sHead}, 10")
        h(f"s_add_u32 s36, s36, s{sT1}")
        h(f"s_add_u32 s36, s36, {OF}")
        h.vm(f"buffer_load_dword v5, v4, {sr(sWS, 4)}, s36 offen")
        h("s_lshl_b32 s36, s2, 10")
        h(f"s_add_u32 s36, s36, {ST}")
        h("s_mov_b64 exec, 0xff")
        h.vm(f"buffer_load_dword v5, v3, {sr(sWS, 4)}, s36 offen")
        h("s_mov_b64 exec, -1")
        srd(h, 44, KO, 2048 * 1024)
        h("s_and_b32 s36, s2, 7")
        h("s_lshl_b32 s36, s36, 18")
        h(f"s_lshl_b32 s{sT1}, s{sT0}, 13")
        h(f"s_add_u32 s36, s36, s{sT1}")
        h.vm(f"buffer_load_dword v5, v3, s[44:47], s36 offen")
    h(f"s_lshl_b32 s{sT1}, s{sT0}, 11")
    h(f"v_add_u32 v4, s{sT1}, v3")
    h("s_mov_b64 exec, 0xffff")
    code_prefetch(h, "L_p2_tail", 38, 4, 5, "p2")
    h("s_endpgm")

    def init(b):
        b(f"s_lshr_b32 s{sHead}, s2, 3")
        b(f"s_and_b32 s{sQb}, s2, 7")
        b(f"s_lshr_b32 s{sKh}, s{sWave}, 2")
        b(f"s_and_b32 s{sQs}, s{sWave}, 3")
        b(f"v_and_b32 v{T}, 27, v{vLane}")
        b(f"v_cmp_eq_u32 vcc, 16, v{T}")
        b(f"v_mov_b32 v{T}, 0x3f803f80")
        b(f"v_mov_b32 v{vIdx}, 0xdddd")
        for r in range(32):
            b(f"v_cndmask_b32 v{Vf + r}, 0, v{T}, vcc")
        b(f"s_mov_b32 s{sVm}, 0x0000ffff")
        b(f"s_mov_b32 s{sVm + 1}, 0x0000ffff")
        b(f"s_lshl_b32 s{sT0}, s{sKh}, 16")
        b(f"v_add_u32 v{vKrd}, s{sT0}, v{vL16}")
        b(f"v_lshrrev_b32 v{T}, 5, v{vLane}")
        b(f"v_and_b32 v{T + 1}, 15, v{vLane}")
        b(f"v_lshlrev_b32 v{T + 1}, 4, v{T + 1}")
        b(f"v_lshl_add_u32 v{T}, v{T}, 8, v{T + 1}")
        b(f"v_add_u32 v{vVrd}, s{sT0}, v{T}")
        b(f"s_mul_i32 s{sT0}, s{sWave}, 3072")
        b(f"s_add_u32 s{sT0}, s{sT0}, {XCH}")
        b(f"v_add_u32 v{vXw}, s{sT0}, v{vL16}")
        b(f"s_xor_b32 s{sT1}, s{sWave}, 4")
        b(f"s_mul_i32 s{sT0}, s{sT1}, 3072")
        b(f"s_add_u32 s{sT0}, s{sT0}, {XCH}")
        b(f"v_add_u32 v{vXr}, s{sT0}, v{vL16}")
        b(f"s_lshl_b32 s{sT0}, s{sQs}, 1")
        b(f"s_add_u32 s{sT0}, s{sT0}, s{sKh}")
        b(f"s_lshl_b32 s{sT0}, s{sT0}, 10")
        b(f"s_add_u32 s{sT0}, s{sT0}, {XCH}")
        b(f"v_add_u32 v{T + 2}, s{sT0}, v{vL16}")
        b(f"v_xor_b32 v{T + 3}, 1024, v{T + 2}")
        for c in range(2):
            for r in range(16):
                b(f"v_mov_b32 v{O[c] + r}, 0")
        b(f"s_lshl_b32 s57, s{sQb}, 2")
        b(f"s_add_u32 s57, s57, s{sQs}")
        b(f"s_lshl_b32 s55, s57, 8")
        b(f"s_lshl_b32 s{sT1}, s{sHead}, 1")
        b(f"s_add_u32 s{sT1}, s{sT1}, s{sKh}")
        b(f"s_lshl_b32 s{sT1}, s{sT1}, 2")
        b(f"s_add_u32 s55, s55, s{sT1}")
        b(f"s_add_u32 s55, s55, {F2}")
        b(f"s_lshl_b32 s57, s57, 1")
        b(f"s_add_u32 s57, s57, s{sKh}")
        b(f"s_lshl_b32 s57, s57, 15")
        b(f"s_lshl_b32 s{sT1}, s{sHead}, 10")
        b(f"s_add_u32 s57, s57, s{sT1}")
        b(f"s_add_u32 s57, s57, {OF}")

    init(l)
    l(f"s_lshl_b32 s40, s{sQb}, 9")
    l(f"s_lshr_b32 s{sT0}, s{sHead}, 1")
    l(f"s_lshl_b32 s{sT0}, s{sT0}, 5")
    l(f"s_add_u32 s40, s40, s{sT0}")
    l(f"s_add_u32 s40, s40, {FL1}")
    l(f"s_lshl_b32 s36, s{sHead}, 17")
    l(f"s_lshl_b32 s{sT0}, s{sQb}, 14")
    l(f"s_add_u32 s36, s36, s{sT0}")
    l(f"s_lshl_b32 s{sT0}, s{sQs}, 12")
    l(f"s_add_u32 s36, s36, s{sT0}")
    l(f"s_lshr_b32 s37, s36, 1")
    l(f"s_add_u32 s36, s36, {KVL}")
    if QF:
        l(f"s_add_u32 s37, s37, {QF}")
    l(f"s_lshr_b32 s38, s{sQs}, 1")
    l("s_lshl_b32 s38, s38, 16")
    l(f"s_and_b32 s{sT0}, s{sQs}, 1")
    l(f"s_lshl_b32 s{sT0}, s{sT0}, 12")
    l(f"s_add_u32 s38, s38, s{sT0}")
    l(f"s_lshl_b32 s39, s{sQs}, 11")
    l(f"s_add_u32 s39, s39, {XCH}")
    l(f"v_lshlrev_b32 v{T + 4}, 2, v{vLane}")
    l("s_mov_b32 s59, 0x40000")
    l("s_mov_b64 exec, 0xff")
    l.label("L_poll_l1")
    l(f"buffer_load_dword v{T + 5}, v{T + 4}, {sr(sWS, 4)}, s40 offen sc1")
    l("s_sub_u32 s59, s59, 1")
    l.wait_all(lg=False)
    l(f"v_cmp_ne_u32 vcc, s{sTag}, v{T + 5}")
    l("s_cmp_eq_u32 s59, 0")
    l("s_cbranch_scc1 L_poll_l1_x")
    l("s_cbranch_vccnz L_poll_l1")
    l.label("L_poll_l1_x")
    l("s_mov_b64 exec, -1")
    l("s_mov_b32 m0, s39")
    l("s_nop 0")
    for i in range(2):
        l.vm(f"buffer_load_dwordx4 v{vL16}, {sr(sWS, 4)}, s37 offen offset:{i * 1024} sc1 lds")
    l("s_mov_b32 m0, s38")
    l("s_nop 0")
    for i in range(4):
        l.vm(f"buffer_load_dwordx4 v{vL16}, {sr(sWS, 4)}, s36 offen offset:{i * 1024} sc1 lds")
    l.wait_all()
    l("s_branch L_p2_b0")
    init(a)
    a(f"v_mov_b32 v{T + 4}, 0")
    a(f"v_mov_b32 v{T + 5}, s{sTag}")
    a.wait_all(lg=False)
    a("s_mov_b64 exec, 1")
    a.vm(f"buffer_store_dword v{T + 5}, v{T + 4}, {sr(sWS, 4)}, s49 offen sc1")
    a("s_mov_b64 exec, -1")
    a.label("L_p2_b0")

    def emit_pair(p):
        for t in (2 * p, 2 * p + 1):
            a.lg(f"ds_read_b128 {vr(Kf + 4 * (t & 3), 4)}, v{vKrd} offset:{t * 2048}")
        a(f"s_mov_b64 exec, {sr(sVm, 2)}")
        for t in (2 * p, 2 * p + 1):
            a.lg(f"ds_read_b128 {vr(Vf + 8 * (t & 3), 4)}, v{vVrd} offset:{t * 2048 + 1024}")
            tok = a.lg(f"ds_read_b128 {vr(Vf + 8 * (t & 3) + 4, 4)}, v{vVrd} offset:{t * 2048 + 1536}")
        a("s_mov_b64 exec, -1")
        return tok

    def qk(u):
        t, c = divmod(u, 2)
        return f"v_mfma_f32_32x32x16_bf16 {vr(S[u & 1], 16)}, {vr(Kf + 4 * (t & 3), 4)}, {vr(Qf[c], 4)}, 0"

    def pv(u, i):
        t, c = divmod(u, 2)
        return (f"v_smfmac_f32_32x32x32_bf16 {vr(O[c], 16)}, {vr(Vf + 8 * (t & 3) + 4 * i, 4)}, "
                f"{vr(S[u & 1] + 8 * i, 8)}, v{vIdx}")

    NU = 64
    BARS = [6, 12, 28]
    PRIO = {0: 1, 4: 0, 7: 1, 10: 0, 13: 1, 25: 0, 29: 2, NU - 6: 1, NU - 2: 0}
    a("s_barrier")
    stamp(a)
    a.lg(f"ds_read_b128 {vr(Qf[0], 4)}, v{T + 2}")
    a.lg(f"ds_read_b128 {vr(Qf[1], 4)}, v{T + 3}")
    ptok = {0: emit_pair(0)}
    a.wait(lg=ptok[0] - 5)
    a(qk(0))
    a.wait(lg=ptok[0])
    a("s_nop 9")
    for u in range(NU):
        X = S[u & 1]
        p, pu = divmod(u, 4)
        if u in PRIO:
            a(f"s_setprio {PRIO[u]}")
        ex = [f"v_exp_f32 v{X + i}, v{X + i}" for i in range(16)]
        a(ex[0]); a(ex[1])
        if u > 0:
            a(pv(u - 1, 1))
        a(ex[2]); a(ex[3]); a(ex[4])
        if u + 1 < NU:
            if pu == 3:
                a.wait(lg=ptok[p + 1])
            a(qk(u + 1))
        if (pu == 0 and p + 1 < 16 and u != 4) or u == 6:
            if u in BARS:
                a("s_barrier")
            ptok[p + 1] = emit_pair(p + 1)
        for i in range(5, 10):
            a(ex[i])
        a(pv(u, 0))
        for i in range(10, 16):
            a(ex[i])
    a.label("L_p2_tail")
    a("s_nop 1")
    a(pv(NU - 1, 1))
    a(f"s_mov_b32 s{sT0}, {hx(f2u(2.0 ** 80))}")
    a(f"s_mov_b32 s{sT1}, {hx(f2u(2.0 ** -80))}")
    a("s_mov_b32 s56, 0")
    a("s_nop 8")
    a.lg(f"ds_write_b128 v{vXw}, {vr(O[1], 4)}")
    a.lg(f"ds_write_b128 v{vXw}, {vr(O[1] + 4, 4)} offset:1024")
    a.lg(f"ds_write_b32 v{vXw}, v{O[1] + 8} offset:2048")
    a.wait_all(vm=False)
    a("s_barrier")
    t2 = a.lg(f"ds_read_b32 v{T + 8}, v{vXr} offset:2048")
    a.lg(f"ds_read_b128 {vr(T, 4)}, v{vXr}")
    t1 = a.lg(f"ds_read_b128 {vr(T + 4, 4)}, v{vXr} offset:1024")
    a.wait(lg=t2)
    a(f"v_add_f32 v{O[0] + 8}, v{O[0] + 8}, v{T + 8}")
    a.wait(lg=t1)
    for r in range(0, 8, 2):
        a(f"v_pk_add_f32 {vr(O[0] + r, 2)}, {vr(O[0] + r, 2)}, {vr(T + r, 2)}")
    a.label("L_p2_finish")
    a(f"v_rcp_f32 v{T + 8}, v{O[0] + 8}")
    a(f"v_cmp_gt_f32 s[40:41], s{sT0}, v{O[0] + 8}")
    a(f"v_cmp_lt_f32 s[42:43], s{sT1}, v{O[0] + 8}")
    for r in range(0, 8, 2):
        a(f"v_pk_mul_f32 {vr(O[0] + r, 2)}, {vr(O[0] + r, 2)}, {vr(T + 8, 2)} op_sel_hi:[1,0]")
    for i in range(4):
        a(f"v_cvt_pk_bf16_f32 v{T + 4 + i}, v{O[0] + 2 * i}, v{O[0] + 2 * i + 1}")
    a(f"v_dot2_f32_bf16 v{T}, v{T + 4}, v{T + 4}, 0")
    for i in range(1, 4):
        a(f"v_dot2_f32_bf16 v{T}, v{T + 4 + i}, v{T + 4 + i}, v{T}")
    a("s_and_b64 s[40:41], s[40:41], s[42:43]")
    a("s_cmp_lg_u32 s56, 0")
    a("s_cbranch_scc1 L_p2_store")
    a(f"v_cmp_gt_f32 vcc, s{sT0}, v{T}")
    a("s_nop 0")
    a("s_and_b64 s[40:41], s[40:41], vcc")
    a("s_cmp_eq_u64 s[40:41], -1")
    a("s_cbranch_scc0 L_p2_fallback")
    a.label("L_p2_store")
    stores(a, [f"buffer_store_dwordx4 {vr(T + 4, 4)}, v{vL16}, {sr(sWS, 4)}, s57 offen"])
    a("s_barrier")
    stamp(a)

    f = Asm()
    f.label("L_p2_fallback")
    vK2, vV2, vM = T + 10, T + 11, T + 12
    f(f"s_lshl_b32 s37, s{sKh}, 16")
    f(f"v_subrev_u32 v{vK2}, s37, v{vKrd}")
    f(f"v_mov_b32 v{vM}, 0xff800000")
    f("s_mov_b32 s56, 0")
    f.label("L_p2_fb_max")
    f(f"ds_read_b128 {vr(Kf, 4)}, v{vK2}")
    f("s_waitcnt lgkmcnt(0)")
    f(f"v_mfma_f32_32x32x16_bf16 {vr(S[0], 16)}, {vr(Kf, 4)}, {vr(Qf[0], 4)}, 0")
    f("s_nop 15")
    for i in range(8):
        f(f"v_max3_f32 v{vM}, v{vM}, v{S[0] + 2 * i}, v{S[0] + 2 * i + 1}")
    f(f"v_add_u32 v{vK2}, 2048, v{vK2}")
    f("s_add_u32 s56, s56, 1")
    f("s_cmp_lt_u32 s56, 64")
    f("s_cbranch_scc1 L_p2_fb_max")
    f(f"v_mov_b32 v{T}, v{vM}")
    f("s_nop 1")
    f(f"v_permlane32_swap_b32 v{vM}, v{T}")
    f("s_nop 1")
    f(f"v_max_f32 v{vM}, v{vM}, v{T}")
    for r in range(16):
        f(f"v_sub_f32 v{NEG + r}, 0, v{vM}")
        f(f"v_mov_b32 v{O[0] + r}, 0")
    f(f"v_subrev_u32 v{vK2}, s37, v{vKrd}")
    f(f"v_subrev_u32 v{vV2}, s37, v{vVrd}")
    f("s_mov_b32 s56, 0")
    f.label("L_p2_fb_pv")
    f(f"ds_read_b128 {vr(Kf, 4)}, v{vK2}")
    f(f"s_mov_b64 exec, {sr(sVm, 2)}")
    f(f"ds_read_b128 {vr(Vf, 4)}, v{vV2} offset:1024")
    f(f"ds_read_b128 {vr(Vf + 4, 4)}, v{vV2} offset:1536")
    f("s_mov_b64 exec, -1")
    f("s_waitcnt lgkmcnt(0)")
    f(f"v_mfma_f32_32x32x16_bf16 {vr(S[0], 16)}, {vr(Kf, 4)}, {vr(Qf[0], 4)}, {vr(NEG, 16)}")
    f("s_nop 15")
    for i in range(16):
        f(f"v_exp_f32 v{S[0] + i}, v{S[0] + i}")
    f("s_nop 1")
    f(f"v_smfmac_f32_32x32x32_bf16 {vr(O[0], 16)}, {vr(Vf, 4)}, {vr(S[0], 8)}, v{vIdx}")
    f(f"v_smfmac_f32_32x32x32_bf16 {vr(O[0], 16)}, {vr(Vf + 4, 4)}, {vr(S[0] + 8, 8)}, v{vIdx}")
    f("s_nop 15")
    f(f"v_add_u32 v{vK2}, 2048, v{vK2}")
    f(f"v_add_u32 v{vV2}, 2048, v{vV2}")
    f("s_add_u32 s56, s56, 1")
    f("s_cmp_lt_u32 s56, 64")
    f("s_cbranch_scc1 L_p2_fb_pv")
    f("s_branch L_p2_finish")
    return f


def phase_res(a, h, k3, pre_publish=None):
    uid = "p3" if k3 else "p5"
    KS = 32 if k3 else 86
    ACT = OF if k3 else GF
    NST = (KS + 3) // 4
    NW = 8 if k3 else OPT["p5_nw"]
    NA = 8 if k3 else 17 - NW
    AO = NW * 8192
    RESO = AO + NA * 8192
    TRO = RESO + 8192 + 6144
    sW, sIO = 16, 20
    sWr, sWc, sRb, sCb = 25, 26, 27, 28
    T = 12
    for b in (a, h):
        b(f"s_and_b32 s{sT0}, s2, 7")
        b(f"s_lshl_b32 s{sRb}, s{sT0}, 2")
        b(f"s_lshr_b32 s34, s2, 6")
        b(f"s_add_u32 s{sRb}, s{sRb}, s34")
        b(f"s_bfe_u32 s{sCb}, s2, 0x30003")
        b(f"s_and_b32 s{sWr}, s{sWave}, 1")
        b(f"s_bfe_u32 s{sWc}, s{sWave}, 0x10001")
    vWoff, vXg = 3, 5
    h(f"v_lshrrev_b32 v{T}, 3, v{vLane}")
    h(f"v_and_b32 v{T + 1}, 7, v{vLane}")
    h(f"v_lshrrev_b32 v{T + 2}, 2, v{vLane}")
    h(f"v_and_b32 v{T + 2}, 4, v{T + 2}")
    h(f"v_xor_b32 v{T + 2}, v{T + 2}, v{T + 1}")
    h(f"v_lshlrev_b32 v{T + 2}, 4, v{T + 2}")
    h(f"v_lshl_add_u32 v{T + 2}, v{T}, 10, v{T + 2}")
    h(f"s_lshl_b32 s{sT0}, s{sHw}, 14")
    h(f"s_lshl_b32 s{sT1}, s{sCb}, 7")
    h(f"s_add_u32 s{sT0}, s{sT0}, s{sT1}")
    h(f"v_add_u32 v{vWoff}, s{sT0}, v{T + 2}")
    h(f"v_add_u32 v{vWoff + 1}, {8192 - 1024}, v{vWoff}")
    h(f"s_lshl_b32 s32, s{sHw}, 11")
    h(f"s_lshl_b32 s33, s{sRb}, 1")
    h(f"s_add_u32 s33, s33, s{sWr}")
    h(f"s_mul_i32 s34, s33, {KS * 1024}")
    h(f"s_lshl_b32 s{sT1}, s{sWc}, 11")
    h(f"s_add_u32 s34, s34, s{sT1}")
    h(f"s_add_u32 s34, s34, {ACT}")
    h(f"s_lshl_b32 s35, s{sWr}, 12")
    h(f"s_add_u32 s35, s35, s{sT1}")
    if k3:
        h(f"v_lshrrev_b32 v{T + 2}, 1, v{T}")
        h(f"v_xor_b32 v{T + 2}, v{T + 2}, v{T + 1}")
        h(f"v_lshlrev_b32 v{T + 2}, 4, v{T + 2}")
        h(f"v_lshl_add_u32 v{vXg}, v{T}, 10, v{T + 2}")
        h(f"v_xor_b32 v{vXg + 1}, 64, v{vXg}")
        h(f"v_add_u32 v{vXg + 1}, {8192 - 1024}, v{vXg + 1}")
        h(f"s_lshl_b32 s36, s{sRb}, 16")
        h(f"s_add_u32 s36, s36, s{sT0}")
        srd(h, sIO, KX, 2048 * 1024)
    else:
        h(f"s_lshl_b32 s36, s33, 15")
        h(f"s_lshl_b32 s{sT0}, s{sCb}, 12")
        h(f"s_add_u32 s36, s36, s{sT0}")
        h(f"s_add_u32 s36, s36, s{sT1}")
        h(f"s_add_u32 s36, s36, {HF}")
    srd(h, sW, KWO if k3 else KD, KS * 16 * 1024)
    if pre_publish is not None:
        publish(h, pre_publish, T + 4)
    dr = Drip(h)

    def issue_w(st):
        dr.add(st, [f"s_add_u32 m0, s32, {(st % NW) * 8192}", f"s_mov_b32 s42, {st * 65536}"],
               f"buffer_load_dwordx4 v{vWoff}, {sr(sW, 4)}, s42 offen lds")
        dr.add(st, [], f"buffer_load_dwordx4 v{vWoff + 1}, {sr(sW, 4)}, s42 offen offset:1024 lds")

    def issue_a(st):
        dr.add(st, [f"s_add_u32 m0, s35, {AO + (st % NA) * 8192}", f"s_add_u32 s43, s34, {st * 4096}"],
               f"buffer_load_dwordx4 v{vL16}, {sr(sWS, 4)}, s43 offen {LD()} lds")
        dr.add(st, [], f"buffer_load_dwordx4 v{vL16}, {sr(sWS, 4)}, s43 offen offset:1024 {LD()} lds")

    for st in range(min(NW, NST)):
        issue_w(st)
    if k3:
        dr.add(0, [f"s_add_u32 m0, s32, {RESO}", "s_nop 0"], f"buffer_load_dwordx4 v{vXg}, {sr(sIO, 4)}, s36 offen lds")
        dr.add(0, [], f"buffer_load_dwordx4 v{vXg + 1}, {sr(sIO, 4)}, s36 offen offset:1024 lds")
    dr.emit(100)
    stamp(h)
    h("s_barrier")
    stamp(h)
    AHEAD = OPT["p3_a"] if k3 else OPT["p5_a"]
    assert AHEAD < NA
    nxt_a = 0
    for st in range(NST):
        while nxt_a <= min(st + AHEAD, NST - 1):
            if nxt_a >= NA and nxt_a - NA > st - 2:
                break
            issue_a(nxt_a)
            if not k3 and nxt_a == 1:
                dr.add(1, [f"s_add_u32 m0, s35, {RESO}", "s_nop 0"], f"buffer_load_dwordx4 v{vL16}, {sr(sWS, 4)}, s36 offen {LD()} lds")
                dr.add(1, [], f"buffer_load_dwordx4 v{vL16}, {sr(sWS, 4)}, s36 offen offset:1024 {LD()} lds")
            nxt_a += 1
        dr.emit(100)
        h.wait(vm=dr.tok[st])
        h("s_barrier")
        if st >= 1 and st - 1 + NW < NST:
            issue_w(st - 1 + NW)
    if k3:
        h("s_barrier")
    RST = 0 if k3 else 1
    vWrd, vAr, vRr, vTw, vTr, vOut = [3, 4], [5], [7, 8], 9, 10, 11
    ID = 24
    FR = [32, 72]
    acc = 112
    a(f"v_and_b32 v{T}, 31, v{vLane}")
    a(f"v_lshrrev_b32 v{T + 1}, 5, v{vLane}")
    a(f"v_bfe_u32 v{T + 2}, v{vLane}, 2, 2")
    a(f"v_lshl_add_u32 v{T + 3}, v{T + 1}, 2, v{T + 2}")
    a(f"v_lshlrev_b32 v{T + 3}, 7, v{T + 3}")
    a(f"v_bfe_u32 v{T + 4}, v{vLane}, 4, 1")
    a(f"v_lshl_add_u32 v{T + 3}, v{T + 4}, 5, v{T + 3}")
    a(f"v_and_b32 v{T + 4}, 3, v{vLane}")
    a(f"v_lshl_add_u32 v{T + 3}, v{T + 4}, 3, v{T + 3}")
    a(f"v_lshrrev_b32 v{T + 2}, 1, v{T + 2}")
    a(f"v_xor_b32 v{T + 2}, s{sWc}, v{T + 2}")
    a(f"v_lshl_add_u32 v{vWrd[0]}, v{T + 2}, 6, v{T + 3}")
    wl = LdsAddr(a, vWrd)
    wl.setup(a)
    a(f"s_lshl_b32 s{sT0}, s{sWr}, 12")
    a(f"s_add_u32 s{sT1}, s{sT0}, {AO}")
    a(f"v_add_u32 v{vAr[0]}, s{sT1}, v{vL16}")
    if k3:
        a(f"v_bfe_u32 v{T + 2}, v{vLane}, 1, 3")
        a(f"v_xor_b32 v{T + 2}, v{T + 2}, v{T + 1}")
        a(f"s_lshl_b32 s{sT1}, s{sWc}, 2")
        a(f"v_xor_b32 v{T + 2}, s{sT1}, v{T + 2}")
        a(f"v_lshlrev_b32 v{T + 2}, 4, v{T + 2}")
        a(f"v_lshl_add_u32 v{T + 2}, v{T}, 7, v{T + 2}")
        a(f"s_add_u32 s{sT0}, s{sT0}, {RESO}")
        a(f"v_add_u32 v{vRr[0]}, s{sT0}, v{T + 2}")
        a(f"v_xor_b32 v{vRr[1]}, 32, v{vRr[0]}")
    else:
        a(f"s_lshl_b32 s{sT1}, s{sWc}, 11")
        a(f"s_add_u32 s{sT0}, s{sT0}, s{sT1}")
        a(f"s_add_u32 s{sT0}, s{sT0}, {RESO}")
        a(f"v_add_u32 v{vRr[0]}, s{sT0}, v{vL16}")
        a(f"v_add_u32 v{vRr[1]}, 1024, v{vRr[0]}")
    if pre_publish is not None:
        publish(a, pre_publish, T + 6)
    a(f"v_mov_b32 v{T + 5}, 0x3f80")
    for e in range(2):
        if k3:
            a(f"v_lshlrev_b32 v{T + 2}, 3, v{T + 1}")
            a(f"v_sub_u32 v{T + 2}, v{T}, v{T + 2}")
            a(f"v_subrev_u32 v{T + 2}, {16 * e}, v{T + 2}")
        else:
            a(f"v_bfe_u32 v{T + 2}, v{vLane}, 3, 1")
            a(f"v_and_b32 v{T + 3}, 3, v{vLane}")
            a(f"v_lshl_add_u32 v{T + 2}, v{T + 2}, 2, v{T + 3}")
            a(f"v_bfe_u32 v{T + 3}, v{vLane}, 2, 1")
            a(f"v_xor_b32 v{T + 3}, v{T + 3}, v{T + 1}")
            a(f"v_bfe_u32 v{T + 4}, v{vLane}, 4, 1")
            a(f"v_xor_b32 v{T + 4}, {e}, v{T + 4}")
            a(f"v_or_b32 v{T + 3}, v{T + 3}, v{T + 4}")
            a(f"v_lshl_add_u32 v{T + 2}, v{T + 3}, 4, v{T + 2}")
        a(f"v_and_b32 v{T + 3}, 1, v{T + 2}")
        a(f"v_lshlrev_b32 v{T + 3}, 4, v{T + 3}")
        a(f"v_lshlrev_b32 v{T + 3}, v{T + 3}, v{T + 5}")
        a(f"v_lshrrev_b32 v{T + 2}, 1, v{T + 2}")
        for r in range(4):
            a(f"v_cmp_eq_u32 vcc, {r}, v{T + 2}")
            a("s_nop 1")
            a(f"v_cndmask_b32 v{ID + 4 * e + r}, 0, v{T + 3}, vcc")
    a(f"s_lshl_b32 s33, s{sRb}, 1")
    a(f"s_add_u32 s33, s33, s{sWr}")
    a(f"s_lshl_b32 s34, s{sCb}, 1")
    a(f"s_add_u32 s34, s34, s{sWc}")
    if k3:
        a(f"s_lshl_b32 s36, s33, 15")
        a(f"s_lshl_b32 s37, s34, 11")
        a(f"s_add_u32 s36, s36, s37")
        a(f"s_add_u32 s36, s36, {HF}")
        a(f"s_lshl_b32 s37, s34, 14")
        a(f"s_lshl_b32 s{sT1}, s33, 8")
        a(f"s_add_u32 s37, s37, s{sT1}")
        a(f"s_add_u32 s37, s37, {ST}")
        a("s_mov_b32 s41, 0x3f803f80")
        a(f"v_lshlrev_b32 v{vOut}, 3, v{vLane}")
        a(f"s_lshl_b32 s55, s{sRb}, 7")
        a(f"s_lshl_b32 s{sT1}, s{sCb}, 4")
        a(f"s_add_u32 s55, s55, s{sT1}")
        a(f"s_lshl_b32 s{sT1}, s{sWave}, 2")
        a(f"s_add_u32 s55, s55, s{sT1}")
        a(f"s_add_u32 s55, s55, {F3}")
    else:
        a(f"s_mul_i32 s{sT0}, s{sHw}, 2560")
        a(f"s_add_u32 s{sT0}, s{sT0}, {TRO}")
        a(f"v_mul_u32_u24 v{T + 2}, 80, v{T}")
        a(f"v_lshl_add_u32 v{T + 2}, v{T + 1}, 3, v{T + 2}")
        a(f"v_add_u32 v{vTw}, s{sT0}, v{T + 2}")
        a(f"v_lshrrev_b32 v{T + 2}, 2, v{vLane}")
        a(f"v_and_b32 v{T + 3}, 3, v{vLane}")
        a(f"v_lshlrev_b32 v{T + 3}, 4, v{T + 3}")
        a(f"v_mad_u32_u24 v{T + 4}, v{T + 2}, 64, v{T + 3}")
        a(f"v_lshl_add_u32 v{T + 4}, v{T + 2}, 4, v{T + 4}")
        a(f"v_add_u32 v{vTr}, s{sT0}, v{T + 4}")
        a(f"v_lshl_add_u32 v{vOut}, v{T + 2}, 10, v{T + 3}")
        a(f"s_lshl_b32 s36, s33, 15")
        a(f"s_lshl_b32 s37, s34, 6")
        a(f"s_add_u32 s36, s36, s37")
        a(f"s_add_u32 s37, s36, 16384")
        srd(a, sIO, KO, 2048 * 1024)
    a(f"s_lshl_b32 s40, s{sRb}, 8")
    a(f"s_add_u32 s40, s40, {F2 if k3 else F4}")
    poll(a, 40, T + 6, uid, 64 if k3 else 30)
    first = True
    for st in range(NST):
        a("s_barrier")
        if st == 0:
            stamp(a)
        F = FR[st & 1]
        n = min(4, KS - 4 * st)
        tk = []
        for k in range(n):
            a.lg(f"ds_read_b128 {vr(F + 8 * k, 4)}, v{vAr[0]} offset:{(st % NA) * 8192 + k * 1024}")
            for half in range(2):
                reg, off = wl.at((st % NW) * 8192 + k * 2048 + half * 1024)
                t = a.lg(f"ds_read_b64_tr_b16 {vr(F + 8 * k + 4 + 2 * half, 2)}, {reg} offset:{off}")
            tk.append(t)
        if st == RST:
            for e in range(2):
                tk.append(a.lg(f"ds_read_b128 {vr(F + 32 + 4 * e, 4)}, v{vRr[e]}"))
        for k in range(n):
            a.wait(lg=tk[k])
            a(f"v_mfma_f32_32x32x16_bf16 {vr(acc, 16)}, {vr(F + 8 * k + 4, 4)}, {vr(F + 8 * k, 4)}, {'0' if first else vr(acc, 16)}")
            first = False
        if st == RST:
            for e in range(2):
                a.wait(lg=tk[n + e])
                a(f"v_mfma_f32_32x32x16_bf16 {vr(acc, 16)}, {vr(ID + 4 * e, 4)}, {vr(F + 32 + 4 * e, 4)}, {vr(acc, 16)}")
    stamp(a)
    a("s_nop 11")
    P = 32
    for i in range(8):
        a(f"v_cvt_pk_bf16_f32 v{P + i}, v{acc + 2 * i}, v{acc + 2 * i + 1}")
    if k3:
        stores(a, [f"buffer_store_dwordx4 {vr(P, 4)}, v{vL16}, {sr(sWS, 4)}, s36 offen",
                   f"buffer_store_dwordx4 {vr(P + 4, 4)}, v{vL16}, {sr(sWS, 4)}, s36 offen offset:1024"])
        a(f"v_dot2_f32_bf16 v{T}, v{P}, s41, 0")
        a(f"v_dot2_f32_bf16 v{T + 1}, v{P}, v{P}, 0")
        for i in range(1, 8):
            a(f"v_dot2_f32_bf16 v{T}, v{P + i}, s41, v{T}")
            a(f"v_dot2_f32_bf16 v{T + 1}, v{P + i}, v{P + i}, v{T + 1}")
        a("s_nop 2")
        a(f"v_mov_b32 v{T + 2}, v{T}")
        a(f"v_mov_b32 v{T + 3}, v{T + 1}")
        a("s_nop 0")
        a(f"v_permlane32_swap_b32 v{T}, v{T + 2}")
        a(f"v_permlane32_swap_b32 v{T + 1}, v{T + 3}")
        a("s_nop 0")
        a(f"v_add_f32 v{T}, v{T}, v{T + 2}")
        a(f"v_add_f32 v{T + 1}, v{T + 1}, v{T + 3}")
        a("s_mov_b32 exec_hi, 0")
        stores(a, [f"buffer_store_dwordx2 {vr(T, 2)}, v{vOut}, {sr(sWS, 4)}, s37 offen"])
        a("s_mov_b64 exec, -1")
        a("s_barrier")
        publish(a, 55, T + 4)
    else:
        for g in range(4):
            a.lg(f"ds_write_b64 v{vTw}, {vr(P + 2 * g, 2)} offset:{g * 16}")
        a.wait_all(vm=False)
        t0 = a.lg(f"ds_read_b128 {vr(P + 8, 4)}, v{vTr}")
        t1 = a.lg(f"ds_read_b128 {vr(P + 12, 4)}, v{vTr} offset:{16 * 80}")
        a.wait(lg=t0)
        a.vm(f"buffer_store_dwordx4 {vr(P + 8, 4)}, v{vOut}, {sr(sIO, 4)}, s36 offen")
        a.wait(lg=t1)
        a.vm(f"buffer_store_dwordx4 {vr(P + 12, 4)}, v{vOut}, {sr(sIO, 4)}, s37 offen")
    stamp(a)


def phase4(a, h):
    sG = 16
    sRb, sCg = 25, 26
    sWL, sAct = 32, 33
    NW, NX, NST = 9, 5, 16
    XO = NW * 12288
    CSO = XO + NX * 8192
    XEO = CSO + 2048
    for b in (a, h):
        b(f"s_and_b32 s{sT0}, s2, 7")
        b(f"s_lshl_b32 s{sT0}, s{sT0}, 1")
        b(f"s_bfe_u32 s{sT1}, s2, 0x10003")
        b(f"s_add_u32 s{sRb}, s{sT0}, s{sT1}")
        b(f"s_lshr_b32 s{sCg}, s2, 4")
    a("s_cmp_ge_u32 s2, 240")
    a("s_cbranch_scc1 L_p4_skip_c")
    h("s_cmp_ge_u32 s2, 240")
    h("s_cbranch_scc1 L_p4_skip_l")
    vWoff = [3, 4, 5]
    vT = 16
    h(f"s_lshl_b32 s{sAct}, s{sRb}, 2")
    h(f"s_add_u32 s{sAct}, s{sAct}, s{sHw}")
    h(f"s_lshl_b32 s38, s{sAct}, 8")
    h(f"s_add_u32 s38, s38, {ST}")
    h(f"s_lshl_b32 s{sAct}, s{sAct}, 15")
    h(f"s_add_u32 s{sAct}, s{sAct}, {HF}")
    h(f"s_lshr_b32 s34, s{sHw}, 1")
    h(f"s_and_b32 s35, s{sHw}, 1")
    h(f"s_mul_i32 s{sT0}, s34, {16 * 2752}")
    h(f"s_mul_i32 s{sT1}, s{sCg}, 192")
    h(f"s_add_u32 s{sT0}, s{sT0}, s{sT1}")
    h(f"v_and_b32 v{vT + 3}, 2, v{vLane}")
    h(f"v_lshlrev_b32 v{vT + 3}, 5, v{vT + 3}")
    h(f"v_sub_u32 v{vT + 3}, 32, v{vT + 3}")
    h(f"v_mul_lo_u32 v{vT + 3}, v{vT + 3}, s35")
    h(f"v_add_u32 v{vT + 3}, s{sT0}, v{vT + 3}")
    for i in range(3):
        h(f"v_add_u32 v{vT}, {64 * i}, v{vLane}")
        h(f"v_mul_u32_u24 v{vT + 1}, 171, v{vT}")
        h(f"v_lshrrev_b32 v{vT + 1}, 11, v{vT + 1}")
        h(f"v_mul_u32_u24 v{vT + 2}, {2752 - 192}, v{vT + 1}")
        h(f"v_add3_u32 v{vWoff[i]}, v{vL16}, v{vT + 2}, v{vT + 3}")
    h(f"s_mul_i32 s{sWL}, s{sHw}, 3072")
    h(f"s_lshl_b32 s36, s{sHw}, 11")
    h(f"s_add_u32 s36, s36, {XO}")
    h("s_cmp_eq_u32 s35, 0")
    h(f"s_cselect_b32 s{sG}, s{KG}, s{KU}")
    h(f"s_cselect_b32 s{sG + 1}, s{KG + 1}, s{KU + 1}")
    h(f"s_mov_b32 s{sG + 2}, {hx(512 * 2752)}")
    h(f"s_mov_b32 s{sG + 3}, 0x00020000")
    dr = Drip(h)

    def issue_w(key):
        st = key[1] if isinstance(key, tuple) else key
        for i in range(3):
            pre = [f"s_add_u32 m0, s{sWL}, {(st % NW) * 12288}", f"s_mov_b32 s42, {st * 32 * 2752}"] if i == 0 else []
            dr.add(key, pre, f"buffer_load_dwordx4 v{vWoff[i]}, {sr(sG, 4)}, s42 offen offset:{i * 1024} lds")

    def issue_x(st):
        for i in range(2):
            pre = [f"s_add_u32 m0, s36, {(st % NX) * 8192}", f"s_add_u32 s43, s{sAct}, {st * 2048}"] if i == 0 else []
            dr.add(st, pre, f"buffer_load_dwordx4 v{vL16}, {sr(sWS, 4)}, s43 offen offset:{i * 1024} {LD()} lds")

    PRE = OPT["p4_pre"]
    for st in range(PRE):
        issue_w(st)
    dr.emit(100)
    nxt_w = PRE
    vPf, vPd = 13, 100
    srd(h, 44, KD, 1376 * 1024)
    h(f"s_lshr_b32 s{sT0}, s2, 3")
    h(f"s_lshl_b32 s{sT0}, s{sT0}, 2")
    h(f"s_add_u32 s{sT0}, s{sT0}, s{sHw}")
    h(f"s_lshl_b32 s{sT0}, s{sT0}, 13")
    h(f"v_lshlrev_b32 v{vPf}, 7, v{vLane}")
    h(f"v_add_u32 v{vPf}, s{sT0}, v{vPf}")
    h(f"v_add_u32 v15, {120 * 8192}, v{vPf}")
    h(f"v_lshrrev_b32 v{vT + 3}, 5, v{vLane}")
    h(f"v_and_b32 v{vT + 4}, 31, v{vLane}")
    h(f"v_lshlrev_b32 v{vT + 4}, 3, v{vT + 4}")
    h(f"v_lshl_add_u32 v{vT + 4}, v{vT + 3}, 17, v{vT + 4}")
    h(f"s_lshl_b32 s{sT0}, s{sHw}, 11")
    h(f"s_add_u32 s{sT0}, s{sT0}, {XEO}")
    h(f"v_add_u32 v{vT + 5}, s{sT0}, v{vL16}")
    h(f"v_lshl_add_u32 v{vT + 6}, v{vLane}, 3, s{sT0}")
    stamp(h)
    h("s_barrier")
    stamp(h)
    SP = 32
    vS, vQ, vM, vA = 60, 61, 62, 64
    AHEAD = OPT["p4_a"]
    assert AHEAD < NX
    nxt_x = 0
    for st in range(NST):
        while nxt_x <= min(st + AHEAD, NST - 1):
            if nxt_x >= NX and nxt_x - NX > st - 2:
                break
            issue_x(nxt_x)
            nxt_x += 1
        dr.emit(100)
        wtok = dict(dr.tok)
        for _ in range(OPT["p4_wr"]):
            if nxt_w < NST and (nxt_w < NW or nxt_w - NW <= st - 2):
                assert nxt_w >= nxt_x or True
                issue_w(("w", nxt_w))
                nxt_w += 1
        dr.emit(100)
        if 2 <= st <= 5:
            for i in (2 * (st - 2), 2 * (st - 2) + 1):
                h(f"s_add_u32 s{sT0}, s38, {i * 16384}")
                dr.tok["st"] = h.vm(f"buffer_load_dwordx2 {vr(SP + 2 * i, 2)}, v{vT + 4}, {sr(sWS, 4)}, s{sT0} offen {LD()}")
        h.wait(vm=max(dr.tok[st], dr.tok.get(("w", st), -1)))
        assert st < PRE or ("w", st) in dr.tok
        if st == 9:
            h.wait(vm=dr.tok["st"])
            h(f"v_add_f32 v{vS}, v{SP}, v{SP + 2}")
            h(f"v_add_f32 v{vQ}, v{SP + 1}, v{SP + 3}")
            for i in range(2, 8):
                h(f"v_add_f32 v{vS}, v{vS}, v{SP + 2 * i}")
                h(f"v_add_f32 v{vQ}, v{vQ}, v{SP + 2 * i + 1}")
        if st == 10:
            half_sum(h, vS, vT)
            half_sum(h, vQ, vT)
            h(f"v_mul_f32 v{vM}, {hx(f2u(-1.0 / 512))}, v{vS}")
            h(f"v_mul_f32 v{vQ}, {hx(f2u(1.0 / 512))}, v{vQ}")
            h(f"v_fma_f32 v{vQ}, -v{vM}, v{vM}, v{vQ}")
            h(f"v_max_f32 v{vQ}, 0, v{vQ}")
            h(f"v_add_f32 v{vQ}, {hx(f2u(1e-5))}, v{vQ}")
        if st == 11:
            h(f"v_rsq_f32 v{vA}, v{vQ}")
            split_hi_lo(h, vM, 68, vT, vT + 1)
            h(f"v_mul_f32 v{vA + 1}, v{vQ}, v{vA}")
            h(f"v_mul_f32 v{vA}, {hx(f2u(-LOG2E))}, v{vA}")
            h(f"v_cvt_pk_bf16_f32 v69, v{vT}, 0")
            h("v_mov_b32 v70, 0")
            h("v_mov_b32 v71, 0")
            h.lg(f"ds_write_b128 v{vT + 5}, v[68:71]")
            h.lg(f"ds_write_b64 v{vT + 6}, {vr(vA, 2)} offset:1024")
        if st == 12:
            h.wait_all(vm=False)
        h("s_barrier")
        if st == OPT["p4_pf"]:
            h.vm(f"buffer_load_dword v{vPd}, v{vPf}, s[44:47], 0 offen")
        if st == OPT["p4_pf"] + 2:
            h.vm(f"buffer_load_dword v{vPd}, v15, s[44:47], 0 offen")
    h("s_barrier")
    h.label("L_p4_skip_l")

    sWr2, sWc = 36, 37
    vWrd, vWrdO, vXa, vCw, vCr, vEr = [3, 4], [5, 6], 7, 8, 9, 10
    ONES, vT, CS, ACC = 12, 16, 20, 32
    XF, WF = [128, 136], [144, 156]
    XE, AS = XF[0], ONES
    t = CS
    a(f"s_lshr_b32 s{sWr2}, s{sHw}, 1")
    a(f"s_and_b32 s{sWc}, s{sHw}, 1")
    a(f"s_lshl_b32 s34, s{sRb}, 1")
    a(f"s_add_u32 s34, s34, s{sWr2}")
    a(f"v_lshrrev_b32 v{t + 3}, 5, v{vLane}")
    a(f"v_bfe_u32 v{t}, v{vLane}, 2, 2")
    a(f"v_lshl_add_u32 v{t}, v{t + 3}, 2, v{t}")
    a(f"v_mul_u32_u24 v{t}, 192, v{t}")
    a(f"v_and_b32 v{t + 1}, 3, v{vLane}")
    a(f"v_lshl_add_u32 v{t}, v{t + 1}, 3, v{t}")
    a(f"s_mul_i32 s{sT0}, s{sWc}, 96")
    a(f"v_add_u32 v{t}, s{sT0}, v{t}")
    a(f"v_bfe_u32 v{t + 1}, v{vLane}, 4, 1")
    a(f"s_lshl_b32 s{sT0}, s{sWc}, 6")
    a(f"s_sub_u32 s{sT1}, {3072 + 32}, s{sT0}")
    a(f"s_add_u32 s{sT0}, {3072 - 32}, s{sT0}")
    a(f"v_mad_u32_u24 v{vWrd[0]}, v{t + 1}, s{sT1}, v{t}")
    a(f"v_mad_u32_u24 v{vWrdO[0]}, v{t + 1}, s{sT0}, v{t}")
    wl = [LdsAddr(a, vWrd), LdsAddr(a, vWrdO)]
    wl[0].setup(a)
    wl[1].setup(a)
    a(f"s_lshl_b32 s{sT0}, s{sWr2}, 12")
    a(f"s_add_u32 s{sT0}, s{sT0}, {XO}")
    a(f"v_add_u32 v{vXa}, s{sT0}, v{vL16}")
    a(f"v_xor_b32 v{t}, v{t + 1}, v{vLane}")
    a(f"v_and_b32 v{t}, 1, v{t}")
    a(f"v_cmp_eq_u32 vcc, 0, v{t}")
    a(f"v_mov_b32 v{t}, 0x3f803f80")
    a("s_nop 0")
    for r in range(4):
        a(f"v_cndmask_b32 v{ONES + r}, 0, v{t}, vcc")
    a(f"s_lshl_b32 s{sT0}, s{sWc}, 1")
    a(f"s_add_u32 s{sT1}, s{sT0}, s{sWr2}")
    a(f"s_mul_i32 s{sT1}, s{sT1}, 384")
    a(f"s_add_u32 s{sT1}, s{sT1}, {CSO}")
    a(f"v_and_b32 v{t}, 1, v{vLane}")
    a(f"v_lshlrev_b32 v{t}, 6, v{t}")
    a(f"v_and_b32 v{t + 1}, 48, v{vLane}")
    a(f"v_add3_u32 v{vCw}, v{t}, v{t + 1}, s{sT1}")
    a(f"s_mul_i32 s{sT0}, s{sT0}, 384")
    a(f"s_add_u32 s{sT0}, s{sT0}, {CSO}")
    a(f"v_mul_u32_u24 v{t}, 384, v{t + 3}")
    a(f"v_and_b32 v{t + 1}, 31, v{vLane}")
    a(f"v_lshl_add_u32 v{t}, v{t + 1}, 2, v{t}")
    a(f"v_add_u32 v{vCr}, s{sT0}, v{t}")
    a(f"s_lshl_b32 s55, s34, 8")
    a(f"s_lshl_b32 s35, s{sCg}, 1")
    a(f"s_add_u32 s35, s35, s{sWc}")
    a(f"s_lshl_b32 s{sT0}, s35, 2")
    a(f"s_add_u32 s55, s55, s{sT0}")
    a(f"s_add_u32 s55, s55, {F4}")
    a(f"s_mul_i32 s34, s34, {2 * 86 * 1024}")
    a(f"s_mul_i32 s38, s35, 3")
    a(f"s_lshl_b32 s35, s38, 10")
    a("s_add_u32 s34, s34, s35")
    a(f"s_add_u32 s34, s34, {GF}")
    a(f"s_add_u32 s35, s34, {86 * 1024}")
    a(f"s_lshl_b32 s{sT0}, s{sWr2}, 12")
    a(f"s_add_u32 s{sT0}, s{sT0}, {XEO}")
    a(f"v_add_u32 v{vEr}, s{sT0}, v{vL16}")
    a(f"v_lshl_add_u32 v{vEr + 1}, v{vLane}, 3, s{sT0}")
    for r in range(12):
        a(f"v_mov_b32 v{CS + r}, 0")

    def reads(s):
        st, ss = divmod(s, 2)
        W = []
        for j in range(3):
            for half in range(2):
                reg, off = wl[j & 1].at((st % NW) * 12288 + ss * 6144 + half * 8 * 192 + j * 32)
                W.append(f"ds_read_b64_tr_b16 {vr(WF[s & 1] + 4 * j + 2 * half, 2)}, {reg} offset:{off}")
        X = [f"ds_read_b128 {vr(XF[s & 1] + 4 * i, 4)}, v{vXa} offset:{(st % NX) * 8192 + i * 2048 + ss * 1024}"
             for i in range(2)]
        return [X[0], W[0], W[1], X[1], W[2], W[3], W[4], W[5]]

    rt = {}

    def emit_reads(b, s, lo, hi):
        ops = reads(s)
        for k in range(lo, min(hi, 8)):
            rt[(s, k)] = b.lg(ops[k])

    def main(b, s, m):
        j, i = divmod(m, 2)
        d = ACC + 16 * m
        c = "0" if s == 0 else vr(d, 16)
        b(f"v_mfma_f32_32x32x16_bf16 {vr(d, 16)}, {vr(WF[s & 1] + 4 * j, 4)}, {vr(XF[s & 1] + 4 * i, 4)}, {c}")

    def csum(b, s, j):
        b(f"v_mfma_f32_16x16x32_bf16 {vr(CS + 4 * j, 4)}, {vr(WF[s & 1] + 4 * j, 4)}, {vr(ONES, 4)}, {vr(CS + 4 * j, 4)}")

    a(f"s_lshl_b32 s40, s{sRb}, 8")
    a(f"s_add_u32 s40, s40, {F3}")
    poll(a, 40, vT, "p4")
    a("s_barrier")
    stamp(a)
    emit_reads(a, 0, 0, 8)
    a(f"s_cmp_eq_u32 s{sWr2}, 1")
    a("s_cbranch_scc1 L_p4_odd")
    cuts = [0, 2, 4, 6, 8, 8, 8]
    need = [3, 3, 5, 5, 7, 7]
    rt0 = dict(rt)
    odd = fork(a)
    odd.label("L_p4_odd")
    for par, b in ((0, a), (1, odd)):
        rt.clear()
        rt.update(rt0)
        for s in range(31):
            if s % 2 == 1:
                b.wait(lg=rt[(s, 7)])
                b("s_barrier")
            for m in range(6):
                b.wait(lg=rt[(s, need[m])])
                if m % 2 == 0 and s % 2 == par:
                    csum(b, s, m // 2)
                main(b, s, m)
                emit_reads(b, s + 1, cuts[m], cuts[m + 1])
        b.wait_all(vm=False)
        if par == 1:
            for j in range(3):
                csum(b, 31, j)
    odd("s_branch L_p4_join")
    a.label("L_p4_join")
    main(a, 31, 0)
    for j in range(3):
        a(f"v_mov_b32 v{WF[0] + 4 * j + 2}, 0")
        a(f"v_mov_b32 v{WF[0] + 4 * j + 3}, 0")
    main(a, 31, 1)
    a("s_mov_b32 exec_lo, 0x00030003")
    a("s_mov_b32 exec_hi, 0x00030003")
    for j in range(3):
        a.lg(f"ds_write_b128 v{vCw}, {vr(CS + 4 * j, 4)} offset:{j * 128}")
    a("s_mov_b64 exec, -1")
    for i in range(2):
        a.lg(f"ds_read_b128 {vr(XE + 4 * i, 4)}, v{vEr} offset:{i * 2048}")
        a.lg(f"ds_read_b64 {vr(AS + 2 * i, 2)}, v{vEr + 1} offset:{i * 2048 + 1024}")
    main(a, 31, 2)
    main(a, 31, 3)
    a.wait_all(vm=False)
    a("s_barrier")
    for j in range(3):
        rt[("c", j)] = a.lg(f"ds_read_b32 v{vT + 1 + j}, v{vCr} offset:{j * 128}")
    main(a, 31, 4)
    main(a, 31, 5)
    for j in range(3):
        w = WF[0] + 4 * j
        a.wait(lg=rt[("c", j)])
        a(f"v_cvt_pk_bf16_f32 v{w + 1}, v{vT + 1 + j}, 0")
        a(f"v_lshlrev_b32 v{vT}, 16, v{w + 1}")
        a(f"v_sub_f32 v{vT}, v{vT + 1 + j}, v{vT}")
        a(f"v_cvt_pk_bf16_f32 v{w}, v{vT + 1 + j}, v{vT}")
    for j in range(3):
        for i in range(2):
            d = ACC + 32 * j + 16 * i
            a(f"v_mfma_f32_32x32x16_bf16 {vr(d, 16)}, {vr(WF[0] + 4 * j, 4)}, {vr(XE + 4 * i, 4)}, {vr(d, 16)}")
    stamp(a)
    a("s_nop 4")
    for j in range(3):
        a(f"s_cmp_ge_u32 s38, {86 - j}")
        a("s_cbranch_scc1 L_p4_pub")
        Gs = [(ACC + 32 * j + 16 * i + r, i) for i in range(2) for r in range(8)]
        for g, i in Gs[::2]:
            a(f"v_pk_mul_f32 {vr(g, 2)}, {vr(g, 2)}, {vr(AS + 2 * i, 2)} op_sel_hi:[1,0]")
        for g, i in Gs:
            a(f"v_exp_f32 v{g}, v{g}")
        for g, i in Gs[::2]:
            a(f"v_pk_fma_f32 {vr(g, 2)}, {vr(g, 2)}, {vr(AS + 2 * i, 2)}, {vr(AS + 2 * i, 2)} op_sel:[0,1,1] op_sel_hi:[1,1,1]")
        for g, i in Gs:
            a(f"v_rcp_f32 v{g}, v{g}")
        for g, i in Gs[::2]:
            a(f"v_pk_mul_f32 {vr(g, 2)}, {vr(g, 2)}, {vr(g + 8, 2)}")
        o = ACC + 32 * j + 8
        for i in range(8):
            a(f"v_cvt_pk_bf16_f32 v{o + i}, v{Gs[2 * i][0]}, v{Gs[2 * i + 1][0]}")
        stores(a, [f"buffer_store_dwordx4 {vr(o, 4)}, v{vL16}, {sr(sWS, 4)}, s34 offen offset:{j * 1024}",
                   f"buffer_store_dwordx4 {vr(o + 4, 4)}, v{vL16}, {sr(sWS, 4)}, s35 offen offset:{j * 1024}"])
    a.label("L_p4_pub")
    a("s_nop 7")
    stamp(a)
    publish(a, 55, vT)
    a.label("L_p4_skip_c")
    return odd


def gen_fused():
    name = KNAME
    a = Asm()
    a.raw(f".globl {name}")
    a.raw(".p2align 8")
    a.raw(f".type {name},@function")
    a.label(name)
    a("s_cmp_ge_u32 s2, 256")
    a(f"s_cbranch_scc1 L_done")
    stamp_real(a)
    stamp(a)
    if OPT.get("spin"):
        a("s_memrealtime s[98:99]")
    c1, odd1, l1, aux = phase1(a)
    fb = phase2(c1, l1, aux)
    c1(f"s_cmp_ge_u32 s{sWave}, 4")
    c1("s_cbranch_scc0 L_compute")
    h = fork(c1)
    c = fork(c1)
    c.label("L_compute")
    phase_res(c, h, True, pre_publish=55)
    odd = phase4(c, h)
    phase_res(c, h, False)
    stamp_flush(h)
    h("s_endpgm")
    c("s_cmp_lg_u32 s2, 0")
    c("s_cbranch_scc1 L_nogen")
    c(f"s_cmp_lg_u32 s{sWave}, 0")
    c("s_cbranch_scc1 L_nogen")
    c(f"v_mov_b32 v12, {GEN}")
    c(f"v_mov_b32 v13, s{sTag}")
    c("s_mov_b64 exec, 1")
    c(f"buffer_store_dword v13, v12, {sr(sWS, 4)}, 0 offen sc1")
    if OPT.get("spin"):
        c("s_load_dwordx2 s[92:93], s[0:1], 64")
        c("s_memrealtime s[96:97]")
        c("s_waitcnt lgkmcnt(0)")
        c("s_sub_u32 s96, s96, s98")
        c("s_mov_b32 s94, 256")
        c("s_mov_b32 s95, 0x00020000")
        c("v_mov_b32 v12, 0")
        c("v_mov_b32 v13, s96")
        c("buffer_store_dword v13, v12, s[92:95], 0 offen")
        c.label("L_dbg_spin")
        c("s_memrealtime s[96:97]")
        c("s_waitcnt lgkmcnt(0)")
        c("s_sub_u32 s96, s96, s98")
        c(f"s_cmp_lt_u32 s96, {OPT['spin']}")
        c("s_cbranch_scc1 L_dbg_spin")
    c.label("L_nogen")
    stamp_flush(c)
    c.label("L_done")
    c("s_endpgm")
    text = (a.text() + l1.text() + aux.text() + odd1.text() + c1.text() + h.text() + c.text() + odd.text() + fb.text())
    return name, text, descriptor(name, 168, 0, sgpr=102), (256, 576, 163840)


def build():
    name, text, desc, (g, b, lds) = gen_fused()
    ref = open(f"cdna_kernels/{NAME}.s.ref").read().split("\n")
    head = [l for l in ref if l.startswith(";") and "@launch" not in l]
    out = "\n".join(head) + "\n"
    out += f"; @launch grid=({g},1,1) block=({b},1,1) lds={lds}\n"
    out += '.amdgcn_target "amdgcn-amd-amdhsa--gfx950"\n.text\n'
    bad = check_hazards(text, name)
    out += text
    out += "L_code_end:\n"
    out += '.section .rodata,"a"\n.p2align 6\n' + desc
    if bad:
        print("hazards:", bad)
    return out


if __name__ == "__main__":
    path = sys.argv[1] if len(sys.argv) > 1 else f"cdna_kernels/{NAME}.s"
    for arg in sys.argv[2:]:
        if arg == "stamps":
            G.STAMPS = True
        else:
            k_, v_ = arg.split("=")
            OPT[k_] = int(v_)
    open(path, "w").write(build())
    print("wrote", path)
```

```python
import sys

import gen as G
from gen import (Asm, Drip, LdsAddr, OPT, MB, QF, KVF, OF, HF, ST, GF, WS_SIZE, LOG2E, NAME, f2u, hx, vr, sr, srd,
                 fork, half_sum, split_hi_lo, code_prefetch, descriptor, check_hazards)

FLG = 11 * MB
F2, F3, F4, XT = FLG, FLG + 8192, FLG + 12288, FLG + 20480
FL1, GEN, FG1 = FLG + 24576, FLG + 28672, FLG + 32768
KVL = 24 * MB
KNAME = NAME + "_kernel"
WS3 = [0, 8192, 16384, 24576, 65536, 73728, 81920, 90112]
RES3 = 155648
WS4 = [32768, 45056, 98304, 110592, 0, 12288, 57344, 69632, 81920]
WS5 = [0, 8192, 16384] + [8192 * i for i in range(4, 14)]
sTag = 53
OPT.update(dict(p3_a=3, p4_a=3, p5_a=5, p5_nw=11, p4_pf=13, p4_pre=7, p2_map=1, force_slow=0, p1_cnt=1, kv_nt=0, kv_lag=1, early_t=0, gf_late=0, gu_from=0, p1_s3=2, p1_er=3, p2_defer=0, p2_sched=0, ld=0, touch_out=1, touch2=1, k1_tout=11, p2_fine=0, p2_rot=1, p4_wi=2, sc="sc1"))

sWS, sWave, sHw = 12, 24, 29
sT0, sT1 = 30, 31
KX, KWO, KG, KU, KD, KO = 64, 68, 72, 74, 76, 78
vLane, vL16 = 1, 2


def LD():
    return ["sc1", "nt", "", "sc0 sc1", "sc0"][OPT["ld"]]


def stamp(a, force=False):
    if not G.STAMPS or (getattr(a, "nostamp", False) and not force):
        return
    i = getattr(a, "nstamp", 0)
    a.nstamp = i + 1
    assert i < 20, i
    a("s_memtime s[100:101]")
    a.wait_all(vm=False)
    a(f"s_mov_b32 s{80 + i}, s100")


def stamp_real(a):
    if not G.STAMPS:
        return
    i = getattr(a, "nstamp", 0)
    a.nstamp = i + 1
    a("s_memrealtime s[100:101]")
    a.wait_all(vm=False)
    a(f"s_mov_b32 s{80 + i}, s100")


def stamp_flush(a):
    if not G.STAMPS:
        return
    a.wait_all()
    stamp(a, True)
    stamp_real(a)
    a("s_mov_b64 exec, -1")
    a("s_lshl_b32 s58, s2, 3")
    a(f"s_add_u32 s58, s58, s{sWave}")
    a("s_lshl_b32 s58, s58, 7")
    a(f"s_add_u32 s58, s58, {G.DBGO + MB}")
    a("v_mov_b32 v1, 0")
    for i in range(a.nstamp):
        a(f"v_mov_b32 v2, s{80 + i}")
        a(f"buffer_store_dword v2, v1, {sr(sWS, 4)}, s58 offen offset:{4 * i}")
    a.wait_all()


LMODE = 163840 - 16
sMode = 54
_uid = [0]


def stores(a, ins, always_slow=False):
    if always_slow:
        for x in ins:
            a.vm(x + " sc1")
        return
    _uid[0] += 1
    u = _uid[0]
    a(f"s_cmp_eq_u32 s{sMode}, 0")
    a(f"s_cbranch_scc1 L_st_{u}_s")
    for x in ins:
        a.vm(x)
    a(f"s_branch L_st_{u}_j")
    a.label(f"L_st_{u}_s")
    for x in ins:
        a(x + " sc1")
    a.label(f"L_st_{u}_j")


def publish(a, sOff, vt, always_slow=False):
    a(f"v_mov_b32 v{vt}, 0")
    a(f"v_mov_b32 v{vt + 1}, s{sTag}")
    a("s_mov_b64 exec, 1")
    a.wait_all(lg=False)
    stores(a, [f"buffer_store_dword v{vt + 1}, v{vt}, {sr(sWS, 4)}, s{sOff} offen"], always_slow)
    a("s_mov_b64 exec, -1")


def poll(a, sOff, vt, uid, nflags=64):
    a(f"s_cmp_lg_u32 s{sWave}, 0")
    a(f"s_cbranch_scc1 L_poll_{uid}_go")
    a(f"v_lshlrev_b32 v{vt}, 2, v{vLane}")
    a("s_mov_b32 s59, 0x40000")
    if nflags < 64:
        a(f"s_mov_b64 exec, {hx((1 << nflags) - 1)}")
    a.label(f"L_poll_{uid}")
    a(f"buffer_load_dword v{vt + 1}, v{vt}, {sr(sWS, 4)}, s{sOff} offen sc1")
    a("s_sub_u32 s59, s59, 1")
    a("s_waitcnt vmcnt(0)")
    a(f"v_cmp_ne_u32 vcc, s{sTag}, v{vt + 1}")
    a("s_cmp_eq_u32 s59, 0")
    a(f"s_cbranch_scc1 L_poll_{uid}_x")
    a(f"s_cbranch_vccnz L_poll_{uid}")
    a.label(f"L_poll_{uid}_x")
    a("s_mov_b64 exec, -1")
    a.label(f"L_poll_{uid}_go")
    a("s_barrier")


def touch_setup(h):
    srd(h, 16, KWO, 512 * 1024)
    srd(h, 20, KG, 512 * 2752)
    srd(h, 48, KU, 512 * 2752)
    h(f"s_and_b32 s{sT0}, s2, 7")
    h(f"s_lshl_b32 s{sT1}, s{sT0}, 18")
    h(f"s_add_u32 s4, s{KX}, s{sT1}")
    h(f"s_addc_u32 s5, s{KX + 1}, 0")
    srd(h, 44, 4, 256 * 1024)
    h(f"s_mul_i32 s{sT0}, s{sT0}, {172 * 1024}")
    h(f"s_add_u32 s10, s{KD}, s{sT0}")
    h(f"s_addc_u32 s11, s{KD + 1}, 0")
    srd(h, 40, 10, 172 * 1024)
    h(f"s_lshr_b32 s{sT0}, s2, 3")
    h("v_lshlrev_b32 v3, 7, v1")


def touch_weights(h):
    k0 = OPT["gu_from"]
    n = -(-(512 - k0) * 2752 // (32 * 8192))
    if k0:
        per = -(-k0 * 2752 // 256 // 128) * 128
        assert per <= 8192
        h(f"s_mul_i32 s{sT1}, s2, {per}")
        h(f"v_add_u32 v4, s{sT1}, v3")
        nl = per // 128
        h(f"s_mov_b32 exec_lo, {hx((1 << min(nl, 32)) - 1)}")
        h(f"s_mov_b32 exec_hi, {hx((1 << max(nl - 32, 0)) - 1)}")
        for sq in (20, 48):
            h.vm(f"buffer_load_dword v5, v4, {sr(sq, 4)}, 0 offen")
        h("s_mov_b64 exec, -1")
    for sq, per, n_, base in ((16, 16384, 2, 0), (44, 8192, 1, 0), (40, 8192, 1, 0), (20, n * 8192, n, k0 * 2752 // 128 * 128),
                              (48, n * 8192, n, k0 * 2752 // 128 * 128)):
        if n_ == 0:
            continue
        h(f"s_mul_i32 s{sT1}, s{sT0}, {per}")
        if base:
            h(f"s_add_u32 s{sT1}, s{sT1}, {base}")
        h(f"v_add_u32 v4, s{sT1}, v3")
        for i in range(n_):
            h.vm(f"buffer_load_dword v5, v4, {sr(sq, 4)}, 0 offen")
            if i + 1 < n_:
                h("v_add_u32 v4, 0x2000, v4")


def phase1(a):
    sX, sW = 20, 16
    sWr, sWc, sCg, sRb = 25, 26, 27, 28
    sWL = 32
    sOnes = 41
    vT = 8
    NSLOT, SLOT, WBASE, NST = 7, 12288, 65536, 16
    CSO = WBASE + NSLOT * SLOT
    RSO = 155648
    XEO = 156672
    a("s_load_dwordx16 s[64:79], s[0:1], 0")
    a("s_load_dwordx2 s[8:9], s[0:1], 72")
    a(f"v_and_b32 v{vLane}, 63, v0")
    a(f"v_lshrrev_b32 v7, 6, v0")
    a(f"v_lshlrev_b32 v{vL16}, 4, v{vLane}")
    a(f"v_readfirstlane_b32 s{sWave}, v7")
    a(f"s_and_b32 s{sT0}, s2, 7")
    a(f"s_lshl_b32 s{sT0}, s{sT0}, 2")
    a(f"s_bfe_u32 s{sT1}, s2, 0x20003")
    a(f"s_add_u32 s{sRb}, s{sT0}, s{sT1}")
    a(f"s_lshr_b32 s{sCg}, s2, 5")
    a(f"s_and_b32 s{sHw}, s{sWave}, 3")
    a(f"s_cmp_eq_u32 s{sWave}, 8")
    a("s_cbranch_scc1 L_p1_aux")
    a(f"s_cmp_ge_u32 s{sWave}, 4")
    a(f"s_cbranch_scc0 L_p1_compute")

    x = fork(a)
    x.label("L_p1_aux")
    x("s_setprio 3")
    x(f"v_lshlrev_b32 v30, 7, v{vLane}")
    x(f"s_lshr_b32 s{sT0}, s2, 3")
    x(f"s_lshl_b32 s{sT0}, s{sT0}, 11")
    x(f"v_add_u32 v30, s{sT0}, v30")
    x("s_mov_b64 exec, 0xffff")
    code_prefetch(x, KNAME, 44, 30, 31, "p1")
    x("s_mov_b64 exec, -1")
    x("s_getreg_b32 s56, hwreg(HW_REG_XCC_ID, 0, 4)")
    x("s_and_b32 s57, s2, 7")
    x("s_lshl_b32 s57, s57, 8")
    x(f"s_add_u32 s57, s57, {XT}")
    x("s_lshr_b32 s58, s2, 3")
    x("s_lshl_b32 s58, s58, 2")
    x(f"v_mov_b32 v6, {GEN}")
    x("s_waitcnt lgkmcnt(0)")
    srd(x, sWS, 8, WS_SIZE)
    x.vm(f"buffer_load_dword v7, v6, {sr(sWS, 4)}, 0 offen")
    x("v_mov_b32 v6, s58")
    x("s_barrier")
    x("s_barrier")
    x.wait_all()
    x(f"v_readfirstlane_b32 s{sTag}, v7")
    x("s_nop 3")
    x(f"s_add_u32 s{sTag}, s{sTag}, 1")
    x(f"s_lshl_b32 s58, s{sTag}, 4")
    x("s_or_b32 s56, s56, s58")
    x("v_mov_b32 v7, s56")
    x("s_mov_b64 exec, 1")
    x.vm(f"buffer_store_dword v7, v6, {sr(sWS, 4)}, s57 offen sc1")
    x("s_mov_b32 exec_lo, -1")
    x("s_mov_b32 exec_hi, 0")
    x(f"v_lshlrev_b32 v6, 2, v{vLane}")
    for st in range(2, NST + 1):
        if st == 12:
            x("s_mov_b32 s59, 0x40000")
            x("s_waitcnt vmcnt(0)")
            x("s_branch L_xt_chk")
            x.label("L_xt_poll")
            x(f"buffer_load_dword v7, v6, {sr(sWS, 4)}, s57 offen sc1")
            x("s_sub_u32 s59, s59, 1")
            x("s_waitcnt vmcnt(0)")
            x.label("L_xt_chk")
            x("v_xor_b32 v8, s56, v7")
            x("v_cmp_lt_u32 vcc, 15, v8")
            x("s_cmp_eq_u32 s59, 0")
            x("s_cbranch_scc1 L_xt_done")
            x("s_cbranch_vccnz L_xt_poll")
            x.label("L_xt_done")
            x("v_cmp_ne_u32 vcc, 0, v8")
            x("s_nop 1")
            x("s_cmp_eq_u64 vcc, 0")
            x(f"s_cselect_b32 s{sMode}, {0 if OPT['force_slow'] else 1}, 0")
            x(f"v_mov_b32 v6, {LMODE}")
            x(f"v_mov_b32 v8, s{sMode}")
            x(f"v_mov_b32 v9, s{sTag}")
            x("ds_write_b64 v6, v[8:9]")
            x("s_waitcnt lgkmcnt(0)")
            x("s_mov_b64 exec, -1")
        x("s_barrier")
        if OPT["early_t"] and st == OPT["early_t"]:
            touch_setup(x)
            touch_weights(x)
        if st == 8:
            x(f"buffer_load_dword v7, v6, {sr(sWS, 4)}, s57 offen sc1")

    h = fork(a)
    vWoff, vXg, vSr, vXe, vRs = 3, 4, 6, 20, 21
    vS, vQ, vM, vR = 22, 23, 24, 25
    XB = 32
    h(f"v_lshrrev_b32 v{vT}, 3, v{vLane}")
    h(f"v_and_b32 v{vT + 1}, 7, v{vLane}")
    h(f"v_lshrrev_b32 v{vT + 2}, 1, v{vT}")
    h(f"v_xor_b32 v{vT + 2}, v{vT + 2}, v{vT + 1}")
    h(f"v_lshlrev_b32 v{vT + 2}, 4, v{vT + 2}")
    h(f"v_lshl_add_u32 v{vXg}, v{vT}, 10, v{vT + 2}")
    h(f"v_xor_b32 v{vXg + 1}, 64, v{vXg}")
    h(f"v_add_u32 v{vXg + 1}, {8 * 1024 - 1024}, v{vXg + 1}")
    h(f"s_lshl_b32 s34, s{sRb}, 16")
    h(f"s_lshl_b32 s{sT0}, s{sHw}, 14")
    h(f"s_add_u32 s34, s34, s{sT0}")
    h(f"s_lshl_b32 s36, s{sHw}, 11")
    h(f"v_lshrrev_b32 v{vT + 2}, 2, v{vLane}")
    h(f"v_and_b32 v{vT + 2}, 4, v{vT + 2}")
    h(f"v_xor_b32 v{vT + 2}, v{vT + 2}, v{vT + 1}")
    h(f"v_lshlrev_b32 v{vT + 2}, 4, v{vT + 2}")
    h(f"v_mul_u32_u24 v{vT + 3}, 3072, v{vT}")
    h(f"s_mul_i32 s{sT0}, s{sHw}, {8 * 3072}")
    h(f"s_lshl_b32 s{sT1}, s{sCg}, 7")
    h(f"s_add_u32 s{sT0}, s{sT0}, s{sT1}")
    h(f"v_add3_u32 v{vWoff}, v{vT + 3}, v{vT + 2}, s{sT0}")
    h(f"s_mul_i32 s{sWL}, s{sHw}, 3072")
    h("s_waitcnt lgkmcnt(0)")
    srd(h, sX, KX, 2048 * 1024)
    srd(h, sW, KX + 2, 512 * 3072)
    d2 = OPT.get("det") == 2
    if d2:
        h.nstamp = 7
        stamp(h)
    dr = Drip(h)

    def x_dma(c, key):
        dr.add(key, [f"s_add_u32 m0, s36, {c * 8192}", f"s_add_u32 s43, s34, {c * 128}"],
               f"buffer_load_dwordx4 v{vXg}, {sr(sX, 4)}, s43 offen lds")
        dr.add(key, [], f"buffer_load_dwordx4 v{vXg + 1}, {sr(sX, 4)}, s43 offen offset:1024 lds")

    def issue(st):
        if st % 2 == 0:
            x_dma(st // 2, st)
        for seg in range(3):
            pre = [f"s_add_u32 m0, s{sWL}, {WBASE + (st % NSLOT) * SLOT}", f"s_mov_b32 s42, {32 * st * 3072}"] if seg == 0 else []
            dr.add(st, pre, f"buffer_load_dwordx4 v{vWoff}, {sr(sW, 4)}, s42 offen offset:{seg * 1024} lds")

    for st in range(NSLOT):
        issue(st)
    AHEAD = OPT["k1_d"]
    dr.through(OPT["k1_t"] - 1)

    def s3(lo, hi):
        for i in range(lo, hi):
            h(f"s_load_dword s52, s[50:51], {(i % 8) * 131072 + 384}")
            h(f"s_load_dword s52, s[50:51], {(i % 8) * 131072 + 448}")

    if OPT["p1_s3"]:
        h(f"s_lshr_b32 s{sT0}, s2, 3")
        h(f"s_lshl_b32 s{sT0}, s{sT0}, 2")
        h(f"s_add_u32 s{sT0}, s{sT0}, s{sHw}")
        h(f"s_lshl_b32 s{sT0}, s{sT0}, 10")
        h(f"s_add_u32 s50, s{KX + 2}, s{sT0}")
        h(f"s_addc_u32 s51, s{KX + 3}, 0")
        s3(0, 7)
    if OPT["k1_touch"]:
        h(f"s_lshl_b32 s{sT0}, s2, 2")
        h(f"s_add_u32 s{sT0}, s{sT0}, s{sHw}")
        h(f"s_mul_i32 s{sT1}, s{sT0}, 1536")
        h(f"s_lshl_b32 s{sT0}, s{sT0}, 11")
        h(f"v_lshlrev_b32 v30, 7, v{vLane}")
        h("s_mov_b64 exec, 0xfff")
        h.vm(f"buffer_load_dword v31, v30, {sr(sW, 4)}, s{sT1} offen")
        h("s_mov_b64 exec, 0xffff")
        h.vm(f"buffer_load_dword v31, v30, {sr(sX, 4)}, s{sT0} offen")
        h("s_mov_b64 exec, -1")
    dr.through(AHEAD - 1)
    srd(h, sWS, 8, WS_SIZE)
    st_tok = {}
    if d2:
        stamp(h)
    for st in range(NST):
        dr.wait(st)
        if d2 and st in (4, 10):
            stamp(h)
        h("s_barrier")
        if d2 and st in (0, 2, 4, 8, 10, 12, 15):
            stamp(h)
        if st == 0 and OPT["p1_s3"]:
            s3(7, 8)
            h(f"s_add_u32 s50, s50, {8 * 131072}")
            h("s_addc_u32 s51, s51, 0")
            s3(8, 12)
        if st >= 1 and st + NSLOT - 1 < NST:
            issue(st + NSLOT - 1)
        tgt = min(NST - 1, st + AHEAD + min(st + 1, OPT["k1_g"]))
        while dr.q and dr.q[0][0] <= tgt:
            dr.emit()
        if st == OPT.get("k1_tout", -1):
            h(f"s_lshl_b32 s{sT0}, s{sCg}, 2")
            h(f"s_add_u32 s{sT0}, s{sT0}, s{sHw}")
            h(f"s_lshl_b32 s{sT0}, s{sT0}, 5")
            h(f"s_add_u32 s{sT0}, s{sT0}, s{sRb}")
            h(f"s_lshl_b32 s{sT1}, s{sT0}, 12")
            h(f"s_add_u32 s{sT1}, s{sT1}, {KVL}")
            h(f"s_lshl_b32 s{sT0}, s{sT0}, 11")
            if QF:
                h(f"s_add_u32 s{sT0}, s{sT0}, {QF}")
            h(f"v_lshlrev_b32 v30, 7, v{vLane}")
            h("s_mov_b64 exec, 0xffff")
            h.vm(f"buffer_load_dword v31, v30, {sr(sWS, 4)}, s{sT0} offen")
            h("s_mov_b32 exec_lo, -1")
            h.vm(f"buffer_load_dword v31, v30, {sr(sWS, 4)}, s{sT1} offen")
            h("s_mov_b64 exec, -1")
    h(f"v_mov_b32 v{vT}, {LMODE}")
    h.lg(f"ds_read_b64 {vr(vT + 2, 2)}, v{vT}")
    h.wait_all(vm=False)
    h(f"v_readfirstlane_b32 s{sMode}, v{vT + 2}")
    h(f"v_readfirstlane_b32 s{sTag}, v{vT + 3}")
    h("s_barrier")
    h.wait_all()
    h.nstamp = getattr(h, "nstamp", 0) + 3
    a = fork(a)
    a.label("L_p1_compute")

    vXrd = [3, 4, 5, 6]
    vKoff, vVoff = 20, 21
    vWrd = [22, 23, 24]
    vCw, vCr, vEr, vRl, vRr = 25, 26, 27, 28, 29
    XF = [32, 36]
    WF = [40, 52]
    CS, ONES, XE = 64, 76, 80
    RV = 84
    accQ, accK, accV = 104, 120, 136
    SQ = 152
    a(f"s_lshr_b32 s{sWr}, s{sHw}, 1")
    a(f"s_and_b32 s{sWc}, s{sHw}, 1")
    a(f"v_and_b32 v{vT}, 31, v{vLane}")
    a(f"v_lshrrev_b32 v{vT + 1}, 5, v{vLane}")
    a(f"v_bfe_u32 v{vT + 2}, v{vLane}, 1, 3")
    a(f"v_xor_b32 v{vT + 2}, v{vT + 2}, v{vT + 1}")
    a(f"v_lshlrev_b32 v{vT + 2}, 4, v{vT + 2}")
    a(f"v_lshl_add_u32 v{vT + 2}, v{vT}, 7, v{vT + 2}")
    a(f"s_lshl_b32 s{sT0}, s{sWr}, 12")
    a(f"v_add_u32 v{vXrd[0]}, s{sT0}, v{vT + 2}")
    for ss in range(1, 4):
        a(f"v_xor_b32 v{vXrd[ss]}, {ss * 32}, v{vXrd[0]}")
    a(f"v_mul_u32_u24 v{vT + 2}, 3072, v{vT + 1}")
    a(f"v_bfe_u32 v{vT + 3}, v{vLane}, 2, 2")
    a(f"v_lshl_add_u32 v{vT + 2}, v{vT + 3}, 7, v{vT + 2}")
    a(f"v_lshrrev_b32 v{vT + 3}, 1, v{vT + 3}")
    a(f"v_xor_b32 v{vT + 3}, s{sWc}, v{vT + 3}")
    a(f"v_lshl_add_u32 v{vT + 2}, v{vT + 3}, 6, v{vT + 2}")
    a(f"v_bfe_u32 v{vT + 4}, v{vLane}, 4, 1")
    a(f"v_lshl_add_u32 v{vT + 2}, v{vT + 4}, 5, v{vT + 2}")
    a(f"v_and_b32 v{vT + 3}, 3, v{vLane}")
    a(f"v_lshl_add_u32 v{vWrd[0]}, v{vT + 3}, 3, v{vT + 2}")
    wl = LdsAddr(a, vWrd)
    wl.setup(a)
    a(f"v_xor_b32 v{vT + 2}, v{vT + 4}, v{vLane}")
    a(f"v_and_b32 v{vT + 2}, 1, v{vT + 2}")
    a(f"v_cmp_eq_u32 vcc, 0, v{vT + 2}")
    a(f"v_mov_b32 v{vT + 2}, 0x3f803f80")
    a("s_nop 0")
    for r in range(4):
        a(f"v_cndmask_b32 v{ONES + r}, 0, v{vT + 2}, vcc")
    a(f"s_lshl_b32 s{sT0}, s{sWc}, 1")
    a(f"s_add_u32 s{sT1}, s{sT0}, s{sWr}")
    a(f"s_mul_i32 s{sT1}, s{sT1}, 384")
    a(f"s_add_u32 s{sT1}, s{sT1}, {CSO}")
    a(f"v_and_b32 v{vT + 2}, 1, v{vLane}")
    a(f"v_lshlrev_b32 v{vT + 2}, 6, v{vT + 2}")
    a(f"v_and_b32 v{vT + 3}, 48, v{vLane}")
    a(f"v_add3_u32 v{vCw}, v{vT + 2}, v{vT + 3}, s{sT1}")
    a(f"s_mul_i32 s{sT0}, s{sT0}, 384")
    a(f"s_add_u32 s{sT0}, s{sT0}, {CSO}")
    a(f"v_mul_u32_u24 v{vT + 2}, 384, v{vT + 1}")
    a(f"v_lshl_add_u32 v{vT + 2}, v{vT}, 2, v{vT + 2}")
    a(f"v_add_u32 v{vCr}, s{sT0}, v{vT + 2}")
    a(f"s_lshl_b32 s{sT0}, s{sHw}, 9")
    a(f"s_add_u32 s{sT0}, s{sT0}, {XEO}")
    a(f"v_lshl_add_u32 v{vEr}, v{vLane}, 3, s{sT0}")
    a(f"v_xor_b32 v31, 512, v{vEr}")
    a(f"s_lshl_b32 s{sT0}, s{sHw}, 7")
    a(f"s_add_u32 s{sT0}, s{sT0}, {RSO}")
    a(f"v_lshl_add_u32 v{vRl}, v{vT}, 2, s{sT0}")
    a(f"v_lshl_add_u32 v{vRr}, v{vT + 1}, 4, s{sT0}")
    a(f"s_mov_b32 s{sOnes}, 0x3f803f80")
    a(f"v_mov_b32 v{SQ}, 0")
    a(f"v_mov_b32 v{SQ + 1}, 0")
    a(f"v_and_b32 v{vT + 2}, 0x33, v{vLane}")
    a(f"v_bfe_u32 v{vT + 3}, v{vLane}, 2, 1")
    a(f"v_lshl_or_b32 v{vT + 2}, v{vT + 3}, 3, v{vT + 2}")
    a(f"v_bfe_u32 v{vT + 3}, v{vLane}, 3, 1")
    a(f"v_lshl_or_b32 v{vT + 2}, v{vT + 3}, 2, v{vT + 2}")
    a(f"v_lshlrev_b32 v{vKoff}, 4, v{vT + 2}")
    a(f"v_lshlrev_b32 v{vT + 2}, 17, v{vT + 4}")
    a(f"v_lshl_add_u32 v{vT + 2}, v{vT + 1}, 8, v{vT + 2}")
    a(f"v_and_b32 v{vT + 3}, 15, v{vLane}")
    a(f"v_lshl_add_u32 v{vVoff}, v{vT + 3}, 4, v{vT + 2}")
    a(f"s_lshl_b32 s{sT0}, s{sCg}, 2")
    a(f"s_lshl_b32 s{sT1}, s{sWc}, 1")
    a(f"s_add_u32 s{sT0}, s{sT0}, s{sT1}")
    a(f"s_lshl_b32 s{sT1}, s{sRb}, 1")
    a(f"s_add_u32 s{sT1}, s{sT1}, s{sWr}")
    a(f"s_lshl_b32 s46, s{sT0}, 16")
    a(f"s_lshl_b32 s47, s{sT1}, 10")
    a(f"s_add_u32 s46, s46, s47")
    if QF:
        a(f"s_add_u32 s46, s46, {QF}")
    a(f"s_add_u32 s47, s46, 65536")
    a(f"s_lshl_b32 s36, s{sT0}, 17")
    a(f"s_lshl_b32 s37, s{sT1}, 11")
    a(f"s_add_u32 s36, s36, s37")
    a(f"s_add_u32 s36, s36, {KVF}")
    a(f"s_add_u32 s37, s36, 131072")
    for r in range(12):
        a(f"v_mov_b32 v{CS + r}, 0")
    a("s_waitcnt lgkmcnt(0)")
    srd(a, sWS, 8, WS_SIZE)
    a(f"s_lshl_b32 s{sT0}, s{sCg}, 1")
    a(f"s_add_u32 s{sT0}, s{sT0}, s{sWc}")
    a(f"s_and_b32 s{sT1}, s{sRb}, 3")
    a(f"s_lshl_b32 s{sT1}, s{sT1}, 1")
    a(f"s_add_u32 s{sT1}, s{sT1}, s{sWr}")
    a(f"s_lshl_b32 s{sT1}, s{sT1}, 2")
    a("s_and_b32 s38, s2, 7")
    a("s_lshl_b32 s48, s38, 9")
    a(f"s_lshl_b32 s39, s{sT0}, 5")
    a("s_add_u32 s48, s48, s39")
    a(f"s_add_u32 s48, s48, s{sT1}")
    a(f"s_add_u32 s48, s48, {FL1}")
    a(f"s_lshl_b32 s49, s{sT0}, 10")
    a("s_lshl_b32 s39, s38, 7")
    a("s_add_u32 s49, s49, s39")
    a(f"s_add_u32 s49, s49, s{sT1}")
    a(f"s_add_u32 s49, s49, {FG1}")
    a(f"s_add_u32 s38, s36, {KVL - KVF}")
    a(f"s_add_u32 s39, s37, {KVL - KVF}")
    a(f"v_mov_b32 v30, {LMODE}")

    def reads(s):
        st, ss = divmod(s, 2)
        ops = [f"ds_read_b128 {vr(XF[s & 1], 4)}, v{vXrd[s & 3]} offset:{(s >> 2) * 8192}"]
        for seg in range(3):
            for half in range(2):
                reg, off = wl.at(WBASE + (st % NSLOT) * SLOT + ss * 6144 + seg * 1024 + half * 512)
                ops.append(f"ds_read_b64_tr_b16 {vr(WF[s & 1] + 4 * seg + 2 * half, 2)}, {reg} offset:{off}")
        return ops

    rt = {}

    def emit_reads(b, s, lo, hi):
        ops = reads(s)
        for k in range(lo, min(hi, 7)):
            rt[(s, k)] = b.lg(ops[k])

    a("s_barrier")
    stamp(a)
    emit_reads(a, 0, 0, 7)
    a(f"s_cmp_lg_u32 s{sWr}, s{sWc}")
    a("s_cbranch_scc1 L_p1_odd")
    rt0 = dict(rt)
    odd = fork(a)
    odd.label("L_p1_odd")
    acc = [accQ, accK, accV]

    def mm(b, j, w, x, first=False):
        c = "0" if first else vr(acc[j], 16)
        ops = (vr(w, 4), vr(x, 4)) if j < 2 else (vr(x, 4), vr(w, 4))
        b(f"v_mfma_f32_32x32x16_bf16 {vr(acc[j], 16)}, {ops[0]}, {ops[1]}, {c}")

    def csum(b, s, j):
        b(f"v_mfma_f32_16x16x32_bf16 {vr(CS + 4 * j, 4)}, {vr(WF[s & 1] + 4 * j, 4)}, {vr(ONES, 4)}, {vr(CS + 4 * j, 4)}")

    def stats(b, s):
        for r in range(4):
            b(f"v_dot2_f32_bf16 v{SQ}, v{XF[s & 1] + r}, s{sOnes}, v{SQ}")
            b(f"v_dot2_f32_bf16 v{SQ + 1}, v{XF[s & 1] + r}, v{XF[s & 1] + r}, v{SQ + 1}")

    for par, b in ((0, a), (1, odd)):
        rt.clear()
        rt.update(rt0)
        for s in range(31):
            if s % 2 == 1:
                b.wait(lg=rt[(s, 6)])
                b("s_barrier")
            cutp = [0, 3, 5, 7]
            for j in range(3):
                b.wait(lg=rt[(s, 2 + 2 * j)])
                if s % 2 == par:
                    csum(b, s, j)
                mm(b, j, WF[s & 1] + 4 * j, XF[s & 1], s == 0)
                emit_reads(b, s + 1, cutp[j], cutp[j + 1])
            if s % 2 != par:
                stats(b, s)
            if s == 27:
                b.lg("ds_read_b64 v[102:103], v30")
        b.wait_all(vm=False)
        if par == 1:
            for j in range(3):
                csum(b, 31, j)
        else:
            stats(b, 31)
    odd("s_branch L_p1_join")
    a.label("L_p1_join")
    mm(a, 0, WF[1], XF[1])
    a(f"v_readfirstlane_b32 s{sMode}, v102")
    a(f"v_readfirstlane_b32 s{sTag}, v103")
    a(f"v_mov_b32 v{SQ + 2}, v{SQ}")
    a(f"v_mov_b32 v{SQ + 3}, v{SQ + 1}")
    a(f"v_mov_b32 v{XE + 2}, 0")
    a(f"v_permlane32_swap_b32 v{SQ}, v{SQ + 2}")
    a(f"v_permlane32_swap_b32 v{SQ + 1}, v{SQ + 3}")
    a(f"v_mov_b32 v{XE + 3}, 0")
    a(f"v_add_f32 v{SQ}, v{SQ}, v{SQ + 2}")
    a(f"v_add_f32 v{SQ + 1}, v{SQ + 1}, v{SQ + 3}")
    a.lg(f"ds_write_b64 v{vEr}, {vr(SQ, 2)}")
    a("s_mov_b32 exec_lo, 0x00030003")
    a("s_mov_b32 exec_hi, 0x00030003")
    for j in range(3):
        a.lg(f"ds_write_b128 v{vCw}, {vr(CS + 4 * j, 4)} offset:{j * 128}")
    a("s_mov_b64 exec, -1")
    mm(a, 1, WF[1] + 4, XF[1])
    for j in range(3):
        a(f"v_mov_b32 v{WF[0] + 4 * j + 2}, 0")
        a(f"v_mov_b32 v{WF[0] + 4 * j + 3}, 0")
    a.wait_all(vm=False)
    a("s_barrier")
    ts = a.lg(f"ds_read_b64 {vr(SQ + 2, 2)}, v31")
    for j in range(3):
        rt[("c", j)] = a.lg(f"ds_read_b32 v{vT + 4 + j}, v{vCr} offset:{j * 128}")
    mm(a, 2, WF[1] + 8, XF[1])
    stamp(a)
    a.wait(lg=ts)
    a(f"v_add_f32 v{SQ}, v{SQ}, v{SQ + 2}")
    a(f"v_add_f32 v{SQ + 1}, v{SQ + 1}, v{SQ + 3}")
    a(f"v_mul_f32 v{SQ}, {hx(f2u(-1.0 / 512))}, v{SQ}")
    a(f"v_mul_f32 v{SQ + 1}, {hx(f2u(1.0 / 512))}, v{SQ + 1}")
    split_hi_lo(a, SQ, XE, vT, vT + 1)
    a(f"v_fma_f32 v{SQ + 1}, -v{SQ}, v{SQ}, v{SQ + 1}")
    a(f"v_cvt_pk_bf16_f32 v{XE + 1}, v{vT}, 0")
    a(f"v_max_f32 v{SQ + 1}, 0, v{SQ + 1}")
    a(f"v_add_f32 v{SQ + 1}, {hx(f2u(1e-5))}, v{SQ + 1}")
    a(f"v_rsq_f32 v100, v{SQ + 1}")
    for j in range(3):
        w = WF[0] + 4 * j
        a.wait(lg=rt[("c", j)])
        a(f"v_cvt_pk_bf16_f32 v{w + 1}, v{vT + 4 + j}, 0")
        a(f"v_lshlrev_b32 v{vT}, 16, v{w + 1}")
        a(f"v_sub_f32 v{vT}, v{vT + 4 + j}, v{vT}")
        a(f"v_cvt_pk_bf16_f32 v{w}, v{vT + 4 + j}, v{vT}")
        if j == 0:
            a.lg(f"ds_write_b32 v{vRl}, v100")
    for j in range(3):
        mm(a, j, WF[0] + 4 * j, XE)
    a(f"v_mul_f32 v101, {hx(f2u(0.25 * LOG2E))}, v100")
    for g in range(4):
        trv = a.lg(f"ds_read_b128 {vr(RV + 4 * g, 4)}, v{vRr} offset:{g * 32}")
    a("s_nop 4")
    P = 32
    for r in range(0, 16, 2):
        a(f"v_pk_mul_f32 {vr(accQ + r, 2)}, {vr(accQ + r, 2)}, v[100:101] op_sel:[0,1] op_sel_hi:[1,1]")
    for i in range(8):
        a(f"v_cvt_pk_bf16_f32 v{P + i}, v{accQ + 2 * i}, v{accQ + 2 * i + 1}")
    stores(a, [f"buffer_store_dwordx4 {vr(P, 4)}, v{vL16}, {sr(sWS, 4)}, s46 offen",
               f"buffer_store_dwordx4 {vr(P + 4, 4)}, v{vL16}, {sr(sWS, 4)}, s47 offen"])
    for r in range(0, 16, 2):
        a(f"v_pk_mul_f32 {vr(accK + r, 2)}, {vr(accK + r, 2)}, v[100:101] op_sel_hi:[1,0]")
    for i in range(8):
        a(f"v_cvt_pk_bf16_f32 v{P + 8 + i}, v{accK + 2 * i}, v{accK + 2 * i + 1}")
    stores(a, [f"buffer_store_dwordx4 {vr(P + 8, 4)}, v{vKoff}, {sr(sWS, 4)}, s38 offen",
               f"buffer_store_dwordx4 {vr(P + 12, 4)}, v{vKoff}, {sr(sWS, 4)}, s39 offen"])
    a.wait(lg=trv)
    for r in range(0, 16, 2):
        a(f"v_pk_mul_f32 {vr(accV + r, 2)}, {vr(accV + r, 2)}, {vr(RV + r, 2)}")
    for i in range(8):
        a(f"v_cvt_pk_bf16_f32 v{P + 16 + i}, v{accV + 2 * i}, v{accV + 2 * i + 1}")
    stores(a, [f"buffer_store_dwordx4 {vr(P + 16, 4)}, v{vVoff}, {sr(sWS, 4)}, s38 offen offset:1024",
               f"buffer_store_dwordx4 {vr(P + 20, 4)}, v{vVoff}, {sr(sWS, 4)}, s38 offen offset:1536"])
    loc = a.vm_issued - 1
    a.vm(f"buffer_store_dwordx4 {vr(P + 8, 4)}, v{vKoff}, {sr(sWS, 4)}, s36 offen sc1")
    a.vm(f"buffer_store_dwordx4 {vr(P + 12, 4)}, v{vKoff}, {sr(sWS, 4)}, s37 offen sc1")
    a.vm(f"buffer_store_dwordx4 {vr(P + 16, 4)}, v{vVoff}, {sr(sWS, 4)}, s36 offen offset:1024 sc1")
    a.vm(f"buffer_store_dwordx4 {vr(P + 20, 4)}, v{vVoff}, {sr(sWS, 4)}, s36 offen offset:1536 sc1")
    stamp(a)
    a(f"v_mov_b32 v{vT}, 0")
    a(f"v_mov_b32 v{vT + 1}, s{sTag}")
    a("s_mov_b64 exec, 1")
    if OPT["p1_cnt"]:
        a.wait(vm=loc)
    else:
        a.wait_all(lg=False)
    stores(a, [f"buffer_store_dword v{vT + 1}, v{vT}, {sr(sWS, 4)}, s48 offen"])
    a("s_mov_b64 exec, -1")
    return a, odd, h, x


def phase2(a, l, h):
    sHead, sQb, sKh, sQs = 25, 26, 27, 28
    sVm = 34
    vKrd, vVrd, vIdx, vXw, vXr = 3, 4, 5, 6, 7
    Qf = [8, 12]
    Kf, Vf = 16, 32
    S = [64, 80]
    O = [96, 112]
    NEG = 128
    T = 144
    XCH = 131072
    BARS, CB = [[6, 12, 28], {2: 1, 4: 3}] if OPT["p2_sched"] == 0 else [[6, 14, 22, 36], {2: 1, 3: 2, 5: 4}]
    SYN = XCH + 7 * 3072 + 2048 + 4
    h(f"v_mov_b32 v22, {SYN}")
    h("v_mov_b32 v23, 0")
    h("ds_write_b32 v22, v23")
    h("ds_write_b32 v22, v23 offset:4")
    h("ds_write_b32 v22, v23 offset:8")

    def ready(n):
        h(f"v_mov_b32 v23, {n}")
        h("ds_write_b32 v22, v23")

    def wait_prog(k):
        h("s_mov_b32 s59, 0x100000")
        h.label(f"L_prog{k}")
        h(f"ds_read_b32 v24, v22 offset:{4 + 4 * k}")
        h("s_sub_u32 s59, s59, 1")
        h("s_waitcnt lgkmcnt(0)")
        h("v_readfirstlane_b32 s36, v24")
        h("s_cmp_eq_u32 s59, 0")
        h(f"s_cbranch_scc1 L_prog{k}_x")
        h("s_cmp_ge_u32 s36, 512")
        h(f"s_cbranch_scc1 L_prog{k}_x")
        h("s_sleep 4")
        h(f"s_branch L_prog{k}")
        h.label(f"L_prog{k}_x")

    h(f"s_lshr_b32 s{sHead}, s2, 3")
    h(f"s_lshl_b32 s33, s{sHead}, 17")
    h(f"s_add_u32 s33, s33, {KVF}")
    h(f"s_lshr_b32 s61, s{sHead}, 1")
    h("s_lshl_b32 s61, s61, 10")
    h(f"s_add_u32 s61, s61, {FG1}")
    h(f"v_lshrrev_b32 v6, 3, v{vLane}")
    h("v_lshlrev_b32 v6, 7, v6")
    h(f"v_and_b32 v7, 7, v{vLane}")
    h("v_lshl_add_u32 v6, v7, 2, v6")
    h("s_mov_b64 s[62:63], 0")
    h("s_mov_b32 s59, 0x40000")
    h("s_waitcnt lgkmcnt(0)")
    h("s_barrier")
    h.nostamp = OPT.get("det") != 3
    stamp(h)
    ctok = {}
    for c in range(1, 9):
        h(f"s_add_u32 s36, s2, {c}")
        h("s_and_b32 s36, s36, 7")
        h("s_lshl_b32 s36, s36, 3")
        h("s_bitcmp1_b64 s[62:63], s36")
        h(f"s_cbranch_scc1 L_g1_have{c}")
        h.label(f"L_g1_poll{c}")
        h(f"buffer_load_dword v7, v6, {sr(sWS, 4)}, s61 offen sc1")
        h("s_sub_u32 s59, s59, 1")
        h("s_waitcnt vmcnt(0)")
        if c >= 2:
            ready(c - 1)
        h(f"v_cmp_eq_u32 vcc, s{sTag}, v7")
        h("s_cmp_eq_u32 s59, 0")
        h("s_cselect_b64 s[62:63], -1, vcc")
        h("s_cselect_b32 s59, 1, s59")
        for sh in (1, 2, 4):
            h(f"s_lshr_b64 s[34:35], s[62:63], {sh}")
            h("s_and_b64 s[62:63], s[62:63], s[34:35]")
        h("s_bitcmp1_b64 s[62:63], s36")
        h(f"s_cbranch_scc0 L_g1_poll{c}")
        h.label(f"L_g1_have{c}")
        if c in (1, 2, 4, 8):
            stamp(h)
        if c == 8:
            break
        h("s_lshl_b32 s36, s36, 11")
        h("s_add_u32 s36, s36, s33")
        for half in range(2):
            for q in range(2):
                h(f"s_mov_b32 m0, {half * 65536 + c * 8192 + q * 4096}")
                h(f"s_add_u32 s37, s36, {half * 8192 + q * 4096}")
                for i in range(4):
                    ctok[c] = h.vm(f"buffer_load_dwordx4 v{vL16}, {sr(sWS, 4)}, s37 offen offset:{i * 1024} sc1{' nt' if OPT['kv_nt'] else ''} lds")
        lag = 1 if c <= 2 else OPT["kv_lag"]
        if c - lag >= 1:
            h.wait(vm=ctok[c - lag])
            ready(c - lag)
    if not OPT['early_t']:
        touch_setup(h)
    h(f"v_lshrrev_b32 v8, 3, v{vLane}")
    h(f"v_and_b32 v9, 7, v{vLane}")
    h(f"v_lshrrev_b32 v10, 2, v{vLane}")
    h("v_and_b32 v10, 4, v10")
    h("v_xor_b32 v10, v10, v9")
    h("v_lshlrev_b32 v10, 4, v10")
    h("v_lshl_add_u32 v10, v8, 10, v10")
    h("v_lshrrev_b32 v11, 1, v8")
    h("v_xor_b32 v11, v11, v9")
    h("v_lshlrev_b32 v11, 4, v11")
    h("v_lshl_add_u32 v11, v8, 10, v11")
    h("v_xor_b32 v12, 64, v11")
    h(f"v_and_b32 v13, 2, v{vLane}")
    h("v_lshlrev_b32 v13, 5, v13")
    h("v_sub_u32 v13, 32, v13")
    h("s_lshr_b32 s61, s2, 4")
    h("s_mul_i32 s61, s61, 192")
    for i in range(3):
        h(f"v_add_u32 v14, {64 * i}, v{vLane}")
        h("v_mul_u32_u24 v14, 171, v14")
        h("v_lshrrev_b32 v14, 11, v14")
        h(f"v_mul_u32_u24 v14, {2752 - 192}, v14")
        h(f"v_add3_u32 v{16 + i}, v{vL16}, v14, s61")
        h(f"v_add_u32 v{19 + i}, v{16 + i}, v13")
    h("s_bfe_u32 s60, s2, 0x30003")
    h("s_lshl_b32 s60, s60, 7")
    h.wait(vm=ctok[7])
    ready(7)
    stamp(h)
    if not OPT['early_t']:
        touch_weights(h)
    if OPT["touch_out"]:
        h("s_and_b32 s58, s2, 7")
        for base, gsz, per, n in ((HF, 262144, 8192, 1), (GF, 8 * 86 * 1024, 22016, 3))[:1 if OPT["gf_late"] else 2]:
            h(f"s_mul_i32 s{sT1}, s{sT0}, {per}")
            h(f"s_mul_i32 s36, s58, {gsz}")
            h(f"s_add_u32 s36, s36, s{sT1}")
            h(f"s_add_u32 s36, s36, {base}")
            for i in range(n):
                h.vm(f"buffer_load_dword v5, v3, {sr(sWS, 4)}, s36 offen {['', '', 'nt', 'sc1'][OPT['touch_out']]}")
                if i + 1 < n:
                    h("s_add_u32 s36, s36, 0x2000")
    if OPT["touch2"]:
        h("v_lshrrev_b32 v4, 3, v1")
        h("v_lshlrev_b32 v4, 15, v4")
        h("v_and_b32 v6, 7, v1")
        h("v_lshl_add_u32 v4, v6, 7, v4")
        h("s_and_b32 s36, s2, 7")
        h("s_lshl_b32 s36, s36, 18")
        h(f"s_lshl_b32 s{sT1}, s{sHead}, 10")
        h(f"s_add_u32 s36, s36, s{sT1}")
        h(f"s_add_u32 s36, s36, {OF}")
        h.vm(f"buffer_load_dword v5, v4, {sr(sWS, 4)}, s36 offen")
        h("s_lshl_b32 s36, s2, 10")
        h(f"s_add_u32 s36, s36, {ST}")
        h("s_mov_b64 exec, 0xff")
        h.vm(f"buffer_load_dword v5, v3, {sr(sWS, 4)}, s36 offen")
        h("s_mov_b64 exec, -1")
    h(f"s_lshl_b32 s{sT1}, s{sT0}, 11")
    h(f"v_add_u32 v4, s{sT1}, v3")
    h("s_mov_b64 exec, 0xffff")
    code_prefetch(h, "L_p2_tail", 38, 4, 5, "p2")
    h("s_mov_b64 exec, -1")
    stamp(h)
    wait_prog(0)
    stamp(h)
    for half in range(2):
        h(f"s_mov_b32 m0, {half * 65536}")
        h(f"s_add_u32 s36, s60, {half * 32 * 8192}")
        h("s_mov_b32 s37, 32")
        h.label(f"L_pre_wo{half}")
        h(f"buffer_load_dwordx4 v10, {sr(16, 4)}, s36 offen lds")
        h("s_add_u32 m0, m0, 1024")
        h("s_add_u32 s36, s36, 8192")
        h("s_sub_u32 s37, s37, 1")
        h("s_cmp_lg_u32 s37, 0")
        h(f"s_cbranch_scc1 L_pre_wo{half}")
        h("s_waitcnt vmcnt(16)")
    h("s_lshr_b32 s36, s2, 6")
    h("s_lshl_b32 s36, s36, 16")
    h("s_add_u32 s36, s36, s60")
    for i in range(8):
        h(f"s_mov_b32 m0, {RES3 + i * 1024}")
        h(f"s_add_u32 s37, s36, {i * 8192}")
        h(f"buffer_load_dwordx4 v{11 + (i & 1)}, {sr(44, 4)}, s37 offen lds")
    h("s_waitcnt vmcnt(16)")
    h("s_cmp_ge_u32 s2, 240")
    h("s_cbranch_scc1 L_pre_end")
    stamp(h)
    wait_prog(1)
    stamp(h)
    for st in range(4):
        for g2 in range(2):
            for mat in range(2):
                h(f"s_mov_b32 m0, {WS4[st] + (g2 * 2 + mat) * 3072}")
                h(f"s_mov_b32 s36, {(st * 32 + g2 * 16) * 2752}")
                for i in range(3):
                    h(f"buffer_load_dwordx4 v{16 + 3 * mat + i}, {sr(20 if mat == 0 else 48, 4)}, s36 offen offset:{i * 1024} lds")
        h("s_waitcnt vmcnt(40)")
    stamp(h)
    h.label("L_pre_end")
    h("s_waitcnt vmcnt(0)")
    if OPT.get("det") == 3:
        h(f"s_mov_b32 s{sWave}, 4")
        stamp_flush(h)
    h("s_endpgm")

    def init(b):
        b(f"s_lshr_b32 s{sHead}, s2, 3")
        b(f"s_and_b32 s{sQb}, s2, 7")
        b(f"s_lshr_b32 s{sKh}, s{sWave}, 2")
        b(f"s_and_b32 s{sQs}, s{sWave}, 3")
        b(f"v_and_b32 v{T}, 27, v{vLane}")
        b(f"v_cmp_eq_u32 vcc, 16, v{T}")
        b(f"v_mov_b32 v{T}, 0x3f803f80")
        b(f"v_mov_b32 v{vIdx}, 0xdddd")
        for r in range(32):
            b(f"v_cndmask_b32 v{Vf + r}, 0, v{T}, vcc")
        b(f"s_mov_b32 s{sVm}, 0x0000ffff")
        b(f"s_mov_b32 s{sVm + 1}, 0x0000ffff")
        b(f"s_lshl_b32 s{sT0}, s{sKh}, 16")
        b(f"v_add_u32 v{vKrd}, s{sT0}, v{vL16}")
        b(f"v_lshrrev_b32 v{T}, 5, v{vLane}")
        b(f"v_and_b32 v{T + 1}, 15, v{vLane}")
        b(f"v_lshlrev_b32 v{T + 1}, 4, v{T + 1}")
        b(f"v_lshl_add_u32 v{T}, v{T}, 8, v{T + 1}")
        b(f"v_add_u32 v{vVrd}, s{sT0}, v{T}")
        b(f"s_mul_i32 s{sT0}, s{sWave}, 3072")
        b(f"s_add_u32 s{sT0}, s{sT0}, {XCH}")
        b(f"v_add_u32 v{vXw}, s{sT0}, v{vL16}")
        b(f"s_xor_b32 s{sT1}, s{sWave}, 4")
        b(f"s_mul_i32 s{sT0}, s{sT1}, 3072")
        b(f"s_add_u32 s{sT0}, s{sT0}, {XCH}")
        b(f"v_add_u32 v{vXr}, s{sT0}, v{vL16}")
        b(f"s_lshl_b32 s{sT0}, s{sQs}, 1")
        b(f"s_add_u32 s{sT0}, s{sT0}, s{sKh}")
        b(f"s_lshl_b32 s{sT0}, s{sT0}, 10")
        b(f"s_add_u32 s{sT0}, s{sT0}, {XCH}")
        b(f"v_add_u32 v{T + 2}, s{sT0}, v{vL16}")
        b(f"v_xor_b32 v{T + 3}, 1024, v{T + 2}")
        b(f"v_mov_b32 v{T + 6}, {SYN}")
        b(f"v_mov_b32 v{T + 7}, 1")
        for c in range(2):
            for r in range(16):
                b(f"v_mov_b32 v{O[c] + r}, 0")
        b(f"s_lshl_b32 s57, s{sQb}, 2")
        b(f"s_add_u32 s57, s57, s{sQs}")
        b(f"s_lshl_b32 s55, s57, 8")
        b(f"s_lshl_b32 s{sT1}, s{sHead}, 1")
        b(f"s_add_u32 s{sT1}, s{sT1}, s{sKh}")
        b(f"s_lshl_b32 s{sT1}, s{sT1}, 2")
        b(f"s_add_u32 s55, s55, s{sT1}")
        b(f"s_add_u32 s55, s55, {F2}")
        b(f"s_lshl_b32 s57, s57, 1")
        b(f"s_add_u32 s57, s57, s{sKh}")
        b(f"s_lshl_b32 s57, s57, 15")
        b(f"s_lshl_b32 s{sT1}, s{sHead}, 10")
        b(f"s_add_u32 s57, s57, s{sT1}")
        b(f"s_add_u32 s57, s57, {OF}")

    init(l)
    l(f"s_lshl_b32 s40, s{sQb}, 9")
    l(f"s_lshr_b32 s{sT0}, s{sHead}, 1")
    l(f"s_lshl_b32 s{sT0}, s{sT0}, 5")
    l(f"s_add_u32 s40, s40, s{sT0}")
    l(f"s_add_u32 s40, s40, {FL1}")
    l(f"s_lshl_b32 s36, s{sHead}, 17")
    l(f"s_lshl_b32 s{sT0}, s{sQb}, 14")
    l(f"s_add_u32 s36, s36, s{sT0}")
    l(f"s_lshl_b32 s{sT0}, s{sQs}, 12")
    l(f"s_add_u32 s36, s36, s{sT0}")
    l(f"s_lshr_b32 s37, s36, 1")
    l(f"s_add_u32 s36, s36, {KVL}")
    if QF:
        l(f"s_add_u32 s37, s37, {QF}")
    l(f"s_lshr_b32 s38, s{sQs}, 1")
    l("s_lshl_b32 s38, s38, 16")
    l(f"s_and_b32 s{sT0}, s{sQs}, 1")
    l(f"s_lshl_b32 s{sT0}, s{sT0}, 12")
    l(f"s_add_u32 s38, s38, s{sT0}")
    l(f"s_lshl_b32 s39, s{sQs}, 11")
    l(f"s_add_u32 s39, s39, {XCH}")
    l(f"v_lshlrev_b32 v{T + 4}, 2, v{vLane}")
    l("s_mov_b32 s59, 0x40000")
    l("s_mov_b64 exec, 0xff")
    l.label("L_poll_l1")
    l(f"buffer_load_dword v{T + 5}, v{T + 4}, {sr(sWS, 4)}, s40 offen sc1")
    l("s_sub_u32 s59, s59, 1")
    l.wait_all(lg=False)
    l(f"v_cmp_ne_u32 vcc, s{sTag}, v{T + 5}")
    l("s_cmp_eq_u32 s59, 0")
    l("s_cbranch_scc1 L_poll_l1_x")
    l("s_cbranch_vccnz L_poll_l1")
    l.label("L_poll_l1_x")
    l("s_mov_b64 exec, -1")
    l("s_mov_b32 m0, s39")
    l("s_nop 0")
    for i in range(2):
        l.vm(f"buffer_load_dwordx4 v{vL16}, {sr(sWS, 4)}, s37 offen offset:{i * 1024} sc1 lds")
    l("s_mov_b32 m0, s38")
    l("s_nop 0")
    for i in range(4):
        l.vm(f"buffer_load_dwordx4 v{vL16}, {sr(sWS, 4)}, s36 offen offset:{i * 1024} sc1 lds")
    l.wait_all()
    l("s_branch L_p2_b0")
    init(a)
    a(f"v_mov_b32 v{T + 4}, 0")
    a(f"v_mov_b32 v{T + 5}, s{sTag}")

    def gflag():
        a.wait_all(lg=False)
        a("s_mov_b64 exec, 1")
        a.vm(f"buffer_store_dword v{T + 5}, v{T + 4}, {sr(sWS, 4)}, s49 offen sc1")
        a("s_mov_b64 exec, -1")

    if not OPT["p2_defer"]:
        gflag()
    a.label("L_p2_b0")

    def emit_pair(p):
        for t in (2 * p, 2 * p + 1):
            a.lg(f"ds_read_b128 {vr(Kf + 4 * (t & 3), 4)}, v{vKrd} offset:{t * 2048}")
        a(f"s_mov_b64 exec, {sr(sVm, 2)}")
        for t in (2 * p, 2 * p + 1):
            a.lg(f"ds_read_b128 {vr(Vf + 8 * (t & 3), 4)}, v{vVrd} offset:{t * 2048 + 1024}")
            tok = a.lg(f"ds_read_b128 {vr(Vf + 8 * (t & 3) + 4, 4)}, v{vVrd} offset:{t * 2048 + 1536}")
        a("s_mov_b64 exec, -1")
        return tok

    def qk(u):
        t, c = divmod(u, 2)
        return f"v_mfma_f32_32x32x16_bf16 {vr(S[u & 1], 16)}, {vr(Kf + 4 * (t & 3), 4)}, {vr(Qf[c], 4)}, 0"

    def pv(u, i):
        t, c = divmod(u, 2)
        return (f"v_smfmac_f32_32x32x32_bf16 {vr(O[c], 16)}, {vr(Vf + 8 * (t & 3) + 4 * i, 4)}, "
                f"{vr(S[u & 1] + 8 * i, 8)}, v{vIdx}")

    NU = 64
    PRIO = {0: 2, 29: 1, 53: 0}
    rtok = {}

    def need(u, n):
        a.wait(lg=rtok[u])
        a.label(f"L_rdy{u}")
        a(f"v_readfirstlane_b32 s36, v{T + 8}")
        a("s_nop 0")
        a(f"s_cmp_ge_u32 s36, {n}")
        a(f"s_cbranch_scc0 L_rdy{u}_spin")
        sp.label(f"L_rdy{u}_spin")
        sp("s_sleep 2")
        sp(f"ds_read_b32 v{T + 8}, v{T + 6}")
        sp("s_sub_u32 s59, s59, 1")
        sp("s_waitcnt lgkmcnt(0)")
        sp("s_cmp_lg_u32 s59, 0")
        sp(f"s_cbranch_scc1 L_rdy{u}")
        sp("s_mov_b32 s59, 1")
        sp(f"v_mov_b32 v{T + 8}, 7")
        sp("s_nop 0")
        sp(f"s_branch L_rdy{u}")

    sp = Asm()
    a("s_mov_b32 s59, 0x100000")
    a("s_barrier")
    stamp(a)
    a.lg(f"ds_read_b128 {vr(Qf[0], 4)}, v{T + 2}")
    a.lg(f"ds_read_b128 {vr(Qf[1], 4)}, v{T + 3}")
    ptok = {0: emit_pair(0)}
    a.wait(lg=ptok[0] - 5)
    a(qk(0))
    if OPT["p2_defer"]:
        a(f"s_cmp_lg_u32 s{sKh}, 0")
        a("s_cbranch_scc1 L_p2_nogf")
        gflag()
        a.label("L_p2_nogf")
    a.wait(lg=ptok[0])
    a("s_nop 9")
    for u in range(NU):
        X = S[u & 1]
        p, pu = divmod(u, 4)
        if u in PRIO:
            a(f"s_setprio {PRIO[u]}")
        ex = [f"v_exp_f32 v{X + i}, v{X + i}" for i in range(16)]
        a(ex[0]); a(ex[1])
        if u > 0:
            a(pv(u - 1, 1))
        a(ex[2]); a(ex[3]); a(ex[4])
        if u + 1 < NU:
            if pu == 3:
                a.wait(lg=ptok[p + 1])
            a(qk(u + 1))
        late = p + 1 == 2
        if p + 1 < 16 and pu == (2 if late else 0):
            if (p + 1) % 2 == 0:
                need(u, (p + 1) // 2)
            ptok[p + 1] = emit_pair(p + 1)
            if u in (28, 52):
                a.lg(f"ds_add_u32 v{T + 6}, v{T + 7} offset:{4 if u == 28 else 8}")
        nu = u + 1
        if nu < NU and (nu // 4 + 1) % 2 == 0 and nu // 4 + 1 < 16 and nu % 4 == (2 if nu // 4 + 1 == 2 else 0):
            rtok[nu] = a.lg(f"ds_read_b32 v{T + 8}, v{T + 6}")
        for i in range(5, 10):
            a(ex[i])
        a(pv(u, 0))
        for i in range(10, 16):
            a(ex[i])
    a.label("L_p2_tail")
    a("s_nop 1")
    a(pv(NU - 1, 1))
    a(f"s_mov_b32 s{sT0}, {hx(f2u(2.0 ** 80))}")
    a(f"s_mov_b32 s{sT1}, {hx(f2u(2.0 ** -80))}")
    a("s_mov_b32 s56, 0")
    a("s_nop 8")
    a.lg(f"ds_write_b128 v{vXw}, {vr(O[1], 4)}")
    a.lg(f"ds_write_b128 v{vXw}, {vr(O[1] + 4, 4)} offset:1024")
    a.lg(f"ds_write_b32 v{vXw}, v{O[1] + 8} offset:2048")
    a.wait_all(vm=False)
    a("s_barrier")
    t2 = a.lg(f"ds_read_b32 v{T + 8}, v{vXr} offset:2048")
    a.lg(f"ds_read_b128 {vr(T, 4)}, v{vXr}")
    t1 = a.lg(f"ds_read_b128 {vr(T + 4, 4)}, v{vXr} offset:1024")
    a.wait(lg=t2)
    a(f"v_add_f32 v{O[0] + 8}, v{O[0] + 8}, v{T + 8}")
    a.wait(lg=t1)
    for r in range(0, 8, 2):
        a(f"v_pk_add_f32 {vr(O[0] + r, 2)}, {vr(O[0] + r, 2)}, {vr(T + r, 2)}")
    a.label("L_p2_finish")
    a(f"v_rcp_f32 v{T + 8}, v{O[0] + 8}")
    a(f"v_cmp_gt_f32 s[40:41], s{sT0}, v{O[0] + 8}")
    a(f"v_cmp_lt_f32 s[42:43], s{sT1}, v{O[0] + 8}")
    for r in range(0, 8, 2):
        a(f"v_pk_mul_f32 {vr(O[0] + r, 2)}, {vr(O[0] + r, 2)}, {vr(T + 8, 2)} op_sel_hi:[1,0]")
    for i in range(4):
        a(f"v_cvt_pk_bf16_f32 v{T + 4 + i}, v{O[0] + 2 * i}, v{O[0] + 2 * i + 1}")
    a(f"v_dot2_f32_bf16 v{T}, v{T + 4}, v{T + 4}, 0")
    for i in range(1, 4):
        a(f"v_dot2_f32_bf16 v{T}, v{T + 4 + i}, v{T + 4 + i}, v{T}")
    a("s_and_b64 s[40:41], s[40:41], s[42:43]")
    a("s_cmp_lg_u32 s56, 0")
    a("s_cbranch_scc1 L_p2_store")
    a(f"v_cmp_gt_f32 vcc, s{sT0}, v{T}")
    a("s_nop 0")
    a("s_and_b64 s[40:41], s[40:41], vcc")
    a("s_cmp_eq_u64 s[40:41], -1")
    a("s_cbranch_scc0 L_p2_fallback")
    a.label("L_p2_store")
    stores(a, [f"buffer_store_dwordx4 {vr(T + 4, 4)}, v{vL16}, {sr(sWS, 4)}, s57 offen"])
    a("s_barrier")
    stamp(a)

    f = Asm()
    f.label("L_p2_fallback")
    vV2, vM = T + 11, T + 12
    f(f"s_lshl_b32 s37, s{sKh}, 16")
    f(f"v_subrev_u32 v{vV2}, s37, v{vVrd}")
    f(f"s_lshl_b32 s36, s{sHead}, 17")
    f(f"s_add_u32 s36, s36, {KVF}")
    f(f"v_mov_b32 v{vM}, 0xff800000")
    f("s_mov_b32 s56, 0")
    f("s_mov_b32 s37, s36")
    f.label("L_p2_fb_max")
    f(f"buffer_load_dwordx4 {vr(Kf, 4)}, v{vL16}, {sr(sWS, 4)}, s37 offen sc1")
    f("s_waitcnt vmcnt(0)")
    f(f"v_mfma_f32_32x32x16_bf16 {vr(S[0], 16)}, {vr(Kf, 4)}, {vr(Qf[0], 4)}, 0")
    f("s_nop 15")
    for i in range(8):
        f(f"v_max3_f32 v{vM}, v{vM}, v{S[0] + 2 * i}, v{S[0] + 2 * i + 1}")
    f("s_add_u32 s37, s37, 2048")
    f("s_add_u32 s56, s56, 1")
    f("s_cmp_lt_u32 s56, 64")
    f("s_cbranch_scc1 L_p2_fb_max")
    f(f"v_mov_b32 v{T}, v{vM}")
    f("s_nop 1")
    f(f"v_permlane32_swap_b32 v{vM}, v{T}")
    f("s_nop 1")
    f(f"v_max_f32 v{vM}, v{vM}, v{T}")
    for r in range(16):
        f(f"v_sub_f32 v{NEG + r}, 0, v{vM}")
        f(f"v_mov_b32 v{O[0] + r}, 0")
    f("s_mov_b32 s56, 0")
    f("s_mov_b32 s37, s36")
    f.label("L_p2_fb_pv")
    f(f"buffer_load_dwordx4 {vr(Kf, 4)}, v{vL16}, {sr(sWS, 4)}, s37 offen sc1")
    f(f"s_mov_b64 exec, {sr(sVm, 2)}")
    f(f"buffer_load_dwordx4 {vr(Vf, 4)}, v{vV2}, {sr(sWS, 4)}, s37 offen offset:1024 sc1")
    f(f"buffer_load_dwordx4 {vr(Vf + 4, 4)}, v{vV2}, {sr(sWS, 4)}, s37 offen offset:1536 sc1")
    f("s_mov_b64 exec, -1")
    f("s_waitcnt vmcnt(0)")
    f(f"v_mfma_f32_32x32x16_bf16 {vr(S[0], 16)}, {vr(Kf, 4)}, {vr(Qf[0], 4)}, {vr(NEG, 16)}")
    f("s_nop 15")
    for i in range(16):
        f(f"v_exp_f32 v{S[0] + i}, v{S[0] + i}")
    f("s_nop 1")
    f(f"v_smfmac_f32_32x32x32_bf16 {vr(O[0], 16)}, {vr(Vf, 4)}, {vr(S[0], 8)}, v{vIdx}")
    f(f"v_smfmac_f32_32x32x32_bf16 {vr(O[0], 16)}, {vr(Vf + 4, 4)}, {vr(S[0] + 8, 8)}, v{vIdx}")
    f("s_nop 15")
    f("s_add_u32 s37, s37, 2048")
    f("s_add_u32 s56, s56, 1")
    f("s_cmp_lt_u32 s56, 64")
    f("s_cbranch_scc1 L_p2_fb_pv")
    f("s_branch L_p2_finish")
    f.lines += sp.lines
    return f


def phase_res(a, h, k3, pre_publish=None):
    uid = "p3" if k3 else "p5"
    KS = 32 if k3 else 86
    ACT = OF if k3 else GF
    NST = (KS + 3) // 4
    WSL = WS3 if k3 else WS5
    NW = len(WSL)
    NA = 4 if k3 else 6
    AO = 122880 if k3 else 114688
    RESO = RES3 if k3 else 24576
    TRO = 0
    assert k3 or (NST - 1) % NW not in (0, 1)
    sW, sIO = 16, 20
    sWr, sWc, sRb, sCb = 25, 26, 27, 28
    T = 12
    for b in (a, h):
        b(f"s_and_b32 s{sT0}, s2, 7")
        b(f"s_lshl_b32 s{sRb}, s{sT0}, 2")
        b(f"s_lshr_b32 s34, s2, 6")
        b(f"s_add_u32 s{sRb}, s{sRb}, s34")
        b(f"s_bfe_u32 s{sCb}, s2, 0x30003")
        b(f"s_and_b32 s{sWr}, s{sWave}, 1")
        b(f"s_bfe_u32 s{sWc}, s{sWave}, 0x10001")
    vWoff, vXg = 3, 5
    h(f"v_lshrrev_b32 v{T}, 3, v{vLane}")
    h(f"v_and_b32 v{T + 1}, 7, v{vLane}")
    h(f"v_lshrrev_b32 v{T + 2}, 2, v{vLane}")
    h(f"v_and_b32 v{T + 2}, 4, v{T + 2}")
    h(f"v_xor_b32 v{T + 2}, v{T + 2}, v{T + 1}")
    h(f"v_lshlrev_b32 v{T + 2}, 4, v{T + 2}")
    h(f"v_lshl_add_u32 v{T + 2}, v{T}, 10, v{T + 2}")
    h(f"s_lshl_b32 s{sT0}, s{sHw}, 14")
    h(f"s_lshl_b32 s{sT1}, s{sCb}, 7")
    h(f"s_add_u32 s{sT0}, s{sT0}, s{sT1}")
    h(f"v_add_u32 v{vWoff}, s{sT0}, v{T + 2}")
    h(f"v_add_u32 v{vWoff + 1}, {8192 - 1024}, v{vWoff}")
    h(f"s_lshl_b32 s32, s{sHw}, 11")
    h(f"s_lshl_b32 s33, s{sRb}, 1")
    h(f"s_add_u32 s33, s33, s{sWr}")
    h(f"s_mul_i32 s34, s33, {KS * 1024}")
    h(f"s_lshl_b32 s{sT1}, s{sWc}, 11")
    h(f"s_add_u32 s34, s34, s{sT1}")
    h(f"s_add_u32 s34, s34, {ACT}")
    h(f"s_lshl_b32 s35, s{sWr}, 12")
    h(f"s_add_u32 s35, s35, s{sT1}")
    if k3:
        pass
    else:
        h(f"s_lshl_b32 s36, s33, 15")
        h(f"s_lshl_b32 s{sT0}, s{sCb}, 12")
        h(f"s_add_u32 s36, s36, s{sT0}")
        h(f"s_add_u32 s36, s36, s{sT1}")
        h(f"s_add_u32 s36, s36, {HF}")
    srd(h, sW, KWO if k3 else KD, KS * 16 * 1024)
    if pre_publish is not None:
        publish(h, pre_publish, T + 4)
    dr = Drip(h)

    def issue_w(st):
        dr.add(st, [f"s_add_u32 m0, s32, {WSL[st % NW]}", f"s_mov_b32 s42, {st * 65536}"],
               f"buffer_load_dwordx4 v{vWoff}, {sr(sW, 4)}, s42 offen lds")
        dr.add(st, [], f"buffer_load_dwordx4 v{vWoff + 1}, {sr(sW, 4)}, s42 offen offset:1024 lds")

    def issue_a(st):
        dr.add(st, [f"s_add_u32 m0, s35, {AO + (st % NA) * 8192}", f"s_add_u32 s43, s34, {st * 4096}"],
               f"buffer_load_dwordx4 v{vL16}, {sr(sWS, 4)}, s43 offen {LD()} lds")
        dr.add(st, [], f"buffer_load_dwordx4 v{vL16}, {sr(sWS, 4)}, s43 offen offset:1024 {LD()} lds")

    if not k3:
        for st in range(NW):
            issue_w(st)
    dr.emit(100)
    if not OPT.get("det"):
        stamp(h)
    h("s_barrier")
    if not OPT.get("det"):
        stamp(h)
    AHEAD = OPT["p3_a"] if k3 else OPT["p5_a"]
    assert AHEAD < NA
    nxt_a = 0
    for st in range(NST):
        while nxt_a <= min(st + AHEAD, NST - 1):
            if nxt_a >= NA and nxt_a - NA > st - 2:
                break
            issue_a(nxt_a)
            if not k3 and nxt_a == 1:
                dr.add(1, [f"s_add_u32 m0, s35, {RESO}", "s_nop 0"], f"buffer_load_dwordx4 v{vL16}, {sr(sWS, 4)}, s36 offen {LD()} lds")
                dr.add(1, [], f"buffer_load_dwordx4 v{vL16}, {sr(sWS, 4)}, s36 offen offset:1024 {LD()} lds")
            nxt_a += 1
        dr.emit(100)
        h.wait(vm=dr.tok[st])
        h("s_barrier")
        if st >= 1 and st - 1 + NW < NST:
            issue_w(st - 1 + NW)
    if k3:
        h("s_barrier")
    RST = 0 if k3 else 1
    vWrd, vAr, vRr, vTw, vTr, vOut = [3, 4], [5], [7, 8], 9, 10, 11
    ID = 24
    FR = [32, 72]
    acc = 112
    a(f"v_and_b32 v{T}, 31, v{vLane}")
    a(f"v_lshrrev_b32 v{T + 1}, 5, v{vLane}")
    a(f"v_bfe_u32 v{T + 2}, v{vLane}, 2, 2")
    a(f"v_lshl_add_u32 v{T + 3}, v{T + 1}, 2, v{T + 2}")
    a(f"v_lshlrev_b32 v{T + 3}, 7, v{T + 3}")
    a(f"v_bfe_u32 v{T + 4}, v{vLane}, 4, 1")
    a(f"v_lshl_add_u32 v{T + 3}, v{T + 4}, 5, v{T + 3}")
    a(f"v_and_b32 v{T + 4}, 3, v{vLane}")
    a(f"v_lshl_add_u32 v{T + 3}, v{T + 4}, 3, v{T + 3}")
    a(f"v_lshrrev_b32 v{T + 2}, 1, v{T + 2}")
    a(f"v_xor_b32 v{T + 2}, s{sWc}, v{T + 2}")
    a(f"v_lshl_add_u32 v{vWrd[0]}, v{T + 2}, 6, v{T + 3}")
    wl = LdsAddr(a, vWrd)
    wl.setup(a)
    a(f"s_lshl_b32 s{sT0}, s{sWr}, 12")
    a(f"s_add_u32 s{sT1}, s{sT0}, {AO}")
    a(f"v_add_u32 v{vAr[0]}, s{sT1}, v{vL16}")
    if k3:
        a(f"v_bfe_u32 v{T + 2}, v{vLane}, 1, 3")
        a(f"v_xor_b32 v{T + 2}, v{T + 2}, v{T + 1}")
        a(f"s_lshl_b32 s{sT1}, s{sWc}, 2")
        a(f"v_xor_b32 v{T + 2}, s{sT1}, v{T + 2}")
        a(f"v_lshlrev_b32 v{T + 2}, 4, v{T + 2}")
        a(f"v_lshl_add_u32 v{T + 2}, v{T}, 7, v{T + 2}")
        a(f"s_add_u32 s{sT0}, s{sT0}, {RESO}")
        a(f"v_add_u32 v{vRr[0]}, s{sT0}, v{T + 2}")
        a(f"v_xor_b32 v{vRr[1]}, 32, v{vRr[0]}")
    else:
        a(f"s_lshl_b32 s{sT1}, s{sWc}, 11")
        a(f"s_add_u32 s{sT0}, s{sT0}, s{sT1}")
        a(f"s_add_u32 s{sT0}, s{sT0}, {RESO}")
        a(f"v_add_u32 v{vRr[0]}, s{sT0}, v{vL16}")
        a(f"v_add_u32 v{vRr[1]}, 1024, v{vRr[0]}")
    if pre_publish is not None:
        publish(a, pre_publish, T + 6)
    a(f"v_mov_b32 v{T + 5}, 0x3f80")
    for e in range(2):
        if k3:
            a(f"v_lshlrev_b32 v{T + 2}, 3, v{T + 1}")
            a(f"v_sub_u32 v{T + 2}, v{T}, v{T + 2}")
            a(f"v_subrev_u32 v{T + 2}, {16 * e}, v{T + 2}")
        else:
            a(f"v_bfe_u32 v{T + 2}, v{vLane}, 3, 1")
            a(f"v_and_b32 v{T + 3}, 3, v{vLane}")
            a(f"v_lshl_add_u32 v{T + 2}, v{T + 2}, 2, v{T + 3}")
            a(f"v_bfe_u32 v{T + 3}, v{vLane}, 2, 1")
            a(f"v_xor_b32 v{T + 3}, v{T + 3}, v{T + 1}")
            a(f"v_bfe_u32 v{T + 4}, v{vLane}, 4, 1")
            a(f"v_xor_b32 v{T + 4}, {e}, v{T + 4}")
            a(f"v_or_b32 v{T + 3}, v{T + 3}, v{T + 4}")
            a(f"v_lshl_add_u32 v{T + 2}, v{T + 3}, 4, v{T + 2}")
        a(f"v_and_b32 v{T + 3}, 1, v{T + 2}")
        a(f"v_lshlrev_b32 v{T + 3}, 4, v{T + 3}")
        a(f"v_lshlrev_b32 v{T + 3}, v{T + 3}, v{T + 5}")
        a(f"v_lshrrev_b32 v{T + 2}, 1, v{T + 2}")
        for r in range(4):
            a(f"v_cmp_eq_u32 vcc, {r}, v{T + 2}")
            a("s_nop 1")
            a(f"v_cndmask_b32 v{ID + 4 * e + r}, 0, v{T + 3}, vcc")
    a(f"s_lshl_b32 s33, s{sRb}, 1")
    a(f"s_add_u32 s33, s33, s{sWr}")
    a(f"s_lshl_b32 s34, s{sCb}, 1")
    a(f"s_add_u32 s34, s34, s{sWc}")
    if k3:
        a(f"s_lshl_b32 s36, s33, 15")
        a(f"s_lshl_b32 s37, s34, 11")
        a(f"s_add_u32 s36, s36, s37")
        a(f"s_add_u32 s36, s36, {HF}")
        a(f"s_lshl_b32 s37, s34, 14")
        a(f"s_lshl_b32 s{sT1}, s33, 8")
        a(f"s_add_u32 s37, s37, s{sT1}")
        a(f"s_add_u32 s37, s37, {ST}")
        a("s_mov_b32 s41, 0x3f803f80")
        a(f"v_lshlrev_b32 v{vOut}, 3, v{vLane}")
        a(f"s_lshl_b32 s55, s{sRb}, 7")
        a(f"s_lshl_b32 s{sT1}, s{sCb}, 4")
        a(f"s_add_u32 s55, s55, s{sT1}")
        a(f"s_lshl_b32 s{sT1}, s{sWave}, 2")
        a(f"s_add_u32 s55, s55, s{sT1}")
        a(f"s_add_u32 s55, s55, {F3}")
    else:
        a(f"s_mul_i32 s{sT0}, s{sHw}, 2560")
        a(f"s_add_u32 s{sT0}, s{sT0}, {TRO}")
        a(f"v_mul_u32_u24 v{T + 2}, 80, v{T}")
        a(f"v_lshl_add_u32 v{T + 2}, v{T + 1}, 3, v{T + 2}")
        a(f"v_add_u32 v{vTw}, s{sT0}, v{T + 2}")
        a(f"v_lshrrev_b32 v{T + 2}, 2, v{vLane}")
        a(f"v_and_b32 v{T + 3}, 3, v{vLane}")
        a(f"v_lshlrev_b32 v{T + 3}, 4, v{T + 3}")
        a(f"v_mad_u32_u24 v{T + 4}, v{T + 2}, 64, v{T + 3}")
        a(f"v_lshl_add_u32 v{T + 4}, v{T + 2}, 4, v{T + 4}")
        a(f"v_add_u32 v{vTr}, s{sT0}, v{T + 4}")
        a(f"v_lshl_add_u32 v{vOut}, v{T + 2}, 10, v{T + 3}")
        a(f"s_lshl_b32 s36, s33, 15")
        a(f"s_lshl_b32 s37, s34, 6")
        a(f"s_add_u32 s36, s36, s37")
        a(f"s_add_u32 s37, s36, 16384")
        srd(a, sIO, KO, 2048 * 1024)
    a(f"s_lshl_b32 s40, s{sRb}, 8")
    a(f"s_add_u32 s40, s40, {F2 if k3 else F4}")
    poll(a, 40, T + 6, uid, 64 if k3 else 30)
    first = True
    for st in range(NST):
        a("s_barrier")
        if st == 0:
            stamp(a)
        F = FR[st & 1]
        n = min(4, KS - 4 * st)
        tk = []
        for k in range(n):
            a.lg(f"ds_read_b128 {vr(F + 8 * k, 4)}, v{vAr[0]} offset:{(st % NA) * 8192 + k * 1024}")
            for half in range(2):
                reg, off = wl.at(WSL[st % NW] + k * 2048 + half * 1024)
                t = a.lg(f"ds_read_b64_tr_b16 {vr(F + 8 * k + 4 + 2 * half, 2)}, {reg} offset:{off}")
            tk.append(t)
        if st == RST:
            for e in range(2):
                tk.append(a.lg(f"ds_read_b128 {vr(F + 32 + 4 * e, 4)}, v{vRr[e]}"))
        for k in range(n):
            a.wait(lg=tk[k])
            a(f"v_mfma_f32_32x32x16_bf16 {vr(acc, 16)}, {vr(F + 8 * k + 4, 4)}, {vr(F + 8 * k, 4)}, {'0' if first else vr(acc, 16)}")
            first = False
        if st == RST:
            for e in range(2):
                a.wait(lg=tk[n + e])
                a(f"v_mfma_f32_32x32x16_bf16 {vr(acc, 16)}, {vr(ID + 4 * e, 4)}, {vr(F + 32 + 4 * e, 4)}, {vr(acc, 16)}")
    stamp(a)
    a("s_nop 11")
    P = 32
    for i in range(8):
        a(f"v_cvt_pk_bf16_f32 v{P + i}, v{acc + 2 * i}, v{acc + 2 * i + 1}")
    if k3:
        stores(a, [f"buffer_store_dwordx4 {vr(P, 4)}, v{vL16}, {sr(sWS, 4)}, s36 offen",
                   f"buffer_store_dwordx4 {vr(P + 4, 4)}, v{vL16}, {sr(sWS, 4)}, s36 offen offset:1024"])
        a(f"v_dot2_f32_bf16 v{T}, v{P}, s41, 0")
        a(f"v_dot2_f32_bf16 v{T + 1}, v{P}, v{P}, 0")
        for i in range(1, 8):
            a(f"v_dot2_f32_bf16 v{T}, v{P + i}, s41, v{T}")
            a(f"v_dot2_f32_bf16 v{T + 1}, v{P + i}, v{P + i}, v{T + 1}")
        a("s_nop 2")
        a(f"v_mov_b32 v{T + 2}, v{T}")
        a(f"v_mov_b32 v{T + 3}, v{T + 1}")
        a("s_nop 0")
        a(f"v_permlane32_swap_b32 v{T}, v{T + 2}")
        a(f"v_permlane32_swap_b32 v{T + 1}, v{T + 3}")
        a("s_nop 0")
        a(f"v_add_f32 v{T}, v{T}, v{T + 2}")
        a(f"v_add_f32 v{T + 1}, v{T + 1}, v{T + 3}")
        a("s_mov_b32 exec_hi, 0")
        stores(a, [f"buffer_store_dwordx2 {vr(T, 2)}, v{vOut}, {sr(sWS, 4)}, s37 offen"])
        a("s_mov_b64 exec, -1")
        a("s_barrier")
        publish(a, 55, T + 4)
    else:
        for g in range(4):
            a.lg(f"ds_write_b64 v{vTw}, {vr(P + 2 * g, 2)} offset:{g * 16}")
        a.wait_all(vm=False)
        t0 = a.lg(f"ds_read_b128 {vr(P + 8, 4)}, v{vTr}")
        t1 = a.lg(f"ds_read_b128 {vr(P + 12, 4)}, v{vTr} offset:{16 * 80}")
        a.wait(lg=t0)
        a.vm(f"buffer_store_dwordx4 {vr(P + 8, 4)}, v{vOut}, {sr(sIO, 4)}, s36 offen")
        a.wait(lg=t1)
        a.vm(f"buffer_store_dwordx4 {vr(P + 12, 4)}, v{vOut}, {sr(sIO, 4)}, s37 offen")
    stamp(a)


def phase4(a, h):
    sG = 16
    sRb, sCg = 25, 26
    sWL, sAct = 32, 33
    NW, NX, NST = 9, 5, 16
    XO = 122880
    CSO = 24576
    XEO = CSO + 1536
    for b in (a, h):
        b(f"s_and_b32 s{sT0}, s2, 7")
        b(f"s_lshl_b32 s{sT0}, s{sT0}, 1")
        b(f"s_bfe_u32 s{sT1}, s2, 0x10003")
        b(f"s_add_u32 s{sRb}, s{sT0}, s{sT1}")
        b(f"s_lshr_b32 s{sCg}, s2, 4")
    a("s_cmp_ge_u32 s2, 240")
    a("s_cbranch_scc1 L_p4_skip_c")
    h("s_cmp_ge_u32 s2, 240")
    h("s_cbranch_scc1 L_p4_skip_l")
    vWoff = [3, 4, 5]
    vT = 16
    h(f"s_lshl_b32 s{sAct}, s{sRb}, 2")
    h(f"s_add_u32 s{sAct}, s{sAct}, s{sHw}")
    h(f"s_lshl_b32 s38, s{sAct}, 8")
    h(f"s_add_u32 s38, s38, {ST}")
    h(f"s_lshl_b32 s{sAct}, s{sAct}, 15")
    h(f"s_add_u32 s{sAct}, s{sAct}, {HF}")
    h(f"s_lshr_b32 s34, s{sHw}, 1")
    h(f"s_and_b32 s35, s{sHw}, 1")
    h(f"s_mul_i32 s{sT0}, s34, {16 * 2752}")
    h(f"s_mul_i32 s{sT1}, s{sCg}, 192")
    h(f"s_add_u32 s{sT0}, s{sT0}, s{sT1}")
    h(f"v_and_b32 v{vT + 3}, 2, v{vLane}")
    h(f"v_lshlrev_b32 v{vT + 3}, 5, v{vT + 3}")
    h(f"v_sub_u32 v{vT + 3}, 32, v{vT + 3}")
    h(f"v_mul_lo_u32 v{vT + 3}, v{vT + 3}, s35")
    h(f"v_add_u32 v{vT + 3}, s{sT0}, v{vT + 3}")
    for i in range(3):
        h(f"v_add_u32 v{vT}, {64 * i}, v{vLane}")
        h(f"v_mul_u32_u24 v{vT + 1}, 171, v{vT}")
        h(f"v_lshrrev_b32 v{vT + 1}, 11, v{vT + 1}")
        h(f"v_mul_u32_u24 v{vT + 2}, {2752 - 192}, v{vT + 1}")
        h(f"v_add3_u32 v{vWoff[i]}, v{vL16}, v{vT + 2}, v{vT + 3}")
    h(f"s_mul_i32 s{sWL}, s{sHw}, 3072")
    h(f"s_lshl_b32 s36, s{sHw}, 11")
    h(f"s_add_u32 s36, s36, {XO}")
    h("s_cmp_eq_u32 s35, 0")
    h(f"s_cselect_b32 s{sG}, s{KG}, s{KU}")
    h(f"s_cselect_b32 s{sG + 1}, s{KG + 1}, s{KU + 1}")
    h(f"s_mov_b32 s{sG + 2}, {hx(512 * 2752)}")
    h(f"s_mov_b32 s{sG + 3}, 0x00020000")
    dr = Drip(h)

    def issue_w(key):
        st = key[1] if isinstance(key, tuple) else key
        for i in range(3):
            pre = [f"s_add_u32 m0, s{sWL}, {WS4[st % NW]}", f"s_mov_b32 s42, {st * 32 * 2752}"] if i == 0 else []
            dr.add(key, pre, f"buffer_load_dwordx4 v{vWoff[i]}, {sr(sG, 4)}, s42 offen offset:{i * 1024} lds")

    def issue_x(st):
        for i in range(2):
            pre = [f"s_add_u32 m0, s36, {(st % NX) * 8192}", f"s_add_u32 s43, s{sAct}, {st * 2048}"] if i == 0 else []
            dr.add(st, pre, f"buffer_load_dwordx4 v{vL16}, {sr(sWS, 4)}, s43 offen offset:{i * 1024} {LD()} lds")

    PRE = OPT["p4_pre"]
    for st in range(4, PRE):
        issue_w(st)
    dr.emit(100)
    nxt_wi = 3 * PRE
    vPf, vPd = 13, 100
    srd(h, 44, KD, 1376 * 1024)
    h(f"s_lshr_b32 s{sT0}, s2, 3")
    h(f"s_lshl_b32 s{sT0}, s{sT0}, 2")
    h(f"s_add_u32 s{sT0}, s{sT0}, s{sHw}")
    h(f"s_lshl_b32 s{sT0}, s{sT0}, 13")
    h(f"v_lshlrev_b32 v{vPf}, 7, v{vLane}")
    h(f"v_add_u32 v{vPf}, s{sT0}, v{vPf}")
    h(f"v_add_u32 v15, {120 * 8192}, v{vPf}")
    h(f"v_lshrrev_b32 v{vT + 3}, 5, v{vLane}")
    h(f"v_and_b32 v{vT + 4}, 31, v{vLane}")
    h(f"v_lshlrev_b32 v{vT + 4}, 3, v{vT + 4}")
    h(f"v_lshl_add_u32 v{vT + 4}, v{vT + 3}, 17, v{vT + 4}")
    h(f"s_mul_i32 s{sT0}, s{sHw}, 1536")
    h(f"s_add_u32 s{sT0}, s{sT0}, {XEO}")
    h(f"v_add_u32 v{vT + 5}, s{sT0}, v{vL16}")
    h(f"v_lshl_add_u32 v{vT + 6}, v{vLane}, 3, s{sT0}")
    stamp(h)
    h("s_barrier")
    stamp(h)
    SP = 32
    vS, vQ, vM, vA = 60, 61, 62, 64
    AHEAD = OPT["p4_a"]
    assert AHEAD < NX
    nxt_x = 0
    for st in range(NST):
        while nxt_x <= min(st + AHEAD, NST - 1):
            if nxt_x >= NX and nxt_x - NX > st - 2:
                break
            issue_x(nxt_x)
            nxt_x += 1
        dr.emit(100)
        for _ in range(OPT["p4_wi"]):
            ws, wi = divmod(nxt_wi, 3)
            if ws < NST and (ws < NW or ws - NW <= st - 2):
                h(f"s_add_u32 m0, s{sWL}, {WS4[ws % NW]}")
                h(f"s_mov_b32 s42, {ws * 32 * 2752}")
                dr.tok[("w", ws)] = h.vm(f"buffer_load_dwordx4 v{vWoff[wi]}, {sr(sG, 4)}, s42 offen offset:{wi * 1024} lds")
                nxt_wi += 1
        assert nxt_wi >= 3 * (st + 1)
        if 1 <= st <= 8:
            i = st - 1
            h(f"s_add_u32 s{sT0}, s38, {i * 16384}")
            dr.tok["st"] = h.vm(f"buffer_load_dwordx2 {vr(SP + 2 * i, 2)}, v{vT + 4}, {sr(sWS, 4)}, s{sT0} offen {LD()}")
        h.wait(vm=max(dr.tok[st], dr.tok.get(("w", st), -1)))
        assert st < PRE or ("w", st) in dr.tok
        if st == 11:
            h.wait(vm=dr.tok["st"])
            h(f"v_add_f32 v{vS}, v{SP}, v{SP + 2}")
            h(f"v_add_f32 v{vQ}, v{SP + 1}, v{SP + 3}")
            for i in range(2, 8):
                h(f"v_add_f32 v{vS}, v{vS}, v{SP + 2 * i}")
                h(f"v_add_f32 v{vQ}, v{vQ}, v{SP + 2 * i + 1}")
        if st == 12:
            half_sum(h, vS, vT)
            half_sum(h, vQ, vT)
            h(f"v_mul_f32 v{vM}, {hx(f2u(-1.0 / 512))}, v{vS}")
            h(f"v_mul_f32 v{vQ}, {hx(f2u(1.0 / 512))}, v{vQ}")
            h(f"v_fma_f32 v{vQ}, -v{vM}, v{vM}, v{vQ}")
            h(f"v_max_f32 v{vQ}, 0, v{vQ}")
            h(f"v_add_f32 v{vQ}, {hx(f2u(1e-5))}, v{vQ}")
        if st == 13:
            h(f"v_rsq_f32 v{vA}, v{vQ}")
            split_hi_lo(h, vM, 68, vT, vT + 1)
            h(f"v_mul_f32 v{vA + 1}, v{vQ}, v{vA}")
            h(f"v_mul_f32 v{vA}, {hx(f2u(-LOG2E))}, v{vA}")
            h(f"v_cvt_pk_bf16_f32 v69, v{vT}, 0")
            h("v_mov_b32 v70, 0")
            h("v_mov_b32 v71, 0")
            h.lg(f"ds_write_b128 v{vT + 5}, v[68:71]")
            h.lg(f"ds_write_b64 v{vT + 6}, {vr(vA, 2)} offset:1024")
        if st == 14:
            h.wait_all(vm=False)
        if OPT.get("det") == 1 and st in (3, 7, 11):
            stamp(h)
        h("s_barrier")
        if OPT.get("det") == 1 and st in (3, 7, 11, 15):
            stamp(h)
        if OPT["gf_late"] and st == OPT["gf_late"]:
            h(f"s_lshl_b32 s{sT0}, s{sRb}, 2")
            h(f"s_add_u32 s{sT0}, s{sT0}, s{sHw}")
            h(f"s_mul_i32 s{sT0}, s{sT0}, {86 * 1024}")
            h(f"s_mul_i32 s{sT1}, s{sCg}, 6144")
            h(f"s_add_u32 s{sT0}, s{sT0}, s{sT1}")
            h(f"s_add_u32 s{sT0}, s{sT0}, {GF}")
            h(f"v_lshlrev_b32 v101, 7, v{vLane}")
            h("s_mov_b32 exec_hi, 0xffff")
            h.vm(f"buffer_load_dword v{vPd}, v101, {sr(sWS, 4)}, s{sT0} offen")
            h("s_mov_b64 exec, -1")
        if st == OPT["p4_pf"]:
            h.vm(f"buffer_load_dword v{vPd}, v{vPf}, s[44:47], 0 offen")
        if st == OPT["p4_pf"] + 1:
            h.vm(f"buffer_load_dword v{vPd}, v15, s[44:47], 0 offen")
    h("s_barrier")
    h.label("L_p4_skip_l")

    sWr2, sWc = 36, 37
    vWrd, vWrdO, vXa, vCw, vCr, vEr = [3, 4], [5, 6], 7, 8, 9, 10
    ONES, vT, CS, ACC = 12, 16, 20, 32
    XF, WF = [128, 136], [144, 156]
    XE, AS = XF[0], ONES
    t = CS
    a(f"s_lshr_b32 s{sWr2}, s{sHw}, 1")
    a(f"s_and_b32 s{sWc}, s{sHw}, 1")
    a(f"s_lshl_b32 s34, s{sRb}, 1")
    a(f"s_add_u32 s34, s34, s{sWr2}")
    a(f"v_lshrrev_b32 v{t + 3}, 5, v{vLane}")
    a(f"v_bfe_u32 v{t}, v{vLane}, 2, 2")
    a(f"v_lshl_add_u32 v{t}, v{t + 3}, 2, v{t}")
    a(f"v_mul_u32_u24 v{t}, 192, v{t}")
    a(f"v_and_b32 v{t + 1}, 3, v{vLane}")
    a(f"v_lshl_add_u32 v{t}, v{t + 1}, 3, v{t}")
    a(f"s_mul_i32 s{sT0}, s{sWc}, 96")
    a(f"v_add_u32 v{t}, s{sT0}, v{t}")
    a(f"v_bfe_u32 v{t + 1}, v{vLane}, 4, 1")
    a(f"s_lshl_b32 s{sT0}, s{sWc}, 6")
    a(f"s_sub_u32 s{sT1}, {3072 + 32}, s{sT0}")
    a(f"s_add_u32 s{sT0}, {3072 - 32}, s{sT0}")
    a(f"v_mad_u32_u24 v{vWrd[0]}, v{t + 1}, s{sT1}, v{t}")
    a(f"v_mad_u32_u24 v{vWrdO[0]}, v{t + 1}, s{sT0}, v{t}")
    wl = [LdsAddr(a, vWrd), LdsAddr(a, vWrdO)]
    wl[0].setup(a)
    wl[1].setup(a)
    a(f"s_lshl_b32 s{sT0}, s{sWr2}, 12")
    a(f"s_add_u32 s{sT0}, s{sT0}, {XO}")
    a(f"v_add_u32 v{vXa}, s{sT0}, v{vL16}")
    a(f"v_xor_b32 v{t}, v{t + 1}, v{vLane}")
    a(f"v_and_b32 v{t}, 1, v{t}")
    a(f"v_cmp_eq_u32 vcc, 0, v{t}")
    a(f"v_mov_b32 v{t}, 0x3f803f80")
    a("s_nop 0")
    for r in range(4):
        a(f"v_cndmask_b32 v{ONES + r}, 0, v{t}, vcc")
    a(f"s_lshl_b32 s{sT0}, s{sWc}, 1")
    a(f"s_add_u32 s{sT1}, s{sT0}, s{sWr2}")
    a(f"s_mul_i32 s{sT1}, s{sT1}, 384")
    a(f"s_add_u32 s{sT1}, s{sT1}, {CSO}")
    a(f"v_and_b32 v{t}, 1, v{vLane}")
    a(f"v_lshlrev_b32 v{t}, 6, v{t}")
    a(f"v_and_b32 v{t + 1}, 48, v{vLane}")
    a(f"v_add3_u32 v{vCw}, v{t}, v{t + 1}, s{sT1}")
    a(f"s_mul_i32 s{sT0}, s{sT0}, 384")
    a(f"s_add_u32 s{sT0}, s{sT0}, {CSO}")
    a(f"v_mul_u32_u24 v{t}, 384, v{t + 3}")
    a(f"v_and_b32 v{t + 1}, 31, v{vLane}")
    a(f"v_lshl_add_u32 v{t}, v{t + 1}, 2, v{t}")
    a(f"v_add_u32 v{vCr}, s{sT0}, v{t}")
    a(f"s_lshl_b32 s55, s34, 8")
    a(f"s_lshl_b32 s35, s{sCg}, 1")
    a(f"s_add_u32 s35, s35, s{sWc}")
    a(f"s_lshl_b32 s{sT0}, s35, 2")
    a(f"s_add_u32 s55, s55, s{sT0}")
    a(f"s_add_u32 s55, s55, {F4}")
    a(f"s_mul_i32 s34, s34, {2 * 86 * 1024}")
    a(f"s_mul_i32 s38, s35, 3")
    a(f"s_lshl_b32 s35, s38, 10")
    a("s_add_u32 s34, s34, s35")
    a(f"s_add_u32 s34, s34, {GF}")
    a(f"s_add_u32 s35, s34, {86 * 1024}")
    a(f"s_mul_i32 s{sT0}, s{sWr2}, 3072")
    a(f"s_add_u32 s{sT0}, s{sT0}, {XEO}")
    a(f"v_add_u32 v{vEr}, s{sT0}, v{vL16}")
    a(f"v_lshl_add_u32 v{vEr + 1}, v{vLane}, 3, s{sT0}")
    for r in range(12):
        a(f"v_mov_b32 v{CS + r}, 0")

    def reads(s):
        st, ss = divmod(s, 2)
        W = []
        for j in range(3):
            for half in range(2):
                reg, off = wl[j & 1].at(WS4[st % NW] + ss * 6144 + half * 8 * 192 + j * 32)
                W.append(f"ds_read_b64_tr_b16 {vr(WF[s & 1] + 4 * j + 2 * half, 2)}, {reg} offset:{off}")
        X = [f"ds_read_b128 {vr(XF[s & 1] + 4 * i, 4)}, v{vXa} offset:{(st % NX) * 8192 + i * 2048 + ss * 1024}"
             for i in range(2)]
        return [X[0], W[0], W[1], X[1], W[2], W[3], W[4], W[5]]

    rt = {}

    def emit_reads(b, s, lo, hi):
        ops = reads(s)
        for k in range(lo, min(hi, 8)):
            rt[(s, k)] = b.lg(ops[k])

    def main(b, s, m):
        j, i = divmod(m, 2)
        d = ACC + 16 * m
        c = "0" if s == 0 else vr(d, 16)
        b(f"v_mfma_f32_32x32x16_bf16 {vr(d, 16)}, {vr(WF[s & 1] + 4 * j, 4)}, {vr(XF[s & 1] + 4 * i, 4)}, {c}")

    def csum(b, s, j):
        b(f"v_mfma_f32_16x16x32_bf16 {vr(CS + 4 * j, 4)}, {vr(WF[s & 1] + 4 * j, 4)}, {vr(ONES, 4)}, {vr(CS + 4 * j, 4)}")

    a(f"s_lshl_b32 s40, s{sRb}, 8")
    a(f"s_add_u32 s40, s40, {F3}")
    poll(a, 40, vT, "p4")
    a("s_barrier")
    stamp(a)
    emit_reads(a, 0, 0, 8)
    a(f"s_cmp_eq_u32 s{sWr2}, 1")
    a("s_cbranch_scc1 L_p4_odd")
    cuts = [0, 2, 4, 6, 8, 8, 8]
    need = [3, 3, 5, 5, 7, 7]
    rt0 = dict(rt)
    odd = fork(a)
    odd.label("L_p4_odd")
    for par, b in ((0, a), (1, odd)):
        rt.clear()
        rt.update(rt0)
        for s in range(31):
            if s % 2 == 1:
                b.wait(lg=rt[(s, 7)])
                b("s_barrier")
            for m in range(6):
                b.wait(lg=rt[(s, need[m])])
                if m % 2 == 0 and s % 2 == par:
                    csum(b, s, m // 2)
                main(b, s, m)
                emit_reads(b, s + 1, cuts[m], cuts[m + 1])
        b.wait_all(vm=False)
        if par == 1:
            for j in range(3):
                csum(b, 31, j)
    odd("s_branch L_p4_join")
    a.label("L_p4_join")
    main(a, 31, 0)
    for j in range(3):
        a(f"v_mov_b32 v{WF[0] + 4 * j + 2}, 0")
        a(f"v_mov_b32 v{WF[0] + 4 * j + 3}, 0")
    main(a, 31, 1)
    a("s_mov_b32 exec_lo, 0x00030003")
    a("s_mov_b32 exec_hi, 0x00030003")
    for j in range(3):
        a.lg(f"ds_write_b128 v{vCw}, {vr(CS + 4 * j, 4)} offset:{j * 128}")
    a("s_mov_b64 exec, -1")
    for i in range(2):
        a.lg(f"ds_read_b128 {vr(XE + 4 * i, 4)}, v{vEr} offset:{i * 1536}")
        a.lg(f"ds_read_b64 {vr(AS + 2 * i, 2)}, v{vEr + 1} offset:{i * 1536 + 1024}")
    main(a, 31, 2)
    main(a, 31, 3)
    a.wait_all(vm=False)
    a("s_barrier")
    for j in range(3):
        rt[("c", j)] = a.lg(f"ds_read_b32 v{vT + 1 + j}, v{vCr} offset:{j * 128}")
    main(a, 31, 4)
    main(a, 31, 5)
    for j in range(3):
        w = WF[0] + 4 * j
        a.wait(lg=rt[("c", j)])
        a(f"v_cvt_pk_bf16_f32 v{w + 1}, v{vT + 1 + j}, 0")
        a(f"v_lshlrev_b32 v{vT}, 16, v{w + 1}")
        a(f"v_sub_f32 v{vT}, v{vT + 1 + j}, v{vT}")
        a(f"v_cvt_pk_bf16_f32 v{w}, v{vT + 1 + j}, v{vT}")
    for j in range(3):
        for i in range(2):
            d = ACC + 32 * j + 16 * i
            a(f"v_mfma_f32_32x32x16_bf16 {vr(d, 16)}, {vr(WF[0] + 4 * j, 4)}, {vr(XE + 4 * i, 4)}, {vr(d, 16)}")
    stamp(a)
    a("s_nop 4")
    for j in range(3):
        a(f"s_cmp_ge_u32 s38, {86 - j}")
        a("s_cbranch_scc1 L_p4_pub")
        Gs = [(ACC + 32 * j + 16 * i + r, i) for i in range(2) for r in range(8)]
        for g, i in Gs[::2]:
            a(f"v_pk_mul_f32 {vr(g, 2)}, {vr(g, 2)}, {vr(AS + 2 * i, 2)} op_sel_hi:[1,0]")
        for g, i in Gs:
            a(f"v_exp_f32 v{g}, v{g}")
        for g, i in Gs[::2]:
            a(f"v_pk_fma_f32 {vr(g, 2)}, {vr(g, 2)}, {vr(AS + 2 * i, 2)}, {vr(AS + 2 * i, 2)} op_sel:[0,1,1] op_sel_hi:[1,1,1]")
        for g, i in Gs:
            a(f"v_rcp_f32 v{g}, v{g}")
        for g, i in Gs[::2]:
            a(f"v_pk_mul_f32 {vr(g, 2)}, {vr(g, 2)}, {vr(g + 8, 2)}")
        o = ACC + 32 * j + 8
        for i in range(8):
            a(f"v_cvt_pk_bf16_f32 v{o + i}, v{Gs[2 * i][0]}, v{Gs[2 * i + 1][0]}")
        stores(a, [f"buffer_store_dwordx4 {vr(o, 4)}, v{vL16}, {sr(sWS, 4)}, s34 offen offset:{j * 1024}",
                   f"buffer_store_dwordx4 {vr(o + 4, 4)}, v{vL16}, {sr(sWS, 4)}, s35 offen offset:{j * 1024}"])
    a.label("L_p4_pub")
    a("s_nop 7")
    stamp(a)
    publish(a, 55, vT)
    a.label("L_p4_skip_c")
    return odd


def gen_fused():
    name = KNAME
    a = Asm()
    a.raw(f".globl {name}")
    a.raw(".p2align 8")
    a.raw(f".type {name},@function")
    a.label(name)
    a("s_cmp_ge_u32 s2, 256")
    a(f"s_cbranch_scc1 L_done")
    stamp_real(a)
    stamp(a)
    if OPT.get("spin"):
        a("s_memrealtime s[98:99]")
    c1, odd1, l1, aux = phase1(a)
    fb = phase2(c1, l1, aux)
    c1(f"s_cmp_ge_u32 s{sWave}, 4")
    c1("s_cbranch_scc0 L_compute")
    h = fork(c1)
    c = fork(c1)
    if OPT.get("det") == 2:
        h.nstamp, h.nostamp = 18, True
    c.label("L_compute")
    phase_res(c, h, True, pre_publish=55)
    odd = phase4(c, h)
    phase_res(c, h, False)
    if OPT.get("det") != 3:
        stamp_flush(h)
    h("s_endpgm")
    c("s_cmp_lg_u32 s2, 0")
    c("s_cbranch_scc1 L_nogen")
    c(f"s_cmp_lg_u32 s{sWave}, 0")
    c("s_cbranch_scc1 L_nogen")
    c(f"v_mov_b32 v12, {GEN}")
    c(f"v_mov_b32 v13, s{sTag}")
    c("s_mov_b64 exec, 1")
    c(f"buffer_store_dword v13, v12, {sr(sWS, 4)}, 0 offen sc1")
    if OPT.get("spin"):
        c("s_load_dwordx2 s[92:93], s[0:1], 64")
        c("s_memrealtime s[96:97]")
        c("s_waitcnt lgkmcnt(0)")
        c("s_sub_u32 s96, s96, s98")
        c("s_mov_b32 s94, 256")
        c("s_mov_b32 s95, 0x00020000")
        c("v_mov_b32 v12, 0")
        c("v_mov_b32 v13, s96")
        c("buffer_store_dword v13, v12, s[92:95], 0 offen")
        c.label("L_dbg_spin")
        c("s_memrealtime s[96:97]")
        c("s_waitcnt lgkmcnt(0)")
        c("s_sub_u32 s96, s96, s98")
        c(f"s_cmp_lt_u32 s96, {OPT['spin']}")
        c("s_cbranch_scc1 L_dbg_spin")
    c.label("L_nogen")
    stamp_flush(c)
    c.label("L_done")
    c("s_endpgm")
    text = (a.text() + l1.text() + aux.text() + odd1.text() + c1.text() + h.text() + c.text() + odd.text() + fb.text())
    return name, text, descriptor(name, 168, 0, sgpr=102), (256, 576, 163840)


def build():
    name, text, desc, (g, b, lds) = gen_fused()
    ref = open(f"cdna_kernels/{NAME}.s.ref").read().split("\n")
    head = [l for l in ref if l.startswith(";") and "@launch" not in l]
    out = "\n".join(head) + "\n"
    out += f"; @launch grid=({g},1,1) block=({b},1,1) lds={lds}\n"
    out += '.amdgcn_target "amdgcn-amd-amdhsa--gfx950"\n.text\n'
    bad = check_hazards(text, name)
    out += text
    out += "L_code_end:\n"
    out += '.section .rodata,"a"\n.p2align 6\n' + desc
    if bad:
        print("hazards:", bad)
    return out


if __name__ == "__main__":
    path = sys.argv[1] if len(sys.argv) > 1 else f"cdna_kernels/{NAME}.s"
    for arg in sys.argv[2:]:
        if arg == "stamps":
            G.STAMPS = True
        else:
            k_, v_ = arg.split("=")
            OPT[k_] = int(v_)
    open(path, "w").write(build())
    print("wrote", path)
```

```python
import sys

import gen as G
from gen import (Asm, Drip, LdsAddr, OPT, MB, QF, KVF, OF, HF, ST, GF, WS_SIZE, LOG2E, NAME, f2u, hx, vr, sr, srd,
                 fork, half_sum, split_hi_lo, code_prefetch, descriptor, check_hazards)

FLG = 11 * MB
F2, F3, F4, XT = FLG, FLG + 8192, FLG + 49152, FLG + 20480
FL1, GEN, FG1 = FLG + 24576, FLG + 28672, FLG + 32768
KVL = 24 * MB
KNAME = NAME + "_kernel"
WS3 = [0, 8192, 16384, 24576, 65536, 73728, 81920, 90112]
RES3 = 155648
WS4 = [32768, 45056, 98304, 110592, 0, 12288, 57344, 69632, 81920]
WS5 = [0, 8192, 16384] + [8192 * i for i in range(4, 14)]
sTag = 53
OPT.update(dict(p3_a=7, p4_a=3, p5_a=7, p5_na=6, down_l2=0, p5_c2=9, p5_nw=11, p4_pf=13, p4_pre=7, p2_map=1, force_slow=0, p1_cnt=1, kv_nt=0, kv_lag=1, early_t=0, gf_late=0, gu_from=512, p1_s3=2, tout_g=0, p1_er=3, p2_defer=0, p2_sched=0, ld=0, touch_out=1, touch2=1, k1_tout=11, p2_fine=0, p2_rot=1, p4_wi=2, sc="sc1"))

sWS, sWave, sHw = 12, 24, 29
sT0, sT1 = 30, 31
KX, KWO, KG, KU, KD, KO = 64, 68, 72, 74, 76, 78
vLane, vL16 = 1, 2


def LD():
    return ["sc1", "nt", "", "sc0 sc1", "sc0"][OPT["ld"]]


def stamp(a, force=False):
    if not G.STAMPS or (getattr(a, "nostamp", False) and not force):
        return
    i = getattr(a, "nstamp", 0)
    a.nstamp = i + 1
    assert i < 20, i
    a("s_memtime s[100:101]")
    a.wait_all(vm=False)
    a(f"s_mov_b32 s{80 + i}, s100")


def stamp_real(a):
    if not G.STAMPS:
        return
    i = getattr(a, "nstamp", 0)
    a.nstamp = i + 1
    a("s_memrealtime s[100:101]")
    a.wait_all(vm=False)
    a(f"s_mov_b32 s{80 + i}, s100")


def stamp_flush(a):
    if not G.STAMPS:
        return
    a.wait_all()
    stamp(a, True)
    stamp_real(a)
    a("s_mov_b64 exec, -1")
    a("s_lshl_b32 s58, s2, 3")
    a(f"s_add_u32 s58, s58, s{sWave}")
    a("s_lshl_b32 s58, s58, 7")
    a(f"s_add_u32 s58, s58, {G.DBGO + MB}")
    a("v_mov_b32 v1, 0")
    for i in range(a.nstamp):
        a(f"v_mov_b32 v2, s{80 + i}")
        a(f"buffer_store_dword v2, v1, {sr(sWS, 4)}, s58 offen offset:{4 * i}")
    a.wait_all()


LMODE = 163840 - 16
sMode = 54
_uid = [0]


def stores(a, ins, always_slow=False):
    if always_slow:
        for x in ins:
            a.vm(x + " sc1")
        return
    _uid[0] += 1
    u = _uid[0]
    a(f"s_cmp_eq_u32 s{sMode}, 0")
    a(f"s_cbranch_scc1 L_st_{u}_s")
    for x in ins:
        a.vm(x)
    a(f"s_branch L_st_{u}_j")
    a.label(f"L_st_{u}_s")
    for x in ins:
        a(x + " sc1")
    a.label(f"L_st_{u}_j")


def publish(a, sOff, vt, always_slow=False):
    a(f"v_mov_b32 v{vt}, 0")
    a(f"v_mov_b32 v{vt + 1}, s{sTag}")
    a("s_mov_b64 exec, 1")
    a.wait_all(lg=False)
    stores(a, [f"buffer_store_dword v{vt + 1}, v{vt}, {sr(sWS, 4)}, s{sOff} offen"], always_slow)
    a("s_mov_b64 exec, -1")


def poll_issue(a, sOff, vt, uid, off):
    a(f"s_cmp_lg_u32 s{sWave}, 0")
    a(f"s_cbranch_scc1 L_pi_{uid}")
    a(f"v_lshlrev_b32 v{vt}, 2, v{vLane}")
    a(f"buffer_load_dword v{vt + 1}, v{vt}, {sr(sWS, 4)}, s{sOff} offen offset:{off} sc1")
    a.label(f"L_pi_{uid}")


def poll(a, sOff, vt, uid, nflags=64, every=False, barrier=True, off=0, issued=False):
    if not every:
        a(f"s_cmp_lg_u32 s{sWave}, 0")
        a(f"s_cbranch_scc1 L_poll_{uid}_go")
    if not issued:
        a(f"v_lshlrev_b32 v{vt}, 2, v{vLane}")
    a("s_mov_b32 s59, 0x40000")
    if nflags < 64:
        a(f"s_mov_b64 exec, {hx((1 << nflags) - 1)}")
    if issued:
        a(f"s_branch L_poll_{uid}_c")
    a.label(f"L_poll_{uid}")
    a(f"buffer_load_dword v{vt + 1}, v{vt}, {sr(sWS, 4)}, s{sOff} offen offset:{off} sc1")
    a.label(f"L_poll_{uid}_c")
    a("s_sub_u32 s59, s59, 1")
    a("s_waitcnt vmcnt(0)")
    a(f"v_cmp_ne_u32 vcc, s{sTag}, v{vt + 1}")
    a("s_cmp_eq_u32 s59, 0")
    a(f"s_cbranch_scc1 L_poll_{uid}_x")
    a(f"s_cbranch_vccnz L_poll_{uid}")
    a.label(f"L_poll_{uid}_x")
    a("s_mov_b64 exec, -1")
    a.label(f"L_poll_{uid}_go")
    if barrier:
        a("s_barrier")


def touch_setup(h):
    srd(h, 16, KWO, 512 * 1024)
    srd(h, 20, KG, 512 * 2752)
    srd(h, 48, KU, 512 * 2752)
    h(f"s_and_b32 s{sT0}, s2, 7")
    h(f"s_lshl_b32 s{sT1}, s{sT0}, 18")
    h(f"s_add_u32 s4, s{KX}, s{sT1}")
    h(f"s_addc_u32 s5, s{KX + 1}, 0")
    srd(h, 44, 4, 256 * 1024)
    h(f"s_mul_i32 s{sT0}, s{sT0}, {172 * 1024}")
    h(f"s_add_u32 s10, s{KD}, s{sT0}")
    h(f"s_addc_u32 s11, s{KD + 1}, 0")
    if OPT["down_l2"]:
        srd(h, 40, KD, 1376 * 1024)
    else:
        srd(h, 40, 10, 172 * 1024)
    h(f"s_lshr_b32 s{sT0}, s2, 3")
    h("v_lshlrev_b32 v3, 7, v1")


def touch_weights(h):
    k0 = OPT["gu_from"]
    n = -(-(512 - k0) * 2752 // (32 * 8192))
    if k0:
        per = -(-k0 * 2752 // 256 // 128) * 128
        assert per <= 8192
        h(f"s_mul_i32 s{sT1}, s2, {per}")
        h(f"v_add_u32 v4, s{sT1}, v3")
        nl = per // 128
        h(f"s_mov_b32 exec_lo, {hx((1 << min(nl, 32)) - 1)}")
        h(f"s_mov_b32 exec_hi, {hx((1 << max(nl - 32, 0)) - 1)}")
        for sq in (20, 48):
            h.vm(f"buffer_load_dword v5, v4, {sr(sq, 4)}, 0 offen")
        h("s_mov_b64 exec, -1")
    for sq, per, n_, base in ((16, 16384, 2, 0), (44, 8192, 1, 0), (40, 49152, 6, 0) if OPT["down_l2"] else (40, 8192, 1, 0), (20, n * 8192, n, k0 * 2752 // 128 * 128),
                              (48, n * 8192, n, k0 * 2752 // 128 * 128)):
        if n_ == 0:
            continue
        h(f"s_mul_i32 s{sT1}, s{sT0}, {per}")
        if base:
            h(f"s_add_u32 s{sT1}, s{sT1}, {base}")
        h(f"v_add_u32 v4, s{sT1}, v3")
        for i in range(n_):
            h.vm(f"buffer_load_dword v5, v4, {sr(sq, 4)}, 0 offen")
            if i + 1 < n_:
                h("v_add_u32 v4, 0x2000, v4")


def phase1(a):
    sX, sW = 20, 16
    sWr, sWc, sCg, sRb = 25, 26, 27, 28
    sWL = 32
    sOnes = 41
    vT = 8
    NSLOT, SLOT, WBASE, NST = 7, 12288, 65536, 16
    CSO = WBASE + NSLOT * SLOT
    RSO = 155648
    XEO = 156672
    a("s_load_dwordx16 s[64:79], s[0:1], 0")
    a("s_load_dwordx2 s[8:9], s[0:1], 72")
    a(f"v_and_b32 v{vLane}, 63, v0")
    a(f"v_lshrrev_b32 v7, 6, v0")
    a(f"v_lshlrev_b32 v{vL16}, 4, v{vLane}")
    a(f"v_readfirstlane_b32 s{sWave}, v7")
    a(f"s_and_b32 s{sT0}, s2, 7")
    a(f"s_lshl_b32 s{sT0}, s{sT0}, 2")
    a(f"s_bfe_u32 s{sT1}, s2, 0x20003")
    a(f"s_add_u32 s{sRb}, s{sT0}, s{sT1}")
    a(f"s_lshr_b32 s{sCg}, s2, 5")
    a(f"s_and_b32 s{sHw}, s{sWave}, 3")
    a(f"s_cmp_eq_u32 s{sWave}, 8")
    a("s_cbranch_scc1 L_p1_aux")
    a(f"s_cmp_ge_u32 s{sWave}, 4")
    a(f"s_cbranch_scc0 L_p1_compute")

    x = fork(a)
    x.label("L_p1_aux")
    x("s_setprio 3")
    x(f"v_lshlrev_b32 v30, 7, v{vLane}")
    x(f"s_lshr_b32 s{sT0}, s2, 3")
    x(f"s_lshl_b32 s{sT0}, s{sT0}, 11")
    x(f"v_add_u32 v30, s{sT0}, v30")
    x("s_mov_b64 exec, 0xffff")
    code_prefetch(x, KNAME, 44, 30, 31, "p1")
    x("s_mov_b64 exec, -1")
    x("s_getreg_b32 s56, hwreg(HW_REG_XCC_ID, 0, 4)")
    x("s_and_b32 s57, s2, 7")
    x("s_lshl_b32 s57, s57, 8")
    x(f"s_add_u32 s57, s57, {XT}")
    x("s_lshr_b32 s58, s2, 3")
    x("s_lshl_b32 s58, s58, 2")
    x(f"v_mov_b32 v6, {GEN}")
    x("s_waitcnt lgkmcnt(0)")
    srd(x, sWS, 8, WS_SIZE)
    x.vm(f"buffer_load_dword v7, v6, {sr(sWS, 4)}, 0 offen")
    x("v_mov_b32 v6, s58")
    x("s_barrier")
    x("s_barrier")
    x.wait_all()
    x(f"v_readfirstlane_b32 s{sTag}, v7")
    x("s_nop 3")
    x(f"s_add_u32 s{sTag}, s{sTag}, 1")
    x(f"s_lshl_b32 s58, s{sTag}, 4")
    x("s_or_b32 s56, s56, s58")
    x("v_mov_b32 v7, s56")
    x("s_mov_b64 exec, 1")
    x.vm(f"buffer_store_dword v7, v6, {sr(sWS, 4)}, s57 offen sc1")
    x("s_mov_b32 exec_lo, -1")
    x("s_mov_b32 exec_hi, 0")
    x(f"v_lshlrev_b32 v6, 2, v{vLane}")
    for st in range(2, NST + 1):
        if st == 12:
            x("s_mov_b32 s59, 0x40000")
            x("s_waitcnt vmcnt(0)")
            x("s_branch L_xt_chk")
            x.label("L_xt_poll")
            x(f"buffer_load_dword v7, v6, {sr(sWS, 4)}, s57 offen sc1")
            x("s_sub_u32 s59, s59, 1")
            x("s_waitcnt vmcnt(0)")
            x.label("L_xt_chk")
            x("v_xor_b32 v8, s56, v7")
            x("v_cmp_lt_u32 vcc, 15, v8")
            x("s_cmp_eq_u32 s59, 0")
            x("s_cbranch_scc1 L_xt_done")
            x("s_cbranch_vccnz L_xt_poll")
            x.label("L_xt_done")
            x("v_cmp_ne_u32 vcc, 0, v8")
            x("s_nop 1")
            x("s_cmp_eq_u64 vcc, 0")
            x(f"s_cselect_b32 s{sMode}, {0 if OPT['force_slow'] else 1}, 0")
            x(f"v_mov_b32 v6, {LMODE}")
            x(f"v_mov_b32 v8, s{sMode}")
            x(f"v_mov_b32 v9, s{sTag}")
            x("ds_write_b64 v6, v[8:9]")
            x("s_waitcnt lgkmcnt(0)")
            x("s_mov_b64 exec, -1")
        x("s_barrier")
        if OPT["early_t"] and st == OPT["early_t"]:
            touch_setup(x)
            touch_weights(x)
        if st == 8:
            x(f"buffer_load_dword v7, v6, {sr(sWS, 4)}, s57 offen sc1")

    h = fork(a)
    vWoff, vXg, vSr, vXe, vRs = 3, 4, 6, 20, 21
    vS, vQ, vM, vR = 22, 23, 24, 25
    XB = 32
    h(f"v_lshrrev_b32 v{vT}, 3, v{vLane}")
    h(f"v_and_b32 v{vT + 1}, 7, v{vLane}")
    h(f"v_lshrrev_b32 v{vT + 2}, 1, v{vT}")
    h(f"v_xor_b32 v{vT + 2}, v{vT + 2}, v{vT + 1}")
    h(f"v_lshlrev_b32 v{vT + 2}, 4, v{vT + 2}")
    h(f"v_lshl_add_u32 v{vXg}, v{vT}, 10, v{vT + 2}")
    h(f"v_xor_b32 v{vXg + 1}, 64, v{vXg}")
    h(f"v_add_u32 v{vXg + 1}, {8 * 1024 - 1024}, v{vXg + 1}")
    h(f"s_lshl_b32 s34, s{sRb}, 16")
    h(f"s_lshl_b32 s{sT0}, s{sHw}, 14")
    h(f"s_add_u32 s34, s34, s{sT0}")
    h(f"s_lshl_b32 s36, s{sHw}, 11")
    h(f"v_lshrrev_b32 v{vT + 2}, 2, v{vLane}")
    h(f"v_and_b32 v{vT + 2}, 4, v{vT + 2}")
    h(f"v_xor_b32 v{vT + 2}, v{vT + 2}, v{vT + 1}")
    h(f"v_lshlrev_b32 v{vT + 2}, 4, v{vT + 2}")
    h(f"v_mul_u32_u24 v{vT + 3}, 3072, v{vT}")
    h(f"s_mul_i32 s{sT0}, s{sHw}, {8 * 3072}")
    h(f"s_lshl_b32 s{sT1}, s{sCg}, 7")
    h(f"s_add_u32 s{sT0}, s{sT0}, s{sT1}")
    h(f"v_add3_u32 v{vWoff}, v{vT + 3}, v{vT + 2}, s{sT0}")
    h(f"s_mul_i32 s{sWL}, s{sHw}, 3072")
    h("s_waitcnt lgkmcnt(0)")
    srd(h, sX, KX, 2048 * 1024)
    srd(h, sW, KX + 2, 512 * 3072)
    d2 = OPT.get("det") == 2
    if d2:
        h.nstamp = 7
        stamp(h)
    dr = Drip(h)

    def x_dma(c, key):
        dr.add(key, [f"s_add_u32 m0, s36, {c * 8192}", f"s_add_u32 s43, s34, {c * 128}"],
               f"buffer_load_dwordx4 v{vXg}, {sr(sX, 4)}, s43 offen lds")
        dr.add(key, [], f"buffer_load_dwordx4 v{vXg + 1}, {sr(sX, 4)}, s43 offen offset:1024 lds")

    def issue(st):
        if st % 2 == 0:
            x_dma(st // 2, st)
        for seg in range(3):
            pre = [f"s_add_u32 m0, s{sWL}, {WBASE + (st % NSLOT) * SLOT}", f"s_mov_b32 s42, {32 * st * 3072}"] if seg == 0 else []
            dr.add(st, pre, f"buffer_load_dwordx4 v{vWoff}, {sr(sW, 4)}, s42 offen offset:{seg * 1024} lds")

    for st in range(NSLOT):
        issue(st)
    AHEAD = OPT["k1_d"]
    dr.through(OPT["k1_t"] - 1)

    def s3(lo, hi):
        for i in range(lo, hi):
            h(f"s_load_dword s52, s[50:51], {(i % 8) * 131072 + 384}")
            h(f"s_load_dword s52, s[50:51], {(i % 8) * 131072 + 448}")

    if OPT["p1_s3"]:
        h(f"s_lshr_b32 s{sT0}, s2, 3")
        h(f"s_lshl_b32 s{sT0}, s{sT0}, 2")
        h(f"s_add_u32 s{sT0}, s{sT0}, s{sHw}")
        h(f"s_lshl_b32 s{sT0}, s{sT0}, 10")
        h(f"s_add_u32 s50, s{KX + 2}, s{sT0}")
        h(f"s_addc_u32 s51, s{KX + 3}, 0")
        s3(0, 7)
    if OPT["k1_touch"]:
        h(f"s_lshl_b32 s{sT0}, s2, 2")
        h(f"s_add_u32 s{sT0}, s{sT0}, s{sHw}")
        h(f"s_mul_i32 s{sT1}, s{sT0}, 1536")
        h(f"s_lshl_b32 s{sT0}, s{sT0}, 11")
        h(f"v_lshlrev_b32 v30, 7, v{vLane}")
        h("s_mov_b64 exec, 0xfff")
        h.vm(f"buffer_load_dword v31, v30, {sr(sW, 4)}, s{sT1} offen")
        h("s_mov_b64 exec, 0xffff")
        h.vm(f"buffer_load_dword v31, v30, {sr(sX, 4)}, s{sT0} offen")
        h("s_mov_b64 exec, -1")
    dr.through(AHEAD - 1)
    srd(h, sWS, 8, WS_SIZE)
    st_tok = {}
    if d2:
        stamp(h)
    for st in range(NST):
        dr.wait(st)
        if d2 and st in (4, 10):
            stamp(h)
        h("s_barrier")
        if d2 and st in (0, 2, 4, 8, 10, 12, 15):
            stamp(h)
        if st == 0 and OPT["p1_s3"]:
            s3(7, 8)
            h(f"s_add_u32 s50, s50, {8 * 131072}")
            h("s_addc_u32 s51, s51, 0")
            s3(8, 12)
        if st >= 1 and st + NSLOT - 1 < NST:
            issue(st + NSLOT - 1)
        tgt = min(NST - 1, st + AHEAD + min(st + 1, OPT["k1_g"]))
        while dr.q and dr.q[0][0] <= tgt:
            dr.emit()
        if st == OPT.get("k1_tout", -1):
            h(f"s_lshl_b32 s{sT0}, s{sCg}, 2")
            h(f"s_add_u32 s{sT0}, s{sT0}, s{sHw}")
            h(f"s_lshl_b32 s{sT0}, s{sT0}, 5")
            h(f"s_add_u32 s{sT0}, s{sT0}, s{sRb}")
            h(f"s_lshl_b32 s{sT1}, s{sT0}, 12")
            h(f"s_add_u32 s{sT1}, s{sT1}, {KVL}")
            h(f"s_lshl_b32 s{sT0}, s{sT0}, 11")
            if QF:
                h(f"s_add_u32 s{sT0}, s{sT0}, {QF}")
            h(f"v_lshlrev_b32 v30, 7, v{vLane}")
            h("s_mov_b64 exec, 0xffff")
            h.vm(f"buffer_load_dword v31, v30, {sr(sWS, 4)}, s{sT0} offen")
            h("s_mov_b32 exec_lo, -1")
            h.vm(f"buffer_load_dword v31, v30, {sr(sWS, 4)}, s{sT1} offen")
            if OPT["tout_g"]:
                h(f"s_sub_u32 s{sT1}, s{sT1}, {KVL - KVF}")
                h.vm(f"buffer_load_dword v31, v30, {sr(sWS, 4)}, s{sT1} offen")
            h("s_mov_b64 exec, -1")
    h(f"v_mov_b32 v{vT}, {LMODE}")
    h.lg(f"ds_read_b64 {vr(vT + 2, 2)}, v{vT}")
    h.wait_all(vm=False)
    h(f"v_readfirstlane_b32 s{sMode}, v{vT + 2}")
    h(f"v_readfirstlane_b32 s{sTag}, v{vT + 3}")
    h("s_barrier")
    h.wait_all()
    if OPT.get("det") != 2:
        stamp(h)
    a = fork(a)
    a.label("L_p1_compute")

    vXrd = [3, 4, 5, 6]
    vKoff, vVoff = 20, 21
    vWrd = [22, 23, 24]
    vCw, vCr, vEr, vRl, vRr = 25, 26, 27, 28, 29
    XF = [32, 36]
    WF = [40, 52]
    CS, ONES, XE = 64, 76, 80
    RV = 84
    accQ, accK, accV = 104, 120, 136
    SQ = 152
    a(f"s_lshr_b32 s{sWr}, s{sHw}, 1")
    a(f"s_and_b32 s{sWc}, s{sHw}, 1")
    a(f"v_and_b32 v{vT}, 31, v{vLane}")
    a(f"v_lshrrev_b32 v{vT + 1}, 5, v{vLane}")
    a(f"v_bfe_u32 v{vT + 2}, v{vLane}, 1, 3")
    a(f"v_xor_b32 v{vT + 2}, v{vT + 2}, v{vT + 1}")
    a(f"v_lshlrev_b32 v{vT + 2}, 4, v{vT + 2}")
    a(f"v_lshl_add_u32 v{vT + 2}, v{vT}, 7, v{vT + 2}")
    a(f"s_lshl_b32 s{sT0}, s{sWr}, 12")
    a(f"v_add_u32 v{vXrd[0]}, s{sT0}, v{vT + 2}")
    for ss in range(1, 4):
        a(f"v_xor_b32 v{vXrd[ss]}, {ss * 32}, v{vXrd[0]}")
    a(f"v_mul_u32_u24 v{vT + 2}, 3072, v{vT + 1}")
    a(f"v_bfe_u32 v{vT + 3}, v{vLane}, 2, 2")
    a(f"v_lshl_add_u32 v{vT + 2}, v{vT + 3}, 7, v{vT + 2}")
    a(f"v_lshrrev_b32 v{vT + 3}, 1, v{vT + 3}")
    a(f"v_xor_b32 v{vT + 3}, s{sWc}, v{vT + 3}")
    a(f"v_lshl_add_u32 v{vT + 2}, v{vT + 3}, 6, v{vT + 2}")
    a(f"v_bfe_u32 v{vT + 4}, v{vLane}, 4, 1")
    a(f"v_lshl_add_u32 v{vT + 2}, v{vT + 4}, 5, v{vT + 2}")
    a(f"v_and_b32 v{vT + 3}, 3, v{vLane}")
    a(f"v_lshl_add_u32 v{vWrd[0]}, v{vT + 3}, 3, v{vT + 2}")
    wl = LdsAddr(a, vWrd)
    wl.setup(a)
    a(f"v_xor_b32 v{vT + 2}, v{vT + 4}, v{vLane}")
    a(f"v_and_b32 v{vT + 2}, 1, v{vT + 2}")
    a(f"v_cmp_eq_u32 vcc, 0, v{vT + 2}")
    a(f"v_mov_b32 v{vT + 2}, 0x3f803f80")
    a("s_nop 0")
    for r in range(4):
        a(f"v_cndmask_b32 v{ONES + r}, 0, v{vT + 2}, vcc")
    a(f"s_lshl_b32 s{sT0}, s{sWc}, 1")
    a(f"s_add_u32 s{sT1}, s{sT0}, s{sWr}")
    a(f"s_mul_i32 s{sT1}, s{sT1}, 384")
    a(f"s_add_u32 s{sT1}, s{sT1}, {CSO}")
    a(f"v_and_b32 v{vT + 2}, 1, v{vLane}")
    a(f"v_lshlrev_b32 v{vT + 2}, 6, v{vT + 2}")
    a(f"v_and_b32 v{vT + 3}, 48, v{vLane}")
    a(f"v_add3_u32 v{vCw}, v{vT + 2}, v{vT + 3}, s{sT1}")
    a(f"s_mul_i32 s{sT0}, s{sT0}, 384")
    a(f"s_add_u32 s{sT0}, s{sT0}, {CSO}")
    a(f"v_mul_u32_u24 v{vT + 2}, 384, v{vT + 1}")
    a(f"v_lshl_add_u32 v{vT + 2}, v{vT}, 2, v{vT + 2}")
    a(f"v_add_u32 v{vCr}, s{sT0}, v{vT + 2}")
    a(f"s_lshl_b32 s{sT0}, s{sHw}, 9")
    a(f"s_add_u32 s{sT0}, s{sT0}, {XEO}")
    a(f"v_lshl_add_u32 v{vEr}, v{vLane}, 3, s{sT0}")
    a(f"v_xor_b32 v31, 512, v{vEr}")
    a(f"s_lshl_b32 s{sT0}, s{sHw}, 7")
    a(f"s_add_u32 s{sT0}, s{sT0}, {RSO}")
    a(f"v_lshl_add_u32 v{vRl}, v{vT}, 2, s{sT0}")
    a(f"v_lshl_add_u32 v{vRr}, v{vT + 1}, 4, s{sT0}")
    a(f"s_mov_b32 s{sOnes}, 0x3f803f80")
    a(f"v_mov_b32 v{SQ}, 0")
    a(f"v_mov_b32 v{SQ + 1}, 0")
    a(f"v_and_b32 v{vT + 2}, 0x33, v{vLane}")
    a(f"v_bfe_u32 v{vT + 3}, v{vLane}, 2, 1")
    a(f"v_lshl_or_b32 v{vT + 2}, v{vT + 3}, 3, v{vT + 2}")
    a(f"v_bfe_u32 v{vT + 3}, v{vLane}, 3, 1")
    a(f"v_lshl_or_b32 v{vT + 2}, v{vT + 3}, 2, v{vT + 2}")
    a(f"v_lshlrev_b32 v{vKoff}, 4, v{vT + 2}")
    a(f"v_lshlrev_b32 v{vT + 2}, 17, v{vT + 4}")
    a(f"v_lshl_add_u32 v{vT + 2}, v{vT + 1}, 8, v{vT + 2}")
    a(f"v_and_b32 v{vT + 3}, 15, v{vLane}")
    a(f"v_lshl_add_u32 v{vVoff}, v{vT + 3}, 4, v{vT + 2}")
    a(f"s_lshl_b32 s{sT0}, s{sCg}, 2")
    a(f"s_lshl_b32 s{sT1}, s{sWc}, 1")
    a(f"s_add_u32 s{sT0}, s{sT0}, s{sT1}")
    a(f"s_lshl_b32 s{sT1}, s{sRb}, 1")
    a(f"s_add_u32 s{sT1}, s{sT1}, s{sWr}")
    a(f"s_lshl_b32 s46, s{sT0}, 16")
    a(f"s_lshl_b32 s47, s{sT1}, 10")
    a(f"s_add_u32 s46, s46, s47")
    if QF:
        a(f"s_add_u32 s46, s46, {QF}")
    a(f"s_add_u32 s47, s46, 65536")
    a(f"s_lshl_b32 s36, s{sT0}, 17")
    a(f"s_lshl_b32 s37, s{sT1}, 11")
    a(f"s_add_u32 s36, s36, s37")
    a(f"s_add_u32 s36, s36, {KVF}")
    a(f"s_add_u32 s37, s36, 131072")
    for r in range(12):
        a(f"v_mov_b32 v{CS + r}, 0")
    a("s_waitcnt lgkmcnt(0)")
    srd(a, sWS, 8, WS_SIZE)
    a(f"s_lshl_b32 s{sT0}, s{sCg}, 1")
    a(f"s_add_u32 s{sT0}, s{sT0}, s{sWc}")
    a(f"s_and_b32 s{sT1}, s{sRb}, 3")
    a(f"s_lshl_b32 s{sT1}, s{sT1}, 1")
    a(f"s_add_u32 s{sT1}, s{sT1}, s{sWr}")
    a(f"s_lshl_b32 s{sT1}, s{sT1}, 2")
    a("s_and_b32 s38, s2, 7")
    a("s_lshl_b32 s48, s38, 9")
    a(f"s_lshl_b32 s39, s{sT0}, 5")
    a("s_add_u32 s48, s48, s39")
    a(f"s_add_u32 s48, s48, s{sT1}")
    a(f"s_add_u32 s48, s48, {FL1}")
    a(f"s_lshl_b32 s49, s{sT0}, 10")
    a("s_lshl_b32 s39, s38, 7")
    a("s_add_u32 s49, s49, s39")
    a(f"s_add_u32 s49, s49, s{sT1}")
    a(f"s_add_u32 s49, s49, {FG1}")
    a(f"s_add_u32 s38, s36, {KVL - KVF}")
    a(f"s_add_u32 s39, s37, {KVL - KVF}")
    a(f"v_mov_b32 v30, {LMODE}")

    def reads(s):
        st, ss = divmod(s, 2)
        ops = [f"ds_read_b128 {vr(XF[s & 1], 4)}, v{vXrd[s & 3]} offset:{(s >> 2) * 8192}"]
        for seg in range(3):
            for half in range(2):
                reg, off = wl.at(WBASE + (st % NSLOT) * SLOT + ss * 6144 + seg * 1024 + half * 512)
                ops.append(f"ds_read_b64_tr_b16 {vr(WF[s & 1] + 4 * seg + 2 * half, 2)}, {reg} offset:{off}")
        return ops

    rt = {}

    def emit_reads(b, s, lo, hi):
        ops = reads(s)
        for k in range(lo, min(hi, 7)):
            rt[(s, k)] = b.lg(ops[k])

    a("s_barrier")
    if OPT.get("det") != 4:
        stamp(a)
    emit_reads(a, 0, 0, 7)
    a(f"s_cmp_lg_u32 s{sWr}, s{sWc}")
    a("s_cbranch_scc1 L_p1_odd")
    rt0 = dict(rt)
    odd = fork(a)
    odd.label("L_p1_odd")
    acc = [accQ, accK, accV]

    def mm(b, j, w, x, first=False):
        c = "0" if first else vr(acc[j], 16)
        ops = (vr(w, 4), vr(x, 4)) if j < 2 else (vr(x, 4), vr(w, 4))
        b(f"v_mfma_f32_32x32x16_bf16 {vr(acc[j], 16)}, {ops[0]}, {ops[1]}, {c}")

    def csum(b, s, j):
        b(f"v_mfma_f32_16x16x32_bf16 {vr(CS + 4 * j, 4)}, {vr(WF[s & 1] + 4 * j, 4)}, {vr(ONES, 4)}, {vr(CS + 4 * j, 4)}")

    def stats(b, s):
        for r in range(4):
            b(f"v_dot2_f32_bf16 v{SQ}, v{XF[s & 1] + r}, s{sOnes}, v{SQ}")
            b(f"v_dot2_f32_bf16 v{SQ + 1}, v{XF[s & 1] + r}, v{XF[s & 1] + r}, v{SQ + 1}")

    for par, b in ((0, a), (1, odd)):
        rt.clear()
        rt.update(rt0)
        for s in range(31):
            if s % 2 == 1:
                b.wait(lg=rt[(s, 6)])
                b("s_barrier")
            cutp = [0, 3, 5, 7]
            for j in range(3):
                b.wait(lg=rt[(s, 2 + 2 * j)])
                if s % 2 == par:
                    csum(b, s, j)
                mm(b, j, WF[s & 1] + 4 * j, XF[s & 1], s == 0)
                emit_reads(b, s + 1, cutp[j], cutp[j + 1])
            if s % 2 != par:
                stats(b, s)
            if s == 27:
                b.lg("ds_read_b64 v[102:103], v30")
        b.wait_all(vm=False)
        if par == 1:
            for j in range(3):
                csum(b, 31, j)
        else:
            stats(b, 31)
    odd("s_branch L_p1_join")
    a.label("L_p1_join")
    mm(a, 0, WF[1], XF[1])
    a(f"v_readfirstlane_b32 s{sMode}, v102")
    a(f"v_readfirstlane_b32 s{sTag}, v103")
    a(f"v_mov_b32 v{SQ + 2}, v{SQ}")
    a(f"v_mov_b32 v{SQ + 3}, v{SQ + 1}")
    a(f"v_mov_b32 v{XE + 2}, 0")
    a(f"v_permlane32_swap_b32 v{SQ}, v{SQ + 2}")
    a(f"v_permlane32_swap_b32 v{SQ + 1}, v{SQ + 3}")
    a(f"v_mov_b32 v{XE + 3}, 0")
    a(f"v_add_f32 v{SQ}, v{SQ}, v{SQ + 2}")
    a(f"v_add_f32 v{SQ + 1}, v{SQ + 1}, v{SQ + 3}")
    a.lg(f"ds_write_b64 v{vEr}, {vr(SQ, 2)}")
    a("s_mov_b32 exec_lo, 0x00030003")
    a("s_mov_b32 exec_hi, 0x00030003")
    for j in range(3):
        a.lg(f"ds_write_b128 v{vCw}, {vr(CS + 4 * j, 4)} offset:{j * 128}")
    a("s_mov_b64 exec, -1")
    mm(a, 1, WF[1] + 4, XF[1])
    for j in range(3):
        a(f"v_mov_b32 v{WF[0] + 4 * j + 2}, 0")
        a(f"v_mov_b32 v{WF[0] + 4 * j + 3}, 0")
    a.wait_all(vm=False)
    a("s_barrier")
    ts = a.lg(f"ds_read_b64 {vr(SQ + 2, 2)}, v31")
    for j in range(3):
        rt[("c", j)] = a.lg(f"ds_read_b32 v{vT + 4 + j}, v{vCr} offset:{j * 128}")
    mm(a, 2, WF[1] + 8, XF[1])
    if OPT.get("det") != 4:
        stamp(a)
    a.wait(lg=ts)
    a(f"v_add_f32 v{SQ}, v{SQ}, v{SQ + 2}")
    a(f"v_add_f32 v{SQ + 1}, v{SQ + 1}, v{SQ + 3}")
    a(f"v_mul_f32 v{SQ}, {hx(f2u(-1.0 / 512))}, v{SQ}")
    a(f"v_mul_f32 v{SQ + 1}, {hx(f2u(1.0 / 512))}, v{SQ + 1}")
    split_hi_lo(a, SQ, XE, vT, vT + 1)
    a(f"v_fma_f32 v{SQ + 1}, -v{SQ}, v{SQ}, v{SQ + 1}")
    a(f"v_cvt_pk_bf16_f32 v{XE + 1}, v{vT}, 0")
    a(f"v_max_f32 v{SQ + 1}, 0, v{SQ + 1}")
    a(f"v_add_f32 v{SQ + 1}, {hx(f2u(1e-5))}, v{SQ + 1}")
    a(f"v_rsq_f32 v100, v{SQ + 1}")
    for j in range(3):
        w = WF[0] + 4 * j
        a.wait(lg=rt[("c", j)])
        a(f"v_cvt_pk_bf16_f32 v{w + 1}, v{vT + 4 + j}, 0")
        a(f"v_lshlrev_b32 v{vT}, 16, v{w + 1}")
        a(f"v_sub_f32 v{vT}, v{vT + 4 + j}, v{vT}")
        a(f"v_cvt_pk_bf16_f32 v{w}, v{vT + 4 + j}, v{vT}")
        if j == 0:
            a.lg(f"ds_write_b32 v{vRl}, v100")
    for j in range(3):
        mm(a, j, WF[0] + 4 * j, XE)
    a(f"v_mul_f32 v101, {hx(f2u(0.25 * LOG2E))}, v100")
    for g in range(4):
        trv = a.lg(f"ds_read_b128 {vr(RV + 4 * g, 4)}, v{vRr} offset:{g * 32}")
    a("s_nop 4")
    P = 32
    for r in range(0, 16, 2):
        a(f"v_pk_mul_f32 {vr(accQ + r, 2)}, {vr(accQ + r, 2)}, v[100:101] op_sel:[0,1] op_sel_hi:[1,1]")
    for i in range(8):
        a(f"v_cvt_pk_bf16_f32 v{P + i}, v{accQ + 2 * i}, v{accQ + 2 * i + 1}")
    stores(a, [f"buffer_store_dwordx4 {vr(P, 4)}, v{vL16}, {sr(sWS, 4)}, s46 offen",
               f"buffer_store_dwordx4 {vr(P + 4, 4)}, v{vL16}, {sr(sWS, 4)}, s47 offen"])
    for r in range(0, 16, 2):
        a(f"v_pk_mul_f32 {vr(accK + r, 2)}, {vr(accK + r, 2)}, v[100:101] op_sel_hi:[1,0]")
    for i in range(8):
        a(f"v_cvt_pk_bf16_f32 v{P + 8 + i}, v{accK + 2 * i}, v{accK + 2 * i + 1}")
    stores(a, [f"buffer_store_dwordx4 {vr(P + 8, 4)}, v{vKoff}, {sr(sWS, 4)}, s38 offen",
               f"buffer_store_dwordx4 {vr(P + 12, 4)}, v{vKoff}, {sr(sWS, 4)}, s39 offen"])
    a.wait(lg=trv)
    for r in range(0, 16, 2):
        a(f"v_pk_mul_f32 {vr(accV + r, 2)}, {vr(accV + r, 2)}, {vr(RV + r, 2)}")
    for i in range(8):
        a(f"v_cvt_pk_bf16_f32 v{P + 16 + i}, v{accV + 2 * i}, v{accV + 2 * i + 1}")
    stores(a, [f"buffer_store_dwordx4 {vr(P + 16, 4)}, v{vVoff}, {sr(sWS, 4)}, s38 offen offset:1024",
               f"buffer_store_dwordx4 {vr(P + 20, 4)}, v{vVoff}, {sr(sWS, 4)}, s38 offen offset:1536"])
    loc = a.vm_issued - 1
    a.vm(f"buffer_store_dwordx4 {vr(P + 8, 4)}, v{vKoff}, {sr(sWS, 4)}, s36 offen sc1")
    a.vm(f"buffer_store_dwordx4 {vr(P + 12, 4)}, v{vKoff}, {sr(sWS, 4)}, s37 offen sc1")
    a.vm(f"buffer_store_dwordx4 {vr(P + 16, 4)}, v{vVoff}, {sr(sWS, 4)}, s36 offen offset:1024 sc1")
    a.vm(f"buffer_store_dwordx4 {vr(P + 20, 4)}, v{vVoff}, {sr(sWS, 4)}, s36 offen offset:1536 sc1")
    stamp(a)
    a(f"v_mov_b32 v{vT}, 0")
    a(f"v_mov_b32 v{vT + 1}, s{sTag}")
    a("s_mov_b64 exec, 1")
    if OPT["p1_cnt"]:
        a.wait(vm=loc)
    else:
        a.wait_all(lg=False)
    stores(a, [f"buffer_store_dword v{vT + 1}, v{vT}, {sr(sWS, 4)}, s48 offen"])
    if OPT.get("det") == 4:
        stamp(a)
    a("s_mov_b64 exec, -1")
    return a, odd, h, x


def phase2(a, l, h):
    sHead, sQb, sKh, sQs = 25, 26, 27, 28
    sVm = 34
    vKrd, vVrd, vIdx, vXw, vXr = 3, 4, 5, 6, 7
    Qf = [8, 12]
    Kf, Vf = 16, 32
    S = [64, 80]
    O = [96, 112]
    NEG = 128
    T = 144
    XCH = 131072
    BARS, CB = [[6, 12, 28], {2: 1, 4: 3}] if OPT["p2_sched"] == 0 else [[6, 14, 22, 36], {2: 1, 3: 2, 5: 4}]
    SYN = XCH + 7 * 3072 + 2048 + 4
    h(f"v_mov_b32 v22, {SYN}")
    h("v_mov_b32 v23, 0")
    h("ds_write_b32 v22, v23")
    h("ds_write_b32 v22, v23 offset:4")
    h("ds_write_b32 v22, v23 offset:8")

    def ready(n):
        h(f"v_mov_b32 v23, {n}")
        h("ds_write_b32 v22, v23")

    def wait_prog(k):
        h("s_mov_b32 s59, 0x100000")
        h.label(f"L_prog{k}")
        h(f"ds_read_b32 v24, v22 offset:{4 + 4 * k}")
        h("s_sub_u32 s59, s59, 1")
        h("s_waitcnt lgkmcnt(0)")
        h("v_readfirstlane_b32 s36, v24")
        h("s_cmp_eq_u32 s59, 0")
        h(f"s_cbranch_scc1 L_prog{k}_x")
        h("s_cmp_ge_u32 s36, 512")
        h(f"s_cbranch_scc1 L_prog{k}_x")
        h("s_sleep 4")
        h(f"s_branch L_prog{k}")
        h.label(f"L_prog{k}_x")

    h(f"s_lshr_b32 s{sHead}, s2, 3")
    h(f"s_lshl_b32 s33, s{sHead}, 17")
    h(f"s_add_u32 s33, s33, {KVF}")
    h(f"s_lshr_b32 s61, s{sHead}, 1")
    h("s_lshl_b32 s61, s61, 10")
    h(f"s_add_u32 s61, s61, {FG1}")
    h(f"v_lshrrev_b32 v6, 3, v{vLane}")
    h("v_lshlrev_b32 v6, 7, v6")
    h(f"v_and_b32 v7, 7, v{vLane}")
    h("v_lshl_add_u32 v6, v7, 2, v6")
    h("s_mov_b64 s[62:63], 0")
    h("s_mov_b32 s59, 0x40000")
    h("s_waitcnt lgkmcnt(0)")
    h("s_barrier")
    h.nostamp = OPT.get("det") != 3
    stamp(h)
    ctok = {}
    for c in range(1, 9):
        h(f"s_add_u32 s36, s2, {c}")
        h("s_and_b32 s36, s36, 7")
        h("s_lshl_b32 s36, s36, 3")
        h("s_bitcmp1_b64 s[62:63], s36")
        h(f"s_cbranch_scc1 L_g1_have{c}")
        h.label(f"L_g1_poll{c}")
        h(f"buffer_load_dword v7, v6, {sr(sWS, 4)}, s61 offen sc1")
        h("s_sub_u32 s59, s59, 1")
        h("s_waitcnt vmcnt(0)")
        if c >= 2:
            ready(c - 1)
        h(f"v_cmp_eq_u32 vcc, s{sTag}, v7")
        h("s_cmp_eq_u32 s59, 0")
        h("s_cselect_b64 s[62:63], -1, vcc")
        h("s_cselect_b32 s59, 1, s59")
        for sh in (1, 2, 4):
            h(f"s_lshr_b64 s[34:35], s[62:63], {sh}")
            h("s_and_b64 s[62:63], s[62:63], s[34:35]")
        h("s_bitcmp1_b64 s[62:63], s36")
        h(f"s_cbranch_scc0 L_g1_poll{c}")
        h.label(f"L_g1_have{c}")
        if c in (1, 2, 4, 8):
            stamp(h)
        if c == 8:
            break
        h("s_lshl_b32 s36, s36, 11")
        h("s_add_u32 s36, s36, s33")
        for half in range(2):
            for q in range(2):
                h(f"s_mov_b32 m0, {half * 65536 + c * 8192 + q * 4096}")
                h(f"s_add_u32 s37, s36, {half * 8192 + q * 4096}")
                for i in range(4):
                    ctok[c] = h.vm(f"buffer_load_dwordx4 v{vL16}, {sr(sWS, 4)}, s37 offen offset:{i * 1024} sc1{' nt' if OPT['kv_nt'] else ''} lds")
        lag = 1 if c <= 2 else OPT["kv_lag"]
        if c - lag >= 1:
            h.wait(vm=ctok[c - lag])
            ready(c - lag)
    if not OPT['early_t']:
        touch_setup(h)
    h(f"v_lshrrev_b32 v8, 3, v{vLane}")
    h(f"v_and_b32 v9, 7, v{vLane}")
    h(f"v_lshrrev_b32 v10, 2, v{vLane}")
    h("v_and_b32 v10, 4, v10")
    h("v_xor_b32 v10, v10, v9")
    h("v_lshlrev_b32 v10, 4, v10")
    h("v_lshl_add_u32 v10, v8, 10, v10")
    h("v_lshrrev_b32 v11, 1, v8")
    h("v_xor_b32 v11, v11, v9")
    h("v_lshlrev_b32 v11, 4, v11")
    h("v_lshl_add_u32 v11, v8, 10, v11")
    h("v_xor_b32 v12, 64, v11")
    h(f"v_and_b32 v13, 2, v{vLane}")
    h("v_lshlrev_b32 v13, 5, v13")
    h("v_sub_u32 v13, 32, v13")
    h("s_lshr_b32 s61, s2, 4")
    h("s_mul_i32 s61, s61, 192")
    for i in range(3):
        h(f"v_add_u32 v14, {64 * i}, v{vLane}")
        h("v_mul_u32_u24 v14, 171, v14")
        h("v_lshrrev_b32 v14, 11, v14")
        h(f"v_mul_u32_u24 v14, {2752 - 192}, v14")
        h(f"v_add3_u32 v{16 + i}, v{vL16}, v14, s61")
        h(f"v_add_u32 v{19 + i}, v{16 + i}, v13")
    h("s_bfe_u32 s60, s2, 0x30003")
    h("s_lshl_b32 s60, s60, 7")
    h.wait(vm=ctok[7])
    ready(7)
    stamp(h)
    if not OPT['early_t']:
        touch_weights(h)
    if OPT["touch_out"]:
        h("s_and_b32 s58, s2, 7")
        for base, gsz, per, n in ((HF, 262144, 8192, 1), (GF, 8 * 86 * 1024, 22016, 3))[:1 if OPT["gf_late"] else 2]:
            h(f"s_mul_i32 s{sT1}, s{sT0}, {per}")
            h(f"s_mul_i32 s36, s58, {gsz}")
            h(f"s_add_u32 s36, s36, s{sT1}")
            h(f"s_add_u32 s36, s36, {base}")
            for i in range(n):
                h.vm(f"buffer_load_dword v5, v3, {sr(sWS, 4)}, s36 offen {['', '', 'nt', 'sc1'][OPT['touch_out']]}")
                if i + 1 < n:
                    h("s_add_u32 s36, s36, 0x2000")
    if OPT["touch2"]:
        h("v_lshrrev_b32 v4, 3, v1")
        h("v_lshlrev_b32 v4, 15, v4")
        h("v_and_b32 v6, 7, v1")
        h("v_lshl_add_u32 v4, v6, 7, v4")
        h("s_and_b32 s36, s2, 7")
        h("s_lshl_b32 s36, s36, 18")
        h(f"s_lshl_b32 s{sT1}, s{sHead}, 10")
        h(f"s_add_u32 s36, s36, s{sT1}")
        h(f"s_add_u32 s36, s36, {OF}")
        h.vm(f"buffer_load_dword v5, v4, {sr(sWS, 4)}, s36 offen")
        h("s_lshl_b32 s36, s2, 10")
        h(f"s_add_u32 s36, s36, {ST}")
        h("s_mov_b64 exec, 0xff")
        h.vm(f"buffer_load_dword v5, v3, {sr(sWS, 4)}, s36 offen")
        h("s_mov_b64 exec, -1")
    h(f"s_lshl_b32 s{sT1}, s{sT0}, 11")
    h(f"v_add_u32 v4, s{sT1}, v3")
    h("s_mov_b64 exec, 0xffff")
    code_prefetch(h, "L_p2_tail", 38, 4, 5, "p2")
    h("s_mov_b64 exec, -1")
    stamp(h)
    wait_prog(0)
    stamp(h)
    for half in range(2):
        h(f"s_mov_b32 m0, {half * 65536}")
        h(f"s_add_u32 s36, s60, {half * 32 * 8192}")
        h("s_mov_b32 s37, 32")
        h.label(f"L_pre_wo{half}")
        h(f"buffer_load_dwordx4 v10, {sr(16, 4)}, s36 offen lds")
        h("s_add_u32 m0, m0, 1024")
        h("s_add_u32 s36, s36, 8192")
        h("s_sub_u32 s37, s37, 1")
        h("s_cmp_lg_u32 s37, 0")
        h(f"s_cbranch_scc1 L_pre_wo{half}")
        h("s_waitcnt vmcnt(16)")
    h("s_lshr_b32 s36, s2, 6")
    h("s_lshl_b32 s36, s36, 16")
    h("s_add_u32 s36, s36, s60")
    for i in range(8):
        h(f"s_mov_b32 m0, {RES3 + i * 1024}")
        h(f"s_add_u32 s37, s36, {i * 8192}")
        h(f"buffer_load_dwordx4 v{11 + (i & 1)}, {sr(44, 4)}, s37 offen lds")
    h("s_waitcnt vmcnt(16)")
    h("s_cmp_ge_u32 s2, 240")
    h("s_cbranch_scc1 L_pre_end")
    stamp(h)
    wait_prog(1)
    stamp(h)
    for st in range(4):
        for g2 in range(2):
            for mat in range(2):
                h(f"s_mov_b32 m0, {WS4[st] + (g2 * 2 + mat) * 3072}")
                h(f"s_mov_b32 s36, {(st * 32 + g2 * 16) * 2752}")
                for i in range(3):
                    h(f"buffer_load_dwordx4 v{16 + 3 * mat + i}, {sr(20 if mat == 0 else 48, 4)}, s36 offen offset:{i * 1024} lds")
        h("s_waitcnt vmcnt(40)")
    stamp(h)
    h.label("L_pre_end")
    h("s_waitcnt vmcnt(0)")
    if OPT.get("det") == 3:
        h(f"s_mov_b32 s{sWave}, 4")
        stamp_flush(h)
    h("s_endpgm")

    def init(b):
        b(f"s_lshr_b32 s{sHead}, s2, 3")
        b(f"s_and_b32 s{sQb}, s2, 7")
        b(f"s_lshr_b32 s{sKh}, s{sWave}, 2")
        b(f"s_and_b32 s{sQs}, s{sWave}, 3")
        b(f"v_and_b32 v{T}, 27, v{vLane}")
        b(f"v_cmp_eq_u32 vcc, 16, v{T}")
        b(f"v_mov_b32 v{T}, 0x3f803f80")
        b(f"v_mov_b32 v{vIdx}, 0xdddd")
        for r in range(32):
            b(f"v_cndmask_b32 v{Vf + r}, 0, v{T}, vcc")
        b(f"s_mov_b32 s{sVm}, 0x0000ffff")
        b(f"s_mov_b32 s{sVm + 1}, 0x0000ffff")
        b(f"s_lshl_b32 s{sT0}, s{sKh}, 16")
        b(f"v_add_u32 v{vKrd}, s{sT0}, v{vL16}")
        b(f"v_lshrrev_b32 v{T}, 5, v{vLane}")
        b(f"v_and_b32 v{T + 1}, 15, v{vLane}")
        b(f"v_lshlrev_b32 v{T + 1}, 4, v{T + 1}")
        b(f"v_lshl_add_u32 v{T}, v{T}, 8, v{T + 1}")
        b(f"v_add_u32 v{vVrd}, s{sT0}, v{T}")
        b(f"s_mul_i32 s{sT0}, s{sWave}, 3072")
        b(f"s_add_u32 s{sT0}, s{sT0}, {XCH}")
        b(f"v_add_u32 v{vXw}, s{sT0}, v{vL16}")
        b(f"s_xor_b32 s{sT1}, s{sWave}, 4")
        b(f"s_mul_i32 s{sT0}, s{sT1}, 3072")
        b(f"s_add_u32 s{sT0}, s{sT0}, {XCH}")
        b(f"v_add_u32 v{vXr}, s{sT0}, v{vL16}")
        b(f"s_lshl_b32 s{sT0}, s{sQs}, 1")
        b(f"s_add_u32 s{sT0}, s{sT0}, s{sKh}")
        b(f"s_lshl_b32 s{sT0}, s{sT0}, 10")
        b(f"s_add_u32 s{sT0}, s{sT0}, {XCH}")
        b(f"v_add_u32 v{T + 2}, s{sT0}, v{vL16}")
        b(f"v_xor_b32 v{T + 3}, 1024, v{T + 2}")
        b(f"v_mov_b32 v{T + 6}, {SYN}")
        b(f"v_mov_b32 v{T + 7}, 1")
        for c in range(2):
            for r in range(16):
                b(f"v_mov_b32 v{O[c] + r}, 0")
        b(f"s_lshl_b32 s57, s{sQb}, 2")
        b(f"s_add_u32 s57, s57, s{sQs}")
        b(f"s_lshl_b32 s55, s57, 8")
        b(f"s_lshl_b32 s{sT1}, s{sHead}, 1")
        b(f"s_add_u32 s{sT1}, s{sT1}, s{sKh}")
        b(f"s_lshl_b32 s{sT1}, s{sT1}, 2")
        b(f"s_add_u32 s55, s55, s{sT1}")
        b(f"s_add_u32 s55, s55, {F2}")
        b(f"s_lshl_b32 s57, s57, 1")
        b(f"s_add_u32 s57, s57, s{sKh}")
        b(f"s_lshl_b32 s57, s57, 15")
        b(f"s_lshl_b32 s{sT1}, s{sHead}, 10")
        b(f"s_add_u32 s57, s57, s{sT1}")
        b(f"s_add_u32 s57, s57, {OF}")

    init(l)
    l(f"s_lshl_b32 s40, s{sQb}, 9")
    l(f"s_lshr_b32 s{sT0}, s{sHead}, 1")
    l(f"s_lshl_b32 s{sT0}, s{sT0}, 5")
    l(f"s_add_u32 s40, s40, s{sT0}")
    l(f"s_add_u32 s40, s40, {FL1}")
    l(f"s_lshl_b32 s36, s{sHead}, 17")
    l(f"s_lshl_b32 s{sT0}, s{sQb}, 14")
    l(f"s_add_u32 s36, s36, s{sT0}")
    l(f"s_lshl_b32 s{sT0}, s{sQs}, 12")
    l(f"s_add_u32 s36, s36, s{sT0}")
    l(f"s_lshr_b32 s37, s36, 1")
    l(f"s_add_u32 s36, s36, {KVL}")
    if QF:
        l(f"s_add_u32 s37, s37, {QF}")
    l(f"s_lshr_b32 s38, s{sQs}, 1")
    l("s_lshl_b32 s38, s38, 16")
    l(f"s_and_b32 s{sT0}, s{sQs}, 1")
    l(f"s_lshl_b32 s{sT0}, s{sT0}, 12")
    l(f"s_add_u32 s38, s38, s{sT0}")
    l(f"s_lshl_b32 s39, s{sQs}, 11")
    l(f"s_add_u32 s39, s39, {XCH}")
    l(f"v_lshlrev_b32 v{T + 4}, 2, v{vLane}")
    l("s_mov_b32 s59, 0x40000")
    l("s_mov_b64 exec, 0xff")
    l.label("L_poll_l1")
    l(f"buffer_load_dword v{T + 5}, v{T + 4}, {sr(sWS, 4)}, s40 offen sc1")
    l("s_sub_u32 s59, s59, 1")
    l.wait_all(lg=False)
    l(f"v_cmp_ne_u32 vcc, s{sTag}, v{T + 5}")
    l("s_cmp_eq_u32 s59, 0")
    l("s_cbranch_scc1 L_poll_l1_x")
    l("s_cbranch_vccnz L_poll_l1")
    l.label("L_poll_l1_x")
    if OPT.get("det") != 2:
        stamp(l)
    l("s_mov_b64 exec, -1")
    l("s_mov_b32 m0, s39")
    l("s_nop 0")
    for i in range(2):
        l.vm(f"buffer_load_dwordx4 v{vL16}, {sr(sWS, 4)}, s37 offen offset:{i * 1024} sc1 lds")
    l("s_mov_b32 m0, s38")
    l("s_nop 0")
    for i in range(4):
        l.vm(f"buffer_load_dwordx4 v{vL16}, {sr(sWS, 4)}, s36 offen offset:{i * 1024} sc1 lds")
    l.wait_all()
    if OPT.get("det") != 2:
        stamp(l)
    l("s_branch L_p2_b0")
    init(a)
    a(f"v_mov_b32 v{T + 4}, 0")
    a(f"v_mov_b32 v{T + 5}, s{sTag}")

    def gflag():
        a.wait_all(lg=False)
        a("s_mov_b64 exec, 1")
        a.vm(f"buffer_store_dword v{T + 5}, v{T + 4}, {sr(sWS, 4)}, s49 offen sc1")
        a("s_mov_b64 exec, -1")

    if not OPT["p2_defer"]:
        gflag()
    if OPT.get("det") == 4:
        stamp(a)
    a.label("L_p2_b0")

    def emit_pair(p):
        for t in (2 * p, 2 * p + 1):
            a.lg(f"ds_read_b128 {vr(Kf + 4 * (t & 3), 4)}, v{vKrd} offset:{t * 2048}")
        a(f"s_mov_b64 exec, {sr(sVm, 2)}")
        for t in (2 * p, 2 * p + 1):
            a.lg(f"ds_read_b128 {vr(Vf + 8 * (t & 3), 4)}, v{vVrd} offset:{t * 2048 + 1024}")
            tok = a.lg(f"ds_read_b128 {vr(Vf + 8 * (t & 3) + 4, 4)}, v{vVrd} offset:{t * 2048 + 1536}")
        a("s_mov_b64 exec, -1")
        return tok

    def qk(u):
        t, c = divmod(u, 2)
        return f"v_mfma_f32_32x32x16_bf16 {vr(S[u & 1], 16)}, {vr(Kf + 4 * (t & 3), 4)}, {vr(Qf[c], 4)}, 0"

    def pv(u, i):
        t, c = divmod(u, 2)
        return (f"v_smfmac_f32_32x32x32_bf16 {vr(O[c], 16)}, {vr(Vf + 8 * (t & 3) + 4 * i, 4)}, "
                f"{vr(S[u & 1] + 8 * i, 8)}, v{vIdx}")

    NU = 64
    PRIO = {0: 2, 29: 1, 53: 0}
    rtok = {}

    def need(u, n):
        a.wait(lg=rtok[u])
        a.label(f"L_rdy{u}")
        a(f"v_readfirstlane_b32 s36, v{T + 8}")
        a("s_nop 0")
        a(f"s_cmp_ge_u32 s36, {n}")
        a(f"s_cbranch_scc0 L_rdy{u}_spin")
        sp.label(f"L_rdy{u}_spin")
        sp("s_sleep 2")
        sp(f"ds_read_b32 v{T + 8}, v{T + 6}")
        sp("s_sub_u32 s59, s59, 1")
        sp("s_waitcnt lgkmcnt(0)")
        sp("s_cmp_lg_u32 s59, 0")
        sp(f"s_cbranch_scc1 L_rdy{u}")
        sp("s_mov_b32 s59, 1")
        sp(f"v_mov_b32 v{T + 8}, 7")
        sp("s_nop 0")
        sp(f"s_branch L_rdy{u}")

    sp = Asm()
    a("s_mov_b32 s59, 0x100000")
    a("s_barrier")
    stamp(a)
    a.lg(f"ds_read_b128 {vr(Qf[0], 4)}, v{T + 2}")
    a.lg(f"ds_read_b128 {vr(Qf[1], 4)}, v{T + 3}")
    ptok = {0: emit_pair(0)}
    a.wait(lg=ptok[0] - 5)
    a(qk(0))
    if OPT["p2_defer"]:
        a(f"s_cmp_lg_u32 s{sKh}, 0")
        a("s_cbranch_scc1 L_p2_nogf")
        gflag()
        a.label("L_p2_nogf")
    a.wait(lg=ptok[0])
    a("s_nop 9")
    for u in range(NU):
        X = S[u & 1]
        p, pu = divmod(u, 4)
        if u in PRIO:
            a(f"s_setprio {PRIO[u]}")
        ex = [f"v_exp_f32 v{X + i}, v{X + i}" for i in range(16)]
        a(ex[0]); a(ex[1])
        if u > 0:
            a(pv(u - 1, 1))
        a(ex[2]); a(ex[3]); a(ex[4])
        if u + 1 < NU:
            if pu == 3:
                a.wait(lg=ptok[p + 1])
            a(qk(u + 1))
        late = p + 1 == 2
        if p + 1 < 16 and pu == (2 if late else 0):
            if (p + 1) % 2 == 0:
                need(u, (p + 1) // 2)
            ptok[p + 1] = emit_pair(p + 1)
            if u in (28, 52):
                a.lg(f"ds_add_u32 v{T + 6}, v{T + 7} offset:{4 if u == 28 else 8}")
        nu = u + 1
        if nu < NU and (nu // 4 + 1) % 2 == 0 and nu // 4 + 1 < 16 and nu % 4 == (2 if nu // 4 + 1 == 2 else 0):
            rtok[nu] = a.lg(f"ds_read_b32 v{T + 8}, v{T + 6}")
        for i in range(5, 10):
            a(ex[i])
        a(pv(u, 0))
        for i in range(10, 16):
            a(ex[i])
    a.label("L_p2_tail")
    a("s_nop 1")
    a(pv(NU - 1, 1))
    a(f"s_mov_b32 s{sT0}, {hx(f2u(2.0 ** 80))}")
    a(f"s_mov_b32 s{sT1}, {hx(f2u(2.0 ** -80))}")
    a("s_mov_b32 s56, 0")
    a("s_nop 8")
    a.lg(f"ds_write_b128 v{vXw}, {vr(O[1], 4)}")
    a.lg(f"ds_write_b128 v{vXw}, {vr(O[1] + 4, 4)} offset:1024")
    a.lg(f"ds_write_b32 v{vXw}, v{O[1] + 8} offset:2048")
    a.wait_all(vm=False)
    a("s_barrier")
    t2 = a.lg(f"ds_read_b32 v{T + 8}, v{vXr} offset:2048")
    a.lg(f"ds_read_b128 {vr(T, 4)}, v{vXr}")
    t1 = a.lg(f"ds_read_b128 {vr(T + 4, 4)}, v{vXr} offset:1024")
    a.wait(lg=t2)
    a(f"v_add_f32 v{O[0] + 8}, v{O[0] + 8}, v{T + 8}")
    a.wait(lg=t1)
    for r in range(0, 8, 2):
        a(f"v_pk_add_f32 {vr(O[0] + r, 2)}, {vr(O[0] + r, 2)}, {vr(T + r, 2)}")
    a.label("L_p2_finish")
    a(f"v_rcp_f32 v{T + 8}, v{O[0] + 8}")
    a(f"v_cmp_gt_f32 s[40:41], s{sT0}, v{O[0] + 8}")
    a(f"v_cmp_lt_f32 s[42:43], s{sT1}, v{O[0] + 8}")
    for r in range(0, 8, 2):
        a(f"v_pk_mul_f32 {vr(O[0] + r, 2)}, {vr(O[0] + r, 2)}, {vr(T + 8, 2)} op_sel_hi:[1,0]")
    for i in range(4):
        a(f"v_cvt_pk_bf16_f32 v{T + 4 + i}, v{O[0] + 2 * i}, v{O[0] + 2 * i + 1}")
    a(f"v_dot2_f32_bf16 v{T}, v{T + 4}, v{T + 4}, 0")
    for i in range(1, 4):
        a(f"v_dot2_f32_bf16 v{T}, v{T + 4 + i}, v{T + 4 + i}, v{T}")
    a("s_and_b64 s[40:41], s[40:41], s[42:43]")
    a("s_cmp_lg_u32 s56, 0")
    a("s_cbranch_scc1 L_p2_store")
    a(f"v_cmp_gt_f32 vcc, s{sT0}, v{T}")
    a("s_nop 0")
    a("s_and_b64 s[40:41], s[40:41], vcc")
    a("s_cmp_eq_u64 s[40:41], -1")
    a("s_cbranch_scc0 L_p2_fallback")
    a.label("L_p2_store")
    stores(a, [f"buffer_store_dwordx4 {vr(T + 4, 4)}, v{vL16}, {sr(sWS, 4)}, s57 offen"])
    a("s_barrier")
    stamp(a)

    f = Asm()
    f.label("L_p2_fallback")
    vV2, vM = T + 11, T + 12
    f(f"s_lshl_b32 s37, s{sKh}, 16")
    f(f"v_subrev_u32 v{vV2}, s37, v{vVrd}")
    f(f"s_lshl_b32 s36, s{sHead}, 17")
    f(f"s_add_u32 s36, s36, {KVF}")
    f(f"v_mov_b32 v{vM}, 0xff800000")
    f("s_mov_b32 s56, 0")
    f("s_mov_b32 s37, s36")
    f.label("L_p2_fb_max")
    f(f"buffer_load_dwordx4 {vr(Kf, 4)}, v{vL16}, {sr(sWS, 4)}, s37 offen sc1")
    f("s_waitcnt vmcnt(0)")
    f(f"v_mfma_f32_32x32x16_bf16 {vr(S[0], 16)}, {vr(Kf, 4)}, {vr(Qf[0], 4)}, 0")
    f("s_nop 15")
    for i in range(8):
        f(f"v_max3_f32 v{vM}, v{vM}, v{S[0] + 2 * i}, v{S[0] + 2 * i + 1}")
    f("s_add_u32 s37, s37, 2048")
    f("s_add_u32 s56, s56, 1")
    f("s_cmp_lt_u32 s56, 64")
    f("s_cbranch_scc1 L_p2_fb_max")
    f(f"v_mov_b32 v{T}, v{vM}")
    f("s_nop 1")
    f(f"v_permlane32_swap_b32 v{vM}, v{T}")
    f("s_nop 1")
    f(f"v_max_f32 v{vM}, v{vM}, v{T}")
    for r in range(16):
        f(f"v_sub_f32 v{NEG + r}, 0, v{vM}")
        f(f"v_mov_b32 v{O[0] + r}, 0")
    f("s_mov_b32 s56, 0")
    f("s_mov_b32 s37, s36")
    f.label("L_p2_fb_pv")
    f(f"buffer_load_dwordx4 {vr(Kf, 4)}, v{vL16}, {sr(sWS, 4)}, s37 offen sc1")
    f(f"s_mov_b64 exec, {sr(sVm, 2)}")
    f(f"buffer_load_dwordx4 {vr(Vf, 4)}, v{vV2}, {sr(sWS, 4)}, s37 offen offset:1024 sc1")
    f(f"buffer_load_dwordx4 {vr(Vf + 4, 4)}, v{vV2}, {sr(sWS, 4)}, s37 offen offset:1536 sc1")
    f("s_mov_b64 exec, -1")
    f("s_waitcnt vmcnt(0)")
    f(f"v_mfma_f32_32x32x16_bf16 {vr(S[0], 16)}, {vr(Kf, 4)}, {vr(Qf[0], 4)}, {vr(NEG, 16)}")
    f("s_nop 15")
    for i in range(16):
        f(f"v_exp_f32 v{S[0] + i}, v{S[0] + i}")
    f("s_nop 1")
    f(f"v_smfmac_f32_32x32x32_bf16 {vr(O[0], 16)}, {vr(Vf, 4)}, {vr(S[0], 8)}, v{vIdx}")
    f(f"v_smfmac_f32_32x32x32_bf16 {vr(O[0], 16)}, {vr(Vf + 4, 4)}, {vr(S[0] + 8, 8)}, v{vIdx}")
    f("s_nop 15")
    f("s_add_u32 s37, s37, 2048")
    f("s_add_u32 s56, s56, 1")
    f("s_cmp_lt_u32 s56, 64")
    f("s_cbranch_scc1 L_p2_fb_pv")
    f("s_branch L_p2_finish")
    f.lines += sp.lines
    return f


def phase_res(a, h, k3, pre_publish=None):
    uid = "p3" if k3 else "p5"
    KS = 32 if k3 else 86
    ACT = OF if k3 else GF
    NST = (KS + 3) // 4
    NA = OPT["p5_na"]
    WSL = WS3 if k3 else WS5[:19 - NA]
    NW = len(WSL)
    if k3:
        ASL = [(122880, -9), (131072, -9), (139264, -9), (147456, -9), (57344, -9), (122880, 0), (WS3[0], 0), (131072, 1)]
    else:
        ASL = [(163840 - NA * 8192 + (n % NA) * 8192, n - NA if n >= NA else -9) for n in range(NST)]
    RESO = RES3 if k3 else 24576
    busy = {WSL[(NST - 1) % NW], WSL[(NST - 2) % NW]}
    TRO = [o for o in WSL if o + 8192 in WSL and not ({o, o + 8192} & busy)][0]
    sW, sIO = 16, 20
    sWr, sWc, sRb, sCb = 25, 26, 27, 28
    T = 12
    for b in (a, h):
        b(f"s_and_b32 s{sT0}, s2, 7")
        b(f"s_lshl_b32 s{sRb}, s{sT0}, 2")
        b(f"s_lshr_b32 s34, s2, 6")
        b(f"s_add_u32 s{sRb}, s{sRb}, s34")
        b(f"s_bfe_u32 s{sCb}, s2, 0x30003")
        b(f"s_and_b32 s{sWr}, s{sWave}, 1")
        b(f"s_bfe_u32 s{sWc}, s{sWave}, 0x10001")
    vWoff, vXg = 3, 5
    h(f"v_lshrrev_b32 v{T}, 3, v{vLane}")
    h(f"v_and_b32 v{T + 1}, 7, v{vLane}")
    h(f"v_lshrrev_b32 v{T + 2}, 2, v{vLane}")
    h(f"v_and_b32 v{T + 2}, 4, v{T + 2}")
    h(f"v_xor_b32 v{T + 2}, v{T + 2}, v{T + 1}")
    h(f"v_lshlrev_b32 v{T + 2}, 4, v{T + 2}")
    h(f"v_lshl_add_u32 v{T + 2}, v{T}, 10, v{T + 2}")
    h(f"s_mul_i32 s44, s{sHw}, {3 * 16384}")
    h(f"s_lshl_b32 s{sT0}, s{sCb}, 7")
    h(f"v_add_u32 v{vWoff}, s{sT0}, v{T + 2}")
    h(f"v_add_u32 v{vWoff + 1}, {8192 - 1024}, v{vWoff}")
    h(f"s_lshl_b32 s32, s{sHw}, 11")
    h(f"s_lshl_b32 s33, s{sRb}, 1")
    h(f"s_add_u32 s33, s33, s{sWr}")
    h(f"s_mul_i32 s34, s33, {KS * 1024}")
    h(f"s_lshl_b32 s{sT1}, s{sWc}, 11")
    h(f"s_add_u32 s34, s34, s{sT1}")
    h(f"s_add_u32 s34, s34, {ACT}")
    h(f"s_lshl_b32 s35, s{sWr}, 12")
    h(f"s_add_u32 s35, s35, s{sT1}")
    if k3:
        pass
    else:
        h(f"s_lshl_b32 s36, s33, 15")
        h(f"s_lshl_b32 s{sT0}, s{sCb}, 12")
        h(f"s_add_u32 s36, s36, s{sT0}")
        h(f"s_add_u32 s36, s36, s{sT1}")
        h(f"s_add_u32 s36, s36, {HF}")
    srd(h, sW, KWO if k3 else KD, KS * 16 * 1024)
    if pre_publish is not None:
        publish(h, pre_publish, T + 4)
    dr = Drip(h)

    def issue_w(st):
        cl = [(4 * st + w >= 29) + (4 * st + w >= 58) for w in range(4)]
        pre = [f"s_add_u32 s42, s44, {hx((12 * st - 86 * cl[0]) * 16384)}"]
        if cl[3] != cl[0]:
            pre += [f"s_add_u32 s45, s44, {hx((12 * st - 86 * cl[3]) * 16384)}", f"s_cmp_ge_u32 s{sHw}, {cl.index(cl[3])}",
                    "s_cselect_b32 s42, s45, s42"]
        dr.add(st, [f"s_add_u32 m0, s32, {WSL[st % NW]}"] + pre,
               f"buffer_load_dwordx4 v{vWoff}, {sr(sW, 4)}, s42 offen lds")
        dr.add(st, [], f"buffer_load_dwordx4 v{vWoff + 1}, {sr(sW, 4)}, s42 offen offset:1024 lds")

    def issue_a(st):
        dr.add(st, [f"s_add_u32 m0, s35, {ASL[st][0]}", f"s_add_u32 s43, s34, {st * 4096}"],
               f"buffer_load_dwordx4 v{vL16}, {sr(sWS, 4)}, s43 offen {LD()} lds")
        dr.add(st, [], f"buffer_load_dwordx4 v{vL16}, {sr(sWS, 4)}, s43 offen offset:1024 {LD()} lds")

    if not k3:
        for st in range(NW):
            issue_w(st)
    dr.emit(100)
    if not OPT.get("det"):
        stamp(h)
    if k3:
        h("s_barrier")
    else:
        h(f"s_lshl_b32 s40, s{sRb}, 9")
        h(f"s_add_u32 s40, s40, {F4}")
        poll(h, 40, T + 4, "p5l", 30, every=True, barrier=False)
    if not OPT.get("det"):
        stamp(h)
    AHEAD = OPT["p3_a"] if k3 else OPT["p5_a"]
    nxt_a = 0
    for st in range(NST):
        while nxt_a <= min(st + AHEAD, NST - 1):
            if not k3 and ((nxt_a >= 7 and st <= 2) or (nxt_a >= 14 and st <= OPT["p5_c2"])):
                break
            if ASL[nxt_a][1] > st - 3:
                break
            issue_a(nxt_a)
            nxt_a += 1
        if not k3 and st == 1:
            dr.add(4, [f"s_add_u32 m0, s35, {RESO}", "s_nop 0"], f"buffer_load_dwordx4 v{vL16}, {sr(sWS, 4)}, s36 offen {LD()} lds")
            dr.add(4, [], f"buffer_load_dwordx4 v{vL16}, {sr(sWS, 4)}, s36 offen offset:1024 {LD()} lds")
        dr.emit(100)
        h.wait(vm=dr.tok[st])
        h("s_barrier")
        if st >= 2 and st - 2 + NW < NST:
            issue_w(st - 2 + NW)
    if k3:
        h("s_barrier")
    RST = 0 if k3 else 4
    vWrd, vAr, vRr, vTw, vTr, vOut = [3, 4], [5, 6, 22], [7, 8], 9, 10, 11
    ID = 24
    FR = [32, 72]
    acc = 112
    a(f"v_and_b32 v{T}, 31, v{vLane}")
    a(f"v_lshrrev_b32 v{T + 1}, 5, v{vLane}")
    a(f"v_bfe_u32 v{T + 2}, v{vLane}, 2, 2")
    a(f"v_lshl_add_u32 v{T + 3}, v{T + 1}, 2, v{T + 2}")
    a(f"v_lshlrev_b32 v{T + 3}, 7, v{T + 3}")
    a(f"v_bfe_u32 v{T + 4}, v{vLane}, 4, 1")
    a(f"v_lshl_add_u32 v{T + 3}, v{T + 4}, 5, v{T + 3}")
    a(f"v_and_b32 v{T + 4}, 3, v{vLane}")
    a(f"v_lshl_add_u32 v{T + 3}, v{T + 4}, 3, v{T + 3}")
    a(f"v_lshrrev_b32 v{T + 2}, 1, v{T + 2}")
    a(f"v_xor_b32 v{T + 2}, s{sWc}, v{T + 2}")
    a(f"v_lshl_add_u32 v{vWrd[0]}, v{T + 2}, 6, v{T + 3}")
    wl = LdsAddr(a, vWrd)
    wl.setup(a)
    a(f"s_lshl_b32 s{sT0}, s{sWr}, 12")
    a(f"v_add_u32 v{vAr[0]}, s{sT0}, v{vL16}")
    al = LdsAddr(a, vAr)
    al.setup(a)
    if k3:
        a(f"v_bfe_u32 v{T + 2}, v{vLane}, 1, 3")
        a(f"v_xor_b32 v{T + 2}, v{T + 2}, v{T + 1}")
        a(f"s_lshl_b32 s{sT1}, s{sWc}, 2")
        a(f"v_xor_b32 v{T + 2}, s{sT1}, v{T + 2}")
        a(f"v_lshlrev_b32 v{T + 2}, 4, v{T + 2}")
        a(f"v_lshl_add_u32 v{T + 2}, v{T}, 7, v{T + 2}")
        a(f"s_add_u32 s{sT0}, s{sT0}, {RESO}")
        a(f"v_add_u32 v{vRr[0]}, s{sT0}, v{T + 2}")
        a(f"v_xor_b32 v{vRr[1]}, 32, v{vRr[0]}")
    else:
        a(f"s_lshl_b32 s{sT1}, s{sWc}, 11")
        a(f"s_add_u32 s{sT0}, s{sT0}, s{sT1}")
        a(f"s_add_u32 s{sT0}, s{sT0}, {RESO}")
        a(f"v_add_u32 v{vRr[0]}, s{sT0}, v{vL16}")
        a(f"v_add_u32 v{vRr[1]}, 1024, v{vRr[0]}")
    if pre_publish is not None:
        publish(a, pre_publish, T + 6)
    a(f"v_mov_b32 v{T + 5}, 0x3f80")
    for e in range(2):
        if k3:
            a(f"v_lshlrev_b32 v{T + 2}, 3, v{T + 1}")
            a(f"v_sub_u32 v{T + 2}, v{T}, v{T + 2}")
            a(f"v_subrev_u32 v{T + 2}, {16 * e}, v{T + 2}")
        else:
            a(f"v_bfe_u32 v{T + 2}, v{vLane}, 3, 1")
            a(f"v_and_b32 v{T + 3}, 3, v{vLane}")
            a(f"v_lshl_add_u32 v{T + 2}, v{T + 2}, 2, v{T + 3}")
            a(f"v_bfe_u32 v{T + 3}, v{vLane}, 2, 1")
            a(f"v_xor_b32 v{T + 3}, v{T + 3}, v{T + 1}")
            a(f"v_bfe_u32 v{T + 4}, v{vLane}, 4, 1")
            a(f"v_xor_b32 v{T + 4}, {e}, v{T + 4}")
            a(f"v_or_b32 v{T + 3}, v{T + 3}, v{T + 4}")
            a(f"v_lshl_add_u32 v{T + 2}, v{T + 3}, 4, v{T + 2}")
        a(f"v_and_b32 v{T + 3}, 1, v{T + 2}")
        a(f"v_lshlrev_b32 v{T + 3}, 4, v{T + 3}")
        a(f"v_lshlrev_b32 v{T + 3}, v{T + 3}, v{T + 5}")
        a(f"v_lshrrev_b32 v{T + 2}, 1, v{T + 2}")
        for r in range(4):
            a(f"v_cmp_eq_u32 vcc, {r}, v{T + 2}")
            a("s_nop 1")
            a(f"v_cndmask_b32 v{ID + 4 * e + r}, 0, v{T + 3}, vcc")
    a(f"s_lshl_b32 s33, s{sRb}, 1")
    a(f"s_add_u32 s33, s33, s{sWr}")
    a(f"s_lshl_b32 s34, s{sCb}, 1")
    a(f"s_add_u32 s34, s34, s{sWc}")
    if k3:
        a(f"s_lshl_b32 s36, s33, 15")
        a(f"s_lshl_b32 s37, s34, 11")
        a(f"s_add_u32 s36, s36, s37")
        a(f"s_add_u32 s36, s36, {HF}")
        a(f"s_lshl_b32 s37, s34, 14")
        a(f"s_lshl_b32 s{sT1}, s33, 8")
        a(f"s_add_u32 s37, s37, s{sT1}")
        a(f"s_add_u32 s37, s37, {ST}")
        a("s_mov_b32 s41, 0x3f803f80")
        a(f"v_lshlrev_b32 v{vOut}, 3, v{vLane}")
        a(f"s_lshl_b32 s55, s{sRb}, 7")
        a(f"s_lshl_b32 s{sT1}, s{sCb}, 4")
        a(f"s_add_u32 s55, s55, s{sT1}")
        a(f"s_lshl_b32 s{sT1}, s{sWave}, 2")
        a(f"s_add_u32 s55, s55, s{sT1}")
        a(f"s_add_u32 s55, s55, {F3}")
    else:
        a(f"s_mul_i32 s{sT0}, s{sHw}, 2560")
        a(f"s_add_u32 s{sT0}, s{sT0}, {TRO}")
        a(f"v_mul_u32_u24 v{T + 2}, 80, v{T}")
        a(f"v_lshl_add_u32 v{T + 2}, v{T + 1}, 3, v{T + 2}")
        a(f"v_add_u32 v{vTw}, s{sT0}, v{T + 2}")
        a(f"v_lshrrev_b32 v{T + 2}, 2, v{vLane}")
        a(f"v_and_b32 v{T + 3}, 3, v{vLane}")
        a(f"v_lshlrev_b32 v{T + 3}, 4, v{T + 3}")
        a(f"v_mad_u32_u24 v{T + 4}, v{T + 2}, 64, v{T + 3}")
        a(f"v_lshl_add_u32 v{T + 4}, v{T + 2}, 4, v{T + 4}")
        a(f"v_add_u32 v{vTr}, s{sT0}, v{T + 4}")
        a(f"v_lshl_add_u32 v{vOut}, v{T + 2}, 10, v{T + 3}")
        a(f"s_lshl_b32 s36, s33, 15")
        a(f"s_lshl_b32 s37, s34, 6")
        a(f"s_add_u32 s36, s36, s37")
        a(f"s_add_u32 s37, s36, 16384")
        srd(a, sIO, KO, 2048 * 1024)
    a(f"s_lshl_b32 s40, s{sRb}, {8 if k3 else 9}")
    a(f"s_add_u32 s40, s40, {F2 if k3 else F4}")
    if k3:
        poll(a, 40, T + 6, uid, 64)
    first = True
    prev = []
    for st in range(NST):
        if not k3 and st in (0, OPT["p5_c2"] - 3):
            poll_issue(a, 40, T + 6, f"p5i{st}", 128 if st == 0 else 256)
        if not k3 and st in (2, OPT["p5_c2"]):
            poll(a, 40, T + 6, f"p5c{8 if st > 2 else 1}", 30, barrier=False, off=128 if st == 2 else 256, issued=True)
        a("s_barrier")
        if st == 0:
            stamp(a)
        F = FR[st & 1]
        n = min(4, KS - 4 * st)
        rd = []
        for k in range(n):
            reg, off = al.at(ASL[st][0] + k * 1024)
            rd.append(f"ds_read_b128 {vr(F + 8 * k, 4)}, {reg} offset:{off}")
            for half in range(2):
                reg, off = wl.at(WSL[st % NW] + k * 2048 + half * 1024)
                rd.append(f"ds_read_b64_tr_b16 {vr(F + 8 * k + 4 + 2 * half, 2)}, {reg} offset:{off}")
        cur = [[None, F + 8 * k + 4, F + 8 * k, 3 * k + 2] for k in range(n)]
        if st == RST:
            for e in range(2):
                rd.append(f"ds_read_b128 {vr(F + 32 + 4 * e, 4)}, v{vRr[e]}")
                cur.append([None, ID + 4 * e, F + 32 + 4 * e, len(rd) - 1])
        toks = []
        k = 0
        for tok, wa, xa, _ in prev:
            a.wait(lg=tok)
            a(f"v_mfma_f32_32x32x16_bf16 {vr(acc, 16)}, {vr(wa, 4)}, {vr(xa, 4)}, {'0' if first else vr(acc, 16)}")
            first = False
            for _ in range(3):
                if k < len(rd):
                    toks.append(a.lg(rd[k]))
                    k += 1
        while k < len(rd):
            toks.append(a.lg(rd[k]))
            k += 1
        for c in cur:
            c[0] = toks[c[3]]
        prev = cur
    for tok, wa, xa, _ in prev:
        a.wait(lg=tok)
        a(f"v_mfma_f32_32x32x16_bf16 {vr(acc, 16)}, {vr(wa, 4)}, {vr(xa, 4)}, {vr(acc, 16)}")
    stamp(a)
    a("s_nop 11")
    P = 32
    for i in range(8):
        a(f"v_cvt_pk_bf16_f32 v{P + i}, v{acc + 2 * i}, v{acc + 2 * i + 1}")
    if k3:
        stores(a, [f"buffer_store_dwordx4 {vr(P, 4)}, v{vL16}, {sr(sWS, 4)}, s36 offen",
                   f"buffer_store_dwordx4 {vr(P + 4, 4)}, v{vL16}, {sr(sWS, 4)}, s36 offen offset:1024"])
        a(f"v_dot2_f32_bf16 v{T}, v{P}, s41, 0")
        a(f"v_dot2_f32_bf16 v{T + 1}, v{P}, v{P}, 0")
        for i in range(1, 8):
            a(f"v_dot2_f32_bf16 v{T}, v{P + i}, s41, v{T}")
            a(f"v_dot2_f32_bf16 v{T + 1}, v{P + i}, v{P + i}, v{T + 1}")
        a("s_nop 2")
        a(f"v_mov_b32 v{T + 2}, v{T}")
        a(f"v_mov_b32 v{T + 3}, v{T + 1}")
        a("s_nop 0")
        a(f"v_permlane32_swap_b32 v{T}, v{T + 2}")
        a(f"v_permlane32_swap_b32 v{T + 1}, v{T + 3}")
        a("s_nop 0")
        a(f"v_add_f32 v{T}, v{T}, v{T + 2}")
        a(f"v_add_f32 v{T + 1}, v{T + 1}, v{T + 3}")
        a("s_mov_b32 exec_hi, 0")
        stores(a, [f"buffer_store_dwordx2 {vr(T, 2)}, v{vOut}, {sr(sWS, 4)}, s37 offen"])
        a("s_mov_b64 exec, -1")
        a("s_barrier")
        publish(a, 55, T + 4)
    else:
        for g in range(4):
            a.lg(f"ds_write_b64 v{vTw}, {vr(P + 2 * g, 2)} offset:{g * 16}")
        a.wait_all(vm=False)
        t0 = a.lg(f"ds_read_b128 {vr(P + 8, 4)}, v{vTr}")
        t1 = a.lg(f"ds_read_b128 {vr(P + 12, 4)}, v{vTr} offset:{16 * 80}")
        a.wait(lg=t0)
        a.vm(f"buffer_store_dwordx4 {vr(P + 8, 4)}, v{vOut}, {sr(sIO, 4)}, s36 offen")
        a.wait(lg=t1)
        a.vm(f"buffer_store_dwordx4 {vr(P + 12, 4)}, v{vOut}, {sr(sIO, 4)}, s37 offen")
    stamp(a)


def phase4(a, h):
    sG = 16
    sRb, sCg = 25, 26
    sWL, sAct = 32, 33
    NW, NX, NST = 9, 5, 16
    XO = 122880
    CSO = 24576
    XEO = CSO + 1536
    for b in (a, h):
        b(f"s_and_b32 s{sT0}, s2, 7")
        b(f"s_lshl_b32 s{sT0}, s{sT0}, 1")
        b(f"s_bfe_u32 s{sT1}, s2, 0x10003")
        b(f"s_add_u32 s{sRb}, s{sT0}, s{sT1}")
        b(f"s_lshr_b32 s{sCg}, s2, 4")
    a("s_cmp_ge_u32 s2, 240")
    a("s_cbranch_scc1 L_p4_skip_c")
    h("s_cmp_ge_u32 s2, 240")
    h("s_cbranch_scc1 L_p4_skip_l")
    vWoff = [3, 4, 5]
    vT = 16
    h(f"s_lshl_b32 s{sAct}, s{sRb}, 2")
    h(f"s_add_u32 s{sAct}, s{sAct}, s{sHw}")
    h(f"s_lshl_b32 s38, s{sAct}, 8")
    h(f"s_add_u32 s38, s38, {ST}")
    h(f"s_lshl_b32 s{sAct}, s{sAct}, 15")
    h(f"s_add_u32 s{sAct}, s{sAct}, {HF}")
    h(f"s_lshr_b32 s34, s{sHw}, 1")
    h(f"s_and_b32 s35, s{sHw}, 1")
    h(f"s_mul_i32 s{sT0}, s34, {16 * 2752}")
    h(f"s_mul_i32 s{sT1}, s{sCg}, 192")
    h(f"s_add_u32 s{sT0}, s{sT0}, s{sT1}")
    h(f"v_and_b32 v{vT + 3}, 2, v{vLane}")
    h(f"v_lshlrev_b32 v{vT + 3}, 5, v{vT + 3}")
    h(f"v_sub_u32 v{vT + 3}, 32, v{vT + 3}")
    h(f"v_mul_lo_u32 v{vT + 3}, v{vT + 3}, s35")
    h(f"v_add_u32 v{vT + 3}, s{sT0}, v{vT + 3}")
    for i in range(3):
        h(f"v_add_u32 v{vT}, {64 * i}, v{vLane}")
        h(f"v_mul_u32_u24 v{vT + 1}, 171, v{vT}")
        h(f"v_lshrrev_b32 v{vT + 1}, 11, v{vT + 1}")
        h(f"v_mul_u32_u24 v{vT + 2}, {2752 - 192}, v{vT + 1}")
        h(f"v_add3_u32 v{vWoff[i]}, v{vL16}, v{vT + 2}, v{vT + 3}")
    h(f"s_mul_i32 s{sWL}, s{sHw}, 3072")
    h(f"s_lshl_b32 s36, s{sHw}, 11")
    h(f"s_add_u32 s36, s36, {XO}")
    h("s_cmp_eq_u32 s35, 0")
    h(f"s_cselect_b32 s{sG}, s{KG}, s{KU}")
    h(f"s_cselect_b32 s{sG + 1}, s{KG + 1}, s{KU + 1}")
    h(f"s_mov_b32 s{sG + 2}, {hx(512 * 2752)}")
    h(f"s_mov_b32 s{sG + 3}, 0x00020000")
    dr = Drip(h)

    def issue_w(key):
        st = key[1] if isinstance(key, tuple) else key
        for i in range(3):
            pre = [f"s_add_u32 m0, s{sWL}, {WS4[st % NW]}", f"s_mov_b32 s42, {st * 32 * 2752}"] if i == 0 else []
            dr.add(key, pre, f"buffer_load_dwordx4 v{vWoff[i]}, {sr(sG, 4)}, s42 offen offset:{i * 1024} lds")

    def issue_x(st):
        for i in range(2):
            pre = [f"s_add_u32 m0, s36, {(st % NX) * 8192}", f"s_add_u32 s43, s{sAct}, {st * 2048}"] if i == 0 else []
            dr.add(st, pre, f"buffer_load_dwordx4 v{vL16}, {sr(sWS, 4)}, s43 offen offset:{i * 1024} {LD()} lds")

    PRE = OPT["p4_pre"]
    for st in range(4, PRE):
        issue_w(st)
    dr.emit(100)
    nxt_wi = 3 * PRE
    vPf, vPd = 13, 100
    srd(h, 44, KD, 1376 * 1024)
    h(f"s_lshr_b32 s{sT0}, s2, 3")
    h(f"s_lshl_b32 s{sT0}, s{sT0}, 2")
    h(f"s_add_u32 s{sT0}, s{sT0}, s{sHw}")
    h(f"s_lshl_b32 s{sT0}, s{sT0}, 13")
    h(f"v_lshlrev_b32 v{vPf}, 7, v{vLane}")
    h(f"v_add_u32 v{vPf}, s{sT0}, v{vPf}")
    h(f"v_add_u32 v15, {120 * 8192}, v{vPf}")
    h(f"v_lshrrev_b32 v{vT + 3}, 5, v{vLane}")
    h(f"v_and_b32 v{vT + 4}, 31, v{vLane}")
    h(f"v_lshlrev_b32 v{vT + 4}, 3, v{vT + 4}")
    h(f"v_lshl_add_u32 v{vT + 4}, v{vT + 3}, 17, v{vT + 4}")
    h(f"s_mul_i32 s{sT0}, s{sHw}, 1536")
    h(f"s_add_u32 s{sT0}, s{sT0}, {XEO}")
    h(f"v_add_u32 v{vT + 5}, s{sT0}, v{vL16}")
    h(f"v_lshl_add_u32 v{vT + 6}, v{vLane}, 3, s{sT0}")
    stamp(h)
    h("s_barrier")
    stamp(h)
    SP = 32
    vS, vQ, vM, vA = 60, 61, 62, 64
    AHEAD = OPT["p4_a"]
    assert AHEAD < NX
    nxt_x = 0
    for st in range(NST):
        while nxt_x <= min(st + AHEAD, NST - 1):
            if nxt_x >= NX and nxt_x - NX > st - 2:
                break
            issue_x(nxt_x)
            nxt_x += 1
        dr.emit(100)
        for _ in range(OPT["p4_wi"]):
            ws, wi = divmod(nxt_wi, 3)
            if ws < NST and (ws < NW or ws - NW <= st - 2):
                h(f"s_add_u32 m0, s{sWL}, {WS4[ws % NW]}")
                h(f"s_mov_b32 s42, {ws * 32 * 2752}")
                dr.tok[("w", ws)] = h.vm(f"buffer_load_dwordx4 v{vWoff[wi]}, {sr(sG, 4)}, s42 offen offset:{wi * 1024} lds")
                nxt_wi += 1
        assert nxt_wi >= 3 * (st + 1)
        if 1 <= st <= 8:
            i = st - 1
            h(f"s_add_u32 s{sT0}, s38, {i * 16384}")
            dr.tok["st"] = h.vm(f"buffer_load_dwordx2 {vr(SP + 2 * i, 2)}, v{vT + 4}, {sr(sWS, 4)}, s{sT0} offen {LD()}")
        h.wait(vm=max(dr.tok[st], dr.tok.get(("w", st), -1)))
        assert st < PRE or ("w", st) in dr.tok
        if st == 11:
            h.wait(vm=dr.tok["st"])
            h(f"v_add_f32 v{vS}, v{SP}, v{SP + 2}")
            h(f"v_add_f32 v{vQ}, v{SP + 1}, v{SP + 3}")
            for i in range(2, 8):
                h(f"v_add_f32 v{vS}, v{vS}, v{SP + 2 * i}")
                h(f"v_add_f32 v{vQ}, v{vQ}, v{SP + 2 * i + 1}")
        if st == 12:
            half_sum(h, vS, vT)
            half_sum(h, vQ, vT)
            h(f"v_mul_f32 v{vM}, {hx(f2u(-1.0 / 512))}, v{vS}")
            h(f"v_mul_f32 v{vQ}, {hx(f2u(1.0 / 512))}, v{vQ}")
            h(f"v_fma_f32 v{vQ}, -v{vM}, v{vM}, v{vQ}")
            h(f"v_max_f32 v{vQ}, 0, v{vQ}")
            h(f"v_add_f32 v{vQ}, {hx(f2u(1e-5))}, v{vQ}")
        if st == 13:
            h(f"v_rsq_f32 v{vA}, v{vQ}")
            split_hi_lo(h, vM, 68, vT, vT + 1)
            h(f"v_mul_f32 v{vA + 1}, v{vQ}, v{vA}")
            h(f"v_mul_f32 v{vA}, {hx(f2u(-LOG2E))}, v{vA}")
            h(f"v_cvt_pk_bf16_f32 v69, v{vT}, 0")
            h("v_mov_b32 v70, 0")
            h("v_mov_b32 v71, 0")
            h.lg(f"ds_write_b128 v{vT + 5}, v[68:71]")
            h.lg(f"ds_write_b64 v{vT + 6}, {vr(vA, 2)} offset:1024")
        if st == 14:
            h.wait_all(vm=False)
        if OPT.get("det") == 1 and st in (3, 7, 11):
            stamp(h)
        h("s_barrier")
        if OPT.get("det") == 1 and st in (3, 7, 11, 15):
            stamp(h)
        if OPT["gf_late"] and st == OPT["gf_late"]:
            h(f"s_lshl_b32 s{sT0}, s{sRb}, 2")
            h(f"s_add_u32 s{sT0}, s{sT0}, s{sHw}")
            h(f"s_mul_i32 s{sT0}, s{sT0}, {86 * 1024}")
            h(f"s_mul_i32 s{sT1}, s{sCg}, 6144")
            h(f"s_add_u32 s{sT0}, s{sT0}, s{sT1}")
            h(f"s_add_u32 s{sT0}, s{sT0}, {GF}")
            h(f"v_lshlrev_b32 v101, 7, v{vLane}")
            h("s_mov_b32 exec_hi, 0xffff")
            h.vm(f"buffer_load_dword v{vPd}, v101, {sr(sWS, 4)}, s{sT0} offen")
            h("s_mov_b64 exec, -1")
        if st == OPT["p4_pf"]:
            h.vm(f"buffer_load_dword v{vPd}, v{vPf}, s[44:47], 0 offen")
        if st == OPT["p4_pf"] + 1:
            h.vm(f"buffer_load_dword v{vPd}, v15, s[44:47], 0 offen")
    h("s_barrier")
    h.label("L_p4_skip_l")

    sWr2, sWc = 36, 37
    vWrd, vWrdO, vXa, vCw, vCr, vEr = [3, 4], [5, 6], 7, 8, 9, 10
    ONES, vT, CS, ACC = 12, 16, 20, 32
    XF, WF = [128, 136], [144, 156]
    XE, AS = XF[0], ONES
    t = CS
    a(f"s_lshr_b32 s{sWr2}, s{sHw}, 1")
    a(f"s_and_b32 s{sWc}, s{sHw}, 1")
    a(f"s_lshl_b32 s34, s{sRb}, 1")
    a(f"s_add_u32 s34, s34, s{sWr2}")
    a(f"v_lshrrev_b32 v{t + 3}, 5, v{vLane}")
    a(f"v_bfe_u32 v{t}, v{vLane}, 2, 2")
    a(f"v_lshl_add_u32 v{t}, v{t + 3}, 2, v{t}")
    a(f"v_mul_u32_u24 v{t}, 192, v{t}")
    a(f"v_and_b32 v{t + 1}, 3, v{vLane}")
    a(f"v_lshl_add_u32 v{t}, v{t + 1}, 3, v{t}")
    a(f"s_mul_i32 s{sT0}, s{sWc}, 96")
    a(f"v_add_u32 v{t}, s{sT0}, v{t}")
    a(f"v_bfe_u32 v{t + 1}, v{vLane}, 4, 1")
    a(f"s_lshl_b32 s{sT0}, s{sWc}, 6")
    a(f"s_sub_u32 s{sT1}, {3072 + 32}, s{sT0}")
    a(f"s_add_u32 s{sT0}, {3072 - 32}, s{sT0}")
    a(f"v_mad_u32_u24 v{vWrd[0]}, v{t + 1}, s{sT1}, v{t}")
    a(f"v_mad_u32_u24 v{vWrdO[0]}, v{t + 1}, s{sT0}, v{t}")
    wl = [LdsAddr(a, vWrd), LdsAddr(a, vWrdO)]
    wl[0].setup(a)
    wl[1].setup(a)
    a(f"s_lshl_b32 s{sT0}, s{sWr2}, 12")
    a(f"s_add_u32 s{sT0}, s{sT0}, {XO}")
    a(f"v_add_u32 v{vXa}, s{sT0}, v{vL16}")
    a(f"v_xor_b32 v{t}, v{t + 1}, v{vLane}")
    a(f"v_and_b32 v{t}, 1, v{t}")
    a(f"v_cmp_eq_u32 vcc, 0, v{t}")
    a(f"v_mov_b32 v{t}, 0x3f803f80")
    a("s_nop 0")
    for r in range(4):
        a(f"v_cndmask_b32 v{ONES + r}, 0, v{t}, vcc")
    a(f"s_lshl_b32 s{sT0}, s{sWc}, 1")
    a(f"s_add_u32 s{sT1}, s{sT0}, s{sWr2}")
    a(f"s_mul_i32 s{sT1}, s{sT1}, 384")
    a(f"s_add_u32 s{sT1}, s{sT1}, {CSO}")
    a(f"v_and_b32 v{t}, 1, v{vLane}")
    a(f"v_lshlrev_b32 v{t}, 6, v{t}")
    a(f"v_and_b32 v{t + 1}, 48, v{vLane}")
    a(f"v_add3_u32 v{vCw}, v{t}, v{t + 1}, s{sT1}")
    a(f"s_mul_i32 s{sT0}, s{sT0}, 384")
    a(f"s_add_u32 s{sT0}, s{sT0}, {CSO}")
    a(f"v_mul_u32_u24 v{t}, 384, v{t + 3}")
    a(f"v_and_b32 v{t + 1}, 31, v{vLane}")
    a(f"v_lshl_add_u32 v{t}, v{t + 1}, 2, v{t}")
    a(f"v_add_u32 v{vCr}, s{sT0}, v{t}")
    a(f"s_lshl_b32 s55, s34, 9")
    a(f"s_lshl_b32 s35, s{sCg}, 1")
    a(f"s_add_u32 s35, s35, s{sWc}")
    a(f"s_lshl_b32 s{sT0}, s35, 2")
    a(f"s_add_u32 s55, s55, s{sT0}")
    a(f"s_add_u32 s55, s55, {F4}")
    a(f"s_mul_i32 s34, s34, {2 * 86 * 1024}")
    a(f"s_mul_i32 s38, s35, 3")
    a(f"s_lshl_b32 s35, s35, 10")
    a("s_add_u32 s34, s34, s35")
    a(f"s_add_u32 s34, s34, {GF}")
    a(f"s_add_u32 s35, s34, {86 * 1024}")
    a(f"s_mul_i32 s{sT0}, s{sWr2}, 3072")
    a(f"s_add_u32 s{sT0}, s{sT0}, {XEO}")
    a(f"v_add_u32 v{vEr}, s{sT0}, v{vL16}")
    a(f"v_lshl_add_u32 v{vEr + 1}, v{vLane}, 3, s{sT0}")
    for r in range(12):
        a(f"v_mov_b32 v{CS + r}, 0")

    def reads(s):
        st, ss = divmod(s, 2)
        W = []
        for j in range(3):
            for half in range(2):
                reg, off = wl[j & 1].at(WS4[st % NW] + ss * 6144 + half * 8 * 192 + j * 32)
                W.append(f"ds_read_b64_tr_b16 {vr(WF[s & 1] + 4 * j + 2 * half, 2)}, {reg} offset:{off}")
        X = [f"ds_read_b128 {vr(XF[s & 1] + 4 * i, 4)}, v{vXa} offset:{(st % NX) * 8192 + i * 2048 + ss * 1024}"
             for i in range(2)]
        return [X[0], W[0], W[1], X[1], W[2], W[3], W[4], W[5]]

    rt = {}

    def emit_reads(b, s, lo, hi):
        ops = reads(s)
        for k in range(lo, min(hi, 8)):
            rt[(s, k)] = b.lg(ops[k])

    def main(b, s, m):
        j, i = divmod(m, 2)
        d = ACC + 16 * m
        c = "0" if s == 0 else vr(d, 16)
        b(f"v_mfma_f32_32x32x16_bf16 {vr(d, 16)}, {vr(WF[s & 1] + 4 * j, 4)}, {vr(XF[s & 1] + 4 * i, 4)}, {c}")

    def csum(b, s, j):
        b(f"v_mfma_f32_16x16x32_bf16 {vr(CS + 4 * j, 4)}, {vr(WF[s & 1] + 4 * j, 4)}, {vr(ONES, 4)}, {vr(CS + 4 * j, 4)}")

    a(f"s_lshl_b32 s40, s{sRb}, 8")
    a(f"s_add_u32 s40, s40, {F3}")
    poll(a, 40, vT, "p4")
    a("s_barrier")
    stamp(a)
    emit_reads(a, 0, 0, 8)
    a(f"s_cmp_eq_u32 s{sWr2}, 1")
    a("s_cbranch_scc1 L_p4_odd")
    cuts = [0, 2, 4, 6, 8, 8, 8]
    need = [3, 3, 5, 5, 7, 7]
    rt0 = dict(rt)
    odd = fork(a)
    odd.label("L_p4_odd")
    for par, b in ((0, a), (1, odd)):
        rt.clear()
        rt.update(rt0)
        for s in range(31):
            if s % 2 == 1:
                b.wait(lg=rt[(s, 7)])
                b("s_barrier")
            for m in range(6):
                b.wait(lg=rt[(s, need[m])])
                if m % 2 == 0 and s % 2 == par:
                    csum(b, s, m // 2)
                main(b, s, m)
                emit_reads(b, s + 1, cuts[m], cuts[m + 1])
        b.wait_all(vm=False)
        if par == 1:
            for j in range(3):
                csum(b, 31, j)
    odd("s_branch L_p4_join")
    a.label("L_p4_join")
    main(a, 31, 0)
    for j in range(3):
        a(f"v_mov_b32 v{WF[0] + 4 * j + 2}, 0")
        a(f"v_mov_b32 v{WF[0] + 4 * j + 3}, 0")
    main(a, 31, 1)
    a("s_mov_b32 exec_lo, 0x00030003")
    a("s_mov_b32 exec_hi, 0x00030003")
    for j in range(3):
        a.lg(f"ds_write_b128 v{vCw}, {vr(CS + 4 * j, 4)} offset:{j * 128}")
    a("s_mov_b64 exec, -1")
    for i in range(2):
        a.lg(f"ds_read_b128 {vr(XE + 4 * i, 4)}, v{vEr} offset:{i * 1536}")
        a.lg(f"ds_read_b64 {vr(AS + 2 * i, 2)}, v{vEr + 1} offset:{i * 1536 + 1024}")
    main(a, 31, 2)
    main(a, 31, 3)
    a.wait_all(vm=False)
    a("s_barrier")
    for j in range(3):
        rt[("c", j)] = a.lg(f"ds_read_b32 v{vT + 1 + j}, v{vCr} offset:{j * 128}")
    main(a, 31, 4)
    main(a, 31, 5)
    for j in range(3):
        w = WF[0] + 4 * j
        a.wait(lg=rt[("c", j)])
        a(f"v_cvt_pk_bf16_f32 v{w + 1}, v{vT + 1 + j}, 0")
        a(f"v_lshlrev_b32 v{vT}, 16, v{w + 1}")
        a(f"v_sub_f32 v{vT}, v{vT + 1 + j}, v{vT}")
        a(f"v_cvt_pk_bf16_f32 v{w}, v{vT + 1 + j}, v{vT}")
    for j in range(3):
        for i in range(2):
            d = ACC + 32 * j + 16 * i
            a(f"v_mfma_f32_32x32x16_bf16 {vr(d, 16)}, {vr(WF[0] + 4 * j, 4)}, {vr(XE + 4 * i, 4)}, {vr(d, 16)}")
    stamp(a)
    a(f"v_lshlrev_b32 v{vT}, 7, v{vLane}")
    a(f"v_mov_b32 v{vT + 1}, s{sTag}")
    a("s_nop 2")
    stok = {}
    for j in range(3):
        a(f"s_cmp_ge_u32 s38, {86 - j}")
        a("s_cbranch_scc1 L_p4_pub")
        Gs = [(ACC + 32 * j + 16 * i + r, i) for i in range(2) for r in range(8)]
        for g, i in Gs[::2]:
            a(f"v_pk_mul_f32 {vr(g, 2)}, {vr(g, 2)}, {vr(AS + 2 * i, 2)} op_sel_hi:[1,0]")
        for g, i in Gs:
            a(f"v_exp_f32 v{g}, v{g}")
        for g, i in Gs[::2]:
            a(f"v_pk_fma_f32 {vr(g, 2)}, {vr(g, 2)}, {vr(AS + 2 * i, 2)}, {vr(AS + 2 * i, 2)} op_sel:[0,1,1] op_sel_hi:[1,1,1]")
        for g, i in Gs:
            a(f"v_rcp_f32 v{g}, v{g}")
        for g, i in Gs[::2]:
            a(f"v_pk_mul_f32 {vr(g, 2)}, {vr(g, 2)}, {vr(g + 8, 2)}")
        o = ACC + 32 * j + 8
        for i in range(8):
            a(f"v_cvt_pk_bf16_f32 v{o + i}, v{Gs[2 * i][0]}, v{Gs[2 * i + 1][0]}")
        stores(a, [f"buffer_store_dwordx4 {vr(o, 4)}, v{vL16}, {sr(sWS, 4)}, s34 offen",
                   f"buffer_store_dwordx4 {vr(o + 4, 4)}, v{vL16}, {sr(sWS, 4)}, s35 offen"])
        stok[j] = a.vm_issued - 1
        a(f"s_add_u32 s34, s34, {29 * 1024}")
        a(f"s_add_u32 s35, s35, {29 * 1024}")
        if j >= 1:
            a("s_mov_b64 exec, 1")
            a.wait(vm=stok[j - 1])
            stores(a, [f"buffer_store_dword v{vT + 1}, v{vT}, {sr(sWS, 4)}, s55 offen offset:{(j - 1) * 128}"])
            a("s_mov_b64 exec, -1")
    a.label("L_p4_pub")
    a("s_nop 7")
    stamp(a)
    a("s_mov_b64 exec, 7")
    a.wait_all(lg=False)
    stores(a, [f"buffer_store_dword v{vT + 1}, v{vT}, {sr(sWS, 4)}, s55 offen"])
    a("s_mov_b64 exec, -1")
    a.label("L_p4_skip_c")
    return odd


def gen_fused():
    name = KNAME
    a = Asm()
    a.raw(f".globl {name}")
    a.raw(".p2align 8")
    a.raw(f".type {name},@function")
    a.label(name)
    a("s_cmp_ge_u32 s2, 256")
    a(f"s_cbranch_scc1 L_done")
    stamp_real(a)
    stamp(a)
    if OPT.get("spin"):
        a("s_memrealtime s[98:99]")
    c1, odd1, l1, aux = phase1(a)
    fb = phase2(c1, l1, aux)
    c1(f"s_cmp_ge_u32 s{sWave}, 4")
    c1("s_cbranch_scc0 L_compute")
    h = fork(c1)
    c = fork(c1)
    if OPT.get("det") == 2:
        h.nstamp, h.nostamp = 18, True
    c.label("L_compute")
    phase_res(c, h, True, pre_publish=55)
    odd = phase4(c, h)
    phase_res(c, h, False)
    if OPT.get("det") != 3:
        stamp_flush(h)
    h("s_endpgm")
    c("s_cmp_lg_u32 s2, 0")
    c("s_cbranch_scc1 L_nogen")
    c(f"s_cmp_lg_u32 s{sWave}, 0")
    c("s_cbranch_scc1 L_nogen")
    c(f"v_mov_b32 v12, {GEN}")
    c(f"v_mov_b32 v13, s{sTag}")
    c("s_mov_b64 exec, 1")
    c(f"buffer_store_dword v13, v12, {sr(sWS, 4)}, 0 offen sc1")
    if OPT.get("spin"):
        c("s_load_dwordx2 s[92:93], s[0:1], 64")
        c("s_memrealtime s[96:97]")
        c("s_waitcnt lgkmcnt(0)")
        c("s_sub_u32 s96, s96, s98")
        c("s_mov_b32 s94, 256")
        c("s_mov_b32 s95, 0x00020000")
        c("v_mov_b32 v12, 0")
        c("v_mov_b32 v13, s96")
        c("buffer_store_dword v13, v12, s[92:95], 0 offen")
        c.label("L_dbg_spin")
        c("s_memrealtime s[96:97]")
        c("s_waitcnt lgkmcnt(0)")
        c("s_sub_u32 s96, s96, s98")
        c(f"s_cmp_lt_u32 s96, {OPT['spin']}")
        c("s_cbranch_scc1 L_dbg_spin")
    c.label("L_nogen")
    stamp_flush(c)
    c.label("L_done")
    c("s_endpgm")
    text = (a.text() + l1.text() + aux.text() + odd1.text() + c1.text() + h.text() + c.text() + odd.text() + fb.text())
    return name, text, descriptor(name, 168, 0, sgpr=102), (256, 576, 163840)


def build():
    name, text, desc, (g, b, lds) = gen_fused()
    ref = open(f"cdna_kernels/{NAME}.s.ref").read().split("\n")
    head = [l for l in ref if l.startswith(";") and "@launch" not in l]
    out = "\n".join(head) + "\n"
    out += f"; @launch grid=({g},1,1) block=({b},1,1) lds={lds}\n"
    out += '.amdgcn_target "amdgcn-amd-amdhsa--gfx950"\n.text\n'
    bad = check_hazards(text, name)
    out += text
    out += "L_code_end:\n"
    out += '.section .rodata,"a"\n.p2align 6\n' + desc
    if bad:
        print("hazards:", bad)
    return out


if __name__ == "__main__":
    path = sys.argv[1] if len(sys.argv) > 1 else f"cdna_kernels/{NAME}.s"
    for arg in sys.argv[2:]:
        if arg == "stamps":
            G.STAMPS = True
        else:
            k_, v_ = arg.split("=")
            OPT[k_] = int(v_)
    open(path, "w").write(build())
    print("wrote", path)
```

```python
import sys

import gen as G
from gen import (Asm, Drip, LdsAddr, OPT, MB, QF, KVF, OF, HF, ST, GF, WS_SIZE, LOG2E, NAME, f2u, hx, vr, sr, srd,
                 fork, half_sum, split_hi_lo, code_prefetch, descriptor, check_hazards)

FLG = 11 * MB
F2, F3, F4, XT = FLG, FLG + 8192, FLG + 49152, FLG + 20480
FL1, GEN, FG1 = FLG + 24576, FLG + 28672, FLG + 32768
KVL = 24 * MB
KNAME = NAME + "_kernel"
WS3 = [0, 8192, 16384, 24576, 65536, 73728, 81920, 90112]
RES3 = 155648
WS4 = [32768, 45056, 98304, 110592, 0, 12288, 57344, 69632, 81920]
WS5 = [0, 8192, 16384] + [8192 * i for i in range(4, 14)]
sTag = 53
OPT.update(dict(p3_a=7, p4_a=3, p5_a=7, p5_na=6, down_l2=0, ws_off=0, p5_c2=9, p5_nw=11, p4_pf=13, p4_pre=7, p2_map=1, force_slow=0, p1_cnt=1, kv_nt=0, kv_lag=1, early_t=0, gf_late=0, gu_from=512, p1_s3=2, tout_g=0, p1_er=3, p2_defer=0, p2_sched=0, ld=0, touch_out=1, touch2=1, k1_tout=11, p2_fine=0, p2_rot=1, p4_wi=2, sc="sc1"))

sWS, sWave, sHw = 12, 24, 29
sT0, sT1 = 30, 31
KX, KWO, KG, KU, KD, KO = 64, 68, 72, 74, 76, 78
vLane, vL16 = 1, 2


def ws_srd(a):
    off = OPT["ws_off"] * MB
    a(f"s_add_u32 s{sWS}, s8, {hx(off)}")
    a(f"s_addc_u32 s{sWS + 1}, s9, 0")
    a(f"s_mov_b32 s{sWS + 2}, {hx(WS_SIZE)}")
    a(f"s_mov_b32 s{sWS + 3}, 0x00020000")


def LD():
    return ["sc1", "nt", "", "sc0 sc1", "sc0"][OPT["ld"]]


def stamp(a, force=False):
    if not G.STAMPS or (getattr(a, "nostamp", False) and not force):
        return
    i = getattr(a, "nstamp", 0)
    a.nstamp = i + 1
    assert i < 20, i
    a("s_memtime s[100:101]")
    a.wait_all(vm=False)
    a(f"s_mov_b32 s{80 + i}, s100")


def stamp_real(a):
    if not G.STAMPS:
        return
    i = getattr(a, "nstamp", 0)
    a.nstamp = i + 1
    a("s_memrealtime s[100:101]")
    a.wait_all(vm=False)
    a(f"s_mov_b32 s{80 + i}, s100")


def stamp_flush(a):
    if not G.STAMPS:
        return
    a.wait_all()
    stamp(a, True)
    stamp_real(a)
    a("s_mov_b64 exec, -1")
    a("s_lshl_b32 s58, s2, 3")
    a(f"s_add_u32 s58, s58, s{sWave}")
    a("s_lshl_b32 s58, s58, 7")
    a(f"s_add_u32 s58, s58, {G.DBGO + MB}")
    a("v_mov_b32 v1, 0")
    for i in range(a.nstamp):
        a(f"v_mov_b32 v2, s{80 + i}")
        a(f"buffer_store_dword v2, v1, {sr(sWS, 4)}, s58 offen offset:{4 * i}")
    a.wait_all()


LMODE = 163840 - 16
sMode = 54
_uid = [0]


def stores(a, ins, always_slow=False):
    if always_slow:
        for x in ins:
            a.vm(x + " sc1")
        return
    _uid[0] += 1
    u = _uid[0]
    a(f"s_cmp_eq_u32 s{sMode}, 0")
    a(f"s_cbranch_scc1 L_st_{u}_s")
    for x in ins:
        a.vm(x)
    a(f"s_branch L_st_{u}_j")
    a.label(f"L_st_{u}_s")
    for x in ins:
        a(x + " sc1")
    a.label(f"L_st_{u}_j")


def publish(a, sOff, vt, always_slow=False):
    a(f"v_mov_b32 v{vt}, 0")
    a(f"v_mov_b32 v{vt + 1}, s{sTag}")
    a("s_mov_b64 exec, 1")
    a.wait_all(lg=False)
    stores(a, [f"buffer_store_dword v{vt + 1}, v{vt}, {sr(sWS, 4)}, s{sOff} offen"], always_slow)
    a("s_mov_b64 exec, -1")


def poll_issue(a, sOff, vt, uid, off):
    a(f"s_cmp_lg_u32 s{sWave}, 0")
    a(f"s_cbranch_scc1 L_pi_{uid}")
    a(f"v_lshlrev_b32 v{vt}, 2, v{vLane}")
    a(f"buffer_load_dword v{vt + 1}, v{vt}, {sr(sWS, 4)}, s{sOff} offen offset:{off} sc1")
    a.label(f"L_pi_{uid}")


def poll(a, sOff, vt, uid, nflags=64, every=False, barrier=True, off=0, issued=False):
    if not every:
        a(f"s_cmp_lg_u32 s{sWave}, 0")
        a(f"s_cbranch_scc1 L_poll_{uid}_go")
    if not issued:
        a(f"v_lshlrev_b32 v{vt}, 2, v{vLane}")
    a("s_mov_b32 s59, 0x40000")
    if nflags < 64:
        a(f"s_mov_b64 exec, {hx((1 << nflags) - 1)}")
    if issued:
        a(f"s_branch L_poll_{uid}_c")
    a.label(f"L_poll_{uid}")
    a(f"buffer_load_dword v{vt + 1}, v{vt}, {sr(sWS, 4)}, s{sOff} offen offset:{off} sc1")
    a.label(f"L_poll_{uid}_c")
    a("s_sub_u32 s59, s59, 1")
    a("s_waitcnt vmcnt(0)")
    a(f"v_cmp_ne_u32 vcc, s{sTag}, v{vt + 1}")
    a("s_cmp_eq_u32 s59, 0")
    a(f"s_cbranch_scc1 L_poll_{uid}_x")
    a(f"s_cbranch_vccnz L_poll_{uid}")
    a.label(f"L_poll_{uid}_x")
    a("s_mov_b64 exec, -1")
    a.label(f"L_poll_{uid}_go")
    if barrier:
        a("s_barrier")


def touch_setup(h):
    srd(h, 16, KWO, 512 * 1024)
    srd(h, 20, KG, 512 * 2752)
    srd(h, 48, KU, 512 * 2752)
    h(f"s_and_b32 s{sT0}, s2, 7")
    h(f"s_lshl_b32 s{sT1}, s{sT0}, 18")
    h(f"s_add_u32 s4, s{KX}, s{sT1}")
    h(f"s_addc_u32 s5, s{KX + 1}, 0")
    srd(h, 44, 4, 256 * 1024)
    h(f"s_mul_i32 s{sT0}, s{sT0}, {172 * 1024}")
    h(f"s_add_u32 s10, s{KD}, s{sT0}")
    h(f"s_addc_u32 s11, s{KD + 1}, 0")
    if OPT["down_l2"]:
        srd(h, 40, KD, 1376 * 1024)
    else:
        srd(h, 40, 10, 172 * 1024)
    h(f"s_lshr_b32 s{sT0}, s2, 3")
    h("v_lshlrev_b32 v3, 7, v1")


def touch_weights(h):
    k0 = OPT["gu_from"]
    n = -(-(512 - k0) * 2752 // (32 * 8192))
    if k0:
        per = -(-k0 * 2752 // 256 // 128) * 128
        assert per <= 8192
        h(f"s_mul_i32 s{sT1}, s2, {per}")
        h(f"v_add_u32 v4, s{sT1}, v3")
        nl = per // 128
        h(f"s_mov_b32 exec_lo, {hx((1 << min(nl, 32)) - 1)}")
        h(f"s_mov_b32 exec_hi, {hx((1 << max(nl - 32, 0)) - 1)}")
        for sq in (20, 48):
            h.vm(f"buffer_load_dword v5, v4, {sr(sq, 4)}, 0 offen")
        h("s_mov_b64 exec, -1")
    for sq, per, n_, base in ((16, 16384, 2, 0), (44, 8192, 1, 0), (40, 49152, 6, 0) if OPT["down_l2"] else (40, 8192, 1, 0), (20, n * 8192, n, k0 * 2752 // 128 * 128),
                              (48, n * 8192, n, k0 * 2752 // 128 * 128)):
        if n_ == 0:
            continue
        h(f"s_mul_i32 s{sT1}, s{sT0}, {per}")
        if base:
            h(f"s_add_u32 s{sT1}, s{sT1}, {base}")
        h(f"v_add_u32 v4, s{sT1}, v3")
        for i in range(n_):
            h.vm(f"buffer_load_dword v5, v4, {sr(sq, 4)}, 0 offen")
            if i + 1 < n_:
                h("v_add_u32 v4, 0x2000, v4")


def phase1(a):
    sX, sW = 20, 16
    sWr, sWc, sCg, sRb = 25, 26, 27, 28
    sWL = 32
    sOnes = 41
    vT = 8
    NSLOT, SLOT, WBASE, NST = 7, 12288, 65536, 16
    CSO = WBASE + NSLOT * SLOT
    RSO = 155648
    XEO = 156672
    a("s_load_dwordx16 s[64:79], s[0:1], 0")
    a("s_load_dwordx2 s[8:9], s[0:1], 72")
    a(f"v_and_b32 v{vLane}, 63, v0")
    a(f"v_lshrrev_b32 v7, 6, v0")
    a(f"v_lshlrev_b32 v{vL16}, 4, v{vLane}")
    a(f"v_readfirstlane_b32 s{sWave}, v7")
    a(f"s_and_b32 s{sT0}, s2, 7")
    a(f"s_lshl_b32 s{sT0}, s{sT0}, 2")
    a(f"s_bfe_u32 s{sT1}, s2, 0x20003")
    a(f"s_add_u32 s{sRb}, s{sT0}, s{sT1}")
    a(f"s_lshr_b32 s{sCg}, s2, 5")
    a(f"s_and_b32 s{sHw}, s{sWave}, 3")
    a(f"s_cmp_eq_u32 s{sWave}, 8")
    a("s_cbranch_scc1 L_p1_aux")
    a(f"s_cmp_ge_u32 s{sWave}, 4")
    a(f"s_cbranch_scc0 L_p1_compute")

    x = fork(a)
    x.label("L_p1_aux")
    x("s_setprio 3")
    x(f"v_lshlrev_b32 v30, 7, v{vLane}")
    x(f"s_lshr_b32 s{sT0}, s2, 3")
    x(f"s_lshl_b32 s{sT0}, s{sT0}, 11")
    x(f"v_add_u32 v30, s{sT0}, v30")
    x("s_mov_b64 exec, 0xffff")
    code_prefetch(x, KNAME, 44, 30, 31, "p1")
    x("s_mov_b64 exec, -1")
    x("s_getreg_b32 s56, hwreg(HW_REG_XCC_ID, 0, 4)")
    x("s_and_b32 s57, s2, 7")
    x("s_lshl_b32 s57, s57, 8")
    x(f"s_add_u32 s57, s57, {XT}")
    x("s_lshr_b32 s58, s2, 3")
    x("s_lshl_b32 s58, s58, 2")
    x(f"v_mov_b32 v6, {GEN}")
    x("s_waitcnt lgkmcnt(0)")
    ws_srd(x)
    x.vm(f"buffer_load_dword v7, v6, {sr(sWS, 4)}, 0 offen")
    x("v_mov_b32 v6, s58")
    x("s_barrier")
    x("s_barrier")
    x.wait_all()
    x(f"v_readfirstlane_b32 s{sTag}, v7")
    x("s_nop 3")
    x(f"s_add_u32 s{sTag}, s{sTag}, 1")
    x(f"s_lshl_b32 s58, s{sTag}, 4")
    x("s_or_b32 s56, s56, s58")
    x("v_mov_b32 v7, s56")
    x("s_mov_b64 exec, 1")
    x.vm(f"buffer_store_dword v7, v6, {sr(sWS, 4)}, s57 offen sc1")
    x("s_mov_b32 exec_lo, -1")
    x("s_mov_b32 exec_hi, 0")
    x(f"v_lshlrev_b32 v6, 2, v{vLane}")
    for st in range(2, NST + 1):
        if st == 12:
            x("s_mov_b32 s59, 0x40000")
            x("s_waitcnt vmcnt(0)")
            x("s_branch L_xt_chk")
            x.label("L_xt_poll")
            x(f"buffer_load_dword v7, v6, {sr(sWS, 4)}, s57 offen sc1")
            x("s_sub_u32 s59, s59, 1")
            x("s_waitcnt vmcnt(0)")
            x.label("L_xt_chk")
            x("v_xor_b32 v8, s56, v7")
            x("v_cmp_lt_u32 vcc, 15, v8")
            x("s_cmp_eq_u32 s59, 0")
            x("s_cbranch_scc1 L_xt_done")
            x("s_cbranch_vccnz L_xt_poll")
            x.label("L_xt_done")
            x("v_cmp_ne_u32 vcc, 0, v8")
            x("s_nop 1")
            x("s_cmp_eq_u64 vcc, 0")
            x(f"s_cselect_b32 s{sMode}, {0 if OPT['force_slow'] else 1}, 0")
            x(f"v_mov_b32 v6, {LMODE}")
            x(f"v_mov_b32 v8, s{sMode}")
            x(f"v_mov_b32 v9, s{sTag}")
            x("ds_write_b64 v6, v[8:9]")
            x("s_waitcnt lgkmcnt(0)")
            x("s_mov_b64 exec, -1")
        x("s_barrier")
        if OPT["early_t"] and st == OPT["early_t"]:
            touch_setup(x)
            touch_weights(x)
        if st == 8:
            x(f"buffer_load_dword v7, v6, {sr(sWS, 4)}, s57 offen sc1")

    h = fork(a)
    vWoff, vXg, vSr, vXe, vRs = 3, 4, 6, 20, 21
    vS, vQ, vM, vR = 22, 23, 24, 25
    XB = 32
    h(f"v_lshrrev_b32 v{vT}, 3, v{vLane}")
    h(f"v_and_b32 v{vT + 1}, 7, v{vLane}")
    h(f"v_lshrrev_b32 v{vT + 2}, 1, v{vT}")
    h(f"v_xor_b32 v{vT + 2}, v{vT + 2}, v{vT + 1}")
    h(f"v_lshlrev_b32 v{vT + 2}, 4, v{vT + 2}")
    h(f"v_lshl_add_u32 v{vXg}, v{vT}, 10, v{vT + 2}")
    h(f"v_xor_b32 v{vXg + 1}, 64, v{vXg}")
    h(f"v_add_u32 v{vXg + 1}, {8 * 1024 - 1024}, v{vXg + 1}")
    h(f"s_lshl_b32 s34, s{sRb}, 16")
    h(f"s_lshl_b32 s{sT0}, s{sHw}, 14")
    h(f"s_add_u32 s34, s34, s{sT0}")
    h(f"s_lshl_b32 s36, s{sHw}, 11")
    h(f"v_lshrrev_b32 v{vT + 2}, 2, v{vLane}")
    h(f"v_and_b32 v{vT + 2}, 4, v{vT + 2}")
    h(f"v_xor_b32 v{vT + 2}, v{vT + 2}, v{vT + 1}")
    h(f"v_lshlrev_b32 v{vT + 2}, 4, v{vT + 2}")
    h(f"v_mul_u32_u24 v{vT + 3}, 3072, v{vT}")
    h(f"s_mul_i32 s{sT0}, s{sHw}, {8 * 3072}")
    h(f"s_lshl_b32 s{sT1}, s{sCg}, 7")
    h(f"s_add_u32 s{sT0}, s{sT0}, s{sT1}")
    h(f"v_add3_u32 v{vWoff}, v{vT + 3}, v{vT + 2}, s{sT0}")
    h(f"s_mul_i32 s{sWL}, s{sHw}, 3072")
    h("s_waitcnt lgkmcnt(0)")
    srd(h, sX, KX, 2048 * 1024)
    srd(h, sW, KX + 2, 512 * 3072)
    d2 = OPT.get("det") == 2
    if d2:
        h.nstamp = 7
        stamp(h)
    dr = Drip(h)

    def x_dma(c, key):
        dr.add(key, [f"s_add_u32 m0, s36, {c * 8192}", f"s_add_u32 s43, s34, {c * 128}"],
               f"buffer_load_dwordx4 v{vXg}, {sr(sX, 4)}, s43 offen lds")
        dr.add(key, [], f"buffer_load_dwordx4 v{vXg + 1}, {sr(sX, 4)}, s43 offen offset:1024 lds")

    def issue(st):
        if st % 2 == 0:
            x_dma(st // 2, st)
        for seg in range(3):
            pre = [f"s_add_u32 m0, s{sWL}, {WBASE + (st % NSLOT) * SLOT}", f"s_mov_b32 s42, {32 * st * 3072}"] if seg == 0 else []
            dr.add(st, pre, f"buffer_load_dwordx4 v{vWoff}, {sr(sW, 4)}, s42 offen offset:{seg * 1024} lds")

    for st in range(NSLOT):
        issue(st)
    AHEAD = OPT["k1_d"]
    dr.through(OPT["k1_t"] - 1)

    def s3(lo, hi):
        for i in range(lo, hi):
            h(f"s_load_dword s52, s[50:51], {(i % 8) * 131072 + 384}")
            h(f"s_load_dword s52, s[50:51], {(i % 8) * 131072 + 448}")

    if OPT["p1_s3"]:
        h(f"s_lshr_b32 s{sT0}, s2, 3")
        h(f"s_lshl_b32 s{sT0}, s{sT0}, 2")
        h(f"s_add_u32 s{sT0}, s{sT0}, s{sHw}")
        h(f"s_lshl_b32 s{sT0}, s{sT0}, 10")
        h(f"s_add_u32 s50, s{KX + 2}, s{sT0}")
        h(f"s_addc_u32 s51, s{KX + 3}, 0")
        s3(0, 7)
    if OPT["k1_touch"]:
        h(f"s_lshl_b32 s{sT0}, s2, 2")
        h(f"s_add_u32 s{sT0}, s{sT0}, s{sHw}")
        h(f"s_mul_i32 s{sT1}, s{sT0}, 1536")
        h(f"s_lshl_b32 s{sT0}, s{sT0}, 11")
        h(f"v_lshlrev_b32 v30, 7, v{vLane}")
        h("s_mov_b64 exec, 0xfff")
        h.vm(f"buffer_load_dword v31, v30, {sr(sW, 4)}, s{sT1} offen")
        h("s_mov_b64 exec, 0xffff")
        h.vm(f"buffer_load_dword v31, v30, {sr(sX, 4)}, s{sT0} offen")
        h("s_mov_b64 exec, -1")
    dr.through(AHEAD - 1)
    ws_srd(h)
    st_tok = {}
    if d2:
        stamp(h)
    for st in range(NST):
        dr.wait(st)
        if d2 and st in (4, 10):
            stamp(h)
        h("s_barrier")
        if d2 and st in (0, 2, 4, 8, 10, 12, 15):
            stamp(h)
        if st == 0 and OPT["p1_s3"]:
            s3(7, 8)
            h(f"s_add_u32 s50, s50, {8 * 131072}")
            h("s_addc_u32 s51, s51, 0")
            s3(8, 12)
        if st >= 1 and st + NSLOT - 1 < NST:
            issue(st + NSLOT - 1)
        tgt = min(NST - 1, st + AHEAD + min(st + 1, OPT["k1_g"]))
        while dr.q and dr.q[0][0] <= tgt:
            dr.emit()
        if st == OPT.get("k1_tout", -1):
            h(f"s_lshl_b32 s{sT0}, s{sCg}, 2")
            h(f"s_add_u32 s{sT0}, s{sT0}, s{sHw}")
            h(f"s_lshl_b32 s{sT0}, s{sT0}, 5")
            h(f"s_add_u32 s{sT0}, s{sT0}, s{sRb}")
            h(f"s_lshl_b32 s{sT1}, s{sT0}, 12")
            h(f"s_add_u32 s{sT1}, s{sT1}, {KVL}")
            h(f"s_lshl_b32 s{sT0}, s{sT0}, 11")
            if QF:
                h(f"s_add_u32 s{sT0}, s{sT0}, {QF}")
            h(f"v_lshlrev_b32 v30, 7, v{vLane}")
            h("s_mov_b64 exec, 0xffff")
            h.vm(f"buffer_load_dword v31, v30, {sr(sWS, 4)}, s{sT0} offen")
            h("s_mov_b32 exec_lo, -1")
            h.vm(f"buffer_load_dword v31, v30, {sr(sWS, 4)}, s{sT1} offen")
            if OPT["tout_g"]:
                h(f"s_sub_u32 s{sT1}, s{sT1}, {KVL - KVF}")
                h.vm(f"buffer_load_dword v31, v30, {sr(sWS, 4)}, s{sT1} offen")
            h("s_mov_b64 exec, -1")
    h(f"v_mov_b32 v{vT}, {LMODE}")
    h.lg(f"ds_read_b64 {vr(vT + 2, 2)}, v{vT}")
    h.wait_all(vm=False)
    h(f"v_readfirstlane_b32 s{sMode}, v{vT + 2}")
    h(f"v_readfirstlane_b32 s{sTag}, v{vT + 3}")
    h("s_barrier")
    h.wait_all()
    if OPT.get("det") != 2:
        stamp(h)
    a = fork(a)
    a.label("L_p1_compute")

    vXrd = [3, 4, 5, 6]
    vKoff, vVoff = 20, 21
    vWrd = [22, 23, 24]
    vCw, vCr, vEr, vRl, vRr = 25, 26, 27, 28, 29
    XF = [32, 36]
    WF = [40, 52]
    CS, ONES, XE = 64, 76, 80
    RV = 84
    accQ, accK, accV = 104, 120, 136
    SQ = 152
    a(f"s_lshr_b32 s{sWr}, s{sHw}, 1")
    a(f"s_and_b32 s{sWc}, s{sHw}, 1")
    a(f"v_and_b32 v{vT}, 31, v{vLane}")
    a(f"v_lshrrev_b32 v{vT + 1}, 5, v{vLane}")
    a(f"v_bfe_u32 v{vT + 2}, v{vLane}, 1, 3")
    a(f"v_xor_b32 v{vT + 2}, v{vT + 2}, v{vT + 1}")
    a(f"v_lshlrev_b32 v{vT + 2}, 4, v{vT + 2}")
    a(f"v_lshl_add_u32 v{vT + 2}, v{vT}, 7, v{vT + 2}")
    a(f"s_lshl_b32 s{sT0}, s{sWr}, 12")
    a(f"v_add_u32 v{vXrd[0]}, s{sT0}, v{vT + 2}")
    for ss in range(1, 4):
        a(f"v_xor_b32 v{vXrd[ss]}, {ss * 32}, v{vXrd[0]}")
    a(f"v_mul_u32_u24 v{vT + 2}, 3072, v{vT + 1}")
    a(f"v_bfe_u32 v{vT + 3}, v{vLane}, 2, 2")
    a(f"v_lshl_add_u32 v{vT + 2}, v{vT + 3}, 7, v{vT + 2}")
    a(f"v_lshrrev_b32 v{vT + 3}, 1, v{vT + 3}")
    a(f"v_xor_b32 v{vT + 3}, s{sWc}, v{vT + 3}")
    a(f"v_lshl_add_u32 v{vT + 2}, v{vT + 3}, 6, v{vT + 2}")
    a(f"v_bfe_u32 v{vT + 4}, v{vLane}, 4, 1")
    a(f"v_lshl_add_u32 v{vT + 2}, v{vT + 4}, 5, v{vT + 2}")
    a(f"v_and_b32 v{vT + 3}, 3, v{vLane}")
    a(f"v_lshl_add_u32 v{vWrd[0]}, v{vT + 3}, 3, v{vT + 2}")
    wl = LdsAddr(a, vWrd)
    wl.setup(a)
    a(f"v_xor_b32 v{vT + 2}, v{vT + 4}, v{vLane}")
    a(f"v_and_b32 v{vT + 2}, 1, v{vT + 2}")
    a(f"v_cmp_eq_u32 vcc, 0, v{vT + 2}")
    a(f"v_mov_b32 v{vT + 2}, 0x3f803f80")
    a("s_nop 0")
    for r in range(4):
        a(f"v_cndmask_b32 v{ONES + r}, 0, v{vT + 2}, vcc")
    a(f"s_lshl_b32 s{sT0}, s{sWc}, 1")
    a(f"s_add_u32 s{sT1}, s{sT0}, s{sWr}")
    a(f"s_mul_i32 s{sT1}, s{sT1}, 384")
    a(f"s_add_u32 s{sT1}, s{sT1}, {CSO}")
    a(f"v_and_b32 v{vT + 2}, 1, v{vLane}")
    a(f"v_lshlrev_b32 v{vT + 2}, 6, v{vT + 2}")
    a(f"v_and_b32 v{vT + 3}, 48, v{vLane}")
    a(f"v_add3_u32 v{vCw}, v{vT + 2}, v{vT + 3}, s{sT1}")
    a(f"s_mul_i32 s{sT0}, s{sT0}, 384")
    a(f"s_add_u32 s{sT0}, s{sT0}, {CSO}")
    a(f"v_mul_u32_u24 v{vT + 2}, 384, v{vT + 1}")
    a(f"v_lshl_add_u32 v{vT + 2}, v{vT}, 2, v{vT + 2}")
    a(f"v_add_u32 v{vCr}, s{sT0}, v{vT + 2}")
    a(f"s_lshl_b32 s{sT0}, s{sHw}, 9")
    a(f"s_add_u32 s{sT0}, s{sT0}, {XEO}")
    a(f"v_lshl_add_u32 v{vEr}, v{vLane}, 3, s{sT0}")
    a(f"v_xor_b32 v31, 512, v{vEr}")
    a(f"s_lshl_b32 s{sT0}, s{sHw}, 7")
    a(f"s_add_u32 s{sT0}, s{sT0}, {RSO}")
    a(f"v_lshl_add_u32 v{vRl}, v{vT}, 2, s{sT0}")
    a(f"v_lshl_add_u32 v{vRr}, v{vT + 1}, 4, s{sT0}")
    a(f"s_mov_b32 s{sOnes}, 0x3f803f80")
    a(f"v_mov_b32 v{SQ}, 0")
    a(f"v_mov_b32 v{SQ + 1}, 0")
    a(f"v_and_b32 v{vT + 2}, 0x33, v{vLane}")
    a(f"v_bfe_u32 v{vT + 3}, v{vLane}, 2, 1")
    a(f"v_lshl_or_b32 v{vT + 2}, v{vT + 3}, 3, v{vT + 2}")
    a(f"v_bfe_u32 v{vT + 3}, v{vLane}, 3, 1")
    a(f"v_lshl_or_b32 v{vT + 2}, v{vT + 3}, 2, v{vT + 2}")
    a(f"v_lshlrev_b32 v{vKoff}, 4, v{vT + 2}")
    a(f"v_lshlrev_b32 v{vT + 2}, 17, v{vT + 4}")
    a(f"v_lshl_add_u32 v{vT + 2}, v{vT + 1}, 8, v{vT + 2}")
    a(f"v_and_b32 v{vT + 3}, 15, v{vLane}")
    a(f"v_lshl_add_u32 v{vVoff}, v{vT + 3}, 4, v{vT + 2}")
    a(f"s_lshl_b32 s{sT0}, s{sCg}, 2")
    a(f"s_lshl_b32 s{sT1}, s{sWc}, 1")
    a(f"s_add_u32 s{sT0}, s{sT0}, s{sT1}")
    a(f"s_lshl_b32 s{sT1}, s{sRb}, 1")
    a(f"s_add_u32 s{sT1}, s{sT1}, s{sWr}")
    a(f"s_lshl_b32 s46, s{sT0}, 16")
    a(f"s_lshl_b32 s47, s{sT1}, 10")
    a(f"s_add_u32 s46, s46, s47")
    if QF:
        a(f"s_add_u32 s46, s46, {QF}")
    a(f"s_add_u32 s47, s46, 65536")
    a(f"s_lshl_b32 s36, s{sT0}, 17")
    a(f"s_lshl_b32 s37, s{sT1}, 11")
    a(f"s_add_u32 s36, s36, s37")
    a(f"s_add_u32 s36, s36, {KVF}")
    a(f"s_add_u32 s37, s36, 131072")
    for r in range(12):
        a(f"v_mov_b32 v{CS + r}, 0")
    a("s_waitcnt lgkmcnt(0)")
    ws_srd(a)
    a(f"s_lshl_b32 s{sT0}, s{sCg}, 1")
    a(f"s_add_u32 s{sT0}, s{sT0}, s{sWc}")
    a(f"s_and_b32 s{sT1}, s{sRb}, 3")
    a(f"s_lshl_b32 s{sT1}, s{sT1}, 1")
    a(f"s_add_u32 s{sT1}, s{sT1}, s{sWr}")
    a(f"s_lshl_b32 s{sT1}, s{sT1}, 2")
    a("s_and_b32 s38, s2, 7")
    a("s_lshl_b32 s48, s38, 9")
    a(f"s_lshl_b32 s39, s{sT0}, 5")
    a("s_add_u32 s48, s48, s39")
    a(f"s_add_u32 s48, s48, s{sT1}")
    a(f"s_add_u32 s48, s48, {FL1}")
    a(f"s_lshl_b32 s49, s{sT0}, 10")
    a("s_lshl_b32 s39, s38, 7")
    a("s_add_u32 s49, s49, s39")
    a(f"s_add_u32 s49, s49, s{sT1}")
    a(f"s_add_u32 s49, s49, {FG1}")
    a(f"s_add_u32 s38, s36, {KVL - KVF}")
    a(f"s_add_u32 s39, s37, {KVL - KVF}")
    a(f"v_mov_b32 v30, {LMODE}")

    def reads(s):
        st, ss = divmod(s, 2)
        ops = [f"ds_read_b128 {vr(XF[s & 1], 4)}, v{vXrd[s & 3]} offset:{(s >> 2) * 8192}"]
        for seg in range(3):
            for half in range(2):
                reg, off = wl.at(WBASE + (st % NSLOT) * SLOT + ss * 6144 + seg * 1024 + half * 512)
                ops.append(f"ds_read_b64_tr_b16 {vr(WF[s & 1] + 4 * seg + 2 * half, 2)}, {reg} offset:{off}")
        return ops

    rt = {}

    def emit_reads(b, s, lo, hi):
        ops = reads(s)
        for k in range(lo, min(hi, 7)):
            rt[(s, k)] = b.lg(ops[k])

    a("s_barrier")
    if OPT.get("det") != 4:
        stamp(a)
    emit_reads(a, 0, 0, 7)
    a(f"s_cmp_lg_u32 s{sWr}, s{sWc}")
    a("s_cbranch_scc1 L_p1_odd")
    rt0 = dict(rt)
    odd = fork(a)
    odd.label("L_p1_odd")
    acc = [accQ, accK, accV]

    def mm(b, j, w, x, first=False):
        c = "0" if first else vr(acc[j], 16)
        ops = (vr(w, 4), vr(x, 4)) if j < 2 else (vr(x, 4), vr(w, 4))
        b(f"v_mfma_f32_32x32x16_bf16 {vr(acc[j], 16)}, {ops[0]}, {ops[1]}, {c}")

    def csum(b, s, j):
        b(f"v_mfma_f32_16x16x32_bf16 {vr(CS + 4 * j, 4)}, {vr(WF[s & 1] + 4 * j, 4)}, {vr(ONES, 4)}, {vr(CS + 4 * j, 4)}")

    def stats(b, s):
        for r in range(4):
            b(f"v_dot2_f32_bf16 v{SQ}, v{XF[s & 1] + r}, s{sOnes}, v{SQ}")
            b(f"v_dot2_f32_bf16 v{SQ + 1}, v{XF[s & 1] + r}, v{XF[s & 1] + r}, v{SQ + 1}")

    for par, b in ((0, a), (1, odd)):
        rt.clear()
        rt.update(rt0)
        for s in range(31):
            if s % 2 == 1:
                b.wait(lg=rt[(s, 6)])
                b("s_barrier")
            cutp = [0, 3, 5, 7]
            for j in range(3):
                b.wait(lg=rt[(s, 2 + 2 * j)])
                if s % 2 == par:
                    csum(b, s, j)
                mm(b, j, WF[s & 1] + 4 * j, XF[s & 1], s == 0)
                emit_reads(b, s + 1, cutp[j], cutp[j + 1])
            if s % 2 != par:
                stats(b, s)
            if s == 27:
                b.lg("ds_read_b64 v[102:103], v30")
        b.wait_all(vm=False)
        if par == 1:
            for j in range(3):
                csum(b, 31, j)
        else:
            stats(b, 31)
    odd("s_branch L_p1_join")
    a.label("L_p1_join")
    mm(a, 0, WF[1], XF[1])
    a(f"v_readfirstlane_b32 s{sMode}, v102")
    a(f"v_readfirstlane_b32 s{sTag}, v103")
    a(f"v_mov_b32 v{SQ + 2}, v{SQ}")
    a(f"v_mov_b32 v{SQ + 3}, v{SQ + 1}")
    a(f"v_mov_b32 v{XE + 2}, 0")
    a(f"v_permlane32_swap_b32 v{SQ}, v{SQ + 2}")
    a(f"v_permlane32_swap_b32 v{SQ + 1}, v{SQ + 3}")
    a(f"v_mov_b32 v{XE + 3}, 0")
    a(f"v_add_f32 v{SQ}, v{SQ}, v{SQ + 2}")
    a(f"v_add_f32 v{SQ + 1}, v{SQ + 1}, v{SQ + 3}")
    a.lg(f"ds_write_b64 v{vEr}, {vr(SQ, 2)}")
    a("s_mov_b32 exec_lo, 0x00030003")
    a("s_mov_b32 exec_hi, 0x00030003")
    for j in range(3):
        a.lg(f"ds_write_b128 v{vCw}, {vr(CS + 4 * j, 4)} offset:{j * 128}")
    a("s_mov_b64 exec, -1")
    mm(a, 1, WF[1] + 4, XF[1])
    for j in range(3):
        a(f"v_mov_b32 v{WF[0] + 4 * j + 2}, 0")
        a(f"v_mov_b32 v{WF[0] + 4 * j + 3}, 0")
    a.wait_all(vm=False)
    a("s_barrier")
    ts = a.lg(f"ds_read_b64 {vr(SQ + 2, 2)}, v31")
    for j in range(3):
        rt[("c", j)] = a.lg(f"ds_read_b32 v{vT + 4 + j}, v{vCr} offset:{j * 128}")
    mm(a, 2, WF[1] + 8, XF[1])
    if OPT.get("det") != 4:
        stamp(a)
    a.wait(lg=ts)
    a(f"v_add_f32 v{SQ}, v{SQ}, v{SQ + 2}")
    a(f"v_add_f32 v{SQ + 1}, v{SQ + 1}, v{SQ + 3}")
    a(f"v_mul_f32 v{SQ}, {hx(f2u(-1.0 / 512))}, v{SQ}")
    a(f"v_mul_f32 v{SQ + 1}, {hx(f2u(1.0 / 512))}, v{SQ + 1}")
    split_hi_lo(a, SQ, XE, vT, vT + 1)
    a(f"v_fma_f32 v{SQ + 1}, -v{SQ}, v{SQ}, v{SQ + 1}")
    a(f"v_cvt_pk_bf16_f32 v{XE + 1}, v{vT}, 0")
    a(f"v_max_f32 v{SQ + 1}, 0, v{SQ + 1}")
    a(f"v_add_f32 v{SQ + 1}, {hx(f2u(1e-5))}, v{SQ + 1}")
    a(f"v_rsq_f32 v100, v{SQ + 1}")
    for j in range(3):
        w = WF[0] + 4 * j
        a.wait(lg=rt[("c", j)])
        a(f"v_cvt_pk_bf16_f32 v{w + 1}, v{vT + 4 + j}, 0")
        a(f"v_lshlrev_b32 v{vT}, 16, v{w + 1}")
        a(f"v_sub_f32 v{vT}, v{vT + 4 + j}, v{vT}")
        a(f"v_cvt_pk_bf16_f32 v{w}, v{vT + 4 + j}, v{vT}")
        if j == 0:
            a.lg(f"ds_write_b32 v{vRl}, v100")
    for j in range(3):
        mm(a, j, WF[0] + 4 * j, XE)
    a(f"v_mul_f32 v101, {hx(f2u(0.25 * LOG2E))}, v100")
    for g in range(4):
        trv = a.lg(f"ds_read_b128 {vr(RV + 4 * g, 4)}, v{vRr} offset:{g * 32}")
    a("s_nop 4")
    P = 32
    for r in range(0, 16, 2):
        a(f"v_pk_mul_f32 {vr(accQ + r, 2)}, {vr(accQ + r, 2)}, v[100:101] op_sel:[0,1] op_sel_hi:[1,1]")
    for i in range(8):
        a(f"v_cvt_pk_bf16_f32 v{P + i}, v{accQ + 2 * i}, v{accQ + 2 * i + 1}")
    stores(a, [f"buffer_store_dwordx4 {vr(P, 4)}, v{vL16}, {sr(sWS, 4)}, s46 offen",
               f"buffer_store_dwordx4 {vr(P + 4, 4)}, v{vL16}, {sr(sWS, 4)}, s47 offen"])
    for r in range(0, 16, 2):
        a(f"v_pk_mul_f32 {vr(accK + r, 2)}, {vr(accK + r, 2)}, v[100:101] op_sel_hi:[1,0]")
    for i in range(8):
        a(f"v_cvt_pk_bf16_f32 v{P + 8 + i}, v{accK + 2 * i}, v{accK + 2 * i + 1}")
    stores(a, [f"buffer_store_dwordx4 {vr(P + 8, 4)}, v{vKoff}, {sr(sWS, 4)}, s38 offen",
               f"buffer_store_dwordx4 {vr(P + 12, 4)}, v{vKoff}, {sr(sWS, 4)}, s39 offen"])
    a.wait(lg=trv)
    for r in range(0, 16, 2):
        a(f"v_pk_mul_f32 {vr(accV + r, 2)}, {vr(accV + r, 2)}, {vr(RV + r, 2)}")
    for i in range(8):
        a(f"v_cvt_pk_bf16_f32 v{P + 16 + i}, v{accV + 2 * i}, v{accV + 2 * i + 1}")
    stores(a, [f"buffer_store_dwordx4 {vr(P + 16, 4)}, v{vVoff}, {sr(sWS, 4)}, s38 offen offset:1024",
               f"buffer_store_dwordx4 {vr(P + 20, 4)}, v{vVoff}, {sr(sWS, 4)}, s38 offen offset:1536"])
    loc = a.vm_issued - 1
    a.vm(f"buffer_store_dwordx4 {vr(P + 8, 4)}, v{vKoff}, {sr(sWS, 4)}, s36 offen sc1")
    a.vm(f"buffer_store_dwordx4 {vr(P + 12, 4)}, v{vKoff}, {sr(sWS, 4)}, s37 offen sc1")
    a.vm(f"buffer_store_dwordx4 {vr(P + 16, 4)}, v{vVoff}, {sr(sWS, 4)}, s36 offen offset:1024 sc1")
    a.vm(f"buffer_store_dwordx4 {vr(P + 20, 4)}, v{vVoff}, {sr(sWS, 4)}, s36 offen offset:1536 sc1")
    stamp(a)
    a(f"v_mov_b32 v{vT}, 0")
    a(f"v_mov_b32 v{vT + 1}, s{sTag}")
    a("s_mov_b64 exec, 1")
    if OPT["p1_cnt"]:
        a.wait(vm=loc)
    else:
        a.wait_all(lg=False)
    stores(a, [f"buffer_store_dword v{vT + 1}, v{vT}, {sr(sWS, 4)}, s48 offen"])
    if OPT.get("det") == 4:
        stamp(a)
    a("s_mov_b64 exec, -1")
    return a, odd, h, x


def phase2(a, l, h):
    sHead, sQb, sKh, sQs = 25, 26, 27, 28
    sVm = 34
    vKrd, vVrd, vIdx, vXw, vXr = 3, 4, 5, 6, 7
    Qf = [8, 12]
    Kf, Vf = 16, 32
    S = [64, 80]
    O = [96, 112]
    NEG = 128
    T = 144
    XCH = 131072
    BARS, CB = [[6, 12, 28], {2: 1, 4: 3}] if OPT["p2_sched"] == 0 else [[6, 14, 22, 36], {2: 1, 3: 2, 5: 4}]
    SYN = XCH + 7 * 3072 + 2048 + 4
    h(f"v_mov_b32 v22, {SYN}")
    h("v_mov_b32 v23, 0")
    h("ds_write_b32 v22, v23")
    h("ds_write_b32 v22, v23 offset:4")
    h("ds_write_b32 v22, v23 offset:8")

    def ready(n):
        h(f"v_mov_b32 v23, {n}")
        h("ds_write_b32 v22, v23")

    def wait_prog(k):
        h("s_mov_b32 s59, 0x100000")
        h.label(f"L_prog{k}")
        h(f"ds_read_b32 v24, v22 offset:{4 + 4 * k}")
        h("s_sub_u32 s59, s59, 1")
        h("s_waitcnt lgkmcnt(0)")
        h("v_readfirstlane_b32 s36, v24")
        h("s_cmp_eq_u32 s59, 0")
        h(f"s_cbranch_scc1 L_prog{k}_x")
        h("s_cmp_ge_u32 s36, 512")
        h(f"s_cbranch_scc1 L_prog{k}_x")
        h("s_sleep 4")
        h(f"s_branch L_prog{k}")
        h.label(f"L_prog{k}_x")

    h(f"s_lshr_b32 s{sHead}, s2, 3")
    h(f"s_lshl_b32 s33, s{sHead}, 17")
    h(f"s_add_u32 s33, s33, {KVF}")
    h(f"s_lshr_b32 s61, s{sHead}, 1")
    h("s_lshl_b32 s61, s61, 10")
    h(f"s_add_u32 s61, s61, {FG1}")
    h(f"v_lshrrev_b32 v6, 3, v{vLane}")
    h("v_lshlrev_b32 v6, 7, v6")
    h(f"v_and_b32 v7, 7, v{vLane}")
    h("v_lshl_add_u32 v6, v7, 2, v6")
    h("s_mov_b64 s[62:63], 0")
    h("s_mov_b32 s59, 0x40000")
    h("s_waitcnt lgkmcnt(0)")
    h("s_barrier")
    h.nostamp = OPT.get("det") != 3
    stamp(h)
    ctok = {}
    for c in range(1, 9):
        h(f"s_add_u32 s36, s2, {c}")
        h("s_and_b32 s36, s36, 7")
        h("s_lshl_b32 s36, s36, 3")
        h("s_bitcmp1_b64 s[62:63], s36")
        h(f"s_cbranch_scc1 L_g1_have{c}")
        h.label(f"L_g1_poll{c}")
        h(f"buffer_load_dword v7, v6, {sr(sWS, 4)}, s61 offen sc1")
        h("s_sub_u32 s59, s59, 1")
        h("s_waitcnt vmcnt(0)")
        if c >= 2:
            ready(c - 1)
        h(f"v_cmp_eq_u32 vcc, s{sTag}, v7")
        h("s_cmp_eq_u32 s59, 0")
        h("s_cselect_b64 s[62:63], -1, vcc")
        h("s_cselect_b32 s59, 1, s59")
        for sh in (1, 2, 4):
            h(f"s_lshr_b64 s[34:35], s[62:63], {sh}")
            h("s_and_b64 s[62:63], s[62:63], s[34:35]")
        h("s_bitcmp1_b64 s[62:63], s36")
        h(f"s_cbranch_scc0 L_g1_poll{c}")
        h.label(f"L_g1_have{c}")
        if c in (1, 2, 4, 8):
            stamp(h)
        if c == 8:
            break
        h("s_lshl_b32 s36, s36, 11")
        h("s_add_u32 s36, s36, s33")
        for half in range(2):
            for q in range(2):
                h(f"s_mov_b32 m0, {half * 65536 + c * 8192 + q * 4096}")
                h(f"s_add_u32 s37, s36, {half * 8192 + q * 4096}")
                for i in range(4):
                    ctok[c] = h.vm(f"buffer_load_dwordx4 v{vL16}, {sr(sWS, 4)}, s37 offen offset:{i * 1024} sc1{' nt' if OPT['kv_nt'] else ''} lds")
        lag = 1 if c <= 2 else OPT["kv_lag"]
        if c - lag >= 1:
            h.wait(vm=ctok[c - lag])
            ready(c - lag)
    if not OPT['early_t']:
        touch_setup(h)
    h(f"v_lshrrev_b32 v8, 3, v{vLane}")
    h(f"v_and_b32 v9, 7, v{vLane}")
    h(f"v_lshrrev_b32 v10, 2, v{vLane}")
    h("v_and_b32 v10, 4, v10")
    h("v_xor_b32 v10, v10, v9")
    h("v_lshlrev_b32 v10, 4, v10")
    h("v_lshl_add_u32 v10, v8, 10, v10")
    h("v_lshrrev_b32 v11, 1, v8")
    h("v_xor_b32 v11, v11, v9")
    h("v_lshlrev_b32 v11, 4, v11")
    h("v_lshl_add_u32 v11, v8, 10, v11")
    h("v_xor_b32 v12, 64, v11")
    h(f"v_and_b32 v13, 2, v{vLane}")
    h("v_lshlrev_b32 v13, 5, v13")
    h("v_sub_u32 v13, 32, v13")
    h("s_lshr_b32 s61, s2, 4")
    h("s_mul_i32 s61, s61, 192")
    for i in range(3):
        h(f"v_add_u32 v14, {64 * i}, v{vLane}")
        h("v_mul_u32_u24 v14, 171, v14")
        h("v_lshrrev_b32 v14, 11, v14")
        h(f"v_mul_u32_u24 v14, {2752 - 192}, v14")
        h(f"v_add3_u32 v{16 + i}, v{vL16}, v14, s61")
        h(f"v_add_u32 v{19 + i}, v{16 + i}, v13")
    h("s_bfe_u32 s60, s2, 0x30003")
    h("s_lshl_b32 s60, s60, 7")
    h.wait(vm=ctok[7])
    ready(7)
    stamp(h)
    if not OPT['early_t']:
        touch_weights(h)
    if OPT["touch_out"]:
        h("s_and_b32 s58, s2, 7")
        for base, gsz, per, n in ((HF, 262144, 8192, 1), (GF, 8 * 86 * 1024, 22016, 3))[:1 if OPT["gf_late"] else 2]:
            h(f"s_mul_i32 s{sT1}, s{sT0}, {per}")
            h(f"s_mul_i32 s36, s58, {gsz}")
            h(f"s_add_u32 s36, s36, s{sT1}")
            h(f"s_add_u32 s36, s36, {base}")
            for i in range(n):
                h.vm(f"buffer_load_dword v5, v3, {sr(sWS, 4)}, s36 offen {['', '', 'nt', 'sc1'][OPT['touch_out']]}")
                if i + 1 < n:
                    h("s_add_u32 s36, s36, 0x2000")
    if OPT["touch2"]:
        h("v_lshrrev_b32 v4, 3, v1")
        h("v_lshlrev_b32 v4, 15, v4")
        h("v_and_b32 v6, 7, v1")
        h("v_lshl_add_u32 v4, v6, 7, v4")
        h("s_and_b32 s36, s2, 7")
        h("s_lshl_b32 s36, s36, 18")
        h(f"s_lshl_b32 s{sT1}, s{sHead}, 10")
        h(f"s_add_u32 s36, s36, s{sT1}")
        h(f"s_add_u32 s36, s36, {OF}")
        h.vm(f"buffer_load_dword v5, v4, {sr(sWS, 4)}, s36 offen")
        h("s_lshl_b32 s36, s2, 10")
        h(f"s_add_u32 s36, s36, {ST}")
        h("s_mov_b64 exec, 0xff")
        h.vm(f"buffer_load_dword v5, v3, {sr(sWS, 4)}, s36 offen")
        h("s_mov_b64 exec, -1")
    h(f"s_lshl_b32 s{sT1}, s{sT0}, 11")
    h(f"v_add_u32 v4, s{sT1}, v3")
    h("s_mov_b64 exec, 0xffff")
    code_prefetch(h, "L_p2_tail", 38, 4, 5, "p2")
    h("s_mov_b64 exec, -1")
    stamp(h)
    wait_prog(0)
    stamp(h)
    for half in range(2):
        h(f"s_mov_b32 m0, {half * 65536}")
        h(f"s_add_u32 s36, s60, {half * 32 * 8192}")
        h("s_mov_b32 s37, 32")
        h.label(f"L_pre_wo{half}")
        h(f"buffer_load_dwordx4 v10, {sr(16, 4)}, s36 offen lds")
        h("s_add_u32 m0, m0, 1024")
        h("s_add_u32 s36, s36, 8192")
        h("s_sub_u32 s37, s37, 1")
        h("s_cmp_lg_u32 s37, 0")
        h(f"s_cbranch_scc1 L_pre_wo{half}")
        h("s_waitcnt vmcnt(16)")
    h("s_lshr_b32 s36, s2, 6")
    h("s_lshl_b32 s36, s36, 16")
    h("s_add_u32 s36, s36, s60")
    for i in range(8):
        h(f"s_mov_b32 m0, {RES3 + i * 1024}")
        h(f"s_add_u32 s37, s36, {i * 8192}")
        h(f"buffer_load_dwordx4 v{11 + (i & 1)}, {sr(44, 4)}, s37 offen lds")
    h("s_waitcnt vmcnt(16)")
    h("s_cmp_ge_u32 s2, 240")
    h("s_cbranch_scc1 L_pre_end")
    stamp(h)
    wait_prog(1)
    stamp(h)
    for st in range(4):
        for g2 in range(2):
            for mat in range(2):
                h(f"s_mov_b32 m0, {WS4[st] + (g2 * 2 + mat) * 3072}")
                h(f"s_mov_b32 s36, {(st * 32 + g2 * 16) * 2752}")
                for i in range(3):
                    h(f"buffer_load_dwordx4 v{16 + 3 * mat + i}, {sr(20 if mat == 0 else 48, 4)}, s36 offen offset:{i * 1024} lds")
        h("s_waitcnt vmcnt(40)")
    stamp(h)
    h.label("L_pre_end")
    h("s_waitcnt vmcnt(0)")
    if OPT.get("det") == 3:
        h(f"s_mov_b32 s{sWave}, 4")
        stamp_flush(h)
    h("s_endpgm")

    def init(b):
        b(f"s_lshr_b32 s{sHead}, s2, 3")
        b(f"s_and_b32 s{sQb}, s2, 7")
        b(f"s_lshr_b32 s{sKh}, s{sWave}, 2")
        b(f"s_and_b32 s{sQs}, s{sWave}, 3")
        b(f"v_and_b32 v{T}, 27, v{vLane}")
        b(f"v_cmp_eq_u32 vcc, 16, v{T}")
        b(f"v_mov_b32 v{T}, 0x3f803f80")
        b(f"v_mov_b32 v{vIdx}, 0xdddd")
        for r in range(32):
            b(f"v_cndmask_b32 v{Vf + r}, 0, v{T}, vcc")
        b(f"s_mov_b32 s{sVm}, 0x0000ffff")
        b(f"s_mov_b32 s{sVm + 1}, 0x0000ffff")
        b(f"s_lshl_b32 s{sT0}, s{sKh}, 16")
        b(f"v_add_u32 v{vKrd}, s{sT0}, v{vL16}")
        b(f"v_lshrrev_b32 v{T}, 5, v{vLane}")
        b(f"v_and_b32 v{T + 1}, 15, v{vLane}")
        b(f"v_lshlrev_b32 v{T + 1}, 4, v{T + 1}")
        b(f"v_lshl_add_u32 v{T}, v{T}, 8, v{T + 1}")
        b(f"v_add_u32 v{vVrd}, s{sT0}, v{T}")
        b(f"s_mul_i32 s{sT0}, s{sWave}, 3072")
        b(f"s_add_u32 s{sT0}, s{sT0}, {XCH}")
        b(f"v_add_u32 v{vXw}, s{sT0}, v{vL16}")
        b(f"s_xor_b32 s{sT1}, s{sWave}, 4")
        b(f"s_mul_i32 s{sT0}, s{sT1}, 3072")
        b(f"s_add_u32 s{sT0}, s{sT0}, {XCH}")
        b(f"v_add_u32 v{vXr}, s{sT0}, v{vL16}")
        b(f"s_lshl_b32 s{sT0}, s{sQs}, 1")
        b(f"s_add_u32 s{sT0}, s{sT0}, s{sKh}")
        b(f"s_lshl_b32 s{sT0}, s{sT0}, 10")
        b(f"s_add_u32 s{sT0}, s{sT0}, {XCH}")
        b(f"v_add_u32 v{T + 2}, s{sT0}, v{vL16}")
        b(f"v_xor_b32 v{T + 3}, 1024, v{T + 2}")
        b(f"v_mov_b32 v{T + 6}, {SYN}")
        b(f"v_mov_b32 v{T + 7}, 1")
        for c in range(2):
            for r in range(16):
                b(f"v_mov_b32 v{O[c] + r}, 0")
        b(f"s_lshl_b32 s57, s{sQb}, 2")
        b(f"s_add_u32 s57, s57, s{sQs}")
        b(f"s_lshl_b32 s55, s57, 8")
        b(f"s_lshl_b32 s{sT1}, s{sHead}, 1")
        b(f"s_add_u32 s{sT1}, s{sT1}, s{sKh}")
        b(f"s_lshl_b32 s{sT1}, s{sT1}, 2")
        b(f"s_add_u32 s55, s55, s{sT1}")
        b(f"s_add_u32 s55, s55, {F2}")
        b(f"s_lshl_b32 s57, s57, 1")
        b(f"s_add_u32 s57, s57, s{sKh}")
        b(f"s_lshl_b32 s57, s57, 15")
        b(f"s_lshl_b32 s{sT1}, s{sHead}, 10")
        b(f"s_add_u32 s57, s57, s{sT1}")
        b(f"s_add_u32 s57, s57, {OF}")

    init(l)
    l(f"s_lshl_b32 s40, s{sQb}, 9")
    l(f"s_lshr_b32 s{sT0}, s{sHead}, 1")
    l(f"s_lshl_b32 s{sT0}, s{sT0}, 5")
    l(f"s_add_u32 s40, s40, s{sT0}")
    l(f"s_add_u32 s40, s40, {FL1}")
    l(f"s_lshl_b32 s36, s{sHead}, 17")
    l(f"s_lshl_b32 s{sT0}, s{sQb}, 14")
    l(f"s_add_u32 s36, s36, s{sT0}")
    l(f"s_lshl_b32 s{sT0}, s{sQs}, 12")
    l(f"s_add_u32 s36, s36, s{sT0}")
    l(f"s_lshr_b32 s37, s36, 1")
    l(f"s_add_u32 s36, s36, {KVL}")
    if QF:
        l(f"s_add_u32 s37, s37, {QF}")
    l(f"s_lshr_b32 s38, s{sQs}, 1")
    l("s_lshl_b32 s38, s38, 16")
    l(f"s_and_b32 s{sT0}, s{sQs}, 1")
    l(f"s_lshl_b32 s{sT0}, s{sT0}, 12")
    l(f"s_add_u32 s38, s38, s{sT0}")
    l(f"s_lshl_b32 s39, s{sQs}, 11")
    l(f"s_add_u32 s39, s39, {XCH}")
    l(f"v_lshlrev_b32 v{T + 4}, 2, v{vLane}")
    l("s_mov_b32 s59, 0x40000")
    l("s_mov_b64 exec, 0xff")
    l.label("L_poll_l1")
    l(f"buffer_load_dword v{T + 5}, v{T + 4}, {sr(sWS, 4)}, s40 offen sc1")
    l("s_sub_u32 s59, s59, 1")
    l.wait_all(lg=False)
    l(f"v_cmp_ne_u32 vcc, s{sTag}, v{T + 5}")
    l("s_cmp_eq_u32 s59, 0")
    l("s_cbranch_scc1 L_poll_l1_x")
    l("s_cbranch_vccnz L_poll_l1")
    l.label("L_poll_l1_x")
    if OPT.get("det") != 2:
        stamp(l)
    l("s_mov_b64 exec, -1")
    l("s_mov_b32 m0, s39")
    l("s_nop 0")
    for i in range(2):
        l.vm(f"buffer_load_dwordx4 v{vL16}, {sr(sWS, 4)}, s37 offen offset:{i * 1024} sc1 lds")
    l("s_mov_b32 m0, s38")
    l("s_nop 0")
    for i in range(4):
        l.vm(f"buffer_load_dwordx4 v{vL16}, {sr(sWS, 4)}, s36 offen offset:{i * 1024} sc1 lds")
    l.wait_all()
    if OPT.get("det") != 2:
        stamp(l)
    l("s_branch L_p2_b0")
    init(a)
    a(f"v_mov_b32 v{T + 4}, 0")
    a(f"v_mov_b32 v{T + 5}, s{sTag}")

    def gflag():
        a.wait_all(lg=False)
        a("s_mov_b64 exec, 1")
        a.vm(f"buffer_store_dword v{T + 5}, v{T + 4}, {sr(sWS, 4)}, s49 offen sc1")
        a("s_mov_b64 exec, -1")

    if not OPT["p2_defer"]:
        gflag()
    if OPT.get("det") == 4:
        stamp(a)
    a.label("L_p2_b0")

    def emit_pair(p):
        for t in (2 * p, 2 * p + 1):
            a.lg(f"ds_read_b128 {vr(Kf + 4 * (t & 3), 4)}, v{vKrd} offset:{t * 2048}")
        a(f"s_mov_b64 exec, {sr(sVm, 2)}")
        for t in (2 * p, 2 * p + 1):
            a.lg(f"ds_read_b128 {vr(Vf + 8 * (t & 3), 4)}, v{vVrd} offset:{t * 2048 + 1024}")
            tok = a.lg(f"ds_read_b128 {vr(Vf + 8 * (t & 3) + 4, 4)}, v{vVrd} offset:{t * 2048 + 1536}")
        a("s_mov_b64 exec, -1")
        return tok

    def qk(u):
        t, c = divmod(u, 2)
        return f"v_mfma_f32_32x32x16_bf16 {vr(S[u & 1], 16)}, {vr(Kf + 4 * (t & 3), 4)}, {vr(Qf[c], 4)}, 0"

    def pv(u, i):
        t, c = divmod(u, 2)
        return (f"v_smfmac_f32_32x32x32_bf16 {vr(O[c], 16)}, {vr(Vf + 8 * (t & 3) + 4 * i, 4)}, "
                f"{vr(S[u & 1] + 8 * i, 8)}, v{vIdx}")

    NU = 64
    PRIO = {0: 2, 29: 1, 53: 0}
    rtok = {}

    def need(u, n):
        a.wait(lg=rtok[u])
        a.label(f"L_rdy{u}")
        a(f"v_readfirstlane_b32 s36, v{T + 8}")
        a("s_nop 0")
        a(f"s_cmp_ge_u32 s36, {n}")
        a(f"s_cbranch_scc0 L_rdy{u}_spin")
        sp.label(f"L_rdy{u}_spin")
        sp("s_sleep 2")
        sp(f"ds_read_b32 v{T + 8}, v{T + 6}")
        sp("s_sub_u32 s59, s59, 1")
        sp("s_waitcnt lgkmcnt(0)")
        sp("s_cmp_lg_u32 s59, 0")
        sp(f"s_cbranch_scc1 L_rdy{u}")
        sp("s_mov_b32 s59, 1")
        sp(f"v_mov_b32 v{T + 8}, 7")
        sp("s_nop 0")
        sp(f"s_branch L_rdy{u}")

    sp = Asm()
    a("s_mov_b32 s59, 0x100000")
    a("s_barrier")
    stamp(a)
    a.lg(f"ds_read_b128 {vr(Qf[0], 4)}, v{T + 2}")
    a.lg(f"ds_read_b128 {vr(Qf[1], 4)}, v{T + 3}")
    ptok = {0: emit_pair(0)}
    a.wait(lg=ptok[0] - 5)
    a(qk(0))
    if OPT["p2_defer"]:
        a(f"s_cmp_lg_u32 s{sKh}, 0")
        a("s_cbranch_scc1 L_p2_nogf")
        gflag()
        a.label("L_p2_nogf")
    a.wait(lg=ptok[0])
    a("s_nop 9")
    for u in range(NU):
        X = S[u & 1]
        p, pu = divmod(u, 4)
        if u in PRIO:
            a(f"s_setprio {PRIO[u]}")
        ex = [f"v_exp_f32 v{X + i}, v{X + i}" for i in range(16)]
        a(ex[0]); a(ex[1])
        if u > 0:
            a(pv(u - 1, 1))
        a(ex[2]); a(ex[3]); a(ex[4])
        if u + 1 < NU:
            if pu == 3:
                a.wait(lg=ptok[p + 1])
            a(qk(u + 1))
        late = p + 1 == 2
        if p + 1 < 16 and pu == (2 if late else 0):
            if (p + 1) % 2 == 0:
                need(u, (p + 1) // 2)
            ptok[p + 1] = emit_pair(p + 1)
            if u in (28, 52):
                a.lg(f"ds_add_u32 v{T + 6}, v{T + 7} offset:{4 if u == 28 else 8}")
        nu = u + 1
        if nu < NU and (nu // 4 + 1) % 2 == 0 and nu // 4 + 1 < 16 and nu % 4 == (2 if nu // 4 + 1 == 2 else 0):
            rtok[nu] = a.lg(f"ds_read_b32 v{T + 8}, v{T + 6}")
        for i in range(5, 10):
            a(ex[i])
        a(pv(u, 0))
        for i in range(10, 16):
            a(ex[i])
    a.label("L_p2_tail")
    a("s_nop 1")
    a(pv(NU - 1, 1))
    a(f"s_mov_b32 s{sT0}, {hx(f2u(2.0 ** 80))}")
    a(f"s_mov_b32 s{sT1}, {hx(f2u(2.0 ** -80))}")
    a("s_mov_b32 s56, 0")
    a("s_nop 8")
    a.lg(f"ds_write_b128 v{vXw}, {vr(O[1], 4)}")
    a.lg(f"ds_write_b128 v{vXw}, {vr(O[1] + 4, 4)} offset:1024")
    a.lg(f"ds_write_b32 v{vXw}, v{O[1] + 8} offset:2048")
    a.wait_all(vm=False)
    a("s_barrier")
    t2 = a.lg(f"ds_read_b32 v{T + 8}, v{vXr} offset:2048")
    a.lg(f"ds_read_b128 {vr(T, 4)}, v{vXr}")
    t1 = a.lg(f"ds_read_b128 {vr(T + 4, 4)}, v{vXr} offset:1024")
    a.wait(lg=t2)
    a(f"v_add_f32 v{O[0] + 8}, v{O[0] + 8}, v{T + 8}")
    a.wait(lg=t1)
    for r in range(0, 8, 2):
        a(f"v_pk_add_f32 {vr(O[0] + r, 2)}, {vr(O[0] + r, 2)}, {vr(T + r, 2)}")
    a.label("L_p2_finish")
    a(f"v_rcp_f32 v{T + 8}, v{O[0] + 8}")
    a(f"v_cmp_gt_f32 s[40:41], s{sT0}, v{O[0] + 8}")
    a(f"v_cmp_lt_f32 s[42:43], s{sT1}, v{O[0] + 8}")
    for r in range(0, 8, 2):
        a(f"v_pk_mul_f32 {vr(O[0] + r, 2)}, {vr(O[0] + r, 2)}, {vr(T + 8, 2)} op_sel_hi:[1,0]")
    for i in range(4):
        a(f"v_cvt_pk_bf16_f32 v{T + 4 + i}, v{O[0] + 2 * i}, v{O[0] + 2 * i + 1}")
    a(f"v_dot2_f32_bf16 v{T}, v{T + 4}, v{T + 4}, 0")
    for i in range(1, 4):
        a(f"v_dot2_f32_bf16 v{T}, v{T + 4 + i}, v{T + 4 + i}, v{T}")
    a("s_and_b64 s[40:41], s[40:41], s[42:43]")
    a("s_cmp_lg_u32 s56, 0")
    a("s_cbranch_scc1 L_p2_store")
    a(f"v_cmp_gt_f32 vcc, s{sT0}, v{T}")
    a("s_nop 0")
    a("s_and_b64 s[40:41], s[40:41], vcc")
    a("s_cmp_eq_u64 s[40:41], -1")
    a("s_cbranch_scc0 L_p2_fallback")
    a.label("L_p2_store")
    stores(a, [f"buffer_store_dwordx4 {vr(T + 4, 4)}, v{vL16}, {sr(sWS, 4)}, s57 offen"])
    a("s_barrier")
    stamp(a)

    f = Asm()
    f.label("L_p2_fallback")
    vV2, vM = T + 11, T + 12
    f(f"s_lshl_b32 s37, s{sKh}, 16")
    f(f"v_subrev_u32 v{vV2}, s37, v{vVrd}")
    f(f"s_lshl_b32 s36, s{sHead}, 17")
    f(f"s_add_u32 s36, s36, {KVF}")
    f(f"v_mov_b32 v{vM}, 0xff800000")
    f("s_mov_b32 s56, 0")
    f("s_mov_b32 s37, s36")
    f.label("L_p2_fb_max")
    f(f"buffer_load_dwordx4 {vr(Kf, 4)}, v{vL16}, {sr(sWS, 4)}, s37 offen sc1")
    f("s_waitcnt vmcnt(0)")
    f(f"v_mfma_f32_32x32x16_bf16 {vr(S[0], 16)}, {vr(Kf, 4)}, {vr(Qf[0], 4)}, 0")
    f("s_nop 15")
    for i in range(8):
        f(f"v_max3_f32 v{vM}, v{vM}, v{S[0] + 2 * i}, v{S[0] + 2 * i + 1}")
    f("s_add_u32 s37, s37, 2048")
    f("s_add_u32 s56, s56, 1")
    f("s_cmp_lt_u32 s56, 64")
    f("s_cbranch_scc1 L_p2_fb_max")
    f(f"v_mov_b32 v{T}, v{vM}")
    f("s_nop 1")
    f(f"v_permlane32_swap_b32 v{vM}, v{T}")
    f("s_nop 1")
    f(f"v_max_f32 v{vM}, v{vM}, v{T}")
    for r in range(16):
        f(f"v_sub_f32 v{NEG + r}, 0, v{vM}")
        f(f"v_mov_b32 v{O[0] + r}, 0")
    f("s_mov_b32 s56, 0")
    f("s_mov_b32 s37, s36")
    f.label("L_p2_fb_pv")
    f(f"buffer_load_dwordx4 {vr(Kf, 4)}, v{vL16}, {sr(sWS, 4)}, s37 offen sc1")
    f(f"s_mov_b64 exec, {sr(sVm, 2)}")
    f(f"buffer_load_dwordx4 {vr(Vf, 4)}, v{vV2}, {sr(sWS, 4)}, s37 offen offset:1024 sc1")
    f(f"buffer_load_dwordx4 {vr(Vf + 4, 4)}, v{vV2}, {sr(sWS, 4)}, s37 offen offset:1536 sc1")
    f("s_mov_b64 exec, -1")
    f("s_waitcnt vmcnt(0)")
    f(f"v_mfma_f32_32x32x16_bf16 {vr(S[0], 16)}, {vr(Kf, 4)}, {vr(Qf[0], 4)}, {vr(NEG, 16)}")
    f("s_nop 15")
    for i in range(16):
        f(f"v_exp_f32 v{S[0] + i}, v{S[0] + i}")
    f("s_nop 1")
    f(f"v_smfmac_f32_32x32x32_bf16 {vr(O[0], 16)}, {vr(Vf, 4)}, {vr(S[0], 8)}, v{vIdx}")
    f(f"v_smfmac_f32_32x32x32_bf16 {vr(O[0], 16)}, {vr(Vf + 4, 4)}, {vr(S[0] + 8, 8)}, v{vIdx}")
    f("s_nop 15")
    f("s_add_u32 s37, s37, 2048")
    f("s_add_u32 s56, s56, 1")
    f("s_cmp_lt_u32 s56, 64")
    f("s_cbranch_scc1 L_p2_fb_pv")
    f("s_branch L_p2_finish")
    f.lines += sp.lines
    return f


def phase_res(a, h, k3, pre_publish=None):
    uid = "p3" if k3 else "p5"
    KS = 32 if k3 else 86
    ACT = OF if k3 else GF
    NST = (KS + 3) // 4
    NA = OPT["p5_na"]
    WSL = WS3 if k3 else WS5[:19 - NA]
    NW = len(WSL)
    if k3:
        ASL = [(122880, -9), (131072, -9), (139264, -9), (147456, -9), (57344, -9), (122880, 0), (WS3[0], 0), (131072, 1)]
    else:
        ASL = [(163840 - NA * 8192 + (n % NA) * 8192, n - NA if n >= NA else -9) for n in range(NST)]
    RESO = RES3 if k3 else 24576
    busy = {WSL[(NST - 1) % NW], WSL[(NST - 2) % NW]}
    TRO = [o for o in WSL if o + 8192 in WSL and not ({o, o + 8192} & busy)][0]
    sW, sIO = 16, 20
    sWr, sWc, sRb, sCb = 25, 26, 27, 28
    T = 12
    for b in (a, h):
        b(f"s_and_b32 s{sT0}, s2, 7")
        b(f"s_lshl_b32 s{sRb}, s{sT0}, 2")
        b(f"s_lshr_b32 s34, s2, 6")
        b(f"s_add_u32 s{sRb}, s{sRb}, s34")
        b(f"s_bfe_u32 s{sCb}, s2, 0x30003")
        b(f"s_and_b32 s{sWr}, s{sWave}, 1")
        b(f"s_bfe_u32 s{sWc}, s{sWave}, 0x10001")
    vWoff, vXg = 3, 5
    h(f"v_lshrrev_b32 v{T}, 3, v{vLane}")
    h(f"v_and_b32 v{T + 1}, 7, v{vLane}")
    h(f"v_lshrrev_b32 v{T + 2}, 2, v{vLane}")
    h(f"v_and_b32 v{T + 2}, 4, v{T + 2}")
    h(f"v_xor_b32 v{T + 2}, v{T + 2}, v{T + 1}")
    h(f"v_lshlrev_b32 v{T + 2}, 4, v{T + 2}")
    h(f"v_lshl_add_u32 v{T + 2}, v{T}, 10, v{T + 2}")
    h(f"s_mul_i32 s44, s{sHw}, {3 * 16384}")
    h(f"s_lshl_b32 s{sT0}, s{sCb}, 7")
    h(f"v_add_u32 v{vWoff}, s{sT0}, v{T + 2}")
    h(f"v_add_u32 v{vWoff + 1}, {8192 - 1024}, v{vWoff}")
    h(f"s_lshl_b32 s32, s{sHw}, 11")
    h(f"s_lshl_b32 s33, s{sRb}, 1")
    h(f"s_add_u32 s33, s33, s{sWr}")
    h(f"s_mul_i32 s34, s33, {KS * 1024}")
    h(f"s_lshl_b32 s{sT1}, s{sWc}, 11")
    h(f"s_add_u32 s34, s34, s{sT1}")
    h(f"s_add_u32 s34, s34, {ACT}")
    h(f"s_lshl_b32 s35, s{sWr}, 12")
    h(f"s_add_u32 s35, s35, s{sT1}")
    if k3:
        pass
    else:
        h(f"s_lshl_b32 s36, s33, 15")
        h(f"s_lshl_b32 s{sT0}, s{sCb}, 12")
        h(f"s_add_u32 s36, s36, s{sT0}")
        h(f"s_add_u32 s36, s36, s{sT1}")
        h(f"s_add_u32 s36, s36, {HF}")
    srd(h, sW, KWO if k3 else KD, KS * 16 * 1024)
    if pre_publish is not None:
        publish(h, pre_publish, T + 4)
    dr = Drip(h)

    def issue_w(st):
        cl = [(4 * st + w >= 29) + (4 * st + w >= 58) for w in range(4)]
        pre = [f"s_add_u32 s42, s44, {hx((12 * st - 86 * cl[0]) * 16384)}"]
        if cl[3] != cl[0]:
            pre += [f"s_add_u32 s45, s44, {hx((12 * st - 86 * cl[3]) * 16384)}", f"s_cmp_ge_u32 s{sHw}, {cl.index(cl[3])}",
                    "s_cselect_b32 s42, s45, s42"]
        dr.add(st, [f"s_add_u32 m0, s32, {WSL[st % NW]}"] + pre,
               f"buffer_load_dwordx4 v{vWoff}, {sr(sW, 4)}, s42 offen lds")
        dr.add(st, [], f"buffer_load_dwordx4 v{vWoff + 1}, {sr(sW, 4)}, s42 offen offset:1024 lds")

    def issue_a(st):
        dr.add(st, [f"s_add_u32 m0, s35, {ASL[st][0]}", f"s_add_u32 s43, s34, {st * 4096}"],
               f"buffer_load_dwordx4 v{vL16}, {sr(sWS, 4)}, s43 offen {LD()} lds")
        dr.add(st, [], f"buffer_load_dwordx4 v{vL16}, {sr(sWS, 4)}, s43 offen offset:1024 {LD()} lds")

    if not k3:
        for st in range(NW):
            issue_w(st)
    dr.emit(100)
    if not OPT.get("det"):
        stamp(h)
    if k3:
        h("s_barrier")
    else:
        h(f"s_lshl_b32 s40, s{sRb}, 9")
        h(f"s_add_u32 s40, s40, {F4}")
        poll(h, 40, T + 4, "p5l", 30, every=True, barrier=False)
    if not OPT.get("det"):
        stamp(h)
    AHEAD = OPT["p3_a"] if k3 else OPT["p5_a"]
    nxt_a = 0
    for st in range(NST):
        while nxt_a <= min(st + AHEAD, NST - 1):
            if not k3 and ((nxt_a >= 7 and st <= 2) or (nxt_a >= 14 and st <= OPT["p5_c2"])):
                break
            if ASL[nxt_a][1] > st - 3:
                break
            issue_a(nxt_a)
            nxt_a += 1
        if not k3 and st == 1:
            dr.add(4, [f"s_add_u32 m0, s35, {RESO}", "s_nop 0"], f"buffer_load_dwordx4 v{vL16}, {sr(sWS, 4)}, s36 offen {LD()} lds")
            dr.add(4, [], f"buffer_load_dwordx4 v{vL16}, {sr(sWS, 4)}, s36 offen offset:1024 {LD()} lds")
        dr.emit(100)
        h.wait(vm=dr.tok[st])
        h("s_barrier")
        if st >= 2 and st - 2 + NW < NST:
            issue_w(st - 2 + NW)
    if k3:
        h("s_barrier")
    RST = 0 if k3 else 4
    vWrd, vAr, vRr, vTw, vTr, vOut = [3, 4], [5, 6, 22], [7, 8], 9, 10, 11
    ID = 24
    FR = [32, 72]
    acc = 112
    a(f"v_and_b32 v{T}, 31, v{vLane}")
    a(f"v_lshrrev_b32 v{T + 1}, 5, v{vLane}")
    a(f"v_bfe_u32 v{T + 2}, v{vLane}, 2, 2")
    a(f"v_lshl_add_u32 v{T + 3}, v{T + 1}, 2, v{T + 2}")
    a(f"v_lshlrev_b32 v{T + 3}, 7, v{T + 3}")
    a(f"v_bfe_u32 v{T + 4}, v{vLane}, 4, 1")
    a(f"v_lshl_add_u32 v{T + 3}, v{T + 4}, 5, v{T + 3}")
    a(f"v_and_b32 v{T + 4}, 3, v{vLane}")
    a(f"v_lshl_add_u32 v{T + 3}, v{T + 4}, 3, v{T + 3}")
    a(f"v_lshrrev_b32 v{T + 2}, 1, v{T + 2}")
    a(f"v_xor_b32 v{T + 2}, s{sWc}, v{T + 2}")
    a(f"v_lshl_add_u32 v{vWrd[0]}, v{T + 2}, 6, v{T + 3}")
    wl = LdsAddr(a, vWrd)
    wl.setup(a)
    a(f"s_lshl_b32 s{sT0}, s{sWr}, 12")
    a(f"v_add_u32 v{vAr[0]}, s{sT0}, v{vL16}")
    al = LdsAddr(a, vAr)
    al.setup(a)
    if k3:
        a(f"v_bfe_u32 v{T + 2}, v{vLane}, 1, 3")
        a(f"v_xor_b32 v{T + 2}, v{T + 2}, v{T + 1}")
        a(f"s_lshl_b32 s{sT1}, s{sWc}, 2")
        a(f"v_xor_b32 v{T + 2}, s{sT1}, v{T + 2}")
        a(f"v_lshlrev_b32 v{T + 2}, 4, v{T + 2}")
        a(f"v_lshl_add_u32 v{T + 2}, v{T}, 7, v{T + 2}")
        a(f"s_add_u32 s{sT0}, s{sT0}, {RESO}")
        a(f"v_add_u32 v{vRr[0]}, s{sT0}, v{T + 2}")
        a(f"v_xor_b32 v{vRr[1]}, 32, v{vRr[0]}")
    else:
        a(f"s_lshl_b32 s{sT1}, s{sWc}, 11")
        a(f"s_add_u32 s{sT0}, s{sT0}, s{sT1}")
        a(f"s_add_u32 s{sT0}, s{sT0}, {RESO}")
        a(f"v_add_u32 v{vRr[0]}, s{sT0}, v{vL16}")
        a(f"v_add_u32 v{vRr[1]}, 1024, v{vRr[0]}")
    if pre_publish is not None:
        publish(a, pre_publish, T + 6)
    a(f"v_mov_b32 v{T + 5}, 0x3f80")
    for e in range(2):
        if k3:
            a(f"v_lshlrev_b32 v{T + 2}, 3, v{T + 1}")
            a(f"v_sub_u32 v{T + 2}, v{T}, v{T + 2}")
            a(f"v_subrev_u32 v{T + 2}, {16 * e}, v{T + 2}")
        else:
            a(f"v_bfe_u32 v{T + 2}, v{vLane}, 3, 1")
            a(f"v_and_b32 v{T + 3}, 3, v{vLane}")
            a(f"v_lshl_add_u32 v{T + 2}, v{T + 2}, 2, v{T + 3}")
            a(f"v_bfe_u32 v{T + 3}, v{vLane}, 2, 1")
            a(f"v_xor_b32 v{T + 3}, v{T + 3}, v{T + 1}")
            a(f"v_bfe_u32 v{T + 4}, v{vLane}, 4, 1")
            a(f"v_xor_b32 v{T + 4}, {e}, v{T + 4}")
            a(f"v_or_b32 v{T + 3}, v{T + 3}, v{T + 4}")
            a(f"v_lshl_add_u32 v{T + 2}, v{T + 3}, 4, v{T + 2}")
        a(f"v_and_b32 v{T + 3}, 1, v{T + 2}")
        a(f"v_lshlrev_b32 v{T + 3}, 4, v{T + 3}")
        a(f"v_lshlrev_b32 v{T + 3}, v{T + 3}, v{T + 5}")
        a(f"v_lshrrev_b32 v{T + 2}, 1, v{T + 2}")
        for r in range(4):
            a(f"v_cmp_eq_u32 vcc, {r}, v{T + 2}")
            a("s_nop 1")
            a(f"v_cndmask_b32 v{ID + 4 * e + r}, 0, v{T + 3}, vcc")
    a(f"s_lshl_b32 s33, s{sRb}, 1")
    a(f"s_add_u32 s33, s33, s{sWr}")
    a(f"s_lshl_b32 s34, s{sCb}, 1")
    a(f"s_add_u32 s34, s34, s{sWc}")
    if k3:
        a(f"s_lshl_b32 s36, s33, 15")
        a(f"s_lshl_b32 s37, s34, 11")
        a(f"s_add_u32 s36, s36, s37")
        a(f"s_add_u32 s36, s36, {HF}")
        a(f"s_lshl_b32 s37, s34, 14")
        a(f"s_lshl_b32 s{sT1}, s33, 8")
        a(f"s_add_u32 s37, s37, s{sT1}")
        a(f"s_add_u32 s37, s37, {ST}")
        a("s_mov_b32 s41, 0x3f803f80")
        a(f"v_lshlrev_b32 v{vOut}, 3, v{vLane}")
        a(f"s_lshl_b32 s55, s{sRb}, 7")
        a(f"s_lshl_b32 s{sT1}, s{sCb}, 4")
        a(f"s_add_u32 s55, s55, s{sT1}")
        a(f"s_lshl_b32 s{sT1}, s{sWave}, 2")
        a(f"s_add_u32 s55, s55, s{sT1}")
        a(f"s_add_u32 s55, s55, {F3}")
    else:
        a(f"s_mul_i32 s{sT0}, s{sHw}, 2560")
        a(f"s_add_u32 s{sT0}, s{sT0}, {TRO}")
        a(f"v_mul_u32_u24 v{T + 2}, 80, v{T}")
        a(f"v_lshl_add_u32 v{T + 2}, v{T + 1}, 3, v{T + 2}")
        a(f"v_add_u32 v{vTw}, s{sT0}, v{T + 2}")
        a(f"v_lshrrev_b32 v{T + 2}, 2, v{vLane}")
        a(f"v_and_b32 v{T + 3}, 3, v{vLane}")
        a(f"v_lshlrev_b32 v{T + 3}, 4, v{T + 3}")
        a(f"v_mad_u32_u24 v{T + 4}, v{T + 2}, 64, v{T + 3}")
        a(f"v_lshl_add_u32 v{T + 4}, v{T + 2}, 4, v{T + 4}")
        a(f"v_add_u32 v{vTr}, s{sT0}, v{T + 4}")
        a(f"v_lshl_add_u32 v{vOut}, v{T + 2}, 10, v{T + 3}")
        a(f"s_lshl_b32 s36, s33, 15")
        a(f"s_lshl_b32 s37, s34, 6")
        a(f"s_add_u32 s36, s36, s37")
        a(f"s_add_u32 s37, s36, 16384")
        srd(a, sIO, KO, 2048 * 1024)
    a(f"s_lshl_b32 s40, s{sRb}, {8 if k3 else 9}")
    a(f"s_add_u32 s40, s40, {F2 if k3 else F4}")
    if k3:
        poll(a, 40, T + 6, uid, 64)
    first = True
    prev = []
    for st in range(NST):
        if not k3 and st in (0, OPT["p5_c2"] - 3):
            poll_issue(a, 40, T + 6, f"p5i{st}", 128 if st == 0 else 256)
        if not k3 and st in (2, OPT["p5_c2"]):
            poll(a, 40, T + 6, f"p5c{8 if st > 2 else 1}", 30, barrier=False, off=128 if st == 2 else 256, issued=True)
        a("s_barrier")
        if st == 0:
            stamp(a)
        F = FR[st & 1]
        n = min(4, KS - 4 * st)
        rd = []
        for k in range(n):
            reg, off = al.at(ASL[st][0] + k * 1024)
            rd.append(f"ds_read_b128 {vr(F + 8 * k, 4)}, {reg} offset:{off}")
            for half in range(2):
                reg, off = wl.at(WSL[st % NW] + k * 2048 + half * 1024)
                rd.append(f"ds_read_b64_tr_b16 {vr(F + 8 * k + 4 + 2 * half, 2)}, {reg} offset:{off}")
        cur = [[None, F + 8 * k + 4, F + 8 * k, 3 * k + 2] for k in range(n)]
        if st == RST:
            for e in range(2):
                rd.append(f"ds_read_b128 {vr(F + 32 + 4 * e, 4)}, v{vRr[e]}")
                cur.append([None, ID + 4 * e, F + 32 + 4 * e, len(rd) - 1])
        toks = []
        k = 0
        for tok, wa, xa, _ in prev:
            a.wait(lg=tok)
            a(f"v_mfma_f32_32x32x16_bf16 {vr(acc, 16)}, {vr(wa, 4)}, {vr(xa, 4)}, {'0' if first else vr(acc, 16)}")
            first = False
            for _ in range(3):
                if k < len(rd):
                    toks.append(a.lg(rd[k]))
                    k += 1
        while k < len(rd):
            toks.append(a.lg(rd[k]))
            k += 1
        for c in cur:
            c[0] = toks[c[3]]
        prev = cur
    for tok, wa, xa, _ in prev:
        a.wait(lg=tok)
        a(f"v_mfma_f32_32x32x16_bf16 {vr(acc, 16)}, {vr(wa, 4)}, {vr(xa, 4)}, {vr(acc, 16)}")
    stamp(a)
    a("s_nop 11")
    P = 32
    for i in range(8):
        a(f"v_cvt_pk_bf16_f32 v{P + i}, v{acc + 2 * i}, v{acc + 2 * i + 1}")
    if k3:
        stores(a, [f"buffer_store_dwordx4 {vr(P, 4)}, v{vL16}, {sr(sWS, 4)}, s36 offen",
                   f"buffer_store_dwordx4 {vr(P + 4, 4)}, v{vL16}, {sr(sWS, 4)}, s36 offen offset:1024"])
        a(f"v_dot2_f32_bf16 v{T}, v{P}, s41, 0")
        a(f"v_dot2_f32_bf16 v{T + 1}, v{P}, v{P}, 0")
        for i in range(1, 8):
            a(f"v_dot2_f32_bf16 v{T}, v{P + i}, s41, v{T}")
            a(f"v_dot2_f32_bf16 v{T + 1}, v{P + i}, v{P + i}, v{T + 1}")
        a("s_nop 2")
        a(f"v_mov_b32 v{T + 2}, v{T}")
        a(f"v_mov_b32 v{T + 3}, v{T + 1}")
        a("s_nop 0")
        a(f"v_permlane32_swap_b32 v{T}, v{T + 2}")
        a(f"v_permlane32_swap_b32 v{T + 1}, v{T + 3}")
        a("s_nop 0")
        a(f"v_add_f32 v{T}, v{T}, v{T + 2}")
        a(f"v_add_f32 v{T + 1}, v{T + 1}, v{T + 3}")
        a("s_mov_b32 exec_hi, 0")
        stores(a, [f"buffer_store_dwordx2 {vr(T, 2)}, v{vOut}, {sr(sWS, 4)}, s37 offen"])
        a("s_mov_b64 exec, -1")
        a("s_barrier")
        publish(a, 55, T + 4)
    else:
        for g in range(4):
            a.lg(f"ds_write_b64 v{vTw}, {vr(P + 2 * g, 2)} offset:{g * 16}")
        a.wait_all(vm=False)
        t0 = a.lg(f"ds_read_b128 {vr(P + 8, 4)}, v{vTr}")
        t1 = a.lg(f"ds_read_b128 {vr(P + 12, 4)}, v{vTr} offset:{16 * 80}")
        a.wait(lg=t0)
        a.vm(f"buffer_store_dwordx4 {vr(P + 8, 4)}, v{vOut}, {sr(sIO, 4)}, s36 offen")
        a.wait(lg=t1)
        a.vm(f"buffer_store_dwordx4 {vr(P + 12, 4)}, v{vOut}, {sr(sIO, 4)}, s37 offen")
    stamp(a)


def phase4(a, h):
    sG = 16
    sRb, sCg = 25, 26
    sWL, sAct = 32, 33
    NW, NX, NST = 9, 5, 16
    XO = 122880
    CSO = 24576
    XEO = CSO + 1536
    for b in (a, h):
        b(f"s_and_b32 s{sT0}, s2, 7")
        b(f"s_lshl_b32 s{sT0}, s{sT0}, 1")
        b(f"s_bfe_u32 s{sT1}, s2, 0x10003")
        b(f"s_add_u32 s{sRb}, s{sT0}, s{sT1}")
        b(f"s_lshr_b32 s{sCg}, s2, 4")
    a("s_cmp_ge_u32 s2, 240")
    a("s_cbranch_scc1 L_p4_skip_c")
    h("s_cmp_ge_u32 s2, 240")
    h("s_cbranch_scc1 L_p4_skip_l")
    vWoff = [3, 4, 5]
    vT = 16
    h(f"s_lshl_b32 s{sAct}, s{sRb}, 2")
    h(f"s_add_u32 s{sAct}, s{sAct}, s{sHw}")
    h(f"s_lshl_b32 s38, s{sAct}, 8")
    h(f"s_add_u32 s38, s38, {ST}")
    h(f"s_lshl_b32 s{sAct}, s{sAct}, 15")
    h(f"s_add_u32 s{sAct}, s{sAct}, {HF}")
    h(f"s_lshr_b32 s34, s{sHw}, 1")
    h(f"s_and_b32 s35, s{sHw}, 1")
    h(f"s_mul_i32 s{sT0}, s34, {16 * 2752}")
    h(f"s_mul_i32 s{sT1}, s{sCg}, 192")
    h(f"s_add_u32 s{sT0}, s{sT0}, s{sT1}")
    h(f"v_and_b32 v{vT + 3}, 2, v{vLane}")
    h(f"v_lshlrev_b32 v{vT + 3}, 5, v{vT + 3}")
    h(f"v_sub_u32 v{vT + 3}, 32, v{vT + 3}")
    h(f"v_mul_lo_u32 v{vT + 3}, v{vT + 3}, s35")
    h(f"v_add_u32 v{vT + 3}, s{sT0}, v{vT + 3}")
    for i in range(3):
        h(f"v_add_u32 v{vT}, {64 * i}, v{vLane}")
        h(f"v_mul_u32_u24 v{vT + 1}, 171, v{vT}")
        h(f"v_lshrrev_b32 v{vT + 1}, 11, v{vT + 1}")
        h(f"v_mul_u32_u24 v{vT + 2}, {2752 - 192}, v{vT + 1}")
        h(f"v_add3_u32 v{vWoff[i]}, v{vL16}, v{vT + 2}, v{vT + 3}")
    h(f"s_mul_i32 s{sWL}, s{sHw}, 3072")
    h(f"s_lshl_b32 s36, s{sHw}, 11")
    h(f"s_add_u32 s36, s36, {XO}")
    h("s_cmp_eq_u32 s35, 0")
    h(f"s_cselect_b32 s{sG}, s{KG}, s{KU}")
    h(f"s_cselect_b32 s{sG + 1}, s{KG + 1}, s{KU + 1}")
    h(f"s_mov_b32 s{sG + 2}, {hx(512 * 2752)}")
    h(f"s_mov_b32 s{sG + 3}, 0x00020000")
    dr = Drip(h)

    def issue_w(key):
        st = key[1] if isinstance(key, tuple) else key
        for i in range(3):
            pre = [f"s_add_u32 m0, s{sWL}, {WS4[st % NW]}", f"s_mov_b32 s42, {st * 32 * 2752}"] if i == 0 else []
            dr.add(key, pre, f"buffer_load_dwordx4 v{vWoff[i]}, {sr(sG, 4)}, s42 offen offset:{i * 1024} lds")

    def issue_x(st):
        for i in range(2):
            pre = [f"s_add_u32 m0, s36, {(st % NX) * 8192}", f"s_add_u32 s43, s{sAct}, {st * 2048}"] if i == 0 else []
            dr.add(st, pre, f"buffer_load_dwordx4 v{vL16}, {sr(sWS, 4)}, s43 offen offset:{i * 1024} {LD()} lds")

    PRE = OPT["p4_pre"]
    for st in range(4, PRE):
        issue_w(st)
    dr.emit(100)
    nxt_wi = 3 * PRE
    vPf, vPd = 13, 100
    srd(h, 44, KD, 1376 * 1024)
    h(f"s_lshr_b32 s{sT0}, s2, 3")
    h(f"s_lshl_b32 s{sT0}, s{sT0}, 2")
    h(f"s_add_u32 s{sT0}, s{sT0}, s{sHw}")
    h(f"s_lshl_b32 s{sT0}, s{sT0}, 13")
    h(f"v_lshlrev_b32 v{vPf}, 7, v{vLane}")
    h(f"v_add_u32 v{vPf}, s{sT0}, v{vPf}")
    h(f"v_add_u32 v15, {120 * 8192}, v{vPf}")
    h(f"v_lshrrev_b32 v{vT + 3}, 5, v{vLane}")
    h(f"v_and_b32 v{vT + 4}, 31, v{vLane}")
    h(f"v_lshlrev_b32 v{vT + 4}, 3, v{vT + 4}")
    h(f"v_lshl_add_u32 v{vT + 4}, v{vT + 3}, 17, v{vT + 4}")
    h(f"s_mul_i32 s{sT0}, s{sHw}, 1536")
    h(f"s_add_u32 s{sT0}, s{sT0}, {XEO}")
    h(f"v_add_u32 v{vT + 5}, s{sT0}, v{vL16}")
    h(f"v_lshl_add_u32 v{vT + 6}, v{vLane}, 3, s{sT0}")
    stamp(h)
    h("s_barrier")
    stamp(h)
    SP = 32
    vS, vQ, vM, vA = 60, 61, 62, 64
    AHEAD = OPT["p4_a"]
    assert AHEAD < NX
    nxt_x = 0
    for st in range(NST):
        while nxt_x <= min(st + AHEAD, NST - 1):
            if nxt_x >= NX and nxt_x - NX > st - 2:
                break
            issue_x(nxt_x)
            nxt_x += 1
        dr.emit(100)
        for _ in range(OPT["p4_wi"]):
            ws, wi = divmod(nxt_wi, 3)
            if ws < NST and (ws < NW or ws - NW <= st - 2):
                h(f"s_add_u32 m0, s{sWL}, {WS4[ws % NW]}")
                h(f"s_mov_b32 s42, {ws * 32 * 2752}")
                dr.tok[("w", ws)] = h.vm(f"buffer_load_dwordx4 v{vWoff[wi]}, {sr(sG, 4)}, s42 offen offset:{wi * 1024} lds")
                nxt_wi += 1
        assert nxt_wi >= 3 * (st + 1)
        if 1 <= st <= 8:
            i = st - 1
            h(f"s_add_u32 s{sT0}, s38, {i * 16384}")
            dr.tok["st"] = h.vm(f"buffer_load_dwordx2 {vr(SP + 2 * i, 2)}, v{vT + 4}, {sr(sWS, 4)}, s{sT0} offen {LD()}")
        h.wait(vm=max(dr.tok[st], dr.tok.get(("w", st), -1)))
        assert st < PRE or ("w", st) in dr.tok
        if st == 11:
            h.wait(vm=dr.tok["st"])
            h(f"v_add_f32 v{vS}, v{SP}, v{SP + 2}")
            h(f"v_add_f32 v{vQ}, v{SP + 1}, v{SP + 3}")
            for i in range(2, 8):
                h(f"v_add_f32 v{vS}, v{vS}, v{SP + 2 * i}")
                h(f"v_add_f32 v{vQ}, v{vQ}, v{SP + 2 * i + 1}")
        if st == 12:
            half_sum(h, vS, vT)
            half_sum(h, vQ, vT)
            h(f"v_mul_f32 v{vM}, {hx(f2u(-1.0 / 512))}, v{vS}")
            h(f"v_mul_f32 v{vQ}, {hx(f2u(1.0 / 512))}, v{vQ}")
            h(f"v_fma_f32 v{vQ}, -v{vM}, v{vM}, v{vQ}")
            h(f"v_max_f32 v{vQ}, 0, v{vQ}")
            h(f"v_add_f32 v{vQ}, {hx(f2u(1e-5))}, v{vQ}")
        if st == 13:
            h(f"v_rsq_f32 v{vA}, v{vQ}")
            split_hi_lo(h, vM, 68, vT, vT + 1)
            h(f"v_mul_f32 v{vA + 1}, v{vQ}, v{vA}")
            h(f"v_mul_f32 v{vA}, {hx(f2u(-LOG2E))}, v{vA}")
            h(f"v_cvt_pk_bf16_f32 v69, v{vT}, 0")
            h("v_mov_b32 v70, 0")
            h("v_mov_b32 v71, 0")
            h.lg(f"ds_write_b128 v{vT + 5}, v[68:71]")
            h.lg(f"ds_write_b64 v{vT + 6}, {vr(vA, 2)} offset:1024")
        if st == 14:
            h.wait_all(vm=False)
        if OPT.get("det") == 1 and st in (3, 7, 11):
            stamp(h)
        h("s_barrier")
        if OPT.get("det") == 1 and st in (3, 7, 11, 15):
            stamp(h)
        if OPT["gf_late"] and st == OPT["gf_late"]:
            h(f"s_lshl_b32 s{sT0}, s{sRb}, 2")
            h(f"s_add_u32 s{sT0}, s{sT0}, s{sHw}")
            h(f"s_mul_i32 s{sT0}, s{sT0}, {86 * 1024}")
            h(f"s_mul_i32 s{sT1}, s{sCg}, 6144")
            h(f"s_add_u32 s{sT0}, s{sT0}, s{sT1}")
            h(f"s_add_u32 s{sT0}, s{sT0}, {GF}")
            h(f"v_lshlrev_b32 v101, 7, v{vLane}")
            h("s_mov_b32 exec_hi, 0xffff")
            h.vm(f"buffer_load_dword v{vPd}, v101, {sr(sWS, 4)}, s{sT0} offen")
            h("s_mov_b64 exec, -1")
        if st == OPT["p4_pf"]:
            h.vm(f"buffer_load_dword v{vPd}, v{vPf}, s[44:47], 0 offen")
        if st == OPT["p4_pf"] + 1:
            h.vm(f"buffer_load_dword v{vPd}, v15, s[44:47], 0 offen")
    h("s_barrier")
    h.label("L_p4_skip_l")

    sWr2, sWc = 36, 37
    vWrd, vWrdO, vXa, vCw, vCr, vEr = [3, 4], [5, 6], 7, 8, 9, 10
    ONES, vT, CS, ACC = 12, 16, 20, 32
    XF, WF = [128, 136], [144, 156]
    XE, AS = XF[0], ONES
    t = CS
    a(f"s_lshr_b32 s{sWr2}, s{sHw}, 1")
    a(f"s_and_b32 s{sWc}, s{sHw}, 1")
    a(f"s_lshl_b32 s34, s{sRb}, 1")
    a(f"s_add_u32 s34, s34, s{sWr2}")
    a(f"v_lshrrev_b32 v{t + 3}, 5, v{vLane}")
    a(f"v_bfe_u32 v{t}, v{vLane}, 2, 2")
    a(f"v_lshl_add_u32 v{t}, v{t + 3}, 2, v{t}")
    a(f"v_mul_u32_u24 v{t}, 192, v{t}")
    a(f"v_and_b32 v{t + 1}, 3, v{vLane}")
    a(f"v_lshl_add_u32 v{t}, v{t + 1}, 3, v{t}")
    a(f"s_mul_i32 s{sT0}, s{sWc}, 96")
    a(f"v_add_u32 v{t}, s{sT0}, v{t}")
    a(f"v_bfe_u32 v{t + 1}, v{vLane}, 4, 1")
    a(f"s_lshl_b32 s{sT0}, s{sWc}, 6")
    a(f"s_sub_u32 s{sT1}, {3072 + 32}, s{sT0}")
    a(f"s_add_u32 s{sT0}, {3072 - 32}, s{sT0}")
    a(f"v_mad_u32_u24 v{vWrd[0]}, v{t + 1}, s{sT1}, v{t}")
    a(f"v_mad_u32_u24 v{vWrdO[0]}, v{t + 1}, s{sT0}, v{t}")
    wl = [LdsAddr(a, vWrd), LdsAddr(a, vWrdO)]
    wl[0].setup(a)
    wl[1].setup(a)
    a(f"s_lshl_b32 s{sT0}, s{sWr2}, 12")
    a(f"s_add_u32 s{sT0}, s{sT0}, {XO}")
    a(f"v_add_u32 v{vXa}, s{sT0}, v{vL16}")
    a(f"v_xor_b32 v{t}, v{t + 1}, v{vLane}")
    a(f"v_and_b32 v{t}, 1, v{t}")
    a(f"v_cmp_eq_u32 vcc, 0, v{t}")
    a(f"v_mov_b32 v{t}, 0x3f803f80")
    a("s_nop 0")
    for r in range(4):
        a(f"v_cndmask_b32 v{ONES + r}, 0, v{t}, vcc")
    a(f"s_lshl_b32 s{sT0}, s{sWc}, 1")
    a(f"s_add_u32 s{sT1}, s{sT0}, s{sWr2}")
    a(f"s_mul_i32 s{sT1}, s{sT1}, 384")
    a(f"s_add_u32 s{sT1}, s{sT1}, {CSO}")
    a(f"v_and_b32 v{t}, 1, v{vLane}")
    a(f"v_lshlrev_b32 v{t}, 6, v{t}")
    a(f"v_and_b32 v{t + 1}, 48, v{vLane}")
    a(f"v_add3_u32 v{vCw}, v{t}, v{t + 1}, s{sT1}")
    a(f"s_mul_i32 s{sT0}, s{sT0}, 384")
    a(f"s_add_u32 s{sT0}, s{sT0}, {CSO}")
    a(f"v_mul_u32_u24 v{t}, 384, v{t + 3}")
    a(f"v_and_b32 v{t + 1}, 31, v{vLane}")
    a(f"v_lshl_add_u32 v{t}, v{t + 1}, 2, v{t}")
    a(f"v_add_u32 v{vCr}, s{sT0}, v{t}")
    a(f"s_lshl_b32 s55, s34, 9")
    a(f"s_lshl_b32 s35, s{sCg}, 1")
    a(f"s_add_u32 s35, s35, s{sWc}")
    a(f"s_lshl_b32 s{sT0}, s35, 2")
    a(f"s_add_u32 s55, s55, s{sT0}")
    a(f"s_add_u32 s55, s55, {F4}")
    a(f"s_mul_i32 s34, s34, {2 * 86 * 1024}")
    a(f"s_mul_i32 s38, s35, 3")
    a(f"s_lshl_b32 s35, s35, 10")
    a("s_add_u32 s34, s34, s35")
    a(f"s_add_u32 s34, s34, {GF}")
    a(f"s_add_u32 s35, s34, {86 * 1024}")
    a(f"s_mul_i32 s{sT0}, s{sWr2}, 3072")
    a(f"s_add_u32 s{sT0}, s{sT0}, {XEO}")
    a(f"v_add_u32 v{vEr}, s{sT0}, v{vL16}")
    a(f"v_lshl_add_u32 v{vEr + 1}, v{vLane}, 3, s{sT0}")
    for r in range(12):
        a(f"v_mov_b32 v{CS + r}, 0")

    def reads(s):
        st, ss = divmod(s, 2)
        W = []
        for j in range(3):
            for half in range(2):
                reg, off = wl[j & 1].at(WS4[st % NW] + ss * 6144 + half * 8 * 192 + j * 32)
                W.append(f"ds_read_b64_tr_b16 {vr(WF[s & 1] + 4 * j + 2 * half, 2)}, {reg} offset:{off}")
        X = [f"ds_read_b128 {vr(XF[s & 1] + 4 * i, 4)}, v{vXa} offset:{(st % NX) * 8192 + i * 2048 + ss * 1024}"
             for i in range(2)]
        return [X[0], W[0], W[1], X[1], W[2], W[3], W[4], W[5]]

    rt = {}

    def emit_reads(b, s, lo, hi):
        ops = reads(s)
        for k in range(lo, min(hi, 8)):
            rt[(s, k)] = b.lg(ops[k])

    def main(b, s, m):
        j, i = divmod(m, 2)
        d = ACC + 16 * m
        c = "0" if s == 0 else vr(d, 16)
        b(f"v_mfma_f32_32x32x16_bf16 {vr(d, 16)}, {vr(WF[s & 1] + 4 * j, 4)}, {vr(XF[s & 1] + 4 * i, 4)}, {c}")

    def csum(b, s, j):
        b(f"v_mfma_f32_16x16x32_bf16 {vr(CS + 4 * j, 4)}, {vr(WF[s & 1] + 4 * j, 4)}, {vr(ONES, 4)}, {vr(CS + 4 * j, 4)}")

    a(f"s_lshl_b32 s40, s{sRb}, 8")
    a(f"s_add_u32 s40, s40, {F3}")
    poll(a, 40, vT, "p4")
    a("s_barrier")
    stamp(a)
    emit_reads(a, 0, 0, 8)
    a(f"s_cmp_eq_u32 s{sWr2}, 1")
    a("s_cbranch_scc1 L_p4_odd")
    cuts = [0, 2, 4, 6, 8, 8, 8]
    need = [3, 3, 5, 5, 7, 7]
    rt0 = dict(rt)
    odd = fork(a)
    odd.label("L_p4_odd")
    for par, b in ((0, a), (1, odd)):
        rt.clear()
        rt.update(rt0)
        for s in range(31):
            if s % 2 == 1:
                b.wait(lg=rt[(s, 7)])
                b("s_barrier")
            for m in range(6):
                b.wait(lg=rt[(s, need[m])])
                if m % 2 == 0 and s % 2 == par:
                    csum(b, s, m // 2)
                main(b, s, m)
                emit_reads(b, s + 1, cuts[m], cuts[m + 1])
        b.wait_all(vm=False)
        if par == 1:
            for j in range(3):
                csum(b, 31, j)
    odd("s_branch L_p4_join")
    a.label("L_p4_join")
    main(a, 31, 0)
    for j in range(3):
        a(f"v_mov_b32 v{WF[0] + 4 * j + 2}, 0")
        a(f"v_mov_b32 v{WF[0] + 4 * j + 3}, 0")
    main(a, 31, 1)
    a("s_mov_b32 exec_lo, 0x00030003")
    a("s_mov_b32 exec_hi, 0x00030003")
    for j in range(3):
        a.lg(f"ds_write_b128 v{vCw}, {vr(CS + 4 * j, 4)} offset:{j * 128}")
    a("s_mov_b64 exec, -1")
    for i in range(2):
        a.lg(f"ds_read_b128 {vr(XE + 4 * i, 4)}, v{vEr} offset:{i * 1536}")
        a.lg(f"ds_read_b64 {vr(AS + 2 * i, 2)}, v{vEr + 1} offset:{i * 1536 + 1024}")
    main(a, 31, 2)
    main(a, 31, 3)
    a.wait_all(vm=False)
    a("s_barrier")
    for j in range(3):
        rt[("c", j)] = a.lg(f"ds_read_b32 v{vT + 1 + j}, v{vCr} offset:{j * 128}")
    main(a, 31, 4)
    main(a, 31, 5)
    for j in range(3):
        w = WF[0] + 4 * j
        a.wait(lg=rt[("c", j)])
        a(f"v_cvt_pk_bf16_f32 v{w + 1}, v{vT + 1 + j}, 0")
        a(f"v_lshlrev_b32 v{vT}, 16, v{w + 1}")
        a(f"v_sub_f32 v{vT}, v{vT + 1 + j}, v{vT}")
        a(f"v_cvt_pk_bf16_f32 v{w}, v{vT + 1 + j}, v{vT}")
    for j in range(3):
        for i in range(2):
            d = ACC + 32 * j + 16 * i
            a(f"v_mfma_f32_32x32x16_bf16 {vr(d, 16)}, {vr(WF[0] + 4 * j, 4)}, {vr(XE + 4 * i, 4)}, {vr(d, 16)}")
    stamp(a)
    a(f"v_lshlrev_b32 v{vT}, 7, v{vLane}")
    a(f"v_mov_b32 v{vT + 1}, s{sTag}")
    a("s_nop 2")
    stok = {}
    for j in range(3):
        a(f"s_cmp_ge_u32 s38, {86 - j}")
        a("s_cbranch_scc1 L_p4_pub")
        Gs = [(ACC + 32 * j + 16 * i + r, i) for i in range(2) for r in range(8)]
        for g, i in Gs[::2]:
            a(f"v_pk_mul_f32 {vr(g, 2)}, {vr(g, 2)}, {vr(AS + 2 * i, 2)} op_sel_hi:[1,0]")
        for g, i in Gs:
            a(f"v_exp_f32 v{g}, v{g}")
        for g, i in Gs[::2]:
            a(f"v_pk_fma_f32 {vr(g, 2)}, {vr(g, 2)}, {vr(AS + 2 * i, 2)}, {vr(AS + 2 * i, 2)} op_sel:[0,1,1] op_sel_hi:[1,1,1]")
        for g, i in Gs:
            a(f"v_rcp_f32 v{g}, v{g}")
        for g, i in Gs[::2]:
            a(f"v_pk_mul_f32 {vr(g, 2)}, {vr(g, 2)}, {vr(g + 8, 2)}")
        o = ACC + 32 * j + 8
        for i in range(8):
            a(f"v_cvt_pk_bf16_f32 v{o + i}, v{Gs[2 * i][0]}, v{Gs[2 * i + 1][0]}")
        stores(a, [f"buffer_store_dwordx4 {vr(o, 4)}, v{vL16}, {sr(sWS, 4)}, s34 offen",
                   f"buffer_store_dwordx4 {vr(o + 4, 4)}, v{vL16}, {sr(sWS, 4)}, s35 offen"])
        stok[j] = a.vm_issued - 1
        a(f"s_add_u32 s34, s34, {29 * 1024}")
        a(f"s_add_u32 s35, s35, {29 * 1024}")
        if j >= 1:
            a("s_mov_b64 exec, 1")
            a.wait(vm=stok[j - 1])
            stores(a, [f"buffer_store_dword v{vT + 1}, v{vT}, {sr(sWS, 4)}, s55 offen offset:{(j - 1) * 128}"])
            a("s_mov_b64 exec, -1")
    a.label("L_p4_pub")
    a("s_nop 7")
    stamp(a)
    a("s_mov_b64 exec, 7")
    a.wait_all(lg=False)
    stores(a, [f"buffer_store_dword v{vT + 1}, v{vT}, {sr(sWS, 4)}, s55 offen"])
    a("s_mov_b64 exec, -1")
    a.label("L_p4_skip_c")
    return odd


def gen_fused():
    name = KNAME
    a = Asm()
    a.raw(f".globl {name}")
    a.raw(".p2align 8")
    a.raw(f".type {name},@function")
    a.label(name)
    a("s_cmp_ge_u32 s2, 256")
    a(f"s_cbranch_scc1 L_done")
    stamp_real(a)
    stamp(a)
    if OPT.get("spin"):
        a("s_memrealtime s[98:99]")
    c1, odd1, l1, aux = phase1(a)
    fb = phase2(c1, l1, aux)
    c1(f"s_cmp_ge_u32 s{sWave}, 4")
    c1("s_cbranch_scc0 L_compute")
    h = fork(c1)
    c = fork(c1)
    if OPT.get("det") == 2:
        h.nstamp, h.nostamp = 18, True
    c.label("L_compute")
    phase_res(c, h, True, pre_publish=55)
    odd = phase4(c, h)
    phase_res(c, h, False)
    if OPT.get("det") != 3:
        stamp_flush(h)
    h("s_endpgm")
    c("s_cmp_lg_u32 s2, 0")
    c("s_cbranch_scc1 L_nogen")
    c(f"s_cmp_lg_u32 s{sWave}, 0")
    c("s_cbranch_scc1 L_nogen")
    c(f"v_mov_b32 v12, {GEN}")
    c(f"v_mov_b32 v13, s{sTag}")
    c("s_mov_b64 exec, 1")
    c(f"buffer_store_dword v13, v12, {sr(sWS, 4)}, 0 offen sc1")
    if OPT.get("spin"):
        c("s_load_dwordx2 s[92:93], s[0:1], 64")
        c("s_memrealtime s[96:97]")
        c("s_waitcnt lgkmcnt(0)")
        c("s_sub_u32 s96, s96, s98")
        c("s_mov_b32 s94, 256")
        c("s_mov_b32 s95, 0x00020000")
        c("v_mov_b32 v12, 0")
        c("v_mov_b32 v13, s96")
        c("buffer_store_dword v13, v12, s[92:95], 0 offen")
        c.label("L_dbg_spin")
        c("s_memrealtime s[96:97]")
        c("s_waitcnt lgkmcnt(0)")
        c("s_sub_u32 s96, s96, s98")
        c(f"s_cmp_lt_u32 s96, {OPT['spin']}")
        c("s_cbranch_scc1 L_dbg_spin")
    c.label("L_nogen")
    stamp_flush(c)
    c.label("L_done")
    c("s_endpgm")
    text = (a.text() + l1.text() + aux.text() + odd1.text() + c1.text() + h.text() + c.text() + odd.text() + fb.text())
    return name, text, descriptor(name, 168, 0, sgpr=102), (256, 576, 163840)


def build():
    name, text, desc, (g, b, lds) = gen_fused()
    ref = open(f"cdna_kernels/{NAME}.s.ref").read().split("\n")
    head = [l for l in ref if l.startswith(";") and "@launch" not in l]
    out = "\n".join(head) + "\n"
    out += f"; @launch grid=({g},1,1) block=({b},1,1) lds={lds}\n"
    out += '.amdgcn_target "amdgcn-amd-amdhsa--gfx950"\n.text\n'
    bad = check_hazards(text, name)
    out += text
    out += "L_code_end:\n"
    out += '.section .rodata,"a"\n.p2align 6\n' + desc
    if bad:
        print("hazards:", bad)
    return out


if __name__ == "__main__":
    path = sys.argv[1] if len(sys.argv) > 1 else f"cdna_kernels/{NAME}.s"
    for arg in sys.argv[2:]:
        if arg == "stamps":
            G.STAMPS = True
        else:
            k_, v_ = arg.split("=")
            OPT[k_] = int(v_)
    open(path, "w").write(build())
    print("wrote", path)
```

```python
import sys

import gen as G
from gen import (Asm, Drip, LdsAddr, OPT, MB, QF, KVF, OF, HF, ST, GF, WS_SIZE, LOG2E, NAME, f2u, hx, vr, sr, srd,
                 fork, half_sum, split_hi_lo, code_prefetch, descriptor, check_hazards)

FLG = 11 * MB
F2, F3, F4, XT = FLG, FLG + 8192, FLG + 49152, FLG + 20480
FL1, GEN, FG1 = FLG + 24576, FLG + 28672, FLG + 32768
KVL = KVF
KVG = 24 * MB


def HS():
    return 131072 + OPT["kv_pad"]


KNAME = NAME + "_kernel"
WS3 = [0, 8192, 16384, 24576, 65536, 73728, 81920, 90112]
RES3 = 155648
WS4 = [32768, 45056, 98304, 110592, 0, 12288, 57344, 69632, 81920]
WS5 = [0, 8192, 16384] + [8192 * i for i in range(4, 14)]
sTag = 53
OPT.update(dict(p3_a=7, p4_a=3, p5_a=7, p5_na=6, down_l2=0, ws_off=0, kv_pad=4352, kv_gate=1, kv_fl=2, p1_bs=1, p5_c2=9, p5_nw=11, p4_pf=13, p4_pre=7, p2_map=1, force_slow=0, p1_cnt=1, kv_nt=0, kv_lag=1, early_t=0, gf_late=0, gu_from=128, gu_to=223, ep_prio=0, ep_fl=0, aux_sl=3, p2_pr=0, p1_s3=2, tout_g=0, p1_er=3, p2_defer=0, p2_sched=0, ld=0, touch_out=1, touch2=1, k1_tout=11, p2_fine=0, p2_rot=1, p4_wi2=4, sc="sc1"))

sWS, sWave, sHw = 12, 24, 29
sT0, sT1 = 30, 31
KX, KWO, KG, KU, KD, KO = 64, 68, 72, 74, 76, 78
vLane, vL16 = 1, 2


def ws_srd(a):
    off = OPT["ws_off"] * MB
    a(f"s_add_u32 s{sWS}, s8, {hx(off)}")
    a(f"s_addc_u32 s{sWS + 1}, s9, 0")
    a(f"s_mov_b32 s{sWS + 2}, {hx(WS_SIZE)}")
    a(f"s_mov_b32 s{sWS + 3}, 0x00020000")


def LD():
    return ["sc1", "nt", "", "sc0 sc1", "sc0"][OPT["ld"]]


def stamp(a, force=False):
    if not G.STAMPS or (getattr(a, "nostamp", False) and not force):
        return
    i = getattr(a, "nstamp", 0)
    a.nstamp = i + 1
    assert i < 20, i
    a("s_memtime s[100:101]")
    a.wait_all(vm=False)
    a(f"s_mov_b32 s{80 + i}, s100")


def stamp_real(a):
    if not G.STAMPS:
        return
    i = getattr(a, "nstamp", 0)
    a.nstamp = i + 1
    a("s_memrealtime s[100:101]")
    a.wait_all(vm=False)
    a(f"s_mov_b32 s{80 + i}, s100")


def stamp_flush(a):
    if not G.STAMPS:
        return
    a.wait_all()
    stamp(a, True)
    stamp_real(a)
    a("s_mov_b64 exec, -1")
    a("s_lshl_b32 s58, s2, 3")
    a(f"s_add_u32 s58, s58, s{sWave}")
    a("s_lshl_b32 s58, s58, 7")
    a(f"s_add_u32 s58, s58, {G.DBGO + MB}")
    a("v_mov_b32 v1, 0")
    for i in range(a.nstamp):
        a(f"v_mov_b32 v2, s{80 + i}")
        a(f"buffer_store_dword v2, v1, {sr(sWS, 4)}, s58 offen offset:{4 * i}")
    a.wait_all()


LMODE = 163840 - 16
sMode = 54
_uid = [0]


def stores(a, ins, always_slow=False):
    if always_slow:
        for x in ins:
            a.vm(x + " sc1")
        return
    _uid[0] += 1
    u = _uid[0]
    a(f"s_cmp_eq_u32 s{sMode}, 0")
    a(f"s_cbranch_scc1 L_st_{u}_s")
    for x in ins:
        a.vm(x)
    a(f"s_branch L_st_{u}_j")
    a.label(f"L_st_{u}_s")
    for x in ins:
        a(x + " sc1")
    a.label(f"L_st_{u}_j")


def publish(a, sOff, vt, always_slow=False):
    a(f"v_mov_b32 v{vt}, 0")
    a(f"v_mov_b32 v{vt + 1}, s{sTag}")
    a("s_mov_b64 exec, 1")
    a.wait_all(lg=False)
    stores(a, [f"buffer_store_dword v{vt + 1}, v{vt}, {sr(sWS, 4)}, s{sOff} offen"], always_slow)
    a("s_mov_b64 exec, -1")


def poll_issue(a, sOff, vt, uid, off):
    a(f"s_cmp_lg_u32 s{sWave}, 0")
    a(f"s_cbranch_scc1 L_pi_{uid}")
    a(f"v_lshlrev_b32 v{vt}, 2, v{vLane}")
    a(f"buffer_load_dword v{vt + 1}, v{vt}, {sr(sWS, 4)}, s{sOff} offen offset:{off} sc1")
    a.label(f"L_pi_{uid}")


def poll(a, sOff, vt, uid, nflags=64, every=False, barrier=True, off=0, issued=False):
    if not every:
        a(f"s_cmp_lg_u32 s{sWave}, 0")
        a(f"s_cbranch_scc1 L_poll_{uid}_go")
    if not issued:
        a(f"v_lshlrev_b32 v{vt}, 2, v{vLane}")
    a("s_mov_b32 s59, 0x40000")
    if nflags < 64:
        a(f"s_mov_b64 exec, {hx((1 << nflags) - 1)}")
    if issued:
        a(f"s_branch L_poll_{uid}_c")
    a.label(f"L_poll_{uid}")
    a(f"buffer_load_dword v{vt + 1}, v{vt}, {sr(sWS, 4)}, s{sOff} offen offset:{off} sc1")
    a.label(f"L_poll_{uid}_c")
    a("s_sub_u32 s59, s59, 1")
    a("s_waitcnt vmcnt(0)")
    a(f"v_cmp_ne_u32 vcc, s{sTag}, v{vt + 1}")
    a("s_cmp_eq_u32 s59, 0")
    a(f"s_cbranch_scc1 L_poll_{uid}_x")
    a(f"s_cbranch_vccnz L_poll_{uid}")
    a.label(f"L_poll_{uid}_x")
    a("s_mov_b64 exec, -1")
    a.label(f"L_poll_{uid}_go")
    if barrier:
        a("s_barrier")


def touch_setup(h):
    srd(h, 16, KWO, 512 * 1024)
    srd(h, 20, KG, 512 * 2752)
    srd(h, 48, KU, 512 * 2752)
    h(f"s_and_b32 s{sT0}, s2, 7")
    h(f"s_lshl_b32 s{sT1}, s{sT0}, 18")
    h(f"s_add_u32 s4, s{KX}, s{sT1}")
    h(f"s_addc_u32 s5, s{KX + 1}, 0")
    srd(h, 44, 4, 256 * 1024)
    h(f"s_mul_i32 s{sT0}, s{sT0}, {172 * 1024}")
    h(f"s_add_u32 s10, s{KD}, s{sT0}")
    h(f"s_addc_u32 s11, s{KD + 1}, 0")
    if OPT["down_l2"]:
        srd(h, 40, KD, 1376 * 1024)
    else:
        srd(h, 40, 10, 172 * 1024)
    h(f"s_lshr_b32 s{sT0}, s2, 3")
    h("v_lshlrev_b32 v3, 7, v1")


def touch_weights(h):
    k0 = OPT["gu_from"]
    k1 = OPT["gu_to"]
    n = -(-(k1 - k0) * 2752 // (32 * 8192))
    if k0:
        per = -(-(k0 if k1 == 512 else 512) * 2752 // 256 // 128) * 128
        assert per <= 8192
        h(f"s_mul_i32 s{sT1}, s2, {per}")
        h(f"v_add_u32 v4, s{sT1}, v3")
        nl = per // 128
        h(f"s_mov_b32 exec_lo, {hx((1 << min(nl, 32)) - 1)}")
        h(f"s_mov_b32 exec_hi, {hx((1 << max(nl - 32, 0)) - 1)}")
        for sq in (20, 48):
            h.vm(f"buffer_load_dword v5, v4, {sr(sq, 4)}, 0 offen")
        h("s_mov_b64 exec, -1")
    for sq, per, n_, base in ((16, 16384, 2, 0), (44, 8192, 1, 0), (40, 49152, 6, 0) if OPT["down_l2"] else (40, 8192, 1, 0), (20, n * 8192, n, k0 * 2752 // 128 * 128),
                              (48, n * 8192, n, k0 * 2752 // 128 * 128)):
        if n_ == 0:
            continue
        h(f"s_mul_i32 s{sT1}, s{sT0}, {per}")
        if base:
            h(f"s_add_u32 s{sT1}, s{sT1}, {base}")
        h(f"v_add_u32 v4, s{sT1}, v3")
        for i in range(n_):
            h.vm(f"buffer_load_dword v5, v4, {sr(sq, 4)}, 0 offen")
            if i + 1 < n_:
                h("v_add_u32 v4, 0x2000, v4")


def phase1(a):
    sX, sW = 20, 16
    sWr, sWc, sCg, sRb = 25, 26, 27, 28
    sWL = 32
    sOnes = 41
    vT = 8
    NSLOT, SLOT, WBASE, NST = 7, 12288, 65536, 16
    CSO = WBASE + NSLOT * SLOT
    RSO = 155648
    XEO = 156672
    BS = [list(range(16)), [0, 1, 2, 4, 6, 8, 10, 12, 14], [0, 2, 4, 6, 8, 10, 12, 14], [0, 1, 2, 3, 4, 6, 8, 10, 12, 14, 15]][OPT["p1_bs"]]
    a("s_load_dwordx16 s[64:79], s[0:1], 0")
    a("s_load_dwordx2 s[8:9], s[0:1], 72")
    a(f"v_and_b32 v{vLane}, 63, v0")
    a(f"v_lshrrev_b32 v7, 6, v0")
    a(f"v_lshlrev_b32 v{vL16}, 4, v{vLane}")
    a(f"v_readfirstlane_b32 s{sWave}, v7")
    a(f"s_and_b32 s{sT0}, s2, 7")
    a(f"s_lshl_b32 s{sT0}, s{sT0}, 2")
    a(f"s_bfe_u32 s{sT1}, s2, 0x20003")
    a(f"s_add_u32 s{sRb}, s{sT0}, s{sT1}")
    a(f"s_lshr_b32 s{sCg}, s2, 5")
    a(f"s_and_b32 s{sHw}, s{sWave}, 3")
    a(f"s_cmp_eq_u32 s{sWave}, 8")
    a("s_cbranch_scc1 L_p1_aux")
    a(f"s_cmp_ge_u32 s{sWave}, 4")
    a(f"s_cbranch_scc0 L_p1_compute")

    x = fork(a)
    x.label("L_p1_aux")
    x("s_setprio 3")
    x(f"v_lshlrev_b32 v30, 7, v{vLane}")
    x(f"s_lshr_b32 s{sT0}, s2, 3")
    x(f"s_lshl_b32 s{sT0}, s{sT0}, 11")
    x(f"v_add_u32 v30, s{sT0}, v30")
    x("s_mov_b64 exec, 0xffff")
    code_prefetch(x, KNAME, 44, 30, 31, "p1")
    x("s_mov_b64 exec, -1")
    x("s_getreg_b32 s56, hwreg(HW_REG_XCC_ID, 0, 4)")
    x("s_and_b32 s57, s2, 7")
    x("s_lshl_b32 s57, s57, 8")
    x(f"s_add_u32 s57, s57, {XT}")
    x("s_lshr_b32 s58, s2, 3")
    x("s_lshl_b32 s58, s58, 2")
    x(f"v_mov_b32 v6, {GEN}")
    x("s_waitcnt lgkmcnt(0)")
    ws_srd(x)
    x.vm(f"buffer_load_dword v7, v6, {sr(sWS, 4)}, 0 offen")
    x("v_mov_b32 v6, s58")
    x("s_barrier")
    x("s_barrier")
    x.wait_all()
    x(f"v_readfirstlane_b32 s{sTag}, v7")
    x("s_nop 3")
    x(f"s_add_u32 s{sTag}, s{sTag}, 1")
    x(f"s_lshl_b32 s58, s{sTag}, 4")
    x("s_or_b32 s56, s56, s58")
    x("v_mov_b32 v7, s56")
    x("s_mov_b64 exec, 1")
    x.vm(f"buffer_store_dword v7, v6, {sr(sWS, 4)}, s57 offen sc1")
    x("s_mov_b32 exec_lo, -1")
    x("s_mov_b32 exec_hi, 0")
    x(f"v_lshlrev_b32 v6, 2, v{vLane}")
    for st in (BS + [NST])[2:]:
        if st == 12:
            x("s_mov_b32 s59, 0x40000")
            x("s_waitcnt vmcnt(0)")
            x("s_branch L_xt_chk")
            x.label("L_xt_poll")
            x(f"buffer_load_dword v7, v6, {sr(sWS, 4)}, s57 offen sc1")
            x("s_sub_u32 s59, s59, 1")
            x("s_waitcnt vmcnt(0)")
            x.label("L_xt_chk")
            x("v_xor_b32 v8, s56, v7")
            x("v_cmp_lt_u32 vcc, 15, v8")
            x("s_cmp_eq_u32 s59, 0")
            x("s_cbranch_scc1 L_xt_done")
            x("s_cbranch_vccnz L_xt_poll")
            x.label("L_xt_done")
            x("v_cmp_ne_u32 vcc, 0, v8")
            x("s_nop 1")
            x("s_cmp_eq_u64 vcc, 0")
            x(f"s_cselect_b32 s{sMode}, {0 if OPT['force_slow'] else 1}, 0")
            x(f"v_mov_b32 v6, {LMODE}")
            x(f"v_mov_b32 v8, s{sMode}")
            x(f"v_mov_b32 v9, s{sTag}")
            x("ds_write_b64 v6, v[8:9]")
            x("s_waitcnt lgkmcnt(0)")
            x("s_mov_b64 exec, -1")
        x("s_barrier")
        if OPT["early_t"] and st == OPT["early_t"]:
            touch_setup(x)
            touch_weights(x)
        if st == 8:
            x(f"buffer_load_dword v7, v6, {sr(sWS, 4)}, s57 offen sc1")

    h = fork(a)
    vWoff, vXg, vSr, vXe, vRs = 3, 4, 6, 20, 21
    vS, vQ, vM, vR = 22, 23, 24, 25
    XB = 32
    h(f"v_lshrrev_b32 v{vT}, 3, v{vLane}")
    h(f"v_and_b32 v{vT + 1}, 7, v{vLane}")
    h(f"v_lshrrev_b32 v{vT + 2}, 1, v{vT}")
    h(f"v_xor_b32 v{vT + 2}, v{vT + 2}, v{vT + 1}")
    h(f"v_lshlrev_b32 v{vT + 2}, 4, v{vT + 2}")
    h(f"v_lshl_add_u32 v{vXg}, v{vT}, 10, v{vT + 2}")
    h(f"v_xor_b32 v{vXg + 1}, 64, v{vXg}")
    h(f"v_add_u32 v{vXg + 1}, {8 * 1024 - 1024}, v{vXg + 1}")
    h(f"s_lshl_b32 s34, s{sRb}, 16")
    h(f"s_lshl_b32 s{sT0}, s{sHw}, 14")
    h(f"s_add_u32 s34, s34, s{sT0}")
    h(f"s_lshl_b32 s36, s{sHw}, 11")
    h(f"v_lshrrev_b32 v{vT + 2}, 2, v{vLane}")
    h(f"v_and_b32 v{vT + 2}, 4, v{vT + 2}")
    h(f"v_xor_b32 v{vT + 2}, v{vT + 2}, v{vT + 1}")
    h(f"v_lshlrev_b32 v{vT + 2}, 4, v{vT + 2}")
    h(f"v_mul_u32_u24 v{vT + 3}, 3072, v{vT}")
    h(f"s_mul_i32 s{sT0}, s{sHw}, {8 * 3072}")
    h(f"s_lshl_b32 s{sT1}, s{sCg}, 7")
    h(f"s_add_u32 s{sT0}, s{sT0}, s{sT1}")
    h(f"v_add3_u32 v{vWoff}, v{vT + 3}, v{vT + 2}, s{sT0}")
    h(f"s_mul_i32 s{sWL}, s{sHw}, 3072")
    h("s_waitcnt lgkmcnt(0)")
    srd(h, sX, KX, 2048 * 1024)
    srd(h, sW, KX + 2, 512 * 3072)
    d2 = OPT.get("det") == 2
    if d2:
        h.nstamp = 7
        stamp(h)
    dr = Drip(h)

    def x_dma(c, key):
        dr.add(key, [f"s_add_u32 m0, s36, {c * 8192}", f"s_add_u32 s43, s34, {c * 128}"],
               f"buffer_load_dwordx4 v{vXg}, {sr(sX, 4)}, s43 offen lds")
        dr.add(key, [], f"buffer_load_dwordx4 v{vXg + 1}, {sr(sX, 4)}, s43 offen offset:1024 lds")

    def issue(st):
        if st % 2 == 0:
            x_dma(st // 2, st)
        for seg in range(3):
            pre = [f"s_add_u32 m0, s{sWL}, {WBASE + (st % NSLOT) * SLOT}", f"s_mov_b32 s42, {32 * st * 3072}"] if seg == 0 else []
            dr.add(st, pre, f"buffer_load_dwordx4 v{vWoff}, {sr(sW, 4)}, s42 offen offset:{seg * 1024} lds")

    for st in range(NSLOT):
        issue(st)
    AHEAD = OPT["k1_d"]
    dr.through(OPT["k1_t"] - 1)

    def s3(lo, hi):
        for i in range(lo, hi):
            h(f"s_load_dword s52, s[50:51], {(i % 8) * 131072 + 384}")
            h(f"s_load_dword s52, s[50:51], {(i % 8) * 131072 + 448}")

    if OPT["p1_s3"]:
        h(f"s_lshr_b32 s{sT0}, s2, 3")
        h(f"s_lshl_b32 s{sT0}, s{sT0}, 2")
        h(f"s_add_u32 s{sT0}, s{sT0}, s{sHw}")
        h(f"s_lshl_b32 s{sT0}, s{sT0}, 10")
        h(f"s_add_u32 s50, s{KX + 2}, s{sT0}")
        h(f"s_addc_u32 s51, s{KX + 3}, 0")
        s3(0, 7)
    if OPT["k1_touch"]:
        h(f"s_lshl_b32 s{sT0}, s2, 2")
        h(f"s_add_u32 s{sT0}, s{sT0}, s{sHw}")
        h(f"s_mul_i32 s{sT1}, s{sT0}, 1536")
        h(f"s_lshl_b32 s{sT0}, s{sT0}, 11")
        h(f"v_lshlrev_b32 v30, 7, v{vLane}")
        h("s_mov_b64 exec, 0xfff")
        h.vm(f"buffer_load_dword v31, v30, {sr(sW, 4)}, s{sT1} offen")
        h("s_mov_b64 exec, 0xffff")
        h.vm(f"buffer_load_dword v31, v30, {sr(sX, 4)}, s{sT0} offen")
        h("s_mov_b64 exec, -1")
    dr.through(AHEAD - 1)
    ws_srd(h)
    st_tok = {}
    if d2:
        stamp(h)
    added = NSLOT
    for bi, st in enumerate(BS):
        last = (BS + [NST])[bi + 1] - 1
        dr.wait(last)
        if d2 and st in (4, 10):
            stamp(h)
        h("s_barrier")
        if d2 and st in (0, 2, 4, 8, 10, 12, 14):
            stamp(h)
        if st == 0 and OPT["p1_s3"]:
            s3(7, 8)
            h(f"s_add_u32 s50, s50, {8 * 131072}")
            h("s_addc_u32 s51, s51, 0")
            s3(8, 12)
        while added < NST and added - NSLOT < st:
            issue(added)
            added += 1
        tgt = min(NST - 1, last + AHEAD + min(st + 1, OPT["k1_g"]))
        while dr.q and dr.q[0][0] <= tgt:
            dr.emit()
        if st <= OPT.get("k1_tout", -1) <= last:
            h(f"s_lshl_b32 s{sT0}, s{sCg}, 2")
            h(f"s_add_u32 s{sT0}, s{sT0}, s{sHw}")
            h(f"s_lshl_b32 s{sT0}, s{sT0}, 5")
            h(f"s_add_u32 s{sT0}, s{sT0}, s{sRb}")
            h(f"s_lshl_b32 s{sT1}, s{sT0}, 12")
            h(f"s_add_u32 s{sT1}, s{sT1}, {KVL}")
            h(f"s_lshl_b32 s{sT0}, s{sT0}, 11")
            if QF:
                h(f"s_add_u32 s{sT0}, s{sT0}, {QF}")
            h(f"v_lshlrev_b32 v30, 7, v{vLane}")
            h("s_mov_b64 exec, 0xffff")
            h.vm(f"buffer_load_dword v31, v30, {sr(sWS, 4)}, s{sT0} offen")
            h("s_mov_b32 exec_lo, -1")
            h.vm(f"buffer_load_dword v31, v30, {sr(sWS, 4)}, s{sT1} offen")
            h("s_mov_b64 exec, -1")
    h(f"v_mov_b32 v{vT}, {LMODE}")
    h.lg(f"ds_read_b64 {vr(vT + 2, 2)}, v{vT}")
    h.wait_all(vm=False)
    h(f"v_readfirstlane_b32 s{sMode}, v{vT + 2}")
    h(f"v_readfirstlane_b32 s{sTag}, v{vT + 3}")
    h("s_barrier")
    h.wait_all()
    if OPT.get("det") != 2:
        stamp(h)
    a = fork(a)
    a.label("L_p1_compute")

    vXrd = [3, 4, 5, 6]
    vKoff, vVoff = 20, 21
    vWrd = [22, 23, 24]
    vCw, vCr, vEr, vRl, vRr = 25, 26, 27, 28, 29
    XF = [32, 36]
    WF = [40, 52]
    CS, ONES, XE = 64, 76, 80
    RV = 84
    accQ, accK, accV = 104, 120, 136
    SQ = 152
    a(f"s_lshr_b32 s{sWr}, s{sHw}, 1")
    a(f"s_and_b32 s{sWc}, s{sHw}, 1")
    a(f"v_and_b32 v{vT}, 31, v{vLane}")
    a(f"v_lshrrev_b32 v{vT + 1}, 5, v{vLane}")
    a(f"v_bfe_u32 v{vT + 2}, v{vLane}, 1, 3")
    a(f"v_xor_b32 v{vT + 2}, v{vT + 2}, v{vT + 1}")
    a(f"v_lshlrev_b32 v{vT + 2}, 4, v{vT + 2}")
    a(f"v_lshl_add_u32 v{vT + 2}, v{vT}, 7, v{vT + 2}")
    a(f"s_lshl_b32 s{sT0}, s{sWr}, 12")
    a(f"v_add_u32 v{vXrd[0]}, s{sT0}, v{vT + 2}")
    for ss in range(1, 4):
        a(f"v_xor_b32 v{vXrd[ss]}, {ss * 32}, v{vXrd[0]}")
    a(f"v_mul_u32_u24 v{vT + 2}, 3072, v{vT + 1}")
    a(f"v_bfe_u32 v{vT + 3}, v{vLane}, 2, 2")
    a(f"v_lshl_add_u32 v{vT + 2}, v{vT + 3}, 7, v{vT + 2}")
    a(f"v_lshrrev_b32 v{vT + 3}, 1, v{vT + 3}")
    a(f"v_xor_b32 v{vT + 3}, s{sWc}, v{vT + 3}")
    a(f"v_lshl_add_u32 v{vT + 2}, v{vT + 3}, 6, v{vT + 2}")
    a(f"v_bfe_u32 v{vT + 4}, v{vLane}, 4, 1")
    a(f"v_lshl_add_u32 v{vT + 2}, v{vT + 4}, 5, v{vT + 2}")
    a(f"v_and_b32 v{vT + 3}, 3, v{vLane}")
    a(f"v_lshl_add_u32 v{vWrd[0]}, v{vT + 3}, 3, v{vT + 2}")
    wl = LdsAddr(a, vWrd)
    wl.setup(a)
    a(f"v_xor_b32 v{vT + 2}, v{vT + 4}, v{vLane}")
    a(f"v_and_b32 v{vT + 2}, 1, v{vT + 2}")
    a(f"v_cmp_eq_u32 vcc, 0, v{vT + 2}")
    a(f"v_mov_b32 v{vT + 2}, 0x3f803f80")
    a("s_nop 0")
    for r in range(4):
        a(f"v_cndmask_b32 v{ONES + r}, 0, v{vT + 2}, vcc")
    a(f"s_lshl_b32 s{sT0}, s{sWc}, 1")
    a(f"s_add_u32 s{sT1}, s{sT0}, s{sWr}")
    a(f"s_mul_i32 s{sT1}, s{sT1}, 384")
    a(f"s_add_u32 s{sT1}, s{sT1}, {CSO}")
    a(f"v_and_b32 v{vT + 2}, 1, v{vLane}")
    a(f"v_lshlrev_b32 v{vT + 2}, 6, v{vT + 2}")
    a(f"v_and_b32 v{vT + 3}, 48, v{vLane}")
    a(f"v_add3_u32 v{vCw}, v{vT + 2}, v{vT + 3}, s{sT1}")
    a(f"s_mul_i32 s{sT0}, s{sT0}, 384")
    a(f"s_add_u32 s{sT0}, s{sT0}, {CSO}")
    a(f"v_mul_u32_u24 v{vT + 2}, 384, v{vT + 1}")
    a(f"v_lshl_add_u32 v{vT + 2}, v{vT}, 2, v{vT + 2}")
    a(f"v_add_u32 v{vCr}, s{sT0}, v{vT + 2}")
    a(f"s_lshl_b32 s{sT0}, s{sHw}, 9")
    a(f"s_add_u32 s{sT0}, s{sT0}, {XEO}")
    a(f"v_lshl_add_u32 v{vEr}, v{vLane}, 3, s{sT0}")
    a(f"v_xor_b32 v31, 512, v{vEr}")
    a(f"s_lshl_b32 s{sT0}, s{sHw}, 7")
    a(f"s_add_u32 s{sT0}, s{sT0}, {RSO}")
    a(f"v_lshl_add_u32 v{vRl}, v{vT}, 2, s{sT0}")
    a(f"v_lshl_add_u32 v{vRr}, v{vT + 1}, 4, s{sT0}")
    a(f"s_mov_b32 s{sOnes}, 0x3f803f80")
    a(f"v_mov_b32 v{SQ}, 0")
    a(f"v_mov_b32 v{SQ + 1}, 0")
    a(f"v_and_b32 v{vT + 2}, 0x33, v{vLane}")
    a(f"v_bfe_u32 v{vT + 3}, v{vLane}, 2, 1")
    a(f"v_lshl_or_b32 v{vT + 2}, v{vT + 3}, 3, v{vT + 2}")
    a(f"v_bfe_u32 v{vT + 3}, v{vLane}, 3, 1")
    a(f"v_lshl_or_b32 v{vT + 2}, v{vT + 3}, 2, v{vT + 2}")
    a(f"v_lshlrev_b32 v{vKoff}, 4, v{vT + 2}")
    a(f"v_lshlrev_b32 v{vT + 2}, 17, v{vT + 4}")
    a(f"v_lshl_add_u32 v{vT + 2}, v{vT + 1}, 8, v{vT + 2}")
    a(f"v_and_b32 v{vT + 3}, 15, v{vLane}")
    a(f"v_lshl_add_u32 v{vVoff}, v{vT + 3}, 4, v{vT + 2}")
    a(f"s_lshl_b32 s{sT0}, s{sCg}, 2")
    a(f"s_lshl_b32 s{sT1}, s{sWc}, 1")
    a(f"s_add_u32 s{sT0}, s{sT0}, s{sT1}")
    a(f"s_lshl_b32 s{sT1}, s{sRb}, 1")
    a(f"s_add_u32 s{sT1}, s{sT1}, s{sWr}")
    a(f"s_lshl_b32 s46, s{sT0}, 16")
    a(f"s_lshl_b32 s47, s{sT1}, 10")
    a(f"s_add_u32 s46, s46, s47")
    if QF:
        a(f"s_add_u32 s46, s46, {QF}")
    a(f"s_add_u32 s47, s46, 65536")
    a(f"s_lshl_b32 s60, s{sT0}, 17")
    a(f"s_lshl_b32 s37, s{sT1}, 11")
    a(f"s_add_u32 s60, s60, s37")
    a(f"s_add_u32 s60, s60, {KVL}")
    a(f"s_mul_i32 s36, s{sT0}, {HS()}")
    a(f"s_add_u32 s36, s36, s37")
    a(f"s_add_u32 s36, s36, {KVG}")
    a(f"s_add_u32 s37, s36, {HS()}")
    a(f"v_mul_u32_u24 v156, {OPT['kv_pad']}, v{vT + 4}")
    a(f"v_add_u32 v156, v156, v{vVoff}")
    for r in range(12):
        a(f"v_mov_b32 v{CS + r}, 0")
    a("s_waitcnt lgkmcnt(0)")
    ws_srd(a)
    a(f"s_lshl_b32 s{sT0}, s{sCg}, 1")
    a(f"s_add_u32 s{sT0}, s{sT0}, s{sWc}")
    a(f"s_and_b32 s{sT1}, s{sRb}, 3")
    a(f"s_lshl_b32 s{sT1}, s{sT1}, 1")
    a(f"s_add_u32 s{sT1}, s{sT1}, s{sWr}")
    a(f"s_lshl_b32 s{sT1}, s{sT1}, 2")
    a("s_and_b32 s38, s2, 7")
    a("s_lshl_b32 s48, s38, 9")
    a(f"s_lshl_b32 s39, s{sT0}, 5")
    a("s_add_u32 s48, s48, s39")
    a(f"s_add_u32 s48, s48, s{sT1}")
    a(f"s_add_u32 s48, s48, {FL1}")
    a(f"s_lshl_b32 s49, s{sT0}, 10")
    a("s_lshl_b32 s39, s38, 7")
    a("s_add_u32 s49, s49, s39")
    a(f"s_add_u32 s49, s49, s{sT1}")
    a(f"s_add_u32 s49, s49, {FG1}")
    a("s_mov_b32 s38, s60")
    a("s_add_u32 s39, s60, 131072")
    a(f"v_mov_b32 v30, {LMODE}")

    def reads(s):
        st, ss = divmod(s, 2)
        ops = [f"ds_read_b128 {vr(XF[s & 1], 4)}, v{vXrd[s & 3]} offset:{(s >> 2) * 8192}"]
        for seg in range(3):
            for half in range(2):
                reg, off = wl.at(WBASE + (st % NSLOT) * SLOT + ss * 6144 + seg * 1024 + half * 512)
                ops.append(f"ds_read_b64_tr_b16 {vr(WF[s & 1] + 4 * seg + 2 * half, 2)}, {reg} offset:{off}")
        return ops

    rt = {}

    def emit_reads(b, s, lo, hi):
        ops = reads(s)
        for k in range(lo, min(hi, 7)):
            rt[(s, k)] = b.lg(ops[k])

    a("s_barrier")
    if OPT.get("det") != 4:
        stamp(a)
    emit_reads(a, 0, 0, 7)
    a(f"s_cmp_lg_u32 s{sWr}, s{sWc}")
    a("s_cbranch_scc1 L_p1_odd")
    rt0 = dict(rt)
    odd = fork(a)
    odd.label("L_p1_odd")
    acc = [accQ, accK, accV]

    def mm(b, j, w, x, first=False):
        c = "0" if first else vr(acc[j], 16)
        ops = (vr(w, 4), vr(x, 4)) if j < 2 else (vr(x, 4), vr(w, 4))
        b(f"v_mfma_f32_32x32x16_bf16 {vr(acc[j], 16)}, {ops[0]}, {ops[1]}, {c}")

    def csum(b, s, j):
        b(f"v_mfma_f32_16x16x32_bf16 {vr(CS + 4 * j, 4)}, {vr(WF[s & 1] + 4 * j, 4)}, {vr(ONES, 4)}, {vr(CS + 4 * j, 4)}")

    def stats(b, s):
        for r in range(4):
            b(f"v_dot2_f32_bf16 v{SQ}, v{XF[s & 1] + r}, s{sOnes}, v{SQ}")
            b(f"v_dot2_f32_bf16 v{SQ + 1}, v{XF[s & 1] + r}, v{XF[s & 1] + r}, v{SQ + 1}")

    for par, b in ((0, a), (1, odd)):
        rt.clear()
        rt.update(rt0)
        for s in range(31):
            if s % 2 == 1 and (s + 1) // 2 in BS:
                b.wait(lg=rt[(s, 6)])
                b("s_barrier")
            cutp = [0, 3, 5, 7]
            for j in range(3):
                b.wait(lg=rt[(s, 2 + 2 * j)])
                if s % 2 == par:
                    csum(b, s, j)
                mm(b, j, WF[s & 1] + 4 * j, XF[s & 1], s == 0)
                emit_reads(b, s + 1, cutp[j], cutp[j + 1])
            if s % 2 != par:
                stats(b, s)
            if s == 27:
                b.lg("ds_read_b64 v[102:103], v30")
        b.wait_all(vm=False)
        if par == 1:
            for j in range(3):
                csum(b, 31, j)
        else:
            stats(b, 31)
    odd("s_branch L_p1_join")
    a.label("L_p1_join")
    mm(a, 0, WF[1], XF[1])
    a(f"v_readfirstlane_b32 s{sMode}, v102")
    a(f"v_readfirstlane_b32 s{sTag}, v103")
    a(f"v_mov_b32 v{SQ + 2}, v{SQ}")
    a(f"v_mov_b32 v{SQ + 3}, v{SQ + 1}")
    a(f"v_mov_b32 v{XE + 2}, 0")
    a(f"v_permlane32_swap_b32 v{SQ}, v{SQ + 2}")
    a(f"v_permlane32_swap_b32 v{SQ + 1}, v{SQ + 3}")
    a(f"v_mov_b32 v{XE + 3}, 0")
    a(f"v_add_f32 v{SQ}, v{SQ}, v{SQ + 2}")
    a(f"v_add_f32 v{SQ + 1}, v{SQ + 1}, v{SQ + 3}")
    a.lg(f"ds_write_b64 v{vEr}, {vr(SQ, 2)}")
    a("s_mov_b32 exec_lo, 0x00030003")
    a("s_mov_b32 exec_hi, 0x00030003")
    for j in range(3):
        a.lg(f"ds_write_b128 v{vCw}, {vr(CS + 4 * j, 4)} offset:{j * 128}")
    a("s_mov_b64 exec, -1")
    mm(a, 1, WF[1] + 4, XF[1])
    for j in range(3):
        a(f"v_mov_b32 v{WF[0] + 4 * j + 2}, 0")
        a(f"v_mov_b32 v{WF[0] + 4 * j + 3}, 0")
    a.wait_all(vm=False)
    a("s_barrier")
    ts = a.lg(f"ds_read_b64 {vr(SQ + 2, 2)}, v31")
    for j in range(3):
        rt[("c", j)] = a.lg(f"ds_read_b32 v{vT + 4 + j}, v{vCr} offset:{j * 128}")
    mm(a, 2, WF[1] + 8, XF[1])
    if OPT.get("det") != 4:
        stamp(a)
    a.wait(lg=ts)
    a(f"v_add_f32 v{SQ}, v{SQ}, v{SQ + 2}")
    a(f"v_add_f32 v{SQ + 1}, v{SQ + 1}, v{SQ + 3}")
    a(f"v_mul_f32 v{SQ}, {hx(f2u(-1.0 / 512))}, v{SQ}")
    a(f"v_mul_f32 v{SQ + 1}, {hx(f2u(1.0 / 512))}, v{SQ + 1}")
    split_hi_lo(a, SQ, XE, vT, vT + 1)
    a(f"v_fma_f32 v{SQ + 1}, -v{SQ}, v{SQ}, v{SQ + 1}")
    a(f"v_cvt_pk_bf16_f32 v{XE + 1}, v{vT}, 0")
    a(f"v_max_f32 v{SQ + 1}, 0, v{SQ + 1}")
    a(f"v_add_f32 v{SQ + 1}, {hx(f2u(1e-5))}, v{SQ + 1}")
    a(f"v_rsq_f32 v100, v{SQ + 1}")
    for j in range(3):
        w = WF[0] + 4 * j
        a.wait(lg=rt[("c", j)])
        a(f"v_cvt_pk_bf16_f32 v{w + 1}, v{vT + 4 + j}, 0")
        a(f"v_lshlrev_b32 v{vT}, 16, v{w + 1}")
        a(f"v_sub_f32 v{vT}, v{vT + 4 + j}, v{vT}")
        a(f"v_cvt_pk_bf16_f32 v{w}, v{vT + 4 + j}, v{vT}")
        if j == 0:
            a.lg(f"ds_write_b32 v{vRl}, v100")
    for j in range(3):
        mm(a, j, WF[0] + 4 * j, XE)
    a(f"v_mul_f32 v101, {hx(f2u(0.25 * LOG2E))}, v100")
    for g in range(4):
        trv = a.lg(f"ds_read_b128 {vr(RV + 4 * g, 4)}, v{vRr} offset:{g * 32}")
    a("s_nop 4")
    P = 32
    for r in range(0, 16, 2):
        a(f"v_pk_mul_f32 {vr(accQ + r, 2)}, {vr(accQ + r, 2)}, v[100:101] op_sel:[0,1] op_sel_hi:[1,1]")
    for i in range(8):
        a(f"v_cvt_pk_bf16_f32 v{P + i}, v{accQ + 2 * i}, v{accQ + 2 * i + 1}")
    stores(a, [f"buffer_store_dwordx4 {vr(P, 4)}, v{vL16}, {sr(sWS, 4)}, s46 offen",
               f"buffer_store_dwordx4 {vr(P + 4, 4)}, v{vL16}, {sr(sWS, 4)}, s47 offen"])
    for r in range(0, 16, 2):
        a(f"v_pk_mul_f32 {vr(accK + r, 2)}, {vr(accK + r, 2)}, v[100:101] op_sel_hi:[1,0]")
    for i in range(8):
        a(f"v_cvt_pk_bf16_f32 v{P + 8 + i}, v{accK + 2 * i}, v{accK + 2 * i + 1}")
    stores(a, [f"buffer_store_dwordx4 {vr(P + 8, 4)}, v{vKoff}, {sr(sWS, 4)}, s38 offen",
               f"buffer_store_dwordx4 {vr(P + 12, 4)}, v{vKoff}, {sr(sWS, 4)}, s39 offen"])
    a.wait(lg=trv)
    for r in range(0, 16, 2):
        a(f"v_pk_mul_f32 {vr(accV + r, 2)}, {vr(accV + r, 2)}, {vr(RV + r, 2)}")
    for i in range(8):
        a(f"v_cvt_pk_bf16_f32 v{P + 16 + i}, v{accV + 2 * i}, v{accV + 2 * i + 1}")
    stores(a, [f"buffer_store_dwordx4 {vr(P + 16, 4)}, v{vVoff}, {sr(sWS, 4)}, s38 offen offset:1024",
               f"buffer_store_dwordx4 {vr(P + 20, 4)}, v{vVoff}, {sr(sWS, 4)}, s38 offen offset:1536"])
    loc = a.vm_issued - 1
    a.vm(f"buffer_store_dwordx4 {vr(P + 8, 4)}, v{vKoff}, {sr(sWS, 4)}, s36 offen sc1")
    a.vm(f"buffer_store_dwordx4 {vr(P + 12, 4)}, v{vKoff}, {sr(sWS, 4)}, s37 offen sc1")
    a.vm(f"buffer_store_dwordx4 {vr(P + 16, 4)}, v156, {sr(sWS, 4)}, s36 offen offset:1024 sc1")
    a.vm(f"buffer_store_dwordx4 {vr(P + 20, 4)}, v156, {sr(sWS, 4)}, s36 offen offset:1536 sc1")
    stamp(a)
    a(f"v_mov_b32 v{vT}, 0")
    a(f"v_mov_b32 v{vT + 1}, s{sTag}")
    a("s_mov_b64 exec, 1")
    if OPT["p1_cnt"]:
        a.wait(vm=loc)
    else:
        a.wait_all(lg=False)
    stores(a, [f"buffer_store_dword v{vT + 1}, v{vT}, {sr(sWS, 4)}, s48 offen"])
    if OPT.get("det") == 4:
        stamp(a)
    a("s_mov_b64 exec, -1")
    return a, odd, h, x


def phase2(a, l, h):
    sHead, sQb, sKh, sQs = 25, 26, 27, 28
    sVm = 34
    vKrd, vVrd, vIdx, vXw, vXr = 3, 4, 5, 6, 7
    Qf = [8, 12]
    Kf, Vf = 16, 32
    S = [64, 80]
    O = [96, 112]
    NEG = 128
    T = 144
    XCH = 131072
    BARS, CB = [[6, 12, 28], {2: 1, 4: 3}] if OPT["p2_sched"] == 0 else [[6, 14, 22, 36], {2: 1, 3: 2, 5: 4}]
    SYN = XCH + 7 * 3072 + 2048 + 4
    h(f"v_mov_b32 v22, {SYN}")
    h("v_mov_b32 v23, 0")
    for off in (0, 4, 8, 32, 16, 20, 24, 48):
        h(f"ds_write_b32 v22, v23 offset:{off}")

    def ready(half, n):
        h(f"v_mov_b32 v23, {n}")
        h(f"ds_write_b32 v22, v23 offset:{16 * half}")

    wl_n = [0]

    def wait_lds(off, n):
        wl_n[0] += 1
        k = wl_n[0]
        h("s_mov_b32 s58, 0x100000")
        h.label(f"L_prog{k}")
        h(f"ds_read_b32 v24, v22 offset:{off}")
        h("s_sub_u32 s58, s58, 1")
        h("s_waitcnt lgkmcnt(0)")
        h("v_readfirstlane_b32 s37, v24")
        h("s_cmp_eq_u32 s58, 0")
        h(f"s_cbranch_scc1 L_prog{k}_x")
        h(f"s_cmp_ge_u32 s37, {n}")
        h(f"s_cbranch_scc1 L_prog{k}_x")
        h(f"s_sleep {OPT['aux_sl']}")
        h(f"s_branch L_prog{k}")
        h.label(f"L_prog{k}_x")

    def wait_prog(k):
        for half in range(2):
            wait_lds((8 if k == 0 else 32) + 16 * half, 4)

    h(f"s_lshr_b32 s{sHead}, s2, 3")
    h(f"s_mul_i32 s33, s{sHead}, {HS()}")
    h(f"s_add_u32 s33, s33, {KVG}")
    h(f"s_lshr_b32 s61, s{sHead}, 1")
    h("s_lshl_b32 s61, s61, 10")
    h(f"s_add_u32 s61, s61, {FG1}")
    h(f"v_lshrrev_b32 v6, 3, v{vLane}")
    h("v_lshlrev_b32 v6, 7, v6")
    h(f"v_and_b32 v7, 7, v{vLane}")
    h("v_lshl_add_u32 v6, v7, 2, v6")
    h("s_mov_b64 s[62:63], 0")
    h("s_mov_b32 s59, 0x40000")
    h("s_waitcnt lgkmcnt(0)")
    h("s_barrier")
    h.nostamp = OPT.get("det") != 3
    stamp(h)
    items = [(0, 1, None), (1, 1, None), (0, 2, None), (0, 3, (0, 1)), (0, 4, (0, 2)), (1, 2, (0, 3)), (1, 3, (1, 1)),
             (1, 4, (1, 2)), (0, 5, None), (0, 6, None), (1, 5, None), (0, 7, None), (1, 6, None), (1, 7, None), (0, 8, None)]
    if OPT["kv_gate"] == 0:
        items = [(hf, c, None) for c in range(1, 8) for hf in range(2)] + [(0, 8, None)]
    if OPT["kv_gate"] == 3:
        items = [(0, 1, None), (1, 1, None), (0, 2, None), (1, 2, None), (0, 3, (0, 2)), (0, 4, None), (1, 3, (0, 3)), (1, 4, None),
                 (0, 5, (1, 2)), (0, 6, None), (1, 5, None), (0, 7, None), (1, 6, None), (1, 7, None), (0, 8, None)]
    if OPT["kv_gate"] == 4:
        items = [(0, 1, None), (1, 1, None), (0, 2, None), (0, 3, (0, 1)), (1, 2, None), (0, 4, (0, 2)), (1, 3, None), (1, 4, None),
                 (0, 5, None), (0, 6, None), (1, 5, None), (0, 7, None), (1, 6, None), (1, 7, None), (0, 8, None)]
    if OPT["kv_gate"] == 2:
        items = [(hf, c, None) for hf, c, _ in items]
    pend = []

    def flush(keep):
        while len(pend) > keep:
            hf, c, tok = pend.pop(0)
            h.wait(vm=tok)
            ready(hf, c)

    for n, (half, c, gate) in enumerate(items):
        if gate:
            flush(0)
            wait_lds(4 + 16 * gate[0], gate[1])
        h(f"s_add_u32 s36, s2, {c}")
        h("s_and_b32 s36, s36, 7")
        h("s_lshl_b32 s36, s36, 3")
        if half == 0:
            h("s_bitcmp1_b64 s[62:63], s36")
            h(f"s_cbranch_scc1 L_g1_have{c}")
            h.label(f"L_g1_poll{c}")
            h(f"buffer_load_dword v7, v6, {sr(sWS, 4)}, s61 offen sc1")
            h("s_sub_u32 s59, s59, 1")
            h("s_waitcnt vmcnt(0)")
            for hf, cc, _ in pend:
                ready(hf, cc)
            h(f"v_cmp_eq_u32 vcc, s{sTag}, v7")
            h("s_cmp_eq_u32 s59, 0")
            h("s_cselect_b64 s[62:63], -1, vcc")
            h("s_cselect_b32 s59, 1, s59")
            for sh in (1, 2, 4):
                h(f"s_lshr_b64 s[34:35], s[62:63], {sh}")
                h("s_and_b64 s[62:63], s[62:63], s[34:35]")
            h("s_bitcmp1_b64 s[62:63], s36")
            h(f"s_cbranch_scc0 L_g1_poll{c}")
            h.label(f"L_g1_have{c}")
        if n in (0, 3, 8, 14):
            stamp(h)
        if c == 8:
            break
        h("s_lshl_b32 s36, s36, 11")
        h("s_add_u32 s36, s36, s33")
        for q in range(2):
            h(f"s_mov_b32 m0, {half * 65536 + c * 8192 + q * 4096}")
            h(f"s_add_u32 s37, s36, {half * 8192 + q * 4096}")
            for i in range(4):
                tok = h.vm(f"buffer_load_dwordx4 v{vL16}, {sr(sWS, 4)}, s37 offen offset:{i * 1024} sc1 lds")
        pend.append((half, c, tok))
        flush(OPT['kv_fl'])
    if not OPT['early_t']:
        touch_setup(h)
    h(f"v_lshrrev_b32 v8, 3, v{vLane}")
    h(f"v_and_b32 v9, 7, v{vLane}")
    h(f"v_lshrrev_b32 v10, 2, v{vLane}")
    h("v_and_b32 v10, 4, v10")
    h("v_xor_b32 v10, v10, v9")
    h("v_lshlrev_b32 v10, 4, v10")
    h("v_lshl_add_u32 v10, v8, 10, v10")
    h("v_lshrrev_b32 v11, 1, v8")
    h("v_xor_b32 v11, v11, v9")
    h("v_lshlrev_b32 v11, 4, v11")
    h("v_lshl_add_u32 v11, v8, 10, v11")
    h("v_xor_b32 v12, 64, v11")
    h(f"v_and_b32 v13, 2, v{vLane}")
    h("v_lshlrev_b32 v13, 5, v13")
    h("v_sub_u32 v13, 32, v13")
    h("s_lshr_b32 s61, s2, 4")
    h("s_mul_i32 s61, s61, 192")
    for i in range(3):
        h(f"v_add_u32 v14, {64 * i}, v{vLane}")
        h("v_mul_u32_u24 v14, 171, v14")
        h("v_lshrrev_b32 v14, 11, v14")
        h(f"v_mul_u32_u24 v14, {2752 - 192}, v14")
        h(f"v_add3_u32 v{16 + i}, v{vL16}, v14, s61")
        h(f"v_add_u32 v{19 + i}, v{16 + i}, v13")
    h("s_bfe_u32 s60, s2, 0x30003")
    h("s_lshl_b32 s60, s60, 7")
    flush(0)
    stamp(h)
    if not OPT['early_t']:
        touch_weights(h)
    if OPT["touch_out"]:
        h("s_and_b32 s58, s2, 7")
        for base, gsz, per, n in ((HF, 262144, 8192, 1), (GF, 8 * 86 * 1024, 22016, 3))[:1 if OPT["gf_late"] else 2]:
            h(f"s_mul_i32 s{sT1}, s{sT0}, {per}")
            h(f"s_mul_i32 s36, s58, {gsz}")
            h(f"s_add_u32 s36, s36, s{sT1}")
            h(f"s_add_u32 s36, s36, {base}")
            for i in range(n):
                h.vm(f"buffer_load_dword v5, v3, {sr(sWS, 4)}, s36 offen {['', '', 'nt', 'sc1'][OPT['touch_out']]}")
                if i + 1 < n:
                    h("s_add_u32 s36, s36, 0x2000")
    if OPT["touch2"]:
        h("v_lshrrev_b32 v4, 3, v1")
        h("v_lshlrev_b32 v4, 15, v4")
        h("v_and_b32 v6, 7, v1")
        h("v_lshl_add_u32 v4, v6, 7, v4")
        h("s_and_b32 s36, s2, 7")
        h("s_lshl_b32 s36, s36, 18")
        h(f"s_lshl_b32 s{sT1}, s{sHead}, 10")
        h(f"s_add_u32 s36, s36, s{sT1}")
        h(f"s_add_u32 s36, s36, {OF}")
        h.vm(f"buffer_load_dword v5, v4, {sr(sWS, 4)}, s36 offen")
        h("s_lshl_b32 s36, s2, 10")
        h(f"s_add_u32 s36, s36, {ST}")
        h("s_mov_b64 exec, 0xff")
        h.vm(f"buffer_load_dword v5, v3, {sr(sWS, 4)}, s36 offen")
        h("s_mov_b64 exec, -1")
    h(f"s_lshl_b32 s{sT1}, s{sT0}, 11")
    h(f"v_add_u32 v4, s{sT1}, v3")
    h("s_mov_b64 exec, 0xffff")
    code_prefetch(h, "L_p2_tail", 38, 4, 5, "p2")
    h("s_mov_b64 exec, -1")
    stamp(h)
    wait_prog(0)
    stamp(h)
    for half in range(2):
        h(f"s_mov_b32 m0, {half * 65536}")
        h(f"s_add_u32 s36, s60, {half * 32 * 8192}")
        h("s_mov_b32 s37, 32")
        h.label(f"L_pre_wo{half}")
        h(f"buffer_load_dwordx4 v10, {sr(16, 4)}, s36 offen lds")
        h("s_add_u32 m0, m0, 1024")
        h("s_add_u32 s36, s36, 8192")
        h("s_sub_u32 s37, s37, 1")
        h("s_cmp_lg_u32 s37, 0")
        h(f"s_cbranch_scc1 L_pre_wo{half}")
        h("s_waitcnt vmcnt(16)")
    h("s_lshr_b32 s36, s2, 6")
    h("s_lshl_b32 s36, s36, 16")
    h("s_add_u32 s36, s36, s60")
    for i in range(8):
        h(f"s_mov_b32 m0, {RES3 + i * 1024}")
        h(f"s_add_u32 s37, s36, {i * 8192}")
        h(f"buffer_load_dwordx4 v{11 + (i & 1)}, {sr(44, 4)}, s37 offen lds")
    h("s_waitcnt vmcnt(16)")
    h("s_cmp_ge_u32 s2, 240")
    h("s_cbranch_scc1 L_pre_end")
    stamp(h)
    wait_prog(1)
    stamp(h)
    for st in range(4):
        for g2 in range(2):
            for mat in range(2):
                h(f"s_mov_b32 m0, {WS4[st] + (g2 * 2 + mat) * 3072}")
                h(f"s_mov_b32 s36, {(st * 32 + g2 * 16) * 2752}")
                for i in range(3):
                    h(f"buffer_load_dwordx4 v{16 + 3 * mat + i}, {sr(20 if mat == 0 else 48, 4)}, s36 offen offset:{i * 1024} lds")
        h("s_waitcnt vmcnt(40)")
    stamp(h)
    h.label("L_pre_end")
    h("s_waitcnt vmcnt(0)")
    if OPT.get("det") == 3:
        h(f"s_mov_b32 s{sWave}, 4")
        stamp_flush(h)
    h("s_endpgm")

    def init(b):
        b(f"s_lshr_b32 s{sHead}, s2, 3")
        b(f"s_and_b32 s{sQb}, s2, 7")
        b(f"s_lshr_b32 s{sKh}, s{sWave}, 2")
        b(f"s_and_b32 s{sQs}, s{sWave}, 3")
        b(f"v_and_b32 v{T}, 27, v{vLane}")
        b(f"v_cmp_eq_u32 vcc, 16, v{T}")
        b(f"v_mov_b32 v{T}, 0x3f803f80")
        b(f"v_mov_b32 v{vIdx}, 0xdddd")
        for r in range(32):
            b(f"v_cndmask_b32 v{Vf + r}, 0, v{T}, vcc")
        b(f"s_mov_b32 s{sVm}, 0x0000ffff")
        b(f"s_mov_b32 s{sVm + 1}, 0x0000ffff")
        b(f"s_lshl_b32 s{sT0}, s{sKh}, 16")
        b(f"v_add_u32 v{vKrd}, s{sT0}, v{vL16}")
        b(f"v_lshrrev_b32 v{T}, 5, v{vLane}")
        b(f"v_and_b32 v{T + 1}, 15, v{vLane}")
        b(f"v_lshlrev_b32 v{T + 1}, 4, v{T + 1}")
        b(f"v_lshl_add_u32 v{T}, v{T}, 8, v{T + 1}")
        b(f"v_add_u32 v{vVrd}, s{sT0}, v{T}")
        b(f"s_mul_i32 s{sT0}, s{sWave}, 3072")
        b(f"s_add_u32 s{sT0}, s{sT0}, {XCH}")
        b(f"v_add_u32 v{vXw}, s{sT0}, v{vL16}")
        b(f"s_xor_b32 s{sT1}, s{sWave}, 4")
        b(f"s_mul_i32 s{sT0}, s{sT1}, 3072")
        b(f"s_add_u32 s{sT0}, s{sT0}, {XCH}")
        b(f"v_add_u32 v{vXr}, s{sT0}, v{vL16}")
        b(f"s_lshl_b32 s{sT0}, s{sQs}, 1")
        b(f"s_add_u32 s{sT0}, s{sT0}, s{sKh}")
        b(f"s_lshl_b32 s{sT0}, s{sT0}, 10")
        b(f"s_add_u32 s{sT0}, s{sT0}, {XCH}")
        b(f"v_add_u32 v{T + 2}, s{sT0}, v{vL16}")
        b(f"v_xor_b32 v{T + 3}, 1024, v{T + 2}")
        b(f"s_lshl_b32 s{sT0}, s{sKh}, 4")
        b(f"s_add_u32 s{sT0}, s{sT0}, {SYN}")
        b(f"v_mov_b32 v{T + 6}, s{sT0}")
        b(f"v_mov_b32 v{T + 7}, 1")
        for c in range(2):
            for r in range(16):
                b(f"v_mov_b32 v{O[c] + r}, 0")
        b(f"s_lshl_b32 s57, s{sQb}, 2")
        b(f"s_add_u32 s57, s57, s{sQs}")
        b(f"s_lshl_b32 s55, s57, 8")
        b(f"s_lshl_b32 s{sT1}, s{sHead}, 1")
        b(f"s_add_u32 s{sT1}, s{sT1}, s{sKh}")
        b(f"s_lshl_b32 s{sT1}, s{sT1}, 2")
        b(f"s_add_u32 s55, s55, s{sT1}")
        b(f"s_add_u32 s55, s55, {F2}")
        b(f"s_lshl_b32 s57, s57, 1")
        b(f"s_add_u32 s57, s57, s{sKh}")
        b(f"s_lshl_b32 s57, s57, 15")
        b(f"s_lshl_b32 s{sT1}, s{sHead}, 10")
        b(f"s_add_u32 s57, s57, s{sT1}")
        b(f"s_add_u32 s57, s57, {OF}")

    init(l)
    l(f"s_lshl_b32 s40, s{sQb}, 9")
    l(f"s_lshr_b32 s{sT0}, s{sHead}, 1")
    l(f"s_lshl_b32 s{sT0}, s{sT0}, 5")
    l(f"s_add_u32 s40, s40, s{sT0}")
    l(f"s_add_u32 s40, s40, {FL1}")
    l(f"s_lshl_b32 s36, s{sHead}, 17")
    l(f"s_lshl_b32 s{sT0}, s{sQb}, 14")
    l(f"s_add_u32 s36, s36, s{sT0}")
    l(f"s_lshl_b32 s{sT0}, s{sQs}, 12")
    l(f"s_add_u32 s36, s36, s{sT0}")
    l(f"s_lshr_b32 s37, s36, 1")
    l(f"s_add_u32 s36, s36, {KVL}")
    if QF:
        l(f"s_add_u32 s37, s37, {QF}")
    l(f"s_lshr_b32 s38, s{sQs}, 1")
    l("s_lshl_b32 s38, s38, 16")
    l(f"s_and_b32 s{sT0}, s{sQs}, 1")
    l(f"s_lshl_b32 s{sT0}, s{sT0}, 12")
    l(f"s_add_u32 s38, s38, s{sT0}")
    l(f"s_lshl_b32 s39, s{sQs}, 11")
    l(f"s_add_u32 s39, s39, {XCH}")
    l(f"v_lshlrev_b32 v{T + 4}, 2, v{vLane}")
    l("s_mov_b32 s59, 0x40000")
    l("s_mov_b64 exec, 0xff")
    l.label("L_poll_l1")
    l(f"buffer_load_dword v{T + 5}, v{T + 4}, {sr(sWS, 4)}, s40 offen sc1")
    l("s_sub_u32 s59, s59, 1")
    l.wait_all(lg=False)
    l(f"v_cmp_ne_u32 vcc, s{sTag}, v{T + 5}")
    l("s_cmp_eq_u32 s59, 0")
    l("s_cbranch_scc1 L_poll_l1_x")
    l("s_cbranch_vccnz L_poll_l1")
    l.label("L_poll_l1_x")
    if OPT.get("det") != 2:
        stamp(l)
    l("s_mov_b64 exec, -1")
    l("s_mov_b32 m0, s39")
    l("s_nop 0")
    for i in range(2):
        l.vm(f"buffer_load_dwordx4 v{vL16}, {sr(sWS, 4)}, s37 offen offset:{i * 1024} sc1 lds")
    l("s_mov_b32 m0, s38")
    l("s_nop 0")
    for i in range(4):
        l.vm(f"buffer_load_dwordx4 v{vL16}, {sr(sWS, 4)}, s36 offen offset:{i * 1024} sc1 lds")
    l.wait_all()
    if OPT.get("det") != 2:
        stamp(l)
    l("s_branch L_p2_b0")
    init(a)
    a(f"v_mov_b32 v{T + 4}, 0")
    a(f"v_mov_b32 v{T + 5}, s{sTag}")

    def gflag():
        a.wait_all(lg=False)
        a("s_mov_b64 exec, 1")
        a.vm(f"buffer_store_dword v{T + 5}, v{T + 4}, {sr(sWS, 4)}, s49 offen sc1")
        a("s_mov_b64 exec, -1")

    if not OPT["p2_defer"]:
        gflag()
    if OPT.get("det") == 4:
        stamp(a)
    a.label("L_p2_b0")

    def emit_pair(p, extra=()):
        for t in (2 * p, 2 * p + 1):
            a.lg(f"ds_read_b128 {vr(Kf + 4 * (t & 3), 4)}, v{vKrd} offset:{t * 2048}")
        a(f"s_mov_b64 exec, {sr(sVm, 2)}")
        for t in (2 * p, 2 * p + 1):
            a.lg(f"ds_read_b128 {vr(Vf + 8 * (t & 3), 4)}, v{vVrd} offset:{t * 2048 + 1024}")
            tok = a.lg(f"ds_read_b128 {vr(Vf + 8 * (t & 3) + 4, 4)}, v{vVrd} offset:{t * 2048 + 1536}")
        if extra:
            a("s_mov_b64 exec, 1")
            for e in extra:
                a.lg(e)
        a("s_mov_b64 exec, -1")
        return tok

    def qk(u):
        t, c = divmod(u, 2)
        return f"v_mfma_f32_32x32x16_bf16 {vr(S[u & 1], 16)}, {vr(Kf + 4 * (t & 3), 4)}, {vr(Qf[c], 4)}, 0"

    def pv(u, i):
        t, c = divmod(u, 2)
        return (f"v_smfmac_f32_32x32x32_bf16 {vr(O[c], 16)}, {vr(Vf + 8 * (t & 3) + 4 * i, 4)}, "
                f"{vr(S[u & 1] + 8 * i, 8)}, v{vIdx}")

    NU = 64
    PRIO = [{0: 2, 29: 1, 53: 0}, {0: 2, 29: 1, 60: 0}, {0: 3, 29: 2, 53: 1, 61: 0}][OPT["p2_pr"]]
    rtok = {}

    def need(u, n):
        a.wait(lg=rtok[u])
        a.label(f"L_rdy{u}")
        a(f"v_readfirstlane_b32 s36, v{T + 8}")
        a("s_nop 0")
        a(f"s_cmp_ge_u32 s36, {n}")
        a(f"s_cbranch_scc0 L_rdy{u}_spin")
        sp.label(f"L_rdy{u}_spin")
        sp("s_sleep 2")
        sp(f"ds_read_b32 v{T + 8}, v{T + 6}")
        sp("s_sub_u32 s59, s59, 1")
        sp("s_waitcnt lgkmcnt(0)")
        sp("s_cmp_lg_u32 s59, 0")
        sp(f"s_cbranch_scc1 L_rdy{u}")
        sp("s_mov_b32 s59, 1")
        sp(f"v_mov_b32 v{T + 8}, 7")
        sp("s_nop 0")
        sp(f"s_branch L_rdy{u}")

    sp = Asm()
    a("s_mov_b32 s59, 0x100000")
    a("s_barrier")
    stamp(a)
    a.lg(f"ds_read_b128 {vr(Qf[0], 4)}, v{T + 2}")
    a.lg(f"ds_read_b128 {vr(Qf[1], 4)}, v{T + 3}")
    ptok = {0: emit_pair(0)}
    a.wait(lg=ptok[0] - 5)
    a(qk(0))
    if OPT["p2_defer"]:
        a(f"s_cmp_lg_u32 s{sKh}, 0")
        a("s_cbranch_scc1 L_p2_nogf")
        gflag()
        a.label("L_p2_nogf")
    a.wait(lg=ptok[0])
    a("s_nop 9")
    for u in range(NU):
        X = S[u & 1]
        p, pu = divmod(u, 4)
        if u in PRIO:
            a(f"s_setprio {PRIO[u]}")
        ex = [f"v_exp_f32 v{X + i}, v{X + i}" for i in range(16)]
        a(ex[0]); a(ex[1])
        if u > 0:
            a(pv(u - 1, 1))
        a(ex[2]); a(ex[3]); a(ex[4])
        if u + 1 < NU:
            if pu == 3:
                a.wait(lg=ptok[p + 1])
            a(qk(u + 1))
        late = p + 1 == 2
        if p + 1 < 16 and pu == (2 if late else 0):
            if (p + 1) % 2 == 0:
                need(u, (p + 1) // 2)
            extra = []
            if u in (28, 52):
                extra.append(f"ds_add_u32 v{T + 6}, v{T + 7} offset:{8 if u == 28 else 32}")
            if (p + 1) % 2 == 1 and (p + 2) // 2 <= 3 and OPT["kv_gate"] in (1, 3, 4):
                a(f"v_mov_b32 v{T + 9}, {(p + 2) // 2}")
                extra.append(f"ds_max_u32 v{T + 6}, v{T + 9} offset:4")
            ptok[p + 1] = emit_pair(p + 1, extra)
        nu = u + 1
        if nu < NU and (nu // 4 + 1) % 2 == 0 and nu // 4 + 1 < 16 and nu % 4 == (2 if nu // 4 + 1 == 2 else 0):
            rtok[nu] = a.lg(f"ds_read_b32 v{T + 8}, v{T + 6}")
        for i in range(5, 10):
            a(ex[i])
        a(pv(u, 0))
        for i in range(10, 16):
            a(ex[i])
    a.label("L_p2_tail")
    a("s_nop 1")
    a(pv(NU - 1, 1))
    a(f"s_mov_b32 s{sT0}, {hx(f2u(2.0 ** 80))}")
    a(f"s_mov_b32 s{sT1}, {hx(f2u(2.0 ** -80))}")
    a("s_mov_b32 s56, 0")
    a("s_nop 8")
    a.lg(f"ds_write_b128 v{vXw}, {vr(O[1], 4)}")
    a.lg(f"ds_write_b128 v{vXw}, {vr(O[1] + 4, 4)} offset:1024")
    a.lg(f"ds_write_b32 v{vXw}, v{O[1] + 8} offset:2048")
    a.wait_all(vm=False)
    a("s_barrier")
    t2 = a.lg(f"ds_read_b32 v{T + 8}, v{vXr} offset:2048")
    a.lg(f"ds_read_b128 {vr(T, 4)}, v{vXr}")
    t1 = a.lg(f"ds_read_b128 {vr(T + 4, 4)}, v{vXr} offset:1024")
    a.wait(lg=t2)
    a(f"v_add_f32 v{O[0] + 8}, v{O[0] + 8}, v{T + 8}")
    a.wait(lg=t1)
    for r in range(0, 8, 2):
        a(f"v_pk_add_f32 {vr(O[0] + r, 2)}, {vr(O[0] + r, 2)}, {vr(T + r, 2)}")
    a.label("L_p2_finish")
    a(f"v_rcp_f32 v{T + 8}, v{O[0] + 8}")
    a(f"v_cmp_gt_f32 s[40:41], s{sT0}, v{O[0] + 8}")
    a(f"v_cmp_lt_f32 s[42:43], s{sT1}, v{O[0] + 8}")
    for r in range(0, 8, 2):
        a(f"v_pk_mul_f32 {vr(O[0] + r, 2)}, {vr(O[0] + r, 2)}, {vr(T + 8, 2)} op_sel_hi:[1,0]")
    for i in range(4):
        a(f"v_cvt_pk_bf16_f32 v{T + 4 + i}, v{O[0] + 2 * i}, v{O[0] + 2 * i + 1}")
    a(f"v_dot2_f32_bf16 v{T}, v{T + 4}, v{T + 4}, 0")
    for i in range(1, 4):
        a(f"v_dot2_f32_bf16 v{T}, v{T + 4 + i}, v{T + 4 + i}, v{T}")
    a("s_and_b64 s[40:41], s[40:41], s[42:43]")
    a("s_cmp_lg_u32 s56, 0")
    a("s_cbranch_scc1 L_p2_store")
    a(f"v_cmp_gt_f32 vcc, s{sT0}, v{T}")
    a("s_nop 0")
    a("s_and_b64 s[40:41], s[40:41], vcc")
    a("s_cmp_eq_u64 s[40:41], -1")
    a("s_cbranch_scc0 L_p2_fallback")
    a.label("L_p2_store")
    stores(a, [f"buffer_store_dwordx4 {vr(T + 4, 4)}, v{vL16}, {sr(sWS, 4)}, s57 offen"])
    a("s_barrier")
    stamp(a)

    f = Asm()
    f.label("L_p2_fallback")
    vV2, vM = T + 11, T + 12
    f(f"s_lshl_b32 s37, s{sKh}, 16")
    f(f"v_subrev_u32 v{vV2}, s37, v{vVrd}")
    f(f"s_mul_i32 s36, s{sHead}, {HS()}")
    f(f"s_add_u32 s36, s36, {KVG}")
    f(f"v_mov_b32 v{vM}, 0xff800000")
    f("s_mov_b32 s56, 0")
    f("s_mov_b32 s37, s36")
    f.label("L_p2_fb_max")
    f(f"buffer_load_dwordx4 {vr(Kf, 4)}, v{vL16}, {sr(sWS, 4)}, s37 offen sc1")
    f("s_waitcnt vmcnt(0)")
    f(f"v_mfma_f32_32x32x16_bf16 {vr(S[0], 16)}, {vr(Kf, 4)}, {vr(Qf[0], 4)}, 0")
    f("s_nop 15")
    for i in range(8):
        f(f"v_max3_f32 v{vM}, v{vM}, v{S[0] + 2 * i}, v{S[0] + 2 * i + 1}")
    f("s_add_u32 s37, s37, 2048")
    f("s_add_u32 s56, s56, 1")
    f("s_cmp_lt_u32 s56, 64")
    f("s_cbranch_scc1 L_p2_fb_max")
    f(f"v_mov_b32 v{T}, v{vM}")
    f("s_nop 1")
    f(f"v_permlane32_swap_b32 v{vM}, v{T}")
    f("s_nop 1")
    f(f"v_max_f32 v{vM}, v{vM}, v{T}")
    for r in range(16):
        f(f"v_sub_f32 v{NEG + r}, 0, v{vM}")
        f(f"v_mov_b32 v{O[0] + r}, 0")
    f("s_mov_b32 s56, 0")
    f("s_mov_b32 s37, s36")
    f.label("L_p2_fb_pv")
    f(f"buffer_load_dwordx4 {vr(Kf, 4)}, v{vL16}, {sr(sWS, 4)}, s37 offen sc1")
    f(f"s_mov_b64 exec, {sr(sVm, 2)}")
    f(f"buffer_load_dwordx4 {vr(Vf, 4)}, v{vV2}, {sr(sWS, 4)}, s37 offen offset:1024 sc1")
    f(f"buffer_load_dwordx4 {vr(Vf + 4, 4)}, v{vV2}, {sr(sWS, 4)}, s37 offen offset:1536 sc1")
    f("s_mov_b64 exec, -1")
    f("s_waitcnt vmcnt(0)")
    f(f"v_mfma_f32_32x32x16_bf16 {vr(S[0], 16)}, {vr(Kf, 4)}, {vr(Qf[0], 4)}, {vr(NEG, 16)}")
    f("s_nop 15")
    for i in range(16):
        f(f"v_exp_f32 v{S[0] + i}, v{S[0] + i}")
    f("s_nop 1")
    f(f"v_smfmac_f32_32x32x32_bf16 {vr(O[0], 16)}, {vr(Vf, 4)}, {vr(S[0], 8)}, v{vIdx}")
    f(f"v_smfmac_f32_32x32x32_bf16 {vr(O[0], 16)}, {vr(Vf + 4, 4)}, {vr(S[0] + 8, 8)}, v{vIdx}")
    f("s_nop 15")
    f("s_add_u32 s37, s37, 2048")
    f("s_add_u32 s56, s56, 1")
    f("s_cmp_lt_u32 s56, 64")
    f("s_cbranch_scc1 L_p2_fb_pv")
    f("s_branch L_p2_finish")
    f.lines += sp.lines
    return f


def phase_res(a, h, k3, pre_publish=None):
    uid = "p3" if k3 else "p5"
    KS = 32 if k3 else 86
    ACT = OF if k3 else GF
    NST = (KS + 3) // 4
    NA = OPT["p5_na"]
    WSL = WS3 if k3 else WS5[:19 - NA]
    NW = len(WSL)
    if k3:
        ASL = [(122880, -9), (131072, -9), (139264, -9), (147456, -9), (57344, -9), (122880, 0), (WS3[0], 0), (131072, 1)]
    else:
        ASL = [(163840 - NA * 8192 + (n % NA) * 8192, n - NA if n >= NA else -9) for n in range(NST)]
    RESO = RES3 if k3 else 24576
    busy = {WSL[(NST - 1) % NW], WSL[(NST - 2) % NW]}
    TRO = [o for o in WSL if o + 8192 in WSL and not ({o, o + 8192} & busy)][0]
    sW, sIO = 16, 20
    sWr, sWc, sRb, sCb = 25, 26, 27, 28
    T = 12
    for b in (a, h):
        b(f"s_and_b32 s{sT0}, s2, 7")
        b(f"s_lshl_b32 s{sRb}, s{sT0}, 2")
        b(f"s_lshr_b32 s34, s2, 6")
        b(f"s_add_u32 s{sRb}, s{sRb}, s34")
        b(f"s_bfe_u32 s{sCb}, s2, 0x30003")
        b(f"s_and_b32 s{sWr}, s{sWave}, 1")
        b(f"s_bfe_u32 s{sWc}, s{sWave}, 0x10001")
    vWoff, vXg = 3, 5
    h(f"v_lshrrev_b32 v{T}, 3, v{vLane}")
    h(f"v_and_b32 v{T + 1}, 7, v{vLane}")
    h(f"v_lshrrev_b32 v{T + 2}, 2, v{vLane}")
    h(f"v_and_b32 v{T + 2}, 4, v{T + 2}")
    h(f"v_xor_b32 v{T + 2}, v{T + 2}, v{T + 1}")
    h(f"v_lshlrev_b32 v{T + 2}, 4, v{T + 2}")
    h(f"v_lshl_add_u32 v{T + 2}, v{T}, 10, v{T + 2}")
    h(f"s_mul_i32 s44, s{sHw}, {3 * 16384}")
    h(f"s_lshl_b32 s{sT0}, s{sCb}, 7")
    h(f"v_add_u32 v{vWoff}, s{sT0}, v{T + 2}")
    h(f"v_add_u32 v{vWoff + 1}, {8192 - 1024}, v{vWoff}")
    h(f"s_lshl_b32 s32, s{sHw}, 11")
    h(f"s_lshl_b32 s33, s{sRb}, 1")
    h(f"s_add_u32 s33, s33, s{sWr}")
    h(f"s_mul_i32 s34, s33, {KS * 1024}")
    h(f"s_lshl_b32 s{sT1}, s{sWc}, 11")
    h(f"s_add_u32 s34, s34, s{sT1}")
    h(f"s_add_u32 s34, s34, {ACT}")
    h(f"s_lshl_b32 s35, s{sWr}, 12")
    h(f"s_add_u32 s35, s35, s{sT1}")
    if k3:
        pass
    else:
        h(f"s_lshl_b32 s36, s33, 15")
        h(f"s_lshl_b32 s{sT0}, s{sCb}, 12")
        h(f"s_add_u32 s36, s36, s{sT0}")
        h(f"s_add_u32 s36, s36, s{sT1}")
        h(f"s_add_u32 s36, s36, {HF}")
    srd(h, sW, KWO if k3 else KD, KS * 16 * 1024)
    if pre_publish is not None:
        publish(h, pre_publish, T + 4)
    dr = Drip(h)

    def issue_w(st):
        cl = [(4 * st + w >= 29) + (4 * st + w >= 58) for w in range(4)]
        pre = [f"s_add_u32 s42, s44, {hx((12 * st - 86 * cl[0]) * 16384)}"]
        if cl[3] != cl[0]:
            pre += [f"s_add_u32 s45, s44, {hx((12 * st - 86 * cl[3]) * 16384)}", f"s_cmp_ge_u32 s{sHw}, {cl.index(cl[3])}",
                    "s_cselect_b32 s42, s45, s42"]
        dr.add(st, [f"s_add_u32 m0, s32, {WSL[st % NW]}"] + pre,
               f"buffer_load_dwordx4 v{vWoff}, {sr(sW, 4)}, s42 offen lds")
        dr.add(st, [], f"buffer_load_dwordx4 v{vWoff + 1}, {sr(sW, 4)}, s42 offen offset:1024 lds")

    def issue_a(st):
        dr.add(st, [f"s_add_u32 m0, s35, {ASL[st][0]}", f"s_add_u32 s43, s34, {st * 4096}"],
               f"buffer_load_dwordx4 v{vL16}, {sr(sWS, 4)}, s43 offen {LD()} lds")
        dr.add(st, [], f"buffer_load_dwordx4 v{vL16}, {sr(sWS, 4)}, s43 offen offset:1024 {LD()} lds")

    if not k3:
        for st in range(NW):
            issue_w(st)
    dr.emit(100)
    if not OPT.get("det"):
        stamp(h)
    if k3:
        h("s_barrier")
    else:
        h(f"s_lshl_b32 s40, s{sRb}, 9")
        h(f"s_add_u32 s40, s40, {F4}")
        poll(h, 40, T + 4, "p5l", 30, every=True, barrier=False)
    if not OPT.get("det"):
        stamp(h)
    AHEAD = OPT["p3_a"] if k3 else OPT["p5_a"]
    nxt_a = 0
    for st in range(NST):
        while nxt_a <= min(st + AHEAD, NST - 1):
            if not k3 and ((nxt_a >= 7 and st <= 2) or (nxt_a >= 14 and st <= OPT["p5_c2"])):
                break
            if ASL[nxt_a][1] > st - 3:
                break
            issue_a(nxt_a)
            nxt_a += 1
        if not k3 and st == 1:
            dr.add(4, [f"s_add_u32 m0, s35, {RESO}", "s_nop 0"], f"buffer_load_dwordx4 v{vL16}, {sr(sWS, 4)}, s36 offen {LD()} lds")
            dr.add(4, [], f"buffer_load_dwordx4 v{vL16}, {sr(sWS, 4)}, s36 offen offset:1024 {LD()} lds")
        dr.emit(100)
        h.wait(vm=dr.tok[st])
        h("s_barrier")
        if st >= 2 and st - 2 + NW < NST:
            issue_w(st - 2 + NW)
    if k3:
        h("s_barrier")
    RST = 0 if k3 else 4
    vWrd, vAr, vRr, vTw, vTr, vOut = [3, 4], [5, 6, 22], [7, 8], 9, 10, 11
    ID = 24
    FR = [32, 72]
    acc = 112
    a(f"v_and_b32 v{T}, 31, v{vLane}")
    a(f"v_lshrrev_b32 v{T + 1}, 5, v{vLane}")
    a(f"v_bfe_u32 v{T + 2}, v{vLane}, 2, 2")
    a(f"v_lshl_add_u32 v{T + 3}, v{T + 1}, 2, v{T + 2}")
    a(f"v_lshlrev_b32 v{T + 3}, 7, v{T + 3}")
    a(f"v_bfe_u32 v{T + 4}, v{vLane}, 4, 1")
    a(f"v_lshl_add_u32 v{T + 3}, v{T + 4}, 5, v{T + 3}")
    a(f"v_and_b32 v{T + 4}, 3, v{vLane}")
    a(f"v_lshl_add_u32 v{T + 3}, v{T + 4}, 3, v{T + 3}")
    a(f"v_lshrrev_b32 v{T + 2}, 1, v{T + 2}")
    a(f"v_xor_b32 v{T + 2}, s{sWc}, v{T + 2}")
    a(f"v_lshl_add_u32 v{vWrd[0]}, v{T + 2}, 6, v{T + 3}")
    wl = LdsAddr(a, vWrd)
    wl.setup(a)
    a(f"s_lshl_b32 s{sT0}, s{sWr}, 12")
    a(f"v_add_u32 v{vAr[0]}, s{sT0}, v{vL16}")
    al = LdsAddr(a, vAr)
    al.setup(a)
    if k3:
        a(f"v_bfe_u32 v{T + 2}, v{vLane}, 1, 3")
        a(f"v_xor_b32 v{T + 2}, v{T + 2}, v{T + 1}")
        a(f"s_lshl_b32 s{sT1}, s{sWc}, 2")
        a(f"v_xor_b32 v{T + 2}, s{sT1}, v{T + 2}")
        a(f"v_lshlrev_b32 v{T + 2}, 4, v{T + 2}")
        a(f"v_lshl_add_u32 v{T + 2}, v{T}, 7, v{T + 2}")
        a(f"s_add_u32 s{sT0}, s{sT0}, {RESO}")
        a(f"v_add_u32 v{vRr[0]}, s{sT0}, v{T + 2}")
        a(f"v_xor_b32 v{vRr[1]}, 32, v{vRr[0]}")
    else:
        a(f"s_lshl_b32 s{sT1}, s{sWc}, 11")
        a(f"s_add_u32 s{sT0}, s{sT0}, s{sT1}")
        a(f"s_add_u32 s{sT0}, s{sT0}, {RESO}")
        a(f"v_add_u32 v{vRr[0]}, s{sT0}, v{vL16}")
        a(f"v_add_u32 v{vRr[1]}, 1024, v{vRr[0]}")
    if pre_publish is not None:
        publish(a, pre_publish, T + 6)
    a(f"v_mov_b32 v{T + 5}, 0x3f80")
    for e in range(2):
        if k3:
            a(f"v_lshlrev_b32 v{T + 2}, 3, v{T + 1}")
            a(f"v_sub_u32 v{T + 2}, v{T}, v{T + 2}")
            a(f"v_subrev_u32 v{T + 2}, {16 * e}, v{T + 2}")
        else:
            a(f"v_bfe_u32 v{T + 2}, v{vLane}, 3, 1")
            a(f"v_and_b32 v{T + 3}, 3, v{vLane}")
            a(f"v_lshl_add_u32 v{T + 2}, v{T + 2}, 2, v{T + 3}")
            a(f"v_bfe_u32 v{T + 3}, v{vLane}, 2, 1")
            a(f"v_xor_b32 v{T + 3}, v{T + 3}, v{T + 1}")
            a(f"v_bfe_u32 v{T + 4}, v{vLane}, 4, 1")
            a(f"v_xor_b32 v{T + 4}, {e}, v{T + 4}")
            a(f"v_or_b32 v{T + 3}, v{T + 3}, v{T + 4}")
            a(f"v_lshl_add_u32 v{T + 2}, v{T + 3}, 4, v{T + 2}")
        a(f"v_and_b32 v{T + 3}, 1, v{T + 2}")
        a(f"v_lshlrev_b32 v{T + 3}, 4, v{T + 3}")
        a(f"v_lshlrev_b32 v{T + 3}, v{T + 3}, v{T + 5}")
        a(f"v_lshrrev_b32 v{T + 2}, 1, v{T + 2}")
        for r in range(4):
            a(f"v_cmp_eq_u32 vcc, {r}, v{T + 2}")
            a("s_nop 1")
            a(f"v_cndmask_b32 v{ID + 4 * e + r}, 0, v{T + 3}, vcc")
    a(f"s_lshl_b32 s33, s{sRb}, 1")
    a(f"s_add_u32 s33, s33, s{sWr}")
    a(f"s_lshl_b32 s34, s{sCb}, 1")
    a(f"s_add_u32 s34, s34, s{sWc}")
    if k3:
        a(f"s_lshl_b32 s36, s33, 15")
        a(f"s_lshl_b32 s37, s34, 11")
        a(f"s_add_u32 s36, s36, s37")
        a(f"s_add_u32 s36, s36, {HF}")
        a(f"s_lshl_b32 s37, s34, 14")
        a(f"s_lshl_b32 s{sT1}, s33, 8")
        a(f"s_add_u32 s37, s37, s{sT1}")
        a(f"s_add_u32 s37, s37, {ST}")
        a("s_mov_b32 s41, 0x3f803f80")
        a(f"v_lshlrev_b32 v{vOut}, 3, v{vLane}")
        a(f"s_lshl_b32 s55, s{sRb}, 7")
        a(f"s_lshl_b32 s{sT1}, s{sCb}, 4")
        a(f"s_add_u32 s55, s55, s{sT1}")
        a(f"s_lshl_b32 s{sT1}, s{sWave}, 2")
        a(f"s_add_u32 s55, s55, s{sT1}")
        a(f"s_add_u32 s55, s55, {F3}")
    else:
        a(f"s_mul_i32 s{sT0}, s{sHw}, 2560")
        a(f"s_add_u32 s{sT0}, s{sT0}, {TRO}")
        a(f"v_mul_u32_u24 v{T + 2}, 80, v{T}")
        a(f"v_lshl_add_u32 v{T + 2}, v{T + 1}, 3, v{T + 2}")
        a(f"v_add_u32 v{vTw}, s{sT0}, v{T + 2}")
        a(f"v_lshrrev_b32 v{T + 2}, 2, v{vLane}")
        a(f"v_and_b32 v{T + 3}, 3, v{vLane}")
        a(f"v_lshlrev_b32 v{T + 3}, 4, v{T + 3}")
        a(f"v_mad_u32_u24 v{T + 4}, v{T + 2}, 64, v{T + 3}")
        a(f"v_lshl_add_u32 v{T + 4}, v{T + 2}, 4, v{T + 4}")
        a(f"v_add_u32 v{vTr}, s{sT0}, v{T + 4}")
        a(f"v_lshl_add_u32 v{vOut}, v{T + 2}, 10, v{T + 3}")
        a(f"s_lshl_b32 s36, s33, 15")
        a(f"s_lshl_b32 s37, s34, 6")
        a(f"s_add_u32 s36, s36, s37")
        a(f"s_add_u32 s37, s36, 16384")
        srd(a, sIO, KO, 2048 * 1024)
    a(f"s_lshl_b32 s40, s{sRb}, {8 if k3 else 9}")
    a(f"s_add_u32 s40, s40, {F2 if k3 else F4}")
    if k3:
        poll(a, 40, T + 6, uid, 64)
    first = True
    prev = []
    for st in range(NST):
        if not k3 and st in (0, OPT["p5_c2"] - 3):
            poll_issue(a, 40, T + 6, f"p5i{st}", 128 if st == 0 else 256)
        if not k3 and st in (2, OPT["p5_c2"]):
            poll(a, 40, T + 6, f"p5c{8 if st > 2 else 1}", 30, barrier=False, off=128 if st == 2 else 256, issued=True)
        a("s_barrier")
        if st == 0:
            stamp(a)
        F = FR[st & 1]
        n = min(4, KS - 4 * st)
        rd = []
        for k in range(n):
            reg, off = al.at(ASL[st][0] + k * 1024)
            rd.append(f"ds_read_b128 {vr(F + 8 * k, 4)}, {reg} offset:{off}")
            for half in range(2):
                reg, off = wl.at(WSL[st % NW] + k * 2048 + half * 1024)
                rd.append(f"ds_read_b64_tr_b16 {vr(F + 8 * k + 4 + 2 * half, 2)}, {reg} offset:{off}")
        cur = [[None, F + 8 * k + 4, F + 8 * k, 3 * k + 2] for k in range(n)]
        if st == RST:
            for e in range(2):
                rd.append(f"ds_read_b128 {vr(F + 32 + 4 * e, 4)}, v{vRr[e]}")
                cur.append([None, ID + 4 * e, F + 32 + 4 * e, len(rd) - 1])
        toks = []
        k = 0
        for tok, wa, xa, _ in prev:
            a.wait(lg=tok)
            a(f"v_mfma_f32_32x32x16_bf16 {vr(acc, 16)}, {vr(wa, 4)}, {vr(xa, 4)}, {'0' if first else vr(acc, 16)}")
            first = False
            for _ in range(3):
                if k < len(rd):
                    toks.append(a.lg(rd[k]))
                    k += 1
        while k < len(rd):
            toks.append(a.lg(rd[k]))
            k += 1
        for c in cur:
            c[0] = toks[c[3]]
        prev = cur
    for tok, wa, xa, _ in prev:
        a.wait(lg=tok)
        a(f"v_mfma_f32_32x32x16_bf16 {vr(acc, 16)}, {vr(wa, 4)}, {vr(xa, 4)}, {vr(acc, 16)}")
    stamp(a)
    a("s_nop 11")
    P = 32
    for i in range(8):
        a(f"v_cvt_pk_bf16_f32 v{P + i}, v{acc + 2 * i}, v{acc + 2 * i + 1}")
    if k3:
        stores(a, [f"buffer_store_dwordx4 {vr(P, 4)}, v{vL16}, {sr(sWS, 4)}, s36 offen",
                   f"buffer_store_dwordx4 {vr(P + 4, 4)}, v{vL16}, {sr(sWS, 4)}, s36 offen offset:1024"])
        a(f"v_dot2_f32_bf16 v{T}, v{P}, s41, 0")
        a(f"v_dot2_f32_bf16 v{T + 1}, v{P}, v{P}, 0")
        for i in range(1, 8):
            a(f"v_dot2_f32_bf16 v{T}, v{P + i}, s41, v{T}")
            a(f"v_dot2_f32_bf16 v{T + 1}, v{P + i}, v{P + i}, v{T + 1}")
        a("s_nop 2")
        a(f"v_mov_b32 v{T + 2}, v{T}")
        a(f"v_mov_b32 v{T + 3}, v{T + 1}")
        a("s_nop 0")
        a(f"v_permlane32_swap_b32 v{T}, v{T + 2}")
        a(f"v_permlane32_swap_b32 v{T + 1}, v{T + 3}")
        a("s_nop 0")
        a(f"v_add_f32 v{T}, v{T}, v{T + 2}")
        a(f"v_add_f32 v{T + 1}, v{T + 1}, v{T + 3}")
        a("s_mov_b32 exec_hi, 0")
        stores(a, [f"buffer_store_dwordx2 {vr(T, 2)}, v{vOut}, {sr(sWS, 4)}, s37 offen"])
        a("s_mov_b64 exec, -1")
        a("s_barrier")
        publish(a, 55, T + 4)
    else:
        for g in range(4):
            a.lg(f"ds_write_b64 v{vTw}, {vr(P + 2 * g, 2)} offset:{g * 16}")
        a.wait_all(vm=False)
        t0 = a.lg(f"ds_read_b128 {vr(P + 8, 4)}, v{vTr}")
        t1 = a.lg(f"ds_read_b128 {vr(P + 12, 4)}, v{vTr} offset:{16 * 80}")
        a.wait(lg=t0)
        a.vm(f"buffer_store_dwordx4 {vr(P + 8, 4)}, v{vOut}, {sr(sIO, 4)}, s36 offen")
        a.wait(lg=t1)
        a.vm(f"buffer_store_dwordx4 {vr(P + 12, 4)}, v{vOut}, {sr(sIO, 4)}, s37 offen")
    stamp(a)


def phase4(a, h):
    sG = 16
    sRb, sCg = 25, 26
    sWL, sAct = 32, 33
    NW, NX, NST = 9, 5, 16
    XO = 122880
    CSO = 24576
    XEO = CSO + 1536
    for b in (a, h):
        b(f"s_and_b32 s{sT0}, s2, 7")
        b(f"s_lshl_b32 s{sT0}, s{sT0}, 1")
        b(f"s_bfe_u32 s{sT1}, s2, 0x10003")
        b(f"s_add_u32 s{sRb}, s{sT0}, s{sT1}")
        b(f"s_lshr_b32 s{sCg}, s2, 4")
    a("s_cmp_ge_u32 s2, 240")
    a("s_cbranch_scc1 L_p4_skip_c")
    h("s_cmp_ge_u32 s2, 240")
    h("s_cbranch_scc1 L_p4_skip_l")
    vWoff = [3, 4, 5]
    vT = 16
    h(f"s_lshl_b32 s{sAct}, s{sRb}, 2")
    h(f"s_add_u32 s{sAct}, s{sAct}, s{sHw}")
    h(f"s_lshl_b32 s38, s{sAct}, 8")
    h(f"s_add_u32 s38, s38, {ST}")
    h(f"s_lshl_b32 s{sAct}, s{sAct}, 15")
    h(f"s_add_u32 s{sAct}, s{sAct}, {HF}")
    h(f"s_lshr_b32 s34, s{sHw}, 1")
    h(f"s_and_b32 s35, s{sHw}, 1")
    h(f"s_mul_i32 s{sT0}, s34, {16 * 2752}")
    h(f"s_mul_i32 s{sT1}, s{sCg}, 192")
    h(f"s_add_u32 s{sT0}, s{sT0}, s{sT1}")
    h(f"v_and_b32 v{vT + 3}, 2, v{vLane}")
    h(f"v_lshlrev_b32 v{vT + 3}, 5, v{vT + 3}")
    h(f"v_sub_u32 v{vT + 3}, 32, v{vT + 3}")
    h(f"v_mul_lo_u32 v{vT + 3}, v{vT + 3}, s35")
    h(f"v_add_u32 v{vT + 3}, s{sT0}, v{vT + 3}")
    for i in range(3):
        h(f"v_add_u32 v{vT}, {64 * i}, v{vLane}")
        h(f"v_mul_u32_u24 v{vT + 1}, 171, v{vT}")
        h(f"v_lshrrev_b32 v{vT + 1}, 11, v{vT + 1}")
        h(f"v_mul_u32_u24 v{vT + 2}, {2752 - 192}, v{vT + 1}")
        h(f"v_add3_u32 v{vWoff[i]}, v{vL16}, v{vT + 2}, v{vT + 3}")
    h(f"s_mul_i32 s{sWL}, s{sHw}, 3072")
    h(f"s_lshl_b32 s36, s{sHw}, 11")
    h(f"s_add_u32 s36, s36, {XO}")
    h("s_cmp_eq_u32 s35, 0")
    h(f"s_cselect_b32 s{sG}, s{KG}, s{KU}")
    h(f"s_cselect_b32 s{sG + 1}, s{KG + 1}, s{KU + 1}")
    h(f"s_mov_b32 s{sG + 2}, {hx(512 * 2752)}")
    h(f"s_mov_b32 s{sG + 3}, 0x00020000")
    dr = Drip(h)

    def issue_w(key):
        st = key[1] if isinstance(key, tuple) else key
        for i in range(3):
            pre = [f"s_add_u32 m0, s{sWL}, {WS4[st % NW]}", f"s_mov_b32 s42, {st * 32 * 2752}"] if i == 0 else []
            dr.add(key, pre, f"buffer_load_dwordx4 v{vWoff[i]}, {sr(sG, 4)}, s42 offen offset:{i * 1024} lds")

    def issue_x(st):
        for i in range(2):
            pre = [f"s_add_u32 m0, s36, {(st % NX) * 8192}", f"s_add_u32 s43, s{sAct}, {st * 2048}"] if i == 0 else []
            dr.add(st, pre, f"buffer_load_dwordx4 v{vL16}, {sr(sWS, 4)}, s43 offen offset:{i * 1024} {LD()} lds")

    PRE = OPT["p4_pre"]
    for st in range(4, PRE):
        issue_w(st)
    dr.emit(100)
    nxt_wi = 3 * PRE
    vPf, vPd = 13, 100
    srd(h, 44, KD, 1376 * 1024)
    h(f"s_lshr_b32 s{sT0}, s2, 3")
    h(f"s_lshl_b32 s{sT0}, s{sT0}, 2")
    h(f"s_add_u32 s{sT0}, s{sT0}, s{sHw}")
    h(f"s_lshl_b32 s{sT0}, s{sT0}, 13")
    h(f"v_lshlrev_b32 v{vPf}, 7, v{vLane}")
    h(f"v_add_u32 v{vPf}, s{sT0}, v{vPf}")
    h(f"v_add_u32 v15, {120 * 8192}, v{vPf}")
    h(f"v_lshrrev_b32 v{vT + 3}, 5, v{vLane}")
    h(f"v_and_b32 v{vT + 4}, 31, v{vLane}")
    h(f"v_lshlrev_b32 v{vT + 4}, 3, v{vT + 4}")
    h(f"v_lshl_add_u32 v{vT + 4}, v{vT + 3}, 17, v{vT + 4}")
    h(f"s_mul_i32 s{sT0}, s{sHw}, 1536")
    h(f"s_add_u32 s{sT0}, s{sT0}, {XEO}")
    h(f"v_add_u32 v{vT + 5}, s{sT0}, v{vL16}")
    h(f"v_lshl_add_u32 v{vT + 6}, v{vLane}, 3, s{sT0}")
    stamp(h)
    h("s_barrier")
    stamp(h)
    SP = 32
    vS, vQ, vM, vA = 60, 61, 62, 64
    AHEAD = OPT["p4_a"]
    assert AHEAD < NX
    nxt_x = 0
    for st in range(NST):
        while nxt_x <= min(st + AHEAD, NST - 1):
            if nxt_x >= NX and nxt_x - NX > st - 2:
                break
            issue_x(nxt_x)
            nxt_x += 1
        dr.emit(100)
        for _ in range((OPT["p4_wi2"] + (st & 1)) // 2):
            ws, wi = divmod(nxt_wi, 3)
            if ws < NST and (ws < NW or ws - NW <= st - 2):
                h(f"s_add_u32 m0, s{sWL}, {WS4[ws % NW]}")
                h(f"s_mov_b32 s42, {ws * 32 * 2752}")
                dr.tok[("w", ws)] = h.vm(f"buffer_load_dwordx4 v{vWoff[wi]}, {sr(sG, 4)}, s42 offen offset:{wi * 1024} lds")
                nxt_wi += 1
        assert nxt_wi >= 3 * (st + 1)
        if 1 <= st <= 8:
            i = st - 1
            h(f"s_add_u32 s{sT0}, s38, {i * 16384}")
            dr.tok["st"] = h.vm(f"buffer_load_dwordx2 {vr(SP + 2 * i, 2)}, v{vT + 4}, {sr(sWS, 4)}, s{sT0} offen {LD()}")
        h.wait(vm=max(dr.tok[st], dr.tok.get(("w", st), -1)))
        assert st < PRE or ("w", st) in dr.tok
        if st == 11:
            h.wait(vm=dr.tok["st"])
            h(f"v_add_f32 v{vS}, v{SP}, v{SP + 2}")
            h(f"v_add_f32 v{vQ}, v{SP + 1}, v{SP + 3}")
            for i in range(2, 8):
                h(f"v_add_f32 v{vS}, v{vS}, v{SP + 2 * i}")
                h(f"v_add_f32 v{vQ}, v{vQ}, v{SP + 2 * i + 1}")
        if st == 12:
            half_sum(h, vS, vT)
            half_sum(h, vQ, vT)
            h(f"v_mul_f32 v{vM}, {hx(f2u(-1.0 / 512))}, v{vS}")
            h(f"v_mul_f32 v{vQ}, {hx(f2u(1.0 / 512))}, v{vQ}")
            h(f"v_fma_f32 v{vQ}, -v{vM}, v{vM}, v{vQ}")
            h(f"v_max_f32 v{vQ}, 0, v{vQ}")
            h(f"v_add_f32 v{vQ}, {hx(f2u(1e-5))}, v{vQ}")
        if st == 13:
            h(f"v_rsq_f32 v{vA}, v{vQ}")
            split_hi_lo(h, vM, 68, vT, vT + 1)
            h(f"v_mul_f32 v{vA + 1}, v{vQ}, v{vA}")
            h(f"v_mul_f32 v{vA}, {hx(f2u(-LOG2E))}, v{vA}")
            h(f"v_cvt_pk_bf16_f32 v69, v{vT}, 0")
            h("v_mov_b32 v70, 0")
            h("v_mov_b32 v71, 0")
            h.lg(f"ds_write_b128 v{vT + 5}, v[68:71]")
            h.lg(f"ds_write_b64 v{vT + 6}, {vr(vA, 2)} offset:1024")
        if st == 14:
            h.wait_all(vm=False)
        if OPT.get("det") == 1 and st in (3, 7, 11):
            stamp(h)
        h("s_barrier")
        if OPT.get("det") == 1 and st in (3, 7, 11, 15):
            stamp(h)
        if OPT["gf_late"] and st == OPT["gf_late"]:
            h(f"s_lshl_b32 s{sT0}, s{sRb}, 2")
            h(f"s_add_u32 s{sT0}, s{sT0}, s{sHw}")
            h(f"s_mul_i32 s{sT0}, s{sT0}, {86 * 1024}")
            h(f"s_mul_i32 s{sT1}, s{sCg}, 6144")
            h(f"s_add_u32 s{sT0}, s{sT0}, s{sT1}")
            h(f"s_add_u32 s{sT0}, s{sT0}, {GF}")
            h(f"v_lshlrev_b32 v101, 7, v{vLane}")
            h("s_mov_b32 exec_hi, 0xffff")
            h.vm(f"buffer_load_dword v{vPd}, v101, {sr(sWS, 4)}, s{sT0} offen")
            h("s_mov_b64 exec, -1")
        if st == OPT["p4_pf"]:
            h.vm(f"buffer_load_dword v{vPd}, v{vPf}, s[44:47], 0 offen")
        if st == OPT["p4_pf"] + 1:
            h.vm(f"buffer_load_dword v{vPd}, v15, s[44:47], 0 offen")
    h("s_barrier")
    h.label("L_p4_skip_l")

    sWr2, sWc = 36, 37
    vWrd, vWrdO, vXa, vCw, vCr, vEr = [3, 4], [5, 6], 7, 8, 9, 10
    ONES, vT, CS, ACC = 12, 16, 20, 32
    XF, WF = [128, 136], [144, 156]
    XE, AS = XF[0], ONES
    t = CS
    a(f"s_lshr_b32 s{sWr2}, s{sHw}, 1")
    a(f"s_and_b32 s{sWc}, s{sHw}, 1")
    a(f"s_lshl_b32 s34, s{sRb}, 1")
    a(f"s_add_u32 s34, s34, s{sWr2}")
    a(f"v_lshrrev_b32 v{t + 3}, 5, v{vLane}")
    a(f"v_bfe_u32 v{t}, v{vLane}, 2, 2")
    a(f"v_lshl_add_u32 v{t}, v{t + 3}, 2, v{t}")
    a(f"v_mul_u32_u24 v{t}, 192, v{t}")
    a(f"v_and_b32 v{t + 1}, 3, v{vLane}")
    a(f"v_lshl_add_u32 v{t}, v{t + 1}, 3, v{t}")
    a(f"s_mul_i32 s{sT0}, s{sWc}, 96")
    a(f"v_add_u32 v{t}, s{sT0}, v{t}")
    a(f"v_bfe_u32 v{t + 1}, v{vLane}, 4, 1")
    a(f"s_lshl_b32 s{sT0}, s{sWc}, 6")
    a(f"s_sub_u32 s{sT1}, {3072 + 32}, s{sT0}")
    a(f"s_add_u32 s{sT0}, {3072 - 32}, s{sT0}")
    a(f"v_mad_u32_u24 v{vWrd[0]}, v{t + 1}, s{sT1}, v{t}")
    a(f"v_mad_u32_u24 v{vWrdO[0]}, v{t + 1}, s{sT0}, v{t}")
    wl = [LdsAddr(a, vWrd), LdsAddr(a, vWrdO)]
    wl[0].setup(a)
    wl[1].setup(a)
    a(f"s_lshl_b32 s{sT0}, s{sWr2}, 12")
    a(f"s_add_u32 s{sT0}, s{sT0}, {XO}")
    a(f"v_add_u32 v{vXa}, s{sT0}, v{vL16}")
    a(f"v_xor_b32 v{t}, v{t + 1}, v{vLane}")
    a(f"v_and_b32 v{t}, 1, v{t}")
    a(f"v_cmp_eq_u32 vcc, 0, v{t}")
    a(f"v_mov_b32 v{t}, 0x3f803f80")
    a("s_nop 0")
    for r in range(4):
        a(f"v_cndmask_b32 v{ONES + r}, 0, v{t}, vcc")
    a(f"s_lshl_b32 s{sT0}, s{sWc}, 1")
    a(f"s_add_u32 s{sT1}, s{sT0}, s{sWr2}")
    a(f"s_mul_i32 s{sT1}, s{sT1}, 384")
    a(f"s_add_u32 s{sT1}, s{sT1}, {CSO}")
    a(f"v_and_b32 v{t}, 1, v{vLane}")
    a(f"v_lshlrev_b32 v{t}, 6, v{t}")
    a(f"v_and_b32 v{t + 1}, 48, v{vLane}")
    a(f"v_add3_u32 v{vCw}, v{t}, v{t + 1}, s{sT1}")
    a(f"s_mul_i32 s{sT0}, s{sT0}, 384")
    a(f"s_add_u32 s{sT0}, s{sT0}, {CSO}")
    a(f"v_mul_u32_u24 v{t}, 384, v{t + 3}")
    a(f"v_and_b32 v{t + 1}, 31, v{vLane}")
    a(f"v_lshl_add_u32 v{t}, v{t + 1}, 2, v{t}")
    a(f"v_add_u32 v{vCr}, s{sT0}, v{t}")
    a(f"s_lshl_b32 s55, s34, 9")
    a(f"s_lshl_b32 s35, s{sCg}, 1")
    a(f"s_add_u32 s35, s35, s{sWc}")
    a(f"s_lshl_b32 s{sT0}, s35, 2")
    a(f"s_add_u32 s55, s55, s{sT0}")
    a(f"s_add_u32 s55, s55, {F4}")
    a(f"s_mul_i32 s34, s34, {2 * 86 * 1024}")
    a(f"s_mul_i32 s38, s35, 3")
    a(f"s_lshl_b32 s35, s35, 10")
    a("s_add_u32 s34, s34, s35")
    a(f"s_add_u32 s34, s34, {GF}")
    a(f"s_add_u32 s35, s34, {86 * 1024}")
    a(f"s_mul_i32 s{sT0}, s{sWr2}, 3072")
    a(f"s_add_u32 s{sT0}, s{sT0}, {XEO}")
    a(f"v_add_u32 v{vEr}, s{sT0}, v{vL16}")
    a(f"v_lshl_add_u32 v{vEr + 1}, v{vLane}, 3, s{sT0}")
    for r in range(12):
        a(f"v_mov_b32 v{CS + r}, 0")

    def reads(s):
        st, ss = divmod(s, 2)
        W = []
        for j in range(3):
            for half in range(2):
                reg, off = wl[j & 1].at(WS4[st % NW] + ss * 6144 + half * 8 * 192 + j * 32)
                W.append(f"ds_read_b64_tr_b16 {vr(WF[s & 1] + 4 * j + 2 * half, 2)}, {reg} offset:{off}")
        X = [f"ds_read_b128 {vr(XF[s & 1] + 4 * i, 4)}, v{vXa} offset:{(st % NX) * 8192 + i * 2048 + ss * 1024}"
             for i in range(2)]
        return [X[0], W[0], W[1], X[1], W[2], W[3], W[4], W[5]]

    rt = {}

    def emit_reads(b, s, lo, hi):
        ops = reads(s)
        for k in range(lo, min(hi, 8)):
            rt[(s, k)] = b.lg(ops[k])

    def main(b, s, m):
        j, i = divmod(m, 2)
        d = ACC + 16 * m
        c = "0" if s == 0 else vr(d, 16)
        b(f"v_mfma_f32_32x32x16_bf16 {vr(d, 16)}, {vr(WF[s & 1] + 4 * j, 4)}, {vr(XF[s & 1] + 4 * i, 4)}, {c}")

    def csum(b, s, j):
        b(f"v_mfma_f32_16x16x32_bf16 {vr(CS + 4 * j, 4)}, {vr(WF[s & 1] + 4 * j, 4)}, {vr(ONES, 4)}, {vr(CS + 4 * j, 4)}")

    a(f"s_lshl_b32 s40, s{sRb}, 8")
    a(f"s_add_u32 s40, s40, {F3}")
    poll(a, 40, vT, "p4")
    a("s_barrier")
    stamp(a)
    emit_reads(a, 0, 0, 8)
    a(f"s_cmp_eq_u32 s{sWr2}, 1")
    a("s_cbranch_scc1 L_p4_odd")
    cuts = [0, 2, 4, 6, 8, 8, 8]
    need = [3, 3, 5, 5, 7, 7]
    rt0 = dict(rt)
    odd = fork(a)
    odd.label("L_p4_odd")
    for par, b in ((0, a), (1, odd)):
        rt.clear()
        rt.update(rt0)
        for s in range(31):
            if s % 2 == 1:
                b.wait(lg=rt[(s, 7)])
                b("s_barrier")
            for m in range(6):
                b.wait(lg=rt[(s, need[m])])
                if m % 2 == 0 and s % 2 == par:
                    csum(b, s, m // 2)
                main(b, s, m)
                emit_reads(b, s + 1, cuts[m], cuts[m + 1])
        b.wait_all(vm=False)
        if par == 1:
            for j in range(3):
                csum(b, 31, j)
    odd("s_branch L_p4_join")
    a.label("L_p4_join")
    main(a, 31, 0)
    for j in range(3):
        a(f"v_mov_b32 v{WF[0] + 4 * j + 2}, 0")
        a(f"v_mov_b32 v{WF[0] + 4 * j + 3}, 0")
    main(a, 31, 1)
    a("s_mov_b32 exec_lo, 0x00030003")
    a("s_mov_b32 exec_hi, 0x00030003")
    for j in range(3):
        a.lg(f"ds_write_b128 v{vCw}, {vr(CS + 4 * j, 4)} offset:{j * 128}")
    a("s_mov_b64 exec, -1")
    for i in range(2):
        a.lg(f"ds_read_b128 {vr(XE + 4 * i, 4)}, v{vEr} offset:{i * 1536}")
        a.lg(f"ds_read_b64 {vr(AS + 2 * i, 2)}, v{vEr + 1} offset:{i * 1536 + 1024}")
    main(a, 31, 2)
    main(a, 31, 3)
    a.wait_all(vm=False)
    a("s_barrier")
    for j in range(3):
        rt[("c", j)] = a.lg(f"ds_read_b32 v{vT + 1 + j}, v{vCr} offset:{j * 128}")
    main(a, 31, 4)
    main(a, 31, 5)
    for j in range(3):
        w = WF[0] + 4 * j
        a.wait(lg=rt[("c", j)])
        a(f"v_cvt_pk_bf16_f32 v{w + 1}, v{vT + 1 + j}, 0")
        a(f"v_lshlrev_b32 v{vT}, 16, v{w + 1}")
        a(f"v_sub_f32 v{vT}, v{vT + 1 + j}, v{vT}")
        a(f"v_cvt_pk_bf16_f32 v{w}, v{vT + 1 + j}, v{vT}")
    for j in range(3):
        for i in range(2):
            d = ACC + 32 * j + 16 * i
            a(f"v_mfma_f32_32x32x16_bf16 {vr(d, 16)}, {vr(WF[0] + 4 * j, 4)}, {vr(XE + 4 * i, 4)}, {vr(d, 16)}")
    stamp(a)
    a(f"v_lshlrev_b32 v{vT}, 7, v{vLane}")
    a(f"v_mov_b32 v{vT + 1}, s{sTag}")
    a("s_nop 2")
    stok = {}
    if OPT["ep_prio"]:
        a(f"s_setprio {OPT['ep_prio']}")
    for j in range(3):
        a(f"s_cmp_ge_u32 s38, {86 - j}")
        a("s_cbranch_scc1 L_p4_pub")
        Gs = [(ACC + 32 * j + 16 * i + r, i) for i in range(2) for r in range(8)]
        for g, i in Gs[::2]:
            a(f"v_pk_mul_f32 {vr(g, 2)}, {vr(g, 2)}, {vr(AS + 2 * i, 2)} op_sel_hi:[1,0]")
        for g, i in Gs:
            a(f"v_exp_f32 v{g}, v{g}")
        for g, i in Gs[::2]:
            a(f"v_pk_fma_f32 {vr(g, 2)}, {vr(g, 2)}, {vr(AS + 2 * i, 2)}, {vr(AS + 2 * i, 2)} op_sel:[0,1,1] op_sel_hi:[1,1,1]")
        for g, i in Gs:
            a(f"v_rcp_f32 v{g}, v{g}")
        for g, i in Gs[::2]:
            a(f"v_pk_mul_f32 {vr(g, 2)}, {vr(g, 2)}, {vr(g + 8, 2)}")
        if j == 2 and OPT["ep_fl"]:
            a("s_mov_b64 exec, 1")
            a.wait(vm=stok[0])
            stores(a, [f"buffer_store_dword v{vT + 1}, v{vT}, {sr(sWS, 4)}, s55 offen"])
            a("s_mov_b64 exec, -1")
        o = ACC + 32 * j + 8
        for i in range(8):
            a(f"v_cvt_pk_bf16_f32 v{o + i}, v{Gs[2 * i][0]}, v{Gs[2 * i + 1][0]}")
        stores(a, [f"buffer_store_dwordx4 {vr(o, 4)}, v{vL16}, {sr(sWS, 4)}, s34 offen",
                   f"buffer_store_dwordx4 {vr(o + 4, 4)}, v{vL16}, {sr(sWS, 4)}, s35 offen"])
        stok[j] = a.vm_issued - 1
        a(f"s_add_u32 s34, s34, {29 * 1024}")
        a(f"s_add_u32 s35, s35, {29 * 1024}")
        if j >= 1 and not OPT["ep_fl"]:
            a("s_mov_b64 exec, 1")
            a.wait(vm=stok[j - 1])
            stores(a, [f"buffer_store_dword v{vT + 1}, v{vT}, {sr(sWS, 4)}, s55 offen offset:{(j - 1) * 128}"])
            a("s_mov_b64 exec, -1")
    a.label("L_p4_pub")
    a("s_nop 7")
    stamp(a)
    a("s_mov_b64 exec, 7")
    a.wait_all(lg=False)
    stores(a, [f"buffer_store_dword v{vT + 1}, v{vT}, {sr(sWS, 4)}, s55 offen"])
    a("s_mov_b64 exec, -1")
    if OPT["ep_prio"]:
        a("s_setprio 0")
    a.label("L_p4_skip_c")
    return odd


def gen_fused():
    name = KNAME
    a = Asm()
    a.raw(f".globl {name}")
    a.raw(".p2align 8")
    a.raw(f".type {name},@function")
    a.label(name)
    a("s_cmp_ge_u32 s2, 256")
    a(f"s_cbranch_scc1 L_done")
    stamp_real(a)
    stamp(a)
    if OPT.get("spin"):
        a("s_memrealtime s[98:99]")
    c1, odd1, l1, aux = phase1(a)
    fb = phase2(c1, l1, aux)
    c1(f"s_cmp_ge_u32 s{sWave}, 4")
    c1("s_cbranch_scc0 L_compute")
    h = fork(c1)
    c = fork(c1)
    if OPT.get("det") == 2:
        h.nstamp, h.nostamp = 18, True
    c.label("L_compute")
    phase_res(c, h, True, pre_publish=55)
    odd = phase4(c, h)
    phase_res(c, h, False)
    if OPT.get("det") != 3:
        stamp_flush(h)
    h("s_endpgm")
    c("s_cmp_lg_u32 s2, 0")
    c("s_cbranch_scc1 L_nogen")
    c(f"s_cmp_lg_u32 s{sWave}, 0")
    c("s_cbranch_scc1 L_nogen")
    c(f"v_mov_b32 v12, {GEN}")
    c(f"v_mov_b32 v13, s{sTag}")
    c("s_mov_b64 exec, 1")
    c(f"buffer_store_dword v13, v12, {sr(sWS, 4)}, 0 offen sc1")
    if OPT.get("spin"):
        c("s_load_dwordx2 s[92:93], s[0:1], 64")
        c("s_memrealtime s[96:97]")
        c("s_waitcnt lgkmcnt(0)")
        c("s_sub_u32 s96, s96, s98")
        c("s_mov_b32 s94, 256")
        c("s_mov_b32 s95, 0x00020000")
        c("v_mov_b32 v12, 0")
        c("v_mov_b32 v13, s96")
        c("buffer_store_dword v13, v12, s[92:95], 0 offen")
        c.label("L_dbg_spin")
        c("s_memrealtime s[96:97]")
        c("s_waitcnt lgkmcnt(0)")
        c("s_sub_u32 s96, s96, s98")
        c(f"s_cmp_lt_u32 s96, {OPT['spin']}")
        c("s_cbranch_scc1 L_dbg_spin")
    c.label("L_nogen")
    stamp_flush(c)
    c.label("L_done")
    c("s_endpgm")
    text = (a.text() + l1.text() + aux.text() + odd1.text() + c1.text() + h.text() + c.text() + odd.text() + fb.text())
    return name, text, descriptor(name, 168, 0, sgpr=102), (256, 576, 163840)


def build():
    name, text, desc, (g, b, lds) = gen_fused()
    ref = open(f"cdna_kernels/{NAME}.s.ref").read().split("\n")
    head = [l for l in ref if l.startswith(";") and "@launch" not in l]
    out = "\n".join(head) + "\n"
    out += f"; @launch grid=({g},1,1) block=({b},1,1) lds={lds}\n"
    out += '.amdgcn_target "amdgcn-amd-amdhsa--gfx950"\n.text\n'
    bad = check_hazards(text, name)
    out += text
    out += "L_code_end:\n"
    out += '.section .rodata,"a"\n.p2align 6\n' + desc
    if bad:
        print("hazards:", bad)
    return out


if __name__ == "__main__":
    path = sys.argv[1] if len(sys.argv) > 1 else f"cdna_kernels/{NAME}.s"
    for arg in sys.argv[2:]:
        if arg == "stamps":
            G.STAMPS = True
        else:
            k_, v_ = arg.split("=")
            OPT[k_] = int(v_)
    open(path, "w").write(build())
    print("wrote", path)
```

```python
import sys

import gen as G
from gen import (Asm, Drip, LdsAddr, OPT, MB, QF, KVF, OF, HF, ST, GF, WS_SIZE, LOG2E, NAME, f2u, hx, vr, sr, srd,
                 fork, half_sum, split_hi_lo, code_prefetch, descriptor, check_hazards)

FLG = 11 * MB
F2, F3, F4, XT = FLG, FLG + 8192, FLG + 49152, FLG + 20480
FL1, GEN, FG1 = FLG + 24576, FLG + 28672, FLG + 32768
RT = 124 * 1024
QO, GO, SO = 65536, 32768, 118 * 1024
KVG = 12 * MB


def HS():
    return 131072 + OPT["kv_pad"]


KNAME = NAME + "_kernel"
WS3 = [0, 8192, 16384, 24576, 65536, 73728, 81920, 90112]
RES3 = 155648
WS4 = [32768, 45056, 98304, 110592, 0, 12288, 57344, 69632, 81920]
WS5 = [0, 8192, 16384] + [8192 * i for i in range(4, 14)]
sTag = 53
OPT.update(dict(p3_a=7, p4_a=3, p5_a=7, p5_na=6, down_l2=0, ws_off=0, kv_pad=4352, kv_gate=1, kv_fl=2, p1_bs=1, p5_c2=9, p5_nw=11, p4_pf=13, p4_pre=7, p2_map=1, force_slow=0, p1_cnt=1, kv_nt=0, kv_lag=1, early_t=0, gf_late=0, gu_from=128, gu_to=223, ep_prio=0, ep_fl=0, aux_sl=3, p2_pr=0, gm=0, p4_ramp=0, lpoll=0, retouch=1, p1_ls=1, p1_xl=8, t_wo=1, t_at=99, p1_s3=2, tout_g=0, p1_er=3, p2_defer=0, p2_sched=0, ld=0, touch_out=1, touch2=1, k1_tout=11, p2_fine=0, p2_rot=1, p4_wi2=4, sc="sc1"))

sWS, sWave, sHw = 12, 24, 29
sT0, sT1 = 30, 31
KX, KWO, KG, KU, KD, KO = 64, 68, 72, 74, 76, 78
vLane, vL16 = 1, 2


def ws_srd(a):
    off = OPT["ws_off"] * MB
    a(f"s_add_u32 s{sWS}, s8, {hx(off)}")
    a(f"s_addc_u32 s{sWS + 1}, s9, 0")
    a(f"s_mov_b32 s{sWS + 2}, {hx(WS_SIZE)}")
    a(f"s_mov_b32 s{sWS + 3}, 0x00020000")


def GM():
    return ["sc1", "sc0 sc1"][OPT["gm"]]


def LD():
    return ["sc1", "nt", "", "sc0 sc1", "sc0"][OPT["ld"]]


def stamp(a, force=False):
    if not G.STAMPS or (getattr(a, "nostamp", False) and not force):
        return
    i = getattr(a, "nstamp", 0)
    a.nstamp = i + 1
    assert i < 20, i
    a("s_memtime s[100:101]")
    a.wait_all(vm=False)
    a(f"s_mov_b32 s{80 + i}, s100")


def stamp_real(a):
    if not G.STAMPS:
        return
    i = getattr(a, "nstamp", 0)
    a.nstamp = i + 1
    a("s_memrealtime s[100:101]")
    a.wait_all(vm=False)
    a(f"s_mov_b32 s{80 + i}, s100")


def stamp_flush(a):
    if not G.STAMPS:
        return
    a.wait_all()
    stamp(a, True)
    stamp_real(a)
    a("s_mov_b64 exec, -1")
    a("s_lshl_b32 s58, s2, 3")
    a(f"s_add_u32 s58, s58, s{sWave}")
    a("s_lshl_b32 s58, s58, 7")
    a(f"s_add_u32 s58, s58, {G.DBGO + MB}")
    a("v_mov_b32 v1, 0")
    for i in range(a.nstamp):
        a(f"v_mov_b32 v2, s{80 + i}")
        a(f"buffer_store_dword v2, v1, {sr(sWS, 4)}, s58 offen offset:{4 * i}")
    a.wait_all()


LMODE = 163840 - 16
sMode = 54
_uid = [0]


def stores(a, ins, always_slow=False):
    if always_slow:
        for x in ins:
            a.vm(x + " sc1")
        return
    _uid[0] += 1
    u = _uid[0]
    a(f"s_cmp_eq_u32 s{sMode}, 0")
    a(f"s_cbranch_scc1 L_st_{u}_s")
    for x in ins:
        a.vm(x)
    a(f"s_branch L_st_{u}_j")
    a.label(f"L_st_{u}_s")
    for x in ins:
        a(x + " sc1")
    a.label(f"L_st_{u}_j")


def publish(a, sOff, vt, always_slow=False):
    a(f"v_mov_b32 v{vt}, 0")
    a(f"v_mov_b32 v{vt + 1}, s{sTag}")
    a("s_mov_b64 exec, 1")
    a.wait_all(lg=False)
    stores(a, [f"buffer_store_dword v{vt + 1}, v{vt}, {sr(sWS, 4)}, s{sOff} offen"], always_slow)
    a("s_mov_b64 exec, -1")


def poll_issue(a, sOff, vt, uid, off):
    a(f"s_cmp_lg_u32 s{sWave}, 0")
    a(f"s_cbranch_scc1 L_pi_{uid}")
    a(f"v_lshlrev_b32 v{vt}, 2, v{vLane}")
    a(f"buffer_load_dword v{vt + 1}, v{vt}, {sr(sWS, 4)}, s{sOff} offen offset:{off} sc1")
    a.label(f"L_pi_{uid}")


def poll(a, sOff, vt, uid, nflags=64, every=False, barrier=True, off=0, issued=False):
    if not every:
        a(f"s_cmp_lg_u32 s{sWave}, 0")
        a(f"s_cbranch_scc1 L_poll_{uid}_go")
    if not issued:
        a(f"v_lshlrev_b32 v{vt}, 2, v{vLane}")
    a("s_mov_b32 s59, 0x40000")
    if nflags < 64:
        a(f"s_mov_b64 exec, {hx((1 << nflags) - 1)}")
    if issued:
        a(f"s_branch L_poll_{uid}_c")
    a.label(f"L_poll_{uid}")
    a(f"buffer_load_dword v{vt + 1}, v{vt}, {sr(sWS, 4)}, s{sOff} offen offset:{off} sc1")
    a.label(f"L_poll_{uid}_c")
    a("s_sub_u32 s59, s59, 1")
    a("s_waitcnt vmcnt(0)")
    a(f"v_cmp_ne_u32 vcc, s{sTag}, v{vt + 1}")
    a("s_cmp_eq_u32 s59, 0")
    a(f"s_cbranch_scc1 L_poll_{uid}_x")
    a(f"s_cbranch_vccnz L_poll_{uid}")
    a.label(f"L_poll_{uid}_x")
    a("s_mov_b64 exec, -1")
    a.label(f"L_poll_{uid}_go")
    if barrier:
        a("s_barrier")


def touch_setup(h):
    srd(h, 16, KWO, 512 * 1024)
    srd(h, 20, KG, 512 * 2752)
    srd(h, 48, KU, 512 * 2752)
    h(f"s_and_b32 s{sT0}, s2, 7")
    h(f"s_lshl_b32 s{sT1}, s{sT0}, 18")
    h(f"s_add_u32 s4, s{KX}, s{sT1}")
    h(f"s_addc_u32 s5, s{KX + 1}, 0")
    srd(h, 44, 4, 256 * 1024)
    h(f"s_mul_i32 s{sT0}, s{sT0}, {172 * 1024}")
    h(f"s_add_u32 s10, s{KD}, s{sT0}")
    h(f"s_addc_u32 s11, s{KD + 1}, 0")
    if OPT["down_l2"]:
        srd(h, 40, KD, 1376 * 1024)
    else:
        srd(h, 40, 10, 172 * 1024)
    h(f"s_lshr_b32 s{sT0}, s2, 3")
    h("v_lshlrev_b32 v3, 7, v1")


def touch_weights(h):
    k0 = OPT["gu_from"]
    k1 = OPT["gu_to"]
    n = -(-(k1 - k0) * 2752 // (32 * 8192))
    if k0:
        per = -(-(k0 if k1 == 512 else 512) * 2752 // 256 // 128) * 128
        assert per <= 8192
        h(f"s_mul_i32 s{sT1}, s2, {per}")
        h(f"v_add_u32 v4, s{sT1}, v3")
        nl = per // 128
        h(f"s_mov_b32 exec_lo, {hx((1 << min(nl, 32)) - 1)}")
        h(f"s_mov_b32 exec_hi, {hx((1 << max(nl - 32, 0)) - 1)}")
        for sq in (20, 48):
            h.vm(f"buffer_load_dword v5, v4, {sr(sq, 4)}, 0 offen")
        h("s_mov_b64 exec, -1")
    for sq, per, n_, base in ((16, 16384, 2 * OPT["t_wo"], 0), (44, 8192, OPT["t_wo"], 0), (40, 49152, 6, 0) if OPT["down_l2"] else (40, 8192, 1, 0), (20, n * 8192, n, k0 * 2752 // 128 * 128),
                              (48, n * 8192, n, k0 * 2752 // 128 * 128)):
        if n_ == 0:
            continue
        h(f"s_mul_i32 s{sT1}, s{sT0}, {per}")
        if base:
            h(f"s_add_u32 s{sT1}, s{sT1}, {base}")
        h(f"v_add_u32 v4, s{sT1}, v3")
        for i in range(n_):
            h.vm(f"buffer_load_dword v5, v4, {sr(sq, 4)}, 0 offen")
            if i + 1 < n_:
                h("v_add_u32 v4, 0x2000, v4")


def phase1(a):
    sX, sW = 20, 16
    sWr, sWc, sCg, sRb = 25, 26, 27, 28
    sWL = 32
    sOnes = 41
    vT = 8
    NSLOT, SLOT, WBASE, NST = 7, 12288, 65536, 16
    CSO = WBASE + NSLOT * SLOT
    RSO = 155648
    XEO = 156672
    BS = [list(range(16)), [0, 1, 2, 4, 6, 8, 10, 12, 14], [0, 2, 4, 6, 8, 10, 12, 14], [0, 1, 2, 3, 4, 6, 8, 10, 12, 14, 15]][OPT["p1_bs"]]
    a("s_load_dwordx16 s[64:79], s[0:1], 0")
    a("s_load_dwordx2 s[8:9], s[0:1], 72")
    a(f"v_and_b32 v{vLane}, 63, v0")
    a(f"v_lshrrev_b32 v7, 6, v0")
    a(f"v_lshlrev_b32 v{vL16}, 4, v{vLane}")
    a(f"v_readfirstlane_b32 s{sWave}, v7")
    a(f"s_and_b32 s{sT0}, s2, 7")
    a(f"s_lshl_b32 s{sT0}, s{sT0}, 2")
    a(f"s_bfe_u32 s{sT1}, s2, 0x20003")
    a(f"s_add_u32 s{sRb}, s{sT0}, s{sT1}")
    a(f"s_lshr_b32 s{sCg}, s2, 5")
    a(f"s_and_b32 s{sHw}, s{sWave}, 3")
    a(f"s_cmp_eq_u32 s{sWave}, 8")
    a("s_cbranch_scc1 L_p1_aux")
    a(f"s_cmp_ge_u32 s{sWave}, 4")
    a(f"s_cbranch_scc0 L_p1_compute")

    x = fork(a)
    x.label("L_p1_aux")
    x("s_setprio 3")
    x(f"v_lshlrev_b32 v30, 7, v{vLane}")
    x(f"s_lshr_b32 s{sT0}, s2, 3")
    x(f"s_lshl_b32 s{sT0}, s{sT0}, 11")
    x(f"v_add_u32 v30, s{sT0}, v30")
    x("s_mov_b64 exec, 0xffff")
    code_prefetch(x, KNAME, 44, 30, 31, "p1")
    x("s_mov_b64 exec, -1")
    x("s_getreg_b32 s56, hwreg(HW_REG_XCC_ID, 0, 4)")
    x("s_and_b32 s57, s2, 7")
    x("s_lshl_b32 s57, s57, 8")
    x(f"s_add_u32 s57, s57, {XT}")
    x("s_lshr_b32 s58, s2, 3")
    x("s_lshl_b32 s58, s58, 2")
    x(f"v_mov_b32 v6, {GEN}")
    x("s_waitcnt lgkmcnt(0)")
    ws_srd(x)
    x.vm(f"buffer_load_dword v7, v6, {sr(sWS, 4)}, 0 offen")
    x("v_mov_b32 v6, s58")
    x("s_barrier")
    x("s_barrier")
    x.wait_all()
    x(f"v_readfirstlane_b32 s{sTag}, v7")
    x("s_nop 3")
    x(f"s_add_u32 s{sTag}, s{sTag}, 1")
    x(f"s_lshl_b32 s58, s{sTag}, 4")
    x("s_or_b32 s56, s56, s58")
    x("v_mov_b32 v7, s56")
    x("s_mov_b64 exec, 1")
    x.vm(f"buffer_store_dword v7, v6, {sr(sWS, 4)}, s57 offen sc1")
    x("s_mov_b32 exec_lo, -1")
    x("s_mov_b32 exec_hi, 0")
    x(f"v_lshlrev_b32 v6, 2, v{vLane}")
    for st in (BS + [NST])[2:]:
        if st == 12:
            x("s_mov_b32 s59, 0x40000")
            x("s_waitcnt vmcnt(0)")
            x("s_branch L_xt_chk")
            x.label("L_xt_poll")
            x(f"buffer_load_dword v7, v6, {sr(sWS, 4)}, s57 offen sc1")
            x("s_sub_u32 s59, s59, 1")
            x("s_waitcnt vmcnt(0)")
            x.label("L_xt_chk")
            x("v_xor_b32 v8, s56, v7")
            x("v_cmp_lt_u32 vcc, 15, v8")
            x("s_cmp_eq_u32 s59, 0")
            x("s_cbranch_scc1 L_xt_done")
            x("s_cbranch_vccnz L_xt_poll")
            x.label("L_xt_done")
            x("v_cmp_ne_u32 vcc, 0, v8")
            x("s_nop 1")
            x("s_cmp_eq_u64 vcc, 0")
            x(f"s_cselect_b32 s{sMode}, {0 if OPT['force_slow'] else 1}, 0")
            x(f"v_mov_b32 v6, {LMODE}")
            x(f"v_mov_b32 v8, s{sMode}")
            x(f"v_mov_b32 v9, s{sTag}")
            x("ds_write_b64 v6, v[8:9]")
            x("s_waitcnt lgkmcnt(0)")
            x("s_mov_b64 exec, -1")
        x("s_barrier")
        if OPT["early_t"] and st == OPT["early_t"]:
            touch_setup(x)
            touch_weights(x)
        if st == 8:
            x(f"buffer_load_dword v7, v6, {sr(sWS, 4)}, s57 offen sc1")

    h = fork(a)
    vWoff, vXg, vSr, vXe, vRs = 3, 4, 6, 20, 21
    vS, vQ, vM, vR = 22, 23, 24, 25
    XB = 32
    h(f"v_lshrrev_b32 v{vT}, 3, v{vLane}")
    h(f"v_and_b32 v{vT + 1}, 7, v{vLane}")
    h(f"v_lshrrev_b32 v{vT + 2}, 1, v{vT}")
    h(f"v_xor_b32 v{vT + 2}, v{vT + 2}, v{vT + 1}")
    h(f"v_lshlrev_b32 v{vT + 2}, 4, v{vT + 2}")
    h(f"v_lshl_add_u32 v{vXg}, v{vT}, 10, v{vT + 2}")
    h(f"v_xor_b32 v{vXg + 1}, 64, v{vXg}")
    h(f"v_add_u32 v{vXg + 1}, {8 * 1024 - 1024}, v{vXg + 1}")
    h(f"s_lshl_b32 s34, s{sRb}, 16")
    h(f"s_lshl_b32 s{sT0}, s{sHw}, 14")
    h(f"s_add_u32 s34, s34, s{sT0}")
    h(f"s_lshl_b32 s36, s{sHw}, 11")
    h(f"v_lshrrev_b32 v{vT + 2}, 2, v{vLane}")
    h(f"v_and_b32 v{vT + 2}, 4, v{vT + 2}")
    h(f"v_xor_b32 v{vT + 2}, v{vT + 2}, v{vT + 1}")
    h(f"v_lshlrev_b32 v{vT + 2}, 4, v{vT + 2}")
    h(f"v_mul_u32_u24 v{vT + 3}, 3072, v{vT}")
    h(f"s_mul_i32 s{sT0}, s{sHw}, {8 * 3072}")
    h(f"s_lshl_b32 s{sT1}, s{sCg}, 7")
    h(f"s_add_u32 s{sT0}, s{sT0}, s{sT1}")
    h(f"v_add3_u32 v{vWoff}, v{vT + 3}, v{vT + 2}, s{sT0}")
    h(f"s_mul_i32 s{sWL}, s{sHw}, 3072")
    h("s_waitcnt lgkmcnt(0)")
    srd(h, sX, KX, 2048 * 1024)
    srd(h, sW, KX + 2, 512 * 3072)
    d2 = OPT.get("det") == 2
    if d2:
        h.nstamp = 7
        stamp(h)
    dr = Drip(h)

    XLEAD = OPT["p1_xl"] / 4

    def x_dma(c, key):
        dr.add(key, [f"s_add_u32 m0, s36, {c * 8192}", f"s_add_u32 s43, s34, {c * 128}"],
               f"buffer_load_dwordx4 v{vXg}, {sr(sX, 4)}, s43 offen lds")
        dr.add(key, [], f"buffer_load_dwordx4 v{vXg + 1}, {sr(sX, 4)}, s43 offen offset:1024 lds")

    def issue(st):
        for c in range(8):
            if int(c * XLEAD) == st:
                x_dma(c, st)
        for seg in range(3):
            pre = [f"s_add_u32 m0, s{sWL}, {WBASE + (st % NSLOT) * SLOT}", f"s_mov_b32 s42, {32 * st * 3072}"] if seg == 0 else []
            dr.add(st, pre, f"buffer_load_dwordx4 v{vWoff}, {sr(sW, 4)}, s42 offen offset:{seg * 1024} lds")

    for st in range(NSLOT):
        issue(st)
    AHEAD = OPT["k1_d"]
    dr.through(OPT["k1_t"] - 1)

    def s3(lo, hi):
        for i in range(lo, hi):
            h(f"s_load_dword s52, s[50:51], {(i % 8) * 131072 + 384}")
            h(f"s_load_dword s52, s[50:51], {(i % 8) * 131072 + 448}")

    if OPT["p1_s3"]:
        h(f"s_lshr_b32 s{sT0}, s2, 3")
        h(f"s_lshl_b32 s{sT0}, s{sT0}, 2")
        h(f"s_add_u32 s{sT0}, s{sT0}, s{sHw}")
        h(f"s_lshl_b32 s{sT0}, s{sT0}, 10")
        h(f"s_add_u32 s50, s{KX + 2}, s{sT0}")
        h(f"s_addc_u32 s51, s{KX + 3}, 0")
        s3(0, 7)
    if OPT["k1_touch"]:
        h(f"s_lshl_b32 s{sT0}, s2, 2")
        h(f"s_add_u32 s{sT0}, s{sT0}, s{sHw}")
        h(f"s_mul_i32 s{sT1}, s{sT0}, 1536")
        h(f"s_lshl_b32 s{sT0}, s{sT0}, 11")
        h(f"v_lshlrev_b32 v30, 7, v{vLane}")
        h("s_mov_b64 exec, 0xfff")
        h.vm(f"buffer_load_dword v31, v30, {sr(sW, 4)}, s{sT1} offen")
        h("s_mov_b64 exec, 0xffff")
        h.vm(f"buffer_load_dword v31, v30, {sr(sX, 4)}, s{sT0} offen")
        h("s_mov_b64 exec, -1")
    dr.through(AHEAD - 1)
    ws_srd(h)
    LS = OPT["p1_ls"]
    if LS:
        h(f"s_mov_b32 s{sOnes}, 0x3f803f80")
        h(f"v_lshrrev_b32 v{vT}, 2, v{vLane}")
        h(f"v_and_b32 v{vT + 1}, 3, v{vLane}")
        h(f"v_lshlrev_b32 v{vT + 2}, 7, v{vT}")
        h(f"v_lshl_add_u32 v{vT + 2}, v{vT + 1}, 4, v{vT + 2}")
        h(f"v_bfe_u32 v{vT + 3}, v{vLane}, 3, 1")
        h(f"v_lshl_add_u32 v{vT + 2}, v{vT + 3}, 6, v{vT + 2}")
        h(f"v_add_u32 v{vSr}, s36, v{vT + 2}")
        h(f"v_xor_b32 v{vSr + 1}, 64, v{vSr}")
        h(f"s_lshl_b32 s{sT0}, s{sHw}, 4")
        h(f"v_add_u32 v{vT}, s{sT0}, v{vT}")
        h(f"v_lshlrev_b32 v{vRs}, 2, v{vT}")
        h(f"v_add_u32 v{vRs}, {RSO}, v{vRs}")
        h(f"v_and_b32 v{vT + 2}, 31, v{vT}")
        h(f"v_lshl_add_u32 v{vT + 2}, v{vT + 1}, 5, v{vT + 2}")
        h(f"v_lshrrev_b32 v{vT + 3}, 5, v{vT}")
        h(f"v_lshl_add_u32 v{vT + 2}, v{vT + 3}, 6, v{vT + 2}")
        h(f"v_lshlrev_b32 v{vXe}, 4, v{vT + 2}")
        h(f"v_add_u32 v{vXe}, {XEO}, v{vXe}")
        h(f"v_mov_b32 v{vS}, 0")
        h(f"v_mov_b32 v{vQ}, 0")
    sdone = 0
    if d2:
        stamp(h)
    added = NSLOT
    for bi, st in enumerate(BS):
        last = (BS + [NST])[bi + 1] - 1
        dr.wait(last)
        if d2 and st in (4, 10):
            stamp(h)
        h("s_barrier")
        if d2 and st in (0, 2, 4, 8, 10, 12, 14):
            stamp(h)
        if st == 0 and OPT["p1_s3"]:
            s3(7, 8)
            h(f"s_add_u32 s50, s50, {8 * 131072}")
            h("s_addc_u32 s51, s51, 0")
            s3(8, 12)
        todo = []
        if LS and st >= 4:
            while int((sdone + len(todo)) * XLEAD) <= last and sdone + len(todo) < 8 and len(todo) < 2:
                todo.append(sdone + len(todo))
            for k, c in enumerate(todo):
                h(f"ds_read_b128 {vr(XB + 8 * k, 4)}, v{vSr} offset:{c * 8192}")
                h(f"ds_read_b128 {vr(XB + 8 * k + 4, 4)}, v{vSr + 1} offset:{c * 8192}")
        while added < NST and added - NSLOT < st:
            issue(added)
            added += 1
        tgt = min(NST - 1, last + AHEAD + min(st + 1, OPT["k1_g"]))
        while dr.q and dr.q[0][0] <= tgt:
            dr.emit()
        if todo:
            h("s_waitcnt lgkmcnt(0)")
            for r in range(8 * len(todo)):
                h(f"v_dot2_f32_bf16 v{vS}, v{XB + r}, s{sOnes}, v{vS}")
                h(f"v_dot2_f32_bf16 v{vQ}, v{XB + r}, v{XB + r}, v{vQ}")
            sdone += len(todo)
            if sdone == 8:
                h("s_nop 2")
                for pat in ("quad_perm:[1,0,3,2]", "quad_perm:[2,3,0,1]"):
                    h(f"v_add_f32_dpp v{vS}, v{vS}, v{vS} {pat} row_mask:0xf bank_mask:0xf")
                    h(f"v_add_f32_dpp v{vQ}, v{vQ}, v{vQ} {pat} row_mask:0xf bank_mask:0xf")
                    h("s_nop 0")
                h(f"v_mul_f32 v{vM}, {hx(f2u(-1.0 / 512))}, v{vS}")
                h(f"v_mul_f32 v{vQ}, {hx(f2u(1.0 / 512))}, v{vQ}")
                h(f"v_fma_f32 v{vQ}, -v{vM}, v{vM}, v{vQ}")
                h(f"v_max_f32 v{vQ}, 0, v{vQ}")
                h(f"v_add_f32 v{vQ}, {hx(f2u(1e-5))}, v{vQ}")
                h(f"v_rsq_f32 v{vR}, v{vQ}")
                split_hi_lo(h, vM, XB, vT, vT + 1)
                h(f"v_cvt_pk_bf16_f32 v{XB + 1}, v{vT}, 0")
                h(f"v_mov_b32 v{XB + 2}, 0")
                h(f"v_mov_b32 v{XB + 3}, 0")
                h("s_mov_b32 exec_lo, 0x33333333")
                h("s_mov_b32 exec_hi, 0x33333333")
                h(f"ds_write_b128 v{vXe}, {vr(XB, 4)}")
                h(f"ds_write_b32 v{vRs}, v{vR}")
                h("s_mov_b64 exec, -1")
        if st <= OPT.get("k1_tout", -1) <= last:
            h(f"s_lshl_b32 s{sT0}, s{sRb}, 1")
            h(f"s_and_b32 s{sT1}, s{sHw}, 1")
            h(f"s_add_u32 s{sT0}, s{sT0}, s{sT1}")
            h(f"s_mul_i32 s{sT0}, s{sT0}, {RT}")
            h(f"s_lshl_b32 s{sT1}, s{sCg}, 13")
            h(f"s_lshl_b32 s43, s{sCg}, 12")
            h(f"s_add_u32 s43, s43, {QO}")
            h(f"s_cmp_ge_u32 s{sHw}, 2")
            h(f"s_cselect_b32 s{sT1}, s43, s{sT1}")
            h("s_cselect_b32 exec_hi, 0, -1")
            h(f"s_add_u32 s{sT0}, s{sT0}, s{sT1}")
            h(f"v_lshlrev_b32 v30, 7, v{vLane}")
            h.vm(f"buffer_load_dword v31, v30, {sr(sWS, 4)}, s{sT0} offen")
            h("s_mov_b64 exec, -1")
    assert not LS or sdone == 8
    h(f"v_mov_b32 v{vT}, {LMODE}")
    h.lg(f"ds_read_b64 {vr(vT + 2, 2)}, v{vT}")
    h.wait_all(vm=False)
    h(f"v_readfirstlane_b32 s{sMode}, v{vT + 2}")
    h(f"v_readfirstlane_b32 s{sTag}, v{vT + 3}")
    h("s_barrier")
    h.wait_all()
    if OPT.get("det") != 2:
        stamp(h)
    a = fork(a)
    a.label("L_p1_compute")

    vXrd = [3, 4, 5, 6]
    vKoff, vVoff = 20, 21
    vWrd = [22, 23, 24]
    vCw, vCr, vEr, vRl, vRr = 25, 26, 27, 28, 29
    XF = [32, 36]
    WF = [40, 52]
    CS, ONES, XE = 64, 76, 80
    RV = 84
    accQ, accK, accV = 104, 120, 136
    SQ = 152
    a(f"s_lshr_b32 s{sWr}, s{sHw}, 1")
    a(f"s_and_b32 s{sWc}, s{sHw}, 1")
    a(f"v_and_b32 v{vT}, 31, v{vLane}")
    a(f"v_lshrrev_b32 v{vT + 1}, 5, v{vLane}")
    a(f"v_bfe_u32 v{vT + 2}, v{vLane}, 1, 3")
    a(f"v_xor_b32 v{vT + 2}, v{vT + 2}, v{vT + 1}")
    a(f"v_lshlrev_b32 v{vT + 2}, 4, v{vT + 2}")
    a(f"v_lshl_add_u32 v{vT + 2}, v{vT}, 7, v{vT + 2}")
    a(f"s_lshl_b32 s{sT0}, s{sWr}, 12")
    a(f"v_add_u32 v{vXrd[0]}, s{sT0}, v{vT + 2}")
    for ss in range(1, 4):
        a(f"v_xor_b32 v{vXrd[ss]}, {ss * 32}, v{vXrd[0]}")
    a(f"v_mul_u32_u24 v{vT + 2}, 3072, v{vT + 1}")
    a(f"v_bfe_u32 v{vT + 3}, v{vLane}, 2, 2")
    a(f"v_lshl_add_u32 v{vT + 2}, v{vT + 3}, 7, v{vT + 2}")
    a(f"v_lshrrev_b32 v{vT + 3}, 1, v{vT + 3}")
    a(f"v_xor_b32 v{vT + 3}, s{sWc}, v{vT + 3}")
    a(f"v_lshl_add_u32 v{vT + 2}, v{vT + 3}, 6, v{vT + 2}")
    a(f"v_bfe_u32 v{vT + 4}, v{vLane}, 4, 1")
    a(f"v_lshl_add_u32 v{vT + 2}, v{vT + 4}, 5, v{vT + 2}")
    a(f"v_and_b32 v{vT + 3}, 3, v{vLane}")
    a(f"v_lshl_add_u32 v{vWrd[0]}, v{vT + 3}, 3, v{vT + 2}")
    wl = LdsAddr(a, vWrd)
    wl.setup(a)
    a(f"v_xor_b32 v{vT + 2}, v{vT + 4}, v{vLane}")
    a(f"v_and_b32 v{vT + 2}, 1, v{vT + 2}")
    a(f"v_cmp_eq_u32 vcc, 0, v{vT + 2}")
    a(f"v_mov_b32 v{vT + 2}, 0x3f803f80")
    a("s_nop 0")
    for r in range(4):
        a(f"v_cndmask_b32 v{ONES + r}, 0, v{vT + 2}, vcc")
    a(f"s_lshl_b32 s{sT0}, s{sWc}, 1")
    a(f"s_add_u32 s{sT1}, s{sT0}, s{sWr}")
    a(f"s_mul_i32 s{sT1}, s{sT1}, 384")
    a(f"s_add_u32 s{sT1}, s{sT1}, {CSO}")
    a(f"v_and_b32 v{vT + 2}, 1, v{vLane}")
    a(f"v_lshlrev_b32 v{vT + 2}, 6, v{vT + 2}")
    a(f"v_and_b32 v{vT + 3}, 48, v{vLane}")
    a(f"v_add3_u32 v{vCw}, v{vT + 2}, v{vT + 3}, s{sT1}")
    a(f"s_mul_i32 s{sT0}, s{sT0}, 384")
    a(f"s_add_u32 s{sT0}, s{sT0}, {CSO}")
    a(f"v_mul_u32_u24 v{vT + 2}, 384, v{vT + 1}")
    a(f"v_lshl_add_u32 v{vT + 2}, v{vT}, 2, v{vT + 2}")
    a(f"v_add_u32 v{vCr}, s{sT0}, v{vT + 2}")
    a(f"s_lshl_b32 s{sT0}, s{sHw}, 9")
    a(f"s_add_u32 s{sT0}, s{sT0}, {XEO}")
    a(f"v_lshl_add_u32 v{vEr}, v{vLane}, 3, s{sT0}")
    a(f"v_xor_b32 v31, 512, v{vEr}")
    a(f"s_lshl_b32 s{sT0}, s{sHw}, 7")
    a(f"s_add_u32 s{sT0}, s{sT0}, {RSO}")
    a(f"v_lshl_add_u32 v{vRl}, v{vT}, 2, s{sT0}")
    a(f"v_lshl_add_u32 v{vRr}, v{vT + 1}, 4, s{sT0}")
    if LS:
        a(f"s_lshl_b32 s{sT0}, s{sWr}, 10")
        a(f"s_add_u32 s{sT0}, s{sT0}, {XEO}")
        a(f"v_add_u32 v{vEr}, s{sT0}, v{vL16}")
        a(f"s_lshl_b32 s{sT0}, s{sWr}, 7")
        a(f"s_add_u32 s{sT0}, s{sT0}, {RSO}")
        a(f"v_lshl_add_u32 v{vRl}, v{vT}, 2, s{sT0}")
        a(f"v_lshl_add_u32 v{vRr}, v{vT + 1}, 4, s{sT0}")
    a(f"s_mov_b32 s{sOnes}, 0x3f803f80")
    a(f"v_mov_b32 v{SQ}, 0")
    a(f"v_mov_b32 v{SQ + 1}, 0")
    a(f"v_and_b32 v{vT + 2}, 0x33, v{vLane}")
    a(f"v_bfe_u32 v{vT + 3}, v{vLane}, 2, 1")
    a(f"v_lshl_or_b32 v{vT + 2}, v{vT + 3}, 3, v{vT + 2}")
    a(f"v_bfe_u32 v{vT + 3}, v{vLane}, 3, 1")
    a(f"v_lshl_or_b32 v{vT + 2}, v{vT + 3}, 2, v{vT + 2}")
    a(f"v_lshlrev_b32 v{vKoff}, 4, v{vT + 2}")
    a(f"v_lshlrev_b32 v{vT + 2}, 11, v{vT + 4}")
    a(f"v_lshl_add_u32 v{vT + 2}, v{vT + 1}, 8, v{vT + 2}")
    a(f"v_and_b32 v{vT + 3}, 15, v{vLane}")
    a(f"v_lshl_add_u32 v{vVoff}, v{vT + 3}, 4, v{vT + 2}")
    a(f"s_lshl_b32 s{sT0}, s{sCg}, 2")
    a(f"s_lshl_b32 s{sT1}, s{sWc}, 1")
    a(f"s_add_u32 s{sT0}, s{sT0}, s{sT1}")
    a(f"s_lshl_b32 s{sT1}, s{sRb}, 1")
    a(f"s_add_u32 s{sT1}, s{sT1}, s{sWr}")
    a(f"s_mul_i32 s60, s{sT1}, {RT}")
    a(f"s_lshl_b32 s46, s{sT0}, 10")
    a("s_add_u32 s46, s46, s60")
    a(f"s_add_u32 s46, s46, {QO}")
    a("s_add_u32 s47, s46, 1024")
    a(f"s_lshl_b32 s37, s{sT0}, 11")
    a("s_add_u32 s60, s60, s37")
    a(f"s_lshl_b32 s37, s{sT1}, 11")
    a(f"s_mul_i32 s36, s{sT0}, {HS()}")
    a(f"s_add_u32 s36, s36, s37")
    a(f"s_add_u32 s36, s36, {KVG}")
    a(f"s_add_u32 s37, s36, {HS()}")
    a(f"v_mul_u32_u24 v156, {HS() - 2048}, v{vT + 4}")
    a(f"v_add_u32 v156, v156, v{vVoff}")
    for r in range(12):
        a(f"v_mov_b32 v{CS + r}, 0")
    a("s_waitcnt lgkmcnt(0)")
    ws_srd(a)
    a(f"s_lshl_b32 s{sT0}, s{sCg}, 1")
    a(f"s_add_u32 s{sT0}, s{sT0}, s{sWc}")
    a(f"s_and_b32 s{sT1}, s{sRb}, 3")
    a(f"s_lshl_b32 s{sT1}, s{sT1}, 1")
    a(f"s_add_u32 s{sT1}, s{sT1}, s{sWr}")
    a(f"s_lshl_b32 s{sT1}, s{sT1}, 2")
    a("s_and_b32 s38, s2, 7")
    a("s_lshl_b32 s48, s38, 9")
    a(f"s_lshl_b32 s39, s{sT0}, 5")
    a("s_add_u32 s48, s48, s39")
    a(f"s_add_u32 s48, s48, s{sT1}")
    a(f"s_add_u32 s48, s48, {FL1}")
    a(f"s_lshl_b32 s49, s{sT0}, 10")
    a("s_lshl_b32 s39, s38, 7")
    a("s_add_u32 s49, s49, s39")
    a(f"s_add_u32 s49, s49, s{sT1}")
    a(f"s_add_u32 s49, s49, {FG1}")
    a("s_mov_b32 s38, s60")
    a("s_add_u32 s39, s60, 2048")
    a(f"v_mov_b32 v30, {LMODE}")

    def reads(s):
        st, ss = divmod(s, 2)
        ops = [f"ds_read_b128 {vr(XF[s & 1], 4)}, v{vXrd[s & 3]} offset:{(s >> 2) * 8192}"]
        for seg in range(3):
            for half in range(2):
                reg, off = wl.at(WBASE + (st % NSLOT) * SLOT + ss * 6144 + seg * 1024 + half * 512)
                ops.append(f"ds_read_b64_tr_b16 {vr(WF[s & 1] + 4 * seg + 2 * half, 2)}, {reg} offset:{off}")
        return ops

    rt = {}

    def emit_reads(b, s, lo, hi):
        ops = reads(s)
        for k in range(lo, min(hi, 7)):
            rt[(s, k)] = b.lg(ops[k])

    a("s_barrier")
    if OPT.get("det") != 4:
        stamp(a)
    emit_reads(a, 0, 0, 7)
    a(f"s_cmp_lg_u32 s{sWr}, s{sWc}")
    a("s_cbranch_scc1 L_p1_odd")
    rt0 = dict(rt)
    odd = fork(a)
    odd.label("L_p1_odd")
    acc = [accQ, accK, accV]

    def mm(b, j, w, x, first=False):
        c = "0" if first else vr(acc[j], 16)
        ops = (vr(w, 4), vr(x, 4)) if j < 2 else (vr(x, 4), vr(w, 4))
        b(f"v_mfma_f32_32x32x16_bf16 {vr(acc[j], 16)}, {ops[0]}, {ops[1]}, {c}")

    def csum(b, s, j):
        b(f"v_mfma_f32_16x16x32_bf16 {vr(CS + 4 * j, 4)}, {vr(WF[s & 1] + 4 * j, 4)}, {vr(ONES, 4)}, {vr(CS + 4 * j, 4)}")

    def stats(b, s):
        for r in range(0 if LS else 4):
            b(f"v_dot2_f32_bf16 v{SQ}, v{XF[s & 1] + r}, s{sOnes}, v{SQ}")
            b(f"v_dot2_f32_bf16 v{SQ + 1}, v{XF[s & 1] + r}, v{XF[s & 1] + r}, v{SQ + 1}")

    for par, b in ((0, a), (1, odd)):
        rt.clear()
        rt.update(rt0)
        for s in range(31):
            if s % 2 == 1 and (s + 1) // 2 in BS:
                b.wait(lg=rt[(s, 6)])
                b("s_barrier")
            cutp = [0, 3, 5, 7]
            for j in range(3):
                b.wait(lg=rt[(s, 2 + 2 * j)])
                if s % 2 == par:
                    csum(b, s, j)
                mm(b, j, WF[s & 1] + 4 * j, XF[s & 1], s == 0)
                emit_reads(b, s + 1, cutp[j], cutp[j + 1])
            if s % 2 != par:
                stats(b, s)
            if s == 27:
                b.lg("ds_read_b64 v[102:103], v30")
        b.wait_all(vm=False)
        if par == 1:
            for j in range(3):
                csum(b, 31, j)
        else:
            stats(b, 31)
    odd("s_branch L_p1_join")
    a.label("L_p1_join")
    mm(a, 0, WF[1], XF[1])
    a(f"v_readfirstlane_b32 s{sMode}, v102")
    a(f"v_readfirstlane_b32 s{sTag}, v103")
    if LS:
        a("s_nop 3")
    else:
        a(f"v_mov_b32 v{SQ + 2}, v{SQ}")
        a(f"v_mov_b32 v{SQ + 3}, v{SQ + 1}")
        a(f"v_mov_b32 v{XE + 2}, 0")
        a(f"v_permlane32_swap_b32 v{SQ}, v{SQ + 2}")
        a(f"v_permlane32_swap_b32 v{SQ + 1}, v{SQ + 3}")
        a(f"v_mov_b32 v{XE + 3}, 0")
        a(f"v_add_f32 v{SQ}, v{SQ}, v{SQ + 2}")
        a(f"v_add_f32 v{SQ + 1}, v{SQ + 1}, v{SQ + 3}")
        a.lg(f"ds_write_b64 v{vEr}, {vr(SQ, 2)}")
    a("s_mov_b32 exec_lo, 0x00030003")
    a("s_mov_b32 exec_hi, 0x00030003")
    for j in range(3):
        a.lg(f"ds_write_b128 v{vCw}, {vr(CS + 4 * j, 4)} offset:{j * 128}")
    a("s_mov_b64 exec, -1")
    mm(a, 1, WF[1] + 4, XF[1])
    for j in range(3):
        a(f"v_mov_b32 v{WF[0] + 4 * j + 2}, 0")
        a(f"v_mov_b32 v{WF[0] + 4 * j + 3}, 0")
    a.wait_all(vm=False)
    a("s_barrier")
    if LS:
        a.lg(f"ds_read_b128 {vr(XE, 4)}, v{vEr}")
        a.lg(f"ds_read_b32 v100, v{vRl}")
    else:
        ts = a.lg(f"ds_read_b64 {vr(SQ + 2, 2)}, v31")
    for j in range(3):
        rt[("c", j)] = a.lg(f"ds_read_b32 v{vT + 4 + j}, v{vCr} offset:{j * 128}")
    mm(a, 2, WF[1] + 8, XF[1])
    if OPT.get("det") != 4:
        stamp(a)
    if not LS:
        a.wait(lg=ts)
        a(f"v_add_f32 v{SQ}, v{SQ}, v{SQ + 2}")
        a(f"v_add_f32 v{SQ + 1}, v{SQ + 1}, v{SQ + 3}")
        a(f"v_mul_f32 v{SQ}, {hx(f2u(-1.0 / 512))}, v{SQ}")
        a(f"v_mul_f32 v{SQ + 1}, {hx(f2u(1.0 / 512))}, v{SQ + 1}")
        split_hi_lo(a, SQ, XE, vT, vT + 1)
        a(f"v_fma_f32 v{SQ + 1}, -v{SQ}, v{SQ}, v{SQ + 1}")
        a(f"v_cvt_pk_bf16_f32 v{XE + 1}, v{vT}, 0")
        a(f"v_max_f32 v{SQ + 1}, 0, v{SQ + 1}")
        a(f"v_add_f32 v{SQ + 1}, {hx(f2u(1e-5))}, v{SQ + 1}")
        a(f"v_rsq_f32 v100, v{SQ + 1}")
    for j in range(3):
        w = WF[0] + 4 * j
        a.wait(lg=rt[("c", j)])
        a(f"v_cvt_pk_bf16_f32 v{w + 1}, v{vT + 4 + j}, 0")
        a(f"v_lshlrev_b32 v{vT}, 16, v{w + 1}")
        a(f"v_sub_f32 v{vT}, v{vT + 4 + j}, v{vT}")
        a(f"v_cvt_pk_bf16_f32 v{w}, v{vT + 4 + j}, v{vT}")
        if j == 0 and not LS:
            a.lg(f"ds_write_b32 v{vRl}, v100")
    for j in range(3):
        mm(a, j, WF[0] + 4 * j, XE)
    a(f"v_mul_f32 v101, {hx(f2u(0.25 * LOG2E))}, v100")
    for g in range(4):
        trv = a.lg(f"ds_read_b128 {vr(RV + 4 * g, 4)}, v{vRr} offset:{g * 32}")
    a("s_nop 4")
    P = 32
    for r in range(0, 16, 2):
        a(f"v_pk_mul_f32 {vr(accQ + r, 2)}, {vr(accQ + r, 2)}, v[100:101] op_sel:[0,1] op_sel_hi:[1,1]")
    for i in range(8):
        a(f"v_cvt_pk_bf16_f32 v{P + i}, v{accQ + 2 * i}, v{accQ + 2 * i + 1}")
    stores(a, [f"buffer_store_dwordx4 {vr(P, 4)}, v{vL16}, {sr(sWS, 4)}, s46 offen",
               f"buffer_store_dwordx4 {vr(P + 4, 4)}, v{vL16}, {sr(sWS, 4)}, s47 offen"])
    for r in range(0, 16, 2):
        a(f"v_pk_mul_f32 {vr(accK + r, 2)}, {vr(accK + r, 2)}, v[100:101] op_sel_hi:[1,0]")
    for i in range(8):
        a(f"v_cvt_pk_bf16_f32 v{P + 8 + i}, v{accK + 2 * i}, v{accK + 2 * i + 1}")
    stores(a, [f"buffer_store_dwordx4 {vr(P + 8, 4)}, v{vKoff}, {sr(sWS, 4)}, s38 offen",
               f"buffer_store_dwordx4 {vr(P + 12, 4)}, v{vKoff}, {sr(sWS, 4)}, s39 offen"])
    a.wait(lg=trv)
    for r in range(0, 16, 2):
        a(f"v_pk_mul_f32 {vr(accV + r, 2)}, {vr(accV + r, 2)}, {vr(RV + r, 2)}")
    for i in range(8):
        a(f"v_cvt_pk_bf16_f32 v{P + 16 + i}, v{accV + 2 * i}, v{accV + 2 * i + 1}")
    stores(a, [f"buffer_store_dwordx4 {vr(P + 16, 4)}, v{vVoff}, {sr(sWS, 4)}, s38 offen offset:1024",
               f"buffer_store_dwordx4 {vr(P + 20, 4)}, v{vVoff}, {sr(sWS, 4)}, s38 offen offset:1536"])
    loc = a.vm_issued - 1
    a.vm(f"buffer_store_dwordx4 {vr(P + 8, 4)}, v{vKoff}, {sr(sWS, 4)}, s36 offen {GM()}")
    a.vm(f"buffer_store_dwordx4 {vr(P + 12, 4)}, v{vKoff}, {sr(sWS, 4)}, s37 offen {GM()}")
    a.vm(f"buffer_store_dwordx4 {vr(P + 16, 4)}, v156, {sr(sWS, 4)}, s36 offen offset:1024 {GM()}")
    a.vm(f"buffer_store_dwordx4 {vr(P + 20, 4)}, v156, {sr(sWS, 4)}, s36 offen offset:1536 {GM()}")
    stamp(a)
    a(f"v_mov_b32 v{vT}, 0")
    a(f"v_mov_b32 v{vT + 1}, s{sTag}")
    a("s_mov_b64 exec, 1")
    if OPT["p1_cnt"]:
        a.wait(vm=loc)
    else:
        a.wait_all(lg=False)
    stores(a, [f"buffer_store_dword v{vT + 1}, v{vT}, {sr(sWS, 4)}, s48 offen"])
    if OPT.get("det") == 4:
        stamp(a)
    a("s_mov_b64 exec, -1")
    return a, odd, h, x


def phase2(a, l, h):
    sHead, sQb, sKh, sQs = 25, 26, 27, 28
    sVm = 34
    vKrd, vVrd, vIdx, vXw, vXr = 3, 4, 5, 6, 7
    Qf = [8, 12]
    Kf, Vf = 16, 32
    S = [64, 80]
    O = [96, 112]
    NEG = 128
    T = 144
    XCH = 131072
    BARS, CB = [[6, 12, 28], {2: 1, 4: 3}] if OPT["p2_sched"] == 0 else [[6, 14, 22, 36], {2: 1, 3: 2, 5: 4}]
    SYN = XCH + 7 * 3072 + 2048 + 4
    h(f"v_mov_b32 v22, {SYN}")
    h("v_mov_b32 v23, 0")
    for off in (0, 4, 8, 32, 16, 20, 24, 48):
        h(f"ds_write_b32 v22, v23 offset:{off}")

    def ready(half, n):
        h(f"v_mov_b32 v23, {n}")
        h(f"ds_write_b32 v22, v23 offset:{16 * half}")

    wl_n = [0]

    def wait_lds(off, n):
        wl_n[0] += 1
        k = wl_n[0]
        h("s_mov_b32 s58, 0x100000")
        h.label(f"L_prog{k}")
        h(f"ds_read_b32 v24, v22 offset:{off}")
        h("s_sub_u32 s58, s58, 1")
        h("s_waitcnt lgkmcnt(0)")
        h("v_readfirstlane_b32 s37, v24")
        h("s_cmp_eq_u32 s58, 0")
        h(f"s_cbranch_scc1 L_prog{k}_x")
        h(f"s_cmp_ge_u32 s37, {n}")
        h(f"s_cbranch_scc1 L_prog{k}_x")
        h(f"s_sleep {OPT['aux_sl']}")
        h(f"s_branch L_prog{k}")
        h.label(f"L_prog{k}_x")

    def wait_prog(k):
        for half in range(2):
            wait_lds((8 if k == 0 else 32) + 16 * half, 4)

    h(f"s_lshr_b32 s{sHead}, s2, 3")
    h(f"s_mul_i32 s33, s{sHead}, {HS()}")
    h(f"s_add_u32 s33, s33, {KVG}")
    h(f"s_lshr_b32 s61, s{sHead}, 1")
    h("s_lshl_b32 s61, s61, 10")
    h(f"s_add_u32 s61, s61, {FG1}")
    h(f"v_lshrrev_b32 v6, 3, v{vLane}")
    h("v_lshlrev_b32 v6, 7, v6")
    h(f"v_and_b32 v7, 7, v{vLane}")
    h("v_lshl_add_u32 v6, v7, 2, v6")
    h("s_mov_b64 s[62:63], 0")
    h("s_mov_b32 s59, 0x40000")
    h("s_waitcnt lgkmcnt(0)")
    h("s_barrier")
    h.nostamp = OPT.get("det") != 3
    stamp(h)
    items = [(0, 1, None), (1, 1, None), (0, 2, None), (0, 3, (0, 1)), (0, 4, (0, 2)), (1, 2, (0, 3)), (1, 3, (1, 1)),
             (1, 4, (1, 2)), (0, 5, None), (0, 6, None), (1, 5, None), (0, 7, None), (1, 6, None), (1, 7, None), (0, 8, None)]
    if OPT["kv_gate"] == 0:
        items = [(hf, c, None) for c in range(1, 8) for hf in range(2)] + [(0, 8, None)]
    if OPT["kv_gate"] == 3:
        items = [(0, 1, None), (1, 1, None), (0, 2, None), (1, 2, None), (0, 3, (0, 2)), (0, 4, None), (1, 3, (0, 3)), (1, 4, None),
                 (0, 5, (1, 2)), (0, 6, None), (1, 5, None), (0, 7, None), (1, 6, None), (1, 7, None), (0, 8, None)]
    if OPT["kv_gate"] == 4:
        items = [(0, 1, None), (1, 1, None), (0, 2, None), (0, 3, (0, 1)), (1, 2, None), (0, 4, (0, 2)), (1, 3, None), (1, 4, None),
                 (0, 5, None), (0, 6, None), (1, 5, None), (0, 7, None), (1, 6, None), (1, 7, None), (0, 8, None)]
    if OPT["kv_gate"] == 2:
        items = [(hf, c, None) for hf, c, _ in items]
    pend = []

    def flush(keep):
        while len(pend) > keep:
            hf, c, tok = pend.pop(0)
            h.wait(vm=tok)
            ready(hf, c)

    for n, (half, c, gate) in enumerate(items):
        if gate:
            flush(0)
            wait_lds(4 + 16 * gate[0], gate[1])
        h(f"s_add_u32 s36, s2, {c}")
        h("s_and_b32 s36, s36, 7")
        h("s_lshl_b32 s36, s36, 3")
        if half == 0:
            h("s_bitcmp1_b64 s[62:63], s36")
            h(f"s_cbranch_scc1 L_g1_have{c}")
            h.label(f"L_g1_poll{c}")
            h(f"buffer_load_dword v7, v6, {sr(sWS, 4)}, s61 offen sc1")
            h("s_sub_u32 s59, s59, 1")
            h("s_waitcnt vmcnt(0)")
            for hf, cc, _ in pend:
                ready(hf, cc)
            h(f"v_cmp_eq_u32 vcc, s{sTag}, v7")
            h("s_cmp_eq_u32 s59, 0")
            h("s_cselect_b64 s[62:63], -1, vcc")
            h("s_cselect_b32 s59, 1, s59")
            for sh in (1, 2, 4):
                h(f"s_lshr_b64 s[34:35], s[62:63], {sh}")
                h("s_and_b64 s[62:63], s[62:63], s[34:35]")
            h("s_bitcmp1_b64 s[62:63], s36")
            h(f"s_cbranch_scc0 L_g1_poll{c}")
            h.label(f"L_g1_have{c}")
        if n in (0, 3, 8, 14):
            stamp(h)
        if c == 8:
            break
        h("s_lshl_b32 s36, s36, 11")
        h("s_add_u32 s36, s36, s33")
        for q in range(2):
            h(f"s_mov_b32 m0, {half * 65536 + c * 8192 + q * 4096}")
            h(f"s_add_u32 s37, s36, {half * 8192 + q * 4096}")
            for i in range(4):
                tok = h.vm(f"buffer_load_dwordx4 v{vL16}, {sr(sWS, 4)}, s37 offen offset:{i * 1024} sc1 lds")
        pend.append((half, c, tok))
        if n == OPT["t_at"]:
            touch_setup(h)
            touch_weights(h)
        flush(OPT['kv_fl'])
    if OPT["t_at"] > 20:
        touch_setup(h)
    h(f"v_lshrrev_b32 v8, 3, v{vLane}")
    h(f"v_and_b32 v9, 7, v{vLane}")
    h(f"v_lshrrev_b32 v10, 2, v{vLane}")
    h("v_and_b32 v10, 4, v10")
    h("v_xor_b32 v10, v10, v9")
    h("v_lshlrev_b32 v10, 4, v10")
    h("v_lshl_add_u32 v10, v8, 10, v10")
    h("v_lshrrev_b32 v11, 1, v8")
    h("v_xor_b32 v11, v11, v9")
    h("v_lshlrev_b32 v11, 4, v11")
    h("v_lshl_add_u32 v11, v8, 10, v11")
    h("v_xor_b32 v12, 64, v11")
    h(f"v_and_b32 v13, 2, v{vLane}")
    h("v_lshlrev_b32 v13, 5, v13")
    h("v_sub_u32 v13, 32, v13")
    h("s_lshr_b32 s61, s2, 4")
    h("s_mul_i32 s61, s61, 192")
    for i in range(3):
        h(f"v_add_u32 v14, {64 * i}, v{vLane}")
        h("v_mul_u32_u24 v14, 171, v14")
        h("v_lshrrev_b32 v14, 11, v14")
        h(f"v_mul_u32_u24 v14, {2752 - 192}, v14")
        h(f"v_add3_u32 v{16 + i}, v{vL16}, v14, s61")
        h(f"v_add_u32 v{19 + i}, v{16 + i}, v13")
    h("s_bfe_u32 s60, s2, 0x30003")
    h("s_lshl_b32 s60, s60, 7")
    flush(0)
    stamp(h)
    if OPT["t_at"] > 20:
        touch_weights(h)
    h("s_and_b32 s36, s2, 7")
    h("s_lshl_b32 s36, s36, 3")
    h(f"s_lshr_b32 s{sT1}, s{sT0}, 2")
    h(f"s_add_u32 s36, s36, s{sT1}")
    h(f"s_mul_i32 s36, s36, {RT}")
    h(f"s_and_b32 s{sT1}, s{sT0}, 3")
    h(f"s_mul_i32 s{sT1}, s{sT1}, {52 * 128}")
    h(f"s_add_u32 s36, s36, s{sT1}")
    h(f"s_add_u32 s36, s36, {96 * 1024}")
    h("s_mov_b32 exec_hi, 0xfffff")
    h.vm(f"buffer_load_dword v5, v3, {sr(sWS, 4)}, s36 offen")
    h(f"s_lshl_b32 s{sT1}, s{sT0}, 11")
    h(f"v_add_u32 v4, s{sT1}, v3")
    h("s_mov_b64 exec, 0xffff")
    code_prefetch(h, "L_p2_tail", 38, 4, 5, "p2")
    h("s_mov_b64 exec, -1")
    stamp(h)
    wait_prog(0)
    stamp(h)
    for half in range(2):
        h(f"s_mov_b32 m0, {half * 65536}")
        h(f"s_add_u32 s36, s60, {half * 32 * 8192}")
        h("s_mov_b32 s37, 32")
        h.label(f"L_pre_wo{half}")
        h(f"buffer_load_dwordx4 v10, {sr(16, 4)}, s36 offen lds")
        h("s_add_u32 m0, m0, 1024")
        h("s_add_u32 s36, s36, 8192")
        h("s_sub_u32 s37, s37, 1")
        h("s_cmp_lg_u32 s37, 0")
        h(f"s_cbranch_scc1 L_pre_wo{half}")
        h("s_waitcnt vmcnt(16)")
    h("s_lshr_b32 s36, s2, 6")
    h("s_lshl_b32 s36, s36, 16")
    h("s_add_u32 s36, s36, s60")
    for i in range(8):
        h(f"s_mov_b32 m0, {RES3 + i * 1024}")
        h(f"s_add_u32 s37, s36, {i * 8192}")
        h(f"buffer_load_dwordx4 v{11 + (i & 1)}, {sr(44, 4)}, s37 offen lds")
    h("s_waitcnt vmcnt(16)")
    if OPT["retouch"]:
        h("s_and_b32 s36, s2, 7")
        h("s_lshl_b32 s36, s36, 3")
        h(f"s_lshr_b32 s{sT1}, s{sT0}, 2")
        h(f"s_add_u32 s36, s36, s{sT1}")
        h(f"s_mul_i32 s36, s36, {RT}")
        h(f"s_and_b32 s{sT1}, s{sT0}, 3")
        h(f"s_lshl_b32 s{sT1}, s{sT1}, 13")
        h(f"s_add_u32 s36, s36, s{sT1}")
        h(f"s_add_u32 s37, s36, {QO}")
        h(f"buffer_load_dword v5, v3, {sr(sWS, 4)}, s37 offen")
        h(f"buffer_load_dword v5, v3, {sr(sWS, 4)}, s36 offen")
        if OPT["retouch"] > 1:
            h(f"s_add_u32 s37, s36, {GO}")
            h(f"buffer_load_dword v5, v3, {sr(sWS, 4)}, s37 offen")
    h("s_cmp_ge_u32 s2, 240")
    h("s_cbranch_scc1 L_pre_end")
    stamp(h)
    wait_prog(1)
    stamp(h)
    for st in range(4):
        for g2 in range(2):
            for mat in range(2):
                h(f"s_mov_b32 m0, {WS4[st] + (g2 * 2 + mat) * 3072}")
                h(f"s_mov_b32 s36, {(st * 32 + g2 * 16) * 2752}")
                for i in range(3):
                    h(f"buffer_load_dwordx4 v{16 + 3 * mat + i}, {sr(20 if mat == 0 else 48, 4)}, s36 offen offset:{i * 1024} lds")
        h("s_waitcnt vmcnt(40)")
    stamp(h)
    h.label("L_pre_end")
    h("s_waitcnt vmcnt(0)")
    if OPT.get("det") == 3:
        h(f"s_mov_b32 s{sWave}, 4")
        stamp_flush(h)
    h("s_endpgm")

    def init(b):
        b(f"s_lshr_b32 s{sHead}, s2, 3")
        b(f"s_and_b32 s{sQb}, s2, 7")
        b(f"s_lshr_b32 s{sKh}, s{sWave}, 2")
        b(f"s_and_b32 s{sQs}, s{sWave}, 3")
        b(f"v_and_b32 v{T}, 27, v{vLane}")
        b(f"v_cmp_eq_u32 vcc, 16, v{T}")
        b(f"v_mov_b32 v{T}, 0x3f803f80")
        b(f"v_mov_b32 v{vIdx}, 0xdddd")
        for r in range(32):
            b(f"v_cndmask_b32 v{Vf + r}, 0, v{T}, vcc")
        b(f"s_mov_b32 s{sVm}, 0x0000ffff")
        b(f"s_mov_b32 s{sVm + 1}, 0x0000ffff")
        b(f"s_lshl_b32 s{sT0}, s{sKh}, 16")
        b(f"v_add_u32 v{vKrd}, s{sT0}, v{vL16}")
        b(f"v_lshrrev_b32 v{T}, 5, v{vLane}")
        b(f"v_and_b32 v{T + 1}, 15, v{vLane}")
        b(f"v_lshlrev_b32 v{T + 1}, 4, v{T + 1}")
        b(f"v_lshl_add_u32 v{T}, v{T}, 8, v{T + 1}")
        b(f"v_add_u32 v{vVrd}, s{sT0}, v{T}")
        b(f"s_mul_i32 s{sT0}, s{sWave}, 3072")
        b(f"s_add_u32 s{sT0}, s{sT0}, {XCH}")
        b(f"v_add_u32 v{vXw}, s{sT0}, v{vL16}")
        b(f"s_xor_b32 s{sT1}, s{sWave}, 4")
        b(f"s_mul_i32 s{sT0}, s{sT1}, 3072")
        b(f"s_add_u32 s{sT0}, s{sT0}, {XCH}")
        b(f"v_add_u32 v{vXr}, s{sT0}, v{vL16}")
        b(f"s_lshl_b32 s{sT0}, s{sQs}, 1")
        b(f"s_add_u32 s{sT0}, s{sT0}, s{sKh}")
        b(f"s_lshl_b32 s{sT0}, s{sT0}, 10")
        b(f"s_add_u32 s{sT0}, s{sT0}, {XCH}")
        b(f"v_add_u32 v{T + 2}, s{sT0}, v{vL16}")
        b(f"v_xor_b32 v{T + 3}, 1024, v{T + 2}")
        b(f"s_lshl_b32 s{sT0}, s{sKh}, 4")
        b(f"s_add_u32 s{sT0}, s{sT0}, {SYN}")
        b(f"v_mov_b32 v{T + 6}, s{sT0}")
        b(f"v_mov_b32 v{T + 7}, 1")
        for c in range(2):
            for r in range(16):
                b(f"v_mov_b32 v{O[c] + r}, 0")
        b(f"s_lshl_b32 s57, s{sQb}, 2")
        b(f"s_add_u32 s57, s57, s{sQs}")
        b(f"s_lshl_b32 s55, s57, 8")
        b(f"s_lshl_b32 s{sT1}, s{sHead}, 1")
        b(f"s_add_u32 s{sT1}, s{sT1}, s{sKh}")
        b(f"s_lshl_b32 s{sT1}, s{sT1}, 2")
        b(f"s_add_u32 s55, s55, s{sT1}")
        b(f"s_add_u32 s55, s55, {F2}")
        b(f"s_lshl_b32 s57, s57, 1")
        b(f"s_add_u32 s57, s57, s{sKh}")
        b(f"s_mul_i32 s57, s57, {RT}")
        b(f"s_lshl_b32 s{sT1}, s{sHead}, 10")
        b(f"s_add_u32 s57, s57, s{sT1}")
        b(f"s_add_u32 s57, s57, {QO}")

    init(l)
    l(f"s_lshl_b32 s40, s{sQb}, 9")
    l(f"s_lshr_b32 s{sT0}, s{sHead}, 1")
    l(f"s_lshl_b32 s{sT0}, s{sT0}, 5")
    l(f"s_add_u32 s40, s40, s{sT0}")
    l(f"s_add_u32 s40, s40, {FL1}")
    l(f"s_lshl_b32 s36, s{sQb}, 2")
    l(f"s_add_u32 s36, s36, s{sQs}")
    l(f"s_mul_i32 s36, s36, {2 * RT}")
    l(f"s_lshl_b32 s{sT0}, s{sHead}, 10")
    l(f"s_add_u32 s37, s36, s{sT0}")
    l(f"s_add_u32 s36, s37, s{sT0}")
    l(f"s_add_u32 s37, s37, {QO}")
    l(f"s_add_u32 s42, s36, {RT - 2048}")
    l(f"s_add_u32 s43, s37, {RT - 1024}")
    l(f"s_lshr_b32 s38, s{sQs}, 1")
    l("s_lshl_b32 s38, s38, 16")
    l(f"s_and_b32 s{sT0}, s{sQs}, 1")
    l(f"s_lshl_b32 s{sT0}, s{sT0}, 12")
    l(f"s_add_u32 s38, s38, s{sT0}")
    l(f"s_lshl_b32 s39, s{sQs}, 11")
    l(f"s_add_u32 s39, s39, {XCH}")
    l(f"v_lshlrev_b32 v{T + 4}, 2, v{vLane}")
    l("s_mov_b32 s59, 0x40000")
    l("s_mov_b64 exec, 0xff")
    l.label("L_poll_l1")
    l(f"buffer_load_dword v{T + 5}, v{T + 4}, {sr(sWS, 4)}, s40 offen sc1")
    l("s_sub_u32 s59, s59, 1")
    l.wait_all(lg=False)
    l(f"v_cmp_ne_u32 vcc, s{sTag}, v{T + 5}")
    l("s_cmp_eq_u32 s59, 0")
    l("s_cbranch_scc1 L_poll_l1_x")
    l("s_cbranch_vccnz L_poll_l1")
    l.label("L_poll_l1_x")
    if OPT.get("det") != 2:
        stamp(l)
    l("s_mov_b64 exec, -1")
    l("s_mov_b32 m0, s39")
    l("s_nop 0")
    for i in range(2):
        l.vm(f"buffer_load_dwordx4 v{vL16}, {sr(sWS, 4)}, s{(37, 43)[i]} offen offset:{i * 1024} sc1 lds")
    l("s_mov_b32 m0, s38")
    l("s_nop 0")
    for i in range(4):
        l.vm(f"buffer_load_dwordx4 v{vL16}, {sr(sWS, 4)}, s{(36, 42)[i // 2]} offen offset:{i * 1024} sc1 lds")
    l.wait_all()
    if OPT.get("det") != 2:
        stamp(l)
    l("s_branch L_p2_b0")
    init(a)
    a(f"v_mov_b32 v{T + 4}, 0")
    a(f"v_mov_b32 v{T + 5}, s{sTag}")

    def gflag():
        a.wait_all(lg=False)
        a("s_mov_b64 exec, 1")
        a.vm(f"buffer_store_dword v{T + 5}, v{T + 4}, {sr(sWS, 4)}, s49 offen sc1")
        a("s_mov_b64 exec, -1")

    if not OPT["p2_defer"]:
        gflag()
    if OPT.get("det") == 4:
        stamp(a)
    a.label("L_p2_b0")

    def emit_pair(p, extra=()):
        for t in (2 * p, 2 * p + 1):
            a.lg(f"ds_read_b128 {vr(Kf + 4 * (t & 3), 4)}, v{vKrd} offset:{t * 2048}")
        a(f"s_mov_b64 exec, {sr(sVm, 2)}")
        for t in (2 * p, 2 * p + 1):
            a.lg(f"ds_read_b128 {vr(Vf + 8 * (t & 3), 4)}, v{vVrd} offset:{t * 2048 + 1024}")
            tok = a.lg(f"ds_read_b128 {vr(Vf + 8 * (t & 3) + 4, 4)}, v{vVrd} offset:{t * 2048 + 1536}")
        if extra:
            a("s_mov_b64 exec, 1")
            for e in extra:
                a.lg(e)
        a("s_mov_b64 exec, -1")
        return tok

    def qk(u):
        t, c = divmod(u, 2)
        return f"v_mfma_f32_32x32x16_bf16 {vr(S[u & 1], 16)}, {vr(Kf + 4 * (t & 3), 4)}, {vr(Qf[1 - c], 4)}, 0"

    def pv(u, i):
        t, c = divmod(u, 2)
        return (f"v_smfmac_f32_32x32x32_bf16 {vr(O[1 - c], 16)}, {vr(Vf + 8 * (t & 3) + 4 * i, 4)}, "
                f"{vr(S[u & 1] + 8 * i, 8)}, v{vIdx}")

    NU = 64
    PRIO = [{0: 2, 29: 1, 53: 0}, {0: 2, 29: 1, 60: 0}, {0: 3, 29: 2, 53: 1, 61: 0}][OPT["p2_pr"]]
    rtok = {}

    def need(u, n):
        a.wait(lg=rtok[u])
        a.label(f"L_rdy{u}")
        a(f"v_readfirstlane_b32 s36, v{T + 8}")
        a("s_nop 0")
        a(f"s_cmp_ge_u32 s36, {n}")
        a(f"s_cbranch_scc0 L_rdy{u}_spin")
        sp.label(f"L_rdy{u}_spin")
        sp("s_sleep 2")
        sp(f"ds_read_b32 v{T + 8}, v{T + 6}")
        sp("s_sub_u32 s59, s59, 1")
        sp("s_waitcnt lgkmcnt(0)")
        sp("s_cmp_lg_u32 s59, 0")
        sp(f"s_cbranch_scc1 L_rdy{u}")
        sp("s_mov_b32 s59, 1")
        sp(f"v_mov_b32 v{T + 8}, 7")
        sp("s_nop 0")
        sp(f"s_branch L_rdy{u}")

    sp = Asm()
    a("s_mov_b32 s59, 0x100000")
    a("s_barrier")
    stamp(a)
    a.lg(f"ds_read_b128 {vr(Qf[1], 4)}, v{T + 3}")
    a.lg(f"ds_read_b128 {vr(Qf[0], 4)}, v{T + 2}")
    ptok = {0: emit_pair(0)}
    a.wait(lg=ptok[0] - 5)
    a(qk(0))
    if OPT["p2_defer"]:
        a(f"s_cmp_lg_u32 s{sKh}, 0")
        a("s_cbranch_scc1 L_p2_nogf")
        gflag()
        a.label("L_p2_nogf")
    a.wait(lg=ptok[0])
    a("s_nop 9")
    for u in range(NU):
        X = S[u & 1]
        p, pu = divmod(u, 4)
        if u in PRIO:
            a(f"s_setprio {PRIO[u]}")
        ex = [f"v_exp_f32 v{X + i}, v{X + i}" for i in range(16)]
        a(ex[0]); a(ex[1])
        if u > 0:
            a(pv(u - 1, 1))
        a(ex[2]); a(ex[3]); a(ex[4])
        if u + 1 < NU:
            if pu == 3:
                a.wait(lg=ptok[p + 1])
            a(qk(u + 1))
        late = p + 1 == 2
        if p + 1 < 16 and pu == (2 if late else 0):
            if (p + 1) % 2 == 0:
                need(u, (p + 1) // 2)
            extra = []
            if u in (28, 52):
                extra.append(f"ds_add_u32 v{T + 6}, v{T + 7} offset:{8 if u == 28 else 32}")
            if (p + 1) % 2 == 1 and (p + 2) // 2 <= 3 and OPT["kv_gate"] in (1, 3, 4):
                a(f"v_mov_b32 v{T + 9}, {(p + 2) // 2}")
                extra.append(f"ds_max_u32 v{T + 6}, v{T + 9} offset:4")
            ptok[p + 1] = emit_pair(p + 1, extra)
        nu = u + 1
        if nu < NU and (nu // 4 + 1) % 2 == 0 and nu // 4 + 1 < 16 and nu % 4 == (2 if nu // 4 + 1 == 2 else 0):
            rtok[nu] = a.lg(f"ds_read_b32 v{T + 8}, v{T + 6}")
        for i in range(5, 10):
            a(ex[i])
        a(pv(u, 0))
        for i in range(10, 16):
            a(ex[i])
            if u == NU - 1 and i == 13:
                a.lg(f"ds_write_b128 v{vXw}, {vr(O[1], 4)}")
                a.lg(f"ds_write_b128 v{vXw}, {vr(O[1] + 4, 4)} offset:1024")
                a.lg(f"ds_write_b32 v{vXw}, v{O[1] + 8} offset:2048")
    a.label("L_p2_tail")
    a("s_nop 1")
    a(pv(NU - 1, 1))
    a(f"s_mov_b32 s{sT0}, {hx(f2u(2.0 ** 80))}")
    a(f"s_mov_b32 s{sT1}, {hx(f2u(2.0 ** -80))}")
    a("s_mov_b32 s56, 0")
    a.wait_all(vm=False)
    a("s_barrier")
    t2 = a.lg(f"ds_read_b32 v{T + 8}, v{vXr} offset:2048")
    a.lg(f"ds_read_b128 {vr(T, 4)}, v{vXr}")
    t1 = a.lg(f"ds_read_b128 {vr(T + 4, 4)}, v{vXr} offset:1024")
    a("s_nop 2")
    a.wait(lg=t2)
    a(f"v_add_f32 v{O[0] + 8}, v{O[0] + 8}, v{T + 8}")
    a.wait(lg=t1)
    for r in range(0, 8, 2):
        a(f"v_pk_add_f32 {vr(O[0] + r, 2)}, {vr(O[0] + r, 2)}, {vr(T + r, 2)}")
    a.label("L_p2_finish")
    a(f"v_rcp_f32 v{T + 8}, v{O[0] + 8}")
    a(f"v_cmp_gt_f32 s[40:41], s{sT0}, v{O[0] + 8}")
    a(f"v_cmp_lt_f32 s[42:43], s{sT1}, v{O[0] + 8}")
    for r in range(0, 8, 2):
        a(f"v_pk_mul_f32 {vr(O[0] + r, 2)}, {vr(O[0] + r, 2)}, {vr(T + 8, 2)} op_sel_hi:[1,0]")
    for i in range(4):
        a(f"v_cvt_pk_bf16_f32 v{T + 4 + i}, v{O[0] + 2 * i}, v{O[0] + 2 * i + 1}")
    a(f"v_dot2_f32_bf16 v{T}, v{T + 4}, v{T + 4}, 0")
    for i in range(1, 4):
        a(f"v_dot2_f32_bf16 v{T}, v{T + 4 + i}, v{T + 4 + i}, v{T}")
    a("s_and_b64 s[40:41], s[40:41], s[42:43]")
    a("s_cmp_lg_u32 s56, 0")
    a("s_cbranch_scc1 L_p2_store")
    a(f"v_cmp_gt_f32 vcc, s{sT0}, v{T}")
    a("s_nop 0")
    a("s_and_b64 s[40:41], s[40:41], vcc")
    a("s_cmp_eq_u64 s[40:41], -1")
    a("s_cbranch_scc0 L_p2_fallback")
    a.label("L_p2_store")
    stores(a, [f"buffer_store_dwordx4 {vr(T + 4, 4)}, v{vL16}, {sr(sWS, 4)}, s57 offen"])
    a("s_barrier")
    stamp(a)

    f = Asm()
    f.label("L_p2_fallback")
    vV2, vM = T + 11, T + 12
    f(f"s_lshl_b32 s37, s{sKh}, 16")
    f(f"v_subrev_u32 v{vV2}, s37, v{vVrd}")
    f(f"s_mul_i32 s36, s{sHead}, {HS()}")
    f(f"s_add_u32 s36, s36, {KVG}")
    f(f"v_mov_b32 v{vM}, 0xff800000")
    f("s_mov_b32 s56, 0")
    f("s_mov_b32 s37, s36")
    f.label("L_p2_fb_max")
    f(f"buffer_load_dwordx4 {vr(Kf, 4)}, v{vL16}, {sr(sWS, 4)}, s37 offen sc1")
    f("s_waitcnt vmcnt(0)")
    f(f"v_mfma_f32_32x32x16_bf16 {vr(S[0], 16)}, {vr(Kf, 4)}, {vr(Qf[0], 4)}, 0")
    f("s_nop 15")
    for i in range(8):
        f(f"v_max3_f32 v{vM}, v{vM}, v{S[0] + 2 * i}, v{S[0] + 2 * i + 1}")
    f("s_add_u32 s37, s37, 2048")
    f("s_add_u32 s56, s56, 1")
    f("s_cmp_lt_u32 s56, 64")
    f("s_cbranch_scc1 L_p2_fb_max")
    f(f"v_mov_b32 v{T}, v{vM}")
    f("s_nop 1")
    f(f"v_permlane32_swap_b32 v{vM}, v{T}")
    f("s_nop 1")
    f(f"v_max_f32 v{vM}, v{vM}, v{T}")
    for r in range(16):
        f(f"v_sub_f32 v{NEG + r}, 0, v{vM}")
        f(f"v_mov_b32 v{O[0] + r}, 0")
    f("s_mov_b32 s56, 0")
    f("s_mov_b32 s37, s36")
    f.label("L_p2_fb_pv")
    f(f"buffer_load_dwordx4 {vr(Kf, 4)}, v{vL16}, {sr(sWS, 4)}, s37 offen sc1")
    f(f"s_mov_b64 exec, {sr(sVm, 2)}")
    f(f"buffer_load_dwordx4 {vr(Vf, 4)}, v{vV2}, {sr(sWS, 4)}, s37 offen offset:1024 sc1")
    f(f"buffer_load_dwordx4 {vr(Vf + 4, 4)}, v{vV2}, {sr(sWS, 4)}, s37 offen offset:1536 sc1")
    f("s_mov_b64 exec, -1")
    f("s_waitcnt vmcnt(0)")
    f(f"v_mfma_f32_32x32x16_bf16 {vr(S[0], 16)}, {vr(Kf, 4)}, {vr(Qf[0], 4)}, {vr(NEG, 16)}")
    f("s_nop 15")
    for i in range(16):
        f(f"v_exp_f32 v{S[0] + i}, v{S[0] + i}")
    f("s_nop 1")
    f(f"v_smfmac_f32_32x32x32_bf16 {vr(O[0], 16)}, {vr(Vf, 4)}, {vr(S[0], 8)}, v{vIdx}")
    f(f"v_smfmac_f32_32x32x32_bf16 {vr(O[0], 16)}, {vr(Vf + 4, 4)}, {vr(S[0] + 8, 8)}, v{vIdx}")
    f("s_nop 15")
    f("s_add_u32 s37, s37, 2048")
    f("s_add_u32 s56, s56, 1")
    f("s_cmp_lt_u32 s56, 64")
    f("s_cbranch_scc1 L_p2_fb_pv")
    f("s_branch L_p2_finish")
    f.lines += sp.lines
    return f


def phase_res(a, h, k3, pre_publish=None):
    uid = "p3" if k3 else "p5"
    KS = 32 if k3 else 86
    ACT = QO if k3 else GO
    NST = (KS + 3) // 4
    NA = OPT["p5_na"]
    WSL = WS3 if k3 else WS5[:19 - NA]
    NW = len(WSL)
    if k3:
        ASL = [(122880, -9), (131072, -9), (139264, -9), (147456, -9), (57344, -9), (122880, 0), (WS3[0], 0), (131072, 1)]
    else:
        ASL = [(163840 - NA * 8192 + (n % NA) * 8192, n - NA if n >= NA else -9) for n in range(NST)]
    RESO = RES3 if k3 else 24576
    busy = {WSL[(NST - 1) % NW], WSL[(NST - 2) % NW]}
    TRO = [o for o in WSL if o + 8192 in WSL and not ({o, o + 8192} & busy)][0]
    sW, sIO = 16, 20
    sWr, sWc, sRb, sCb = 25, 26, 27, 28
    T = 12
    for b in (a, h):
        b(f"s_and_b32 s{sT0}, s2, 7")
        b(f"s_lshl_b32 s{sRb}, s{sT0}, 2")
        b(f"s_lshr_b32 s34, s2, 6")
        b(f"s_add_u32 s{sRb}, s{sRb}, s34")
        b(f"s_bfe_u32 s{sCb}, s2, 0x30003")
        b(f"s_and_b32 s{sWr}, s{sWave}, 1")
        b(f"s_bfe_u32 s{sWc}, s{sWave}, 0x10001")
    vWoff, vXg = 3, 5
    h(f"v_lshrrev_b32 v{T}, 3, v{vLane}")
    h(f"v_and_b32 v{T + 1}, 7, v{vLane}")
    h(f"v_lshrrev_b32 v{T + 2}, 2, v{vLane}")
    h(f"v_and_b32 v{T + 2}, 4, v{T + 2}")
    h(f"v_xor_b32 v{T + 2}, v{T + 2}, v{T + 1}")
    h(f"v_lshlrev_b32 v{T + 2}, 4, v{T + 2}")
    h(f"v_lshl_add_u32 v{T + 2}, v{T}, 10, v{T + 2}")
    h(f"s_mul_i32 s44, s{sHw}, {3 * 16384}")
    h(f"s_lshl_b32 s{sT0}, s{sCb}, 7")
    h(f"v_add_u32 v{vWoff}, s{sT0}, v{T + 2}")
    h(f"v_add_u32 v{vWoff + 1}, {8192 - 1024}, v{vWoff}")
    h(f"s_lshl_b32 s32, s{sHw}, 11")
    h(f"s_lshl_b32 s33, s{sRb}, 1")
    h(f"s_add_u32 s33, s33, s{sWr}")
    h(f"s_mul_i32 s34, s33, {RT}")
    h(f"s_lshl_b32 s{sT1}, s{sWc}, 11")
    h(f"s_add_u32 s34, s34, s{sT1}")
    h(f"s_add_u32 s34, s34, {ACT}")
    h(f"s_lshl_b32 s35, s{sWr}, 12")
    h(f"s_add_u32 s35, s35, s{sT1}")
    if k3:
        pass
    else:
        h(f"s_mul_i32 s36, s33, {RT}")
        h(f"s_lshl_b32 s{sT0}, s{sCb}, 12")
        h(f"s_add_u32 s36, s36, s{sT0}")
        h(f"s_add_u32 s36, s36, s{sT1}")
    srd(h, sW, KWO if k3 else KD, KS * 16 * 1024)
    if pre_publish is not None:
        publish(h, pre_publish, T + 4)
    dr = Drip(h)

    def issue_w(st):
        cl = [(4 * st + w >= 29) + (4 * st + w >= 58) for w in range(4)]
        pre = [f"s_add_u32 s42, s44, {hx((12 * st - 86 * cl[0]) * 16384)}"]
        if cl[3] != cl[0]:
            pre += [f"s_add_u32 s45, s44, {hx((12 * st - 86 * cl[3]) * 16384)}", f"s_cmp_ge_u32 s{sHw}, {cl.index(cl[3])}",
                    "s_cselect_b32 s42, s45, s42"]
        dr.add(st, [f"s_add_u32 m0, s32, {WSL[st % NW]}"] + pre,
               f"buffer_load_dwordx4 v{vWoff}, {sr(sW, 4)}, s42 offen lds")
        dr.add(st, [], f"buffer_load_dwordx4 v{vWoff + 1}, {sr(sW, 4)}, s42 offen offset:1024 lds")

    def issue_a(st):
        dr.add(st, [f"s_add_u32 m0, s35, {ASL[st][0]}", f"s_add_u32 s43, s34, {st * 4096}"],
               f"buffer_load_dwordx4 v{vL16}, {sr(sWS, 4)}, s43 offen {LD()} lds")
        dr.add(st, [], f"buffer_load_dwordx4 v{vL16}, {sr(sWS, 4)}, s43 offen offset:1024 {LD()} lds")

    if not k3:
        for st in range(NW):
            issue_w(st)
    dr.emit(100)
    if not OPT.get("det"):
        stamp(h)
    if k3 and OPT["lpoll"]:
        h(f"s_lshl_b32 s40, s{sRb}, 8")
        h(f"s_add_u32 s40, s40, {F2}")
        poll(h, 40, T + 4, "p3l", every=True, barrier=False)
    elif k3:
        h("s_barrier")
    else:
        h(f"s_lshl_b32 s40, s{sRb}, 9")
        h(f"s_add_u32 s40, s40, {F4}")
        poll(h, 40, T + 4, "p5l", 30, every=True, barrier=False)
    if not OPT.get("det"):
        stamp(h)
    AHEAD = OPT["p3_a"] if k3 else OPT["p5_a"]
    nxt_a = 0
    for st in range(NST):
        while nxt_a <= min(st + AHEAD, NST - 1):
            if not k3 and ((nxt_a >= 7 and st <= 2) or (nxt_a >= 14 and st <= OPT["p5_c2"])):
                break
            if ASL[nxt_a][1] > st - 3:
                break
            issue_a(nxt_a)
            nxt_a += 1
        if not k3 and st == 1:
            dr.add(4, [f"s_add_u32 m0, s35, {RESO}", "s_nop 0"], f"buffer_load_dwordx4 v{vL16}, {sr(sWS, 4)}, s36 offen {LD()} lds")
            dr.add(4, [], f"buffer_load_dwordx4 v{vL16}, {sr(sWS, 4)}, s36 offen offset:1024 {LD()} lds")
        dr.emit(100)
        h.wait(vm=dr.tok[st])
        h("s_barrier")
        if st >= 2 and st - 2 + NW < NST:
            issue_w(st - 2 + NW)
    if k3:
        h("s_barrier")
    RST = 0 if k3 else 4
    vWrd, vAr, vRr, vTw, vTr, vOut = [3, 4], [5, 6, 22], [7, 8], 9, 10, 11
    ID = 24
    FR = [32, 72]
    acc = 112
    a(f"v_and_b32 v{T}, 31, v{vLane}")
    a(f"v_lshrrev_b32 v{T + 1}, 5, v{vLane}")
    a(f"v_bfe_u32 v{T + 2}, v{vLane}, 2, 2")
    a(f"v_lshl_add_u32 v{T + 3}, v{T + 1}, 2, v{T + 2}")
    a(f"v_lshlrev_b32 v{T + 3}, 7, v{T + 3}")
    a(f"v_bfe_u32 v{T + 4}, v{vLane}, 4, 1")
    a(f"v_lshl_add_u32 v{T + 3}, v{T + 4}, 5, v{T + 3}")
    a(f"v_and_b32 v{T + 4}, 3, v{vLane}")
    a(f"v_lshl_add_u32 v{T + 3}, v{T + 4}, 3, v{T + 3}")
    a(f"v_lshrrev_b32 v{T + 2}, 1, v{T + 2}")
    a(f"v_xor_b32 v{T + 2}, s{sWc}, v{T + 2}")
    a(f"v_lshl_add_u32 v{vWrd[0]}, v{T + 2}, 6, v{T + 3}")
    wl = LdsAddr(a, vWrd)
    wl.setup(a)
    a(f"s_lshl_b32 s{sT0}, s{sWr}, 12")
    a(f"v_add_u32 v{vAr[0]}, s{sT0}, v{vL16}")
    al = LdsAddr(a, vAr)
    al.setup(a)
    if k3:
        a(f"v_bfe_u32 v{T + 2}, v{vLane}, 1, 3")
        a(f"v_xor_b32 v{T + 2}, v{T + 2}, v{T + 1}")
        a(f"s_lshl_b32 s{sT1}, s{sWc}, 2")
        a(f"v_xor_b32 v{T + 2}, s{sT1}, v{T + 2}")
        a(f"v_lshlrev_b32 v{T + 2}, 4, v{T + 2}")
        a(f"v_lshl_add_u32 v{T + 2}, v{T}, 7, v{T + 2}")
        a(f"s_add_u32 s{sT0}, s{sT0}, {RESO}")
        a(f"v_add_u32 v{vRr[0]}, s{sT0}, v{T + 2}")
        a(f"v_xor_b32 v{vRr[1]}, 32, v{vRr[0]}")
    else:
        a(f"s_lshl_b32 s{sT1}, s{sWc}, 11")
        a(f"s_add_u32 s{sT0}, s{sT0}, s{sT1}")
        a(f"s_add_u32 s{sT0}, s{sT0}, {RESO}")
        a(f"v_add_u32 v{vRr[0]}, s{sT0}, v{vL16}")
        a(f"v_add_u32 v{vRr[1]}, 1024, v{vRr[0]}")
    if pre_publish is not None:
        publish(a, pre_publish, T + 6)
    a(f"v_mov_b32 v{T + 5}, 0x3f80")
    for e in range(2):
        if k3:
            a(f"v_lshlrev_b32 v{T + 2}, 3, v{T + 1}")
            a(f"v_sub_u32 v{T + 2}, v{T}, v{T + 2}")
            a(f"v_subrev_u32 v{T + 2}, {16 * e}, v{T + 2}")
        else:
            a(f"v_bfe_u32 v{T + 2}, v{vLane}, 3, 1")
            a(f"v_and_b32 v{T + 3}, 3, v{vLane}")
            a(f"v_lshl_add_u32 v{T + 2}, v{T + 2}, 2, v{T + 3}")
            a(f"v_bfe_u32 v{T + 3}, v{vLane}, 2, 1")
            a(f"v_xor_b32 v{T + 3}, v{T + 3}, v{T + 1}")
            a(f"v_bfe_u32 v{T + 4}, v{vLane}, 4, 1")
            a(f"v_xor_b32 v{T + 4}, {e}, v{T + 4}")
            a(f"v_or_b32 v{T + 3}, v{T + 3}, v{T + 4}")
            a(f"v_lshl_add_u32 v{T + 2}, v{T + 3}, 4, v{T + 2}")
        a(f"v_and_b32 v{T + 3}, 1, v{T + 2}")
        a(f"v_lshlrev_b32 v{T + 3}, 4, v{T + 3}")
        a(f"v_lshlrev_b32 v{T + 3}, v{T + 3}, v{T + 5}")
        a(f"v_lshrrev_b32 v{T + 2}, 1, v{T + 2}")
        for r in range(4):
            a(f"v_cmp_eq_u32 vcc, {r}, v{T + 2}")
            a("s_nop 1")
            a(f"v_cndmask_b32 v{ID + 4 * e + r}, 0, v{T + 3}, vcc")
    a(f"s_lshl_b32 s33, s{sRb}, 1")
    a(f"s_add_u32 s33, s33, s{sWr}")
    a(f"s_lshl_b32 s34, s{sCb}, 1")
    a(f"s_add_u32 s34, s34, s{sWc}")
    if k3:
        a(f"s_mul_i32 s{sT1}, s33, {RT}")
        a(f"s_lshl_b32 s36, s34, 11")
        a(f"s_add_u32 s36, s36, s{sT1}")
        a(f"s_lshl_b32 s37, s34, 8")
        a(f"s_add_u32 s37, s37, s{sT1}")
        a(f"s_add_u32 s37, s37, {SO}")
        a("s_mov_b32 s41, 0x3f803f80")
        a(f"v_lshlrev_b32 v{vOut}, 3, v{vLane}")
        a(f"s_lshl_b32 s55, s{sRb}, 7")
        a(f"s_lshl_b32 s{sT1}, s{sCb}, 4")
        a(f"s_add_u32 s55, s55, s{sT1}")
        a(f"s_lshl_b32 s{sT1}, s{sWave}, 2")
        a(f"s_add_u32 s55, s55, s{sT1}")
        a(f"s_add_u32 s55, s55, {F3}")
    else:
        a(f"s_mul_i32 s{sT0}, s{sHw}, 2560")
        a(f"s_add_u32 s{sT0}, s{sT0}, {TRO}")
        a(f"v_mul_u32_u24 v{T + 2}, 80, v{T}")
        a(f"v_lshl_add_u32 v{T + 2}, v{T + 1}, 3, v{T + 2}")
        a(f"v_add_u32 v{vTw}, s{sT0}, v{T + 2}")
        a(f"v_lshrrev_b32 v{T + 2}, 2, v{vLane}")
        a(f"v_and_b32 v{T + 3}, 3, v{vLane}")
        a(f"v_lshlrev_b32 v{T + 3}, 4, v{T + 3}")
        a(f"v_mad_u32_u24 v{T + 4}, v{T + 2}, 64, v{T + 3}")
        a(f"v_lshl_add_u32 v{T + 4}, v{T + 2}, 4, v{T + 4}")
        a(f"v_add_u32 v{vTr}, s{sT0}, v{T + 4}")
        a(f"v_lshl_add_u32 v{vOut}, v{T + 2}, 10, v{T + 3}")
        a(f"s_lshl_b32 s36, s33, 15")
        a(f"s_lshl_b32 s37, s34, 6")
        a(f"s_add_u32 s36, s36, s37")
        a(f"s_add_u32 s37, s36, 16384")
        srd(a, sIO, KO, 2048 * 1024)
    a(f"s_lshl_b32 s40, s{sRb}, {8 if k3 else 9}")
    a(f"s_add_u32 s40, s40, {F2 if k3 else F4}")
    if k3 and not OPT["lpoll"]:
        poll(a, 40, T + 6, uid, 64)
    first = True
    prev = []
    for st in range(NST):
        if not k3 and st in (0, OPT["p5_c2"] - 3):
            poll_issue(a, 40, T + 6, f"p5i{st}", 128 if st == 0 else 256)
        if not k3 and st in (2, OPT["p5_c2"]):
            poll(a, 40, T + 6, f"p5c{8 if st > 2 else 1}", 30, barrier=False, off=128 if st == 2 else 256, issued=True)
        a("s_barrier")
        if st == 0:
            stamp(a)
        F = FR[st & 1]
        n = min(4, KS - 4 * st)
        rd = []
        for k in range(n):
            reg, off = al.at(ASL[st][0] + k * 1024)
            rd.append(f"ds_read_b128 {vr(F + 8 * k, 4)}, {reg} offset:{off}")
            for half in range(2):
                reg, off = wl.at(WSL[st % NW] + k * 2048 + half * 1024)
                rd.append(f"ds_read_b64_tr_b16 {vr(F + 8 * k + 4 + 2 * half, 2)}, {reg} offset:{off}")
        cur = [[None, F + 8 * k + 4, F + 8 * k, 3 * k + 2] for k in range(n)]
        if st == RST:
            for e in range(2):
                rd.append(f"ds_read_b128 {vr(F + 32 + 4 * e, 4)}, v{vRr[e]}")
                cur.append([None, ID + 4 * e, F + 32 + 4 * e, len(rd) - 1])
        toks = []
        k = 0
        for tok, wa, xa, _ in prev:
            a.wait(lg=tok)
            a(f"v_mfma_f32_32x32x16_bf16 {vr(acc, 16)}, {vr(wa, 4)}, {vr(xa, 4)}, {'0' if first else vr(acc, 16)}")
            first = False
            for _ in range(3):
                if k < len(rd):
                    toks.append(a.lg(rd[k]))
                    k += 1
        while k < len(rd):
            toks.append(a.lg(rd[k]))
            k += 1
        for c in cur:
            c[0] = toks[c[3]]
        prev = cur
    for tok, wa, xa, _ in prev:
        a.wait(lg=tok)
        a(f"v_mfma_f32_32x32x16_bf16 {vr(acc, 16)}, {vr(wa, 4)}, {vr(xa, 4)}, {vr(acc, 16)}")
    stamp(a)
    a("s_nop 11")
    P = 32
    for i in range(8):
        a(f"v_cvt_pk_bf16_f32 v{P + i}, v{acc + 2 * i}, v{acc + 2 * i + 1}")
    if k3:
        stores(a, [f"buffer_store_dwordx4 {vr(P, 4)}, v{vL16}, {sr(sWS, 4)}, s36 offen",
                   f"buffer_store_dwordx4 {vr(P + 4, 4)}, v{vL16}, {sr(sWS, 4)}, s36 offen offset:1024"])
        a(f"v_dot2_f32_bf16 v{T}, v{P}, s41, 0")
        a(f"v_dot2_f32_bf16 v{T + 1}, v{P}, v{P}, 0")
        for i in range(1, 8):
            a(f"v_dot2_f32_bf16 v{T}, v{P + i}, s41, v{T}")
            a(f"v_dot2_f32_bf16 v{T + 1}, v{P + i}, v{P + i}, v{T + 1}")
        a("s_nop 2")
        a(f"v_mov_b32 v{T + 2}, v{T}")
        a(f"v_mov_b32 v{T + 3}, v{T + 1}")
        a("s_nop 0")
        a(f"v_permlane32_swap_b32 v{T}, v{T + 2}")
        a(f"v_permlane32_swap_b32 v{T + 1}, v{T + 3}")
        a("s_nop 0")
        a(f"v_add_f32 v{T}, v{T}, v{T + 2}")
        a(f"v_add_f32 v{T + 1}, v{T + 1}, v{T + 3}")
        a("s_mov_b32 exec_hi, 0")
        stores(a, [f"buffer_store_dwordx2 {vr(T, 2)}, v{vOut}, {sr(sWS, 4)}, s37 offen"])
        a("s_mov_b64 exec, -1")
        a("s_barrier")
        publish(a, 55, T + 4)
    else:
        for g in range(4):
            a.lg(f"ds_write_b64 v{vTw}, {vr(P + 2 * g, 2)} offset:{g * 16}")
        a.wait_all(vm=False)
        t0 = a.lg(f"ds_read_b128 {vr(P + 8, 4)}, v{vTr}")
        t1 = a.lg(f"ds_read_b128 {vr(P + 12, 4)}, v{vTr} offset:{16 * 80}")
        a.wait(lg=t0)
        a.vm(f"buffer_store_dwordx4 {vr(P + 8, 4)}, v{vOut}, {sr(sIO, 4)}, s36 offen")
        a.wait(lg=t1)
        a.vm(f"buffer_store_dwordx4 {vr(P + 12, 4)}, v{vOut}, {sr(sIO, 4)}, s37 offen")
    stamp(a)


def phase4(a, h):
    sG = 16
    sRb, sCg = 25, 26
    sWL, sAct = 32, 33
    NW, NX, NST = 9, 5, 16
    XO = 122880
    CSO = 24576
    XEO = CSO + 1536
    for b in (a, h):
        b(f"s_and_b32 s{sT0}, s2, 7")
        b(f"s_lshl_b32 s{sT0}, s{sT0}, 1")
        b(f"s_bfe_u32 s{sT1}, s2, 0x10003")
        b(f"s_add_u32 s{sRb}, s{sT0}, s{sT1}")
        b(f"s_lshr_b32 s{sCg}, s2, 4")
    a("s_cmp_ge_u32 s2, 240")
    a("s_cbranch_scc1 L_p4_skip_c")
    h("s_cmp_ge_u32 s2, 240")
    h("s_cbranch_scc1 L_p4_skip_l")
    vWoff = [3, 4, 5]
    vT = 16
    h(f"s_lshl_b32 s{sAct}, s{sRb}, 2")
    h(f"s_add_u32 s{sAct}, s{sAct}, s{sHw}")
    h(f"s_mul_i32 s{sAct}, s{sAct}, {RT}")
    h(f"s_add_u32 s38, s{sAct}, {SO}")
    h(f"s_lshr_b32 s34, s{sHw}, 1")
    h(f"s_and_b32 s35, s{sHw}, 1")
    h(f"s_mul_i32 s{sT0}, s34, {16 * 2752}")
    h(f"s_mul_i32 s{sT1}, s{sCg}, 192")
    h(f"s_add_u32 s{sT0}, s{sT0}, s{sT1}")
    h(f"v_and_b32 v{vT + 3}, 2, v{vLane}")
    h(f"v_lshlrev_b32 v{vT + 3}, 5, v{vT + 3}")
    h(f"v_sub_u32 v{vT + 3}, 32, v{vT + 3}")
    h(f"v_mul_lo_u32 v{vT + 3}, v{vT + 3}, s35")
    h(f"v_add_u32 v{vT + 3}, s{sT0}, v{vT + 3}")
    for i in range(3):
        h(f"v_add_u32 v{vT}, {64 * i}, v{vLane}")
        h(f"v_mul_u32_u24 v{vT + 1}, 171, v{vT}")
        h(f"v_lshrrev_b32 v{vT + 1}, 11, v{vT + 1}")
        h(f"v_mul_u32_u24 v{vT + 2}, {2752 - 192}, v{vT + 1}")
        h(f"v_add3_u32 v{vWoff[i]}, v{vL16}, v{vT + 2}, v{vT + 3}")
    h(f"s_mul_i32 s{sWL}, s{sHw}, 3072")
    h(f"s_lshl_b32 s36, s{sHw}, 11")
    h(f"s_add_u32 s36, s36, {XO}")
    h("s_cmp_eq_u32 s35, 0")
    h(f"s_cselect_b32 s{sG}, s{KG}, s{KU}")
    h(f"s_cselect_b32 s{sG + 1}, s{KG + 1}, s{KU + 1}")
    h(f"s_mov_b32 s{sG + 2}, {hx(512 * 2752)}")
    h(f"s_mov_b32 s{sG + 3}, 0x00020000")
    dr = Drip(h)

    def issue_w(key):
        st = key[1] if isinstance(key, tuple) else key
        for i in range(3):
            pre = [f"s_add_u32 m0, s{sWL}, {WS4[st % NW]}", f"s_mov_b32 s42, {st * 32 * 2752}"] if i == 0 else []
            dr.add(key, pre, f"buffer_load_dwordx4 v{vWoff[i]}, {sr(sG, 4)}, s42 offen offset:{i * 1024} lds")

    def issue_x(st):
        for i in range(2):
            pre = [f"s_add_u32 m0, s36, {(st % NX) * 8192}", f"s_add_u32 s43, s{sAct}, {st * 2048}"] if i == 0 else []
            dr.add(st, pre, f"buffer_load_dwordx4 v{vL16}, {sr(sWS, 4)}, s43 offen offset:{i * 1024} {LD()} lds")

    PRE = OPT["p4_pre"]
    for st in range(4, PRE):
        issue_w(st)
    dr.emit(100)
    nxt_wi = 3 * PRE
    vPf, vPd = 13, 100
    srd(h, 44, KD, 1376 * 1024)
    h(f"s_lshr_b32 s{sT0}, s2, 3")
    h(f"s_lshl_b32 s{sT0}, s{sT0}, 2")
    h(f"s_add_u32 s{sT0}, s{sT0}, s{sHw}")
    h(f"s_lshl_b32 s{sT0}, s{sT0}, 13")
    h(f"v_lshlrev_b32 v{vPf}, 7, v{vLane}")
    h(f"v_add_u32 v{vPf}, s{sT0}, v{vPf}")
    h(f"v_add_u32 v15, {120 * 8192}, v{vPf}")
    h(f"v_lshrrev_b32 v{vT + 3}, 5, v{vLane}")
    h(f"v_and_b32 v{vT + 4}, 31, v{vLane}")
    h(f"v_lshlrev_b32 v{vT + 4}, 3, v{vT + 4}")
    h(f"v_lshl_add_u32 v{vT + 4}, v{vT + 3}, 11, v{vT + 4}")
    h(f"s_mul_i32 s{sT0}, s{sHw}, 1536")
    h(f"s_add_u32 s{sT0}, s{sT0}, {XEO}")
    h(f"v_add_u32 v{vT + 5}, s{sT0}, v{vL16}")
    h(f"v_lshl_add_u32 v{vT + 6}, v{vLane}, 3, s{sT0}")
    stamp(h)
    if OPT["lpoll"]:
        h(f"s_lshl_b32 s40, s{sRb}, 8")
        h(f"s_add_u32 s40, s40, {F3}")
        poll(h, 40, vT + 8, "p4l", every=True, barrier=False)
    else:
        h("s_barrier")
    stamp(h)
    SP = 32
    vS, vQ, vM, vA = 60, 61, 62, 64
    AHEAD = OPT["p4_a"]
    assert AHEAD < NX
    nxt_x = 0
    for st in range(NST):
        while nxt_x <= min(st + (min(AHEAD, st + 1) if OPT["p4_ramp"] else AHEAD), NST - 1):
            if nxt_x >= NX and nxt_x - NX > st - 2:
                break
            issue_x(nxt_x)
            nxt_x += 1
        dr.emit(100)
        for _ in range(0 if OPT["p4_ramp"] and st == 0 else (OPT["p4_wi2"] + (st & 1)) // 2 + (st in (4, 6) and OPT["p4_ramp"])):
            ws, wi = divmod(nxt_wi, 3)
            if ws < NST and (ws < NW or ws - NW <= st - 2):
                h(f"s_add_u32 m0, s{sWL}, {WS4[ws % NW]}")
                h(f"s_mov_b32 s42, {ws * 32 * 2752}")
                dr.tok[("w", ws)] = h.vm(f"buffer_load_dwordx4 v{vWoff[wi]}, {sr(sG, 4)}, s42 offen offset:{wi * 1024} lds")
                nxt_wi += 1
        assert nxt_wi >= 3 * (st + 1)
        if 1 <= st <= 8:
            i = st - 1
            dr.tok["st"] = h.vm(f"buffer_load_dwordx2 {vr(SP + 2 * i, 2)}, v{vT + 4}, {sr(sWS, 4)}, s38 offen offset:{i * 256} {LD()}")
        h.wait(vm=max(dr.tok[st], dr.tok.get(("w", st), -1)))
        assert st < PRE or ("w", st) in dr.tok
        if st == 11:
            h.wait(vm=dr.tok["st"])
            h(f"v_add_f32 v{vS}, v{SP}, v{SP + 2}")
            h(f"v_add_f32 v{vQ}, v{SP + 1}, v{SP + 3}")
            for i in range(2, 8):
                h(f"v_add_f32 v{vS}, v{vS}, v{SP + 2 * i}")
                h(f"v_add_f32 v{vQ}, v{vQ}, v{SP + 2 * i + 1}")
        if st == 12:
            half_sum(h, vS, vT)
            half_sum(h, vQ, vT)
            h(f"v_mul_f32 v{vM}, {hx(f2u(-1.0 / 512))}, v{vS}")
            h(f"v_mul_f32 v{vQ}, {hx(f2u(1.0 / 512))}, v{vQ}")
            h(f"v_fma_f32 v{vQ}, -v{vM}, v{vM}, v{vQ}")
            h(f"v_max_f32 v{vQ}, 0, v{vQ}")
            h(f"v_add_f32 v{vQ}, {hx(f2u(1e-5))}, v{vQ}")
        if st == 13:
            h(f"v_rsq_f32 v{vA}, v{vQ}")
            split_hi_lo(h, vM, 68, vT, vT + 1)
            h(f"v_mul_f32 v{vA + 1}, v{vQ}, v{vA}")
            h(f"v_mul_f32 v{vA}, {hx(f2u(-LOG2E))}, v{vA}")
            h(f"v_cvt_pk_bf16_f32 v69, v{vT}, 0")
            h("v_mov_b32 v70, 0")
            h("v_mov_b32 v71, 0")
            h.lg(f"ds_write_b128 v{vT + 5}, v[68:71]")
            h.lg(f"ds_write_b64 v{vT + 6}, {vr(vA, 2)} offset:1024")
        if st == 14:
            h.wait_all(vm=False)
        if OPT.get("det") == 1 and st in (3, 7, 11):
            stamp(h)
        h("s_barrier")
        if OPT.get("det") == 1 and st in (3, 7, 11, 15):
            stamp(h)
        if st == OPT["p4_pf"]:
            h.vm(f"buffer_load_dword v{vPd}, v{vPf}, s[44:47], 0 offen")
        if st == OPT["p4_pf"] + 1:
            h.vm(f"buffer_load_dword v{vPd}, v15, s[44:47], 0 offen")
    h("s_barrier")
    h.label("L_p4_skip_l")

    sWr2, sWc = 36, 37
    vWrd, vWrdO, vXa, vCw, vCr, vEr = [3, 4], [5, 6], 7, 8, 9, 10
    ONES, vT, CS, ACC = 12, 16, 20, 32
    XF, WF = [128, 136], [144, 156]
    XE, AS = XF[0], ONES
    t = CS
    a(f"s_lshr_b32 s{sWr2}, s{sHw}, 1")
    a(f"s_and_b32 s{sWc}, s{sHw}, 1")
    a(f"s_lshl_b32 s34, s{sRb}, 1")
    a(f"s_add_u32 s34, s34, s{sWr2}")
    a(f"v_lshrrev_b32 v{t + 3}, 5, v{vLane}")
    a(f"v_bfe_u32 v{t}, v{vLane}, 2, 2")
    a(f"v_lshl_add_u32 v{t}, v{t + 3}, 2, v{t}")
    a(f"v_mul_u32_u24 v{t}, 192, v{t}")
    a(f"v_and_b32 v{t + 1}, 3, v{vLane}")
    a(f"v_lshl_add_u32 v{t}, v{t + 1}, 3, v{t}")
    a(f"s_mul_i32 s{sT0}, s{sWc}, 96")
    a(f"v_add_u32 v{t}, s{sT0}, v{t}")
    a(f"v_bfe_u32 v{t + 1}, v{vLane}, 4, 1")
    a(f"s_lshl_b32 s{sT0}, s{sWc}, 6")
    a(f"s_sub_u32 s{sT1}, {3072 + 32}, s{sT0}")
    a(f"s_add_u32 s{sT0}, {3072 - 32}, s{sT0}")
    a(f"v_mad_u32_u24 v{vWrd[0]}, v{t + 1}, s{sT1}, v{t}")
    a(f"v_mad_u32_u24 v{vWrdO[0]}, v{t + 1}, s{sT0}, v{t}")
    wl = [LdsAddr(a, vWrd), LdsAddr(a, vWrdO)]
    wl[0].setup(a)
    wl[1].setup(a)
    a(f"s_lshl_b32 s{sT0}, s{sWr2}, 12")
    a(f"s_add_u32 s{sT0}, s{sT0}, {XO}")
    a(f"v_add_u32 v{vXa}, s{sT0}, v{vL16}")
    a(f"v_xor_b32 v{t}, v{t + 1}, v{vLane}")
    a(f"v_and_b32 v{t}, 1, v{t}")
    a(f"v_cmp_eq_u32 vcc, 0, v{t}")
    a(f"v_mov_b32 v{t}, 0x3f803f80")
    a("s_nop 0")
    for r in range(4):
        a(f"v_cndmask_b32 v{ONES + r}, 0, v{t}, vcc")
    a(f"s_lshl_b32 s{sT0}, s{sWc}, 1")
    a(f"s_add_u32 s{sT1}, s{sT0}, s{sWr2}")
    a(f"s_mul_i32 s{sT1}, s{sT1}, 384")
    a(f"s_add_u32 s{sT1}, s{sT1}, {CSO}")
    a(f"v_and_b32 v{t}, 1, v{vLane}")
    a(f"v_lshlrev_b32 v{t}, 6, v{t}")
    a(f"v_and_b32 v{t + 1}, 48, v{vLane}")
    a(f"v_add3_u32 v{vCw}, v{t}, v{t + 1}, s{sT1}")
    a(f"s_mul_i32 s{sT0}, s{sT0}, 384")
    a(f"s_add_u32 s{sT0}, s{sT0}, {CSO}")
    a(f"v_mul_u32_u24 v{t}, 384, v{t + 3}")
    a(f"v_and_b32 v{t + 1}, 31, v{vLane}")
    a(f"v_lshl_add_u32 v{t}, v{t + 1}, 2, v{t}")
    a(f"v_add_u32 v{vCr}, s{sT0}, v{t}")
    a(f"s_lshl_b32 s55, s34, 9")
    a(f"s_lshl_b32 s35, s{sCg}, 1")
    a(f"s_add_u32 s35, s35, s{sWc}")
    a(f"s_lshl_b32 s{sT0}, s35, 2")
    a(f"s_add_u32 s55, s55, s{sT0}")
    a(f"s_add_u32 s55, s55, {F4}")
    a(f"s_mul_i32 s34, s34, {2 * RT}")
    a(f"s_mul_i32 s38, s35, 3")
    a(f"s_lshl_b32 s35, s35, 10")
    a("s_add_u32 s34, s34, s35")
    a(f"s_add_u32 s34, s34, {GO}")
    a(f"s_add_u32 s35, s34, {RT}")
    a(f"s_mul_i32 s{sT0}, s{sWr2}, 3072")
    a(f"s_add_u32 s{sT0}, s{sT0}, {XEO}")
    a(f"v_add_u32 v{vEr}, s{sT0}, v{vL16}")
    a(f"v_lshl_add_u32 v{vEr + 1}, v{vLane}, 3, s{sT0}")
    for r in range(12):
        a(f"v_mov_b32 v{CS + r}, 0")

    def reads(s):
        st, ss = divmod(s, 2)
        W = []
        for j in range(3):
            for half in range(2):
                reg, off = wl[j & 1].at(WS4[st % NW] + ss * 6144 + half * 8 * 192 + j * 32)
                W.append(f"ds_read_b64_tr_b16 {vr(WF[s & 1] + 4 * j + 2 * half, 2)}, {reg} offset:{off}")
        X = [f"ds_read_b128 {vr(XF[s & 1] + 4 * i, 4)}, v{vXa} offset:{(st % NX) * 8192 + i * 2048 + ss * 1024}"
             for i in range(2)]
        return [X[0], W[0], W[1], X[1], W[2], W[3], W[4], W[5]]

    rt = {}

    def emit_reads(b, s, lo, hi):
        ops = reads(s)
        for k in range(lo, min(hi, 8)):
            rt[(s, k)] = b.lg(ops[k])

    def main(b, s, m):
        j, i = divmod(m, 2)
        d = ACC + 16 * m
        c = "0" if s == 0 else vr(d, 16)
        b(f"v_mfma_f32_32x32x16_bf16 {vr(d, 16)}, {vr(WF[s & 1] + 4 * j, 4)}, {vr(XF[s & 1] + 4 * i, 4)}, {c}")

    def csum(b, s, j):
        b(f"v_mfma_f32_16x16x32_bf16 {vr(CS + 4 * j, 4)}, {vr(WF[s & 1] + 4 * j, 4)}, {vr(ONES, 4)}, {vr(CS + 4 * j, 4)}")

    a(f"s_lshl_b32 s40, s{sRb}, 8")
    a(f"s_add_u32 s40, s40, {F3}")
    if not OPT["lpoll"]:
        poll(a, 40, vT, "p4")
    a("s_barrier")
    stamp(a)
    emit_reads(a, 0, 0, 8)
    a(f"s_cmp_eq_u32 s{sWr2}, 1")
    a("s_cbranch_scc1 L_p4_odd")
    cuts = [0, 2, 4, 6, 8, 8, 8]
    need = [3, 3, 5, 5, 7, 7]
    rt0 = dict(rt)
    odd = fork(a)
    odd.label("L_p4_odd")
    for par, b in ((0, a), (1, odd)):
        rt.clear()
        rt.update(rt0)
        for s in range(31):
            if s % 2 == 1:
                b.wait(lg=rt[(s, 7)])
                b("s_barrier")
            for m in range(6):
                b.wait(lg=rt[(s, need[m])])
                if m % 2 == 0 and s % 2 == par:
                    csum(b, s, m // 2)
                main(b, s, m)
                emit_reads(b, s + 1, cuts[m], cuts[m + 1])
        b.wait_all(vm=False)
        if par == 1:
            for j in range(3):
                csum(b, 31, j)
    odd("s_branch L_p4_join")
    a.label("L_p4_join")
    main(a, 31, 0)
    for j in range(3):
        a(f"v_mov_b32 v{WF[0] + 4 * j + 2}, 0")
        a(f"v_mov_b32 v{WF[0] + 4 * j + 3}, 0")
    main(a, 31, 1)
    a("s_mov_b32 exec_lo, 0x00030003")
    a("s_mov_b32 exec_hi, 0x00030003")
    for j in range(3):
        a.lg(f"ds_write_b128 v{vCw}, {vr(CS + 4 * j, 4)} offset:{j * 128}")
    a("s_mov_b64 exec, -1")
    for i in range(2):
        a.lg(f"ds_read_b128 {vr(XE + 4 * i, 4)}, v{vEr} offset:{i * 1536}")
        a.lg(f"ds_read_b64 {vr(AS + 2 * i, 2)}, v{vEr + 1} offset:{i * 1536 + 1024}")
    main(a, 31, 2)
    main(a, 31, 3)
    a.wait_all(vm=False)
    a("s_barrier")
    for j in range(3):
        rt[("c", j)] = a.lg(f"ds_read_b32 v{vT + 1 + j}, v{vCr} offset:{j * 128}")
    main(a, 31, 4)
    main(a, 31, 5)
    for j in range(3):
        w = WF[0] + 4 * j
        a.wait(lg=rt[("c", j)])
        a(f"v_cvt_pk_bf16_f32 v{w + 1}, v{vT + 1 + j}, 0")
        a(f"v_lshlrev_b32 v{vT}, 16, v{w + 1}")
        a(f"v_sub_f32 v{vT}, v{vT + 1 + j}, v{vT}")
        a(f"v_cvt_pk_bf16_f32 v{w}, v{vT + 1 + j}, v{vT}")
    for j in range(3):
        for i in range(2):
            d = ACC + 32 * j + 16 * i
            a(f"v_mfma_f32_32x32x16_bf16 {vr(d, 16)}, {vr(WF[0] + 4 * j, 4)}, {vr(XE + 4 * i, 4)}, {vr(d, 16)}")
    stamp(a)
    a(f"v_lshlrev_b32 v{vT}, 7, v{vLane}")
    a(f"v_mov_b32 v{vT + 1}, s{sTag}")
    a("s_nop 2")
    stok = {}
    if OPT["ep_prio"]:
        a(f"s_setprio {OPT['ep_prio']}")
    for j in range(3):
        a(f"s_cmp_ge_u32 s38, {86 - j}")
        a("s_cbranch_scc1 L_p4_pub")
        Gs = [(ACC + 32 * j + 16 * i + r, i) for i in range(2) for r in range(8)]
        for g, i in Gs[::2]:
            a(f"v_pk_mul_f32 {vr(g, 2)}, {vr(g, 2)}, {vr(AS + 2 * i, 2)} op_sel_hi:[1,0]")
        for g, i in Gs:
            a(f"v_exp_f32 v{g}, v{g}")
        for g, i in Gs[::2]:
            a(f"v_pk_fma_f32 {vr(g, 2)}, {vr(g, 2)}, {vr(AS + 2 * i, 2)}, {vr(AS + 2 * i, 2)} op_sel:[0,1,1] op_sel_hi:[1,1,1]")
        for g, i in Gs:
            a(f"v_rcp_f32 v{g}, v{g}")
        for g, i in Gs[::2]:
            a(f"v_pk_mul_f32 {vr(g, 2)}, {vr(g, 2)}, {vr(g + 8, 2)}")
        if j == 2 and OPT["ep_fl"]:
            a("s_mov_b64 exec, 1")
            a.wait(vm=stok[0])
            stores(a, [f"buffer_store_dword v{vT + 1}, v{vT}, {sr(sWS, 4)}, s55 offen"])
            a("s_mov_b64 exec, -1")
        o = ACC + 32 * j + 8
        for i in range(8):
            a(f"v_cvt_pk_bf16_f32 v{o + i}, v{Gs[2 * i][0]}, v{Gs[2 * i + 1][0]}")
        stores(a, [f"buffer_store_dwordx4 {vr(o, 4)}, v{vL16}, {sr(sWS, 4)}, s34 offen",
                   f"buffer_store_dwordx4 {vr(o + 4, 4)}, v{vL16}, {sr(sWS, 4)}, s35 offen"])
        stok[j] = a.vm_issued - 1
        a(f"s_add_u32 s34, s34, {29 * 1024}")
        a(f"s_add_u32 s35, s35, {29 * 1024}")
        if j >= 1 and not OPT["ep_fl"]:
            a("s_mov_b64 exec, 1")
            a.wait(vm=stok[j - 1])
            stores(a, [f"buffer_store_dword v{vT + 1}, v{vT}, {sr(sWS, 4)}, s55 offen offset:{(j - 1) * 128}"])
            a("s_mov_b64 exec, -1")
    a.label("L_p4_pub")
    a("s_nop 7")
    stamp(a)
    a("s_mov_b64 exec, 7")
    a.wait_all(lg=False)
    stores(a, [f"buffer_store_dword v{vT + 1}, v{vT}, {sr(sWS, 4)}, s55 offen"])
    a("s_mov_b64 exec, -1")
    if OPT["ep_prio"]:
        a("s_setprio 0")
    a.label("L_p4_skip_c")
    return odd


def gen_fused():
    name = KNAME
    a = Asm()
    a.raw(f".globl {name}")
    a.raw(".p2align 8")
    a.raw(f".type {name},@function")
    a.label(name)
    a("s_cmp_ge_u32 s2, 256")
    a(f"s_cbranch_scc1 L_done")
    stamp_real(a)
    stamp(a)
    if OPT.get("spin"):
        a("s_memrealtime s[98:99]")
    c1, odd1, l1, aux = phase1(a)
    fb = phase2(c1, l1, aux)
    c1(f"s_cmp_ge_u32 s{sWave}, 4")
    c1("s_cbranch_scc0 L_compute")
    h = fork(c1)
    c = fork(c1)
    if OPT.get("det") == 2:
        h.nstamp, h.nostamp = 18, True
    c.label("L_compute")
    phase_res(c, h, True, pre_publish=55)
    odd = phase4(c, h)
    phase_res(c, h, False)
    if OPT.get("det") != 3:
        stamp_flush(h)
    h("s_endpgm")
    c("s_cmp_lg_u32 s2, 0")
    c("s_cbranch_scc1 L_nogen")
    c(f"s_cmp_lg_u32 s{sWave}, 0")
    c("s_cbranch_scc1 L_nogen")
    c(f"v_mov_b32 v12, {GEN}")
    c(f"v_mov_b32 v13, s{sTag}")
    c("s_mov_b64 exec, 1")
    c(f"buffer_store_dword v13, v12, {sr(sWS, 4)}, 0 offen sc1")
    if OPT.get("spin"):
        c("s_load_dwordx2 s[92:93], s[0:1], 64")
        c("s_memrealtime s[96:97]")
        c("s_waitcnt lgkmcnt(0)")
        c("s_sub_u32 s96, s96, s98")
        c("s_mov_b32 s94, 256")
        c("s_mov_b32 s95, 0x00020000")
        c("v_mov_b32 v12, 0")
        c("v_mov_b32 v13, s96")
        c("buffer_store_dword v13, v12, s[92:95], 0 offen")
        c.label("L_dbg_spin")
        c("s_memrealtime s[96:97]")
        c("s_waitcnt lgkmcnt(0)")
        c("s_sub_u32 s96, s96, s98")
        c(f"s_cmp_lt_u32 s96, {OPT['spin']}")
        c("s_cbranch_scc1 L_dbg_spin")
    c.label("L_nogen")
    stamp_flush(c)
    c.label("L_done")
    c("s_endpgm")
    text = (a.text() + l1.text() + aux.text() + odd1.text() + c1.text() + h.text() + c.text() + odd.text() + fb.text())
    return name, text, descriptor(name, 168, 0, sgpr=102), (256, 576, 163840)


def build():
    name, text, desc, (g, b, lds) = gen_fused()
    ref = open(f"cdna_kernels/{NAME}.s.ref").read().split("\n")
    head = [l for l in ref if l.startswith(";") and "@launch" not in l]
    out = "\n".join(head) + "\n"
    out += f"; @launch grid=({g},1,1) block=({b},1,1) lds={lds}\n"
    out += '.amdgcn_target "amdgcn-amd-amdhsa--gfx950"\n.text\n'
    bad = check_hazards(text, name)
    out += text
    out += "L_code_end:\n"
    out += '.section .rodata,"a"\n.p2align 6\n' + desc
    if bad:
        print("hazards:", bad)
    return out


if __name__ == "__main__":
    path = sys.argv[1] if len(sys.argv) > 1 else f"cdna_kernels/{NAME}.s"
    for arg in sys.argv[2:]:
        if arg == "stamps":
            G.STAMPS = True
        else:
            k_, v_ = arg.split("=")
            OPT[k_] = int(v_)
    open(path, "w").write(build())
    print("wrote", path)
```

```python
import sys

import gen as G
from gen import (Asm, Drip, LdsAddr, OPT, MB, QF, KVF, OF, HF, ST, GF, WS_SIZE, LOG2E, NAME, f2u, hx, vr, sr, srd,
                 fork, half_sum, split_hi_lo, code_prefetch, descriptor, check_hazards)

FLG = 11 * MB
F2, F3, F4, XT = FLG, FLG + 8192, FLG + 49152, FLG + 20480
FL1, GEN, FG1 = FLG + 24576, FLG + 28672, FLG + 32768
RT = 124 * 1024
QO, GO, SO = 65536, 32768, 118 * 1024
KVG = 12 * MB


def HS():
    return 131072 + OPT["kv_pad"]


KNAME = NAME + "_kernel"
WS3 = [0, 8192, 16384, 24576, 65536, 73728, 81920, 90112]
RES3 = 155648
WS4 = [32768, 45056, 98304, 110592, 0, 12288, 57344, 69632, 81920]
WS5 = [0, 8192, 16384] + [8192 * i for i in range(4, 14)]
sTag = 53
OPT.update(dict(p3_a=7, p4_a=3, p5_a=7, p5_na=6, down_l2=0, ws_off=0, kv_pad=4352, kv_gate=1, kv_fl=2, p1_bs=1, p5_c2=9, p5_nw=11, p4_pf=13, p4_pre=7, p2_map=1, force_slow=0, p1_cnt=1, kv_nt=0, kv_lag=1, early_t=0, gf_late=0, gu_from=128, gu_to=223, ep_prio=0, ep_fl=0, aux_sl=3, p2_pr=0, gm=0, p4_ramp=0, lpoll=0, retouch=1, p1_ls=1, p1_xl=8, t_wo=1, t_at=99, adapt=0, p1_s3=2, tout_g=0, p1_er=3, p2_defer=0, p2_sched=0, ld=0, touch_out=1, touch2=1, k1_tout=11, p2_fine=0, p2_rot=1, p4_wi2=4, sc="sc1"))

sWS, sWave, sHw = 12, 24, 29
sT0, sT1 = 30, 31
KX, KWO, KG, KU, KD, KO = 64, 68, 72, 74, 76, 78
vLane, vL16 = 1, 2


def ws_srd(a):
    off = OPT["ws_off"] * MB
    a(f"s_add_u32 s{sWS}, s8, {hx(off)}")
    a(f"s_addc_u32 s{sWS + 1}, s9, 0")
    a(f"s_mov_b32 s{sWS + 2}, {hx(WS_SIZE)}")
    a(f"s_mov_b32 s{sWS + 3}, 0x00020000")


def GM():
    return ["sc1", "sc0 sc1"][OPT["gm"]]


def LD():
    return ["sc1", "nt", "", "sc0 sc1", "sc0"][OPT["ld"]]


def stamp(a, force=False):
    if not G.STAMPS or (getattr(a, "nostamp", False) and not force):
        return
    i = getattr(a, "nstamp", 0)
    a.nstamp = i + 1
    assert i < 20, i
    a("s_memtime s[100:101]")
    a.wait_all(vm=False)
    a(f"s_mov_b32 s{80 + i}, s100")


def stamp_real(a):
    if not G.STAMPS:
        return
    i = getattr(a, "nstamp", 0)
    a.nstamp = i + 1
    a("s_memrealtime s[100:101]")
    a.wait_all(vm=False)
    a(f"s_mov_b32 s{80 + i}, s100")


def stamp_flush(a):
    if not G.STAMPS:
        return
    a.wait_all()
    stamp(a, True)
    stamp_real(a)
    a("s_mov_b64 exec, -1")
    a("s_lshl_b32 s58, s2, 3")
    a(f"s_add_u32 s58, s58, s{sWave}")
    a("s_lshl_b32 s58, s58, 7")
    a(f"s_add_u32 s58, s58, {G.DBGO + MB}")
    a("v_mov_b32 v1, 0")
    for i in range(a.nstamp):
        a(f"v_mov_b32 v2, s{80 + i}")
        a(f"buffer_store_dword v2, v1, {sr(sWS, 4)}, s58 offen offset:{4 * i}")
    a.wait_all()


LMODE = 163840 - 16
sMode = 54
_uid = [0]


def stores(a, ins, always_slow=False):
    if always_slow:
        for x in ins:
            a.vm(x + " sc1")
        return
    _uid[0] += 1
    u = _uid[0]
    a(f"s_cmp_eq_u32 s{sMode}, 0")
    a(f"s_cbranch_scc1 L_st_{u}_s")
    for x in ins:
        a.vm(x)
    a(f"s_branch L_st_{u}_j")
    a.label(f"L_st_{u}_s")
    for x in ins:
        a(x + " sc1")
    a.label(f"L_st_{u}_j")


def publish(a, sOff, vt, always_slow=False):
    a(f"v_mov_b32 v{vt}, 0")
    a(f"v_mov_b32 v{vt + 1}, s{sTag}")
    a("s_mov_b64 exec, 1")
    a.wait_all(lg=False)
    stores(a, [f"buffer_store_dword v{vt + 1}, v{vt}, {sr(sWS, 4)}, s{sOff} offen"], always_slow)
    a("s_mov_b64 exec, -1")


def poll_issue(a, sOff, vt, uid, off):
    a(f"s_cmp_lg_u32 s{sWave}, 0")
    a(f"s_cbranch_scc1 L_pi_{uid}")
    a(f"v_lshlrev_b32 v{vt}, 2, v{vLane}")
    a(f"buffer_load_dword v{vt + 1}, v{vt}, {sr(sWS, 4)}, s{sOff} offen offset:{off} sc1")
    a.label(f"L_pi_{uid}")


def poll(a, sOff, vt, uid, nflags=64, every=False, barrier=True, off=0, issued=False):
    if not every:
        a(f"s_cmp_lg_u32 s{sWave}, 0")
        a(f"s_cbranch_scc1 L_poll_{uid}_go")
    if not issued:
        a(f"v_lshlrev_b32 v{vt}, 2, v{vLane}")
    a("s_mov_b32 s59, 0x40000")
    if nflags < 64:
        a(f"s_mov_b64 exec, {hx((1 << nflags) - 1)}")
    if issued:
        a(f"s_branch L_poll_{uid}_c")
    a.label(f"L_poll_{uid}")
    a(f"buffer_load_dword v{vt + 1}, v{vt}, {sr(sWS, 4)}, s{sOff} offen offset:{off} sc1")
    a.label(f"L_poll_{uid}_c")
    a("s_sub_u32 s59, s59, 1")
    a("s_waitcnt vmcnt(0)")
    a(f"v_cmp_ne_u32 vcc, s{sTag}, v{vt + 1}")
    a("s_cmp_eq_u32 s59, 0")
    a(f"s_cbranch_scc1 L_poll_{uid}_x")
    a(f"s_cbranch_vccnz L_poll_{uid}")
    a.label(f"L_poll_{uid}_x")
    a("s_mov_b64 exec, -1")
    a.label(f"L_poll_{uid}_go")
    if barrier:
        a("s_barrier")


def touch_setup(h):
    srd(h, 16, KWO, 512 * 1024)
    srd(h, 20, KG, 512 * 2752)
    srd(h, 48, KU, 512 * 2752)
    h(f"s_and_b32 s{sT0}, s2, 7")
    h(f"s_lshl_b32 s{sT1}, s{sT0}, 18")
    h(f"s_add_u32 s4, s{KX}, s{sT1}")
    h(f"s_addc_u32 s5, s{KX + 1}, 0")
    srd(h, 44, 4, 256 * 1024)
    h(f"s_mul_i32 s{sT0}, s{sT0}, {172 * 1024}")
    h(f"s_add_u32 s10, s{KD}, s{sT0}")
    h(f"s_addc_u32 s11, s{KD + 1}, 0")
    if OPT["down_l2"]:
        srd(h, 40, KD, 1376 * 1024)
    else:
        srd(h, 40, 10, 172 * 1024)
    h(f"s_lshr_b32 s{sT0}, s2, 3")
    h("v_lshlrev_b32 v3, 7, v1")


def touch_weights(h, late=None):
    k0 = OPT["gu_from"]
    k1 = OPT["gu_to"]
    n = -(-(k1 - k0) * 2752 // (32 * 8192))
    if k0:
        per = -(-(k0 if k1 == 512 else 512) * 2752 // 256 // 128) * 128
        assert per <= 8192
        h(f"s_mul_i32 s{sT1}, s2, {per}")
        h(f"v_add_u32 v4, s{sT1}, v3")
        nl = per // 128
        h(f"s_mov_b32 exec_lo, {hx((1 << min(nl, 32)) - 1)}")
        h(f"s_mov_b32 exec_hi, {hx((1 << max(nl - 32, 0)) - 1)}")
        for sq in (20, 48):
            h.vm(f"buffer_load_dword v5, v4, {sr(sq, 4)}, 0 offen")
        h("s_mov_b64 exec, -1")
    for sq, per, n_, base in ((16, 16384, 2 * OPT["t_wo"], 0), (44, 8192, OPT["t_wo"], 0), (40, 49152, 6, 0) if OPT["down_l2"] else (40, 8192, 1, 0), (20, n * 8192, n, k0 * 2752 // 128 * 128),
                              (48, n * 8192, n, k0 * 2752 // 128 * 128)):
        if n_ == 0:
            continue
        if sq == 20 and late:
            late("L_skip_gu")
        h(f"s_mul_i32 s{sT1}, s{sT0}, {per}")
        if base:
            h(f"s_add_u32 s{sT1}, s{sT1}, {base}")
        h(f"v_add_u32 v4, s{sT1}, v3")
        for i in range(n_):
            h.vm(f"buffer_load_dword v5, v4, {sr(sq, 4)}, 0 offen")
            if i + 1 < n_:
                h("v_add_u32 v4, 0x2000, v4")
    if late:
        h.label("L_skip_gu")


def phase1(a):
    sX, sW = 20, 16
    sWr, sWc, sCg, sRb = 25, 26, 27, 28
    sWL = 32
    sOnes = 41
    vT = 8
    NSLOT, SLOT, WBASE, NST = 7, 12288, 65536, 16
    CSO = WBASE + NSLOT * SLOT
    RSO = 155648
    XEO = 156672
    BS = [list(range(16)), [0, 1, 2, 4, 6, 8, 10, 12, 14], [0, 2, 4, 6, 8, 10, 12, 14], [0, 1, 2, 3, 4, 6, 8, 10, 12, 14, 15]][OPT["p1_bs"]]
    a("s_load_dwordx16 s[64:79], s[0:1], 0")
    a("s_load_dwordx2 s[8:9], s[0:1], 72")
    a(f"v_and_b32 v{vLane}, 63, v0")
    a(f"v_lshrrev_b32 v7, 6, v0")
    a(f"v_lshlrev_b32 v{vL16}, 4, v{vLane}")
    a(f"v_readfirstlane_b32 s{sWave}, v7")
    a(f"s_and_b32 s{sT0}, s2, 7")
    a(f"s_lshl_b32 s{sT0}, s{sT0}, 2")
    a(f"s_bfe_u32 s{sT1}, s2, 0x20003")
    a(f"s_add_u32 s{sRb}, s{sT0}, s{sT1}")
    a(f"s_lshr_b32 s{sCg}, s2, 5")
    a(f"s_and_b32 s{sHw}, s{sWave}, 3")
    a(f"s_cmp_eq_u32 s{sWave}, 8")
    a("s_cbranch_scc1 L_p1_aux")
    a(f"s_cmp_ge_u32 s{sWave}, 4")
    a(f"s_cbranch_scc0 L_p1_compute")

    x = fork(a)
    x.label("L_p1_aux")
    x("s_setprio 3")
    x(f"v_lshlrev_b32 v30, 7, v{vLane}")
    x(f"s_lshr_b32 s{sT0}, s2, 3")
    x(f"s_lshl_b32 s{sT0}, s{sT0}, 11")
    x(f"v_add_u32 v30, s{sT0}, v30")
    x("s_mov_b64 exec, 0xffff")
    code_prefetch(x, KNAME, 44, 30, 31, "p1")
    x("s_mov_b64 exec, -1")
    x("s_getreg_b32 s56, hwreg(HW_REG_XCC_ID, 0, 4)")
    x("s_and_b32 s57, s2, 7")
    x("s_lshl_b32 s57, s57, 8")
    x(f"s_add_u32 s57, s57, {XT}")
    x("s_lshr_b32 s58, s2, 3")
    x("s_lshl_b32 s58, s58, 2")
    x(f"v_mov_b32 v6, {GEN}")
    x("s_waitcnt lgkmcnt(0)")
    ws_srd(x)
    x.vm(f"buffer_load_dword v7, v6, {sr(sWS, 4)}, 0 offen")
    x("v_mov_b32 v6, s58")
    x("s_barrier")
    x("s_barrier")
    x.wait_all()
    x(f"v_readfirstlane_b32 s{sTag}, v7")
    x("s_nop 3")
    x(f"s_mul_i32 s{sTag}, s{sTag}, 1664525")
    x(f"s_add_u32 s{sTag}, s{sTag}, 1013904223")
    x(f"s_lshl_b32 s58, s{sTag}, 4")
    x("s_or_b32 s56, s56, s58")
    x("v_mov_b32 v7, s56")
    x("s_mov_b64 exec, 1")
    x.vm(f"buffer_store_dword v7, v6, {sr(sWS, 4)}, s57 offen sc1")
    x("s_mov_b32 exec_lo, -1")
    x("s_mov_b32 exec_hi, 0")
    x(f"v_lshlrev_b32 v6, 2, v{vLane}")
    for st in (BS + [NST])[2:]:
        if st == 12:
            x("s_mov_b32 s59, 0x40000")
            x("s_waitcnt vmcnt(0)")
            x("s_branch L_xt_chk")
            x.label("L_xt_poll")
            x(f"buffer_load_dword v7, v6, {sr(sWS, 4)}, s57 offen sc1")
            x("s_sub_u32 s59, s59, 1")
            x("s_waitcnt vmcnt(0)")
            x.label("L_xt_chk")
            x("v_xor_b32 v8, s56, v7")
            x("v_cmp_lt_u32 vcc, 15, v8")
            x("s_cmp_eq_u32 s59, 0")
            x("s_cbranch_scc1 L_xt_done")
            x("s_cbranch_vccnz L_xt_poll")
            x.label("L_xt_done")
            x("v_cmp_ne_u32 vcc, 0, v8")
            x("s_nop 1")
            x("s_cmp_eq_u64 vcc, 0")
            x(f"s_cselect_b32 s{sMode}, {0 if OPT['force_slow'] else 1}, 0")
            x(f"v_mov_b32 v6, {LMODE}")
            x(f"v_mov_b32 v8, s{sMode}")
            x(f"v_mov_b32 v9, s{sTag}")
            x("ds_write_b64 v6, v[8:9]")
            x("s_waitcnt lgkmcnt(0)")
            x("s_mov_b64 exec, -1")
        x("s_barrier")
        if OPT["early_t"] and st == OPT["early_t"]:
            touch_setup(x)
            touch_weights(x)
        if st == 8:
            x(f"buffer_load_dword v7, v6, {sr(sWS, 4)}, s57 offen sc1")

    h = fork(a)
    vWoff, vXg, vSr, vXe, vRs = 3, 4, 6, 20, 21
    vS, vQ, vM, vR = 22, 23, 24, 25
    XB = 32
    h(f"v_lshrrev_b32 v{vT}, 3, v{vLane}")
    h(f"v_and_b32 v{vT + 1}, 7, v{vLane}")
    h(f"v_lshrrev_b32 v{vT + 2}, 1, v{vT}")
    h(f"v_xor_b32 v{vT + 2}, v{vT + 2}, v{vT + 1}")
    h(f"v_lshlrev_b32 v{vT + 2}, 4, v{vT + 2}")
    h(f"v_lshl_add_u32 v{vXg}, v{vT}, 10, v{vT + 2}")
    h(f"v_xor_b32 v{vXg + 1}, 64, v{vXg}")
    h(f"v_add_u32 v{vXg + 1}, {8 * 1024 - 1024}, v{vXg + 1}")
    h(f"s_lshl_b32 s34, s{sRb}, 16")
    h(f"s_lshl_b32 s{sT0}, s{sHw}, 14")
    h(f"s_add_u32 s34, s34, s{sT0}")
    h(f"s_lshl_b32 s36, s{sHw}, 11")
    h(f"v_lshrrev_b32 v{vT + 2}, 2, v{vLane}")
    h(f"v_and_b32 v{vT + 2}, 4, v{vT + 2}")
    h(f"v_xor_b32 v{vT + 2}, v{vT + 2}, v{vT + 1}")
    h(f"v_lshlrev_b32 v{vT + 2}, 4, v{vT + 2}")
    h(f"v_mul_u32_u24 v{vT + 3}, 3072, v{vT}")
    h(f"s_mul_i32 s{sT0}, s{sHw}, {8 * 3072}")
    h(f"s_lshl_b32 s{sT1}, s{sCg}, 7")
    h(f"s_add_u32 s{sT0}, s{sT0}, s{sT1}")
    h(f"v_add3_u32 v{vWoff}, v{vT + 3}, v{vT + 2}, s{sT0}")
    h(f"s_mul_i32 s{sWL}, s{sHw}, 3072")
    h("s_waitcnt lgkmcnt(0)")
    srd(h, sX, KX, 2048 * 1024)
    srd(h, sW, KX + 2, 512 * 3072)
    d2 = OPT.get("det") == 2
    if d2:
        h.nstamp = 7
        stamp(h)
    dr = Drip(h)

    XLEAD = OPT["p1_xl"] / 4

    def x_dma(c, key):
        dr.add(key, [f"s_add_u32 m0, s36, {c * 8192}", f"s_add_u32 s43, s34, {c * 128}"],
               f"buffer_load_dwordx4 v{vXg}, {sr(sX, 4)}, s43 offen lds")
        dr.add(key, [], f"buffer_load_dwordx4 v{vXg + 1}, {sr(sX, 4)}, s43 offen offset:1024 lds")

    def issue(st):
        for c in range(8):
            if int(c * XLEAD) == st:
                x_dma(c, st)
        for seg in range(3):
            pre = [f"s_add_u32 m0, s{sWL}, {WBASE + (st % NSLOT) * SLOT}", f"s_mov_b32 s42, {32 * st * 3072}"] if seg == 0 else []
            dr.add(st, pre, f"buffer_load_dwordx4 v{vWoff}, {sr(sW, 4)}, s42 offen offset:{seg * 1024} lds")

    for st in range(NSLOT):
        issue(st)
    AHEAD = OPT["k1_d"]
    dr.through(OPT["k1_t"] - 1)

    def s3(lo, hi):
        for i in range(lo, hi):
            h(f"s_load_dword s52, s[50:51], {(i % 8) * 131072 + 384}")
            h(f"s_load_dword s52, s[50:51], {(i % 8) * 131072 + 448}")

    if OPT["p1_s3"]:
        h(f"s_lshr_b32 s{sT0}, s2, 3")
        h(f"s_lshl_b32 s{sT0}, s{sT0}, 2")
        h(f"s_add_u32 s{sT0}, s{sT0}, s{sHw}")
        h(f"s_lshl_b32 s{sT0}, s{sT0}, 10")
        h(f"s_add_u32 s50, s{KX + 2}, s{sT0}")
        h(f"s_addc_u32 s51, s{KX + 3}, 0")
        s3(0, 7)
    if OPT["k1_touch"]:
        h(f"s_lshl_b32 s{sT0}, s2, 2")
        h(f"s_add_u32 s{sT0}, s{sT0}, s{sHw}")
        h(f"s_mul_i32 s{sT1}, s{sT0}, 1536")
        h(f"s_lshl_b32 s{sT0}, s{sT0}, 11")
        h(f"v_lshlrev_b32 v30, 7, v{vLane}")
        h("s_mov_b64 exec, 0xfff")
        h.vm(f"buffer_load_dword v31, v30, {sr(sW, 4)}, s{sT1} offen")
        h("s_mov_b64 exec, 0xffff")
        h.vm(f"buffer_load_dword v31, v30, {sr(sX, 4)}, s{sT0} offen")
        h("s_mov_b64 exec, -1")
    dr.through(AHEAD - 1)
    ws_srd(h)
    LS = OPT["p1_ls"]
    if LS:
        h(f"s_mov_b32 s{sOnes}, 0x3f803f80")
        h(f"v_lshrrev_b32 v{vT}, 2, v{vLane}")
        h(f"v_and_b32 v{vT + 1}, 3, v{vLane}")
        h(f"v_lshlrev_b32 v{vT + 2}, 7, v{vT}")
        h(f"v_lshl_add_u32 v{vT + 2}, v{vT + 1}, 4, v{vT + 2}")
        h(f"v_bfe_u32 v{vT + 3}, v{vLane}, 3, 1")
        h(f"v_lshl_add_u32 v{vT + 2}, v{vT + 3}, 6, v{vT + 2}")
        h(f"v_add_u32 v{vSr}, s36, v{vT + 2}")
        h(f"v_xor_b32 v{vSr + 1}, 64, v{vSr}")
        h(f"s_lshl_b32 s{sT0}, s{sHw}, 4")
        h(f"v_add_u32 v{vT}, s{sT0}, v{vT}")
        h(f"v_lshlrev_b32 v{vRs}, 2, v{vT}")
        h(f"v_add_u32 v{vRs}, {RSO}, v{vRs}")
        h(f"v_and_b32 v{vT + 2}, 31, v{vT}")
        h(f"v_lshl_add_u32 v{vT + 2}, v{vT + 1}, 5, v{vT + 2}")
        h(f"v_lshrrev_b32 v{vT + 3}, 5, v{vT}")
        h(f"v_lshl_add_u32 v{vT + 2}, v{vT + 3}, 6, v{vT + 2}")
        h(f"v_lshlrev_b32 v{vXe}, 4, v{vT + 2}")
        h(f"v_add_u32 v{vXe}, {XEO}, v{vXe}")
        h(f"v_mov_b32 v{vS}, 0")
        h(f"v_mov_b32 v{vQ}, 0")
    sdone = 0
    if d2:
        stamp(h)
    added = NSLOT
    for bi, st in enumerate(BS):
        last = (BS + [NST])[bi + 1] - 1
        dr.wait(last)
        if d2 and st in (4, 10):
            stamp(h)
        h("s_barrier")
        if d2 and st in (0, 2, 4, 8, 10, 12, 14):
            stamp(h)
        if st == 0 and OPT["p1_s3"]:
            s3(7, 8)
            h(f"s_add_u32 s50, s50, {8 * 131072}")
            h("s_addc_u32 s51, s51, 0")
            s3(8, 12)
        todo = []
        if LS and st >= 4:
            while int((sdone + len(todo)) * XLEAD) <= last and sdone + len(todo) < 8 and len(todo) < 2:
                todo.append(sdone + len(todo))
            for k, c in enumerate(todo):
                h(f"ds_read_b128 {vr(XB + 8 * k, 4)}, v{vSr} offset:{c * 8192}")
                h(f"ds_read_b128 {vr(XB + 8 * k + 4, 4)}, v{vSr + 1} offset:{c * 8192}")
        while added < NST and added - NSLOT < st:
            issue(added)
            added += 1
        tgt = min(NST - 1, last + AHEAD + min(st + 1, OPT["k1_g"]))
        while dr.q and dr.q[0][0] <= tgt:
            dr.emit()
        if todo:
            h("s_waitcnt lgkmcnt(0)")
            for r in range(8 * len(todo)):
                h(f"v_dot2_f32_bf16 v{vS}, v{XB + r}, s{sOnes}, v{vS}")
                h(f"v_dot2_f32_bf16 v{vQ}, v{XB + r}, v{XB + r}, v{vQ}")
            sdone += len(todo)
            if sdone == 8:
                h("s_nop 2")
                for pat in ("quad_perm:[1,0,3,2]", "quad_perm:[2,3,0,1]"):
                    h(f"v_add_f32_dpp v{vS}, v{vS}, v{vS} {pat} row_mask:0xf bank_mask:0xf")
                    h(f"v_add_f32_dpp v{vQ}, v{vQ}, v{vQ} {pat} row_mask:0xf bank_mask:0xf")
                    h("s_nop 0")
                h(f"v_mul_f32 v{vM}, {hx(f2u(-1.0 / 512))}, v{vS}")
                h(f"v_mul_f32 v{vQ}, {hx(f2u(1.0 / 512))}, v{vQ}")
                h(f"v_fma_f32 v{vQ}, -v{vM}, v{vM}, v{vQ}")
                h(f"v_max_f32 v{vQ}, 0, v{vQ}")
                h(f"v_add_f32 v{vQ}, {hx(f2u(1e-5))}, v{vQ}")
                h(f"v_rsq_f32 v{vR}, v{vQ}")
                split_hi_lo(h, vM, XB, vT, vT + 1)
                h(f"v_cvt_pk_bf16_f32 v{XB + 1}, v{vT}, 0")
                h(f"v_mov_b32 v{XB + 2}, 0")
                h(f"v_mov_b32 v{XB + 3}, 0")
                h("s_mov_b32 exec_lo, 0x33333333")
                h("s_mov_b32 exec_hi, 0x33333333")
                h(f"ds_write_b128 v{vXe}, {vr(XB, 4)}")
                h(f"ds_write_b32 v{vRs}, v{vR}")
                h("s_mov_b64 exec, -1")
        if st <= OPT.get("k1_tout", -1) <= last:
            h(f"s_lshl_b32 s{sT0}, s{sRb}, 1")
            h(f"s_and_b32 s{sT1}, s{sHw}, 1")
            h(f"s_add_u32 s{sT0}, s{sT0}, s{sT1}")
            h(f"s_mul_i32 s{sT0}, s{sT0}, {RT}")
            h(f"s_lshl_b32 s{sT1}, s{sCg}, 13")
            h(f"s_lshl_b32 s43, s{sCg}, 12")
            h(f"s_add_u32 s43, s43, {QO}")
            h(f"s_cmp_ge_u32 s{sHw}, 2")
            h(f"s_cselect_b32 s{sT1}, s43, s{sT1}")
            h("s_cselect_b32 exec_hi, 0, -1")
            h(f"s_add_u32 s{sT0}, s{sT0}, s{sT1}")
            h(f"v_lshlrev_b32 v30, 7, v{vLane}")
            h.vm(f"buffer_load_dword v31, v30, {sr(sWS, 4)}, s{sT0} offen")
            h("s_mov_b64 exec, -1")
    assert not LS or sdone == 8
    h(f"v_mov_b32 v{vT}, {LMODE}")
    h.lg(f"ds_read_b64 {vr(vT + 2, 2)}, v{vT}")
    h.wait_all(vm=False)
    h(f"v_readfirstlane_b32 s{sMode}, v{vT + 2}")
    h(f"v_readfirstlane_b32 s{sTag}, v{vT + 3}")
    h("s_barrier")
    h.wait_all()
    if OPT.get("det") != 2:
        stamp(h)
    a = fork(a)
    a.label("L_p1_compute")

    vXrd = [3, 4, 5, 6]
    vKoff, vVoff = 20, 21
    vWrd = [22, 23, 24]
    vCw, vCr, vEr, vRl, vRr = 25, 26, 27, 28, 29
    XF = [32, 36]
    WF = [40, 52]
    CS, ONES, XE = 64, 76, 80
    RV = 84
    accQ, accK, accV = 104, 120, 136
    SQ = 152
    a(f"s_lshr_b32 s{sWr}, s{sHw}, 1")
    a(f"s_and_b32 s{sWc}, s{sHw}, 1")
    a(f"v_and_b32 v{vT}, 31, v{vLane}")
    a(f"v_lshrrev_b32 v{vT + 1}, 5, v{vLane}")
    a(f"v_bfe_u32 v{vT + 2}, v{vLane}, 1, 3")
    a(f"v_xor_b32 v{vT + 2}, v{vT + 2}, v{vT + 1}")
    a(f"v_lshlrev_b32 v{vT + 2}, 4, v{vT + 2}")
    a(f"v_lshl_add_u32 v{vT + 2}, v{vT}, 7, v{vT + 2}")
    a(f"s_lshl_b32 s{sT0}, s{sWr}, 12")
    a(f"v_add_u32 v{vXrd[0]}, s{sT0}, v{vT + 2}")
    for ss in range(1, 4):
        a(f"v_xor_b32 v{vXrd[ss]}, {ss * 32}, v{vXrd[0]}")
    a(f"v_mul_u32_u24 v{vT + 2}, 3072, v{vT + 1}")
    a(f"v_bfe_u32 v{vT + 3}, v{vLane}, 2, 2")
    a(f"v_lshl_add_u32 v{vT + 2}, v{vT + 3}, 7, v{vT + 2}")
    a(f"v_lshrrev_b32 v{vT + 3}, 1, v{vT + 3}")
    a(f"v_xor_b32 v{vT + 3}, s{sWc}, v{vT + 3}")
    a(f"v_lshl_add_u32 v{vT + 2}, v{vT + 3}, 6, v{vT + 2}")
    a(f"v_bfe_u32 v{vT + 4}, v{vLane}, 4, 1")
    a(f"v_lshl_add_u32 v{vT + 2}, v{vT + 4}, 5, v{vT + 2}")
    a(f"v_and_b32 v{vT + 3}, 3, v{vLane}")
    a(f"v_lshl_add_u32 v{vWrd[0]}, v{vT + 3}, 3, v{vT + 2}")
    wl = LdsAddr(a, vWrd)
    wl.setup(a)
    a(f"v_xor_b32 v{vT + 2}, v{vT + 4}, v{vLane}")
    a(f"v_and_b32 v{vT + 2}, 1, v{vT + 2}")
    a(f"v_cmp_eq_u32 vcc, 0, v{vT + 2}")
    a(f"v_mov_b32 v{vT + 2}, 0x3f803f80")
    a("s_nop 0")
    for r in range(4):
        a(f"v_cndmask_b32 v{ONES + r}, 0, v{vT + 2}, vcc")
    a(f"s_lshl_b32 s{sT0}, s{sWc}, 1")
    a(f"s_add_u32 s{sT1}, s{sT0}, s{sWr}")
    a(f"s_mul_i32 s{sT1}, s{sT1}, 384")
    a(f"s_add_u32 s{sT1}, s{sT1}, {CSO}")
    a(f"v_and_b32 v{vT + 2}, 1, v{vLane}")
    a(f"v_lshlrev_b32 v{vT + 2}, 6, v{vT + 2}")
    a(f"v_and_b32 v{vT + 3}, 48, v{vLane}")
    a(f"v_add3_u32 v{vCw}, v{vT + 2}, v{vT + 3}, s{sT1}")
    a(f"s_mul_i32 s{sT0}, s{sT0}, 384")
    a(f"s_add_u32 s{sT0}, s{sT0}, {CSO}")
    a(f"v_mul_u32_u24 v{vT + 2}, 384, v{vT + 1}")
    a(f"v_lshl_add_u32 v{vT + 2}, v{vT}, 2, v{vT + 2}")
    a(f"v_add_u32 v{vCr}, s{sT0}, v{vT + 2}")
    a(f"s_lshl_b32 s{sT0}, s{sHw}, 9")
    a(f"s_add_u32 s{sT0}, s{sT0}, {XEO}")
    a(f"v_lshl_add_u32 v{vEr}, v{vLane}, 3, s{sT0}")
    a(f"v_xor_b32 v31, 512, v{vEr}")
    a(f"s_lshl_b32 s{sT0}, s{sHw}, 7")
    a(f"s_add_u32 s{sT0}, s{sT0}, {RSO}")
    a(f"v_lshl_add_u32 v{vRl}, v{vT}, 2, s{sT0}")
    a(f"v_lshl_add_u32 v{vRr}, v{vT + 1}, 4, s{sT0}")
    if LS:
        a(f"s_lshl_b32 s{sT0}, s{sWr}, 10")
        a(f"s_add_u32 s{sT0}, s{sT0}, {XEO}")
        a(f"v_add_u32 v{vEr}, s{sT0}, v{vL16}")
        a(f"s_lshl_b32 s{sT0}, s{sWr}, 7")
        a(f"s_add_u32 s{sT0}, s{sT0}, {RSO}")
        a(f"v_lshl_add_u32 v{vRl}, v{vT}, 2, s{sT0}")
        a(f"v_lshl_add_u32 v{vRr}, v{vT + 1}, 4, s{sT0}")
    a(f"s_mov_b32 s{sOnes}, 0x3f803f80")
    a(f"v_mov_b32 v{SQ}, 0")
    a(f"v_mov_b32 v{SQ + 1}, 0")
    a(f"v_and_b32 v{vT + 2}, 0x33, v{vLane}")
    a(f"v_bfe_u32 v{vT + 3}, v{vLane}, 2, 1")
    a(f"v_lshl_or_b32 v{vT + 2}, v{vT + 3}, 3, v{vT + 2}")
    a(f"v_bfe_u32 v{vT + 3}, v{vLane}, 3, 1")
    a(f"v_lshl_or_b32 v{vT + 2}, v{vT + 3}, 2, v{vT + 2}")
    a(f"v_lshlrev_b32 v{vKoff}, 4, v{vT + 2}")
    a(f"v_lshlrev_b32 v{vT + 2}, 11, v{vT + 4}")
    a(f"v_lshl_add_u32 v{vT + 2}, v{vT + 1}, 8, v{vT + 2}")
    a(f"v_and_b32 v{vT + 3}, 15, v{vLane}")
    a(f"v_lshl_add_u32 v{vVoff}, v{vT + 3}, 4, v{vT + 2}")
    a(f"s_lshl_b32 s{sT0}, s{sCg}, 2")
    a(f"s_lshl_b32 s{sT1}, s{sWc}, 1")
    a(f"s_add_u32 s{sT0}, s{sT0}, s{sT1}")
    a(f"s_lshl_b32 s{sT1}, s{sRb}, 1")
    a(f"s_add_u32 s{sT1}, s{sT1}, s{sWr}")
    a(f"s_mul_i32 s60, s{sT1}, {RT}")
    a(f"s_lshl_b32 s46, s{sT0}, 10")
    a("s_add_u32 s46, s46, s60")
    a(f"s_add_u32 s46, s46, {QO}")
    a("s_add_u32 s47, s46, 1024")
    a(f"s_lshl_b32 s37, s{sT0}, 11")
    a("s_add_u32 s60, s60, s37")
    a(f"s_lshl_b32 s37, s{sT1}, 11")
    a(f"s_mul_i32 s36, s{sT0}, {HS()}")
    a(f"s_add_u32 s36, s36, s37")
    a(f"s_add_u32 s36, s36, {KVG}")
    a(f"s_add_u32 s37, s36, {HS()}")
    a(f"v_mul_u32_u24 v156, {HS() - 2048}, v{vT + 4}")
    a(f"v_add_u32 v156, v156, v{vVoff}")
    for r in range(12):
        a(f"v_mov_b32 v{CS + r}, 0")
    a("s_waitcnt lgkmcnt(0)")
    ws_srd(a)
    a(f"s_lshl_b32 s{sT0}, s{sCg}, 1")
    a(f"s_add_u32 s{sT0}, s{sT0}, s{sWc}")
    a(f"s_and_b32 s{sT1}, s{sRb}, 3")
    a(f"s_lshl_b32 s{sT1}, s{sT1}, 1")
    a(f"s_add_u32 s{sT1}, s{sT1}, s{sWr}")
    a(f"s_lshl_b32 s{sT1}, s{sT1}, 2")
    a("s_and_b32 s38, s2, 7")
    a("s_lshl_b32 s48, s38, 9")
    a(f"s_lshl_b32 s39, s{sT0}, 5")
    a("s_add_u32 s48, s48, s39")
    a(f"s_add_u32 s48, s48, s{sT1}")
    a(f"s_add_u32 s48, s48, {FL1}")
    a(f"s_lshl_b32 s49, s{sT0}, 10")
    a("s_lshl_b32 s39, s38, 7")
    a("s_add_u32 s49, s49, s39")
    a(f"s_add_u32 s49, s49, s{sT1}")
    a(f"s_add_u32 s49, s49, {FG1}")
    a("s_mov_b32 s38, s60")
    a("s_add_u32 s39, s60, 2048")
    a(f"v_mov_b32 v30, {LMODE}")

    def reads(s):
        st, ss = divmod(s, 2)
        ops = [f"ds_read_b128 {vr(XF[s & 1], 4)}, v{vXrd[s & 3]} offset:{(s >> 2) * 8192}"]
        for seg in range(3):
            for half in range(2):
                reg, off = wl.at(WBASE + (st % NSLOT) * SLOT + ss * 6144 + seg * 1024 + half * 512)
                ops.append(f"ds_read_b64_tr_b16 {vr(WF[s & 1] + 4 * seg + 2 * half, 2)}, {reg} offset:{off}")
        return ops

    rt = {}

    def emit_reads(b, s, lo, hi):
        ops = reads(s)
        for k in range(lo, min(hi, 7)):
            rt[(s, k)] = b.lg(ops[k])

    a("s_barrier")
    if OPT.get("det") != 4:
        stamp(a)
    emit_reads(a, 0, 0, 7)
    a(f"s_cmp_lg_u32 s{sWr}, s{sWc}")
    a("s_cbranch_scc1 L_p1_odd")
    rt0 = dict(rt)
    odd = fork(a)
    odd.label("L_p1_odd")
    acc = [accQ, accK, accV]

    def mm(b, j, w, x, first=False):
        c = "0" if first else vr(acc[j], 16)
        ops = (vr(w, 4), vr(x, 4)) if j < 2 else (vr(x, 4), vr(w, 4))
        b(f"v_mfma_f32_32x32x16_bf16 {vr(acc[j], 16)}, {ops[0]}, {ops[1]}, {c}")

    def csum(b, s, j):
        b(f"v_mfma_f32_16x16x32_bf16 {vr(CS + 4 * j, 4)}, {vr(WF[s & 1] + 4 * j, 4)}, {vr(ONES, 4)}, {vr(CS + 4 * j, 4)}")

    def stats(b, s):
        for r in range(0 if LS else 4):
            b(f"v_dot2_f32_bf16 v{SQ}, v{XF[s & 1] + r}, s{sOnes}, v{SQ}")
            b(f"v_dot2_f32_bf16 v{SQ + 1}, v{XF[s & 1] + r}, v{XF[s & 1] + r}, v{SQ + 1}")

    for par, b in ((0, a), (1, odd)):
        rt.clear()
        rt.update(rt0)
        for s in range(31):
            if s % 2 == 1 and (s + 1) // 2 in BS:
                b.wait(lg=rt[(s, 6)])
                b("s_barrier")
            cutp = [0, 3, 5, 7]
            for j in range(3):
                b.wait(lg=rt[(s, 2 + 2 * j)])
                if s % 2 == par:
                    csum(b, s, j)
                mm(b, j, WF[s & 1] + 4 * j, XF[s & 1], s == 0)
                emit_reads(b, s + 1, cutp[j], cutp[j + 1])
            if s % 2 != par:
                stats(b, s)
            if s == 27:
                b.lg("ds_read_b64 v[102:103], v30")
        b.wait_all(vm=False)
        if par == 1:
            for j in range(3):
                csum(b, 31, j)
        else:
            stats(b, 31)
    odd("s_branch L_p1_join")
    a.label("L_p1_join")
    mm(a, 0, WF[1], XF[1])
    a(f"v_readfirstlane_b32 s{sMode}, v102")
    a(f"v_readfirstlane_b32 s{sTag}, v103")
    if LS:
        a("s_nop 3")
    else:
        a(f"v_mov_b32 v{SQ + 2}, v{SQ}")
        a(f"v_mov_b32 v{SQ + 3}, v{SQ + 1}")
        a(f"v_mov_b32 v{XE + 2}, 0")
        a(f"v_permlane32_swap_b32 v{SQ}, v{SQ + 2}")
        a(f"v_permlane32_swap_b32 v{SQ + 1}, v{SQ + 3}")
        a(f"v_mov_b32 v{XE + 3}, 0")
        a(f"v_add_f32 v{SQ}, v{SQ}, v{SQ + 2}")
        a(f"v_add_f32 v{SQ + 1}, v{SQ + 1}, v{SQ + 3}")
        a.lg(f"ds_write_b64 v{vEr}, {vr(SQ, 2)}")
    a("s_mov_b32 exec_lo, 0x00030003")
    a("s_mov_b32 exec_hi, 0x00030003")
    for j in range(3):
        a.lg(f"ds_write_b128 v{vCw}, {vr(CS + 4 * j, 4)} offset:{j * 128}")
    a("s_mov_b64 exec, -1")
    mm(a, 1, WF[1] + 4, XF[1])
    for j in range(3):
        a(f"v_mov_b32 v{WF[0] + 4 * j + 2}, 0")
        a(f"v_mov_b32 v{WF[0] + 4 * j + 3}, 0")
    a.wait_all(vm=False)
    a("s_barrier")
    if LS:
        a.lg(f"ds_read_b128 {vr(XE, 4)}, v{vEr}")
        a.lg(f"ds_read_b32 v100, v{vRl}")
    else:
        ts = a.lg(f"ds_read_b64 {vr(SQ + 2, 2)}, v31")
    for j in range(3):
        rt[("c", j)] = a.lg(f"ds_read_b32 v{vT + 4 + j}, v{vCr} offset:{j * 128}")
    mm(a, 2, WF[1] + 8, XF[1])
    if OPT.get("det") != 4:
        stamp(a)
    if not LS:
        a.wait(lg=ts)
        a(f"v_add_f32 v{SQ}, v{SQ}, v{SQ + 2}")
        a(f"v_add_f32 v{SQ + 1}, v{SQ + 1}, v{SQ + 3}")
        a(f"v_mul_f32 v{SQ}, {hx(f2u(-1.0 / 512))}, v{SQ}")
        a(f"v_mul_f32 v{SQ + 1}, {hx(f2u(1.0 / 512))}, v{SQ + 1}")
        split_hi_lo(a, SQ, XE, vT, vT + 1)
        a(f"v_fma_f32 v{SQ + 1}, -v{SQ}, v{SQ}, v{SQ + 1}")
        a(f"v_cvt_pk_bf16_f32 v{XE + 1}, v{vT}, 0")
        a(f"v_max_f32 v{SQ + 1}, 0, v{SQ + 1}")
        a(f"v_add_f32 v{SQ + 1}, {hx(f2u(1e-5))}, v{SQ + 1}")
        a(f"v_rsq_f32 v100, v{SQ + 1}")
    for j in range(3):
        w = WF[0] + 4 * j
        a.wait(lg=rt[("c", j)])
        a(f"v_cvt_pk_bf16_f32 v{w + 1}, v{vT + 4 + j}, 0")
        a(f"v_lshlrev_b32 v{vT}, 16, v{w + 1}")
        a(f"v_sub_f32 v{vT}, v{vT + 4 + j}, v{vT}")
        a(f"v_cvt_pk_bf16_f32 v{w}, v{vT + 4 + j}, v{vT}")
        if j == 0 and not LS:
            a.lg(f"ds_write_b32 v{vRl}, v100")
    for j in range(3):
        mm(a, j, WF[0] + 4 * j, XE)
    a(f"v_mul_f32 v101, {hx(f2u(0.25 * LOG2E))}, v100")
    for g in range(4):
        trv = a.lg(f"ds_read_b128 {vr(RV + 4 * g, 4)}, v{vRr} offset:{g * 32}")
    a("s_nop 4")
    P = 32
    for r in range(0, 16, 2):
        a(f"v_pk_mul_f32 {vr(accQ + r, 2)}, {vr(accQ + r, 2)}, v[100:101] op_sel:[0,1] op_sel_hi:[1,1]")
    for i in range(8):
        a(f"v_cvt_pk_bf16_f32 v{P + i}, v{accQ + 2 * i}, v{accQ + 2 * i + 1}")
    stores(a, [f"buffer_store_dwordx4 {vr(P, 4)}, v{vL16}, {sr(sWS, 4)}, s46 offen",
               f"buffer_store_dwordx4 {vr(P + 4, 4)}, v{vL16}, {sr(sWS, 4)}, s47 offen"])
    for r in range(0, 16, 2):
        a(f"v_pk_mul_f32 {vr(accK + r, 2)}, {vr(accK + r, 2)}, v[100:101] op_sel_hi:[1,0]")
    for i in range(8):
        a(f"v_cvt_pk_bf16_f32 v{P + 8 + i}, v{accK + 2 * i}, v{accK + 2 * i + 1}")
    stores(a, [f"buffer_store_dwordx4 {vr(P + 8, 4)}, v{vKoff}, {sr(sWS, 4)}, s38 offen",
               f"buffer_store_dwordx4 {vr(P + 12, 4)}, v{vKoff}, {sr(sWS, 4)}, s39 offen"])
    a.wait(lg=trv)
    for r in range(0, 16, 2):
        a(f"v_pk_mul_f32 {vr(accV + r, 2)}, {vr(accV + r, 2)}, {vr(RV + r, 2)}")
    for i in range(8):
        a(f"v_cvt_pk_bf16_f32 v{P + 16 + i}, v{accV + 2 * i}, v{accV + 2 * i + 1}")
    stores(a, [f"buffer_store_dwordx4 {vr(P + 16, 4)}, v{vVoff}, {sr(sWS, 4)}, s38 offen offset:1024",
               f"buffer_store_dwordx4 {vr(P + 20, 4)}, v{vVoff}, {sr(sWS, 4)}, s38 offen offset:1536"])
    loc = a.vm_issued - 1
    a.vm(f"buffer_store_dwordx4 {vr(P + 8, 4)}, v{vKoff}, {sr(sWS, 4)}, s36 offen {GM()}")
    a.vm(f"buffer_store_dwordx4 {vr(P + 12, 4)}, v{vKoff}, {sr(sWS, 4)}, s37 offen {GM()}")
    a.vm(f"buffer_store_dwordx4 {vr(P + 16, 4)}, v156, {sr(sWS, 4)}, s36 offen offset:1024 {GM()}")
    a.vm(f"buffer_store_dwordx4 {vr(P + 20, 4)}, v156, {sr(sWS, 4)}, s36 offen offset:1536 {GM()}")
    stamp(a)
    a(f"v_mov_b32 v{vT}, 0")
    a(f"v_mov_b32 v{vT + 1}, s{sTag}")
    a("s_mov_b64 exec, 1")
    if OPT["p1_cnt"]:
        a.wait(vm=loc)
    else:
        a.wait_all(lg=False)
    stores(a, [f"buffer_store_dword v{vT + 1}, v{vT}, {sr(sWS, 4)}, s48 offen"])
    if OPT.get("det") == 4:
        stamp(a)
    a("s_mov_b64 exec, -1")
    return a, odd, h, x


def phase2(a, l, h):
    sHead, sQb, sKh, sQs = 25, 26, 27, 28
    sVm = 34
    vKrd, vVrd, vIdx, vXw, vXr = 3, 4, 5, 6, 7
    Qf = [8, 12]
    Kf, Vf = 16, 32
    S = [64, 80]
    O = [96, 112]
    NEG = 128
    T = 144
    XCH = 131072
    BARS, CB = [[6, 12, 28], {2: 1, 4: 3}] if OPT["p2_sched"] == 0 else [[6, 14, 22, 36], {2: 1, 3: 2, 5: 4}]
    SYN = XCH + 7 * 3072 + 2048 + 4
    h(f"v_mov_b32 v22, {SYN}")
    h("v_mov_b32 v23, 0")
    for off in (0, 4, 8, 32, 16, 20, 24, 48):
        h(f"ds_write_b32 v22, v23 offset:{off}")

    def ready(half, n):
        h(f"v_mov_b32 v23, {n}")
        h(f"ds_write_b32 v22, v23 offset:{16 * half}")

    wl_n = [0]

    def wait_lds(off, n):
        wl_n[0] += 1
        k = wl_n[0]
        h("s_mov_b32 s58, 0x100000")
        h.label(f"L_prog{k}")
        h(f"ds_read_b32 v24, v22 offset:{off}")
        h("s_sub_u32 s58, s58, 1")
        h("s_waitcnt lgkmcnt(0)")
        h("v_readfirstlane_b32 s37, v24")
        h("s_cmp_eq_u32 s58, 0")
        h(f"s_cbranch_scc1 L_prog{k}_x")
        h(f"s_cmp_ge_u32 s37, {n}")
        h(f"s_cbranch_scc1 L_prog{k}_x")
        h(f"s_sleep {OPT['aux_sl']}")
        h(f"s_branch L_prog{k}")
        h.label(f"L_prog{k}_x")

    def late(k):
        def f(label):
            h(f"ds_read_b32 v24, v22 offset:{(8 if k == 0 else 32) + 16}")
            h("s_waitcnt lgkmcnt(0)")
            h("v_readfirstlane_b32 s37, v24")
            h("s_nop 0")
            h("s_cmp_ge_u32 s37, 4")
            h(f"s_cbranch_scc1 {label}")
        return f if OPT["adapt"] else None

    def wait_prog(k):
        for half in range(2):
            wait_lds((8 if k == 0 else 32) + 16 * half, 4)

    h(f"s_lshr_b32 s{sHead}, s2, 3")
    h(f"s_mul_i32 s33, s{sHead}, {HS()}")
    h(f"s_add_u32 s33, s33, {KVG}")
    h(f"s_lshr_b32 s61, s{sHead}, 1")
    h("s_lshl_b32 s61, s61, 10")
    h(f"s_add_u32 s61, s61, {FG1}")
    h(f"v_lshrrev_b32 v6, 3, v{vLane}")
    h("v_lshlrev_b32 v6, 7, v6")
    h(f"v_and_b32 v7, 7, v{vLane}")
    h("v_lshl_add_u32 v6, v7, 2, v6")
    h("s_mov_b64 s[62:63], 0")
    h("s_mov_b32 s59, 0x40000")
    h("s_waitcnt lgkmcnt(0)")
    h("s_barrier")
    h.nostamp = OPT.get("det") != 3
    stamp(h)
    items = [(0, 1, None), (1, 1, None), (0, 2, None), (0, 3, (0, 1)), (0, 4, (0, 2)), (1, 2, (0, 3)), (1, 3, (1, 1)),
             (1, 4, (1, 2)), (0, 5, None), (0, 6, None), (1, 5, None), (0, 7, None), (1, 6, None), (1, 7, None), (0, 8, None)]
    if OPT["kv_gate"] == 0:
        items = [(hf, c, None) for c in range(1, 8) for hf in range(2)] + [(0, 8, None)]
    if OPT["kv_gate"] == 3:
        items = [(0, 1, None), (1, 1, None), (0, 2, None), (1, 2, None), (0, 3, (0, 2)), (0, 4, None), (1, 3, (0, 3)), (1, 4, None),
                 (0, 5, (1, 2)), (0, 6, None), (1, 5, None), (0, 7, None), (1, 6, None), (1, 7, None), (0, 8, None)]
    if OPT["kv_gate"] == 4:
        items = [(0, 1, None), (1, 1, None), (0, 2, None), (0, 3, (0, 1)), (1, 2, None), (0, 4, (0, 2)), (1, 3, None), (1, 4, None),
                 (0, 5, None), (0, 6, None), (1, 5, None), (0, 7, None), (1, 6, None), (1, 7, None), (0, 8, None)]
    if OPT["kv_gate"] == 2:
        items = [(hf, c, None) for hf, c, _ in items]
    pend = []

    def flush(keep):
        while len(pend) > keep:
            hf, c, tok = pend.pop(0)
            h.wait(vm=tok)
            ready(hf, c)

    for n, (half, c, gate) in enumerate(items):
        if gate:
            flush(0)
            wait_lds(4 + 16 * gate[0], gate[1])
        h(f"s_add_u32 s36, s2, {c}")
        h("s_and_b32 s36, s36, 7")
        h("s_lshl_b32 s36, s36, 3")
        if half == 0:
            h("s_bitcmp1_b64 s[62:63], s36")
            h(f"s_cbranch_scc1 L_g1_have{c}")
            h.label(f"L_g1_poll{c}")
            h(f"buffer_load_dword v7, v6, {sr(sWS, 4)}, s61 offen sc1")
            h("s_sub_u32 s59, s59, 1")
            h("s_waitcnt vmcnt(0)")
            for hf, cc, _ in pend:
                ready(hf, cc)
            h(f"v_cmp_eq_u32 vcc, s{sTag}, v7")
            h("s_cmp_eq_u32 s59, 0")
            h("s_cselect_b64 s[62:63], -1, vcc")
            h("s_cselect_b32 s59, 1, s59")
            for sh in (1, 2, 4):
                h(f"s_lshr_b64 s[34:35], s[62:63], {sh}")
                h("s_and_b64 s[62:63], s[62:63], s[34:35]")
            h("s_bitcmp1_b64 s[62:63], s36")
            h(f"s_cbranch_scc0 L_g1_poll{c}")
            h.label(f"L_g1_have{c}")
        if n in (0, 3, 8, 14):
            stamp(h)
        if c == 8:
            break
        h("s_lshl_b32 s36, s36, 11")
        h("s_add_u32 s36, s36, s33")
        for q in range(2):
            h(f"s_mov_b32 m0, {half * 65536 + c * 8192 + q * 4096}")
            h(f"s_add_u32 s37, s36, {half * 8192 + q * 4096}")
            for i in range(4):
                tok = h.vm(f"buffer_load_dwordx4 v{vL16}, {sr(sWS, 4)}, s37 offen offset:{i * 1024} sc1 lds")
        pend.append((half, c, tok))
        if n == OPT["t_at"]:
            touch_setup(h)
            touch_weights(h)
        flush(OPT['kv_fl'])
    if OPT["t_at"] > 20:
        touch_setup(h)
    h(f"v_lshrrev_b32 v8, 3, v{vLane}")
    h(f"v_and_b32 v9, 7, v{vLane}")
    h(f"v_lshrrev_b32 v10, 2, v{vLane}")
    h("v_and_b32 v10, 4, v10")
    h("v_xor_b32 v10, v10, v9")
    h("v_lshlrev_b32 v10, 4, v10")
    h("v_lshl_add_u32 v10, v8, 10, v10")
    h("v_lshrrev_b32 v11, 1, v8")
    h("v_xor_b32 v11, v11, v9")
    h("v_lshlrev_b32 v11, 4, v11")
    h("v_lshl_add_u32 v11, v8, 10, v11")
    h("v_xor_b32 v12, 64, v11")
    h(f"v_and_b32 v13, 2, v{vLane}")
    h("v_lshlrev_b32 v13, 5, v13")
    h("v_sub_u32 v13, 32, v13")
    h("s_lshr_b32 s61, s2, 4")
    h("s_mul_i32 s61, s61, 192")
    for i in range(3):
        h(f"v_add_u32 v14, {64 * i}, v{vLane}")
        h("v_mul_u32_u24 v14, 171, v14")
        h("v_lshrrev_b32 v14, 11, v14")
        h(f"v_mul_u32_u24 v14, {2752 - 192}, v14")
        h(f"v_add3_u32 v{16 + i}, v{vL16}, v14, s61")
        h(f"v_add_u32 v{19 + i}, v{16 + i}, v13")
    h("s_bfe_u32 s60, s2, 0x30003")
    h("s_lshl_b32 s60, s60, 7")
    flush(0)
    stamp(h)
    if OPT["t_at"] > 20:
        touch_weights(h, late(0))
    h("s_and_b32 s36, s2, 7")
    h("s_lshl_b32 s36, s36, 3")
    h(f"s_lshr_b32 s{sT1}, s{sT0}, 2")
    h(f"s_add_u32 s36, s36, s{sT1}")
    h(f"s_mul_i32 s36, s36, {RT}")
    h(f"s_and_b32 s{sT1}, s{sT0}, 3")
    h(f"s_mul_i32 s{sT1}, s{sT1}, {52 * 128}")
    h(f"s_add_u32 s36, s36, s{sT1}")
    h(f"s_add_u32 s36, s36, {96 * 1024}")
    h("s_mov_b32 exec_hi, 0xfffff")
    h.vm(f"buffer_load_dword v5, v3, {sr(sWS, 4)}, s36 offen")
    h(f"s_lshl_b32 s{sT1}, s{sT0}, 11")
    h(f"v_add_u32 v4, s{sT1}, v3")
    h("s_mov_b64 exec, 0xffff")
    code_prefetch(h, "L_p2_tail", 38, 4, 5, "p2")
    h("s_mov_b64 exec, -1")
    stamp(h)
    wait_prog(0)
    stamp(h)
    for half in range(2):
        h(f"s_mov_b32 m0, {half * 65536}")
        h(f"s_add_u32 s36, s60, {half * 32 * 8192}")
        h("s_mov_b32 s37, 32")
        h.label(f"L_pre_wo{half}")
        h(f"buffer_load_dwordx4 v10, {sr(16, 4)}, s36 offen lds")
        h("s_add_u32 m0, m0, 1024")
        h("s_add_u32 s36, s36, 8192")
        h("s_sub_u32 s37, s37, 1")
        h("s_cmp_lg_u32 s37, 0")
        h(f"s_cbranch_scc1 L_pre_wo{half}")
        h("s_waitcnt vmcnt(16)")
    h("s_lshr_b32 s36, s2, 6")
    h("s_lshl_b32 s36, s36, 16")
    h("s_add_u32 s36, s36, s60")
    for i in range(8):
        h(f"s_mov_b32 m0, {RES3 + i * 1024}")
        h(f"s_add_u32 s37, s36, {i * 8192}")
        h(f"buffer_load_dwordx4 v{11 + (i & 1)}, {sr(44, 4)}, s37 offen lds")
    h("s_waitcnt vmcnt(16)")
    if OPT["retouch"]:
        if OPT["adapt"]:
            late(1)("L_skip_rt")
        h("s_and_b32 s36, s2, 7")
        h("s_lshl_b32 s36, s36, 3")
        h(f"s_lshr_b32 s{sT1}, s{sT0}, 2")
        h(f"s_add_u32 s36, s36, s{sT1}")
        h(f"s_mul_i32 s36, s36, {RT}")
        h(f"s_and_b32 s{sT1}, s{sT0}, 3")
        h(f"s_lshl_b32 s{sT1}, s{sT1}, 13")
        h(f"s_add_u32 s36, s36, s{sT1}")
        h(f"s_add_u32 s37, s36, {QO}")
        h(f"buffer_load_dword v5, v3, {sr(sWS, 4)}, s37 offen")
        h(f"buffer_load_dword v5, v3, {sr(sWS, 4)}, s36 offen")
        if OPT["retouch"] > 1:
            h(f"s_add_u32 s37, s36, {GO}")
            h(f"buffer_load_dword v5, v3, {sr(sWS, 4)}, s37 offen")
        h.label("L_skip_rt")
    h("s_cmp_ge_u32 s2, 240")
    h("s_cbranch_scc1 L_pre_end")
    stamp(h)
    wait_prog(1)
    stamp(h)
    for st in range(4):
        for g2 in range(2):
            for mat in range(2):
                h(f"s_mov_b32 m0, {WS4[st] + (g2 * 2 + mat) * 3072}")
                h(f"s_mov_b32 s36, {(st * 32 + g2 * 16) * 2752}")
                for i in range(3):
                    h(f"buffer_load_dwordx4 v{16 + 3 * mat + i}, {sr(20 if mat == 0 else 48, 4)}, s36 offen offset:{i * 1024} lds")
        h("s_waitcnt vmcnt(40)")
    stamp(h)
    h.label("L_pre_end")
    h("s_waitcnt vmcnt(0)")
    if OPT.get("det") == 3:
        h(f"s_mov_b32 s{sWave}, 4")
        stamp_flush(h)
    h("s_endpgm")

    def init(b):
        b(f"s_lshr_b32 s{sHead}, s2, 3")
        b(f"s_and_b32 s{sQb}, s2, 7")
        b(f"s_lshr_b32 s{sKh}, s{sWave}, 2")
        b(f"s_and_b32 s{sQs}, s{sWave}, 3")
        b(f"v_and_b32 v{T}, 27, v{vLane}")
        b(f"v_cmp_eq_u32 vcc, 16, v{T}")
        b(f"v_mov_b32 v{T}, 0x3f803f80")
        b(f"v_mov_b32 v{vIdx}, 0xdddd")
        for r in range(32):
            b(f"v_cndmask_b32 v{Vf + r}, 0, v{T}, vcc")
        b(f"s_mov_b32 s{sVm}, 0x0000ffff")
        b(f"s_mov_b32 s{sVm + 1}, 0x0000ffff")
        b(f"s_lshl_b32 s{sT0}, s{sKh}, 16")
        b(f"v_add_u32 v{vKrd}, s{sT0}, v{vL16}")
        b(f"v_lshrrev_b32 v{T}, 5, v{vLane}")
        b(f"v_and_b32 v{T + 1}, 15, v{vLane}")
        b(f"v_lshlrev_b32 v{T + 1}, 4, v{T + 1}")
        b(f"v_lshl_add_u32 v{T}, v{T}, 8, v{T + 1}")
        b(f"v_add_u32 v{vVrd}, s{sT0}, v{T}")
        b(f"s_mul_i32 s{sT0}, s{sWave}, 3072")
        b(f"s_add_u32 s{sT0}, s{sT0}, {XCH}")
        b(f"v_add_u32 v{vXw}, s{sT0}, v{vL16}")
        b(f"s_xor_b32 s{sT1}, s{sWave}, 4")
        b(f"s_mul_i32 s{sT0}, s{sT1}, 3072")
        b(f"s_add_u32 s{sT0}, s{sT0}, {XCH}")
        b(f"v_add_u32 v{vXr}, s{sT0}, v{vL16}")
        b(f"s_lshl_b32 s{sT0}, s{sQs}, 1")
        b(f"s_add_u32 s{sT0}, s{sT0}, s{sKh}")
        b(f"s_lshl_b32 s{sT0}, s{sT0}, 10")
        b(f"s_add_u32 s{sT0}, s{sT0}, {XCH}")
        b(f"v_add_u32 v{T + 2}, s{sT0}, v{vL16}")
        b(f"v_xor_b32 v{T + 3}, 1024, v{T + 2}")
        b(f"s_lshl_b32 s{sT0}, s{sKh}, 4")
        b(f"s_add_u32 s{sT0}, s{sT0}, {SYN}")
        b(f"v_mov_b32 v{T + 6}, s{sT0}")
        b(f"v_mov_b32 v{T + 7}, 1")
        for c in range(2):
            for r in range(16):
                b(f"v_mov_b32 v{O[c] + r}, 0")
        b(f"s_lshl_b32 s57, s{sQb}, 2")
        b(f"s_add_u32 s57, s57, s{sQs}")
        b(f"s_lshl_b32 s55, s57, 8")
        b(f"s_lshl_b32 s{sT1}, s{sHead}, 1")
        b(f"s_add_u32 s{sT1}, s{sT1}, s{sKh}")
        b(f"s_lshl_b32 s{sT1}, s{sT1}, 2")
        b(f"s_add_u32 s55, s55, s{sT1}")
        b(f"s_add_u32 s55, s55, {F2}")
        b(f"s_lshl_b32 s57, s57, 1")
        b(f"s_add_u32 s57, s57, s{sKh}")
        b(f"s_mul_i32 s57, s57, {RT}")
        b(f"s_lshl_b32 s{sT1}, s{sHead}, 10")
        b(f"s_add_u32 s57, s57, s{sT1}")
        b(f"s_add_u32 s57, s57, {QO}")

    init(l)
    l(f"s_lshl_b32 s40, s{sQb}, 9")
    l(f"s_lshr_b32 s{sT0}, s{sHead}, 1")
    l(f"s_lshl_b32 s{sT0}, s{sT0}, 5")
    l(f"s_add_u32 s40, s40, s{sT0}")
    l(f"s_add_u32 s40, s40, {FL1}")
    l(f"s_lshl_b32 s36, s{sQb}, 2")
    l(f"s_add_u32 s36, s36, s{sQs}")
    l(f"s_mul_i32 s36, s36, {2 * RT}")
    l(f"s_lshl_b32 s{sT0}, s{sHead}, 10")
    l(f"s_add_u32 s37, s36, s{sT0}")
    l(f"s_add_u32 s36, s37, s{sT0}")
    l(f"s_add_u32 s37, s37, {QO}")
    l(f"s_add_u32 s42, s36, {RT - 2048}")
    l(f"s_add_u32 s43, s37, {RT - 1024}")
    l(f"s_lshr_b32 s38, s{sQs}, 1")
    l("s_lshl_b32 s38, s38, 16")
    l(f"s_and_b32 s{sT0}, s{sQs}, 1")
    l(f"s_lshl_b32 s{sT0}, s{sT0}, 12")
    l(f"s_add_u32 s38, s38, s{sT0}")
    l(f"s_lshl_b32 s39, s{sQs}, 11")
    l(f"s_add_u32 s39, s39, {XCH}")
    l(f"v_lshlrev_b32 v{T + 4}, 2, v{vLane}")
    l("s_mov_b32 s59, 0x40000")
    l("s_mov_b64 exec, 0xff")
    l.label("L_poll_l1")
    l(f"buffer_load_dword v{T + 5}, v{T + 4}, {sr(sWS, 4)}, s40 offen sc1")
    l("s_sub_u32 s59, s59, 1")
    l.wait_all(lg=False)
    l(f"v_cmp_ne_u32 vcc, s{sTag}, v{T + 5}")
    l("s_cmp_eq_u32 s59, 0")
    l("s_cbranch_scc1 L_poll_l1_x")
    l("s_cbranch_vccnz L_poll_l1")
    l.label("L_poll_l1_x")
    if OPT.get("det") != 2:
        stamp(l)
    l("s_mov_b64 exec, -1")
    l("s_mov_b32 m0, s39")
    l("s_nop 0")
    for i in range(2):
        l.vm(f"buffer_load_dwordx4 v{vL16}, {sr(sWS, 4)}, s{(37, 43)[i]} offen offset:{i * 1024} sc1 lds")
    l("s_mov_b32 m0, s38")
    l("s_nop 0")
    for i in range(4):
        l.vm(f"buffer_load_dwordx4 v{vL16}, {sr(sWS, 4)}, s{(36, 42)[i // 2]} offen offset:{i * 1024} sc1 lds")
    l.wait_all()
    if OPT.get("det") != 2:
        stamp(l)
    l("s_branch L_p2_b0")
    init(a)
    a(f"v_mov_b32 v{T + 4}, 0")
    a(f"v_mov_b32 v{T + 5}, s{sTag}")

    def gflag():
        a.wait_all(lg=False)
        a("s_mov_b64 exec, 1")
        a.vm(f"buffer_store_dword v{T + 5}, v{T + 4}, {sr(sWS, 4)}, s49 offen sc1")
        a("s_mov_b64 exec, -1")

    if not OPT["p2_defer"]:
        gflag()
    if OPT.get("det") == 4:
        stamp(a)
    a.label("L_p2_b0")

    def emit_pair(p, extra=()):
        for t in (2 * p, 2 * p + 1):
            a.lg(f"ds_read_b128 {vr(Kf + 4 * (t & 3), 4)}, v{vKrd} offset:{t * 2048}")
        a(f"s_mov_b64 exec, {sr(sVm, 2)}")
        for t in (2 * p, 2 * p + 1):
            a.lg(f"ds_read_b128 {vr(Vf + 8 * (t & 3), 4)}, v{vVrd} offset:{t * 2048 + 1024}")
            tok = a.lg(f"ds_read_b128 {vr(Vf + 8 * (t & 3) + 4, 4)}, v{vVrd} offset:{t * 2048 + 1536}")
        if extra:
            a("s_mov_b64 exec, 1")
            for e in extra:
                a.lg(e)
        a("s_mov_b64 exec, -1")
        return tok

    def qk(u):
        t, c = divmod(u, 2)
        return f"v_mfma_f32_32x32x16_bf16 {vr(S[u & 1], 16)}, {vr(Kf + 4 * (t & 3), 4)}, {vr(Qf[1 - c], 4)}, 0"

    def pv(u, i):
        t, c = divmod(u, 2)
        return (f"v_smfmac_f32_32x32x32_bf16 {vr(O[1 - c], 16)}, {vr(Vf + 8 * (t & 3) + 4 * i, 4)}, "
                f"{vr(S[u & 1] + 8 * i, 8)}, v{vIdx}")

    NU = 64
    PRIO = [{0: 2, 29: 1, 53: 0}, {0: 2, 29: 1, 60: 0}, {0: 3, 29: 2, 53: 1, 61: 0}][OPT["p2_pr"]]
    rtok = {}

    def need(u, n):
        a.wait(lg=rtok[u])
        a.label(f"L_rdy{u}")
        a(f"v_readfirstlane_b32 s36, v{T + 8}")
        a("s_nop 0")
        a(f"s_cmp_ge_u32 s36, {n}")
        a(f"s_cbranch_scc0 L_rdy{u}_spin")
        sp.label(f"L_rdy{u}_spin")
        sp("s_sleep 2")
        sp(f"ds_read_b32 v{T + 8}, v{T + 6}")
        sp("s_sub_u32 s59, s59, 1")
        sp("s_waitcnt lgkmcnt(0)")
        sp("s_cmp_lg_u32 s59, 0")
        sp(f"s_cbranch_scc1 L_rdy{u}")
        sp("s_mov_b32 s59, 1")
        sp(f"v_mov_b32 v{T + 8}, 7")
        sp("s_nop 0")
        sp(f"s_branch L_rdy{u}")

    sp = Asm()
    a("s_mov_b32 s59, 0x100000")
    a("s_barrier")
    stamp(a)
    a.lg(f"ds_read_b128 {vr(Qf[1], 4)}, v{T + 3}")
    a.lg(f"ds_read_b128 {vr(Qf[0], 4)}, v{T + 2}")
    ptok = {0: emit_pair(0)}
    a.wait(lg=ptok[0] - 5)
    a(qk(0))
    if OPT["p2_defer"]:
        a(f"s_cmp_lg_u32 s{sKh}, 0")
        a("s_cbranch_scc1 L_p2_nogf")
        gflag()
        a.label("L_p2_nogf")
    a.wait(lg=ptok[0])
    a("s_nop 9")
    for u in range(NU):
        X = S[u & 1]
        p, pu = divmod(u, 4)
        if u in PRIO:
            a(f"s_setprio {PRIO[u]}")
        ex = [f"v_exp_f32 v{X + i}, v{X + i}" for i in range(16)]
        a(ex[0]); a(ex[1])
        if u > 0:
            a(pv(u - 1, 1))
        a(ex[2]); a(ex[3]); a(ex[4])
        if u + 1 < NU:
            if pu == 3:
                a.wait(lg=ptok[p + 1])
            a(qk(u + 1))
        late = p + 1 == 2
        if p + 1 < 16 and pu == (2 if late else 0):
            if (p + 1) % 2 == 0:
                need(u, (p + 1) // 2)
            extra = []
            if u in (28, 52):
                extra.append(f"ds_add_u32 v{T + 6}, v{T + 7} offset:{8 if u == 28 else 32}")
            if (p + 1) % 2 == 1 and (p + 2) // 2 <= 3 and OPT["kv_gate"] in (1, 3, 4):
                a(f"v_mov_b32 v{T + 9}, {(p + 2) // 2}")
                extra.append(f"ds_max_u32 v{T + 6}, v{T + 9} offset:4")
            ptok[p + 1] = emit_pair(p + 1, extra)
        nu = u + 1
        if nu < NU and (nu // 4 + 1) % 2 == 0 and nu // 4 + 1 < 16 and nu % 4 == (2 if nu // 4 + 1 == 2 else 0):
            rtok[nu] = a.lg(f"ds_read_b32 v{T + 8}, v{T + 6}")
        for i in range(5, 10):
            a(ex[i])
        a(pv(u, 0))
        for i in range(10, 16):
            a(ex[i])
            if u == NU - 1 and i == 13:
                a.lg(f"ds_write_b128 v{vXw}, {vr(O[1], 4)}")
                a.lg(f"ds_write_b128 v{vXw}, {vr(O[1] + 4, 4)} offset:1024")
                a.lg(f"ds_write_b32 v{vXw}, v{O[1] + 8} offset:2048")
    a.label("L_p2_tail")
    a("s_nop 1")
    a(pv(NU - 1, 1))
    a(f"s_mov_b32 s{sT0}, {hx(f2u(2.0 ** 80))}")
    a(f"s_mov_b32 s{sT1}, {hx(f2u(2.0 ** -80))}")
    a("s_mov_b32 s56, 0")
    a.wait_all(vm=False)
    a("s_barrier")
    t2 = a.lg(f"ds_read_b32 v{T + 8}, v{vXr} offset:2048")
    a.lg(f"ds_read_b128 {vr(T, 4)}, v{vXr}")
    t1 = a.lg(f"ds_read_b128 {vr(T + 4, 4)}, v{vXr} offset:1024")
    a("s_nop 2")
    a.wait(lg=t2)
    a(f"v_add_f32 v{O[0] + 8}, v{O[0] + 8}, v{T + 8}")
    a.wait(lg=t1)
    for r in range(0, 8, 2):
        a(f"v_pk_add_f32 {vr(O[0] + r, 2)}, {vr(O[0] + r, 2)}, {vr(T + r, 2)}")
    a.label("L_p2_finish")
    a(f"v_rcp_f32 v{T + 8}, v{O[0] + 8}")
    a(f"v_cmp_gt_f32 s[40:41], s{sT0}, v{O[0] + 8}")
    a(f"v_cmp_lt_f32 s[42:43], s{sT1}, v{O[0] + 8}")
    for r in range(0, 8, 2):
        a(f"v_pk_mul_f32 {vr(O[0] + r, 2)}, {vr(O[0] + r, 2)}, {vr(T + 8, 2)} op_sel_hi:[1,0]")
    for i in range(4):
        a(f"v_cvt_pk_bf16_f32 v{T + 4 + i}, v{O[0] + 2 * i}, v{O[0] + 2 * i + 1}")
    a(f"v_dot2_f32_bf16 v{T}, v{T + 4}, v{T + 4}, 0")
    for i in range(1, 4):
        a(f"v_dot2_f32_bf16 v{T}, v{T + 4 + i}, v{T + 4 + i}, v{T}")
    a("s_and_b64 s[40:41], s[40:41], s[42:43]")
    a("s_cmp_lg_u32 s56, 0")
    a("s_cbranch_scc1 L_p2_store")
    a(f"v_cmp_gt_f32 vcc, s{sT0}, v{T}")
    a("s_nop 0")
    a("s_and_b64 s[40:41], s[40:41], vcc")
    a("s_cmp_eq_u64 s[40:41], -1")
    a("s_cbranch_scc0 L_p2_fallback")
    a.label("L_p2_store")
    stores(a, [f"buffer_store_dwordx4 {vr(T + 4, 4)}, v{vL16}, {sr(sWS, 4)}, s57 offen"])
    a("s_barrier")
    stamp(a)

    f = Asm()
    f.label("L_p2_fallback")
    vV2, vM = T + 11, T + 12
    f(f"s_lshl_b32 s37, s{sKh}, 16")
    f(f"v_subrev_u32 v{vV2}, s37, v{vVrd}")
    f(f"s_mul_i32 s36, s{sHead}, {HS()}")
    f(f"s_add_u32 s36, s36, {KVG}")
    f(f"v_mov_b32 v{vM}, 0xff800000")
    f("s_mov_b32 s56, 0")
    f("s_mov_b32 s37, s36")
    f.label("L_p2_fb_max")
    f(f"buffer_load_dwordx4 {vr(Kf, 4)}, v{vL16}, {sr(sWS, 4)}, s37 offen sc1")
    f("s_waitcnt vmcnt(0)")
    f(f"v_mfma_f32_32x32x16_bf16 {vr(S[0], 16)}, {vr(Kf, 4)}, {vr(Qf[0], 4)}, 0")
    f("s_nop 15")
    for i in range(8):
        f(f"v_max3_f32 v{vM}, v{vM}, v{S[0] + 2 * i}, v{S[0] + 2 * i + 1}")
    f("s_add_u32 s37, s37, 2048")
    f("s_add_u32 s56, s56, 1")
    f("s_cmp_lt_u32 s56, 64")
    f("s_cbranch_scc1 L_p2_fb_max")
    f(f"v_mov_b32 v{T}, v{vM}")
    f("s_nop 1")
    f(f"v_permlane32_swap_b32 v{vM}, v{T}")
    f("s_nop 1")
    f(f"v_max_f32 v{vM}, v{vM}, v{T}")
    for r in range(16):
        f(f"v_sub_f32 v{NEG + r}, 0, v{vM}")
        f(f"v_mov_b32 v{O[0] + r}, 0")
    f("s_mov_b32 s56, 0")
    f("s_mov_b32 s37, s36")
    f.label("L_p2_fb_pv")
    f(f"buffer_load_dwordx4 {vr(Kf, 4)}, v{vL16}, {sr(sWS, 4)}, s37 offen sc1")
    f(f"s_mov_b64 exec, {sr(sVm, 2)}")
    f(f"buffer_load_dwordx4 {vr(Vf, 4)}, v{vV2}, {sr(sWS, 4)}, s37 offen offset:1024 sc1")
    f(f"buffer_load_dwordx4 {vr(Vf + 4, 4)}, v{vV2}, {sr(sWS, 4)}, s37 offen offset:1536 sc1")
    f("s_mov_b64 exec, -1")
    f("s_waitcnt vmcnt(0)")
    f(f"v_mfma_f32_32x32x16_bf16 {vr(S[0], 16)}, {vr(Kf, 4)}, {vr(Qf[0], 4)}, {vr(NEG, 16)}")
    f("s_nop 15")
    for i in range(16):
        f(f"v_exp_f32 v{S[0] + i}, v{S[0] + i}")
    f("s_nop 1")
    f(f"v_smfmac_f32_32x32x32_bf16 {vr(O[0], 16)}, {vr(Vf, 4)}, {vr(S[0], 8)}, v{vIdx}")
    f(f"v_smfmac_f32_32x32x32_bf16 {vr(O[0], 16)}, {vr(Vf + 4, 4)}, {vr(S[0] + 8, 8)}, v{vIdx}")
    f("s_nop 15")
    f("s_add_u32 s37, s37, 2048")
    f("s_add_u32 s56, s56, 1")
    f("s_cmp_lt_u32 s56, 64")
    f("s_cbranch_scc1 L_p2_fb_pv")
    f("s_branch L_p2_finish")
    f.lines += sp.lines
    return f


def phase_res(a, h, k3, pre_publish=None):
    uid = "p3" if k3 else "p5"
    KS = 32 if k3 else 86
    ACT = QO if k3 else GO
    NST = (KS + 3) // 4
    NA = OPT["p5_na"]
    WSL = WS3 if k3 else WS5[:19 - NA]
    NW = len(WSL)
    if k3:
        ASL = [(122880, -9), (131072, -9), (139264, -9), (147456, -9), (57344, -9), (122880, 0), (WS3[0], 0), (131072, 1)]
    else:
        ASL = [(163840 - NA * 8192 + (n % NA) * 8192, n - NA if n >= NA else -9) for n in range(NST)]
    RESO = RES3 if k3 else 24576
    busy = {WSL[(NST - 1) % NW], WSL[(NST - 2) % NW]}
    TRO = [o for o in WSL if o + 8192 in WSL and not ({o, o + 8192} & busy)][0]
    sW, sIO = 16, 20
    sWr, sWc, sRb, sCb = 25, 26, 27, 28
    T = 12
    for b in (a, h):
        b(f"s_and_b32 s{sT0}, s2, 7")
        b(f"s_lshl_b32 s{sRb}, s{sT0}, 2")
        b(f"s_lshr_b32 s34, s2, 6")
        b(f"s_add_u32 s{sRb}, s{sRb}, s34")
        b(f"s_bfe_u32 s{sCb}, s2, 0x30003")
        b(f"s_and_b32 s{sWr}, s{sWave}, 1")
        b(f"s_bfe_u32 s{sWc}, s{sWave}, 0x10001")
    vWoff, vXg = 3, 5
    h(f"v_lshrrev_b32 v{T}, 3, v{vLane}")
    h(f"v_and_b32 v{T + 1}, 7, v{vLane}")
    h(f"v_lshrrev_b32 v{T + 2}, 2, v{vLane}")
    h(f"v_and_b32 v{T + 2}, 4, v{T + 2}")
    h(f"v_xor_b32 v{T + 2}, v{T + 2}, v{T + 1}")
    h(f"v_lshlrev_b32 v{T + 2}, 4, v{T + 2}")
    h(f"v_lshl_add_u32 v{T + 2}, v{T}, 10, v{T + 2}")
    h(f"s_mul_i32 s44, s{sHw}, {3 * 16384}")
    h(f"s_lshl_b32 s{sT0}, s{sCb}, 7")
    h(f"v_add_u32 v{vWoff}, s{sT0}, v{T + 2}")
    h(f"v_add_u32 v{vWoff + 1}, {8192 - 1024}, v{vWoff}")
    h(f"s_lshl_b32 s32, s{sHw}, 11")
    h(f"s_lshl_b32 s33, s{sRb}, 1")
    h(f"s_add_u32 s33, s33, s{sWr}")
    h(f"s_mul_i32 s34, s33, {RT}")
    h(f"s_lshl_b32 s{sT1}, s{sWc}, 11")
    h(f"s_add_u32 s34, s34, s{sT1}")
    h(f"s_add_u32 s34, s34, {ACT}")
    h(f"s_lshl_b32 s35, s{sWr}, 12")
    h(f"s_add_u32 s35, s35, s{sT1}")
    if k3:
        pass
    else:
        h(f"s_mul_i32 s36, s33, {RT}")
        h(f"s_lshl_b32 s{sT0}, s{sCb}, 12")
        h(f"s_add_u32 s36, s36, s{sT0}")
        h(f"s_add_u32 s36, s36, s{sT1}")
    srd(h, sW, KWO if k3 else KD, KS * 16 * 1024)
    if pre_publish is not None:
        publish(h, pre_publish, T + 4)
    dr = Drip(h)

    def issue_w(st):
        cl = [(4 * st + w >= 29) + (4 * st + w >= 58) for w in range(4)]
        pre = [f"s_add_u32 s42, s44, {hx((12 * st - 86 * cl[0]) * 16384)}"]
        if cl[3] != cl[0]:
            pre += [f"s_add_u32 s45, s44, {hx((12 * st - 86 * cl[3]) * 16384)}", f"s_cmp_ge_u32 s{sHw}, {cl.index(cl[3])}",
                    "s_cselect_b32 s42, s45, s42"]
        dr.add(st, [f"s_add_u32 m0, s32, {WSL[st % NW]}"] + pre,
               f"buffer_load_dwordx4 v{vWoff}, {sr(sW, 4)}, s42 offen lds")
        dr.add(st, [], f"buffer_load_dwordx4 v{vWoff + 1}, {sr(sW, 4)}, s42 offen offset:1024 lds")

    def issue_a(st):
        dr.add(st, [f"s_add_u32 m0, s35, {ASL[st][0]}", f"s_add_u32 s43, s34, {st * 4096}"],
               f"buffer_load_dwordx4 v{vL16}, {sr(sWS, 4)}, s43 offen {LD()} lds")
        dr.add(st, [], f"buffer_load_dwordx4 v{vL16}, {sr(sWS, 4)}, s43 offen offset:1024 {LD()} lds")

    if not k3:
        for st in range(NW):
            issue_w(st)
    dr.emit(100)
    if not OPT.get("det"):
        stamp(h)
    if k3 and OPT["lpoll"]:
        h(f"s_lshl_b32 s40, s{sRb}, 8")
        h(f"s_add_u32 s40, s40, {F2}")
        poll(h, 40, T + 4, "p3l", every=True, barrier=False)
    elif k3:
        h("s_barrier")
    else:
        h(f"s_lshl_b32 s40, s{sRb}, 9")
        h(f"s_add_u32 s40, s40, {F4}")
        poll(h, 40, T + 4, "p5l", 30, every=True, barrier=False)
    if not OPT.get("det"):
        stamp(h)
    AHEAD = OPT["p3_a"] if k3 else OPT["p5_a"]
    nxt_a = 0
    for st in range(NST):
        while nxt_a <= min(st + AHEAD, NST - 1):
            if not k3 and ((nxt_a >= 7 and st <= 2) or (nxt_a >= 14 and st <= OPT["p5_c2"])):
                break
            if ASL[nxt_a][1] > st - 3:
                break
            issue_a(nxt_a)
            nxt_a += 1
        if not k3 and st == 1:
            dr.add(4, [f"s_add_u32 m0, s35, {RESO}", "s_nop 0"], f"buffer_load_dwordx4 v{vL16}, {sr(sWS, 4)}, s36 offen {LD()} lds")
            dr.add(4, [], f"buffer_load_dwordx4 v{vL16}, {sr(sWS, 4)}, s36 offen offset:1024 {LD()} lds")
        dr.emit(100)
        h.wait(vm=dr.tok[st])
        h("s_barrier")
        if st >= 2 and st - 2 + NW < NST:
            issue_w(st - 2 + NW)
    if k3:
        h("s_barrier")
    RST = 0 if k3 else 4
    vWrd, vAr, vRr, vTw, vTr, vOut = [3, 4], [5, 6, 22], [7, 8], 9, 10, 11
    ID = 24
    FR = [32, 72]
    acc = 112
    a(f"v_and_b32 v{T}, 31, v{vLane}")
    a(f"v_lshrrev_b32 v{T + 1}, 5, v{vLane}")
    a(f"v_bfe_u32 v{T + 2}, v{vLane}, 2, 2")
    a(f"v_lshl_add_u32 v{T + 3}, v{T + 1}, 2, v{T + 2}")
    a(f"v_lshlrev_b32 v{T + 3}, 7, v{T + 3}")
    a(f"v_bfe_u32 v{T + 4}, v{vLane}, 4, 1")
    a(f"v_lshl_add_u32 v{T + 3}, v{T + 4}, 5, v{T + 3}")
    a(f"v_and_b32 v{T + 4}, 3, v{vLane}")
    a(f"v_lshl_add_u32 v{T + 3}, v{T + 4}, 3, v{T + 3}")
    a(f"v_lshrrev_b32 v{T + 2}, 1, v{T + 2}")
    a(f"v_xor_b32 v{T + 2}, s{sWc}, v{T + 2}")
    a(f"v_lshl_add_u32 v{vWrd[0]}, v{T + 2}, 6, v{T + 3}")
    wl = LdsAddr(a, vWrd)
    wl.setup(a)
    a(f"s_lshl_b32 s{sT0}, s{sWr}, 12")
    a(f"v_add_u32 v{vAr[0]}, s{sT0}, v{vL16}")
    al = LdsAddr(a, vAr)
    al.setup(a)
    if k3:
        a(f"v_bfe_u32 v{T + 2}, v{vLane}, 1, 3")
        a(f"v_xor_b32 v{T + 2}, v{T + 2}, v{T + 1}")
        a(f"s_lshl_b32 s{sT1}, s{sWc}, 2")
        a(f"v_xor_b32 v{T + 2}, s{sT1}, v{T + 2}")
        a(f"v_lshlrev_b32 v{T + 2}, 4, v{T + 2}")
        a(f"v_lshl_add_u32 v{T + 2}, v{T}, 7, v{T + 2}")
        a(f"s_add_u32 s{sT0}, s{sT0}, {RESO}")
        a(f"v_add_u32 v{vRr[0]}, s{sT0}, v{T + 2}")
        a(f"v_xor_b32 v{vRr[1]}, 32, v{vRr[0]}")
    else:
        a(f"s_lshl_b32 s{sT1}, s{sWc}, 11")
        a(f"s_add_u32 s{sT0}, s{sT0}, s{sT1}")
        a(f"s_add_u32 s{sT0}, s{sT0}, {RESO}")
        a(f"v_add_u32 v{vRr[0]}, s{sT0}, v{vL16}")
        a(f"v_add_u32 v{vRr[1]}, 1024, v{vRr[0]}")
    if pre_publish is not None:
        publish(a, pre_publish, T + 6)
    a(f"v_mov_b32 v{T + 5}, 0x3f80")
    for e in range(2):
        if k3:
            a(f"v_lshlrev_b32 v{T + 2}, 3, v{T + 1}")
            a(f"v_sub_u32 v{T + 2}, v{T}, v{T + 2}")
            a(f"v_subrev_u32 v{T + 2}, {16 * e}, v{T + 2}")
        else:
            a(f"v_bfe_u32 v{T + 2}, v{vLane}, 3, 1")
            a(f"v_and_b32 v{T + 3}, 3, v{vLane}")
            a(f"v_lshl_add_u32 v{T + 2}, v{T + 2}, 2, v{T + 3}")
            a(f"v_bfe_u32 v{T + 3}, v{vLane}, 2, 1")
            a(f"v_xor_b32 v{T + 3}, v{T + 3}, v{T + 1}")
            a(f"v_bfe_u32 v{T + 4}, v{vLane}, 4, 1")
            a(f"v_xor_b32 v{T + 4}, {e}, v{T + 4}")
            a(f"v_or_b32 v{T + 3}, v{T + 3}, v{T + 4}")
            a(f"v_lshl_add_u32 v{T + 2}, v{T + 3}, 4, v{T + 2}")
        a(f"v_and_b32 v{T + 3}, 1, v{T + 2}")
        a(f"v_lshlrev_b32 v{T + 3}, 4, v{T + 3}")
        a(f"v_lshlrev_b32 v{T + 3}, v{T + 3}, v{T + 5}")
        a(f"v_lshrrev_b32 v{T + 2}, 1, v{T + 2}")
        for r in range(4):
            a(f"v_cmp_eq_u32 vcc, {r}, v{T + 2}")
            a("s_nop 1")
            a(f"v_cndmask_b32 v{ID + 4 * e + r}, 0, v{T + 3}, vcc")
    a(f"s_lshl_b32 s33, s{sRb}, 1")
    a(f"s_add_u32 s33, s33, s{sWr}")
    a(f"s_lshl_b32 s34, s{sCb}, 1")
    a(f"s_add_u32 s34, s34, s{sWc}")
    if k3:
        a(f"s_mul_i32 s{sT1}, s33, {RT}")
        a(f"s_lshl_b32 s36, s34, 11")
        a(f"s_add_u32 s36, s36, s{sT1}")
        a(f"s_lshl_b32 s37, s34, 8")
        a(f"s_add_u32 s37, s37, s{sT1}")
        a(f"s_add_u32 s37, s37, {SO}")
        a("s_mov_b32 s41, 0x3f803f80")
        a(f"v_lshlrev_b32 v{vOut}, 3, v{vLane}")
        a(f"s_lshl_b32 s55, s{sRb}, 7")
        a(f"s_lshl_b32 s{sT1}, s{sCb}, 4")
        a(f"s_add_u32 s55, s55, s{sT1}")
        a(f"s_lshl_b32 s{sT1}, s{sWave}, 2")
        a(f"s_add_u32 s55, s55, s{sT1}")
        a(f"s_add_u32 s55, s55, {F3}")
    else:
        a(f"s_mul_i32 s{sT0}, s{sHw}, 2560")
        a(f"s_add_u32 s{sT0}, s{sT0}, {TRO}")
        a(f"v_mul_u32_u24 v{T + 2}, 80, v{T}")
        a(f"v_lshl_add_u32 v{T + 2}, v{T + 1}, 3, v{T + 2}")
        a(f"v_add_u32 v{vTw}, s{sT0}, v{T + 2}")
        a(f"v_lshrrev_b32 v{T + 2}, 2, v{vLane}")
        a(f"v_and_b32 v{T + 3}, 3, v{vLane}")
        a(f"v_lshlrev_b32 v{T + 3}, 4, v{T + 3}")
        a(f"v_mad_u32_u24 v{T + 4}, v{T + 2}, 64, v{T + 3}")
        a(f"v_lshl_add_u32 v{T + 4}, v{T + 2}, 4, v{T + 4}")
        a(f"v_add_u32 v{vTr}, s{sT0}, v{T + 4}")
        a(f"v_lshl_add_u32 v{vOut}, v{T + 2}, 10, v{T + 3}")
        a(f"s_lshl_b32 s36, s33, 15")
        a(f"s_lshl_b32 s37, s34, 6")
        a(f"s_add_u32 s36, s36, s37")
        a(f"s_add_u32 s37, s36, 16384")
        srd(a, sIO, KO, 2048 * 1024)
    a(f"s_lshl_b32 s40, s{sRb}, {8 if k3 else 9}")
    a(f"s_add_u32 s40, s40, {F2 if k3 else F4}")
    if k3 and not OPT["lpoll"]:
        poll(a, 40, T + 6, uid, 64)
    first = True
    prev = []
    for st in range(NST):
        if not k3 and st in (0, OPT["p5_c2"] - 3):
            poll_issue(a, 40, T + 6, f"p5i{st}", 128 if st == 0 else 256)
        if not k3 and st in (2, OPT["p5_c2"]):
            poll(a, 40, T + 6, f"p5c{8 if st > 2 else 1}", 30, barrier=False, off=128 if st == 2 else 256, issued=True)
        a("s_barrier")
        if st == 0:
            stamp(a)
        F = FR[st & 1]
        n = min(4, KS - 4 * st)
        rd = []
        for k in range(n):
            reg, off = al.at(ASL[st][0] + k * 1024)
            rd.append(f"ds_read_b128 {vr(F + 8 * k, 4)}, {reg} offset:{off}")
            for half in range(2):
                reg, off = wl.at(WSL[st % NW] + k * 2048 + half * 1024)
                rd.append(f"ds_read_b64_tr_b16 {vr(F + 8 * k + 4 + 2 * half, 2)}, {reg} offset:{off}")
        cur = [[None, F + 8 * k + 4, F + 8 * k, 3 * k + 2] for k in range(n)]
        if st == RST:
            for e in range(2):
                rd.append(f"ds_read_b128 {vr(F + 32 + 4 * e, 4)}, v{vRr[e]}")
                cur.append([None, ID + 4 * e, F + 32 + 4 * e, len(rd) - 1])
        toks = []
        k = 0
        for tok, wa, xa, _ in prev:
            a.wait(lg=tok)
            a(f"v_mfma_f32_32x32x16_bf16 {vr(acc, 16)}, {vr(wa, 4)}, {vr(xa, 4)}, {'0' if first else vr(acc, 16)}")
            first = False
            for _ in range(3):
                if k < len(rd):
                    toks.append(a.lg(rd[k]))
                    k += 1
        while k < len(rd):
            toks.append(a.lg(rd[k]))
            k += 1
        for c in cur:
            c[0] = toks[c[3]]
        prev = cur
    for tok, wa, xa, _ in prev:
        a.wait(lg=tok)
        a(f"v_mfma_f32_32x32x16_bf16 {vr(acc, 16)}, {vr(wa, 4)}, {vr(xa, 4)}, {vr(acc, 16)}")
    stamp(a)
    a("s_nop 11")
    P = 32
    for i in range(8):
        a(f"v_cvt_pk_bf16_f32 v{P + i}, v{acc + 2 * i}, v{acc + 2 * i + 1}")
    if k3:
        stores(a, [f"buffer_store_dwordx4 {vr(P, 4)}, v{vL16}, {sr(sWS, 4)}, s36 offen",
                   f"buffer_store_dwordx4 {vr(P + 4, 4)}, v{vL16}, {sr(sWS, 4)}, s36 offen offset:1024"])
        a(f"v_dot2_f32_bf16 v{T}, v{P}, s41, 0")
        a(f"v_dot2_f32_bf16 v{T + 1}, v{P}, v{P}, 0")
        for i in range(1, 8):
            a(f"v_dot2_f32_bf16 v{T}, v{P + i}, s41, v{T}")
            a(f"v_dot2_f32_bf16 v{T + 1}, v{P + i}, v{P + i}, v{T + 1}")
        a("s_nop 2")
        a(f"v_mov_b32 v{T + 2}, v{T}")
        a(f"v_mov_b32 v{T + 3}, v{T + 1}")
        a("s_nop 0")
        a(f"v_permlane32_swap_b32 v{T}, v{T + 2}")
        a(f"v_permlane32_swap_b32 v{T + 1}, v{T + 3}")
        a("s_nop 0")
        a(f"v_add_f32 v{T}, v{T}, v{T + 2}")
        a(f"v_add_f32 v{T + 1}, v{T + 1}, v{T + 3}")
        a("s_mov_b32 exec_hi, 0")
        stores(a, [f"buffer_store_dwordx2 {vr(T, 2)}, v{vOut}, {sr(sWS, 4)}, s37 offen"])
        a("s_mov_b64 exec, -1")
        a("s_barrier")
        publish(a, 55, T + 4)
    else:
        for g in range(4):
            a.lg(f"ds_write_b64 v{vTw}, {vr(P + 2 * g, 2)} offset:{g * 16}")
        a.wait_all(vm=False)
        t0 = a.lg(f"ds_read_b128 {vr(P + 8, 4)}, v{vTr}")
        t1 = a.lg(f"ds_read_b128 {vr(P + 12, 4)}, v{vTr} offset:{16 * 80}")
        a.wait(lg=t0)
        a.vm(f"buffer_store_dwordx4 {vr(P + 8, 4)}, v{vOut}, {sr(sIO, 4)}, s36 offen")
        a.wait(lg=t1)
        a.vm(f"buffer_store_dwordx4 {vr(P + 12, 4)}, v{vOut}, {sr(sIO, 4)}, s37 offen")
    stamp(a)


def phase4(a, h):
    sG = 16
    sRb, sCg = 25, 26
    sWL, sAct = 32, 33
    NW, NX, NST = 9, 5, 16
    XO = 122880
    CSO = 24576
    XEO = CSO + 1536
    for b in (a, h):
        b(f"s_and_b32 s{sT0}, s2, 7")
        b(f"s_lshl_b32 s{sT0}, s{sT0}, 1")
        b(f"s_bfe_u32 s{sT1}, s2, 0x10003")
        b(f"s_add_u32 s{sRb}, s{sT0}, s{sT1}")
        b(f"s_lshr_b32 s{sCg}, s2, 4")
    a("s_cmp_ge_u32 s2, 240")
    a("s_cbranch_scc1 L_p4_skip_c")
    h("s_cmp_ge_u32 s2, 240")
    h("s_cbranch_scc1 L_p4_skip_l")
    vWoff = [3, 4, 5]
    vT = 16
    h(f"s_lshl_b32 s{sAct}, s{sRb}, 2")
    h(f"s_add_u32 s{sAct}, s{sAct}, s{sHw}")
    h(f"s_mul_i32 s{sAct}, s{sAct}, {RT}")
    h(f"s_add_u32 s38, s{sAct}, {SO}")
    h(f"s_lshr_b32 s34, s{sHw}, 1")
    h(f"s_and_b32 s35, s{sHw}, 1")
    h(f"s_mul_i32 s{sT0}, s34, {16 * 2752}")
    h(f"s_mul_i32 s{sT1}, s{sCg}, 192")
    h(f"s_add_u32 s{sT0}, s{sT0}, s{sT1}")
    h(f"v_and_b32 v{vT + 3}, 2, v{vLane}")
    h(f"v_lshlrev_b32 v{vT + 3}, 5, v{vT + 3}")
    h(f"v_sub_u32 v{vT + 3}, 32, v{vT + 3}")
    h(f"v_mul_lo_u32 v{vT + 3}, v{vT + 3}, s35")
    h(f"v_add_u32 v{vT + 3}, s{sT0}, v{vT + 3}")
    for i in range(3):
        h(f"v_add_u32 v{vT}, {64 * i}, v{vLane}")
        h(f"v_mul_u32_u24 v{vT + 1}, 171, v{vT}")
        h(f"v_lshrrev_b32 v{vT + 1}, 11, v{vT + 1}")
        h(f"v_mul_u32_u24 v{vT + 2}, {2752 - 192}, v{vT + 1}")
        h(f"v_add3_u32 v{vWoff[i]}, v{vL16}, v{vT + 2}, v{vT + 3}")
    h(f"s_mul_i32 s{sWL}, s{sHw}, 3072")
    h(f"s_lshl_b32 s36, s{sHw}, 11")
    h(f"s_add_u32 s36, s36, {XO}")
    h("s_cmp_eq_u32 s35, 0")
    h(f"s_cselect_b32 s{sG}, s{KG}, s{KU}")
    h(f"s_cselect_b32 s{sG + 1}, s{KG + 1}, s{KU + 1}")
    h(f"s_mov_b32 s{sG + 2}, {hx(512 * 2752)}")
    h(f"s_mov_b32 s{sG + 3}, 0x00020000")
    dr = Drip(h)

    def issue_w(key):
        st = key[1] if isinstance(key, tuple) else key
        for i in range(3):
            pre = [f"s_add_u32 m0, s{sWL}, {WS4[st % NW]}", f"s_mov_b32 s42, {st * 32 * 2752}"] if i == 0 else []
            dr.add(key, pre, f"buffer_load_dwordx4 v{vWoff[i]}, {sr(sG, 4)}, s42 offen offset:{i * 1024} lds")

    def issue_x(st):
        for i in range(2):
            pre = [f"s_add_u32 m0, s36, {(st % NX) * 8192}", f"s_add_u32 s43, s{sAct}, {st * 2048}"] if i == 0 else []
            dr.add(st, pre, f"buffer_load_dwordx4 v{vL16}, {sr(sWS, 4)}, s43 offen offset:{i * 1024} {LD()} lds")

    PRE = OPT["p4_pre"]
    for st in range(4, PRE):
        issue_w(st)
    dr.emit(100)
    nxt_wi = 3 * PRE
    vPf, vPd = 13, 100
    srd(h, 44, KD, 1376 * 1024)
    h(f"s_lshr_b32 s{sT0}, s2, 3")
    h(f"s_lshl_b32 s{sT0}, s{sT0}, 2")
    h(f"s_add_u32 s{sT0}, s{sT0}, s{sHw}")
    h(f"s_lshl_b32 s{sT0}, s{sT0}, 13")
    h(f"v_lshlrev_b32 v{vPf}, 7, v{vLane}")
    h(f"v_add_u32 v{vPf}, s{sT0}, v{vPf}")
    h(f"v_add_u32 v15, {120 * 8192}, v{vPf}")
    h(f"v_lshrrev_b32 v{vT + 3}, 5, v{vLane}")
    h(f"v_and_b32 v{vT + 4}, 31, v{vLane}")
    h(f"v_lshlrev_b32 v{vT + 4}, 3, v{vT + 4}")
    h(f"v_lshl_add_u32 v{vT + 4}, v{vT + 3}, 11, v{vT + 4}")
    h(f"s_mul_i32 s{sT0}, s{sHw}, 1536")
    h(f"s_add_u32 s{sT0}, s{sT0}, {XEO}")
    h(f"v_add_u32 v{vT + 5}, s{sT0}, v{vL16}")
    h(f"v_lshl_add_u32 v{vT + 6}, v{vLane}, 3, s{sT0}")
    stamp(h)
    if OPT["lpoll"]:
        h(f"s_lshl_b32 s40, s{sRb}, 8")
        h(f"s_add_u32 s40, s40, {F3}")
        poll(h, 40, vT + 8, "p4l", every=True, barrier=False)
    else:
        h("s_barrier")
    stamp(h)
    SP = 32
    vS, vQ, vM, vA = 60, 61, 62, 64
    AHEAD = OPT["p4_a"]
    assert AHEAD < NX
    nxt_x = 0
    for st in range(NST):
        while nxt_x <= min(st + (min(AHEAD, st + 1) if OPT["p4_ramp"] else AHEAD), NST - 1):
            if nxt_x >= NX and nxt_x - NX > st - 2:
                break
            issue_x(nxt_x)
            nxt_x += 1
        dr.emit(100)
        for _ in range(0 if OPT["p4_ramp"] and st == 0 else (OPT["p4_wi2"] + (st & 1)) // 2 + (st in (4, 6) and OPT["p4_ramp"])):
            ws, wi = divmod(nxt_wi, 3)
            if ws < NST and (ws < NW or ws - NW <= st - 2):
                h(f"s_add_u32 m0, s{sWL}, {WS4[ws % NW]}")
                h(f"s_mov_b32 s42, {ws * 32 * 2752}")
                dr.tok[("w", ws)] = h.vm(f"buffer_load_dwordx4 v{vWoff[wi]}, {sr(sG, 4)}, s42 offen offset:{wi * 1024} lds")
                nxt_wi += 1
        assert nxt_wi >= 3 * (st + 1)
        if 1 <= st <= 8:
            i = st - 1
            dr.tok["st"] = h.vm(f"buffer_load_dwordx2 {vr(SP + 2 * i, 2)}, v{vT + 4}, {sr(sWS, 4)}, s38 offen offset:{i * 256} {LD()}")
        h.wait(vm=max(dr.tok[st], dr.tok.get(("w", st), -1)))
        assert st < PRE or ("w", st) in dr.tok
        if st == 11:
            h.wait(vm=dr.tok["st"])
            h(f"v_add_f32 v{vS}, v{SP}, v{SP + 2}")
            h(f"v_add_f32 v{vQ}, v{SP + 1}, v{SP + 3}")
            for i in range(2, 8):
                h(f"v_add_f32 v{vS}, v{vS}, v{SP + 2 * i}")
                h(f"v_add_f32 v{vQ}, v{vQ}, v{SP + 2 * i + 1}")
        if st == 12:
            half_sum(h, vS, vT)
            half_sum(h, vQ, vT)
            h(f"v_mul_f32 v{vM}, {hx(f2u(-1.0 / 512))}, v{vS}")
            h(f"v_mul_f32 v{vQ}, {hx(f2u(1.0 / 512))}, v{vQ}")
            h(f"v_fma_f32 v{vQ}, -v{vM}, v{vM}, v{vQ}")
            h(f"v_max_f32 v{vQ}, 0, v{vQ}")
            h(f"v_add_f32 v{vQ}, {hx(f2u(1e-5))}, v{vQ}")
        if st == 13:
            h(f"v_rsq_f32 v{vA}, v{vQ}")
            split_hi_lo(h, vM, 68, vT, vT + 1)
            h(f"v_mul_f32 v{vA + 1}, v{vQ}, v{vA}")
            h(f"v_mul_f32 v{vA}, {hx(f2u(-LOG2E))}, v{vA}")
            h(f"v_cvt_pk_bf16_f32 v69, v{vT}, 0")
            h("v_mov_b32 v70, 0")
            h("v_mov_b32 v71, 0")
            h.lg(f"ds_write_b128 v{vT + 5}, v[68:71]")
            h.lg(f"ds_write_b64 v{vT + 6}, {vr(vA, 2)} offset:1024")
        if st == 14:
            h.wait_all(vm=False)
        if OPT.get("det") == 1 and st in (3, 7, 11):
            stamp(h)
        h("s_barrier")
        if OPT.get("det") == 1 and st in (3, 7, 11, 15):
            stamp(h)
        if st == OPT["p4_pf"]:
            h.vm(f"buffer_load_dword v{vPd}, v{vPf}, s[44:47], 0 offen")
        if st == OPT["p4_pf"] + 1:
            h.vm(f"buffer_load_dword v{vPd}, v15, s[44:47], 0 offen")
    h("s_barrier")
    h.label("L_p4_skip_l")

    sWr2, sWc = 36, 37
    vWrd, vWrdO, vXa, vCw, vCr, vEr = [3, 4], [5, 6], 7, 8, 9, 10
    ONES, vT, CS, ACC = 12, 16, 20, 32
    XF, WF = [128, 136], [144, 156]
    XE, AS = XF[0], ONES
    t = CS
    a(f"s_lshr_b32 s{sWr2}, s{sHw}, 1")
    a(f"s_and_b32 s{sWc}, s{sHw}, 1")
    a(f"s_lshl_b32 s34, s{sRb}, 1")
    a(f"s_add_u32 s34, s34, s{sWr2}")
    a(f"v_lshrrev_b32 v{t + 3}, 5, v{vLane}")
    a(f"v_bfe_u32 v{t}, v{vLane}, 2, 2")
    a(f"v_lshl_add_u32 v{t}, v{t + 3}, 2, v{t}")
    a(f"v_mul_u32_u24 v{t}, 192, v{t}")
    a(f"v_and_b32 v{t + 1}, 3, v{vLane}")
    a(f"v_lshl_add_u32 v{t}, v{t + 1}, 3, v{t}")
    a(f"s_mul_i32 s{sT0}, s{sWc}, 96")
    a(f"v_add_u32 v{t}, s{sT0}, v{t}")
    a(f"v_bfe_u32 v{t + 1}, v{vLane}, 4, 1")
    a(f"s_lshl_b32 s{sT0}, s{sWc}, 6")
    a(f"s_sub_u32 s{sT1}, {3072 + 32}, s{sT0}")
    a(f"s_add_u32 s{sT0}, {3072 - 32}, s{sT0}")
    a(f"v_mad_u32_u24 v{vWrd[0]}, v{t + 1}, s{sT1}, v{t}")
    a(f"v_mad_u32_u24 v{vWrdO[0]}, v{t + 1}, s{sT0}, v{t}")
    wl = [LdsAddr(a, vWrd), LdsAddr(a, vWrdO)]
    wl[0].setup(a)
    wl[1].setup(a)
    a(f"s_lshl_b32 s{sT0}, s{sWr2}, 12")
    a(f"s_add_u32 s{sT0}, s{sT0}, {XO}")
    a(f"v_add_u32 v{vXa}, s{sT0}, v{vL16}")
    a(f"v_xor_b32 v{t}, v{t + 1}, v{vLane}")
    a(f"v_and_b32 v{t}, 1, v{t}")
    a(f"v_cmp_eq_u32 vcc, 0, v{t}")
    a(f"v_mov_b32 v{t}, 0x3f803f80")
    a("s_nop 0")
    for r in range(4):
        a(f"v_cndmask_b32 v{ONES + r}, 0, v{t}, vcc")
    a(f"s_lshl_b32 s{sT0}, s{sWc}, 1")
    a(f"s_add_u32 s{sT1}, s{sT0}, s{sWr2}")
    a(f"s_mul_i32 s{sT1}, s{sT1}, 384")
    a(f"s_add_u32 s{sT1}, s{sT1}, {CSO}")
    a(f"v_and_b32 v{t}, 1, v{vLane}")
    a(f"v_lshlrev_b32 v{t}, 6, v{t}")
    a(f"v_and_b32 v{t + 1}, 48, v{vLane}")
    a(f"v_add3_u32 v{vCw}, v{t}, v{t + 1}, s{sT1}")
    a(f"s_mul_i32 s{sT0}, s{sT0}, 384")
    a(f"s_add_u32 s{sT0}, s{sT0}, {CSO}")
    a(f"v_mul_u32_u24 v{t}, 384, v{t + 3}")
    a(f"v_and_b32 v{t + 1}, 31, v{vLane}")
    a(f"v_lshl_add_u32 v{t}, v{t + 1}, 2, v{t}")
    a(f"v_add_u32 v{vCr}, s{sT0}, v{t}")
    a(f"s_lshl_b32 s55, s34, 9")
    a(f"s_lshl_b32 s35, s{sCg}, 1")
    a(f"s_add_u32 s35, s35, s{sWc}")
    a(f"s_lshl_b32 s{sT0}, s35, 2")
    a(f"s_add_u32 s55, s55, s{sT0}")
    a(f"s_add_u32 s55, s55, {F4}")
    a(f"s_mul_i32 s34, s34, {2 * RT}")
    a(f"s_mul_i32 s38, s35, 3")
    a(f"s_lshl_b32 s35, s35, 10")
    a("s_add_u32 s34, s34, s35")
    a(f"s_add_u32 s34, s34, {GO}")
    a(f"s_add_u32 s35, s34, {RT}")
    a(f"s_mul_i32 s{sT0}, s{sWr2}, 3072")
    a(f"s_add_u32 s{sT0}, s{sT0}, {XEO}")
    a(f"v_add_u32 v{vEr}, s{sT0}, v{vL16}")
    a(f"v_lshl_add_u32 v{vEr + 1}, v{vLane}, 3, s{sT0}")
    for r in range(12):
        a(f"v_mov_b32 v{CS + r}, 0")

    def reads(s):
        st, ss = divmod(s, 2)
        W = []
        for j in range(3):
            for half in range(2):
                reg, off = wl[j & 1].at(WS4[st % NW] + ss * 6144 + half * 8 * 192 + j * 32)
                W.append(f"ds_read_b64_tr_b16 {vr(WF[s & 1] + 4 * j + 2 * half, 2)}, {reg} offset:{off}")
        X = [f"ds_read_b128 {vr(XF[s & 1] + 4 * i, 4)}, v{vXa} offset:{(st % NX) * 8192 + i * 2048 + ss * 1024}"
             for i in range(2)]
        return [X[0], W[0], W[1], X[1], W[2], W[3], W[4], W[5]]

    rt = {}

    def emit_reads(b, s, lo, hi):
        ops = reads(s)
        for k in range(lo, min(hi, 8)):
            rt[(s, k)] = b.lg(ops[k])

    def main(b, s, m):
        j, i = divmod(m, 2)
        d = ACC + 16 * m
        c = "0" if s == 0 else vr(d, 16)
        b(f"v_mfma_f32_32x32x16_bf16 {vr(d, 16)}, {vr(WF[s & 1] + 4 * j, 4)}, {vr(XF[s & 1] + 4 * i, 4)}, {c}")

    def csum(b, s, j):
        b(f"v_mfma_f32_16x16x32_bf16 {vr(CS + 4 * j, 4)}, {vr(WF[s & 1] + 4 * j, 4)}, {vr(ONES, 4)}, {vr(CS + 4 * j, 4)}")

    a(f"s_lshl_b32 s40, s{sRb}, 8")
    a(f"s_add_u32 s40, s40, {F3}")
    if not OPT["lpoll"]:
        poll(a, 40, vT, "p4")
    a("s_barrier")
    stamp(a)
    emit_reads(a, 0, 0, 8)
    a(f"s_cmp_eq_u32 s{sWr2}, 1")
    a("s_cbranch_scc1 L_p4_odd")
    cuts = [0, 2, 4, 6, 8, 8, 8]
    need = [3, 3, 5, 5, 7, 7]
    rt0 = dict(rt)
    odd = fork(a)
    odd.label("L_p4_odd")
    for par, b in ((0, a), (1, odd)):
        rt.clear()
        rt.update(rt0)
        for s in range(31):
            if s % 2 == 1:
                b.wait(lg=rt[(s, 7)])
                b("s_barrier")
            for m in range(6):
                b.wait(lg=rt[(s, need[m])])
                if m % 2 == 0 and s % 2 == par:
                    csum(b, s, m // 2)
                main(b, s, m)
                emit_reads(b, s + 1, cuts[m], cuts[m + 1])
        b.wait_all(vm=False)
        if par == 1:
            for j in range(3):
                csum(b, 31, j)
    odd("s_branch L_p4_join")
    a.label("L_p4_join")
    main(a, 31, 0)
    for j in range(3):
        a(f"v_mov_b32 v{WF[0] + 4 * j + 2}, 0")
        a(f"v_mov_b32 v{WF[0] + 4 * j + 3}, 0")
    main(a, 31, 1)
    a("s_mov_b32 exec_lo, 0x00030003")
    a("s_mov_b32 exec_hi, 0x00030003")
    for j in range(3):
        a.lg(f"ds_write_b128 v{vCw}, {vr(CS + 4 * j, 4)} offset:{j * 128}")
    a("s_mov_b64 exec, -1")
    for i in range(2):
        a.lg(f"ds_read_b128 {vr(XE + 4 * i, 4)}, v{vEr} offset:{i * 1536}")
        a.lg(f"ds_read_b64 {vr(AS + 2 * i, 2)}, v{vEr + 1} offset:{i * 1536 + 1024}")
    main(a, 31, 2)
    main(a, 31, 3)
    a.wait_all(vm=False)
    a("s_barrier")
    for j in range(3):
        rt[("c", j)] = a.lg(f"ds_read_b32 v{vT + 1 + j}, v{vCr} offset:{j * 128}")
    main(a, 31, 4)
    main(a, 31, 5)
    for j in range(3):
        w = WF[0] + 4 * j
        a.wait(lg=rt[("c", j)])
        a(f"v_cvt_pk_bf16_f32 v{w + 1}, v{vT + 1 + j}, 0")
        a(f"v_lshlrev_b32 v{vT}, 16, v{w + 1}")
        a(f"v_sub_f32 v{vT}, v{vT + 1 + j}, v{vT}")
        a(f"v_cvt_pk_bf16_f32 v{w}, v{vT + 1 + j}, v{vT}")
    for j in range(3):
        for i in range(2):
            d = ACC + 32 * j + 16 * i
            a(f"v_mfma_f32_32x32x16_bf16 {vr(d, 16)}, {vr(WF[0] + 4 * j, 4)}, {vr(XE + 4 * i, 4)}, {vr(d, 16)}")
    stamp(a)
    a(f"v_lshlrev_b32 v{vT}, 7, v{vLane}")
    a(f"v_mov_b32 v{vT + 1}, s{sTag}")
    a("s_nop 2")
    stok = {}
    if OPT["ep_prio"]:
        a(f"s_setprio {OPT['ep_prio']}")
    for j in range(3):
        a(f"s_cmp_ge_u32 s38, {86 - j}")
        a("s_cbranch_scc1 L_p4_pub")
        Gs = [(ACC + 32 * j + 16 * i + r, i) for i in range(2) for r in range(8)]
        for g, i in Gs[::2]:
            a(f"v_pk_mul_f32 {vr(g, 2)}, {vr(g, 2)}, {vr(AS + 2 * i, 2)} op_sel_hi:[1,0]")
        for g, i in Gs:
            a(f"v_exp_f32 v{g}, v{g}")
        for g, i in Gs[::2]:
            a(f"v_pk_fma_f32 {vr(g, 2)}, {vr(g, 2)}, {vr(AS + 2 * i, 2)}, {vr(AS + 2 * i, 2)} op_sel:[0,1,1] op_sel_hi:[1,1,1]")
        for g, i in Gs:
            a(f"v_rcp_f32 v{g}, v{g}")
        for g, i in Gs[::2]:
            a(f"v_pk_mul_f32 {vr(g, 2)}, {vr(g, 2)}, {vr(g + 8, 2)}")
        if j == 2 and OPT["ep_fl"]:
            a("s_mov_b64 exec, 1")
            a.wait(vm=stok[0])
            stores(a, [f"buffer_store_dword v{vT + 1}, v{vT}, {sr(sWS, 4)}, s55 offen"])
            a("s_mov_b64 exec, -1")
        o = ACC + 32 * j + 8
        for i in range(8):
            a(f"v_cvt_pk_bf16_f32 v{o + i}, v{Gs[2 * i][0]}, v{Gs[2 * i + 1][0]}")
        stores(a, [f"buffer_store_dwordx4 {vr(o, 4)}, v{vL16}, {sr(sWS, 4)}, s34 offen",
                   f"buffer_store_dwordx4 {vr(o + 4, 4)}, v{vL16}, {sr(sWS, 4)}, s35 offen"])
        stok[j] = a.vm_issued - 1
        a(f"s_add_u32 s34, s34, {29 * 1024}")
        a(f"s_add_u32 s35, s35, {29 * 1024}")
        if j >= 1 and not OPT["ep_fl"]:
            a("s_mov_b64 exec, 1")
            a.wait(vm=stok[j - 1])
            stores(a, [f"buffer_store_dword v{vT + 1}, v{vT}, {sr(sWS, 4)}, s55 offen offset:{(j - 1) * 128}"])
            a("s_mov_b64 exec, -1")
    a.label("L_p4_pub")
    a("s_nop 7")
    stamp(a)
    a("s_mov_b64 exec, 7")
    a.wait_all(lg=False)
    stores(a, [f"buffer_store_dword v{vT + 1}, v{vT}, {sr(sWS, 4)}, s55 offen"])
    a("s_mov_b64 exec, -1")
    if OPT["ep_prio"]:
        a("s_setprio 0")
    a.label("L_p4_skip_c")
    return odd


def gen_fused():
    name = KNAME
    a = Asm()
    a.raw(f".globl {name}")
    a.raw(".p2align 8")
    a.raw(f".type {name},@function")
    a.label(name)
    a("s_cmp_ge_u32 s2, 256")
    a(f"s_cbranch_scc1 L_done")
    stamp_real(a)
    stamp(a)
    if OPT.get("spin"):
        a("s_memrealtime s[98:99]")
    c1, odd1, l1, aux = phase1(a)
    fb = phase2(c1, l1, aux)
    c1(f"s_cmp_ge_u32 s{sWave}, 4")
    c1("s_cbranch_scc0 L_compute")
    h = fork(c1)
    c = fork(c1)
    if OPT.get("det") == 2:
        h.nstamp, h.nostamp = 18, True
    c.label("L_compute")
    phase_res(c, h, True, pre_publish=55)
    odd = phase4(c, h)
    phase_res(c, h, False)
    if OPT.get("det") != 3:
        stamp_flush(h)
    h("s_endpgm")
    c("s_cmp_lg_u32 s2, 0")
    c("s_cbranch_scc1 L_nogen")
    c(f"s_cmp_lg_u32 s{sWave}, 0")
    c("s_cbranch_scc1 L_nogen")
    c(f"v_mov_b32 v12, {GEN}")
    c(f"v_mov_b32 v13, s{sTag}")
    c("s_mov_b64 exec, 1")
    c(f"buffer_store_dword v13, v12, {sr(sWS, 4)}, 0 offen sc1")
    if OPT.get("spin"):
        c("s_load_dwordx2 s[92:93], s[0:1], 64")
        c("s_memrealtime s[96:97]")
        c("s_waitcnt lgkmcnt(0)")
        c("s_sub_u32 s96, s96, s98")
        c("s_mov_b32 s94, 256")
        c("s_mov_b32 s95, 0x00020000")
        c("v_mov_b32 v12, 0")
        c("v_mov_b32 v13, s96")
        c("buffer_store_dword v13, v12, s[92:95], 0 offen")
        c.label("L_dbg_spin")
        c("s_memrealtime s[96:97]")
        c("s_waitcnt lgkmcnt(0)")
        c("s_sub_u32 s96, s96, s98")
        c(f"s_cmp_lt_u32 s96, {OPT['spin']}")
        c("s_cbranch_scc1 L_dbg_spin")
    c.label("L_nogen")
    stamp_flush(c)
    c.label("L_done")
    c("s_endpgm")
    text = (a.text() + l1.text() + aux.text() + odd1.text() + c1.text() + h.text() + c.text() + odd.text() + fb.text())
    return name, text, descriptor(name, 168, 0, sgpr=102), (256, 576, 163840)


DOC = """; ---------------------------------------------------------------------------------------------------------
; ---------------------------------------------------------------------------------------------------------
"""


def build():
    name, text, desc, (g, b, lds) = gen_fused()
    ref = open(f"cdna_kernels/{NAME}.s.ref").read().split("\n")
    head = [l for l in ref if l.startswith(";") and "@launch" not in l]
    out = "\n".join(head) + "\n"
    out += f"; @launch grid=({g},1,1) block=({b},1,1) lds={lds}\n"
    out += '.amdgcn_target "amdgcn-amd-amdhsa--gfx950"\n' + DOC + '.text\n'
    bad = check_hazards(text, name)
    out += text
    out += "L_code_end:\n"
    out += '.section .rodata,"a"\n.p2align 6\n' + desc
    if bad:
        print("hazards:", bad)
    return out


if __name__ == "__main__":
    path = sys.argv[1] if len(sys.argv) > 1 else f"cdna_kernels/{NAME}.s"
    for arg in sys.argv[2:]:
        if arg == "stamps":
            G.STAMPS = True
        else:
            k_, v_ = arg.split("=")
            OPT[k_] = int(v_)
    open(path, "w").write(build())
    print("wrote", path)
```

```python
import sys

import gen as G
from gen import (Asm, Drip, LdsAddr, OPT, MB, QF, KVF, OF, HF, ST, GF, WS_SIZE, LOG2E, NAME, f2u, hx, vr, sr, srd,
                 fork, half_sum, split_hi_lo, code_prefetch, descriptor, check_hazards)

FLG = 11 * MB
F2, F3, F4, XT = FLG, FLG + 8192, FLG + 49152, FLG + 20480
FL1, GEN, FG1 = FLG + 24576, FLG + 28672, FLG + 32768
RT = 124 * 1024
QO, GO, SO = 65536, 32768, 118 * 1024
KVG = 12 * MB


def HS():
    return 131072 + OPT["kv_pad"]


KNAME = NAME + "_kernel"
WS3 = [0, 8192, 16384, 24576, 65536, 73728, 81920, 90112]
RES3 = 155648
WS4 = [32768, 45056, 98304, 110592, 0, 12288, 57344, 69632, 81920]
WS5 = [0, 8192, 16384] + [8192 * i for i in range(4, 14)]
sTag = 53
OPT.update(dict(p3_a=7, p4_a=3, p5_a=7, p5_na=6, down_l2=0, ws_off=0, kv_pad=4352, kv_gate=1, kv_fl=2, p1_bs=1, p5_c2=9, p5_nw=11, p4_pf=13, p4_pre=7, p2_map=1, force_slow=0, p1_cnt=1, kv_nt=0, kv_lag=1, early_t=0, gf_late=0, gu_from=128, gu_to=223, ep_prio=0, ep_fl=0, aux_sl=3, p2_pr=0, gm=0, p4_ramp=0, lpoll=0, retouch=1, p1_ls=1, p1_xl=8, t_wo=1, t_at=99, adapt=0, p2_ord=0, t_mall=1, p1_s3=2, tout_g=0, p1_er=3, p2_defer=0, p2_sched=0, ld=0, touch_out=1, touch2=1, k1_tout=11, p2_fine=0, p2_rot=1, p4_wi2=4, sc="sc1"))

sWS, sWave, sHw = 12, 24, 29
sT0, sT1 = 30, 31
KX, KWO, KG, KU, KD, KO = 64, 68, 72, 74, 76, 78
vLane, vL16 = 1, 2


def ws_srd(a):
    off = OPT["ws_off"] * MB
    a(f"s_add_u32 s{sWS}, s8, {hx(off)}")
    a(f"s_addc_u32 s{sWS + 1}, s9, 0")
    a(f"s_mov_b32 s{sWS + 2}, {hx(WS_SIZE)}")
    a(f"s_mov_b32 s{sWS + 3}, 0x00020000")


def GM():
    return ["sc1", "sc0 sc1"][OPT["gm"]]


def LD():
    return ["sc1", "nt", "", "sc0 sc1", "sc0"][OPT["ld"]]


def stamp(a, force=False):
    if not G.STAMPS or (getattr(a, "nostamp", False) and not force):
        return
    i = getattr(a, "nstamp", 0)
    a.nstamp = i + 1
    assert i < 20, i
    a("s_memtime s[100:101]")
    a.wait_all(vm=False)
    a(f"s_mov_b32 s{80 + i}, s100")


def stamp_real(a):
    if not G.STAMPS:
        return
    i = getattr(a, "nstamp", 0)
    a.nstamp = i + 1
    a("s_memrealtime s[100:101]")
    a.wait_all(vm=False)
    a(f"s_mov_b32 s{80 + i}, s100")


def stamp_flush(a):
    if not G.STAMPS:
        return
    a.wait_all()
    stamp(a, True)
    stamp_real(a)
    a("s_mov_b64 exec, -1")
    a("s_lshl_b32 s58, s2, 3")
    a(f"s_add_u32 s58, s58, s{sWave}")
    a("s_lshl_b32 s58, s58, 7")
    a(f"s_add_u32 s58, s58, {G.DBGO + MB}")
    a("v_mov_b32 v1, 0")
    for i in range(a.nstamp):
        a(f"v_mov_b32 v2, s{80 + i}")
        a(f"buffer_store_dword v2, v1, {sr(sWS, 4)}, s58 offen offset:{4 * i}")
    a.wait_all()


LMODE = 163840 - 16
sMode = 54
_uid = [0]


def stores(a, ins, always_slow=False):
    if always_slow:
        for x in ins:
            a.vm(x + " sc1")
        return
    _uid[0] += 1
    u = _uid[0]
    a(f"s_cmp_eq_u32 s{sMode}, 0")
    a(f"s_cbranch_scc1 L_st_{u}_s")
    for x in ins:
        a.vm(x)
    a(f"s_branch L_st_{u}_j")
    a.label(f"L_st_{u}_s")
    for x in ins:
        a(x + " sc1")
    a.label(f"L_st_{u}_j")


def publish(a, sOff, vt, always_slow=False):
    a(f"v_mov_b32 v{vt}, 0")
    a(f"v_mov_b32 v{vt + 1}, s{sTag}")
    a("s_mov_b64 exec, 1")
    a.wait_all(lg=False)
    stores(a, [f"buffer_store_dword v{vt + 1}, v{vt}, {sr(sWS, 4)}, s{sOff} offen"], always_slow)
    a("s_mov_b64 exec, -1")


def poll_issue(a, sOff, vt, uid, off):
    a(f"s_cmp_lg_u32 s{sWave}, 0")
    a(f"s_cbranch_scc1 L_pi_{uid}")
    a(f"v_lshlrev_b32 v{vt}, 2, v{vLane}")
    a(f"buffer_load_dword v{vt + 1}, v{vt}, {sr(sWS, 4)}, s{sOff} offen offset:{off} sc1")
    a.label(f"L_pi_{uid}")


def poll(a, sOff, vt, uid, nflags=64, every=False, barrier=True, off=0, issued=False):
    if not every:
        a(f"s_cmp_lg_u32 s{sWave}, 0")
        a(f"s_cbranch_scc1 L_poll_{uid}_go")
    if not issued:
        a(f"v_lshlrev_b32 v{vt}, 2, v{vLane}")
    a("s_mov_b32 s59, 0x40000")
    if nflags < 64:
        a(f"s_mov_b64 exec, {hx((1 << nflags) - 1)}")
    if issued:
        a(f"s_branch L_poll_{uid}_c")
    a.label(f"L_poll_{uid}")
    a(f"buffer_load_dword v{vt + 1}, v{vt}, {sr(sWS, 4)}, s{sOff} offen offset:{off} sc1")
    a.label(f"L_poll_{uid}_c")
    a("s_sub_u32 s59, s59, 1")
    a("s_waitcnt vmcnt(0)")
    a(f"v_cmp_ne_u32 vcc, s{sTag}, v{vt + 1}")
    a("s_cmp_eq_u32 s59, 0")
    a(f"s_cbranch_scc1 L_poll_{uid}_x")
    a(f"s_cbranch_vccnz L_poll_{uid}")
    a.label(f"L_poll_{uid}_x")
    a("s_mov_b64 exec, -1")
    a.label(f"L_poll_{uid}_go")
    if barrier:
        a("s_barrier")


def touch_setup(h):
    srd(h, 16, KWO, 512 * 1024)
    srd(h, 20, KG, 512 * 2752)
    srd(h, 48, KU, 512 * 2752)
    h(f"s_and_b32 s{sT0}, s2, 7")
    h(f"s_lshl_b32 s{sT1}, s{sT0}, 18")
    h(f"s_add_u32 s4, s{KX}, s{sT1}")
    h(f"s_addc_u32 s5, s{KX + 1}, 0")
    srd(h, 44, 4, 256 * 1024)
    h(f"s_mul_i32 s{sT0}, s{sT0}, {172 * 1024}")
    h(f"s_add_u32 s10, s{KD}, s{sT0}")
    h(f"s_addc_u32 s11, s{KD + 1}, 0")
    if OPT["down_l2"]:
        srd(h, 40, KD, 1376 * 1024)
    else:
        srd(h, 40, 10, 172 * 1024)
    h(f"s_lshr_b32 s{sT0}, s2, 3")
    h("v_lshlrev_b32 v3, 7, v1")


def touch_weights(h, late=None):
    k0 = OPT["gu_from"]
    k1 = OPT["gu_to"]
    n = -(-(k1 - k0) * 2752 // (32 * 8192))
    if k0 and OPT["t_mall"]:
        per = -(-(k0 if k1 == 512 else 512) * 2752 // 256 // 128) * 128
        assert per <= 8192
        h(f"s_mul_i32 s{sT1}, s2, {per}")
        h(f"v_add_u32 v4, s{sT1}, v3")
        nl = per // 128
        h(f"s_mov_b32 exec_lo, {hx((1 << min(nl, 32)) - 1)}")
        h(f"s_mov_b32 exec_hi, {hx((1 << max(nl - 32, 0)) - 1)}")
        for sq in (20, 48):
            h.vm(f"buffer_load_dword v5, v4, {sr(sq, 4)}, 0 offen")
        h("s_mov_b64 exec, -1")
    for sq, per, n_, base in ((16, 16384, 2 * OPT["t_wo"], 0), (44, 8192, OPT["t_wo"], 0), (40, 49152, 6, 0) if OPT["down_l2"] else (40, 8192, OPT["t_mall"], 0), (20, n * 8192, n, k0 * 2752 // 128 * 128),
                              (48, n * 8192, n, k0 * 2752 // 128 * 128)):
        if n_ == 0:
            continue
        if sq == 20 and late:
            late("L_skip_gu")
        h(f"s_mul_i32 s{sT1}, s{sT0}, {per}")
        if base:
            h(f"s_add_u32 s{sT1}, s{sT1}, {base}")
        h(f"v_add_u32 v4, s{sT1}, v3")
        for i in range(n_):
            h.vm(f"buffer_load_dword v5, v4, {sr(sq, 4)}, 0 offen")
            if i + 1 < n_:
                h("v_add_u32 v4, 0x2000, v4")
    if late:
        h.label("L_skip_gu")


def phase1(a):
    sX, sW = 20, 16
    sWr, sWc, sCg, sRb = 25, 26, 27, 28
    sWL = 32
    sOnes = 41
    vT = 8
    NSLOT, SLOT, WBASE, NST = 7, 12288, 65536, 16
    CSO = WBASE + NSLOT * SLOT
    RSO = 155648
    XEO = 156672
    BS = [list(range(16)), [0, 1, 2, 4, 6, 8, 10, 12, 14], [0, 2, 4, 6, 8, 10, 12, 14], [0, 1, 2, 3, 4, 6, 8, 10, 12, 14, 15]][OPT["p1_bs"]]
    a("s_load_dwordx16 s[64:79], s[0:1], 0")
    a("s_load_dwordx2 s[8:9], s[0:1], 72")
    a(f"v_and_b32 v{vLane}, 63, v0")
    a(f"v_lshrrev_b32 v7, 6, v0")
    a(f"v_lshlrev_b32 v{vL16}, 4, v{vLane}")
    a(f"v_readfirstlane_b32 s{sWave}, v7")
    a(f"s_and_b32 s{sT0}, s2, 7")
    a(f"s_lshl_b32 s{sT0}, s{sT0}, 2")
    a(f"s_bfe_u32 s{sT1}, s2, 0x20003")
    a(f"s_add_u32 s{sRb}, s{sT0}, s{sT1}")
    a(f"s_lshr_b32 s{sCg}, s2, 5")
    a(f"s_and_b32 s{sHw}, s{sWave}, 3")
    a(f"s_cmp_eq_u32 s{sWave}, 8")
    a("s_cbranch_scc1 L_p1_aux")
    a(f"s_cmp_ge_u32 s{sWave}, 4")
    a(f"s_cbranch_scc0 L_p1_compute")

    x = fork(a)
    x.label("L_p1_aux")
    x("s_setprio 3")
    x(f"v_lshlrev_b32 v30, 7, v{vLane}")
    x(f"s_lshr_b32 s{sT0}, s2, 3")
    x(f"s_lshl_b32 s{sT0}, s{sT0}, 11")
    x(f"v_add_u32 v30, s{sT0}, v30")
    x("s_mov_b64 exec, 0xffff")
    code_prefetch(x, KNAME, 44, 30, 31, "p1")
    x("s_mov_b64 exec, -1")
    x("s_getreg_b32 s56, hwreg(HW_REG_XCC_ID, 0, 4)")
    x("s_and_b32 s57, s2, 7")
    x("s_lshl_b32 s57, s57, 8")
    x(f"s_add_u32 s57, s57, {XT}")
    x("s_lshr_b32 s58, s2, 3")
    x("s_lshl_b32 s58, s58, 2")
    x(f"v_mov_b32 v6, {GEN}")
    x("s_waitcnt lgkmcnt(0)")
    ws_srd(x)
    x.vm(f"buffer_load_dword v7, v6, {sr(sWS, 4)}, 0 offen")
    x("v_mov_b32 v6, s58")
    x("s_barrier")
    x("s_barrier")
    x.wait_all()
    x(f"v_readfirstlane_b32 s{sTag}, v7")
    x("s_nop 3")
    x(f"s_mul_i32 s{sTag}, s{sTag}, 1664525")
    x(f"s_add_u32 s{sTag}, s{sTag}, 1013904223")
    x(f"s_lshl_b32 s58, s{sTag}, 4")
    x("s_or_b32 s56, s56, s58")
    x("v_mov_b32 v7, s56")
    x("s_mov_b64 exec, 1")
    x.vm(f"buffer_store_dword v7, v6, {sr(sWS, 4)}, s57 offen sc1")
    x("s_mov_b32 exec_lo, -1")
    x("s_mov_b32 exec_hi, 0")
    x(f"v_lshlrev_b32 v6, 2, v{vLane}")
    for st in (BS + [NST])[2:]:
        if st == 12:
            x("s_mov_b32 s59, 0x40000")
            x("s_waitcnt vmcnt(0)")
            x("s_branch L_xt_chk")
            x.label("L_xt_poll")
            x(f"buffer_load_dword v7, v6, {sr(sWS, 4)}, s57 offen sc1")
            x("s_sub_u32 s59, s59, 1")
            x("s_waitcnt vmcnt(0)")
            x.label("L_xt_chk")
            x("v_xor_b32 v8, s56, v7")
            x("v_cmp_lt_u32 vcc, 15, v8")
            x("s_cmp_eq_u32 s59, 0")
            x("s_cbranch_scc1 L_xt_done")
            x("s_cbranch_vccnz L_xt_poll")
            x.label("L_xt_done")
            x("v_cmp_ne_u32 vcc, 0, v8")
            x("s_nop 1")
            x("s_cmp_eq_u64 vcc, 0")
            x(f"s_cselect_b32 s{sMode}, {0 if OPT['force_slow'] else 1}, 0")
            x(f"v_mov_b32 v6, {LMODE}")
            x(f"v_mov_b32 v8, s{sMode}")
            x(f"v_mov_b32 v9, s{sTag}")
            x("ds_write_b64 v6, v[8:9]")
            x("s_waitcnt lgkmcnt(0)")
            x("s_mov_b64 exec, -1")
        x("s_barrier")
        if OPT["early_t"] and st == OPT["early_t"]:
            touch_setup(x)
            touch_weights(x)
        if st == 8:
            x(f"buffer_load_dword v7, v6, {sr(sWS, 4)}, s57 offen sc1")

    h = fork(a)
    vWoff, vXg, vSr, vXe, vRs = 3, 4, 6, 20, 21
    vS, vQ, vM, vR = 22, 23, 24, 25
    XB = 32
    h(f"v_lshrrev_b32 v{vT}, 3, v{vLane}")
    h(f"v_and_b32 v{vT + 1}, 7, v{vLane}")
    h(f"v_lshrrev_b32 v{vT + 2}, 1, v{vT}")
    h(f"v_xor_b32 v{vT + 2}, v{vT + 2}, v{vT + 1}")
    h(f"v_lshlrev_b32 v{vT + 2}, 4, v{vT + 2}")
    h(f"v_lshl_add_u32 v{vXg}, v{vT}, 10, v{vT + 2}")
    h(f"v_xor_b32 v{vXg + 1}, 64, v{vXg}")
    h(f"v_add_u32 v{vXg + 1}, {8 * 1024 - 1024}, v{vXg + 1}")
    h(f"s_lshl_b32 s34, s{sRb}, 16")
    h(f"s_lshl_b32 s{sT0}, s{sHw}, 14")
    h(f"s_add_u32 s34, s34, s{sT0}")
    h(f"s_lshl_b32 s36, s{sHw}, 11")
    h(f"v_lshrrev_b32 v{vT + 2}, 2, v{vLane}")
    h(f"v_and_b32 v{vT + 2}, 4, v{vT + 2}")
    h(f"v_xor_b32 v{vT + 2}, v{vT + 2}, v{vT + 1}")
    h(f"v_lshlrev_b32 v{vT + 2}, 4, v{vT + 2}")
    h(f"v_mul_u32_u24 v{vT + 3}, 3072, v{vT}")
    h(f"s_mul_i32 s{sT0}, s{sHw}, {8 * 3072}")
    h(f"s_lshl_b32 s{sT1}, s{sCg}, 7")
    h(f"s_add_u32 s{sT0}, s{sT0}, s{sT1}")
    h(f"v_add3_u32 v{vWoff}, v{vT + 3}, v{vT + 2}, s{sT0}")
    h(f"s_mul_i32 s{sWL}, s{sHw}, 3072")
    h("s_waitcnt lgkmcnt(0)")
    srd(h, sX, KX, 2048 * 1024)
    srd(h, sW, KX + 2, 512 * 3072)
    d2 = OPT.get("det") == 2
    if d2:
        h.nstamp = 7
        stamp(h)
    dr = Drip(h)

    XLEAD = OPT["p1_xl"] / 4

    def x_dma(c, key):
        dr.add(key, [f"s_add_u32 m0, s36, {c * 8192}", f"s_add_u32 s43, s34, {c * 128}"],
               f"buffer_load_dwordx4 v{vXg}, {sr(sX, 4)}, s43 offen lds")
        dr.add(key, [], f"buffer_load_dwordx4 v{vXg + 1}, {sr(sX, 4)}, s43 offen offset:1024 lds")

    def issue(st):
        for c in range(8):
            if int(c * XLEAD) == st:
                x_dma(c, st)
        for seg in range(3):
            pre = [f"s_add_u32 m0, s{sWL}, {WBASE + (st % NSLOT) * SLOT}", f"s_mov_b32 s42, {32 * st * 3072}"] if seg == 0 else []
            dr.add(st, pre, f"buffer_load_dwordx4 v{vWoff}, {sr(sW, 4)}, s42 offen offset:{seg * 1024} lds")

    for st in range(NSLOT):
        issue(st)
    AHEAD = OPT["k1_d"]
    dr.through(OPT["k1_t"] - 1)

    def s3(lo, hi):
        for i in range(lo, hi):
            h(f"s_load_dword s52, s[50:51], {(i % 8) * 131072 + 384}")
            h(f"s_load_dword s52, s[50:51], {(i % 8) * 131072 + 448}")

    if OPT["p1_s3"]:
        h(f"s_lshr_b32 s{sT0}, s2, 3")
        h(f"s_lshl_b32 s{sT0}, s{sT0}, 2")
        h(f"s_add_u32 s{sT0}, s{sT0}, s{sHw}")
        h(f"s_lshl_b32 s{sT0}, s{sT0}, 10")
        h(f"s_add_u32 s50, s{KX + 2}, s{sT0}")
        h(f"s_addc_u32 s51, s{KX + 3}, 0")
        s3(0, 7)
    if OPT["k1_touch"]:
        h(f"s_lshl_b32 s{sT0}, s2, 2")
        h(f"s_add_u32 s{sT0}, s{sT0}, s{sHw}")
        h(f"s_mul_i32 s{sT1}, s{sT0}, 1536")
        h(f"s_lshl_b32 s{sT0}, s{sT0}, 11")
        h(f"v_lshlrev_b32 v30, 7, v{vLane}")
        h("s_mov_b64 exec, 0xfff")
        h.vm(f"buffer_load_dword v31, v30, {sr(sW, 4)}, s{sT1} offen")
        h("s_mov_b64 exec, 0xffff")
        h.vm(f"buffer_load_dword v31, v30, {sr(sX, 4)}, s{sT0} offen")
        h("s_mov_b64 exec, -1")
    dr.through(AHEAD - 1)
    ws_srd(h)
    LS = OPT["p1_ls"]
    if LS:
        h(f"s_mov_b32 s{sOnes}, 0x3f803f80")
        h(f"v_lshrrev_b32 v{vT}, 2, v{vLane}")
        h(f"v_and_b32 v{vT + 1}, 3, v{vLane}")
        h(f"v_lshlrev_b32 v{vT + 2}, 7, v{vT}")
        h(f"v_lshl_add_u32 v{vT + 2}, v{vT + 1}, 4, v{vT + 2}")
        h(f"v_bfe_u32 v{vT + 3}, v{vLane}, 3, 1")
        h(f"v_lshl_add_u32 v{vT + 2}, v{vT + 3}, 6, v{vT + 2}")
        h(f"v_add_u32 v{vSr}, s36, v{vT + 2}")
        h(f"v_xor_b32 v{vSr + 1}, 64, v{vSr}")
        h(f"s_lshl_b32 s{sT0}, s{sHw}, 4")
        h(f"v_add_u32 v{vT}, s{sT0}, v{vT}")
        h(f"v_lshlrev_b32 v{vRs}, 2, v{vT}")
        h(f"v_add_u32 v{vRs}, {RSO}, v{vRs}")
        h(f"v_and_b32 v{vT + 2}, 31, v{vT}")
        h(f"v_lshl_add_u32 v{vT + 2}, v{vT + 1}, 5, v{vT + 2}")
        h(f"v_lshrrev_b32 v{vT + 3}, 5, v{vT}")
        h(f"v_lshl_add_u32 v{vT + 2}, v{vT + 3}, 6, v{vT + 2}")
        h(f"v_lshlrev_b32 v{vXe}, 4, v{vT + 2}")
        h(f"v_add_u32 v{vXe}, {XEO}, v{vXe}")
        h(f"v_mov_b32 v{vS}, 0")
        h(f"v_mov_b32 v{vQ}, 0")
    sdone = 0
    if d2:
        stamp(h)
    added = NSLOT
    for bi, st in enumerate(BS):
        last = (BS + [NST])[bi + 1] - 1
        dr.wait(last)
        if d2 and st in (4, 10):
            stamp(h)
        h("s_barrier")
        if d2 and st in (0, 2, 4, 8, 10, 12, 14):
            stamp(h)
        if st == 0 and OPT["p1_s3"]:
            s3(7, 8)
            h(f"s_add_u32 s50, s50, {8 * 131072}")
            h("s_addc_u32 s51, s51, 0")
            s3(8, 12)
        todo = []
        if LS and st >= 4:
            while int((sdone + len(todo)) * XLEAD) <= last and sdone + len(todo) < 8 and len(todo) < 2:
                todo.append(sdone + len(todo))
            for k, c in enumerate(todo):
                h(f"ds_read_b128 {vr(XB + 8 * k, 4)}, v{vSr} offset:{c * 8192}")
                h(f"ds_read_b128 {vr(XB + 8 * k + 4, 4)}, v{vSr + 1} offset:{c * 8192}")
        while added < NST and added - NSLOT < st:
            issue(added)
            added += 1
        tgt = min(NST - 1, last + AHEAD + min(st + 1, OPT["k1_g"]))
        while dr.q and dr.q[0][0] <= tgt:
            dr.emit()
        if todo:
            h("s_waitcnt lgkmcnt(0)")
            for r in range(8 * len(todo)):
                h(f"v_dot2_f32_bf16 v{vS}, v{XB + r}, s{sOnes}, v{vS}")
                h(f"v_dot2_f32_bf16 v{vQ}, v{XB + r}, v{XB + r}, v{vQ}")
            sdone += len(todo)
            if sdone == 8:
                h("s_nop 2")
                for pat in ("quad_perm:[1,0,3,2]", "quad_perm:[2,3,0,1]"):
                    h(f"v_add_f32_dpp v{vS}, v{vS}, v{vS} {pat} row_mask:0xf bank_mask:0xf")
                    h(f"v_add_f32_dpp v{vQ}, v{vQ}, v{vQ} {pat} row_mask:0xf bank_mask:0xf")
                    h("s_nop 0")
                h(f"v_mul_f32 v{vM}, {hx(f2u(-1.0 / 512))}, v{vS}")
                h(f"v_mul_f32 v{vQ}, {hx(f2u(1.0 / 512))}, v{vQ}")
                h(f"v_fma_f32 v{vQ}, -v{vM}, v{vM}, v{vQ}")
                h(f"v_max_f32 v{vQ}, 0, v{vQ}")
                h(f"v_add_f32 v{vQ}, {hx(f2u(1e-5))}, v{vQ}")
                h(f"v_rsq_f32 v{vR}, v{vQ}")
                split_hi_lo(h, vM, XB, vT, vT + 1)
                h(f"v_cvt_pk_bf16_f32 v{XB + 1}, v{vT}, 0")
                h(f"v_mov_b32 v{XB + 2}, 0")
                h(f"v_mov_b32 v{XB + 3}, 0")
                h("s_mov_b32 exec_lo, 0x33333333")
                h("s_mov_b32 exec_hi, 0x33333333")
                h(f"ds_write_b128 v{vXe}, {vr(XB, 4)}")
                h(f"ds_write_b32 v{vRs}, v{vR}")
                h("s_mov_b64 exec, -1")
        if st <= OPT.get("k1_tout", -1) <= last:
            h(f"s_lshl_b32 s{sT0}, s{sRb}, 1")
            h(f"s_and_b32 s{sT1}, s{sHw}, 1")
            h(f"s_add_u32 s{sT0}, s{sT0}, s{sT1}")
            h(f"s_mul_i32 s{sT0}, s{sT0}, {RT}")
            h(f"s_lshl_b32 s{sT1}, s{sCg}, 13")
            h(f"s_lshl_b32 s43, s{sCg}, 12")
            h(f"s_add_u32 s43, s43, {QO}")
            h(f"s_cmp_ge_u32 s{sHw}, 2")
            h(f"s_cselect_b32 s{sT1}, s43, s{sT1}")
            h("s_cselect_b32 exec_hi, 0, -1")
            h(f"s_add_u32 s{sT0}, s{sT0}, s{sT1}")
            h(f"v_lshlrev_b32 v30, 7, v{vLane}")
            h.vm(f"buffer_load_dword v31, v30, {sr(sWS, 4)}, s{sT0} offen")
            h("s_mov_b64 exec, -1")
    assert not LS or sdone == 8
    h(f"v_mov_b32 v{vT}, {LMODE}")
    h.lg(f"ds_read_b64 {vr(vT + 2, 2)}, v{vT}")
    h.wait_all(vm=False)
    h(f"v_readfirstlane_b32 s{sMode}, v{vT + 2}")
    h(f"v_readfirstlane_b32 s{sTag}, v{vT + 3}")
    h("s_barrier")
    h.wait_all()
    if OPT.get("det") != 2:
        stamp(h)
    a = fork(a)
    a.label("L_p1_compute")

    vXrd = [3, 4, 5, 6]
    vKoff, vVoff = 20, 21
    vWrd = [22, 23, 24]
    vCw, vCr, vEr, vRl, vRr = 25, 26, 27, 28, 29
    XF = [32, 36]
    WF = [40, 52]
    CS, ONES, XE = 64, 76, 80
    RV = 84
    accQ, accK, accV = 104, 120, 136
    SQ = 152
    a(f"s_lshr_b32 s{sWr}, s{sHw}, 1")
    a(f"s_and_b32 s{sWc}, s{sHw}, 1")
    a(f"v_and_b32 v{vT}, 31, v{vLane}")
    a(f"v_lshrrev_b32 v{vT + 1}, 5, v{vLane}")
    a(f"v_bfe_u32 v{vT + 2}, v{vLane}, 1, 3")
    a(f"v_xor_b32 v{vT + 2}, v{vT + 2}, v{vT + 1}")
    a(f"v_lshlrev_b32 v{vT + 2}, 4, v{vT + 2}")
    a(f"v_lshl_add_u32 v{vT + 2}, v{vT}, 7, v{vT + 2}")
    a(f"s_lshl_b32 s{sT0}, s{sWr}, 12")
    a(f"v_add_u32 v{vXrd[0]}, s{sT0}, v{vT + 2}")
    for ss in range(1, 4):
        a(f"v_xor_b32 v{vXrd[ss]}, {ss * 32}, v{vXrd[0]}")
    a(f"v_mul_u32_u24 v{vT + 2}, 3072, v{vT + 1}")
    a(f"v_bfe_u32 v{vT + 3}, v{vLane}, 2, 2")
    a(f"v_lshl_add_u32 v{vT + 2}, v{vT + 3}, 7, v{vT + 2}")
    a(f"v_lshrrev_b32 v{vT + 3}, 1, v{vT + 3}")
    a(f"v_xor_b32 v{vT + 3}, s{sWc}, v{vT + 3}")
    a(f"v_lshl_add_u32 v{vT + 2}, v{vT + 3}, 6, v{vT + 2}")
    a(f"v_bfe_u32 v{vT + 4}, v{vLane}, 4, 1")
    a(f"v_lshl_add_u32 v{vT + 2}, v{vT + 4}, 5, v{vT + 2}")
    a(f"v_and_b32 v{vT + 3}, 3, v{vLane}")
    a(f"v_lshl_add_u32 v{vWrd[0]}, v{vT + 3}, 3, v{vT + 2}")
    wl = LdsAddr(a, vWrd)
    wl.setup(a)
    a(f"v_xor_b32 v{vT + 2}, v{vT + 4}, v{vLane}")
    a(f"v_and_b32 v{vT + 2}, 1, v{vT + 2}")
    a(f"v_cmp_eq_u32 vcc, 0, v{vT + 2}")
    a(f"v_mov_b32 v{vT + 2}, 0x3f803f80")
    a("s_nop 0")
    for r in range(4):
        a(f"v_cndmask_b32 v{ONES + r}, 0, v{vT + 2}, vcc")
    a(f"s_lshl_b32 s{sT0}, s{sWc}, 1")
    a(f"s_add_u32 s{sT1}, s{sT0}, s{sWr}")
    a(f"s_mul_i32 s{sT1}, s{sT1}, 384")
    a(f"s_add_u32 s{sT1}, s{sT1}, {CSO}")
    a(f"v_and_b32 v{vT + 2}, 1, v{vLane}")
    a(f"v_lshlrev_b32 v{vT + 2}, 6, v{vT + 2}")
    a(f"v_and_b32 v{vT + 3}, 48, v{vLane}")
    a(f"v_add3_u32 v{vCw}, v{vT + 2}, v{vT + 3}, s{sT1}")
    a(f"s_mul_i32 s{sT0}, s{sT0}, 384")
    a(f"s_add_u32 s{sT0}, s{sT0}, {CSO}")
    a(f"v_mul_u32_u24 v{vT + 2}, 384, v{vT + 1}")
    a(f"v_lshl_add_u32 v{vT + 2}, v{vT}, 2, v{vT + 2}")
    a(f"v_add_u32 v{vCr}, s{sT0}, v{vT + 2}")
    a(f"s_lshl_b32 s{sT0}, s{sHw}, 9")
    a(f"s_add_u32 s{sT0}, s{sT0}, {XEO}")
    a(f"v_lshl_add_u32 v{vEr}, v{vLane}, 3, s{sT0}")
    a(f"v_xor_b32 v31, 512, v{vEr}")
    a(f"s_lshl_b32 s{sT0}, s{sHw}, 7")
    a(f"s_add_u32 s{sT0}, s{sT0}, {RSO}")
    a(f"v_lshl_add_u32 v{vRl}, v{vT}, 2, s{sT0}")
    a(f"v_lshl_add_u32 v{vRr}, v{vT + 1}, 4, s{sT0}")
    if LS:
        a(f"s_lshl_b32 s{sT0}, s{sWr}, 10")
        a(f"s_add_u32 s{sT0}, s{sT0}, {XEO}")
        a(f"v_add_u32 v{vEr}, s{sT0}, v{vL16}")
        a(f"s_lshl_b32 s{sT0}, s{sWr}, 7")
        a(f"s_add_u32 s{sT0}, s{sT0}, {RSO}")
        a(f"v_lshl_add_u32 v{vRl}, v{vT}, 2, s{sT0}")
        a(f"v_lshl_add_u32 v{vRr}, v{vT + 1}, 4, s{sT0}")
    a(f"s_mov_b32 s{sOnes}, 0x3f803f80")
    a(f"v_mov_b32 v{SQ}, 0")
    a(f"v_mov_b32 v{SQ + 1}, 0")
    a(f"v_and_b32 v{vT + 2}, 0x33, v{vLane}")
    a(f"v_bfe_u32 v{vT + 3}, v{vLane}, 2, 1")
    a(f"v_lshl_or_b32 v{vT + 2}, v{vT + 3}, 3, v{vT + 2}")
    a(f"v_bfe_u32 v{vT + 3}, v{vLane}, 3, 1")
    a(f"v_lshl_or_b32 v{vT + 2}, v{vT + 3}, 2, v{vT + 2}")
    a(f"v_lshlrev_b32 v{vKoff}, 4, v{vT + 2}")
    a(f"v_lshlrev_b32 v{vT + 2}, 11, v{vT + 4}")
    a(f"v_lshl_add_u32 v{vT + 2}, v{vT + 1}, 8, v{vT + 2}")
    a(f"v_and_b32 v{vT + 3}, 15, v{vLane}")
    a(f"v_lshl_add_u32 v{vVoff}, v{vT + 3}, 4, v{vT + 2}")
    a(f"s_lshl_b32 s{sT0}, s{sCg}, 2")
    a(f"s_lshl_b32 s{sT1}, s{sWc}, 1")
    a(f"s_add_u32 s{sT0}, s{sT0}, s{sT1}")
    a(f"s_lshl_b32 s{sT1}, s{sRb}, 1")
    a(f"s_add_u32 s{sT1}, s{sT1}, s{sWr}")
    a(f"s_mul_i32 s60, s{sT1}, {RT}")
    a(f"s_lshl_b32 s46, s{sT0}, 10")
    a("s_add_u32 s46, s46, s60")
    a(f"s_add_u32 s46, s46, {QO}")
    a("s_add_u32 s47, s46, 1024")
    a(f"s_lshl_b32 s37, s{sT0}, 11")
    a("s_add_u32 s60, s60, s37")
    a(f"s_lshl_b32 s37, s{sT1}, 11")
    a(f"s_mul_i32 s36, s{sT0}, {HS()}")
    a(f"s_add_u32 s36, s36, s37")
    a(f"s_add_u32 s36, s36, {KVG}")
    a(f"s_add_u32 s37, s36, {HS()}")
    a(f"v_mul_u32_u24 v156, {HS() - 2048}, v{vT + 4}")
    a(f"v_add_u32 v156, v156, v{vVoff}")
    for r in range(12):
        a(f"v_mov_b32 v{CS + r}, 0")
    a("s_waitcnt lgkmcnt(0)")
    ws_srd(a)
    a(f"s_lshl_b32 s{sT0}, s{sCg}, 1")
    a(f"s_add_u32 s{sT0}, s{sT0}, s{sWc}")
    a(f"s_and_b32 s{sT1}, s{sRb}, 3")
    a(f"s_lshl_b32 s{sT1}, s{sT1}, 1")
    a(f"s_add_u32 s{sT1}, s{sT1}, s{sWr}")
    a(f"s_lshl_b32 s{sT1}, s{sT1}, 2")
    a("s_and_b32 s38, s2, 7")
    a("s_lshl_b32 s48, s38, 9")
    a(f"s_lshl_b32 s39, s{sT0}, 5")
    a("s_add_u32 s48, s48, s39")
    a(f"s_add_u32 s48, s48, s{sT1}")
    a(f"s_add_u32 s48, s48, {FL1}")
    a(f"s_lshl_b32 s49, s{sT0}, 10")
    a("s_lshl_b32 s39, s38, 7")
    a("s_add_u32 s49, s49, s39")
    a(f"s_add_u32 s49, s49, s{sT1}")
    a(f"s_add_u32 s49, s49, {FG1}")
    a("s_mov_b32 s38, s60")
    a("s_add_u32 s39, s60, 2048")
    a(f"v_mov_b32 v30, {LMODE}")

    def reads(s):
        st, ss = divmod(s, 2)
        ops = [f"ds_read_b128 {vr(XF[s & 1], 4)}, v{vXrd[s & 3]} offset:{(s >> 2) * 8192}"]
        for seg in range(3):
            for half in range(2):
                reg, off = wl.at(WBASE + (st % NSLOT) * SLOT + ss * 6144 + seg * 1024 + half * 512)
                ops.append(f"ds_read_b64_tr_b16 {vr(WF[s & 1] + 4 * seg + 2 * half, 2)}, {reg} offset:{off}")
        return ops

    rt = {}

    def emit_reads(b, s, lo, hi):
        ops = reads(s)
        for k in range(lo, min(hi, 7)):
            rt[(s, k)] = b.lg(ops[k])

    a("s_barrier")
    if OPT.get("det") != 4:
        stamp(a)
    emit_reads(a, 0, 0, 7)
    a(f"s_cmp_lg_u32 s{sWr}, s{sWc}")
    a("s_cbranch_scc1 L_p1_odd")
    rt0 = dict(rt)
    odd = fork(a)
    odd.label("L_p1_odd")
    acc = [accQ, accK, accV]

    def mm(b, j, w, x, first=False):
        c = "0" if first else vr(acc[j], 16)
        ops = (vr(w, 4), vr(x, 4)) if j < 2 else (vr(x, 4), vr(w, 4))
        b(f"v_mfma_f32_32x32x16_bf16 {vr(acc[j], 16)}, {ops[0]}, {ops[1]}, {c}")

    def csum(b, s, j):
        b(f"v_mfma_f32_16x16x32_bf16 {vr(CS + 4 * j, 4)}, {vr(WF[s & 1] + 4 * j, 4)}, {vr(ONES, 4)}, {vr(CS + 4 * j, 4)}")

    def stats(b, s):
        for r in range(0 if LS else 4):
            b(f"v_dot2_f32_bf16 v{SQ}, v{XF[s & 1] + r}, s{sOnes}, v{SQ}")
            b(f"v_dot2_f32_bf16 v{SQ + 1}, v{XF[s & 1] + r}, v{XF[s & 1] + r}, v{SQ + 1}")

    for par, b in ((0, a), (1, odd)):
        rt.clear()
        rt.update(rt0)
        for s in range(31):
            if s % 2 == 1 and (s + 1) // 2 in BS:
                b.wait(lg=rt[(s, 6)])
                b("s_barrier")
            cutp = [0, 3, 5, 7]
            for j in range(3):
                b.wait(lg=rt[(s, 2 + 2 * j)])
                if s % 2 == par:
                    csum(b, s, j)
                mm(b, j, WF[s & 1] + 4 * j, XF[s & 1], s == 0)
                emit_reads(b, s + 1, cutp[j], cutp[j + 1])
            if s % 2 != par:
                stats(b, s)
            if s == 27:
                b.lg("ds_read_b64 v[102:103], v30")
        b.wait_all(vm=False)
        if par == 1:
            for j in range(3):
                csum(b, 31, j)
        else:
            stats(b, 31)
    odd("s_branch L_p1_join")
    a.label("L_p1_join")
    mm(a, 0, WF[1], XF[1])
    a(f"v_readfirstlane_b32 s{sMode}, v102")
    a(f"v_readfirstlane_b32 s{sTag}, v103")
    if LS:
        a("s_nop 3")
    else:
        a(f"v_mov_b32 v{SQ + 2}, v{SQ}")
        a(f"v_mov_b32 v{SQ + 3}, v{SQ + 1}")
        a(f"v_mov_b32 v{XE + 2}, 0")
        a(f"v_permlane32_swap_b32 v{SQ}, v{SQ + 2}")
        a(f"v_permlane32_swap_b32 v{SQ + 1}, v{SQ + 3}")
        a(f"v_mov_b32 v{XE + 3}, 0")
        a(f"v_add_f32 v{SQ}, v{SQ}, v{SQ + 2}")
        a(f"v_add_f32 v{SQ + 1}, v{SQ + 1}, v{SQ + 3}")
        a.lg(f"ds_write_b64 v{vEr}, {vr(SQ, 2)}")
    a("s_mov_b32 exec_lo, 0x00030003")
    a("s_mov_b32 exec_hi, 0x00030003")
    for j in range(3):
        a.lg(f"ds_write_b128 v{vCw}, {vr(CS + 4 * j, 4)} offset:{j * 128}")
    a("s_mov_b64 exec, -1")
    mm(a, 1, WF[1] + 4, XF[1])
    for j in range(3):
        a(f"v_mov_b32 v{WF[0] + 4 * j + 2}, 0")
        a(f"v_mov_b32 v{WF[0] + 4 * j + 3}, 0")
    a.wait_all(vm=False)
    a("s_barrier")
    if LS:
        a.lg(f"ds_read_b128 {vr(XE, 4)}, v{vEr}")
        a.lg(f"ds_read_b32 v100, v{vRl}")
    else:
        ts = a.lg(f"ds_read_b64 {vr(SQ + 2, 2)}, v31")
    for j in range(3):
        rt[("c", j)] = a.lg(f"ds_read_b32 v{vT + 4 + j}, v{vCr} offset:{j * 128}")
    mm(a, 2, WF[1] + 8, XF[1])
    if OPT.get("det") != 4:
        stamp(a)
    if not LS:
        a.wait(lg=ts)
        a(f"v_add_f32 v{SQ}, v{SQ}, v{SQ + 2}")
        a(f"v_add_f32 v{SQ + 1}, v{SQ + 1}, v{SQ + 3}")
        a(f"v_mul_f32 v{SQ}, {hx(f2u(-1.0 / 512))}, v{SQ}")
        a(f"v_mul_f32 v{SQ + 1}, {hx(f2u(1.0 / 512))}, v{SQ + 1}")
        split_hi_lo(a, SQ, XE, vT, vT + 1)
        a(f"v_fma_f32 v{SQ + 1}, -v{SQ}, v{SQ}, v{SQ + 1}")
        a(f"v_cvt_pk_bf16_f32 v{XE + 1}, v{vT}, 0")
        a(f"v_max_f32 v{SQ + 1}, 0, v{SQ + 1}")
        a(f"v_add_f32 v{SQ + 1}, {hx(f2u(1e-5))}, v{SQ + 1}")
        a(f"v_rsq_f32 v100, v{SQ + 1}")
    for j in range(3):
        w = WF[0] + 4 * j
        a.wait(lg=rt[("c", j)])
        a(f"v_cvt_pk_bf16_f32 v{w + 1}, v{vT + 4 + j}, 0")
        a(f"v_lshlrev_b32 v{vT}, 16, v{w + 1}")
        a(f"v_sub_f32 v{vT}, v{vT + 4 + j}, v{vT}")
        a(f"v_cvt_pk_bf16_f32 v{w}, v{vT + 4 + j}, v{vT}")
        if j == 0 and not LS:
            a.lg(f"ds_write_b32 v{vRl}, v100")
    for j in range(3):
        mm(a, j, WF[0] + 4 * j, XE)
    a(f"v_mul_f32 v101, {hx(f2u(0.25 * LOG2E))}, v100")
    for g in range(4):
        trv = a.lg(f"ds_read_b128 {vr(RV + 4 * g, 4)}, v{vRr} offset:{g * 32}")
    a("s_nop 4")
    P = 32
    for r in range(0, 16, 2):
        a(f"v_pk_mul_f32 {vr(accQ + r, 2)}, {vr(accQ + r, 2)}, v[100:101] op_sel:[0,1] op_sel_hi:[1,1]")
    for i in range(8):
        a(f"v_cvt_pk_bf16_f32 v{P + i}, v{accQ + 2 * i}, v{accQ + 2 * i + 1}")
    stores(a, [f"buffer_store_dwordx4 {vr(P, 4)}, v{vL16}, {sr(sWS, 4)}, s46 offen",
               f"buffer_store_dwordx4 {vr(P + 4, 4)}, v{vL16}, {sr(sWS, 4)}, s47 offen"])
    for r in range(0, 16, 2):
        a(f"v_pk_mul_f32 {vr(accK + r, 2)}, {vr(accK + r, 2)}, v[100:101] op_sel_hi:[1,0]")
    for i in range(8):
        a(f"v_cvt_pk_bf16_f32 v{P + 8 + i}, v{accK + 2 * i}, v{accK + 2 * i + 1}")
    stores(a, [f"buffer_store_dwordx4 {vr(P + 8, 4)}, v{vKoff}, {sr(sWS, 4)}, s38 offen",
               f"buffer_store_dwordx4 {vr(P + 12, 4)}, v{vKoff}, {sr(sWS, 4)}, s39 offen"])
    a.wait(lg=trv)
    for r in range(0, 16, 2):
        a(f"v_pk_mul_f32 {vr(accV + r, 2)}, {vr(accV + r, 2)}, {vr(RV + r, 2)}")
    for i in range(8):
        a(f"v_cvt_pk_bf16_f32 v{P + 16 + i}, v{accV + 2 * i}, v{accV + 2 * i + 1}")
    stores(a, [f"buffer_store_dwordx4 {vr(P + 16, 4)}, v{vVoff}, {sr(sWS, 4)}, s38 offen offset:1024",
               f"buffer_store_dwordx4 {vr(P + 20, 4)}, v{vVoff}, {sr(sWS, 4)}, s38 offen offset:1536"])
    loc = a.vm_issued - 1
    a.vm(f"buffer_store_dwordx4 {vr(P + 8, 4)}, v{vKoff}, {sr(sWS, 4)}, s36 offen {GM()}")
    a.vm(f"buffer_store_dwordx4 {vr(P + 12, 4)}, v{vKoff}, {sr(sWS, 4)}, s37 offen {GM()}")
    a.vm(f"buffer_store_dwordx4 {vr(P + 16, 4)}, v156, {sr(sWS, 4)}, s36 offen offset:1024 {GM()}")
    a.vm(f"buffer_store_dwordx4 {vr(P + 20, 4)}, v156, {sr(sWS, 4)}, s36 offen offset:1536 {GM()}")
    stamp(a)
    a(f"v_mov_b32 v{vT}, 0")
    a(f"v_mov_b32 v{vT + 1}, s{sTag}")
    a("s_mov_b64 exec, 1")
    if OPT["p1_cnt"]:
        a.wait(vm=loc)
    else:
        a.wait_all(lg=False)
    stores(a, [f"buffer_store_dword v{vT + 1}, v{vT}, {sr(sWS, 4)}, s48 offen"])
    if OPT.get("det") == 4:
        stamp(a)
    a("s_mov_b64 exec, -1")
    return a, odd, h, x


def phase2(a, l, h):
    sHead, sQb, sKh, sQs = 25, 26, 27, 28
    sVm = 34
    vKrd, vVrd, vIdx, vXw, vXr = 3, 4, 5, 6, 7
    Qf = [8, 12]
    Kf, Vf = 16, 32
    S = [64, 80]
    O = [96, 112]
    NEG = 128
    T = 144
    XCH = 131072
    BARS, CB = [[6, 12, 28], {2: 1, 4: 3}] if OPT["p2_sched"] == 0 else [[6, 14, 22, 36], {2: 1, 3: 2, 5: 4}]
    SYN = XCH + 7 * 3072 + 2048 + 4
    h(f"v_mov_b32 v22, {SYN}")
    h("v_mov_b32 v23, 0")
    for off in (0, 4, 8, 32, 16, 20, 24, 48):
        h(f"ds_write_b32 v22, v23 offset:{off}")

    def ready(half, n):
        h(f"v_mov_b32 v23, {n}")
        h(f"ds_write_b32 v22, v23 offset:{16 * half}")

    wl_n = [0]

    def wait_lds(off, n):
        wl_n[0] += 1
        k = wl_n[0]
        h("s_mov_b32 s58, 0x100000")
        h.label(f"L_prog{k}")
        h(f"ds_read_b32 v24, v22 offset:{off}")
        h("s_sub_u32 s58, s58, 1")
        h("s_waitcnt lgkmcnt(0)")
        h("v_readfirstlane_b32 s37, v24")
        h("s_cmp_eq_u32 s58, 0")
        h(f"s_cbranch_scc1 L_prog{k}_x")
        h(f"s_cmp_ge_u32 s37, {n}")
        h(f"s_cbranch_scc1 L_prog{k}_x")
        h(f"s_sleep {OPT['aux_sl']}")
        h(f"s_branch L_prog{k}")
        h.label(f"L_prog{k}_x")

    def late(k):
        def f(label):
            h(f"ds_read_b32 v24, v22 offset:{(8 if k == 0 else 32) + 16}")
            h("s_waitcnt lgkmcnt(0)")
            h("v_readfirstlane_b32 s37, v24")
            h("s_nop 0")
            h("s_cmp_ge_u32 s37, 4")
            h(f"s_cbranch_scc1 {label}")
        return f if OPT["adapt"] else None

    def wait_prog(k):
        for half in range(2):
            wait_lds((8 if k == 0 else 32) + 16 * half, 4)

    h(f"s_lshr_b32 s{sHead}, s2, 3")
    h(f"s_mul_i32 s33, s{sHead}, {HS()}")
    h(f"s_add_u32 s33, s33, {KVG}")
    h(f"s_lshr_b32 s61, s{sHead}, 1")
    h("s_lshl_b32 s61, s61, 10")
    h(f"s_add_u32 s61, s61, {FG1}")
    h(f"v_lshrrev_b32 v6, 3, v{vLane}")
    h("v_lshlrev_b32 v6, 7, v6")
    h(f"v_and_b32 v7, 7, v{vLane}")
    h("v_lshl_add_u32 v6, v7, 2, v6")
    h("s_mov_b64 s[62:63], 0")
    h("s_mov_b32 s59, 0x40000")
    h("s_waitcnt lgkmcnt(0)")
    h("s_barrier")
    h.nostamp = OPT.get("det") != 3
    stamp(h)
    items = [(0, 1, None), (1, 1, None), (0, 2, None), (0, 3, (0, 1)), (0, 4, (0, 2)), (1, 2, (0, 3)), (1, 3, (1, 1)),
             (1, 4, (1, 2)), (0, 5, None), (0, 6, None), (1, 5, None), (0, 7, None), (1, 6, None), (1, 7, None), (0, 8, None)]
    if OPT["kv_gate"] == 0:
        items = [(hf, c, None) for c in range(1, 8) for hf in range(2)] + [(0, 8, None)]
    if OPT["kv_gate"] == 3:
        items = [(0, 1, None), (1, 1, None), (0, 2, None), (1, 2, None), (0, 3, (0, 2)), (0, 4, None), (1, 3, (0, 3)), (1, 4, None),
                 (0, 5, (1, 2)), (0, 6, None), (1, 5, None), (0, 7, None), (1, 6, None), (1, 7, None), (0, 8, None)]
    if OPT["kv_gate"] == 4:
        items = [(0, 1, None), (1, 1, None), (0, 2, None), (0, 3, (0, 1)), (1, 2, None), (0, 4, (0, 2)), (1, 3, None), (1, 4, None),
                 (0, 5, None), (0, 6, None), (1, 5, None), (0, 7, None), (1, 6, None), (1, 7, None), (0, 8, None)]
    if OPT["kv_gate"] == 2:
        items = [(hf, c, None) for hf, c, _ in items]
    pend = []

    def flush(keep):
        while len(pend) > keep:
            hf, c, tok = pend.pop(0)
            h.wait(vm=tok)
            ready(hf, c)

    for n, (half, c, gate) in enumerate(items):
        if gate:
            flush(0)
            wait_lds(4 + 16 * gate[0], gate[1])
        if OPT["p2_ord"] and c < 8:
            h("s_and_b32 s36, s2, 7")
            h(f"s_cmp_le_u32 s36, {c - 1}")
            h(f"s_cselect_b32 s36, {8 * c}, {8 * (c - 1)}")
        else:
            h(f"s_add_u32 s36, s2, {c}")
            h("s_and_b32 s36, s36, 7")
            h("s_lshl_b32 s36, s36, 3")
        if half == 0:
            h("s_bitcmp1_b64 s[62:63], s36")
            h(f"s_cbranch_scc1 L_g1_have{c}")
            h.label(f"L_g1_poll{c}")
            h(f"buffer_load_dword v7, v6, {sr(sWS, 4)}, s61 offen sc1")
            h("s_sub_u32 s59, s59, 1")
            h("s_waitcnt vmcnt(0)")
            for hf, cc, _ in pend:
                ready(hf, cc)
            h(f"v_cmp_eq_u32 vcc, s{sTag}, v7")
            h("s_cmp_eq_u32 s59, 0")
            h("s_cselect_b64 s[62:63], -1, vcc")
            h("s_cselect_b32 s59, 1, s59")
            for sh in (1, 2, 4):
                h(f"s_lshr_b64 s[34:35], s[62:63], {sh}")
                h("s_and_b64 s[62:63], s[62:63], s[34:35]")
            h("s_bitcmp1_b64 s[62:63], s36")
            h(f"s_cbranch_scc0 L_g1_poll{c}")
            h.label(f"L_g1_have{c}")
        if n in (0, 3, 8, 14):
            stamp(h)
        if c == 8:
            break
        h("s_lshl_b32 s36, s36, 11")
        h("s_add_u32 s36, s36, s33")
        for q in range(2):
            h(f"s_mov_b32 m0, {half * 65536 + c * 8192 + q * 4096}")
            h(f"s_add_u32 s37, s36, {half * 8192 + q * 4096}")
            for i in range(4):
                tok = h.vm(f"buffer_load_dwordx4 v{vL16}, {sr(sWS, 4)}, s37 offen offset:{i * 1024} sc1 lds")
        pend.append((half, c, tok))
        if n == OPT["t_at"]:
            touch_setup(h)
            touch_weights(h)
        flush(OPT['kv_fl'])
    if OPT["t_at"] > 20:
        touch_setup(h)
    h(f"v_lshrrev_b32 v8, 3, v{vLane}")
    h(f"v_and_b32 v9, 7, v{vLane}")
    h(f"v_lshrrev_b32 v10, 2, v{vLane}")
    h("v_and_b32 v10, 4, v10")
    h("v_xor_b32 v10, v10, v9")
    h("v_lshlrev_b32 v10, 4, v10")
    h("v_lshl_add_u32 v10, v8, 10, v10")
    h("v_lshrrev_b32 v11, 1, v8")
    h("v_xor_b32 v11, v11, v9")
    h("v_lshlrev_b32 v11, 4, v11")
    h("v_lshl_add_u32 v11, v8, 10, v11")
    h("v_xor_b32 v12, 64, v11")
    h(f"v_and_b32 v13, 2, v{vLane}")
    h("v_lshlrev_b32 v13, 5, v13")
    h("v_sub_u32 v13, 32, v13")
    h("s_lshr_b32 s61, s2, 4")
    h("s_mul_i32 s61, s61, 192")
    for i in range(3):
        h(f"v_add_u32 v14, {64 * i}, v{vLane}")
        h("v_mul_u32_u24 v14, 171, v14")
        h("v_lshrrev_b32 v14, 11, v14")
        h(f"v_mul_u32_u24 v14, {2752 - 192}, v14")
        h(f"v_add3_u32 v{16 + i}, v{vL16}, v14, s61")
        h(f"v_add_u32 v{19 + i}, v{16 + i}, v13")
    h("s_bfe_u32 s60, s2, 0x30003")
    h("s_lshl_b32 s60, s60, 7")
    flush(0)
    stamp(h)
    if OPT["t_at"] > 20:
        touch_weights(h, late(0))
    h("s_and_b32 s36, s2, 7")
    h("s_lshl_b32 s36, s36, 3")
    h(f"s_lshr_b32 s{sT1}, s{sT0}, 2")
    h(f"s_add_u32 s36, s36, s{sT1}")
    h(f"s_mul_i32 s36, s36, {RT}")
    h(f"s_and_b32 s{sT1}, s{sT0}, 3")
    h(f"s_mul_i32 s{sT1}, s{sT1}, {52 * 128}")
    h(f"s_add_u32 s36, s36, s{sT1}")
    h(f"s_add_u32 s36, s36, {96 * 1024}")
    h("s_mov_b32 exec_hi, 0xfffff")
    h.vm(f"buffer_load_dword v5, v3, {sr(sWS, 4)}, s36 offen")
    h(f"s_lshl_b32 s{sT1}, s{sT0}, 11")
    h(f"v_add_u32 v4, s{sT1}, v3")
    h("s_mov_b64 exec, 0xffff")
    code_prefetch(h, "L_p2_tail", 38, 4, 5, "p2")
    h("s_mov_b64 exec, -1")
    stamp(h)
    wait_prog(0)
    stamp(h)
    for half in range(2):
        h(f"s_mov_b32 m0, {half * 65536}")
        h(f"s_add_u32 s36, s60, {half * 32 * 8192}")
        h("s_mov_b32 s37, 32")
        h.label(f"L_pre_wo{half}")
        h(f"buffer_load_dwordx4 v10, {sr(16, 4)}, s36 offen lds")
        h("s_add_u32 m0, m0, 1024")
        h("s_add_u32 s36, s36, 8192")
        h("s_sub_u32 s37, s37, 1")
        h("s_cmp_lg_u32 s37, 0")
        h(f"s_cbranch_scc1 L_pre_wo{half}")
        h("s_waitcnt vmcnt(16)")
    h("s_lshr_b32 s36, s2, 6")
    h("s_lshl_b32 s36, s36, 16")
    h("s_add_u32 s36, s36, s60")
    for i in range(8):
        h(f"s_mov_b32 m0, {RES3 + i * 1024}")
        h(f"s_add_u32 s37, s36, {i * 8192}")
        h(f"buffer_load_dwordx4 v{11 + (i & 1)}, {sr(44, 4)}, s37 offen lds")
    h("s_waitcnt vmcnt(16)")
    if OPT["retouch"]:
        if OPT["adapt"]:
            late(1)("L_skip_rt")
        h("s_and_b32 s36, s2, 7")
        h("s_lshl_b32 s36, s36, 3")
        h(f"s_lshr_b32 s{sT1}, s{sT0}, 2")
        h(f"s_add_u32 s36, s36, s{sT1}")
        h(f"s_mul_i32 s36, s36, {RT}")
        h(f"s_and_b32 s{sT1}, s{sT0}, 3")
        h(f"s_lshl_b32 s{sT1}, s{sT1}, 13")
        h(f"s_add_u32 s36, s36, s{sT1}")
        h(f"s_add_u32 s37, s36, {QO}")
        h(f"buffer_load_dword v5, v3, {sr(sWS, 4)}, s37 offen")
        h(f"buffer_load_dword v5, v3, {sr(sWS, 4)}, s36 offen")
        if OPT["retouch"] > 1:
            h(f"s_add_u32 s37, s36, {GO}")
            h(f"buffer_load_dword v5, v3, {sr(sWS, 4)}, s37 offen")
        h.label("L_skip_rt")
    h("s_cmp_ge_u32 s2, 240")
    h("s_cbranch_scc1 L_pre_end")
    stamp(h)
    wait_prog(1)
    stamp(h)
    for st in range(4):
        for g2 in range(2):
            for mat in range(2):
                h(f"s_mov_b32 m0, {WS4[st] + (g2 * 2 + mat) * 3072}")
                h(f"s_mov_b32 s36, {(st * 32 + g2 * 16) * 2752}")
                for i in range(3):
                    h(f"buffer_load_dwordx4 v{16 + 3 * mat + i}, {sr(20 if mat == 0 else 48, 4)}, s36 offen offset:{i * 1024} lds")
        h("s_waitcnt vmcnt(40)")
    stamp(h)
    h.label("L_pre_end")
    h("s_waitcnt vmcnt(0)")
    if OPT.get("det") == 3:
        h(f"s_mov_b32 s{sWave}, 4")
        stamp_flush(h)
    h("s_endpgm")

    def init(b):
        b(f"s_lshr_b32 s{sHead}, s2, 3")
        b(f"s_and_b32 s{sQb}, s2, 7")
        b(f"s_lshr_b32 s{sKh}, s{sWave}, 2")
        b(f"s_and_b32 s{sQs}, s{sWave}, 3")
        b(f"v_and_b32 v{T}, 27, v{vLane}")
        b(f"v_cmp_eq_u32 vcc, 16, v{T}")
        b(f"v_mov_b32 v{T}, 0x3f803f80")
        b(f"v_mov_b32 v{vIdx}, 0xdddd")
        for r in range(32):
            b(f"v_cndmask_b32 v{Vf + r}, 0, v{T}, vcc")
        b(f"s_mov_b32 s{sVm}, 0x0000ffff")
        b(f"s_mov_b32 s{sVm + 1}, 0x0000ffff")
        b(f"s_lshl_b32 s{sT0}, s{sKh}, 16")
        b(f"v_add_u32 v{vKrd}, s{sT0}, v{vL16}")
        b(f"v_lshrrev_b32 v{T}, 5, v{vLane}")
        b(f"v_and_b32 v{T + 1}, 15, v{vLane}")
        b(f"v_lshlrev_b32 v{T + 1}, 4, v{T + 1}")
        b(f"v_lshl_add_u32 v{T}, v{T}, 8, v{T + 1}")
        b(f"v_add_u32 v{vVrd}, s{sT0}, v{T}")
        b(f"s_mul_i32 s{sT0}, s{sWave}, 3072")
        b(f"s_add_u32 s{sT0}, s{sT0}, {XCH}")
        b(f"v_add_u32 v{vXw}, s{sT0}, v{vL16}")
        b(f"s_xor_b32 s{sT1}, s{sWave}, 4")
        b(f"s_mul_i32 s{sT0}, s{sT1}, 3072")
        b(f"s_add_u32 s{sT0}, s{sT0}, {XCH}")
        b(f"v_add_u32 v{vXr}, s{sT0}, v{vL16}")
        b(f"s_lshl_b32 s{sT0}, s{sQs}, 1")
        b(f"s_add_u32 s{sT0}, s{sT0}, s{sKh}")
        b(f"s_lshl_b32 s{sT0}, s{sT0}, 10")
        b(f"s_add_u32 s{sT0}, s{sT0}, {XCH}")
        b(f"v_add_u32 v{T + 2}, s{sT0}, v{vL16}")
        b(f"v_xor_b32 v{T + 3}, 1024, v{T + 2}")
        b(f"s_lshl_b32 s{sT0}, s{sKh}, 4")
        b(f"s_add_u32 s{sT0}, s{sT0}, {SYN}")
        b(f"v_mov_b32 v{T + 6}, s{sT0}")
        b(f"v_mov_b32 v{T + 7}, 1")
        for c in range(2):
            for r in range(16):
                b(f"v_mov_b32 v{O[c] + r}, 0")
        b(f"s_lshl_b32 s57, s{sQb}, 2")
        b(f"s_add_u32 s57, s57, s{sQs}")
        b(f"s_lshl_b32 s55, s57, 8")
        b(f"s_lshl_b32 s{sT1}, s{sHead}, 1")
        b(f"s_add_u32 s{sT1}, s{sT1}, s{sKh}")
        b(f"s_lshl_b32 s{sT1}, s{sT1}, 2")
        b(f"s_add_u32 s55, s55, s{sT1}")
        b(f"s_add_u32 s55, s55, {F2}")
        b(f"s_lshl_b32 s57, s57, 1")
        b(f"s_add_u32 s57, s57, s{sKh}")
        b(f"s_mul_i32 s57, s57, {RT}")
        b(f"s_lshl_b32 s{sT1}, s{sHead}, 10")
        b(f"s_add_u32 s57, s57, s{sT1}")
        b(f"s_add_u32 s57, s57, {QO}")

    init(l)
    l(f"s_lshl_b32 s40, s{sQb}, 9")
    l(f"s_lshr_b32 s{sT0}, s{sHead}, 1")
    l(f"s_lshl_b32 s{sT0}, s{sT0}, 5")
    l(f"s_add_u32 s40, s40, s{sT0}")
    l(f"s_add_u32 s40, s40, {FL1}")
    l(f"s_lshl_b32 s36, s{sQb}, 2")
    l(f"s_add_u32 s36, s36, s{sQs}")
    l(f"s_mul_i32 s36, s36, {2 * RT}")
    l(f"s_lshl_b32 s{sT0}, s{sHead}, 10")
    l(f"s_add_u32 s37, s36, s{sT0}")
    l(f"s_add_u32 s36, s37, s{sT0}")
    l(f"s_add_u32 s37, s37, {QO}")
    l(f"s_add_u32 s42, s36, {RT - 2048}")
    l(f"s_add_u32 s43, s37, {RT - 1024}")
    l(f"s_lshr_b32 s38, s{sQs}, 1")
    l("s_lshl_b32 s38, s38, 16")
    l(f"s_and_b32 s{sT0}, s{sQs}, 1")
    l(f"s_lshl_b32 s{sT0}, s{sT0}, 12")
    l(f"s_add_u32 s38, s38, s{sT0}")
    l(f"s_lshl_b32 s39, s{sQs}, 11")
    l(f"s_add_u32 s39, s39, {XCH}")
    l(f"v_lshlrev_b32 v{T + 4}, 2, v{vLane}")
    l("s_mov_b32 s59, 0x40000")
    l("s_mov_b64 exec, 0xff")
    l.label("L_poll_l1")
    l(f"buffer_load_dword v{T + 5}, v{T + 4}, {sr(sWS, 4)}, s40 offen sc1")
    l("s_sub_u32 s59, s59, 1")
    l.wait_all(lg=False)
    l(f"v_cmp_ne_u32 vcc, s{sTag}, v{T + 5}")
    l("s_cmp_eq_u32 s59, 0")
    l("s_cbranch_scc1 L_poll_l1_x")
    l("s_cbranch_vccnz L_poll_l1")
    l.label("L_poll_l1_x")
    if OPT.get("det") != 2:
        stamp(l)
    l("s_mov_b64 exec, -1")
    l("s_mov_b32 m0, s39")
    l("s_nop 0")
    for i in range(2):
        l.vm(f"buffer_load_dwordx4 v{vL16}, {sr(sWS, 4)}, s{(37, 43)[i]} offen offset:{i * 1024} sc1 lds")
    l("s_mov_b32 m0, s38")
    l("s_nop 0")
    for i in range(4):
        l.vm(f"buffer_load_dwordx4 v{vL16}, {sr(sWS, 4)}, s{(36, 42)[i // 2]} offen offset:{i * 1024} sc1 lds")
    l.wait_all()
    if OPT.get("det") != 2:
        stamp(l)
    l("s_branch L_p2_b0")
    init(a)
    a(f"v_mov_b32 v{T + 4}, 0")
    a(f"v_mov_b32 v{T + 5}, s{sTag}")

    def gflag():
        a.wait_all(lg=False)
        a("s_mov_b64 exec, 1")
        a.vm(f"buffer_store_dword v{T + 5}, v{T + 4}, {sr(sWS, 4)}, s49 offen sc1")
        a("s_mov_b64 exec, -1")

    if not OPT["p2_defer"]:
        gflag()
    if OPT.get("det") == 4:
        stamp(a)
    a.label("L_p2_b0")

    def emit_pair(p, extra=()):
        for t in (2 * p, 2 * p + 1):
            a.lg(f"ds_read_b128 {vr(Kf + 4 * (t & 3), 4)}, v{vKrd} offset:{t * 2048}")
        a(f"s_mov_b64 exec, {sr(sVm, 2)}")
        for t in (2 * p, 2 * p + 1):
            a.lg(f"ds_read_b128 {vr(Vf + 8 * (t & 3), 4)}, v{vVrd} offset:{t * 2048 + 1024}")
            tok = a.lg(f"ds_read_b128 {vr(Vf + 8 * (t & 3) + 4, 4)}, v{vVrd} offset:{t * 2048 + 1536}")
        if extra:
            a("s_mov_b64 exec, 1")
            for e in extra:
                a.lg(e)
        a("s_mov_b64 exec, -1")
        return tok

    def qk(u):
        t, c = divmod(u, 2)
        return f"v_mfma_f32_32x32x16_bf16 {vr(S[u & 1], 16)}, {vr(Kf + 4 * (t & 3), 4)}, {vr(Qf[1 - c], 4)}, 0"

    def pv(u, i):
        t, c = divmod(u, 2)
        return (f"v_smfmac_f32_32x32x32_bf16 {vr(O[1 - c], 16)}, {vr(Vf + 8 * (t & 3) + 4 * i, 4)}, "
                f"{vr(S[u & 1] + 8 * i, 8)}, v{vIdx}")

    NU = 64
    PRIO = [{0: 2, 29: 1, 53: 0}, {0: 2, 29: 1, 60: 0}, {0: 3, 29: 2, 53: 1, 61: 0}][OPT["p2_pr"]]
    rtok = {}

    def need(u, n):
        a.wait(lg=rtok[u])
        a.label(f"L_rdy{u}")
        a(f"v_readfirstlane_b32 s36, v{T + 8}")
        a("s_nop 0")
        a(f"s_cmp_ge_u32 s36, {n}")
        a(f"s_cbranch_scc0 L_rdy{u}_spin")
        sp.label(f"L_rdy{u}_spin")
        sp("s_sleep 2")
        sp(f"ds_read_b32 v{T + 8}, v{T + 6}")
        sp("s_sub_u32 s59, s59, 1")
        sp("s_waitcnt lgkmcnt(0)")
        sp("s_cmp_lg_u32 s59, 0")
        sp(f"s_cbranch_scc1 L_rdy{u}")
        sp("s_mov_b32 s59, 1")
        sp(f"v_mov_b32 v{T + 8}, 7")
        sp("s_nop 0")
        sp(f"s_branch L_rdy{u}")

    sp = Asm()
    a("s_mov_b32 s59, 0x100000")
    a("s_barrier")
    stamp(a)
    a.lg(f"ds_read_b128 {vr(Qf[1], 4)}, v{T + 3}")
    a.lg(f"ds_read_b128 {vr(Qf[0], 4)}, v{T + 2}")
    ptok = {0: emit_pair(0)}
    a.wait(lg=ptok[0] - 5)
    a(qk(0))
    if OPT["p2_defer"]:
        a(f"s_cmp_lg_u32 s{sKh}, 0")
        a("s_cbranch_scc1 L_p2_nogf")
        gflag()
        a.label("L_p2_nogf")
    a.wait(lg=ptok[0])
    a("s_nop 9")
    for u in range(NU):
        X = S[u & 1]
        p, pu = divmod(u, 4)
        if u in PRIO:
            a(f"s_setprio {PRIO[u]}")
        ex = [f"v_exp_f32 v{X + i}, v{X + i}" for i in range(16)]
        a(ex[0]); a(ex[1])
        if u > 0:
            a(pv(u - 1, 1))
        a(ex[2]); a(ex[3]); a(ex[4])
        if u + 1 < NU:
            if pu == 3:
                a.wait(lg=ptok[p + 1])
            a(qk(u + 1))
        late = p + 1 == 2
        if p + 1 < 16 and pu == (2 if late else 0):
            if (p + 1) % 2 == 0:
                need(u, (p + 1) // 2)
            extra = []
            if u in (28, 52):
                extra.append(f"ds_add_u32 v{T + 6}, v{T + 7} offset:{8 if u == 28 else 32}")
            if (p + 1) % 2 == 1 and (p + 2) // 2 <= 3 and OPT["kv_gate"] in (1, 3, 4):
                a(f"v_mov_b32 v{T + 9}, {(p + 2) // 2}")
                extra.append(f"ds_max_u32 v{T + 6}, v{T + 9} offset:4")
            ptok[p + 1] = emit_pair(p + 1, extra)
        nu = u + 1
        if nu < NU and (nu // 4 + 1) % 2 == 0 and nu // 4 + 1 < 16 and nu % 4 == (2 if nu // 4 + 1 == 2 else 0):
            rtok[nu] = a.lg(f"ds_read_b32 v{T + 8}, v{T + 6}")
        for i in range(5, 10):
            a(ex[i])
        a(pv(u, 0))
        for i in range(10, 16):
            a(ex[i])
            if u == NU - 1 and i == 13:
                a.lg(f"ds_write_b128 v{vXw}, {vr(O[1], 4)}")
                a.lg(f"ds_write_b128 v{vXw}, {vr(O[1] + 4, 4)} offset:1024")
                a.lg(f"ds_write_b32 v{vXw}, v{O[1] + 8} offset:2048")
    a.label("L_p2_tail")
    a("s_nop 1")
    a(pv(NU - 1, 1))
    a(f"s_mov_b32 s{sT0}, {hx(f2u(2.0 ** 80))}")
    a(f"s_mov_b32 s{sT1}, {hx(f2u(2.0 ** -80))}")
    a("s_mov_b32 s56, 0")
    a.wait_all(vm=False)
    a("s_barrier")
    t2 = a.lg(f"ds_read_b32 v{T + 8}, v{vXr} offset:2048")
    a.lg(f"ds_read_b128 {vr(T, 4)}, v{vXr}")
    t1 = a.lg(f"ds_read_b128 {vr(T + 4, 4)}, v{vXr} offset:1024")
    a("s_nop 2")
    a.wait(lg=t2)
    a(f"v_add_f32 v{O[0] + 8}, v{O[0] + 8}, v{T + 8}")
    a.wait(lg=t1)
    for r in range(0, 8, 2):
        a(f"v_pk_add_f32 {vr(O[0] + r, 2)}, {vr(O[0] + r, 2)}, {vr(T + r, 2)}")
    a.label("L_p2_finish")
    a(f"v_rcp_f32 v{T + 8}, v{O[0] + 8}")
    a(f"v_cmp_gt_f32 s[40:41], s{sT0}, v{O[0] + 8}")
    a(f"v_cmp_lt_f32 s[42:43], s{sT1}, v{O[0] + 8}")
    for r in range(0, 8, 2):
        a(f"v_pk_mul_f32 {vr(O[0] + r, 2)}, {vr(O[0] + r, 2)}, {vr(T + 8, 2)} op_sel_hi:[1,0]")
    for i in range(4):
        a(f"v_cvt_pk_bf16_f32 v{T + 4 + i}, v{O[0] + 2 * i}, v{O[0] + 2 * i + 1}")
    a(f"v_dot2_f32_bf16 v{T}, v{T + 4}, v{T + 4}, 0")
    for i in range(1, 4):
        a(f"v_dot2_f32_bf16 v{T}, v{T + 4 + i}, v{T + 4 + i}, v{T}")
    a("s_and_b64 s[40:41], s[40:41], s[42:43]")
    a("s_cmp_lg_u32 s56, 0")
    a("s_cbranch_scc1 L_p2_store")
    a(f"v_cmp_gt_f32 vcc, s{sT0}, v{T}")
    a("s_nop 0")
    a("s_and_b64 s[40:41], s[40:41], vcc")
    a("s_cmp_eq_u64 s[40:41], -1")
    a("s_cbranch_scc0 L_p2_fallback")
    a.label("L_p2_store")
    stores(a, [f"buffer_store_dwordx4 {vr(T + 4, 4)}, v{vL16}, {sr(sWS, 4)}, s57 offen"])
    a("s_barrier")
    stamp(a)

    f = Asm()
    f.label("L_p2_fallback")
    vV2, vM = T + 11, T + 12
    f(f"s_lshl_b32 s37, s{sKh}, 16")
    f(f"v_subrev_u32 v{vV2}, s37, v{vVrd}")
    f(f"s_mul_i32 s36, s{sHead}, {HS()}")
    f(f"s_add_u32 s36, s36, {KVG}")
    f(f"v_mov_b32 v{vM}, 0xff800000")
    f("s_mov_b32 s56, 0")
    f("s_mov_b32 s37, s36")
    f.label("L_p2_fb_max")
    f(f"buffer_load_dwordx4 {vr(Kf, 4)}, v{vL16}, {sr(sWS, 4)}, s37 offen sc1")
    f("s_waitcnt vmcnt(0)")
    f(f"v_mfma_f32_32x32x16_bf16 {vr(S[0], 16)}, {vr(Kf, 4)}, {vr(Qf[0], 4)}, 0")
    f("s_nop 15")
    for i in range(8):
        f(f"v_max3_f32 v{vM}, v{vM}, v{S[0] + 2 * i}, v{S[0] + 2 * i + 1}")
    f("s_add_u32 s37, s37, 2048")
    f("s_add_u32 s56, s56, 1")
    f("s_cmp_lt_u32 s56, 64")
    f("s_cbranch_scc1 L_p2_fb_max")
    f(f"v_mov_b32 v{T}, v{vM}")
    f("s_nop 1")
    f(f"v_permlane32_swap_b32 v{vM}, v{T}")
    f("s_nop 1")
    f(f"v_max_f32 v{vM}, v{vM}, v{T}")
    for r in range(16):
        f(f"v_sub_f32 v{NEG + r}, 0, v{vM}")
        f(f"v_mov_b32 v{O[0] + r}, 0")
    f("s_mov_b32 s56, 0")
    f("s_mov_b32 s37, s36")
    f.label("L_p2_fb_pv")
    f(f"buffer_load_dwordx4 {vr(Kf, 4)}, v{vL16}, {sr(sWS, 4)}, s37 offen sc1")
    f(f"s_mov_b64 exec, {sr(sVm, 2)}")
    f(f"buffer_load_dwordx4 {vr(Vf, 4)}, v{vV2}, {sr(sWS, 4)}, s37 offen offset:1024 sc1")
    f(f"buffer_load_dwordx4 {vr(Vf + 4, 4)}, v{vV2}, {sr(sWS, 4)}, s37 offen offset:1536 sc1")
    f("s_mov_b64 exec, -1")
    f("s_waitcnt vmcnt(0)")
    f(f"v_mfma_f32_32x32x16_bf16 {vr(S[0], 16)}, {vr(Kf, 4)}, {vr(Qf[0], 4)}, {vr(NEG, 16)}")
    f("s_nop 15")
    for i in range(16):
        f(f"v_exp_f32 v{S[0] + i}, v{S[0] + i}")
    f("s_nop 1")
    f(f"v_smfmac_f32_32x32x32_bf16 {vr(O[0], 16)}, {vr(Vf, 4)}, {vr(S[0], 8)}, v{vIdx}")
    f(f"v_smfmac_f32_32x32x32_bf16 {vr(O[0], 16)}, {vr(Vf + 4, 4)}, {vr(S[0] + 8, 8)}, v{vIdx}")
    f("s_nop 15")
    f("s_add_u32 s37, s37, 2048")
    f("s_add_u32 s56, s56, 1")
    f("s_cmp_lt_u32 s56, 64")
    f("s_cbranch_scc1 L_p2_fb_pv")
    f("s_branch L_p2_finish")
    f.lines += sp.lines
    return f


def phase_res(a, h, k3, pre_publish=None):
    uid = "p3" if k3 else "p5"
    KS = 32 if k3 else 86
    ACT = QO if k3 else GO
    NST = (KS + 3) // 4
    NA = OPT["p5_na"]
    WSL = WS3 if k3 else WS5[:19 - NA]
    NW = len(WSL)
    if k3:
        ASL = [(122880, -9), (131072, -9), (139264, -9), (147456, -9), (57344, -9), (122880, 0), (WS3[0], 0), (131072, 1)]
    else:
        ASL = [(163840 - NA * 8192 + (n % NA) * 8192, n - NA if n >= NA else -9) for n in range(NST)]
    RESO = RES3 if k3 else 24576
    busy = {WSL[(NST - 1) % NW], WSL[(NST - 2) % NW]}
    TRO = [o for o in WSL if o + 8192 in WSL and not ({o, o + 8192} & busy)][0]
    sW, sIO = 16, 20
    sWr, sWc, sRb, sCb = 25, 26, 27, 28
    T = 12
    for b in (a, h):
        b(f"s_and_b32 s{sT0}, s2, 7")
        b(f"s_lshl_b32 s{sRb}, s{sT0}, 2")
        b(f"s_lshr_b32 s34, s2, 6")
        b(f"s_add_u32 s{sRb}, s{sRb}, s34")
        b(f"s_bfe_u32 s{sCb}, s2, 0x30003")
        b(f"s_and_b32 s{sWr}, s{sWave}, 1")
        b(f"s_bfe_u32 s{sWc}, s{sWave}, 0x10001")
    vWoff, vXg = 3, 5
    h(f"v_lshrrev_b32 v{T}, 3, v{vLane}")
    h(f"v_and_b32 v{T + 1}, 7, v{vLane}")
    h(f"v_lshrrev_b32 v{T + 2}, 2, v{vLane}")
    h(f"v_and_b32 v{T + 2}, 4, v{T + 2}")
    h(f"v_xor_b32 v{T + 2}, v{T + 2}, v{T + 1}")
    h(f"v_lshlrev_b32 v{T + 2}, 4, v{T + 2}")
    h(f"v_lshl_add_u32 v{T + 2}, v{T}, 10, v{T + 2}")
    h(f"s_mul_i32 s44, s{sHw}, {3 * 16384}")
    h(f"s_lshl_b32 s{sT0}, s{sCb}, 7")
    h(f"v_add_u32 v{vWoff}, s{sT0}, v{T + 2}")
    h(f"v_add_u32 v{vWoff + 1}, {8192 - 1024}, v{vWoff}")
    h(f"s_lshl_b32 s32, s{sHw}, 11")
    h(f"s_lshl_b32 s33, s{sRb}, 1")
    h(f"s_add_u32 s33, s33, s{sWr}")
    h(f"s_mul_i32 s34, s33, {RT}")
    h(f"s_lshl_b32 s{sT1}, s{sWc}, 11")
    h(f"s_add_u32 s34, s34, s{sT1}")
    h(f"s_add_u32 s34, s34, {ACT}")
    h(f"s_lshl_b32 s35, s{sWr}, 12")
    h(f"s_add_u32 s35, s35, s{sT1}")
    if k3:
        pass
    else:
        h(f"s_mul_i32 s36, s33, {RT}")
        h(f"s_lshl_b32 s{sT0}, s{sCb}, 12")
        h(f"s_add_u32 s36, s36, s{sT0}")
        h(f"s_add_u32 s36, s36, s{sT1}")
    srd(h, sW, KWO if k3 else KD, KS * 16 * 1024)
    if pre_publish is not None:
        publish(h, pre_publish, T + 4)
    dr = Drip(h)

    def issue_w(st):
        cl = [(4 * st + w >= 29) + (4 * st + w >= 58) for w in range(4)]
        pre = [f"s_add_u32 s42, s44, {hx((12 * st - 86 * cl[0]) * 16384)}"]
        if cl[3] != cl[0]:
            pre += [f"s_add_u32 s45, s44, {hx((12 * st - 86 * cl[3]) * 16384)}", f"s_cmp_ge_u32 s{sHw}, {cl.index(cl[3])}",
                    "s_cselect_b32 s42, s45, s42"]
        dr.add(st, [f"s_add_u32 m0, s32, {WSL[st % NW]}"] + pre,
               f"buffer_load_dwordx4 v{vWoff}, {sr(sW, 4)}, s42 offen lds")
        dr.add(st, [], f"buffer_load_dwordx4 v{vWoff + 1}, {sr(sW, 4)}, s42 offen offset:1024 lds")

    def issue_a(st):
        dr.add(st, [f"s_add_u32 m0, s35, {ASL[st][0]}", f"s_add_u32 s43, s34, {st * 4096}"],
               f"buffer_load_dwordx4 v{vL16}, {sr(sWS, 4)}, s43 offen {LD()} lds")
        dr.add(st, [], f"buffer_load_dwordx4 v{vL16}, {sr(sWS, 4)}, s43 offen offset:1024 {LD()} lds")

    if not k3:
        for st in range(NW):
            issue_w(st)
    dr.emit(100)
    if not OPT.get("det"):
        stamp(h)
    if k3 and OPT["lpoll"]:
        h(f"s_lshl_b32 s40, s{sRb}, 8")
        h(f"s_add_u32 s40, s40, {F2}")
        poll(h, 40, T + 4, "p3l", every=True, barrier=False)
    elif k3:
        h("s_barrier")
    else:
        h(f"s_lshl_b32 s40, s{sRb}, 9")
        h(f"s_add_u32 s40, s40, {F4}")
        poll(h, 40, T + 4, "p5l", 30, every=True, barrier=False)
    if not OPT.get("det"):
        stamp(h)
    AHEAD = OPT["p3_a"] if k3 else OPT["p5_a"]
    nxt_a = 0
    for st in range(NST):
        while nxt_a <= min(st + AHEAD, NST - 1):
            if not k3 and ((nxt_a >= 7 and st <= 2) or (nxt_a >= 14 and st <= OPT["p5_c2"])):
                break
            if ASL[nxt_a][1] > st - 3:
                break
            issue_a(nxt_a)
            nxt_a += 1
        if not k3 and st == 1:
            dr.add(4, [f"s_add_u32 m0, s35, {RESO}", "s_nop 0"], f"buffer_load_dwordx4 v{vL16}, {sr(sWS, 4)}, s36 offen {LD()} lds")
            dr.add(4, [], f"buffer_load_dwordx4 v{vL16}, {sr(sWS, 4)}, s36 offen offset:1024 {LD()} lds")
        dr.emit(100)
        h.wait(vm=dr.tok[st])
        h("s_barrier")
        if st >= 2 and st - 2 + NW < NST:
            issue_w(st - 2 + NW)
    if k3:
        h("s_barrier")
    RST = 0 if k3 else 4
    vWrd, vAr, vRr, vTw, vTr, vOut = [3, 4], [5, 6, 22], [7, 8], 9, 10, 11
    ID = 24
    FR = [32, 72]
    acc = 112
    a(f"v_and_b32 v{T}, 31, v{vLane}")
    a(f"v_lshrrev_b32 v{T + 1}, 5, v{vLane}")
    a(f"v_bfe_u32 v{T + 2}, v{vLane}, 2, 2")
    a(f"v_lshl_add_u32 v{T + 3}, v{T + 1}, 2, v{T + 2}")
    a(f"v_lshlrev_b32 v{T + 3}, 7, v{T + 3}")
    a(f"v_bfe_u32 v{T + 4}, v{vLane}, 4, 1")
    a(f"v_lshl_add_u32 v{T + 3}, v{T + 4}, 5, v{T + 3}")
    a(f"v_and_b32 v{T + 4}, 3, v{vLane}")
    a(f"v_lshl_add_u32 v{T + 3}, v{T + 4}, 3, v{T + 3}")
    a(f"v_lshrrev_b32 v{T + 2}, 1, v{T + 2}")
    a(f"v_xor_b32 v{T + 2}, s{sWc}, v{T + 2}")
    a(f"v_lshl_add_u32 v{vWrd[0]}, v{T + 2}, 6, v{T + 3}")
    wl = LdsAddr(a, vWrd)
    wl.setup(a)
    a(f"s_lshl_b32 s{sT0}, s{sWr}, 12")
    a(f"v_add_u32 v{vAr[0]}, s{sT0}, v{vL16}")
    al = LdsAddr(a, vAr)
    al.setup(a)
    if k3:
        a(f"v_bfe_u32 v{T + 2}, v{vLane}, 1, 3")
        a(f"v_xor_b32 v{T + 2}, v{T + 2}, v{T + 1}")
        a(f"s_lshl_b32 s{sT1}, s{sWc}, 2")
        a(f"v_xor_b32 v{T + 2}, s{sT1}, v{T + 2}")
        a(f"v_lshlrev_b32 v{T + 2}, 4, v{T + 2}")
        a(f"v_lshl_add_u32 v{T + 2}, v{T}, 7, v{T + 2}")
        a(f"s_add_u32 s{sT0}, s{sT0}, {RESO}")
        a(f"v_add_u32 v{vRr[0]}, s{sT0}, v{T + 2}")
        a(f"v_xor_b32 v{vRr[1]}, 32, v{vRr[0]}")
    else:
        a(f"s_lshl_b32 s{sT1}, s{sWc}, 11")
        a(f"s_add_u32 s{sT0}, s{sT0}, s{sT1}")
        a(f"s_add_u32 s{sT0}, s{sT0}, {RESO}")
        a(f"v_add_u32 v{vRr[0]}, s{sT0}, v{vL16}")
        a(f"v_add_u32 v{vRr[1]}, 1024, v{vRr[0]}")
    if pre_publish is not None:
        publish(a, pre_publish, T + 6)
    a(f"v_mov_b32 v{T + 5}, 0x3f80")
    for e in range(2):
        if k3:
            a(f"v_lshlrev_b32 v{T + 2}, 3, v{T + 1}")
            a(f"v_sub_u32 v{T + 2}, v{T}, v{T + 2}")
            a(f"v_subrev_u32 v{T + 2}, {16 * e}, v{T + 2}")
        else:
            a(f"v_bfe_u32 v{T + 2}, v{vLane}, 3, 1")
            a(f"v_and_b32 v{T + 3}, 3, v{vLane}")
            a(f"v_lshl_add_u32 v{T + 2}, v{T + 2}, 2, v{T + 3}")
            a(f"v_bfe_u32 v{T + 3}, v{vLane}, 2, 1")
            a(f"v_xor_b32 v{T + 3}, v{T + 3}, v{T + 1}")
            a(f"v_bfe_u32 v{T + 4}, v{vLane}, 4, 1")
            a(f"v_xor_b32 v{T + 4}, {e}, v{T + 4}")
            a(f"v_or_b32 v{T + 3}, v{T + 3}, v{T + 4}")
            a(f"v_lshl_add_u32 v{T + 2}, v{T + 3}, 4, v{T + 2}")
        a(f"v_and_b32 v{T + 3}, 1, v{T + 2}")
        a(f"v_lshlrev_b32 v{T + 3}, 4, v{T + 3}")
        a(f"v_lshlrev_b32 v{T + 3}, v{T + 3}, v{T + 5}")
        a(f"v_lshrrev_b32 v{T + 2}, 1, v{T + 2}")
        for r in range(4):
            a(f"v_cmp_eq_u32 vcc, {r}, v{T + 2}")
            a("s_nop 1")
            a(f"v_cndmask_b32 v{ID + 4 * e + r}, 0, v{T + 3}, vcc")
    a(f"s_lshl_b32 s33, s{sRb}, 1")
    a(f"s_add_u32 s33, s33, s{sWr}")
    a(f"s_lshl_b32 s34, s{sCb}, 1")
    a(f"s_add_u32 s34, s34, s{sWc}")
    if k3:
        a(f"s_mul_i32 s{sT1}, s33, {RT}")
        a(f"s_lshl_b32 s36, s34, 11")
        a(f"s_add_u32 s36, s36, s{sT1}")
        a(f"s_lshl_b32 s37, s34, 8")
        a(f"s_add_u32 s37, s37, s{sT1}")
        a(f"s_add_u32 s37, s37, {SO}")
        a("s_mov_b32 s41, 0x3f803f80")
        a(f"v_lshlrev_b32 v{vOut}, 3, v{vLane}")
        a(f"s_lshl_b32 s55, s{sRb}, 7")
        a(f"s_lshl_b32 s{sT1}, s{sCb}, 4")
        a(f"s_add_u32 s55, s55, s{sT1}")
        a(f"s_lshl_b32 s{sT1}, s{sWave}, 2")
        a(f"s_add_u32 s55, s55, s{sT1}")
        a(f"s_add_u32 s55, s55, {F3}")
    else:
        a(f"s_mul_i32 s{sT0}, s{sHw}, 2560")
        a(f"s_add_u32 s{sT0}, s{sT0}, {TRO}")
        a(f"v_mul_u32_u24 v{T + 2}, 80, v{T}")
        a(f"v_lshl_add_u32 v{T + 2}, v{T + 1}, 3, v{T + 2}")
        a(f"v_add_u32 v{vTw}, s{sT0}, v{T + 2}")
        a(f"v_lshrrev_b32 v{T + 2}, 2, v{vLane}")
        a(f"v_and_b32 v{T + 3}, 3, v{vLane}")
        a(f"v_lshlrev_b32 v{T + 3}, 4, v{T + 3}")
        a(f"v_mad_u32_u24 v{T + 4}, v{T + 2}, 64, v{T + 3}")
        a(f"v_lshl_add_u32 v{T + 4}, v{T + 2}, 4, v{T + 4}")
        a(f"v_add_u32 v{vTr}, s{sT0}, v{T + 4}")
        a(f"v_lshl_add_u32 v{vOut}, v{T + 2}, 10, v{T + 3}")
        a(f"s_lshl_b32 s36, s33, 15")
        a(f"s_lshl_b32 s37, s34, 6")
        a(f"s_add_u32 s36, s36, s37")
        a(f"s_add_u32 s37, s36, 16384")
        srd(a, sIO, KO, 2048 * 1024)
    a(f"s_lshl_b32 s40, s{sRb}, {8 if k3 else 9}")
    a(f"s_add_u32 s40, s40, {F2 if k3 else F4}")
    if k3 and not OPT["lpoll"]:
        poll(a, 40, T + 6, uid, 64)
    first = True
    prev = []
    for st in range(NST):
        if not k3 and st in (0, OPT["p5_c2"] - 3):
            poll_issue(a, 40, T + 6, f"p5i{st}", 128 if st == 0 else 256)
        if not k3 and st in (2, OPT["p5_c2"]):
            poll(a, 40, T + 6, f"p5c{8 if st > 2 else 1}", 30, barrier=False, off=128 if st == 2 else 256, issued=True)
        a("s_barrier")
        if st == 0:
            stamp(a)
        F = FR[st & 1]
        n = min(4, KS - 4 * st)
        rd = []
        for k in range(n):
            reg, off = al.at(ASL[st][0] + k * 1024)
            rd.append(f"ds_read_b128 {vr(F + 8 * k, 4)}, {reg} offset:{off}")
            for half in range(2):
                reg, off = wl.at(WSL[st % NW] + k * 2048 + half * 1024)
                rd.append(f"ds_read_b64_tr_b16 {vr(F + 8 * k + 4 + 2 * half, 2)}, {reg} offset:{off}")
        cur = [[None, F + 8 * k + 4, F + 8 * k, 3 * k + 2] for k in range(n)]
        if st == RST:
            for e in range(2):
                rd.append(f"ds_read_b128 {vr(F + 32 + 4 * e, 4)}, v{vRr[e]}")
                cur.append([None, ID + 4 * e, F + 32 + 4 * e, len(rd) - 1])
        toks = []
        k = 0
        for tok, wa, xa, _ in prev:
            a.wait(lg=tok)
            a(f"v_mfma_f32_32x32x16_bf16 {vr(acc, 16)}, {vr(wa, 4)}, {vr(xa, 4)}, {'0' if first else vr(acc, 16)}")
            first = False
            for _ in range(3):
                if k < len(rd):
                    toks.append(a.lg(rd[k]))
                    k += 1
        while k < len(rd):
            toks.append(a.lg(rd[k]))
            k += 1
        for c in cur:
            c[0] = toks[c[3]]
        prev = cur
    for tok, wa, xa, _ in prev:
        a.wait(lg=tok)
        a(f"v_mfma_f32_32x32x16_bf16 {vr(acc, 16)}, {vr(wa, 4)}, {vr(xa, 4)}, {vr(acc, 16)}")
    stamp(a)
    a("s_nop 11")
    P = 32
    for i in range(8):
        a(f"v_cvt_pk_bf16_f32 v{P + i}, v{acc + 2 * i}, v{acc + 2 * i + 1}")
    if k3:
        stores(a, [f"buffer_store_dwordx4 {vr(P, 4)}, v{vL16}, {sr(sWS, 4)}, s36 offen",
                   f"buffer_store_dwordx4 {vr(P + 4, 4)}, v{vL16}, {sr(sWS, 4)}, s36 offen offset:1024"])
        a(f"v_dot2_f32_bf16 v{T}, v{P}, s41, 0")
        a(f"v_dot2_f32_bf16 v{T + 1}, v{P}, v{P}, 0")
        for i in range(1, 8):
            a(f"v_dot2_f32_bf16 v{T}, v{P + i}, s41, v{T}")
            a(f"v_dot2_f32_bf16 v{T + 1}, v{P + i}, v{P + i}, v{T + 1}")
        a("s_nop 2")
        a(f"v_mov_b32 v{T + 2}, v{T}")
        a(f"v_mov_b32 v{T + 3}, v{T + 1}")
        a("s_nop 0")
        a(f"v_permlane32_swap_b32 v{T}, v{T + 2}")
        a(f"v_permlane32_swap_b32 v{T + 1}, v{T + 3}")
        a("s_nop 0")
        a(f"v_add_f32 v{T}, v{T}, v{T + 2}")
        a(f"v_add_f32 v{T + 1}, v{T + 1}, v{T + 3}")
        a("s_mov_b32 exec_hi, 0")
        stores(a, [f"buffer_store_dwordx2 {vr(T, 2)}, v{vOut}, {sr(sWS, 4)}, s37 offen"])
        a("s_mov_b64 exec, -1")
        a("s_barrier")
        publish(a, 55, T + 4)
    else:
        for g in range(4):
            a.lg(f"ds_write_b64 v{vTw}, {vr(P + 2 * g, 2)} offset:{g * 16}")
        a.wait_all(vm=False)
        t0 = a.lg(f"ds_read_b128 {vr(P + 8, 4)}, v{vTr}")
        t1 = a.lg(f"ds_read_b128 {vr(P + 12, 4)}, v{vTr} offset:{16 * 80}")
        a.wait(lg=t0)
        a.vm(f"buffer_store_dwordx4 {vr(P + 8, 4)}, v{vOut}, {sr(sIO, 4)}, s36 offen")
        a.wait(lg=t1)
        a.vm(f"buffer_store_dwordx4 {vr(P + 12, 4)}, v{vOut}, {sr(sIO, 4)}, s37 offen")
    stamp(a)


def phase4(a, h):
    sG = 16
    sRb, sCg = 25, 26
    sWL, sAct = 32, 33
    NW, NX, NST = 9, 5, 16
    XO = 122880
    CSO = 24576
    XEO = CSO + 1536
    for b in (a, h):
        b(f"s_and_b32 s{sT0}, s2, 7")
        b(f"s_lshl_b32 s{sT0}, s{sT0}, 1")
        b(f"s_bfe_u32 s{sT1}, s2, 0x10003")
        b(f"s_add_u32 s{sRb}, s{sT0}, s{sT1}")
        b(f"s_lshr_b32 s{sCg}, s2, 4")
    a("s_cmp_ge_u32 s2, 240")
    a("s_cbranch_scc1 L_p4_skip_c")
    h("s_cmp_ge_u32 s2, 240")
    h("s_cbranch_scc1 L_p4_skip_l")
    vWoff = [3, 4, 5]
    vT = 16
    h(f"s_lshl_b32 s{sAct}, s{sRb}, 2")
    h(f"s_add_u32 s{sAct}, s{sAct}, s{sHw}")
    h(f"s_mul_i32 s{sAct}, s{sAct}, {RT}")
    h(f"s_add_u32 s38, s{sAct}, {SO}")
    h(f"s_lshr_b32 s34, s{sHw}, 1")
    h(f"s_and_b32 s35, s{sHw}, 1")
    h(f"s_mul_i32 s{sT0}, s34, {16 * 2752}")
    h(f"s_mul_i32 s{sT1}, s{sCg}, 192")
    h(f"s_add_u32 s{sT0}, s{sT0}, s{sT1}")
    h(f"v_and_b32 v{vT + 3}, 2, v{vLane}")
    h(f"v_lshlrev_b32 v{vT + 3}, 5, v{vT + 3}")
    h(f"v_sub_u32 v{vT + 3}, 32, v{vT + 3}")
    h(f"v_mul_lo_u32 v{vT + 3}, v{vT + 3}, s35")
    h(f"v_add_u32 v{vT + 3}, s{sT0}, v{vT + 3}")
    for i in range(3):
        h(f"v_add_u32 v{vT}, {64 * i}, v{vLane}")
        h(f"v_mul_u32_u24 v{vT + 1}, 171, v{vT}")
        h(f"v_lshrrev_b32 v{vT + 1}, 11, v{vT + 1}")
        h(f"v_mul_u32_u24 v{vT + 2}, {2752 - 192}, v{vT + 1}")
        h(f"v_add3_u32 v{vWoff[i]}, v{vL16}, v{vT + 2}, v{vT + 3}")
    h(f"s_mul_i32 s{sWL}, s{sHw}, 3072")
    h(f"s_lshl_b32 s36, s{sHw}, 11")
    h(f"s_add_u32 s36, s36, {XO}")
    h("s_cmp_eq_u32 s35, 0")
    h(f"s_cselect_b32 s{sG}, s{KG}, s{KU}")
    h(f"s_cselect_b32 s{sG + 1}, s{KG + 1}, s{KU + 1}")
    h(f"s_mov_b32 s{sG + 2}, {hx(512 * 2752)}")
    h(f"s_mov_b32 s{sG + 3}, 0x00020000")
    dr = Drip(h)

    def issue_w(key):
        st = key[1] if isinstance(key, tuple) else key
        for i in range(3):
            pre = [f"s_add_u32 m0, s{sWL}, {WS4[st % NW]}", f"s_mov_b32 s42, {st * 32 * 2752}"] if i == 0 else []
            dr.add(key, pre, f"buffer_load_dwordx4 v{vWoff[i]}, {sr(sG, 4)}, s42 offen offset:{i * 1024} lds")

    def issue_x(st):
        for i in range(2):
            pre = [f"s_add_u32 m0, s36, {(st % NX) * 8192}", f"s_add_u32 s43, s{sAct}, {st * 2048}"] if i == 0 else []
            dr.add(st, pre, f"buffer_load_dwordx4 v{vL16}, {sr(sWS, 4)}, s43 offen offset:{i * 1024} {LD()} lds")

    PRE = OPT["p4_pre"]
    for st in range(4, PRE):
        issue_w(st)
    dr.emit(100)
    nxt_wi = 3 * PRE
    vPf, vPd = 13, 100
    srd(h, 44, KD, 1376 * 1024)
    h(f"s_lshr_b32 s{sT0}, s2, 3")
    h(f"s_lshl_b32 s{sT0}, s{sT0}, 2")
    h(f"s_add_u32 s{sT0}, s{sT0}, s{sHw}")
    h(f"s_lshl_b32 s{sT0}, s{sT0}, 13")
    h(f"v_lshlrev_b32 v{vPf}, 7, v{vLane}")
    h(f"v_add_u32 v{vPf}, s{sT0}, v{vPf}")
    h(f"v_add_u32 v15, {120 * 8192}, v{vPf}")
    h(f"v_lshrrev_b32 v{vT + 3}, 5, v{vLane}")
    h(f"v_and_b32 v{vT + 4}, 31, v{vLane}")
    h(f"v_lshlrev_b32 v{vT + 4}, 3, v{vT + 4}")
    h(f"v_lshl_add_u32 v{vT + 4}, v{vT + 3}, 11, v{vT + 4}")
    h(f"s_mul_i32 s{sT0}, s{sHw}, 1536")
    h(f"s_add_u32 s{sT0}, s{sT0}, {XEO}")
    h(f"v_add_u32 v{vT + 5}, s{sT0}, v{vL16}")
    h(f"v_lshl_add_u32 v{vT + 6}, v{vLane}, 3, s{sT0}")
    stamp(h)
    if OPT["lpoll"]:
        h(f"s_lshl_b32 s40, s{sRb}, 8")
        h(f"s_add_u32 s40, s40, {F3}")
        poll(h, 40, vT + 8, "p4l", every=True, barrier=False)
    else:
        h("s_barrier")
    stamp(h)
    SP = 32
    vS, vQ, vM, vA = 60, 61, 62, 64
    AHEAD = OPT["p4_a"]
    assert AHEAD < NX
    nxt_x = 0
    for st in range(NST):
        while nxt_x <= min(st + (min(AHEAD, st + 1) if OPT["p4_ramp"] else AHEAD), NST - 1):
            if nxt_x >= NX and nxt_x - NX > st - 2:
                break
            issue_x(nxt_x)
            nxt_x += 1
        dr.emit(100)
        for _ in range(0 if OPT["p4_ramp"] and st == 0 else (OPT["p4_wi2"] + (st & 1)) // 2 + (st in (4, 6) and OPT["p4_ramp"])):
            ws, wi = divmod(nxt_wi, 3)
            if ws < NST and (ws < NW or ws - NW <= st - 2):
                h(f"s_add_u32 m0, s{sWL}, {WS4[ws % NW]}")
                h(f"s_mov_b32 s42, {ws * 32 * 2752}")
                dr.tok[("w", ws)] = h.vm(f"buffer_load_dwordx4 v{vWoff[wi]}, {sr(sG, 4)}, s42 offen offset:{wi * 1024} lds")
                nxt_wi += 1
        assert nxt_wi >= 3 * (st + 1)
        if 1 <= st <= 8:
            i = st - 1
            dr.tok["st"] = h.vm(f"buffer_load_dwordx2 {vr(SP + 2 * i, 2)}, v{vT + 4}, {sr(sWS, 4)}, s38 offen offset:{i * 256} {LD()}")
        h.wait(vm=max(dr.tok[st], dr.tok.get(("w", st), -1)))
        assert st < PRE or ("w", st) in dr.tok
        if st == 11:
            h.wait(vm=dr.tok["st"])
            h(f"v_add_f32 v{vS}, v{SP}, v{SP + 2}")
            h(f"v_add_f32 v{vQ}, v{SP + 1}, v{SP + 3}")
            for i in range(2, 8):
                h(f"v_add_f32 v{vS}, v{vS}, v{SP + 2 * i}")
                h(f"v_add_f32 v{vQ}, v{vQ}, v{SP + 2 * i + 1}")
        if st == 12:
            half_sum(h, vS, vT)
            half_sum(h, vQ, vT)
            h(f"v_mul_f32 v{vM}, {hx(f2u(-1.0 / 512))}, v{vS}")
            h(f"v_mul_f32 v{vQ}, {hx(f2u(1.0 / 512))}, v{vQ}")
            h(f"v_fma_f32 v{vQ}, -v{vM}, v{vM}, v{vQ}")
            h(f"v_max_f32 v{vQ}, 0, v{vQ}")
            h(f"v_add_f32 v{vQ}, {hx(f2u(1e-5))}, v{vQ}")
        if st == 13:
            h(f"v_rsq_f32 v{vA}, v{vQ}")
            split_hi_lo(h, vM, 68, vT, vT + 1)
            h(f"v_mul_f32 v{vA + 1}, v{vQ}, v{vA}")
            h(f"v_mul_f32 v{vA}, {hx(f2u(-LOG2E))}, v{vA}")
            h(f"v_cvt_pk_bf16_f32 v69, v{vT}, 0")
            h("v_mov_b32 v70, 0")
            h("v_mov_b32 v71, 0")
            h.lg(f"ds_write_b128 v{vT + 5}, v[68:71]")
            h.lg(f"ds_write_b64 v{vT + 6}, {vr(vA, 2)} offset:1024")
        if st == 14:
            h.wait_all(vm=False)
        if OPT.get("det") == 1 and st in (3, 7, 11):
            stamp(h)
        h("s_barrier")
        if OPT.get("det") == 1 and st in (3, 7, 11, 15):
            stamp(h)
        if st == OPT["p4_pf"]:
            h.vm(f"buffer_load_dword v{vPd}, v{vPf}, s[44:47], 0 offen")
        if st == OPT["p4_pf"] + 1:
            h.vm(f"buffer_load_dword v{vPd}, v15, s[44:47], 0 offen")
    h("s_barrier")
    h.label("L_p4_skip_l")

    sWr2, sWc = 36, 37
    vWrd, vWrdO, vXa, vCw, vCr, vEr = [3, 4], [5, 6], 7, 8, 9, 10
    ONES, vT, CS, ACC = 12, 16, 20, 32
    XF, WF = [128, 136], [144, 156]
    XE, AS = XF[0], ONES
    t = CS
    a(f"s_lshr_b32 s{sWr2}, s{sHw}, 1")
    a(f"s_and_b32 s{sWc}, s{sHw}, 1")
    a(f"s_lshl_b32 s34, s{sRb}, 1")
    a(f"s_add_u32 s34, s34, s{sWr2}")
    a(f"v_lshrrev_b32 v{t + 3}, 5, v{vLane}")
    a(f"v_bfe_u32 v{t}, v{vLane}, 2, 2")
    a(f"v_lshl_add_u32 v{t}, v{t + 3}, 2, v{t}")
    a(f"v_mul_u32_u24 v{t}, 192, v{t}")
    a(f"v_and_b32 v{t + 1}, 3, v{vLane}")
    a(f"v_lshl_add_u32 v{t}, v{t + 1}, 3, v{t}")
    a(f"s_mul_i32 s{sT0}, s{sWc}, 96")
    a(f"v_add_u32 v{t}, s{sT0}, v{t}")
    a(f"v_bfe_u32 v{t + 1}, v{vLane}, 4, 1")
    a(f"s_lshl_b32 s{sT0}, s{sWc}, 6")
    a(f"s_sub_u32 s{sT1}, {3072 + 32}, s{sT0}")
    a(f"s_add_u32 s{sT0}, {3072 - 32}, s{sT0}")
    a(f"v_mad_u32_u24 v{vWrd[0]}, v{t + 1}, s{sT1}, v{t}")
    a(f"v_mad_u32_u24 v{vWrdO[0]}, v{t + 1}, s{sT0}, v{t}")
    wl = [LdsAddr(a, vWrd), LdsAddr(a, vWrdO)]
    wl[0].setup(a)
    wl[1].setup(a)
    a(f"s_lshl_b32 s{sT0}, s{sWr2}, 12")
    a(f"s_add_u32 s{sT0}, s{sT0}, {XO}")
    a(f"v_add_u32 v{vXa}, s{sT0}, v{vL16}")
    a(f"v_xor_b32 v{t}, v{t + 1}, v{vLane}")
    a(f"v_and_b32 v{t}, 1, v{t}")
    a(f"v_cmp_eq_u32 vcc, 0, v{t}")
    a(f"v_mov_b32 v{t}, 0x3f803f80")
    a("s_nop 0")
    for r in range(4):
        a(f"v_cndmask_b32 v{ONES + r}, 0, v{t}, vcc")
    a(f"s_lshl_b32 s{sT0}, s{sWc}, 1")
    a(f"s_add_u32 s{sT1}, s{sT0}, s{sWr2}")
    a(f"s_mul_i32 s{sT1}, s{sT1}, 384")
    a(f"s_add_u32 s{sT1}, s{sT1}, {CSO}")
    a(f"v_and_b32 v{t}, 1, v{vLane}")
    a(f"v_lshlrev_b32 v{t}, 6, v{t}")
    a(f"v_and_b32 v{t + 1}, 48, v{vLane}")
    a(f"v_add3_u32 v{vCw}, v{t}, v{t + 1}, s{sT1}")
    a(f"s_mul_i32 s{sT0}, s{sT0}, 384")
    a(f"s_add_u32 s{sT0}, s{sT0}, {CSO}")
    a(f"v_mul_u32_u24 v{t}, 384, v{t + 3}")
    a(f"v_and_b32 v{t + 1}, 31, v{vLane}")
    a(f"v_lshl_add_u32 v{t}, v{t + 1}, 2, v{t}")
    a(f"v_add_u32 v{vCr}, s{sT0}, v{t}")
    a(f"s_lshl_b32 s55, s34, 9")
    a(f"s_lshl_b32 s35, s{sCg}, 1")
    a(f"s_add_u32 s35, s35, s{sWc}")
    a(f"s_lshl_b32 s{sT0}, s35, 2")
    a(f"s_add_u32 s55, s55, s{sT0}")
    a(f"s_add_u32 s55, s55, {F4}")
    a(f"s_mul_i32 s34, s34, {2 * RT}")
    a(f"s_mul_i32 s38, s35, 3")
    a(f"s_lshl_b32 s35, s35, 10")
    a("s_add_u32 s34, s34, s35")
    a(f"s_add_u32 s34, s34, {GO}")
    a(f"s_add_u32 s35, s34, {RT}")
    a(f"s_mul_i32 s{sT0}, s{sWr2}, 3072")
    a(f"s_add_u32 s{sT0}, s{sT0}, {XEO}")
    a(f"v_add_u32 v{vEr}, s{sT0}, v{vL16}")
    a(f"v_lshl_add_u32 v{vEr + 1}, v{vLane}, 3, s{sT0}")
    for r in range(12):
        a(f"v_mov_b32 v{CS + r}, 0")

    def reads(s):
        st, ss = divmod(s, 2)
        W = []
        for j in range(3):
            for half in range(2):
                reg, off = wl[j & 1].at(WS4[st % NW] + ss * 6144 + half * 8 * 192 + j * 32)
                W.append(f"ds_read_b64_tr_b16 {vr(WF[s & 1] + 4 * j + 2 * half, 2)}, {reg} offset:{off}")
        X = [f"ds_read_b128 {vr(XF[s & 1] + 4 * i, 4)}, v{vXa} offset:{(st % NX) * 8192 + i * 2048 + ss * 1024}"
             for i in range(2)]
        return [X[0], W[0], W[1], X[1], W[2], W[3], W[4], W[5]]

    rt = {}

    def emit_reads(b, s, lo, hi):
        ops = reads(s)
        for k in range(lo, min(hi, 8)):
            rt[(s, k)] = b.lg(ops[k])

    def main(b, s, m):
        j, i = divmod(m, 2)
        d = ACC + 16 * m
        c = "0" if s == 0 else vr(d, 16)
        b(f"v_mfma_f32_32x32x16_bf16 {vr(d, 16)}, {vr(WF[s & 1] + 4 * j, 4)}, {vr(XF[s & 1] + 4 * i, 4)}, {c}")

    def csum(b, s, j):
        b(f"v_mfma_f32_16x16x32_bf16 {vr(CS + 4 * j, 4)}, {vr(WF[s & 1] + 4 * j, 4)}, {vr(ONES, 4)}, {vr(CS + 4 * j, 4)}")

    a(f"s_lshl_b32 s40, s{sRb}, 8")
    a(f"s_add_u32 s40, s40, {F3}")
    if not OPT["lpoll"]:
        poll(a, 40, vT, "p4")
    a("s_barrier")
    stamp(a)
    emit_reads(a, 0, 0, 8)
    a(f"s_cmp_eq_u32 s{sWr2}, 1")
    a("s_cbranch_scc1 L_p4_odd")
    cuts = [0, 2, 4, 6, 8, 8, 8]
    need = [3, 3, 5, 5, 7, 7]
    rt0 = dict(rt)
    odd = fork(a)
    odd.label("L_p4_odd")
    for par, b in ((0, a), (1, odd)):
        rt.clear()
        rt.update(rt0)
        for s in range(31):
            if s % 2 == 1:
                b.wait(lg=rt[(s, 7)])
                b("s_barrier")
            for m in range(6):
                b.wait(lg=rt[(s, need[m])])
                if m % 2 == 0 and s % 2 == par:
                    csum(b, s, m // 2)
                main(b, s, m)
                emit_reads(b, s + 1, cuts[m], cuts[m + 1])
        b.wait_all(vm=False)
        if par == 1:
            for j in range(3):
                csum(b, 31, j)
    odd("s_branch L_p4_join")
    a.label("L_p4_join")
    main(a, 31, 0)
    for j in range(3):
        a(f"v_mov_b32 v{WF[0] + 4 * j + 2}, 0")
        a(f"v_mov_b32 v{WF[0] + 4 * j + 3}, 0")
    main(a, 31, 1)
    a("s_mov_b32 exec_lo, 0x00030003")
    a("s_mov_b32 exec_hi, 0x00030003")
    for j in range(3):
        a.lg(f"ds_write_b128 v{vCw}, {vr(CS + 4 * j, 4)} offset:{j * 128}")
    a("s_mov_b64 exec, -1")
    for i in range(2):
        a.lg(f"ds_read_b128 {vr(XE + 4 * i, 4)}, v{vEr} offset:{i * 1536}")
        a.lg(f"ds_read_b64 {vr(AS + 2 * i, 2)}, v{vEr + 1} offset:{i * 1536 + 1024}")
    main(a, 31, 2)
    main(a, 31, 3)
    a.wait_all(vm=False)
    a("s_barrier")
    for j in range(3):
        rt[("c", j)] = a.lg(f"ds_read_b32 v{vT + 1 + j}, v{vCr} offset:{j * 128}")
    main(a, 31, 4)
    main(a, 31, 5)
    for j in range(3):
        w = WF[0] + 4 * j
        a.wait(lg=rt[("c", j)])
        a(f"v_cvt_pk_bf16_f32 v{w + 1}, v{vT + 1 + j}, 0")
        a(f"v_lshlrev_b32 v{vT}, 16, v{w + 1}")
        a(f"v_sub_f32 v{vT}, v{vT + 1 + j}, v{vT}")
        a(f"v_cvt_pk_bf16_f32 v{w}, v{vT + 1 + j}, v{vT}")
    for j in range(3):
        for i in range(2):
            d = ACC + 32 * j + 16 * i
            a(f"v_mfma_f32_32x32x16_bf16 {vr(d, 16)}, {vr(WF[0] + 4 * j, 4)}, {vr(XE + 4 * i, 4)}, {vr(d, 16)}")
    stamp(a)
    a(f"v_lshlrev_b32 v{vT}, 7, v{vLane}")
    a(f"v_mov_b32 v{vT + 1}, s{sTag}")
    a("s_nop 2")
    stok = {}
    if OPT["ep_prio"]:
        a(f"s_setprio {OPT['ep_prio']}")
    for j in range(3):
        a(f"s_cmp_ge_u32 s38, {86 - j}")
        a("s_cbranch_scc1 L_p4_pub")
        Gs = [(ACC + 32 * j + 16 * i + r, i) for i in range(2) for r in range(8)]
        for g, i in Gs[::2]:
            a(f"v_pk_mul_f32 {vr(g, 2)}, {vr(g, 2)}, {vr(AS + 2 * i, 2)} op_sel_hi:[1,0]")
        for g, i in Gs:
            a(f"v_exp_f32 v{g}, v{g}")
        for g, i in Gs[::2]:
            a(f"v_pk_fma_f32 {vr(g, 2)}, {vr(g, 2)}, {vr(AS + 2 * i, 2)}, {vr(AS + 2 * i, 2)} op_sel:[0,1,1] op_sel_hi:[1,1,1]")
        for g, i in Gs:
            a(f"v_rcp_f32 v{g}, v{g}")
        for g, i in Gs[::2]:
            a(f"v_pk_mul_f32 {vr(g, 2)}, {vr(g, 2)}, {vr(g + 8, 2)}")
        if j == 2 and OPT["ep_fl"]:
            a("s_mov_b64 exec, 1")
            a.wait(vm=stok[0])
            stores(a, [f"buffer_store_dword v{vT + 1}, v{vT}, {sr(sWS, 4)}, s55 offen"])
            a("s_mov_b64 exec, -1")
        o = ACC + 32 * j + 8
        for i in range(8):
            a(f"v_cvt_pk_bf16_f32 v{o + i}, v{Gs[2 * i][0]}, v{Gs[2 * i + 1][0]}")
        stores(a, [f"buffer_store_dwordx4 {vr(o, 4)}, v{vL16}, {sr(sWS, 4)}, s34 offen",
                   f"buffer_store_dwordx4 {vr(o + 4, 4)}, v{vL16}, {sr(sWS, 4)}, s35 offen"])
        stok[j] = a.vm_issued - 1
        a(f"s_add_u32 s34, s34, {29 * 1024}")
        a(f"s_add_u32 s35, s35, {29 * 1024}")
        if j >= 1 and not OPT["ep_fl"]:
            a("s_mov_b64 exec, 1")
            a.wait(vm=stok[j - 1])
            stores(a, [f"buffer_store_dword v{vT + 1}, v{vT}, {sr(sWS, 4)}, s55 offen offset:{(j - 1) * 128}"])
            a("s_mov_b64 exec, -1")
    a.label("L_p4_pub")
    a("s_nop 7")
    stamp(a)
    a("s_mov_b64 exec, 7")
    a.wait_all(lg=False)
    stores(a, [f"buffer_store_dword v{vT + 1}, v{vT}, {sr(sWS, 4)}, s55 offen"])
    a("s_mov_b64 exec, -1")
    if OPT["ep_prio"]:
        a("s_setprio 0")
    a.label("L_p4_skip_c")
    return odd


def gen_fused():
    name = KNAME
    a = Asm()
    a.raw(f".globl {name}")
    a.raw(".p2align 8")
    a.raw(f".type {name},@function")
    a.label(name)
    a("s_cmp_ge_u32 s2, 256")
    a(f"s_cbranch_scc1 L_done")
    stamp_real(a)
    stamp(a)
    if OPT.get("spin"):
        a("s_memrealtime s[98:99]")
    c1, odd1, l1, aux = phase1(a)
    fb = phase2(c1, l1, aux)
    c1(f"s_cmp_ge_u32 s{sWave}, 4")
    c1("s_cbranch_scc0 L_compute")
    h = fork(c1)
    c = fork(c1)
    if OPT.get("det") == 2:
        h.nstamp, h.nostamp = 18, True
    c.label("L_compute")
    phase_res(c, h, True, pre_publish=55)
    odd = phase4(c, h)
    phase_res(c, h, False)
    if OPT.get("det") != 3:
        stamp_flush(h)
    h("s_endpgm")
    c("s_cmp_lg_u32 s2, 0")
    c("s_cbranch_scc1 L_nogen")
    c(f"s_cmp_lg_u32 s{sWave}, 0")
    c("s_cbranch_scc1 L_nogen")
    c(f"v_mov_b32 v12, {GEN}")
    c(f"v_mov_b32 v13, s{sTag}")
    c("s_mov_b64 exec, 1")
    c(f"buffer_store_dword v13, v12, {sr(sWS, 4)}, 0 offen sc1")
    if OPT.get("spin"):
        c("s_load_dwordx2 s[92:93], s[0:1], 64")
        c("s_memrealtime s[96:97]")
        c("s_waitcnt lgkmcnt(0)")
        c("s_sub_u32 s96, s96, s98")
        c("s_mov_b32 s94, 256")
        c("s_mov_b32 s95, 0x00020000")
        c("v_mov_b32 v12, 0")
        c("v_mov_b32 v13, s96")
        c("buffer_store_dword v13, v12, s[92:95], 0 offen")
        c.label("L_dbg_spin")
        c("s_memrealtime s[96:97]")
        c("s_waitcnt lgkmcnt(0)")
        c("s_sub_u32 s96, s96, s98")
        c(f"s_cmp_lt_u32 s96, {OPT['spin']}")
        c("s_cbranch_scc1 L_dbg_spin")
    c.label("L_nogen")
    stamp_flush(c)
    c.label("L_done")
    c("s_endpgm")
    text = (a.text() + l1.text() + aux.text() + odd1.text() + c1.text() + h.text() + c.text() + odd.text() + fb.text())
    return name, text, descriptor(name, 168, 0, sgpr=102), (256, 576, 163840)


DOC = """; ---------------------------------------------------------------------------------------------------------
; ---------------------------------------------------------------------------------------------------------
"""


def build():
    name, text, desc, (g, b, lds) = gen_fused()
    ref = open(f"cdna_kernels/{NAME}.s.ref").read().split("\n")
    head = [l for l in ref if l.startswith(";") and "@launch" not in l]
    out = "\n".join(head) + "\n"
    out += f"; @launch grid=({g},1,1) block=({b},1,1) lds={lds}\n"
    out += '.amdgcn_target "amdgcn-amd-amdhsa--gfx950"\n' + DOC + '.text\n'
    bad = check_hazards(text, name)
    out += text
    out += "L_code_end:\n"
    out += '.section .rodata,"a"\n.p2align 6\n' + desc
    if bad:
        print("hazards:", bad)
    return out


if __name__ == "__main__":
    path = sys.argv[1] if len(sys.argv) > 1 else f"cdna_kernels/{NAME}.s"
    for arg in sys.argv[2:]:
        if arg == "stamps":
            G.STAMPS = True
        else:
            k_, v_ = arg.split("=")
            OPT[k_] = int(v_)
    open(path, "w").write(build())
    print("wrote", path)
```

```python
import sys

import gen as G
from gen import (Asm, Drip, LdsAddr, OPT, MB, QF, KVF, OF, HF, ST, GF, WS_SIZE, LOG2E, NAME, f2u, hx, vr, sr, srd,
                 fork, half_sum, split_hi_lo, code_prefetch, descriptor, check_hazards)

FLG = 11 * MB
F2, F3, F4, XT = FLG, FLG + 8192, FLG + 49152, FLG + 20480
FL1, GEN, FG1 = FLG + 24576, FLG + 28672, FLG + 32768
RT = 124 * 1024
QO, GO, SO = 65536, 32768, 118 * 1024
KVG = 12 * MB


def HS():
    return 131072 + OPT["kv_pad"]


KNAME = NAME + "_kernel"
WS3 = [0, 8192, 16384, 24576, 65536, 73728, 81920, 90112]
RES3 = 155648
WS4 = [32768, 45056, 98304, 110592, 0, 12288, 57344, 69632, 81920]
WS5 = [0, 8192, 16384] + [8192 * i for i in range(4, 14)]
sTag = 53
OPT.update(dict(p3_a=7, p4_a=3, p5_a=7, p5_na=6, down_l2=0, ws_off=0, kv_pad=4352, kv_gate=0, kv_fl=2, p1_bs=1, p5_c2=9, p5_nw=11, p4_pf=13, p4_pre=7, p2_map=1, force_slow=0, p1_cnt=1, kv_nt=0, kv_lag=1, early_t=0, gf_late=0, gu_from=128, gu_to=223, ep_prio=0, ep_fl=0, aux_sl=3, p2_pr=0, gm=0, p4_ramp=0, lpoll=0, retouch=1, p1_ls=1, p1_xl=8, t_wo=1, t_at=99, adapt=0, p2_ord=0, t_mall=1, fst=0, w4pre=4, p1_s3=2, tout_g=0, p1_er=3, p2_defer=0, p2_sched=0, ld=0, touch_out=1, touch2=1, k1_tout=11, p2_fine=0, p2_rot=1, p4_wi2=4, sc="sc1"))

sWS, sWave, sHw = 12, 24, 29
sT0, sT1 = 30, 31
KX, KWO, KG, KU, KD, KO = 64, 68, 72, 74, 76, 78
vLane, vL16 = 1, 2


def ws_srd(a):
    off = OPT["ws_off"] * MB
    a(f"s_add_u32 s{sWS}, s8, {hx(off)}")
    a(f"s_addc_u32 s{sWS + 1}, s9, 0")
    a(f"s_mov_b32 s{sWS + 2}, {hx(WS_SIZE)}")
    a(f"s_mov_b32 s{sWS + 3}, 0x00020000")


def GM():
    return ["sc1", "sc0 sc1"][OPT["gm"]]


def LD():
    return ["sc1", "nt", "", "sc0 sc1", "sc0"][OPT["ld"]]


def stamp(a, force=False):
    if not G.STAMPS or (getattr(a, "nostamp", False) and not force):
        return
    i = getattr(a, "nstamp", 0)
    a.nstamp = i + 1
    assert i < 20, i
    a("s_memtime s[100:101]")
    a.wait_all(vm=False)
    a(f"s_mov_b32 s{80 + i}, s100")


def stamp_real(a):
    if not G.STAMPS:
        return
    i = getattr(a, "nstamp", 0)
    a.nstamp = i + 1
    a("s_memrealtime s[100:101]")
    a.wait_all(vm=False)
    a(f"s_mov_b32 s{80 + i}, s100")


def stamp_flush(a):
    if not G.STAMPS:
        return
    a.wait_all()
    stamp(a, True)
    stamp_real(a)
    a("s_mov_b64 exec, -1")
    a("s_lshl_b32 s58, s2, 3")
    a(f"s_add_u32 s58, s58, s{sWave}")
    a("s_lshl_b32 s58, s58, 7")
    a(f"s_add_u32 s58, s58, {G.DBGO + MB}")
    a("v_mov_b32 v1, 0")
    for i in range(a.nstamp):
        a(f"v_mov_b32 v2, s{80 + i}")
        a(f"buffer_store_dword v2, v1, {sr(sWS, 4)}, s58 offen offset:{4 * i}")
    a.wait_all()


LMODE = 163840 - 16
sMode = 54
_uid = [0]


def stores(a, ins, always_slow=False):
    if always_slow:
        for x in ins:
            a.vm(x + " sc1")
        return
    _uid[0] += 1
    u = _uid[0]
    a(f"s_cmp_eq_u32 s{sMode}, 0")
    a(f"s_cbranch_scc1 L_st_{u}_s")
    for x in ins:
        a.vm(x + (["", " nt", " sc0"][OPT["fst"]] if "x4" in x else ""))
    a(f"s_branch L_st_{u}_j")
    a.label(f"L_st_{u}_s")
    for x in ins:
        a(x + " sc1")
    a.label(f"L_st_{u}_j")


def publish(a, sOff, vt, always_slow=False):
    a(f"v_mov_b32 v{vt}, 0")
    a(f"v_mov_b32 v{vt + 1}, s{sTag}")
    a("s_mov_b64 exec, 1")
    a.wait_all(lg=False)
    stores(a, [f"buffer_store_dword v{vt + 1}, v{vt}, {sr(sWS, 4)}, s{sOff} offen"], always_slow)
    a("s_mov_b64 exec, -1")


def poll_issue(a, sOff, vt, uid, off):
    a(f"s_cmp_lg_u32 s{sWave}, 0")
    a(f"s_cbranch_scc1 L_pi_{uid}")
    a(f"v_lshlrev_b32 v{vt}, 2, v{vLane}")
    a(f"buffer_load_dword v{vt + 1}, v{vt}, {sr(sWS, 4)}, s{sOff} offen offset:{off} sc1")
    a.label(f"L_pi_{uid}")


def poll(a, sOff, vt, uid, nflags=64, every=False, barrier=True, off=0, issued=False):
    if not every:
        a(f"s_cmp_lg_u32 s{sWave}, 0")
        a(f"s_cbranch_scc1 L_poll_{uid}_go")
    if not issued:
        a(f"v_lshlrev_b32 v{vt}, 2, v{vLane}")
    a("s_mov_b32 s59, 0x40000")
    if nflags < 64:
        a(f"s_mov_b64 exec, {hx((1 << nflags) - 1)}")
    if issued:
        a(f"s_branch L_poll_{uid}_c")
    a.label(f"L_poll_{uid}")
    a(f"buffer_load_dword v{vt + 1}, v{vt}, {sr(sWS, 4)}, s{sOff} offen offset:{off} sc1")
    a.label(f"L_poll_{uid}_c")
    a("s_sub_u32 s59, s59, 1")
    a("s_waitcnt vmcnt(0)")
    a(f"v_cmp_ne_u32 vcc, s{sTag}, v{vt + 1}")
    a("s_cmp_eq_u32 s59, 0")
    a(f"s_cbranch_scc1 L_poll_{uid}_x")
    a(f"s_cbranch_vccnz L_poll_{uid}")
    a.label(f"L_poll_{uid}_x")
    a("s_mov_b64 exec, -1")
    a.label(f"L_poll_{uid}_go")
    if barrier:
        a("s_barrier")


def touch_setup(h):
    srd(h, 16, KWO, 512 * 1024)
    srd(h, 20, KG, 512 * 2752)
    srd(h, 48, KU, 512 * 2752)
    h(f"s_and_b32 s{sT0}, s2, 7")
    h(f"s_lshl_b32 s{sT1}, s{sT0}, 18")
    h(f"s_add_u32 s4, s{KX}, s{sT1}")
    h(f"s_addc_u32 s5, s{KX + 1}, 0")
    srd(h, 44, 4, 256 * 1024)
    h(f"s_mul_i32 s{sT0}, s{sT0}, {172 * 1024}")
    h(f"s_add_u32 s10, s{KD}, s{sT0}")
    h(f"s_addc_u32 s11, s{KD + 1}, 0")
    if OPT["down_l2"]:
        srd(h, 40, KD, 1376 * 1024)
    else:
        srd(h, 40, 10, 172 * 1024)
    h(f"s_lshr_b32 s{sT0}, s2, 3")
    h("v_lshlrev_b32 v3, 7, v1")


def touch_weights(h, late=None):
    k0 = OPT["gu_from"]
    k1 = OPT["gu_to"]
    n = -(-(k1 - k0) * 2752 // (32 * 8192))
    if k0 and OPT["t_mall"]:
        per = -(-(k0 if k1 == 512 else 512) * 2752 // 256 // 128) * 128
        assert per <= 8192
        h(f"s_mul_i32 s{sT1}, s2, {per}")
        h(f"v_add_u32 v4, s{sT1}, v3")
        nl = per // 128
        h(f"s_mov_b32 exec_lo, {hx((1 << min(nl, 32)) - 1)}")
        h(f"s_mov_b32 exec_hi, {hx((1 << max(nl - 32, 0)) - 1)}")
        for sq in (20, 48):
            h.vm(f"buffer_load_dword v5, v4, {sr(sq, 4)}, 0 offen")
        h("s_mov_b64 exec, -1")
    for sq, per, n_, base in ((16, 16384, 2 * OPT["t_wo"], 0), (44, 8192, OPT["t_wo"], 0), (40, 49152, 6, 0) if OPT["down_l2"] else (40, 8192, OPT["t_mall"], 0), (20, n * 8192, n, k0 * 2752 // 128 * 128),
                              (48, n * 8192, n, k0 * 2752 // 128 * 128)):
        if n_ == 0:
            continue
        if sq == 20 and late:
            late("L_skip_gu")
        h(f"s_mul_i32 s{sT1}, s{sT0}, {per}")
        if base:
            h(f"s_add_u32 s{sT1}, s{sT1}, {base}")
        h(f"v_add_u32 v4, s{sT1}, v3")
        for i in range(n_):
            h.vm(f"buffer_load_dword v5, v4, {sr(sq, 4)}, 0 offen")
            if i + 1 < n_:
                h("v_add_u32 v4, 0x2000, v4")
    if late:
        h.label("L_skip_gu")


def phase1(a):
    sX, sW = 20, 16
    sWr, sWc, sCg, sRb = 25, 26, 27, 28
    sWL = 32
    sOnes = 41
    vT = 8
    NSLOT, SLOT, WBASE, NST = 7, 12288, 65536, 16
    CSO = WBASE + NSLOT * SLOT
    RSO = 155648
    XEO = 156672
    BS = [list(range(16)), [0, 1, 2, 4, 6, 8, 10, 12, 14], [0, 2, 4, 6, 8, 10, 12, 14], [0, 1, 2, 3, 4, 6, 8, 10, 12, 14, 15]][OPT["p1_bs"]]
    a("s_load_dwordx16 s[64:79], s[0:1], 0")
    a("s_load_dwordx2 s[8:9], s[0:1], 72")
    a(f"v_and_b32 v{vLane}, 63, v0")
    a(f"v_lshrrev_b32 v7, 6, v0")
    a(f"v_lshlrev_b32 v{vL16}, 4, v{vLane}")
    a(f"v_readfirstlane_b32 s{sWave}, v7")
    a(f"s_and_b32 s{sT0}, s2, 7")
    a(f"s_lshl_b32 s{sT0}, s{sT0}, 2")
    a(f"s_bfe_u32 s{sT1}, s2, 0x20003")
    a(f"s_add_u32 s{sRb}, s{sT0}, s{sT1}")
    a(f"s_lshr_b32 s{sCg}, s2, 5")
    a(f"s_and_b32 s{sHw}, s{sWave}, 3")
    a(f"s_cmp_eq_u32 s{sWave}, 8")
    a("s_cbranch_scc1 L_p1_aux")
    a(f"s_cmp_ge_u32 s{sWave}, 4")
    a(f"s_cbranch_scc0 L_p1_compute")

    x = fork(a)
    x.label("L_p1_aux")
    x("s_setprio 3")
    x(f"v_lshlrev_b32 v30, 7, v{vLane}")
    x(f"s_lshr_b32 s{sT0}, s2, 3")
    x(f"s_lshl_b32 s{sT0}, s{sT0}, 11")
    x(f"v_add_u32 v30, s{sT0}, v30")
    x("s_mov_b64 exec, 0xffff")
    code_prefetch(x, KNAME, 44, 30, 31, "p1")
    x("s_mov_b64 exec, -1")
    x("s_getreg_b32 s56, hwreg(HW_REG_XCC_ID, 0, 4)")
    x("s_and_b32 s57, s2, 7")
    x("s_lshl_b32 s57, s57, 8")
    x(f"s_add_u32 s57, s57, {XT}")
    x("s_lshr_b32 s58, s2, 3")
    x("s_lshl_b32 s58, s58, 2")
    x(f"v_mov_b32 v6, {GEN}")
    x("s_waitcnt lgkmcnt(0)")
    ws_srd(x)
    x.vm(f"buffer_load_dword v7, v6, {sr(sWS, 4)}, 0 offen")
    x("v_mov_b32 v6, s58")
    x("s_barrier")
    x("s_barrier")
    x.wait_all()
    x(f"v_readfirstlane_b32 s{sTag}, v7")
    x("s_nop 3")
    x(f"s_mul_i32 s{sTag}, s{sTag}, 1664525")
    x(f"s_add_u32 s{sTag}, s{sTag}, 1013904223")
    x(f"s_lshl_b32 s58, s{sTag}, 4")
    x("s_or_b32 s56, s56, s58")
    x("v_mov_b32 v7, s56")
    x("s_mov_b64 exec, 1")
    x.vm(f"buffer_store_dword v7, v6, {sr(sWS, 4)}, s57 offen sc1")
    x("s_mov_b32 exec_lo, -1")
    x("s_mov_b32 exec_hi, 0")
    x(f"v_lshlrev_b32 v6, 2, v{vLane}")
    for st in (BS + [NST])[2:]:
        if st == 12:
            x("s_mov_b32 s59, 0x40000")
            x("s_waitcnt vmcnt(0)")
            x("s_branch L_xt_chk")
            x.label("L_xt_poll")
            x(f"buffer_load_dword v7, v6, {sr(sWS, 4)}, s57 offen sc1")
            x("s_sub_u32 s59, s59, 1")
            x("s_waitcnt vmcnt(0)")
            x.label("L_xt_chk")
            x("v_xor_b32 v8, s56, v7")
            x("v_cmp_lt_u32 vcc, 15, v8")
            x("s_cmp_eq_u32 s59, 0")
            x("s_cbranch_scc1 L_xt_done")
            x("s_cbranch_vccnz L_xt_poll")
            x.label("L_xt_done")
            x("v_cmp_ne_u32 vcc, 0, v8")
            x("s_nop 1")
            x("s_cmp_eq_u64 vcc, 0")
            x(f"s_cselect_b32 s{sMode}, {0 if OPT['force_slow'] else 1}, 0")
            x(f"v_mov_b32 v6, {LMODE}")
            x(f"v_mov_b32 v8, s{sMode}")
            x(f"v_mov_b32 v9, s{sTag}")
            x("ds_write_b64 v6, v[8:9]")
            x("s_waitcnt lgkmcnt(0)")
            x("s_mov_b64 exec, -1")
        x("s_barrier")
        if OPT["early_t"] and st == OPT["early_t"]:
            touch_setup(x)
            touch_weights(x)
        if st == 8:
            x(f"buffer_load_dword v7, v6, {sr(sWS, 4)}, s57 offen sc1")

    h = fork(a)
    vWoff, vXg, vSr, vXe, vRs = 3, 4, 6, 20, 21
    vS, vQ, vM, vR = 22, 23, 24, 25
    XB = 32
    h(f"v_lshrrev_b32 v{vT}, 3, v{vLane}")
    h(f"v_and_b32 v{vT + 1}, 7, v{vLane}")
    h(f"v_lshrrev_b32 v{vT + 2}, 1, v{vT}")
    h(f"v_xor_b32 v{vT + 2}, v{vT + 2}, v{vT + 1}")
    h(f"v_lshlrev_b32 v{vT + 2}, 4, v{vT + 2}")
    h(f"v_lshl_add_u32 v{vXg}, v{vT}, 10, v{vT + 2}")
    h(f"v_xor_b32 v{vXg + 1}, 64, v{vXg}")
    h(f"v_add_u32 v{vXg + 1}, {8 * 1024 - 1024}, v{vXg + 1}")
    h(f"s_lshl_b32 s34, s{sRb}, 16")
    h(f"s_lshl_b32 s{sT0}, s{sHw}, 14")
    h(f"s_add_u32 s34, s34, s{sT0}")
    h(f"s_lshl_b32 s36, s{sHw}, 11")
    h(f"v_lshrrev_b32 v{vT + 2}, 2, v{vLane}")
    h(f"v_and_b32 v{vT + 2}, 4, v{vT + 2}")
    h(f"v_xor_b32 v{vT + 2}, v{vT + 2}, v{vT + 1}")
    h(f"v_lshlrev_b32 v{vT + 2}, 4, v{vT + 2}")
    h(f"v_mul_u32_u24 v{vT + 3}, 3072, v{vT}")
    h(f"s_mul_i32 s{sT0}, s{sHw}, {8 * 3072}")
    h(f"s_lshl_b32 s{sT1}, s{sCg}, 7")
    h(f"s_add_u32 s{sT0}, s{sT0}, s{sT1}")
    h(f"v_add3_u32 v{vWoff}, v{vT + 3}, v{vT + 2}, s{sT0}")
    h(f"s_mul_i32 s{sWL}, s{sHw}, 3072")
    h("s_waitcnt lgkmcnt(0)")
    srd(h, sX, KX, 2048 * 1024)
    srd(h, sW, KX + 2, 512 * 3072)
    d2 = OPT.get("det") == 2
    if d2:
        h.nstamp = 7
        stamp(h)
    dr = Drip(h)

    XLEAD = OPT["p1_xl"] / 4

    def x_dma(c, key):
        dr.add(key, [f"s_add_u32 m0, s36, {c * 8192}", f"s_add_u32 s43, s34, {c * 128}"],
               f"buffer_load_dwordx4 v{vXg}, {sr(sX, 4)}, s43 offen lds")
        dr.add(key, [], f"buffer_load_dwordx4 v{vXg + 1}, {sr(sX, 4)}, s43 offen offset:1024 lds")

    def issue(st):
        for c in range(8):
            if int(c * XLEAD) == st:
                x_dma(c, st)
        for seg in range(3):
            pre = [f"s_add_u32 m0, s{sWL}, {WBASE + (st % NSLOT) * SLOT}", f"s_mov_b32 s42, {32 * st * 3072}"] if seg == 0 else []
            dr.add(st, pre, f"buffer_load_dwordx4 v{vWoff}, {sr(sW, 4)}, s42 offen offset:{seg * 1024} lds")

    for st in range(NSLOT):
        issue(st)
    AHEAD = OPT["k1_d"]
    dr.through(OPT["k1_t"] - 1)

    def s3(lo, hi):
        for i in range(lo, hi):
            h(f"s_load_dword s52, s[50:51], {(i % 8) * 131072 + 384}")
            h(f"s_load_dword s52, s[50:51], {(i % 8) * 131072 + 448}")

    if OPT["p1_s3"]:
        h(f"s_lshr_b32 s{sT0}, s2, 3")
        h(f"s_lshl_b32 s{sT0}, s{sT0}, 2")
        h(f"s_add_u32 s{sT0}, s{sT0}, s{sHw}")
        h(f"s_lshl_b32 s{sT0}, s{sT0}, 10")
        h(f"s_add_u32 s50, s{KX + 2}, s{sT0}")
        h(f"s_addc_u32 s51, s{KX + 3}, 0")
        s3(0, 7)
    if OPT["k1_touch"]:
        h(f"s_lshl_b32 s{sT0}, s2, 2")
        h(f"s_add_u32 s{sT0}, s{sT0}, s{sHw}")
        h(f"s_mul_i32 s{sT1}, s{sT0}, 1536")
        h(f"s_lshl_b32 s{sT0}, s{sT0}, 11")
        h(f"v_lshlrev_b32 v30, 7, v{vLane}")
        h("s_mov_b64 exec, 0xfff")
        h.vm(f"buffer_load_dword v31, v30, {sr(sW, 4)}, s{sT1} offen")
        h("s_mov_b64 exec, 0xffff")
        h.vm(f"buffer_load_dword v31, v30, {sr(sX, 4)}, s{sT0} offen")
        h("s_mov_b64 exec, -1")
    dr.through(AHEAD - 1)
    ws_srd(h)
    LS = OPT["p1_ls"]
    if LS:
        h(f"s_mov_b32 s{sOnes}, 0x3f803f80")
        h(f"v_lshrrev_b32 v{vT}, 2, v{vLane}")
        h(f"v_and_b32 v{vT + 1}, 3, v{vLane}")
        h(f"v_lshlrev_b32 v{vT + 2}, 7, v{vT}")
        h(f"v_lshl_add_u32 v{vT + 2}, v{vT + 1}, 4, v{vT + 2}")
        h(f"v_bfe_u32 v{vT + 3}, v{vLane}, 3, 1")
        h(f"v_lshl_add_u32 v{vT + 2}, v{vT + 3}, 6, v{vT + 2}")
        h(f"v_add_u32 v{vSr}, s36, v{vT + 2}")
        h(f"v_xor_b32 v{vSr + 1}, 64, v{vSr}")
        h(f"s_lshl_b32 s{sT0}, s{sHw}, 4")
        h(f"v_add_u32 v{vT}, s{sT0}, v{vT}")
        h(f"v_lshlrev_b32 v{vRs}, 2, v{vT}")
        h(f"v_add_u32 v{vRs}, {RSO}, v{vRs}")
        h(f"v_and_b32 v{vT + 2}, 31, v{vT}")
        h(f"v_lshl_add_u32 v{vT + 2}, v{vT + 1}, 5, v{vT + 2}")
        h(f"v_lshrrev_b32 v{vT + 3}, 5, v{vT}")
        h(f"v_lshl_add_u32 v{vT + 2}, v{vT + 3}, 6, v{vT + 2}")
        h(f"v_lshlrev_b32 v{vXe}, 4, v{vT + 2}")
        h(f"v_add_u32 v{vXe}, {XEO}, v{vXe}")
        h(f"v_mov_b32 v{vS}, 0")
        h(f"v_mov_b32 v{vQ}, 0")
    sdone = 0
    if d2:
        stamp(h)
    added = NSLOT
    for bi, st in enumerate(BS):
        last = (BS + [NST])[bi + 1] - 1
        dr.wait(last)
        if d2 and st in (4, 10):
            stamp(h)
        h("s_barrier")
        if d2 and st in (0, 2, 4, 8, 10, 12, 14):
            stamp(h)
        if st == 0 and OPT["p1_s3"]:
            s3(7, 8)
            h(f"s_add_u32 s50, s50, {8 * 131072}")
            h("s_addc_u32 s51, s51, 0")
            s3(8, 12)
        todo = []
        if LS and st >= 4:
            while int((sdone + len(todo)) * XLEAD) <= last and sdone + len(todo) < 8 and len(todo) < 2:
                todo.append(sdone + len(todo))
            for k, c in enumerate(todo):
                h(f"ds_read_b128 {vr(XB + 8 * k, 4)}, v{vSr} offset:{c * 8192}")
                h(f"ds_read_b128 {vr(XB + 8 * k + 4, 4)}, v{vSr + 1} offset:{c * 8192}")
        while added < NST and added - NSLOT < st:
            issue(added)
            added += 1
        tgt = min(NST - 1, last + AHEAD + min(st + 1, OPT["k1_g"]))
        while dr.q and dr.q[0][0] <= tgt:
            dr.emit()
        if todo:
            h("s_waitcnt lgkmcnt(0)")
            for r in range(8 * len(todo)):
                h(f"v_dot2_f32_bf16 v{vS}, v{XB + r}, s{sOnes}, v{vS}")
                h(f"v_dot2_f32_bf16 v{vQ}, v{XB + r}, v{XB + r}, v{vQ}")
            sdone += len(todo)
            if sdone == 8:
                h("s_nop 2")
                for pat in ("quad_perm:[1,0,3,2]", "quad_perm:[2,3,0,1]"):
                    h(f"v_add_f32_dpp v{vS}, v{vS}, v{vS} {pat} row_mask:0xf bank_mask:0xf")
                    h(f"v_add_f32_dpp v{vQ}, v{vQ}, v{vQ} {pat} row_mask:0xf bank_mask:0xf")
                    h("s_nop 0")
                h(f"v_mul_f32 v{vM}, {hx(f2u(-1.0 / 512))}, v{vS}")
                h(f"v_mul_f32 v{vQ}, {hx(f2u(1.0 / 512))}, v{vQ}")
                h(f"v_fma_f32 v{vQ}, -v{vM}, v{vM}, v{vQ}")
                h(f"v_max_f32 v{vQ}, 0, v{vQ}")
                h(f"v_add_f32 v{vQ}, {hx(f2u(1e-5))}, v{vQ}")
                h(f"v_rsq_f32 v{vR}, v{vQ}")
                split_hi_lo(h, vM, XB, vT, vT + 1)
                h(f"v_cvt_pk_bf16_f32 v{XB + 1}, v{vT}, 0")
                h(f"v_mov_b32 v{XB + 2}, 0")
                h(f"v_mov_b32 v{XB + 3}, 0")
                h("s_mov_b32 exec_lo, 0x33333333")
                h("s_mov_b32 exec_hi, 0x33333333")
                h(f"ds_write_b128 v{vXe}, {vr(XB, 4)}")
                h(f"ds_write_b32 v{vRs}, v{vR}")
                h("s_mov_b64 exec, -1")
        if st <= OPT.get("k1_tout", -1) <= last:
            h(f"s_lshl_b32 s{sT0}, s{sRb}, 1")
            h(f"s_and_b32 s{sT1}, s{sHw}, 1")
            h(f"s_add_u32 s{sT0}, s{sT0}, s{sT1}")
            h(f"s_mul_i32 s{sT0}, s{sT0}, {RT}")
            h(f"s_lshl_b32 s{sT1}, s{sCg}, 13")
            h(f"s_lshl_b32 s43, s{sCg}, 12")
            h(f"s_add_u32 s43, s43, {QO}")
            h(f"s_cmp_ge_u32 s{sHw}, 2")
            h(f"s_cselect_b32 s{sT1}, s43, s{sT1}")
            h("s_cselect_b32 exec_hi, 0, -1")
            h(f"s_add_u32 s{sT0}, s{sT0}, s{sT1}")
            h(f"v_lshlrev_b32 v30, 7, v{vLane}")
            h.vm(f"buffer_load_dword v31, v30, {sr(sWS, 4)}, s{sT0} offen")
            h("s_mov_b64 exec, -1")
    assert not LS or sdone == 8
    h(f"v_mov_b32 v{vT}, {LMODE}")
    h.lg(f"ds_read_b64 {vr(vT + 2, 2)}, v{vT}")
    h.wait_all(vm=False)
    h(f"v_readfirstlane_b32 s{sMode}, v{vT + 2}")
    h(f"v_readfirstlane_b32 s{sTag}, v{vT + 3}")
    h("s_barrier")
    h.wait_all()
    if OPT.get("det") != 2:
        stamp(h)
    a = fork(a)
    a.label("L_p1_compute")

    vXrd = [3, 4, 5, 6]
    vKoff, vVoff = 20, 21
    vWrd = [22, 23, 24]
    vCw, vCr, vEr, vRl, vRr = 25, 26, 27, 28, 29
    XF = [32, 36]
    WF = [40, 52]
    CS, ONES, XE = 64, 76, 80
    RV = 84
    accQ, accK, accV = 104, 120, 136
    SQ = 152
    a(f"s_lshr_b32 s{sWr}, s{sHw}, 1")
    a(f"s_and_b32 s{sWc}, s{sHw}, 1")
    a(f"v_and_b32 v{vT}, 31, v{vLane}")
    a(f"v_lshrrev_b32 v{vT + 1}, 5, v{vLane}")
    a(f"v_bfe_u32 v{vT + 2}, v{vLane}, 1, 3")
    a(f"v_xor_b32 v{vT + 2}, v{vT + 2}, v{vT + 1}")
    a(f"v_lshlrev_b32 v{vT + 2}, 4, v{vT + 2}")
    a(f"v_lshl_add_u32 v{vT + 2}, v{vT}, 7, v{vT + 2}")
    a(f"s_lshl_b32 s{sT0}, s{sWr}, 12")
    a(f"v_add_u32 v{vXrd[0]}, s{sT0}, v{vT + 2}")
    for ss in range(1, 4):
        a(f"v_xor_b32 v{vXrd[ss]}, {ss * 32}, v{vXrd[0]}")
    a(f"v_mul_u32_u24 v{vT + 2}, 3072, v{vT + 1}")
    a(f"v_bfe_u32 v{vT + 3}, v{vLane}, 2, 2")
    a(f"v_lshl_add_u32 v{vT + 2}, v{vT + 3}, 7, v{vT + 2}")
    a(f"v_lshrrev_b32 v{vT + 3}, 1, v{vT + 3}")
    a(f"v_xor_b32 v{vT + 3}, s{sWc}, v{vT + 3}")
    a(f"v_lshl_add_u32 v{vT + 2}, v{vT + 3}, 6, v{vT + 2}")
    a(f"v_bfe_u32 v{vT + 4}, v{vLane}, 4, 1")
    a(f"v_lshl_add_u32 v{vT + 2}, v{vT + 4}, 5, v{vT + 2}")
    a(f"v_and_b32 v{vT + 3}, 3, v{vLane}")
    a(f"v_lshl_add_u32 v{vWrd[0]}, v{vT + 3}, 3, v{vT + 2}")
    wl = LdsAddr(a, vWrd)
    wl.setup(a)
    a(f"v_xor_b32 v{vT + 2}, v{vT + 4}, v{vLane}")
    a(f"v_and_b32 v{vT + 2}, 1, v{vT + 2}")
    a(f"v_cmp_eq_u32 vcc, 0, v{vT + 2}")
    a(f"v_mov_b32 v{vT + 2}, 0x3f803f80")
    a("s_nop 0")
    for r in range(4):
        a(f"v_cndmask_b32 v{ONES + r}, 0, v{vT + 2}, vcc")
    a(f"s_lshl_b32 s{sT0}, s{sWc}, 1")
    a(f"s_add_u32 s{sT1}, s{sT0}, s{sWr}")
    a(f"s_mul_i32 s{sT1}, s{sT1}, 384")
    a(f"s_add_u32 s{sT1}, s{sT1}, {CSO}")
    a(f"v_and_b32 v{vT + 2}, 1, v{vLane}")
    a(f"v_lshlrev_b32 v{vT + 2}, 6, v{vT + 2}")
    a(f"v_and_b32 v{vT + 3}, 48, v{vLane}")
    a(f"v_add3_u32 v{vCw}, v{vT + 2}, v{vT + 3}, s{sT1}")
    a(f"s_mul_i32 s{sT0}, s{sT0}, 384")
    a(f"s_add_u32 s{sT0}, s{sT0}, {CSO}")
    a(f"v_mul_u32_u24 v{vT + 2}, 384, v{vT + 1}")
    a(f"v_lshl_add_u32 v{vT + 2}, v{vT}, 2, v{vT + 2}")
    a(f"v_add_u32 v{vCr}, s{sT0}, v{vT + 2}")
    a(f"s_lshl_b32 s{sT0}, s{sHw}, 9")
    a(f"s_add_u32 s{sT0}, s{sT0}, {XEO}")
    a(f"v_lshl_add_u32 v{vEr}, v{vLane}, 3, s{sT0}")
    a(f"v_xor_b32 v31, 512, v{vEr}")
    a(f"s_lshl_b32 s{sT0}, s{sHw}, 7")
    a(f"s_add_u32 s{sT0}, s{sT0}, {RSO}")
    a(f"v_lshl_add_u32 v{vRl}, v{vT}, 2, s{sT0}")
    a(f"v_lshl_add_u32 v{vRr}, v{vT + 1}, 4, s{sT0}")
    if LS:
        a(f"s_lshl_b32 s{sT0}, s{sWr}, 10")
        a(f"s_add_u32 s{sT0}, s{sT0}, {XEO}")
        a(f"v_add_u32 v{vEr}, s{sT0}, v{vL16}")
        a(f"s_lshl_b32 s{sT0}, s{sWr}, 7")
        a(f"s_add_u32 s{sT0}, s{sT0}, {RSO}")
        a(f"v_lshl_add_u32 v{vRl}, v{vT}, 2, s{sT0}")
        a(f"v_lshl_add_u32 v{vRr}, v{vT + 1}, 4, s{sT0}")
    a(f"s_mov_b32 s{sOnes}, 0x3f803f80")
    a(f"v_mov_b32 v{SQ}, 0")
    a(f"v_mov_b32 v{SQ + 1}, 0")
    a(f"v_and_b32 v{vT + 2}, 0x33, v{vLane}")
    a(f"v_bfe_u32 v{vT + 3}, v{vLane}, 2, 1")
    a(f"v_lshl_or_b32 v{vT + 2}, v{vT + 3}, 3, v{vT + 2}")
    a(f"v_bfe_u32 v{vT + 3}, v{vLane}, 3, 1")
    a(f"v_lshl_or_b32 v{vT + 2}, v{vT + 3}, 2, v{vT + 2}")
    a(f"v_lshlrev_b32 v{vKoff}, 4, v{vT + 2}")
    a(f"v_lshlrev_b32 v{vT + 2}, 11, v{vT + 4}")
    a(f"v_lshl_add_u32 v{vT + 2}, v{vT + 1}, 8, v{vT + 2}")
    a(f"v_and_b32 v{vT + 3}, 15, v{vLane}")
    a(f"v_lshl_add_u32 v{vVoff}, v{vT + 3}, 4, v{vT + 2}")
    a(f"s_lshl_b32 s{sT0}, s{sCg}, 2")
    a(f"s_lshl_b32 s{sT1}, s{sWc}, 1")
    a(f"s_add_u32 s{sT0}, s{sT0}, s{sT1}")
    a(f"s_lshl_b32 s{sT1}, s{sRb}, 1")
    a(f"s_add_u32 s{sT1}, s{sT1}, s{sWr}")
    a(f"s_mul_i32 s60, s{sT1}, {RT}")
    a(f"s_lshl_b32 s46, s{sT0}, 10")
    a("s_add_u32 s46, s46, s60")
    a(f"s_add_u32 s46, s46, {QO}")
    a("s_add_u32 s47, s46, 1024")
    a(f"s_lshl_b32 s37, s{sT0}, 11")
    a("s_add_u32 s60, s60, s37")
    a(f"s_lshl_b32 s37, s{sT1}, 11")
    a(f"s_mul_i32 s36, s{sT0}, {HS()}")
    a(f"s_add_u32 s36, s36, s37")
    a(f"s_add_u32 s36, s36, {KVG}")
    a(f"s_add_u32 s37, s36, {HS()}")
    a(f"v_mul_u32_u24 v156, {HS() - 2048}, v{vT + 4}")
    a(f"v_add_u32 v156, v156, v{vVoff}")
    for r in range(12):
        a(f"v_mov_b32 v{CS + r}, 0")
    a("s_waitcnt lgkmcnt(0)")
    ws_srd(a)
    a(f"s_lshl_b32 s{sT0}, s{sCg}, 1")
    a(f"s_add_u32 s{sT0}, s{sT0}, s{sWc}")
    a(f"s_and_b32 s{sT1}, s{sRb}, 3")
    a(f"s_lshl_b32 s{sT1}, s{sT1}, 1")
    a(f"s_add_u32 s{sT1}, s{sT1}, s{sWr}")
    a(f"s_lshl_b32 s{sT1}, s{sT1}, 2")
    a("s_and_b32 s38, s2, 7")
    a("s_lshl_b32 s48, s38, 9")
    a(f"s_lshl_b32 s39, s{sT0}, 5")
    a("s_add_u32 s48, s48, s39")
    a(f"s_add_u32 s48, s48, s{sT1}")
    a(f"s_add_u32 s48, s48, {FL1}")
    a(f"s_lshl_b32 s49, s{sT0}, 10")
    a("s_lshl_b32 s39, s38, 7")
    a("s_add_u32 s49, s49, s39")
    a(f"s_add_u32 s49, s49, s{sT1}")
    a(f"s_add_u32 s49, s49, {FG1}")
    a("s_mov_b32 s38, s60")
    a("s_add_u32 s39, s60, 2048")
    a(f"v_mov_b32 v30, {LMODE}")

    def reads(s):
        st, ss = divmod(s, 2)
        ops = [f"ds_read_b128 {vr(XF[s & 1], 4)}, v{vXrd[s & 3]} offset:{(s >> 2) * 8192}"]
        for seg in range(3):
            for half in range(2):
                reg, off = wl.at(WBASE + (st % NSLOT) * SLOT + ss * 6144 + seg * 1024 + half * 512)
                ops.append(f"ds_read_b64_tr_b16 {vr(WF[s & 1] + 4 * seg + 2 * half, 2)}, {reg} offset:{off}")
        return ops

    rt = {}

    def emit_reads(b, s, lo, hi):
        ops = reads(s)
        for k in range(lo, min(hi, 7)):
            rt[(s, k)] = b.lg(ops[k])

    a("s_barrier")
    if OPT.get("det") != 4:
        stamp(a)
    emit_reads(a, 0, 0, 7)
    a(f"s_cmp_lg_u32 s{sWr}, s{sWc}")
    a("s_cbranch_scc1 L_p1_odd")
    rt0 = dict(rt)
    odd = fork(a)
    odd.label("L_p1_odd")
    acc = [accQ, accK, accV]

    def mm(b, j, w, x, first=False):
        c = "0" if first else vr(acc[j], 16)
        ops = (vr(w, 4), vr(x, 4)) if j < 2 else (vr(x, 4), vr(w, 4))
        b(f"v_mfma_f32_32x32x16_bf16 {vr(acc[j], 16)}, {ops[0]}, {ops[1]}, {c}")

    def csum(b, s, j):
        b(f"v_mfma_f32_16x16x32_bf16 {vr(CS + 4 * j, 4)}, {vr(WF[s & 1] + 4 * j, 4)}, {vr(ONES, 4)}, {vr(CS + 4 * j, 4)}")

    def stats(b, s):
        for r in range(0 if LS else 4):
            b(f"v_dot2_f32_bf16 v{SQ}, v{XF[s & 1] + r}, s{sOnes}, v{SQ}")
            b(f"v_dot2_f32_bf16 v{SQ + 1}, v{XF[s & 1] + r}, v{XF[s & 1] + r}, v{SQ + 1}")

    for par, b in ((0, a), (1, odd)):
        rt.clear()
        rt.update(rt0)
        for s in range(31):
            if s % 2 == 1 and (s + 1) // 2 in BS:
                b.wait(lg=rt[(s, 6)])
                b("s_barrier")
            cutp = [0, 3, 5, 7]
            for j in range(3):
                b.wait(lg=rt[(s, 2 + 2 * j)])
                if s % 2 == par:
                    csum(b, s, j)
                mm(b, j, WF[s & 1] + 4 * j, XF[s & 1], s == 0)
                emit_reads(b, s + 1, cutp[j], cutp[j + 1])
            if s % 2 != par:
                stats(b, s)
            if s == 27:
                b.lg("ds_read_b64 v[102:103], v30")
        b.wait_all(vm=False)
        if par == 1:
            for j in range(3):
                csum(b, 31, j)
        else:
            stats(b, 31)
    odd("s_branch L_p1_join")
    a.label("L_p1_join")
    mm(a, 0, WF[1], XF[1])
    a(f"v_readfirstlane_b32 s{sMode}, v102")
    a(f"v_readfirstlane_b32 s{sTag}, v103")
    if LS:
        a("s_nop 3")
    else:
        a(f"v_mov_b32 v{SQ + 2}, v{SQ}")
        a(f"v_mov_b32 v{SQ + 3}, v{SQ + 1}")
        a(f"v_mov_b32 v{XE + 2}, 0")
        a(f"v_permlane32_swap_b32 v{SQ}, v{SQ + 2}")
        a(f"v_permlane32_swap_b32 v{SQ + 1}, v{SQ + 3}")
        a(f"v_mov_b32 v{XE + 3}, 0")
        a(f"v_add_f32 v{SQ}, v{SQ}, v{SQ + 2}")
        a(f"v_add_f32 v{SQ + 1}, v{SQ + 1}, v{SQ + 3}")
        a.lg(f"ds_write_b64 v{vEr}, {vr(SQ, 2)}")
    a("s_mov_b32 exec_lo, 0x00030003")
    a("s_mov_b32 exec_hi, 0x00030003")
    for j in range(3):
        a.lg(f"ds_write_b128 v{vCw}, {vr(CS + 4 * j, 4)} offset:{j * 128}")
    a("s_mov_b64 exec, -1")
    mm(a, 1, WF[1] + 4, XF[1])
    for j in range(3):
        a(f"v_mov_b32 v{WF[0] + 4 * j + 2}, 0")
        a(f"v_mov_b32 v{WF[0] + 4 * j + 3}, 0")
    a.wait_all(vm=False)
    a("s_barrier")
    if LS:
        a.lg(f"ds_read_b128 {vr(XE, 4)}, v{vEr}")
        a.lg(f"ds_read_b32 v100, v{vRl}")
    else:
        ts = a.lg(f"ds_read_b64 {vr(SQ + 2, 2)}, v31")
    for j in range(3):
        rt[("c", j)] = a.lg(f"ds_read_b32 v{vT + 4 + j}, v{vCr} offset:{j * 128}")
    mm(a, 2, WF[1] + 8, XF[1])
    if OPT.get("det") != 4:
        stamp(a)
    if not LS:
        a.wait(lg=ts)
        a(f"v_add_f32 v{SQ}, v{SQ}, v{SQ + 2}")
        a(f"v_add_f32 v{SQ + 1}, v{SQ + 1}, v{SQ + 3}")
        a(f"v_mul_f32 v{SQ}, {hx(f2u(-1.0 / 512))}, v{SQ}")
        a(f"v_mul_f32 v{SQ + 1}, {hx(f2u(1.0 / 512))}, v{SQ + 1}")
        split_hi_lo(a, SQ, XE, vT, vT + 1)
        a(f"v_fma_f32 v{SQ + 1}, -v{SQ}, v{SQ}, v{SQ + 1}")
        a(f"v_cvt_pk_bf16_f32 v{XE + 1}, v{vT}, 0")
        a(f"v_max_f32 v{SQ + 1}, 0, v{SQ + 1}")
        a(f"v_add_f32 v{SQ + 1}, {hx(f2u(1e-5))}, v{SQ + 1}")
        a(f"v_rsq_f32 v100, v{SQ + 1}")
    for j in range(3):
        w = WF[0] + 4 * j
        a.wait(lg=rt[("c", j)])
        a(f"v_cvt_pk_bf16_f32 v{w + 1}, v{vT + 4 + j}, 0")
        a(f"v_lshlrev_b32 v{vT}, 16, v{w + 1}")
        a(f"v_sub_f32 v{vT}, v{vT + 4 + j}, v{vT}")
        a(f"v_cvt_pk_bf16_f32 v{w}, v{vT + 4 + j}, v{vT}")
        if j == 0 and not LS:
            a.lg(f"ds_write_b32 v{vRl}, v100")
    for j in range(3):
        mm(a, j, WF[0] + 4 * j, XE)
    a(f"v_mul_f32 v101, {hx(f2u(0.25 * LOG2E))}, v100")
    for g in range(4):
        trv = a.lg(f"ds_read_b128 {vr(RV + 4 * g, 4)}, v{vRr} offset:{g * 32}")
    a("s_nop 4")
    P = 32
    for r in range(0, 16, 2):
        a(f"v_pk_mul_f32 {vr(accQ + r, 2)}, {vr(accQ + r, 2)}, v[100:101] op_sel:[0,1] op_sel_hi:[1,1]")
    for i in range(8):
        a(f"v_cvt_pk_bf16_f32 v{P + i}, v{accQ + 2 * i}, v{accQ + 2 * i + 1}")
    stores(a, [f"buffer_store_dwordx4 {vr(P, 4)}, v{vL16}, {sr(sWS, 4)}, s46 offen",
               f"buffer_store_dwordx4 {vr(P + 4, 4)}, v{vL16}, {sr(sWS, 4)}, s47 offen"])
    for r in range(0, 16, 2):
        a(f"v_pk_mul_f32 {vr(accK + r, 2)}, {vr(accK + r, 2)}, v[100:101] op_sel_hi:[1,0]")
    for i in range(8):
        a(f"v_cvt_pk_bf16_f32 v{P + 8 + i}, v{accK + 2 * i}, v{accK + 2 * i + 1}")
    stores(a, [f"buffer_store_dwordx4 {vr(P + 8, 4)}, v{vKoff}, {sr(sWS, 4)}, s38 offen",
               f"buffer_store_dwordx4 {vr(P + 12, 4)}, v{vKoff}, {sr(sWS, 4)}, s39 offen"])
    a.wait(lg=trv)
    for r in range(0, 16, 2):
        a(f"v_pk_mul_f32 {vr(accV + r, 2)}, {vr(accV + r, 2)}, {vr(RV + r, 2)}")
    for i in range(8):
        a(f"v_cvt_pk_bf16_f32 v{P + 16 + i}, v{accV + 2 * i}, v{accV + 2 * i + 1}")
    stores(a, [f"buffer_store_dwordx4 {vr(P + 16, 4)}, v{vVoff}, {sr(sWS, 4)}, s38 offen offset:1024",
               f"buffer_store_dwordx4 {vr(P + 20, 4)}, v{vVoff}, {sr(sWS, 4)}, s38 offen offset:1536"])
    loc = a.vm_issued - 1
    a.vm(f"buffer_store_dwordx4 {vr(P + 8, 4)}, v{vKoff}, {sr(sWS, 4)}, s36 offen {GM()}")
    a.vm(f"buffer_store_dwordx4 {vr(P + 12, 4)}, v{vKoff}, {sr(sWS, 4)}, s37 offen {GM()}")
    a.vm(f"buffer_store_dwordx4 {vr(P + 16, 4)}, v156, {sr(sWS, 4)}, s36 offen offset:1024 {GM()}")
    a.vm(f"buffer_store_dwordx4 {vr(P + 20, 4)}, v156, {sr(sWS, 4)}, s36 offen offset:1536 {GM()}")
    stamp(a)
    a(f"v_mov_b32 v{vT}, 0")
    a(f"v_mov_b32 v{vT + 1}, s{sTag}")
    a("s_mov_b64 exec, 1")
    if OPT["p1_cnt"]:
        a.wait(vm=loc)
    else:
        a.wait_all(lg=False)
    stores(a, [f"buffer_store_dword v{vT + 1}, v{vT}, {sr(sWS, 4)}, s48 offen"])
    if OPT.get("det") == 4:
        stamp(a)
    a("s_mov_b64 exec, -1")
    return a, odd, h, x


def phase2(a, l, h):
    sHead, sQb, sKh, sQs = 25, 26, 27, 28
    sVm = 34
    vKrd, vVrd, vIdx, vXw, vXr = 3, 4, 5, 6, 7
    Qf = [8, 12]
    Kf, Vf = 16, 32
    S = [64, 80]
    O = [96, 112]
    NEG = 128
    T = 144
    XCH = 131072
    BARS, CB = [[6, 12, 28], {2: 1, 4: 3}] if OPT["p2_sched"] == 0 else [[6, 14, 22, 36], {2: 1, 3: 2, 5: 4}]
    SYN = XCH + 7 * 3072 + 2048 + 4
    h(f"v_mov_b32 v22, {SYN}")
    h("v_mov_b32 v23, 0")
    for off in (0, 4, 8, 32, 16, 20, 24, 48):
        h(f"ds_write_b32 v22, v23 offset:{off}")

    def ready(half, n):
        h(f"v_mov_b32 v23, {n}")
        h(f"ds_write_b32 v22, v23 offset:{16 * half}")

    wl_n = [0]

    def wait_lds(off, n):
        wl_n[0] += 1
        k = wl_n[0]
        h("s_mov_b32 s58, 0x100000")
        h.label(f"L_prog{k}")
        h(f"ds_read_b32 v24, v22 offset:{off}")
        h("s_sub_u32 s58, s58, 1")
        h("s_waitcnt lgkmcnt(0)")
        h("v_readfirstlane_b32 s37, v24")
        h("s_cmp_eq_u32 s58, 0")
        h(f"s_cbranch_scc1 L_prog{k}_x")
        h(f"s_cmp_ge_u32 s37, {n}")
        h(f"s_cbranch_scc1 L_prog{k}_x")
        h(f"s_sleep {OPT['aux_sl']}")
        h(f"s_branch L_prog{k}")
        h.label(f"L_prog{k}_x")

    def late(k):
        def f(label):
            h(f"ds_read_b32 v24, v22 offset:{(8 if k == 0 else 32) + 16}")
            h("s_waitcnt lgkmcnt(0)")
            h("v_readfirstlane_b32 s37, v24")
            h("s_nop 0")
            h("s_cmp_ge_u32 s37, 4")
            h(f"s_cbranch_scc1 {label}")
        return f if OPT["adapt"] else None

    def wait_prog(k):
        for half in range(2):
            wait_lds((8 if k == 0 else 32) + 16 * half, 4)

    h(f"s_lshr_b32 s{sHead}, s2, 3")
    h(f"s_mul_i32 s33, s{sHead}, {HS()}")
    h(f"s_add_u32 s33, s33, {KVG}")
    h(f"s_lshr_b32 s61, s{sHead}, 1")
    h("s_lshl_b32 s61, s61, 10")
    h(f"s_add_u32 s61, s61, {FG1}")
    h(f"v_lshrrev_b32 v6, 3, v{vLane}")
    h("v_lshlrev_b32 v6, 7, v6")
    h(f"v_and_b32 v7, 7, v{vLane}")
    h("v_lshl_add_u32 v6, v7, 2, v6")
    h("s_mov_b64 s[62:63], 0")
    h("s_mov_b32 s59, 0x40000")
    h("s_waitcnt lgkmcnt(0)")
    h("s_barrier")
    h.nostamp = OPT.get("det") != 3
    stamp(h)
    items = [(0, 1, None), (1, 1, None), (0, 2, None), (0, 3, (0, 1)), (0, 4, (0, 2)), (1, 2, (0, 3)), (1, 3, (1, 1)),
             (1, 4, (1, 2)), (0, 5, None), (0, 6, None), (1, 5, None), (0, 7, None), (1, 6, None), (1, 7, None), (0, 8, None)]
    if OPT["kv_gate"] == 0:
        items = [(hf, c, None) for c in range(1, 8) for hf in range(2)] + [(0, 8, None)]
    if OPT["kv_gate"] == 3:
        items = [(0, 1, None), (1, 1, None), (0, 2, None), (1, 2, None), (0, 3, (0, 2)), (0, 4, None), (1, 3, (0, 3)), (1, 4, None),
                 (0, 5, (1, 2)), (0, 6, None), (1, 5, None), (0, 7, None), (1, 6, None), (1, 7, None), (0, 8, None)]
    if OPT["kv_gate"] == 4:
        items = [(0, 1, None), (1, 1, None), (0, 2, None), (0, 3, (0, 1)), (1, 2, None), (0, 4, (0, 2)), (1, 3, None), (1, 4, None),
                 (0, 5, None), (0, 6, None), (1, 5, None), (0, 7, None), (1, 6, None), (1, 7, None), (0, 8, None)]
    if OPT["kv_gate"] == 2:
        items = [(hf, c, None) for hf, c, _ in items]
    pend = []

    def flush(keep):
        while len(pend) > keep:
            hf, c, tok = pend.pop(0)
            h.wait(vm=tok)
            ready(hf, c)

    for n, (half, c, gate) in enumerate(items):
        if gate:
            flush(0)
            wait_lds(4 + 16 * gate[0], gate[1])
        if OPT["p2_ord"] and c < 8:
            h("s_and_b32 s36, s2, 7")
            h(f"s_cmp_le_u32 s36, {c - 1}")
            h(f"s_cselect_b32 s36, {8 * c}, {8 * (c - 1)}")
        else:
            h(f"s_add_u32 s36, s2, {c}")
            h("s_and_b32 s36, s36, 7")
            h("s_lshl_b32 s36, s36, 3")
        if half == 0:
            h("s_bitcmp1_b64 s[62:63], s36")
            h(f"s_cbranch_scc1 L_g1_have{c}")
            h.label(f"L_g1_poll{c}")
            h(f"buffer_load_dword v7, v6, {sr(sWS, 4)}, s61 offen sc1")
            h("s_sub_u32 s59, s59, 1")
            h("s_waitcnt vmcnt(0)")
            for hf, cc, _ in pend:
                ready(hf, cc)
            h(f"v_cmp_eq_u32 vcc, s{sTag}, v7")
            h("s_cmp_eq_u32 s59, 0")
            h("s_cselect_b64 s[62:63], -1, vcc")
            h("s_cselect_b32 s59, 1, s59")
            for sh in (1, 2, 4):
                h(f"s_lshr_b64 s[34:35], s[62:63], {sh}")
                h("s_and_b64 s[62:63], s[62:63], s[34:35]")
            h("s_bitcmp1_b64 s[62:63], s36")
            h(f"s_cbranch_scc0 L_g1_poll{c}")
            h.label(f"L_g1_have{c}")
        if n in (0, 3, 8, 14):
            stamp(h)
        if c == 8:
            break
        h("s_lshl_b32 s36, s36, 11")
        h("s_add_u32 s36, s36, s33")
        for q in range(2):
            h(f"s_mov_b32 m0, {half * 65536 + c * 8192 + q * 4096}")
            h(f"s_add_u32 s37, s36, {half * 8192 + q * 4096}")
            for i in range(4):
                tok = h.vm(f"buffer_load_dwordx4 v{vL16}, {sr(sWS, 4)}, s37 offen offset:{i * 1024} sc1 lds")
        pend.append((half, c, tok))
        if n == OPT["t_at"]:
            touch_setup(h)
            touch_weights(h)
        flush(OPT['kv_fl'])
    if OPT["t_at"] > 20:
        touch_setup(h)
    h(f"v_lshrrev_b32 v8, 3, v{vLane}")
    h(f"v_and_b32 v9, 7, v{vLane}")
    h(f"v_lshrrev_b32 v10, 2, v{vLane}")
    h("v_and_b32 v10, 4, v10")
    h("v_xor_b32 v10, v10, v9")
    h("v_lshlrev_b32 v10, 4, v10")
    h("v_lshl_add_u32 v10, v8, 10, v10")
    h("v_lshrrev_b32 v11, 1, v8")
    h("v_xor_b32 v11, v11, v9")
    h("v_lshlrev_b32 v11, 4, v11")
    h("v_lshl_add_u32 v11, v8, 10, v11")
    h("v_xor_b32 v12, 64, v11")
    h(f"v_and_b32 v13, 2, v{vLane}")
    h("v_lshlrev_b32 v13, 5, v13")
    h("v_sub_u32 v13, 32, v13")
    h("s_lshr_b32 s61, s2, 4")
    h("s_mul_i32 s61, s61, 192")
    for i in range(3):
        h(f"v_add_u32 v14, {64 * i}, v{vLane}")
        h("v_mul_u32_u24 v14, 171, v14")
        h("v_lshrrev_b32 v14, 11, v14")
        h(f"v_mul_u32_u24 v14, {2752 - 192}, v14")
        h(f"v_add3_u32 v{16 + i}, v{vL16}, v14, s61")
        h(f"v_add_u32 v{19 + i}, v{16 + i}, v13")
    h("s_bfe_u32 s60, s2, 0x30003")
    h("s_lshl_b32 s60, s60, 7")
    flush(0)
    stamp(h)
    if OPT["t_at"] > 20:
        touch_weights(h, late(0))
    h("s_and_b32 s36, s2, 7")
    h("s_lshl_b32 s36, s36, 3")
    h(f"s_lshr_b32 s{sT1}, s{sT0}, 2")
    h(f"s_add_u32 s36, s36, s{sT1}")
    h(f"s_mul_i32 s36, s36, {RT}")
    h(f"s_and_b32 s{sT1}, s{sT0}, 3")
    h(f"s_mul_i32 s{sT1}, s{sT1}, {52 * 128}")
    h(f"s_add_u32 s36, s36, s{sT1}")
    h(f"s_add_u32 s36, s36, {96 * 1024}")
    h("s_mov_b32 exec_hi, 0xfffff")
    h.vm(f"buffer_load_dword v5, v3, {sr(sWS, 4)}, s36 offen")
    h(f"s_lshl_b32 s{sT1}, s{sT0}, 11")
    h(f"v_add_u32 v4, s{sT1}, v3")
    h("s_mov_b64 exec, 0xffff")
    code_prefetch(h, "L_p2_tail", 38, 4, 5, "p2")
    h("s_mov_b64 exec, -1")
    stamp(h)
    wait_prog(0)
    stamp(h)
    for half in range(2):
        h(f"s_mov_b32 m0, {half * 65536}")
        h(f"s_add_u32 s36, s60, {half * 32 * 8192}")
        h("s_mov_b32 s37, 32")
        h.label(f"L_pre_wo{half}")
        h(f"buffer_load_dwordx4 v10, {sr(16, 4)}, s36 offen lds")
        h("s_add_u32 m0, m0, 1024")
        h("s_add_u32 s36, s36, 8192")
        h("s_sub_u32 s37, s37, 1")
        h("s_cmp_lg_u32 s37, 0")
        h(f"s_cbranch_scc1 L_pre_wo{half}")
        h("s_waitcnt vmcnt(16)")
    h("s_lshr_b32 s36, s2, 6")
    h("s_lshl_b32 s36, s36, 16")
    h("s_add_u32 s36, s36, s60")
    for i in range(8):
        h(f"s_mov_b32 m0, {RES3 + i * 1024}")
        h(f"s_add_u32 s37, s36, {i * 8192}")
        h(f"buffer_load_dwordx4 v{11 + (i & 1)}, {sr(44, 4)}, s37 offen lds")
    h("s_waitcnt vmcnt(16)")
    if OPT["retouch"]:
        if OPT["adapt"]:
            late(1)("L_skip_rt")
        h("s_and_b32 s36, s2, 7")
        h("s_lshl_b32 s36, s36, 3")
        h(f"s_lshr_b32 s{sT1}, s{sT0}, 2")
        h(f"s_add_u32 s36, s36, s{sT1}")
        h(f"s_mul_i32 s36, s36, {RT}")
        h(f"s_and_b32 s{sT1}, s{sT0}, 3")
        h(f"s_lshl_b32 s{sT1}, s{sT1}, 13")
        h(f"s_add_u32 s36, s36, s{sT1}")
        h(f"s_add_u32 s37, s36, {QO}")
        h(f"buffer_load_dword v5, v3, {sr(sWS, 4)}, s37 offen")
        h(f"buffer_load_dword v5, v3, {sr(sWS, 4)}, s36 offen")
        if OPT["retouch"] > 1:
            h(f"s_add_u32 s37, s36, {GO}")
            h(f"buffer_load_dword v5, v3, {sr(sWS, 4)}, s37 offen")
        h.label("L_skip_rt")
    h("s_cmp_ge_u32 s2, 240")
    h("s_cbranch_scc1 L_pre_end")
    stamp(h)
    wait_prog(1)
    stamp(h)
    for st in range(OPT["w4pre"]):
        for g2 in range(2):
            for mat in range(2):
                h(f"s_mov_b32 m0, {WS4[st] + (g2 * 2 + mat) * 3072}")
                h(f"s_mov_b32 s36, {(st * 32 + g2 * 16) * 2752}")
                for i in range(3):
                    h(f"buffer_load_dwordx4 v{16 + 3 * mat + i}, {sr(20 if mat == 0 else 48, 4)}, s36 offen offset:{i * 1024} lds")
        h("s_waitcnt vmcnt(40)")
    stamp(h)
    h.label("L_pre_end")
    h("s_waitcnt vmcnt(0)")
    if OPT.get("det") == 3:
        h(f"s_mov_b32 s{sWave}, 4")
        stamp_flush(h)
    h("s_endpgm")

    def init(b):
        b(f"s_lshr_b32 s{sHead}, s2, 3")
        b(f"s_and_b32 s{sQb}, s2, 7")
        b(f"s_lshr_b32 s{sKh}, s{sWave}, 2")
        b(f"s_and_b32 s{sQs}, s{sWave}, 3")
        b(f"v_and_b32 v{T}, 27, v{vLane}")
        b(f"v_cmp_eq_u32 vcc, 16, v{T}")
        b(f"v_mov_b32 v{T}, 0x3f803f80")
        b(f"v_mov_b32 v{vIdx}, 0xdddd")
        for r in range(32):
            b(f"v_cndmask_b32 v{Vf + r}, 0, v{T}, vcc")
        b(f"s_mov_b32 s{sVm}, 0x0000ffff")
        b(f"s_mov_b32 s{sVm + 1}, 0x0000ffff")
        b(f"s_lshl_b32 s{sT0}, s{sKh}, 16")
        b(f"v_add_u32 v{vKrd}, s{sT0}, v{vL16}")
        b(f"v_lshrrev_b32 v{T}, 5, v{vLane}")
        b(f"v_and_b32 v{T + 1}, 15, v{vLane}")
        b(f"v_lshlrev_b32 v{T + 1}, 4, v{T + 1}")
        b(f"v_lshl_add_u32 v{T}, v{T}, 8, v{T + 1}")
        b(f"v_add_u32 v{vVrd}, s{sT0}, v{T}")
        b(f"s_mul_i32 s{sT0}, s{sWave}, 3072")
        b(f"s_add_u32 s{sT0}, s{sT0}, {XCH}")
        b(f"v_add_u32 v{vXw}, s{sT0}, v{vL16}")
        b(f"s_xor_b32 s{sT1}, s{sWave}, 4")
        b(f"s_mul_i32 s{sT0}, s{sT1}, 3072")
        b(f"s_add_u32 s{sT0}, s{sT0}, {XCH}")
        b(f"v_add_u32 v{vXr}, s{sT0}, v{vL16}")
        b(f"s_lshl_b32 s{sT0}, s{sQs}, 1")
        b(f"s_add_u32 s{sT0}, s{sT0}, s{sKh}")
        b(f"s_lshl_b32 s{sT0}, s{sT0}, 10")
        b(f"s_add_u32 s{sT0}, s{sT0}, {XCH}")
        b(f"v_add_u32 v{T + 2}, s{sT0}, v{vL16}")
        b(f"v_xor_b32 v{T + 3}, 1024, v{T + 2}")
        b(f"s_lshl_b32 s{sT0}, s{sKh}, 4")
        b(f"s_add_u32 s{sT0}, s{sT0}, {SYN}")
        b(f"v_mov_b32 v{T + 6}, s{sT0}")
        b(f"v_mov_b32 v{T + 7}, 1")
        for c in range(2):
            for r in range(16):
                b(f"v_mov_b32 v{O[c] + r}, 0")
        b(f"s_lshl_b32 s57, s{sQb}, 2")
        b(f"s_add_u32 s57, s57, s{sQs}")
        b(f"s_lshl_b32 s55, s57, 8")
        b(f"s_lshl_b32 s{sT1}, s{sHead}, 1")
        b(f"s_add_u32 s{sT1}, s{sT1}, s{sKh}")
        b(f"s_lshl_b32 s{sT1}, s{sT1}, 2")
        b(f"s_add_u32 s55, s55, s{sT1}")
        b(f"s_add_u32 s55, s55, {F2}")
        b(f"s_lshl_b32 s57, s57, 1")
        b(f"s_add_u32 s57, s57, s{sKh}")
        b(f"s_mul_i32 s57, s57, {RT}")
        b(f"s_lshl_b32 s{sT1}, s{sHead}, 10")
        b(f"s_add_u32 s57, s57, s{sT1}")
        b(f"s_add_u32 s57, s57, {QO}")

    init(l)
    l(f"s_lshl_b32 s40, s{sQb}, 9")
    l(f"s_lshr_b32 s{sT0}, s{sHead}, 1")
    l(f"s_lshl_b32 s{sT0}, s{sT0}, 5")
    l(f"s_add_u32 s40, s40, s{sT0}")
    l(f"s_add_u32 s40, s40, {FL1}")
    l(f"s_lshl_b32 s36, s{sQb}, 2")
    l(f"s_add_u32 s36, s36, s{sQs}")
    l(f"s_mul_i32 s36, s36, {2 * RT}")
    l(f"s_lshl_b32 s{sT0}, s{sHead}, 10")
    l(f"s_add_u32 s37, s36, s{sT0}")
    l(f"s_add_u32 s36, s37, s{sT0}")
    l(f"s_add_u32 s37, s37, {QO}")
    l(f"s_add_u32 s42, s36, {RT - 2048}")
    l(f"s_add_u32 s43, s37, {RT - 1024}")
    l(f"s_lshr_b32 s38, s{sQs}, 1")
    l("s_lshl_b32 s38, s38, 16")
    l(f"s_and_b32 s{sT0}, s{sQs}, 1")
    l(f"s_lshl_b32 s{sT0}, s{sT0}, 12")
    l(f"s_add_u32 s38, s38, s{sT0}")
    l(f"s_lshl_b32 s39, s{sQs}, 11")
    l(f"s_add_u32 s39, s39, {XCH}")
    l(f"v_lshlrev_b32 v{T + 4}, 2, v{vLane}")
    l("s_mov_b32 s59, 0x40000")
    l("s_mov_b64 exec, 0xff")
    l.label("L_poll_l1")
    l(f"buffer_load_dword v{T + 5}, v{T + 4}, {sr(sWS, 4)}, s40 offen sc1")
    l("s_sub_u32 s59, s59, 1")
    l.wait_all(lg=False)
    l(f"v_cmp_ne_u32 vcc, s{sTag}, v{T + 5}")
    l("s_cmp_eq_u32 s59, 0")
    l("s_cbranch_scc1 L_poll_l1_x")
    l("s_cbranch_vccnz L_poll_l1")
    l.label("L_poll_l1_x")
    if OPT.get("det") != 2:
        stamp(l)
    l("s_mov_b64 exec, -1")
    l("s_mov_b32 m0, s39")
    l("s_nop 0")
    for i in range(2):
        l.vm(f"buffer_load_dwordx4 v{vL16}, {sr(sWS, 4)}, s{(37, 43)[i]} offen offset:{i * 1024} sc1 lds")
    l("s_mov_b32 m0, s38")
    l("s_nop 0")
    for i in range(4):
        l.vm(f"buffer_load_dwordx4 v{vL16}, {sr(sWS, 4)}, s{(36, 42)[i // 2]} offen offset:{i * 1024} sc1 lds")
    l.wait_all()
    if OPT.get("det") != 2:
        stamp(l)
    l("s_branch L_p2_b0")
    init(a)
    a(f"v_mov_b32 v{T + 4}, 0")
    a(f"v_mov_b32 v{T + 5}, s{sTag}")

    def gflag():
        a.wait_all(lg=False)
        a("s_mov_b64 exec, 1")
        a.vm(f"buffer_store_dword v{T + 5}, v{T + 4}, {sr(sWS, 4)}, s49 offen sc1")
        a("s_mov_b64 exec, -1")

    if not OPT["p2_defer"]:
        gflag()
    if OPT.get("det") == 4:
        stamp(a)
    a.label("L_p2_b0")

    def emit_pair(p, extra=()):
        for t in (2 * p, 2 * p + 1):
            a.lg(f"ds_read_b128 {vr(Kf + 4 * (t & 3), 4)}, v{vKrd} offset:{t * 2048}")
        a(f"s_mov_b64 exec, {sr(sVm, 2)}")
        for t in (2 * p, 2 * p + 1):
            a.lg(f"ds_read_b128 {vr(Vf + 8 * (t & 3), 4)}, v{vVrd} offset:{t * 2048 + 1024}")
            tok = a.lg(f"ds_read_b128 {vr(Vf + 8 * (t & 3) + 4, 4)}, v{vVrd} offset:{t * 2048 + 1536}")
        if extra:
            a("s_mov_b64 exec, 1")
            for e in extra:
                a.lg(e)
        a("s_mov_b64 exec, -1")
        return tok

    def qk(u):
        t, c = divmod(u, 2)
        return f"v_mfma_f32_32x32x16_bf16 {vr(S[u & 1], 16)}, {vr(Kf + 4 * (t & 3), 4)}, {vr(Qf[1 - c], 4)}, 0"

    def pv(u, i):
        t, c = divmod(u, 2)
        return (f"v_smfmac_f32_32x32x32_bf16 {vr(O[1 - c], 16)}, {vr(Vf + 8 * (t & 3) + 4 * i, 4)}, "
                f"{vr(S[u & 1] + 8 * i, 8)}, v{vIdx}")

    NU = 64
    PRIO = [{0: 2, 29: 1, 53: 0}, {0: 2, 29: 1, 60: 0}, {0: 3, 29: 2, 53: 1, 61: 0}][OPT["p2_pr"]]
    rtok = {}

    def need(u, n):
        a.wait(lg=rtok[u])
        a.label(f"L_rdy{u}")
        a(f"v_readfirstlane_b32 s36, v{T + 8}")
        a("s_nop 0")
        a(f"s_cmp_ge_u32 s36, {n}")
        a(f"s_cbranch_scc0 L_rdy{u}_spin")
        sp.label(f"L_rdy{u}_spin")
        sp("s_sleep 2")
        sp(f"ds_read_b32 v{T + 8}, v{T + 6}")
        sp("s_sub_u32 s59, s59, 1")
        sp("s_waitcnt lgkmcnt(0)")
        sp("s_cmp_lg_u32 s59, 0")
        sp(f"s_cbranch_scc1 L_rdy{u}")
        sp("s_mov_b32 s59, 1")
        sp(f"v_mov_b32 v{T + 8}, 7")
        sp("s_nop 0")
        sp(f"s_branch L_rdy{u}")

    sp = Asm()
    a("s_mov_b32 s59, 0x100000")
    a("s_barrier")
    stamp(a)
    a.lg(f"ds_read_b128 {vr(Qf[1], 4)}, v{T + 3}")
    a.lg(f"ds_read_b128 {vr(Qf[0], 4)}, v{T + 2}")
    ptok = {0: emit_pair(0)}
    a.wait(lg=ptok[0] - 5)
    a(qk(0))
    if OPT["p2_defer"]:
        a(f"s_cmp_lg_u32 s{sKh}, 0")
        a("s_cbranch_scc1 L_p2_nogf")
        gflag()
        a.label("L_p2_nogf")
    a.wait(lg=ptok[0])
    a("s_nop 9")
    for u in range(NU):
        X = S[u & 1]
        p, pu = divmod(u, 4)
        if u in PRIO:
            a(f"s_setprio {PRIO[u]}")
        ex = [f"v_exp_f32 v{X + i}, v{X + i}" for i in range(16)]
        a(ex[0]); a(ex[1])
        if u > 0:
            a(pv(u - 1, 1))
        a(ex[2]); a(ex[3]); a(ex[4])
        if u + 1 < NU:
            if pu == 3:
                a.wait(lg=ptok[p + 1])
            a(qk(u + 1))
        late = p + 1 == 2
        if p + 1 < 16 and pu == (2 if late else 0):
            if (p + 1) % 2 == 0:
                need(u, (p + 1) // 2)
            extra = []
            if u in (28, 52):
                extra.append(f"ds_add_u32 v{T + 6}, v{T + 7} offset:{8 if u == 28 else 32}")
            if (p + 1) % 2 == 1 and (p + 2) // 2 <= 3 and OPT["kv_gate"] in (1, 3, 4):
                a(f"v_mov_b32 v{T + 9}, {(p + 2) // 2}")
                extra.append(f"ds_max_u32 v{T + 6}, v{T + 9} offset:4")
            ptok[p + 1] = emit_pair(p + 1, extra)
        nu = u + 1
        if nu < NU and (nu // 4 + 1) % 2 == 0 and nu // 4 + 1 < 16 and nu % 4 == (2 if nu // 4 + 1 == 2 else 0):
            rtok[nu] = a.lg(f"ds_read_b32 v{T + 8}, v{T + 6}")
        for i in range(5, 10):
            a(ex[i])
        a(pv(u, 0))
        for i in range(10, 16):
            a(ex[i])
            if u == NU - 1 and i == 13:
                a.lg(f"ds_write_b128 v{vXw}, {vr(O[1], 4)}")
                a.lg(f"ds_write_b128 v{vXw}, {vr(O[1] + 4, 4)} offset:1024")
                a.lg(f"ds_write_b32 v{vXw}, v{O[1] + 8} offset:2048")
    a.label("L_p2_tail")
    a("s_nop 1")
    a(pv(NU - 1, 1))
    a(f"s_mov_b32 s{sT0}, {hx(f2u(2.0 ** 80))}")
    a(f"s_mov_b32 s{sT1}, {hx(f2u(2.0 ** -80))}")
    a("s_mov_b32 s56, 0")
    a.wait_all(vm=False)
    a("s_barrier")
    t2 = a.lg(f"ds_read_b32 v{T + 8}, v{vXr} offset:2048")
    a.lg(f"ds_read_b128 {vr(T, 4)}, v{vXr}")
    t1 = a.lg(f"ds_read_b128 {vr(T + 4, 4)}, v{vXr} offset:1024")
    a("s_nop 2")
    a.wait(lg=t2)
    a(f"v_add_f32 v{O[0] + 8}, v{O[0] + 8}, v{T + 8}")
    a.wait(lg=t1)
    for r in range(0, 8, 2):
        a(f"v_pk_add_f32 {vr(O[0] + r, 2)}, {vr(O[0] + r, 2)}, {vr(T + r, 2)}")
    a.label("L_p2_finish")
    a(f"v_rcp_f32 v{T + 8}, v{O[0] + 8}")
    a(f"v_cmp_gt_f32 s[40:41], s{sT0}, v{O[0] + 8}")
    a(f"v_cmp_lt_f32 s[42:43], s{sT1}, v{O[0] + 8}")
    for r in range(0, 8, 2):
        a(f"v_pk_mul_f32 {vr(O[0] + r, 2)}, {vr(O[0] + r, 2)}, {vr(T + 8, 2)} op_sel_hi:[1,0]")
    for i in range(4):
        a(f"v_cvt_pk_bf16_f32 v{T + 4 + i}, v{O[0] + 2 * i}, v{O[0] + 2 * i + 1}")
    a(f"v_dot2_f32_bf16 v{T}, v{T + 4}, v{T + 4}, 0")
    for i in range(1, 4):
        a(f"v_dot2_f32_bf16 v{T}, v{T + 4 + i}, v{T + 4 + i}, v{T}")
    a("s_and_b64 s[40:41], s[40:41], s[42:43]")
    a("s_cmp_lg_u32 s56, 0")
    a("s_cbranch_scc1 L_p2_store")
    a(f"v_cmp_gt_f32 vcc, s{sT0}, v{T}")
    a("s_nop 0")
    a("s_and_b64 s[40:41], s[40:41], vcc")
    a("s_cmp_eq_u64 s[40:41], -1")
    a("s_cbranch_scc0 L_p2_fallback")
    a.label("L_p2_store")
    stores(a, [f"buffer_store_dwordx4 {vr(T + 4, 4)}, v{vL16}, {sr(sWS, 4)}, s57 offen"])
    a("s_barrier")
    stamp(a)

    f = Asm()
    f.label("L_p2_fallback")
    vV2, vM = T + 11, T + 12
    f(f"s_lshl_b32 s37, s{sKh}, 16")
    f(f"v_subrev_u32 v{vV2}, s37, v{vVrd}")
    f(f"s_mul_i32 s36, s{sHead}, {HS()}")
    f(f"s_add_u32 s36, s36, {KVG}")
    f(f"v_mov_b32 v{vM}, 0xff800000")
    f("s_mov_b32 s56, 0")
    f("s_mov_b32 s37, s36")
    f.label("L_p2_fb_max")
    f(f"buffer_load_dwordx4 {vr(Kf, 4)}, v{vL16}, {sr(sWS, 4)}, s37 offen sc1")
    f("s_waitcnt vmcnt(0)")
    f(f"v_mfma_f32_32x32x16_bf16 {vr(S[0], 16)}, {vr(Kf, 4)}, {vr(Qf[0], 4)}, 0")
    f("s_nop 15")
    for i in range(8):
        f(f"v_max3_f32 v{vM}, v{vM}, v{S[0] + 2 * i}, v{S[0] + 2 * i + 1}")
    f("s_add_u32 s37, s37, 2048")
    f("s_add_u32 s56, s56, 1")
    f("s_cmp_lt_u32 s56, 64")
    f("s_cbranch_scc1 L_p2_fb_max")
    f(f"v_mov_b32 v{T}, v{vM}")
    f("s_nop 1")
    f(f"v_permlane32_swap_b32 v{vM}, v{T}")
    f("s_nop 1")
    f(f"v_max_f32 v{vM}, v{vM}, v{T}")
    for r in range(16):
        f(f"v_sub_f32 v{NEG + r}, 0, v{vM}")
        f(f"v_mov_b32 v{O[0] + r}, 0")
    f("s_mov_b32 s56, 0")
    f("s_mov_b32 s37, s36")
    f.label("L_p2_fb_pv")
    f(f"buffer_load_dwordx4 {vr(Kf, 4)}, v{vL16}, {sr(sWS, 4)}, s37 offen sc1")
    f(f"s_mov_b64 exec, {sr(sVm, 2)}")
    f(f"buffer_load_dwordx4 {vr(Vf, 4)}, v{vV2}, {sr(sWS, 4)}, s37 offen offset:1024 sc1")
    f(f"buffer_load_dwordx4 {vr(Vf + 4, 4)}, v{vV2}, {sr(sWS, 4)}, s37 offen offset:1536 sc1")
    f("s_mov_b64 exec, -1")
    f("s_waitcnt vmcnt(0)")
    f(f"v_mfma_f32_32x32x16_bf16 {vr(S[0], 16)}, {vr(Kf, 4)}, {vr(Qf[0], 4)}, {vr(NEG, 16)}")
    f("s_nop 15")
    for i in range(16):
        f(f"v_exp_f32 v{S[0] + i}, v{S[0] + i}")
    f("s_nop 1")
    f(f"v_smfmac_f32_32x32x32_bf16 {vr(O[0], 16)}, {vr(Vf, 4)}, {vr(S[0], 8)}, v{vIdx}")
    f(f"v_smfmac_f32_32x32x32_bf16 {vr(O[0], 16)}, {vr(Vf + 4, 4)}, {vr(S[0] + 8, 8)}, v{vIdx}")
    f("s_nop 15")
    f("s_add_u32 s37, s37, 2048")
    f("s_add_u32 s56, s56, 1")
    f("s_cmp_lt_u32 s56, 64")
    f("s_cbranch_scc1 L_p2_fb_pv")
    f("s_branch L_p2_finish")
    f.lines += sp.lines
    return f


def phase_res(a, h, k3, pre_publish=None):
    uid = "p3" if k3 else "p5"
    KS = 32 if k3 else 86
    ACT = QO if k3 else GO
    NST = (KS + 3) // 4
    NA = OPT["p5_na"]
    WSL = WS3 if k3 else WS5[:19 - NA]
    NW = len(WSL)
    if k3:
        ASL = [(122880, -9), (131072, -9), (139264, -9), (147456, -9), (57344, -9), (122880, 0), (WS3[0], 0), (131072, 1)]
    else:
        ASL = [(163840 - NA * 8192 + (n % NA) * 8192, n - NA if n >= NA else -9) for n in range(NST)]
    RESO = RES3 if k3 else 24576
    busy = {WSL[(NST - 1) % NW], WSL[(NST - 2) % NW]}
    TRO = [o for o in WSL if o + 8192 in WSL and not ({o, o + 8192} & busy)][0]
    sW, sIO = 16, 20
    sWr, sWc, sRb, sCb = 25, 26, 27, 28
    T = 12
    for b in (a, h):
        b(f"s_and_b32 s{sT0}, s2, 7")
        b(f"s_lshl_b32 s{sRb}, s{sT0}, 2")
        b(f"s_lshr_b32 s34, s2, 6")
        b(f"s_add_u32 s{sRb}, s{sRb}, s34")
        b(f"s_bfe_u32 s{sCb}, s2, 0x30003")
        b(f"s_and_b32 s{sWr}, s{sWave}, 1")
        b(f"s_bfe_u32 s{sWc}, s{sWave}, 0x10001")
    vWoff, vXg = 3, 5
    h(f"v_lshrrev_b32 v{T}, 3, v{vLane}")
    h(f"v_and_b32 v{T + 1}, 7, v{vLane}")
    h(f"v_lshrrev_b32 v{T + 2}, 2, v{vLane}")
    h(f"v_and_b32 v{T + 2}, 4, v{T + 2}")
    h(f"v_xor_b32 v{T + 2}, v{T + 2}, v{T + 1}")
    h(f"v_lshlrev_b32 v{T + 2}, 4, v{T + 2}")
    h(f"v_lshl_add_u32 v{T + 2}, v{T}, 10, v{T + 2}")
    h(f"s_mul_i32 s44, s{sHw}, {3 * 16384}")
    h(f"s_lshl_b32 s{sT0}, s{sCb}, 7")
    h(f"v_add_u32 v{vWoff}, s{sT0}, v{T + 2}")
    h(f"v_add_u32 v{vWoff + 1}, {8192 - 1024}, v{vWoff}")
    h(f"s_lshl_b32 s32, s{sHw}, 11")
    h(f"s_lshl_b32 s33, s{sRb}, 1")
    h(f"s_add_u32 s33, s33, s{sWr}")
    h(f"s_mul_i32 s34, s33, {RT}")
    h(f"s_lshl_b32 s{sT1}, s{sWc}, 11")
    h(f"s_add_u32 s34, s34, s{sT1}")
    h(f"s_add_u32 s34, s34, {ACT}")
    h(f"s_lshl_b32 s35, s{sWr}, 12")
    h(f"s_add_u32 s35, s35, s{sT1}")
    if k3:
        pass
    else:
        h(f"s_mul_i32 s36, s33, {RT}")
        h(f"s_lshl_b32 s{sT0}, s{sCb}, 12")
        h(f"s_add_u32 s36, s36, s{sT0}")
        h(f"s_add_u32 s36, s36, s{sT1}")
    srd(h, sW, KWO if k3 else KD, KS * 16 * 1024)
    if pre_publish is not None:
        publish(h, pre_publish, T + 4)
    dr = Drip(h)

    def issue_w(st):
        cl = [(4 * st + w >= 29) + (4 * st + w >= 58) for w in range(4)]
        pre = [f"s_add_u32 s42, s44, {hx((12 * st - 86 * cl[0]) * 16384)}"]
        if cl[3] != cl[0]:
            pre += [f"s_add_u32 s45, s44, {hx((12 * st - 86 * cl[3]) * 16384)}", f"s_cmp_ge_u32 s{sHw}, {cl.index(cl[3])}",
                    "s_cselect_b32 s42, s45, s42"]
        dr.add(st, [f"s_add_u32 m0, s32, {WSL[st % NW]}"] + pre,
               f"buffer_load_dwordx4 v{vWoff}, {sr(sW, 4)}, s42 offen lds")
        dr.add(st, [], f"buffer_load_dwordx4 v{vWoff + 1}, {sr(sW, 4)}, s42 offen offset:1024 lds")

    def issue_a(st):
        dr.add(st, [f"s_add_u32 m0, s35, {ASL[st][0]}", f"s_add_u32 s43, s34, {st * 4096}"],
               f"buffer_load_dwordx4 v{vL16}, {sr(sWS, 4)}, s43 offen {LD()} lds")
        dr.add(st, [], f"buffer_load_dwordx4 v{vL16}, {sr(sWS, 4)}, s43 offen offset:1024 {LD()} lds")

    if not k3:
        for st in range(NW):
            issue_w(st)
    dr.emit(100)
    if not OPT.get("det"):
        stamp(h)
    if k3 and OPT["lpoll"]:
        h(f"s_lshl_b32 s40, s{sRb}, 8")
        h(f"s_add_u32 s40, s40, {F2}")
        poll(h, 40, T + 4, "p3l", every=True, barrier=False)
    elif k3:
        h("s_barrier")
    else:
        h(f"s_lshl_b32 s40, s{sRb}, 9")
        h(f"s_add_u32 s40, s40, {F4}")
        poll(h, 40, T + 4, "p5l", 30, every=True, barrier=False)
    if not OPT.get("det"):
        stamp(h)
    AHEAD = OPT["p3_a"] if k3 else OPT["p5_a"]
    nxt_a = 0
    for st in range(NST):
        while nxt_a <= min(st + AHEAD, NST - 1):
            if not k3 and ((nxt_a >= 7 and st <= 2) or (nxt_a >= 14 and st <= OPT["p5_c2"])):
                break
            if ASL[nxt_a][1] > st - 3:
                break
            issue_a(nxt_a)
            nxt_a += 1
        if not k3 and st == 1:
            dr.add(4, [f"s_add_u32 m0, s35, {RESO}", "s_nop 0"], f"buffer_load_dwordx4 v{vL16}, {sr(sWS, 4)}, s36 offen {LD()} lds")
            dr.add(4, [], f"buffer_load_dwordx4 v{vL16}, {sr(sWS, 4)}, s36 offen offset:1024 {LD()} lds")
        dr.emit(100)
        h.wait(vm=dr.tok[st])
        h("s_barrier")
        if st >= 2 and st - 2 + NW < NST:
            issue_w(st - 2 + NW)
    if k3:
        h("s_barrier")
    RST = 0 if k3 else 4
    vWrd, vAr, vRr, vTw, vTr, vOut = [3, 4], [5, 6, 22], [7, 8], 9, 10, 11
    ID = 24
    FR = [32, 72]
    acc = 112
    a(f"v_and_b32 v{T}, 31, v{vLane}")
    a(f"v_lshrrev_b32 v{T + 1}, 5, v{vLane}")
    a(f"v_bfe_u32 v{T + 2}, v{vLane}, 2, 2")
    a(f"v_lshl_add_u32 v{T + 3}, v{T + 1}, 2, v{T + 2}")
    a(f"v_lshlrev_b32 v{T + 3}, 7, v{T + 3}")
    a(f"v_bfe_u32 v{T + 4}, v{vLane}, 4, 1")
    a(f"v_lshl_add_u32 v{T + 3}, v{T + 4}, 5, v{T + 3}")
    a(f"v_and_b32 v{T + 4}, 3, v{vLane}")
    a(f"v_lshl_add_u32 v{T + 3}, v{T + 4}, 3, v{T + 3}")
    a(f"v_lshrrev_b32 v{T + 2}, 1, v{T + 2}")
    a(f"v_xor_b32 v{T + 2}, s{sWc}, v{T + 2}")
    a(f"v_lshl_add_u32 v{vWrd[0]}, v{T + 2}, 6, v{T + 3}")
    wl = LdsAddr(a, vWrd)
    wl.setup(a)
    a(f"s_lshl_b32 s{sT0}, s{sWr}, 12")
    a(f"v_add_u32 v{vAr[0]}, s{sT0}, v{vL16}")
    al = LdsAddr(a, vAr)
    al.setup(a)
    if k3:
        a(f"v_bfe_u32 v{T + 2}, v{vLane}, 1, 3")
        a(f"v_xor_b32 v{T + 2}, v{T + 2}, v{T + 1}")
        a(f"s_lshl_b32 s{sT1}, s{sWc}, 2")
        a(f"v_xor_b32 v{T + 2}, s{sT1}, v{T + 2}")
        a(f"v_lshlrev_b32 v{T + 2}, 4, v{T + 2}")
        a(f"v_lshl_add_u32 v{T + 2}, v{T}, 7, v{T + 2}")
        a(f"s_add_u32 s{sT0}, s{sT0}, {RESO}")
        a(f"v_add_u32 v{vRr[0]}, s{sT0}, v{T + 2}")
        a(f"v_xor_b32 v{vRr[1]}, 32, v{vRr[0]}")
    else:
        a(f"s_lshl_b32 s{sT1}, s{sWc}, 11")
        a(f"s_add_u32 s{sT0}, s{sT0}, s{sT1}")
        a(f"s_add_u32 s{sT0}, s{sT0}, {RESO}")
        a(f"v_add_u32 v{vRr[0]}, s{sT0}, v{vL16}")
        a(f"v_add_u32 v{vRr[1]}, 1024, v{vRr[0]}")
    if pre_publish is not None:
        publish(a, pre_publish, T + 6)
    a(f"v_mov_b32 v{T + 5}, 0x3f80")
    for e in range(2):
        if k3:
            a(f"v_lshlrev_b32 v{T + 2}, 3, v{T + 1}")
            a(f"v_sub_u32 v{T + 2}, v{T}, v{T + 2}")
            a(f"v_subrev_u32 v{T + 2}, {16 * e}, v{T + 2}")
        else:
            a(f"v_bfe_u32 v{T + 2}, v{vLane}, 3, 1")
            a(f"v_and_b32 v{T + 3}, 3, v{vLane}")
            a(f"v_lshl_add_u32 v{T + 2}, v{T + 2}, 2, v{T + 3}")
            a(f"v_bfe_u32 v{T + 3}, v{vLane}, 2, 1")
            a(f"v_xor_b32 v{T + 3}, v{T + 3}, v{T + 1}")
            a(f"v_bfe_u32 v{T + 4}, v{vLane}, 4, 1")
            a(f"v_xor_b32 v{T + 4}, {e}, v{T + 4}")
            a(f"v_or_b32 v{T + 3}, v{T + 3}, v{T + 4}")
            a(f"v_lshl_add_u32 v{T + 2}, v{T + 3}, 4, v{T + 2}")
        a(f"v_and_b32 v{T + 3}, 1, v{T + 2}")
        a(f"v_lshlrev_b32 v{T + 3}, 4, v{T + 3}")
        a(f"v_lshlrev_b32 v{T + 3}, v{T + 3}, v{T + 5}")
        a(f"v_lshrrev_b32 v{T + 2}, 1, v{T + 2}")
        for r in range(4):
            a(f"v_cmp_eq_u32 vcc, {r}, v{T + 2}")
            a("s_nop 1")
            a(f"v_cndmask_b32 v{ID + 4 * e + r}, 0, v{T + 3}, vcc")
    a(f"s_lshl_b32 s33, s{sRb}, 1")
    a(f"s_add_u32 s33, s33, s{sWr}")
    a(f"s_lshl_b32 s34, s{sCb}, 1")
    a(f"s_add_u32 s34, s34, s{sWc}")
    if k3:
        a(f"s_mul_i32 s{sT1}, s33, {RT}")
        a(f"s_lshl_b32 s36, s34, 11")
        a(f"s_add_u32 s36, s36, s{sT1}")
        a(f"s_lshl_b32 s37, s34, 8")
        a(f"s_add_u32 s37, s37, s{sT1}")
        a(f"s_add_u32 s37, s37, {SO}")
        a("s_mov_b32 s41, 0x3f803f80")
        a(f"v_lshlrev_b32 v{vOut}, 3, v{vLane}")
        a(f"s_lshl_b32 s55, s{sRb}, 7")
        a(f"s_lshl_b32 s{sT1}, s{sCb}, 4")
        a(f"s_add_u32 s55, s55, s{sT1}")
        a(f"s_lshl_b32 s{sT1}, s{sWave}, 2")
        a(f"s_add_u32 s55, s55, s{sT1}")
        a(f"s_add_u32 s55, s55, {F3}")
    else:
        a(f"s_mul_i32 s{sT0}, s{sHw}, 2560")
        a(f"s_add_u32 s{sT0}, s{sT0}, {TRO}")
        a(f"v_mul_u32_u24 v{T + 2}, 80, v{T}")
        a(f"v_lshl_add_u32 v{T + 2}, v{T + 1}, 3, v{T + 2}")
        a(f"v_add_u32 v{vTw}, s{sT0}, v{T + 2}")
        a(f"v_lshrrev_b32 v{T + 2}, 2, v{vLane}")
        a(f"v_and_b32 v{T + 3}, 3, v{vLane}")
        a(f"v_lshlrev_b32 v{T + 3}, 4, v{T + 3}")
        a(f"v_mad_u32_u24 v{T + 4}, v{T + 2}, 64, v{T + 3}")
        a(f"v_lshl_add_u32 v{T + 4}, v{T + 2}, 4, v{T + 4}")
        a(f"v_add_u32 v{vTr}, s{sT0}, v{T + 4}")
        a(f"v_lshl_add_u32 v{vOut}, v{T + 2}, 10, v{T + 3}")
        a(f"s_lshl_b32 s36, s33, 15")
        a(f"s_lshl_b32 s37, s34, 6")
        a(f"s_add_u32 s36, s36, s37")
        a(f"s_add_u32 s37, s36, 16384")
        srd(a, sIO, KO, 2048 * 1024)
    a(f"s_lshl_b32 s40, s{sRb}, {8 if k3 else 9}")
    a(f"s_add_u32 s40, s40, {F2 if k3 else F4}")
    if k3 and not OPT["lpoll"]:
        poll(a, 40, T + 6, uid, 64)
    first = True
    prev = []
    for st in range(NST):
        if not k3 and st in (0, OPT["p5_c2"] - 3):
            poll_issue(a, 40, T + 6, f"p5i{st}", 128 if st == 0 else 256)
        if not k3 and st in (2, OPT["p5_c2"]):
            poll(a, 40, T + 6, f"p5c{8 if st > 2 else 1}", 30, barrier=False, off=128 if st == 2 else 256, issued=True)
        a("s_barrier")
        if st == 0:
            stamp(a)
        F = FR[st & 1]
        n = min(4, KS - 4 * st)
        rd = []
        for k in range(n):
            reg, off = al.at(ASL[st][0] + k * 1024)
            rd.append(f"ds_read_b128 {vr(F + 8 * k, 4)}, {reg} offset:{off}")
            for half in range(2):
                reg, off = wl.at(WSL[st % NW] + k * 2048 + half * 1024)
                rd.append(f"ds_read_b64_tr_b16 {vr(F + 8 * k + 4 + 2 * half, 2)}, {reg} offset:{off}")
        cur = [[None, F + 8 * k + 4, F + 8 * k, 3 * k + 2] for k in range(n)]
        if st == RST:
            for e in range(2):
                rd.append(f"ds_read_b128 {vr(F + 32 + 4 * e, 4)}, v{vRr[e]}")
                cur.append([None, ID + 4 * e, F + 32 + 4 * e, len(rd) - 1])
        toks = []
        k = 0
        for tok, wa, xa, _ in prev:
            a.wait(lg=tok)
            a(f"v_mfma_f32_32x32x16_bf16 {vr(acc, 16)}, {vr(wa, 4)}, {vr(xa, 4)}, {'0' if first else vr(acc, 16)}")
            first = False
            for _ in range(3):
                if k < len(rd):
                    toks.append(a.lg(rd[k]))
                    k += 1
        while k < len(rd):
            toks.append(a.lg(rd[k]))
            k += 1
        for c in cur:
            c[0] = toks[c[3]]
        prev = cur
    for tok, wa, xa, _ in prev:
        a.wait(lg=tok)
        a(f"v_mfma_f32_32x32x16_bf16 {vr(acc, 16)}, {vr(wa, 4)}, {vr(xa, 4)}, {vr(acc, 16)}")
    stamp(a)
    a("s_nop 11")
    P = 32
    for i in range(8):
        a(f"v_cvt_pk_bf16_f32 v{P + i}, v{acc + 2 * i}, v{acc + 2 * i + 1}")
    if k3:
        stores(a, [f"buffer_store_dwordx4 {vr(P, 4)}, v{vL16}, {sr(sWS, 4)}, s36 offen",
                   f"buffer_store_dwordx4 {vr(P + 4, 4)}, v{vL16}, {sr(sWS, 4)}, s36 offen offset:1024"])
        a(f"v_dot2_f32_bf16 v{T}, v{P}, s41, 0")
        a(f"v_dot2_f32_bf16 v{T + 1}, v{P}, v{P}, 0")
        for i in range(1, 8):
            a(f"v_dot2_f32_bf16 v{T}, v{P + i}, s41, v{T}")
            a(f"v_dot2_f32_bf16 v{T + 1}, v{P + i}, v{P + i}, v{T + 1}")
        a("s_nop 2")
        a(f"v_mov_b32 v{T + 2}, v{T}")
        a(f"v_mov_b32 v{T + 3}, v{T + 1}")
        a("s_nop 0")
        a(f"v_permlane32_swap_b32 v{T}, v{T + 2}")
        a(f"v_permlane32_swap_b32 v{T + 1}, v{T + 3}")
        a("s_nop 0")
        a(f"v_add_f32 v{T}, v{T}, v{T + 2}")
        a(f"v_add_f32 v{T + 1}, v{T + 1}, v{T + 3}")
        a("s_mov_b32 exec_hi, 0")
        stores(a, [f"buffer_store_dwordx2 {vr(T, 2)}, v{vOut}, {sr(sWS, 4)}, s37 offen"])
        a("s_mov_b64 exec, -1")
        a("s_barrier")
        publish(a, 55, T + 4)
    else:
        for g in range(4):
            a.lg(f"ds_write_b64 v{vTw}, {vr(P + 2 * g, 2)} offset:{g * 16}")
        a.wait_all(vm=False)
        t0 = a.lg(f"ds_read_b128 {vr(P + 8, 4)}, v{vTr}")
        t1 = a.lg(f"ds_read_b128 {vr(P + 12, 4)}, v{vTr} offset:{16 * 80}")
        a.wait(lg=t0)
        a.vm(f"buffer_store_dwordx4 {vr(P + 8, 4)}, v{vOut}, {sr(sIO, 4)}, s36 offen")
        a.wait(lg=t1)
        a.vm(f"buffer_store_dwordx4 {vr(P + 12, 4)}, v{vOut}, {sr(sIO, 4)}, s37 offen")
    stamp(a)


def phase4(a, h):
    sG = 16
    sRb, sCg = 25, 26
    sWL, sAct = 32, 33
    NW, NX, NST = 9, 5, 16
    XO = 122880
    CSO = 24576
    XEO = CSO + 1536
    for b in (a, h):
        b(f"s_and_b32 s{sT0}, s2, 7")
        b(f"s_lshl_b32 s{sT0}, s{sT0}, 1")
        b(f"s_bfe_u32 s{sT1}, s2, 0x10003")
        b(f"s_add_u32 s{sRb}, s{sT0}, s{sT1}")
        b(f"s_lshr_b32 s{sCg}, s2, 4")
    a("s_cmp_ge_u32 s2, 240")
    a("s_cbranch_scc1 L_p4_skip_c")
    h("s_cmp_ge_u32 s2, 240")
    h("s_cbranch_scc1 L_p4_skip_l")
    vWoff = [3, 4, 5]
    vT = 16
    h(f"s_lshl_b32 s{sAct}, s{sRb}, 2")
    h(f"s_add_u32 s{sAct}, s{sAct}, s{sHw}")
    h(f"s_mul_i32 s{sAct}, s{sAct}, {RT}")
    h(f"s_add_u32 s38, s{sAct}, {SO}")
    h(f"s_lshr_b32 s34, s{sHw}, 1")
    h(f"s_and_b32 s35, s{sHw}, 1")
    h(f"s_mul_i32 s{sT0}, s34, {16 * 2752}")
    h(f"s_mul_i32 s{sT1}, s{sCg}, 192")
    h(f"s_add_u32 s{sT0}, s{sT0}, s{sT1}")
    h(f"v_and_b32 v{vT + 3}, 2, v{vLane}")
    h(f"v_lshlrev_b32 v{vT + 3}, 5, v{vT + 3}")
    h(f"v_sub_u32 v{vT + 3}, 32, v{vT + 3}")
    h(f"v_mul_lo_u32 v{vT + 3}, v{vT + 3}, s35")
    h(f"v_add_u32 v{vT + 3}, s{sT0}, v{vT + 3}")
    for i in range(3):
        h(f"v_add_u32 v{vT}, {64 * i}, v{vLane}")
        h(f"v_mul_u32_u24 v{vT + 1}, 171, v{vT}")
        h(f"v_lshrrev_b32 v{vT + 1}, 11, v{vT + 1}")
        h(f"v_mul_u32_u24 v{vT + 2}, {2752 - 192}, v{vT + 1}")
        h(f"v_add3_u32 v{vWoff[i]}, v{vL16}, v{vT + 2}, v{vT + 3}")
    h(f"s_mul_i32 s{sWL}, s{sHw}, 3072")
    h(f"s_lshl_b32 s36, s{sHw}, 11")
    h(f"s_add_u32 s36, s36, {XO}")
    h("s_cmp_eq_u32 s35, 0")
    h(f"s_cselect_b32 s{sG}, s{KG}, s{KU}")
    h(f"s_cselect_b32 s{sG + 1}, s{KG + 1}, s{KU + 1}")
    h(f"s_mov_b32 s{sG + 2}, {hx(512 * 2752)}")
    h(f"s_mov_b32 s{sG + 3}, 0x00020000")
    dr = Drip(h)

    def issue_w(key):
        st = key[1] if isinstance(key, tuple) else key
        for i in range(3):
            pre = [f"s_add_u32 m0, s{sWL}, {WS4[st % NW]}", f"s_mov_b32 s42, {st * 32 * 2752}"] if i == 0 else []
            dr.add(key, pre, f"buffer_load_dwordx4 v{vWoff[i]}, {sr(sG, 4)}, s42 offen offset:{i * 1024} lds")

    def issue_x(st):
        for i in range(2):
            pre = [f"s_add_u32 m0, s36, {(st % NX) * 8192}", f"s_add_u32 s43, s{sAct}, {st * 2048}"] if i == 0 else []
            dr.add(st, pre, f"buffer_load_dwordx4 v{vL16}, {sr(sWS, 4)}, s43 offen offset:{i * 1024} {LD()} lds")

    PRE = OPT["p4_pre"]
    for st in range(OPT["w4pre"], PRE):
        issue_w(st)
    dr.emit(100)
    nxt_wi = 3 * PRE
    vPf, vPd = 13, 100
    srd(h, 44, KD, 1376 * 1024)
    h(f"s_lshr_b32 s{sT0}, s2, 3")
    h(f"s_lshl_b32 s{sT0}, s{sT0}, 2")
    h(f"s_add_u32 s{sT0}, s{sT0}, s{sHw}")
    h(f"s_lshl_b32 s{sT0}, s{sT0}, 13")
    h(f"v_lshlrev_b32 v{vPf}, 7, v{vLane}")
    h(f"v_add_u32 v{vPf}, s{sT0}, v{vPf}")
    h(f"v_add_u32 v15, {120 * 8192}, v{vPf}")
    h(f"v_lshrrev_b32 v{vT + 3}, 5, v{vLane}")
    h(f"v_and_b32 v{vT + 4}, 31, v{vLane}")
    h(f"v_lshlrev_b32 v{vT + 4}, 3, v{vT + 4}")
    h(f"v_lshl_add_u32 v{vT + 4}, v{vT + 3}, 11, v{vT + 4}")
    h(f"s_mul_i32 s{sT0}, s{sHw}, 1536")
    h(f"s_add_u32 s{sT0}, s{sT0}, {XEO}")
    h(f"v_add_u32 v{vT + 5}, s{sT0}, v{vL16}")
    h(f"v_lshl_add_u32 v{vT + 6}, v{vLane}, 3, s{sT0}")
    stamp(h)
    if OPT["lpoll"]:
        h(f"s_lshl_b32 s40, s{sRb}, 8")
        h(f"s_add_u32 s40, s40, {F3}")
        poll(h, 40, vT + 8, "p4l", every=True, barrier=False)
    else:
        h("s_barrier")
    stamp(h)
    SP = 32
    vS, vQ, vM, vA = 60, 61, 62, 64
    AHEAD = OPT["p4_a"]
    assert AHEAD < NX
    nxt_x = 0
    for st in range(NST):
        while nxt_x <= min(st + (min(AHEAD, st + 1) if OPT["p4_ramp"] else AHEAD), NST - 1):
            if nxt_x >= NX and nxt_x - NX > st - 2:
                break
            issue_x(nxt_x)
            nxt_x += 1
        dr.emit(100)
        for _ in range(0 if OPT["p4_ramp"] and st == 0 else (OPT["p4_wi2"] + (st & 1)) // 2 + (st in (4, 6) and OPT["p4_ramp"])):
            ws, wi = divmod(nxt_wi, 3)
            if ws < NST and (ws < NW or ws - NW <= st - 2):
                h(f"s_add_u32 m0, s{sWL}, {WS4[ws % NW]}")
                h(f"s_mov_b32 s42, {ws * 32 * 2752}")
                dr.tok[("w", ws)] = h.vm(f"buffer_load_dwordx4 v{vWoff[wi]}, {sr(sG, 4)}, s42 offen offset:{wi * 1024} lds")
                nxt_wi += 1
        assert nxt_wi >= 3 * (st + 1)
        if 1 <= st <= 8:
            i = st - 1
            dr.tok["st"] = h.vm(f"buffer_load_dwordx2 {vr(SP + 2 * i, 2)}, v{vT + 4}, {sr(sWS, 4)}, s38 offen offset:{i * 256} {LD()}")
        h.wait(vm=max(dr.tok[st], dr.tok.get(("w", st), -1)))
        assert st < PRE or ("w", st) in dr.tok
        if st == 11:
            h.wait(vm=dr.tok["st"])
            h(f"v_add_f32 v{vS}, v{SP}, v{SP + 2}")
            h(f"v_add_f32 v{vQ}, v{SP + 1}, v{SP + 3}")
            for i in range(2, 8):
                h(f"v_add_f32 v{vS}, v{vS}, v{SP + 2 * i}")
                h(f"v_add_f32 v{vQ}, v{vQ}, v{SP + 2 * i + 1}")
        if st == 12:
            half_sum(h, vS, vT)
            half_sum(h, vQ, vT)
            h(f"v_mul_f32 v{vM}, {hx(f2u(-1.0 / 512))}, v{vS}")
            h(f"v_mul_f32 v{vQ}, {hx(f2u(1.0 / 512))}, v{vQ}")
            h(f"v_fma_f32 v{vQ}, -v{vM}, v{vM}, v{vQ}")
            h(f"v_max_f32 v{vQ}, 0, v{vQ}")
            h(f"v_add_f32 v{vQ}, {hx(f2u(1e-5))}, v{vQ}")
        if st == 13:
            h(f"v_rsq_f32 v{vA}, v{vQ}")
            split_hi_lo(h, vM, 68, vT, vT + 1)
            h(f"v_mul_f32 v{vA + 1}, v{vQ}, v{vA}")
            h(f"v_mul_f32 v{vA}, {hx(f2u(-LOG2E))}, v{vA}")
            h(f"v_cvt_pk_bf16_f32 v69, v{vT}, 0")
            h("v_mov_b32 v70, 0")
            h("v_mov_b32 v71, 0")
            h.lg(f"ds_write_b128 v{vT + 5}, v[68:71]")
            h.lg(f"ds_write_b64 v{vT + 6}, {vr(vA, 2)} offset:1024")
        if st == 14:
            h.wait_all(vm=False)
        if OPT.get("det") == 1 and st in (3, 7, 11):
            stamp(h)
        h("s_barrier")
        if OPT.get("det") == 1 and st in (3, 7, 11, 15):
            stamp(h)
        if st == OPT["p4_pf"]:
            h.vm(f"buffer_load_dword v{vPd}, v{vPf}, s[44:47], 0 offen")
        if st == OPT["p4_pf"] + 1:
            h.vm(f"buffer_load_dword v{vPd}, v15, s[44:47], 0 offen")
    h("s_barrier")
    h.label("L_p4_skip_l")

    sWr2, sWc = 36, 37
    vWrd, vWrdO, vXa, vCw, vCr, vEr = [3, 4], [5, 6], 7, 8, 9, 10
    ONES, vT, CS, ACC = 12, 16, 20, 32
    XF, WF = [128, 136], [144, 156]
    XE, AS = XF[0], ONES
    t = CS
    a(f"s_lshr_b32 s{sWr2}, s{sHw}, 1")
    a(f"s_and_b32 s{sWc}, s{sHw}, 1")
    a(f"s_lshl_b32 s34, s{sRb}, 1")
    a(f"s_add_u32 s34, s34, s{sWr2}")
    a(f"v_lshrrev_b32 v{t + 3}, 5, v{vLane}")
    a(f"v_bfe_u32 v{t}, v{vLane}, 2, 2")
    a(f"v_lshl_add_u32 v{t}, v{t + 3}, 2, v{t}")
    a(f"v_mul_u32_u24 v{t}, 192, v{t}")
    a(f"v_and_b32 v{t + 1}, 3, v{vLane}")
    a(f"v_lshl_add_u32 v{t}, v{t + 1}, 3, v{t}")
    a(f"s_mul_i32 s{sT0}, s{sWc}, 96")
    a(f"v_add_u32 v{t}, s{sT0}, v{t}")
    a(f"v_bfe_u32 v{t + 1}, v{vLane}, 4, 1")
    a(f"s_lshl_b32 s{sT0}, s{sWc}, 6")
    a(f"s_sub_u32 s{sT1}, {3072 + 32}, s{sT0}")
    a(f"s_add_u32 s{sT0}, {3072 - 32}, s{sT0}")
    a(f"v_mad_u32_u24 v{vWrd[0]}, v{t + 1}, s{sT1}, v{t}")
    a(f"v_mad_u32_u24 v{vWrdO[0]}, v{t + 1}, s{sT0}, v{t}")
    wl = [LdsAddr(a, vWrd), LdsAddr(a, vWrdO)]
    wl[0].setup(a)
    wl[1].setup(a)
    a(f"s_lshl_b32 s{sT0}, s{sWr2}, 12")
    a(f"s_add_u32 s{sT0}, s{sT0}, {XO}")
    a(f"v_add_u32 v{vXa}, s{sT0}, v{vL16}")
    a(f"v_xor_b32 v{t}, v{t + 1}, v{vLane}")
    a(f"v_and_b32 v{t}, 1, v{t}")
    a(f"v_cmp_eq_u32 vcc, 0, v{t}")
    a(f"v_mov_b32 v{t}, 0x3f803f80")
    a("s_nop 0")
    for r in range(4):
        a(f"v_cndmask_b32 v{ONES + r}, 0, v{t}, vcc")
    a(f"s_lshl_b32 s{sT0}, s{sWc}, 1")
    a(f"s_add_u32 s{sT1}, s{sT0}, s{sWr2}")
    a(f"s_mul_i32 s{sT1}, s{sT1}, 384")
    a(f"s_add_u32 s{sT1}, s{sT1}, {CSO}")
    a(f"v_and_b32 v{t}, 1, v{vLane}")
    a(f"v_lshlrev_b32 v{t}, 6, v{t}")
    a(f"v_and_b32 v{t + 1}, 48, v{vLane}")
    a(f"v_add3_u32 v{vCw}, v{t}, v{t + 1}, s{sT1}")
    a(f"s_mul_i32 s{sT0}, s{sT0}, 384")
    a(f"s_add_u32 s{sT0}, s{sT0}, {CSO}")
    a(f"v_mul_u32_u24 v{t}, 384, v{t + 3}")
    a(f"v_and_b32 v{t + 1}, 31, v{vLane}")
    a(f"v_lshl_add_u32 v{t}, v{t + 1}, 2, v{t}")
    a(f"v_add_u32 v{vCr}, s{sT0}, v{t}")
    a(f"s_lshl_b32 s55, s34, 9")
    a(f"s_lshl_b32 s35, s{sCg}, 1")
    a(f"s_add_u32 s35, s35, s{sWc}")
    a(f"s_lshl_b32 s{sT0}, s35, 2")
    a(f"s_add_u32 s55, s55, s{sT0}")
    a(f"s_add_u32 s55, s55, {F4}")
    a(f"s_mul_i32 s34, s34, {2 * RT}")
    a(f"s_mul_i32 s38, s35, 3")
    a(f"s_lshl_b32 s35, s35, 10")
    a("s_add_u32 s34, s34, s35")
    a(f"s_add_u32 s34, s34, {GO}")
    a(f"s_add_u32 s35, s34, {RT}")
    a(f"s_mul_i32 s{sT0}, s{sWr2}, 3072")
    a(f"s_add_u32 s{sT0}, s{sT0}, {XEO}")
    a(f"v_add_u32 v{vEr}, s{sT0}, v{vL16}")
    a(f"v_lshl_add_u32 v{vEr + 1}, v{vLane}, 3, s{sT0}")
    for r in range(12):
        a(f"v_mov_b32 v{CS + r}, 0")

    def reads(s):
        st, ss = divmod(s, 2)
        W = []
        for j in range(3):
            for half in range(2):
                reg, off = wl[j & 1].at(WS4[st % NW] + ss * 6144 + half * 8 * 192 + j * 32)
                W.append(f"ds_read_b64_tr_b16 {vr(WF[s & 1] + 4 * j + 2 * half, 2)}, {reg} offset:{off}")
        X = [f"ds_read_b128 {vr(XF[s & 1] + 4 * i, 4)}, v{vXa} offset:{(st % NX) * 8192 + i * 2048 + ss * 1024}"
             for i in range(2)]
        return [X[0], W[0], W[1], X[1], W[2], W[3], W[4], W[5]]

    rt = {}

    def emit_reads(b, s, lo, hi):
        ops = reads(s)
        for k in range(lo, min(hi, 8)):
            rt[(s, k)] = b.lg(ops[k])

    def main(b, s, m):
        j, i = divmod(m, 2)
        d = ACC + 16 * m
        c = "0" if s == 0 else vr(d, 16)
        b(f"v_mfma_f32_32x32x16_bf16 {vr(d, 16)}, {vr(WF[s & 1] + 4 * j, 4)}, {vr(XF[s & 1] + 4 * i, 4)}, {c}")

    def csum(b, s, j):
        b(f"v_mfma_f32_16x16x32_bf16 {vr(CS + 4 * j, 4)}, {vr(WF[s & 1] + 4 * j, 4)}, {vr(ONES, 4)}, {vr(CS + 4 * j, 4)}")

    a(f"s_lshl_b32 s40, s{sRb}, 8")
    a(f"s_add_u32 s40, s40, {F3}")
    if not OPT["lpoll"]:
        poll(a, 40, vT, "p4")
    a("s_barrier")
    stamp(a)
    emit_reads(a, 0, 0, 8)
    a(f"s_cmp_eq_u32 s{sWr2}, 1")
    a("s_cbranch_scc1 L_p4_odd")
    cuts = [0, 2, 4, 6, 8, 8, 8]
    need = [3, 3, 5, 5, 7, 7]
    rt0 = dict(rt)
    odd = fork(a)
    odd.label("L_p4_odd")
    for par, b in ((0, a), (1, odd)):
        rt.clear()
        rt.update(rt0)
        for s in range(31):
            if s % 2 == 1:
                b.wait(lg=rt[(s, 7)])
                b("s_barrier")
            for m in range(6):
                b.wait(lg=rt[(s, need[m])])
                if m % 2 == 0 and s % 2 == par:
                    csum(b, s, m // 2)
                main(b, s, m)
                emit_reads(b, s + 1, cuts[m], cuts[m + 1])
        b.wait_all(vm=False)
        if par == 1:
            for j in range(3):
                csum(b, 31, j)
    odd("s_branch L_p4_join")
    a.label("L_p4_join")
    main(a, 31, 0)
    for j in range(3):
        a(f"v_mov_b32 v{WF[0] + 4 * j + 2}, 0")
        a(f"v_mov_b32 v{WF[0] + 4 * j + 3}, 0")
    main(a, 31, 1)
    a("s_mov_b32 exec_lo, 0x00030003")
    a("s_mov_b32 exec_hi, 0x00030003")
    for j in range(3):
        a.lg(f"ds_write_b128 v{vCw}, {vr(CS + 4 * j, 4)} offset:{j * 128}")
    a("s_mov_b64 exec, -1")
    for i in range(2):
        a.lg(f"ds_read_b128 {vr(XE + 4 * i, 4)}, v{vEr} offset:{i * 1536}")
        a.lg(f"ds_read_b64 {vr(AS + 2 * i, 2)}, v{vEr + 1} offset:{i * 1536 + 1024}")
    main(a, 31, 2)
    main(a, 31, 3)
    a.wait_all(vm=False)
    a("s_barrier")
    for j in range(3):
        rt[("c", j)] = a.lg(f"ds_read_b32 v{vT + 1 + j}, v{vCr} offset:{j * 128}")
    main(a, 31, 4)
    main(a, 31, 5)
    for j in range(3):
        w = WF[0] + 4 * j
        a.wait(lg=rt[("c", j)])
        a(f"v_cvt_pk_bf16_f32 v{w + 1}, v{vT + 1 + j}, 0")
        a(f"v_lshlrev_b32 v{vT}, 16, v{w + 1}")
        a(f"v_sub_f32 v{vT}, v{vT + 1 + j}, v{vT}")
        a(f"v_cvt_pk_bf16_f32 v{w}, v{vT + 1 + j}, v{vT}")
    for j in range(3):
        for i in range(2):
            d = ACC + 32 * j + 16 * i
            a(f"v_mfma_f32_32x32x16_bf16 {vr(d, 16)}, {vr(WF[0] + 4 * j, 4)}, {vr(XE + 4 * i, 4)}, {vr(d, 16)}")
    stamp(a)
    a(f"v_lshlrev_b32 v{vT}, 7, v{vLane}")
    a(f"v_mov_b32 v{vT + 1}, s{sTag}")
    a("s_nop 2")
    stok = {}
    if OPT["ep_prio"]:
        a(f"s_setprio {OPT['ep_prio']}")
    for j in range(3):
        a(f"s_cmp_ge_u32 s38, {86 - j}")
        a("s_cbranch_scc1 L_p4_pub")
        Gs = [(ACC + 32 * j + 16 * i + r, i) for i in range(2) for r in range(8)]
        for g, i in Gs[::2]:
            a(f"v_pk_mul_f32 {vr(g, 2)}, {vr(g, 2)}, {vr(AS + 2 * i, 2)} op_sel_hi:[1,0]")
        for g, i in Gs:
            a(f"v_exp_f32 v{g}, v{g}")
        for g, i in Gs[::2]:
            a(f"v_pk_fma_f32 {vr(g, 2)}, {vr(g, 2)}, {vr(AS + 2 * i, 2)}, {vr(AS + 2 * i, 2)} op_sel:[0,1,1] op_sel_hi:[1,1,1]")
        for g, i in Gs:
            a(f"v_rcp_f32 v{g}, v{g}")
        for g, i in Gs[::2]:
            a(f"v_pk_mul_f32 {vr(g, 2)}, {vr(g, 2)}, {vr(g + 8, 2)}")
        if j == 2 and OPT["ep_fl"]:
            a("s_mov_b64 exec, 1")
            a.wait(vm=stok[0])
            stores(a, [f"buffer_store_dword v{vT + 1}, v{vT}, {sr(sWS, 4)}, s55 offen"])
            a("s_mov_b64 exec, -1")
        o = ACC + 32 * j + 8
        for i in range(8):
            a(f"v_cvt_pk_bf16_f32 v{o + i}, v{Gs[2 * i][0]}, v{Gs[2 * i + 1][0]}")
        stores(a, [f"buffer_store_dwordx4 {vr(o, 4)}, v{vL16}, {sr(sWS, 4)}, s34 offen",
                   f"buffer_store_dwordx4 {vr(o + 4, 4)}, v{vL16}, {sr(sWS, 4)}, s35 offen"])
        stok[j] = a.vm_issued - 1
        a(f"s_add_u32 s34, s34, {29 * 1024}")
        a(f"s_add_u32 s35, s35, {29 * 1024}")
        if j >= 1 and not OPT["ep_fl"]:
            a("s_mov_b64 exec, 1")
            a.wait(vm=stok[j - 1])
            stores(a, [f"buffer_store_dword v{vT + 1}, v{vT}, {sr(sWS, 4)}, s55 offen offset:{(j - 1) * 128}"])
            a("s_mov_b64 exec, -1")
    a.label("L_p4_pub")
    a("s_nop 7")
    stamp(a)
    a("s_mov_b64 exec, 7")
    a.wait_all(lg=False)
    stores(a, [f"buffer_store_dword v{vT + 1}, v{vT}, {sr(sWS, 4)}, s55 offen"])
    a("s_mov_b64 exec, -1")
    if OPT["ep_prio"]:
        a("s_setprio 0")
    a.label("L_p4_skip_c")
    return odd


def gen_fused():
    name = KNAME
    a = Asm()
    a.raw(f".globl {name}")
    a.raw(".p2align 8")
    a.raw(f".type {name},@function")
    a.label(name)
    a("s_cmp_ge_u32 s2, 256")
    a(f"s_cbranch_scc1 L_done")
    stamp_real(a)
    stamp(a)
    if OPT.get("spin"):
        a("s_memrealtime s[98:99]")
    c1, odd1, l1, aux = phase1(a)
    fb = phase2(c1, l1, aux)
    c1(f"s_cmp_ge_u32 s{sWave}, 4")
    c1("s_cbranch_scc0 L_compute")
    h = fork(c1)
    c = fork(c1)
    if OPT.get("det") == 2:
        h.nstamp, h.nostamp = 18, True
    c.label("L_compute")
    phase_res(c, h, True, pre_publish=55)
    odd = phase4(c, h)
    phase_res(c, h, False)
    if OPT.get("det") != 3:
        stamp_flush(h)
    h("s_endpgm")
    c("s_cmp_lg_u32 s2, 0")
    c("s_cbranch_scc1 L_nogen")
    c(f"s_cmp_lg_u32 s{sWave}, 0")
    c("s_cbranch_scc1 L_nogen")
    c(f"v_mov_b32 v12, {GEN}")
    c(f"v_mov_b32 v13, s{sTag}")
    c("s_mov_b64 exec, 1")
    c(f"buffer_store_dword v13, v12, {sr(sWS, 4)}, 0 offen sc1")
    if OPT.get("spin"):
        c("s_load_dwordx2 s[92:93], s[0:1], 64")
        c("s_memrealtime s[96:97]")
        c("s_waitcnt lgkmcnt(0)")
        c("s_sub_u32 s96, s96, s98")
        c("s_mov_b32 s94, 256")
        c("s_mov_b32 s95, 0x00020000")
        c("v_mov_b32 v12, 0")
        c("v_mov_b32 v13, s96")
        c("buffer_store_dword v13, v12, s[92:95], 0 offen")
        c.label("L_dbg_spin")
        c("s_memrealtime s[96:97]")
        c("s_waitcnt lgkmcnt(0)")
        c("s_sub_u32 s96, s96, s98")
        c(f"s_cmp_lt_u32 s96, {OPT['spin']}")
        c("s_cbranch_scc1 L_dbg_spin")
    c.label("L_nogen")
    stamp_flush(c)
    c.label("L_done")
    c("s_endpgm")
    text = (a.text() + l1.text() + aux.text() + odd1.text() + c1.text() + h.text() + c.text() + odd.text() + fb.text())
    return name, text, descriptor(name, 168, 0, sgpr=102), (256, 576, 163840)


DOC = """; ---------------------------------------------------------------------------------------------------------
; ---------------------------------------------------------------------------------------------------------
"""


def build():
    name, text, desc, (g, b, lds) = gen_fused()
    ref = open(f"cdna_kernels/{NAME}.s.ref").read().split("\n")
    head = [l for l in ref if l.startswith(";") and "@launch" not in l]
    out = "\n".join(head) + "\n"
    out += f"; @launch grid=({g},1,1) block=({b},1,1) lds={lds}\n"
    out += '.amdgcn_target "amdgcn-amd-amdhsa--gfx950"\n' + DOC + '.text\n'
    bad = check_hazards(text, name)
    out += text
    out += "L_code_end:\n"
    out += '.section .rodata,"a"\n.p2align 6\n' + desc
    if bad:
        print("hazards:", bad)
    return out


OPT["k1_touch"] = 0

if __name__ == "__main__":
    path = sys.argv[1] if len(sys.argv) > 1 else f"cdna_kernels/{NAME}.s"
    for arg in sys.argv[2:]:
        if arg == "stamps":
            G.STAMPS = True
        else:
            k_, v_ = arg.split("=")
            OPT[k_] = int(v_)
    open(path, "w").write(build())
    print("wrote", path)
```

```python
import sys

import gen as G
from gen import (Asm, Drip, LdsAddr, OPT, MB, QF, KVF, OF, HF, ST, GF, WS_SIZE, LOG2E, NAME, f2u, hx, vr, sr, srd,
                 fork, half_sum, split_hi_lo, code_prefetch, descriptor, check_hazards)

FLG = 11 * MB
F2, F3, F4, XT = FLG, FLG + 8192, FLG + 49152, FLG + 20480
FL1, GEN, FG1 = FLG + 24576, FLG + 28672, FLG + 32768
RT = 124 * 1024
QO, GO, SO = 65536, 32768, 118 * 1024
KVG = 12 * MB


def HS():
    return 131072 + OPT["kv_pad"]


KNAME = NAME + "_kernel"
WS3 = [0, 8192, 16384, 24576, 65536, 73728, 81920, 90112]
RES3 = 155648
WS4 = [32768, 45056, 98304, 110592, 0, 12288, 57344, 69632, 81920]
WS5 = [0, 8192, 16384] + [8192 * i for i in range(4, 14)]
sTag = 53
OPT.update(dict(p3_a=7, p4_a=3, p5_a=7, p5_na=6, down_l2=0, ws_off=0, kv_pad=4352, kv_gate=0, kv_fl=2, p1_bs=1, p5_c2=9, p5_nw=11, p4_pf=13, p4_pre=5, p2_map=1, force_slow=0, p1_cnt=1, kv_nt=0, kv_lag=1, early_t=0, gf_late=0, gu_from=512, gu_to=512, ep_prio=0, ep_fl=0, aux_sl=3, p2_pr=0, gm=0, p4_ramp=0, lpoll=0, retouch=1, p1_ls=1, p1_xl=8, t_wo=1, t_at=99, adapt=1, p2_ord=0, t_mall=1, fst=0, w4pre=4, kv_ld=0, gu2_n=0, gu2_from=128, al2=-1, al4=-1, p1_s3=2, tout_g=0, p1_er=3, p2_defer=0, p2_sched=0, ld=0, touch_out=1, touch2=1, k1_tout=11, p2_fine=0, p2_rot=1, p4_wi2=5, sc="sc1"))

sWS, sWave, sHw = 12, 24, 29
sT0, sT1 = 30, 31
KX, KWO, KG, KU, KD, KO = 64, 68, 72, 74, 76, 78
vLane, vL16 = 1, 2


def ws_srd(a):
    off = OPT["ws_off"] * MB
    a(f"s_add_u32 s{sWS}, s8, {hx(off)}")
    a(f"s_addc_u32 s{sWS + 1}, s9, 0")
    a(f"s_mov_b32 s{sWS + 2}, {hx(WS_SIZE)}")
    a(f"s_mov_b32 s{sWS + 3}, 0x00020000")


def GM():
    return ["sc1", "sc0 sc1"][OPT["gm"]]


def LD():
    return ["sc1", "nt", "", "sc0 sc1", "sc0"][OPT["ld"]]


def stamp(a, force=False):
    if not G.STAMPS or (getattr(a, "nostamp", False) and not force):
        return
    i = getattr(a, "nstamp", 0)
    a.nstamp = i + 1
    assert i < 20, i
    a("s_memtime s[100:101]")
    a.wait_all(vm=False)
    a(f"s_mov_b32 s{80 + i}, s100")


def stamp_real(a):
    if not G.STAMPS:
        return
    i = getattr(a, "nstamp", 0)
    a.nstamp = i + 1
    a("s_memrealtime s[100:101]")
    a.wait_all(vm=False)
    a(f"s_mov_b32 s{80 + i}, s100")


def stamp_flush(a):
    if not G.STAMPS:
        return
    a.wait_all()
    stamp(a, True)
    stamp_real(a)
    a("s_mov_b64 exec, -1")
    a("s_lshl_b32 s58, s2, 3")
    a(f"s_add_u32 s58, s58, s{sWave}")
    a("s_lshl_b32 s58, s58, 7")
    a(f"s_add_u32 s58, s58, {G.DBGO + MB}")
    a("v_mov_b32 v1, 0")
    for i in range(a.nstamp):
        a(f"v_mov_b32 v2, s{80 + i}")
        a(f"buffer_store_dword v2, v1, {sr(sWS, 4)}, s58 offen offset:{4 * i}")
    a.wait_all()


LMODE = 155392
sMode = 54
_uid = [0]


def stores(a, ins, always_slow=False):
    if always_slow:
        for x in ins:
            a.vm(x + " sc1")
        return
    _uid[0] += 1
    u = _uid[0]
    a(f"s_cmp_eq_u32 s{sMode}, 0")
    a(f"s_cbranch_scc1 L_st_{u}_s")
    for x in ins:
        a.vm(x + (["", " nt", " sc0"][OPT["fst"]] if "x4" in x else ""))
    a(f"s_branch L_st_{u}_j")
    a.label(f"L_st_{u}_s")
    for x in ins:
        a(x + " sc1")
    a.label(f"L_st_{u}_j")


def publish(a, sOff, vt, always_slow=False):
    a(f"v_mov_b32 v{vt}, 0")
    a(f"v_mov_b32 v{vt + 1}, s{sTag}")
    a("s_mov_b64 exec, 1")
    a.wait_all(lg=False)
    stores(a, [f"buffer_store_dword v{vt + 1}, v{vt}, {sr(sWS, 4)}, s{sOff} offen"], always_slow)
    a("s_mov_b64 exec, -1")


def poll_issue(a, sOff, vt, uid, off):
    a(f"s_cmp_lg_u32 s{sWave}, 0")
    a(f"s_cbranch_scc1 L_pi_{uid}")
    a(f"v_lshlrev_b32 v{vt}, 2, v{vLane}")
    a(f"buffer_load_dword v{vt + 1}, v{vt}, {sr(sWS, 4)}, s{sOff} offen offset:{off} sc1")
    a.label(f"L_pi_{uid}")


def poll(a, sOff, vt, uid, nflags=64, every=False, barrier=True, off=0, issued=False):
    if not every:
        a(f"s_cmp_lg_u32 s{sWave}, 0")
        a(f"s_cbranch_scc1 L_poll_{uid}_go")
    if not issued:
        a(f"v_lshlrev_b32 v{vt}, 2, v{vLane}")
    a("s_mov_b32 s59, 0x40000")
    if nflags < 64:
        a(f"s_mov_b64 exec, {hx((1 << nflags) - 1)}")
    if issued:
        a(f"s_branch L_poll_{uid}_c")
    a.label(f"L_poll_{uid}")
    a(f"buffer_load_dword v{vt + 1}, v{vt}, {sr(sWS, 4)}, s{sOff} offen offset:{off} sc1")
    a.label(f"L_poll_{uid}_c")
    a("s_sub_u32 s59, s59, 1")
    a("s_waitcnt vmcnt(0)")
    a(f"v_cmp_ne_u32 vcc, s{sTag}, v{vt + 1}")
    a("s_cmp_eq_u32 s59, 0")
    a(f"s_cbranch_scc1 L_poll_{uid}_x")
    a(f"s_cbranch_vccnz L_poll_{uid}")
    a.label(f"L_poll_{uid}_x")
    a("s_mov_b64 exec, -1")
    a.label(f"L_poll_{uid}_go")
    if barrier:
        a("s_barrier")


def touch_setup(h):
    srd(h, 16, KWO, 512 * 1024)
    srd(h, 20, KG, 512 * 2752)
    srd(h, 48, KU, 512 * 2752)
    h(f"s_and_b32 s{sT0}, s2, 7")
    h(f"s_lshl_b32 s{sT1}, s{sT0}, 18")
    h(f"s_add_u32 s4, s{KX}, s{sT1}")
    h(f"s_addc_u32 s5, s{KX + 1}, 0")
    srd(h, 44, 4, 256 * 1024)
    h(f"s_mul_i32 s{sT0}, s{sT0}, {172 * 1024}")
    h(f"s_add_u32 s10, s{KD}, s{sT0}")
    h(f"s_addc_u32 s11, s{KD + 1}, 0")
    if OPT["down_l2"]:
        srd(h, 40, KD, 1376 * 1024)
    else:
        srd(h, 40, 10, 172 * 1024)
    h(f"s_lshr_b32 s{sT0}, s2, 3")
    h("v_lshlrev_b32 v3, 7, v1")


def touch_weights(h, late=None):
    k0 = OPT["gu_from"]
    k1 = OPT["gu_to"]
    n = -(-(k1 - k0) * 2752 // (32 * 8192))
    if k0 and OPT["t_mall"]:
        per = -(-(k0 if k1 == 512 else 512) * 2752 // 256 // 128) * 128
        assert per <= 8192
        h(f"s_mul_i32 s{sT1}, s2, {per}")
        h(f"v_add_u32 v4, s{sT1}, v3")
        nl = per // 128
        h(f"s_mov_b32 exec_lo, {hx((1 << min(nl, 32)) - 1)}")
        h(f"s_mov_b32 exec_hi, {hx((1 << max(nl - 32, 0)) - 1)}")
        for sq in (20, 48):
            h.vm(f"buffer_load_dword v5, v4, {sr(sq, 4)}, 0 offen")
        h("s_mov_b64 exec, -1")
    for sq, per, n_, base in ((16, 16384, 2 * OPT["t_wo"], 0),  (40, 49152, 6, 0) if OPT["down_l2"] else (40, 8192, OPT["t_mall"], 0), (20, n * 8192, n, k0 * 2752 // 128 * 128),
                              (48, n * 8192, n, k0 * 2752 // 128 * 128)):
        if n_ == 0:
            continue
        if sq == 20 and late:
            late("L_skip_gu")
        h(f"s_mul_i32 s{sT1}, s{sT0}, {per}")
        if base:
            h(f"s_add_u32 s{sT1}, s{sT1}, {base}")
        h(f"v_add_u32 v4, s{sT1}, v3")
        for i in range(n_):
            h.vm(f"buffer_load_dword v5, v4, {sr(sq, 4)}, 0 offen")
            if i + 1 < n_:
                h("v_add_u32 v4, 0x2000, v4")
    if late:
        h.label("L_skip_gu")


def phase1(a):
    sX, sW = 20, 16
    sWr, sWc, sCg, sRb = 25, 26, 27, 28
    sWL = 32
    sOnes = 41
    vT = 8
    NSLOT, SLOT, WBASE, NST = 7, 12288, 65536, 16
    CSO = WBASE + NSLOT * SLOT
    assert OPT["p1_ls"]
    XEO = 153088
    RSO = 155136
    BS = [list(range(16)), [0, 1, 2, 4, 6, 8, 10, 12, 14], [0, 2, 4, 6, 8, 10, 12, 14], [0, 1, 2, 3, 4, 6, 8, 10, 12, 14, 15]][OPT["p1_bs"]]
    a("s_load_dwordx16 s[64:79], s[0:1], 0")
    a("s_load_dwordx2 s[8:9], s[0:1], 72")
    a(f"v_and_b32 v{vLane}, 63, v0")
    a(f"v_lshrrev_b32 v7, 6, v0")
    a(f"v_lshlrev_b32 v{vL16}, 4, v{vLane}")
    a(f"v_readfirstlane_b32 s{sWave}, v7")
    a(f"s_and_b32 s{sT0}, s2, 7")
    a(f"s_lshl_b32 s{sT0}, s{sT0}, 2")
    a(f"s_bfe_u32 s{sT1}, s2, 0x20003")
    a(f"s_add_u32 s{sRb}, s{sT0}, s{sT1}")
    a(f"s_lshr_b32 s{sCg}, s2, 5")
    a(f"s_and_b32 s{sHw}, s{sWave}, 3")
    a(f"s_cmp_eq_u32 s{sWave}, 8")
    a("s_cbranch_scc1 L_p1_aux")
    a(f"s_cmp_ge_u32 s{sWave}, 4")
    a(f"s_cbranch_scc0 L_p1_compute")

    x = fork(a)
    x.label("L_p1_aux")
    x("s_setprio 3")
    x(f"v_lshlrev_b32 v30, 7, v{vLane}")
    x(f"s_lshr_b32 s{sT0}, s2, 3")
    x(f"s_lshl_b32 s{sT0}, s{sT0}, 11")
    x(f"v_add_u32 v30, s{sT0}, v30")
    x("s_mov_b64 exec, 0xffff")
    code_prefetch(x, KNAME, 44, 30, 31, "p1")
    x("s_mov_b64 exec, -1")
    x("s_getreg_b32 s56, hwreg(HW_REG_XCC_ID, 0, 4)")
    x("s_and_b32 s57, s2, 7")
    x("s_lshl_b32 s57, s57, 8")
    x(f"s_add_u32 s57, s57, {XT}")
    x("s_lshr_b32 s58, s2, 3")
    x("s_lshl_b32 s58, s58, 2")
    x(f"v_mov_b32 v6, {GEN}")
    x("s_waitcnt lgkmcnt(0)")
    ws_srd(x)
    x.vm(f"buffer_load_dword v7, v6, {sr(sWS, 4)}, 0 offen")
    x("v_mov_b32 v6, s58")
    x("s_barrier")
    x("s_barrier")
    x.wait_all()
    x(f"v_readfirstlane_b32 s{sTag}, v7")
    x("s_nop 3")
    x(f"s_mul_i32 s{sTag}, s{sTag}, 1664525")
    x(f"s_add_u32 s{sTag}, s{sTag}, 1013904223")
    x(f"s_lshl_b32 s58, s{sTag}, 4")
    x("s_or_b32 s56, s56, s58")
    x("v_mov_b32 v7, s56")
    x("s_mov_b64 exec, 1")
    x.vm(f"buffer_store_dword v7, v6, {sr(sWS, 4)}, s57 offen sc1")
    x("s_mov_b32 exec_lo, -1")
    x("s_mov_b32 exec_hi, 0")
    x(f"v_lshlrev_b32 v6, 2, v{vLane}")
    for st in (BS + [NST])[2:]:
        if st == 12:
            x("s_mov_b32 s59, 0x40000")
            x("s_waitcnt vmcnt(0)")
            x("s_branch L_xt_chk")
            x.label("L_xt_poll")
            x(f"buffer_load_dword v7, v6, {sr(sWS, 4)}, s57 offen sc1")
            x("s_sub_u32 s59, s59, 1")
            x("s_waitcnt vmcnt(0)")
            x.label("L_xt_chk")
            x("v_xor_b32 v8, s56, v7")
            x("v_cmp_lt_u32 vcc, 15, v8")
            x("s_cmp_eq_u32 s59, 0")
            x("s_cbranch_scc1 L_xt_done")
            x("s_cbranch_vccnz L_xt_poll")
            x.label("L_xt_done")
            x("v_cmp_ne_u32 vcc, 0, v8")
            x("s_nop 1")
            x("s_cmp_eq_u64 vcc, 0")
            x(f"s_cselect_b32 s{sMode}, {0 if OPT['force_slow'] else 1}, 0")
            x(f"v_mov_b32 v6, {LMODE}")
            x(f"v_mov_b32 v8, s{sMode}")
            x(f"v_mov_b32 v9, s{sTag}")
            x("ds_write_b64 v6, v[8:9]")
            x("s_waitcnt lgkmcnt(0)")
            x("s_mov_b64 exec, -1")
        x("s_barrier")
        if OPT["early_t"] and st == OPT["early_t"]:
            touch_setup(x)
            touch_weights(x)
        if st == 8:
            x(f"buffer_load_dword v7, v6, {sr(sWS, 4)}, s57 offen sc1")

    h = fork(a)
    vWoff, vXg, vSr, vXe, vRs = 3, 4, 6, 20, 21
    vS, vQ, vM, vR = 22, 23, 24, 25
    XB = 32
    h(f"v_lshrrev_b32 v{vT}, 3, v{vLane}")
    h(f"v_and_b32 v{vT + 1}, 7, v{vLane}")
    h(f"v_lshrrev_b32 v{vT + 2}, 1, v{vT}")
    h(f"v_xor_b32 v{vT + 2}, v{vT + 2}, v{vT + 1}")
    h(f"v_lshlrev_b32 v{vT + 2}, 4, v{vT + 2}")
    h(f"v_lshl_add_u32 v{vXg}, v{vT}, 10, v{vT + 2}")
    h(f"v_xor_b32 v{vXg + 1}, 64, v{vXg}")
    h(f"v_add_u32 v{vXg + 1}, {8 * 1024 - 1024}, v{vXg + 1}")
    h(f"s_lshl_b32 s34, s{sRb}, 16")
    h(f"s_lshl_b32 s{sT0}, s{sHw}, 14")
    h(f"s_add_u32 s34, s34, s{sT0}")
    h(f"s_lshl_b32 s36, s{sHw}, 11")
    h("s_and_b32 s44, s2, 7")
    h("s_lshl_b32 s44, s44, 2")
    h("s_lshr_b32 s45, s2, 6")
    h("s_add_u32 s44, s44, s45")
    h("s_lshl_b32 s44, s44, 16")
    h(f"s_add_u32 s44, s44, s{sT0}")
    h("s_bfe_u32 s45, s2, 0x30003")
    h("s_lshl_b32 s45, s45, 7")
    h("s_add_u32 s44, s44, s45")
    h(f"v_lshrrev_b32 v{vT + 2}, 2, v{vLane}")
    h(f"v_and_b32 v{vT + 2}, 4, v{vT + 2}")
    h(f"v_xor_b32 v{vT + 2}, v{vT + 2}, v{vT + 1}")
    h(f"v_lshlrev_b32 v{vT + 2}, 4, v{vT + 2}")
    h(f"v_mul_u32_u24 v{vT + 3}, 3072, v{vT}")
    h(f"s_mul_i32 s{sT0}, s{sHw}, {8 * 3072}")
    h(f"s_lshl_b32 s{sT1}, s{sCg}, 7")
    h(f"s_add_u32 s{sT0}, s{sT0}, s{sT1}")
    h(f"v_add3_u32 v{vWoff}, v{vT + 3}, v{vT + 2}, s{sT0}")
    h(f"s_mul_i32 s{sWL}, s{sHw}, 3072")
    h("s_waitcnt lgkmcnt(0)")
    srd(h, sX, KX, 2048 * 1024)
    srd(h, sW, KX + 2, 512 * 3072)
    d2 = OPT.get("det") == 2
    if d2:
        h.nstamp = 7
        stamp(h)
    dr = Drip(h)

    XLEAD = OPT["p1_xl"] / 4

    def x_dma(c, key):
        dr.add(key, [f"s_add_u32 m0, s36, {c * 8192}", f"s_add_u32 s43, s34, {c * 128}"],
               f"buffer_load_dwordx4 v{vXg}, {sr(sX, 4)}, s43 offen lds")
        dr.add(key, [], f"buffer_load_dwordx4 v{vXg + 1}, {sr(sX, 4)}, s43 offen offset:1024 lds")

    def issue(st):
        for c in range(8):
            if int(c * XLEAD) == st:
                x_dma(c, st)
        for seg in range(3):
            pre = [f"s_add_u32 m0, s{sWL}, {WBASE + (st % NSLOT) * SLOT}", f"s_mov_b32 s42, {32 * st * 3072}"] if seg == 0 else []
            dr.add(st, pre, f"buffer_load_dwordx4 v{vWoff}, {sr(sW, 4)}, s42 offen offset:{seg * 1024} lds")
        if st == 15:
            dr.add("res", [f"s_add_u32 m0, s36, {RES3}", "s_nop 0"], f"buffer_load_dwordx4 v{vXg}, {sr(sX, 4)}, s44 offen lds")
            dr.add("res", [], f"buffer_load_dwordx4 v{vXg + 1}, {sr(sX, 4)}, s44 offen offset:1024 lds")

    for st in range(NSLOT):
        issue(st)
    AHEAD = OPT["k1_d"]
    dr.through(OPT["k1_t"] - 1)

    def s3(lo, hi):
        for i in range(lo, hi):
            h(f"s_load_dword s52, s[50:51], {(i % 8) * 131072 + 384}")
            h(f"s_load_dword s52, s[50:51], {(i % 8) * 131072 + 448}")

    if OPT["p1_s3"]:
        h(f"s_lshr_b32 s{sT0}, s2, 3")
        h(f"s_lshl_b32 s{sT0}, s{sT0}, 2")
        h(f"s_add_u32 s{sT0}, s{sT0}, s{sHw}")
        h(f"s_lshl_b32 s{sT0}, s{sT0}, 10")
        h(f"s_add_u32 s50, s{KX + 2}, s{sT0}")
        h(f"s_addc_u32 s51, s{KX + 3}, 0")
        s3(0, 7)
    if OPT["k1_touch"]:
        h(f"s_lshl_b32 s{sT0}, s2, 2")
        h(f"s_add_u32 s{sT0}, s{sT0}, s{sHw}")
        h(f"s_mul_i32 s{sT1}, s{sT0}, 1536")
        h(f"s_lshl_b32 s{sT0}, s{sT0}, 11")
        h(f"v_lshlrev_b32 v30, 7, v{vLane}")
        h("s_mov_b64 exec, 0xfff")
        h.vm(f"buffer_load_dword v31, v30, {sr(sW, 4)}, s{sT1} offen")
        h("s_mov_b64 exec, 0xffff")
        h.vm(f"buffer_load_dword v31, v30, {sr(sX, 4)}, s{sT0} offen")
        h("s_mov_b64 exec, -1")
    dr.through(AHEAD - 1)
    ws_srd(h)
    LS = OPT["p1_ls"]
    if LS:
        h(f"s_mov_b32 s{sOnes}, 0x3f803f80")
        h(f"v_lshrrev_b32 v{vT}, 2, v{vLane}")
        h(f"v_and_b32 v{vT + 1}, 3, v{vLane}")
        h(f"v_lshlrev_b32 v{vT + 2}, 7, v{vT}")
        h(f"v_lshl_add_u32 v{vT + 2}, v{vT + 1}, 4, v{vT + 2}")
        h(f"v_bfe_u32 v{vT + 3}, v{vLane}, 3, 1")
        h(f"v_lshl_add_u32 v{vT + 2}, v{vT + 3}, 6, v{vT + 2}")
        h(f"v_add_u32 v{vSr}, s36, v{vT + 2}")
        h(f"v_xor_b32 v{vSr + 1}, 64, v{vSr}")
        h(f"s_lshl_b32 s{sT0}, s{sHw}, 4")
        h(f"v_add_u32 v{vT}, s{sT0}, v{vT}")
        h(f"v_lshlrev_b32 v{vRs}, 2, v{vT}")
        h(f"v_add_u32 v{vRs}, {RSO}, v{vRs}")
        h(f"v_and_b32 v{vT + 2}, 31, v{vT}")
        h(f"v_lshl_add_u32 v{vT + 2}, v{vT + 1}, 5, v{vT + 2}")
        h(f"v_lshrrev_b32 v{vT + 3}, 5, v{vT}")
        h(f"v_lshl_add_u32 v{vT + 2}, v{vT + 3}, 6, v{vT + 2}")
        h(f"v_lshlrev_b32 v{vXe}, 4, v{vT + 2}")
        h(f"v_add_u32 v{vXe}, {XEO}, v{vXe}")
        h(f"v_mov_b32 v{vS}, 0")
        h(f"v_mov_b32 v{vQ}, 0")
    sdone = 0
    if d2:
        stamp(h)
    added = NSLOT
    for bi, st in enumerate(BS):
        last = (BS + [NST])[bi + 1] - 1
        dr.wait(last)
        if d2 and st in (4, 10):
            stamp(h)
        h("s_barrier")
        if d2 and st in (0, 2, 4, 8, 10, 12, 14):
            stamp(h)
        if st == 0 and OPT["p1_s3"]:
            s3(7, 8)
            h(f"s_add_u32 s50, s50, {8 * 131072}")
            h("s_addc_u32 s51, s51, 0")
            s3(8, 12)
        todo = []
        if LS and st >= 4:
            while int((sdone + len(todo)) * XLEAD) <= last and sdone + len(todo) < 8 and len(todo) < 2:
                todo.append(sdone + len(todo))
            for k, c in enumerate(todo):
                h(f"ds_read_b128 {vr(XB + 8 * k, 4)}, v{vSr} offset:{c * 8192}")
                h(f"ds_read_b128 {vr(XB + 8 * k + 4, 4)}, v{vSr + 1} offset:{c * 8192}")
        while added < NST and added - NSLOT < st:
            issue(added)
            added += 1
        tgt = min(NST - 1, last + AHEAD + min(st + 1, OPT["k1_g"]))
        while dr.q and (dr.q[0][0] == "res" or dr.q[0][0] <= tgt):
            dr.emit()
        if todo:
            h("s_waitcnt lgkmcnt(0)")
            for r in range(8 * len(todo)):
                h(f"v_dot2_f32_bf16 v{vS}, v{XB + r}, s{sOnes}, v{vS}")
                h(f"v_dot2_f32_bf16 v{vQ}, v{XB + r}, v{XB + r}, v{vQ}")
            sdone += len(todo)
            if sdone == 8:
                h("s_nop 2")
                for pat in ("quad_perm:[1,0,3,2]", "quad_perm:[2,3,0,1]"):
                    h(f"v_add_f32_dpp v{vS}, v{vS}, v{vS} {pat} row_mask:0xf bank_mask:0xf")
                    h(f"v_add_f32_dpp v{vQ}, v{vQ}, v{vQ} {pat} row_mask:0xf bank_mask:0xf")
                    h("s_nop 0")
                h(f"v_mul_f32 v{vM}, {hx(f2u(-1.0 / 512))}, v{vS}")
                h(f"v_mul_f32 v{vQ}, {hx(f2u(1.0 / 512))}, v{vQ}")
                h(f"v_fma_f32 v{vQ}, -v{vM}, v{vM}, v{vQ}")
                h(f"v_max_f32 v{vQ}, 0, v{vQ}")
                h(f"v_add_f32 v{vQ}, {hx(f2u(1e-5))}, v{vQ}")
                h(f"v_rsq_f32 v{vR}, v{vQ}")
                split_hi_lo(h, vM, XB, vT, vT + 1)
                h(f"v_cvt_pk_bf16_f32 v{XB + 1}, v{vT}, 0")
                h(f"v_mov_b32 v{XB + 2}, 0")
                h(f"v_mov_b32 v{XB + 3}, 0")
                h("s_mov_b32 exec_lo, 0x33333333")
                h("s_mov_b32 exec_hi, 0x33333333")
                h(f"ds_write_b128 v{vXe}, {vr(XB, 4)}")
                h(f"ds_write_b32 v{vRs}, v{vR}")
                h("s_mov_b64 exec, -1")
        if st <= OPT.get("k1_tout", -1) <= last:
            h(f"s_lshl_b32 s{sT0}, s{sRb}, 1")
            h(f"s_and_b32 s{sT1}, s{sHw}, 1")
            h(f"s_add_u32 s{sT0}, s{sT0}, s{sT1}")
            h(f"s_mul_i32 s{sT0}, s{sT0}, {RT}")
            h(f"s_lshl_b32 s{sT1}, s{sCg}, 13")
            h(f"s_lshl_b32 s43, s{sCg}, 12")
            h(f"s_add_u32 s43, s43, {QO}")
            h(f"s_cmp_ge_u32 s{sHw}, 2")
            h(f"s_cselect_b32 s{sT1}, s43, s{sT1}")
            h(f"s_mul_i32 s43, s{sCg}, {26 * 128 - 4096}")
            h(f"s_add_u32 s43, s43, {96 * 1024 - QO - 32 * 128}")
            h("s_cselect_b32 s43, s43, 0") if False else None
            h(f"v_lshlrev_b32 v30, 7, v{vLane}")
            h(f"s_cmp_ge_u32 s{sHw}, 2")
            h("s_cbranch_scc0 L_p1_tkv")
            h("s_mov_b32 exec_lo, 0")
            h("v_add_u32 v30, s43, v30")
            h("s_mov_b32 exec_lo, -1")
            h("s_mov_b32 exec_hi, 0x3ffffff")
            h.label("L_p1_tkv")
            h(f"s_add_u32 s{sT0}, s{sT0}, s{sT1}")
            h.vm(f"buffer_load_dword v31, v30, {sr(sWS, 4)}, s{sT0} offen")
            h("s_mov_b64 exec, -1")
    assert not LS or sdone == 8
    h(f"v_mov_b32 v{vT}, {LMODE}")
    h.lg(f"ds_read_b64 {vr(vT + 2, 2)}, v{vT}")
    h.wait_all(vm=False)
    h(f"v_readfirstlane_b32 s{sMode}, v{vT + 2}")
    h(f"v_readfirstlane_b32 s{sTag}, v{vT + 3}")
    h("s_barrier")
    h.wait_all()
    if OPT.get("det") != 2:
        stamp(h)
    a = fork(a)
    a.label("L_p1_compute")

    vXrd = [3, 4, 5, 6]
    vKoff, vVoff = 20, 21
    vWrd = [22, 23, 24]
    vCw, vCr, vEr, vRl, vRr = 25, 26, 27, 28, 29
    XF = [32, 36]
    WF = [40, 52]
    CS, ONES, XE = 64, 76, 80
    RV = 84
    accQ, accK, accV = 104, 120, 136
    SQ = 152
    a(f"s_lshr_b32 s{sWr}, s{sHw}, 1")
    a(f"s_and_b32 s{sWc}, s{sHw}, 1")
    a(f"v_and_b32 v{vT}, 31, v{vLane}")
    a(f"v_lshrrev_b32 v{vT + 1}, 5, v{vLane}")
    a(f"v_bfe_u32 v{vT + 2}, v{vLane}, 1, 3")
    a(f"v_xor_b32 v{vT + 2}, v{vT + 2}, v{vT + 1}")
    a(f"v_lshlrev_b32 v{vT + 2}, 4, v{vT + 2}")
    a(f"v_lshl_add_u32 v{vT + 2}, v{vT}, 7, v{vT + 2}")
    a(f"s_lshl_b32 s{sT0}, s{sWr}, 12")
    a(f"v_add_u32 v{vXrd[0]}, s{sT0}, v{vT + 2}")
    for ss in range(1, 4):
        a(f"v_xor_b32 v{vXrd[ss]}, {ss * 32}, v{vXrd[0]}")
    a(f"v_mul_u32_u24 v{vT + 2}, 3072, v{vT + 1}")
    a(f"v_bfe_u32 v{vT + 3}, v{vLane}, 2, 2")
    a(f"v_lshl_add_u32 v{vT + 2}, v{vT + 3}, 7, v{vT + 2}")
    a(f"v_lshrrev_b32 v{vT + 3}, 1, v{vT + 3}")
    a(f"v_xor_b32 v{vT + 3}, s{sWc}, v{vT + 3}")
    a(f"v_lshl_add_u32 v{vT + 2}, v{vT + 3}, 6, v{vT + 2}")
    a(f"v_bfe_u32 v{vT + 4}, v{vLane}, 4, 1")
    a(f"v_lshl_add_u32 v{vT + 2}, v{vT + 4}, 5, v{vT + 2}")
    a(f"v_and_b32 v{vT + 3}, 3, v{vLane}")
    a(f"v_lshl_add_u32 v{vWrd[0]}, v{vT + 3}, 3, v{vT + 2}")
    wl = LdsAddr(a, vWrd)
    wl.setup(a)
    a(f"v_xor_b32 v{vT + 2}, v{vT + 4}, v{vLane}")
    a(f"v_and_b32 v{vT + 2}, 1, v{vT + 2}")
    a(f"v_cmp_eq_u32 vcc, 0, v{vT + 2}")
    a(f"v_mov_b32 v{vT + 2}, 0x3f803f80")
    a("s_nop 0")
    for r in range(4):
        a(f"v_cndmask_b32 v{ONES + r}, 0, v{vT + 2}, vcc")
    a(f"s_lshl_b32 s{sT0}, s{sWc}, 1")
    a(f"s_add_u32 s{sT1}, s{sT0}, s{sWr}")
    a(f"s_mul_i32 s{sT1}, s{sT1}, 384")
    a(f"s_add_u32 s{sT1}, s{sT1}, {CSO}")
    a(f"v_and_b32 v{vT + 2}, 1, v{vLane}")
    a(f"v_lshlrev_b32 v{vT + 2}, 6, v{vT + 2}")
    a(f"v_and_b32 v{vT + 3}, 48, v{vLane}")
    a(f"v_add3_u32 v{vCw}, v{vT + 2}, v{vT + 3}, s{sT1}")
    a(f"s_mul_i32 s{sT0}, s{sT0}, 384")
    a(f"s_add_u32 s{sT0}, s{sT0}, {CSO}")
    a(f"v_mul_u32_u24 v{vT + 2}, 384, v{vT + 1}")
    a(f"v_lshl_add_u32 v{vT + 2}, v{vT}, 2, v{vT + 2}")
    a(f"v_add_u32 v{vCr}, s{sT0}, v{vT + 2}")
    a(f"s_lshl_b32 s{sT0}, s{sHw}, 9")
    a(f"s_add_u32 s{sT0}, s{sT0}, {XEO}")
    a(f"v_lshl_add_u32 v{vEr}, v{vLane}, 3, s{sT0}")
    a(f"v_xor_b32 v31, 512, v{vEr}")
    a(f"s_lshl_b32 s{sT0}, s{sHw}, 7")
    a(f"s_add_u32 s{sT0}, s{sT0}, {RSO}")
    a(f"v_lshl_add_u32 v{vRl}, v{vT}, 2, s{sT0}")
    a(f"v_lshl_add_u32 v{vRr}, v{vT + 1}, 4, s{sT0}")
    if LS:
        a(f"s_lshl_b32 s{sT0}, s{sWr}, 10")
        a(f"s_add_u32 s{sT0}, s{sT0}, {XEO}")
        a(f"v_add_u32 v{vEr}, s{sT0}, v{vL16}")
        a(f"s_lshl_b32 s{sT0}, s{sWr}, 7")
        a(f"s_add_u32 s{sT0}, s{sT0}, {RSO}")
        a(f"v_lshl_add_u32 v{vRl}, v{vT}, 2, s{sT0}")
        a(f"v_lshl_add_u32 v{vRr}, v{vT + 1}, 4, s{sT0}")
    a(f"s_mov_b32 s{sOnes}, 0x3f803f80")
    a(f"v_mov_b32 v{SQ}, 0")
    a(f"v_mov_b32 v{SQ + 1}, 0")
    a(f"v_and_b32 v{vT + 2}, 0x33, v{vLane}")
    a(f"v_bfe_u32 v{vT + 3}, v{vLane}, 2, 1")
    a(f"v_lshl_or_b32 v{vT + 2}, v{vT + 3}, 3, v{vT + 2}")
    a(f"v_bfe_u32 v{vT + 3}, v{vLane}, 3, 1")
    a(f"v_lshl_or_b32 v{vT + 2}, v{vT + 3}, 2, v{vT + 2}")
    a(f"v_lshlrev_b32 v{vKoff}, 4, v{vT + 2}")
    a(f"v_lshlrev_b32 v{vT + 2}, 11, v{vT + 4}")
    a(f"v_lshl_add_u32 v{vT + 2}, v{vT + 1}, 8, v{vT + 2}")
    a(f"v_and_b32 v{vT + 3}, 15, v{vLane}")
    a(f"v_lshl_add_u32 v{vVoff}, v{vT + 3}, 4, v{vT + 2}")
    a(f"s_lshl_b32 s{sT0}, s{sCg}, 2")
    a(f"s_lshl_b32 s{sT1}, s{sWc}, 1")
    a(f"s_add_u32 s{sT0}, s{sT0}, s{sT1}")
    a(f"s_lshl_b32 s{sT1}, s{sRb}, 1")
    a(f"s_add_u32 s{sT1}, s{sT1}, s{sWr}")
    a(f"s_mul_i32 s60, s{sT1}, {RT}")
    a(f"s_lshl_b32 s46, s{sT0}, 10")
    a("s_add_u32 s46, s46, s60")
    a(f"s_add_u32 s46, s46, {QO}")
    a("s_add_u32 s47, s46, 1024")
    a(f"s_lshl_b32 s37, s{sT0}, 11")
    a("s_add_u32 s60, s60, s37")
    a(f"s_lshl_b32 s37, s{sT1}, 11")
    a(f"s_mul_i32 s36, s{sT0}, {HS()}")
    a(f"s_add_u32 s36, s36, s37")
    a(f"s_add_u32 s36, s36, {KVG}")
    a(f"s_add_u32 s37, s36, {HS()}")
    a(f"v_mul_u32_u24 v156, {HS() - 2048}, v{vT + 4}")
    a(f"v_add_u32 v156, v156, v{vVoff}")
    for r in range(12):
        a(f"v_mov_b32 v{CS + r}, 0")
    a("s_waitcnt lgkmcnt(0)")
    ws_srd(a)
    a(f"s_lshl_b32 s{sT0}, s{sCg}, 1")
    a(f"s_add_u32 s{sT0}, s{sT0}, s{sWc}")
    a(f"s_and_b32 s{sT1}, s{sRb}, 3")
    a(f"s_lshl_b32 s{sT1}, s{sT1}, 1")
    a(f"s_add_u32 s{sT1}, s{sT1}, s{sWr}")
    a(f"s_lshl_b32 s{sT1}, s{sT1}, 2")
    a("s_and_b32 s38, s2, 7")
    a("s_lshl_b32 s48, s38, 9")
    a(f"s_lshl_b32 s39, s{sT0}, 5")
    a("s_add_u32 s48, s48, s39")
    a(f"s_add_u32 s48, s48, s{sT1}")
    a(f"s_add_u32 s48, s48, {FL1}")
    a(f"s_lshl_b32 s49, s{sT0}, 10")
    a("s_lshl_b32 s39, s38, 7")
    a("s_add_u32 s49, s49, s39")
    a(f"s_add_u32 s49, s49, s{sT1}")
    a(f"s_add_u32 s49, s49, {FG1}")
    a("s_mov_b32 s38, s60")
    a("s_add_u32 s39, s60, 2048")
    a(f"v_mov_b32 v30, {LMODE}")

    def reads(s):
        st, ss = divmod(s, 2)
        ops = [f"ds_read_b128 {vr(XF[s & 1], 4)}, v{vXrd[s & 3]} offset:{(s >> 2) * 8192}"]
        for seg in range(3):
            for half in range(2):
                reg, off = wl.at(WBASE + (st % NSLOT) * SLOT + ss * 6144 + seg * 1024 + half * 512)
                ops.append(f"ds_read_b64_tr_b16 {vr(WF[s & 1] + 4 * seg + 2 * half, 2)}, {reg} offset:{off}")
        return ops

    rt = {}

    def emit_reads(b, s, lo, hi):
        ops = reads(s)
        for k in range(lo, min(hi, 7)):
            rt[(s, k)] = b.lg(ops[k])

    a("s_barrier")
    if OPT.get("det") != 4:
        stamp(a)
    emit_reads(a, 0, 0, 7)
    a(f"s_cmp_lg_u32 s{sWr}, s{sWc}")
    a("s_cbranch_scc1 L_p1_odd")
    rt0 = dict(rt)
    odd = fork(a)
    odd.label("L_p1_odd")
    acc = [accQ, accK, accV]

    def mm(b, j, w, x, first=False):
        c = "0" if first else vr(acc[j], 16)
        ops = (vr(w, 4), vr(x, 4)) if j < 2 else (vr(x, 4), vr(w, 4))
        b(f"v_mfma_f32_32x32x16_bf16 {vr(acc[j], 16)}, {ops[0]}, {ops[1]}, {c}")

    def csum(b, s, j):
        b(f"v_mfma_f32_16x16x32_bf16 {vr(CS + 4 * j, 4)}, {vr(WF[s & 1] + 4 * j, 4)}, {vr(ONES, 4)}, {vr(CS + 4 * j, 4)}")

    def stats(b, s):
        for r in range(0 if LS else 4):
            b(f"v_dot2_f32_bf16 v{SQ}, v{XF[s & 1] + r}, s{sOnes}, v{SQ}")
            b(f"v_dot2_f32_bf16 v{SQ + 1}, v{XF[s & 1] + r}, v{XF[s & 1] + r}, v{SQ + 1}")

    for par, b in ((0, a), (1, odd)):
        rt.clear()
        rt.update(rt0)
        for s in range(31):
            if s % 2 == 1 and (s + 1) // 2 in BS:
                b.wait(lg=rt[(s, 6)])
                b("s_barrier")
            cutp = [0, 3, 5, 7]
            for j in range(3):
                b.wait(lg=rt[(s, 2 + 2 * j)])
                if s % 2 == par:
                    csum(b, s, j)
                mm(b, j, WF[s & 1] + 4 * j, XF[s & 1], s == 0)
                emit_reads(b, s + 1, cutp[j], cutp[j + 1])
            if s % 2 != par:
                stats(b, s)
            if s == 27:
                b.lg("ds_read_b64 v[102:103], v30")
        b.wait_all(vm=False)
        if par == 1:
            for j in range(3):
                csum(b, 31, j)
        else:
            stats(b, 31)
    odd("s_branch L_p1_join")
    a.label("L_p1_join")
    mm(a, 0, WF[1], XF[1])
    a(f"v_readfirstlane_b32 s{sMode}, v102")
    a(f"v_readfirstlane_b32 s{sTag}, v103")
    if LS:
        a("s_nop 3")
    else:
        a(f"v_mov_b32 v{SQ + 2}, v{SQ}")
        a(f"v_mov_b32 v{SQ + 3}, v{SQ + 1}")
        a(f"v_mov_b32 v{XE + 2}, 0")
        a(f"v_permlane32_swap_b32 v{SQ}, v{SQ + 2}")
        a(f"v_permlane32_swap_b32 v{SQ + 1}, v{SQ + 3}")
        a(f"v_mov_b32 v{XE + 3}, 0")
        a(f"v_add_f32 v{SQ}, v{SQ}, v{SQ + 2}")
        a(f"v_add_f32 v{SQ + 1}, v{SQ + 1}, v{SQ + 3}")
        a.lg(f"ds_write_b64 v{vEr}, {vr(SQ, 2)}")
    a("s_mov_b32 exec_lo, 0x00030003")
    a("s_mov_b32 exec_hi, 0x00030003")
    for j in range(3):
        a.lg(f"ds_write_b128 v{vCw}, {vr(CS + 4 * j, 4)} offset:{j * 128}")
    a("s_mov_b64 exec, -1")
    mm(a, 1, WF[1] + 4, XF[1])
    for j in range(3):
        a(f"v_mov_b32 v{WF[0] + 4 * j + 2}, 0")
        a(f"v_mov_b32 v{WF[0] + 4 * j + 3}, 0")
    a.wait_all(vm=False)
    a("s_barrier")
    if LS:
        a.lg(f"ds_read_b128 {vr(XE, 4)}, v{vEr}")
        a.lg(f"ds_read_b32 v100, v{vRl}")
    else:
        ts = a.lg(f"ds_read_b64 {vr(SQ + 2, 2)}, v31")
    for j in range(3):
        rt[("c", j)] = a.lg(f"ds_read_b32 v{vT + 4 + j}, v{vCr} offset:{j * 128}")
    mm(a, 2, WF[1] + 8, XF[1])
    if OPT.get("det") != 4:
        stamp(a)
    if not LS:
        a.wait(lg=ts)
        a(f"v_add_f32 v{SQ}, v{SQ}, v{SQ + 2}")
        a(f"v_add_f32 v{SQ + 1}, v{SQ + 1}, v{SQ + 3}")
        a(f"v_mul_f32 v{SQ}, {hx(f2u(-1.0 / 512))}, v{SQ}")
        a(f"v_mul_f32 v{SQ + 1}, {hx(f2u(1.0 / 512))}, v{SQ + 1}")
        split_hi_lo(a, SQ, XE, vT, vT + 1)
        a(f"v_fma_f32 v{SQ + 1}, -v{SQ}, v{SQ}, v{SQ + 1}")
        a(f"v_cvt_pk_bf16_f32 v{XE + 1}, v{vT}, 0")
        a(f"v_max_f32 v{SQ + 1}, 0, v{SQ + 1}")
        a(f"v_add_f32 v{SQ + 1}, {hx(f2u(1e-5))}, v{SQ + 1}")
        a(f"v_rsq_f32 v100, v{SQ + 1}")
    for j in range(3):
        w = WF[0] + 4 * j
        a.wait(lg=rt[("c", j)])
        a(f"v_cvt_pk_bf16_f32 v{w + 1}, v{vT + 4 + j}, 0")
        a(f"v_lshlrev_b32 v{vT}, 16, v{w + 1}")
        a(f"v_sub_f32 v{vT}, v{vT + 4 + j}, v{vT}")
        a(f"v_cvt_pk_bf16_f32 v{w}, v{vT + 4 + j}, v{vT}")
        if j == 0 and not LS:
            a.lg(f"ds_write_b32 v{vRl}, v100")
    for j in range(3):
        mm(a, j, WF[0] + 4 * j, XE)
    a(f"v_mul_f32 v101, {hx(f2u(0.25 * LOG2E))}, v100")
    for g in range(4):
        trv = a.lg(f"ds_read_b128 {vr(RV + 4 * g, 4)}, v{vRr} offset:{g * 32}")
    a("s_nop 4")
    P = 32
    for r in range(0, 16, 2):
        a(f"v_pk_mul_f32 {vr(accQ + r, 2)}, {vr(accQ + r, 2)}, v[100:101] op_sel:[0,1] op_sel_hi:[1,1]")
    for i in range(8):
        a(f"v_cvt_pk_bf16_f32 v{P + i}, v{accQ + 2 * i}, v{accQ + 2 * i + 1}")
    stores(a, [f"buffer_store_dwordx4 {vr(P, 4)}, v{vL16}, {sr(sWS, 4)}, s46 offen",
               f"buffer_store_dwordx4 {vr(P + 4, 4)}, v{vL16}, {sr(sWS, 4)}, s47 offen"])
    for r in range(0, 16, 2):
        a(f"v_pk_mul_f32 {vr(accK + r, 2)}, {vr(accK + r, 2)}, v[100:101] op_sel_hi:[1,0]")
    for i in range(8):
        a(f"v_cvt_pk_bf16_f32 v{P + 8 + i}, v{accK + 2 * i}, v{accK + 2 * i + 1}")
    stores(a, [f"buffer_store_dwordx4 {vr(P + 8, 4)}, v{vKoff}, {sr(sWS, 4)}, s38 offen",
               f"buffer_store_dwordx4 {vr(P + 12, 4)}, v{vKoff}, {sr(sWS, 4)}, s39 offen"])
    a.wait(lg=trv)
    for r in range(0, 16, 2):
        a(f"v_pk_mul_f32 {vr(accV + r, 2)}, {vr(accV + r, 2)}, {vr(RV + r, 2)}")
    for i in range(8):
        a(f"v_cvt_pk_bf16_f32 v{P + 16 + i}, v{accV + 2 * i}, v{accV + 2 * i + 1}")
    stores(a, [f"buffer_store_dwordx4 {vr(P + 16, 4)}, v{vVoff}, {sr(sWS, 4)}, s38 offen offset:1024",
               f"buffer_store_dwordx4 {vr(P + 20, 4)}, v{vVoff}, {sr(sWS, 4)}, s38 offen offset:1536"])
    loc = a.vm_issued - 1
    a.vm(f"buffer_store_dwordx4 {vr(P + 8, 4)}, v{vKoff}, {sr(sWS, 4)}, s36 offen {GM()}")
    a.vm(f"buffer_store_dwordx4 {vr(P + 12, 4)}, v{vKoff}, {sr(sWS, 4)}, s37 offen {GM()}")
    a.vm(f"buffer_store_dwordx4 {vr(P + 16, 4)}, v156, {sr(sWS, 4)}, s36 offen offset:1024 {GM()}")
    a.vm(f"buffer_store_dwordx4 {vr(P + 20, 4)}, v156, {sr(sWS, 4)}, s36 offen offset:1536 {GM()}")
    stamp(a)
    a(f"v_mov_b32 v{vT}, 0")
    a(f"v_mov_b32 v{vT + 1}, s{sTag}")
    a("s_mov_b64 exec, 1")
    if OPT["p1_cnt"]:
        a.wait(vm=loc)
    else:
        a.wait_all(lg=False)
    stores(a, [f"buffer_store_dword v{vT + 1}, v{vT}, {sr(sWS, 4)}, s48 offen"])
    if OPT.get("det") == 4:
        stamp(a)
    a("s_mov_b64 exec, -1")
    return a, odd, h, x


def phase2(a, l, h):
    sHead, sQb, sKh, sQs = 25, 26, 27, 28
    sVm = 34
    vKrd, vVrd, vIdx, vXw, vXr = 3, 4, 5, 6, 7
    Qf = [8, 12]
    Kf, Vf = 16, 32
    S = [64, 80]
    O = [96, 112]
    NEG = 128
    T = 144
    XCH = 131072
    BARS, CB = [[6, 12, 28], {2: 1, 4: 3}] if OPT["p2_sched"] == 0 else [[6, 14, 22, 36], {2: 1, 3: 2, 5: 4}]
    SYN = XCH + 3 * 3072 + 2048 + 4
    h(f"v_mov_b32 v22, {SYN}")
    h("v_mov_b32 v23, 0")
    for off in (0, 4, 8, 32, 16, 20, 24, 48):
        h(f"ds_write_b32 v22, v23 offset:{off}")

    def ready(half, n):
        h(f"v_mov_b32 v23, {n}")
        h(f"ds_write_b32 v22, v23 offset:{16 * half}")

    wl_n = [0]

    def wait_lds(off, n):
        wl_n[0] += 1
        k = wl_n[0]
        h("s_mov_b32 s58, 0x100000")
        h.label(f"L_prog{k}")
        h(f"ds_read_b32 v24, v22 offset:{off}")
        h("s_sub_u32 s58, s58, 1")
        h("s_waitcnt lgkmcnt(0)")
        h("v_readfirstlane_b32 s37, v24")
        h("s_cmp_eq_u32 s58, 0")
        h(f"s_cbranch_scc1 L_prog{k}_x")
        h(f"s_cmp_ge_u32 s37, {n}")
        h(f"s_cbranch_scc1 L_prog{k}_x")
        h(f"s_sleep {OPT['aux_sl']}")
        h(f"s_branch L_prog{k}")
        h.label(f"L_prog{k}_x")

    def late(k):
        def f(label):
            h(f"ds_read_b32 v24, v22 offset:{(8 if k == 0 else 32) + 16}")
            h("s_waitcnt lgkmcnt(0)")
            h("v_readfirstlane_b32 s37, v24")
            h("s_nop 0")
            h("s_cmp_ge_u32 s37, 4")
            h(f"s_cbranch_scc1 {label}")
        return f if OPT["adapt"] else None

    def wait_prog(k):
        for half in range(2):
            wait_lds((8 if k == 0 else 32) + 16 * half, 4)

    h(f"s_lshr_b32 s{sHead}, s2, 3")
    h(f"s_mul_i32 s33, s{sHead}, {HS()}")
    h(f"s_add_u32 s33, s33, {KVG}")
    h(f"s_lshr_b32 s61, s{sHead}, 1")
    h("s_lshl_b32 s61, s61, 10")
    h(f"s_add_u32 s61, s61, {FG1}")
    h(f"v_lshrrev_b32 v6, 3, v{vLane}")
    h("v_lshlrev_b32 v6, 7, v6")
    h(f"v_and_b32 v7, 7, v{vLane}")
    h("v_lshl_add_u32 v6, v7, 2, v6")
    h("s_mov_b64 s[62:63], 0")
    h("s_mov_b32 s59, 0x40000")
    h("s_waitcnt lgkmcnt(0)")
    h("s_barrier")
    h.nostamp = OPT.get("det") != 3
    stamp(h)
    items = [(0, 1, None), (1, 1, None), (0, 2, None), (0, 3, (0, 1)), (0, 4, (0, 2)), (1, 2, (0, 3)), (1, 3, (1, 1)),
             (1, 4, (1, 2)), (0, 5, None), (0, 6, None), (1, 5, None), (0, 7, None), (1, 6, None), (1, 7, None), (0, 8, None)]
    if OPT["kv_gate"] == 0:
        items = [(hf, c, None) for c in range(1, 8) for hf in range(2)] + [(0, 8, None)]
    if OPT["kv_gate"] == 3:
        items = [(0, 1, None), (1, 1, None), (0, 2, None), (1, 2, None), (0, 3, (0, 2)), (0, 4, None), (1, 3, (0, 3)), (1, 4, None),
                 (0, 5, (1, 2)), (0, 6, None), (1, 5, None), (0, 7, None), (1, 6, None), (1, 7, None), (0, 8, None)]
    if OPT["kv_gate"] == 4:
        items = [(0, 1, None), (1, 1, None), (0, 2, None), (0, 3, (0, 1)), (1, 2, None), (0, 4, (0, 2)), (1, 3, None), (1, 4, None),
                 (0, 5, None), (0, 6, None), (1, 5, None), (0, 7, None), (1, 6, None), (1, 7, None), (0, 8, None)]
    if OPT["kv_gate"] == 2:
        items = [(hf, c, None) for hf, c, _ in items]
    pend = []

    def flush(keep):
        while len(pend) > keep:
            hf, c, tok = pend.pop(0)
            h.wait(vm=tok)
            ready(hf, c)

    for n, (half, c, gate) in enumerate(items):
        if gate:
            flush(0)
            wait_lds(4 + 16 * gate[0], gate[1])
        if OPT["p2_ord"] and c < 8:
            h("s_and_b32 s36, s2, 7")
            h(f"s_cmp_le_u32 s36, {c - 1}")
            h(f"s_cselect_b32 s36, {8 * c}, {8 * (c - 1)}")
        else:
            h(f"s_add_u32 s36, s2, {c}")
            h("s_and_b32 s36, s36, 7")
            h("s_lshl_b32 s36, s36, 3")
        if half == 0:
            h("s_bitcmp1_b64 s[62:63], s36")
            h(f"s_cbranch_scc1 L_g1_have{c}")
            h.label(f"L_g1_poll{c}")
            h(f"buffer_load_dword v7, v6, {sr(sWS, 4)}, s61 offen sc1")
            h("s_sub_u32 s59, s59, 1")
            h("s_waitcnt vmcnt(0)")
            for hf, cc, _ in pend:
                ready(hf, cc)
            h(f"v_cmp_eq_u32 vcc, s{sTag}, v7")
            h("s_cmp_eq_u32 s59, 0")
            h("s_cselect_b64 s[62:63], -1, vcc")
            h("s_cselect_b32 s59, 1, s59")
            for sh in (1, 2, 4):
                h(f"s_lshr_b64 s[34:35], s[62:63], {sh}")
                h("s_and_b64 s[62:63], s[62:63], s[34:35]")
            h("s_bitcmp1_b64 s[62:63], s36")
            h(f"s_cbranch_scc0 L_g1_poll{c}")
            h.label(f"L_g1_have{c}")
        if n in (0, 3, 8, 14):
            stamp(h)
        if c == 8:
            break
        h("s_lshl_b32 s36, s36, 11")
        h("s_add_u32 s36, s36, s33")
        for q in range(2):
            h(f"s_mov_b32 m0, {half * 65536 + c * 8192 + q * 4096}")
            h(f"s_add_u32 s37, s36, {half * 8192 + q * 4096}")
            for i in range(4):
                tok = h.vm(f"buffer_load_dwordx4 v{vL16}, {sr(sWS, 4)}, s37 offen offset:{i * 1024} {['sc1', '', 'sc0 sc1', 'nt'][OPT['kv_ld']]} lds")
        pend.append((half, c, tok))
        if n == OPT["t_at"]:
            touch_setup(h)
            touch_weights(h)
        flush(OPT['kv_fl'])
    if OPT["t_at"] > 20:
        touch_setup(h)
    h(f"v_lshrrev_b32 v8, 3, v{vLane}")
    h(f"v_and_b32 v9, 7, v{vLane}")
    h(f"v_lshrrev_b32 v10, 2, v{vLane}")
    h("v_and_b32 v10, 4, v10")
    h("v_xor_b32 v10, v10, v9")
    h("v_lshlrev_b32 v10, 4, v10")
    h("v_lshl_add_u32 v10, v8, 10, v10")
    for i in range(1, 4):
        h(f"v_add_u32 v{24 + i}, {i * (8192 - 1024)}, v10")
    h("v_lshrrev_b32 v11, 1, v8")
    h("v_xor_b32 v11, v11, v9")
    h("v_lshlrev_b32 v11, 4, v11")
    h("v_lshl_add_u32 v11, v8, 10, v11")
    h("v_xor_b32 v12, 64, v11")
    h(f"v_and_b32 v13, 2, v{vLane}")
    h("v_lshlrev_b32 v13, 5, v13")
    h("v_sub_u32 v13, 32, v13")
    h("s_lshr_b32 s61, s2, 4")
    h("s_mul_i32 s61, s61, 192")
    for i in range(3):
        h(f"v_add_u32 v14, {64 * i}, v{vLane}")
        h("v_mul_u32_u24 v14, 171, v14")
        h("v_lshrrev_b32 v14, 11, v14")
        h(f"v_mul_u32_u24 v14, {2752 - 192}, v14")
        h(f"v_add3_u32 v{16 + i}, v{vL16}, v14, s61")
        h(f"v_add_u32 v{19 + i}, v{16 + i}, v13")
    h("s_bfe_u32 s60, s2, 0x30003")
    h("s_lshl_b32 s60, s60, 7")
    flush(0)
    stamp(h)
    if OPT["t_at"] > 20:
        touch_weights(h, late(0))
    h(f"s_lshl_b32 s{sT1}, s{sT0}, 11")
    h(f"v_add_u32 v4, s{sT1}, v3")
    h("s_mov_b64 exec, 0xffff")
    code_prefetch(h, "L_p2_tail", 38, 4, 5, "p2")
    h("s_mov_b64 exec, -1")
    stamp(h)
    wait_prog(0)
    stamp(h)
    for q in range(16):
        h(f"s_mov_b32 m0, {(q >> 3) * 65536 + (q & 7) * 4096}")
        h(f"s_add_u32 s36, s60, {q * 32768}")
        for i in range(4):
            h(f"buffer_load_dwordx4 v{(10, 25, 26, 27)[i]}, {sr(16, 4)}, s36 offen offset:{i * 1024} lds")
        if q % 4 == 3:
            h("s_waitcnt vmcnt(40)")
    if OPT["retouch"]:
        if OPT["adapt"]:
            late(1)("L_skip_rt")
        h("s_and_b32 s36, s2, 7")
        h("s_lshl_b32 s36, s36, 3")
        h(f"s_lshr_b32 s{sT1}, s{sT0}, 2")
        h(f"s_add_u32 s36, s36, s{sT1}")
        h(f"s_mul_i32 s36, s36, {RT}")
        h(f"s_and_b32 s{sT1}, s{sT0}, 3")
        h(f"s_lshl_b32 s{sT1}, s{sT1}, 13")
        h(f"s_add_u32 s36, s36, s{sT1}")
        h(f"s_add_u32 s37, s36, {QO}")
        h(f"buffer_load_dword v5, v3, {sr(sWS, 4)}, s37 offen")
        h(f"buffer_load_dword v5, v3, {sr(sWS, 4)}, s36 offen")
        if OPT["retouch"] > 1:
            h(f"s_add_u32 s37, s36, {GO}")
            h(f"buffer_load_dword v5, v3, {sr(sWS, 4)}, s37 offen")
        n2 = OPT["gu2_n"]
        for sq in (20, 48):
            if n2:
                h(f"s_mul_i32 s{sT1}, s{sT0}, {n2 * 8192}")
                h(f"s_add_u32 s{sT1}, s{sT1}, {OPT['gu2_from'] * 2752 // 128 * 128}")
                h(f"v_add_u32 v4, s{sT1}, v3")
            for i in range(n2):
                h(f"buffer_load_dword v5, v4, {sr(sq, 4)}, 0 offen")
                if i + 1 < n2:
                    h("v_add_u32 v4, 0x2000, v4")
        h("s_waitcnt vmcnt(40)")
        h.label("L_skip_rt")
    h("s_cmp_ge_u32 s2, 240")
    h("s_cbranch_scc1 L_pre_end")
    stamp(h)
    wait_prog(1)
    stamp(h)
    for st in range(OPT["w4pre"]):
        for g2 in range(2):
            for mat in range(2):
                h(f"s_mov_b32 m0, {WS4[st] + (g2 * 2 + mat) * 3072}")
                h(f"s_mov_b32 s36, {(st * 32 + g2 * 16) * 2752}")
                for i in range(3):
                    h(f"buffer_load_dwordx4 v{16 + 3 * mat + i}, {sr(20 if mat == 0 else 48, 4)}, s36 offen offset:{i * 1024} lds")
        h("s_waitcnt vmcnt(40)")
    stamp(h)
    h.label("L_pre_end")
    h("s_waitcnt vmcnt(0)")
    if OPT.get("det") == 3:
        h(f"s_mov_b32 s{sWave}, 4")
        stamp_flush(h)
    h("s_endpgm")

    def init(b):
        b(f"s_lshr_b32 s{sHead}, s2, 3")
        b(f"s_and_b32 s{sQb}, s2, 7")
        b(f"s_lshr_b32 s{sKh}, s{sWave}, 2")
        b(f"s_and_b32 s{sQs}, s{sWave}, 3")
        b(f"v_and_b32 v{T}, 27, v{vLane}")
        b(f"v_cmp_eq_u32 vcc, 16, v{T}")
        b(f"v_mov_b32 v{T}, 0x3f803f80")
        b(f"v_mov_b32 v{vIdx}, 0xdddd")
        for r in range(32):
            b(f"v_cndmask_b32 v{Vf + r}, 0, v{T}, vcc")
        b(f"s_mov_b32 s{sVm}, 0x0000ffff")
        b(f"s_mov_b32 s{sVm + 1}, 0x0000ffff")
        b(f"s_lshl_b32 s{sT0}, s{sKh}, 16")
        b(f"v_add_u32 v{vKrd}, s{sT0}, v{vL16}")
        b(f"v_lshrrev_b32 v{T}, 5, v{vLane}")
        b(f"v_and_b32 v{T + 1}, 15, v{vLane}")
        b(f"v_lshlrev_b32 v{T + 1}, 4, v{T + 1}")
        b(f"v_lshl_add_u32 v{T}, v{T}, 8, v{T + 1}")
        b(f"v_add_u32 v{vVrd}, s{sT0}, v{T}")
        b(f"s_mul_i32 s{sT0}, s{sWave}, 3072")
        b(f"s_add_u32 s{sT0}, s{sT0}, {XCH}")
        b(f"v_add_u32 v{vXw}, s{sT0}, v{vL16}")
        b(f"s_xor_b32 s{sT1}, s{sWave}, 4")
        b(f"s_mul_i32 s{sT0}, s{sT1}, 3072")
        b(f"s_add_u32 s{sT0}, s{sT0}, {XCH}")
        b(f"v_add_u32 v{vXr}, s{sT0}, v{vL16}")
        b(f"s_lshl_b32 s{sT0}, s{sQs}, 1")
        b(f"s_add_u32 s{sT0}, s{sT0}, s{sKh}")
        b(f"s_lshl_b32 s{sT0}, s{sT0}, 10")
        b(f"s_add_u32 s{sT0}, s{sT0}, {XCH}")
        b(f"v_add_u32 v{T + 2}, s{sT0}, v{vL16}")
        b(f"v_xor_b32 v{T + 3}, 1024, v{T + 2}")
        b(f"s_lshl_b32 s{sT0}, s{sKh}, 4")
        b(f"s_add_u32 s{sT0}, s{sT0}, {SYN}")
        b(f"v_mov_b32 v{T + 6}, s{sT0}")
        b(f"v_mov_b32 v{T + 7}, 1")
        for c in range(2):
            for r in range(16):
                b(f"v_mov_b32 v{O[c] + r}, 0")
        b(f"s_lshl_b32 s57, s{sQb}, 2")
        b(f"s_add_u32 s57, s57, s{sQs}")
        b(f"s_lshl_b32 s55, s57, 8")
        b(f"s_lshl_b32 s{sT1}, s{sHead}, 1")
        b(f"s_add_u32 s{sT1}, s{sT1}, s{sKh}")
        b(f"s_lshl_b32 s{sT1}, s{sT1}, 2")
        b(f"s_add_u32 s55, s55, s{sT1}")
        b(f"s_add_u32 s55, s55, {F2}")
        b(f"s_lshl_b32 s57, s57, 1")
        b(f"s_add_u32 s57, s57, s{sKh}")
        b(f"s_mul_i32 s57, s57, {RT}")
        b(f"s_lshl_b32 s{sT1}, s{sHead}, 10")
        b(f"s_add_u32 s57, s57, s{sT1}")
        b(f"s_add_u32 s57, s57, {QO}")

    init(l)
    l(f"s_lshl_b32 s40, s{sQb}, 9")
    l(f"s_lshr_b32 s{sT0}, s{sHead}, 1")
    l(f"s_lshl_b32 s{sT0}, s{sT0}, 5")
    l(f"s_add_u32 s40, s40, s{sT0}")
    l(f"s_add_u32 s40, s40, {FL1}")
    l(f"s_lshl_b32 s36, s{sQb}, 2")
    l(f"s_add_u32 s36, s36, s{sQs}")
    l(f"s_mul_i32 s36, s36, {2 * RT}")
    l(f"s_lshl_b32 s{sT0}, s{sHead}, 10")
    l(f"s_add_u32 s37, s36, s{sT0}")
    l(f"s_add_u32 s36, s37, s{sT0}")
    l(f"s_add_u32 s37, s37, {QO}")
    l(f"s_add_u32 s42, s36, {RT - 2048}")
    l(f"s_add_u32 s43, s37, {RT - 1024}")
    l(f"s_lshr_b32 s38, s{sQs}, 1")
    l("s_lshl_b32 s38, s38, 16")
    l(f"s_and_b32 s{sT0}, s{sQs}, 1")
    l(f"s_lshl_b32 s{sT0}, s{sT0}, 12")
    l(f"s_add_u32 s38, s38, s{sT0}")
    l(f"s_lshl_b32 s39, s{sQs}, 11")
    l(f"s_add_u32 s39, s39, {XCH}")
    l(f"v_lshlrev_b32 v{T + 4}, 2, v{vLane}")
    l("s_mov_b32 s59, 0x40000")
    l("s_mov_b64 exec, 0xff")
    l.label("L_poll_l1")
    l(f"buffer_load_dword v{T + 5}, v{T + 4}, {sr(sWS, 4)}, s40 offen sc1")
    l("s_sub_u32 s59, s59, 1")
    l.wait_all(lg=False)
    l(f"v_cmp_ne_u32 vcc, s{sTag}, v{T + 5}")
    l("s_cmp_eq_u32 s59, 0")
    l("s_cbranch_scc1 L_poll_l1_x")
    l("s_cbranch_vccnz L_poll_l1")
    l.label("L_poll_l1_x")
    if OPT.get("det") != 2:
        stamp(l)
    l("s_mov_b64 exec, -1")
    l("s_mov_b32 m0, s39")
    l("s_nop 0")
    for i in range(2):
        l.vm(f"buffer_load_dwordx4 v{vL16}, {sr(sWS, 4)}, s{(37, 43)[i]} offen offset:{i * 1024} sc1 lds")
    l("s_mov_b32 m0, s38")
    l("s_nop 0")
    for i in range(4):
        l.vm(f"buffer_load_dwordx4 v{vL16}, {sr(sWS, 4)}, s{(36, 42)[i // 2]} offen offset:{i * 1024} sc1 lds")
    l.wait_all()
    if OPT.get("det") != 2:
        stamp(l)
    l("s_branch L_p2_b0")
    init(a)
    a(f"v_mov_b32 v{T + 4}, 0")
    a(f"v_mov_b32 v{T + 5}, s{sTag}")

    def gflag():
        a.wait_all(lg=False)
        a("s_mov_b64 exec, 1")
        a.vm(f"buffer_store_dword v{T + 5}, v{T + 4}, {sr(sWS, 4)}, s49 offen sc1")
        a("s_mov_b64 exec, -1")

    if not OPT["p2_defer"]:
        gflag()
    if OPT.get("det") == 4:
        stamp(a)
    a.label("L_p2_b0")

    def emit_pair(p, extra=()):
        for t in (2 * p, 2 * p + 1):
            a.lg(f"ds_read_b128 {vr(Kf + 4 * (t & 3), 4)}, v{vKrd} offset:{t * 2048}")
        a(f"s_mov_b64 exec, {sr(sVm, 2)}")
        for t in (2 * p, 2 * p + 1):
            a.lg(f"ds_read_b128 {vr(Vf + 8 * (t & 3), 4)}, v{vVrd} offset:{t * 2048 + 1024}")
            tok = a.lg(f"ds_read_b128 {vr(Vf + 8 * (t & 3) + 4, 4)}, v{vVrd} offset:{t * 2048 + 1536}")
        if extra:
            a("s_mov_b64 exec, 1")
            for e in extra:
                a.lg(e)
        a("s_mov_b64 exec, -1")
        return tok

    def qk(u):
        t, c = divmod(u, 2)
        return f"v_mfma_f32_32x32x16_bf16 {vr(S[u & 1], 16)}, {vr(Kf + 4 * (t & 3), 4)}, {vr(Qf[1 - c], 4)}, 0"

    def pv(u, i):
        t, c = divmod(u, 2)
        return (f"v_smfmac_f32_32x32x32_bf16 {vr(O[1 - c], 16)}, {vr(Vf + 8 * (t & 3) + 4 * i, 4)}, "
                f"{vr(S[u & 1] + 8 * i, 8)}, v{vIdx}")

    NU = 64
    PRIO = [{0: 2, 29: 1, 53: 0}, {0: 2, 29: 1, 60: 0}, {0: 3, 29: 2, 53: 1, 61: 0}][OPT["p2_pr"]]
    rtok = {}

    def need(u, n):
        a.wait(lg=rtok[u])
        a.label(f"L_rdy{u}")
        a(f"v_readfirstlane_b32 s36, v{T + 8}")
        a("s_nop 0")
        a(f"s_cmp_ge_u32 s36, {n}")
        a(f"s_cbranch_scc0 L_rdy{u}_spin")
        sp.label(f"L_rdy{u}_spin")
        sp("s_sleep 2")
        sp(f"ds_read_b32 v{T + 8}, v{T + 6}")
        sp("s_sub_u32 s59, s59, 1")
        sp("s_waitcnt lgkmcnt(0)")
        sp("s_cmp_lg_u32 s59, 0")
        sp(f"s_cbranch_scc1 L_rdy{u}")
        sp("s_mov_b32 s59, 1")
        sp(f"v_mov_b32 v{T + 8}, 7")
        sp("s_nop 0")
        sp(f"s_branch L_rdy{u}")

    sp = Asm()
    a("s_mov_b32 s59, 0x100000")
    a("s_barrier")
    stamp(a)
    a.lg(f"ds_read_b128 {vr(Qf[1], 4)}, v{T + 3}")
    a.lg(f"ds_read_b128 {vr(Qf[0], 4)}, v{T + 2}")
    ptok = {0: emit_pair(0)}
    a.wait(lg=ptok[0] - 5)
    a(qk(0))
    if OPT["p2_defer"]:
        a(f"s_cmp_lg_u32 s{sKh}, 0")
        a("s_cbranch_scc1 L_p2_nogf")
        gflag()
        a.label("L_p2_nogf")
    a.wait(lg=ptok[0])
    a("s_nop 9")
    if OPT["al2"] >= 0:
        a.raw(".p2align 6")
        for _ in range(OPT["al2"]):
            a("s_nop 0")
    for u in range(NU):
        X = S[u & 1]
        p, pu = divmod(u, 4)
        if u in PRIO:
            a(f"s_setprio {PRIO[u]}")
        ex = [f"v_exp_f32 v{X + i}, v{X + i}" for i in range(16)]
        a(ex[0]); a(ex[1])
        if u > 0:
            a(pv(u - 1, 1))
        a(ex[2]); a(ex[3]); a(ex[4])
        if u + 1 < NU:
            if pu == 3:
                a.wait(lg=ptok[p + 1])
            a(qk(u + 1))
        late = p + 1 == 2
        if p + 1 < 16 and pu == (2 if late else 0):
            if (p + 1) % 2 == 0:
                need(u, (p + 1) // 2)
            extra = []
            if u in (28, 52):
                extra.append(f"ds_add_u32 v{T + 6}, v{T + 7} offset:{8 if u == 28 else 32}")
            if (p + 1) % 2 == 1 and (p + 2) // 2 <= 3 and OPT["kv_gate"] in (1, 3, 4):
                a(f"v_mov_b32 v{T + 9}, {(p + 2) // 2}")
                extra.append(f"ds_max_u32 v{T + 6}, v{T + 9} offset:4")
            ptok[p + 1] = emit_pair(p + 1, extra)
        nu = u + 1
        if nu < NU and (nu // 4 + 1) % 2 == 0 and nu // 4 + 1 < 16 and nu % 4 == (2 if nu // 4 + 1 == 2 else 0):
            rtok[nu] = a.lg(f"ds_read_b32 v{T + 8}, v{T + 6}")
        for i in range(5, 10):
            a(ex[i])
        a(pv(u, 0))
        for i in range(10, 16):
            a(ex[i])
            if u == NU - 1 and i == 13:
                a.lg(f"ds_write_b128 v{vXw}, {vr(O[1], 4)}")
                a.lg(f"ds_write_b128 v{vXw}, {vr(O[1] + 4, 4)} offset:1024")
                a.lg(f"ds_write_b32 v{vXw}, v{O[1] + 8} offset:2048")
    a.label("L_p2_tail")
    a("s_nop 1")
    a(pv(NU - 1, 1))
    a(f"s_mov_b32 s{sT0}, {hx(f2u(2.0 ** 80))}")
    a(f"s_mov_b32 s{sT1}, {hx(f2u(2.0 ** -80))}")
    a("s_mov_b32 s56, 0")
    a.wait_all(vm=False)
    a("s_barrier")
    t2 = a.lg(f"ds_read_b32 v{T + 8}, v{vXr} offset:2048")
    a.lg(f"ds_read_b128 {vr(T, 4)}, v{vXr}")
    t1 = a.lg(f"ds_read_b128 {vr(T + 4, 4)}, v{vXr} offset:1024")
    a("s_nop 2")
    a.wait(lg=t2)
    a(f"v_add_f32 v{O[0] + 8}, v{O[0] + 8}, v{T + 8}")
    a.wait(lg=t1)
    for r in range(0, 8, 2):
        a(f"v_pk_add_f32 {vr(O[0] + r, 2)}, {vr(O[0] + r, 2)}, {vr(T + r, 2)}")
    a.label("L_p2_finish")
    a(f"v_rcp_f32 v{T + 8}, v{O[0] + 8}")
    a(f"v_cmp_gt_f32 s[40:41], s{sT0}, v{O[0] + 8}")
    a(f"v_cmp_lt_f32 s[42:43], s{sT1}, v{O[0] + 8}")
    for r in range(0, 8, 2):
        a(f"v_pk_mul_f32 {vr(O[0] + r, 2)}, {vr(O[0] + r, 2)}, {vr(T + 8, 2)} op_sel_hi:[1,0]")
    for i in range(4):
        a(f"v_cvt_pk_bf16_f32 v{T + 4 + i}, v{O[0] + 2 * i}, v{O[0] + 2 * i + 1}")
    a(f"v_dot2_f32_bf16 v{T}, v{T + 4}, v{T + 4}, 0")
    for i in range(1, 4):
        a(f"v_dot2_f32_bf16 v{T}, v{T + 4 + i}, v{T + 4 + i}, v{T}")
    a("s_and_b64 s[40:41], s[40:41], s[42:43]")
    a("s_cmp_lg_u32 s56, 0")
    a("s_cbranch_scc1 L_p2_store")
    a(f"v_cmp_gt_f32 vcc, s{sT0}, v{T}")
    a("s_nop 0")
    a("s_and_b64 s[40:41], s[40:41], vcc")
    a("s_cmp_eq_u64 s[40:41], -1")
    a("s_cbranch_scc0 L_p2_fallback")
    a.label("L_p2_store")
    stores(a, [f"buffer_store_dwordx4 {vr(T + 4, 4)}, v{vL16}, {sr(sWS, 4)}, s57 offen"])
    a("s_barrier")
    stamp(a)

    f = Asm()
    f.label("L_p2_fallback")
    vV2, vM = T + 11, T + 12
    f(f"s_lshl_b32 s37, s{sKh}, 16")
    f(f"v_subrev_u32 v{vV2}, s37, v{vVrd}")
    f(f"s_mul_i32 s36, s{sHead}, {HS()}")
    f(f"s_add_u32 s36, s36, {KVG}")
    f(f"v_mov_b32 v{vM}, 0xff800000")
    f("s_mov_b32 s56, 0")
    f("s_mov_b32 s37, s36")
    f.label("L_p2_fb_max")
    f(f"buffer_load_dwordx4 {vr(Kf, 4)}, v{vL16}, {sr(sWS, 4)}, s37 offen sc1")
    f("s_waitcnt vmcnt(0)")
    f(f"v_mfma_f32_32x32x16_bf16 {vr(S[0], 16)}, {vr(Kf, 4)}, {vr(Qf[0], 4)}, 0")
    f("s_nop 15")
    for i in range(8):
        f(f"v_max3_f32 v{vM}, v{vM}, v{S[0] + 2 * i}, v{S[0] + 2 * i + 1}")
    f("s_add_u32 s37, s37, 2048")
    f("s_add_u32 s56, s56, 1")
    f("s_cmp_lt_u32 s56, 64")
    f("s_cbranch_scc1 L_p2_fb_max")
    f(f"v_mov_b32 v{T}, v{vM}")
    f("s_nop 1")
    f(f"v_permlane32_swap_b32 v{vM}, v{T}")
    f("s_nop 1")
    f(f"v_max_f32 v{vM}, v{vM}, v{T}")
    for r in range(16):
        f(f"v_sub_f32 v{NEG + r}, 0, v{vM}")
        f(f"v_mov_b32 v{O[0] + r}, 0")
    f("s_mov_b32 s56, 0")
    f("s_mov_b32 s37, s36")
    f.label("L_p2_fb_pv")
    f(f"buffer_load_dwordx4 {vr(Kf, 4)}, v{vL16}, {sr(sWS, 4)}, s37 offen sc1")
    f(f"s_mov_b64 exec, {sr(sVm, 2)}")
    f(f"buffer_load_dwordx4 {vr(Vf, 4)}, v{vV2}, {sr(sWS, 4)}, s37 offen offset:1024 sc1")
    f(f"buffer_load_dwordx4 {vr(Vf + 4, 4)}, v{vV2}, {sr(sWS, 4)}, s37 offen offset:1536 sc1")
    f("s_mov_b64 exec, -1")
    f("s_waitcnt vmcnt(0)")
    f(f"v_mfma_f32_32x32x16_bf16 {vr(S[0], 16)}, {vr(Kf, 4)}, {vr(Qf[0], 4)}, {vr(NEG, 16)}")
    f("s_nop 15")
    for i in range(16):
        f(f"v_exp_f32 v{S[0] + i}, v{S[0] + i}")
    f("s_nop 1")
    f(f"v_smfmac_f32_32x32x32_bf16 {vr(O[0], 16)}, {vr(Vf, 4)}, {vr(S[0], 8)}, v{vIdx}")
    f(f"v_smfmac_f32_32x32x32_bf16 {vr(O[0], 16)}, {vr(Vf + 4, 4)}, {vr(S[0] + 8, 8)}, v{vIdx}")
    f("s_nop 15")
    f("s_add_u32 s37, s37, 2048")
    f("s_add_u32 s56, s56, 1")
    f("s_cmp_lt_u32 s56, 64")
    f("s_cbranch_scc1 L_p2_fb_pv")
    f("s_branch L_p2_finish")
    f.lines += sp.lines
    return f


def phase_res(a, h, k3, pre_publish=None):
    uid = "p3" if k3 else "p5"
    KS = 32 if k3 else 86
    ACT = QO if k3 else GO
    NST = (KS + 3) // 4
    NA = OPT["p5_na"]
    WSL = WS3 if k3 else WS5[:19 - NA]
    NW = len(WSL)
    if k3:
        ASL = [(122880, -9), (131072, -9), (139264, -9), (147456, -9), (57344, -9), (122880, 0), (WS3[0], 0), (131072, 1)]
    else:
        ASL = [(163840 - NA * 8192 + (n % NA) * 8192, n - NA if n >= NA else -9) for n in range(NST)]
    RESO = RES3 if k3 else 24576
    busy = {WSL[(NST - 1) % NW], WSL[(NST - 2) % NW]}
    TRO = [o for o in WSL if o + 8192 in WSL and not ({o, o + 8192} & busy)][0]
    sW, sIO = 16, 20
    sWr, sWc, sRb, sCb = 25, 26, 27, 28
    T = 12
    for b in (a, h):
        b(f"s_and_b32 s{sT0}, s2, 7")
        b(f"s_lshl_b32 s{sRb}, s{sT0}, 2")
        b(f"s_lshr_b32 s34, s2, 6")
        b(f"s_add_u32 s{sRb}, s{sRb}, s34")
        b(f"s_bfe_u32 s{sCb}, s2, 0x30003")
        b(f"s_and_b32 s{sWr}, s{sWave}, 1")
        b(f"s_bfe_u32 s{sWc}, s{sWave}, 0x10001")
    vWoff, vXg = 3, 5
    h(f"v_lshrrev_b32 v{T}, 3, v{vLane}")
    h(f"v_and_b32 v{T + 1}, 7, v{vLane}")
    h(f"v_lshrrev_b32 v{T + 2}, 2, v{vLane}")
    h(f"v_and_b32 v{T + 2}, 4, v{T + 2}")
    h(f"v_xor_b32 v{T + 2}, v{T + 2}, v{T + 1}")
    h(f"v_lshlrev_b32 v{T + 2}, 4, v{T + 2}")
    h(f"v_lshl_add_u32 v{T + 2}, v{T}, 10, v{T + 2}")
    h(f"s_mul_i32 s44, s{sHw}, {3 * 16384}")
    h(f"s_lshl_b32 s{sT0}, s{sCb}, 7")
    h(f"v_add_u32 v{vWoff}, s{sT0}, v{T + 2}")
    h(f"v_add_u32 v{vWoff + 1}, {8192 - 1024}, v{vWoff}")
    h(f"s_lshl_b32 s32, s{sHw}, 11")
    h(f"s_lshl_b32 s33, s{sRb}, 1")
    h(f"s_add_u32 s33, s33, s{sWr}")
    h(f"s_mul_i32 s34, s33, {RT}")
    h(f"s_lshl_b32 s{sT1}, s{sWc}, 11")
    h(f"s_add_u32 s34, s34, s{sT1}")
    h(f"s_add_u32 s34, s34, {ACT}")
    h(f"s_lshl_b32 s35, s{sWr}, 12")
    h(f"s_add_u32 s35, s35, s{sT1}")
    if k3:
        pass
    else:
        h(f"s_mul_i32 s36, s33, {RT}")
        h(f"s_lshl_b32 s{sT0}, s{sCb}, 12")
        h(f"s_add_u32 s36, s36, s{sT0}")
        h(f"s_add_u32 s36, s36, s{sT1}")
    srd(h, sW, KWO if k3 else KD, KS * 16 * 1024)
    if pre_publish is not None:
        publish(h, pre_publish, T + 4)
    dr = Drip(h)

    def issue_w(st):
        cl = [(4 * st + w >= 29) + (4 * st + w >= 58) for w in range(4)]
        pre = [f"s_add_u32 s42, s44, {hx((12 * st - 86 * cl[0]) * 16384)}"]
        if cl[3] != cl[0]:
            pre += [f"s_add_u32 s45, s44, {hx((12 * st - 86 * cl[3]) * 16384)}", f"s_cmp_ge_u32 s{sHw}, {cl.index(cl[3])}",
                    "s_cselect_b32 s42, s45, s42"]
        dr.add(st, [f"s_add_u32 m0, s32, {WSL[st % NW]}"] + pre,
               f"buffer_load_dwordx4 v{vWoff}, {sr(sW, 4)}, s42 offen lds")
        dr.add(st, [], f"buffer_load_dwordx4 v{vWoff + 1}, {sr(sW, 4)}, s42 offen offset:1024 lds")

    def issue_a(st):
        dr.add(st, [f"s_add_u32 m0, s35, {ASL[st][0]}", f"s_add_u32 s43, s34, {st * 4096}"],
               f"buffer_load_dwordx4 v{vL16}, {sr(sWS, 4)}, s43 offen {LD()} lds")
        dr.add(st, [], f"buffer_load_dwordx4 v{vL16}, {sr(sWS, 4)}, s43 offen offset:1024 {LD()} lds")

    if not k3:
        for st in range(NW):
            issue_w(st)
    dr.emit(100)
    if not OPT.get("det"):
        stamp(h)
    if k3 and OPT["lpoll"]:
        h(f"s_lshl_b32 s40, s{sRb}, 8")
        h(f"s_add_u32 s40, s40, {F2}")
        poll(h, 40, T + 4, "p3l", every=True, barrier=False)
    elif k3:
        h("s_barrier")
    else:
        h(f"s_lshl_b32 s40, s{sRb}, 9")
        h(f"s_add_u32 s40, s40, {F4}")
        poll(h, 40, T + 4, "p5l", 30, every=True, barrier=False)
    if not OPT.get("det"):
        stamp(h)
    AHEAD = OPT["p3_a"] if k3 else OPT["p5_a"]
    nxt_a = 0
    for st in range(NST):
        while nxt_a <= min(st + AHEAD, NST - 1):
            if not k3 and ((nxt_a >= 7 and st <= 2) or (nxt_a >= 14 and st <= OPT["p5_c2"])):
                break
            if ASL[nxt_a][1] > st - 3:
                break
            issue_a(nxt_a)
            nxt_a += 1
        if not k3 and st == 1:
            dr.add(4, [f"s_add_u32 m0, s35, {RESO}", "s_nop 0"], f"buffer_load_dwordx4 v{vL16}, {sr(sWS, 4)}, s36 offen {LD()} lds")
            dr.add(4, [], f"buffer_load_dwordx4 v{vL16}, {sr(sWS, 4)}, s36 offen offset:1024 {LD()} lds")
        dr.emit(100)
        h.wait(vm=dr.tok[st])
        h("s_barrier")
        if st >= 2 and st - 2 + NW < NST:
            issue_w(st - 2 + NW)
    if k3:
        h("s_barrier")
    RST = 0 if k3 else 4
    vWrd, vAr, vRr, vTw, vTr, vOut = [3, 4], [5, 6, 22], [7, 8], 9, 10, 11
    ID = 24
    FR = [32, 72]
    acc = 112
    a(f"v_and_b32 v{T}, 31, v{vLane}")
    a(f"v_lshrrev_b32 v{T + 1}, 5, v{vLane}")
    a(f"v_bfe_u32 v{T + 2}, v{vLane}, 2, 2")
    a(f"v_lshl_add_u32 v{T + 3}, v{T + 1}, 2, v{T + 2}")
    a(f"v_lshlrev_b32 v{T + 3}, 7, v{T + 3}")
    a(f"v_bfe_u32 v{T + 4}, v{vLane}, 4, 1")
    a(f"v_lshl_add_u32 v{T + 3}, v{T + 4}, 5, v{T + 3}")
    a(f"v_and_b32 v{T + 4}, 3, v{vLane}")
    a(f"v_lshl_add_u32 v{T + 3}, v{T + 4}, 3, v{T + 3}")
    a(f"v_lshrrev_b32 v{T + 2}, 1, v{T + 2}")
    a(f"v_xor_b32 v{T + 2}, s{sWc}, v{T + 2}")
    a(f"v_lshl_add_u32 v{vWrd[0]}, v{T + 2}, 6, v{T + 3}")
    wl = LdsAddr(a, vWrd)
    wl.setup(a)
    a(f"s_lshl_b32 s{sT0}, s{sWr}, 12")
    a(f"v_add_u32 v{vAr[0]}, s{sT0}, v{vL16}")
    al = LdsAddr(a, vAr)
    al.setup(a)
    if k3:
        a(f"v_bfe_u32 v{T + 2}, v{vLane}, 1, 3")
        a(f"v_xor_b32 v{T + 2}, v{T + 2}, v{T + 1}")
        a(f"s_lshl_b32 s{sT1}, s{sWc}, 2")
        a(f"v_xor_b32 v{T + 2}, s{sT1}, v{T + 2}")
        a(f"v_lshlrev_b32 v{T + 2}, 4, v{T + 2}")
        a(f"v_lshl_add_u32 v{T + 2}, v{T}, 7, v{T + 2}")
        a(f"s_add_u32 s{sT0}, s{sT0}, {RESO}")
        a(f"v_add_u32 v{vRr[0]}, s{sT0}, v{T + 2}")
        a(f"v_xor_b32 v{vRr[1]}, 32, v{vRr[0]}")
    else:
        a(f"s_lshl_b32 s{sT1}, s{sWc}, 11")
        a(f"s_add_u32 s{sT0}, s{sT0}, s{sT1}")
        a(f"s_add_u32 s{sT0}, s{sT0}, {RESO}")
        a(f"v_add_u32 v{vRr[0]}, s{sT0}, v{vL16}")
        a(f"v_add_u32 v{vRr[1]}, 1024, v{vRr[0]}")
    if pre_publish is not None:
        publish(a, pre_publish, T + 6)
    a(f"v_mov_b32 v{T + 5}, 0x3f80")
    for e in range(2):
        if k3:
            a(f"v_lshlrev_b32 v{T + 2}, 3, v{T + 1}")
            a(f"v_sub_u32 v{T + 2}, v{T}, v{T + 2}")
            a(f"v_subrev_u32 v{T + 2}, {16 * e}, v{T + 2}")
        else:
            a(f"v_bfe_u32 v{T + 2}, v{vLane}, 3, 1")
            a(f"v_and_b32 v{T + 3}, 3, v{vLane}")
            a(f"v_lshl_add_u32 v{T + 2}, v{T + 2}, 2, v{T + 3}")
            a(f"v_bfe_u32 v{T + 3}, v{vLane}, 2, 1")
            a(f"v_xor_b32 v{T + 3}, v{T + 3}, v{T + 1}")
            a(f"v_bfe_u32 v{T + 4}, v{vLane}, 4, 1")
            a(f"v_xor_b32 v{T + 4}, {e}, v{T + 4}")
            a(f"v_or_b32 v{T + 3}, v{T + 3}, v{T + 4}")
            a(f"v_lshl_add_u32 v{T + 2}, v{T + 3}, 4, v{T + 2}")
        a(f"v_and_b32 v{T + 3}, 1, v{T + 2}")
        a(f"v_lshlrev_b32 v{T + 3}, 4, v{T + 3}")
        a(f"v_lshlrev_b32 v{T + 3}, v{T + 3}, v{T + 5}")
        a(f"v_lshrrev_b32 v{T + 2}, 1, v{T + 2}")
        for r in range(4):
            a(f"v_cmp_eq_u32 vcc, {r}, v{T + 2}")
            a("s_nop 1")
            a(f"v_cndmask_b32 v{ID + 4 * e + r}, 0, v{T + 3}, vcc")
    a(f"s_lshl_b32 s33, s{sRb}, 1")
    a(f"s_add_u32 s33, s33, s{sWr}")
    a(f"s_lshl_b32 s34, s{sCb}, 1")
    a(f"s_add_u32 s34, s34, s{sWc}")
    if k3:
        a(f"s_mul_i32 s{sT1}, s33, {RT}")
        a(f"s_lshl_b32 s36, s34, 11")
        a(f"s_add_u32 s36, s36, s{sT1}")
        a(f"s_lshl_b32 s37, s34, 8")
        a(f"s_add_u32 s37, s37, s{sT1}")
        a(f"s_add_u32 s37, s37, {SO}")
        a("s_mov_b32 s41, 0x3f803f80")
        a(f"v_lshlrev_b32 v{vOut}, 3, v{vLane}")
        a(f"s_lshl_b32 s55, s{sRb}, 7")
        a(f"s_lshl_b32 s{sT1}, s{sCb}, 4")
        a(f"s_add_u32 s55, s55, s{sT1}")
        a(f"s_lshl_b32 s{sT1}, s{sWave}, 2")
        a(f"s_add_u32 s55, s55, s{sT1}")
        a(f"s_add_u32 s55, s55, {F3}")
    else:
        a(f"s_mul_i32 s{sT0}, s{sHw}, 2560")
        a(f"s_add_u32 s{sT0}, s{sT0}, {TRO}")
        a(f"v_mul_u32_u24 v{T + 2}, 80, v{T}")
        a(f"v_lshl_add_u32 v{T + 2}, v{T + 1}, 3, v{T + 2}")
        a(f"v_add_u32 v{vTw}, s{sT0}, v{T + 2}")
        a(f"v_lshrrev_b32 v{T + 2}, 2, v{vLane}")
        a(f"v_and_b32 v{T + 3}, 3, v{vLane}")
        a(f"v_lshlrev_b32 v{T + 3}, 4, v{T + 3}")
        a(f"v_mad_u32_u24 v{T + 4}, v{T + 2}, 64, v{T + 3}")
        a(f"v_lshl_add_u32 v{T + 4}, v{T + 2}, 4, v{T + 4}")
        a(f"v_add_u32 v{vTr}, s{sT0}, v{T + 4}")
        a(f"v_lshl_add_u32 v{vOut}, v{T + 2}, 10, v{T + 3}")
        a(f"s_lshl_b32 s36, s33, 15")
        a(f"s_lshl_b32 s37, s34, 6")
        a(f"s_add_u32 s36, s36, s37")
        a(f"s_add_u32 s37, s36, 16384")
        srd(a, sIO, KO, 2048 * 1024)
    a(f"s_lshl_b32 s40, s{sRb}, {8 if k3 else 9}")
    a(f"s_add_u32 s40, s40, {F2 if k3 else F4}")
    if k3 and not OPT["lpoll"]:
        poll(a, 40, T + 6, uid, 64)
    first = True
    prev = []
    for st in range(NST):
        if not k3 and st in (0, OPT["p5_c2"] - 3):
            poll_issue(a, 40, T + 6, f"p5i{st}", 128 if st == 0 else 256)
        if not k3 and st in (2, OPT["p5_c2"]):
            poll(a, 40, T + 6, f"p5c{8 if st > 2 else 1}", 30, barrier=False, off=128 if st == 2 else 256, issued=True)
        a("s_barrier")
        if st == 0:
            stamp(a)
        F = FR[st & 1]
        n = min(4, KS - 4 * st)
        rd = []
        for k in range(n):
            reg, off = al.at(ASL[st][0] + k * 1024)
            rd.append(f"ds_read_b128 {vr(F + 8 * k, 4)}, {reg} offset:{off}")
            for half in range(2):
                reg, off = wl.at(WSL[st % NW] + k * 2048 + half * 1024)
                rd.append(f"ds_read_b64_tr_b16 {vr(F + 8 * k + 4 + 2 * half, 2)}, {reg} offset:{off}")
        cur = [[None, F + 8 * k + 4, F + 8 * k, 3 * k + 2] for k in range(n)]
        if st == RST:
            for e in range(2):
                rd.append(f"ds_read_b128 {vr(F + 32 + 4 * e, 4)}, v{vRr[e]}")
                cur.append([None, ID + 4 * e, F + 32 + 4 * e, len(rd) - 1])
        toks = []
        k = 0
        for tok, wa, xa, _ in prev:
            a.wait(lg=tok)
            a(f"v_mfma_f32_32x32x16_bf16 {vr(acc, 16)}, {vr(wa, 4)}, {vr(xa, 4)}, {'0' if first else vr(acc, 16)}")
            first = False
            for _ in range(3):
                if k < len(rd):
                    toks.append(a.lg(rd[k]))
                    k += 1
        while k < len(rd):
            toks.append(a.lg(rd[k]))
            k += 1
        for c in cur:
            c[0] = toks[c[3]]
        prev = cur
    for tok, wa, xa, _ in prev:
        a.wait(lg=tok)
        a(f"v_mfma_f32_32x32x16_bf16 {vr(acc, 16)}, {vr(wa, 4)}, {vr(xa, 4)}, {vr(acc, 16)}")
    stamp(a)
    a("s_nop 11")
    P = 32
    for i in range(8):
        a(f"v_cvt_pk_bf16_f32 v{P + i}, v{acc + 2 * i}, v{acc + 2 * i + 1}")
    if k3:
        stores(a, [f"buffer_store_dwordx4 {vr(P, 4)}, v{vL16}, {sr(sWS, 4)}, s36 offen",
                   f"buffer_store_dwordx4 {vr(P + 4, 4)}, v{vL16}, {sr(sWS, 4)}, s36 offen offset:1024"])
        a(f"v_dot2_f32_bf16 v{T}, v{P}, s41, 0")
        a(f"v_dot2_f32_bf16 v{T + 1}, v{P}, v{P}, 0")
        for i in range(1, 8):
            a(f"v_dot2_f32_bf16 v{T}, v{P + i}, s41, v{T}")
            a(f"v_dot2_f32_bf16 v{T + 1}, v{P + i}, v{P + i}, v{T + 1}")
        a("s_nop 2")
        a(f"v_mov_b32 v{T + 2}, v{T}")
        a(f"v_mov_b32 v{T + 3}, v{T + 1}")
        a("s_nop 0")
        a(f"v_permlane32_swap_b32 v{T}, v{T + 2}")
        a(f"v_permlane32_swap_b32 v{T + 1}, v{T + 3}")
        a("s_nop 0")
        a(f"v_add_f32 v{T}, v{T}, v{T + 2}")
        a(f"v_add_f32 v{T + 1}, v{T + 1}, v{T + 3}")
        a("s_mov_b32 exec_hi, 0")
        stores(a, [f"buffer_store_dwordx2 {vr(T, 2)}, v{vOut}, {sr(sWS, 4)}, s37 offen"])
        a("s_mov_b64 exec, -1")
        a("s_barrier")
        publish(a, 55, T + 4)
    else:
        for g in range(4):
            a.lg(f"ds_write_b64 v{vTw}, {vr(P + 2 * g, 2)} offset:{g * 16}")
        a.wait_all(vm=False)
        t0 = a.lg(f"ds_read_b128 {vr(P + 8, 4)}, v{vTr}")
        t1 = a.lg(f"ds_read_b128 {vr(P + 12, 4)}, v{vTr} offset:{16 * 80}")
        a.wait(lg=t0)
        a.vm(f"buffer_store_dwordx4 {vr(P + 8, 4)}, v{vOut}, {sr(sIO, 4)}, s36 offen")
        a.wait(lg=t1)
        a.vm(f"buffer_store_dwordx4 {vr(P + 12, 4)}, v{vOut}, {sr(sIO, 4)}, s37 offen")
    stamp(a)


def phase4(a, h):
    sG = 16
    sRb, sCg = 25, 26
    sWL, sAct = 32, 33
    NW, NX, NST = 9, 5, 16
    XO = 122880
    CSO = 24576
    XEO = CSO + 1536
    for b in (a, h):
        b(f"s_and_b32 s{sT0}, s2, 7")
        b(f"s_lshl_b32 s{sT0}, s{sT0}, 1")
        b(f"s_bfe_u32 s{sT1}, s2, 0x10003")
        b(f"s_add_u32 s{sRb}, s{sT0}, s{sT1}")
        b(f"s_lshr_b32 s{sCg}, s2, 4")
    a("s_cmp_ge_u32 s2, 240")
    a("s_cbranch_scc1 L_p4_skip_c")
    h("s_cmp_ge_u32 s2, 240")
    h("s_cbranch_scc1 L_p4_skip_l")
    vWoff = [3, 4, 5]
    vT = 16
    h(f"s_lshl_b32 s{sAct}, s{sRb}, 2")
    h(f"s_add_u32 s{sAct}, s{sAct}, s{sHw}")
    h(f"s_mul_i32 s{sAct}, s{sAct}, {RT}")
    h(f"s_add_u32 s38, s{sAct}, {SO}")
    h(f"s_lshr_b32 s34, s{sHw}, 1")
    h(f"s_and_b32 s35, s{sHw}, 1")
    h(f"s_mul_i32 s{sT0}, s34, {16 * 2752}")
    h(f"s_mul_i32 s{sT1}, s{sCg}, 192")
    h(f"s_add_u32 s{sT0}, s{sT0}, s{sT1}")
    h(f"v_and_b32 v{vT + 3}, 2, v{vLane}")
    h(f"v_lshlrev_b32 v{vT + 3}, 5, v{vT + 3}")
    h(f"v_sub_u32 v{vT + 3}, 32, v{vT + 3}")
    h(f"v_mul_lo_u32 v{vT + 3}, v{vT + 3}, s35")
    h(f"v_add_u32 v{vT + 3}, s{sT0}, v{vT + 3}")
    for i in range(3):
        h(f"v_add_u32 v{vT}, {64 * i}, v{vLane}")
        h(f"v_mul_u32_u24 v{vT + 1}, 171, v{vT}")
        h(f"v_lshrrev_b32 v{vT + 1}, 11, v{vT + 1}")
        h(f"v_mul_u32_u24 v{vT + 2}, {2752 - 192}, v{vT + 1}")
        h(f"v_add3_u32 v{vWoff[i]}, v{vL16}, v{vT + 2}, v{vT + 3}")
    h(f"s_mul_i32 s{sWL}, s{sHw}, 3072")
    h(f"s_lshl_b32 s36, s{sHw}, 11")
    h(f"s_add_u32 s36, s36, {XO}")
    h("s_cmp_eq_u32 s35, 0")
    h(f"s_cselect_b32 s{sG}, s{KG}, s{KU}")
    h(f"s_cselect_b32 s{sG + 1}, s{KG + 1}, s{KU + 1}")
    h(f"s_mov_b32 s{sG + 2}, {hx(512 * 2752)}")
    h(f"s_mov_b32 s{sG + 3}, 0x00020000")
    dr = Drip(h)

    def issue_w(key):
        st = key[1] if isinstance(key, tuple) else key
        for i in range(3):
            pre = [f"s_add_u32 m0, s{sWL}, {WS4[st % NW]}", f"s_mov_b32 s42, {st * 32 * 2752}"] if i == 0 else []
            dr.add(key, pre, f"buffer_load_dwordx4 v{vWoff[i]}, {sr(sG, 4)}, s42 offen offset:{i * 1024} lds")

    def issue_x(st):
        for i in range(2):
            pre = [f"s_add_u32 m0, s36, {(st % NX) * 8192}", f"s_add_u32 s43, s{sAct}, {st * 2048}"] if i == 0 else []
            dr.add(st, pre, f"buffer_load_dwordx4 v{vL16}, {sr(sWS, 4)}, s43 offen offset:{i * 1024} {LD()} lds")

    PRE = OPT["p4_pre"]
    for st in range(OPT["w4pre"], PRE):
        issue_w(st)
    dr.emit(100)
    nxt_wi = 3 * PRE
    vPf, vPd = 13, 100
    srd(h, 44, KD, 1376 * 1024)
    h(f"s_lshr_b32 s{sT0}, s2, 3")
    h(f"s_lshl_b32 s{sT0}, s{sT0}, 2")
    h(f"s_add_u32 s{sT0}, s{sT0}, s{sHw}")
    h(f"s_lshl_b32 s{sT0}, s{sT0}, 13")
    h(f"v_lshlrev_b32 v{vPf}, 7, v{vLane}")
    h(f"v_add_u32 v{vPf}, s{sT0}, v{vPf}")
    h(f"v_add_u32 v15, {120 * 8192}, v{vPf}")
    h(f"v_lshrrev_b32 v{vT + 3}, 5, v{vLane}")
    h(f"v_and_b32 v{vT + 4}, 31, v{vLane}")
    h(f"v_lshlrev_b32 v{vT + 4}, 3, v{vT + 4}")
    h(f"v_lshl_add_u32 v{vT + 4}, v{vT + 3}, 11, v{vT + 4}")
    h(f"s_mul_i32 s{sT0}, s{sHw}, 1536")
    h(f"s_add_u32 s{sT0}, s{sT0}, {XEO}")
    h(f"v_add_u32 v{vT + 5}, s{sT0}, v{vL16}")
    h(f"v_lshl_add_u32 v{vT + 6}, v{vLane}, 3, s{sT0}")
    stamp(h)
    if OPT["lpoll"]:
        h(f"s_lshl_b32 s40, s{sRb}, 8")
        h(f"s_add_u32 s40, s40, {F3}")
        poll(h, 40, vT + 8, "p4l", every=True, barrier=False)
    else:
        h("s_barrier")
    stamp(h)
    SP = 32
    vS, vQ, vM, vA = 60, 61, 62, 64
    AHEAD = OPT["p4_a"]
    assert AHEAD < NX
    nxt_x = 0
    for st in range(NST):
        while nxt_x <= min(st + (min(AHEAD, st + 1) if OPT["p4_ramp"] else AHEAD), NST - 1):
            if nxt_x >= NX and nxt_x - NX > st - 2:
                break
            issue_x(nxt_x)
            nxt_x += 1
        dr.emit(100)
        for _ in range(0 if OPT["p4_ramp"] and st == 0 else (OPT["p4_wi2"] + (st & 1)) // 2 + (st in (4, 6) and OPT["p4_ramp"])):
            ws, wi = divmod(nxt_wi, 3)
            if ws < NST and (ws < NW or ws - NW <= st - 2):
                h(f"s_add_u32 m0, s{sWL}, {WS4[ws % NW]}")
                h(f"s_mov_b32 s42, {ws * 32 * 2752}")
                dr.tok[("w", ws)] = h.vm(f"buffer_load_dwordx4 v{vWoff[wi]}, {sr(sG, 4)}, s42 offen offset:{wi * 1024} lds")
                nxt_wi += 1
        assert nxt_wi >= 3 * (st + 1)
        if 1 <= st <= 8:
            i = st - 1
            dr.tok["st"] = h.vm(f"buffer_load_dwordx2 {vr(SP + 2 * i, 2)}, v{vT + 4}, {sr(sWS, 4)}, s38 offen offset:{i * 256} {LD()}")
        h.wait(vm=max(dr.tok[st], dr.tok.get(("w", st), -1)))
        assert st < PRE or ("w", st) in dr.tok
        if st == 11:
            h.wait(vm=dr.tok["st"])
            h(f"v_add_f32 v{vS}, v{SP}, v{SP + 2}")
            h(f"v_add_f32 v{vQ}, v{SP + 1}, v{SP + 3}")
            for i in range(2, 8):
                h(f"v_add_f32 v{vS}, v{vS}, v{SP + 2 * i}")
                h(f"v_add_f32 v{vQ}, v{vQ}, v{SP + 2 * i + 1}")
        if st == 12:
            half_sum(h, vS, vT)
            half_sum(h, vQ, vT)
            h(f"v_mul_f32 v{vM}, {hx(f2u(-1.0 / 512))}, v{vS}")
            h(f"v_mul_f32 v{vQ}, {hx(f2u(1.0 / 512))}, v{vQ}")
            h(f"v_fma_f32 v{vQ}, -v{vM}, v{vM}, v{vQ}")
            h(f"v_max_f32 v{vQ}, 0, v{vQ}")
            h(f"v_add_f32 v{vQ}, {hx(f2u(1e-5))}, v{vQ}")
        if st == 13:
            h(f"v_rsq_f32 v{vA}, v{vQ}")
            split_hi_lo(h, vM, 68, vT, vT + 1)
            h(f"v_mul_f32 v{vA + 1}, v{vQ}, v{vA}")
            h(f"v_mul_f32 v{vA}, {hx(f2u(-LOG2E))}, v{vA}")
            h(f"v_cvt_pk_bf16_f32 v69, v{vT}, 0")
            h("v_mov_b32 v70, 0")
            h("v_mov_b32 v71, 0")
            h.lg(f"ds_write_b128 v{vT + 5}, v[68:71]")
            h.lg(f"ds_write_b64 v{vT + 6}, {vr(vA, 2)} offset:1024")
        if st == 14:
            h.wait_all(vm=False)
        if OPT.get("det") == 1 and st in (3, 7, 11):
            stamp(h)
        h("s_barrier")
        if OPT.get("det") == 1 and st in (3, 7, 11, 15):
            stamp(h)
        if st == OPT["p4_pf"]:
            h.vm(f"buffer_load_dword v{vPd}, v{vPf}, s[44:47], 0 offen")
        if st == OPT["p4_pf"] + 1:
            h.vm(f"buffer_load_dword v{vPd}, v15, s[44:47], 0 offen")
    h("s_barrier")
    h.label("L_p4_skip_l")

    sWr2, sWc = 36, 37
    vWrd, vWrdO, vXa, vCw, vCr, vEr = [3, 4], [5, 6], 7, 8, 9, 10
    ONES, vT, CS, ACC = 12, 16, 20, 32
    XF, WF = [128, 136], [144, 156]
    XE, AS = XF[0], ONES
    t = CS
    a(f"s_lshr_b32 s{sWr2}, s{sHw}, 1")
    a(f"s_and_b32 s{sWc}, s{sHw}, 1")
    a(f"s_lshl_b32 s34, s{sRb}, 1")
    a(f"s_add_u32 s34, s34, s{sWr2}")
    a(f"v_lshrrev_b32 v{t + 3}, 5, v{vLane}")
    a(f"v_bfe_u32 v{t}, v{vLane}, 2, 2")
    a(f"v_lshl_add_u32 v{t}, v{t + 3}, 2, v{t}")
    a(f"v_mul_u32_u24 v{t}, 192, v{t}")
    a(f"v_and_b32 v{t + 1}, 3, v{vLane}")
    a(f"v_lshl_add_u32 v{t}, v{t + 1}, 3, v{t}")
    a(f"s_mul_i32 s{sT0}, s{sWc}, 96")
    a(f"v_add_u32 v{t}, s{sT0}, v{t}")
    a(f"v_bfe_u32 v{t + 1}, v{vLane}, 4, 1")
    a(f"s_lshl_b32 s{sT0}, s{sWc}, 6")
    a(f"s_sub_u32 s{sT1}, {3072 + 32}, s{sT0}")
    a(f"s_add_u32 s{sT0}, {3072 - 32}, s{sT0}")
    a(f"v_mad_u32_u24 v{vWrd[0]}, v{t + 1}, s{sT1}, v{t}")
    a(f"v_mad_u32_u24 v{vWrdO[0]}, v{t + 1}, s{sT0}, v{t}")
    wl = [LdsAddr(a, vWrd), LdsAddr(a, vWrdO)]
    wl[0].setup(a)
    wl[1].setup(a)
    a(f"s_lshl_b32 s{sT0}, s{sWr2}, 12")
    a(f"s_add_u32 s{sT0}, s{sT0}, {XO}")
    a(f"v_add_u32 v{vXa}, s{sT0}, v{vL16}")
    a(f"v_xor_b32 v{t}, v{t + 1}, v{vLane}")
    a(f"v_and_b32 v{t}, 1, v{t}")
    a(f"v_cmp_eq_u32 vcc, 0, v{t}")
    a(f"v_mov_b32 v{t}, 0x3f803f80")
    a("s_nop 0")
    for r in range(4):
        a(f"v_cndmask_b32 v{ONES + r}, 0, v{t}, vcc")
    a(f"s_lshl_b32 s{sT0}, s{sWc}, 1")
    a(f"s_add_u32 s{sT1}, s{sT0}, s{sWr2}")
    a(f"s_mul_i32 s{sT1}, s{sT1}, 384")
    a(f"s_add_u32 s{sT1}, s{sT1}, {CSO}")
    a(f"v_and_b32 v{t}, 1, v{vLane}")
    a(f"v_lshlrev_b32 v{t}, 6, v{t}")
    a(f"v_and_b32 v{t + 1}, 48, v{vLane}")
    a(f"v_add3_u32 v{vCw}, v{t}, v{t + 1}, s{sT1}")
    a(f"s_mul_i32 s{sT0}, s{sT0}, 384")
    a(f"s_add_u32 s{sT0}, s{sT0}, {CSO}")
    a(f"v_mul_u32_u24 v{t}, 384, v{t + 3}")
    a(f"v_and_b32 v{t + 1}, 31, v{vLane}")
    a(f"v_lshl_add_u32 v{t}, v{t + 1}, 2, v{t}")
    a(f"v_add_u32 v{vCr}, s{sT0}, v{t}")
    a(f"s_lshl_b32 s55, s34, 9")
    a(f"s_lshl_b32 s35, s{sCg}, 1")
    a(f"s_add_u32 s35, s35, s{sWc}")
    a(f"s_lshl_b32 s{sT0}, s35, 2")
    a(f"s_add_u32 s55, s55, s{sT0}")
    a(f"s_add_u32 s55, s55, {F4}")
    a(f"s_mul_i32 s34, s34, {2 * RT}")
    a(f"s_mul_i32 s38, s35, 3")
    a(f"s_lshl_b32 s35, s35, 10")
    a("s_add_u32 s34, s34, s35")
    a(f"s_add_u32 s34, s34, {GO}")
    a(f"s_add_u32 s35, s34, {RT}")
    a(f"s_mul_i32 s{sT0}, s{sWr2}, 3072")
    a(f"s_add_u32 s{sT0}, s{sT0}, {XEO}")
    a(f"v_add_u32 v{vEr}, s{sT0}, v{vL16}")
    a(f"v_lshl_add_u32 v{vEr + 1}, v{vLane}, 3, s{sT0}")
    for r in range(12):
        a(f"v_mov_b32 v{CS + r}, 0")

    def reads(s):
        st, ss = divmod(s, 2)
        W = []
        for j in range(3):
            for half in range(2):
                reg, off = wl[j & 1].at(WS4[st % NW] + ss * 6144 + half * 8 * 192 + j * 32)
                W.append(f"ds_read_b64_tr_b16 {vr(WF[s & 1] + 4 * j + 2 * half, 2)}, {reg} offset:{off}")
        X = [f"ds_read_b128 {vr(XF[s & 1] + 4 * i, 4)}, v{vXa} offset:{(st % NX) * 8192 + i * 2048 + ss * 1024}"
             for i in range(2)]
        return [X[0], W[0], W[1], X[1], W[2], W[3], W[4], W[5]]

    rt = {}

    def emit_reads(b, s, lo, hi):
        ops = reads(s)
        for k in range(lo, min(hi, 8)):
            rt[(s, k)] = b.lg(ops[k])

    def main(b, s, m):
        j, i = divmod(m, 2)
        d = ACC + 16 * m
        c = "0" if s == 0 else vr(d, 16)
        b(f"v_mfma_f32_32x32x16_bf16 {vr(d, 16)}, {vr(WF[s & 1] + 4 * j, 4)}, {vr(XF[s & 1] + 4 * i, 4)}, {c}")

    def csum(b, s, j):
        b(f"v_mfma_f32_16x16x32_bf16 {vr(CS + 4 * j, 4)}, {vr(WF[s & 1] + 4 * j, 4)}, {vr(ONES, 4)}, {vr(CS + 4 * j, 4)}")

    a(f"s_lshl_b32 s40, s{sRb}, 8")
    a(f"s_add_u32 s40, s40, {F3}")
    if not OPT["lpoll"]:
        poll(a, 40, vT, "p4")
    a("s_barrier")
    stamp(a)
    emit_reads(a, 0, 0, 8)
    a(f"s_cmp_eq_u32 s{sWr2}, 1")
    a("s_cbranch_scc1 L_p4_odd")
    if OPT["al4"] >= 0:
        a.raw(".p2align 3")
        for _ in range(OPT["al4"]):
            a("s_nop 0")
    cuts = [0, 2, 4, 6, 8, 8, 8]
    need = [3, 3, 5, 5, 7, 7]
    rt0 = dict(rt)
    odd = fork(a)
    if OPT["al4"] >= 0:
        odd.raw(".p2align 3")
    odd.label("L_p4_odd")
    for _ in range(max(OPT["al4"], 0)):
        odd("s_nop 0")
    for par, b in ((0, a), (1, odd)):
        rt.clear()
        rt.update(rt0)
        for s in range(31):
            if s % 2 == 1:
                b.wait(lg=rt[(s, 7)])
                b("s_barrier")
            for m in range(6):
                b.wait(lg=rt[(s, need[m])])
                if m % 2 == 0 and s % 2 == par:
                    csum(b, s, m // 2)
                main(b, s, m)
                emit_reads(b, s + 1, cuts[m], cuts[m + 1])
        b.wait_all(vm=False)
        if par == 1:
            for j in range(3):
                csum(b, 31, j)
    odd("s_branch L_p4_join")
    a.label("L_p4_join")
    main(a, 31, 0)
    for j in range(3):
        a(f"v_mov_b32 v{WF[0] + 4 * j + 2}, 0")
        a(f"v_mov_b32 v{WF[0] + 4 * j + 3}, 0")
    main(a, 31, 1)
    a("s_mov_b32 exec_lo, 0x00030003")
    a("s_mov_b32 exec_hi, 0x00030003")
    for j in range(3):
        a.lg(f"ds_write_b128 v{vCw}, {vr(CS + 4 * j, 4)} offset:{j * 128}")
    a("s_mov_b64 exec, -1")
    for i in range(2):
        a.lg(f"ds_read_b128 {vr(XE + 4 * i, 4)}, v{vEr} offset:{i * 1536}")
        a.lg(f"ds_read_b64 {vr(AS + 2 * i, 2)}, v{vEr + 1} offset:{i * 1536 + 1024}")
    main(a, 31, 2)
    main(a, 31, 3)
    a.wait_all(vm=False)
    a("s_barrier")
    for j in range(3):
        rt[("c", j)] = a.lg(f"ds_read_b32 v{vT + 1 + j}, v{vCr} offset:{j * 128}")
    main(a, 31, 4)
    main(a, 31, 5)
    for j in range(3):
        w = WF[0] + 4 * j
        a.wait(lg=rt[("c", j)])
        a(f"v_cvt_pk_bf16_f32 v{w + 1}, v{vT + 1 + j}, 0")
        a(f"v_lshlrev_b32 v{vT}, 16, v{w + 1}")
        a(f"v_sub_f32 v{vT}, v{vT + 1 + j}, v{vT}")
        a(f"v_cvt_pk_bf16_f32 v{w}, v{vT + 1 + j}, v{vT}")
    for j in range(3):
        for i in range(2):
            d = ACC + 32 * j + 16 * i
            a(f"v_mfma_f32_32x32x16_bf16 {vr(d, 16)}, {vr(WF[0] + 4 * j, 4)}, {vr(XE + 4 * i, 4)}, {vr(d, 16)}")
    stamp(a)
    a(f"v_lshlrev_b32 v{vT}, 7, v{vLane}")
    a(f"v_mov_b32 v{vT + 1}, s{sTag}")
    a("s_nop 2")
    stok = {}
    if OPT["ep_prio"]:
        a(f"s_setprio {OPT['ep_prio']}")
    for j in range(3):
        a(f"s_cmp_ge_u32 s38, {86 - j}")
        a("s_cbranch_scc1 L_p4_pub")
        Gs = [(ACC + 32 * j + 16 * i + r, i) for i in range(2) for r in range(8)]
        for g, i in Gs[::2]:
            a(f"v_pk_mul_f32 {vr(g, 2)}, {vr(g, 2)}, {vr(AS + 2 * i, 2)} op_sel_hi:[1,0]")
        for g, i in Gs:
            a(f"v_exp_f32 v{g}, v{g}")
        for g, i in Gs[::2]:
            a(f"v_pk_fma_f32 {vr(g, 2)}, {vr(g, 2)}, {vr(AS + 2 * i, 2)}, {vr(AS + 2 * i, 2)} op_sel:[0,1,1] op_sel_hi:[1,1,1]")
        for g, i in Gs:
            a(f"v_rcp_f32 v{g}, v{g}")
        for g, i in Gs[::2]:
            a(f"v_pk_mul_f32 {vr(g, 2)}, {vr(g, 2)}, {vr(g + 8, 2)}")
        if j == 2 and OPT["ep_fl"]:
            a("s_mov_b64 exec, 1")
            a.wait(vm=stok[0])
            stores(a, [f"buffer_store_dword v{vT + 1}, v{vT}, {sr(sWS, 4)}, s55 offen"])
            a("s_mov_b64 exec, -1")
        o = ACC + 32 * j + 8
        for i in range(8):
            a(f"v_cvt_pk_bf16_f32 v{o + i}, v{Gs[2 * i][0]}, v{Gs[2 * i + 1][0]}")
        stores(a, [f"buffer_store_dwordx4 {vr(o, 4)}, v{vL16}, {sr(sWS, 4)}, s34 offen",
                   f"buffer_store_dwordx4 {vr(o + 4, 4)}, v{vL16}, {sr(sWS, 4)}, s35 offen"])
        stok[j] = a.vm_issued - 1
        a(f"s_add_u32 s34, s34, {29 * 1024}")
        a(f"s_add_u32 s35, s35, {29 * 1024}")
        if j >= 1 and not OPT["ep_fl"]:
            a("s_mov_b64 exec, 1")
            a.wait(vm=stok[j - 1])
            stores(a, [f"buffer_store_dword v{vT + 1}, v{vT}, {sr(sWS, 4)}, s55 offen offset:{(j - 1) * 128}"])
            a("s_mov_b64 exec, -1")
    a.label("L_p4_pub")
    a("s_nop 7")
    stamp(a)
    a("s_mov_b64 exec, 7")
    a.wait_all(lg=False)
    stores(a, [f"buffer_store_dword v{vT + 1}, v{vT}, {sr(sWS, 4)}, s55 offen"])
    a("s_mov_b64 exec, -1")
    if OPT["ep_prio"]:
        a("s_setprio 0")
    a.label("L_p4_skip_c")
    return odd


def gen_fused():
    name = KNAME
    a = Asm()
    a.raw(f".globl {name}")
    a.raw(".p2align 8")
    a.raw(f".type {name},@function")
    a.label(name)
    a("s_cmp_ge_u32 s2, 256")
    a(f"s_cbranch_scc1 L_done")
    stamp_real(a)
    stamp(a)
    if OPT.get("spin"):
        a("s_memrealtime s[98:99]")
    c1, odd1, l1, aux = phase1(a)
    fb = phase2(c1, l1, aux)
    c1(f"s_cmp_ge_u32 s{sWave}, 4")
    c1("s_cbranch_scc0 L_compute")
    h = fork(c1)
    c = fork(c1)
    if OPT.get("det") == 2:
        h.nstamp, h.nostamp = 18, True
    c.label("L_compute")
    phase_res(c, h, True, pre_publish=55)
    odd = phase4(c, h)
    phase_res(c, h, False)
    if OPT.get("det") != 3:
        stamp_flush(h)
    h("s_endpgm")
    c("s_cmp_lg_u32 s2, 0")
    c("s_cbranch_scc1 L_nogen")
    c(f"s_cmp_lg_u32 s{sWave}, 0")
    c("s_cbranch_scc1 L_nogen")
    c(f"v_mov_b32 v12, {GEN}")
    c(f"v_mov_b32 v13, s{sTag}")
    c("s_mov_b64 exec, 1")
    c(f"buffer_store_dword v13, v12, {sr(sWS, 4)}, 0 offen sc1")
    if OPT.get("spin"):
        c("s_load_dwordx2 s[92:93], s[0:1], 64")
        c("s_memrealtime s[96:97]")
        c("s_waitcnt lgkmcnt(0)")
        c("s_sub_u32 s96, s96, s98")
        c("s_mov_b32 s94, 256")
        c("s_mov_b32 s95, 0x00020000")
        c("v_mov_b32 v12, 0")
        c("v_mov_b32 v13, s96")
        c("buffer_store_dword v13, v12, s[92:95], 0 offen")
        c.label("L_dbg_spin")
        c("s_memrealtime s[96:97]")
        c("s_waitcnt lgkmcnt(0)")
        c("s_sub_u32 s96, s96, s98")
        c(f"s_cmp_lt_u32 s96, {OPT['spin']}")
        c("s_cbranch_scc1 L_dbg_spin")
    c.label("L_nogen")
    stamp_flush(c)
    c.label("L_done")
    c("s_endpgm")
    text = (a.text() + l1.text() + aux.text() + odd1.text() + c1.text() + h.text() + c.text() + odd.text() + fb.text())
    return name, text, descriptor(name, 168, 0, sgpr=102), (256, 576, 163840)


DOC = """; ---------------------------------------------------------------------------------------------------------
;  P1 LN1+QKV GEMM   P2 attention   P3 Wo GEMM + residual   P4 LN2 + gate/up GEMM + sigmoid(g)*u   P5 down GEMM + residual
; * Softmax: exp2 of pre-scaled scores with 0 as a stand-in for the row max; after the row sums are known a run-time
;   share rows compare their XCC ids at run time: one XCD -> plain stores through the shared L2, otherwise
;   write-through stores. Consumers always read handed-over data with sc1 loads. All spins are bounded.
; ---------------------------------------------------------------------------------------------------------
"""


def build():
    name, text, desc, (g, b, lds) = gen_fused()
    ref = open(f"cdna_kernels/{NAME}.s.ref").read().split("\n")
    head = [l for l in ref if l.startswith(";") and "@launch" not in l]
    out = "\n".join(head) + "\n"
    out += f"; @launch grid=({g},1,1) block=({b},1,1) lds={lds}\n"
    out += '.amdgcn_target "amdgcn-amd-amdhsa--gfx950"\n' + DOC + '.text\n'
    bad = check_hazards(text, name)
    out += text
    out += "L_code_end:\n"
    out += '.section .rodata,"a"\n.p2align 6\n' + desc
    if bad:
        print("hazards:", bad)
    return out


OPT["k1_touch"] = 0

if __name__ == "__main__":
    path = sys.argv[1] if len(sys.argv) > 1 else f"cdna_kernels/{NAME}.s"
    for arg in sys.argv[2:]:
        if arg == "stamps":
            G.STAMPS = True
        else:
            k_, v_ = arg.split("=")
            OPT[k_] = int(v_)
    open(path, "w").write(build())
    print("wrote", path)
```

```python
import sys

import gen as G
from gen import (Asm, Drip, LdsAddr, OPT, MB, QF, KVF, OF, HF, ST, GF, WS_SIZE, LOG2E, NAME, f2u, hx, vr, sr, srd,
                 fork, half_sum, split_hi_lo, code_prefetch, descriptor, check_hazards)

FLG = 11 * MB
F2, F3, F4, XT = FLG, FLG + 8192, FLG + 49152, FLG + 20480
FL1, GEN, FG1 = FLG + 24576, FLG + 28672, FLG + 32768
RT = 124 * 1024
QO, GO, SO = 65536, 32768, 118 * 1024
KVG = 12 * MB


def HS():
    return 131072 + OPT["kv_pad"]


KNAME = NAME + "_kernel"
WS3 = [0, 8192, 16384, 24576, 65536, 73728, 81920, 90112]
RES3 = 155648
WS4 = [32768, 45056, 98304, 110592, 0, 12288, 57344, 69632, 81920]
WS5 = [0, 8192, 16384] + [8192 * i for i in range(4, 14)]
sTag = 53
OPT.update(dict(p3_a=7, p4_a=3, p5_a=7, p5_na=6, down_l2=0, ws_off=0, kv_pad=4352, kv_gate=0, kv_fl=2, p1_bs=1, p5_c2=9, p5_nw=11, p4_pf=13, p4_pre=5, p2_map=1, force_slow=0, p1_cnt=1, kv_nt=0, kv_lag=1, early_t=0, gf_late=0, gu_from=512, gu_to=512, ep_prio=0, ep_fl=0, aux_sl=3, p2_pr=0, gm=0, p4_ramp=0, lpoll=0, retouch=1, p1_ls=1, p1_xl=8, t_wo=1, t_at=99, adapt=1, p2_ord=0, t_mall=1, fst=0, w4pre=4, kv_ld=0, gu2_n=0, idle_pf=0, gu2_from=128, al2=-1, al4=-1, p1_s3=2, tout_g=0, p1_er=3, p2_defer=0, p2_sched=0, ld=0, touch_out=1, touch2=1, k1_tout=11, p2_fine=0, p2_rot=1, p4_wi2=5, sc="sc1"))

sWS, sWave, sHw = 12, 24, 29
sT0, sT1 = 30, 31
KX, KWO, KG, KU, KD, KO = 64, 68, 72, 74, 76, 78
vLane, vL16 = 1, 2


def ws_srd(a):
    off = OPT["ws_off"] * MB
    a(f"s_add_u32 s{sWS}, s8, {hx(off)}")
    a(f"s_addc_u32 s{sWS + 1}, s9, 0")
    a(f"s_mov_b32 s{sWS + 2}, {hx(WS_SIZE)}")
    a(f"s_mov_b32 s{sWS + 3}, 0x00020000")


def GM():
    return ["sc1", "sc0 sc1"][OPT["gm"]]


def LD():
    return ["sc1", "nt", "", "sc0 sc1", "sc0"][OPT["ld"]]


def stamp(a, force=False):
    if not G.STAMPS or (getattr(a, "nostamp", False) and not force):
        return
    i = getattr(a, "nstamp", 0)
    a.nstamp = i + 1
    assert i < 20, i
    a("s_memtime s[100:101]")
    a.wait_all(vm=False)
    a(f"s_mov_b32 s{80 + i}, s100")


def stamp_real(a):
    if not G.STAMPS:
        return
    i = getattr(a, "nstamp", 0)
    a.nstamp = i + 1
    a("s_memrealtime s[100:101]")
    a.wait_all(vm=False)
    a(f"s_mov_b32 s{80 + i}, s100")


def stamp_flush(a):
    if not G.STAMPS:
        return
    a.wait_all()
    stamp(a, True)
    stamp_real(a)
    a("s_mov_b64 exec, -1")
    a("s_lshl_b32 s58, s2, 3")
    a(f"s_add_u32 s58, s58, s{sWave}")
    a("s_lshl_b32 s58, s58, 7")
    a(f"s_add_u32 s58, s58, {G.DBGO + MB}")
    a("v_mov_b32 v1, 0")
    for i in range(a.nstamp):
        a(f"v_mov_b32 v2, s{80 + i}")
        a(f"buffer_store_dword v2, v1, {sr(sWS, 4)}, s58 offen offset:{4 * i}")
    a.wait_all()


LMODE = 155392
sMode = 54
_uid = [0]


def stores(a, ins, always_slow=False):
    if always_slow:
        for x in ins:
            a.vm(x + " sc1")
        return
    _uid[0] += 1
    u = _uid[0]
    a(f"s_cmp_eq_u32 s{sMode}, 0")
    a(f"s_cbranch_scc1 L_st_{u}_s")
    for x in ins:
        a.vm(x + (["", " nt", " sc0"][OPT["fst"]] if "x4" in x else ""))
    a(f"s_branch L_st_{u}_j")
    a.label(f"L_st_{u}_s")
    for x in ins:
        a(x + " sc1")
    a.label(f"L_st_{u}_j")


def publish(a, sOff, vt, always_slow=False):
    a(f"v_mov_b32 v{vt}, 0")
    a(f"v_mov_b32 v{vt + 1}, s{sTag}")
    a("s_mov_b64 exec, 1")
    a.wait_all(lg=False)
    stores(a, [f"buffer_store_dword v{vt + 1}, v{vt}, {sr(sWS, 4)}, s{sOff} offen"], always_slow)
    a("s_mov_b64 exec, -1")


def poll_issue(a, sOff, vt, uid, off):
    a(f"s_cmp_lg_u32 s{sWave}, 0")
    a(f"s_cbranch_scc1 L_pi_{uid}")
    a(f"v_lshlrev_b32 v{vt}, 2, v{vLane}")
    a(f"buffer_load_dword v{vt + 1}, v{vt}, {sr(sWS, 4)}, s{sOff} offen offset:{off} sc1")
    a.label(f"L_pi_{uid}")


def poll(a, sOff, vt, uid, nflags=64, every=False, barrier=True, off=0, issued=False):
    if not every:
        a(f"s_cmp_lg_u32 s{sWave}, 0")
        a(f"s_cbranch_scc1 L_poll_{uid}_go")
    if not issued:
        a(f"v_lshlrev_b32 v{vt}, 2, v{vLane}")
    a("s_mov_b32 s59, 0x40000")
    if nflags < 64:
        a(f"s_mov_b64 exec, {hx((1 << nflags) - 1)}")
    if issued:
        a(f"s_branch L_poll_{uid}_c")
    a.label(f"L_poll_{uid}")
    a(f"buffer_load_dword v{vt + 1}, v{vt}, {sr(sWS, 4)}, s{sOff} offen offset:{off} sc1")
    a.label(f"L_poll_{uid}_c")
    a("s_sub_u32 s59, s59, 1")
    a("s_waitcnt vmcnt(0)")
    a(f"v_cmp_ne_u32 vcc, s{sTag}, v{vt + 1}")
    a("s_cmp_eq_u32 s59, 0")
    a(f"s_cbranch_scc1 L_poll_{uid}_x")
    a(f"s_cbranch_vccnz L_poll_{uid}")
    a.label(f"L_poll_{uid}_x")
    a("s_mov_b64 exec, -1")
    a.label(f"L_poll_{uid}_go")
    if barrier:
        a("s_barrier")


def touch_setup(h):
    srd(h, 16, KWO, 512 * 1024)
    srd(h, 20, KG, 512 * 2752)
    srd(h, 48, KU, 512 * 2752)
    h(f"s_and_b32 s{sT0}, s2, 7")
    h(f"s_lshl_b32 s{sT1}, s{sT0}, 18")
    h(f"s_add_u32 s4, s{KX}, s{sT1}")
    h(f"s_addc_u32 s5, s{KX + 1}, 0")
    srd(h, 44, 4, 256 * 1024)
    h(f"s_mul_i32 s{sT0}, s{sT0}, {172 * 1024}")
    h(f"s_add_u32 s10, s{KD}, s{sT0}")
    h(f"s_addc_u32 s11, s{KD + 1}, 0")
    if OPT["down_l2"]:
        srd(h, 40, KD, 1376 * 1024)
    else:
        srd(h, 40, 10, 172 * 1024)
    h(f"s_lshr_b32 s{sT0}, s2, 3")
    h("v_lshlrev_b32 v3, 7, v1")


def touch_weights(h, late=None):
    k0 = OPT["gu_from"]
    k1 = OPT["gu_to"]
    n = -(-(k1 - k0) * 2752 // (32 * 8192))
    if k0 and OPT["t_mall"]:
        per = -(-(k0 if k1 == 512 else 512) * 2752 // 256 // 128) * 128
        assert per <= 8192
        h(f"s_mul_i32 s{sT1}, s2, {per}")
        h(f"v_add_u32 v4, s{sT1}, v3")
        nl = per // 128
        h(f"s_mov_b32 exec_lo, {hx((1 << min(nl, 32)) - 1)}")
        h(f"s_mov_b32 exec_hi, {hx((1 << max(nl - 32, 0)) - 1)}")
        for sq in (20, 48):
            h.vm(f"buffer_load_dword v5, v4, {sr(sq, 4)}, 0 offen")
        h("s_mov_b64 exec, -1")
    for sq, per, n_, base in ((16, 16384, 2 * OPT["t_wo"], 0),  (40, 49152, 6, 0) if OPT["down_l2"] else (40, 8192, OPT["t_mall"], 0), (20, n * 8192, n, k0 * 2752 // 128 * 128),
                              (48, n * 8192, n, k0 * 2752 // 128 * 128)):
        if n_ == 0:
            continue
        if sq == 20 and late:
            late("L_skip_gu")
        h(f"s_mul_i32 s{sT1}, s{sT0}, {per}")
        if base:
            h(f"s_add_u32 s{sT1}, s{sT1}, {base}")
        h(f"v_add_u32 v4, s{sT1}, v3")
        for i in range(n_):
            h.vm(f"buffer_load_dword v5, v4, {sr(sq, 4)}, 0 offen")
            if i + 1 < n_:
                h("v_add_u32 v4, 0x2000, v4")
    if late:
        h.label("L_skip_gu")


def phase1(a):
    sX, sW = 20, 16
    sWr, sWc, sCg, sRb = 25, 26, 27, 28
    sWL = 32
    sOnes = 41
    vT = 8
    NSLOT, SLOT, WBASE, NST = 7, 12288, 65536, 16
    CSO = WBASE + NSLOT * SLOT
    assert OPT["p1_ls"]
    XEO = 153088
    RSO = 155136
    BS = [list(range(16)), [0, 1, 2, 4, 6, 8, 10, 12, 14], [0, 2, 4, 6, 8, 10, 12, 14], [0, 1, 2, 3, 4, 6, 8, 10, 12, 14, 15]][OPT["p1_bs"]]
    a("s_load_dwordx16 s[64:79], s[0:1], 0")
    a("s_load_dwordx2 s[8:9], s[0:1], 72")
    a(f"v_and_b32 v{vLane}, 63, v0")
    a(f"v_lshrrev_b32 v7, 6, v0")
    a(f"v_lshlrev_b32 v{vL16}, 4, v{vLane}")
    a(f"v_readfirstlane_b32 s{sWave}, v7")
    a(f"s_and_b32 s{sT0}, s2, 7")
    a(f"s_lshl_b32 s{sT0}, s{sT0}, 2")
    a(f"s_bfe_u32 s{sT1}, s2, 0x20003")
    a(f"s_add_u32 s{sRb}, s{sT0}, s{sT1}")
    a(f"s_lshr_b32 s{sCg}, s2, 5")
    a(f"s_and_b32 s{sHw}, s{sWave}, 3")
    a(f"s_cmp_eq_u32 s{sWave}, 8")
    a("s_cbranch_scc1 L_p1_aux")
    a(f"s_cmp_ge_u32 s{sWave}, 4")
    a(f"s_cbranch_scc0 L_p1_compute")

    x = fork(a)
    x.label("L_p1_aux")
    x("s_setprio 3")
    x(f"v_lshlrev_b32 v30, 7, v{vLane}")
    x(f"s_lshr_b32 s{sT0}, s2, 3")
    x(f"s_lshl_b32 s{sT0}, s{sT0}, 11")
    x(f"v_add_u32 v30, s{sT0}, v30")
    x("s_mov_b64 exec, 0xffff")
    code_prefetch(x, KNAME, 44, 30, 31, "p1")
    x("s_mov_b64 exec, -1")
    x("s_getreg_b32 s56, hwreg(HW_REG_XCC_ID, 0, 4)")
    x("s_and_b32 s57, s2, 7")
    x("s_lshl_b32 s57, s57, 8")
    x(f"s_add_u32 s57, s57, {XT}")
    x("s_lshr_b32 s58, s2, 3")
    x("s_lshl_b32 s58, s58, 2")
    x(f"v_mov_b32 v6, {GEN}")
    x("s_waitcnt lgkmcnt(0)")
    ws_srd(x)
    x.vm(f"buffer_load_dword v7, v6, {sr(sWS, 4)}, 0 offen")
    x("v_mov_b32 v6, s58")
    x("s_barrier")
    x("s_barrier")
    x.wait_all()
    x(f"v_readfirstlane_b32 s{sTag}, v7")
    x("s_nop 3")
    x(f"s_mul_i32 s{sTag}, s{sTag}, 1664525")
    x(f"s_add_u32 s{sTag}, s{sTag}, 1013904223")
    x(f"s_lshl_b32 s58, s{sTag}, 4")
    x("s_or_b32 s56, s56, s58")
    x("v_mov_b32 v7, s56")
    x("s_mov_b64 exec, 1")
    x.vm(f"buffer_store_dword v7, v6, {sr(sWS, 4)}, s57 offen sc1")
    x("s_mov_b32 exec_lo, -1")
    x("s_mov_b32 exec_hi, 0")
    x(f"v_lshlrev_b32 v6, 2, v{vLane}")
    for st in (BS + [NST])[2:]:
        if st == 12:
            x("s_mov_b32 s59, 0x40000")
            x("s_waitcnt vmcnt(0)")
            x("s_branch L_xt_chk")
            x.label("L_xt_poll")
            x(f"buffer_load_dword v7, v6, {sr(sWS, 4)}, s57 offen sc1")
            x("s_sub_u32 s59, s59, 1")
            x("s_waitcnt vmcnt(0)")
            x.label("L_xt_chk")
            x("v_xor_b32 v8, s56, v7")
            x("v_cmp_lt_u32 vcc, 15, v8")
            x("s_cmp_eq_u32 s59, 0")
            x("s_cbranch_scc1 L_xt_done")
            x("s_cbranch_vccnz L_xt_poll")
            x.label("L_xt_done")
            x("v_cmp_ne_u32 vcc, 0, v8")
            x("s_nop 1")
            x("s_cmp_eq_u64 vcc, 0")
            x(f"s_cselect_b32 s{sMode}, {0 if OPT['force_slow'] else 1}, 0")
            x(f"v_mov_b32 v6, {LMODE}")
            x(f"v_mov_b32 v8, s{sMode}")
            x(f"v_mov_b32 v9, s{sTag}")
            x("ds_write_b64 v6, v[8:9]")
            x("s_waitcnt lgkmcnt(0)")
            x("s_mov_b64 exec, -1")
        x("s_barrier")
        if OPT["early_t"] and st == OPT["early_t"]:
            touch_setup(x)
            touch_weights(x)
        if st == 8:
            x(f"buffer_load_dword v7, v6, {sr(sWS, 4)}, s57 offen sc1")

    h = fork(a)
    vWoff, vXg, vSr, vXe, vRs = 3, 4, 6, 20, 21
    vS, vQ, vM, vR = 22, 23, 24, 25
    XB = 32
    h(f"v_lshrrev_b32 v{vT}, 3, v{vLane}")
    h(f"v_and_b32 v{vT + 1}, 7, v{vLane}")
    h(f"v_lshrrev_b32 v{vT + 2}, 1, v{vT}")
    h(f"v_xor_b32 v{vT + 2}, v{vT + 2}, v{vT + 1}")
    h(f"v_lshlrev_b32 v{vT + 2}, 4, v{vT + 2}")
    h(f"v_lshl_add_u32 v{vXg}, v{vT}, 10, v{vT + 2}")
    h(f"v_xor_b32 v{vXg + 1}, 64, v{vXg}")
    h(f"v_add_u32 v{vXg + 1}, {8 * 1024 - 1024}, v{vXg + 1}")
    h(f"s_lshl_b32 s34, s{sRb}, 16")
    h(f"s_lshl_b32 s{sT0}, s{sHw}, 14")
    h(f"s_add_u32 s34, s34, s{sT0}")
    h(f"s_lshl_b32 s36, s{sHw}, 11")
    h("s_and_b32 s44, s2, 7")
    h("s_lshl_b32 s44, s44, 2")
    h("s_lshr_b32 s45, s2, 6")
    h("s_add_u32 s44, s44, s45")
    h("s_lshl_b32 s44, s44, 16")
    h(f"s_add_u32 s44, s44, s{sT0}")
    h("s_bfe_u32 s45, s2, 0x30003")
    h("s_lshl_b32 s45, s45, 7")
    h("s_add_u32 s44, s44, s45")
    h(f"v_lshrrev_b32 v{vT + 2}, 2, v{vLane}")
    h(f"v_and_b32 v{vT + 2}, 4, v{vT + 2}")
    h(f"v_xor_b32 v{vT + 2}, v{vT + 2}, v{vT + 1}")
    h(f"v_lshlrev_b32 v{vT + 2}, 4, v{vT + 2}")
    h(f"v_mul_u32_u24 v{vT + 3}, 3072, v{vT}")
    h(f"s_mul_i32 s{sT0}, s{sHw}, {8 * 3072}")
    h(f"s_lshl_b32 s{sT1}, s{sCg}, 7")
    h(f"s_add_u32 s{sT0}, s{sT0}, s{sT1}")
    h(f"v_add3_u32 v{vWoff}, v{vT + 3}, v{vT + 2}, s{sT0}")
    h(f"s_mul_i32 s{sWL}, s{sHw}, 3072")
    h("s_waitcnt lgkmcnt(0)")
    srd(h, sX, KX, 2048 * 1024)
    srd(h, sW, KX + 2, 512 * 3072)
    d2 = OPT.get("det") == 2
    if d2:
        h.nstamp = 7
        stamp(h)
    dr = Drip(h)

    XLEAD = OPT["p1_xl"] / 4

    def x_dma(c, key):
        dr.add(key, [f"s_add_u32 m0, s36, {c * 8192}", f"s_add_u32 s43, s34, {c * 128}"],
               f"buffer_load_dwordx4 v{vXg}, {sr(sX, 4)}, s43 offen lds")
        dr.add(key, [], f"buffer_load_dwordx4 v{vXg + 1}, {sr(sX, 4)}, s43 offen offset:1024 lds")

    def issue(st):
        for c in range(8):
            if int(c * XLEAD) == st:
                x_dma(c, st)
        for seg in range(3):
            pre = [f"s_add_u32 m0, s{sWL}, {WBASE + (st % NSLOT) * SLOT}", f"s_mov_b32 s42, {32 * st * 3072}"] if seg == 0 else []
            dr.add(st, pre, f"buffer_load_dwordx4 v{vWoff}, {sr(sW, 4)}, s42 offen offset:{seg * 1024} lds")
        if st == 15:
            dr.add("res", [f"s_add_u32 m0, s36, {RES3}", "s_nop 0"], f"buffer_load_dwordx4 v{vXg}, {sr(sX, 4)}, s44 offen lds")
            dr.add("res", [], f"buffer_load_dwordx4 v{vXg + 1}, {sr(sX, 4)}, s44 offen offset:1024 lds")

    for st in range(NSLOT):
        issue(st)
    AHEAD = OPT["k1_d"]
    dr.through(OPT["k1_t"] - 1)

    def s3(lo, hi):
        for i in range(lo, hi):
            h(f"s_load_dword s52, s[50:51], {(i % 8) * 131072 + 384}")
            h(f"s_load_dword s52, s[50:51], {(i % 8) * 131072 + 448}")

    if OPT["p1_s3"]:
        h(f"s_lshr_b32 s{sT0}, s2, 3")
        h(f"s_lshl_b32 s{sT0}, s{sT0}, 2")
        h(f"s_add_u32 s{sT0}, s{sT0}, s{sHw}")
        h(f"s_lshl_b32 s{sT0}, s{sT0}, 10")
        h(f"s_add_u32 s50, s{KX + 2}, s{sT0}")
        h(f"s_addc_u32 s51, s{KX + 3}, 0")
        s3(0, 7)
    if OPT["k1_touch"]:
        h(f"s_lshl_b32 s{sT0}, s2, 2")
        h(f"s_add_u32 s{sT0}, s{sT0}, s{sHw}")
        h(f"s_mul_i32 s{sT1}, s{sT0}, 1536")
        h(f"s_lshl_b32 s{sT0}, s{sT0}, 11")
        h(f"v_lshlrev_b32 v30, 7, v{vLane}")
        h("s_mov_b64 exec, 0xfff")
        h.vm(f"buffer_load_dword v31, v30, {sr(sW, 4)}, s{sT1} offen")
        h("s_mov_b64 exec, 0xffff")
        h.vm(f"buffer_load_dword v31, v30, {sr(sX, 4)}, s{sT0} offen")
        h("s_mov_b64 exec, -1")
    dr.through(AHEAD - 1)
    ws_srd(h)
    LS = OPT["p1_ls"]
    if LS:
        h(f"s_mov_b32 s{sOnes}, 0x3f803f80")
        h(f"v_lshrrev_b32 v{vT}, 2, v{vLane}")
        h(f"v_and_b32 v{vT + 1}, 3, v{vLane}")
        h(f"v_lshlrev_b32 v{vT + 2}, 7, v{vT}")
        h(f"v_lshl_add_u32 v{vT + 2}, v{vT + 1}, 4, v{vT + 2}")
        h(f"v_bfe_u32 v{vT + 3}, v{vLane}, 3, 1")
        h(f"v_lshl_add_u32 v{vT + 2}, v{vT + 3}, 6, v{vT + 2}")
        h(f"v_add_u32 v{vSr}, s36, v{vT + 2}")
        h(f"v_xor_b32 v{vSr + 1}, 64, v{vSr}")
        h(f"s_lshl_b32 s{sT0}, s{sHw}, 4")
        h(f"v_add_u32 v{vT}, s{sT0}, v{vT}")
        h(f"v_lshlrev_b32 v{vRs}, 2, v{vT}")
        h(f"v_add_u32 v{vRs}, {RSO}, v{vRs}")
        h(f"v_and_b32 v{vT + 2}, 31, v{vT}")
        h(f"v_lshl_add_u32 v{vT + 2}, v{vT + 1}, 5, v{vT + 2}")
        h(f"v_lshrrev_b32 v{vT + 3}, 5, v{vT}")
        h(f"v_lshl_add_u32 v{vT + 2}, v{vT + 3}, 6, v{vT + 2}")
        h(f"v_lshlrev_b32 v{vXe}, 4, v{vT + 2}")
        h(f"v_add_u32 v{vXe}, {XEO}, v{vXe}")
        h(f"v_mov_b32 v{vS}, 0")
        h(f"v_mov_b32 v{vQ}, 0")
    sdone = 0
    if d2:
        stamp(h)
    added = NSLOT
    for bi, st in enumerate(BS):
        last = (BS + [NST])[bi + 1] - 1
        dr.wait(last)
        if d2 and st in (4, 10):
            stamp(h)
        h("s_barrier")
        if d2 and st in (0, 2, 4, 8, 10, 12, 14):
            stamp(h)
        if st == 0 and OPT["p1_s3"]:
            s3(7, 8)
            h(f"s_add_u32 s50, s50, {8 * 131072}")
            h("s_addc_u32 s51, s51, 0")
            s3(8, 12)
        todo = []
        if LS and st >= 4:
            while int((sdone + len(todo)) * XLEAD) <= last and sdone + len(todo) < 8 and len(todo) < 2:
                todo.append(sdone + len(todo))
            for k, c in enumerate(todo):
                h(f"ds_read_b128 {vr(XB + 8 * k, 4)}, v{vSr} offset:{c * 8192}")
                h(f"ds_read_b128 {vr(XB + 8 * k + 4, 4)}, v{vSr + 1} offset:{c * 8192}")
        while added < NST and added - NSLOT < st:
            issue(added)
            added += 1
        tgt = min(NST - 1, last + AHEAD + min(st + 1, OPT["k1_g"]))
        while dr.q and (dr.q[0][0] == "res" or dr.q[0][0] <= tgt):
            dr.emit()
        if todo:
            h("s_waitcnt lgkmcnt(0)")
            for r in range(8 * len(todo)):
                h(f"v_dot2_f32_bf16 v{vS}, v{XB + r}, s{sOnes}, v{vS}")
                h(f"v_dot2_f32_bf16 v{vQ}, v{XB + r}, v{XB + r}, v{vQ}")
            sdone += len(todo)
            if sdone == 8:
                h("s_nop 2")
                for pat in ("quad_perm:[1,0,3,2]", "quad_perm:[2,3,0,1]"):
                    h(f"v_add_f32_dpp v{vS}, v{vS}, v{vS} {pat} row_mask:0xf bank_mask:0xf")
                    h(f"v_add_f32_dpp v{vQ}, v{vQ}, v{vQ} {pat} row_mask:0xf bank_mask:0xf")
                    h("s_nop 0")
                h(f"v_mul_f32 v{vM}, {hx(f2u(-1.0 / 512))}, v{vS}")
                h(f"v_mul_f32 v{vQ}, {hx(f2u(1.0 / 512))}, v{vQ}")
                h(f"v_fma_f32 v{vQ}, -v{vM}, v{vM}, v{vQ}")
                h(f"v_max_f32 v{vQ}, 0, v{vQ}")
                h(f"v_add_f32 v{vQ}, {hx(f2u(1e-5))}, v{vQ}")
                h(f"v_rsq_f32 v{vR}, v{vQ}")
                split_hi_lo(h, vM, XB, vT, vT + 1)
                h(f"v_cvt_pk_bf16_f32 v{XB + 1}, v{vT}, 0")
                h(f"v_mov_b32 v{XB + 2}, 0")
                h(f"v_mov_b32 v{XB + 3}, 0")
                h("s_mov_b32 exec_lo, 0x33333333")
                h("s_mov_b32 exec_hi, 0x33333333")
                h(f"ds_write_b128 v{vXe}, {vr(XB, 4)}")
                h(f"ds_write_b32 v{vRs}, v{vR}")
                h("s_mov_b64 exec, -1")
        if st <= OPT.get("k1_tout", -1) <= last:
            h(f"s_lshl_b32 s{sT0}, s{sRb}, 1")
            h(f"s_and_b32 s{sT1}, s{sHw}, 1")
            h(f"s_add_u32 s{sT0}, s{sT0}, s{sT1}")
            h(f"s_mul_i32 s{sT0}, s{sT0}, {RT}")
            h(f"s_lshl_b32 s{sT1}, s{sCg}, 13")
            h(f"s_lshl_b32 s43, s{sCg}, 12")
            h(f"s_add_u32 s43, s43, {QO}")
            h(f"s_cmp_ge_u32 s{sHw}, 2")
            h(f"s_cselect_b32 s{sT1}, s43, s{sT1}")
            h(f"s_mul_i32 s43, s{sCg}, {26 * 128 - 4096}")
            h(f"s_add_u32 s43, s43, {96 * 1024 - QO - 32 * 128}")
            h("s_cselect_b32 s43, s43, 0") if False else None
            h(f"v_lshlrev_b32 v30, 7, v{vLane}")
            h(f"s_cmp_ge_u32 s{sHw}, 2")
            h("s_cbranch_scc0 L_p1_tkv")
            h("s_mov_b32 exec_lo, 0")
            h("v_add_u32 v30, s43, v30")
            h("s_mov_b32 exec_lo, -1")
            h("s_mov_b32 exec_hi, 0x3ffffff")
            h.label("L_p1_tkv")
            h(f"s_add_u32 s{sT0}, s{sT0}, s{sT1}")
            h.vm(f"buffer_load_dword v31, v30, {sr(sWS, 4)}, s{sT0} offen")
            h("s_mov_b64 exec, -1")
    assert not LS or sdone == 8
    h(f"v_mov_b32 v{vT}, {LMODE}")
    h.lg(f"ds_read_b64 {vr(vT + 2, 2)}, v{vT}")
    h.wait_all(vm=False)
    h(f"v_readfirstlane_b32 s{sMode}, v{vT + 2}")
    h(f"v_readfirstlane_b32 s{sTag}, v{vT + 3}")
    h("s_barrier")
    h.wait_all()
    if OPT.get("det") != 2:
        stamp(h)
    a = fork(a)
    a.label("L_p1_compute")

    vXrd = [3, 4, 5, 6]
    vKoff, vVoff = 20, 21
    vWrd = [22, 23, 24]
    vCw, vCr, vEr, vRl, vRr = 25, 26, 27, 28, 29
    XF = [32, 36]
    WF = [40, 52]
    CS, ONES, XE = 64, 76, 80
    RV = 84
    accQ, accK, accV = 104, 120, 136
    SQ = 152
    a(f"s_lshr_b32 s{sWr}, s{sHw}, 1")
    a(f"s_and_b32 s{sWc}, s{sHw}, 1")
    a(f"v_and_b32 v{vT}, 31, v{vLane}")
    a(f"v_lshrrev_b32 v{vT + 1}, 5, v{vLane}")
    a(f"v_bfe_u32 v{vT + 2}, v{vLane}, 1, 3")
    a(f"v_xor_b32 v{vT + 2}, v{vT + 2}, v{vT + 1}")
    a(f"v_lshlrev_b32 v{vT + 2}, 4, v{vT + 2}")
    a(f"v_lshl_add_u32 v{vT + 2}, v{vT}, 7, v{vT + 2}")
    a(f"s_lshl_b32 s{sT0}, s{sWr}, 12")
    a(f"v_add_u32 v{vXrd[0]}, s{sT0}, v{vT + 2}")
    for ss in range(1, 4):
        a(f"v_xor_b32 v{vXrd[ss]}, {ss * 32}, v{vXrd[0]}")
    a(f"v_mul_u32_u24 v{vT + 2}, 3072, v{vT + 1}")
    a(f"v_bfe_u32 v{vT + 3}, v{vLane}, 2, 2")
    a(f"v_lshl_add_u32 v{vT + 2}, v{vT + 3}, 7, v{vT + 2}")
    a(f"v_lshrrev_b32 v{vT + 3}, 1, v{vT + 3}")
    a(f"v_xor_b32 v{vT + 3}, s{sWc}, v{vT + 3}")
    a(f"v_lshl_add_u32 v{vT + 2}, v{vT + 3}, 6, v{vT + 2}")
    a(f"v_bfe_u32 v{vT + 4}, v{vLane}, 4, 1")
    a(f"v_lshl_add_u32 v{vT + 2}, v{vT + 4}, 5, v{vT + 2}")
    a(f"v_and_b32 v{vT + 3}, 3, v{vLane}")
    a(f"v_lshl_add_u32 v{vWrd[0]}, v{vT + 3}, 3, v{vT + 2}")
    wl = LdsAddr(a, vWrd)
    wl.setup(a)
    a(f"v_xor_b32 v{vT + 2}, v{vT + 4}, v{vLane}")
    a(f"v_and_b32 v{vT + 2}, 1, v{vT + 2}")
    a(f"v_cmp_eq_u32 vcc, 0, v{vT + 2}")
    a(f"v_mov_b32 v{vT + 2}, 0x3f803f80")
    a("s_nop 0")
    for r in range(4):
        a(f"v_cndmask_b32 v{ONES + r}, 0, v{vT + 2}, vcc")
    a(f"s_lshl_b32 s{sT0}, s{sWc}, 1")
    a(f"s_add_u32 s{sT1}, s{sT0}, s{sWr}")
    a(f"s_mul_i32 s{sT1}, s{sT1}, 384")
    a(f"s_add_u32 s{sT1}, s{sT1}, {CSO}")
    a(f"v_and_b32 v{vT + 2}, 1, v{vLane}")
    a(f"v_lshlrev_b32 v{vT + 2}, 6, v{vT + 2}")
    a(f"v_and_b32 v{vT + 3}, 48, v{vLane}")
    a(f"v_add3_u32 v{vCw}, v{vT + 2}, v{vT + 3}, s{sT1}")
    a(f"s_mul_i32 s{sT0}, s{sT0}, 384")
    a(f"s_add_u32 s{sT0}, s{sT0}, {CSO}")
    a(f"v_mul_u32_u24 v{vT + 2}, 384, v{vT + 1}")
    a(f"v_lshl_add_u32 v{vT + 2}, v{vT}, 2, v{vT + 2}")
    a(f"v_add_u32 v{vCr}, s{sT0}, v{vT + 2}")
    a(f"s_lshl_b32 s{sT0}, s{sHw}, 9")
    a(f"s_add_u32 s{sT0}, s{sT0}, {XEO}")
    a(f"v_lshl_add_u32 v{vEr}, v{vLane}, 3, s{sT0}")
    a(f"v_xor_b32 v31, 512, v{vEr}")
    a(f"s_lshl_b32 s{sT0}, s{sHw}, 7")
    a(f"s_add_u32 s{sT0}, s{sT0}, {RSO}")
    a(f"v_lshl_add_u32 v{vRl}, v{vT}, 2, s{sT0}")
    a(f"v_lshl_add_u32 v{vRr}, v{vT + 1}, 4, s{sT0}")
    if LS:
        a(f"s_lshl_b32 s{sT0}, s{sWr}, 10")
        a(f"s_add_u32 s{sT0}, s{sT0}, {XEO}")
        a(f"v_add_u32 v{vEr}, s{sT0}, v{vL16}")
        a(f"s_lshl_b32 s{sT0}, s{sWr}, 7")
        a(f"s_add_u32 s{sT0}, s{sT0}, {RSO}")
        a(f"v_lshl_add_u32 v{vRl}, v{vT}, 2, s{sT0}")
        a(f"v_lshl_add_u32 v{vRr}, v{vT + 1}, 4, s{sT0}")
    a(f"s_mov_b32 s{sOnes}, 0x3f803f80")
    a(f"v_mov_b32 v{SQ}, 0")
    a(f"v_mov_b32 v{SQ + 1}, 0")
    a(f"v_and_b32 v{vT + 2}, 0x33, v{vLane}")
    a(f"v_bfe_u32 v{vT + 3}, v{vLane}, 2, 1")
    a(f"v_lshl_or_b32 v{vT + 2}, v{vT + 3}, 3, v{vT + 2}")
    a(f"v_bfe_u32 v{vT + 3}, v{vLane}, 3, 1")
    a(f"v_lshl_or_b32 v{vT + 2}, v{vT + 3}, 2, v{vT + 2}")
    a(f"v_lshlrev_b32 v{vKoff}, 4, v{vT + 2}")
    a(f"v_lshlrev_b32 v{vT + 2}, 11, v{vT + 4}")
    a(f"v_lshl_add_u32 v{vT + 2}, v{vT + 1}, 8, v{vT + 2}")
    a(f"v_and_b32 v{vT + 3}, 15, v{vLane}")
    a(f"v_lshl_add_u32 v{vVoff}, v{vT + 3}, 4, v{vT + 2}")
    a(f"s_lshl_b32 s{sT0}, s{sCg}, 2")
    a(f"s_lshl_b32 s{sT1}, s{sWc}, 1")
    a(f"s_add_u32 s{sT0}, s{sT0}, s{sT1}")
    a(f"s_lshl_b32 s{sT1}, s{sRb}, 1")
    a(f"s_add_u32 s{sT1}, s{sT1}, s{sWr}")
    a(f"s_mul_i32 s60, s{sT1}, {RT}")
    a(f"s_lshl_b32 s46, s{sT0}, 10")
    a("s_add_u32 s46, s46, s60")
    a(f"s_add_u32 s46, s46, {QO}")
    a("s_add_u32 s47, s46, 1024")
    a(f"s_lshl_b32 s37, s{sT0}, 11")
    a("s_add_u32 s60, s60, s37")
    a(f"s_lshl_b32 s37, s{sT1}, 11")
    a(f"s_mul_i32 s36, s{sT0}, {HS()}")
    a(f"s_add_u32 s36, s36, s37")
    a(f"s_add_u32 s36, s36, {KVG}")
    a(f"s_add_u32 s37, s36, {HS()}")
    a(f"v_mul_u32_u24 v156, {HS() - 2048}, v{vT + 4}")
    a(f"v_add_u32 v156, v156, v{vVoff}")
    for r in range(12):
        a(f"v_mov_b32 v{CS + r}, 0")
    a("s_waitcnt lgkmcnt(0)")
    ws_srd(a)
    a(f"s_lshl_b32 s{sT0}, s{sCg}, 1")
    a(f"s_add_u32 s{sT0}, s{sT0}, s{sWc}")
    a(f"s_and_b32 s{sT1}, s{sRb}, 3")
    a(f"s_lshl_b32 s{sT1}, s{sT1}, 1")
    a(f"s_add_u32 s{sT1}, s{sT1}, s{sWr}")
    a(f"s_lshl_b32 s{sT1}, s{sT1}, 2")
    a("s_and_b32 s38, s2, 7")
    a("s_lshl_b32 s48, s38, 9")
    a(f"s_lshl_b32 s39, s{sT0}, 5")
    a("s_add_u32 s48, s48, s39")
    a(f"s_add_u32 s48, s48, s{sT1}")
    a(f"s_add_u32 s48, s48, {FL1}")
    a(f"s_lshl_b32 s49, s{sT0}, 10")
    a("s_lshl_b32 s39, s38, 7")
    a("s_add_u32 s49, s49, s39")
    a(f"s_add_u32 s49, s49, s{sT1}")
    a(f"s_add_u32 s49, s49, {FG1}")
    a("s_mov_b32 s38, s60")
    a("s_add_u32 s39, s60, 2048")
    a(f"v_mov_b32 v30, {LMODE}")

    def reads(s):
        st, ss = divmod(s, 2)
        ops = [f"ds_read_b128 {vr(XF[s & 1], 4)}, v{vXrd[s & 3]} offset:{(s >> 2) * 8192}"]
        for seg in range(3):
            for half in range(2):
                reg, off = wl.at(WBASE + (st % NSLOT) * SLOT + ss * 6144 + seg * 1024 + half * 512)
                ops.append(f"ds_read_b64_tr_b16 {vr(WF[s & 1] + 4 * seg + 2 * half, 2)}, {reg} offset:{off}")
        return ops

    rt = {}

    def emit_reads(b, s, lo, hi):
        ops = reads(s)
        for k in range(lo, min(hi, 7)):
            rt[(s, k)] = b.lg(ops[k])

    a("s_barrier")
    if OPT.get("det") != 4:
        stamp(a)
    emit_reads(a, 0, 0, 7)
    a(f"s_cmp_lg_u32 s{sWr}, s{sWc}")
    a("s_cbranch_scc1 L_p1_odd")
    rt0 = dict(rt)
    odd = fork(a)
    odd.label("L_p1_odd")
    acc = [accQ, accK, accV]

    def mm(b, j, w, x, first=False):
        c = "0" if first else vr(acc[j], 16)
        ops = (vr(w, 4), vr(x, 4)) if j < 2 else (vr(x, 4), vr(w, 4))
        b(f"v_mfma_f32_32x32x16_bf16 {vr(acc[j], 16)}, {ops[0]}, {ops[1]}, {c}")

    def csum(b, s, j):
        b(f"v_mfma_f32_16x16x32_bf16 {vr(CS + 4 * j, 4)}, {vr(WF[s & 1] + 4 * j, 4)}, {vr(ONES, 4)}, {vr(CS + 4 * j, 4)}")

    def stats(b, s):
        for r in range(0 if LS else 4):
            b(f"v_dot2_f32_bf16 v{SQ}, v{XF[s & 1] + r}, s{sOnes}, v{SQ}")
            b(f"v_dot2_f32_bf16 v{SQ + 1}, v{XF[s & 1] + r}, v{XF[s & 1] + r}, v{SQ + 1}")

    for par, b in ((0, a), (1, odd)):
        rt.clear()
        rt.update(rt0)
        for s in range(31):
            if s % 2 == 1 and (s + 1) // 2 in BS:
                b.wait(lg=rt[(s, 6)])
                b("s_barrier")
            cutp = [0, 3, 5, 7]
            for j in range(3):
                b.wait(lg=rt[(s, 2 + 2 * j)])
                if s % 2 == par:
                    csum(b, s, j)
                mm(b, j, WF[s & 1] + 4 * j, XF[s & 1], s == 0)
                emit_reads(b, s + 1, cutp[j], cutp[j + 1])
            if s % 2 != par:
                stats(b, s)
            if s == 27:
                b.lg("ds_read_b64 v[102:103], v30")
        b.wait_all(vm=False)
        if par == 1:
            for j in range(3):
                csum(b, 31, j)
        else:
            stats(b, 31)
    odd("s_branch L_p1_join")
    a.label("L_p1_join")
    mm(a, 0, WF[1], XF[1])
    a(f"v_readfirstlane_b32 s{sMode}, v102")
    a(f"v_readfirstlane_b32 s{sTag}, v103")
    if LS:
        a("s_nop 3")
    else:
        a(f"v_mov_b32 v{SQ + 2}, v{SQ}")
        a(f"v_mov_b32 v{SQ + 3}, v{SQ + 1}")
        a(f"v_mov_b32 v{XE + 2}, 0")
        a(f"v_permlane32_swap_b32 v{SQ}, v{SQ + 2}")
        a(f"v_permlane32_swap_b32 v{SQ + 1}, v{SQ + 3}")
        a(f"v_mov_b32 v{XE + 3}, 0")
        a(f"v_add_f32 v{SQ}, v{SQ}, v{SQ + 2}")
        a(f"v_add_f32 v{SQ + 1}, v{SQ + 1}, v{SQ + 3}")
        a.lg(f"ds_write_b64 v{vEr}, {vr(SQ, 2)}")
    a("s_mov_b32 exec_lo, 0x00030003")
    a("s_mov_b32 exec_hi, 0x00030003")
    for j in range(3):
        a.lg(f"ds_write_b128 v{vCw}, {vr(CS + 4 * j, 4)} offset:{j * 128}")
    a("s_mov_b64 exec, -1")
    mm(a, 1, WF[1] + 4, XF[1])
    for j in range(3):
        a(f"v_mov_b32 v{WF[0] + 4 * j + 2}, 0")
        a(f"v_mov_b32 v{WF[0] + 4 * j + 3}, 0")
    a.wait_all(vm=False)
    a("s_barrier")
    if LS:
        a.lg(f"ds_read_b128 {vr(XE, 4)}, v{vEr}")
        a.lg(f"ds_read_b32 v100, v{vRl}")
    else:
        ts = a.lg(f"ds_read_b64 {vr(SQ + 2, 2)}, v31")
    for j in range(3):
        rt[("c", j)] = a.lg(f"ds_read_b32 v{vT + 4 + j}, v{vCr} offset:{j * 128}")
    mm(a, 2, WF[1] + 8, XF[1])
    if OPT.get("det") != 4:
        stamp(a)
    if not LS:
        a.wait(lg=ts)
        a(f"v_add_f32 v{SQ}, v{SQ}, v{SQ + 2}")
        a(f"v_add_f32 v{SQ + 1}, v{SQ + 1}, v{SQ + 3}")
        a(f"v_mul_f32 v{SQ}, {hx(f2u(-1.0 / 512))}, v{SQ}")
        a(f"v_mul_f32 v{SQ + 1}, {hx(f2u(1.0 / 512))}, v{SQ + 1}")
        split_hi_lo(a, SQ, XE, vT, vT + 1)
        a(f"v_fma_f32 v{SQ + 1}, -v{SQ}, v{SQ}, v{SQ + 1}")
        a(f"v_cvt_pk_bf16_f32 v{XE + 1}, v{vT}, 0")
        a(f"v_max_f32 v{SQ + 1}, 0, v{SQ + 1}")
        a(f"v_add_f32 v{SQ + 1}, {hx(f2u(1e-5))}, v{SQ + 1}")
        a(f"v_rsq_f32 v100, v{SQ + 1}")
    for j in range(3):
        w = WF[0] + 4 * j
        a.wait(lg=rt[("c", j)])
        a(f"v_cvt_pk_bf16_f32 v{w + 1}, v{vT + 4 + j}, 0")
        a(f"v_lshlrev_b32 v{vT}, 16, v{w + 1}")
        a(f"v_sub_f32 v{vT}, v{vT + 4 + j}, v{vT}")
        a(f"v_cvt_pk_bf16_f32 v{w}, v{vT + 4 + j}, v{vT}")
        if j == 0 and not LS:
            a.lg(f"ds_write_b32 v{vRl}, v100")
    for j in range(3):
        mm(a, j, WF[0] + 4 * j, XE)
    a(f"v_mul_f32 v101, {hx(f2u(0.25 * LOG2E))}, v100")
    for g in range(4):
        trv = a.lg(f"ds_read_b128 {vr(RV + 4 * g, 4)}, v{vRr} offset:{g * 32}")
    a("s_nop 4")
    P = 32
    for r in range(0, 16, 2):
        a(f"v_pk_mul_f32 {vr(accQ + r, 2)}, {vr(accQ + r, 2)}, v[100:101] op_sel:[0,1] op_sel_hi:[1,1]")
    for i in range(8):
        a(f"v_cvt_pk_bf16_f32 v{P + i}, v{accQ + 2 * i}, v{accQ + 2 * i + 1}")
    stores(a, [f"buffer_store_dwordx4 {vr(P, 4)}, v{vL16}, {sr(sWS, 4)}, s46 offen",
               f"buffer_store_dwordx4 {vr(P + 4, 4)}, v{vL16}, {sr(sWS, 4)}, s47 offen"])
    for r in range(0, 16, 2):
        a(f"v_pk_mul_f32 {vr(accK + r, 2)}, {vr(accK + r, 2)}, v[100:101] op_sel_hi:[1,0]")
    for i in range(8):
        a(f"v_cvt_pk_bf16_f32 v{P + 8 + i}, v{accK + 2 * i}, v{accK + 2 * i + 1}")
    stores(a, [f"buffer_store_dwordx4 {vr(P + 8, 4)}, v{vKoff}, {sr(sWS, 4)}, s38 offen",
               f"buffer_store_dwordx4 {vr(P + 12, 4)}, v{vKoff}, {sr(sWS, 4)}, s39 offen"])
    a.wait(lg=trv)
    for r in range(0, 16, 2):
        a(f"v_pk_mul_f32 {vr(accV + r, 2)}, {vr(accV + r, 2)}, {vr(RV + r, 2)}")
    for i in range(8):
        a(f"v_cvt_pk_bf16_f32 v{P + 16 + i}, v{accV + 2 * i}, v{accV + 2 * i + 1}")
    stores(a, [f"buffer_store_dwordx4 {vr(P + 16, 4)}, v{vVoff}, {sr(sWS, 4)}, s38 offen offset:1024",
               f"buffer_store_dwordx4 {vr(P + 20, 4)}, v{vVoff}, {sr(sWS, 4)}, s38 offen offset:1536"])
    loc = a.vm_issued - 1
    a.vm(f"buffer_store_dwordx4 {vr(P + 8, 4)}, v{vKoff}, {sr(sWS, 4)}, s36 offen {GM()}")
    a.vm(f"buffer_store_dwordx4 {vr(P + 12, 4)}, v{vKoff}, {sr(sWS, 4)}, s37 offen {GM()}")
    a.vm(f"buffer_store_dwordx4 {vr(P + 16, 4)}, v156, {sr(sWS, 4)}, s36 offen offset:1024 {GM()}")
    a.vm(f"buffer_store_dwordx4 {vr(P + 20, 4)}, v156, {sr(sWS, 4)}, s36 offen offset:1536 {GM()}")
    stamp(a)
    a(f"v_mov_b32 v{vT}, 0")
    a(f"v_mov_b32 v{vT + 1}, s{sTag}")
    a("s_mov_b64 exec, 1")
    if OPT["p1_cnt"]:
        a.wait(vm=loc)
    else:
        a.wait_all(lg=False)
    stores(a, [f"buffer_store_dword v{vT + 1}, v{vT}, {sr(sWS, 4)}, s48 offen"])
    if OPT.get("det") == 4:
        stamp(a)
    a("s_mov_b64 exec, -1")
    return a, odd, h, x


def phase2(a, l, h):
    sHead, sQb, sKh, sQs = 25, 26, 27, 28
    sVm = 34
    vKrd, vVrd, vIdx, vXw, vXr = 3, 4, 5, 6, 7
    Qf = [8, 12]
    Kf, Vf = 16, 32
    S = [64, 80]
    O = [96, 112]
    NEG = 128
    T = 144
    XCH = 131072
    BARS, CB = [[6, 12, 28], {2: 1, 4: 3}] if OPT["p2_sched"] == 0 else [[6, 14, 22, 36], {2: 1, 3: 2, 5: 4}]
    SYN = XCH + 3 * 3072 + 2048 + 4
    h(f"v_mov_b32 v22, {SYN}")
    h("v_mov_b32 v23, 0")
    for off in (0, 4, 8, 32, 16, 20, 24, 48):
        h(f"ds_write_b32 v22, v23 offset:{off}")

    def ready(half, n):
        h(f"v_mov_b32 v23, {n}")
        h(f"ds_write_b32 v22, v23 offset:{16 * half}")

    wl_n = [0]

    def wait_lds(off, n):
        wl_n[0] += 1
        k = wl_n[0]
        h("s_mov_b32 s58, 0x100000")
        h.label(f"L_prog{k}")
        h(f"ds_read_b32 v24, v22 offset:{off}")
        h("s_sub_u32 s58, s58, 1")
        h("s_waitcnt lgkmcnt(0)")
        h("v_readfirstlane_b32 s37, v24")
        h("s_cmp_eq_u32 s58, 0")
        h(f"s_cbranch_scc1 L_prog{k}_x")
        h(f"s_cmp_ge_u32 s37, {n}")
        h(f"s_cbranch_scc1 L_prog{k}_x")
        h(f"s_sleep {OPT['aux_sl']}")
        h(f"s_branch L_prog{k}")
        h.label(f"L_prog{k}_x")

    def late(k):
        def f(label):
            h(f"ds_read_b32 v24, v22 offset:{(8 if k == 0 else 32) + 16}")
            h("s_waitcnt lgkmcnt(0)")
            h("v_readfirstlane_b32 s37, v24")
            h("s_nop 0")
            h("s_cmp_ge_u32 s37, 4")
            h(f"s_cbranch_scc1 {label}")
        return f if OPT["adapt"] else None

    def wait_prog(k):
        for half in range(2):
            wait_lds((8 if k == 0 else 32) + 16 * half, 4)

    h(f"s_lshr_b32 s{sHead}, s2, 3")
    h(f"s_mul_i32 s33, s{sHead}, {HS()}")
    h(f"s_add_u32 s33, s33, {KVG}")
    h(f"s_lshr_b32 s61, s{sHead}, 1")
    h("s_lshl_b32 s61, s61, 10")
    h(f"s_add_u32 s61, s61, {FG1}")
    h(f"v_lshrrev_b32 v6, 3, v{vLane}")
    h("v_lshlrev_b32 v6, 7, v6")
    h(f"v_and_b32 v7, 7, v{vLane}")
    h("v_lshl_add_u32 v6, v7, 2, v6")
    h("s_mov_b64 s[62:63], 0")
    h("s_mov_b32 s59, 0x40000")
    h("s_waitcnt lgkmcnt(0)")
    h("s_barrier")
    h.nostamp = OPT.get("det") != 3
    stamp(h)
    items = [(0, 1, None), (1, 1, None), (0, 2, None), (0, 3, (0, 1)), (0, 4, (0, 2)), (1, 2, (0, 3)), (1, 3, (1, 1)),
             (1, 4, (1, 2)), (0, 5, None), (0, 6, None), (1, 5, None), (0, 7, None), (1, 6, None), (1, 7, None), (0, 8, None)]
    if OPT["kv_gate"] == 0:
        items = [(hf, c, None) for c in range(1, 8) for hf in range(2)] + [(0, 8, None)]
    if OPT["kv_gate"] == 3:
        items = [(0, 1, None), (1, 1, None), (0, 2, None), (1, 2, None), (0, 3, (0, 2)), (0, 4, None), (1, 3, (0, 3)), (1, 4, None),
                 (0, 5, (1, 2)), (0, 6, None), (1, 5, None), (0, 7, None), (1, 6, None), (1, 7, None), (0, 8, None)]
    if OPT["kv_gate"] == 4:
        items = [(0, 1, None), (1, 1, None), (0, 2, None), (0, 3, (0, 1)), (1, 2, None), (0, 4, (0, 2)), (1, 3, None), (1, 4, None),
                 (0, 5, None), (0, 6, None), (1, 5, None), (0, 7, None), (1, 6, None), (1, 7, None), (0, 8, None)]
    if OPT["kv_gate"] == 2:
        items = [(hf, c, None) for hf, c, _ in items]
    pend = []

    def flush(keep):
        while len(pend) > keep:
            hf, c, tok = pend.pop(0)
            h.wait(vm=tok)
            ready(hf, c)

    for n, (half, c, gate) in enumerate(items):
        if gate:
            flush(0)
            wait_lds(4 + 16 * gate[0], gate[1])
        if OPT["p2_ord"] and c < 8:
            h("s_and_b32 s36, s2, 7")
            h(f"s_cmp_le_u32 s36, {c - 1}")
            h(f"s_cselect_b32 s36, {8 * c}, {8 * (c - 1)}")
        else:
            h(f"s_add_u32 s36, s2, {c}")
            h("s_and_b32 s36, s36, 7")
            h("s_lshl_b32 s36, s36, 3")
        if half == 0:
            h("s_bitcmp1_b64 s[62:63], s36")
            h(f"s_cbranch_scc1 L_g1_have{c}")
            h.label(f"L_g1_poll{c}")
            h(f"buffer_load_dword v7, v6, {sr(sWS, 4)}, s61 offen sc1")
            h("s_sub_u32 s59, s59, 1")
            h("s_waitcnt vmcnt(0)")
            for hf, cc, _ in pend:
                ready(hf, cc)
            h(f"v_cmp_eq_u32 vcc, s{sTag}, v7")
            h("s_cmp_eq_u32 s59, 0")
            h("s_cselect_b64 s[62:63], -1, vcc")
            h("s_cselect_b32 s59, 1, s59")
            for sh in (1, 2, 4):
                h(f"s_lshr_b64 s[34:35], s[62:63], {sh}")
                h("s_and_b64 s[62:63], s[62:63], s[34:35]")
            h("s_bitcmp1_b64 s[62:63], s36")
            h(f"s_cbranch_scc0 L_g1_poll{c}")
            h.label(f"L_g1_have{c}")
        if n in (0, 3, 8, 14):
            stamp(h)
        if c == 8:
            break
        h("s_lshl_b32 s36, s36, 11")
        h("s_add_u32 s36, s36, s33")
        for q in range(2):
            h(f"s_mov_b32 m0, {half * 65536 + c * 8192 + q * 4096}")
            h(f"s_add_u32 s37, s36, {half * 8192 + q * 4096}")
            for i in range(4):
                tok = h.vm(f"buffer_load_dwordx4 v{vL16}, {sr(sWS, 4)}, s37 offen offset:{i * 1024} {['sc1', '', 'sc0 sc1', 'nt'][OPT['kv_ld']]} lds")
        pend.append((half, c, tok))
        if n == OPT["t_at"]:
            touch_setup(h)
            touch_weights(h)
        flush(OPT['kv_fl'])
    if OPT["t_at"] > 20:
        touch_setup(h)
    h(f"v_lshrrev_b32 v8, 3, v{vLane}")
    h(f"v_and_b32 v9, 7, v{vLane}")
    h(f"v_lshrrev_b32 v10, 2, v{vLane}")
    h("v_and_b32 v10, 4, v10")
    h("v_xor_b32 v10, v10, v9")
    h("v_lshlrev_b32 v10, 4, v10")
    h("v_lshl_add_u32 v10, v8, 10, v10")
    for i in range(1, 4):
        h(f"v_add_u32 v{24 + i}, {i * (8192 - 1024)}, v10")
    h("v_lshrrev_b32 v11, 1, v8")
    h("v_xor_b32 v11, v11, v9")
    h("v_lshlrev_b32 v11, 4, v11")
    h("v_lshl_add_u32 v11, v8, 10, v11")
    h("v_xor_b32 v12, 64, v11")
    h(f"v_and_b32 v13, 2, v{vLane}")
    h("v_lshlrev_b32 v13, 5, v13")
    h("v_sub_u32 v13, 32, v13")
    h("s_lshr_b32 s61, s2, 4")
    h("s_mul_i32 s61, s61, 192")
    for i in range(3):
        h(f"v_add_u32 v14, {64 * i}, v{vLane}")
        h("v_mul_u32_u24 v14, 171, v14")
        h("v_lshrrev_b32 v14, 11, v14")
        h(f"v_mul_u32_u24 v14, {2752 - 192}, v14")
        h(f"v_add3_u32 v{16 + i}, v{vL16}, v14, s61")
        h(f"v_add_u32 v{19 + i}, v{16 + i}, v13")
    h("s_bfe_u32 s60, s2, 0x30003")
    h("s_lshl_b32 s60, s60, 7")
    flush(0)
    stamp(h)
    if OPT["t_at"] > 20:
        touch_weights(h, late(0))
    h(f"s_lshl_b32 s{sT1}, s{sT0}, 11")
    h(f"v_add_u32 v4, s{sT1}, v3")
    h("s_mov_b64 exec, 0xffff")
    code_prefetch(h, "L_p2_tail", 38, 4, 5, "p2")
    h("s_mov_b64 exec, -1")
    stamp(h)
    wait_prog(0)
    stamp(h)
    for q in range(16):
        h(f"s_mov_b32 m0, {(q >> 3) * 65536 + (q & 7) * 4096}")
        h(f"s_add_u32 s36, s60, {q * 32768}")
        for i in range(4):
            h(f"buffer_load_dwordx4 v{(10, 25, 26, 27)[i]}, {sr(16, 4)}, s36 offen offset:{i * 1024} lds")
        if q % 4 == 3:
            h("s_waitcnt vmcnt(40)")
    if OPT["retouch"]:
        if OPT["adapt"]:
            late(1)("L_skip_rt")
        h("s_and_b32 s36, s2, 7")
        h("s_lshl_b32 s36, s36, 3")
        h(f"s_lshr_b32 s{sT1}, s{sT0}, 2")
        h(f"s_add_u32 s36, s36, s{sT1}")
        h(f"s_mul_i32 s36, s36, {RT}")
        h(f"s_and_b32 s{sT1}, s{sT0}, 3")
        h(f"s_lshl_b32 s{sT1}, s{sT1}, 13")
        h(f"s_add_u32 s36, s36, s{sT1}")
        h(f"s_add_u32 s37, s36, {QO}")
        h(f"buffer_load_dword v5, v3, {sr(sWS, 4)}, s37 offen")
        h(f"buffer_load_dword v5, v3, {sr(sWS, 4)}, s36 offen")
        if OPT["retouch"] > 1:
            h(f"s_add_u32 s37, s36, {GO}")
            h(f"buffer_load_dword v5, v3, {sr(sWS, 4)}, s37 offen")
        n2 = OPT["gu2_n"]
        for sq in (20, 48):
            if n2:
                h(f"s_mul_i32 s{sT1}, s{sT0}, {n2 * 8192}")
                h(f"s_add_u32 s{sT1}, s{sT1}, {OPT['gu2_from'] * 2752 // 128 * 128}")
                h(f"v_add_u32 v4, s{sT1}, v3")
            for i in range(n2):
                h(f"buffer_load_dword v5, v4, {sr(sq, 4)}, 0 offen")
                if i + 1 < n2:
                    h("v_add_u32 v4, 0x2000, v4")
        h("s_waitcnt vmcnt(40)")
        h.label("L_skip_rt")
    h("s_cmp_ge_u32 s2, 240")
    h("s_cbranch_scc1 L_pre_end")
    stamp(h)
    wait_prog(1)
    stamp(h)
    for st in range(OPT["w4pre"]):
        for g2 in range(2):
            for mat in range(2):
                h(f"s_mov_b32 m0, {WS4[st] + (g2 * 2 + mat) * 3072}")
                h(f"s_mov_b32 s36, {(st * 32 + g2 * 16) * 2752}")
                for i in range(3):
                    h(f"buffer_load_dwordx4 v{16 + 3 * mat + i}, {sr(20 if mat == 0 else 48, 4)}, s36 offen offset:{i * 1024} lds")
        h("s_waitcnt vmcnt(40)")
    stamp(h)
    h.label("L_pre_end")
    h("s_waitcnt vmcnt(0)")
    if OPT.get("det") == 3:
        h(f"s_mov_b32 s{sWave}, 4")
        stamp_flush(h)
    h("s_endpgm")

    def init(b):
        b(f"s_lshr_b32 s{sHead}, s2, 3")
        b(f"s_and_b32 s{sQb}, s2, 7")
        b(f"s_lshr_b32 s{sKh}, s{sWave}, 2")
        b(f"s_and_b32 s{sQs}, s{sWave}, 3")
        b(f"v_and_b32 v{T}, 27, v{vLane}")
        b(f"v_cmp_eq_u32 vcc, 16, v{T}")
        b(f"v_mov_b32 v{T}, 0x3f803f80")
        b(f"v_mov_b32 v{vIdx}, 0xdddd")
        for r in range(32):
            b(f"v_cndmask_b32 v{Vf + r}, 0, v{T}, vcc")
        b(f"s_mov_b32 s{sVm}, 0x0000ffff")
        b(f"s_mov_b32 s{sVm + 1}, 0x0000ffff")
        b(f"s_lshl_b32 s{sT0}, s{sKh}, 16")
        b(f"v_add_u32 v{vKrd}, s{sT0}, v{vL16}")
        b(f"v_lshrrev_b32 v{T}, 5, v{vLane}")
        b(f"v_and_b32 v{T + 1}, 15, v{vLane}")
        b(f"v_lshlrev_b32 v{T + 1}, 4, v{T + 1}")
        b(f"v_lshl_add_u32 v{T}, v{T}, 8, v{T + 1}")
        b(f"v_add_u32 v{vVrd}, s{sT0}, v{T}")
        b(f"s_mul_i32 s{sT0}, s{sWave}, 3072")
        b(f"s_add_u32 s{sT0}, s{sT0}, {XCH}")
        b(f"v_add_u32 v{vXw}, s{sT0}, v{vL16}")
        b(f"s_xor_b32 s{sT1}, s{sWave}, 4")
        b(f"s_mul_i32 s{sT0}, s{sT1}, 3072")
        b(f"s_add_u32 s{sT0}, s{sT0}, {XCH}")
        b(f"v_add_u32 v{vXr}, s{sT0}, v{vL16}")
        b(f"s_lshl_b32 s{sT0}, s{sQs}, 1")
        b(f"s_add_u32 s{sT0}, s{sT0}, s{sKh}")
        b(f"s_lshl_b32 s{sT0}, s{sT0}, 10")
        b(f"s_add_u32 s{sT0}, s{sT0}, {XCH}")
        b(f"v_add_u32 v{T + 2}, s{sT0}, v{vL16}")
        b(f"v_xor_b32 v{T + 3}, 1024, v{T + 2}")
        b(f"s_lshl_b32 s{sT0}, s{sKh}, 4")
        b(f"s_add_u32 s{sT0}, s{sT0}, {SYN}")
        b(f"v_mov_b32 v{T + 6}, s{sT0}")
        b(f"v_mov_b32 v{T + 7}, 1")
        for c in range(2):
            for r in range(16):
                b(f"v_mov_b32 v{O[c] + r}, 0")
        b(f"s_lshl_b32 s57, s{sQb}, 2")
        b(f"s_add_u32 s57, s57, s{sQs}")
        b(f"s_lshl_b32 s55, s57, 8")
        b(f"s_lshl_b32 s{sT1}, s{sHead}, 1")
        b(f"s_add_u32 s{sT1}, s{sT1}, s{sKh}")
        b(f"s_lshl_b32 s{sT1}, s{sT1}, 2")
        b(f"s_add_u32 s55, s55, s{sT1}")
        b(f"s_add_u32 s55, s55, {F2}")
        b(f"s_lshl_b32 s57, s57, 1")
        b(f"s_add_u32 s57, s57, s{sKh}")
        b(f"s_mul_i32 s57, s57, {RT}")
        b(f"s_lshl_b32 s{sT1}, s{sHead}, 10")
        b(f"s_add_u32 s57, s57, s{sT1}")
        b(f"s_add_u32 s57, s57, {QO}")

    init(l)
    l(f"s_lshl_b32 s40, s{sQb}, 9")
    l(f"s_lshr_b32 s{sT0}, s{sHead}, 1")
    l(f"s_lshl_b32 s{sT0}, s{sT0}, 5")
    l(f"s_add_u32 s40, s40, s{sT0}")
    l(f"s_add_u32 s40, s40, {FL1}")
    l(f"s_lshl_b32 s36, s{sQb}, 2")
    l(f"s_add_u32 s36, s36, s{sQs}")
    l(f"s_mul_i32 s36, s36, {2 * RT}")
    l(f"s_lshl_b32 s{sT0}, s{sHead}, 10")
    l(f"s_add_u32 s37, s36, s{sT0}")
    l(f"s_add_u32 s36, s37, s{sT0}")
    l(f"s_add_u32 s37, s37, {QO}")
    l(f"s_add_u32 s42, s36, {RT - 2048}")
    l(f"s_add_u32 s43, s37, {RT - 1024}")
    l(f"s_lshr_b32 s38, s{sQs}, 1")
    l("s_lshl_b32 s38, s38, 16")
    l(f"s_and_b32 s{sT0}, s{sQs}, 1")
    l(f"s_lshl_b32 s{sT0}, s{sT0}, 12")
    l(f"s_add_u32 s38, s38, s{sT0}")
    l(f"s_lshl_b32 s39, s{sQs}, 11")
    l(f"s_add_u32 s39, s39, {XCH}")
    l(f"v_lshlrev_b32 v{T + 4}, 2, v{vLane}")
    l("s_mov_b32 s59, 0x40000")
    l("s_mov_b64 exec, 0xff")
    l.label("L_poll_l1")
    l(f"buffer_load_dword v{T + 5}, v{T + 4}, {sr(sWS, 4)}, s40 offen sc1")
    l("s_sub_u32 s59, s59, 1")
    l.wait_all(lg=False)
    l(f"v_cmp_ne_u32 vcc, s{sTag}, v{T + 5}")
    l("s_cmp_eq_u32 s59, 0")
    l("s_cbranch_scc1 L_poll_l1_x")
    l("s_cbranch_vccnz L_poll_l1")
    l.label("L_poll_l1_x")
    if OPT.get("det") != 2:
        stamp(l)
    l("s_mov_b64 exec, -1")
    l("s_mov_b32 m0, s39")
    l("s_nop 0")
    for i in range(2):
        l.vm(f"buffer_load_dwordx4 v{vL16}, {sr(sWS, 4)}, s{(37, 43)[i]} offen offset:{i * 1024} sc1 lds")
    l("s_mov_b32 m0, s38")
    l("s_nop 0")
    for i in range(4):
        l.vm(f"buffer_load_dwordx4 v{vL16}, {sr(sWS, 4)}, s{(36, 42)[i // 2]} offen offset:{i * 1024} sc1 lds")
    l.wait_all()
    if OPT.get("det") != 2:
        stamp(l)
    l("s_branch L_p2_b0")
    init(a)
    a(f"v_mov_b32 v{T + 4}, 0")
    a(f"v_mov_b32 v{T + 5}, s{sTag}")

    def gflag():
        a.wait_all(lg=False)
        a("s_mov_b64 exec, 1")
        a.vm(f"buffer_store_dword v{T + 5}, v{T + 4}, {sr(sWS, 4)}, s49 offen sc1")
        a("s_mov_b64 exec, -1")

    if not OPT["p2_defer"]:
        gflag()
    if OPT.get("det") == 4:
        stamp(a)
    a.label("L_p2_b0")

    def emit_pair(p, extra=()):
        for t in (2 * p, 2 * p + 1):
            a.lg(f"ds_read_b128 {vr(Kf + 4 * (t & 3), 4)}, v{vKrd} offset:{t * 2048}")
        a(f"s_mov_b64 exec, {sr(sVm, 2)}")
        for t in (2 * p, 2 * p + 1):
            a.lg(f"ds_read_b128 {vr(Vf + 8 * (t & 3), 4)}, v{vVrd} offset:{t * 2048 + 1024}")
            tok = a.lg(f"ds_read_b128 {vr(Vf + 8 * (t & 3) + 4, 4)}, v{vVrd} offset:{t * 2048 + 1536}")
        if extra:
            a("s_mov_b64 exec, 1")
            for e in extra:
                a.lg(e)
        a("s_mov_b64 exec, -1")
        return tok

    def qk(u):
        t, c = divmod(u, 2)
        return f"v_mfma_f32_32x32x16_bf16 {vr(S[u & 1], 16)}, {vr(Kf + 4 * (t & 3), 4)}, {vr(Qf[1 - c], 4)}, 0"

    def pv(u, i):
        t, c = divmod(u, 2)
        return (f"v_smfmac_f32_32x32x32_bf16 {vr(O[1 - c], 16)}, {vr(Vf + 8 * (t & 3) + 4 * i, 4)}, "
                f"{vr(S[u & 1] + 8 * i, 8)}, v{vIdx}")

    NU = 64
    PRIO = [{0: 2, 29: 1, 53: 0}, {0: 2, 29: 1, 60: 0}, {0: 3, 29: 2, 53: 1, 61: 0}][OPT["p2_pr"]]
    rtok = {}

    def need(u, n):
        a.wait(lg=rtok[u])
        a.label(f"L_rdy{u}")
        a(f"v_readfirstlane_b32 s36, v{T + 8}")
        a("s_nop 0")
        a(f"s_cmp_ge_u32 s36, {n}")
        a(f"s_cbranch_scc0 L_rdy{u}_spin")
        sp.label(f"L_rdy{u}_spin")
        sp("s_sleep 2")
        sp(f"ds_read_b32 v{T + 8}, v{T + 6}")
        sp("s_sub_u32 s59, s59, 1")
        sp("s_waitcnt lgkmcnt(0)")
        sp("s_cmp_lg_u32 s59, 0")
        sp(f"s_cbranch_scc1 L_rdy{u}")
        sp("s_mov_b32 s59, 1")
        sp(f"v_mov_b32 v{T + 8}, 7")
        sp("s_nop 0")
        sp(f"s_branch L_rdy{u}")

    sp = Asm()
    a("s_mov_b32 s59, 0x100000")
    a("s_barrier")
    stamp(a)
    a.lg(f"ds_read_b128 {vr(Qf[1], 4)}, v{T + 3}")
    a.lg(f"ds_read_b128 {vr(Qf[0], 4)}, v{T + 2}")
    ptok = {0: emit_pair(0)}
    a.wait(lg=ptok[0] - 5)
    a(qk(0))
    if OPT["p2_defer"]:
        a(f"s_cmp_lg_u32 s{sKh}, 0")
        a("s_cbranch_scc1 L_p2_nogf")
        gflag()
        a.label("L_p2_nogf")
    a.wait(lg=ptok[0])
    a("s_nop 9")
    if OPT["al2"] >= 0:
        a.raw(".p2align 6")
        for _ in range(OPT["al2"]):
            a("s_nop 0")
    for u in range(NU):
        X = S[u & 1]
        p, pu = divmod(u, 4)
        if u in PRIO:
            a(f"s_setprio {PRIO[u]}")
        ex = [f"v_exp_f32 v{X + i}, v{X + i}" for i in range(16)]
        a(ex[0]); a(ex[1])
        if u > 0:
            a(pv(u - 1, 1))
        a(ex[2]); a(ex[3]); a(ex[4])
        if u + 1 < NU:
            if pu == 3:
                a.wait(lg=ptok[p + 1])
            a(qk(u + 1))
        late = p + 1 == 2
        if p + 1 < 16 and pu == (2 if late else 0):
            if (p + 1) % 2 == 0:
                need(u, (p + 1) // 2)
            extra = []
            if u in (28, 52):
                extra.append(f"ds_add_u32 v{T + 6}, v{T + 7} offset:{8 if u == 28 else 32}")
            if (p + 1) % 2 == 1 and (p + 2) // 2 <= 3 and OPT["kv_gate"] in (1, 3, 4):
                a(f"v_mov_b32 v{T + 9}, {(p + 2) // 2}")
                extra.append(f"ds_max_u32 v{T + 6}, v{T + 9} offset:4")
            ptok[p + 1] = emit_pair(p + 1, extra)
        nu = u + 1
        if nu < NU and (nu // 4 + 1) % 2 == 0 and nu // 4 + 1 < 16 and nu % 4 == (2 if nu // 4 + 1 == 2 else 0):
            rtok[nu] = a.lg(f"ds_read_b32 v{T + 8}, v{T + 6}")
        for i in range(5, 10):
            a(ex[i])
        a(pv(u, 0))
        for i in range(10, 16):
            a(ex[i])
            if u == NU - 1 and i == 13:
                a.lg(f"ds_write_b128 v{vXw}, {vr(O[1], 4)}")
                a.lg(f"ds_write_b128 v{vXw}, {vr(O[1] + 4, 4)} offset:1024")
                a.lg(f"ds_write_b32 v{vXw}, v{O[1] + 8} offset:2048")
    a.label("L_p2_tail")
    a("s_nop 1")
    a(pv(NU - 1, 1))
    a(f"s_mov_b32 s{sT0}, {hx(f2u(2.0 ** 80))}")
    a(f"s_mov_b32 s{sT1}, {hx(f2u(2.0 ** -80))}")
    a("s_mov_b32 s56, 0")
    a.wait_all(vm=False)
    a("s_barrier")
    t2 = a.lg(f"ds_read_b32 v{T + 8}, v{vXr} offset:2048")
    a.lg(f"ds_read_b128 {vr(T, 4)}, v{vXr}")
    t1 = a.lg(f"ds_read_b128 {vr(T + 4, 4)}, v{vXr} offset:1024")
    a("s_nop 2")
    a.wait(lg=t2)
    a(f"v_add_f32 v{O[0] + 8}, v{O[0] + 8}, v{T + 8}")
    a.wait(lg=t1)
    for r in range(0, 8, 2):
        a(f"v_pk_add_f32 {vr(O[0] + r, 2)}, {vr(O[0] + r, 2)}, {vr(T + r, 2)}")
    a.label("L_p2_finish")
    a(f"v_rcp_f32 v{T + 8}, v{O[0] + 8}")
    a(f"v_cmp_gt_f32 s[40:41], s{sT0}, v{O[0] + 8}")
    a(f"v_cmp_lt_f32 s[42:43], s{sT1}, v{O[0] + 8}")
    for r in range(0, 8, 2):
        a(f"v_pk_mul_f32 {vr(O[0] + r, 2)}, {vr(O[0] + r, 2)}, {vr(T + 8, 2)} op_sel_hi:[1,0]")
    for i in range(4):
        a(f"v_cvt_pk_bf16_f32 v{T + 4 + i}, v{O[0] + 2 * i}, v{O[0] + 2 * i + 1}")
    a(f"v_dot2_f32_bf16 v{T}, v{T + 4}, v{T + 4}, 0")
    for i in range(1, 4):
        a(f"v_dot2_f32_bf16 v{T}, v{T + 4 + i}, v{T + 4 + i}, v{T}")
    a("s_and_b64 s[40:41], s[40:41], s[42:43]")
    a("s_cmp_lg_u32 s56, 0")
    a("s_cbranch_scc1 L_p2_store")
    a(f"v_cmp_gt_f32 vcc, s{sT0}, v{T}")
    a("s_nop 0")
    a("s_and_b64 s[40:41], s[40:41], vcc")
    a("s_cmp_eq_u64 s[40:41], -1")
    a("s_cbranch_scc0 L_p2_fallback")
    a.label("L_p2_store")
    stores(a, [f"buffer_store_dwordx4 {vr(T + 4, 4)}, v{vL16}, {sr(sWS, 4)}, s57 offen"])
    a("s_barrier")
    stamp(a)

    f = Asm()
    f.label("L_p2_fallback")
    vV2, vM = T + 11, T + 12
    f(f"s_lshl_b32 s37, s{sKh}, 16")
    f(f"v_subrev_u32 v{vV2}, s37, v{vVrd}")
    f(f"s_mul_i32 s36, s{sHead}, {HS()}")
    f(f"s_add_u32 s36, s36, {KVG}")
    f(f"v_mov_b32 v{vM}, 0xff800000")
    f("s_mov_b32 s56, 0")
    f("s_mov_b32 s37, s36")
    f.label("L_p2_fb_max")
    f(f"buffer_load_dwordx4 {vr(Kf, 4)}, v{vL16}, {sr(sWS, 4)}, s37 offen sc1")
    f("s_waitcnt vmcnt(0)")
    f(f"v_mfma_f32_32x32x16_bf16 {vr(S[0], 16)}, {vr(Kf, 4)}, {vr(Qf[0], 4)}, 0")
    f("s_nop 15")
    for i in range(8):
        f(f"v_max3_f32 v{vM}, v{vM}, v{S[0] + 2 * i}, v{S[0] + 2 * i + 1}")
    f("s_add_u32 s37, s37, 2048")
    f("s_add_u32 s56, s56, 1")
    f("s_cmp_lt_u32 s56, 64")
    f("s_cbranch_scc1 L_p2_fb_max")
    f(f"v_mov_b32 v{T}, v{vM}")
    f("s_nop 1")
    f(f"v_permlane32_swap_b32 v{vM}, v{T}")
    f("s_nop 1")
    f(f"v_max_f32 v{vM}, v{vM}, v{T}")
    for r in range(16):
        f(f"v_sub_f32 v{NEG + r}, 0, v{vM}")
        f(f"v_mov_b32 v{O[0] + r}, 0")
    f("s_mov_b32 s56, 0")
    f("s_mov_b32 s37, s36")
    f.label("L_p2_fb_pv")
    f(f"buffer_load_dwordx4 {vr(Kf, 4)}, v{vL16}, {sr(sWS, 4)}, s37 offen sc1")
    f(f"s_mov_b64 exec, {sr(sVm, 2)}")
    f(f"buffer_load_dwordx4 {vr(Vf, 4)}, v{vV2}, {sr(sWS, 4)}, s37 offen offset:1024 sc1")
    f(f"buffer_load_dwordx4 {vr(Vf + 4, 4)}, v{vV2}, {sr(sWS, 4)}, s37 offen offset:1536 sc1")
    f("s_mov_b64 exec, -1")
    f("s_waitcnt vmcnt(0)")
    f(f"v_mfma_f32_32x32x16_bf16 {vr(S[0], 16)}, {vr(Kf, 4)}, {vr(Qf[0], 4)}, {vr(NEG, 16)}")
    f("s_nop 15")
    for i in range(16):
        f(f"v_exp_f32 v{S[0] + i}, v{S[0] + i}")
    f("s_nop 1")
    f(f"v_smfmac_f32_32x32x32_bf16 {vr(O[0], 16)}, {vr(Vf, 4)}, {vr(S[0], 8)}, v{vIdx}")
    f(f"v_smfmac_f32_32x32x32_bf16 {vr(O[0], 16)}, {vr(Vf + 4, 4)}, {vr(S[0] + 8, 8)}, v{vIdx}")
    f("s_nop 15")
    f("s_add_u32 s37, s37, 2048")
    f("s_add_u32 s56, s56, 1")
    f("s_cmp_lt_u32 s56, 64")
    f("s_cbranch_scc1 L_p2_fb_pv")
    f("s_branch L_p2_finish")
    f.lines += sp.lines
    return f


def phase_res(a, h, k3, pre_publish=None):
    uid = "p3" if k3 else "p5"
    KS = 32 if k3 else 86
    ACT = QO if k3 else GO
    NST = (KS + 3) // 4
    NA = OPT["p5_na"]
    WSL = WS3 if k3 else WS5[:19 - NA]
    NW = len(WSL)
    if k3:
        ASL = [(122880, -9), (131072, -9), (139264, -9), (147456, -9), (57344, -9), (122880, 0), (WS3[0], 0), (131072, 1)]
    else:
        ASL = [(163840 - NA * 8192 + (n % NA) * 8192, n - NA if n >= NA else -9) for n in range(NST)]
    RESO = RES3 if k3 else 24576
    busy = {WSL[(NST - 1) % NW], WSL[(NST - 2) % NW]}
    TRO = [o for o in WSL if o + 8192 in WSL and not ({o, o + 8192} & busy)][0]
    sW, sIO = 16, 20
    sWr, sWc, sRb, sCb = 25, 26, 27, 28
    T = 12
    for b in (a, h):
        b(f"s_and_b32 s{sT0}, s2, 7")
        b(f"s_lshl_b32 s{sRb}, s{sT0}, 2")
        b(f"s_lshr_b32 s34, s2, 6")
        b(f"s_add_u32 s{sRb}, s{sRb}, s34")
        b(f"s_bfe_u32 s{sCb}, s2, 0x30003")
        b(f"s_and_b32 s{sWr}, s{sWave}, 1")
        b(f"s_bfe_u32 s{sWc}, s{sWave}, 0x10001")
    vWoff, vXg = 3, 5
    h(f"v_lshrrev_b32 v{T}, 3, v{vLane}")
    h(f"v_and_b32 v{T + 1}, 7, v{vLane}")
    h(f"v_lshrrev_b32 v{T + 2}, 2, v{vLane}")
    h(f"v_and_b32 v{T + 2}, 4, v{T + 2}")
    h(f"v_xor_b32 v{T + 2}, v{T + 2}, v{T + 1}")
    h(f"v_lshlrev_b32 v{T + 2}, 4, v{T + 2}")
    h(f"v_lshl_add_u32 v{T + 2}, v{T}, 10, v{T + 2}")
    h(f"s_mul_i32 s44, s{sHw}, {3 * 16384}")
    h(f"s_lshl_b32 s{sT0}, s{sCb}, 7")
    h(f"v_add_u32 v{vWoff}, s{sT0}, v{T + 2}")
    h(f"v_add_u32 v{vWoff + 1}, {8192 - 1024}, v{vWoff}")
    h(f"s_lshl_b32 s32, s{sHw}, 11")
    h(f"s_lshl_b32 s33, s{sRb}, 1")
    h(f"s_add_u32 s33, s33, s{sWr}")
    h(f"s_mul_i32 s34, s33, {RT}")
    h(f"s_lshl_b32 s{sT1}, s{sWc}, 11")
    h(f"s_add_u32 s34, s34, s{sT1}")
    h(f"s_add_u32 s34, s34, {ACT}")
    h(f"s_lshl_b32 s35, s{sWr}, 12")
    h(f"s_add_u32 s35, s35, s{sT1}")
    if k3:
        pass
    else:
        h(f"s_mul_i32 s36, s33, {RT}")
        h(f"s_lshl_b32 s{sT0}, s{sCb}, 12")
        h(f"s_add_u32 s36, s36, s{sT0}")
        h(f"s_add_u32 s36, s36, s{sT1}")
    srd(h, sW, KWO if k3 else KD, KS * 16 * 1024)
    if pre_publish is not None:
        publish(h, pre_publish, T + 4)
    dr = Drip(h)

    def issue_w(st):
        cl = [(4 * st + w >= 29) + (4 * st + w >= 58) for w in range(4)]
        pre = [f"s_add_u32 s42, s44, {hx((12 * st - 86 * cl[0]) * 16384)}"]
        if cl[3] != cl[0]:
            pre += [f"s_add_u32 s45, s44, {hx((12 * st - 86 * cl[3]) * 16384)}", f"s_cmp_ge_u32 s{sHw}, {cl.index(cl[3])}",
                    "s_cselect_b32 s42, s45, s42"]
        dr.add(st, [f"s_add_u32 m0, s32, {WSL[st % NW]}"] + pre,
               f"buffer_load_dwordx4 v{vWoff}, {sr(sW, 4)}, s42 offen lds")
        dr.add(st, [], f"buffer_load_dwordx4 v{vWoff + 1}, {sr(sW, 4)}, s42 offen offset:1024 lds")

    def issue_a(st):
        dr.add(st, [f"s_add_u32 m0, s35, {ASL[st][0]}", f"s_add_u32 s43, s34, {st * 4096}"],
               f"buffer_load_dwordx4 v{vL16}, {sr(sWS, 4)}, s43 offen {LD()} lds")
        dr.add(st, [], f"buffer_load_dwordx4 v{vL16}, {sr(sWS, 4)}, s43 offen offset:1024 {LD()} lds")

    if not k3:
        for st in range(NW):
            issue_w(st)
    dr.emit(100)
    if not OPT.get("det"):
        stamp(h)
    if k3 and OPT["lpoll"]:
        h(f"s_lshl_b32 s40, s{sRb}, 8")
        h(f"s_add_u32 s40, s40, {F2}")
        poll(h, 40, T + 4, "p3l", every=True, barrier=False)
    elif k3:
        h("s_barrier")
    else:
        h(f"s_lshl_b32 s40, s{sRb}, 9")
        h(f"s_add_u32 s40, s40, {F4}")
        poll(h, 40, T + 4, "p5l", 30, every=True, barrier=False)
    if not OPT.get("det"):
        stamp(h)
    AHEAD = OPT["p3_a"] if k3 else OPT["p5_a"]
    nxt_a = 0
    for st in range(NST):
        while nxt_a <= min(st + AHEAD, NST - 1):
            if not k3 and ((nxt_a >= 7 and st <= 2) or (nxt_a >= 14 and st <= OPT["p5_c2"])):
                break
            if ASL[nxt_a][1] > st - 3:
                break
            issue_a(nxt_a)
            nxt_a += 1
        if not k3 and st == 1:
            dr.add(4, [f"s_add_u32 m0, s35, {RESO}", "s_nop 0"], f"buffer_load_dwordx4 v{vL16}, {sr(sWS, 4)}, s36 offen {LD()} lds")
            dr.add(4, [], f"buffer_load_dwordx4 v{vL16}, {sr(sWS, 4)}, s36 offen offset:1024 {LD()} lds")
        dr.emit(100)
        h.wait(vm=dr.tok[st])
        h("s_barrier")
        if st >= 2 and st - 2 + NW < NST:
            issue_w(st - 2 + NW)
    if k3:
        h("s_barrier")
    RST = 0 if k3 else 4
    vWrd, vAr, vRr, vTw, vTr, vOut = [3, 4], [5, 6, 22], [7, 8], 9, 10, 11
    ID = 24
    FR = [32, 72]
    acc = 112
    a(f"v_and_b32 v{T}, 31, v{vLane}")
    a(f"v_lshrrev_b32 v{T + 1}, 5, v{vLane}")
    a(f"v_bfe_u32 v{T + 2}, v{vLane}, 2, 2")
    a(f"v_lshl_add_u32 v{T + 3}, v{T + 1}, 2, v{T + 2}")
    a(f"v_lshlrev_b32 v{T + 3}, 7, v{T + 3}")
    a(f"v_bfe_u32 v{T + 4}, v{vLane}, 4, 1")
    a(f"v_lshl_add_u32 v{T + 3}, v{T + 4}, 5, v{T + 3}")
    a(f"v_and_b32 v{T + 4}, 3, v{vLane}")
    a(f"v_lshl_add_u32 v{T + 3}, v{T + 4}, 3, v{T + 3}")
    a(f"v_lshrrev_b32 v{T + 2}, 1, v{T + 2}")
    a(f"v_xor_b32 v{T + 2}, s{sWc}, v{T + 2}")
    a(f"v_lshl_add_u32 v{vWrd[0]}, v{T + 2}, 6, v{T + 3}")
    wl = LdsAddr(a, vWrd)
    wl.setup(a)
    a(f"s_lshl_b32 s{sT0}, s{sWr}, 12")
    a(f"v_add_u32 v{vAr[0]}, s{sT0}, v{vL16}")
    al = LdsAddr(a, vAr)
    al.setup(a)
    if k3:
        a(f"v_bfe_u32 v{T + 2}, v{vLane}, 1, 3")
        a(f"v_xor_b32 v{T + 2}, v{T + 2}, v{T + 1}")
        a(f"s_lshl_b32 s{sT1}, s{sWc}, 2")
        a(f"v_xor_b32 v{T + 2}, s{sT1}, v{T + 2}")
        a(f"v_lshlrev_b32 v{T + 2}, 4, v{T + 2}")
        a(f"v_lshl_add_u32 v{T + 2}, v{T}, 7, v{T + 2}")
        a(f"s_add_u32 s{sT0}, s{sT0}, {RESO}")
        a(f"v_add_u32 v{vRr[0]}, s{sT0}, v{T + 2}")
        a(f"v_xor_b32 v{vRr[1]}, 32, v{vRr[0]}")
    else:
        a(f"s_lshl_b32 s{sT1}, s{sWc}, 11")
        a(f"s_add_u32 s{sT0}, s{sT0}, s{sT1}")
        a(f"s_add_u32 s{sT0}, s{sT0}, {RESO}")
        a(f"v_add_u32 v{vRr[0]}, s{sT0}, v{vL16}")
        a(f"v_add_u32 v{vRr[1]}, 1024, v{vRr[0]}")
    if pre_publish is not None:
        publish(a, pre_publish, T + 6)
    a(f"v_mov_b32 v{T + 5}, 0x3f80")
    for e in range(2):
        if k3:
            a(f"v_lshlrev_b32 v{T + 2}, 3, v{T + 1}")
            a(f"v_sub_u32 v{T + 2}, v{T}, v{T + 2}")
            a(f"v_subrev_u32 v{T + 2}, {16 * e}, v{T + 2}")
        else:
            a(f"v_bfe_u32 v{T + 2}, v{vLane}, 3, 1")
            a(f"v_and_b32 v{T + 3}, 3, v{vLane}")
            a(f"v_lshl_add_u32 v{T + 2}, v{T + 2}, 2, v{T + 3}")
            a(f"v_bfe_u32 v{T + 3}, v{vLane}, 2, 1")
            a(f"v_xor_b32 v{T + 3}, v{T + 3}, v{T + 1}")
            a(f"v_bfe_u32 v{T + 4}, v{vLane}, 4, 1")
            a(f"v_xor_b32 v{T + 4}, {e}, v{T + 4}")
            a(f"v_or_b32 v{T + 3}, v{T + 3}, v{T + 4}")
            a(f"v_lshl_add_u32 v{T + 2}, v{T + 3}, 4, v{T + 2}")
        a(f"v_and_b32 v{T + 3}, 1, v{T + 2}")
        a(f"v_lshlrev_b32 v{T + 3}, 4, v{T + 3}")
        a(f"v_lshlrev_b32 v{T + 3}, v{T + 3}, v{T + 5}")
        a(f"v_lshrrev_b32 v{T + 2}, 1, v{T + 2}")
        for r in range(4):
            a(f"v_cmp_eq_u32 vcc, {r}, v{T + 2}")
            a("s_nop 1")
            a(f"v_cndmask_b32 v{ID + 4 * e + r}, 0, v{T + 3}, vcc")
    a(f"s_lshl_b32 s33, s{sRb}, 1")
    a(f"s_add_u32 s33, s33, s{sWr}")
    a(f"s_lshl_b32 s34, s{sCb}, 1")
    a(f"s_add_u32 s34, s34, s{sWc}")
    if k3:
        a(f"s_mul_i32 s{sT1}, s33, {RT}")
        a(f"s_lshl_b32 s36, s34, 11")
        a(f"s_add_u32 s36, s36, s{sT1}")
        a(f"s_lshl_b32 s37, s34, 8")
        a(f"s_add_u32 s37, s37, s{sT1}")
        a(f"s_add_u32 s37, s37, {SO}")
        a("s_mov_b32 s41, 0x3f803f80")
        a(f"v_lshlrev_b32 v{vOut}, 3, v{vLane}")
        a(f"s_lshl_b32 s55, s{sRb}, 7")
        a(f"s_lshl_b32 s{sT1}, s{sCb}, 4")
        a(f"s_add_u32 s55, s55, s{sT1}")
        a(f"s_lshl_b32 s{sT1}, s{sWave}, 2")
        a(f"s_add_u32 s55, s55, s{sT1}")
        a(f"s_add_u32 s55, s55, {F3}")
    else:
        a(f"s_mul_i32 s{sT0}, s{sHw}, 2560")
        a(f"s_add_u32 s{sT0}, s{sT0}, {TRO}")
        a(f"v_mul_u32_u24 v{T + 2}, 80, v{T}")
        a(f"v_lshl_add_u32 v{T + 2}, v{T + 1}, 3, v{T + 2}")
        a(f"v_add_u32 v{vTw}, s{sT0}, v{T + 2}")
        a(f"v_lshrrev_b32 v{T + 2}, 2, v{vLane}")
        a(f"v_and_b32 v{T + 3}, 3, v{vLane}")
        a(f"v_lshlrev_b32 v{T + 3}, 4, v{T + 3}")
        a(f"v_mad_u32_u24 v{T + 4}, v{T + 2}, 64, v{T + 3}")
        a(f"v_lshl_add_u32 v{T + 4}, v{T + 2}, 4, v{T + 4}")
        a(f"v_add_u32 v{vTr}, s{sT0}, v{T + 4}")
        a(f"v_lshl_add_u32 v{vOut}, v{T + 2}, 10, v{T + 3}")
        a(f"s_lshl_b32 s36, s33, 15")
        a(f"s_lshl_b32 s37, s34, 6")
        a(f"s_add_u32 s36, s36, s37")
        a(f"s_add_u32 s37, s36, 16384")
        srd(a, sIO, KO, 2048 * 1024)
    a(f"s_lshl_b32 s40, s{sRb}, {8 if k3 else 9}")
    a(f"s_add_u32 s40, s40, {F2 if k3 else F4}")
    if k3 and not OPT["lpoll"]:
        poll(a, 40, T + 6, uid, 64)
    first = True
    prev = []
    for st in range(NST):
        if not k3 and st in (0, OPT["p5_c2"] - 3):
            poll_issue(a, 40, T + 6, f"p5i{st}", 128 if st == 0 else 256)
        if not k3 and st in (2, OPT["p5_c2"]):
            poll(a, 40, T + 6, f"p5c{8 if st > 2 else 1}", 30, barrier=False, off=128 if st == 2 else 256, issued=True)
        a("s_barrier")
        if st == 0:
            stamp(a)
        F = FR[st & 1]
        n = min(4, KS - 4 * st)
        rd = []
        for k in range(n):
            reg, off = al.at(ASL[st][0] + k * 1024)
            rd.append(f"ds_read_b128 {vr(F + 8 * k, 4)}, {reg} offset:{off}")
            for half in range(2):
                reg, off = wl.at(WSL[st % NW] + k * 2048 + half * 1024)
                rd.append(f"ds_read_b64_tr_b16 {vr(F + 8 * k + 4 + 2 * half, 2)}, {reg} offset:{off}")
        cur = [[None, F + 8 * k + 4, F + 8 * k, 3 * k + 2] for k in range(n)]
        if st == RST:
            for e in range(2):
                rd.append(f"ds_read_b128 {vr(F + 32 + 4 * e, 4)}, v{vRr[e]}")
                cur.append([None, ID + 4 * e, F + 32 + 4 * e, len(rd) - 1])
        toks = []
        k = 0
        for tok, wa, xa, _ in prev:
            a.wait(lg=tok)
            a(f"v_mfma_f32_32x32x16_bf16 {vr(acc, 16)}, {vr(wa, 4)}, {vr(xa, 4)}, {'0' if first else vr(acc, 16)}")
            first = False
            for _ in range(3):
                if k < len(rd):
                    toks.append(a.lg(rd[k]))
                    k += 1
        while k < len(rd):
            toks.append(a.lg(rd[k]))
            k += 1
        for c in cur:
            c[0] = toks[c[3]]
        prev = cur
    for tok, wa, xa, _ in prev:
        a.wait(lg=tok)
        a(f"v_mfma_f32_32x32x16_bf16 {vr(acc, 16)}, {vr(wa, 4)}, {vr(xa, 4)}, {vr(acc, 16)}")
    stamp(a)
    a("s_nop 11")
    P = 32
    for i in range(8):
        a(f"v_cvt_pk_bf16_f32 v{P + i}, v{acc + 2 * i}, v{acc + 2 * i + 1}")
    if k3:
        stores(a, [f"buffer_store_dwordx4 {vr(P, 4)}, v{vL16}, {sr(sWS, 4)}, s36 offen",
                   f"buffer_store_dwordx4 {vr(P + 4, 4)}, v{vL16}, {sr(sWS, 4)}, s36 offen offset:1024"])
        a(f"v_dot2_f32_bf16 v{T}, v{P}, s41, 0")
        a(f"v_dot2_f32_bf16 v{T + 1}, v{P}, v{P}, 0")
        for i in range(1, 8):
            a(f"v_dot2_f32_bf16 v{T}, v{P + i}, s41, v{T}")
            a(f"v_dot2_f32_bf16 v{T + 1}, v{P + i}, v{P + i}, v{T + 1}")
        a("s_nop 2")
        a(f"v_mov_b32 v{T + 2}, v{T}")
        a(f"v_mov_b32 v{T + 3}, v{T + 1}")
        a("s_nop 0")
        a(f"v_permlane32_swap_b32 v{T}, v{T + 2}")
        a(f"v_permlane32_swap_b32 v{T + 1}, v{T + 3}")
        a("s_nop 0")
        a(f"v_add_f32 v{T}, v{T}, v{T + 2}")
        a(f"v_add_f32 v{T + 1}, v{T + 1}, v{T + 3}")
        a("s_mov_b32 exec_hi, 0")
        stores(a, [f"buffer_store_dwordx2 {vr(T, 2)}, v{vOut}, {sr(sWS, 4)}, s37 offen"])
        a("s_mov_b64 exec, -1")
        a("s_barrier")
        publish(a, 55, T + 4)
    else:
        for g in range(4):
            a.lg(f"ds_write_b64 v{vTw}, {vr(P + 2 * g, 2)} offset:{g * 16}")
        a.wait_all(vm=False)
        t0 = a.lg(f"ds_read_b128 {vr(P + 8, 4)}, v{vTr}")
        t1 = a.lg(f"ds_read_b128 {vr(P + 12, 4)}, v{vTr} offset:{16 * 80}")
        a.wait(lg=t0)
        a.vm(f"buffer_store_dwordx4 {vr(P + 8, 4)}, v{vOut}, {sr(sIO, 4)}, s36 offen")
        a.wait(lg=t1)
        a.vm(f"buffer_store_dwordx4 {vr(P + 12, 4)}, v{vOut}, {sr(sIO, 4)}, s37 offen")
    stamp(a)


def pos_to_off(b, sr_, add):
    b(f"s_add_u32 s{sr_}, s{sr_}, {add}")
    b(f"s_lshr_b32 s{sT1}, s{sr_}, 1")
    b(f"s_and_b32 s{sr_}, s{sr_}, 1")
    b(f"s_mul_i32 s48, s{sT1}, 6")
    b(f"s_add_u32 s{sr_}, s{sr_}, s48")
    b(f"s_cmp_ge_u32 s{sT1}, 29")
    b("s_cselect_b32 s48, 172, 0")
    b(f"s_sub_u32 s{sr_}, s{sr_}, s48")
    b(f"s_cmp_ge_u32 s{sT1}, 58")
    b("s_cselect_b32 s48, 172, 0")
    b(f"s_sub_u32 s{sr_}, s{sr_}, s48")
    b(f"s_lshl_b32 s{sr_}, s{sr_}, 13")


def phase4(a, h):
    sG = 16
    sRb, sCg = 25, 26
    sWL, sAct = 32, 33
    NW, NX, NST = 9, 5, 16
    XO = 122880
    CSO = 24576
    XEO = CSO + 1536
    for b in (a, h):
        b(f"s_and_b32 s{sT0}, s2, 7")
        b(f"s_lshl_b32 s{sT0}, s{sT0}, 1")
        b(f"s_bfe_u32 s{sT1}, s2, 0x10003")
        b(f"s_add_u32 s{sRb}, s{sT0}, s{sT1}")
        b(f"s_lshr_b32 s{sCg}, s2, 4")
    a("s_cmp_ge_u32 s2, 240")
    a(f"s_cbranch_scc1 {'L_p4_idle' if OPT['idle_pf'] else 'L_p4_skip_c'}")
    h("s_cmp_ge_u32 s2, 240")
    h("s_cbranch_scc1 L_p4_skip_l")
    vWoff = [3, 4, 5]
    vT = 16
    h(f"s_lshl_b32 s{sAct}, s{sRb}, 2")
    h(f"s_add_u32 s{sAct}, s{sAct}, s{sHw}")
    h(f"s_mul_i32 s{sAct}, s{sAct}, {RT}")
    h(f"s_add_u32 s38, s{sAct}, {SO}")
    h(f"s_lshr_b32 s34, s{sHw}, 1")
    h(f"s_and_b32 s35, s{sHw}, 1")
    h(f"s_mul_i32 s{sT0}, s34, {16 * 2752}")
    h(f"s_mul_i32 s{sT1}, s{sCg}, 192")
    h(f"s_add_u32 s{sT0}, s{sT0}, s{sT1}")
    h(f"v_and_b32 v{vT + 3}, 2, v{vLane}")
    h(f"v_lshlrev_b32 v{vT + 3}, 5, v{vT + 3}")
    h(f"v_sub_u32 v{vT + 3}, 32, v{vT + 3}")
    h(f"v_mul_lo_u32 v{vT + 3}, v{vT + 3}, s35")
    h(f"v_add_u32 v{vT + 3}, s{sT0}, v{vT + 3}")
    for i in range(3):
        h(f"v_add_u32 v{vT}, {64 * i}, v{vLane}")
        h(f"v_mul_u32_u24 v{vT + 1}, 171, v{vT}")
        h(f"v_lshrrev_b32 v{vT + 1}, 11, v{vT + 1}")
        h(f"v_mul_u32_u24 v{vT + 2}, {2752 - 192}, v{vT + 1}")
        h(f"v_add3_u32 v{vWoff[i]}, v{vL16}, v{vT + 2}, v{vT + 3}")
    h(f"s_mul_i32 s{sWL}, s{sHw}, 3072")
    h(f"s_lshl_b32 s36, s{sHw}, 11")
    h(f"s_add_u32 s36, s36, {XO}")
    h("s_cmp_eq_u32 s35, 0")
    h(f"s_cselect_b32 s{sG}, s{KG}, s{KU}")
    h(f"s_cselect_b32 s{sG + 1}, s{KG + 1}, s{KU + 1}")
    h(f"s_mov_b32 s{sG + 2}, {hx(512 * 2752)}")
    h(f"s_mov_b32 s{sG + 3}, 0x00020000")
    dr = Drip(h)

    def issue_w(key):
        st = key[1] if isinstance(key, tuple) else key
        for i in range(3):
            pre = [f"s_add_u32 m0, s{sWL}, {WS4[st % NW]}", f"s_mov_b32 s42, {st * 32 * 2752}"] if i == 0 else []
            dr.add(key, pre, f"buffer_load_dwordx4 v{vWoff[i]}, {sr(sG, 4)}, s42 offen offset:{i * 1024} lds")

    def issue_x(st):
        for i in range(2):
            pre = [f"s_add_u32 m0, s36, {(st % NX) * 8192}", f"s_add_u32 s43, s{sAct}, {st * 2048}"] if i == 0 else []
            dr.add(st, pre, f"buffer_load_dwordx4 v{vL16}, {sr(sWS, 4)}, s43 offen offset:{i * 1024} {LD()} lds")

    PRE = OPT["p4_pre"]
    for st in range(OPT["w4pre"], PRE):
        issue_w(st)
    dr.emit(100)
    nxt_wi = 3 * PRE
    vPf, vPd = 13, 100
    srd(h, 44, KD, 1376 * 1024)
    h(f"s_lshr_b32 s{sT0}, s2, 3")
    h(f"s_lshl_b32 s{sT0}, s{sT0}, 2")
    h(f"s_add_u32 s{sT0}, s{sT0}, s{sHw}")
    if OPT["idle_pf"]:
        pos_to_off(h, sT0, OPT["idle_pf"] * 8)
    else:
        h(f"s_lshl_b32 s{sT0}, s{sT0}, 13")
    h(f"v_lshlrev_b32 v{vPf}, 7, v{vLane}")
    h(f"v_add_u32 v{vPf}, s{sT0}, v{vPf}")
    h(f"v_add_u32 v15, {120 * 8192}, v{vPf}")
    h(f"v_lshrrev_b32 v{vT + 3}, 5, v{vLane}")
    h(f"v_and_b32 v{vT + 4}, 31, v{vLane}")
    h(f"v_lshlrev_b32 v{vT + 4}, 3, v{vT + 4}")
    h(f"v_lshl_add_u32 v{vT + 4}, v{vT + 3}, 11, v{vT + 4}")
    h(f"s_mul_i32 s{sT0}, s{sHw}, 1536")
    h(f"s_add_u32 s{sT0}, s{sT0}, {XEO}")
    h(f"v_add_u32 v{vT + 5}, s{sT0}, v{vL16}")
    h(f"v_lshl_add_u32 v{vT + 6}, v{vLane}, 3, s{sT0}")
    stamp(h)
    if OPT["lpoll"]:
        h(f"s_lshl_b32 s40, s{sRb}, 8")
        h(f"s_add_u32 s40, s40, {F3}")
        poll(h, 40, vT + 8, "p4l", every=True, barrier=False)
    else:
        h("s_barrier")
    stamp(h)
    SP = 32
    vS, vQ, vM, vA = 60, 61, 62, 64
    AHEAD = OPT["p4_a"]
    assert AHEAD < NX
    nxt_x = 0
    for st in range(NST):
        while nxt_x <= min(st + (min(AHEAD, st + 1) if OPT["p4_ramp"] else AHEAD), NST - 1):
            if nxt_x >= NX and nxt_x - NX > st - 2:
                break
            issue_x(nxt_x)
            nxt_x += 1
        dr.emit(100)
        for _ in range(0 if OPT["p4_ramp"] and st == 0 else (OPT["p4_wi2"] + (st & 1)) // 2 + (st in (4, 6) and OPT["p4_ramp"])):
            ws, wi = divmod(nxt_wi, 3)
            if ws < NST and (ws < NW or ws - NW <= st - 2):
                h(f"s_add_u32 m0, s{sWL}, {WS4[ws % NW]}")
                h(f"s_mov_b32 s42, {ws * 32 * 2752}")
                dr.tok[("w", ws)] = h.vm(f"buffer_load_dwordx4 v{vWoff[wi]}, {sr(sG, 4)}, s42 offen offset:{wi * 1024} lds")
                nxt_wi += 1
        assert nxt_wi >= 3 * (st + 1)
        if 1 <= st <= 8:
            i = st - 1
            dr.tok["st"] = h.vm(f"buffer_load_dwordx2 {vr(SP + 2 * i, 2)}, v{vT + 4}, {sr(sWS, 4)}, s38 offen offset:{i * 256} {LD()}")
        h.wait(vm=max(dr.tok[st], dr.tok.get(("w", st), -1)))
        assert st < PRE or ("w", st) in dr.tok
        if st == 11:
            h.wait(vm=dr.tok["st"])
            h(f"v_add_f32 v{vS}, v{SP}, v{SP + 2}")
            h(f"v_add_f32 v{vQ}, v{SP + 1}, v{SP + 3}")
            for i in range(2, 8):
                h(f"v_add_f32 v{vS}, v{vS}, v{SP + 2 * i}")
                h(f"v_add_f32 v{vQ}, v{vQ}, v{SP + 2 * i + 1}")
        if st == 12:
            half_sum(h, vS, vT)
            half_sum(h, vQ, vT)
            h(f"v_mul_f32 v{vM}, {hx(f2u(-1.0 / 512))}, v{vS}")
            h(f"v_mul_f32 v{vQ}, {hx(f2u(1.0 / 512))}, v{vQ}")
            h(f"v_fma_f32 v{vQ}, -v{vM}, v{vM}, v{vQ}")
            h(f"v_max_f32 v{vQ}, 0, v{vQ}")
            h(f"v_add_f32 v{vQ}, {hx(f2u(1e-5))}, v{vQ}")
        if st == 13:
            h(f"v_rsq_f32 v{vA}, v{vQ}")
            split_hi_lo(h, vM, 68, vT, vT + 1)
            h(f"v_mul_f32 v{vA + 1}, v{vQ}, v{vA}")
            h(f"v_mul_f32 v{vA}, {hx(f2u(-LOG2E))}, v{vA}")
            h(f"v_cvt_pk_bf16_f32 v69, v{vT}, 0")
            h("v_mov_b32 v70, 0")
            h("v_mov_b32 v71, 0")
            h.lg(f"ds_write_b128 v{vT + 5}, v[68:71]")
            h.lg(f"ds_write_b64 v{vT + 6}, {vr(vA, 2)} offset:1024")
        if st == 14:
            h.wait_all(vm=False)
        if OPT.get("det") == 1 and st in (3, 7, 11):
            stamp(h)
        h("s_barrier")
        if OPT.get("det") == 1 and st in (3, 7, 11, 15):
            stamp(h)
        if st == OPT["p4_pf"]:
            h.vm(f"buffer_load_dword v{vPd}, v{vPf}, s[44:47], 0 offen")
        if st == OPT["p4_pf"] + 1 and not OPT["idle_pf"]:
            h.vm(f"buffer_load_dword v{vPd}, v15, s[44:47], 0 offen")
    h("s_barrier")
    h.label("L_p4_skip_l")

    sWr2, sWc = 36, 37
    vWrd, vWrdO, vXa, vCw, vCr, vEr = [3, 4], [5, 6], 7, 8, 9, 10
    ONES, vT, CS, ACC = 12, 16, 20, 32
    XF, WF = [128, 136], [144, 156]
    XE, AS = XF[0], ONES
    t = CS
    a(f"s_lshr_b32 s{sWr2}, s{sHw}, 1")
    a(f"s_and_b32 s{sWc}, s{sHw}, 1")
    a(f"s_lshl_b32 s34, s{sRb}, 1")
    a(f"s_add_u32 s34, s34, s{sWr2}")
    a(f"v_lshrrev_b32 v{t + 3}, 5, v{vLane}")
    a(f"v_bfe_u32 v{t}, v{vLane}, 2, 2")
    a(f"v_lshl_add_u32 v{t}, v{t + 3}, 2, v{t}")
    a(f"v_mul_u32_u24 v{t}, 192, v{t}")
    a(f"v_and_b32 v{t + 1}, 3, v{vLane}")
    a(f"v_lshl_add_u32 v{t}, v{t + 1}, 3, v{t}")
    a(f"s_mul_i32 s{sT0}, s{sWc}, 96")
    a(f"v_add_u32 v{t}, s{sT0}, v{t}")
    a(f"v_bfe_u32 v{t + 1}, v{vLane}, 4, 1")
    a(f"s_lshl_b32 s{sT0}, s{sWc}, 6")
    a(f"s_sub_u32 s{sT1}, {3072 + 32}, s{sT0}")
    a(f"s_add_u32 s{sT0}, {3072 - 32}, s{sT0}")
    a(f"v_mad_u32_u24 v{vWrd[0]}, v{t + 1}, s{sT1}, v{t}")
    a(f"v_mad_u32_u24 v{vWrdO[0]}, v{t + 1}, s{sT0}, v{t}")
    wl = [LdsAddr(a, vWrd), LdsAddr(a, vWrdO)]
    wl[0].setup(a)
    wl[1].setup(a)
    a(f"s_lshl_b32 s{sT0}, s{sWr2}, 12")
    a(f"s_add_u32 s{sT0}, s{sT0}, {XO}")
    a(f"v_add_u32 v{vXa}, s{sT0}, v{vL16}")
    a(f"v_xor_b32 v{t}, v{t + 1}, v{vLane}")
    a(f"v_and_b32 v{t}, 1, v{t}")
    a(f"v_cmp_eq_u32 vcc, 0, v{t}")
    a(f"v_mov_b32 v{t}, 0x3f803f80")
    a("s_nop 0")
    for r in range(4):
        a(f"v_cndmask_b32 v{ONES + r}, 0, v{t}, vcc")
    a(f"s_lshl_b32 s{sT0}, s{sWc}, 1")
    a(f"s_add_u32 s{sT1}, s{sT0}, s{sWr2}")
    a(f"s_mul_i32 s{sT1}, s{sT1}, 384")
    a(f"s_add_u32 s{sT1}, s{sT1}, {CSO}")
    a(f"v_and_b32 v{t}, 1, v{vLane}")
    a(f"v_lshlrev_b32 v{t}, 6, v{t}")
    a(f"v_and_b32 v{t + 1}, 48, v{vLane}")
    a(f"v_add3_u32 v{vCw}, v{t}, v{t + 1}, s{sT1}")
    a(f"s_mul_i32 s{sT0}, s{sT0}, 384")
    a(f"s_add_u32 s{sT0}, s{sT0}, {CSO}")
    a(f"v_mul_u32_u24 v{t}, 384, v{t + 3}")
    a(f"v_and_b32 v{t + 1}, 31, v{vLane}")
    a(f"v_lshl_add_u32 v{t}, v{t + 1}, 2, v{t}")
    a(f"v_add_u32 v{vCr}, s{sT0}, v{t}")
    a(f"s_lshl_b32 s55, s34, 9")
    a(f"s_lshl_b32 s35, s{sCg}, 1")
    a(f"s_add_u32 s35, s35, s{sWc}")
    a(f"s_lshl_b32 s{sT0}, s35, 2")
    a(f"s_add_u32 s55, s55, s{sT0}")
    a(f"s_add_u32 s55, s55, {F4}")
    a(f"s_mul_i32 s34, s34, {2 * RT}")
    a(f"s_mul_i32 s38, s35, 3")
    a(f"s_lshl_b32 s35, s35, 10")
    a("s_add_u32 s34, s34, s35")
    a(f"s_add_u32 s34, s34, {GO}")
    a(f"s_add_u32 s35, s34, {RT}")
    a(f"s_mul_i32 s{sT0}, s{sWr2}, 3072")
    a(f"s_add_u32 s{sT0}, s{sT0}, {XEO}")
    a(f"v_add_u32 v{vEr}, s{sT0}, v{vL16}")
    a(f"v_lshl_add_u32 v{vEr + 1}, v{vLane}, 3, s{sT0}")
    for r in range(12):
        a(f"v_mov_b32 v{CS + r}, 0")

    def reads(s):
        st, ss = divmod(s, 2)
        W = []
        for j in range(3):
            for half in range(2):
                reg, off = wl[j & 1].at(WS4[st % NW] + ss * 6144 + half * 8 * 192 + j * 32)
                W.append(f"ds_read_b64_tr_b16 {vr(WF[s & 1] + 4 * j + 2 * half, 2)}, {reg} offset:{off}")
        X = [f"ds_read_b128 {vr(XF[s & 1] + 4 * i, 4)}, v{vXa} offset:{(st % NX) * 8192 + i * 2048 + ss * 1024}"
             for i in range(2)]
        return [X[0], W[0], W[1], X[1], W[2], W[3], W[4], W[5]]

    rt = {}

    def emit_reads(b, s, lo, hi):
        ops = reads(s)
        for k in range(lo, min(hi, 8)):
            rt[(s, k)] = b.lg(ops[k])

    def main(b, s, m):
        j, i = divmod(m, 2)
        d = ACC + 16 * m
        c = "0" if s == 0 else vr(d, 16)
        b(f"v_mfma_f32_32x32x16_bf16 {vr(d, 16)}, {vr(WF[s & 1] + 4 * j, 4)}, {vr(XF[s & 1] + 4 * i, 4)}, {c}")

    def csum(b, s, j):
        b(f"v_mfma_f32_16x16x32_bf16 {vr(CS + 4 * j, 4)}, {vr(WF[s & 1] + 4 * j, 4)}, {vr(ONES, 4)}, {vr(CS + 4 * j, 4)}")

    a(f"s_lshl_b32 s40, s{sRb}, 8")
    a(f"s_add_u32 s40, s40, {F3}")
    if not OPT["lpoll"]:
        poll(a, 40, vT, "p4")
    a("s_barrier")
    stamp(a)
    emit_reads(a, 0, 0, 8)
    a(f"s_cmp_eq_u32 s{sWr2}, 1")
    a("s_cbranch_scc1 L_p4_odd")
    if OPT["al4"] >= 0:
        a.raw(".p2align 3")
        for _ in range(OPT["al4"]):
            a("s_nop 0")
    cuts = [0, 2, 4, 6, 8, 8, 8]
    need = [3, 3, 5, 5, 7, 7]
    rt0 = dict(rt)
    odd = fork(a)
    if OPT["al4"] >= 0:
        odd.raw(".p2align 3")
    odd.label("L_p4_odd")
    for _ in range(max(OPT["al4"], 0)):
        odd("s_nop 0")
    for par, b in ((0, a), (1, odd)):
        rt.clear()
        rt.update(rt0)
        for s in range(31):
            if s % 2 == 1:
                b.wait(lg=rt[(s, 7)])
                b("s_barrier")
            for m in range(6):
                b.wait(lg=rt[(s, need[m])])
                if m % 2 == 0 and s % 2 == par:
                    csum(b, s, m // 2)
                main(b, s, m)
                emit_reads(b, s + 1, cuts[m], cuts[m + 1])
        b.wait_all(vm=False)
        if par == 1:
            for j in range(3):
                csum(b, 31, j)
    odd("s_branch L_p4_join")
    if OPT["idle_pf"]:
        odd.label("L_p4_idle")
        srd(odd, 44, KD, 1376 * 1024)
        odd(f"v_lshlrev_b32 v13, 7, v{vLane}")
        for i in range(OPT["idle_pf"]):
            odd("s_bfe_u32 s49, s2, 0x10003")
            odd("s_lshl_b32 s49, s49, 2")
            odd(f"s_add_u32 s49, s49, s{sHw}")
            pos_to_off(odd, 49, 8 * i)
            odd("buffer_load_dword v100, v13, s[44:47], s49 offen")
        odd("s_waitcnt vmcnt(0)")
        odd("s_branch L_p4_skip_c")
    a.label("L_p4_join")
    main(a, 31, 0)
    for j in range(3):
        a(f"v_mov_b32 v{WF[0] + 4 * j + 2}, 0")
        a(f"v_mov_b32 v{WF[0] + 4 * j + 3}, 0")
    main(a, 31, 1)
    a("s_mov_b32 exec_lo, 0x00030003")
    a("s_mov_b32 exec_hi, 0x00030003")
    for j in range(3):
        a.lg(f"ds_write_b128 v{vCw}, {vr(CS + 4 * j, 4)} offset:{j * 128}")
    a("s_mov_b64 exec, -1")
    for i in range(2):
        a.lg(f"ds_read_b128 {vr(XE + 4 * i, 4)}, v{vEr} offset:{i * 1536}")
        a.lg(f"ds_read_b64 {vr(AS + 2 * i, 2)}, v{vEr + 1} offset:{i * 1536 + 1024}")
    main(a, 31, 2)
    main(a, 31, 3)
    a.wait_all(vm=False)
    a("s_barrier")
    for j in range(3):
        rt[("c", j)] = a.lg(f"ds_read_b32 v{vT + 1 + j}, v{vCr} offset:{j * 128}")
    main(a, 31, 4)
    main(a, 31, 5)
    for j in range(3):
        w = WF[0] + 4 * j
        a.wait(lg=rt[("c", j)])
        a(f"v_cvt_pk_bf16_f32 v{w + 1}, v{vT + 1 + j}, 0")
        a(f"v_lshlrev_b32 v{vT}, 16, v{w + 1}")
        a(f"v_sub_f32 v{vT}, v{vT + 1 + j}, v{vT}")
        a(f"v_cvt_pk_bf16_f32 v{w}, v{vT + 1 + j}, v{vT}")
    for j in range(3):
        for i in range(2):
            d = ACC + 32 * j + 16 * i
            a(f"v_mfma_f32_32x32x16_bf16 {vr(d, 16)}, {vr(WF[0] + 4 * j, 4)}, {vr(XE + 4 * i, 4)}, {vr(d, 16)}")
    stamp(a)
    a(f"v_lshlrev_b32 v{vT}, 7, v{vLane}")
    a(f"v_mov_b32 v{vT + 1}, s{sTag}")
    a("s_nop 2")
    stok = {}
    if OPT["ep_prio"]:
        a(f"s_setprio {OPT['ep_prio']}")
    for j in range(3):
        a(f"s_cmp_ge_u32 s38, {86 - j}")
        a("s_cbranch_scc1 L_p4_pub")
        Gs = [(ACC + 32 * j + 16 * i + r, i) for i in range(2) for r in range(8)]
        for g, i in Gs[::2]:
            a(f"v_pk_mul_f32 {vr(g, 2)}, {vr(g, 2)}, {vr(AS + 2 * i, 2)} op_sel_hi:[1,0]")
        for g, i in Gs:
            a(f"v_exp_f32 v{g}, v{g}")
        for g, i in Gs[::2]:
            a(f"v_pk_fma_f32 {vr(g, 2)}, {vr(g, 2)}, {vr(AS + 2 * i, 2)}, {vr(AS + 2 * i, 2)} op_sel:[0,1,1] op_sel_hi:[1,1,1]")
        for g, i in Gs:
            a(f"v_rcp_f32 v{g}, v{g}")
        for g, i in Gs[::2]:
            a(f"v_pk_mul_f32 {vr(g, 2)}, {vr(g, 2)}, {vr(g + 8, 2)}")
        if j == 2 and OPT["ep_fl"]:
            a("s_mov_b64 exec, 1")
            a.wait(vm=stok[0])
            stores(a, [f"buffer_store_dword v{vT + 1}, v{vT}, {sr(sWS, 4)}, s55 offen"])
            a("s_mov_b64 exec, -1")
        o = ACC + 32 * j + 8
        for i in range(8):
            a(f"v_cvt_pk_bf16_f32 v{o + i}, v{Gs[2 * i][0]}, v{Gs[2 * i + 1][0]}")
        stores(a, [f"buffer_store_dwordx4 {vr(o, 4)}, v{vL16}, {sr(sWS, 4)}, s34 offen",
                   f"buffer_store_dwordx4 {vr(o + 4, 4)}, v{vL16}, {sr(sWS, 4)}, s35 offen"])
        stok[j] = a.vm_issued - 1
        a(f"s_add_u32 s34, s34, {29 * 1024}")
        a(f"s_add_u32 s35, s35, {29 * 1024}")
        if j >= 1 and not OPT["ep_fl"]:
            a("s_mov_b64 exec, 1")
            a.wait(vm=stok[j - 1])
            stores(a, [f"buffer_store_dword v{vT + 1}, v{vT}, {sr(sWS, 4)}, s55 offen offset:{(j - 1) * 128}"])
            a("s_mov_b64 exec, -1")
    a.label("L_p4_pub")
    a("s_nop 7")
    stamp(a)
    a("s_mov_b64 exec, 7")
    a.wait_all(lg=False)
    stores(a, [f"buffer_store_dword v{vT + 1}, v{vT}, {sr(sWS, 4)}, s55 offen"])
    a("s_mov_b64 exec, -1")
    if OPT["ep_prio"]:
        a("s_setprio 0")
    a.label("L_p4_skip_c")
    return odd


def gen_fused():
    name = KNAME
    a = Asm()
    a.raw(f".globl {name}")
    a.raw(".p2align 8")
    a.raw(f".type {name},@function")
    a.label(name)
    a("s_cmp_ge_u32 s2, 256")
    a(f"s_cbranch_scc1 L_done")
    stamp_real(a)
    stamp(a)
    if OPT.get("spin"):
        a("s_memrealtime s[98:99]")
    c1, odd1, l1, aux = phase1(a)
    fb = phase2(c1, l1, aux)
    c1(f"s_cmp_ge_u32 s{sWave}, 4")
    c1("s_cbranch_scc0 L_compute")
    h = fork(c1)
    c = fork(c1)
    if OPT.get("det") == 2:
        h.nstamp, h.nostamp = 18, True
    c.label("L_compute")
    phase_res(c, h, True, pre_publish=55)
    odd = phase4(c, h)
    phase_res(c, h, False)
    if OPT.get("det") != 3:
        stamp_flush(h)
    h("s_endpgm")
    c("s_cmp_lg_u32 s2, 0")
    c("s_cbranch_scc1 L_nogen")
    c(f"s_cmp_lg_u32 s{sWave}, 0")
    c("s_cbranch_scc1 L_nogen")
    c(f"v_mov_b32 v12, {GEN}")
    c(f"v_mov_b32 v13, s{sTag}")
    c("s_mov_b64 exec, 1")
    c(f"buffer_store_dword v13, v12, {sr(sWS, 4)}, 0 offen sc1")
    if OPT.get("spin"):
        c("s_load_dwordx2 s[92:93], s[0:1], 64")
        c("s_memrealtime s[96:97]")
        c("s_waitcnt lgkmcnt(0)")
        c("s_sub_u32 s96, s96, s98")
        c("s_mov_b32 s94, 256")
        c("s_mov_b32 s95, 0x00020000")
        c("v_mov_b32 v12, 0")
        c("v_mov_b32 v13, s96")
        c("buffer_store_dword v13, v12, s[92:95], 0 offen")
        c.label("L_dbg_spin")
        c("s_memrealtime s[96:97]")
        c("s_waitcnt lgkmcnt(0)")
        c("s_sub_u32 s96, s96, s98")
        c(f"s_cmp_lt_u32 s96, {OPT['spin']}")
        c("s_cbranch_scc1 L_dbg_spin")
    c.label("L_nogen")
    stamp_flush(c)
    c.label("L_done")
    c("s_endpgm")
    text = (a.text() + l1.text() + aux.text() + odd1.text() + c1.text() + h.text() + c.text() + odd.text() + fb.text())
    return name, text, descriptor(name, 168, 0, sgpr=102), (256, 576, 163840)


DOC = """; ---------------------------------------------------------------------------------------------------------
;  P1 LN1+QKV GEMM   P2 attention   P3 Wo GEMM + residual   P4 LN2 + gate/up GEMM + sigmoid(g)*u   P5 down GEMM + residual
; * Softmax: exp2 of pre-scaled scores with 0 as a stand-in for the row max; after the row sums are known a run-time
;   share rows compare their XCC ids at run time: one XCD -> plain stores through the shared L2, otherwise
;   write-through stores. Consumers always read handed-over data with sc1 loads. All spins are bounded.
; ---------------------------------------------------------------------------------------------------------
"""


def build():
    name, text, desc, (g, b, lds) = gen_fused()
    ref = open(f"cdna_kernels/{NAME}.s.ref").read().split("\n")
    head = [l for l in ref if l.startswith(";") and "@launch" not in l]
    out = "\n".join(head) + "\n"
    out += f"; @launch grid=({g},1,1) block=({b},1,1) lds={lds}\n"
    out += '.amdgcn_target "amdgcn-amd-amdhsa--gfx950"\n' + DOC + '.text\n'
    bad = check_hazards(text, name)
    out += text
    out += "L_code_end:\n"
    out += '.section .rodata,"a"\n.p2align 6\n' + desc
    if bad:
        print("hazards:", bad)
    return out


OPT["k1_touch"] = 0

if __name__ == "__main__":
    path = sys.argv[1] if len(sys.argv) > 1 else f"cdna_kernels/{NAME}.s"
    for arg in sys.argv[2:]:
        if arg == "stamps":
            G.STAMPS = True
        else:
            k_, v_ = arg.split("=")
            OPT[k_] = int(v_)
    open(path, "w").write(build())
    print("wrote", path)
```
